```python
import torch

def _softmax(x, axis=-1):
    return torch.softmax(x, dim=axis)
def _gelu(x):
    return torch.nn.functional.gelu(x, approximate="tanh")
def _silu(x):
    return torch.nn.functional.silu(x)
def _sigmoid(x):
    return torch.sigmoid(x)
def _layernorm(x, axis=-1, eps=1e-5):
    m = x.mean(dim=axis, keepdim=True)
    v = x.var(dim=axis, keepdim=True, unbiased=False)
    return (x - m) / torch.sqrt(v + eps)
def _scatter_add(tgt, idx, src, axis=0):
    return tgt.clone().index_add_(axis, idx, src)
def _segment_sum(src, seg, n):
    out = torch.zeros((n,) + src.shape[1:], dtype=src.dtype)
    return out.index_add_(0, seg, src)
def _pad(x, pw):
    flat = tuple(v for pair in reversed(pw) for v in pair)
    return torch.nn.functional.pad(x, flat)

kernel_name = 'gated_mix__softmax_full_mha__glu_gated_bilinear__prompt'

def setup_inputs():

    _w = (lambda a: (lambda t: t.to(torch.bfloat16) if t.is_floating_point() else t)(torch.as_tensor(a)))
    def _A_setup():
        B, S, D = 1, 2048, 1024
        return {
            "x": _w((lambda *s: torch.randn(*s, dtype=torch.bfloat16) * 0.05)(B, S, D)),
            "wqkv": _w((lambda *s: torch.randn(*s, dtype=torch.bfloat16) * 0.8)(D, 3 * D)),
            "wo": _w((lambda *s: torch.randn(*s, dtype=torch.bfloat16) * 0.05)(D, D)),
        }
    _A_in = _A_setup()

    def _B_setup():
        B, S, D, F = 1, 2048, 1024, 3584
        return {
            "x": _w((lambda *s: torch.randn(*s, dtype=torch.bfloat16) * 0.05)(B, S, D)),
            "w_gate": _w((lambda *s: torch.randn(*s, dtype=torch.bfloat16) * 3.2)(D, F) * (D ** -0.5)),
            "w_up": _w((lambda *s: torch.randn(*s, dtype=torch.bfloat16) * 3.2)(D, F) * (D ** -0.5)),
            "w_down": _w((lambda *s: torch.randn(*s, dtype=torch.bfloat16) * 3.2)(F, D) * (F ** -0.5)),
        }
    _B_in = _B_setup()

    return {
        "A_x": _A_in["x"],
        "A_wqkv": _A_in["wqkv"],
        "A_wo": _A_in["wo"],
        "B_x": _B_in["x"],
        "B_w_gate": _B_in["w_gate"],
        "B_w_up": _B_in["w_up"],
        "B_w_down": _B_in["w_down"],
        "gate_w": _w((lambda *s: torch.randn(*s, dtype=torch.bfloat16) * 0.05)(1024) * 16.0),
    }

def reference(A_x, A_wqkv, A_wo, B_x, B_w_gate, B_w_up, B_w_down, gate_w):
    def _A_ref(x, wqkv, wo):
        B, S, D = x.shape
        H = 32; Dh = D // H
        qkv = (lambda x, *d: x.permute(*d))((x @ wqkv).reshape(B, S, 3, H, Dh), 2, 0, 3, 1, 4)
        q, k, v = qkv[0], qkv[1], qkv[2]
        scale = Dh ** -0.5
        scores = torch.einsum("bhqd,bhkd->bhqk", q, k) * scale
        p = _softmax(scores, axis=-1)
        o = torch.einsum("bhqk,bhkd->bhqd", p, v)
        return (lambda x, *d: x.permute(*d))(o, 0, 2, 1, 3).reshape(B, S, D) @ wo

    def _B_ref(x, w_gate, w_up, w_down):
        g = torch.einsum("bsd,df->bsf", x, w_gate)
        u = torch.einsum("bsd,df->bsf", x, w_up)
        h = g * u
        return torch.einsum("bsf,fd->bsd", h, w_down)

    x = A_x
    g = _sigmoid((x * gate_w).sum(-1, keepdims=True))
    a = _A_ref(x, A_wqkv, A_wo)
    b = _B_ref(x, B_w_gate, B_w_up, B_w_down)
    return g * a + (1 - g) * b
```

```python
import re

REG_RE = re.compile(r'^(-?)(?:abs\()?([vas])(?:(\d+)|\[(\d+):(\d+)\])\)?$')

def regs_of(op):
    op = op.strip()
    if op in ('vcc',): return {('s', 'vcc')}
    if op in ('exec',): return {('s', 'exec')}
    if op in ('m0',): return {('s', 'm0')}
    m = REG_RE.match(op)
    if not m: return set()
    k = m.group(2)
    if m.group(3) is not None: return {(k, int(m.group(3)))}
    return {(k, i) for i in range(int(m.group(4)), int(m.group(5)) + 1)}

TRANS = ('v_exp_f32', 'v_log_f32', 'v_rcp_f32', 'v_rsq_f32', 'v_sqrt_f32', 'v_sin_f32', 'v_cos_f32')

class Ins:
    __slots__ = ('text', 'op', 'kind', 'reads', 'writes', 'a', 'b', 'c', 'passes', 'wait_lgkm', 'wait_vm', 'nops', 'label', 'data', 'tag')
    def __init__(self, text, tag=None):
        self.text = text.strip()
        self.tag = tag
        self.wait_lgkm = None; self.wait_vm = None; self.nops = 0
        self.a = self.b = self.c = set(); self.passes = 0; self.data = set()
        self.label = None
        t = self.text.split(';')[0].strip()
        if t.endswith(':'):
            self.op = 'label'; self.kind = 'label'; self.label = t[:-1]; self.reads = set(); self.writes = set(); return
        if t.startswith('.') or t == '':
            self.op = 'directive'; self.kind = 'directive'; self.reads = set(); self.writes = set(); return
        parts = t.split(None, 1)
        op = parts[0]; self.op = op
        rest = parts[1] if len(parts) > 1 else ''
        ops = [o.strip() for o in rest.split(',')] if rest else []
        if ops:
            last = ops[-1].split()
            mods = last[1:]; ops[-1] = last[0] if last else ''
        else: mods = []
        R = [regs_of(o) for o in ops]
        def u(l):
            s = set()
            for x in l: s |= x
            return s
        reads = set(); writes = set()
        if op.startswith('v_mfma') or op.startswith('v_smfmac'):
            self.kind = 'mfma'
            self.passes = 8 if '32x32' in op else (4 if '16x16' in op else 2)
            writes = R[0]; self.a = R[1]; self.b = R[2]
            if op.startswith('v_smfmac'):
                self.c = R[0]; self.b = R[2] | R[3]
            else: self.c = R[3]
            reads = self.a | self.b | self.c
        elif op.startswith('ds_read') or op.startswith('ds_bpermute') or op.startswith('ds_swizzle'):
            self.kind = 'ds'; writes = R[0]; reads = u(R[1:])
        elif op.startswith('ds_'):
            self.kind = 'ds'; reads = u(R); self.data = u(R[1:])
        elif op.startswith('buffer_load') or op.startswith('global_load'):
            self.kind = 'vmem'
            if 'lds' in mods or '_lds_' in op:
                reads = u(R) | {('s', 'm0')}; self.tag = self.tag or 'dma'
            else:
                writes = R[0]; reads = u(R[1:])
        elif op.startswith('buffer_store'):
            self.kind = 'vmem'; reads = u(R); self.data = R[0]
        elif op.startswith('global_store'):
            self.kind = 'vmem'; reads = u(R); self.data = R[1]
        elif op.startswith('buffer_atomic'):
            self.kind = 'vmem'; reads = u(R); self.data = R[0]
            if 'sc0' in mods: writes = R[0]
        elif op.startswith('global_atomic'):
            self.kind = 'vmem'
            if 'sc0' in mods: writes = R[0]; reads = u(R[1:])
            else: reads = u(R)
        elif op in ('buffer_wbl2', 'buffer_inv'):
            self.kind = 'vmem'
        elif op.startswith('s_load') or op.startswith('s_memtime') or op.startswith('s_memrealtime'):
            self.kind = 'smem'; writes = R[0]; reads = u(R[1:])
        elif op == 's_waitcnt': self.kind = 'wait'
        elif op == 's_nop': self.kind = 'nop'
        elif op in ('s_barrier', 's_endpgm', 's_setprio', 's_sleep'): self.kind = 'salu'
        elif op.startswith('s_cbranch') or op == 's_branch':
            self.kind = 'branch'; self.label = ops[0]
        elif op.startswith('s_cmp') or op.startswith('s_bitcmp'):
            self.kind = 'salu'; reads = u(R)
        elif op.startswith('s_'):
            self.kind = 'salu'; writes = R[0]; reads = u(R[1:])
            if 'saveexec' in op: writes = writes | {('s', 'exec')}
        elif op.startswith('v_'):
            self.kind = 'valu'
            if op.startswith('v_cmp'):
                writes = R[0]; reads = u(R[1:])
                if op.startswith('v_cmpx'): writes = writes | {('s', 'exec')}
            elif op.startswith('v_permlane') and 'swap' in op:
                writes = R[0] | R[1]; reads = R[0] | R[1]
            elif op.startswith('v_add_co') or op.startswith('v_sub_co') or op.startswith('v_addc_co'):
                writes = R[0] | R[1]; reads = u(R[2:])
            elif op.startswith('v_fmac') or op.startswith('v_dot2c') or op.startswith('v_writelane'):
                writes = R[0]; reads = u(R)
            else:
                writes = R[0]; reads = u(R[1:])
        else:
            raise ValueError('unknown op ' + op)
        self.reads = reads; self.writes = writes
    @property
    def is_trans(self): return any(self.op.startswith(x) for x in TRANS)
    @property
    def is_dpp(self): return self.kind == 'valu' and ('row_' in self.text or 'quad_perm' in self.text or 'wave_' in self.text)

class Prog:
    def __init__(self):
        self.segs = {}; self.order = []; self.cur = None
    def seg(self, name):
        self.segs[name] = []; self.order.append(name); self.cur = self.segs[name]; return self
    def e(self, text, tag=None):
        for line in text.split('\n'):
            if line.strip(): self.cur.append(Ins(line, tag))
    def add(self, lst):
        for x in lst:
            if isinstance(x, Ins): self.cur.append(x)
            else: self.e(x)

    def _parse_wait(self, ins):
        vm = lg = None
        m = re.search(r'vmcnt\((\d+)\)', ins.text)
        if m: vm = int(m.group(1))
        m = re.search(r'lgkmcnt\((\d+)\)', ins.text)
        if m: lg = int(m.group(1))
        return vm, lg

    def auto_waits(self, traces):
        changed = True
        while changed:
            changed = False
            for tr in traces:
                lg = []; vm = []
                for sname in tr:
                    for ins in self.segs[sname]:
                        if ins.kind in ('label', 'directive'): continue
                        if ins.wait_lgkm is not None: lg = lg[len(lg) - ins.wait_lgkm:] if ins.wait_lgkm < len(lg) else lg
                        if ins.wait_vm is not None: vm = vm[len(vm) - ins.wait_vm:] if ins.wait_vm < len(vm) else vm
                        if ins.wait_lgkm == 0: lg = []
                        if ins.wait_vm == 0: vm = []
                        if ins.kind == 'wait':
                            v, l = self._parse_wait(ins)
                            if v is not None: vm = vm[len(vm) - v:] if 0 < v < len(vm) else ([] if v == 0 else vm)
                            if l is not None: lg = lg[len(lg) - l:] if 0 < l < len(lg) else ([] if l == 0 else lg)
                            continue
                        touched = ins.reads | ins.writes
                        for q, name, mx in ((lg, 'wait_lgkm', 15), (vm, 'wait_vm', 63)):
                            need = None
                            for i, (dst, smem) in enumerate(q):
                                if dst & touched:
                                    n = len(q) - 1 - i
                                    if smem or any(x[1] for x in q): n = 0
                                    need = n if need is None else min(need, n)
                            if need is not None:
                                need = min(need, mx)
                                old = getattr(ins, name)
                                if old is None or need < old:
                                    setattr(ins, name, need); changed = True
                                if need == 0: q[:] = []
                                else: q[:] = q[len(q) - need:]
                        if ins.kind == 'ds': lg.append((ins.writes, False))
                        elif ins.kind == 'smem':
                            lg.append((ins.writes, True))
                        elif ins.kind == 'vmem': vm.append((ins.writes, False))

    def hazards(self, traces, fix=True):
        total = 0
        changed = True
        while changed:
            changed = False
            for tr in traces:
                hist = []
                for sname in tr:
                    for ins in self.segs[sname]:
                        if ins.kind in ('label', 'directive'): continue
                        pre = ins.nops + (1 if (ins.wait_lgkm is not None or ins.wait_vm is not None) else 0)
                        need = 0
                        dist = pre
                        for p, pstates in reversed(hist):
                            req = self._req(p, ins)
                            if req > dist: need = max(need, req - dist)
                            dist += pstates
                            if dist > 24: break
                        if need:
                            if not fix: raise RuntimeError(f'hazard before {ins.text}')
                            ins.nops += need; total += need; changed = True; pre += need
                        own = 1
                        if ins.kind == 'nop': own = int(ins.text.split()[1]) + 1
                        hist.append((ins, own + pre))
                        if len(hist) > 40: hist.pop(0)
        return total

    @staticmethod
    def _req(p, c):
        r = 0
        pv = {x for x in p.writes if x[0] != 's'}
        ps = {x for x in p.writes if x[0] == 's'}
        if p.kind == 'mfma':
            n = p.passes
            idx = {2: 0, 4: 1, 8: 2, 16: 3}[n]
            if c.kind == 'mfma':
                if pv & (c.a | c.b): r = max(r, (5, 8, 12, 20)[idx])
                if pv & c.c:
                    same = (pv == c.c and n == c.passes)
                    r = max(r, (2, 0, 0, 0)[idx] if same else (4, 6, 10, 18)[idx])
                elif pv & c.writes: r = max(r, (5, 8, 12, 20)[idx])
            else:
                if pv & (c.reads | c.writes): r = max(r, (5, 8, 12, 20)[idx])
                if c.kind == 'valu' and (p.c & c.writes): r = max(r, (1, 3, 7, 15)[idx])
        if p.kind == 'valu':
            if c.kind == 'mfma' and pv & c.reads: r = max(r, 2)
            if c.kind == 'mfma' and ('s', 'exec') in ps: r = max(r, 4)
            if p.is_trans and c.kind == 'valu' and not c.is_trans and pv & c.reads: r = max(r, 1)
            if p.is_trans and c.kind in ('vmem', 'ds') and pv & c.reads: r = max(r, 1)
            if c.op.startswith('v_permlane') and pv & c.reads: r = max(r, 2)
            if c.is_dpp and pv & c.reads: r = max(r, 2)
            if (c.op.startswith('v_readfirstlane') or c.op.startswith('v_readlane')) and pv & c.reads: r = max(r, 1)
            if ps:
                if c.kind == 'vmem' and ps & c.reads: r = max(r, 5)
                if c.kind == 'valu' and ps & c.reads:
                    r = max(r, 4 if (c.op.startswith('v_readlane') or c.op.startswith('v_writelane') or c.op.startswith('v_div_fmas')) else 2)
                if ('s', 'vcc') in ps and c.op.startswith('v_cndmask') and 'vcc' in c.text: r = max(r, 2)
                if c.kind in ('salu', 'branch', 'smem') and (ps & c.reads or c.kind == 'branch'): r = max(r, 2)
                if ('s', 'exec') in ps and (c.is_dpp or c.op.startswith('v_permlane') or c.op.startswith('v_read')): r = max(r, 5)
        if p.kind == 'salu' and ('s', 'm0') in ps and ('s', 'm0') in c.reads and c.kind in ('vmem', 'ds', 'valu'): r = max(r, 1)
        if p.kind in ('vmem', 'ds') and len(p.data) >= 3 and (p.data & c.writes) and c.kind in ('valu', 'mfma'): r = max(r, 2)
        return r

    def text(self):
        out = []
        for s in self.order:
            for ins in self.segs[s]:
                n = ins.nops
                while n > 0:
                    k = min(n, 16); out.append(f'    s_nop {k-1}'); n -= k
                w = []
                if ins.wait_vm is not None: w.append(f'vmcnt({ins.wait_vm})')
                if ins.wait_lgkm is not None: w.append(f'lgkmcnt({ins.wait_lgkm})')
                if w: out.append('    s_waitcnt ' + ' '.join(w))
                out.append(ins.text if ins.kind in ('label', 'directive') else '    ' + ins.text)
        return '\n'.join(out) + '\n'

def rng(k, a, n):
    return f'{k}{a}' if n == 1 else f'{k}[{a}:{a+n-1}]'

class R:
    def __init__(self, k, a, n=1): self.k = k; self.a = a; self.n = n
    def __str__(self): return rng(self.k, self.a, self.n)
    def __getitem__(self, i):
        if isinstance(i, slice):
            st = i.start or 0; en = i.stop if i.stop is not None else self.n
            return R(self.k, self.a + st, en - st)
        return R(self.k, self.a + i, 1)

class Alloc:
    def __init__(self, k, start, end): self.k = k; self.p = start; self.end = end
    def __call__(self, n=1, align=1):
        if n > 1 and align == 1: align = 2 if self.k != 's' else (4 if n >= 4 else 2)
        self.p = (self.p + align - 1) // align * align
        r = R(self.k, self.p, n); self.p += n
        assert self.p <= self.end, f'out of {self.k} registers'
        return r
```

```python
from asmdsl import *
import math, struct

S = 2048; D = 1024; F = 3584; H = 32
WS_Q = 0
WS_KV = 4 << 20
WS_A = 12 << 20
NK3 = 144
WS_G = 32 << 20
WS_SIZE = 268435456
QSCALE = math.log2(math.e) / math.sqrt(32.0)

def f32bits(x): return struct.unpack('<I', struct.pack('<f', x))[0]

def kernel_header(name):
    return f""".text
.globl {name}
.p2align 8
.type {name},@function
{name}:
"""

def kernel_desc(name, nv=512, acc=256, ns=102):
    return f""".section .rodata,"a"
.p2align 6
.amdhsa_kernel {name}
  .amdhsa_next_free_vgpr {nv}
  .amdhsa_next_free_sgpr {ns}
  .amdhsa_accum_offset {acc}
  .amdhsa_group_segment_fixed_size 0
  .amdhsa_kernarg_size 88
  .amdhsa_user_sgpr_count 2
  .amdhsa_user_sgpr_kernarg_segment_ptr 1
  .amdhsa_system_sgpr_workgroup_id_x 1
  .amdhsa_float_denorm_mode_32 3
.end_amdhsa_kernel
"""

def srd(p, dst, ptr, off_s=None, off_imm=0, size=None, size_s=None):
    lo, hi = ptr[0], ptr[1]
    if off_s is not None:
        p.e(f's_add_u32 {dst[0]}, {lo}, {off_s}')
        p.e(f's_addc_u32 {dst[1]}, {hi}, 0')
        lo, hi = dst[0], dst[1]
    if off_imm > 0:
        p.e(f's_add_u32 {dst[0]}, {lo}, {off_imm}')
        p.e(f's_addc_u32 {dst[1]}, {hi}, 0')
    elif off_imm < 0:
        p.e(f's_sub_u32 {dst[0]}, {lo}, {-off_imm}')
        p.e(f's_subb_u32 {dst[1]}, {hi}, 0')
    elif off_s is None:
        p.e(f's_mov_b32 {dst[0]}, {lo}')
        p.e(f's_mov_b32 {dst[1]}, {hi}')
    if size_s is not None:
        p.e(f's_sub_u32 {dst[2]}, {size}, {size_s}')
    else:
        p.e(f's_mov_b32 {dst[2]}, {size}')
    p.e(f's_mov_b32 {dst[3]}, 0x00020000')

def place(slots, pos, ins):
    slots.setdefault(pos, []).append(ins)
```

```python
from gen_common import *

X0, X1, W0, W1 = 0, 32768, 65536, 106496
K1_LDS = 147456

def gen_k1(name='k1_kernel', hlayout=16):
    p = Prog()
    sa = Alloc('s', 4, 102)
    va = Alloc('v', 1, 256)
    aa = Alloc('a', 0, 256)
    ptr = sa(16, 4)
    px, pqkv, pwg, pwu, pgw = ptr[0:2], ptr[2:4], ptr[8:10], ptr[10:12], ptr[14:16]
    pws = sa(2)
    sx = sa(4); su = [sa(4) for _ in range(5)]; sws = sa(4); sgw = sa(4)
    s_mb, s_cg, s_w, s_wr, s_wc, s_t0, s_t1, s_t2 = [sa() for _ in range(8)]
    s_ox, s_ow0, s_ow1, s_str1, s_step1, s_cnt = [sa() for _ in range(6)]
    m0x = [[sa() for _ in range(2)] for _ in range(2)]
    m0w = [[sa() for _ in range(3)] for _ in range(2)]
    s_qs = sa(2); s_qkb = sa(); s_qkstr = sa(); s_hb = sa(); s_so = sa()

    vdx = [va() for _ in range(8)]
    vdw0 = [va() for _ in range(2)]; vdw1 = [va() for _ in range(2)]
    vxr = [va() for _ in range(2)]
    vwq = [va() for _ in range(2)]; vwg = [va() for _ in range(4)]
    vl, vt0, vt1, vt2, vt3 = [va() for _ in range(5)]
    vtmp = va(8, 4)
    xf = [[aa(4, 4) for _ in range(8)] for _ in range(2)]
    NSLOT = 4; DIST = 3
    wf = [aa(4, 4) for _ in range(NSLOT)]
    acc = [[None] * 8 for _ in range(10)]
    va.p = (va.p + 3) // 4 * 4
    for n in list(range(2, 10)) + [0, 1]:
        for m in range(8):
            acc[n][m] = va(4, 4) if va.p + 4 <= 256 else aa(4, 4)

    p.seg('pro')
    p.e(f"""
    s_cmp_ge_u32 s2, 256
    s_cbranch_scc1 {name}_end
    s_load_dwordx16 {ptr}, s[0:1], 0
    s_load_dwordx2 {pws}, s[0:1], 80
    v_lshrrev_b32 {vt0}, 6, v0
    v_and_b32 {vl}, 63, v0
    s_and_b32 {s_t0}, s2, 7
    v_readfirstlane_b32 {s_w}, {vt0}
    s_lshr_b32 {s_t1}, s2, 3
    s_and_b32 {s_mb}, {s_t1}, 7
    s_lshr_b32 {s_t1}, {s_t1}, 3
    s_lshl_b32 {s_cg}, {s_t0}, 2
    s_add_u32 {s_cg}, {s_cg}, {s_t1}
    s_lshr_b32 {s_wr}, {s_w}, 1
    s_and_b32 {s_wc}, {s_w}, 1
    """)
    p.e(f"""
    v_lshrrev_b32 {vt0}, 3, {vl}
    v_and_b32 {vt1}, 7, {vl}
    v_lshrrev_b32 {vt2}, 4, {vl}
    v_xor_b32 {vt1}, {vt1}, {vt2}
    v_lshlrev_b32 {vt3}, 11, {vt0}
    s_lshl_b32 {s_t0}, {s_w}, 17
    v_add_u32 {vt3}, {s_t0}, {vt3}
    v_lshl_add_u32 {vdx[0]}, {vt1}, 4, {vt3}
    v_xor_b32 {vt1}, 4, {vt1}
    v_lshl_add_u32 {vdx[1]}, {vt1}, 4, {vt3}
    v_add_u32 {vdx[1]}, {16384 - 1024}, {vdx[1]}
    """)
    for i in range(2, 8):
        p.e(f'v_add_u32 {vdx[i]}, {(i - i % 2) * 16384 - (i % 4 - i % 2) * 1024}, {vdx[i % 2]}')
    p.e(f"""
    s_cmp_ge_u32 {s_cg}, 28
    s_mov_b32 {s_str1}, 7168
    s_cmov_b32 {s_str1}, 6144
    s_lshl_b32 {s_step1}, {s_str1}, 6
    s_lshl_b32 {s_t0}, {s_w}, 4
    v_add_u32 {vt3}, {s_t0}, {vt0}
    v_and_b32 {vt2}, 2, {vt0}
    v_and_b32 {vt1}, 7, {vl}
    v_xor_b32 {vt1}, {vt1}, {vt2}
    v_lshlrev_b32 {vt1}, 4, {vt1}
    v_xor_b32 {vt2}, 64, {vt1}
    v_mul_u32_u24 {vdw0[0]}, 6144, {vt3}
    v_mul_u32_u24 {vdw1[0]}, {s_str1}, {vt3}
    v_add_u32 {vdw0[1]}, {8 * 6144 - 1024}, {vdw0[0]}
    s_lshl_b32 {s_t0}, {s_str1}, 3
    s_sub_u32 {s_t0}, {s_t0}, 1024
    v_add_u32 {vdw1[1]}, {s_t0}, {vdw1[0]}
    v_add_u32 {vdw0[0]}, {vdw0[0]}, {vt1}
    v_add_u32 {vdw1[0]}, {vdw1[0]}, {vt1}
    v_add_u32 {vdw0[1]}, {vdw0[1]}, {vt2}
    v_add_u32 {vdw1[1]}, {vdw1[1]}, {vt2}
    s_lshl_b32 {s_t0}, {s_w}, 13
    s_mul_i32 {s_t1}, {s_w}, 10240
    """)
    for st in range(2):
        for j in range(2): p.e(f's_add_u32 {m0x[st][j]}, {s_t0}, {(X0, X1)[st] + j * 4096}')
        for j in range(3): p.e(f's_add_u32 {m0w[st][j]}, {s_t1}, {(W0, W1)[st] + j * 4096}')
    p.e('s_waitcnt lgkmcnt(0)')
    p.e(f's_lshl_b32 {s_t0}, {s_mb}, 19')
    srd(p, sx, px, off_s=s_t0, size=S * D * 2, size_s=s_t0)
    p.e(f's_lshl_b32 {s_t0}, {s_cg}, 7')
    srd(p, su[0], pqkv, off_s=s_t0, size=D * 3072 * 2, size_s=s_t0)
    srd(p, sws, pws, size=WS_SIZE)
    srd(p, sgw, pgw, size=2048)
    p.e(f"""
    s_cmp_ge_u32 {s_cg}, 28
    s_cbranch_scc1 {name}_srdB
    """)
    p.seg('srdA')
    p.e(f's_lshl_b32 {s_t0}, {s_cg}, 8')
    for i in range(1, 5):
        base = pwg if i % 2 == 1 else pwu
        extra = (128 if i >= 3 else 0) - (2048 if i % 2 == 1 else 0)
        srd(p, su[i], base, off_s=s_t0, off_imm=extra, size=D * F * 2 - extra, size_s=s_t0)
    p.e(f's_branch {name}_srd_done')
    p.seg('srdB')
    p.e(f'{name}_srdB:')
    p.e(f's_sub_u32 {s_t0}, {s_cg}, 28')
    p.e(f's_lshl_b32 {s_t0}, {s_t0}, 9')
    for i in range(1, 5):
        extra = 4096 + 128 * (i - 1) - (2048 if i % 2 == 1 else 0)
        srd(p, su[i], pqkv, off_s=s_t0, off_imm=extra, size=D * 3072 * 2 - extra, size_s=s_t0)
    p.seg('pro2')
    p.e(f'{name}_srd_done:')

    def dma_list(st):
        L = []
        for u in range(5):
            for par in range(2):
                pre = [f's_mov_b32 m0, {m0w[st][u // 2]}'] if (u % 2 == 0 and par == 0) else []
                v = vdw0[par] if u == 0 else vdw1[par]
                so = s_ow0 if u == 0 else s_ow1
                L.append((pre, f'buffer_load_dwordx4 {v}, {su[u]}, {so} offen offset:{(u % 2) * 2048 + par * 1024} lds'))
        for i in range(8):
            pre = [f's_mov_b32 m0, {m0x[st][i // 4]}'] if i % 4 == 0 else []
            L.append((pre, f'buffer_load_dwordx4 {vdx[i]}, {sx}, {s_ox} offen offset:{(i % 4) * 1024} lds'))
        return L
    adv = [f's_add_u32 {s_ow0}, {s_ow0}, {64 * 6144}', f's_add_u32 {s_ow1}, {s_ow1}, {s_step1}', f's_add_u32 {s_ox}, {s_ox}, 128']

    p.e(f's_mov_b32 {s_ox}, 0\ns_mov_b32 {s_ow0}, 0\ns_mov_b32 {s_ow1}, 0')
    d0 = dma_list(0)
    for pre, ins in d0[10:] + d0[:10]:
        p.add(pre); p.e(ins)
    p.add(adv)
    gx = [acc[2][0], acc[2][1], acc[2][2], acc[2][3]]; gw = [acc[2][4], acc[2][5]]
    p.e(f"""
    s_lshl_b32 {s_t0}, {s_cg}, 3
    s_lshl_b32 {s_t1}, {s_w}, 1
    s_add_u32 {s_t2}, {s_t0}, {s_t1}
    s_lshl_b32 {s_t0}, {s_t2}, 11
    v_lshlrev_b32 {vt0}, 5, {vl}
    buffer_load_dwordx4 {gw[0]}, {vt0}, {sgw}, 0 offen
    buffer_load_dwordx4 {gw[1]}, {vt0}, {sgw}, 0 offen offset:16
    buffer_load_dwordx4 {gx[0]}, {vt0}, {sx}, {s_t0} offen
    buffer_load_dwordx4 {gx[1]}, {vt0}, {sx}, {s_t0} offen offset:16
    buffer_load_dwordx4 {gx[2]}, {vt0}, {sx}, {s_t0} offen offset:2048
    buffer_load_dwordx4 {gx[3]}, {vt0}, {sx}, {s_t0} offen offset:2064
    """)
    for pre, ins in dma_list(1):
        p.add(pre); p.e(ins)
    p.add(adv)
    p.e(f"""
    v_and_b32 {vt0}, 15, {vl}
    v_lshrrev_b32 {vt1}, 4, {vl}
    v_lshrrev_b32 {vt2}, 1, {vt0}
    v_xor_b32 {vt2}, {vt1}, {vt2}
    s_lshl_b32 {s_t0}, {s_wr}, 14
    v_lshl_add_u32 {vt3}, {vt0}, 7, {s_t0}
    v_lshl_add_u32 {vxr[0]}, {vt2}, 4, {vt3}
    v_xor_b32 {vxr[1]}, 64, {vxr[0]}
    v_lshrrev_b32 {vt2}, 1, {vt1}
    v_mul_u32_u24 {vt2}, 10240, {vt2}
    v_and_b32 {vt3}, 1, {vt1}
    v_lshl_add_u32 {vt2}, {vt3}, 10, {vt2}
    v_lshlrev_b32 {vt3}, 6, {vt3}
    v_add_u32 {vt2}, {vt2}, {vt3}
    v_lshrrev_b32 {vt3}, 2, {vt0}
    v_lshl_add_u32 {vt2}, {vt3}, 7, {vt2}
    v_lshrrev_b32 {vt3}, 3, {vt0}
    v_lshl_add_u32 {vt2}, {vt3}, 5, {vt2}
    v_and_b32 {vt3}, 3, {vt0}
    v_lshl_add_u32 {vt2}, {vt3}, 3, {vt2}
    v_add_u32 {vt2}, {W0}, {vt2}
    s_lshl_b32 {s_t0}, {s_wc}, 6
    v_xor_b32 {vwq[0]}, {s_t0}, {vt2}
    v_xor_b32 {vwq[1]}, 32, {vwq[0]}
    s_lshl_b32 {s_t0}, {s_wc}, 12
    s_add_u32 {s_t0}, {s_t0}, 2048
    v_add_u32 {vwg[0]}, {s_t0}, {vt2}
    v_xor_b32 {vwg[1]}, 32, {vwg[0]}
    v_xor_b32 {vwg[2]}, 64, {vwg[0]}
    v_xor_b32 {vwg[3]}, 0x60, {vwg[0]}
    """)
    z = [acc[2][6][0], acc[2][6][1]]
    t = acc[2][7]
    for r in range(2):
        for j in range(8):
            xr = gx[2 * r + j // 4][j % 4]; wr_ = gw[j // 4][j % 4]
            p.e(f"""
            v_lshlrev_b32 {t[0]}, 16, {xr}
            v_lshlrev_b32 {t[1]}, 16, {wr_}
            v_and_b32 {t[2]}, 0xffff0000, {xr}
            v_and_b32 {t[3]}, 0xffff0000, {wr_}
            v_mul_f32 {t[0]}, {t[0]}, {t[1]}
            v_mul_f32 {t[2]}, {t[2]}, {t[3]}
            v_cvt_pk_bf16_f32 {t[0]}, {t[0]}, {t[2]}
            v_lshlrev_b32 {t[1]}, 16, {t[0]}
            v_and_b32 {t[2]}, 0xffff0000, {t[0]}
            """)
            if j == 0: p.e(f'v_add_f32 {z[r]}, {t[1]}, {t[2]}')
            else: p.e(f'v_add_f32 {t[1]}, {t[1]}, {t[2]}\nv_add_f32 {z[r]}, {z[r]}, {t[1]}')
    for r in range(2):
        p.e(f"""
        v_add_f32_dpp {z[r]}, {z[r]}, {z[r]} quad_perm:[1,0,3,2] row_mask:0xf bank_mask:0xf
        v_add_f32_dpp {z[r]}, {z[r]}, {z[r]} quad_perm:[2,3,0,1] row_mask:0xf bank_mask:0xf
        v_add_f32_dpp {z[r]}, {z[r]}, {z[r]} row_half_mirror row_mask:0xf bank_mask:0xf
        v_add_f32_dpp {z[r]}, {z[r]}, {z[r]} row_mirror row_mask:0xf bank_mask:0xf
        v_mov_b32 {t[0]}, {z[r]}
        v_permlane16_swap_b32 {t[0]}, {z[r]}
        v_add_f32 {z[r]}, {z[r]}, {t[0]}
        v_mov_b32 {t[0]}, {z[r]}
        v_permlane32_swap_b32 {t[0]}, {z[r]}
        v_add_f32 {z[r]}, {z[r]}, {t[0]}
        """)
    p.e(f"""
    v_and_b32 {t[1]}, 1, {vl}
    v_cmp_eq_u32 vcc, 1, {t[1]}
    v_cndmask_b32 {t[0]}, {z[0]}, {z[1]}, vcc
    v_cvt_pk_bf16_f32 {t[0]}, {t[0]}, {t[0]}
    v_and_b32 {t[0]}, 0xffff0000, {t[0]}
    v_mul_f32 {t[0]}, {hex(f32bits(-math.log2(math.e)))}, {t[0]}
    v_exp_f32 {t[0]}, {t[0]}
    v_add_f32 {t[0]}, 1.0, {t[0]}
    v_rcp_f32 {t[0]}, {t[0]}
    v_cvt_pk_bf16_f32 {t[0]}, {t[0]}, {t[0]}
    v_and_b32 {t[0]}, 0xffff0000, {t[0]}
    v_sub_f32 {t[2]}, 1.0, {t[0]}
    v_cvt_pk_bf16_f32 {t[2]}, {t[2]}, {t[2]}
    v_and_b32 {t[2]}, 0xffff0000, {t[2]}
    v_and_b32 {t[3]}, 2, {vl}
    v_cmp_eq_u32 vcc, 2, {t[3]}
    v_cndmask_b32 {t[0]}, {t[0]}, {t[2]}, vcc
    v_lshlrev_b32 {t[3]}, 12, {t[3]}
    v_lshl_add_u32 {t[3]}, {t[1]}, 2, {t[3]}
    s_lshl_b32 {s_t0}, {s_mb}, 8
    s_add_u32 {s_t0}, {s_t0}, {s_t2}
    s_lshl_b32 {s_t0}, {s_t0}, 2
    s_add_u32 {s_t0}, {s_t0}, {WS_G}
    s_mov_b64 exec, 15
    buffer_store_dword {t[0]}, {t[3]}, {sws}, {s_t0} offen
    s_mov_b64 exec, -1
    s_waitcnt vmcnt(19)
    s_barrier
    """)

    def wread(j, st):
        ks, n = divmod(j, 10)
        slot = wf[j % NSLOT]
        if n < 2: base = vwq[n]; off = 0
        else: base = vwg[(n - 2) // 2]; off = ((n - 2) % 2) * 2048
        off += st * (W1 - W0) + ks * 20480
        return [f'ds_read_b64_tr_b16 {slot[2 * s:2 * s + 2]}, {base} offset:{off + s * 512}' for s in range(2)]
    def xread(m, ks, st):
        return f'ds_read_b128 {xf[ks][m]}, {vxr[ks]} offset:{st * (X1 - X0) + m * 2048}'

    for m in range(8): p.e(xread(m, 0, 0))
    for j in range(DIST): p.add(wread(j, 0))
    p.e(f's_cmp_ge_u32 {s_cg}, 28')
    p.e(f's_cbranch_scc1 {name}_B')

    def stage(st, typ, first=False, last=False):
        slots = {}
        for j in range(20):
            jj = j + DIST
            if jj < 20: rd = wread(jj, st)
            elif last: continue
            else: rd = wread(jj - 20, st ^ 1)
            place(slots, 8 * j + 0, rd[0]); place(slots, 8 * j + 2, rd[1])
        for m in range(8): place(slots, 8 * (1 + m) + 4, xread(m, 1, st))
        bar = 8 * (20 - DIST)
        if not last:
            for m, c in enumerate((1, 3, 4, 6, 9, 11, 12, 14)): place(slots, bar + c, xread(m, 0, st ^ 1))
            dl = dma_list(st)
            for k in range(6):
                pre, ins = dl[k]
                c = bar + 1 + 4 * k
                for x in pre: place(slots, c - 1, x)
                place(slots, c, ins)
        if not first and not last:
            dl = dma_list(st ^ 1)
            for k in range(6, 18):
                pre, ins = dl[k]
                c = 1 + 4 * (k - 6)
                for x in pre: place(slots, c - 1, x)
                place(slots, c, ins)
            for i, x in enumerate(adv): place(slots, 51 + 2 * i, x)
        for c in range(160):
            ks, r = divmod(c, 80); n, mi = divmod(r, 8)
            m = mi if n % 2 == 0 else 7 - mi
            if c == 0 and not first: p.e('s_waitcnt lgkmcnt(2)')
            if c == bar and not last:
                p.e('s_waitcnt vmcnt(0) lgkmcnt(0)')
                p.e('s_barrier')
            w = wf[(ks * 10 + n) % NSLOT]; x = xf[ks][m]
            a, b = (x, w) if (typ == 'B' and n >= 2) else (w, x)
            cin = '0' if (first and ks == 0) else str(acc[n][m])
            p.e(f'v_mfma_f32_16x16x32_bf16 {acc[n][m]}, {a}, {b}, {cin}')
            p.add(slots.get(c, []))

    def toreg(tile, tmp):
        if tile.k == 'v': return tile
        for i in range(4): p.e(f'v_accvgpr_read_b32 {tmp[i]}, {tile[i]}')
        return tmp

    def epilogue(typ):
        vq = vdx[0]; vh = vdx[1]
        qs = f32bits(QSCALE)
        p.e(f"""
        v_and_b32 {vt0}, 15, {vl}
        v_lshrrev_b32 {vt1}, 4, {vl}
        v_lshrrev_b32 {vt2}, 1, {vt1}
        v_lshlrev_b32 {vq}, 10, {vt2}
        v_and_b32 {vt2}, 1, {vt1}
        v_lshl_add_u32 {vq}, {vt2}, 9, {vq}
        v_lshl_add_u32 {vh}, {vt0}, 4, {vq}
        v_lshrrev_b32 {vt2}, 3, {vt0}
        v_lshl_add_u32 {vq}, {vt2}, 8, {vq}
        v_and_b32 {vt2}, 7, {vt0}
        v_lshl_add_u32 {vq}, {vt2}, 4, {vq}
        s_lshl_b32 {s_t0}, {s_cg}, 1
        s_add_u32 {s_t0}, {s_t0}, {s_wc}
        s_and_b32 {s_t0}, {s_t0}, 31
        s_lshl_b32 {s_t0}, {s_t0}, 6
        s_lshl_b32 {s_t1}, {s_mb}, 3
        s_add_u32 {s_t0}, {s_t0}, {s_t1}
        s_lshl_b32 {s_t2}, {s_wr}, 2
        s_add_u32 {s_t0}, {s_t0}, {s_t2}
        s_cmp_lt_u32 {s_cg}, 16
        s_mov_b32 {s_qkstr}, 4096
        s_cmov_b32 {s_qkstr}, 2048
        s_cselect_b32 {s_qkb}, {WS_Q}, {WS_KV}
        s_cselect_b32 {s_qs[0]}, {hex(qs)}, 1.0
        s_mov_b32 {s_qs[1]}, {s_qs[0]}
        s_mul_i32 {s_t0}, {s_t0}, {s_qkstr}
        s_add_u32 {s_qkb}, {s_qkb}, {s_t0}
        """)
        if typ == 'A':
            if hlayout == 16:
                p.e(f'v_lshlrev_b32 {vh}, 4, {vl}')
            p.e(f"""
            s_lshl_b32 {s_t0}, {s_mb}, 1
            s_add_u32 {s_t0}, {s_t0}, {s_wr}
            s_mul_i32 {s_t0}, {s_t0}, {NK3}
            s_lshl_b32 {s_t1}, {s_cg}, 2
            s_add_u32 {s_t0}, {s_t0}, {s_t1}
            s_lshl_b32 {s_t1}, {s_wc}, 1
            s_add_u32 {s_t0}, {s_t0}, {s_t1}
            s_lshl_b32 {s_t0}, {s_t0}, 13
            s_add_u32 {s_hb}, {s_t0}, {WS_A}
            """)
            for pp in range(2):
                for m in range(8):
                    g0, u0, g1, u1 = acc[2 + 4 * pp][m], acc[3 + 4 * pp][m], acc[4 + 4 * pp][m], acc[5 + 4 * pp][m]
                    assert g0.k == 'v'
                    u0 = toreg(u0, vtmp[0:4])
                    for i in range(2): p.e(f'v_pk_mul_f32 {g0[2*i:2*i+2]}, {g0[2*i:2*i+2]}, {u0[2*i:2*i+2]}')
                    g1 = toreg(g1, vtmp[0:4]); u1 = toreg(u1, vtmp[4:8])
                    for i in range(2): p.e(f'v_pk_mul_f32 {g1[2*i:2*i+2]}, {g1[2*i:2*i+2]}, {u1[2*i:2*i+2]}')
                    p.e(f'v_cvt_pk_bf16_f32 {g0[0]}, {g0[0]}, {g0[1]}')
                    p.e(f'v_cvt_pk_bf16_f32 {g0[1]}, {g0[2]}, {g0[3]}')
                    p.e(f'v_cvt_pk_bf16_f32 {g0[2]}, {g1[0]}, {g1[1]}')
                    p.e(f'v_cvt_pk_bf16_f32 {g0[3]}, {g1[2]}, {g1[3]}')
                    if hlayout == 16: off = m * 1024
                    else: off = (m // 2) * 2048 + (m % 2) * 256
                    if off % 4096 == 0 or (hlayout == 32 and m % 4 == 0):
                        p.e(f's_add_u32 {s_so}, {s_hb}, {pp * 8192 + (off // 4096) * 4096}')
                    p.e(f'buffer_store_dwordx4 {g0}, {vh}, {sws}, {s_so} offen offset:{off % 4096}')
        else:
            p.e(f"""
            s_sub_u32 {s_t0}, {s_cg}, 28
            s_lshl_b32 {s_t0}, {s_t0}, 3
            s_lshl_b32 {s_t1}, {s_wc}, 2
            s_add_u32 {s_t0}, {s_t0}, {s_t1}
            s_lshl_b32 {s_t0}, {s_t0}, 6
            s_lshl_b32 {s_t1}, {s_mb}, 3
            s_add_u32 {s_t0}, {s_t0}, {s_t1}
            s_add_u32 {s_t0}, {s_t0}, {s_t2}
            s_lshl_b32 {s_t0}, {s_t0}, 12
            s_add_u32 {s_hb}, {s_t0}, {WS_KV + 2048}
            """)
            for n in range(2, 10):
                nt = (n - 2) // 2; uu = (n - 2) % 2
                hl = 2 * uu + nt // 2
                for j in range(4):
                    o = acc[2][0] if acc[n][2 * j].k != 'v' else acc[n][2 * j]
                    t0 = toreg(acc[n][2 * j], vtmp[0:4]); t1 = toreg(acc[n][2 * j + 1], vtmp[4:8])
                    p.e(f'v_cvt_pk_bf16_f32 {o[0]}, {t0[0]}, {t0[1]}')
                    p.e(f'v_cvt_pk_bf16_f32 {o[1]}, {t0[2]}, {t0[3]}')
                    p.e(f'v_cvt_pk_bf16_f32 {o[2]}, {t1[0]}, {t1[1]}')
                    p.e(f'v_cvt_pk_bf16_f32 {o[3]}, {t1[2]}, {t1[3]}')
                    p.e(f's_add_u32 {s_so}, {s_hb}, {hl * 262144 + j * 4096}')
                    p.e(f'buffer_store_dwordx4 {o}, {vh}, {sws}, {s_so} offen offset:{(nt % 2) * 256}')
        for m in range(8):
            o = acc[3][m]
            t0 = toreg(acc[0][m], vtmp[0:4]); t1 = toreg(acc[1][m], vtmp[4:8])
            for tt in (t0, t1):
                for i in range(2): p.e(f'v_pk_mul_f32 {tt[2*i:2*i+2]}, {tt[2*i:2*i+2]}, {s_qs}')
            p.e(f'v_cvt_pk_bf16_f32 {o[0]}, {t0[0]}, {t0[1]}')
            p.e(f'v_cvt_pk_bf16_f32 {o[1]}, {t0[2]}, {t0[3]}')
            p.e(f'v_cvt_pk_bf16_f32 {o[2]}, {t1[0]}, {t1[1]}')
            p.e(f'v_cvt_pk_bf16_f32 {o[3]}, {t1[2]}, {t1[3]}')
            p.e(f'buffer_store_dwordx4 {o}, {vq}, {sws}, {s_qkb} offen offset:{(m % 2) * 128}')
            if m % 2 == 1 and m < 7: p.e(f's_add_u32 {s_qkb}, {s_qkb}, {s_qkstr}')

    for typ in 'AB':
        p.seg(f'{typ}0')
        if typ == 'B': p.e(f'{name}_B:')
        stage(0, typ, first=True)
        p.e(f's_mov_b32 {s_cnt}, 7')
        p.seg(f'{typ}loop')
        p.e(f'{name}_{typ}loop:')
        stage(1, typ); stage(0, typ)
        p.e(f's_sub_u32 {s_cnt}, {s_cnt}, 1\ns_cmp_lg_u32 {s_cnt}, 0\ns_cbranch_scc1 {name}_{typ}loop')
        p.seg(f'{typ}last')
        stage(1, typ, last=True)
        epilogue(typ)
        p.e('s_endpgm')
    p.seg('end')
    p.e(f'{name}_end:\ns_endpgm')
    traces = [['pro', 'srdA', 'pro2', 'A0', 'Aloop', 'Aloop', 'Alast'], ['pro', 'srdB', 'pro2', 'B0', 'Bloop', 'Bloop', 'Blast']]
    p.auto_waits(traces)
    nn = p.hazards(traces)
    return kernel_header(name) + p.text(), kernel_desc(name), dict(nops=nn, v=va.p, a=aa.p, s=sa.p)

if __name__ == '__main__':
    t, d, info = gen_k1()
    print(info)
    open('k1.s', 'w').write('.amdgcn_target "amdgcn-amd-amdhsa--gfx950"\n' + t + d)
```

```python
from gen_common import *

K2_LDS = 65536

def gen_k2(name='k2_kernel', hlayout=16, force_slow=False):
    p = Prog()
    sa = Alloc('s', 4, 102); va = Alloc('v', 1, 256); aa = Alloc('a', 0, 256)
    pws = sa(2); smask = sa(2)
    sws = sa(4); skv = sa(4)
    s_head, s_qb, s_w, s_t0, s_t1, s_okv, s_cnt, s_ob, s_thr = [sa() for _ in range(9)]
    m0s = [sa() for _ in range(4)]
    vl, vl16, vdma, vt0, vt1, vt2, vo, vidx = [va() for _ in range(8)]
    vg = va(2)
    ones = va(4, 4)
    Sx = [va(16, 4) for _ in range(2)]
    P = [va(8, 4) for _ in range(2)]
    C = [va(16, 4) for _ in range(2)]
    O = [va(16, 4) for _ in range(2)]
    L = [va(4, 4) for _ in range(2)]
    Q = [aa(8, 4) for _ in range(2)]
    K = [aa(8, 4) for _ in range(2)]
    V = [aa(8, 4) for _ in range(2)]

    p.seg('pro')
    p.e(f"""
    s_cmp_ge_u32 s2, 256
    s_cbranch_scc1 {name}_end
    s_load_dwordx2 {pws}, s[0:1], 80
    v_lshrrev_b32 {vt0}, 6, v0
    v_and_b32 {vl}, 63, v0
    s_and_b32 {s_t0}, s2, 7
    v_readfirstlane_b32 {s_w}, {vt0}
    s_lshr_b32 {s_t1}, s2, 3
    s_and_b32 {s_qb}, {s_t1}, 7
    s_lshr_b32 {s_t1}, {s_t1}, 3
    s_lshl_b32 {s_head}, {s_t0}, 2
    s_add_u32 {s_head}, {s_head}, {s_t1}
    v_lshlrev_b32 {vl16}, 4, {vl}
    s_lshl_b32 {s_t0}, {s_w}, 12
    v_add_u32 {vdma}, {s_t0}, {vl16}
    """)
    for i in range(4): p.e(f's_add_u32 {m0s[i]}, {s_t0}, {i * 16384}')
    p.e(f"""
    s_lshl_b32 {s_qb}, {s_qb}, 3
    s_lshl_b32 {s_t0}, {s_w}, 1
    s_add_u32 {s_qb}, {s_qb}, {s_t0}
    s_lshl_b32 {s_t0}, {s_head}, 18
    s_waitcnt lgkmcnt(0)
    """)
    srd(p, skv, pws, off_s=s_t0, off_imm=WS_KV, size=262144)
    srd(p, sws, pws, size=WS_SIZE)
    def dma(slot):
        return [f's_mov_b32 m0, {m0s[slot]}'] + [f'buffer_load_dwordx4 {vdma}, {skv}, {s_okv} offen offset:{i * 1024} lds' for i in range(4)] + [f's_add_u32 {s_okv}, {s_okv}, 16384']
    p.e(f's_mov_b32 {s_okv}, 0')
    p.add(dma(0))
    p.e(f"""
    s_lshl_b32 {s_t0}, {s_head}, 6
    s_add_u32 {s_t0}, {s_t0}, {s_qb}
    s_lshl_b32 {s_t0}, {s_t0}, 11
    """)
    if WS_Q: p.e(f's_add_u32 {s_t0}, {s_t0}, {WS_Q}')
    for q in range(2):
        for f in range(2):
            p.e(f'buffer_load_dwordx4 {Q[q][4*f:4*f+4]}, {vl16}, {sws}, {s_t0} offen offset:{q * 2048 + f * 1024}')
    p.e(f"""
    v_and_b32 {vt0}, 7, {vl}
    v_bfe_u32 {vt1}, {vl}, 3, 1
    v_bfe_u32 {vt2}, {vl}, 4, 1
    v_lshl_add_u32 {vt0}, {vt2}, 3, {vt0}
    v_lshl_add_u32 {vt2}, {vt1}, 4, {vt0}
    v_lshlrev_b32 {vo}, 2, {vt2}
    s_lshl_b32 {s_t0}, {s_qb}, 7
    s_add_u32 {s_t0}, {s_t0}, {WS_G}
    buffer_load_dword {vg[0]}, {vo}, {sws}, {s_t0} offen
    buffer_load_dword {vg[1]}, {vo}, {sws}, {s_t0} offen offset:128
    """)
    p.add(dma(1)); p.add(dma(2))
    if hlayout == 16:
        p.e(f"""
        v_lshlrev_b32 {vo}, 4, {vt0}
        v_lshl_add_u32 {vo}, {vt1}, 10, {vo}
        v_lshrrev_b32 {vt1}, 5, {vl}
        v_lshl_add_u32 {vo}, {vt1}, 8, {vo}
        """)
    else:
        p.e(f"""
        v_lshlrev_b32 {vo}, 4, {vt2}
        v_lshrrev_b32 {vt1}, 5, {vl}
        v_lshl_add_u32 {vo}, {vt1}, 9, {vo}
        """)
    p.e(f"""
    s_lshr_b32 {s_t0}, {s_qb}, 2
    s_mul_i32 {s_t0}, {s_t0}, {NK3}
    s_add_u32 {s_t0}, {s_t0}, {s_head}
    s_add_u32 {s_t0}, {s_t0}, 112
    s_lshl_b32 {s_t0}, {s_t0}, 13
    s_and_b32 {s_t1}, {s_qb}, 3
    s_lshl_b32 {s_t1}, {s_t1}, 11
    s_add_u32 {s_t0}, {s_t0}, {s_t1}
    s_add_u32 {s_ob}, {s_t0}, {WS_A}
    s_mov_b32 {s_thr}, {hex(f32bits(2.0 ** 40 if not force_slow else 0.5))}
    """)
    p.e(f"""
    v_bfe_u32 {vt0}, {vl}, 2, 1
    v_bfe_u32 {vt1}, {vl}, 1, 1
    v_mov_b32 {vt2}, 0x3f803f80
    v_or_b32 {vidx}, {vt0}, {vt1}
    v_cmp_eq_u32 vcc, 0, {vidx}
    v_cndmask_b32 {ones[0]}, 0, {vt2}, vcc
    v_cndmask_b32 {ones[1]}, 0, {vt2}, vcc
    v_xor_b32 {vt0}, 1, {vt0}
    v_or_b32 {vidx}, {vt0}, {vt1}
    v_cmp_eq_u32 vcc, 0, {vidx}
    v_cndmask_b32 {ones[2]}, 0, {vt2}, vcc
    v_cndmask_b32 {ones[3]}, 0, {vt2}, vcc
    v_and_b32 {vt0}, 1, {vl}
    v_cmp_eq_u32 vcc, 0, {vt0}
    v_mov_b32 {vt1}, 0xeeeeeeee
    v_mov_b32 {vt2}, 0x44444444
    v_cndmask_b32 {vidx}, {vt1}, {vt2}, vcc
    """)
    def zero_state():
        for q in range(2):
            for i in range(16): p.e(f'v_mov_b32 {O[q][i]}, 0')
            for i in range(4): p.e(f'v_mov_b32 {L[q][i]}, 0')
    zero_state()
    for i in range(8): p.e(f'v_mov_b32 {P[1][i]}, 0\nv_accvgpr_write_b32 {V[1][i]}, 0')
    p.e(f'v_mov_b32 {Sx[1][14]}, 0\nv_mov_b32 {Sx[1][15]}, 0')
    p.e('s_waitcnt vmcnt(8)\ns_barrier')
    def kread(kb):
        return [f'ds_read_b128 {K[kb % 2][4*f:4*f+4]}, {vl16} offset:{(kb % 16) * 4096 + f * 1024}' for f in range(2)]
    def vread(kb):
        return [f'ds_read_b128 {V[kb % 2][4*f:4*f+4]}, {vl16} offset:{(kb % 16) * 4096 + 2048 + f * 1024}' for f in range(2)]
    def qk(dst, kb, q, f, cin):
        return f'v_mfma_f32_32x32x16_bf16 {dst}, {K[kb % 2][4*f:4*f+4]}, {Q[q][4*f:4*f+4]}, {cin if f == 0 else dst}'
    def pv(j, f):
        q = j % 2; kb = (j // 2) % 2
        return f'v_mfma_f32_32x32x16_bf16 {O[q]}, {V[kb][4*f:4*f+4]}, {P[q][4*f:4*f+4]}, {O[q]}'
    def rsum(q):
        return f'v_smfmac_f32_16x16x64_bf16 {L[q]}, {ones}, {P[q]}, {vidx}'
    def rowmax(dst, src, init):
        lst = [src[i] for i in range(16)]
        if init:
            p.e(f'v_max3_f32 {dst}, {lst[0]}, {lst[1]}, {lst[2]}'); lst = lst[3:]
        while len(lst) >= 2:
            p.e(f'v_max3_f32 {dst}, {dst}, {lst[0]}, {lst[1]}'); lst = lst[2:]
        if lst: p.e(f'v_max_f32 {dst}, {dst}, {lst[0]}')
    def setc(q, m):
        p.e(f'v_mov_b32 {vt2}, {m}\nv_permlane32_swap_b32 {vt2}, {m}\nv_max_f32 {m}, {m}, {vt2}')
        for i in range(16): p.e(f'v_sub_f32 {C[q][i]}, 0, {m}')
    p.add(kread(0)); p.add(kread(1))
    for q in range(2):
        for f in range(2): p.e(qk(C[q], 0, q, f, '0'))
    rowmax(vt0, C[0], True); rowmax(vt1, C[1], True)
    setc(0, vt0); setc(1, vt1)
    p.e(qk(Sx[0], 0, 0, 0, C[0])); p.e(qk(Sx[0], 0, 0, 1, C[0]))
    p.e(f's_mov_b32 {s_cnt}, 4\ns_nop 10')

    def cvt(j, i):
        return f'v_cvt_pk_bf16_f32 {P[j % 2][i]}, {Sx[j % 2][2*i]}, {Sx[j % 2][2*i+1]}'
    def period(j):
        s = Sx[j % 2]
        E = [f'v_exp_f32 {s[i]}, {s[i]}' for i in range(16)]
        jn = j + 1
        m1 = qk(Sx[jn % 2], jn // 2, jn % 2, 0, C[jn % 2]); m2 = qk(Sx[jn % 2], jn // 2, jn % 2, 1, None)
        rd = kread((j + 1) // 2 + 1) if j % 2 == 1 else vread(j // 2)
        extra = [[] for _ in range(8)]
        pre = []
        if j % 8 == 5:
            pre = ['s_waitcnt vmcnt(4)', 's_barrier']
        if j % 8 in (5, 6):
            d = dma((j // 8 + 3) % 4)
            if j % 8 == 5: extra[1] += [d[0]]; extra[2] += [d[1]]; extra[4] += [d[2]]
            else: extra[2] += [d[3]]; extra[4] += [d[4], d[5]]
        seq = [E[0], cvt(j - 1, 7), m1] + pre + [rd[0], E[1], E[2], cvt(j, 0), E[3], m2, rd[1]] + extra[1] + [E[4], cvt(j, 1), E[5], E[6], pv(j - 1, 0)] + extra[2] + \
              [cvt(j, 2), E[7], E[8], cvt(j, 3), E[9], pv(j - 1, 1)] + extra[3] + [E[10], cvt(j, 4), E[11], E[12], rsum((j - 1) % 2)] + extra[4] + \
              [cvt(j, 5), E[13], E[14], cvt(j, 6), E[15]]
        p.add(seq)
    p.seg('loop')
    p.e(f'{name}_loop:')
    for j in range(32): period(j)
    p.e(f's_sub_u32 {s_cnt}, {s_cnt}, 1\ns_cmp_lg_u32 {s_cnt}, 0\ns_cbranch_scc1 {name}_loop')
    p.seg('tail')
    p.add([cvt(31, 7), pv(31, 0), pv(31, 1), rsum(1)])
    p.e(f"""
    v_add_f32 {vt0}, {L[0][0]}, {L[0][1]}
    v_add_f32 {vt1}, {L[1][0]}, {L[1][1]}
    v_cmp_nle_f32 vcc, {vt0}, {s_thr}
    v_cmp_nle_f32 {smask}, {vt1}, {s_thr}
    s_or_b64 vcc, vcc, {smask}
    s_cbranch_vccnz {name}_slow
    """)
    p.seg('epi')
    p.e(f'{name}_epi:')
    p.e(f"""
    v_rcp_f32 {vt0}, {vt0}
    v_rcp_f32 {vt1}, {vt1}
    v_mul_f32 {vt0}, {vt0}, {vg[0]}
    v_mul_f32 {vt1}, {vt1}, {vg[1]}
    """)
    for q in range(2):
        sc = (vt0, vt1)[q]
        for f in range(2):
            for i in range(8): p.e(f'v_mul_f32 {O[q][8*f+i]}, {O[q][8*f+i]}, {sc}')
            for i in range(4): p.e(f'v_cvt_pk_bf16_f32 {O[q][8*f+i]}, {O[q][8*f+2*i]}, {O[q][8*f+2*i+1]}')
            off = q * 2048 + (f * 512 if hlayout == 16 else f * 1024)
            p.e(f'buffer_store_dwordx4 {O[q][8*f:8*f+4]}, {vo}, {sws}, {s_ob} offen offset:{off}')
    p.e('s_endpgm')
    p.seg('slow0')
    p.e(f'{name}_slow:')
    p.e(f"""
    s_waitcnt vmcnt(0) lgkmcnt(0)
    v_mov_b32 {vt0}, 0xff800000
    v_mov_b32 {vt1}, 0xff800000
    s_mov_b32 {s_okv}, 0
    """)
    p.seg('slow1')
    p.e(f'{name}_slow1:')
    for f in range(2): p.e(f'buffer_load_dwordx4 {K[0][4*f:4*f+4]}, {vl16}, {skv}, {s_okv} offen offset:{f * 1024}')
    for q in range(2):
        for f in range(2): p.e(qk(Sx[q], 0, q, f, '0'))
    rowmax(vt0, Sx[0], False); rowmax(vt1, Sx[1], False)
    p.e(f's_add_u32 {s_okv}, {s_okv}, 4096\ns_cmp_lt_u32 {s_okv}, 262144\ns_cbranch_scc1 {name}_slow1')
    p.seg('slow2')
    setc(0, vt0); setc(1, vt1)
    zero_state()
    p.e(f's_mov_b32 {s_okv}, 0')
    p.seg('slow3')
    p.e(f'{name}_slow3:')
    for f in range(2): p.e(f'buffer_load_dwordx4 {K[0][4*f:4*f+4]}, {vl16}, {skv}, {s_okv} offen offset:{f * 1024}')
    for f in range(2): p.e(f'buffer_load_dwordx4 {V[0][4*f:4*f+4]}, {vl16}, {skv}, {s_okv} offen offset:{2048 + f * 1024}')
    for q in range(2):
        for f in range(2): p.e(qk(Sx[q], 0, q, f, C[q]))
    for q in range(2):
        for i in range(16): p.e(f'v_exp_f32 {Sx[q][i]}, {Sx[q][i]}')
        for i in range(8): p.e(cvt(q, i))
        p.add([pv(q, 0), pv(q, 1), rsum(q)])
    p.e(f's_add_u32 {s_okv}, {s_okv}, 4096\ns_cmp_lt_u32 {s_okv}, 262144\ns_cbranch_scc1 {name}_slow3')
    p.seg('slow4')
    p.e(f"""
    v_add_f32 {vt0}, {L[0][0]}, {L[0][1]}
    v_add_f32 {vt1}, {L[1][0]}, {L[1][1]}
    s_branch {name}_epi
    """)
    p.seg('end')
    p.e(f'{name}_end:\ns_endpgm')
    traces = [['pro', 'loop', 'loop', 'tail', 'epi'],
              ['pro', 'loop', 'tail', 'slow0', 'slow1', 'slow1', 'slow2', 'slow3', 'slow3', 'slow4', 'epi']]
    p.auto_waits(traces)
    nn = p.hazards(traces)
    return kernel_header(name) + p.text(), kernel_desc(name), dict(nops=nn, v=va.p, a=aa.p, s=sa.p)

if __name__ == '__main__':
    t, d, info = gen_k2()
    print(info)
    open('k2.s', 'w').write('.amdgcn_target "amdgcn-amd-amdhsa--gfx950"\n' + t + d)
```

```python
from gen_common import *

K3_LDS = 98304

def gen_k3(name='k3_kernel'):
    p = Prog()
    sa = Alloc('s', 4, 102); va = Alloc('v', 1, 256); aa = Alloc('a', 0, 256)
    ptr = sa(16, 4)
    pwo, pwd = ptr[4:6], ptr[12:14]
    pout = sa(2); pws = sa(2)
    sA = sa(4); swd = sa(4); swo = sa(4); sout = sa(4); sg = sa(4)
    s_mt, s_nt, s_w, s_t0, s_t1, s_oa, s_ow, s_cnt = [sa() for _ in range(8)]
    m0s = [sa() for _ in range(4)]
    vl, vl16, vl16b, vt0, vt1, vt2, vt3, vo = [va() for _ in range(8)]
    vdd = [va() for _ in range(4)]; vdo = [va() for _ in range(4)]
    vwr = [va() for _ in range(4)]
    vog = va(8, 2)
    tmp = va(32, 4)
    acc = [[va(4, 4) for _ in range(8)] for _ in range(4)]
    Af = [[aa(4, 4) for _ in range(8)] for _ in range(4)]
    Wf = [[aa(4, 4) for _ in range(4)] for _ in range(2)]

    p.seg('pro')
    p.e(f"""
    s_cmp_ge_u32 s2, 256
    s_cbranch_scc1 {name}_end
    s_load_dwordx16 {ptr}, s[0:1], 0
    s_load_dwordx2 {pout}, s[0:1], 64
    s_load_dwordx2 {pws}, s[0:1], 80
    v_lshrrev_b32 {vt0}, 6, v0
    v_and_b32 {vl}, 63, v0
    s_and_b32 {s_t0}, s2, 7
    v_readfirstlane_b32 {s_w}, {vt0}
    s_lshr_b32 {s_t1}, s2, 3
    s_lshr_b32 {s_mt}, {s_t0}, 1
    s_lshl_b32 {s_mt}, {s_mt}, 2
    s_and_b32 {s_nt}, {s_t0}, 1
    s_lshl_b32 {s_nt}, {s_nt}, 3
    s_and_b32 {s_t0}, {s_t1}, 3
    s_add_u32 {s_mt}, {s_mt}, {s_t0}
    s_lshr_b32 {s_t0}, {s_t1}, 2
    s_add_u32 {s_nt}, {s_nt}, {s_t0}
    v_lshlrev_b32 {vl16}, 4, {vl}
    v_add_u32 {vl16b}, 4096, {vl16}
    s_lshl_b32 {s_t0}, {s_w}, 14
    """)
    for i in range(4): p.e(f's_add_u32 {m0s[i]}, {s_t0}, {i * 4096}')
    p.e(f"""
    v_lshrrev_b32 {vt0}, 3, {vl}
    v_and_b32 {vt1}, 7, {vl}
    v_and_b32 {vt2}, 2, {vt0}
    v_xor_b32 {vt1}, {vt1}, {vt2}
    v_lshlrev_b32 {vt1}, 4, {vt1}
    v_and_b32 {vt2}, 3, {vt0}
    v_lshl_add_u32 {vt1}, {vt2}, 11, {vt1}
    v_lshrrev_b32 {vt0}, 2, {vt0}
    v_lshl_add_u32 {vdd[0]}, {vt0}, 15, {vt1}
    v_lshl_add_u32 {vdo[0]}, {vt0}, 14, {vt1}
    v_xor_b32 {vt2}, 64, {vdd[0]}
    v_xor_b32 {vt3}, 64, {vdo[0]}
    v_add_u32 {vdd[1]}, {4 * 2048 - 1024}, {vt2}
    v_add_u32 {vdd[2]}, {8 * 2048 - 2048}, {vdd[0]}
    v_add_u32 {vdd[3]}, {12 * 2048 - 3072}, {vt2}
    v_add_u32 {vdo[1]}, {4 * 2048 - 1024}, {vt3}
    v_add_u32 {vdo[2]}, {16 * 2048 - 2048}, {vdo[0]}
    v_add_u32 {vdo[3]}, {20 * 2048 - 3072}, {vt3}
    s_waitcnt lgkmcnt(0)
    s_mul_i32 {s_t0}, {s_mt}, {NK3 * 8192}
    """)
    srd(p, sA, pws, off_s=s_t0, off_imm=WS_A, size=NK3 * 8192)
    p.e(f's_lshl_b32 {s_t0}, {s_nt}, 7')
    srd(p, swd, pwd, off_s=s_t0, size=F * D * 2, size_s=s_t0)
    srd(p, swo, pwo, off_s=s_t0, size=D * D * 2, size_s=s_t0)
    p.e(f"""
    s_mul_i32 {s_oa}, {s_w}, {28 * 8192}
    s_mul_i32 {s_ow}, {s_w}, {28 * 65536}
    """)
    def loads(step):
        b = step % 4
        L = []
        if step == 28:
            L.append(f's_lshl_b32 {s_oa}, {s_w}, 16'); L.append(f's_add_u32 {s_oa}, {s_oa}, {112 * 8192}')
            L.append(f's_lshl_b32 {s_ow}, {s_w}, 19')
        L.append(f's_mov_b32 m0, {m0s[b]}')
        vd, sw = (vdd, swd) if step < 28 else (vdo, swo)
        for g in range(4): L.append(f'buffer_load_dwordx4 {vd[g]}, {sw}, {s_ow} offen offset:{g * 1024} lds')
        for m in range(8): L.append(f'buffer_load_dwordx4 {Af[b][m]}, {vl16 if m < 4 else vl16b}, {sA}, {s_oa} offen offset:{(m % 4) * 1024}')
        L.append(f's_add_u32 {s_oa}, {s_oa}, 8192'); L.append(f's_add_u32 {s_ow}, {s_ow}, 65536')
        return L
    for st in range(3): p.add(loads(st))
    p.e(f"""
    v_and_b32 {vt0}, 15, {vl}
    v_lshrrev_b32 {vt1}, 4, {vl}
    s_lshl_b32 {s_t0}, {s_w}, 14
    v_lshl_add_u32 {vt2}, {vt1}, 10, {s_t0}
    v_and_b32 {vt3}, 1, {vt1}
    v_lshl_add_u32 {vt2}, {vt3}, 6, {vt2}
    v_lshrrev_b32 {vt3}, 2, {vt0}
    v_lshl_add_u32 {vt2}, {vt3}, 7, {vt2}
    v_lshrrev_b32 {vt3}, 3, {vt0}
    v_lshl_add_u32 {vt2}, {vt3}, 5, {vt2}
    v_and_b32 {vt3}, 3, {vt0}
    v_lshl_add_u32 {vwr[0]}, {vt3}, 3, {vt2}
    v_xor_b32 {vwr[1]}, 32, {vwr[0]}
    v_xor_b32 {vwr[2]}, 64, {vwr[0]}
    v_xor_b32 {vwr[3]}, 0x60, {vwr[0]}
    s_lshl_b32 {s_t0}, {s_mt}, 9
    """)
    srd(p, sg, pws, off_s=s_t0, off_imm=WS_G + 8192, size=512)
    p.e(f'v_lshlrev_b32 {vt2}, 2, {vt0}')
    for m in range(8): p.e(f'buffer_load_dword {vog[m]}, {vt2}, {sg}, 0 offen offset:{m * 64}')
    p.e(f"""
    s_lshl_b32 {s_t0}, {s_mt}, 18
    s_lshl_b32 {s_t1}, {s_nt}, 7
    s_add_u32 {s_t0}, {s_t0}, {s_t1}
    """)
    srd(p, sout, pout, off_s=s_t0, size=S * D * 2, size_s=s_t0)
    p.e(f"""
    s_lshl_b32 {s_t0}, {s_w}, 16
    v_lshl_add_u32 {vo}, {vt0}, 11, {s_t0}
    v_and_b32 {vt3}, 1, {vt1}
    v_lshl_add_u32 {vo}, {vt3}, 5, {vo}
    v_lshrrev_b32 {vt3}, 1, {vt1}
    v_lshl_add_u32 {vo}, {vt3}, 4, {vo}
    """)
    def wreads(step):
        b = step % 4
        return [f'ds_read_b64_tr_b16 {Wf[step % 2][n][2*s:2*s+2]}, {vwr[n]} offset:{b * 4096 + s * 512}' for n in range(4) for s in range(2)]
    p.e('s_waitcnt vmcnt(40)')
    p.add(wreads(0))
    def step(st, first=False):
        slots = {}
        nl = 0
        if st + 3 < 36:
            L = loads(st + 3)
            c = 0
            for x in L:
                if x.startswith('buffer'):
                    place(slots, c, x); c += 2; nl += 1
                else: place(slots, max(c - 1, 0), x)
        if st + 1 < 36:
            after = 8 + (12 if st + 2 < 36 else 0) + nl
            place(slots, 23, f's_waitcnt vmcnt({after})')
            for i, x in enumerate(wreads(st + 1)): place(slots, 23 + i, x)
        if st == 28:
            for n in range(4):
                for m in range(8):
                    for i in range(4): p.e(f'v_mul_f32 {acc[n][m][i]}, {acc[n][m][i]}, {vog[m]}')
        for c in range(32):
            n, mi = divmod(c, 8); m = mi if n % 2 == 0 else 7 - mi
            cin = '0' if first else str(acc[n][m])
            p.e(f'v_mfma_f32_16x16x32_bf16 {acc[n][m]}, {Wf[st % 2][n]}, {Af[st % 4][m]}, {cin}')
            p.add(slots.get(c, []))
    step(0, first=True)
    p.e(f's_mov_b32 {s_cnt}, 6')
    p.seg('loop')
    p.e(f'{name}_loop:')
    for st in range(1, 5): step(st)
    p.e(f's_sub_u32 {s_cnt}, {s_cnt}, 1\ns_cmp_lg_u32 {s_cnt}, 0\ns_cbranch_scc1 {name}_loop')
    p.seg('tail')
    for st in range(25, 36): step(st)
    p.e('s_waitcnt lgkmcnt(0)\ns_barrier')
    for w in range(4):
        p.e(f's_cmp_lg_u32 {s_w}, {w}\ns_cbranch_scc1 {name}_r{w}')
        p.seg(f'red{w}')
        for d in range(4):
            if d == w: continue
            sl = (w - d - 1) % 4
            base = (d * 3 + sl) * 8192
            vb = vl16
            if base >= 65536 - 8192:
                p.e(f'v_add_u32 {vt0}, {base}, {vl16}'); vb = vt0; base = 0
            for j in range(2):
                for n in range(4): p.e(f'ds_write_b128 {vb}, {acc[n][2 * d + j]} offset:{base + (j * 4 + n) * 1024}')
        if w != 0:
            for j in range(2):
                for n in range(4):
                    for i in range(4): p.e(f'v_mov_b32 {acc[n][j][i]}, {acc[n][2 * w + j][i]}')
        p.e(f's_branch {name}_rdone')
        p.seg(f'redn{w}')
        p.e(f'{name}_r{w}:')
    p.seg('fin')
    p.e(f'{name}_rdone:')
    p.e(f"""
    s_mul_i32 {s_t0}, {s_w}, {3 * 8192}
    v_add_u32 {vt0}, {s_t0}, {vl16}
    s_waitcnt lgkmcnt(0)
    s_barrier
    """)
    buf = [tmp, R('v', acc[0][2].a, 24), R('v', acc[1][2].a, 24)]
    dst = {}
    free = [tmp[4*i:4*i+4] for i in range(8)] + [acc[n][m] for n in range(4) for m in range(2, 8)]
    for sl in range(3):
        for j in range(2):
            for n in range(4):
                r = free.pop(0); dst[(sl, j, n)] = r
                p.e(f'ds_read_b128 {r}, {vt0} offset:{sl * 8192 + (j * 4 + n) * 1024}')
    for sl in range(3):
        for j in range(2):
            for n in range(4):
                for i in range(2):
                    p.e(f'v_pk_add_f32 {acc[n][j][2*i:2*i+2]}, {acc[n][j][2*i:2*i+2]}, {dst[(sl, j, n)][2*i:2*i+2]}')
    for j in range(2):
        for pp in range(2):
            a0, a1 = acc[2 * pp][j], acc[2 * pp + 1][j]
            p.e(f"""
            v_cvt_pk_bf16_f32 {a0[0]}, {a0[0]}, {a0[1]}
            v_cvt_pk_bf16_f32 {a0[1]}, {a0[2]}, {a0[3]}
            v_cvt_pk_bf16_f32 {a0[2]}, {a1[0]}, {a1[1]}
            v_cvt_pk_bf16_f32 {a0[3]}, {a1[2]}, {a1[3]}
            v_permlane16_swap_b32 {a0[0]}, {a0[2]}
            v_permlane16_swap_b32 {a0[1]}, {a0[3]}
            """)
            if j == 1 and pp == 0: p.e(f'v_add_u32 {vo}, 32768, {vo}')
            p.e(f'buffer_store_dwordx4 {a0}, {vo}, {sout}, 0 offen offset:{pp * 64}')
    p.e('s_endpgm')
    p.seg('end')
    p.e(f'{name}_end:\ns_endpgm')
    traces = [['pro', 'loop', 'loop', 'tail'] + [f'redn{i}' for i in range(w)] + [f'red{w}', 'fin'] for w in range(4)]
    p.auto_waits(traces)
    nn = p.hazards(traces)
    return kernel_header(name) + p.text(), kernel_desc(name), dict(nops=nn, v=va.p, a=aa.p, s=sa.p)

if __name__ == '__main__':
    t, d, info = gen_k3()
    print(info)
    open('k3.s', 'w').write('.amdgcn_target "amdgcn-amd-amdhsa--gfx950"\n' + t + d)
```

```python
import sys
from gen_k1 import gen_k1, K1_LDS
from gen_k2 import gen_k2, K2_LDS
from gen_k3 import gen_k3, K3_LDS
REF = 'gated_mix__softmax_full_mha__glu_gated_bilinear__prompt.s.ref'
def build(force_slow=False):
    head = [l for l in open(REF).read().split('\n') if l.startswith(';') and '@launch' not in l and 'Override launch' not in l and 'grid=ceil' not in l]
    ks = [('k1_kernel', gen_k1(), K1_LDS), ('k2_kernel', gen_k2(force_slow=force_slow), K2_LDS), ('k3_kernel', gen_k3(), K3_LDS)]
    out = '\n'.join(head) + '\n'
    for n, _, lds in ks: out += f'; @launch kernel={n} grid=(256,1,1) block=(256,1,1) lds={lds}\n'
    out += '.amdgcn_target "amdgcn-amd-amdhsa--gfx950"\n'
    for n, (t, d, info), _ in ks:
        print(n, info, file=sys.stderr); out += t
    for n, (t, d, info), _ in ks: out += d
    return out
if __name__ == '__main__':
    dst = sys.argv[1] if len(sys.argv) > 1 else 'gated_mix__softmax_full_mha__glu_gated_bilinear__prompt.s'
    open(dst, 'w').write(build(force_slow='slow' in sys.argv))
```

```python
import re

REG_RE = re.compile(r'^(-?)(?:abs\()?([vas])(?:(\d+)|\[(\d+):(\d+)\])\)?$')

def regs_of(op):
    op = op.strip()
    if op in ('vcc',): return {('s', 'vcc')}
    if op in ('exec',): return {('s', 'exec')}
    if op in ('m0',): return {('s', 'm0')}
    m = REG_RE.match(op)
    if not m: return set()
    k = m.group(2)
    if m.group(3) is not None: return {(k, int(m.group(3)))}
    return {(k, i) for i in range(int(m.group(4)), int(m.group(5)) + 1)}

TRANS = ('v_exp_f32', 'v_log_f32', 'v_rcp_f32', 'v_rsq_f32', 'v_sqrt_f32', 'v_sin_f32', 'v_cos_f32')

class Ins:
    __slots__ = ('text', 'op', 'kind', 'reads', 'writes', 'a', 'b', 'c', 'passes', 'wait_lgkm', 'wait_vm', 'nops', 'label', 'data', 'tag')
    def __init__(self, text, tag=None):
        self.text = text.strip()
        self.tag = tag
        self.wait_lgkm = None; self.wait_vm = None; self.nops = 0
        self.a = self.b = self.c = set(); self.passes = 0; self.data = set()
        self.label = None
        t = self.text.split(';')[0].strip()
        if t.startswith('WAITTAG'):
            self.op = 'waittag'; self.kind = 'waittag'; self.label = t.split()[1:]; self.reads = set(); self.writes = set(); return
        if t.endswith(':'):
            self.op = 'label'; self.kind = 'label'; self.label = t[:-1]; self.reads = set(); self.writes = set(); return
        if t.startswith('.') or t == '':
            self.op = 'directive'; self.kind = 'directive'; self.reads = set(); self.writes = set(); return
        parts = t.split(None, 1)
        op = parts[0]; self.op = op
        rest = parts[1] if len(parts) > 1 else ''
        ops = [o.strip() for o in rest.split(',')] if rest else []
        if ops:
            last = ops[-1].split()
            mods = last[1:]; ops[-1] = last[0] if last else ''
        else: mods = []
        R = [regs_of(o) for o in ops]
        def u(l):
            s = set()
            for x in l: s |= x
            return s
        reads = set(); writes = set()
        if op.startswith('v_mfma') or op.startswith('v_smfmac'):
            self.kind = 'mfma'
            self.passes = 8 if '32x32' in op else (4 if '16x16' in op else 2)
            writes = R[0]; self.a = R[1]; self.b = R[2]
            if op.startswith('v_smfmac'):
                self.c = R[0]; self.b = R[2] | R[3]
            else: self.c = R[3]
            reads = self.a | self.b | self.c
        elif op.startswith('ds_read') or op.startswith('ds_bpermute') or op.startswith('ds_swizzle'):
            self.kind = 'ds'; writes = R[0]; reads = u(R[1:])
        elif op.startswith('ds_'):
            self.kind = 'ds'; reads = u(R); self.data = u(R[1:])
        elif op.startswith('buffer_load') or op.startswith('global_load'):
            self.kind = 'vmem'
            if 'lds' in mods or '_lds_' in op:
                reads = u(R) | {('s', 'm0')}; self.tag = self.tag or 'dma'
            else:
                writes = R[0]; reads = u(R[1:])
        elif op.startswith('buffer_store'):
            self.kind = 'vmem'; reads = u(R); self.data = R[0]
        elif op.startswith('global_store'):
            self.kind = 'vmem'; reads = u(R); self.data = R[1]
        elif op.startswith('buffer_atomic'):
            self.kind = 'vmem'; reads = u(R); self.data = R[0]
            if 'sc0' in mods: writes = R[0]
        elif op.startswith('global_atomic'):
            self.kind = 'vmem'
            if 'sc0' in mods: writes = R[0]; reads = u(R[1:])
            else: reads = u(R)
        elif op in ('buffer_wbl2', 'buffer_inv'):
            self.kind = 'vmem'
        elif op.startswith('s_load') or op.startswith('s_memtime') or op.startswith('s_memrealtime'):
            self.kind = 'smem'; writes = R[0]; reads = u(R[1:])
        elif op == 's_waitcnt': self.kind = 'wait'
        elif op == 's_nop': self.kind = 'nop'
        elif op in ('s_barrier', 's_endpgm', 's_setprio', 's_sleep'): self.kind = 'salu'
        elif op.startswith('s_cbranch') or op == 's_branch':
            self.kind = 'branch'; self.label = ops[0]
        elif op.startswith('s_cmp') or op.startswith('s_bitcmp'):
            self.kind = 'salu'; reads = u(R)
        elif op.startswith('s_'):
            self.kind = 'salu'; writes = R[0]; reads = u(R[1:])
            if 'saveexec' in op: writes = writes | {('s', 'exec')}
        elif op.startswith('v_'):
            self.kind = 'valu'
            if op.startswith('v_cmp'):
                writes = R[0]; reads = u(R[1:])
                if op.startswith('v_cmpx'): writes = writes | {('s', 'exec')}
            elif op.startswith('v_permlane') and 'swap' in op:
                writes = R[0] | R[1]; reads = R[0] | R[1]
            elif op.startswith('v_add_co') or op.startswith('v_sub_co') or op.startswith('v_addc_co'):
                writes = R[0] | R[1]; reads = u(R[2:])
            elif op.startswith('v_fmac') or op.startswith('v_dot2c') or op.startswith('v_writelane'):
                writes = R[0]; reads = u(R)
            else:
                writes = R[0]; reads = u(R[1:])
        else:
            raise ValueError('unknown op ' + op)
        self.reads = reads; self.writes = writes
    @property
    def is_trans(self): return any(self.op.startswith(x) for x in TRANS)
    @property
    def is_dpp(self): return self.kind == 'valu' and ('row_' in self.text or 'quad_perm' in self.text or 'wave_' in self.text)

class Prog:
    def __init__(self):
        self.segs = {}; self.order = []; self.cur = None
    def seg(self, name):
        self.segs[name] = []; self.order.append(name); self.cur = self.segs[name]; return self
    def e(self, text, tag=None):
        for line in text.split('\n'):
            if line.strip(): self.cur.append(Ins(line, tag))
    def add(self, lst):
        for x in lst:
            if isinstance(x, Ins): self.cur.append(x)
            else: self.e(x)

    def _parse_wait(self, ins):
        vm = lg = None
        m = re.search(r'vmcnt\((\d+)\)', ins.text)
        if m: vm = int(m.group(1))
        m = re.search(r'lgkmcnt\((\d+)\)', ins.text)
        if m: lg = int(m.group(1))
        return vm, lg

    def check_pf(self):
        dummy = set()
        for sg in self.segs.values():
            for ins in sg:
                if ins.tag == 'pf': dummy |= ins.writes
        for sg in self.segs.values():
            for ins in sg:
                if ins.tag != 'pf' and (ins.reads | ins.writes) & dummy:
                    raise RuntimeError('prefetch destination register reused: ' + ins.text)

    def auto_waits(self, traces):
        self.check_pf()
        changed = True
        while changed:
            changed = False
            for tr in traces:
                lg = []; vm = []
                for sname in tr:
                    for ins in self.segs[sname]:
                        if ins.kind in ('label', 'directive'): continue
                        if ins.wait_lgkm is not None: lg = lg[len(lg) - ins.wait_lgkm:] if ins.wait_lgkm < len(lg) else lg
                        if ins.wait_vm is not None: vm = vm[len(vm) - ins.wait_vm:] if ins.wait_vm < len(vm) else vm
                        if ins.wait_lgkm == 0: lg = []
                        if ins.wait_vm == 0: vm = []
                        if ins.kind == 'wait':
                            v, l = self._parse_wait(ins)
                            if v is not None: vm = vm[len(vm) - v:] if 0 < v < len(vm) else ([] if v == 0 else vm)
                            if l is not None: lg = lg[len(lg) - l:] if 0 < l < len(lg) else ([] if l == 0 else lg)
                            continue
                        if ins.kind == 'waittag':
                            need = None
                            for i, ent in enumerate(vm):
                                if ent[2] in ins.label: need = len(vm) - 1 - i
                            if need is not None:
                                need = min(need, 63)
                                if ins.wait_vm is None or need < ins.wait_vm:
                                    ins.wait_vm = need; changed = True
                                vm = vm[len(vm) - need:] if need else []
                            continue
                        touched = ins.reads | ins.writes
                        for q, name, mx in ((lg, 'wait_lgkm', 15), (vm, 'wait_vm', 63)):
                            need = None
                            for i, (dst, smem, _t) in enumerate(q):
                                if dst & touched:
                                    n = len(q) - 1 - i
                                    if smem or any(x[1] for x in q): n = 0
                                    need = n if need is None else min(need, n)
                            if need is not None:
                                need = min(need, mx)
                                old = getattr(ins, name)
                                if old is None or need < old:
                                    setattr(ins, name, need); changed = True
                                if need == 0: q[:] = []
                                else: q[:] = q[len(q) - need:]
                        if ins.kind == 'ds': lg.append((ins.writes, False, None))
                        elif ins.kind == 'smem':
                            lg.append((ins.writes, True, None))
                        elif ins.kind == 'vmem': vm.append((set() if ins.tag == 'pf' else ins.writes, False, ins.tag))

    def hazards(self, traces, fix=True):
        total = 0
        changed = True
        while changed:
            changed = False
            for tr in traces:
                hist = []
                for sname in tr:
                    for ins in self.segs[sname]:
                        if ins.kind in ('label', 'directive'): continue
                        pre = ins.nops + (1 if (ins.wait_lgkm is not None or ins.wait_vm is not None) else 0)
                        need = 0
                        dist = pre
                        for p, pstates in reversed(hist):
                            req = self._req(p, ins)
                            if req > dist: need = max(need, req - dist)
                            dist += pstates
                            if dist > 24: break
                        if need:
                            if not fix: raise RuntimeError(f'hazard before {ins.text}')
                            ins.nops += need; total += need; changed = True; pre += need
                        own = 0 if ins.kind == 'waittag' else 1
                        if ins.kind == 'nop': own = int(ins.text.split()[1]) + 1
                        hist.append((ins, own + pre))
                        if len(hist) > 40: hist.pop(0)
        return total

    @staticmethod
    def _req(p, c):
        r = 0
        pv = {x for x in p.writes if x[0] != 's'}
        ps = {x for x in p.writes if x[0] == 's'}
        if p.kind == 'mfma':
            n = p.passes
            idx = {2: 0, 4: 1, 8: 2, 16: 3}[n]
            if c.kind == 'mfma':
                if pv & (c.a | c.b): r = max(r, (5, 8, 12, 20)[idx])
                if pv & c.c:
                    same = (pv == c.c and n == c.passes)
                    r = max(r, (2, 0, 0, 0)[idx] if same else (4, 6, 10, 18)[idx])
                elif pv & c.writes: r = max(r, (5, 8, 12, 20)[idx])
            else:
                if pv & (c.reads | c.writes): r = max(r, (5, 8, 12, 20)[idx])
                if c.kind == 'valu' and (p.c & c.writes): r = max(r, (1, 3, 7, 15)[idx])
        if p.kind == 'valu':
            if c.kind == 'mfma' and pv & c.reads: r = max(r, 2)
            if c.kind == 'mfma' and ('s', 'exec') in ps: r = max(r, 4)
            if p.is_trans and c.kind == 'valu' and not c.is_trans and pv & c.reads: r = max(r, 1)
            if p.is_trans and c.kind in ('vmem', 'ds') and pv & c.reads: r = max(r, 1)
            if c.op.startswith('v_permlane') and pv & c.reads: r = max(r, 2)
            if c.is_dpp and pv & c.reads: r = max(r, 2)
            if (c.op.startswith('v_readfirstlane') or c.op.startswith('v_readlane')) and pv & c.reads: r = max(r, 1)
            if ps:
                if c.kind == 'vmem' and ps & c.reads: r = max(r, 5)
                if c.kind == 'valu' and ps & c.reads:
                    r = max(r, 4 if (c.op.startswith('v_readlane') or c.op.startswith('v_writelane') or c.op.startswith('v_div_fmas')) else 2)
                if ('s', 'vcc') in ps and c.op.startswith('v_cndmask') and 'vcc' in c.text: r = max(r, 2)
                if c.kind in ('salu', 'branch', 'smem') and (ps & c.reads or c.kind == 'branch'): r = max(r, 2)
                if ('s', 'exec') in ps and (c.is_dpp or c.op.startswith('v_permlane') or c.op.startswith('v_read')): r = max(r, 5)
        if p.kind == 'salu' and ('s', 'm0') in ps and ('s', 'm0') in c.reads and c.kind in ('vmem', 'ds', 'valu'): r = max(r, 1)
        if p.kind in ('vmem', 'ds') and len(p.data) >= 3 and (p.data & c.writes) and c.kind in ('valu', 'mfma'): r = max(r, 2)
        return r

    def text(self):
        out = []
        for s in self.order:
            for ins in self.segs[s]:
                n = ins.nops
                while n > 0:
                    k = min(n, 16); out.append(f'    s_nop {k-1}'); n -= k
                w = []
                if ins.wait_vm is not None: w.append(f'vmcnt({ins.wait_vm})')
                if ins.wait_lgkm is not None: w.append(f'lgkmcnt({ins.wait_lgkm})')
                if w: out.append('    s_waitcnt ' + ' '.join(w))
                if ins.kind == 'waittag': continue
                out.append(ins.text if ins.kind in ('label', 'directive') else '    ' + ins.text)
        return '\n'.join(out) + '\n'

def rng(k, a, n):
    return f'{k}{a}' if n == 1 else f'{k}[{a}:{a+n-1}]'

class R:
    def __init__(self, k, a, n=1): self.k = k; self.a = a; self.n = n
    def __str__(self): return rng(self.k, self.a, self.n)
    def __getitem__(self, i):
        if isinstance(i, slice):
            st = i.start or 0; en = i.stop if i.stop is not None else self.n
            return R(self.k, self.a + st, en - st)
        return R(self.k, self.a + i, 1)

class Alloc:
    def __init__(self, k, start, end): self.k = k; self.p = start; self.end = end
    def __call__(self, n=1, align=1):
        if n > 1 and align == 1: align = 2 if self.k != 's' else (4 if n >= 4 else 2)
        self.p = (self.p + align - 1) // align * align
        r = R(self.k, self.p, n); self.p += n
        assert self.p <= self.end, f'out of {self.k} registers'
        return r
```

```python
from asmdsl import *
import math, struct

S = 2048; D = 1024; F = 3584; H = 32
WS_Q = 0
WS_KV = 4 << 20
WS_A = 12 << 20
NK3 = 144
WS_G = 32 << 20
WS_SIZE = 268435456
QSCALE = math.log2(math.e) / math.sqrt(32.0)

def f32bits(x): return struct.unpack('<I', struct.pack('<f', x))[0]

def kernel_header(name):
    return f""".text
.globl {name}
.p2align 8
.type {name},@function
{name}:
"""

def kernel_desc(name, nv=512, acc=256, ns=102):
    return f""".section .rodata,"a"
.p2align 6
.amdhsa_kernel {name}
  .amdhsa_next_free_vgpr {nv}
  .amdhsa_next_free_sgpr {ns}
  .amdhsa_accum_offset {acc}
  .amdhsa_group_segment_fixed_size 0
  .amdhsa_kernarg_size 88
  .amdhsa_user_sgpr_count 2
  .amdhsa_user_sgpr_kernarg_segment_ptr 1
  .amdhsa_system_sgpr_workgroup_id_x 1
  .amdhsa_float_denorm_mode_32 3
.end_amdhsa_kernel
"""

def srd(p, dst, ptr, off_s=None, off_imm=0, size=None, size_s=None):
    lo, hi = ptr[0], ptr[1]
    if off_s is not None:
        p.e(f's_add_u32 {dst[0]}, {lo}, {off_s}')
        p.e(f's_addc_u32 {dst[1]}, {hi}, 0')
        lo, hi = dst[0], dst[1]
    if off_imm > 0:
        p.e(f's_add_u32 {dst[0]}, {lo}, {off_imm}')
        p.e(f's_addc_u32 {dst[1]}, {hi}, 0')
    elif off_imm < 0:
        p.e(f's_sub_u32 {dst[0]}, {lo}, {-off_imm}')
        p.e(f's_subb_u32 {dst[1]}, {hi}, 0')
    elif off_s is None:
        p.e(f's_mov_b32 {dst[0]}, {lo}')
        p.e(f's_mov_b32 {dst[1]}, {hi}')
    if size_s is not None:
        p.e(f's_sub_u32 {dst[2]}, {size}, {size_s}')
    else:
        p.e(f's_mov_b32 {dst[2]}, {size}')
    p.e(f's_mov_b32 {dst[3]}, 0x00020000')

def place(slots, pos, ins):
    slots.setdefault(pos, []).append(ins)

WS_PROF = 64 << 20
class Prof:
    def __init__(self, p, sa, on, kidx, t=None):
        self.p = p; self.on = on; self.n = 0; self.kidx = kidx
        if on:
            self.r = sa(16, 2); self.t = t or sa(4, 2); self.srd = R('s', 12, 4); self.ptr = R('s', 4, 2)
    def stamp(self, i=None):
        if not self.on: return
        if i is None: i = self.n
        self.n = max(self.n, i + 1)
        self.p.e(f"""
        s_waitcnt lgkmcnt(0)
        s_memrealtime {self.t[0:2]}
        s_memtime {self.t[2:4]}
        s_waitcnt lgkmcnt(0)
        s_mov_b32 {self.r[2 * i]}, {self.t[0]}
        s_mov_b32 {self.r[2 * i + 1]}, {self.t[2]}
        """)
    def trace_init(self, vreg, sidx):
        self.vt = vreg; self.si = sidx
        if self.on: self.p.e(f'v_mov_b32 {vreg}, 0\ns_mov_b32 {sidx}, 0')
    def trace(self):
        if not self.on: return
        self.p.e(f"""
        s_memtime {self.t[2:4]}
        s_mov_b32 m0, {self.si}
        s_add_u32 {self.si}, {self.si}, 1
        s_waitcnt lgkmcnt(0)
        v_writelane_b32 {self.vt}, {self.t[2]}, m0
        """)
    def flush(self, s_w):
        if not self.on: return
        p = self.p
        p.e('s_waitcnt vmcnt(0)')
        self.stamp(7)
        p.e(f's_load_dwordx2 {self.ptr}, s[0:1], 80\ns_waitcnt lgkmcnt(0)')
        srd(p, self.srd, self.ptr, off_imm=WS_PROF + self.kidx * 65536, size=65536)
        p.e(f's_lshl_b32 {self.t[0]}, s2, 2\ns_add_u32 {self.t[0]}, {self.t[0]}, {s_w}\ns_lshl_b32 {self.t[0]}, {self.t[0]}, 6')
        if getattr(self, 'vt', None) is not None:
            p.e(f's_lshl_b32 {self.t[1]}, {self.t[0]}, 2\ns_add_u32 {self.t[1]}, {self.t[1]}, {(1 << 20) + self.kidx * 3 * 65536}\ns_mov_b32 {self.srd[2]}, {4 << 20}')
            p.e(f'v_and_b32 v1, 63, v0\nv_lshlrev_b32 v1, 2, v1\nbuffer_store_dword {self.vt}, v1, {self.srd}, {self.t[1]} offen')
        p.e('v_mov_b32 v1, 0')
        for q in range(4):
            for i in range(4): p.e(f'v_mov_b32 v{4 + i}, {self.r[4 * q + i]}')
            p.e(f'buffer_store_dwordx4 v[4:7], v1, {self.srd}, {self.t[0]} offen offset:{16 * q}')
```

```python
from gen_common import *

K2_LDS = 65536

def gen_k2(name='k2_kernel', hlayout=32, force_slow=False, prof=False):
    p = Prog()
    sa = Alloc('s', 4, 102); va = Alloc('v', 1, 256); aa = Alloc('a', 0, 256)
    pws = sa(2); smask = sa(2)
    sws = sa(4); skv = sa(4)
    s_head, s_qb, s_w, s_t0, s_t1, s_okv, s_cnt, s_ob, s_thr, s_ob2 = [sa() for _ in range(10)]
    m0s = [sa() for _ in range(4)]
    vl, vl16, vdma, vt0, vt1, vt2, vo, vidx = [va() for _ in range(8)]
    vg = va(2)
    ones = va(4, 4)
    Sx = [va(16, 4) for _ in range(2)]
    P = [va(8, 4) for _ in range(2)]
    C = [va(16, 4) for _ in range(2)]
    O = [va(16, 4) for _ in range(2)]
    L = [va(4, 4) for _ in range(2)]
    Q = [aa(8, 4) for _ in range(2)]
    K = [aa(8, 4) for _ in range(2)]
    V = [aa(8, 4) for _ in range(2)]

    pf = Prof(p, sa, prof, 1)
    p.seg('pro')
    p.e(f"""
    s_cmp_ge_u32 s2, 256
    s_cbranch_scc1 {name}_end
    s_load_dwordx2 {pws}, s[0:1], 80
    v_lshrrev_b32 {vt0}, 6, v0
    v_and_b32 {vl}, 63, v0
    s_and_b32 {s_t0}, s2, 7
    v_readfirstlane_b32 {s_w}, {vt0}
    s_lshr_b32 {s_t1}, s2, 3
    s_and_b32 {s_qb}, {s_t1}, 7
    s_lshr_b32 {s_t1}, {s_t1}, 3
    s_lshl_b32 {s_head}, {s_t0}, 2
    s_add_u32 {s_head}, {s_head}, {s_t1}
    v_lshlrev_b32 {vl16}, 4, {vl}
    s_lshl_b32 {s_t0}, {s_w}, 12
    v_add_u32 {vdma}, {s_t0}, {vl16}
    """)
    for i in range(4): p.e(f's_add_u32 {m0s[i]}, {s_t0}, {i * 16384}')
    p.e(f"""
    s_lshl_b32 {s_qb}, {s_qb}, 3
    s_lshl_b32 {s_t0}, {s_w}, 1
    s_add_u32 {s_qb}, {s_qb}, {s_t0}
    s_lshl_b32 {s_t0}, {s_head}, 18
    s_waitcnt lgkmcnt(0)
    """)
    pf.stamp(0)
    srd(p, skv, pws, off_s=s_t0, off_imm=WS_KV, size=262144)
    srd(p, sws, pws, size=WS_SIZE)
    def dma(slot):
        return [f's_mov_b32 m0, {m0s[slot]}'] + [f'buffer_load_dwordx4 {vdma}, {skv}, {s_okv} offen offset:{i * 1024} lds' for i in range(4)] + [f's_add_u32 {s_okv}, {s_okv}, 16384']
    p.e(f's_mov_b32 {s_okv}, 0')
    p.add(dma(0))
    p.e(f"""
    s_lshl_b32 {s_t0}, {s_head}, 6
    s_add_u32 {s_t0}, {s_t0}, {s_qb}
    s_lshl_b32 {s_t0}, {s_t0}, 11
    """)
    if WS_Q: p.e(f's_add_u32 {s_t0}, {s_t0}, {WS_Q}')
    for q in range(2):
        for f in range(2):
            p.e(f'buffer_load_dwordx4 {Q[q][4*f:4*f+4]}, {vl16}, {sws}, {s_t0} offen offset:{q * 2048 + f * 1024}')
    p.e(f"""
    v_and_b32 {vt0}, 7, {vl}
    v_bfe_u32 {vt1}, {vl}, 3, 1
    v_bfe_u32 {vt2}, {vl}, 4, 1
    v_lshl_add_u32 {vt0}, {vt2}, 3, {vt0}
    v_lshl_add_u32 {vt2}, {vt1}, 4, {vt0}
    v_lshrrev_b32 {vo}, 3, {vt2}
    v_lshlrev_b32 {vo}, 7, {vo}
    v_and_b32 {vidx}, 7, {vt2}
    v_lshl_add_u32 {vo}, {vidx}, 2, {vo}
    s_lshl_b32 {s_t0}, {s_qb}, 9
    s_add_u32 {s_t0}, {s_t0}, {WS_G}
    buffer_load_dword {vg[0]}, {vo}, {sws}, {s_t0} offen
    buffer_load_dword {vg[1]}, {vo}, {sws}, {s_t0} offen offset:512
    """)
    p.add(dma(1)); p.add(dma(2))
    if hlayout == 16:
        p.e(f"""
        v_lshlrev_b32 {vo}, 4, {vt0}
        v_lshl_add_u32 {vo}, {vt1}, 10, {vo}
        v_lshrrev_b32 {vt1}, 5, {vl}
        v_lshl_add_u32 {vo}, {vt1}, 8, {vo}
        """)
    else:
        p.e(f"""
        v_lshlrev_b32 {vo}, 4, {vt2}
        v_lshrrev_b32 {vt1}, 5, {vl}
        v_lshl_add_u32 {vo}, {vt1}, 9, {vo}
        """)
    p.e(f"""
    s_lshr_b32 {s_t0}, {s_qb}, 2
    s_mul_i32 {s_t0}, {s_t0}, {NK3}
    s_add_u32 {s_t0}, {s_t0}, {s_head}
    s_add_u32 {s_t0}, {s_t0}, 112
    s_lshl_b32 {s_t0}, {s_t0}, 13
    s_and_b32 {s_t1}, {s_qb}, 3
    s_lshl_b32 {s_t1}, {s_t1}, 10
    s_add_u32 {s_t0}, {s_t0}, {s_t1}
    s_add_u32 {s_ob}, {s_t0}, {WS_A}
    s_add_u32 {s_ob2}, {s_ob}, 4096
    s_mov_b32 {s_thr}, {hex(f32bits(2.0 ** 40 if not force_slow else 0.5))}
    """)
    p.e(f"""
    v_bfe_u32 {vt0}, {vl}, 2, 1
    v_bfe_u32 {vt1}, {vl}, 1, 1
    v_mov_b32 {vt2}, 0x3f803f80
    v_or_b32 {vidx}, {vt0}, {vt1}
    v_cmp_eq_u32 vcc, 0, {vidx}
    v_cndmask_b32 {ones[0]}, 0, {vt2}, vcc
    v_cndmask_b32 {ones[1]}, 0, {vt2}, vcc
    v_xor_b32 {vt0}, 1, {vt0}
    v_or_b32 {vidx}, {vt0}, {vt1}
    v_cmp_eq_u32 vcc, 0, {vidx}
    v_cndmask_b32 {ones[2]}, 0, {vt2}, vcc
    v_cndmask_b32 {ones[3]}, 0, {vt2}, vcc
    v_and_b32 {vt0}, 1, {vl}
    v_cmp_eq_u32 vcc, 0, {vt0}
    v_mov_b32 {vt1}, 0xeeeeeeee
    v_mov_b32 {vt2}, 0x44444444
    v_cndmask_b32 {vidx}, {vt1}, {vt2}, vcc
    """)
    def zero_state():
        for q in range(2):
            for i in range(16): p.e(f'v_mov_b32 {O[q][i]}, 0')
            for i in range(4): p.e(f'v_mov_b32 {L[q][i]}, 0')
    zero_state()
    for i in range(8): p.e(f'v_mov_b32 {P[1][i]}, 0\nv_accvgpr_write_b32 {V[1][i]}, 0')
    p.e(f'v_mov_b32 {Sx[1][14]}, 0\nv_mov_b32 {Sx[1][15]}, 0')
    p.e('s_waitcnt vmcnt(8)\ns_barrier')
    def kread(kb):
        return [f'ds_read_b128 {K[kb % 2][4*f:4*f+4]}, {vl16} offset:{(kb % 16) * 4096 + f * 1024}' for f in range(2)]
    def vread(kb):
        return [f'ds_read_b128 {V[kb % 2][4*f:4*f+4]}, {vl16} offset:{(kb % 16) * 4096 + 2048 + f * 1024}' for f in range(2)]
    def qk(dst, kb, q, f, cin):
        return f'v_mfma_f32_32x32x16_bf16 {dst}, {K[kb % 2][4*f:4*f+4]}, {Q[q][4*f:4*f+4]}, {cin if f == 0 else dst}'
    def pv(j, f):
        q = j % 2; kb = (j // 2) % 2
        return f'v_mfma_f32_32x32x16_bf16 {O[q]}, {V[kb][4*f:4*f+4]}, {P[q][4*f:4*f+4]}, {O[q]}'
    def rsum(q):
        return f'v_smfmac_f32_16x16x64_bf16 {L[q]}, {ones}, {P[q]}, {vidx}'
    def rowmax(dst, src, init):
        lst = [src[i] for i in range(16)]
        if init:
            p.e(f'v_max3_f32 {dst}, {lst[0]}, {lst[1]}, {lst[2]}'); lst = lst[3:]
        while len(lst) >= 2:
            p.e(f'v_max3_f32 {dst}, {dst}, {lst[0]}, {lst[1]}'); lst = lst[2:]
        if lst: p.e(f'v_max_f32 {dst}, {dst}, {lst[0]}')
    def setc(q, m):
        p.e(f'v_mov_b32 {vt2}, {m}\nv_permlane32_swap_b32 {vt2}, {m}\nv_max_f32 {m}, {m}, {vt2}')
        for i in range(16): p.e(f'v_sub_f32 {C[q][i]}, 0, {m}')
    pf.stamp(1)
    p.add(kread(0)); p.add(kread(1))
    for q in range(2):
        for f in range(2): p.e(qk(C[q], 0, q, f, '0'))
    rowmax(vt0, C[0], True); rowmax(vt1, C[1], True)
    setc(0, vt0); setc(1, vt1)
    p.e(qk(Sx[0], 0, 0, 0, C[0])); p.e(qk(Sx[0], 0, 0, 1, C[0]))
    pf.stamp(2)
    p.e(f's_mov_b32 {s_cnt}, 4\ns_nop 10')

    def cvt(j, i):
        return f'v_cvt_pk_bf16_f32 {P[j % 2][i]}, {Sx[j % 2][2*i]}, {Sx[j % 2][2*i+1]}'
    def period(j):
        s = Sx[j % 2]
        E = [f'v_exp_f32 {s[i]}, {s[i]}' for i in range(16)]
        jn = j + 1
        m1 = qk(Sx[jn % 2], jn // 2, jn % 2, 0, C[jn % 2]); m2 = qk(Sx[jn % 2], jn // 2, jn % 2, 1, None)
        rd = kread((j + 1) // 2 + 1) if j % 2 == 1 else vread(j // 2)
        extra = [[] for _ in range(8)]
        pre = []
        if j % 8 == 5:
            pre = ['s_waitcnt vmcnt(4)', 's_barrier']
        if j % 8 in (5, 6):
            d = dma((j // 8 + 3) % 4)
            if j % 8 == 5: extra[1] += [d[0]]; extra[2] += [d[1]]; extra[4] += [d[2]]
            else: extra[2] += [d[3]]; extra[4] += [d[4], d[5]]
        seq = [E[0], cvt(j - 1, 7), m1] + pre + [rd[0], E[1], E[2], cvt(j, 0), E[3], m2, rd[1]] + extra[1] + [E[4], cvt(j, 1), E[5], E[6], pv(j - 1, 0)] + extra[2] + \
              [cvt(j, 2), E[7], E[8], cvt(j, 3), E[9], pv(j - 1, 1)] + extra[3] + [E[10], cvt(j, 4), E[11], E[12], rsum((j - 1) % 2)] + extra[4] + \
              [cvt(j, 5), E[13], E[14], cvt(j, 6), E[15]]
        p.add(seq)
    p.seg('loop')
    p.e(f'{name}_loop:')
    for j in range(32): period(j)
    p.e(f's_sub_u32 {s_cnt}, {s_cnt}, 1\ns_cmp_lg_u32 {s_cnt}, 0\ns_cbranch_scc1 {name}_loop')
    p.seg('tail')
    pf.stamp(3)
    p.add([cvt(31, 7), pv(31, 0), pv(31, 1), rsum(1)])
    p.e(f"""
    v_add_f32 {vt0}, {L[0][0]}, {L[0][1]}
    v_add_f32 {vt1}, {L[1][0]}, {L[1][1]}
    v_cmp_nle_f32 vcc, {vt0}, {s_thr}
    v_cmp_nle_f32 {smask}, {vt1}, {s_thr}
    s_or_b64 vcc, vcc, {smask}
    s_cbranch_vccnz {name}_slow
    """)
    p.seg('epi')
    p.e(f'{name}_epi:')
    p.e(f"""
    v_rcp_f32 {vt0}, {vt0}
    v_rcp_f32 {vt1}, {vt1}
    v_mul_f32 {vt0}, {vt0}, {vg[0]}
    v_mul_f32 {vt1}, {vt1}, {vg[1]}
    """)
    for q in range(2):
        sc = (vt0, vt1)[q]
        for f in range(2):
            for i in range(8): p.e(f'v_mul_f32 {O[q][8*f+i]}, {O[q][8*f+i]}, {sc}')
            for i in range(4): p.e(f'v_cvt_pk_bf16_f32 {O[q][8*f+i]}, {O[q][8*f+2*i]}, {O[q][8*f+2*i+1]}')
            off = q * 1024
            p.e(f'buffer_store_dwordx4 {O[q][8*f:8*f+4]}, {vo}, {sws}, {(s_ob, s_ob2)[f]} offen offset:{off}')
    pf.stamp(5)
    pf.flush(s_w)
    p.e('s_endpgm')
    p.seg('slow0')
    p.e(f'{name}_slow:')
    p.e(f"""
    s_waitcnt vmcnt(0) lgkmcnt(0)
    v_mov_b32 {vt0}, 0xff800000
    v_mov_b32 {vt1}, 0xff800000
    s_mov_b32 {s_okv}, 0
    """)
    p.seg('slow1')
    p.e(f'{name}_slow1:')
    for f in range(2): p.e(f'buffer_load_dwordx4 {K[0][4*f:4*f+4]}, {vl16}, {skv}, {s_okv} offen offset:{f * 1024}')
    for q in range(2):
        for f in range(2): p.e(qk(Sx[q], 0, q, f, '0'))
    rowmax(vt0, Sx[0], False); rowmax(vt1, Sx[1], False)
    p.e(f's_add_u32 {s_okv}, {s_okv}, 4096\ns_cmp_lt_u32 {s_okv}, 262144\ns_cbranch_scc1 {name}_slow1')
    p.seg('slow2')
    setc(0, vt0); setc(1, vt1)
    zero_state()
    p.e(f's_mov_b32 {s_okv}, 0')
    p.seg('slow3')
    p.e(f'{name}_slow3:')
    for f in range(2): p.e(f'buffer_load_dwordx4 {K[0][4*f:4*f+4]}, {vl16}, {skv}, {s_okv} offen offset:{f * 1024}')
    for f in range(2): p.e(f'buffer_load_dwordx4 {V[0][4*f:4*f+4]}, {vl16}, {skv}, {s_okv} offen offset:{2048 + f * 1024}')
    for q in range(2):
        for f in range(2): p.e(qk(Sx[q], 0, q, f, C[q]))
    for q in range(2):
        for i in range(16): p.e(f'v_exp_f32 {Sx[q][i]}, {Sx[q][i]}')
        for i in range(8): p.e(cvt(q, i))
        p.add([pv(q, 0), pv(q, 1), rsum(q)])
    p.e(f's_add_u32 {s_okv}, {s_okv}, 4096\ns_cmp_lt_u32 {s_okv}, 262144\ns_cbranch_scc1 {name}_slow3')
    p.seg('slow4')
    p.e(f"""
    v_add_f32 {vt0}, {L[0][0]}, {L[0][1]}
    v_add_f32 {vt1}, {L[1][0]}, {L[1][1]}
    s_branch {name}_epi
    """)
    p.seg('end')
    p.e(f'{name}_end:\ns_endpgm')
    traces = [['pro', 'loop', 'loop', 'tail', 'epi'],
              ['pro', 'loop', 'tail', 'slow0', 'slow1', 'slow1', 'slow2', 'slow3', 'slow3', 'slow4', 'epi']]
    p.auto_waits(traces)
    nn = p.hazards(traces)
    return kernel_header(name) + p.text(), kernel_desc(name), dict(nops=nn, v=va.p, a=aa.p, s=sa.p)

if __name__ == '__main__':
    t, d, info = gen_k2()
    print(info)
    open('k2.s', 'w').write('.amdgcn_target "amdgcn-amd-amdhsa--gfx950"\n' + t + d)
```

```python
from gen_common import *

K3_LDS = 98304

def gen_k3(name='k3_kernel', prof=False):
    p = Prog()
    sa = Alloc('s', 4, 102); va = Alloc('v', 1, 256); aa = Alloc('a', 0, 256)
    ptr = sa(16, 4)
    pwo, pwd = ptr[4:6], ptr[12:14]
    pout = sa(2); pws = sa(2)
    sA = sa(4); swd = sa(4); swo = sa(4); sout = sa(4); sg = sa(4)
    s_mt, s_nt, s_w, s_t0, s_t1, s_oa, s_ow, s_cnt = [sa() for _ in range(8)]
    m0s = [sa() for _ in range(4)]
    vl, vl16, vl16b, vt0, vt1, vt2, vt3, vo = [va() for _ in range(8)]
    vdd = [va() for _ in range(4)]; vdo = [va() for _ in range(4)]
    vwr = [va() for _ in range(4)]
    vog = va(8, 2)
    tmp = va(32, 4)
    acc = [[va(4, 4) for _ in range(8)] for _ in range(4)]
    Af = [[aa(4, 4) for _ in range(8)] for _ in range(4)]
    Wf = [[aa(4, 4) for _ in range(4)] for _ in range(2)]

    pf = Prof(p, sa, prof, 2)
    p.seg('pro')
    p.e(f"""
    s_cmp_ge_u32 s2, 256
    s_cbranch_scc1 {name}_end
    s_load_dwordx16 {ptr}, s[0:1], 0
    s_load_dwordx2 {pout}, s[0:1], 64
    s_load_dwordx2 {pws}, s[0:1], 80
    v_lshrrev_b32 {vt0}, 6, v0
    v_and_b32 {vl}, 63, v0
    s_and_b32 {s_t0}, s2, 7
    v_readfirstlane_b32 {s_w}, {vt0}
    s_lshr_b32 {s_t1}, s2, 3
    s_lshr_b32 {s_mt}, {s_t0}, 1
    s_lshl_b32 {s_mt}, {s_mt}, 2
    s_and_b32 {s_nt}, {s_t0}, 1
    s_lshl_b32 {s_nt}, {s_nt}, 3
    s_and_b32 {s_t0}, {s_t1}, 3
    s_add_u32 {s_mt}, {s_mt}, {s_t0}
    s_lshr_b32 {s_t0}, {s_t1}, 2
    s_add_u32 {s_nt}, {s_nt}, {s_t0}
    v_lshlrev_b32 {vl16}, 4, {vl}
    v_and_b32 {vt0}, 15, {vl}
    v_lshlrev_b32 {vl16b}, 4, {vt0}
    v_bfe_u32 {vt0}, {vl}, 4, 1
    v_lshl_add_u32 {vl16b}, {vt0}, 9, {vl16b}
    v_lshrrev_b32 {vt0}, 5, {vl}
    v_lshl_add_u32 {vl16b}, {vt0}, 12, {vl16b}
    s_lshl_b32 {s_t0}, {s_w}, 14
    """)
    for i in range(4): p.e(f's_add_u32 {m0s[i]}, {s_t0}, {i * 4096}')
    p.e(f"""
    v_lshrrev_b32 {vt0}, 3, {vl}
    v_and_b32 {vt1}, 7, {vl}
    v_and_b32 {vt2}, 2, {vt0}
    v_xor_b32 {vt1}, {vt1}, {vt2}
    v_lshlrev_b32 {vt1}, 4, {vt1}
    v_and_b32 {vt2}, 3, {vt0}
    v_lshl_add_u32 {vt1}, {vt2}, 11, {vt1}
    v_lshrrev_b32 {vt0}, 2, {vt0}
    v_lshl_add_u32 {vdd[0]}, {vt0}, 13, {vt1}
    v_lshl_add_u32 {vdo[0]}, {vt0}, 14, {vt1}
    v_xor_b32 {vt2}, 64, {vdd[0]}
    v_xor_b32 {vt3}, 64, {vdo[0]}
    v_add_u32 {vdd[1]}, {8 * 2048 - 1024}, {vt2}
    v_add_u32 {vdd[2]}, {16 * 2048 - 2048}, {vdd[0]}
    v_add_u32 {vdd[3]}, {24 * 2048 - 3072}, {vt2}
    v_add_u32 {vdo[1]}, {4 * 2048 - 1024}, {vt3}
    v_add_u32 {vdo[2]}, {16 * 2048 - 2048}, {vdo[0]}
    v_add_u32 {vdo[3]}, {20 * 2048 - 3072}, {vt3}
    s_waitcnt lgkmcnt(0)
    s_mul_i32 {s_t0}, {s_mt}, {NK3 * 8192}
    """)
    pf.stamp(0)
    srd(p, sA, pws, off_s=s_t0, off_imm=WS_A, size=NK3 * 8192)
    p.e(f's_lshl_b32 {s_t0}, {s_nt}, 7')
    srd(p, swd, pwd, off_s=s_t0, size=F * D * 2, size_s=s_t0)
    srd(p, swo, pwo, off_s=s_t0, size=D * D * 2, size_s=s_t0)
    p.e(f"""
    s_mul_i32 {s_oa}, {s_w}, {28 * 8192}
    s_mul_i32 {s_ow}, {s_w}, {28 * 65536}
    """)
    def loads(step):
        b = step % 4
        L = []
        if step == 28:
            L.append(f's_lshl_b32 {s_oa}, {s_w}, 16'); L.append(f's_add_u32 {s_oa}, {s_oa}, {112 * 8192}')
            L.append(f's_lshl_b32 {s_ow}, {s_w}, 19')
        L.append(f's_mov_b32 m0, {m0s[b]}')
        vd, sw = (vdd, swd) if step < 28 else (vdo, swo)
        for g in range(4): L.append(f'buffer_load_dwordx4 {vd[g]}, {sw}, {s_ow} offen offset:{g * 1024} lds')
        for m in range(8): L.append(f'buffer_load_dwordx4 {Af[b][m]}, {vl16b}, {sA}, {s_oa} offen offset:{(m // 2) * 1024 + (m % 2) * 256}')
        L.append(f's_add_u32 {s_oa}, {s_oa}, 8192'); L.append(f's_add_u32 {s_ow}, {s_ow}, 65536')
        return L
    for st in range(3): p.add(loads(st))
    p.e(f"""
    v_and_b32 {vt0}, 15, {vl}
    v_lshrrev_b32 {vt1}, 4, {vl}
    s_lshl_b32 {s_t0}, {s_w}, 14
    v_lshl_add_u32 {vt2}, {vt1}, 10, {s_t0}
    v_and_b32 {vt3}, 1, {vt1}
    v_lshl_add_u32 {vt2}, {vt3}, 6, {vt2}
    v_lshrrev_b32 {vt3}, 2, {vt0}
    v_lshl_add_u32 {vt2}, {vt3}, 7, {vt2}
    v_lshrrev_b32 {vt3}, 3, {vt0}
    v_lshl_add_u32 {vt2}, {vt3}, 5, {vt2}
    v_and_b32 {vt3}, 3, {vt0}
    v_lshl_add_u32 {vwr[0]}, {vt3}, 3, {vt2}
    v_xor_b32 {vwr[1]}, 32, {vwr[0]}
    v_xor_b32 {vwr[2]}, 64, {vwr[0]}
    v_xor_b32 {vwr[3]}, 0x60, {vwr[0]}
    s_lshl_b32 {s_t0}, {s_mt}, 11
    """)
    srd(p, sg, pws, off_s=s_t0, off_imm=WS_G, size=2048)
    p.e(f'v_lshrrev_b32 {vt2}, 3, {vt0}\nv_lshlrev_b32 {vt2}, 7, {vt2}\nv_and_b32 {vt3}, 7, {vt0}\nv_lshl_add_u32 {vt2}, {vt3}, 2, {vt2}')
    for m in range(8): p.e(f'buffer_load_dword {vog[m]}, {vt2}, {sg}, 0 offen offset:{m * 256 + 32}')
    p.e(f"""
    s_lshl_b32 {s_t0}, {s_mt}, 18
    s_lshl_b32 {s_t1}, {s_nt}, 7
    s_add_u32 {s_t0}, {s_t0}, {s_t1}
    """)
    srd(p, sout, pout, off_s=s_t0, size=S * D * 2, size_s=s_t0)
    p.e(f"""
    s_lshl_b32 {s_t0}, {s_w}, 16
    v_lshl_add_u32 {vo}, {vt0}, 11, {s_t0}
    v_and_b32 {vt3}, 1, {vt1}
    v_lshl_add_u32 {vo}, {vt3}, 5, {vo}
    v_lshrrev_b32 {vt3}, 1, {vt1}
    v_lshl_add_u32 {vo}, {vt3}, 4, {vo}
    """)
    def wreads(step):
        b = step % 4
        return [f'ds_read_b64_tr_b16 {Wf[step % 2][n][2*s:2*s+2]}, {vwr[n]} offset:{b * 4096 + s * 512}' for n in range(4) for s in range(2)]
    p.e('s_waitcnt vmcnt(40)')
    pf.stamp(1)
    p.add(wreads(0))
    def step(st, first=False):
        slots = {}
        nl = 0
        if st + 3 < 36:
            L = loads(st + 3)
            c = 0
            for x in L:
                if x.startswith('buffer'):
                    place(slots, c, x); c += 2; nl += 1
                else: place(slots, max(c - 1, 0), x)
        if st + 1 < 36:
            after = 8 + (12 if st + 2 < 36 else 0) + nl
            place(slots, 23, f's_waitcnt vmcnt({after})')
            for i, x in enumerate(wreads(st + 1)): place(slots, 23 + i, x)
        if st == 28:
            for n in range(4):
                for m in range(8):
                    for i in range(4): p.e(f'v_mul_f32 {acc[n][m][i]}, {acc[n][m][i]}, {vog[m]}')
        for c in range(32):
            n, mi = divmod(c, 8); m = mi if n % 2 == 0 else 7 - mi
            cin = '0' if first else str(acc[n][m])
            p.e(f'v_mfma_f32_16x16x32_bf16 {acc[n][m]}, {Wf[st % 2][n]}, {Af[st % 4][m]}, {cin}')
            p.add(slots.get(c, []))
    step(0, first=True)
    pf.stamp(2)
    p.e(f's_mov_b32 {s_cnt}, 6')
    p.seg('loop')
    p.e(f'{name}_loop:')
    for st in range(1, 5): step(st)
    p.e(f's_sub_u32 {s_cnt}, {s_cnt}, 1\ns_cmp_lg_u32 {s_cnt}, 0\ns_cbranch_scc1 {name}_loop')
    p.seg('tail')
    pf.stamp(3)
    for st in range(25, 36): step(st)
    pf.stamp(4)
    p.e('s_waitcnt lgkmcnt(0)\ns_barrier')
    for w in range(4):
        p.e(f's_cmp_lg_u32 {s_w}, {w}\ns_cbranch_scc1 {name}_r{w}')
        p.seg(f'red{w}')
        for d in range(4):
            if d == w: continue
            sl = (w - d - 1) % 4
            base = (d * 3 + sl) * 8192
            vb = vl16
            if base >= 65536 - 8192:
                p.e(f'v_add_u32 {vt0}, {base}, {vl16}'); vb = vt0; base = 0
            for j in range(2):
                for n in range(4): p.e(f'ds_write_b128 {vb}, {acc[n][2 * d + j]} offset:{base + (j * 4 + n) * 1024}')
        if w != 0:
            for j in range(2):
                for n in range(4):
                    for i in range(4): p.e(f'v_mov_b32 {acc[n][j][i]}, {acc[n][2 * w + j][i]}')
        p.e(f's_branch {name}_rdone')
        p.seg(f'redn{w}')
        p.e(f'{name}_r{w}:')
    p.seg('fin')
    p.e(f'{name}_rdone:')
    p.e(f"""
    s_mul_i32 {s_t0}, {s_w}, {3 * 8192}
    v_add_u32 {vt0}, {s_t0}, {vl16}
    s_waitcnt lgkmcnt(0)
    s_barrier
    """)
    buf = [tmp, R('v', acc[0][2].a, 24), R('v', acc[1][2].a, 24)]
    dst = {}
    free = [tmp[4*i:4*i+4] for i in range(8)] + [acc[n][m] for n in range(4) for m in range(2, 8)]
    for sl in range(3):
        for j in range(2):
            for n in range(4):
                r = free.pop(0); dst[(sl, j, n)] = r
                p.e(f'ds_read_b128 {r}, {vt0} offset:{sl * 8192 + (j * 4 + n) * 1024}')
    for sl in range(3):
        for j in range(2):
            for n in range(4):
                for i in range(2):
                    p.e(f'v_pk_add_f32 {acc[n][j][2*i:2*i+2]}, {acc[n][j][2*i:2*i+2]}, {dst[(sl, j, n)][2*i:2*i+2]}')
    for j in range(2):
        for pp in range(2):
            a0, a1 = acc[2 * pp][j], acc[2 * pp + 1][j]
            p.e(f"""
            v_cvt_pk_bf16_f32 {a0[0]}, {a0[0]}, {a0[1]}
            v_cvt_pk_bf16_f32 {a0[1]}, {a0[2]}, {a0[3]}
            v_cvt_pk_bf16_f32 {a0[2]}, {a1[0]}, {a1[1]}
            v_cvt_pk_bf16_f32 {a0[3]}, {a1[2]}, {a1[3]}
            v_permlane16_swap_b32 {a0[0]}, {a0[2]}
            v_permlane16_swap_b32 {a0[1]}, {a0[3]}
            """)
            if j == 1 and pp == 0: p.e(f'v_add_u32 {vo}, 32768, {vo}')
            p.e(f'buffer_store_dwordx4 {a0}, {vo}, {sout}, 0 offen offset:{pp * 64}')
    pf.stamp(5)
    pf.flush(s_w)
    p.e('s_endpgm')
    p.seg('end')
    p.e(f'{name}_end:\ns_endpgm')
    traces = [['pro', 'loop', 'loop', 'tail'] + [f'redn{i}' for i in range(w)] + [f'red{w}', 'fin'] for w in range(4)]
    p.auto_waits(traces)
    nn = p.hazards(traces)
    return kernel_header(name) + p.text(), kernel_desc(name), dict(nops=nn, v=va.p, a=aa.p, s=sa.p)

if __name__ == '__main__':
    t, d, info = gen_k3()
    print(info)
    open('k3.s', 'w').write('.amdgcn_target "amdgcn-amd-amdhsa--gfx950"\n' + t + d)
```

```python
from gen_common import *

X0, X1, W0, W1 = 0, 32768, 65536, 106496
K1_LDS = 147456

def gen_k1(name='k1_kernel', prof=False, pfm=1, st_mod='', pfd=3, ptrace=0, xpf=1, cq=8, cg=6.5, cx=4):
    p = Prog()
    sa = Alloc('s', 4, 102); va = Alloc('v', 1, 256); aa = Alloc('a', 0, 256)
    ptr = sa(16, 4)
    px, pqkv, pwo, pwg, pwu, pwd, pgw = ptr[0:2], ptr[2:4], ptr[4:6], ptr[8:10], ptr[10:12], ptr[12:14], ptr[14:16]
    pws = sa(2)
    sx = sa(4); sq = sa(4); sg = sa(4); sws = sa(4); spf = sa(4); sp2 = sa(4)
    s_mb, s_h, s_w, s_wr, s_wc, s_t0, s_t1, s_t2, s_c0, s_c1 = [sa() for _ in range(10)]
    s_ox, s_oq, s_og, s_cnt, s_pfo, s_pfs, s_gs, s_tr = [sa() for _ in range(8)]
    m0x = [[sa() for _ in range(2)] for _ in range(2)]
    m0w = [[sa() for _ in range(3)] for _ in range(2)]
    pf = Prof(p, sa, prof, 0)

    vdx = [va() for _ in range(8)]; vdq = [va() for _ in range(3)]; vdg = [va() for _ in range(7)]
    vxr = [va() for _ in range(2)]; vqr = [va() for _ in range(2)]; vgr = [va() for _ in range(2)]
    vl, vt0, vt1, vt2, vt3, vpf, vpd = [va() for _ in range(7)]
    vtmp = va(32, 4)
    xf = [[aa(4, 4) for _ in range(8)] for _ in range(2)]
    NSLOT = 4; DIST = 3
    wf = [aa(4, 4) for _ in range(NSLOT)]
    acc = [[None] * 8 for _ in range(10)]
    for n in list(range(4, 10)) + [0, 1, 2, 3]:
        for m in range(8):
            acc[n][m] = va(4, 4) if va.p + 4 <= 256 else aa(4, 4)

    def dma_x(st):
        L = []
        for i in range(8):
            pre = [f's_mov_b32 m0, {m0x[st][i // 4]}'] if i % 4 == 0 else []
            L.append((pre, Ins(f'buffer_load_dwordx4 {vdx[i]}, {sx}, {s_ox} offen offset:{(i % 4) * 1024} lds', f'S{st}')))
        return L
    def dma_w(st):
        L = []
        for i in range(10):
            pre = [f's_mov_b32 m0, {m0w[st][i // 4]}'] if i % 4 == 0 else []
            v, sr, so = (vdq[i - 7], sq, s_oq) if i >= 7 else (vdg[i], sg, s_og)
            L.append((pre, Ins(f'buffer_load_dwordx4 {v}, {sr}, {so} offen offset:{(i % 4) * 1024} lds', f'S{st}')))
        return L
    def emit(lst):
        for pre, ins in lst:
            p.add(pre); p.add([ins])
    adv = [f's_add_u32 {s_oq}, {s_oq}, {64 * 6144}', f's_add_u32 {s_og}, {s_og}, {64 * 7168}', f's_add_u32 {s_ox}, {s_ox}, 128']

    p.seg('pro')
    p.e(f"""
    s_cmp_ge_u32 s2, 256
    s_cbranch_scc1 {name}_end
    s_load_dwordx16 {ptr}, s[0:1], 0
    s_load_dwordx2 {pws}, s[0:1], 80
    v_lshrrev_b32 {vt0}, 6, v0
    v_and_b32 {vl}, 63, v0
    s_lshr_b32 {s_t1}, s2, 3
    v_readfirstlane_b32 {s_w}, {vt0}
    s_and_b32 {s_mb}, {s_t1}, 7
    s_and_b32 {s_t0}, s2, 7
    s_lshr_b32 {s_t1}, {s_t1}, 3
    s_lshl_b32 {s_h}, {s_t0}, 2
    s_add_u32 {s_h}, {s_h}, {s_t1}
    s_lshr_b32 {s_wr}, {s_w}, 1
    s_and_b32 {s_wc}, {s_w}, 1
    """)
    if xpf:
        p.e(f"""
        v_and_b32 {vt0}, 7, {vl}
        v_lshrrev_b32 {vt1}, 3, {vl}
        v_mul_u32_u24 {vt2}, 86, {vt1}
        v_lshrrev_b32 {vt2}, 8, {vt2}
        v_mad_i32_i24 {vt1}, {vt2}, -3, {vt1}
        v_lshl_add_u32 {vt0}, {vt2}, 6, {vt0}
        s_lshl_b32 {s_t0}, {s_mb}, 3
        v_add_u32 {vt0}, {s_t0}, {vt0}
        s_cmp_eq_u32 {s_w}, 3
        s_movk_i32 {s_c0}, 7168
        s_cmov_b32 {s_c0}, 6144
        s_movk_i32 {s_c1}, 108
        s_cmov_b32 {s_c1}, 2048
        v_mul_u32_u24 {vt0}, {s_c0}, {vt0}
        v_mad_u32_u24 {vpf}, {vt1}, {s_c1}, {vt0}
        v_cmp_gt_u32 vcc, 48, {vl}
        s_lshl_b32 {s_t0}, {s_t1}, 17
        v_lshl_add_u32 {vt0}, {vl}, 11, {s_t0}
        v_cndmask_b32 {vpf}, -1, {vpf}, vcc
        s_cmp_eq_u32 {s_w}, 0
        s_cselect_b64 vcc, -1, 0
        v_cndmask_b32 {vpf}, {vpf}, {vt0}, vcc
        v_cndmask_b32 {vt3}, -1, {vt0}, vcc
        """)
    p.e(f"""
    s_lshl_b32 {s_t0}, {s_mb}, 19
    s_lshl_b32 {s_t1}, {s_h}, 6
    s_mul_i32 {s_t2}, {s_h}, 224
    s_waitcnt lgkmcnt(0)
    """)
    pf.stamp(0)
    pf.trace_init(vtmp[31], s_tr)
    srd(p, sx, px, off_s=s_t0, size=S * D * 2, size_s=s_t0)
    srd(p, sq, pqkv, off_s=s_t1, size=D * 3072 * 2, size_s=s_t1)
    p.e(f"""
    s_cmp_ge_u32 {s_w}, 2
    s_cselect_b32 {s_t0}, {pwu[0]}, {pwg[0]}
    s_cselect_b32 {s_t1}, {pwu[1]}, {pwg[1]}
    s_add_u32 {sg[0]}, {s_t0}, {s_t2}
    s_addc_u32 {sg[1]}, {s_t1}, 0
    s_sub_u32 {sg[2]}, {D * F * 2}, {s_t2}
    s_mov_b32 {sg[3]}, 0x00020000
    """)
    if xpf:
        p.e(f"""
        s_cmp_eq_u32 {s_w}, 3
        s_cselect_b64 {spf[0:2]}, {sq[0:2]}, {sg[0:2]}
        s_cselect_b32 {spf[2]}, {sq[2]}, {sg[2]}
        s_cmp_eq_u32 {s_w}, 0
        s_cselect_b64 {spf[0:2]}, {sx[0:2]}, {spf[0:2]}
        s_cselect_b32 {spf[2]}, {sx[2]}, {spf[2]}
        s_mov_b32 {spf[3]}, 0x00020000
        """)
        p.add([Ins(f'buffer_load_dword {vpd}, {vpf}, {spf}, 0 offen', 'pf')])
        if xpf > 1: p.add([Ins(f'buffer_load_dword {vpd}, {vt3}, {spf}, 0 offen offset:128', 'pf')])
    if ptrace: pf.trace()
    p.e(f"""
    v_lshrrev_b32 {vt0}, 3, {vl}
    v_and_b32 {vt1}, 7, {vl}
    v_lshrrev_b32 {vt2}, 4, {vl}
    v_xor_b32 {vt1}, {vt1}, {vt2}
    v_lshlrev_b32 {vt3}, 11, {vt0}
    s_lshl_b32 {s_t0}, {s_w}, 17
    v_add_u32 {vt3}, {s_t0}, {vt3}
    v_lshl_add_u32 {vdx[0]}, {vt1}, 4, {vt3}
    v_xor_b32 {vt1}, 4, {vt1}
    v_lshl_add_u32 {vdx[1]}, {vt1}, 4, {vt3}
    v_add_u32 {vdx[1]}, {16384 - 1024}, {vdx[1]}
    s_lshl_b32 {m0x[0][0]}, {s_w}, 13
    s_add_u32 {m0x[0][1]}, {m0x[0][0]}, 4096
    s_mov_b32 {s_ox}, 0
    """)
    for i in range(2, 8):
        p.e(f'v_add_u32 {vdx[i]}, {(i - i % 2) * 16384 - (i % 4 - i % 2) * 1024}, {vdx[i % 2]}')
    emit(dma_x(0))
    if ptrace: pf.trace()
    p.e(f"""
    v_lshrrev_b32 {vt0}, 2, {vl}
    v_lshrrev_b32 {vt2}, 4, {vl}
    v_and_b32 {vt2}, 2, {vt2}
    v_and_b32 {vt1}, 3, {vl}
    v_xor_b32 {vt1}, {vt1}, {vt2}
    s_lshl_b32 {s_t1}, {s_w}, 4
    v_add_u32 {vt0}, {s_t1}, {vt0}
    v_mul_u32_u24 {vt0}, 6144, {vt0}
    v_lshl_add_u32 {vdq[1]}, {vt1}, 4, {vt0}
    v_add_u32 {vdq[0]}, 1024, {vdq[1]}
    v_mov_b32 {vdq[2]}, {vdq[0]}
    s_mul_i32 {s_t1}, {s_w}, 10240
    s_mov_b32 {s_oq}, 0
    s_mov_b32 {s_og}, 0
    """)
    for st in range(2):
        for j in range(3): p.e(f's_add_u32 {m0w[st][j]}, {s_t1}, {(W0, W1)[st] + j * 4096}')
    w0 = dma_w(0)
    p.e(f's_mov_b32 m0, {m0w[0][1]}')
    emit(w0[7:])
    p.e(f"""
    s_mul_i32 {s_t0}, {s_wc}, {32 * 7168}
    s_movk_i32 {s_c0}, 6944
    s_movk_i32 {s_c1}, 28672
    v_mul_u32_u24 {vt3}, 4682, {vl}
    v_lshl_add_u32 {vpf}, {vl}, 4, {s_t0}
    """)
    for j in range(7):
        imm = (j % 4) * 1024
        tj = vt3
        if j:
            p.e(f'v_add_u32 {vt0}, {64 * j * 4682}, {vt3}'); tj = vt0
        p.e(f"""
        v_bfe_u32 {vt1}, {tj}, 18, 1
        v_bfe_u32 {vt2}, {tj}, 19, 1
        v_lshrrev_b32 {vt0}, 16, {tj}
        v_sub_u32 {vt1}, {vt1}, {vt2}
        v_mad_u32_u24 {vdg[j]}, {vt0}, {s_c0}, {vpf}
        v_mad_i32_i24 {vdg[j]}, {vt1}, {s_c1}, {vdg[j]}
        """)
        if j == 3: p.e(f'v_add_u32 {vpf}, 4096, {vpf}')
        emit([w0[j]])
    p.add(adv)
    if ptrace: pf.trace()
    gx = [vtmp[4 * i:4 * i + 4] for i in range(4)]; gw = [vtmp[16:20], vtmp[20:24]]; t = vtmp[24:28]; z = [vtmp[28], vtmp[29]]
    srd(p, sp2, pgw, size=2048)
    p.e(f"""
    s_lshl_b32 {s_t0}, {s_h}, 3
    s_lshl_b32 {s_t1}, {s_w}, 1
    s_add_u32 {s_t0}, {s_t0}, {s_t1}
    s_lshl_b32 {s_t2}, {s_t0}, 11
    v_lshlrev_b32 {z[0]}, 5, {vl}
    s_add_u32 {m0x[1][0]}, {m0x[0][0]}, {X1}
    s_add_u32 {m0x[1][1]}, {m0x[0][0]}, {X1 + 4096}
    """)
    gate_loads = [f'buffer_load_dwordx4 {gw[0]}, {z[0]}, {sp2}, 0 offen', f'buffer_load_dwordx4 {gw[1]}, {z[0]}, {sp2}, 0 offen offset:16'] + \
                 [f'buffer_load_dwordx4 {gx[i]}, {z[0]}, {sx}, {s_t2} offen offset:{(i // 2) * 2048 + (i % 2) * 16}' for i in range(4)]
    PD = pfd
    def pfetch():
        return [Ins(f'buffer_load_dword {vpd}, {vpf}, {spf}, {s_pfo} offen', 'pf'), f's_add_u32 {s_pfo}, {s_pfo}, {s_pfs}']
    def pfetch_d():
        return [Ins(f'buffer_load_dword {vpd}, {vt3}, {sp2}, {s_c1} offen', 'pf'), f's_add_u32 {s_c1}, {s_c1}, {4096 * 128}']
    if pfm:
        p.e(f"""
        s_cmp_eq_u32 {s_w}, 0
        s_cselect_b32 {spf[0]}, {pqkv[0]}, {pwg[0]}
        s_cselect_b32 {spf[1]}, {pqkv[1]}, {pwg[1]}
        s_cselect_b32 {s_t0}, 12, 14
        s_cmp_eq_u32 {s_w}, 2
        s_cselect_b32 {spf[0]}, {pwu[0]}, {spf[0]}
        s_cselect_b32 {spf[1]}, {pwu[1]}, {spf[1]}
        s_lshl_b32 {spf[2]}, {s_t0}, 19
        s_lshl_b32 {s_pfs}, {s_t0}, 15
        s_mul_i32 {s_t1}, {s_t0}, s2
        v_and_b32 {vt1}, 15, {vl}
        v_add_u32 {vt0}, {s_t1}, {vt1}
        v_lshlrev_b32 {vpf}, 7, {vt0}
        v_cmp_gt_u32 vcc, {s_t0}, {vt1}
        v_cndmask_b32 {vpf}, -1, {vpf}, vcc
        s_mov_b32 {spf[3]}, 0x00020000
        s_cmp_lg_u32 {s_w}, 3
        s_cbranch_scc1 {name}_pf0
        """)
        p.seg('pfx')
        p.e(f"""
        s_mov_b32 {spf[0]}, {px[0]}
        s_mov_b32 {spf[1]}, {px[1]}
        s_mov_b32 {spf[2]}, {S * D * 2}
        s_movk_i32 {s_pfs}, 128
        s_lshl_b32 {s_t1}, s2, 14
        v_lshl_add_u32 {vpf}, {vt1}, 11, {s_t1}
        v_cmp_gt_u32 vcc, 8, {vt1}
        v_cndmask_b32 {vpf}, -1, {vpf}, vcc
        """)
        p.seg('pro2')
        p.e(f"""
        {name}_pf0:
        v_lshrrev_b32 {vt0}, 4, {vl}
        v_mul_lo_u32 {vt0}, {vt0}, {s_pfs}
        v_add_u32 {vt0}, {vt0}, {vpf}
        v_cmp_eq_u32 vcc, -1, {vpf}
        v_cndmask_b32 {vt0}, {vt0}, {vpf}, vcc
        v_cmp_gt_u32 vcc, {16 * (PD - (2 if xpf > 1 else 1))}, {vl}
        v_cndmask_b32 {vt0}, -1, {vt0}, vcc
        s_lshl_b32 {s_pfo}, {s_pfs}, {1 if xpf > 1 else 0}
        """)
        p.add([Ins(f'buffer_load_dword {vpd}, {vt0}, {spf}, {s_pfo} offen', 'pf')])
        p.e(f"""
        v_cmp_gt_u32 vcc, 16, {vl}
        v_cndmask_b32 {vpf}, -1, {vpf}, vcc
        s_mul_i32 {s_pfo}, {s_pfs}, {PD}
        """)
    else:
        p.seg('pfx'); p.seg('pro2')
    if ptrace: pf.trace()
    srd(p, sws, pws, size=WS_SIZE)
    p.e(f"""
    v_and_b32 {vt0}, 15, {vl}
    v_lshrrev_b32 {vt1}, 4, {vl}
    v_lshrrev_b32 {vt2}, 1, {vt0}
    v_xor_b32 {vt2}, {vt1}, {vt2}
    s_lshl_b32 {s_t0}, {s_wr}, 14
    v_lshl_add_u32 {vt3}, {vt0}, 7, {s_t0}
    v_lshl_add_u32 {vxr[0]}, {vt2}, 4, {vt3}
    v_xor_b32 {vxr[1]}, 64, {vxr[0]}
    v_and_b32 {vt3}, 3, {vt0}
    v_lshlrev_b32 {vt3}, 3, {vt3}
    v_lshrrev_b32 {vt0}, 2, {vt0}
    v_lshrrev_b32 {vt2}, 1, {vt1}
    v_and_b32 {vt1}, 1, {vt1}
    v_mul_u32_u24 {vqr[0]}, 10240, {vt2}
    v_mul_u32_u24 {vqr[1]}, {512 + 32}, {vt1}
    v_add3_u32 {vqr[0]}, {vqr[0]}, {vqr[1]}, {vt3}
    v_lshl_add_u32 {vqr[0]}, {vt0}, 6, {vqr[0]}
    s_lshl_b32 {s_t0}, {s_wc}, 10
    s_sub_u32 {s_t0}, {W0 + 8192}, {s_t0}
    v_add_u32 {vqr[0]}, {s_t0}, {vqr[0]}
    v_xor_b32 {vqr[1]}, 32, {vqr[0]}
    v_lshl_add_u32 {vt0}, {vt1}, 2, {vt0}
    v_lshl_add_u32 {vt0}, {vt2}, 4, {vt0}
    v_mul_u32_u24 {vt0}, 224, {vt0}
    s_mul_i32 {s_t0}, {s_wc}, 96
    s_add_u32 {s_t0}, {s_t0}, {W0}
    v_add3_u32 {vgr[0]}, {vt0}, {vt3}, {s_t0}
    v_add_u32 {vgr[1]}, 20480, {vgr[0]}
    s_lshl_b32 {s_t0}, {s_mb}, 5
    s_add_u32 {s_t0}, {s_t0}, {s_h}
    s_lshl_b32 {s_t0}, {s_t0}, 7
    s_lshl_b32 {s_t1}, {s_w}, 3
    s_add_u32 {s_t0}, {s_t0}, {s_t1}
    s_add_u32 {s_gs}, {s_t0}, {WS_G}
    """)
    if ptrace: pf.trace()
    p.e('WAITTAG S0')
    if ptrace: pf.trace()
    p.e('s_barrier')
    if ptrace: pf.trace()
    pf.stamp(1)

    def gate_ops():
        L = []
        for r in range(2):
            for j in range(8):
                xr = gx[2 * r + j // 4][j % 4]; wr_ = gw[j // 4][j % 4]
                L += [f'v_lshlrev_b32 {t[0]}, 16, {xr}', f'v_lshlrev_b32 {t[1]}, 16, {wr_}',
                      f'v_and_b32 {t[2]}, 0xffff0000, {xr}', f'v_and_b32 {t[3]}, 0xffff0000, {wr_}',
                      f'v_mul_f32 {t[0]}, {t[0]}, {t[1]}', f'v_mul_f32 {t[2]}, {t[2]}, {t[3]}',
                      f'v_cvt_pk_bf16_f32 {t[0]}, {t[0]}, {t[2]}', f'v_lshlrev_b32 {t[1]}, 16, {t[0]}',
                      f'v_and_b32 {t[2]}, 0xffff0000, {t[0]}']
                if j == 0: L.append(f'v_add_f32 {z[r]}, {t[1]}, {t[2]}')
                else: L += [f'v_add_f32 {t[1]}, {t[1]}, {t[2]}', f'v_add_f32 {z[r]}, {z[r]}, {t[1]}']
        for mode in ('quad_perm:[1,0,3,2]', 'quad_perm:[2,3,0,1]', 'row_half_mirror', 'row_mirror'):
            for r in range(2): L.append(f'v_add_f32_dpp {z[r]}, {z[r]}, {z[r]} {mode} row_mask:0xf bank_mask:0xf')
        for op in ('v_permlane16_swap_b32', 'v_permlane32_swap_b32'):
            for r in range(2): L.append(f'v_mov_b32 {t[r]}, {z[r]}')
            for r in range(2): L.append(f'{op} {t[r]}, {z[r]}')
            for r in range(2): L.append(f'v_add_f32 {z[r]}, {z[r]}, {t[r]}')
        L += f"""v_and_b32 {t[1]}, 1, {vl}
        v_cmp_eq_u32 vcc, 1, {t[1]}
        v_and_b32 {t[3]}, 2, {vl}
        v_cndmask_b32 {t[0]}, {z[0]}, {z[1]}, vcc
        v_cvt_pk_bf16_f32 {t[0]}, {t[0]}, {t[0]}
        v_and_b32 {t[0]}, 0xffff0000, {t[0]}
        v_mul_f32 {t[0]}, {hex(f32bits(-math.log2(math.e)))}, {t[0]}
        v_exp_f32 {t[0]}, {t[0]}
        v_cmp_eq_u32 vcc, 2, {t[3]}
        v_add_f32 {t[0]}, 1.0, {t[0]}
        v_rcp_f32 {t[0]}, {t[0]}
        v_lshlrev_b32 {t[3]}, 4, {t[3]}
        v_cvt_pk_bf16_f32 {t[0]}, {t[0]}, {t[0]}
        v_and_b32 {t[0]}, 0xffff0000, {t[0]}
        v_sub_f32 {t[2]}, 1.0, {t[0]}
        v_cvt_pk_bf16_f32 {t[2]}, {t[2]}, {t[2]}
        v_and_b32 {t[2]}, 0xffff0000, {t[2]}
        v_cndmask_b32 {t[0]}, {t[0]}, {t[2]}, vcc
        v_lshl_add_u32 {t[3]}, {t[1]}, 2, {t[3]}
        v_cmp_gt_u32 vcc, 4, {vl}
        v_cndmask_b32 {t[3]}, -1, {t[3]}, vcc
        buffer_store_dword {t[0]}, {t[3]}, {sws}, {s_gs} offen{st_mod}""".split('\n')
        return [x.strip() for x in L]

    def wread(j, st, wc):
        ks, n = divmod(j, 10)
        slot = wf[j % NSLOT]
        nq = 4 if wc == 0 else 2
        if n < nq: base = vqr[n % 2]; off = ks * 20480 + (n // 2) * 1024; so = 256
        else: base = vgr[(n - nq) % 2]; off = ks * 10240 + ((n - nq) // 2) * 32; so = 1792
        off += st * (W1 - W0)
        return [f'ds_read_b64_tr_b16 {slot[2 * s:2 * s + 2]}, {base} offset:{off + s * so}' for s in range(2)]
    def xread(m, ks, st):
        return f'ds_read_b128 {xf[ks][m]}, {vxr[ks]} offset:{st * (X1 - X0) + m * 2048}'

    for m in range(8): p.e(xread(m, 0, 0))
    p.e(f's_cmp_eq_u32 {s_wc}, 1')
    p.e(f's_cbranch_scc1 {name}_c1')

    def stage(st, wc, first=False, last=False, extra=None, fill=None, estep=2):
        slots = {}
        for j in range(20):
            jj = j + DIST
            if jj < 20: rd = wread(jj, st, wc)
            elif last: continue
            else: rd = wread(jj - 20, st ^ 1, wc)
            place(slots, 8 * j + 0, rd[0]); place(slots, 8 * j + 2, rd[1])
        for m in range(8): place(slots, 8 * (1 + m) + 4, xread(m, 1, st))
        bar = 8 * (20 - DIST)
        if not last:
            for m, c in enumerate((1, 3, 4, 6, 9, 11, 12, 14)): place(slots, bar + c, xread(m, 0, st ^ 1))
        pos = []; c = 1.0
        for k in range(18):
            pos.append(int(c)); c += cg if k < 7 else (cq if k < 10 else cx)
        endc = int(c) - (160 - bar)
        if first:
            pos = [x + 160 - bar for x in pos]; endc += 160 - bar
        if not last:
            dl = dma_w(st ^ 1) + dma_x(st ^ 1)
            for k in range(18):
                c = pos[k] - (160 - bar)
                if c < 0: continue
                for x in dl[k][0]: place(slots, max(c - 1, 0), x)
                place(slots, c, dl[k][1])
            for i, x in enumerate(adv): place(slots, endc - 2 + i, x)
            if first: pos = [x - (160 - bar) for x in pos]
            dl = dma_w(st) + dma_x(st)
            for k in range(18):
                c = bar + pos[k]
                if c >= 160: continue
                for x in dl[k][0]: place(slots, c - 1, x)
                place(slots, c, dl[k][1])
        c = endc + 1
        for x in (extra or []):
            place(slots, c, x)
            c += 3 if (isinstance(x, Ins) or x.startswith('buffer')) else estep
        assert c < bar
        fill = list(fill or [])
        for c in range(160):
            ks, r = divmod(c, 80); n, mi = divmod(r, 8)
            m = mi if n % 2 == 0 else 7 - mi
            if c == 0 and not first: p.e('s_waitcnt lgkmcnt(2)')
            if c == bar and not last:
                p.e('s_waitcnt lgkmcnt(0)')
                pf.trace()
                p.e(f'WAITTAG S{st ^ 1}')
                pf.trace()
                p.e('s_barrier')
                pf.trace()
            w = wf[(ks * 10 + n) % NSLOT]; x = xf[ks][m]
            a, b = (x, w) if (wc == 1 and n < 2) else (w, x)
            cin = '0' if (first and ks == 0) else str(acc[n][m])
            p.e(f'v_mfma_f32_16x16x32_bf16 {acc[n][m]}, {a}, {b}, {cin}')
            here = slots.get(c, [])
            p.add(here)
            if c >= 1:
                for _ in range(2 - len(here)):
                    if fill: p.e(fill.pop(0))
        p.add(fill)

    def toreg(tile, tmp):
        if tile.k == 'v': return tile
        for i in range(4): p.e(f'v_accvgpr_read_b32 {tmp[i]}, {tile[i]}')
        return tmp
    def pack(o, t0, t1):
        p.e(f'v_cvt_pk_bf16_f32 {o[0]}, {t0[0]}, {t0[1]}\nv_cvt_pk_bf16_f32 {o[1]}, {t0[2]}, {t0[3]}')
        p.e(f'v_cvt_pk_bf16_f32 {o[2]}, {t1[0]}, {t1[1]}\nv_cvt_pk_bf16_f32 {o[3]}, {t1[2]}, {t1[3]}')

    def epilogue(wc):
        vq = vdx[0]; vh = vdx[1]
        s_b, s_qs = s_oq, R('s', sp2.a, 2)
        outs = [vtmp[16 + 4 * i:20 + 4 * i] for i in range(3)]
        p.e(f"""
        v_and_b32 {vt0}, 15, {vl}
        v_lshrrev_b32 {vt1}, 4, {vl}
        v_lshlrev_b32 {vq}, 9, {vt1}
        v_lshlrev_b32 {vh}, 4, {vl}
        s_lshl_b32 {s_t0}, {s_h}, 6
        s_lshl_b32 {s_t1}, {s_mb}, 3
        s_add_u32 {s_t0}, {s_t0}, {s_t1}
        s_lshl_b32 {s_t1}, {s_wr}, 2
        s_add_u32 {s_t0}, {s_t0}, {s_t1}
        """)
        k = 0
        if wc == 0:
            p.e(f"""
            v_lshrrev_b32 {vt2}, 3, {vt0}
            v_lshl_add_u32 {vq}, {vt2}, 8, {vq}
            v_and_b32 {vt2}, 7, {vt0}
            v_lshl_add_u32 {vq}, {vt2}, 4, {vq}
            s_lshl_b32 {s_b}, {s_t0}, 12
            s_add_u32 {s_b}, {s_b}, {WS_KV}
            s_mov_b32 {s_qs[0]}, {hex(f32bits(QSCALE))}
            s_mov_b32 {s_qs[1]}, {s_qs[0]}
            """)
            for m in range(8):
                o = outs[k % 3]; k += 1
                pack(o, toreg(acc[2][m], vtmp[0:4]), toreg(acc[3][m], vtmp[4:8]))
                p.e(f'buffer_store_dwordx4 {o}, {vq}, {sws}, {s_b} offen offset:{(m % 2) * 128}{st_mod}')
                if m % 2 == 1 and m < 7: p.e(f's_add_u32 {s_b}, {s_b}, 4096')
            p.e(f's_lshl_b32 {s_b}, {s_t0}, 11')
            if WS_Q: p.e(f's_add_u32 {s_b}, {s_b}, {WS_Q}')
            for m in range(8):
                o = outs[k % 3]; k += 1
                t0 = toreg(acc[0][m], vtmp[0:4]); t1 = toreg(acc[1][m], vtmp[4:8])
                for tt in (t0, t1):
                    for i in range(2): p.e(f'v_pk_mul_f32 {tt[2*i:2*i+2]}, {tt[2*i:2*i+2]}, {s_qs}')
                pack(o, t0, t1)
                p.e(f'buffer_store_dwordx4 {o}, {vq}, {sws}, {s_b} offen offset:{(m % 2) * 128 + (m // 2 % 2) * 2048}{st_mod}')
                if m == 3: p.e(f's_add_u32 {s_b}, {s_b}, 4096')
        else:
            p.e(f"""
            v_lshl_add_u32 {vq}, {vt0}, 4, {vq}
            s_lshl_b32 {s_b}, {s_t0}, 12
            s_add_u32 {s_b}, {s_b}, {WS_KV}
            """)
            for j in range(4):
                for nt in range(2):
                    o = outs[k % 3]; k += 1
                    pack(o, toreg(acc[nt][2 * j], vtmp[0:4]), toreg(acc[nt][2 * j + 1], vtmp[4:8]))
                    p.e(f'buffer_store_dwordx4 {o}, {vq}, {sws}, {s_b} offen offset:{2048 + nt * 256}{st_mod}')
                if j < 3: p.e(f's_add_u32 {s_b}, {s_b}, 4096')
        nq = 4 if wc == 0 else 2
        p.e(f"""
        s_lshl_b32 {s_t0}, {s_mb}, 1
        s_add_u32 {s_t0}, {s_t0}, {s_wr}
        s_mul_i32 {s_t0}, {s_t0}, 288
        s_mul_i32 {s_t1}, {s_h}, 7
        s_add_u32 {s_t0}, {s_t0}, {s_t1}
        s_lshl_b32 {s_t0}, {s_t0}, 12
        s_add_u32 {s_b}, {s_t0}, {WS_A + 3 * 4096 * wc}
        """)
        for n in range(nq, 10, 2):
            for j in range(4):
                o = outs[k % 3]; k += 1
                tt = []
                for mm in range(2):
                    g_ = toreg(acc[n][2 * j + mm], vtmp[8 * mm:8 * mm + 4]); u_ = toreg(acc[n + 1][2 * j + mm], vtmp[8 * mm + 4:8 * mm + 8])
                    for i in range(2): p.e(f'v_pk_mul_f32 {g_[2*i:2*i+2]}, {g_[2*i:2*i+2]}, {u_[2*i:2*i+2]}')
                    tt.append(g_)
                pack(o, tt[0], tt[1])
                p.e(f'v_permlane16_swap_b32 {o[0]}, {o[2]}\nv_permlane16_swap_b32 {o[1]}, {o[3]}')
                p.e(f'buffer_store_dwordx4 {o}, {vh}, {sws}, {s_b} offen offset:{j * 1024}{st_mod}')
            if n < 8: p.e(f's_add_u32 {s_b}, {s_b}, 4096')

    def pf_setup():
        L = f"""s_lshl_b32 {s_t0}, s2, 2
        s_add_u32 {s_t0}, {s_t0}, {s_w}
        s_lshl_b32 {s_t1}, {s_t0}, 9
        v_lshl_add_u32 {vt3}, {vl}, 7, {s_t1}
        v_cmp_gt_u32 vcc, 4, {vl}
        s_mov_b32 {sp2[0]}, {pwd[0]}
        s_mov_b32 {sp2[1]}, {pwd[1]}
        s_mov_b32 {sp2[2]}, {F * D * 2}
        v_cndmask_b32 {vt3}, -1, {vt3}, vcc
        s_mov_b32 {s_c1}, 0""".split('\n')
        return [x.strip() for x in L]
    def pf_wo():
        L = f"""s_lshl_b32 {s_t0}, s2, 2
        s_add_u32 {s_t0}, {s_t0}, {s_w}
        s_lshl_b32 {s_t1}, {s_t0}, 11
        v_lshl_add_u32 {vt3}, {vl}, 7, {s_t1}
        v_cmp_gt_u32 vcc, 16, {vl}
        s_mov_b32 {sp2[0]}, {pwo[0]}
        s_mov_b32 {sp2[1]}, {pwo[1]}
        s_mov_b32 {sp2[2]}, {D * D * 2}
        v_cndmask_b32 {vt3}, -1, {vt3}, vcc""".split('\n')
        return [x.strip() for x in L] + [Ins(f'buffer_load_dword {vpd}, {vt3}, {sp2}, 0 offen', 'pf')]

    for wc in range(2):
        p.seg(f'c{wc}a')
        if wc == 1: p.e(f'{name}_c1:')
        for j in range(DIST): p.add(wread(j, 0, wc))
        stage(0, wc, first=True, extra=(pfetch() if pfm else []) + gate_loads + (pf_setup() if pfm else []), estep=1)
        pf.stamp(2)
        p.e(f's_mov_b32 {s_cnt}, 7')
        p.seg(f'c{wc}loop')
        p.e(f'{name}_c{wc}loop:')
        for st in (1, 0): stage(st, wc, extra=(pfetch() + pfetch_d()) if pfm else None)
        p.e(f's_sub_u32 {s_cnt}, {s_cnt}, 1\ns_cmp_lg_u32 {s_cnt}, 0\ns_cbranch_scc1 {name}_c{wc}loop')
        p.seg(f'c{wc}last')
        pf.stamp(3)
        stage(1, wc, last=True, extra=pf_wo() if pfm else None, fill=gate_ops())
        pf.stamp(4)
        epilogue(wc)
        pf.stamp(5)
        pf.flush(s_w)
        p.e('s_endpgm')
    p.seg('end')
    p.e(f'{name}_end:\ns_endpgm')
    traces = [['pro'] + x + ['pro2', f'c{wc}a', f'c{wc}loop', f'c{wc}loop', f'c{wc}last'] for wc in range(2) for x in ([], ['pfx'])]
    p.auto_waits(traces)
    nn = p.hazards(traces)
    return kernel_header(name) + p.text(), kernel_desc(name), dict(nops=nn, v=va.p, a=aa.p, s=sa.p)

if __name__ == '__main__':
    t, d, info = gen_k1()
    print(info)
    open('k1.s', 'w').write('.amdgcn_target "amdgcn-amd-amdhsa--gfx950"\n' + t + d)
```

```python
import sys
from gen_p1 import gen_k1, K1_LDS
from gen_k2 import gen_k2, K2_LDS
from gen_k3 import gen_k3, K3_LDS
REF = 'gated_mix__softmax_full_mha__glu_gated_bilinear__prompt.s.ref'
def build(force_slow=False, prof=False, **kw):
    head = [l for l in open(REF).read().split('\n') if l.startswith(';') and '@launch' not in l and 'Override launch' not in l and 'grid=ceil' not in l]
    ks = [('k1_kernel', gen_k1(prof=prof, **kw), K1_LDS), ('k2_kernel', gen_k2(force_slow=force_slow, prof=prof), K2_LDS), ('k3_kernel', gen_k3(prof=prof), K3_LDS)]
    out = '\n'.join(head) + '\n'
    for n, _, lds in ks: out += f'; @launch kernel={n} grid=(256,1,1) block=(256,1,1) lds={lds}\n'
    out += '.amdgcn_target "amdgcn-amd-amdhsa--gfx950"\n'
    for n, (t, d, info), _ in ks:
        print(n, info, file=sys.stderr); out += t
    for n, (t, d, info), _ in ks: out += d
    return out
if __name__ == '__main__':
    dst = sys.argv[1] if len(sys.argv) > 1 else 'gated_mix__softmax_full_mha__glu_gated_bilinear__prompt.s'
    kw = {a.split('=')[0]: float(a.split('=')[1]) if '.' in a else int(a.split('=')[1]) for a in sys.argv[2:] if '=' in a}
    open(dst, 'w').write(build(**kw, force_slow='slow' in sys.argv, prof='prof' in sys.argv, pfm=0 if 'nopf' in sys.argv else 1, st_mod=' sc1' if 'sc1' in sys.argv else (' nt' if 'nt' in sys.argv else '')))
```

```python
import re

REG_RE = re.compile(r'^(-?)(?:abs\()?([vas])(?:(\d+)|\[(\d+):(\d+)\])\)?$')

def regs_of(op):
    op = op.strip()
    if op in ('vcc',): return {('s', 'vcc')}
    if op in ('exec',): return {('s', 'exec')}
    if op in ('m0',): return {('s', 'm0')}
    m = REG_RE.match(op)
    if not m: return set()
    k = m.group(2)
    if m.group(3) is not None: return {(k, int(m.group(3)))}
    return {(k, i) for i in range(int(m.group(4)), int(m.group(5)) + 1)}

TRANS = ('v_exp_f32', 'v_log_f32', 'v_rcp_f32', 'v_rsq_f32', 'v_sqrt_f32', 'v_sin_f32', 'v_cos_f32')

class Ins:
    __slots__ = ('text', 'op', 'kind', 'reads', 'writes', 'a', 'b', 'c', 'passes', 'wait_lgkm', 'wait_vm', 'nops', 'label', 'data', 'tag')
    def __init__(self, text, tag=None):
        self.text = text.strip()
        self.tag = tag
        self.wait_lgkm = None; self.wait_vm = None; self.nops = 0
        self.a = self.b = self.c = set(); self.passes = 0; self.data = set()
        self.label = None
        t = self.text.split(';')[0].strip()
        if t.startswith('WAITTAG'):
            self.op = 'waittag'; self.kind = 'waittag'; self.label = t.split()[1:]; self.reads = set(); self.writes = set()
            for x in self.label:
                if x.startswith('LGKM'): self.wait_lgkm = int(x[4:])
            return
        if t.endswith(':'):
            self.op = 'label'; self.kind = 'label'; self.label = t[:-1]; self.reads = set(); self.writes = set(); return
        if t.startswith('.') or t == '':
            self.op = 'directive'; self.kind = 'directive'; self.reads = set(); self.writes = set(); return
        parts = t.split(None, 1)
        op = parts[0]; self.op = op
        rest = parts[1] if len(parts) > 1 else ''
        ops = [o.strip() for o in rest.split(',')] if rest else []
        if ops:
            last = ops[-1].split()
            mods = last[1:]; ops[-1] = last[0] if last else ''
        else: mods = []
        R = [regs_of(o) for o in ops]
        def u(l):
            s = set()
            for x in l: s |= x
            return s
        reads = set(); writes = set()
        if op.startswith('v_mfma') or op.startswith('v_smfmac'):
            self.kind = 'mfma'
            self.passes = 8 if '32x32' in op else (4 if '16x16' in op else 2)
            writes = R[0]; self.a = R[1]; self.b = R[2]
            if op.startswith('v_smfmac'):
                self.c = R[0]; self.b = R[2] | R[3]
            else: self.c = R[3]
            reads = self.a | self.b | self.c
        elif op.startswith('ds_read') or op.startswith('ds_bpermute') or op.startswith('ds_swizzle'):
            self.kind = 'ds'; writes = R[0]; reads = u(R[1:])
        elif op.startswith('ds_'):
            self.kind = 'ds'; reads = u(R); self.data = u(R[1:])
        elif op.startswith('buffer_load') or op.startswith('global_load'):
            self.kind = 'vmem'
            if 'lds' in mods or '_lds_' in op:
                reads = u(R) | {('s', 'm0')}; self.tag = self.tag or 'dma'
            else:
                writes = R[0]; reads = u(R[1:])
        elif op.startswith('buffer_store'):
            self.kind = 'vmem'; reads = u(R); self.data = R[0]
        elif op.startswith('global_store'):
            self.kind = 'vmem'; reads = u(R); self.data = R[1]
        elif op.startswith('buffer_atomic'):
            self.kind = 'vmem'; reads = u(R); self.data = R[0]
            if 'sc0' in mods: writes = R[0]
        elif op.startswith('global_atomic'):
            self.kind = 'vmem'
            if 'sc0' in mods: writes = R[0]; reads = u(R[1:])
            else: reads = u(R)
        elif op in ('buffer_wbl2', 'buffer_inv'):
            self.kind = 'vmem'
        elif op.startswith('s_load') or op.startswith('s_memtime') or op.startswith('s_memrealtime'):
            self.kind = 'smem'; writes = R[0]; reads = u(R[1:])
        elif op == 's_waitcnt': self.kind = 'wait'
        elif op == 's_nop': self.kind = 'nop'
        elif op in ('s_barrier', 's_endpgm', 's_setprio', 's_sleep'): self.kind = 'salu'
        elif op.startswith('s_cbranch') or op == 's_branch':
            self.kind = 'branch'; self.label = ops[0]
        elif op.startswith('s_cmp') or op.startswith('s_bitcmp'):
            self.kind = 'salu'; reads = u(R)
        elif op.startswith('s_'):
            self.kind = 'salu'; writes = R[0]; reads = u(R[1:])
            if 'saveexec' in op: writes = writes | {('s', 'exec')}
        elif op.startswith('v_'):
            self.kind = 'valu'
            if op.startswith('v_cmp'):
                writes = R[0]; reads = u(R[1:])
                if op.startswith('v_cmpx'): writes = writes | {('s', 'exec')}
            elif op.startswith('v_permlane') and 'swap' in op:
                writes = R[0] | R[1]; reads = R[0] | R[1]
            elif op.startswith('v_add_co') or op.startswith('v_sub_co') or op.startswith('v_addc_co'):
                writes = R[0] | R[1]; reads = u(R[2:])
            elif op.startswith('v_fmac') or op.startswith('v_dot2c') or op.startswith('v_writelane'):
                writes = R[0]; reads = u(R)
            else:
                writes = R[0]; reads = u(R[1:])
        else:
            raise ValueError('unknown op ' + op)
        self.reads = reads; self.writes = writes
    @property
    def is_trans(self): return any(self.op.startswith(x) for x in TRANS)
    @property
    def is_dpp(self): return self.kind == 'valu' and ('row_' in self.text or 'quad_perm' in self.text or 'wave_' in self.text)

class Prog:
    def __init__(self):
        self.segs = {}; self.order = []; self.cur = None
    def seg(self, name):
        self.segs[name] = []; self.order.append(name); self.cur = self.segs[name]; return self
    def e(self, text, tag=None):
        for line in text.split('\n'):
            if line.strip(): self.cur.append(Ins(line, tag))
    def add(self, lst):
        for x in lst:
            if isinstance(x, Ins): self.cur.append(x)
            else: self.e(x)

    def _parse_wait(self, ins):
        vm = lg = None
        m = re.search(r'vmcnt\((\d+)\)', ins.text)
        if m: vm = int(m.group(1))
        m = re.search(r'lgkmcnt\((\d+)\)', ins.text)
        if m: lg = int(m.group(1))
        return vm, lg

    def check_pf(self):
        dummy = set()
        for sg in self.segs.values():
            for ins in sg:
                if ins.tag in ('pf', 'pfc'): dummy |= ins.writes
        for sg in self.segs.values():
            for ins in sg:
                if ins.tag not in ('pf', 'pfc') and (ins.reads | ins.writes) & dummy:
                    raise RuntimeError('prefetch destination register reused: ' + ins.text)

    def auto_waits(self, traces):
        self.check_pf()
        changed = True
        while changed:
            changed = False
            for tr in traces:
                lg = []; vm = []
                for sname in tr:
                    for ins in self.segs[sname]:
                        if ins.kind in ('label', 'directive'): continue
                        if ins.wait_lgkm is not None: lg = lg[len(lg) - ins.wait_lgkm:] if ins.wait_lgkm < len(lg) else lg
                        if ins.wait_vm is not None: vm = vm[len(vm) - ins.wait_vm:] if ins.wait_vm < len(vm) else vm
                        if ins.wait_lgkm == 0: lg = []
                        if ins.wait_vm == 0: vm = []
                        if ins.kind == 'wait':
                            v, l = self._parse_wait(ins)
                            if v is not None: vm = vm[len(vm) - v:] if 0 < v < len(vm) else ([] if v == 0 else vm)
                            if l is not None: lg = lg[len(lg) - l:] if 0 < l < len(lg) else ([] if l == 0 else lg)
                            continue
                        if ins.kind == 'waittag':
                            need = None
                            for i, ent in enumerate(vm):
                                if ent[2] in ins.label: need = len(vm) - 1 - i
                            if need is not None:
                                need = min(need, 63)
                                if ins.wait_vm is None or need < ins.wait_vm:
                                    ins.wait_vm = need; changed = True
                                vm = vm[len(vm) - need:] if need else []
                            continue
                        touched = ins.reads | ins.writes
                        for q, name, mx in ((lg, 'wait_lgkm', 15), (vm, 'wait_vm', 63)):
                            need = None
                            for i, (dst, smem, _t) in enumerate(q):
                                if dst & touched:
                                    n = len(q) - 1 - i
                                    if smem or any(x[1] for x in q): n = 0
                                    need = n if need is None else min(need, n)
                            if need is not None:
                                need = min(need, mx)
                                old = getattr(ins, name)
                                if old is None or need < old:
                                    setattr(ins, name, need); changed = True
                                if need == 0: q[:] = []
                                else: q[:] = q[len(q) - need:]
                        if ins.kind == 'ds': lg.append((ins.writes, False, None))
                        elif ins.kind == 'smem':
                            lg.append((ins.writes, True, None))
                        elif ins.kind == 'vmem' and ins.tag != 'pfc': vm.append((set() if ins.tag == 'pf' else ins.writes, False, ins.tag))

    def hazards(self, traces, fix=True):
        total = 0
        changed = True
        while changed:
            changed = False
            for tr in traces:
                hist = []
                for sname in tr:
                    for ins in self.segs[sname]:
                        if ins.kind in ('label', 'directive'): continue
                        pre = ins.nops + (1 if (ins.wait_lgkm is not None or ins.wait_vm is not None) else 0)
                        need = 0
                        dist = pre
                        for p, pstates in reversed(hist):
                            req = self._req(p, ins)
                            if req > dist: need = max(need, req - dist)
                            dist += pstates
                            if dist > 24: break
                        if need:
                            if not fix: raise RuntimeError(f'hazard before {ins.text}')
                            ins.nops += need; total += need; changed = True; pre += need
                        own = 0 if ins.kind == 'waittag' else 1
                        if ins.kind == 'nop': own = int(ins.text.split()[1]) + 1
                        hist.append((ins, own + pre))
                        if len(hist) > 40: hist.pop(0)
        return total

    @staticmethod
    def _req(p, c):
        r = 0
        pv = {x for x in p.writes if x[0] != 's'}
        ps = {x for x in p.writes if x[0] == 's'}
        if p.kind == 'mfma':
            n = p.passes
            idx = {2: 0, 4: 1, 8: 2, 16: 3}[n]
            if c.kind == 'mfma':
                if pv & (c.a | c.b): r = max(r, (5, 8, 12, 20)[idx])
                if pv & c.c:
                    same = (pv == c.c and n == c.passes)
                    r = max(r, (2, 0, 0, 0)[idx] if same else (4, 6, 10, 18)[idx])
                elif pv & c.writes: r = max(r, (5, 8, 12, 20)[idx])
            else:
                if pv & (c.reads | c.writes): r = max(r, (5, 8, 12, 20)[idx])
                if c.kind == 'valu' and (p.c & c.writes): r = max(r, (1, 3, 7, 15)[idx])
        if p.kind == 'valu':
            if c.kind == 'mfma' and pv & c.reads: r = max(r, 2)
            if c.kind == 'mfma' and ('s', 'exec') in ps: r = max(r, 4)
            if p.is_trans and c.kind == 'valu' and not c.is_trans and pv & c.reads: r = max(r, 1)
            if p.is_trans and c.kind in ('vmem', 'ds') and pv & c.reads: r = max(r, 1)
            if c.op.startswith('v_permlane') and pv & c.reads: r = max(r, 2)
            if c.is_dpp and pv & c.reads: r = max(r, 2)
            if (c.op.startswith('v_readfirstlane') or c.op.startswith('v_readlane')) and pv & c.reads: r = max(r, 1)
            if ps:
                if c.kind == 'vmem' and ps & c.reads: r = max(r, 5)
                if c.kind == 'valu' and ps & c.reads:
                    r = max(r, 4 if (c.op.startswith('v_readlane') or c.op.startswith('v_writelane') or c.op.startswith('v_div_fmas')) else 2)
                if ('s', 'vcc') in ps and c.op.startswith('v_cndmask') and 'vcc' in c.text: r = max(r, 2)
                if c.kind in ('salu', 'branch', 'smem') and (ps & c.reads or c.kind == 'branch'): r = max(r, 2)
                if ('s', 'exec') in ps and (c.is_dpp or c.op.startswith('v_permlane') or c.op.startswith('v_read')): r = max(r, 5)
        if p.kind == 'salu' and ('s', 'm0') in ps and ('s', 'm0') in c.reads and c.kind in ('vmem', 'ds', 'valu'): r = max(r, 1)
        if p.kind in ('vmem', 'ds') and len(p.data) >= 3 and (p.data & c.writes) and c.kind in ('valu', 'mfma'): r = max(r, 2)
        return r

    def text(self):
        out = []
        for s in self.order:
            for ins in self.segs[s]:
                n = ins.nops
                while n > 0:
                    k = min(n, 16); out.append(f'    s_nop {k-1}'); n -= k
                w = []
                if ins.wait_vm is not None: w.append(f'vmcnt({ins.wait_vm})')
                if ins.wait_lgkm is not None: w.append(f'lgkmcnt({ins.wait_lgkm})')
                if w: out.append('    s_waitcnt ' + ' '.join(w))
                if ins.kind == 'waittag': continue
                out.append(ins.text if ins.kind in ('label', 'directive') else '    ' + ins.text)
        return '\n'.join(out) + '\n'

def rng(k, a, n):
    return f'{k}{a}' if n == 1 else f'{k}[{a}:{a+n-1}]'

class R:
    def __init__(self, k, a, n=1): self.k = k; self.a = a; self.n = n
    def __str__(self): return rng(self.k, self.a, self.n)
    def __getitem__(self, i):
        if isinstance(i, slice):
            st = i.start or 0; en = i.stop if i.stop is not None else self.n
            return R(self.k, self.a + st, en - st)
        return R(self.k, self.a + i, 1)

class Alloc:
    def __init__(self, k, start, end): self.k = k; self.p = start; self.end = end
    def __call__(self, n=1, align=1):
        if n > 1 and align == 1: align = 2 if self.k != 's' else (4 if n >= 4 else 2)
        self.p = (self.p + align - 1) // align * align
        r = R(self.k, self.p, n); self.p += n
        assert self.p <= self.end, f'out of {self.k} registers'
        return r
```

```python
from asmdsl import *
import math, struct

S = 2048; D = 1024; F = 3584; H = 32
WS_Q = 0
WS_KV = 4 << 20
WS_A = 12 << 20
NK3 = 144
WS_G = 32 << 20
WS_SIZE = 268435456
QSCALE = math.log2(math.e) / math.sqrt(32.0)

def f32bits(x): return struct.unpack('<I', struct.pack('<f', x))[0]

def kernel_header(name):
    return f""".text
.globl {name}
.p2align 8
.type {name},@function
{name}:
"""

def kernel_desc(name, nv=512, acc=256, ns=102):
    return f""".section .rodata,"a"
.p2align 6
.amdhsa_kernel {name}
  .amdhsa_next_free_vgpr {nv}
  .amdhsa_next_free_sgpr {ns}
  .amdhsa_accum_offset {acc}
  .amdhsa_group_segment_fixed_size 0
  .amdhsa_kernarg_size 88
  .amdhsa_user_sgpr_count 2
  .amdhsa_user_sgpr_kernarg_segment_ptr 1
  .amdhsa_system_sgpr_workgroup_id_x 1
  .amdhsa_float_denorm_mode_32 3
.end_amdhsa_kernel
"""

def srd(p, dst, ptr, off_s=None, off_imm=0, size=None, size_s=None):
    lo, hi = ptr[0], ptr[1]
    if off_s is not None:
        p.e(f's_add_u32 {dst[0]}, {lo}, {off_s}')
        p.e(f's_addc_u32 {dst[1]}, {hi}, 0')
        lo, hi = dst[0], dst[1]
    if off_imm > 0:
        p.e(f's_add_u32 {dst[0]}, {lo}, {off_imm}')
        p.e(f's_addc_u32 {dst[1]}, {hi}, 0')
    elif off_imm < 0:
        p.e(f's_sub_u32 {dst[0]}, {lo}, {-off_imm}')
        p.e(f's_subb_u32 {dst[1]}, {hi}, 0')
    elif off_s is None:
        p.e(f's_mov_b32 {dst[0]}, {lo}')
        p.e(f's_mov_b32 {dst[1]}, {hi}')
    if size_s is not None:
        p.e(f's_sub_u32 {dst[2]}, {size}, {size_s}')
    else:
        p.e(f's_mov_b32 {dst[2]}, {size}')
    p.e(f's_mov_b32 {dst[3]}, 0x00020000')

def place(slots, pos, ins):
    slots.setdefault(pos, []).append(ins)

WS_PROF = 64 << 20
class Prof:
    def __init__(self, p, sa, on, kidx, t=None):
        self.p = p; self.on = on; self.n = 0; self.kidx = kidx
        if on:
            self.r = sa(16, 2); self.t = t or sa(4, 2); self.srd = R('s', 12, 4); self.ptr = R('s', 4, 2)
    def stamp(self, i=None):
        if not self.on: return
        if i is None: i = self.n
        self.n = max(self.n, i + 1)
        self.p.e(f"""
        s_waitcnt lgkmcnt(0)
        s_memrealtime {self.t[0:2]}
        s_memtime {self.t[2:4]}
        s_waitcnt lgkmcnt(0)
        s_mov_b32 {self.r[2 * i]}, {self.t[0]}
        s_mov_b32 {self.r[2 * i + 1]}, {self.t[2]}
        """)
    def trace_init(self, vreg, sidx):
        self.vt = vreg; self.si = sidx
        if self.on: self.p.e(f'v_mov_b32 {vreg}, 0\ns_mov_b32 {sidx}, 0')
    def trace(self):
        if not self.on: return
        self.p.e(f"""
        s_memtime {self.t[2:4]}
        s_mov_b32 m0, {self.si}
        s_add_u32 {self.si}, {self.si}, 1
        s_waitcnt lgkmcnt(0)
        v_writelane_b32 {self.vt}, {self.t[2]}, m0
        """)
    def flush(self, s_w):
        if not self.on: return
        p = self.p
        p.e('s_waitcnt vmcnt(0)')
        self.stamp(7)
        p.e(f's_load_dwordx2 {self.ptr}, s[0:1], 80\ns_waitcnt lgkmcnt(0)')
        srd(p, self.srd, self.ptr, off_imm=WS_PROF + self.kidx * 65536, size=65536)
        p.e(f's_lshl_b32 {self.t[0]}, s2, 2\ns_add_u32 {self.t[0]}, {self.t[0]}, {s_w}\ns_lshl_b32 {self.t[0]}, {self.t[0]}, 6')
        if getattr(self, 'vt', None) is not None:
            p.e(f's_lshl_b32 {self.t[1]}, {self.t[0]}, 2\ns_add_u32 {self.t[1]}, {self.t[1]}, {(1 << 20) + self.kidx * 3 * 65536}\ns_mov_b32 {self.srd[2]}, {4 << 20}')
            p.e(f'v_and_b32 v1, 63, v0\nv_lshlrev_b32 v1, 2, v1\nbuffer_store_dword {self.vt}, v1, {self.srd}, {self.t[1]} offen')
        p.e('v_mov_b32 v1, 0')
        for q in range(4):
            for i in range(4): p.e(f'v_mov_b32 v{4 + i}, {self.r[4 * q + i]}')
            p.e(f'buffer_store_dwordx4 v[4:7], v1, {self.srd}, {self.t[0]} offen offset:{16 * q}')

class Prof2:
    def __init__(self, p, on, t, vt, si):
        self.p = p; self.on = on; self.t = t; self.vt = vt; self.si = si
    def trace_init(self, *a):
        if self.on: self.p.e(f's_mov_b32 {self.si}, 0')
    def stamp(self, i):
        if not self.on: return
        if i == 0: self.p.e(f'v_mov_b32 {self.vt}, 0')
        self.p.e(f"""
        s_waitcnt lgkmcnt(0)
        s_memrealtime {self.t[0:2]}
        s_memtime {self.t[2:4]}
        s_waitcnt lgkmcnt(0)
        v_writelane_b32 {self.vt}, {self.t[0]}, {44 + 2 * i}
        v_writelane_b32 {self.vt}, {self.t[2]}, {45 + 2 * i}
        """)
    def trace(self):
        if not self.on: return
        self.p.e(f"""
        s_waitcnt lgkmcnt(0)
        s_memtime {self.t[2:4]}
        s_mov_b32 m0, {self.si}
        s_add_u32 {self.si}, {self.si}, 1
        s_waitcnt lgkmcnt(0)
        v_writelane_b32 {self.vt}, {self.t[2]}, m0
        """)
    def flush(self, s_w, sws, vl, vtmp):
        if not self.on: return
        p = self.p
        p.e('s_waitcnt vmcnt(0)')
        self.stamp(9)
        p.e(f"""
        s_lshl_b32 {self.t[0]}, s2, 2
        s_add_u32 {self.t[0]}, {self.t[0]}, {s_w}
        s_lshl_b32 {self.t[0]}, {self.t[0]}, 8
        s_add_u32 {self.t[0]}, {self.t[0]}, {WS_PROF}
        v_lshlrev_b32 {vtmp}, 2, {vl}
        buffer_store_dword {self.vt}, {vtmp}, {sws}, {self.t[0]} offen
        """)
```

```python
from gen_common import *

X0, X1, W0, W1, QS = 0, 32768, 65536, 106496, 147456
F_LDS = 163840
WS_FL = 33 << 20
DBG_CNT = 64
SPIN = 40000

def gen_fused(name, prof=False, pfd=3, cq=8, cg=6.5, cx=4, NB=4, DD=3, force_slow=False, ptrace=0, dbg=0, st_mod=' sc1'):
    pfm = 1; xpf = 1
    p = Prog()
    sa = Alloc('s', 4, 102); va = Alloc('v', 1, 256); aa = Alloc('a', 0, 256)
    ptr = sa(16, 4)
    px, pqkv, pwo, pwg, pwu, pwd, pgw = ptr[0:2], ptr[2:4], ptr[4:6], ptr[8:10], ptr[10:12], ptr[12:14], ptr[14:16]
    pod = sa(4, 4); pout, pdbg = pod[0:2], pod[2:4]
    pws = sa(2); smask = sa(2)
    sws = sa(4); sfl = sa(4)
    s_mb, s_h, s_w, s_wr, s_wc, s_t0, s_t1, s_t2, s_cnt, s_tr = [sa() for _ in range(10)]
    s_pt = sa(4, 2)
    s_base = sa.p
    sx = sa(4); sq = sa(4); sg = sa(4); spf = sa(4); sp2 = sa(4)
    s_c0, s_c1, s_ox, s_oq, s_og, s_pfo, s_pfs, s_gs = [sa() for _ in range(8)]
    m0x = [[sa() for _ in range(2)] for _ in range(2)]
    m0w = [[sa() for _ in range(3)] for _ in range(2)]
    s_hi = sa.p

    vl, vpd, vflag, vtr = [va() for _ in range(4)]
    v_base = va.p
    pf = Prof2(p, prof, s_pt, vtr, s_tr)
    vdx = [va() for _ in range(8)]; vdq = [va() for _ in range(2)]; vdq.append(vdq[0]); vdg = [va() for _ in range(7)]
    vxr = [va() for _ in range(2)]; vqr = [va() for _ in range(2)]; vgr = [va() for _ in range(2)]
    vt0, vt1, vt2, vt3, vpf = [va() for _ in range(5)]
    vcnt = va()
    vtmp = va(28, 4)
    xf = [[aa(4, 4) for _ in range(8)] for _ in range(2)]
    NSLOT = 4; DIST = 3
    wf = [aa(4, 4) for _ in range(NSLOT)]
    acc = [[None] * 8 for _ in range(10)]
    for n in list(range(4, 10)) + [0, 1, 2, 3]:
        for m in range(8):
            acc[n][m] = va(4, 4) if va.p + 4 <= 256 else aa(4, 4)

    def dma_x(st):
        L = []
        for i in range(8):
            pre = [f's_mov_b32 m0, {m0x[st][i // 4]}'] if i % 4 == 0 else []
            L.append((pre, Ins(f'buffer_load_dwordx4 {vdx[i]}, {sx}, {s_ox} offen offset:{(i % 4) * 1024} lds', f'S{st}')))
        return L
    def dma_w(st):
        L = []
        for i in range(10):
            pre = [f's_mov_b32 m0, {m0w[st][i // 4]}'] if i % 4 == 0 else []
            v, sr, so = (vdq[i - 7], sq, s_oq) if i >= 7 else (vdg[i], sg, s_og)
            L.append((pre, Ins(f'buffer_load_dwordx4 {v}, {sr}, {so} offen offset:{(i % 4) * 1024} lds', f'S{st}')))
        return L
    def emit(lst):
        for pre, ins in lst:
            p.add(pre); p.add([ins])
    adv = [f's_add_u32 {s_oq}, {s_oq}, {64 * 6144}', f's_add_u32 {s_og}, {s_og}, {64 * 7168}', f's_add_u32 {s_ox}, {s_ox}, 128']

    p.seg('pro')
    p.e(f"""
    s_cmp_ge_u32 s2, 256
    s_cbranch_scc1 {name}_end
    s_load_dwordx16 {ptr}, s[0:1], 0
    s_load_dwordx4 {pod}, s[0:1], 64
    s_load_dwordx2 {pws}, s[0:1], 80
    v_lshrrev_b32 {vt0}, 6, v0
    v_and_b32 {vl}, 63, v0
    s_lshr_b32 {s_t1}, s2, 3
    v_readfirstlane_b32 {s_w}, {vt0}
    s_and_b32 {s_mb}, {s_t1}, 7
    s_and_b32 {s_t0}, s2, 7
    s_lshr_b32 {s_t1}, {s_t1}, 3
    s_lshl_b32 {s_h}, {s_t0}, 2
    s_add_u32 {s_h}, {s_h}, {s_t1}
    s_lshr_b32 {s_wr}, {s_w}, 1
    s_and_b32 {s_wc}, {s_w}, 1
    """)
    if xpf:
        p.e(f"""
        v_and_b32 {vt0}, 7, {vl}
        v_lshrrev_b32 {vt1}, 3, {vl}
        v_mul_u32_u24 {vt2}, 86, {vt1}
        v_lshrrev_b32 {vt2}, 8, {vt2}
        v_mad_i32_i24 {vt1}, {vt2}, -3, {vt1}
        v_lshl_add_u32 {vt0}, {vt2}, 6, {vt0}
        s_lshl_b32 {s_t0}, {s_mb}, 3
        v_add_u32 {vt0}, {s_t0}, {vt0}
        s_cmp_eq_u32 {s_w}, 3
        s_movk_i32 {s_c0}, 7168
        s_cmov_b32 {s_c0}, 6144
        s_movk_i32 {s_c1}, 108
        s_cmov_b32 {s_c1}, 2048
        v_mul_u32_u24 {vt0}, {s_c0}, {vt0}
        v_mad_u32_u24 {vpf}, {vt1}, {s_c1}, {vt0}
        v_cmp_gt_u32 vcc, 48, {vl}
        s_lshl_b32 {s_t0}, {s_t1}, 17
        v_lshl_add_u32 {vt0}, {vl}, 11, {s_t0}
        v_cndmask_b32 {vpf}, 2.0, {vpf}, vcc
        s_cmp_eq_u32 {s_w}, 0
        s_cselect_b64 vcc, -1, 0
        v_cndmask_b32 {vpf}, {vpf}, {vt0}, vcc
        v_cndmask_b32 {vt3}, 2.0, {vt0}, vcc
        """)
    p.e(f"""
    s_lshl_b32 {s_t0}, {s_mb}, 19
    s_lshl_b32 {s_t1}, {s_h}, 6
    s_mul_i32 {s_t2}, {s_h}, 224
    s_waitcnt lgkmcnt(0)
    """)
    pf.stamp(0)
    pf.trace_init(vtr, s_tr)
    srd(p, sx, px, off_s=s_t0, size=S * D * 2, size_s=s_t0)
    srd(p, sq, pqkv, off_s=s_t1, size=D * 3072 * 2, size_s=s_t1)
    p.e(f"""
    s_cmp_ge_u32 {s_w}, 2
    s_cselect_b32 {s_t0}, {pwu[0]}, {pwg[0]}
    s_cselect_b32 {s_t1}, {pwu[1]}, {pwg[1]}
    s_add_u32 {sg[0]}, {s_t0}, {s_t2}
    s_addc_u32 {sg[1]}, {s_t1}, 0
    s_sub_u32 {sg[2]}, {D * F * 2}, {s_t2}
    s_mov_b32 {sg[3]}, 0x00020000
    """)
    if xpf:
        p.e(f"""
        s_cmp_eq_u32 {s_w}, 3
        s_cselect_b64 {spf[0:2]}, {sq[0:2]}, {sg[0:2]}
        s_cselect_b32 {spf[2]}, {sq[2]}, {sg[2]}
        s_cmp_eq_u32 {s_w}, 0
        s_cselect_b64 {spf[0:2]}, {sx[0:2]}, {spf[0:2]}
        s_cselect_b32 {spf[2]}, {sx[2]}, {spf[2]}
        s_mov_b32 {spf[3]}, 0x00020000
        """)
        p.add([Ins(f'buffer_load_dword {vpd}, {vpf}, {spf}, 0 offen', 'pf')])
        if xpf > 1: p.add([Ins(f'buffer_load_dword {vpd}, {vt3}, {spf}, 0 offen offset:128', 'pf')])
    if ptrace: pf.trace()
    p.e(f"""
    v_lshrrev_b32 {vt0}, 3, {vl}
    v_and_b32 {vt1}, 7, {vl}
    v_lshrrev_b32 {vt2}, 4, {vl}
    v_xor_b32 {vt1}, {vt1}, {vt2}
    v_lshlrev_b32 {vt3}, 11, {vt0}
    s_lshl_b32 {s_t0}, {s_w}, 17
    v_add_u32 {vt3}, {s_t0}, {vt3}
    v_lshl_add_u32 {vdx[0]}, {vt1}, 4, {vt3}
    v_xor_b32 {vt1}, 4, {vt1}
    v_lshl_add_u32 {vdx[1]}, {vt1}, 4, {vt3}
    v_add_u32 {vdx[1]}, {16384 - 1024}, {vdx[1]}
    s_lshl_b32 {m0x[0][0]}, {s_w}, 13
    s_add_u32 {m0x[0][1]}, {m0x[0][0]}, 4096
    s_mov_b32 {s_ox}, 0
    """)
    for i in range(2, 8):
        p.e(f'v_add_u32 {vdx[i]}, {(i - i % 2) * 16384 - (i % 4 - i % 2) * 1024}, {vdx[i % 2]}')
    emit(dma_x(0))
    if ptrace: pf.trace()
    p.e(f"""
    v_lshrrev_b32 {vt0}, 2, {vl}
    v_lshrrev_b32 {vt2}, 4, {vl}
    v_and_b32 {vt2}, 2, {vt2}
    v_and_b32 {vt1}, 3, {vl}
    v_xor_b32 {vt1}, {vt1}, {vt2}
    s_lshl_b32 {s_t1}, {s_w}, 4
    v_add_u32 {vt0}, {s_t1}, {vt0}
    v_mul_u32_u24 {vt0}, 6144, {vt0}
    v_lshl_add_u32 {vdq[1]}, {vt1}, 4, {vt0}
    v_add_u32 {vdq[0]}, 1024, {vdq[1]}
    s_mul_i32 {s_t1}, {s_w}, 10240
    s_mov_b32 {s_oq}, 0
    s_mov_b32 {s_og}, 0
    """)
    for st in range(2):
        for j in range(3): p.e(f's_add_u32 {m0w[st][j]}, {s_t1}, {(W0, W1)[st] + j * 4096}')
    w0 = dma_w(0)
    p.e(f's_mov_b32 m0, {m0w[0][1]}')
    emit(w0[7:])
    p.e(f"""
    s_mul_i32 {s_t0}, {s_wc}, {32 * 7168}
    s_movk_i32 {s_c0}, 6944
    s_movk_i32 {s_c1}, 28672
    v_mul_u32_u24 {vt3}, 4682, {vl}
    v_lshl_add_u32 {vpf}, {vl}, 4, {s_t0}
    """)
    for j in range(7):
        imm = (j % 4) * 1024
        tj = vt3
        if j:
            p.e(f'v_add_u32 {vt0}, {64 * j * 4682}, {vt3}'); tj = vt0
        p.e(f"""
        v_bfe_u32 {vt1}, {tj}, 18, 1
        v_bfe_u32 {vt2}, {tj}, 19, 1
        v_lshrrev_b32 {vt0}, 16, {tj}
        v_sub_u32 {vt1}, {vt1}, {vt2}
        v_mad_u32_u24 {vdg[j]}, {vt0}, {s_c0}, {vpf}
        v_mad_i32_i24 {vdg[j]}, {vt1}, {s_c1}, {vdg[j]}
        """)
        if j == 3: p.e(f'v_add_u32 {vpf}, 4096, {vpf}')
        emit([w0[j]])
    p.add(adv)
    if ptrace: pf.trace()
    gx = [vtmp[4 * i:4 * i + 4] for i in range(4)]; gw = [vtmp[16:20], vtmp[20:24]]; t = vtmp[24:28]; z = [vt0, vt1]
    srd(p, sp2, pgw, size=2048)
    p.e(f"""
    s_lshl_b32 {s_t0}, {s_h}, 3
    s_lshl_b32 {s_t1}, {s_w}, 1
    s_add_u32 {s_t0}, {s_t0}, {s_t1}
    s_lshl_b32 {s_t2}, {s_t0}, 11
    s_add_u32 {m0x[1][0]}, {m0x[0][0]}, {X1}
    s_add_u32 {m0x[1][1]}, {m0x[0][0]}, {X1 + 4096}
    """)
    gate_loads = [f'buffer_load_dwordx4 {gw[0]}, {z[0]}, {sp2}, 0 offen', f'buffer_load_dwordx4 {gw[1]}, {z[0]}, {sp2}, 0 offen offset:16'] + \
                 [f'buffer_load_dwordx4 {gx[i]}, {z[0]}, {sx}, {s_t2} offen offset:{(i // 2) * 2048 + (i % 2) * 16}' for i in range(4)]
    PD = pfd
    def pfetch():
        return [Ins(f'buffer_load_dword {vpd}, {vpf}, {spf}, {s_pfo} offen', 'pf'), f's_add_u32 {s_pfo}, {s_pfo}, {s_pfs}']
    def pfetch_d():
        return [Ins(f'buffer_load_dword {vpd}, {vt3}, {sp2}, {s_c1} offen', 'pf'), f's_add_u32 {s_c1}, {s_c1}, {4096 * 128}']
    if pfm:
        p.e(f"""
        s_cmp_eq_u32 {s_w}, 0
        s_cselect_b32 {spf[0]}, {pqkv[0]}, {pwg[0]}
        s_cselect_b32 {spf[1]}, {pqkv[1]}, {pwg[1]}
        s_cselect_b32 {s_t0}, 12, 14
        s_cmp_eq_u32 {s_w}, 2
        s_cselect_b32 {spf[0]}, {pwu[0]}, {spf[0]}
        s_cselect_b32 {spf[1]}, {pwu[1]}, {spf[1]}
        s_lshl_b32 {spf[2]}, {s_t0}, 19
        s_lshl_b32 {s_pfs}, {s_t0}, 15
        s_mul_i32 {s_t1}, {s_t0}, s2
        v_and_b32 {vt1}, 15, {vl}
        v_add_u32 {vt0}, {s_t1}, {vt1}
        v_lshlrev_b32 {vpf}, 7, {vt0}
        v_cmp_gt_u32 vcc, {s_t0}, {vt1}
        v_cndmask_b32 {vpf}, 2.0, {vpf}, vcc
        s_mov_b32 {spf[3]}, 0x00020000
        s_cmp_lg_u32 {s_w}, 3
        s_cbranch_scc1 {name}_pf0
        """)
        p.seg('pfx')
        p.e(f"""
        s_mov_b32 {spf[0]}, {px[0]}
        s_mov_b32 {spf[1]}, {px[1]}
        s_mov_b32 {spf[2]}, {S * D * 2}
        s_movk_i32 {s_pfs}, 128
        s_lshl_b32 {s_t1}, s2, 14
        v_lshl_add_u32 {vpf}, {vt1}, 11, {s_t1}
        v_cmp_gt_u32 vcc, 8, {vt1}
        v_cndmask_b32 {vpf}, 2.0, {vpf}, vcc
        """)
        p.seg('pro2')
        p.e(f"""
        {name}_pf0:
        v_lshrrev_b32 {vt0}, 4, {vl}
        v_mul_lo_u32 {vt0}, {vt0}, {s_pfs}
        v_add_u32 {vt0}, {vt0}, {vpf}
        v_cmp_eq_u32 vcc, 2.0, {vpf}
        v_cndmask_b32 {vt0}, {vt0}, {vpf}, vcc
        v_cmp_gt_u32 vcc, {16 * (PD - (2 if xpf > 1 else 1))}, {vl}
        v_cndmask_b32 {vt0}, 2.0, {vt0}, vcc
        s_lshl_b32 {s_pfo}, {s_pfs}, {1 if xpf > 1 else 0}
        """)
        p.add([Ins(f'buffer_load_dword {vpd}, {vt0}, {spf}, {s_pfo} offen', 'pf')])
        p.e(f"""
        v_cmp_gt_u32 vcc, 16, {vl}
        v_cndmask_b32 {vpf}, 2.0, {vpf}, vcc
        s_mul_i32 {s_pfo}, {s_pfs}, {PD}
        """)
    else:
        p.seg('pfx'); p.seg('pro2')
    if ptrace: pf.trace()
    srd(p, sws, pws, size=WS_SIZE)
    srd(p, sfl, pws, off_imm=WS_FL, size=4096)
    p.e(f"""
    s_lshl_b32 {s_t0}, {s_mb}, 5
    s_add_u32 {s_t0}, {s_t0}, {s_h}
    s_lshl_b32 {s_t0}, {s_t0}, 2
    s_add_u32 {s_t0}, {s_t0}, {s_w}
    s_lshl_b32 {s_t0}, {s_t0}, 2
    v_mov_b32 {vt0}, {s_t0}
    v_cmp_eq_u32 vcc, 0, {vl}
    v_mov_b32 {vt1}, 0
    v_cndmask_b32 {vflag}, 2.0, {vt0}, vcc
    buffer_store_dword {vt1}, {vflag}, {sfl}, 0 offen sc1
    """)
    p.e(f"""
    v_and_b32 {vt0}, 15, {vl}
    v_lshrrev_b32 {vt1}, 4, {vl}
    v_lshrrev_b32 {vt2}, 1, {vt0}
    v_xor_b32 {vt2}, {vt1}, {vt2}
    s_lshl_b32 {s_t0}, {s_wr}, 14
    v_lshl_add_u32 {vt3}, {vt0}, 7, {s_t0}
    v_lshl_add_u32 {vxr[0]}, {vt2}, 4, {vt3}
    v_xor_b32 {vxr[1]}, 64, {vxr[0]}
    v_and_b32 {vt3}, 3, {vt0}
    v_lshlrev_b32 {vt3}, 3, {vt3}
    v_lshrrev_b32 {vt0}, 2, {vt0}
    v_lshrrev_b32 {vt2}, 1, {vt1}
    v_and_b32 {vt1}, 1, {vt1}
    v_mul_u32_u24 {vqr[0]}, 10240, {vt2}
    v_mul_u32_u24 {vqr[1]}, {512 + 32}, {vt1}
    v_add3_u32 {vqr[0]}, {vqr[0]}, {vqr[1]}, {vt3}
    v_lshl_add_u32 {vqr[0]}, {vt0}, 6, {vqr[0]}
    s_lshl_b32 {s_t0}, {s_wc}, 10
    s_sub_u32 {s_t0}, {W0 + 8192}, {s_t0}
    v_add_u32 {vqr[0]}, {s_t0}, {vqr[0]}
    v_xor_b32 {vqr[1]}, 32, {vqr[0]}
    v_lshl_add_u32 {vt0}, {vt1}, 2, {vt0}
    v_lshl_add_u32 {vt0}, {vt2}, 4, {vt0}
    v_mul_u32_u24 {vt0}, 224, {vt0}
    s_mul_i32 {s_t0}, {s_wc}, 96
    s_add_u32 {s_t0}, {s_t0}, {W0}
    v_add3_u32 {vgr[0]}, {vt0}, {vt3}, {s_t0}
    v_add_u32 {vgr[1]}, 20480, {vgr[0]}
    s_lshl_b32 {s_t0}, {s_mb}, 5
    s_add_u32 {s_t0}, {s_t0}, {s_h}
    s_lshl_b32 {s_t0}, {s_t0}, 7
    s_lshl_b32 {s_t1}, {s_w}, 3
    s_add_u32 {s_t0}, {s_t0}, {s_t1}
    s_add_u32 {s_gs}, {s_t0}, {WS_G}
    v_lshlrev_b32 {z[0]}, 5, {vl}
    """)
    if ptrace: pf.trace()
    p.e('WAITTAG S0')
    if ptrace: pf.trace()
    p.e('s_barrier')
    if ptrace: pf.trace()
    pf.stamp(1)

    def gate_ops():
        L = []
        for r in range(2):
            for j in range(8):
                xr = gx[2 * r + j // 4][j % 4]; wr_ = gw[j // 4][j % 4]
                L += [f'v_lshlrev_b32 {t[0]}, 16, {xr}', f'v_lshlrev_b32 {t[1]}, 16, {wr_}',
                      f'v_and_b32 {t[2]}, 0xffff0000, {xr}', f'v_and_b32 {t[3]}, 0xffff0000, {wr_}',
                      f'v_mul_f32 {t[0]}, {t[0]}, {t[1]}', f'v_mul_f32 {t[2]}, {t[2]}, {t[3]}',
                      f'v_cvt_pk_bf16_f32 {t[0]}, {t[0]}, {t[2]}', f'v_lshlrev_b32 {t[1]}, 16, {t[0]}',
                      f'v_and_b32 {t[2]}, 0xffff0000, {t[0]}']
                if j == 0: L.append(f'v_add_f32 {z[r]}, {t[1]}, {t[2]}')
                else: L += [f'v_add_f32 {t[1]}, {t[1]}, {t[2]}', f'v_add_f32 {z[r]}, {z[r]}, {t[1]}']
        for mode in ('quad_perm:[1,0,3,2]', 'quad_perm:[2,3,0,1]', 'row_half_mirror', 'row_mirror'):
            for r in range(2): L.append(f'v_add_f32_dpp {z[r]}, {z[r]}, {z[r]} {mode} row_mask:0xf bank_mask:0xf')
        for op in ('v_permlane16_swap_b32', 'v_permlane32_swap_b32'):
            for r in range(2): L.append(f'v_mov_b32 {t[r]}, {z[r]}')
            for r in range(2): L.append(f'{op} {t[r]}, {z[r]}')
            for r in range(2): L.append(f'v_add_f32 {z[r]}, {z[r]}, {t[r]}')
        L += f"""v_and_b32 {t[1]}, 1, {vl}
        v_cmp_eq_u32 vcc, 1, {t[1]}
        v_and_b32 {t[3]}, 2, {vl}
        v_cndmask_b32 {t[0]}, {z[0]}, {z[1]}, vcc
        v_cvt_pk_bf16_f32 {t[0]}, {t[0]}, {t[0]}
        v_and_b32 {t[0]}, 0xffff0000, {t[0]}
        v_mul_f32 {t[0]}, {hex(f32bits(-math.log2(math.e)))}, {t[0]}
        v_exp_f32 {t[0]}, {t[0]}
        v_cmp_eq_u32 vcc, 2, {t[3]}
        v_add_f32 {t[0]}, 1.0, {t[0]}
        v_rcp_f32 {t[0]}, {t[0]}
        v_lshlrev_b32 {t[3]}, 4, {t[3]}
        v_cvt_pk_bf16_f32 {t[0]}, {t[0]}, {t[0]}
        v_and_b32 {t[0]}, 0xffff0000, {t[0]}
        v_sub_f32 {t[2]}, 1.0, {t[0]}
        v_cvt_pk_bf16_f32 {t[2]}, {t[2]}, {t[2]}
        v_and_b32 {t[2]}, 0xffff0000, {t[2]}
        v_cndmask_b32 {t[0]}, {t[0]}, {t[2]}, vcc
        v_lshl_add_u32 {t[3]}, {t[1]}, 2, {t[3]}
        v_cmp_gt_u32 vcc, 4, {vl}
        v_cndmask_b32 {t[3]}, 2.0, {t[3]}, vcc
        buffer_store_dword {t[0]}, {t[3]}, {sws}, {s_gs} offen{st_mod}""".split('\n')
        return [x.strip() for x in L]

    def wread(j, st, wc):
        ks, n = divmod(j, 10)
        slot = wf[j % NSLOT]
        nq = 4 if wc == 0 else 2
        if n < nq: base = vqr[n % 2]; off = ks * 20480 + (n // 2) * 1024; so = 256
        else: base = vgr[(n - nq) % 2]; off = ks * 10240 + ((n - nq) // 2) * 32; so = 1792
        off += st * (W1 - W0)
        return [f'ds_read_b64_tr_b16 {slot[2 * s:2 * s + 2]}, {base} offset:{off + s * so}' for s in range(2)]
    def xread(m, ks, st):
        return f'ds_read_b128 {xf[ks][m]}, {vxr[ks]} offset:{st * (X1 - X0) + m * 2048}'

    for m in range(8): p.e(xread(m, 0, 0))
    p.e(f's_cmp_eq_u32 {s_wc}, 1')
    p.e(f's_cbranch_scc1 {name}_c1')

    def stage(st, wc, first=False, last=False, extra=None, fill=None, estep=2, postbar=None):
        slots = {}
        for j in range(20):
            jj = j + DIST
            if jj < 20: rd = wread(jj, st, wc)
            elif last: continue
            else: rd = wread(jj - 20, st ^ 1, wc)
            place(slots, 8 * j + 0, rd[0]); place(slots, 8 * j + 2, rd[1])
        for m in range(8): place(slots, 8 * (1 + m) + 4, xread(m, 1, st))
        bar = 8 * (20 - DIST)
        if not last:
            for m, c in enumerate((1, 3, 4, 6, 9, 11, 12, 14)): place(slots, bar + c, xread(m, 0, st ^ 1))
        pos = []; c = 1.0
        for k in range(18):
            pos.append(int(c)); c += cg if k < 7 else (cq if k < 10 else cx)
        endc = int(c) - (160 - bar)
        if first:
            pos = [x + 160 - bar for x in pos]; endc += 160 - bar
        if not last:
            dl = dma_w(st ^ 1) + dma_x(st ^ 1)
            for k in range(18):
                c = pos[k] - (160 - bar)
                if c < 0: continue
                for x in dl[k][0]: place(slots, max(c - 1, 0), x)
                place(slots, c, dl[k][1])
            for i, x in enumerate(adv): place(slots, endc - 2 + i, x)
            if first: pos = [x - (160 - bar) for x in pos]
            dl = dma_w(st) + dma_x(st)
            for k in range(18):
                c = bar + pos[k]
                if c >= 160: continue
                for x in dl[k][0]: place(slots, c - 1, x)
                place(slots, c, dl[k][1])
        c = endc + 1
        for x in (extra or []):
            place(slots, c, x)
            c += 3 if (isinstance(x, Ins) or x.startswith('buffer')) else estep
        assert c < bar
        for i, x in enumerate(postbar or []): place(slots, bar + 15 + i, x)
        fill = list(fill or [])
        for c in range(160):
            ks, r = divmod(c, 80); n, mi = divmod(r, 8)
            m = mi if n % 2 == 0 else 7 - mi
            if c == 0 and not first: p.e('s_waitcnt lgkmcnt(2)')
            if c == bar and not last:
                p.e(f'WAITTAG S{st ^ 1} LGKM0')
                p.e('s_barrier')
                if ptrace > 1: pf.trace()
            w = wf[(ks * 10 + n) % NSLOT]; x = xf[ks][m]
            a, b = (x, w) if (wc == 1 and n < 2) else (w, x)
            cin = '0' if (first and ks == 0) else str(acc[n][m])
            p.e(f'v_mfma_f32_16x16x32_bf16 {acc[n][m]}, {a}, {b}, {cin}')
            here = slots.get(c, [])
            p.add(here)
            if c >= 1:
                for _ in range(2 - len(here)):
                    if fill: p.e(fill.pop(0))
        p.add(fill)

    def toreg(tile, tmp):
        if tile.k == 'v': return tile
        for i in range(4): p.e(f'v_accvgpr_read_b32 {tmp[i]}, {tile[i]}')
        return tmp
    def pack(o, t0, t1):
        p.e(f'v_cvt_pk_bf16_f32 {o[0]}, {t0[0]}, {t0[1]}\nv_cvt_pk_bf16_f32 {o[1]}, {t0[2]}, {t0[3]}')
        p.e(f'v_cvt_pk_bf16_f32 {o[2]}, {t1[0]}, {t1[1]}\nv_cvt_pk_bf16_f32 {o[3]}, {t1[2]}, {t1[3]}')

    def pf_setup():
        L = f"""s_lshl_b32 {s_t0}, s2, 2
        s_add_u32 {s_t0}, {s_t0}, {s_w}
        s_lshl_b32 {s_t1}, {s_t0}, 9
        v_lshl_add_u32 {vt3}, {vl}, 7, {s_t1}
        v_cmp_gt_u32 vcc, 4, {vl}
        s_mov_b32 {sp2[0]}, {pwd[0]}
        s_mov_b32 {sp2[1]}, {pwd[1]}
        s_mov_b32 {sp2[2]}, {F * D * 2}
        v_cndmask_b32 {vt3}, 2.0, {vt3}, vcc
        s_mov_b32 {s_c1}, 0""".split('\n')
        return [x.strip() for x in L]
    def pf_wo():
        L = f"""s_lshl_b32 {s_t0}, s2, 2
        s_add_u32 {s_t0}, {s_t0}, {s_w}
        s_lshl_b32 {s_t1}, {s_t0}, 11
        v_lshl_add_u32 {vt3}, {vl}, 7, {s_t1}
        v_cmp_gt_u32 {smask}, 16, {vl}
        s_mov_b32 {sp2[0]}, {pwo[0]}
        s_mov_b32 {sp2[1]}, {pwo[1]}
        s_mov_b32 {sp2[2]}, {D * D * 2}
        v_cndmask_b32 {vt3}, 2.0, {vt3}, {smask}""".split('\n')
        return [x.strip() for x in L] + [Ins(f'buffer_load_dword {vpd}, {vt3}, {sp2}, 0 offen', 'pf')]

    spins = []
    def check(cond_lines, reload_lines, tag):
        lab = f'{name}_{tag}'
        spins.append((lab, cond_lines, reload_lines))
        return cond_lines + [f's_cbranch_vccnz {lab}_spin', f'{lab}_ok:']

    def epilogue(wc):
        vq = vdx[0]; vh = vdx[1]; vql = vdx[2]
        s_b, s_qs = s_oq, R('s', sp2.a, 2)
        outs = [vtmp[16 + 4 * i:20 + 4 * i] for i in range(3)]
        p.e(f"""
        v_and_b32 {vt0}, 15, {vl}
        v_lshrrev_b32 {vt1}, 4, {vl}
        v_lshlrev_b32 {vq}, 9, {vt1}
        v_lshlrev_b32 {vh}, 4, {vl}
        s_lshl_b32 {s_t0}, {s_h}, 6
        s_lshl_b32 {s_t1}, {s_mb}, 3
        s_add_u32 {s_t0}, {s_t0}, {s_t1}
        s_lshl_b32 {s_t1}, {s_wr}, 2
        s_add_u32 {s_t0}, {s_t0}, {s_t1}
        s_lshl_b32 {s_b}, {s_t0}, 12
        s_add_u32 {s_b}, {s_b}, {WS_KV}
        s_lshl_b32 {s_t1}, {s_wr}, 14
        """)
        k = 0
        if wc == 0:
            p.e(f"""
            v_lshrrev_b32 {vt2}, 3, {vt0}
            v_lshl_add_u32 {vq}, {vt2}, 8, {vq}
            v_and_b32 {vt2}, 7, {vt0}
            v_lshl_add_u32 {vq}, {vt2}, 4, {vq}
            v_add_u32 {vql}, {s_t1}, {vq}
            s_mov_b32 {s_qs[0]}, {hex(f32bits(QSCALE))}
            s_mov_b32 {s_qs[1]}, {s_qs[0]}
            """)
            for m in range(8):
                o = outs[k % 3]; k += 1
                pack(o, toreg(acc[2][m], vtmp[0:4]), toreg(acc[3][m], vtmp[4:8]))
                p.e(f'buffer_store_dwordx4 {o}, {vq}, {sws}, {s_b} offen offset:{(m % 2) * 128}{st_mod}', 'KVST')
                p.e(f'ds_write_b128 {vql}, {o} offset:{(m // 2) * 4096 + (m % 2) * 128}')
                if m % 2 == 1 and m < 7: p.e(f's_add_u32 {s_b}, {s_b}, 4096')
            p.e(f's_lshl_b32 {s_t1}, {s_wr}, 13\ns_add_u32 {s_t1}, {s_t1}, {QS}\nv_add_u32 {vql}, {s_t1}, {vq}')
            for m in range(8):
                o = outs[k % 3]; k += 1
                t0 = toreg(acc[0][m], vtmp[0:4]); t1 = toreg(acc[1][m], vtmp[4:8])
                for tt in (t0, t1):
                    for i in range(2): p.e(f'v_pk_mul_f32 {tt[2*i:2*i+2]}, {tt[2*i:2*i+2]}, {s_qs}')
                pack(o, t0, t1)
                p.e(f'ds_write_b128 {vql}, {o} offset:{(m // 2) * 2048 + (m % 2) * 128}')
        else:
            p.e(f'v_lshl_add_u32 {vq}, {vt0}, 4, {vq}\nv_add_u32 {vql}, {s_t1}, {vq}')
            for j in range(4):
                for nt in range(2):
                    o = outs[k % 3]; k += 1
                    pack(o, toreg(acc[nt][2 * j], vtmp[0:4]), toreg(acc[nt][2 * j + 1], vtmp[4:8]))
                    p.e(f'buffer_store_dwordx4 {o}, {vq}, {sws}, {s_b} offen offset:{2048 + nt * 256}{st_mod}', 'KVST')
                    p.e(f'ds_write_b128 {vql}, {o} offset:{j * 4096 + 2048 + nt * 256}')
                if j < 3: p.e(f's_add_u32 {s_b}, {s_b}, 4096')
        nq = 4 if wc == 0 else 2
        p.e(f"""
        s_lshl_b32 {s_t0}, {s_mb}, 1
        s_add_u32 {s_t0}, {s_t0}, {s_wr}
        s_mul_i32 {s_t0}, {s_t0}, 288
        s_mul_i32 {s_t1}, {s_h}, 7
        s_add_u32 {s_t0}, {s_t0}, {s_t1}
        s_lshl_b32 {s_t0}, {s_t0}, 12
        s_add_u32 {s_b}, {s_t0}, {WS_A + 3 * 4096 * wc}
        """)
        for n in range(nq, 10, 2):
            for j in range(4):
                o = outs[k % 3]; k += 1
                tt = []
                for mm in range(2):
                    g_ = toreg(acc[n][2 * j + mm], vtmp[8 * mm:8 * mm + 4]); u_ = toreg(acc[n + 1][2 * j + mm], vtmp[8 * mm + 4:8 * mm + 8])
                    for i in range(2): p.e(f'v_pk_mul_f32 {g_[2*i:2*i+2]}, {g_[2*i:2*i+2]}, {u_[2*i:2*i+2]}')
                    tt.append(g_)
                pack(o, tt[0], tt[1])
                p.e(f'v_permlane16_swap_b32 {o[0]}, {o[2]}\nv_permlane16_swap_b32 {o[1]}, {o[3]}')
                p.e(f'buffer_store_dwordx4 {o}, {vh}, {sws}, {s_b} offen offset:{j * 1024}{st_mod}', 'HST')
            if n < 8: p.e(f's_add_u32 {s_b}, {s_b}, 4096')

    def lines(s): return [x.strip() for x in s.strip().split('\n')]
    announce = lines(f"""
        s_mov_b32 {sp2[0]}, {pdbg[0]}
        s_mov_b32 {sp2[1]}, {pdbg[1]}
        s_movk_i32 {sp2[2]}, 256
        s_and_b32 {s_t0}, s2, 7
        s_lshl_b32 {s_t0}, {s_t0}, 2
        v_mov_b32 {vt2}, 1
        v_cmp_eq_u32 {smask}, 0, v0
        v_cndmask_b32 {vt1}, 2.0, 0, {smask}
        buffer_atomic_add {vt2}, {vt1}, {sp2}, {s_t0} offen offset:{DBG_CNT} sc1""")
    cnt_addr = lines(f"""
        s_mov_b32 {spf[0]}, {pdbg[0]}
        s_mov_b32 {spf[1]}, {pdbg[1]}
        s_movk_i32 {spf[2]}, 256
        v_and_b32 {vpf}, 7, {vl}
        v_lshlrev_b32 {vpf}, 2, {vpf}""")
    cnt_load = f'buffer_load_dword {vcnt}, {vpf}, {spf}, 0 offen offset:{DBG_CNT} sc1'

    for wc in range(2):
        p.seg(f'c{wc}a')
        if wc == 1: p.e(f'{name}_c1:')
        for j in range(DIST): p.add(wread(j, 0, wc))
        stage(0, wc, first=True, extra=pfetch() + gate_loads, estep=1, postbar=announce)
        p.add(pf_setup())
        p.e(f's_mov_b32 {s_cnt}, 7')
        p.seg(f'c{wc}loop')
        p.e(f'{name}_c{wc}loop:')
        for st in (1, 0): stage(st, wc, extra=pfetch() + pfetch_d())
        p.e(f's_sub_u32 {s_cnt}, {s_cnt}, 1\ns_cmp_lg_u32 {s_cnt}, 0\ns_cbranch_scc1 {name}_c{wc}loop')
        p.seg(f'c{wc}last')
        stage(1, wc, last=True, extra=cnt_addr + [cnt_load] + pf_wo(), fill=gate_ops())
        pf.stamp(2)
        epilogue(wc)
        if wc == 0: p.e(f's_branch {name}_join')
    p.seg('join')
    p.e(f'{name}_join:')
    p.add(check([f'v_cmp_ne_u32 vcc, 32, {vcnt}'], [cnt_load], 'cnt'))

    sa.p = s_base; va.p = v_base; aa.p = 0
    skv = sa(4); sA = sa(4); swd = sa(4); swo = sa(4); sout = sa(4)
    s_okv, s_left, s_p, s_oa, s_ow, s_wb, s_ob, s_ob2, s_thr, s_mt, s_nt, s_oo, s_spin = [sa() for _ in range(13)]
    vl16, vkA, vkB, vdma, vo, vidx, vu0, vu1, vu2, vpa = [va() for _ in range(10)]
    vdd = [va() for _ in range(2)]; vdo = [va() for _ in range(2)]; vwr = [va() for _ in range(2)]
    vg = va(2); vog = va(4); vpoll = va(2, 2); vsc = va(2)
    ones = va(4, 4)
    assert va.p <= 48 and va.p > vcnt.a
    va.p = 48
    Sx = [va(16, 4) for _ in range(2)]; P = [va(8, 4) for _ in range(2)]; C = [va(16, 4) for _ in range(2)]
    acc3 = [[va(16, 4) for _ in range(4)] for _ in range(2)]
    O = [aa(16, 4) for _ in range(2)]; L = [aa(4, 4) for _ in range(2)]
    Q = [aa(8, 4) for _ in range(2)]; K = [aa(8, 4) for _ in range(2)]; V = [aa(8, 4) for _ in range(2)]
    Wf = [aa(4, 4) for _ in range(2)]
    Ab = [[aa(4, 4) for _ in range(4)] for _ in range(8)]

    p.e(f"""
    v_lshlrev_b32 {vl16}, 4, {vl}
    s_lshl_b32 {s_p}, {s_w}, 12
    s_add_u32 {s_t0}, {s_p}, {QS}
    v_add_u32 {vu0}, {s_t0}, {vl16}
    s_waitcnt lgkmcnt(0)
    s_barrier
    """)
    pf.stamp(3)
    def kread(kb, loop=False):
        base, o = (vl16, (kb % 16) * 4096) if not loop else ((vkA, kb * 4096) if kb < 8 else (vkB, (kb - 8) * 4096))
        return [f'ds_read_b128 {K[kb % 2][4*f:4*f+4]}, {base} offset:{o + f * 1024}' for f in range(2)]
    def vread(kb, loop=False):
        base, o = (vl16, (kb % 16) * 4096) if not loop else (vkA, kb * 4096)
        return [f'ds_read_b128 {V[kb % 2][4*f:4*f+4]}, {base} offset:{o + 2048 + f * 1024}' for f in range(2)]
    def qk(dst, kb, q, f, cin):
        return f'v_mfma_f32_32x32x16_bf16 {dst}, {K[kb % 2][4*f:4*f+4]}, {Q[q][4*f:4*f+4]}, {cin if f == 0 else dst}'
    def pv(j, f, zero=False):
        q = j % 2; kb = (j // 2) % 2
        return f'v_mfma_f32_32x32x16_bf16 {O[q]}, {V[kb][4*f:4*f+4]}, {P[q][4*f:4*f+4]}, {"0" if zero else O[q]}'
    def rsum(q): return f'v_smfmac_f32_16x16x64_bf16 {L[q]}, {ones}, {P[q]}, {vidx}'
    def cvt(j, i): return f'v_cvt_pk_bf16_f32 {P[j % 2][i]}, {Sx[j % 2][2*i]}, {Sx[j % 2][2*i+1]}'
    def rowmax(dst, src, init):
        lst = [src[i] for i in range(16)]
        if init:
            p.e(f'v_max3_f32 {dst}, {lst[0]}, {lst[1]}, {lst[2]}'); lst = lst[3:]
        while len(lst) >= 2:
            p.e(f'v_max3_f32 {dst}, {dst}, {lst[0]}, {lst[1]}'); lst = lst[2:]
        if lst: p.e(f'v_max_f32 {dst}, {dst}, {lst[0]}')
    def setc(q, m):
        p.e(f'v_mov_b32 {vu2}, {m}\nv_permlane32_swap_b32 {vu2}, {m}\nv_max_f32 {m}, {m}, {vu2}')
        for i in range(16): p.e(f'v_sub_f32 {C[q][i]}, 0, {m}')
    for q in range(2):
        for f in range(2): p.e(f'ds_read_b128 {Q[q][4*f:4*f+4]}, {vu0} offset:{q * 2048 + f * 1024}')
    p.add(kread(0)); p.add(kread(1))
    p.e(f"""
    v_bfe_u32 {vu0}, {vl}, 2, 1
    v_bfe_u32 {vu1}, {vl}, 1, 1
    v_mov_b32 {vu2}, 0x3f803f80
    v_or_b32 {vidx}, {vu0}, {vu1}
    v_cmp_eq_u32 vcc, 0, {vidx}
    v_xor_b32 {vu0}, 1, {vu0}
    v_or_b32 {vidx}, {vu0}, {vu1}
    v_cndmask_b32 {ones[0]}, 0, {vu2}, vcc
    v_cndmask_b32 {ones[1]}, 0, {vu2}, vcc
    v_cmp_eq_u32 vcc, 0, {vidx}
    v_and_b32 {vu0}, 1, {vl}
    v_mov_b32 {vu1}, 0xeeeeeeee
    v_cndmask_b32 {ones[2]}, 0, {vu2}, vcc
    v_cndmask_b32 {ones[3]}, 0, {vu2}, vcc
    v_cmp_eq_u32 vcc, 0, {vu0}
    v_mov_b32 {vu2}, 0x44444444
    v_add_u32 {vdma}, {s_p}, {vl16}
    v_cndmask_b32 {vidx}, {vu1}, {vu2}, vcc
    """)
    for q in range(2):
        for f in range(2): p.e(qk(C[q], 0, q, f, '0'))
    for q in range(2):
        for i in range(4): p.e(f'v_accvgpr_write_b32 {L[q][i]}, 0')
    p.e(f's_lshl_b32 {s_t0}, {s_h}, 18')
    srd(p, skv, pws, off_s=s_t0, off_imm=WS_KV, size=262144)
    rowmax(vu0, C[0], True); rowmax(vu1, C[1], True)
    setc(0, vu0)
    p.e(qk(Sx[0], 0, 0, 0, C[0])); p.e(qk(Sx[0], 0, 0, 1, C[0]))
    setc(1, vu1)

    def flag(val, tag, wait):
        return [f'v_mov_b32 {vu0}, {val}', f'WAITTAG {wait}', Ins(f'buffer_store_dword {vu0}, {vflag}, {sfl}, 0 offen sc1', tag)]
    def kvdma(m0line, tag):
        return [m0line] + [Ins(f'buffer_load_dwordx4 {vdma}, {skv}, {s_okv} offen offset:{i * 1024} lds', tag) for i in range(4)] + \
               [f's_add_u32 {s_okv}, {s_okv}, 16384', f's_and_b32 {s_okv}, {s_okv}, 0x3ffff',
                f's_sub_u32 {s_left}, {s_left}, 1', f's_cselect_b32 {skv[2]}, 0, {skv[2]}']
    def dloads(s):
        b = s % NB
        return [f's_add_u32 m0, {s_wb}, {b * 2048}'] + \
               [Ins(f'buffer_load_dwordx4 {vdd[hh]}, {swd}, {s_ow} offen offset:{hh * 1024} lds', f'D{b}') for hh in range(2)] + \
               [Ins(f'buffer_load_dwordx4 {Ab[b][tb]}, {vl16}, {sA}, {s_oa} offen offset:{tb * 1024}', f'D{b}') for tb in range(4)] + \
               [f's_add_u32 {s_ow}, {s_ow}, 32768', f's_add_u32 {s_oa}, {s_oa}, 4096']
    def wrd(base, off, nb):
        return [f'ds_read_b64_tr_b16 {Wf[nb][2*s:2*s+2]}, {base[nb]} offset:{off + s * 512}' for s in range(2)]
    def gm(buf, nb, tb, zero=False):
        return f'v_mfma_f32_32x32x16_bf16 {acc3[nb][tb]}, {Wf[nb]}, {buf[tb]}, {"0" if zero else acc3[nb][tb]}'
    def oload(t, m0line, tag):
        return [m0line] + [Ins(f'buffer_load_dwordx4 {vdo[hh]}, {swo}, {s_oo} offen offset:{hh * 1024} lds', tag) for hh in range(2)] + [f's_add_u32 {s_oo}, {s_oo}, 32768']

    def period(j, loop=False, item=None, misc=(), pre=(), zero=False):
        s = Sx[j % 2]
        E = [f'v_exp_f32 {s[i]}, {s[i]}' for i in range(16)]
        jn = j + 1
        m1 = qk(Sx[jn % 2], jn // 2, jn % 2, 0, C[jn % 2]); m2 = qk(Sx[jn % 2], jn // 2, jn % 2, 1, None)
        rd = kread((j + 1) // 2 + 1, loop) if j % 2 == 1 else vread(j // 2, loop)
        first = (j == 0 and not loop)
        zo = (j <= 2 and not loop)
        c7 = [] if first else [cvt(j - 1, 7)]
        p0 = [] if first else [pv(j - 1, 0, zo)]; p1 = [] if first else [pv(j - 1, 1)]; rs = [] if first else [rsum((j - 1) % 2)]
        misc = list(pre) + rd + list(misc)
        if item is None:
            groups = [[E[0]] + c7 + [m1], [E[1], E[2], cvt(j, 0), E[3], m2], [E[4], cvt(j, 1), E[5], E[6]] + p0,
                      [cvt(j, 2), E[7], E[8], cvt(j, 3), E[9]] + p1, [E[10], cvt(j, 4), E[11], E[12]] + rs, [cvt(j, 5), E[13], E[14], cvt(j, 6), E[15]]]
            cap = [len(pre) + 1, 1, 1, 1, 1, 0]
        else:
            st, nb = item
            G = [gm(Ab[st % NB], nb, tb if nb == 0 else 3 - tb, zero) for tb in range(4)]
            groups = [[G[0]], [E[0]] + c7 + [m1], [E[1], E[2], cvt(j, 0), G[1]], [E[3], E[4], cvt(j, 1), m2], [E[5], E[6], cvt(j, 2), G[2]],
                      [E[7], E[8], cvt(j, 3)] + p0, [E[9], E[10], cvt(j, 4), G[3]], [E[11], E[12], cvt(j, 5)] + p1, [E[13], E[14], cvt(j, 6)] + rs, [E[15]]]
            cap = [max(3, len(pre) + 1), 1, 1, 1, 1, 1, 1, 1, 0, 0]
        k = 1 if item is None else 1
        while sum(cap) < len(misc):
            cap[k] += 1; k += 1
            if k >= len(cap) - (1 if item is None else 2): k = 0
        for g, cp in zip(groups, cap):
            p.add(g)
            n = 0
            while misc and n < cp:
                x = misc.pop(0); p.add([x]); n += 1
                while misc and isinstance(x, str) and (x.startswith('s_cbranch') or x.startswith('v_cmp') or x.startswith('s_or_b64') or x.startswith('WAITTAG')):
                    x = misc.pop(0); p.add([x])
        assert not misc

    setup1 = lines(f"""
        s_lshl_b32 {s_okv}, {s_mb}, 15
        s_add_u32 {s_okv}, {s_okv}, 32768
        s_and_b32 {s_okv}, {s_okv}, 0x3ffff
        s_movk_i32 {s_left}, 13
        v_lshrrev_b32 {vu1}, 2, {vl}
        v_and_b32 {vu1}, 7, {vu1}
        v_and_b32 {vu2}, 3, {vl}
        v_lshlrev_b32 {vu2}, 2, {vu2}
        v_lshl_add_u32 {vpa}, {vu1}, 9, {vu2}
        s_lshl_b32 {s_t2}, {s_h}, 4""")
    poll_kv = f'buffer_load_dword {vpoll[0]}, {vpa}, {sfl}, {s_t2} offen sc1'
    setup2 = lines(f"""
        s_and_b32 {s_t0}, s2, 7
        s_lshr_b32 {s_t1}, s2, 3
        s_lshr_b32 {s_mt}, {s_t0}, 1
        s_lshl_b32 {s_mt}, {s_mt}, 2
        s_and_b32 {s_nt}, {s_t0}, 1
        s_lshl_b32 {s_nt}, {s_nt}, 3
        s_and_b32 {s_t0}, {s_t1}, 3
        s_add_u32 {s_mt}, {s_mt}, {s_t0}
        s_lshr_b32 {s_t0}, {s_t1}, 2
        s_add_u32 {s_nt}, {s_nt}, {s_t0}
        s_lshl_b32 {s_t0}, {s_nt}, 7
        s_add_u32 {swo[0]}, {pwo[0]}, {s_t0}
        s_addc_u32 {swo[1]}, {pwo[1]}, 0
        s_sub_u32 {swo[2]}, {D * D * 2}, {s_t0}
        s_mov_b32 {swo[3]}, 0x00020000
        s_add_u32 {swd[0]}, {pwd[0]}, {s_t0}
        s_addc_u32 {swd[1]}, {pwd[1]}, 0
        s_sub_u32 {swd[2]}, {F * D * 2}, {s_t0}
        s_mov_b32 {swd[3]}, 0x00020000
        s_mul_i32 {s_t0}, {s_mt}, {288 * 4096}
        s_add_u32 {s_t0}, {s_t0}, {WS_A}
        s_add_u32 {sA[0]}, {pws[0]}, {s_t0}
        s_addc_u32 {sA[1]}, {pws[1]}, 0
        s_mov_b32 {sA[2]}, {288 * 4096}
        s_mov_b32 {sA[3]}, 0x00020000
        s_mul_i32 {s_oa}, {s_w}, {56 * 4096}
        s_mul_i32 {s_ow}, {s_w}, {56 * 32768}
        s_lshl_b32 {s_oo}, {s_w}, 19
        s_mul_i32 {s_wb}, {s_w}, 20480
        s_add_u32 {s_wb}, {s_wb}, {W0}
        v_lshrrev_b32 {vu1}, 3, {vl}
        v_and_b32 {vu2}, 2, {vu1}
        v_lshlrev_b32 {vu2}, 1, {vu2}
        v_and_b32 {vdd[1]}, 7, {vl}
        v_xor_b32 {vu2}, {vu2}, {vdd[1]}
        v_lshlrev_b32 {vu2}, 4, {vu2}
        v_lshl_add_u32 {vdd[0]}, {vu1}, 11, {vu2}
        v_add_u32 {vdd[1]}, {8 * 2048 - 1024}, {vdd[0]}
        v_lshrrev_b32 {vu1}, 5, {vl}
        v_lshl_add_u32 {vdo[0]}, {vu1}, 13, {vdd[0]}
        v_add_u32 {vdo[1]}, {4 * 2048 - 1024}, {vdo[0]}
        v_lshl_add_u32 {vwr[0]}, {vu1}, 10, {s_wb}
        v_bfe_u32 {vu1}, {vl}, 2, 2
        v_lshl_add_u32 {vwr[0]}, {vu1}, 7, {vwr[0]}
        v_bfe_u32 {vu1}, {vl}, 3, 1
        v_lshl_add_u32 {vwr[0]}, {vu1}, 6, {vwr[0]}
        v_bfe_u32 {vu1}, {vl}, 4, 1
        v_lshl_add_u32 {vwr[0]}, {vu1}, 5, {vwr[0]}
        v_and_b32 {vu1}, 3, {vl}
        v_lshl_add_u32 {vwr[0]}, {vu1}, 3, {vwr[0]}
        v_xor_b32 {vwr[1]}, 64, {vwr[0]}
        v_mov_b32 {vkA}, {vl16}
        v_add_u32 {vkB}, 32768, {vl16}""")
    setup3 = lines(f"""
        v_and_b32 {vu1}, 7, {vl}
        v_bfe_u32 {vu2}, {vl}, 4, 1
        v_lshl_add_u32 {vo}, {vu2}, 3, {vu1}
        v_bfe_u32 {vu2}, {vl}, 3, 1
        v_lshl_add_u32 {vo}, {vu2}, 4, {vo}
        v_lshrrev_b32 {vu2}, 3, {vo}
        v_lshlrev_b32 {vu2}, 7, {vu2}
        v_lshl_add_u32 {vsc[0]}, {vu1}, 2, {vu2}
        v_lshlrev_b32 {vo}, 4, {vo}
        v_lshrrev_b32 {vu2}, 5, {vl}
        v_lshl_add_u32 {vo}, {vu2}, 9, {vo}
        v_bfe_u32 {vu2}, {vl}, 3, 2
        v_lshlrev_b32 {vu2}, 7, {vu2}
        v_lshl_add_u32 {vsc[1]}, {vu1}, 2, {vu2}
        s_lshl_b32 {s_t0}, {s_mb}, 1
        s_add_u32 {s_t0}, {s_t0}, {s_wr}
        s_mul_i32 {s_t0}, {s_t0}, 288
        s_lshl_b32 {s_t1}, {s_h}, 1
        s_add_u32 {s_t0}, {s_t0}, {s_t1}
        s_add_u32 {s_t0}, {s_t0}, 224
        s_lshl_b32 {s_t0}, {s_t0}, 12
        s_lshl_b32 {s_t1}, {s_wc}, 11
        s_add_u32 {s_t0}, {s_t0}, {s_t1}
        s_add_u32 {s_ob}, {s_t0}, {WS_A}
        s_add_u32 {s_ob2}, {s_ob}, 4096
        s_mov_b32 {s_thr}, {hex(f32bits(2.0 ** 40 if not force_slow else 0.5))}
        v_lshlrev_b32 {vpa}, 3, {vl}
        s_lshr_b32 {s_t2}, {s_mt}, 1
        s_lshl_b32 {s_t2}, {s_t2}, 9""")
    poll_h = f'buffer_load_dwordx2 {vpoll}, {vpa}, {sfl}, {s_t2} offen sc1'
    cond2 = [f'v_min_u32 {vu1}, {vpoll[0]}, {vpoll[1]}', f'v_cmp_gt_u32 vcc, 2, {vu1}']
    og_loads = [f's_lshl_b32 {s_t0}, {s_mt}, 11', f's_add_u32 {s_t0}, {s_t0}, {WS_G + 32}'] + \
               [f'buffer_load_dword {vog[tb]}, {vsc[1]}, {sws}, {s_t0} offen offset:{tb * 512}' for tb in range(4)]
    g_loads = [f's_lshl_b32 {s_t0}, {s_mb}, 2', f's_add_u32 {s_t0}, {s_t0}, {s_w}', f's_lshl_b32 {s_t0}, {s_t0}, 10', f's_add_u32 {s_t0}, {s_t0}, {WS_G}'] + \
              [f'buffer_load_dword {vg[q]}, {vsc[0]}, {sws}, {s_t0} offen offset:{q * 512}' for q in range(2)]
    early_o = []
    for t in range(8):
        early_o.append(oload(t, f's_add_u32 m0, {s_wb}, {(NB + t) * 2048}' if t < 6 else f's_add_u32 m0, {s_p}, {QS + (t - 6) * 2048}', 'WO'))
    assert NB == 4

    plan = {j: [] for j in range(32)}; prej = {j: [] for j in range(32)}
    plan[0] += setup1
    plan[1] += flag(1, 'FL', 'KVST')
    plan[2] += setup2[:18]; plan[3] += [poll_kv] + setup2[18:36]; plan[4] += setup2[36:]
    plan[6] += check([f'v_cmp_gt_u32 vcc, 1, {vpoll[0]}'], [poll_kv], 'kv') + flag(2, 'FL', 'HST')
    d = kvdma(f's_add_u32 m0, {s_p}, 32768', 'KV0'); plan[7] += d[:3]; plan[8] += d[3:]
    d = kvdma(f's_add_u32 m0, {s_p}, 49152', 'KV1'); plan[9] += d[:3]; plan[10] += d[3:]
    plan[11] += setup3[:15]; plan[12] += setup3[15:]
    for j, tag, m0l in ((13, 'KV0', f's_mov_b32 m0, {s_p}'), (21, 'KV1', f's_add_u32 m0, {s_p}, 16384'), (29, 'KV0', f's_add_u32 m0, {s_p}, 32768')):
        prej[j] += [f'WAITTAG {tag}', 's_barrier']
        d = kvdma(m0l, tag); k = 5 if j == 29 else 3
        plan[j] += d[:k]; plan[j + 1] += d[k:]
    plan[15] += [poll_h] + early_o[0]
    plan[16] += early_o[1] + early_o[2]; plan[17] += early_o[3] + early_o[4]
    plan[18] += check(cond2, [poll_h], 'h') + [f's_lshl_b32 {s_t2}, {s_mb}, 9', poll_h]
    plan[19] += early_o[5] + early_o[6]; plan[20] += early_o[7] + og_loads
    plan[23] += check(cond2, [poll_h], 'g') + g_loads
    for i in range(DD):
        d = dloads(i); plan[24 + i] += d if i < 2 else d[:5]
        if i >= 2: plan[25 + i] += d[5:]
    assert DD == 3
    plan[28] += ['WAITTAG D0'] + wrd(vwr, 0, 0)
    p.seg('partA')
    for j in range(30): period(j, misc=plan[j], pre=prej[j])
    def mixed(j, st, nb, loop, misc=(), pre=(), zero=False):
        d = dloads(st + DD) if st + DD < 56 else []
        if nb == 0:
            period(j, loop, (st, 0), misc=wrd(vwr, (st % NB) * 2048, 1) + d[:4] + list(misc), pre=pre, zero=zero)
        else:
            period(j, loop, (st, 1), misc=[f'WAITTAG D{(st + 1) % NB}'] + wrd(vwr, ((st + 1) % NB) * 2048, 0) + d[4:] + list(misc), pre=pre, zero=zero)
    mixed(30, 0, 0, False, misc=plan[30], zero=True); mixed(31, 0, 1, False, zero=True)
    pf.stamp(4)
    p.e(f's_mov_b32 {s_cnt}, 6')
    p.seg('loop')
    p.e(f'{name}_loop:')
    for j in range(16):
        misc = []; pre = []
        if j in (5, 13):
            pre = [f'WAITTAG KV{1 if j == 5 else 0}', 's_barrier']
        if j in (5, 6, 13, 14):
            d = kvdma(f's_xor_b32 m0, {s_p}, 49152' if j < 8 else f's_mov_b32 m0, {s_p}', 'KV1' if j < 8 else 'KV0')
            misc = d[:5] if j in (5, 13) else d[5:]
        if j == 15: misc = [f's_xor_b32 {s_p}, {s_p}, 32768', f'v_xor_b32 {vkA}, 0x8000, {vkA}', f'v_xor_b32 {vkB}, 0x8000, {vkB}']
        mixed(j, 1 + j // 2, j % 2, True, misc=misc, pre=pre)
    p.e(f's_sub_u32 {s_cnt}, {s_cnt}, 1\ns_cmp_lg_u32 {s_cnt}, 0\ns_cbranch_scc1 {name}_loop')

    p.seg('tail')
    pf.stamp(5)
    p.add([cvt(15, 7), pv(15, 0), pv(15, 1), rsum(1)])
    def lsum():
        p.e(f"""
        v_accvgpr_read_b32 {vsc[0]}, {L[0][0]}
        v_accvgpr_read_b32 {vu0}, {L[0][1]}
        v_accvgpr_read_b32 {vsc[1]}, {L[1][0]}
        v_accvgpr_read_b32 {vu1}, {L[1][1]}
        v_add_f32 {vsc[0]}, {vsc[0]}, {vu0}
        v_add_f32 {vsc[1]}, {vsc[1]}, {vu1}
        """)
    lsum()
    p.e(f"""
    v_cmp_nle_f32 vcc, {vsc[0]}, {s_thr}
    v_cmp_nle_f32 {smask}, {vsc[1]}, {s_thr}
    s_or_b64 vcc, vcc, {smask}
    s_cbranch_vccnz {name}_slow
    """)
    p.seg('epi')
    p.e(f'{name}_epi:')
    p.e(f"""
    v_rcp_f32 {vsc[0]}, {vsc[0]}
    v_rcp_f32 {vsc[1]}, {vsc[1]}
    WAITTAG KV0 KV1
    s_barrier
    v_mul_f32 {vsc[0]}, {vsc[0]}, {vg[0]}
    v_mul_f32 {vsc[1]}, {vsc[1]}, {vg[1]}
    """)
    for q in range(2):
        for f in range(2):
            t_ = Sx[q][8 * f:8 * f + 8]
            for i in range(8): p.e(f'v_accvgpr_read_b32 {t_[i]}, {O[q][8*f+i]}')
            for i in range(8): p.e(f'v_mul_f32 {t_[i]}, {t_[i]}, {vsc[q]}')
            for i in range(4): p.e(f'v_cvt_pk_bf16_f32 {t_[i]}, {t_[2*i]}, {t_[2*i+1]}')
            p.e(f'buffer_store_dwordx4 {t_[0:4]}, {vo}, {sws}, {(s_ob, s_ob2)[f]} offen offset:{q * 1024}{st_mod}', 'OST')
    vw2 = [C[0][0], C[0][1]]; vw3 = [C[0][2], C[0][3]]; vout = C[0][4]
    p.e(f's_lshl_b32 {s_p}, {s_w}, 14')
    late = [oload(t, f's_add_u32 m0, {s_p}, {(t - 8) * 2048}', 'WO') for t in range(8, 16)]
    late2 = lines(f"""
        s_sub_u32 {s_t0}, {s_p}, {s_wb}
        v_add_u32 {vw2[0]}, {s_t0}, {vwr[0]}
        v_add_u32 {vw2[1]}, {s_t0}, {vwr[1]}
        s_lshl_b32 {s_t0}, {s_w}, 12
        s_add_u32 {s_t0}, {s_t0}, {QS}
        s_sub_u32 {s_t0}, {s_t0}, {s_wb}
        v_add_u32 {vw3[0]}, {s_t0}, {vwr[0]}
        v_add_u32 {vw3[1]}, {s_t0}, {vwr[1]}
        s_lshl_b32 {s_t0}, {s_mt}, 18
        s_lshl_b32 {s_t1}, {s_nt}, 7
        s_add_u32 {s_t0}, {s_t0}, {s_t1}
        s_add_u32 {sout[0]}, {pout[0]}, {s_t0}
        s_addc_u32 {sout[1]}, {pout[1]}, 0
        s_sub_u32 {sout[2]}, {S * D * 2}, {s_t0}
        s_mov_b32 {sout[3]}, 0x00020000
        v_and_b32 {vu1}, 31, {vl}
        s_lshl_b32 {s_t0}, {s_w}, 16
        v_lshl_add_u32 {vout}, {vu1}, 11, {s_t0}
        v_lshrrev_b32 {vu1}, 5, {vl}
        v_lshl_add_u32 {vout}, {vu1}, 4, {vout}
        v_bfe_u32 {vu1}, {vl}, 1, 3
        v_and_b32 {vu2}, 1, {vl}
        v_lshlrev_b32 {vu2}, 2, {vu2}
        v_lshl_add_u32 {vpa}, {vu1}, 4, {vu2}
        s_lshr_b32 {s_t2}, {s_mt}, 1
        s_lshl_b32 {s_t2}, {s_t2}, 9
        s_lshl_b32 {s_t0}, {s_w}, 7
        s_add_u32 {s_t2}, {s_t2}, {s_t0}
        s_and_b32 {s_t0}, {s_mt}, 1
        s_lshl_b32 {s_t0}, {s_t0}, 3
        s_add_u32 {s_t2}, {s_t2}, {s_t0}""")
    poll_o = f'buffer_load_dword {vpoll[0]}, {vpa}, {sfl}, {s_t2} offen sc1'
    def oslot(t):
        if t < 6: return vwr, (NB + t) * 2048
        if t < 8: return vw3, (t - 6) * 2048
        return vw2, (t - 8) * 2048
    def gstep(buf, nxt, misc):
        misc = list(misc)
        per = -(-len(misc) // 8)
        for c in range(8):
            nb, tb = divmod(c, 4)
            p.e(gm(buf, nb, tb if nb == 0 else 3 - tb))
            if c == 0: p.add(nxt[0])
            if c == 4: p.add(nxt[1])
            for _ in range(per):
                if misc: p.add([misc.pop(0)])
    LATE0 = 49
    for st in range(LATE0, 56):
        misc = dloads(st + DD) if st + DD < 56 else []
        if st == LATE0: misc = misc + late2
        if st == LATE0 + 1: misc = flag(3, 'FL', 'OST') + misc
        for t in {50: (0,), 51: (1,), 52: (2,), 53: (3, 4, 5), 54: (6, 7)}.get(st, ()): misc = misc + late[t]
        if st == 55: misc = misc + [poll_o]
        n0 = wrd(vwr, (st % NB) * 2048, 1)
        n1 = ([f'WAITTAG D{(st + 1) % NB}'] + wrd(vwr, ((st + 1) % NB) * 2048, 0)) if st < 55 else (['WAITTAG WO'] + wrd(*oslot(0), 0))
        gstep(Ab[st % NB], (n0, n1), misc)
    p.e(f's_lshl_b32 {s_oa}, {s_w}, 16\ns_add_u32 {s_oa}, {s_oa}, {224 * 4096}')
    for nb in range(2):
        for tb in range(4):
            for i in range(16): p.e(f'v_mul_f32 {acc3[nb][tb][i]}, {acc3[nb][tb][i]}, {vog[tb]}')
    p.add(check([f'v_cmp_gt_u32 vcc, 3, {vpoll[0]}'], [poll_o], 'o'))
    pf.stamp(6)
    def aload(t):
        return [f'buffer_load_dwordx4 {Ab[t % 8][tb]}, {vl16}, {sA}, {s_oa} offen offset:{tb * 1024}' for tb in range(4)] + [f's_add_u32 {s_oa}, {s_oa}, 4096']
    for t in range(7): p.add(aload(t))
    for t in range(16):
        n0 = wrd(*oslot(t), 1); n1 = wrd(*oslot(t + 1), 0) if t < 15 else []
        gstep(Ab[t % 8], (n0, n1), aload(t + 7) if t + 7 < 16 else [])
    pf.stamp(7)
    p.e('s_barrier')
    for w in range(4):
        p.e(f's_cmp_lg_u32 {s_w}, {w}\ns_cbranch_scc1 {name}_r{w}')
        p.seg(f'red{w}')
        for d_ in range(4):
            if d_ == w: continue
            base = (d_ * 3 + (w - d_ - 1) % 4) * 8192
            vb = vl16
            if base >= 65536 - 8192:
                p.e(f'v_add_u32 {vu0}, {base}, {vl16}'); vb = vu0; base = 0
            for nb in range(2):
                for j in range(4): p.e(f'ds_write_b128 {vb}, {acc3[nb][d_][4*j:4*j+4]} offset:{base + (nb * 4 + j) * 1024}')
        if w != 0:
            for nb in range(2):
                for i in range(16): p.e(f'v_mov_b32 {acc3[nb][0][i]}, {acc3[nb][w][i]}')
        p.e(f's_branch {name}_rdone')
        p.seg(f'redn{w}')
        p.e(f'{name}_r{w}:')
    p.seg('fin')
    p.e(f'{name}_rdone:')
    p.e(f"""
    s_mul_i32 {s_t0}, {s_w}, {3 * 8192}
    v_add_u32 {vu0}, {s_t0}, {vl16}
    s_waitcnt lgkmcnt(0)
    s_barrier
    """)
    for sl in range(3):
        for nb in range(2):
            for j in range(4): p.e(f'ds_read_b128 {acc3[nb][sl + 1][4*j:4*j+4]}, {vu0} offset:{sl * 8192 + (nb * 4 + j) * 1024}')
    for sl in range(3):
        for nb in range(2):
            for i in range(8): p.e(f'v_pk_add_f32 {acc3[nb][0][2*i:2*i+2]}, {acc3[nb][0][2*i:2*i+2]}, {acc3[nb][sl + 1][2*i:2*i+2]}')
    for nb in range(2):
        a_ = acc3[nb][0]
        for jp in range(2):
            o = acc3[nb][1][4 * jp:4 * jp + 4]
            for i in range(4): p.e(f'v_cvt_pk_bf16_f32 {o[i]}, {a_[8 * jp + 2 * i]}, {a_[8 * jp + 2 * i + 1]}')
            p.e(f'v_permlane32_swap_b32 {o[0]}, {o[2]}\nv_permlane32_swap_b32 {o[1]}, {o[3]}')
            p.e(f'buffer_store_dwordx4 {o}, {vout}, {sout}, 0 offen offset:{nb * 64 + jp * 32}')
    pf.stamp(8)
    pf.flush(s_w, sws, vl, vu0)
    p.e('s_endpgm')

    p.seg('slow0')
    p.e(f'{name}_slow:')
    p.e(f"""
    s_waitcnt vmcnt(0) lgkmcnt(0)
    v_mov_b32 {vu0}, 0xff800000
    v_mov_b32 {vu1}, 0xff800000
    s_mov_b32 {s_okv}, 0
    s_mov_b32 {skv[2]}, 262144
    """)
    p.seg('slow1')
    p.e(f'{name}_slow1:')
    for f in range(2): p.e(f'buffer_load_dwordx4 {K[0][4*f:4*f+4]}, {vl16}, {skv}, {s_okv} offen offset:{f * 1024}')
    for q in range(2):
        for f in range(2): p.e(qk(Sx[q], 0, q, f, '0'))
    rowmax(vu0, Sx[0], False); rowmax(vu1, Sx[1], False)
    p.e(f's_add_u32 {s_okv}, {s_okv}, 4096\ns_cmp_lt_u32 {s_okv}, 262144\ns_cbranch_scc1 {name}_slow1')
    p.seg('slow2')
    setc(0, vu0); setc(1, vu1)
    for q in range(2):
        for i in range(16): p.e(f'v_accvgpr_write_b32 {O[q][i]}, 0')
        for i in range(4): p.e(f'v_accvgpr_write_b32 {L[q][i]}, 0')
    p.e(f's_mov_b32 {s_okv}, 0')
    p.seg('slow3')
    p.e(f'{name}_slow3:')
    for f in range(2): p.e(f'buffer_load_dwordx4 {K[0][4*f:4*f+4]}, {vl16}, {skv}, {s_okv} offen offset:{f * 1024}')
    for f in range(2): p.e(f'buffer_load_dwordx4 {V[0][4*f:4*f+4]}, {vl16}, {skv}, {s_okv} offen offset:{2048 + f * 1024}')
    for q in range(2):
        for f in range(2): p.e(qk(Sx[q], 0, q, f, C[q]))
    for q in range(2):
        for i in range(16): p.e(f'v_exp_f32 {Sx[q][i]}, {Sx[q][i]}')
        for i in range(8): p.e(cvt(q, i))
        p.add([pv(q, 0), pv(q, 1), rsum(q)])
    p.e(f's_add_u32 {s_okv}, {s_okv}, 4096\ns_cmp_lt_u32 {s_okv}, 262144\ns_cbranch_scc1 {name}_slow3')
    p.seg('slow4')
    lsum()
    p.e(f's_branch {name}_epi')
    for lab, cond, reload_ in spins:
        p.seg(lab)
        p.e(f'{lab}_spin:\ns_mov_b32 {s_cnt if lab.endswith("cnt") else s_spin}, {SPIN}\n{lab}_again:\ns_sleep 2')
        p.add(reload_)
        p.e('s_waitcnt vmcnt(0)\ns_nop 1')
        p.add(cond)
        r_ = s_cnt if lab.endswith('cnt') else s_spin
        p.e(f's_nop 4\ns_cbranch_vccz {lab}_ok\ns_sub_u32 {r_}, {r_}, 1\ns_cmp_lg_u32 {r_}, 0\ns_cbranch_scc1 {lab}_again\ns_branch {lab}_ok')
    p.seg('end')
    p.e(f'{name}_end:\ns_endpgm')
    mid = ['join', 'partA', 'loop', 'loop', 'tail']
    slow = ['slow0', 'slow1', 'slow1', 'slow2', 'slow3', 'slow3', 'slow4']
    traces = []
    for wc in range(2):
        for x in ([], ['pfx']):
            traces.append(['pro'] + x + ['pro2', f'c{wc}a', f'c{wc}loop', f'c{wc}loop', f'c{wc}last'] + mid + ['epi', 'red0', 'fin'])
    for w in range(4):
        traces.append(mid + (slow if w == 0 else []) + ['epi'] + [f'redn{i}' for i in range(w)] + [f'red{w}', 'fin'])
    for lab, _, _ in spins: traces.append([lab])
    p.auto_waits(traces)
    nn = p.hazards(traces)
    return kernel_header(name) + p.text(), kernel_desc(name), dict(nops=nn, v=va.p, a=aa.p, s=max(sa.p, s_hi))

if __name__ == '__main__':
    import sys
    NAME = 'gated_mix__softmax_full_mha__glu_gated_bilinear__prompt'
    REF = f'cdna_kernels/{NAME}.s.ref'
    dst = sys.argv[1]
    kw = {a.split('=')[0]: float(a.split('=')[1]) if '.' in a else int(a.split('=')[1]) for a in sys.argv[2:] if '=' in a}
    t, d, info = gen_fused(NAME + '_kernel', prof='prof' in sys.argv, force_slow='slow' in sys.argv, **kw)
    print(info, file=sys.stderr)
    head = [l for l in open(REF).read().split('\n') if l.startswith(';') and '@launch' not in l]
    out = '\n'.join(head) + f'\n; @launch grid=(256,1,1) block=(256,1,1) lds={F_LDS}\n.amdgcn_target "amdgcn-amd-amdhsa--gfx950"\n' + t + d
    open(dst, 'w').write(out)
```

```python
from gen_common import *

X0, X1, W0, W1, QS = 0, 32768, 65536, 106496, 147456
F_LDS = 163840
WS_FL = 33 << 20
DBG_CNT = 64
SPIN = 40000

def gen_fused(name, prof=False, pfd=3, cq=8, cg=6.5, cx=4, NB=4, DD=3, force_slow=False, ptrace=0, dbg=0, exp_=0, st_mod=' sc1'):
    pfm = 1; xpf = 1
    p = Prog()
    sa = Alloc('s', 4, 102); va = Alloc('v', 1, 256); aa = Alloc('a', 0, 256)
    ptr = sa(16, 4)
    px, pqkv, pwo, pwg, pwu, pwd, pgw = ptr[0:2], ptr[2:4], ptr[4:6], ptr[8:10], ptr[10:12], ptr[12:14], ptr[14:16]
    pod = sa(4, 4); pout, pdbg = pod[0:2], pod[2:4]
    pws = sa(2); smask = sa(2)
    sws = sa(4); sfl = sa(4)
    s_mb, s_h, s_w, s_wr, s_wc, s_t0, s_t1, s_t2, s_cnt, s_tr = [sa() for _ in range(10)]
    s_pt = sa(4, 2)
    s_base = sa.p
    sx = sa(4); sq = sa(4); sg = sa(4); spf = sa(4); sp2 = sa(4)
    s_c0, s_c1, s_ox, s_oq, s_og, s_pfo, s_pfs, s_gs = [sa() for _ in range(8)]
    m0x = [[sa() for _ in range(2)] for _ in range(2)]
    m0w = [[sa() for _ in range(3)] for _ in range(2)]
    s_hi = sa.p

    vl, vpd, vflag, vtr = [va() for _ in range(4)]
    v_base = va.p
    pf = Prof2(p, prof, s_pt, vtr, s_tr)
    vdx = [va() for _ in range(8)]; vdq = [va() for _ in range(2)]; vdq.append(vdq[0]); vdg = [va() for _ in range(7)]
    vxr = [va() for _ in range(2)]; vqr = [va() for _ in range(2)]; vgr = [va() for _ in range(2)]
    vt0, vt1, vt2, vt3, vpf = [va() for _ in range(5)]
    vcnt = va()
    vtmp = va(28, 4)
    xf = [[aa(4, 4) for _ in range(8)] for _ in range(2)]
    NSLOT = 4; DIST = 3
    wf = [aa(4, 4) for _ in range(NSLOT)]
    acc = [[None] * 8 for _ in range(10)]
    for n in list(range(4, 10)) + [0, 1, 2, 3]:
        for m in range(8):
            acc[n][m] = va(4, 4) if va.p + 4 <= 256 else aa(4, 4)

    def dma_x(st):
        L = []
        for i in range(8):
            pre = [f's_mov_b32 m0, {m0x[st][i // 4]}'] if i % 4 == 0 else []
            L.append((pre, Ins(f'buffer_load_dwordx4 {vdx[i]}, {sx}, {s_ox} offen offset:{(i % 4) * 1024} lds', f'S{st}')))
        return L
    def dma_w(st):
        L = []
        for i in range(10):
            pre = [f's_mov_b32 m0, {m0w[st][i // 4]}'] if i % 4 == 0 else []
            v, sr, so = (vdq[i - 7], sq, s_oq) if i >= 7 else (vdg[i], sg, s_og)
            L.append((pre, Ins(f'buffer_load_dwordx4 {v}, {sr}, {so} offen offset:{(i % 4) * 1024} lds', f'S{st}')))
        return L
    def emit(lst):
        for pre, ins in lst:
            p.add(pre); p.add([ins])
    adv = [f's_add_u32 {s_oq}, {s_oq}, {64 * 6144}', f's_add_u32 {s_og}, {s_og}, {64 * 7168}', f's_add_u32 {s_ox}, {s_ox}, 128']

    p.seg('pro')
    p.e(f"""
    s_cmp_ge_u32 s2, 256
    s_cbranch_scc1 {name}_end
    s_load_dwordx16 {ptr}, s[0:1], 0
    s_load_dwordx4 {pod}, s[0:1], 64
    s_load_dwordx2 {pws}, s[0:1], 80
    v_lshrrev_b32 {vt0}, 6, v0
    v_and_b32 {vl}, 63, v0
    s_lshr_b32 {s_t1}, s2, 3
    v_readfirstlane_b32 {s_w}, {vt0}
    s_and_b32 {s_mb}, {s_t1}, 7
    s_and_b32 {s_t0}, s2, 7
    s_lshr_b32 {s_t1}, {s_t1}, 3
    s_lshl_b32 {s_h}, {s_t0}, 2
    s_add_u32 {s_h}, {s_h}, {s_t1}
    s_lshr_b32 {s_wr}, {s_w}, 1
    s_and_b32 {s_wc}, {s_w}, 1
    """)
    if xpf:
        p.e(f"""
        v_and_b32 {vt0}, 7, {vl}
        v_lshrrev_b32 {vt1}, 3, {vl}
        v_mul_u32_u24 {vt2}, 86, {vt1}
        v_lshrrev_b32 {vt2}, 8, {vt2}
        v_mad_i32_i24 {vt1}, {vt2}, -3, {vt1}
        v_lshl_add_u32 {vt0}, {vt2}, 6, {vt0}
        s_lshl_b32 {s_t0}, {s_mb}, 3
        v_add_u32 {vt0}, {s_t0}, {vt0}
        s_cmp_eq_u32 {s_w}, 3
        s_movk_i32 {s_c0}, 7168
        s_cmov_b32 {s_c0}, 6144
        s_movk_i32 {s_c1}, 108
        s_cmov_b32 {s_c1}, 2048
        v_mul_u32_u24 {vt0}, {s_c0}, {vt0}
        v_mad_u32_u24 {vpf}, {vt1}, {s_c1}, {vt0}
        v_cmp_gt_u32 vcc, 48, {vl}
        s_lshl_b32 {s_t0}, {s_t1}, 17
        v_lshl_add_u32 {vt0}, {vl}, 11, {s_t0}
        v_cndmask_b32 {vpf}, 2.0, {vpf}, vcc
        s_cmp_eq_u32 {s_w}, 0
        s_cselect_b64 vcc, -1, 0
        v_cndmask_b32 {vpf}, {vpf}, {vt0}, vcc
        v_cndmask_b32 {vt3}, 2.0, {vt0}, vcc
        """)
    p.e(f"""
    s_lshl_b32 {s_t0}, {s_mb}, 19
    s_lshl_b32 {s_t1}, {s_h}, 6
    s_mul_i32 {s_t2}, {s_h}, 224
    s_waitcnt lgkmcnt(0)
    """)
    pf.stamp(0)
    pf.trace_init(vtr, s_tr)
    srd(p, sx, px, off_s=s_t0, size=S * D * 2, size_s=s_t0)
    srd(p, sq, pqkv, off_s=s_t1, size=D * 3072 * 2, size_s=s_t1)
    p.e(f"""
    s_cmp_ge_u32 {s_w}, 2
    s_cselect_b32 {s_t0}, {pwu[0]}, {pwg[0]}
    s_cselect_b32 {s_t1}, {pwu[1]}, {pwg[1]}
    s_add_u32 {sg[0]}, {s_t0}, {s_t2}
    s_addc_u32 {sg[1]}, {s_t1}, 0
    s_sub_u32 {sg[2]}, {D * F * 2}, {s_t2}
    s_mov_b32 {sg[3]}, 0x00020000
    """)
    if xpf:
        p.e(f"""
        s_cmp_eq_u32 {s_w}, 3
        s_cselect_b64 {spf[0:2]}, {sq[0:2]}, {sg[0:2]}
        s_cselect_b32 {spf[2]}, {sq[2]}, {sg[2]}
        s_cmp_eq_u32 {s_w}, 0
        s_cselect_b64 {spf[0:2]}, {sx[0:2]}, {spf[0:2]}
        s_cselect_b32 {spf[2]}, {sx[2]}, {spf[2]}
        s_mov_b32 {spf[3]}, 0x00020000
        """)
        p.add([Ins(f'buffer_load_dword {vpd}, {vpf}, {spf}, 0 offen', 'pf')])
        if xpf > 1: p.add([Ins(f'buffer_load_dword {vpd}, {vt3}, {spf}, 0 offen offset:128', 'pf')])
    if ptrace > 0: pf.trace()
    p.e(f"""
    v_lshrrev_b32 {vt0}, 3, {vl}
    v_and_b32 {vt1}, 7, {vl}
    v_lshrrev_b32 {vt2}, 4, {vl}
    v_xor_b32 {vt1}, {vt1}, {vt2}
    v_lshlrev_b32 {vt3}, 11, {vt0}
    s_lshl_b32 {s_t0}, {s_w}, 17
    v_add_u32 {vt3}, {s_t0}, {vt3}
    v_lshl_add_u32 {vdx[0]}, {vt1}, 4, {vt3}
    v_xor_b32 {vt1}, 4, {vt1}
    v_lshl_add_u32 {vdx[1]}, {vt1}, 4, {vt3}
    v_add_u32 {vdx[1]}, {16384 - 1024}, {vdx[1]}
    s_lshl_b32 {m0x[0][0]}, {s_w}, 13
    s_add_u32 {m0x[0][1]}, {m0x[0][0]}, 4096
    s_mov_b32 {s_ox}, 0
    """)
    for i in range(2, 8):
        p.e(f'v_add_u32 {vdx[i]}, {(i - i % 2) * 16384 - (i % 4 - i % 2) * 1024}, {vdx[i % 2]}')
    emit(dma_x(0))
    if ptrace > 0: pf.trace()
    p.e(f"""
    v_lshrrev_b32 {vt0}, 2, {vl}
    v_lshrrev_b32 {vt2}, 4, {vl}
    v_and_b32 {vt2}, 2, {vt2}
    v_and_b32 {vt1}, 3, {vl}
    v_xor_b32 {vt1}, {vt1}, {vt2}
    s_lshl_b32 {s_t1}, {s_w}, 4
    v_add_u32 {vt0}, {s_t1}, {vt0}
    v_mul_u32_u24 {vt0}, 6144, {vt0}
    v_lshl_add_u32 {vdq[1]}, {vt1}, 4, {vt0}
    v_add_u32 {vdq[0]}, 1024, {vdq[1]}
    s_mul_i32 {s_t1}, {s_w}, 10240
    s_mov_b32 {s_oq}, 0
    s_mov_b32 {s_og}, 0
    """)
    for st in range(2):
        for j in range(3): p.e(f's_add_u32 {m0w[st][j]}, {s_t1}, {(W0, W1)[st] + j * 4096}')
    w0 = dma_w(0)
    p.e(f's_mov_b32 m0, {m0w[0][1]}')
    emit(w0[7:])
    p.e(f"""
    s_mul_i32 {s_t0}, {s_wc}, {32 * 7168}
    s_movk_i32 {s_c0}, 6944
    s_movk_i32 {s_c1}, 28672
    v_mul_u32_u24 {vt3}, 4682, {vl}
    v_lshl_add_u32 {vpf}, {vl}, 4, {s_t0}
    """)
    for j in range(7):
        imm = (j % 4) * 1024
        tj = vt3
        if j:
            p.e(f'v_add_u32 {vt0}, {64 * j * 4682}, {vt3}'); tj = vt0
        p.e(f"""
        v_bfe_u32 {vt1}, {tj}, 18, 1
        v_bfe_u32 {vt2}, {tj}, 19, 1
        v_lshrrev_b32 {vt0}, 16, {tj}
        v_sub_u32 {vt1}, {vt1}, {vt2}
        v_mad_u32_u24 {vdg[j]}, {vt0}, {s_c0}, {vpf}
        v_mad_i32_i24 {vdg[j]}, {vt1}, {s_c1}, {vdg[j]}
        """)
        if j == 3: p.e(f'v_add_u32 {vpf}, 4096, {vpf}')
        emit([w0[j]])
    p.add(adv)
    if ptrace > 0: pf.trace()
    gx = [vtmp[4 * i:4 * i + 4] for i in range(4)]; gw = [vtmp[16:20], vtmp[20:24]]; t = vtmp[24:28]; z = [vt0, vt1]
    srd(p, sp2, pgw, size=2048)
    p.e(f"""
    s_lshl_b32 {s_t0}, {s_h}, 3
    s_lshl_b32 {s_t1}, {s_w}, 1
    s_add_u32 {s_t0}, {s_t0}, {s_t1}
    s_lshl_b32 {s_t2}, {s_t0}, 11
    s_add_u32 {m0x[1][0]}, {m0x[0][0]}, {X1}
    s_add_u32 {m0x[1][1]}, {m0x[0][0]}, {X1 + 4096}
    """)
    gate_loads = [f'buffer_load_dwordx4 {gw[0]}, {z[0]}, {sp2}, 0 offen', f'buffer_load_dwordx4 {gw[1]}, {z[0]}, {sp2}, 0 offen offset:16'] + \
                 [f'buffer_load_dwordx4 {gx[i]}, {z[0]}, {sx}, {s_t2} offen offset:{(i // 2) * 2048 + (i % 2) * 16}' for i in range(4)]
    PD = pfd
    def pfetch():
        return [Ins(f'buffer_load_dword {vpd}, {vpf}, {spf}, {s_pfo} offen', 'pf'), f's_add_u32 {s_pfo}, {s_pfo}, {s_pfs}']
    def pfetch_d():
        return [Ins(f'buffer_load_dword {vpd}, {vt3}, {sp2}, {s_c1} offen', 'pf'), f's_add_u32 {s_c1}, {s_c1}, {4096 * 128}']
    if pfm:
        p.e(f"""
        s_cmp_eq_u32 {s_w}, 0
        s_cselect_b32 {spf[0]}, {pqkv[0]}, {pwg[0]}
        s_cselect_b32 {spf[1]}, {pqkv[1]}, {pwg[1]}
        s_cselect_b32 {s_t0}, 12, 14
        s_cmp_eq_u32 {s_w}, 2
        s_cselect_b32 {spf[0]}, {pwu[0]}, {spf[0]}
        s_cselect_b32 {spf[1]}, {pwu[1]}, {spf[1]}
        s_lshl_b32 {spf[2]}, {s_t0}, 19
        s_lshl_b32 {s_pfs}, {s_t0}, 15
        s_mul_i32 {s_t1}, {s_t0}, s2
        v_and_b32 {vt1}, 15, {vl}
        v_add_u32 {vt0}, {s_t1}, {vt1}
        v_lshlrev_b32 {vpf}, 7, {vt0}
        v_cmp_gt_u32 vcc, {s_t0}, {vt1}
        v_cndmask_b32 {vpf}, 2.0, {vpf}, vcc
        s_mov_b32 {spf[3]}, 0x00020000
        s_cmp_lg_u32 {s_w}, 3
        s_cbranch_scc1 {name}_pf0
        """)
        p.seg('pfx')
        p.e(f"""
        s_mov_b32 {spf[0]}, {px[0]}
        s_mov_b32 {spf[1]}, {px[1]}
        s_mov_b32 {spf[2]}, {S * D * 2}
        s_movk_i32 {s_pfs}, 128
        s_lshl_b32 {s_t1}, s2, 14
        v_lshl_add_u32 {vpf}, {vt1}, 11, {s_t1}
        v_cmp_gt_u32 vcc, 8, {vt1}
        v_cndmask_b32 {vpf}, 2.0, {vpf}, vcc
        """)
        p.seg('pro2')
        p.e(f"""
        {name}_pf0:
        v_lshrrev_b32 {vt0}, 4, {vl}
        v_mul_lo_u32 {vt0}, {vt0}, {s_pfs}
        v_add_u32 {vt0}, {vt0}, {vpf}
        v_cmp_eq_u32 vcc, 2.0, {vpf}
        v_cndmask_b32 {vt0}, {vt0}, {vpf}, vcc
        v_cmp_gt_u32 vcc, {16 * (PD - (2 if xpf > 1 else 1))}, {vl}
        v_cndmask_b32 {vt0}, 2.0, {vt0}, vcc
        s_lshl_b32 {s_pfo}, {s_pfs}, {1 if xpf > 1 else 0}
        """)
        p.add([Ins(f'buffer_load_dword {vpd}, {vt0}, {spf}, {s_pfo} offen', 'pf')])
        p.e(f"""
        v_cmp_gt_u32 vcc, 16, {vl}
        v_cndmask_b32 {vpf}, 2.0, {vpf}, vcc
        s_mul_i32 {s_pfo}, {s_pfs}, {PD}
        """)
    else:
        p.seg('pfx'); p.seg('pro2')
    if ptrace > 0: pf.trace()
    srd(p, sws, pws, size=WS_SIZE)
    srd(p, sfl, pws, off_imm=WS_FL, size=4096)
    p.e(f"""
    s_lshl_b32 {s_t0}, {s_mb}, 5
    s_add_u32 {s_t0}, {s_t0}, {s_h}
    s_lshl_b32 {s_t0}, {s_t0}, 2
    s_add_u32 {s_t0}, {s_t0}, {s_w}
    s_lshl_b32 {s_t0}, {s_t0}, 2
    v_mov_b32 {vt0}, {s_t0}
    v_cmp_eq_u32 vcc, 0, {vl}
    v_mov_b32 {vt1}, 0
    v_cndmask_b32 {vflag}, 2.0, {vt0}, vcc
    buffer_store_dword {vt1}, {vflag}, {sfl}, 0 offen sc1
    """)
    p.e(f"""
    v_and_b32 {vt0}, 15, {vl}
    v_lshrrev_b32 {vt1}, 4, {vl}
    v_lshrrev_b32 {vt2}, 1, {vt0}
    v_xor_b32 {vt2}, {vt1}, {vt2}
    s_lshl_b32 {s_t0}, {s_wr}, 14
    v_lshl_add_u32 {vt3}, {vt0}, 7, {s_t0}
    v_lshl_add_u32 {vxr[0]}, {vt2}, 4, {vt3}
    v_xor_b32 {vxr[1]}, 64, {vxr[0]}
    v_and_b32 {vt3}, 3, {vt0}
    v_lshlrev_b32 {vt3}, 3, {vt3}
    v_lshrrev_b32 {vt0}, 2, {vt0}
    v_lshrrev_b32 {vt2}, 1, {vt1}
    v_and_b32 {vt1}, 1, {vt1}
    v_mul_u32_u24 {vqr[0]}, 10240, {vt2}
    v_mul_u32_u24 {vqr[1]}, {512 + 32}, {vt1}
    v_add3_u32 {vqr[0]}, {vqr[0]}, {vqr[1]}, {vt3}
    v_lshl_add_u32 {vqr[0]}, {vt0}, 6, {vqr[0]}
    s_lshl_b32 {s_t0}, {s_wc}, 10
    s_sub_u32 {s_t0}, {W0 + 8192}, {s_t0}
    v_add_u32 {vqr[0]}, {s_t0}, {vqr[0]}
    v_xor_b32 {vqr[1]}, 32, {vqr[0]}
    v_lshl_add_u32 {vt0}, {vt1}, 2, {vt0}
    v_lshl_add_u32 {vt0}, {vt2}, 4, {vt0}
    v_mul_u32_u24 {vt0}, 224, {vt0}
    s_mul_i32 {s_t0}, {s_wc}, 96
    s_add_u32 {s_t0}, {s_t0}, {W0}
    v_add3_u32 {vgr[0]}, {vt0}, {vt3}, {s_t0}
    v_add_u32 {vgr[1]}, 20480, {vgr[0]}
    s_lshl_b32 {s_t0}, {s_mb}, 5
    s_add_u32 {s_t0}, {s_t0}, {s_h}
    s_lshl_b32 {s_t0}, {s_t0}, 7
    s_lshl_b32 {s_t1}, {s_w}, 3
    s_add_u32 {s_t0}, {s_t0}, {s_t1}
    s_add_u32 {s_gs}, {s_t0}, {WS_G}
    v_lshlrev_b32 {z[0]}, 5, {vl}
    """)
    if ptrace > 0: pf.trace()
    p.e('WAITTAG S0')
    if ptrace > 0: pf.trace()
    p.e('s_barrier')
    if ptrace > 0: pf.trace()
    pf.stamp(1)

    def gate_ops():
        L = []
        for r in range(2):
            for j in range(8):
                xr = gx[2 * r + j // 4][j % 4]; wr_ = gw[j // 4][j % 4]
                L += [f'v_lshlrev_b32 {t[0]}, 16, {xr}', f'v_lshlrev_b32 {t[1]}, 16, {wr_}',
                      f'v_and_b32 {t[2]}, 0xffff0000, {xr}', f'v_and_b32 {t[3]}, 0xffff0000, {wr_}',
                      f'v_mul_f32 {t[0]}, {t[0]}, {t[1]}', f'v_mul_f32 {t[2]}, {t[2]}, {t[3]}',
                      f'v_cvt_pk_bf16_f32 {t[0]}, {t[0]}, {t[2]}', f'v_lshlrev_b32 {t[1]}, 16, {t[0]}',
                      f'v_and_b32 {t[2]}, 0xffff0000, {t[0]}']
                if j == 0: L.append(f'v_add_f32 {z[r]}, {t[1]}, {t[2]}')
                else: L += [f'v_add_f32 {t[1]}, {t[1]}, {t[2]}', f'v_add_f32 {z[r]}, {z[r]}, {t[1]}']
        for mode in ('quad_perm:[1,0,3,2]', 'quad_perm:[2,3,0,1]', 'row_half_mirror', 'row_mirror'):
            for r in range(2): L.append(f'v_add_f32_dpp {z[r]}, {z[r]}, {z[r]} {mode} row_mask:0xf bank_mask:0xf')
        for op in ('v_permlane16_swap_b32', 'v_permlane32_swap_b32'):
            for r in range(2): L.append(f'v_mov_b32 {t[r]}, {z[r]}')
            for r in range(2): L.append(f'{op} {t[r]}, {z[r]}')
            for r in range(2): L.append(f'v_add_f32 {z[r]}, {z[r]}, {t[r]}')
        L += f"""v_and_b32 {t[1]}, 1, {vl}
        v_cmp_eq_u32 vcc, 1, {t[1]}
        v_and_b32 {t[3]}, 2, {vl}
        v_cndmask_b32 {t[0]}, {z[0]}, {z[1]}, vcc
        v_cvt_pk_bf16_f32 {t[0]}, {t[0]}, {t[0]}
        v_and_b32 {t[0]}, 0xffff0000, {t[0]}
        v_mul_f32 {t[0]}, {hex(f32bits(-math.log2(math.e)))}, {t[0]}
        v_exp_f32 {t[0]}, {t[0]}
        v_cmp_eq_u32 vcc, 2, {t[3]}
        v_add_f32 {t[0]}, 1.0, {t[0]}
        v_rcp_f32 {t[0]}, {t[0]}
        v_lshlrev_b32 {t[3]}, 4, {t[3]}
        v_cvt_pk_bf16_f32 {t[0]}, {t[0]}, {t[0]}
        v_and_b32 {t[0]}, 0xffff0000, {t[0]}
        v_sub_f32 {t[2]}, 1.0, {t[0]}
        v_cvt_pk_bf16_f32 {t[2]}, {t[2]}, {t[2]}
        v_and_b32 {t[2]}, 0xffff0000, {t[2]}
        v_cndmask_b32 {t[0]}, {t[0]}, {t[2]}, vcc
        v_lshl_add_u32 {t[3]}, {t[1]}, 2, {t[3]}
        v_cmp_gt_u32 vcc, 4, {vl}
        v_cndmask_b32 {t[3]}, 2.0, {t[3]}, vcc
        buffer_store_dword {t[0]}, {t[3]}, {sws}, {s_gs} offen{st_mod}""".split('\n')
        return [x.strip() for x in L]

    def wread(j, st, wc):
        ks, n = divmod(j, 10)
        slot = wf[j % NSLOT]
        nq = 4 if wc == 0 else 2
        if n < nq: base = vqr[n % 2]; off = ks * 20480 + (n // 2) * 1024; so = 256
        else: base = vgr[(n - nq) % 2]; off = ks * 10240 + ((n - nq) // 2) * 32; so = 1792
        off += st * (W1 - W0)
        return [f'ds_read_b64_tr_b16 {slot[2 * s:2 * s + 2]}, {base} offset:{off + s * so}' for s in range(2)]
    def xread(m, ks, st):
        return f'ds_read_b128 {xf[ks][m]}, {vxr[ks]} offset:{st * (X1 - X0) + m * 2048}'

    for m in range(8): p.e(xread(m, 0, 0))
    p.e(f's_cmp_eq_u32 {s_wc}, 1')
    p.e(f's_cbranch_scc1 {name}_c1')

    def stage(st, wc, first=False, last=False, extra=None, fill=None, estep=2, postbar=None):
        slots = {}
        for j in range(20):
            jj = j + DIST
            if jj < 20: rd = wread(jj, st, wc)
            elif last: continue
            else: rd = wread(jj - 20, st ^ 1, wc)
            place(slots, 8 * j + 0, rd[0]); place(slots, 8 * j + 2, rd[1])
        for m in range(8): place(slots, 8 * (1 + m) + 4, xread(m, 1, st))
        bar = 8 * (20 - DIST)
        if not last:
            for m, c in enumerate((1, 3, 4, 6, 9, 11, 12, 14)): place(slots, bar + c, xread(m, 0, st ^ 1))
        pos = []; c = 1.0
        for k in range(18):
            pos.append(int(c)); c += cg if k < 7 else (cq if k < 10 else cx)
        endc = int(c) - (160 - bar)
        if first:
            pos = [x + 160 - bar for x in pos]; endc += 160 - bar
        if not last:
            dl = dma_w(st ^ 1) + dma_x(st ^ 1)
            for k in range(18):
                c = pos[k] - (160 - bar)
                if c < 0: continue
                for x in dl[k][0]: place(slots, max(c - 1, 0), x)
                place(slots, c, dl[k][1])
            for i, x in enumerate(adv): place(slots, endc - 2 + i, x)
            if first: pos = [x - (160 - bar) for x in pos]
            dl = dma_w(st) + dma_x(st)
            for k in range(18):
                c = bar + pos[k]
                if c >= 160: continue
                for x in dl[k][0]: place(slots, c - 1, x)
                place(slots, c, dl[k][1])
        c = endc + 1
        for x in (extra or []):
            place(slots, c, x)
            c += 3 if (isinstance(x, Ins) or x.startswith('buffer')) else estep
        assert c < bar
        for i, x in enumerate(postbar or []): place(slots, bar + 15 + i, x)
        fill = list(fill or [])
        for c in range(160):
            ks, r = divmod(c, 80); n, mi = divmod(r, 8)
            m = mi if n % 2 == 0 else 7 - mi
            if c == 0 and not first: p.e('s_waitcnt lgkmcnt(2)')
            if c == bar and not last:
                p.e(f'WAITTAG S{st ^ 1} LGKM0')
                p.e('s_barrier')
                if ptrace > 1: pf.trace()
            w = wf[(ks * 10 + n) % NSLOT]; x = xf[ks][m]
            a, b = (x, w) if (wc == 1 and n < 2) else (w, x)
            cin = '0' if (first and ks == 0) else str(acc[n][m])
            p.e(f'v_mfma_f32_16x16x32_bf16 {acc[n][m]}, {a}, {b}, {cin}')
            here = slots.get(c, [])
            p.add(here)
            if c >= 1:
                for _ in range(2 - len(here)):
                    if fill: p.e(fill.pop(0))
        p.add(fill)

    def toreg(tile, tmp):
        if tile.k == 'v': return tile
        for i in range(4): p.e(f'v_accvgpr_read_b32 {tmp[i]}, {tile[i]}')
        return tmp
    def pack(o, t0, t1):
        p.e(f'v_cvt_pk_bf16_f32 {o[0]}, {t0[0]}, {t0[1]}\nv_cvt_pk_bf16_f32 {o[1]}, {t0[2]}, {t0[3]}')
        p.e(f'v_cvt_pk_bf16_f32 {o[2]}, {t1[0]}, {t1[1]}\nv_cvt_pk_bf16_f32 {o[3]}, {t1[2]}, {t1[3]}')

    def pf_setup():
        L = f"""s_lshl_b32 {s_t0}, s2, 2
        s_add_u32 {s_t0}, {s_t0}, {s_w}
        s_lshl_b32 {s_t1}, {s_t0}, 9
        v_lshl_add_u32 {vt3}, {vl}, 7, {s_t1}
        v_cmp_gt_u32 vcc, 4, {vl}
        s_mov_b32 {sp2[0]}, {pwd[0]}
        s_mov_b32 {sp2[1]}, {pwd[1]}
        s_mov_b32 {sp2[2]}, {F * D * 2}
        v_cndmask_b32 {vt3}, 2.0, {vt3}, vcc
        s_mov_b32 {s_c1}, 0""".split('\n')
        return [x.strip() for x in L]
    def pf_wo():
        L = f"""s_lshl_b32 {s_t0}, s2, 2
        s_add_u32 {s_t0}, {s_t0}, {s_w}
        s_lshl_b32 {s_t1}, {s_t0}, 11
        v_lshl_add_u32 {vt3}, {vl}, 7, {s_t1}
        v_cmp_gt_u32 {smask}, 16, {vl}
        s_mov_b32 {sp2[0]}, {pwo[0]}
        s_mov_b32 {sp2[1]}, {pwo[1]}
        s_mov_b32 {sp2[2]}, {D * D * 2}
        v_cndmask_b32 {vt3}, 2.0, {vt3}, {smask}""".split('\n')
        return [x.strip() for x in L] + [Ins(f'buffer_load_dword {vpd}, {vt3}, {sp2}, 0 offen', 'pf')]

    spins = []
    def check(cond_lines, reload_lines, tag):
        lab = f'{name}_{tag}'
        spins.append((lab, cond_lines, reload_lines))
        return cond_lines + [f's_cbranch_vccnz {lab}_spin', f'{lab}_ok:']

    def epilogue(wc):
        vq = vdx[0]; vh = vdx[1]; vql = vdx[2]
        s_b, s_qs = s_oq, R('s', sp2.a, 2)
        outs = [vtmp[16 + 4 * i:20 + 4 * i] for i in range(3)]
        p.e(f"""
        v_and_b32 {vt0}, 15, {vl}
        v_lshrrev_b32 {vt1}, 4, {vl}
        v_lshlrev_b32 {vq}, 9, {vt1}
        v_lshlrev_b32 {vh}, 4, {vl}
        s_lshl_b32 {s_t0}, {s_h}, 6
        s_lshl_b32 {s_t1}, {s_mb}, 3
        s_add_u32 {s_t0}, {s_t0}, {s_t1}
        s_lshl_b32 {s_t1}, {s_wr}, 2
        s_add_u32 {s_t0}, {s_t0}, {s_t1}
        s_lshl_b32 {s_b}, {s_t0}, 12
        s_add_u32 {s_b}, {s_b}, {WS_KV}
        s_lshl_b32 {s_t1}, {s_wr}, 14
        """)
        k = 0
        if wc == 0:
            p.e(f"""
            v_lshrrev_b32 {vt2}, 3, {vt0}
            v_lshl_add_u32 {vq}, {vt2}, 8, {vq}
            v_and_b32 {vt2}, 7, {vt0}
            v_lshl_add_u32 {vq}, {vt2}, 4, {vq}
            v_add_u32 {vql}, {s_t1}, {vq}
            s_mov_b32 {s_qs[0]}, {hex(f32bits(QSCALE))}
            s_mov_b32 {s_qs[1]}, {s_qs[0]}
            """)
            for m in range(8):
                o = outs[k % 3]; k += 1
                pack(o, toreg(acc[2][m], vtmp[0:4]), toreg(acc[3][m], vtmp[4:8]))
                p.e(f'buffer_store_dwordx4 {o}, {vq}, {sws}, {s_b} offen offset:{(m % 2) * 128}{st_mod}', 'KVST')
                p.e(f'ds_write_b128 {vql}, {o} offset:{(m // 2) * 4096 + (m % 2) * 128}')
                if m % 2 == 1 and m < 7: p.e(f's_add_u32 {s_b}, {s_b}, 4096')
            p.e(f's_lshl_b32 {s_t1}, {s_wr}, 13\ns_add_u32 {s_t1}, {s_t1}, {QS}\nv_add_u32 {vql}, {s_t1}, {vq}')
            for m in range(8):
                o = outs[k % 3]; k += 1
                t0 = toreg(acc[0][m], vtmp[0:4]); t1 = toreg(acc[1][m], vtmp[4:8])
                for tt in (t0, t1):
                    for i in range(2): p.e(f'v_pk_mul_f32 {tt[2*i:2*i+2]}, {tt[2*i:2*i+2]}, {s_qs}')
                pack(o, t0, t1)
                p.e(f'ds_write_b128 {vql}, {o} offset:{(m // 2) * 2048 + (m % 2) * 128}')
        else:
            p.e(f'v_lshl_add_u32 {vq}, {vt0}, 4, {vq}\nv_add_u32 {vql}, {s_t1}, {vq}')
            for j in range(4):
                for nt in range(2):
                    o = outs[k % 3]; k += 1
                    pack(o, toreg(acc[nt][2 * j], vtmp[0:4]), toreg(acc[nt][2 * j + 1], vtmp[4:8]))
                    p.e(f'buffer_store_dwordx4 {o}, {vq}, {sws}, {s_b} offen offset:{2048 + nt * 256}{st_mod}', 'KVST')
                    p.e(f'ds_write_b128 {vql}, {o} offset:{j * 4096 + 2048 + nt * 256}')
                if j < 3: p.e(f's_add_u32 {s_b}, {s_b}, 4096')
        nq = 4 if wc == 0 else 2
        if ptrace == -1: pf.trace()
        p.e(f"""
        s_lshl_b32 {s_t0}, {s_mb}, 1
        s_add_u32 {s_t0}, {s_t0}, {s_wr}
        s_mul_i32 {s_t0}, {s_t0}, 288
        s_mul_i32 {s_t1}, {s_h}, 7
        s_add_u32 {s_t0}, {s_t0}, {s_t1}
        s_lshl_b32 {s_t0}, {s_t0}, 12
        s_add_u32 {s_b}, {s_t0}, {WS_A + 3 * 4096 * wc}
        """)
        for n in range(nq, 10, 2):
            for j in range(4):
                o = outs[k % 3]; k += 1
                tt = []
                for mm in range(2):
                    g_ = toreg(acc[n][2 * j + mm], vtmp[8 * mm:8 * mm + 4]); u_ = toreg(acc[n + 1][2 * j + mm], vtmp[8 * mm + 4:8 * mm + 8])
                    for i in range(2): p.e(f'v_pk_mul_f32 {g_[2*i:2*i+2]}, {g_[2*i:2*i+2]}, {u_[2*i:2*i+2]}')
                    tt.append(g_)
                pack(o, tt[0], tt[1])
                p.e(f'v_permlane16_swap_b32 {o[0]}, {o[2]}\nv_permlane16_swap_b32 {o[1]}, {o[3]}')
                p.e(f'buffer_store_dwordx4 {o}, {vh}, {sws}, {s_b} offen offset:{j * 1024}{st_mod}', 'HST')
            if n < 8: p.e(f's_add_u32 {s_b}, {s_b}, 4096')

    def lines(s): return [x.strip() for x in s.strip().split('\n')]
    announce = lines(f"""
        s_mov_b32 {sp2[0]}, {pdbg[0]}
        s_mov_b32 {sp2[1]}, {pdbg[1]}
        s_movk_i32 {sp2[2]}, 256
        s_and_b32 {s_t0}, s2, 7
        s_lshl_b32 {s_t0}, {s_t0}, 2
        v_mov_b32 {vt2}, 1
        v_cmp_eq_u32 {smask}, 0, v0
        v_cndmask_b32 {vt1}, 2.0, 0, {smask}
        buffer_atomic_add {vt2}, {vt1}, {sp2}, {s_t0} offen offset:{DBG_CNT} sc1""")
    cnt_addr = lines(f"""
        s_mov_b32 {spf[0]}, {pdbg[0]}
        s_mov_b32 {spf[1]}, {pdbg[1]}
        s_movk_i32 {spf[2]}, 256
        v_and_b32 {vpf}, 7, {vl}
        v_lshlrev_b32 {vpf}, 2, {vpf}""")
    cnt_load = f'buffer_load_dword {vcnt}, {vpf}, {spf}, 0 offen offset:{DBG_CNT} sc1'

    for wc in range(2):
        p.seg(f'c{wc}a')
        if wc == 1: p.e(f'{name}_c1:')
        for j in range(DIST): p.add(wread(j, 0, wc))
        stage(0, wc, first=True, extra=pfetch() + gate_loads, estep=1, postbar=announce)
        p.add(pf_setup())
        p.e(f's_mov_b32 {s_cnt}, 7')
        p.seg(f'c{wc}loop')
        p.e(f'{name}_c{wc}loop:')
        for st in (1, 0): stage(st, wc, extra=pfetch() + pfetch_d())
        p.e(f's_sub_u32 {s_cnt}, {s_cnt}, 1\ns_cmp_lg_u32 {s_cnt}, 0\ns_cbranch_scc1 {name}_c{wc}loop')
        p.seg(f'c{wc}last')
        stage(1, wc, last=True, extra=cnt_addr + [cnt_load] + pf_wo(), fill=gate_ops())
        pf.stamp(2)
        if ptrace == -1: pf.trace()
        epilogue(wc)
        if ptrace == -1: pf.trace()
        if wc == 0: p.e(f's_branch {name}_join')
    p.seg('join')
    p.e(f'{name}_join:')
    p.add(check([f'v_cmp_gt_u32 vcc, 32, {vcnt}'], [cnt_load], 'cnt'))

    sa.p = s_base; va.p = v_base; aa.p = 0
    skv = sa(4); sA = sa(4); swd = sa(4); swo = sa(4); sout = sa(4)
    s_okv, s_left, s_p, s_oa, s_ow, s_wb, s_ob, s_ob2, s_thr, s_mt, s_nt, s_oo, s_spin = [sa() for _ in range(13)]
    vl16, vkA, vkB, vdma, vo, vidx, vu0, vu1, vu2, vpa = [va() for _ in range(10)]
    vdd = [va() for _ in range(2)]; vdo = [va() for _ in range(2)]; vwr = [va() for _ in range(2)]
    vg = va(2); vog = va(4); vpoll = va(2, 2); vsc = va(2)
    ones = va(4, 4)
    assert va.p <= 48 and va.p > vcnt.a
    va.p = 48
    Sx = [va(16, 4) for _ in range(2)]; P = [va(8, 4) for _ in range(2)]; C = [va(16, 4) for _ in range(2)]
    acc3 = [[va(16, 4) for _ in range(4)] for _ in range(2)]
    O = [aa(16, 4) for _ in range(2)]; L = [aa(4, 4) for _ in range(2)]
    Q = [aa(8, 4) for _ in range(2)]; K = [aa(8, 4) for _ in range(2)]; V = [aa(8, 4) for _ in range(2)]
    Wf = [aa(4, 4) for _ in range(2)]
    Ab = [[aa(4, 4) for _ in range(4)] for _ in range(8)]

    p.e(f"""
    v_lshlrev_b32 {vl16}, 4, {vl}
    s_lshl_b32 {s_p}, {s_w}, 12
    s_add_u32 {s_t0}, {s_p}, {QS}
    v_add_u32 {vu0}, {s_t0}, {vl16}
    s_waitcnt lgkmcnt(0)
    s_barrier
    """)
    pf.stamp(3)
    def kread(kb, loop=False):
        base, o = (vl16, (kb % 16) * 4096) if not loop else ((vkA, kb * 4096) if kb < 8 else (vkB, (kb - 8) * 4096))
        return [f'ds_read_b128 {K[kb % 2][4*f:4*f+4]}, {base} offset:{o + f * 1024}' for f in range(2)]
    def vread(kb, loop=False):
        base, o = (vl16, (kb % 16) * 4096) if not loop else (vkA, kb * 4096)
        return [f'ds_read_b128 {V[kb % 2][4*f:4*f+4]}, {base} offset:{o + 2048 + f * 1024}' for f in range(2)]
    def qk(dst, kb, q, f, cin):
        return f'v_mfma_f32_32x32x16_bf16 {dst}, {K[kb % 2][4*f:4*f+4]}, {Q[q][4*f:4*f+4]}, {cin if f == 0 else dst}'
    def pv(j, f, zero=False):
        q = j % 2; kb = (j // 2) % 2
        return f'v_mfma_f32_32x32x16_bf16 {O[q]}, {V[kb][4*f:4*f+4]}, {P[q][4*f:4*f+4]}, {"0" if zero else O[q]}'
    def rsum(q): return f'v_smfmac_f32_16x16x64_bf16 {L[q]}, {ones}, {P[q]}, {vidx}'
    def cvt(j, i): return f'v_cvt_pk_bf16_f32 {P[j % 2][i]}, {Sx[j % 2][2*i]}, {Sx[j % 2][2*i+1]}'
    def rowmax(dst, src, init):
        lst = [src[i] for i in range(16)]
        if init:
            p.e(f'v_max3_f32 {dst}, {lst[0]}, {lst[1]}, {lst[2]}'); lst = lst[3:]
        while len(lst) >= 2:
            p.e(f'v_max3_f32 {dst}, {dst}, {lst[0]}, {lst[1]}'); lst = lst[2:]
        if lst: p.e(f'v_max_f32 {dst}, {dst}, {lst[0]}')
    def setc(q, m):
        p.e(f'v_mov_b32 {vu2}, {m}\nv_permlane32_swap_b32 {vu2}, {m}\nv_max_f32 {m}, {m}, {vu2}')
        for i in range(16): p.e(f'v_sub_f32 {C[q][i]}, 0, {m}')
    for q in range(2):
        for f in range(2): p.e(f'ds_read_b128 {Q[q][4*f:4*f+4]}, {vu0} offset:{q * 2048 + f * 1024}')
    p.add(kread(0)); p.add(kread(1))
    p.e(f"""
    v_bfe_u32 {vu0}, {vl}, 2, 1
    v_bfe_u32 {vu1}, {vl}, 1, 1
    v_mov_b32 {vu2}, 0x3f803f80
    v_or_b32 {vidx}, {vu0}, {vu1}
    v_cmp_eq_u32 vcc, 0, {vidx}
    v_xor_b32 {vu0}, 1, {vu0}
    v_or_b32 {vidx}, {vu0}, {vu1}
    v_cndmask_b32 {ones[0]}, 0, {vu2}, vcc
    v_cndmask_b32 {ones[1]}, 0, {vu2}, vcc
    v_cmp_eq_u32 vcc, 0, {vidx}
    v_and_b32 {vu0}, 1, {vl}
    v_mov_b32 {vu1}, 0xeeeeeeee
    v_cndmask_b32 {ones[2]}, 0, {vu2}, vcc
    v_cndmask_b32 {ones[3]}, 0, {vu2}, vcc
    v_cmp_eq_u32 vcc, 0, {vu0}
    v_mov_b32 {vu2}, 0x44444444
    v_add_u32 {vdma}, {s_p}, {vl16}
    v_cndmask_b32 {vidx}, {vu1}, {vu2}, vcc
    """)
    for q in range(2):
        for f in range(2): p.e(qk(C[q], 0, q, f, '0'))
    for q in range(2):
        for i in range(4): p.e(f'v_accvgpr_write_b32 {L[q][i]}, 0')
    p.e(f's_lshl_b32 {s_t0}, {s_h}, 18')
    srd(p, skv, pws, off_s=s_t0, off_imm=WS_KV, size=262144)
    rowmax(vu0, C[0], True); rowmax(vu1, C[1], True)
    setc(0, vu0)
    p.e(qk(Sx[0], 0, 0, 0, C[0])); p.e(qk(Sx[0], 0, 0, 1, C[0]))
    setc(1, vu1)

    def flag(val, tag, wait):
        return [f'v_mov_b32 {vu0}, {val}', f'WAITTAG {wait}', Ins(f'buffer_store_dword {vu0}, {vflag}, {sfl}, 0 offen sc1', tag)]
    def kvdma(m0line, tag):
        return [m0line] + [Ins(f'buffer_load_dwordx4 {vdma}, {skv}, {s_okv} offen offset:{i * 1024} lds', tag) for i in range(4)] + \
               [f's_add_u32 {s_okv}, {s_okv}, 16384', f's_and_b32 {s_okv}, {s_okv}, 0x3ffff',
                f's_sub_u32 {s_left}, {s_left}, 1', f's_cselect_b32 {skv[2]}, 0, {skv[2]}']
    def dloads(s):
        b = s % NB
        return [f's_add_u32 m0, {s_wb}, {b * 2048}'] + \
               [Ins(f'buffer_load_dwordx4 {vdd[hh]}, {swd}, {s_ow} offen offset:{hh * 1024} lds', f'D{b}') for hh in range(2)] + \
               [Ins(f'buffer_load_dwordx4 {Ab[b][tb]}, {vl16}, {sA}, {s_oa} offen offset:{tb * 1024}', f'D{b}') for tb in range(4)] + \
               [f's_add_u32 {s_ow}, {s_ow}, 32768', f's_add_u32 {s_oa}, {s_oa}, 4096']
    def wrd(base, off, nb):
        return [f'ds_read_b64_tr_b16 {Wf[nb][2*s:2*s+2]}, {base[nb]} offset:{off + s * 512}' for s in range(2)]
    def gm(buf, nb, tb, zero=False):
        return f'v_mfma_f32_32x32x16_bf16 {acc3[nb][tb]}, {Wf[nb]}, {buf[tb]}, {"0" if zero else acc3[nb][tb]}'
    def oload(t, m0line, tag):
        return [m0line] + [Ins(f'buffer_load_dwordx4 {vdo[hh]}, {swo}, {s_oo} offen offset:{hh * 1024} lds', tag) for hh in range(2)] + [f's_add_u32 {s_oo}, {s_oo}, 32768']

    def period(j, loop=False, item=None, misc=(), pre=(), zero=False):
        s = Sx[j % 2]
        E = [f'v_exp_f32 {s[i]}, {s[i]}' for i in range(16)]
        jn = j + 1
        m1 = qk(Sx[jn % 2], jn // 2, jn % 2, 0, C[jn % 2]); m2 = qk(Sx[jn % 2], jn // 2, jn % 2, 1, None)
        rd = kread((j + 1) // 2 + 1, loop) if j % 2 == 1 else vread(j // 2, loop)
        first = (j == 0 and not loop)
        zo = (j <= 2 and not loop)
        c7 = [] if first else [cvt(j - 1, 7)]
        p0 = [] if first else [pv(j - 1, 0, zo)]; p1 = [] if first else [pv(j - 1, 1)]; rs = [] if first else [rsum((j - 1) % 2)]
        misc = list(pre) + rd + list(misc)
        if item is None:
            groups = [[E[0]] + c7 + [m1], [E[1], E[2], cvt(j, 0), E[3], m2], [E[4], cvt(j, 1), E[5], E[6]] + p0,
                      [cvt(j, 2), E[7], E[8], cvt(j, 3), E[9]] + p1, [E[10], cvt(j, 4), E[11], E[12]] + rs, [cvt(j, 5), E[13], E[14], cvt(j, 6), E[15]]]
            cap = [len(pre) + 1, 1, 1, 1, 1, 0]
        else:
            st, nb = item
            G = [gm(Ab[st % NB], nb, tb if nb == 0 else 3 - tb, zero) for tb in range(4)]
            groups = [[G[0]], [E[0]] + c7 + [m1], [E[1], E[2], cvt(j, 0), G[1]], [E[3], E[4], cvt(j, 1), m2], [E[5], E[6], cvt(j, 2), G[2]],
                      [E[7], E[8], cvt(j, 3)] + p0, [E[9], E[10], cvt(j, 4), G[3]], [E[11], E[12], cvt(j, 5)] + p1, [E[13], E[14], cvt(j, 6)] + rs, [E[15]]]
            cap = [max(3, len(pre) + 1), 1, 1, 1, 1, 1, 1, 1, 0, 0]
        k = 1 if item is None else 1
        while sum(cap) < len(misc):
            cap[k] += 1; k += 1
            if k >= len(cap) - (1 if item is None else 2): k = 0
        if loop and exp_ & 1: groups = [[x for x in g if not (isinstance(x, str) and x in G)] for g in groups]
        if loop and exp_ & 2: groups = [[x for x in g if not (x.startswith('v_exp') or x.startswith('v_cvt'))] for g in groups]
        if loop and exp_ & 4: groups = [[x for x in g if x in G or x.startswith('v_exp') or x.startswith('v_cvt')] for g in groups]
        if loop and exp_ & 8: misc = [x for x in misc if not (isinstance(x, Ins) and x.tag and x.tag.startswith('D'))]
        if loop and exp_ & 16: groups = [[x for x in g if not x.startswith('v_smfmac')] for g in groups]
        for g, cp in zip(groups, cap):
            p.add(g)
            n = 0
            while misc and n < cp:
                x = misc.pop(0); p.add([x]); n += 1
                while misc and isinstance(x, str) and (x.startswith('s_cbranch') or x.startswith('v_cmp') or x.startswith('s_or_b64') or x.startswith('WAITTAG')):
                    x = misc.pop(0); p.add([x])
        assert not misc

    setup1 = lines(f"""
        s_lshl_b32 {s_okv}, {s_mb}, 15
        s_add_u32 {s_okv}, {s_okv}, 32768
        s_and_b32 {s_okv}, {s_okv}, 0x3ffff
        s_movk_i32 {s_left}, 13
        v_lshrrev_b32 {vu1}, 2, {vl}
        v_and_b32 {vu1}, 7, {vu1}
        v_and_b32 {vu2}, 3, {vl}
        v_lshlrev_b32 {vu2}, 2, {vu2}
        v_lshl_add_u32 {vpa}, {vu1}, 9, {vu2}
        s_lshl_b32 {s_t2}, {s_h}, 4""")
    poll_kv = f'buffer_load_dword {vpoll[0]}, {vpa}, {sfl}, {s_t2} offen sc1'
    setup2 = lines(f"""
        s_and_b32 {s_t0}, s2, 7
        s_lshr_b32 {s_t1}, s2, 3
        s_lshr_b32 {s_mt}, {s_t0}, 1
        s_lshl_b32 {s_mt}, {s_mt}, 2
        s_and_b32 {s_nt}, {s_t0}, 1
        s_lshl_b32 {s_nt}, {s_nt}, 3
        s_and_b32 {s_t0}, {s_t1}, 3
        s_add_u32 {s_mt}, {s_mt}, {s_t0}
        s_lshr_b32 {s_t0}, {s_t1}, 2
        s_add_u32 {s_nt}, {s_nt}, {s_t0}
        s_lshl_b32 {s_t0}, {s_nt}, 7
        s_add_u32 {swo[0]}, {pwo[0]}, {s_t0}
        s_addc_u32 {swo[1]}, {pwo[1]}, 0
        s_sub_u32 {swo[2]}, {D * D * 2}, {s_t0}
        s_mov_b32 {swo[3]}, 0x00020000
        s_add_u32 {swd[0]}, {pwd[0]}, {s_t0}
        s_addc_u32 {swd[1]}, {pwd[1]}, 0
        s_sub_u32 {swd[2]}, {F * D * 2}, {s_t0}
        s_mov_b32 {swd[3]}, 0x00020000
        s_mul_i32 {s_t0}, {s_mt}, {288 * 4096}
        s_add_u32 {s_t0}, {s_t0}, {WS_A}
        s_add_u32 {sA[0]}, {pws[0]}, {s_t0}
        s_addc_u32 {sA[1]}, {pws[1]}, 0
        s_mov_b32 {sA[2]}, {288 * 4096}
        s_mov_b32 {sA[3]}, 0x00020000
        s_mul_i32 {s_oa}, {s_w}, {56 * 4096}
        s_mul_i32 {s_ow}, {s_w}, {56 * 32768}
        s_lshl_b32 {s_oo}, {s_w}, 19
        s_mul_i32 {s_wb}, {s_w}, 20480
        s_add_u32 {s_wb}, {s_wb}, {W0}
        v_lshrrev_b32 {vu1}, 3, {vl}
        v_and_b32 {vu2}, 2, {vu1}
        v_lshlrev_b32 {vu2}, 1, {vu2}
        v_and_b32 {vdd[1]}, 7, {vl}
        v_xor_b32 {vu2}, {vu2}, {vdd[1]}
        v_lshlrev_b32 {vu2}, 4, {vu2}
        v_lshl_add_u32 {vdd[0]}, {vu1}, 11, {vu2}
        v_add_u32 {vdd[1]}, {8 * 2048 - 1024}, {vdd[0]}
        v_lshrrev_b32 {vu1}, 5, {vl}
        v_lshl_add_u32 {vdo[0]}, {vu1}, 13, {vdd[0]}
        v_add_u32 {vdo[1]}, {4 * 2048 - 1024}, {vdo[0]}
        v_lshl_add_u32 {vwr[0]}, {vu1}, 10, {s_wb}
        v_bfe_u32 {vu1}, {vl}, 2, 2
        v_lshl_add_u32 {vwr[0]}, {vu1}, 7, {vwr[0]}
        v_bfe_u32 {vu1}, {vl}, 3, 1
        v_lshl_add_u32 {vwr[0]}, {vu1}, 6, {vwr[0]}
        v_bfe_u32 {vu1}, {vl}, 4, 1
        v_lshl_add_u32 {vwr[0]}, {vu1}, 5, {vwr[0]}
        v_and_b32 {vu1}, 3, {vl}
        v_lshl_add_u32 {vwr[0]}, {vu1}, 3, {vwr[0]}
        v_xor_b32 {vwr[1]}, 64, {vwr[0]}
        v_mov_b32 {vkA}, {vl16}
        v_add_u32 {vkB}, 32768, {vl16}""")
    setup3 = lines(f"""
        v_and_b32 {vu1}, 7, {vl}
        v_bfe_u32 {vu2}, {vl}, 4, 1
        v_lshl_add_u32 {vo}, {vu2}, 3, {vu1}
        v_bfe_u32 {vu2}, {vl}, 3, 1
        v_lshl_add_u32 {vo}, {vu2}, 4, {vo}
        v_lshrrev_b32 {vu2}, 3, {vo}
        v_lshlrev_b32 {vu2}, 7, {vu2}
        v_lshl_add_u32 {vsc[0]}, {vu1}, 2, {vu2}
        v_lshlrev_b32 {vo}, 4, {vo}
        v_lshrrev_b32 {vu2}, 5, {vl}
        v_lshl_add_u32 {vo}, {vu2}, 9, {vo}
        v_bfe_u32 {vu2}, {vl}, 3, 2
        v_lshlrev_b32 {vu2}, 7, {vu2}
        v_lshl_add_u32 {vsc[1]}, {vu1}, 2, {vu2}
        s_lshl_b32 {s_t0}, {s_mb}, 1
        s_add_u32 {s_t0}, {s_t0}, {s_wr}
        s_mul_i32 {s_t0}, {s_t0}, 288
        s_lshl_b32 {s_t1}, {s_h}, 1
        s_add_u32 {s_t0}, {s_t0}, {s_t1}
        s_add_u32 {s_t0}, {s_t0}, 224
        s_lshl_b32 {s_t0}, {s_t0}, 12
        s_lshl_b32 {s_t1}, {s_wc}, 11
        s_add_u32 {s_t0}, {s_t0}, {s_t1}
        s_add_u32 {s_ob}, {s_t0}, {WS_A}
        s_add_u32 {s_ob2}, {s_ob}, 4096
        s_mov_b32 {s_thr}, {hex(f32bits(2.0 ** 40 if not force_slow else 0.5))}
        v_lshlrev_b32 {vpa}, 3, {vl}
        s_lshr_b32 {s_t2}, {s_mt}, 1
        s_lshl_b32 {s_t2}, {s_t2}, 9""")
    poll_h = f'buffer_load_dwordx2 {vpoll}, {vpa}, {sfl}, {s_t2} offen sc1'
    cond2 = [f'v_min_u32 {vu1}, {vpoll[0]}, {vpoll[1]}', f'v_cmp_gt_u32 vcc, 2, {vu1}']
    og_loads = [f's_lshl_b32 {s_t0}, {s_mt}, 11', f's_add_u32 {s_t0}, {s_t0}, {WS_G + 32}'] + \
               [f'buffer_load_dword {vog[tb]}, {vsc[1]}, {sws}, {s_t0} offen offset:{tb * 512}' for tb in range(4)]
    g_loads = [f's_lshl_b32 {s_t0}, {s_mb}, 2', f's_add_u32 {s_t0}, {s_t0}, {s_w}', f's_lshl_b32 {s_t0}, {s_t0}, 10', f's_add_u32 {s_t0}, {s_t0}, {WS_G}'] + \
              [f'buffer_load_dword {vg[q]}, {vsc[0]}, {sws}, {s_t0} offen offset:{q * 512}' for q in range(2)]
    early_o = []
    for t in range(8):
        early_o.append(oload(t, f's_add_u32 m0, {s_wb}, {(NB + t) * 2048}' if t < 6 else f's_add_u32 m0, {s_p}, {QS + (t - 6) * 2048}', 'WO'))
    assert NB == 4

    plan = {j: [] for j in range(32)}; prej = {j: [] for j in range(32)}
    plan[0] += setup1
    plan[1] += flag(1, 'FL', 'KVST')
    plan[2] += setup2[:18]; plan[3] += [poll_kv] + setup2[18:36]; plan[4] += setup2[36:]
    plan[6] += check([f'v_cmp_gt_u32 vcc, 1, {vpoll[0]}'], [poll_kv], 'kv') + flag(2, 'FL', 'HST')
    d = kvdma(f's_add_u32 m0, {s_p}, 32768', 'KV0'); plan[7] += d[:3]; plan[8] += d[3:]
    d = kvdma(f's_add_u32 m0, {s_p}, 49152', 'KV1'); plan[9] += d[:3]; plan[10] += d[3:]
    plan[11] += setup3[:15]; plan[12] += setup3[15:]
    for j, tag, m0l in ((13, 'KV0', f's_mov_b32 m0, {s_p}'), (21, 'KV1', f's_add_u32 m0, {s_p}, 16384'), (29, 'KV0', f's_add_u32 m0, {s_p}, 32768')):
        prej[j] += [f'WAITTAG {tag}', 's_barrier']
        d = kvdma(m0l, tag); k = 5 if j == 29 else 3
        plan[j] += d[:k]; plan[j + 1] += d[k:]
    plan[15] += [poll_h] + early_o[0]
    plan[16] += early_o[1] + early_o[2]; plan[17] += early_o[3] + early_o[4]
    plan[18] += check(cond2, [poll_h], 'h') + [f's_lshl_b32 {s_t2}, {s_mb}, 9', poll_h]
    plan[19] += early_o[5] + early_o[6]; plan[20] += early_o[7] + og_loads
    plan[23] += check(cond2, [poll_h], 'g') + g_loads
    for i in range(DD):
        d = dloads(i); plan[24 + i] += d if i < 2 else d[:5]
        if i >= 2: plan[25 + i] += d[5:]
    assert DD == 3
    plan[28] += ['WAITTAG D0'] + wrd(vwr, 0, 0)
    p.seg('partA')
    for j in range(30):
        if ptrace == -1 and j in (0, 1, 2, 6, 7, 11, 13, 15, 18, 19, 21, 23, 24, 28): pf.trace()
        period(j, misc=plan[j], pre=prej[j])
    if ptrace == -1: pf.trace()
    def mixed(j, st, nb, loop, misc=(), pre=(), zero=False):
        d = dloads(st + DD) if st + DD < 56 else []
        if nb == 0:
            period(j, loop, (st, 0), misc=wrd(vwr, (st % NB) * 2048, 1) + d[:4] + list(misc), pre=pre, zero=zero)
        else:
            period(j, loop, (st, 1), misc=[f'WAITTAG D{(st + 1) % NB}'] + wrd(vwr, ((st + 1) % NB) * 2048, 0) + d[4:] + list(misc), pre=pre, zero=zero)
    mixed(30, 0, 0, False, misc=plan[30], zero=True); mixed(31, 0, 1, False, zero=True)
    pf.stamp(4)
    p.e(f's_mov_b32 {s_cnt}, 6')
    p.seg('loop')
    p.e(f'{name}_loop:')
    for j in range(16):
        misc = []; pre = []
        if j in (5, 13):
            pre = [f'WAITTAG KV{1 if j == 5 else 0}', 's_barrier']
        if j in (5, 6, 13, 14):
            d = kvdma(f's_xor_b32 m0, {s_p}, 49152' if j < 8 else f's_mov_b32 m0, {s_p}', 'KV1' if j < 8 else 'KV0')
            misc = d[:5] if j in (5, 13) else d[5:]
        if j == 15: misc = [f's_xor_b32 {s_p}, {s_p}, 32768', f'v_xor_b32 {vkA}, 0x8000, {vkA}', f'v_xor_b32 {vkB}, 0x8000, {vkB}']
        mixed(j, 1 + j // 2, j % 2, True, misc=misc, pre=pre)
    p.e(f's_sub_u32 {s_cnt}, {s_cnt}, 1\ns_cmp_lg_u32 {s_cnt}, 0\ns_cbranch_scc1 {name}_loop')

    p.seg('tail')
    pf.stamp(5)
    p.add([cvt(15, 7), pv(15, 0), pv(15, 1), rsum(1)])
    def lsum():
        p.e(f"""
        v_accvgpr_read_b32 {vsc[0]}, {L[0][0]}
        v_accvgpr_read_b32 {vu0}, {L[0][1]}
        v_accvgpr_read_b32 {vsc[1]}, {L[1][0]}
        v_accvgpr_read_b32 {vu1}, {L[1][1]}
        v_add_f32 {vsc[0]}, {vsc[0]}, {vu0}
        v_add_f32 {vsc[1]}, {vsc[1]}, {vu1}
        """)
    lsum()
    p.e(f"""
    v_cmp_nle_f32 vcc, {vsc[0]}, {s_thr}
    v_cmp_nle_f32 {smask}, {vsc[1]}, {s_thr}
    s_or_b64 vcc, vcc, {smask}
    s_cbranch_vccnz {name}_slow
    """)
    p.seg('epi')
    p.e(f'{name}_epi:')
    p.e(f"""
    v_rcp_f32 {vsc[0]}, {vsc[0]}
    v_rcp_f32 {vsc[1]}, {vsc[1]}
    WAITTAG KV0 KV1
    s_barrier
    v_mul_f32 {vsc[0]}, {vsc[0]}, {vg[0]}
    v_mul_f32 {vsc[1]}, {vsc[1]}, {vg[1]}
    """)
    for q in range(2):
        for f in range(2):
            t_ = Sx[q][8 * f:8 * f + 8]
            for i in range(8): p.e(f'v_accvgpr_read_b32 {t_[i]}, {O[q][8*f+i]}')
            for i in range(8): p.e(f'v_mul_f32 {t_[i]}, {t_[i]}, {vsc[q]}')
            for i in range(4): p.e(f'v_cvt_pk_bf16_f32 {t_[i]}, {t_[2*i]}, {t_[2*i+1]}')
            p.e(f'buffer_store_dwordx4 {t_[0:4]}, {vo}, {sws}, {(s_ob, s_ob2)[f]} offen offset:{q * 1024}{st_mod}', 'OST')
    vw2 = [C[0][0], C[0][1]]; vw3 = [C[0][2], C[0][3]]; vout = C[0][4]
    p.e(f's_lshl_b32 {s_p}, {s_w}, 14')
    late = [oload(t, f's_add_u32 m0, {s_p}, {(t - 8) * 2048}', 'WO') for t in range(8, 16)]
    late2 = lines(f"""
        s_sub_u32 {s_t0}, {s_p}, {s_wb}
        v_add_u32 {vw2[0]}, {s_t0}, {vwr[0]}
        v_add_u32 {vw2[1]}, {s_t0}, {vwr[1]}
        s_lshl_b32 {s_t0}, {s_w}, 12
        s_add_u32 {s_t0}, {s_t0}, {QS}
        s_sub_u32 {s_t0}, {s_t0}, {s_wb}
        v_add_u32 {vw3[0]}, {s_t0}, {vwr[0]}
        v_add_u32 {vw3[1]}, {s_t0}, {vwr[1]}
        s_lshl_b32 {s_t0}, {s_mt}, 18
        s_lshl_b32 {s_t1}, {s_nt}, 7
        s_add_u32 {s_t0}, {s_t0}, {s_t1}
        s_add_u32 {sout[0]}, {pout[0]}, {s_t0}
        s_addc_u32 {sout[1]}, {pout[1]}, 0
        s_sub_u32 {sout[2]}, {S * D * 2}, {s_t0}
        s_mov_b32 {sout[3]}, 0x00020000
        v_and_b32 {vu1}, 31, {vl}
        s_lshl_b32 {s_t0}, {s_w}, 16
        v_lshl_add_u32 {vout}, {vu1}, 11, {s_t0}
        v_lshrrev_b32 {vu1}, 5, {vl}
        v_lshl_add_u32 {vout}, {vu1}, 4, {vout}
        v_bfe_u32 {vu1}, {vl}, 1, 3
        v_and_b32 {vu2}, 1, {vl}
        v_lshlrev_b32 {vu2}, 2, {vu2}
        v_lshl_add_u32 {vpa}, {vu1}, 4, {vu2}
        s_lshr_b32 {s_t2}, {s_mt}, 1
        s_lshl_b32 {s_t2}, {s_t2}, 9
        s_lshl_b32 {s_t0}, {s_w}, 7
        s_add_u32 {s_t2}, {s_t2}, {s_t0}
        s_and_b32 {s_t0}, {s_mt}, 1
        s_lshl_b32 {s_t0}, {s_t0}, 3
        s_add_u32 {s_t2}, {s_t2}, {s_t0}""")
    poll_o = f'buffer_load_dword {vpoll[0]}, {vpa}, {sfl}, {s_t2} offen sc1'
    def oslot(t):
        if t < 6: return vwr, (NB + t) * 2048
        if t < 8: return vw3, (t - 6) * 2048
        return vw2, (t - 8) * 2048
    def gstep(buf, nxt, misc):
        misc = list(misc)
        per = -(-len(misc) // 8)
        for c in range(8):
            nb, tb = divmod(c, 4)
            p.e(gm(buf, nb, tb if nb == 0 else 3 - tb))
            if c == 0: p.add(nxt[0])
            if c == 4: p.add(nxt[1])
            for _ in range(per):
                if misc: p.add([misc.pop(0)])
    LATE0 = 49
    for st in range(LATE0, 56):
        misc = dloads(st + DD) if st + DD < 56 else []
        if st == LATE0: misc = misc + late2
        if st == LATE0 + 1: misc = flag(3, 'FL', 'OST') + misc
        for t in {50: (0,), 51: (1,), 52: (2,), 53: (3, 4, 5), 54: (6, 7)}.get(st, ()): misc = misc + late[t]
        if st == 55: misc = misc + [poll_o]
        n0 = wrd(vwr, (st % NB) * 2048, 1)
        n1 = ([f'WAITTAG D{(st + 1) % NB}'] + wrd(vwr, ((st + 1) % NB) * 2048, 0)) if st < 55 else (['WAITTAG WO'] + wrd(*oslot(0), 0))
        gstep(Ab[st % NB], (n0, n1), misc)
    p.e(f's_lshl_b32 {s_oa}, {s_w}, 16\ns_add_u32 {s_oa}, {s_oa}, {224 * 4096}')
    for nb in range(2):
        for tb in range(4):
            for i in range(16): p.e(f'v_mul_f32 {acc3[nb][tb][i]}, {acc3[nb][tb][i]}, {vog[tb]}')
    p.add(check([f'v_cmp_gt_u32 vcc, 3, {vpoll[0]}'], [poll_o], 'o'))
    pf.stamp(6)
    def aload(t):
        return [f'buffer_load_dwordx4 {Ab[t % 8][tb]}, {vl16}, {sA}, {s_oa} offen offset:{tb * 1024}' for tb in range(4)] + [f's_add_u32 {s_oa}, {s_oa}, 4096']
    for t in range(7): p.add(aload(t))
    for t in range(16):
        n0 = wrd(*oslot(t), 1); n1 = wrd(*oslot(t + 1), 0) if t < 15 else []
        gstep(Ab[t % 8], (n0, n1), aload(t + 7) if t + 7 < 16 else [])
    pf.stamp(7)
    p.e('s_barrier')
    for w in range(4):
        p.e(f's_cmp_lg_u32 {s_w}, {w}\ns_cbranch_scc1 {name}_r{w}')
        p.seg(f'red{w}')
        for d_ in range(4):
            if d_ == w: continue
            base = (d_ * 3 + (w - d_ - 1) % 4) * 8192
            vb = vl16
            if base >= 65536 - 8192:
                p.e(f'v_add_u32 {vu0}, {base}, {vl16}'); vb = vu0; base = 0
            for nb in range(2):
                for j in range(4): p.e(f'ds_write_b128 {vb}, {acc3[nb][d_][4*j:4*j+4]} offset:{base + (nb * 4 + j) * 1024}')
        if w != 0:
            for nb in range(2):
                for i in range(16): p.e(f'v_mov_b32 {acc3[nb][0][i]}, {acc3[nb][w][i]}')
        p.e(f's_branch {name}_rdone')
        p.seg(f'redn{w}')
        p.e(f'{name}_r{w}:')
    p.seg('fin')
    p.e(f'{name}_rdone:')
    p.e(f"""
    s_mul_i32 {s_t0}, {s_w}, {3 * 8192}
    v_add_u32 {vu0}, {s_t0}, {vl16}
    s_waitcnt lgkmcnt(0)
    s_barrier
    """)
    for sl in range(3):
        for nb in range(2):
            for j in range(4): p.e(f'ds_read_b128 {acc3[nb][sl + 1][4*j:4*j+4]}, {vu0} offset:{sl * 8192 + (nb * 4 + j) * 1024}')
    for sl in range(3):
        for nb in range(2):
            for i in range(8): p.e(f'v_pk_add_f32 {acc3[nb][0][2*i:2*i+2]}, {acc3[nb][0][2*i:2*i+2]}, {acc3[nb][sl + 1][2*i:2*i+2]}')
    for nb in range(2):
        a_ = acc3[nb][0]
        for jp in range(2):
            o = acc3[nb][1][4 * jp:4 * jp + 4]
            for i in range(4): p.e(f'v_cvt_pk_bf16_f32 {o[i]}, {a_[8 * jp + 2 * i]}, {a_[8 * jp + 2 * i + 1]}')
            p.e(f'v_permlane32_swap_b32 {o[0]}, {o[2]}\nv_permlane32_swap_b32 {o[1]}, {o[3]}')
            p.e(f'buffer_store_dwordx4 {o}, {vout}, {sout}, 0 offen offset:{nb * 64 + jp * 32}')
    pf.stamp(8)
    pf.flush(s_w, sws, vl, vu0)
    if dbg:
        p.e(f"""
        v_readlane_b32 {s_t0}, {vtr}, 44
        v_readlane_b32 {s_t1}, {vtr}, 45
        v_and_b32 {vu1}, 1, {vl}
        v_cmp_eq_u32 vcc, 0, {vu1}
        v_mov_b32 {vu1}, {s_t0}
        v_mov_b32 {vu2}, {s_t1}
        v_cndmask_b32 {vu1}, {vu2}, {vu1}, vcc
        v_sub_u32 {vu1}, {vtr}, {vu1}
        v_subrev_u32 {vu2}, 46, {vl}
        v_lshlrev_b32 {vu2}, 2, {vu2}
        v_cmp_gt_u32 vcc, 64, {vu2}
        v_cndmask_b32 {vu2}, 2.0, {vu2}, vcc
        s_mov_b32 {skv[0]}, {pdbg[0]}
        s_mov_b32 {skv[1]}, {pdbg[1]}
        s_movk_i32 {skv[2]}, 64
        s_lshl_b32 {s_t0}, s2, 2
        s_add_u32 {s_t0}, {s_t0}, {s_w}
        s_cmp_eq_u32 {s_t0}, {dbg - 1}
        s_cselect_b32 {s_t0}, 0, 2.0
        buffer_store_dword {vu1}, {vu2}, {skv}, {s_t0} offen
        """)
    p.e('s_endpgm')

    p.seg('slow0')
    p.e(f'{name}_slow:')
    p.e(f"""
    s_waitcnt vmcnt(0) lgkmcnt(0)
    v_mov_b32 {vu0}, 0xff800000
    v_mov_b32 {vu1}, 0xff800000
    s_mov_b32 {s_okv}, 0
    s_mov_b32 {skv[2]}, 262144
    """)
    p.seg('slow1')
    p.e(f'{name}_slow1:')
    for f in range(2): p.e(f'buffer_load_dwordx4 {K[0][4*f:4*f+4]}, {vl16}, {skv}, {s_okv} offen offset:{f * 1024}')
    for q in range(2):
        for f in range(2): p.e(qk(Sx[q], 0, q, f, '0'))
    rowmax(vu0, Sx[0], False); rowmax(vu1, Sx[1], False)
    p.e(f's_add_u32 {s_okv}, {s_okv}, 4096\ns_cmp_lt_u32 {s_okv}, 262144\ns_cbranch_scc1 {name}_slow1')
    p.seg('slow2')
    setc(0, vu0); setc(1, vu1)
    for q in range(2):
        for i in range(16): p.e(f'v_accvgpr_write_b32 {O[q][i]}, 0')
        for i in range(4): p.e(f'v_accvgpr_write_b32 {L[q][i]}, 0')
    p.e(f's_mov_b32 {s_okv}, 0')
    p.seg('slow3')
    p.e(f'{name}_slow3:')
    for f in range(2): p.e(f'buffer_load_dwordx4 {K[0][4*f:4*f+4]}, {vl16}, {skv}, {s_okv} offen offset:{f * 1024}')
    for f in range(2): p.e(f'buffer_load_dwordx4 {V[0][4*f:4*f+4]}, {vl16}, {skv}, {s_okv} offen offset:{2048 + f * 1024}')
    for q in range(2):
        for f in range(2): p.e(qk(Sx[q], 0, q, f, C[q]))
    for q in range(2):
        for i in range(16): p.e(f'v_exp_f32 {Sx[q][i]}, {Sx[q][i]}')
        for i in range(8): p.e(cvt(q, i))
        p.add([pv(q, 0), pv(q, 1), rsum(q)])
    p.e(f's_add_u32 {s_okv}, {s_okv}, 4096\ns_cmp_lt_u32 {s_okv}, 262144\ns_cbranch_scc1 {name}_slow3')
    p.seg('slow4')
    lsum()
    p.e(f's_branch {name}_epi')
    for lab, cond, reload_ in spins:
        p.seg(lab)
        p.e(f'{lab}_spin:\ns_mov_b32 {s_cnt if lab.endswith("cnt") else s_spin}, {SPIN}\n{lab}_again:\ns_sleep 2')
        p.add(reload_)
        p.e('s_waitcnt vmcnt(0)\ns_nop 1')
        p.add(cond)
        r_ = s_cnt if lab.endswith('cnt') else s_spin
        p.e(f's_nop 4\ns_cbranch_vccz {lab}_ok\ns_sub_u32 {r_}, {r_}, 1\ns_cmp_lg_u32 {r_}, 0\ns_cbranch_scc1 {lab}_again\ns_branch {lab}_ok')
    p.seg('end')
    p.e(f'{name}_end:\ns_endpgm')
    mid = ['join', 'partA', 'loop', 'loop', 'tail']
    slow = ['slow0', 'slow1', 'slow1', 'slow2', 'slow3', 'slow3', 'slow4']
    traces = []
    for wc in range(2):
        for x in ([], ['pfx']):
            traces.append(['pro'] + x + ['pro2', f'c{wc}a', f'c{wc}loop', f'c{wc}loop', f'c{wc}last'] + mid + ['epi', 'red0', 'fin'])
    for w in range(4):
        traces.append(mid + (slow if w == 0 else []) + ['epi'] + [f'redn{i}' for i in range(w)] + [f'red{w}', 'fin'])
    for lab, _, _ in spins: traces.append([lab])
    p.auto_waits(traces)
    nn = p.hazards(traces)
    return kernel_header(name) + p.text(), kernel_desc(name), dict(nops=nn, v=va.p, a=aa.p, s=max(sa.p, s_hi))

if __name__ == '__main__':
    import sys
    NAME = 'gated_mix__softmax_full_mha__glu_gated_bilinear__prompt'
    REF = f'cdna_kernels/{NAME}.s.ref'
    dst = sys.argv[1]
    kw = {a.split('=')[0]: float(a.split('=')[1]) if '.' in a else int(a.split('=')[1]) for a in sys.argv[2:] if '=' in a}
    t, d, info = gen_fused(NAME + '_kernel', prof='prof' in sys.argv, force_slow='slow' in sys.argv, **kw)
    print(info, file=sys.stderr)
    head = [l for l in open(REF).read().split('\n') if l.startswith(';') and '@launch' not in l]
    out = '\n'.join(head) + f'\n; @launch grid=(256,1,1) block=(256,1,1) lds={F_LDS}\n.amdgcn_target "amdgcn-amd-amdhsa--gfx950"\n' + t + d
    open(dst, 'w').write(out)
```

```python
from gen_common import *

X0, X1, W0, W1, QS = 0, 32768, 65536, 106496, 147456
F_LDS = 163840
WS_FL = 33 << 20
DBG_CNT = 64
SPIN = 40000

def gen_fused(name, prof=False, pfd=4, cq=8, cg=6.5, cx=4, NB=8, DD=4, PM=38, HP=1.0, force_slow=False, ptrace=0, dbg=0, exp_=0, VSP=2, PFP=18, OC=8, KP=3, H0=7, ROT=0, CPF=1, st_mod=' sc1'):
    pfm = 1; xpf = 1
    p = Prog()
    sa = Alloc('s', 4, 102); va = Alloc('v', 1, 256); aa = Alloc('a', 0, 256)
    ptr = sa(16, 4)
    px, pqkv, pwo, pwg, pwu, pwd, pgw = ptr[0:2], ptr[2:4], ptr[4:6], ptr[8:10], ptr[10:12], ptr[12:14], ptr[14:16]
    pod = sa(4, 4); pout, pdbg = pod[0:2], pod[2:4]
    pws = sa(2); smask = sa(2)
    sws = sa(4); sfl = sa(4); sdbg = sa(4)
    s_mb, s_h, s_w, s_wr, s_wc, s_t0, s_t1, s_t2, s_cnt, s_tr, s_hb = [sa() for _ in range(11)]
    s_pt = sa(4, 2)
    s_base = sa.p
    sx = sa(4); sq = sa(4); sg = sa(4); spf = sa(4); sp2 = sa(4); sp3 = sa(4)
    s_c0, s_c1, s_ox, s_oq, s_og, s_pfo, s_pfs, s_gs, s_grp, s_ano = [sa() for _ in range(10)]
    m0x = [[sa() for _ in range(2)] for _ in range(2)]
    m0w = [[sa() for _ in range(3)] for _ in range(2)]
    s_hi = sa.p

    vl, vpd, vflag, vtr, vflk = [va() for _ in range(5)]
    v_base = va.p
    pf = Prof2(p, prof, s_pt, vtr, s_tr)
    vdx = [va() for _ in range(8)]; vdq = [va() for _ in range(2)]; vdq.append(vdq[0]); vdg = [va() for _ in range(7)]
    vxr = [va() for _ in range(2)]; vqr = [va() for _ in range(2)]; vgr = [va() for _ in range(2)]
    vt0, vt1, vt2, vt3, vpf = [va() for _ in range(5)]
    vcnt = va(); vwo = va()
    vtmp = va(28, 4)
    assert vtmp.a == 36
    xf = [[aa(4, 4) for _ in range(8)] for _ in range(2)]
    NSLOT = 4; DIST = 3
    wf = [aa(4, 4) for _ in range(NSLOT)]
    acc = [[None] * 8 for _ in range(10)]
    for n in [0, 1, 6, 7, 8, 9, 2, 3, 4, 5]:
        for m in range(8):
            acc[n][m] = va(4, 4) if va.p + 4 <= 256 else aa(4, 4)

    def dma_x(st):
        L = []
        for i in range(8):
            pre = [f's_mov_b32 m0, {m0x[st][i // 4]}'] if i % 4 == 0 else []
            L.append((pre, Ins(f'buffer_load_dwordx4 {vdx[i]}, {sx}, {s_ox} offen offset:{(i % 4) * 1024} lds', f'S{st}')))
        return L
    def dma_w(st):
        L = []
        for i in range(10):
            pre = [f's_mov_b32 m0, {m0w[st][i // 4]}'] if i % 4 == 0 else []
            v, sr, so = (vdq[i - 7], sq, s_oq) if i >= 7 else (vdg[i], sg, s_og)
            L.append((pre, Ins(f'buffer_load_dwordx4 {v}, {sr}, {so} offen offset:{(i % 4) * 1024} lds', f'S{st}')))
        return L
    def emit(lst):
        for pre, ins in lst:
            p.add(pre); p.add([ins])
    adv = [f's_add_u32 {s_oq}, {s_oq}, {64 * 6144}', f's_add_u32 {s_og}, {s_og}, {64 * 7168}', f's_add_u32 {s_ox}, {s_ox}, 128']

    p.seg('pro')
    p.e(f"""
    s_cmp_ge_u32 s2, 256
    s_cbranch_scc1 {name}_end
    s_load_dwordx16 {ptr}, s[0:1], 0
    s_load_dwordx4 {pod}, s[0:1], 64
    s_load_dwordx2 {pws}, s[0:1], 80
    v_lshrrev_b32 {vt0}, 6, v0
    v_and_b32 {vl}, 63, v0
    s_lshr_b32 {s_t1}, s2, 3
    v_readfirstlane_b32 {s_w}, {vt0}
    s_and_b32 {s_mb}, {s_t1}, 7
    s_and_b32 {s_t0}, s2, 7
    s_lshr_b32 {s_t1}, {s_t1}, 3
    s_lshl_b32 {s_h}, {s_t0}, 2
    s_add_u32 {s_h}, {s_h}, {s_t1}
    s_lshr_b32 {s_wr}, {s_w}, 1
    s_and_b32 {s_wc}, {s_w}, 1
    """)
    if xpf:
        p.e(f"""
        v_and_b32 {vt0}, 7, {vl}
        v_lshrrev_b32 {vt1}, 3, {vl}
        v_mul_u32_u24 {vt2}, 86, {vt1}
        v_lshrrev_b32 {vt2}, 8, {vt2}
        v_mad_i32_i24 {vt1}, {vt2}, -3, {vt1}
        v_lshl_add_u32 {vt0}, {vt2}, 6, {vt0}
        s_lshl_b32 {s_t0}, {s_mb}, 3
        v_add_u32 {vt0}, {s_t0}, {vt0}
        s_cmp_eq_u32 {s_w}, 3
        s_movk_i32 {s_c0}, 7168
        s_cmov_b32 {s_c0}, 6144
        s_movk_i32 {s_c1}, 108
        s_cmov_b32 {s_c1}, 2048
        v_mul_u32_u24 {vt0}, {s_c0}, {vt0}
        v_mad_u32_u24 {vpf}, {vt1}, {s_c1}, {vt0}
        v_cmp_gt_u32 vcc, 48, {vl}
        s_lshl_b32 {s_t0}, {s_t1}, 17
        v_lshl_add_u32 {vt0}, {vl}, 11, {s_t0}
        v_cndmask_b32 {vpf}, 2.0, {vpf}, vcc
        s_cmp_eq_u32 {s_w}, 0
        s_cselect_b64 vcc, -1, 0
        v_cndmask_b32 {vpf}, {vpf}, {vt0}, vcc
        v_cndmask_b32 {vt3}, 2.0, {vt0}, vcc
        """)
    p.e(f"""
    s_lshl_b32 {s_t0}, {s_mb}, 19
    s_lshl_b32 {s_t1}, {s_h}, 6
    s_mul_i32 {s_t2}, {s_h}, 224
    s_waitcnt lgkmcnt(0)
    """)
    pf.stamp(0)
    pf.trace_init(vtr, s_tr)
    srd(p, sx, px, off_s=s_t0, size=S * D * 2, size_s=s_t0)
    srd(p, sq, pqkv, off_s=s_t1, size=D * 3072 * 2, size_s=s_t1)
    p.e(f"""
    s_cmp_ge_u32 {s_w}, 2
    s_cselect_b32 {s_t0}, {pwu[0]}, {pwg[0]}
    s_cselect_b32 {s_t1}, {pwu[1]}, {pwg[1]}
    s_add_u32 {sg[0]}, {s_t0}, {s_t2}
    s_addc_u32 {sg[1]}, {s_t1}, 0
    s_sub_u32 {sg[2]}, {D * F * 2}, {s_t2}
    s_mov_b32 {sg[3]}, 0x00020000
    """)
    if xpf:
        p.e(f"""
        s_cmp_eq_u32 {s_w}, 3
        s_cselect_b64 {spf[0:2]}, {sq[0:2]}, {sg[0:2]}
        s_cselect_b32 {spf[2]}, {sq[2]}, {sg[2]}
        s_cmp_eq_u32 {s_w}, 0
        s_cselect_b64 {spf[0:2]}, {sx[0:2]}, {spf[0:2]}
        s_cselect_b32 {spf[2]}, {sx[2]}, {spf[2]}
        s_mov_b32 {spf[3]}, 0x00020000
        """)
        p.add([Ins(f'buffer_load_dword {vpd}, {vpf}, {spf}, 0 offen', 'pf')])
        if xpf > 1: p.add([Ins(f'buffer_load_dword {vpd}, {vt3}, {spf}, 0 offen offset:128', 'pf')])
    if ptrace > 0: pf.trace()
    p.e(f"""
    v_lshrrev_b32 {vt0}, 3, {vl}
    v_and_b32 {vt1}, 7, {vl}
    v_lshrrev_b32 {vt2}, 4, {vl}
    v_xor_b32 {vt1}, {vt1}, {vt2}
    v_lshlrev_b32 {vt3}, 11, {vt0}
    s_lshl_b32 {s_t0}, {s_w}, 17
    v_add_u32 {vt3}, {s_t0}, {vt3}
    v_lshl_add_u32 {vdx[0]}, {vt1}, 4, {vt3}
    v_xor_b32 {vt1}, 4, {vt1}
    v_lshl_add_u32 {vdx[1]}, {vt1}, 4, {vt3}
    v_add_u32 {vdx[1]}, {16384 - 1024}, {vdx[1]}
    s_lshl_b32 {m0x[0][0]}, {s_w}, 13
    s_add_u32 {m0x[0][1]}, {m0x[0][0]}, 4096
    s_mov_b32 {s_ox}, 0
    """)
    for i in range(2, 8):
        p.e(f'v_add_u32 {vdx[i]}, {(i - i % 2) * 16384 - (i % 4 - i % 2) * 1024}, {vdx[i % 2]}')
    emit(dma_x(0))
    if ptrace > 0: pf.trace()
    p.e(f"""
    v_lshrrev_b32 {vt0}, 2, {vl}
    v_lshrrev_b32 {vt2}, 4, {vl}
    v_and_b32 {vt2}, 2, {vt2}
    v_and_b32 {vt1}, 3, {vl}
    v_xor_b32 {vt1}, {vt1}, {vt2}
    s_lshl_b32 {s_t1}, {s_w}, 4
    v_add_u32 {vt0}, {s_t1}, {vt0}
    v_mul_u32_u24 {vt0}, 6144, {vt0}
    v_lshl_add_u32 {vdq[1]}, {vt1}, 4, {vt0}
    v_add_u32 {vdq[0]}, 1024, {vdq[1]}
    s_mul_i32 {s_t1}, {s_w}, 10240
    s_mov_b32 {s_oq}, 0
    s_mov_b32 {s_og}, 0
    """)
    for st in range(2):
        for j in range(3): p.e(f's_add_u32 {m0w[st][j]}, {s_t1}, {(W0, W1)[st] + j * 4096}')
    w0 = dma_w(0)
    p.e(f's_mov_b32 m0, {m0w[0][1]}')
    emit(w0[7:])
    p.e(f"""
    s_mul_i32 {s_t0}, {s_wc}, {32 * 7168}
    s_movk_i32 {s_c0}, 6944
    s_movk_i32 {s_c1}, 28672
    v_mul_u32_u24 {vt3}, 4682, {vl}
    v_lshl_add_u32 {vpf}, {vl}, 4, {s_t0}
    """)
    for j in range(7):
        imm = (j % 4) * 1024
        tj = vt3
        if j:
            p.e(f'v_add_u32 {vt0}, {64 * j * 4682}, {vt3}'); tj = vt0
        p.e(f"""
        v_bfe_u32 {vt1}, {tj}, 18, 1
        v_bfe_u32 {vt2}, {tj}, 19, 1
        v_lshrrev_b32 {vt0}, 16, {tj}
        v_sub_u32 {vt1}, {vt1}, {vt2}
        v_mad_u32_u24 {vdg[j]}, {vt0}, {s_c0}, {vpf}
        v_mad_i32_i24 {vdg[j]}, {vt1}, {s_c1}, {vdg[j]}
        """)
        if j == 3: p.e(f'v_add_u32 {vpf}, 4096, {vpf}')
        emit([w0[j]])
    p.add(adv)
    if ptrace > 0: pf.trace()
    gx = [vtmp[4 * i:4 * i + 4] for i in range(4)]; gw = [vtmp[16:20], vtmp[20:24]]; t = vtmp[24:28]; z = [vt0, vt1]
    p.e(f's_mov_b32 {sp2[3]}, 0x00020000')
    gate_pre = [f's_mov_b32 {spf[0]}, {pgw[0]}', f's_mov_b32 {spf[1]}, {pgw[1]}', f's_movk_i32 {spf[2]}, 2048']
    p.e(f"""
    s_lshl_b32 {s_t0}, {s_h}, 3
    s_lshl_b32 {s_t1}, {s_w}, 1
    s_add_u32 {s_t0}, {s_t0}, {s_t1}
    s_lshl_b32 {s_t2}, {s_t0}, 11
    s_add_u32 {m0x[1][0]}, {m0x[0][0]}, {X1}
    s_add_u32 {m0x[1][1]}, {m0x[0][0]}, {X1 + 4096}
    """)
    gate_loads = [f'buffer_load_dwordx4 {gw[0]}, {z[0]}, {spf}, 0 offen', f'buffer_load_dwordx4 {gw[1]}, {z[0]}, {spf}, 0 offen offset:16'] + \
                 [f'buffer_load_dwordx4 {gx[i]}, {z[0]}, {sx}, {s_t2} offen offset:{(i // 2) * 2048 + (i % 2) * 16}' for i in range(4)]
    PD = pfd
    def pfetch():
        return [Ins(f'buffer_load_dword {vpd}, {vpf}, {spf}, {s_pfo} offen', 'pf'), f's_add_u32 {s_pfo}, {s_pfo}, {s_pfs}']
    def pfetch_d():
        return [Ins(f'buffer_load_dword {vpd}, {vt3}, {sp2}, {s_c1} offen', 'pf'), f's_add_u32 {s_c1}, {s_c1}, {4096 * 128}']
    if pfm:
        p.e(f"""
        s_cmp_eq_u32 {s_w}, 0
        s_cselect_b32 {spf[0]}, {pqkv[0]}, {pwg[0]}
        s_cselect_b32 {spf[1]}, {pqkv[1]}, {pwg[1]}
        s_cselect_b32 {s_t0}, 12, 14
        s_cmp_eq_u32 {s_w}, 2
        s_cselect_b32 {spf[0]}, {pwu[0]}, {spf[0]}
        s_cselect_b32 {spf[1]}, {pwu[1]}, {spf[1]}
        s_lshl_b32 {spf[2]}, {s_t0}, 19
        s_lshl_b32 {s_pfs}, {s_t0}, 15
        s_mul_i32 {s_t1}, {s_t0}, s2
        v_and_b32 {vt1}, 15, {vl}
        v_add_u32 {vt0}, {s_t1}, {vt1}
        v_lshlrev_b32 {vpf}, 7, {vt0}
        v_cmp_gt_u32 vcc, {s_t0}, {vt1}
        v_cndmask_b32 {vpf}, 2.0, {vpf}, vcc
        s_mov_b32 {spf[3]}, 0x00020000
        s_cmp_lg_u32 {s_w}, 3
        s_cbranch_scc1 {name}_pf0
        """)
        p.seg('pfx')
        p.e(f"""
        s_mov_b32 {spf[0]}, {px[0]}
        s_mov_b32 {spf[1]}, {px[1]}
        s_mov_b32 {spf[2]}, {S * D * 2}
        s_movk_i32 {s_pfs}, 128
        s_lshl_b32 {s_t1}, s2, 14
        v_lshl_add_u32 {vpf}, {vt1}, 11, {s_t1}
        v_cmp_gt_u32 vcc, 8, {vt1}
        v_cndmask_b32 {vpf}, 2.0, {vpf}, vcc
        """)
        p.seg('pro2')
        p.e(f"""
        {name}_pf0:
        v_lshrrev_b32 {vt0}, 4, {vl}
        v_mul_lo_u32 {vt0}, {vt0}, {s_pfs}
        v_add_u32 {vt0}, {vt0}, {vpf}
        v_cmp_eq_u32 vcc, 2.0, {vpf}
        v_cndmask_b32 {vt0}, {vt0}, {vpf}, vcc
        v_cmp_gt_u32 vcc, {16 * (PD - (2 if xpf > 1 else 1))}, {vl}
        v_cndmask_b32 {vt0}, 2.0, {vt0}, vcc
        s_lshl_b32 {s_pfo}, {s_pfs}, {1 if xpf > 1 else 0}
        """)
        p.add([Ins(f'buffer_load_dword {vpd}, {vt0}, {spf}, {s_pfo} offen', 'pf')])
        p.e(f"""
        v_cmp_gt_u32 vcc, 16, {vl}
        v_cndmask_b32 {vpf}, 2.0, {vpf}, vcc
        s_mul_i32 {s_pfo}, {s_pfs}, {PD}
        """)
    else:
        p.seg('pfx'); p.seg('pro2')
    if ptrace > 0: pf.trace()
    srd(p, sws, pws, size=WS_SIZE)
    srd(p, sfl, pws, off_imm=WS_FL, size=8192)
    p.e(f"""
    s_lshl_b32 {s_t0}, {s_mb}, 5
    s_add_u32 {s_t0}, {s_t0}, {s_h}
    s_lshl_b32 {s_t0}, {s_t0}, 2
    s_add_u32 {s_t0}, {s_t0}, {s_w}
    s_lshl_b32 {s_t0}, {s_t0}, 2
    v_mov_b32 {vt0}, {s_t0}
    v_cmp_eq_u32 vcc, 0, {vl}
    v_mov_b32 {vt1}, 0
    v_cndmask_b32 {vflag}, 2.0, {vt0}, vcc
    s_lshl_b32 {s_t0}, {s_h}, 3
    s_add_u32 {s_t0}, {s_t0}, {s_mb}
    s_lshl_b32 {s_t0}, {s_t0}, 2
    s_add_u32 {s_t0}, {s_t0}, {s_w}
    s_lshl_b32 {s_t0}, {s_t0}, 2
    s_add_u32 {s_t0}, {s_t0}, 4096
    v_mov_b32 {vt0}, {s_t0}
    buffer_store_dword {vt1}, {vflag}, {sfl}, 0 offen sc1
    v_cndmask_b32 {vflk}, 2.0, {vt0}, vcc
    buffer_store_dword {vt1}, {vflk}, {sfl}, 0 offen sc1
    """)
    p.e(f"""
    v_and_b32 {vt0}, 15, {vl}
    v_lshrrev_b32 {vt1}, 4, {vl}
    v_lshrrev_b32 {vt2}, 1, {vt0}
    v_xor_b32 {vt2}, {vt1}, {vt2}
    s_lshl_b32 {s_t0}, {s_wr}, 14
    v_lshl_add_u32 {vt3}, {vt0}, 7, {s_t0}
    v_lshl_add_u32 {vxr[0]}, {vt2}, 4, {vt3}
    v_xor_b32 {vxr[1]}, 64, {vxr[0]}
    v_and_b32 {vt3}, 3, {vt0}
    v_lshlrev_b32 {vt3}, 3, {vt3}
    v_lshrrev_b32 {vt0}, 2, {vt0}
    v_lshrrev_b32 {vt2}, 1, {vt1}
    v_and_b32 {vt1}, 1, {vt1}
    v_mul_u32_u24 {vqr[0]}, 10240, {vt2}
    v_mul_u32_u24 {vqr[1]}, {512 + 32}, {vt1}
    v_add3_u32 {vqr[0]}, {vqr[0]}, {vqr[1]}, {vt3}
    v_lshl_add_u32 {vqr[0]}, {vt0}, 6, {vqr[0]}
    s_lshl_b32 {s_t0}, {s_wc}, 10
    s_sub_u32 {s_t0}, {W0 + 8192}, {s_t0}
    v_add_u32 {vqr[0]}, {s_t0}, {vqr[0]}
    v_xor_b32 {vqr[1]}, 32, {vqr[0]}
    v_lshl_add_u32 {vt0}, {vt1}, 2, {vt0}
    v_lshl_add_u32 {vt0}, {vt2}, 4, {vt0}
    v_mul_u32_u24 {vt0}, 224, {vt0}
    s_mul_i32 {s_t0}, {s_wc}, 96
    s_add_u32 {s_t0}, {s_t0}, {W0}
    v_add3_u32 {vgr[0]}, {vt0}, {vt3}, {s_t0}
    v_add_u32 {vgr[1]}, 20480, {vgr[0]}
    s_lshl_b32 {s_t0}, {s_mb}, 5
    s_add_u32 {s_t0}, {s_t0}, {s_h}
    s_lshl_b32 {s_t0}, {s_t0}, 7
    s_lshl_b32 {s_t1}, {s_w}, 3
    s_add_u32 {s_t0}, {s_t0}, {s_t1}
    s_add_u32 {s_gs}, {s_t0}, {WS_G}
    v_lshlrev_b32 {z[0]}, 5, {vl}
    """)
    if ptrace > 0: pf.trace()
    p.e('WAITTAG S0')
    if ptrace > 0: pf.trace()
    p.e('s_barrier')
    if ptrace > 0: pf.trace()
    pf.stamp(1)

    def gate_ops():
        L = []
        for r in range(2):
            for j in range(8):
                xr = gx[2 * r + j // 4][j % 4]; wr_ = gw[j // 4][j % 4]
                L += [f'v_lshlrev_b32 {t[0]}, 16, {xr}', f'v_lshlrev_b32 {t[1]}, 16, {wr_}',
                      f'v_and_b32 {t[2]}, 0xffff0000, {xr}', f'v_and_b32 {t[3]}, 0xffff0000, {wr_}',
                      f'v_mul_f32 {t[0]}, {t[0]}, {t[1]}', f'v_mul_f32 {t[2]}, {t[2]}, {t[3]}',
                      f'v_cvt_pk_bf16_f32 {t[0]}, {t[0]}, {t[2]}', f'v_lshlrev_b32 {t[1]}, 16, {t[0]}',
                      f'v_and_b32 {t[2]}, 0xffff0000, {t[0]}']
                if j == 0: L.append(f'v_add_f32 {z[r]}, {t[1]}, {t[2]}')
                else: L += [f'v_add_f32 {t[1]}, {t[1]}, {t[2]}', f'v_add_f32 {z[r]}, {z[r]}, {t[1]}']
        for mode in ('quad_perm:[1,0,3,2]', 'quad_perm:[2,3,0,1]', 'row_half_mirror', 'row_mirror'):
            for r in range(2): L.append(f'v_add_f32_dpp {z[r]}, {z[r]}, {z[r]} {mode} row_mask:0xf bank_mask:0xf')
        for op in ('v_permlane16_swap_b32', 'v_permlane32_swap_b32'):
            for r in range(2): L.append(f'v_mov_b32 {t[r]}, {z[r]}')
            for r in range(2): L.append(f'{op} {t[r]}, {z[r]}')
            for r in range(2): L.append(f'v_add_f32 {z[r]}, {z[r]}, {t[r]}')
        L += f"""v_and_b32 {t[1]}, 1, {vl}
        v_cmp_eq_u32 vcc, 1, {t[1]}
        v_and_b32 {t[3]}, 2, {vl}
        v_cndmask_b32 {t[0]}, {z[0]}, {z[1]}, vcc
        v_cvt_pk_bf16_f32 {t[0]}, {t[0]}, {t[0]}
        v_and_b32 {t[0]}, 0xffff0000, {t[0]}
        v_mul_f32 {t[0]}, {hex(f32bits(-math.log2(math.e)))}, {t[0]}
        v_exp_f32 {t[0]}, {t[0]}
        v_cmp_eq_u32 vcc, 2, {t[3]}
        v_add_f32 {t[0]}, 1.0, {t[0]}
        v_rcp_f32 {t[0]}, {t[0]}
        v_lshlrev_b32 {t[3]}, 4, {t[3]}
        v_cvt_pk_bf16_f32 {t[0]}, {t[0]}, {t[0]}
        v_and_b32 {t[0]}, 0xffff0000, {t[0]}
        v_sub_f32 {t[2]}, 1.0, {t[0]}
        v_cvt_pk_bf16_f32 {t[2]}, {t[2]}, {t[2]}
        v_and_b32 {t[2]}, 0xffff0000, {t[2]}
        v_cndmask_b32 {t[0]}, {t[0]}, {t[2]}, vcc
        v_lshl_add_u32 {t[3]}, {t[1]}, 2, {t[3]}
        v_cmp_gt_u32 vcc, 4, {vl}
        v_cndmask_b32 {t[3]}, 2.0, {t[3]}, vcc
        buffer_store_dword {t[0]}, {t[3]}, {sws}, {s_gs} offen{st_mod}""".split('\n')
        return [x.strip() for x in L]

    def wread(j, st, wc):
        ks, n = divmod(j, 10)
        slot = wf[j % NSLOT]
        nq = 4 if wc == 0 else 2
        if n < nq: base = vqr[n % 2]; off = ks * 20480 + (1024 if (wc == 0 and n < 2) else 0); so = 256
        else: base = vgr[(n - nq) % 2]; off = ks * 10240 + ((n - nq) // 2) * 32; so = 1792
        off += st * (W1 - W0)
        return [f'ds_read_b64_tr_b16 {slot[2 * s:2 * s + 2]}, {base} offset:{off + s * so}' for s in range(2)]
    def xread(m, ks, st):
        return f'ds_read_b128 {xf[ks][m]}, {vxr[ks]} offset:{st * (X1 - X0) + m * 2048}'

    for m in range(8): p.e(xread(m, 0, 0))
    p.e(f's_cmp_eq_u32 {s_wc}, 1')
    p.e(f's_cbranch_scc1 {name}_c1')

    def stage(st, wc, first=False, last=False, extra=None, fill=None, estep=2, postbar=None, nodma1=False, early=None):
        slots = {}
        for j in range(20):
            jj = j + DIST
            if jj < 20: rd = wread(jj, st, wc)
            elif last: continue
            else: rd = wread(jj - 20, st ^ 1, wc)
            place(slots, 8 * j + 0, rd[0]); place(slots, 8 * j + 2, rd[1])
        for m in range(8): place(slots, 8 * (1 + m) + 4, xread(m, 1, st))
        bar = 8 * (20 - DIST)
        if not last:
            for m, c in enumerate((1, 3, 4, 6, 9, 11, 12, 14)): place(slots, bar + c, xread(m, 0, st ^ 1))
        pos = []; c = 1.0
        for k in range(18):
            pos.append(int(c)); c += cg if k < 7 else (cq if k < 10 else cx)
        endc = int(c) - (160 - bar)
        if first:
            pos = [x + 160 - bar for x in pos]; endc += 160 - bar
        if not last:
            dl = dma_w(st ^ 1) + dma_x(st ^ 1)
            for k in range(18):
                c = pos[k] - (160 - bar)
                if c < 0: continue
                for x in dl[k][0]: place(slots, max(c - 1, 0), x)
                place(slots, c, dl[k][1])
            for i, x in enumerate(adv): place(slots, endc - 2 + i, x)
            if first: pos = [x - (160 - bar) for x in pos]
            dl = dma_w(st) + dma_x(st)
            for k in range(18):
                c = bar + pos[k]
                if c >= 160 or nodma1: continue
                for x in dl[k][0]: place(slots, c - 1, x)
                place(slots, c, dl[k][1])
        if early:
            c = (pos[PFP] - (0 if first else 160 - bar) - 2) if PFP < 18 else endc + 1
            for x in early: place(slots, max(c, 0), x); c += 1
            if PFP >= 18: endc = c + 1
        c = endc + 1
        for x in (extra or []):
            if isinstance(x, list):
                for y in x: place(slots, c, y)
                c += estep; continue
            place(slots, c, x)
            c += 3 if (isinstance(x, Ins) or x.startswith('buffer')) else estep
        assert c < bar
        for i, x in enumerate(postbar or []): place(slots, bar + 15 + i, x)
        fill = [x if isinstance(x, tuple) else (0, x) for x in (fill or [])]
        for c in range(160):
            ks, r = divmod(c, 80); n, mi = divmod(r, 8)
            m = mi if n % 2 == 0 else 7 - mi
            if c == 0 and not first: p.e('s_waitcnt lgkmcnt(2)')
            if c == bar and not last:
                p.e(f'WAITTAG S{st ^ 1} LGKM0')
                p.e('s_barrier')
                if ptrace > 1: pf.trace()
            w = wf[(ks * 10 + n) % NSLOT]; x = xf[ks][m]
            a, b = (x, w) if (wc == 1 and n < 2) else (w, x)
            cin = '0' if (first and ks == 0) else str(acc[n][m])
            p.e(f'v_mfma_f32_16x16x32_bf16 {acc[n][m]}, {a}, {b}, {cin}')
            here = slots.get(c, [])
            p.add(here)
            if c >= 1:
                for _ in range(2 - len(here)):
                    if fill and fill[0][0] <= c: p.add([fill.pop(0)[1]])
        return [x[1] for x in fill]

    def toreg(tile, tmp):
        if tile.k == 'v': return tile
        for i in range(4): p.e(f'v_accvgpr_read_b32 {tmp[i]}, {tile[i]}')
        return tmp
    def pack(o, t0, t1):
        p.e(f'v_cvt_pk_bf16_f32 {o[0]}, {t0[0]}, {t0[1]}\nv_cvt_pk_bf16_f32 {o[1]}, {t0[2]}, {t0[3]}')
        p.e(f'v_cvt_pk_bf16_f32 {o[2]}, {t1[0]}, {t1[1]}\nv_cvt_pk_bf16_f32 {o[3]}, {t1[2]}, {t1[3]}')

    def pf_setup():
        L = f"""s_lshl_b32 {s_t0}, s2, 2
        s_add_u32 {s_t0}, {s_t0}, {s_w}
        s_lshl_b32 {s_t1}, {s_t0}, 9
        v_lshl_add_u32 {vt3}, {vl}, 7, {s_t1}
        v_cmp_gt_u32 vcc, 4, {vl}
        s_mov_b32 {sp2[0]}, {pwd[0]}
        s_mov_b32 {sp2[1]}, {pwd[1]}
        s_mov_b32 {sp2[2]}, {F * D * 2}
        v_cndmask_b32 {vt3}, 2.0, {vt3}, vcc
        s_mov_b32 {s_c1}, 0""".split('\n')
        return [x.strip() for x in L]
    def pf3_setup():
        L = f"""s_mov_b32 {sp3[0]}, {pgw[0]}
        s_mov_b32 {sp3[1]}, {pgw[1]}
        s_movk_i32 {sp3[2]}, 2048
        s_mov_b32 {sp3[3]}, 0x00020000
        v_lshlrev_b32 {vwo}, 7, {vl}""".split('\n')
        L2 = f"""s_lshl_b32 {s_t0}, s2, 2
        s_add_u32 {s_t0}, {s_t0}, {s_w}
        s_lshl_b32 {s_t1}, {s_t0}, 11
        v_lshl_add_u32 {vwo}, {vl}, 7, {s_t1}
        v_cmp_gt_u32 {smask}, 16, {vl}
        s_mov_b32 {sp3[0]}, {pwo[0]}
        s_mov_b32 {sp3[1]}, {pwo[1]}
        s_mov_b32 {sp3[2]}, {D * D * 2}
        v_cndmask_b32 {vwo}, 2.0, {vwo}, {smask}""".split('\n')
        return [x.strip() for x in L] + [Ins(f'buffer_load_dword {vpd}, {vwo}, {sp3}, 0 offen', 'pf')] + [x.strip() for x in L2]
    pf_wo = [f's_cmp_eq_u32 {s_cnt}, 2', f's_cselect_b32 {s_t0}, 0, 2.0', Ins(f'buffer_load_dword {vpd}, {vwo}, {sp3}, {s_t0} offen', 'pf')]
    gate_sel = [f's_cmp_eq_u32 {s_cnt}, 0', f's_cselect_b32 {s_t0}, {s_t2}, 2.0', f's_cselect_b32 {s_t1}, 0, 2.0',
                f's_cselect_b32 {sp3[0]}, {pgw[0]}, {sp3[0]}', f's_cselect_b32 {sp3[1]}, {pgw[1]}, {sp3[1]}', f's_cselect_b32 {sp3[2]}, 0x800, {sp3[2]}']
    gate_loads = [f'buffer_load_dwordx4 {gw[i]}, {z[0]}, {sp3}, {s_t1} offen offset:{16 * i}' for i in range(2)] + \
                 [f'buffer_load_dwordx4 {gx[i]}, {z[0]}, {sx}, {s_t0} offen offset:{(i // 2) * 2048 + (i % 2) * 16}' for i in range(4)]

    spins = []
    def check(cond_lines, reload_lines, tag):
        lab = f'{name}_{tag}'
        spins.append((lab, cond_lines, reload_lines))
        return cond_lines + [f's_cbranch_vccnz {lab}_spin', f'{lab}_ok:']

    def lines(s): return [x.strip() for x in s.strip().split('\n')]
    def rd(tile, tmp):
        if tile.k == 'v': return tile, []
        return tmp, [f'v_accvgpr_read_b32 {tmp[i]}, {tile[i]}' for i in range(4)]
    def packl(o, t0, t1):
        return [f'v_cvt_pk_bf16_f32 {o[0]}, {t0[0]}, {t0[1]}', f'v_cvt_pk_bf16_f32 {o[1]}, {t0[2]}, {t0[3]}',
                f'v_cvt_pk_bf16_f32 {o[2]}, {t1[0]}, {t1[1]}', f'v_cvt_pk_bf16_f32 {o[3]}, {t1[2]}, {t1[3]}']
    def mul4(d, a_, b_, pk):
        if pk: return [f'v_pk_mul_f32 {d[2*i:2*i+2]}, {a_[2*i:2*i+2]}, {b_ if b_.k == "s" else b_[2*i:2*i+2]}' for i in range(2)]
        return [f'v_mul_f32 {d[i]}, {b_[0] if b_.k == "s" else b_[i]}, {a_[i]}' for i in range(4)]
    def hpiece(n, j, o, pk):
        L = []; tt = []
        for mm in range(2):
            g_, l0 = rd(acc[n][2 * j + mm], vtmp[8 * mm:8 * mm + 4]); u_, l1 = rd(acc[n + 1][2 * j + mm], vtmp[8 * mm + 4:8 * mm + 8])
            L += l0 + l1 + mul4(g_, g_, u_, pk); tt.append(g_)
        return L + packl(o, tt[0], tt[1]) + [f'v_permlane16_swap_b32 {o[0]}, {o[2]}', f'v_permlane16_swap_b32 {o[1]}, {o[3]}']
    hreg = [acc[7][2 * j] for j in range(4)] + [acc[6][2 * j] for j in range(4)] + [acc[8][2 * j] for j in range(4)]

    vq = vdx[0]; vh = vdx[1]; vql = vdx[2]; vqq = vdx[3]
    s_b, s_qs = s_oq, R('s', sx.a, 2)
    def epi_setup(wc):
        L = lines(f"""
        v_and_b32 {vt0}, 15, {vl}
        v_lshrrev_b32 {vt1}, 4, {vl}
        v_lshlrev_b32 {vq}, 9, {vt1}
        v_lshlrev_b32 {vh}, 4, {vl}
        s_lshl_b32 {s_t0}, {s_h}, 6
        s_lshl_b32 {s_t1}, {s_mb}, 3
        s_add_u32 {s_t0}, {s_t0}, {s_t1}
        s_lshl_b32 {s_t1}, {s_wr}, 2
        s_add_u32 {s_t0}, {s_t0}, {s_t1}
        s_lshl_b32 {s_b}, {s_t0}, 12
        s_add_u32 {s_b}, {s_b}, {WS_KV}
        s_add_u32 {s_og}, {s_b}, 4096
        s_add_u32 {s_ox}, {s_b}, 8192
        s_add_u32 {s_c0}, {s_b}, 12288
        s_lshl_b32 {s_t0}, {s_mb}, 1
        s_add_u32 {s_t0}, {s_t0}, {s_wr}
        s_mul_i32 {s_t0}, {s_t0}, 288
        s_mul_i32 {s_t1}, {s_h}, 7
        s_add_u32 {s_t0}, {s_t0}, {s_t1}
        s_lshl_b32 {s_t0}, {s_t0}, 12
        s_add_u32 {s_hb}, {s_t0}, {WS_A + 4 * 4096 * wc}
        s_sub_u32 {s_c1}, {s_hb}, 4096
        s_lshl_b32 {s_t1}, {s_wr}, 14""")
        if wc == 0:
            L += lines(f"""
            v_lshrrev_b32 {vt2}, 3, {vt0}
            v_lshl_add_u32 {vq}, {vt2}, 8, {vq}
            v_and_b32 {vt2}, 7, {vt0}
            v_lshl_add_u32 {vq}, {vt2}, 4, {vq}
            v_add_u32 {vql}, {s_t1}, {vq}
            s_lshl_b32 {s_t1}, {s_wr}, 13
            s_add_u32 {s_t1}, {s_t1}, {QS}
            v_add_u32 {vqq}, {s_t1}, {vq}
            s_mov_b32 {s_qs[0]}, {hex(f32bits(QSCALE))}
            s_mov_b32 {s_qs[1]}, {s_qs[0]}""")
        else:
            L += [f'v_lshl_add_u32 {vq}, {vt0}, 4, {vq}', f'v_add_u32 {vql}, {s_t1}, {vq}']
        return L
    kvb = [s_b, s_og, s_ox, s_c0]
    def epi_early(wc, npk):
        F_ = []
        outs = [vtmp[16 + 4 * i:20 + 4 * i] for i in range(3)]
        if wc == 0:
            for m in range(7, -1, -1):
                o = acc[0][m]
                L = packl(o, acc[0][m], acc[1][m]) + [Ins(f'buffer_store_dwordx4 {o}, {vq}, {sws}, {kvb[m // 2]} offen offset:{(m % 2) * 128}{st_mod}', 'KVST'),
                                                       f'ds_write_b128 {vql}, {o} offset:{(m // 2) * 4096 + (m % 2) * 128}']
                F_ += [(88 + (7 - m) + 4, x) for x in L]
            for i, m in enumerate(range(7, -1, -1)):
                o = outs[i % 3]
                t0, l0 = rd(acc[2][m], vtmp[0:4]); t1, l1 = rd(acc[3][m], vtmp[4:8])
                L = l0 + l1 + mul4(t0, t0, s_qs, i >= npk) + mul4(t1, t1, s_qs, i >= npk) + packl(o, t0, t1) + [f'ds_write_b128 {vqq}, {o} offset:{(m // 2) * 2048 + (m % 2) * 128}']
                F_ += [(104 + (7 - m) + 4, x) for x in L]
        else:
            for nt, js in ((0, range(4)), (1, range(3, -1, -1))):
                for j in js:
                    o = acc[nt][2 * j]
                    L = packl(o, acc[nt][2 * j], acc[nt][2 * j + 1]) + [Ins(f'buffer_store_dwordx4 {o}, {vq}, {sws}, {kvb[j]} offen offset:{2048 + nt * 256}{st_mod}', 'KVST'),
                                                                         f'ds_write_b128 {vql}, {o} offset:{j * 4096 + 2048 + nt * 256}']
                    F_ += [((81 + 2 * j if nt == 0 else 95 - 2 * j) + 4, x) for x in L]
            for i, j in enumerate(range(3, -1, -1)):
                o = outs[i % 3]
                L = hpiece(2, j, o, i >= npk) + [Ins(f'buffer_store_dwordx4 {o}, {vh}, {sws}, {s_c1} offen offset:{j * 1024}{st_mod}', 'HST')]
                F_ += [(111 - 2 * j + 4, x) for x in L]
        return F_
    def epi_late():
        for j in range(4): p.add(hpiece(6, j, hreg[4 + j], True))
        p.add([f'v_mov_b32 {vt0}, 1', 'WAITTAG KVST', Ins(f'buffer_store_dword {vt0}, {vflk}, {sfl}, 0 offen sc1', 'FL')])
        for j in range(4): p.add(hpiece(4, j, hreg[j], True))
        for j in range(4): p.add(hpiece(8, j, hreg[8 + j], True))

    announce_setup = lines(f"""
        s_mov_b32 {sdbg[0]}, {pdbg[0]}
        s_mov_b32 {sdbg[1]}, {pdbg[1]}
        s_movk_i32 {sdbg[2]}, 256
        s_mov_b32 {sdbg[3]}, 0x00020000
        s_and_b32 {s_ano}, s2, 7
        s_lshl_b32 {s_ano}, {s_ano}, 2
        s_and_b32 {s_grp}, {s_mb}, 3
        s_add_u32 {s_grp}, {s_grp}, 3
        v_mov_b32 {vt2}, 1
        v_cmp_eq_u32 {smask}, 0, v0
        v_cndmask_b32 {vt1}, 2.0, 0, {smask}""")
    announce = [f's_cmp_eq_u32 {s_cnt}, {s_grp}', f's_cselect_b32 {s_t0}, {s_ano}, 2.0',
                f'buffer_atomic_add {vt2}, {vt1}, {sdbg}, {s_t0} offen offset:{DBG_CNT} sc1']
    cnt_addr = [f'v_and_b32 {vpf}, 7, {vl}', f'v_lshlrev_b32 {vpf}, 2, {vpf}']
    cnt_load = f'buffer_load_dword {vcnt}, {vpf}, {sdbg}, 0 offen offset:{DBG_CNT} sc1'

    def code_pf(wc):
        lab = f'{name}_pc{wc}'
        return [[f's_getpc_b64 {sp3[0:2]}', f'{lab}:'], f's_and_b32 {sp3[1]}, {sp3[1]}, 0xffff', f's_mov_b32 {sp3[2]}, {name}_end-{lab}',
                f's_lshr_b32 {s_t0}, s2, 3', f's_lshl_b32 {s_t1}, {s_t0}, 8', f'v_and_b32 {vwo}, 1, {vl}', f'v_lshlrev_b32 {vwo}, 7, {vwo}',
                f's_lshl_b32 {s_t0}, {s_t0}, 2', f's_add_u32 {s_t0}, {s_t0}, {s_w}', f's_lshl_b32 {s_t0}, {s_t0}, 8',
                f's_add_u32 {s_t0}, {s_t0}, {name}_join-{lab}', f'v_mov_b32 {vt2}, {s_t0}', f'v_mov_b32 {vt3}, {s_t1}',
                f'v_cmp_gt_u32 {smask}, 2, {vl}', f'v_cndmask_b32 {vt2}, {vt2}, {vt3}, {smask}', f'v_add_u32 {vwo}, {vwo}, {vt2}',
                f'v_cmp_gt_u32 {smask}, 4, {vl}', f'v_cndmask_b32 {vwo}, 2.0, {vwo}, {smask}',
                Ins(f'buffer_load_dword {vpd}, {vwo}, {sp3}, 0 offen', 'pf')]
    for wc in range(2):
        p.seg(f'c{wc}a')
        if wc == 1: p.e(f'{name}_c1:')
        for j in range(DIST): p.add(wread(j, 0, wc))
        stage(0, wc, first=True, early=pfetch(), extra=pf_setup() + pf3_setup(), estep=1, fill=announce_setup)
        p.e(f's_mov_b32 {s_cnt}, 6')
        p.seg(f'c{wc}l1')
        p.e(f'{name}_c{wc}loop:')
        stage(1, wc, early=pfetch() + pfetch_d(), extra=gate_sel + gate_loads, estep=1)
        p.e(f's_cmp_eq_u32 {s_cnt}, 0\ns_cbranch_scc1 {name}_c{wc}out')
        p.seg(f'c{wc}l2')
        stage(0, wc, early=pfetch() + pfetch_d(), extra=announce + pf_wo)
        p.e(f's_sub_u32 {s_cnt}, {s_cnt}, 1\ns_branch {name}_c{wc}loop')
        p.seg(f'c{wc}last')
        p.e(f'{name}_c{wc}out:')
        rest = stage(0, wc, early=pfetch_d(), extra=code_pf(wc) if CPF else None, estep=1, fill=gate_ops(), nodma1=True)
        rest = stage(1, wc, last=True, fill=rest + cnt_addr + [cnt_load] + epi_setup(wc) + epi_early(wc, 3 if wc == 0 else 2))
        pf.stamp(2)
        if ptrace == -1: pf.trace()
        p.add(rest)
        if ptrace == -1: pf.trace()
        epi_late()
        if ptrace == -1: pf.trace()
        if wc == 0: p.e(f's_branch {name}_join')
    p.seg('join')
    p.e(f'{name}_join:')
    p.add(check([f'v_cmp_gt_u32 vcc, 32, {vcnt}'], [cnt_load], 'cnt'))

    sa.p = s_base; va.p = v_base; aa.p = 0
    skv = sa(4); sA = sa(4); swd = sa(4); swo = sa(4); sout = sa(4)
    s_okv, s_left, s_p, s_oa, s_ow, s_wb, s_ob, s_ob2, s_thr, s_mt, s_nt, s_oo, s_spin, s_h1, s_h2, s_rt, s_win = [sa() for _ in range(17)]
    vl16, vkA, vkB, vdma, vo, vidx, vu0, vu1, vu2, vpa = [va() for _ in range(10)]
    vdd = [va() for _ in range(2)]; vdo = [va() for _ in range(2)]; vwr = [va() for _ in range(2)]
    vg = va(2); vog = va(4); vpoll = va(2, 2); vsc = va(2)
    ones = va(4, 4)
    vA = [va() for _ in range(4)]
    assert va.p <= 46 and va.p > vwo.a
    va2 = Alloc('v', va.p, 48)
    va.p = 48
    Sx = [va(16, 4) for _ in range(2)]; P = [va(8, 4) for _ in range(2)]; C = [va(16, 4) for _ in range(2)]
    acc3 = [[va(16, 4) for _ in range(4)] for _ in range(2)]
    O = [aa(16, 4) for _ in range(2)]; L = [aa(4, 4) for _ in range(2)]
    Q = [aa(8, 4) for _ in range(2)]; K = [aa(8, 4) for _ in range(2)]; V = [aa(8, 4) for _ in range(2)]
    Wf = [aa(4, 4) for _ in range(2)]
    Ab = [[aa(4, 4) for _ in range(4)] for _ in range(8)]

    p.e(f"""
    v_lshlrev_b32 {vl16}, 4, {vl}
    s_lshl_b32 {s_p}, {s_w}, 12
    s_add_u32 {s_t0}, {s_p}, {QS}
    v_add_u32 {vu0}, {s_t0}, {vl16}
    s_waitcnt lgkmcnt(0)
    s_barrier
    """)
    pf.stamp(3)
    def kread(kb, loop=False):
        base, o = (vl16, (kb % 16) * 4096) if not loop else ((vkA, kb * 4096) if kb < 8 else (vkB, (kb - 8) * 4096))
        return [f'ds_read_b128 {K[kb % 2][4*f:4*f+4]}, {base} offset:{o + f * 1024}' for f in range(2)]
    def vread(kb, loop=False):
        base, o = (vl16, (kb % 16) * 4096) if not loop else (vkA, kb * 4096)
        return [f'ds_read_b128 {V[kb % 2][4*f:4*f+4]}, {base} offset:{o + 2048 + f * 1024}' for f in range(2)]
    def qk(dst, kb, q, f, cin):
        return f'v_mfma_f32_32x32x16_bf16 {dst}, {K[kb % 2][4*f:4*f+4]}, {Q[q][4*f:4*f+4]}, {cin if f == 0 else dst}'
    def pv(j, f, zero=False):
        q = j % 2; kb = (j // 2) % 2
        return f'v_mfma_f32_32x32x16_bf16 {O[q]}, {V[kb][4*f:4*f+4]}, {P[q][4*f:4*f+4]}, {"0" if zero else O[q]}'
    def rsum(q): return f'v_smfmac_f32_16x16x64_bf16 {L[q]}, {ones}, {P[q]}, {vidx}'
    def cvt(j, i): return f'v_cvt_pk_bf16_f32 {P[j % 2][i]}, {Sx[j % 2][2*i]}, {Sx[j % 2][2*i+1]}'
    def rowmax(dst, src, init):
        lst = [src[i] for i in range(16)]
        if init:
            p.e(f'v_max3_f32 {dst}, {lst[0]}, {lst[1]}, {lst[2]}'); lst = lst[3:]
        while len(lst) >= 2:
            p.e(f'v_max3_f32 {dst}, {dst}, {lst[0]}, {lst[1]}'); lst = lst[2:]
        if lst: p.e(f'v_max_f32 {dst}, {dst}, {lst[0]}')
    def setc(q, m):
        p.e(f'v_mov_b32 {vu2}, {m}\nv_permlane32_swap_b32 {vu2}, {m}\nv_max_f32 {m}, {m}, {vu2}')
        for i in range(16): p.e(f'v_sub_f32 {C[q][i]}, 0, {m}')
    for q in range(2):
        for f in range(2): p.e(f'ds_read_b128 {Q[q][4*f:4*f+4]}, {vu0} offset:{q * 2048 + f * 1024}')
    p.add(kread(0)); p.add(kread(1))
    p.e(f"""
    v_bfe_u32 {vu0}, {vl}, 2, 1
    v_bfe_u32 {vu1}, {vl}, 1, 1
    v_mov_b32 {vu2}, 0x3f803f80
    v_or_b32 {vidx}, {vu0}, {vu1}
    v_cmp_eq_u32 vcc, 0, {vidx}
    v_xor_b32 {vu0}, 1, {vu0}
    v_or_b32 {vidx}, {vu0}, {vu1}
    v_cndmask_b32 {ones[0]}, 0, {vu2}, vcc
    v_cndmask_b32 {ones[1]}, 0, {vu2}, vcc
    v_cmp_eq_u32 vcc, 0, {vidx}
    v_and_b32 {vu0}, 1, {vl}
    v_mov_b32 {vu1}, 0xeeeeeeee
    v_cndmask_b32 {ones[2]}, 0, {vu2}, vcc
    v_cndmask_b32 {ones[3]}, 0, {vu2}, vcc
    v_cmp_eq_u32 vcc, 0, {vu0}
    v_mov_b32 {vu2}, 0x44444444
    v_add_u32 {vdma}, {s_p}, {vl16}
    v_cndmask_b32 {vidx}, {vu1}, {vu2}, vcc
    """)
    for q in range(2):
        for f in range(2): p.e(qk(C[q], 0, q, f, '0'))
    for q in range(2):
        for i in range(4): p.e(f'v_accvgpr_write_b32 {L[q][i]}, 0')
    p.e(f's_lshl_b32 {s_t0}, {s_h}, 18')
    srd(p, skv, pws, off_s=s_t0, off_imm=WS_KV, size=262144)
    rowmax(vu0, C[0], True); rowmax(vu1, C[1], True)
    setc(0, vu0)
    p.e(qk(Sx[0], 0, 0, 0, C[0])); p.e(qk(Sx[0], 0, 0, 1, C[0]))
    setc(1, vu1)

    def flag(val, tag, wait):
        return [f'v_mov_b32 {vu0}, {val}', f'WAITTAG {wait}', Ins(f'buffer_store_dword {vu0}, {vflag}, {sfl}, 0 offen sc1', tag)]
    def kvdma(m0line, tag):
        return [m0line] + [Ins(f'buffer_load_dwordx4 {vdma}, {skv}, {s_okv} offen offset:{i * 1024} lds', tag) for i in range(4)] + \
               [f's_add_u32 {s_okv}, {s_okv}, 16384', f's_and_b32 {s_okv}, {s_okv}, 0x3ffff',
                f's_sub_u32 {s_left}, {s_left}, 1', f's_cselect_b32 {skv[2]}, 0, {skv[2]}']
    def dloads(s):
        b = s % NB
        return [f's_add_u32 m0, {s_wb}, {b * 2048}'] + \
               [Ins(f'buffer_load_dwordx4 {vdd[hh]}, {swd}, {s_ow} offen offset:{hh * 1024} lds', f'D{b}') for hh in range(2)] + \
               [Ins(f'buffer_load_dwordx4 {Ab[b][r]}, {vA[r]}, {sA}, {s_oa} offen', f'D{b}') for r in range(4)] + \
               ([f's_add_u32 {s_ow}, {s_ow}, 32768', f's_add_u32 {s_oa}, {s_oa}, 4096'] if not ROT else
                ([f's_add_u32 {s_win}, {s_win}, 32768'] if s % 8 == 7 else []) +
                [f's_add_u32 {s_rt}, {s_rt}, 4096', f's_and_b32 {s_rt}, {s_rt}, 0x7000', f's_add_u32 {s_oa}, {s_win}, {s_rt}', f's_lshl_b32 {s_ow}, {s_oa}, 3'])
    def wrd(base, off, nb):
        return [f'ds_read_b64_tr_b16 {Wf[nb][2*s:2*s+2]}, {base[nb]} offset:{off + s * 512}' for s in range(2)]
    def gm(buf, nb, tb, zero=False):
        return f'v_mfma_f32_32x32x16_bf16 {acc3[nb][tb]}, {Wf[nb]}, {buf[tb]}, {"0" if zero else acc3[nb][tb]}'
    def oload(t, m0line, tag):
        return [m0line] + [Ins(f'buffer_load_dwordx4 {vdo[hh]}, {swo}, {s_oo} offen offset:{hh * 1024} lds', tag) for hh in range(2)] + [f's_add_u32 {s_oo}, {s_oo}, 32768', f's_and_b32 {s_oo}, {s_oo}, 0x7ffff']

    def period(j, loop=False, item=None, misc=(), pre=(), zero=False):
        s = Sx[j % 2]
        E = [f'v_exp_f32 {s[i]}, {s[i]}' for i in range(16)]
        jn = j + 1
        m1 = qk(Sx[jn % 2], jn // 2, jn % 2, 0, C[jn % 2]); m2 = qk(Sx[jn % 2], jn // 2, jn % 2, 1, None)
        rd = kread((j + 1) // 2 + 1, loop) if j % 2 == 1 else vread(j // 2, loop)
        first = (j == 0 and not loop)
        zo = (j <= 2 and not loop)
        c7 = [] if first else [cvt(j - 1, 7)]
        p0 = [] if first else [pv(j - 1, 0, zo)]; p1 = [] if first else [pv(j - 1, 1)]; rs = [] if first else [rsum((j - 1) % 2)]
        V_ = [E[0]] + c7
        for i in range(7): V_ += [E[2 * i + 1], E[2 * i + 2], cvt(j, i)]
        V_.append(E[15])
        if item is None:
            p.add(V_[:1 + len(c7)]); V_ = V_[1 + len(c7):]
            M = [m1, m2] + p0 + p1 + rs; G = []
        else:
            st, nb = item
            G = [gm(Ab[st % NB], nb, tb if nb == 0 else 3 - tb, zero) for tb in range(4)]
            M = [G[0], m1, G[1], m2, G[2]] + p0 + [G[3]] + p1 + rs
        if loop and exp_ & 1: M = [x for x in M if x not in G]
        if loop and exp_ & 8: misc = [x for x in misc if not (isinstance(x, Ins) and x.tag and x.tag.startswith('D'))]
        misc = list(misc)
        for k in range(len(misc)):
            if isinstance(misc[k], str) and ' m0,' in misc[k]:
                q_ = k
                while q_ > 0 and not (isinstance(misc[q_ - 1], Ins) and misc[q_ - 1].text.endswith(' lds')): q_ -= 1
                misc.insert(q_, misc.pop(k))
        items = []
        for x in list(pre) + rd + list(misc):
            if items and isinstance(items[-1][-1], str) and items[-1][-1].split()[0] in ('WAITTAG', 's_cbranch_vccnz', 'v_cmp_gt_u32'): items[-1].append(x)
            else: items.append([x])
        isvm = lambda it: any((y.text if isinstance(y, Ins) else y).startswith('buffer') for y in it)
        n = len(M); last = n - 1 if M[-1].startswith('v_smfmac') else n
        gap = [[] for _ in range(n)]
        nvm = sum(map(isvm, items))
        step = VSP if nvm * VSP <= last else 1
        per = max(2 if item is not None else 1, -(-len(items) // last))
        g = 0; lastvm = -9
        for k, it in enumerate(items):
            if isvm(it):
                left = sum(map(isvm, items[k:]))
                g = max(g, min(lastvm + step, last - 1 - (left - 1) * step))
                g = max(g, 0); lastvm = g
            elif len(gap[g]) >= per and g < last - 1: g += 1
            gap[g].append(it)
        cost = lambda x: 8 if x.startswith('v_exp') else 4
        occ = lambda x: 32 if '32x32' in x else 16
        mc = [4 * sum(1 for it in gp for y in it if not (isinstance(y, str) and y.endswith(':'))) for gp in gap]
        if item is not None: mc[-1] += 4
        tot = sum(map(cost, V_)) + sum(mc) + (12 if item is None else 0)
        room = sum(occ(x) - 8 for x in M)
        acc_ = 0.0; done = 0
        for q_, m_ in enumerate(M):
            p.add([m_])
            for it in gap[q_]: p.add(it)
            acc_ += (occ(m_) - 8) * tot / room; done += mc[q_]
            k = 0
            while V_ and (done + cost(V_[0]) / 2 <= acc_ or (item is not None and q_ == 0 and k < 1 + len(c7))):
                done += cost(V_[0]); p.add([V_.pop(0)]); k += 1
        p.add(V_)

    setup1 = lines(f"""
        s_lshl_b32 {s_okv}, {s_mb}, 15
        s_add_u32 {s_okv}, {s_okv}, 32768
        s_and_b32 {s_okv}, {s_okv}, 0x3ffff
        s_movk_i32 {s_left}, 13
        v_and_b32 {vu1}, 31, {vl}
        v_lshlrev_b32 {vpa}, 2, {vu1}
        s_lshl_b32 {s_t2}, {s_h}, 7
        s_add_u32 {s_t2}, {s_t2}, 4096""")
    poll_kv = f'buffer_load_dword {vpoll[0]}, {vpa}, {sfl}, {s_t2} offen sc1'
    setup2 = lines(f"""
        s_and_b32 {s_t0}, s2, 7
        s_lshr_b32 {s_t1}, s2, 3
        s_lshr_b32 {s_mt}, {s_t0}, 1
        s_lshl_b32 {s_mt}, {s_mt}, 2
        s_and_b32 {s_nt}, {s_t0}, 1
        s_lshl_b32 {s_nt}, {s_nt}, 3
        s_and_b32 {s_t0}, {s_t1}, 3
        s_add_u32 {s_mt}, {s_mt}, {s_t0}
        s_lshr_b32 {s_t0}, {s_t1}, 2
        s_add_u32 {s_nt}, {s_nt}, {s_t0}
        s_lshl_b32 {s_t0}, {s_nt}, 7
        s_lshl_b32 {s_t1}, {s_w}, 19
        s_add_u32 {s_t1}, {s_t1}, {s_t0}
        s_add_u32 {swo[0]}, {pwo[0]}, {s_t1}
        s_addc_u32 {swo[1]}, {pwo[1]}, 0
        s_sub_u32 {swo[2]}, {D * D * 2}, {s_t1}
        s_mov_b32 {swo[3]}, 0x00020000
        s_add_u32 {swd[0]}, {pwd[0]}, {s_t0}
        s_addc_u32 {swd[1]}, {pwd[1]}, 0
        s_sub_u32 {swd[2]}, {F * D * 2}, {s_t0}
        s_mov_b32 {swd[3]}, 0x00020000
        s_mul_i32 {s_t0}, {s_mt}, {288 * 4096}
        s_add_u32 {s_t0}, {s_t0}, {WS_A}
        s_add_u32 {sA[0]}, {pws[0]}, {s_t0}
        s_addc_u32 {sA[1]}, {pws[1]}, 0
        s_mov_b32 {sA[2]}, {288 * 4096}
        s_mov_b32 {sA[3]}, 0x00020000
        s_mul_i32 {s_win}, {s_w}, {56 * 4096}
        s_lshl_b32 {s_rt}, {s_mt}, 1
        s_add_u32 {s_rt}, {s_rt}, {s_nt}
        s_and_b32 {s_rt}, {s_rt}, {7 if ROT else 0}
        s_lshl_b32 {s_rt}, {s_rt}, 12
        s_add_u32 {s_oa}, {s_win}, {s_rt}
        s_lshl_b32 {s_ow}, {s_oa}, 3
        s_and_b32 {s_oo}, {s_nt}, {3 if ROT else 0}
        s_lshl_b32 {s_oo}, {s_oo}, 17
        s_mul_i32 {s_wb}, {s_w}, 20480
        s_add_u32 {s_wb}, {s_wb}, {W0}
        v_lshrrev_b32 {vu1}, 3, {vl}
        v_and_b32 {vu2}, 2, {vu1}
        v_lshlrev_b32 {vu2}, 1, {vu2}
        v_and_b32 {vdd[1]}, 7, {vl}
        v_xor_b32 {vu2}, {vu2}, {vdd[1]}
        v_lshlrev_b32 {vu2}, 4, {vu2}
        v_lshl_add_u32 {vdd[0]}, {vu1}, 11, {vu2}
        v_add_u32 {vdd[1]}, {8 * 2048 - 1024}, {vdd[0]}
        v_lshrrev_b32 {vu1}, 5, {vl}
        v_lshl_add_u32 {vdo[0]}, {vu1}, 13, {vdd[0]}
        v_add_u32 {vdo[1]}, {4 * 2048 - 1024}, {vdo[0]}
        v_lshl_add_u32 {vwr[0]}, {vu1}, 10, {s_wb}
        v_bfe_u32 {vu1}, {vl}, 2, 2
        v_lshl_add_u32 {vwr[0]}, {vu1}, 7, {vwr[0]}
        v_bfe_u32 {vu1}, {vl}, 3, 1
        v_lshl_add_u32 {vwr[0]}, {vu1}, 6, {vwr[0]}
        v_bfe_u32 {vu1}, {vl}, 4, 1
        v_lshl_add_u32 {vwr[0]}, {vu1}, 5, {vwr[0]}
        v_and_b32 {vu1}, 3, {vl}
        v_lshl_add_u32 {vwr[0]}, {vu1}, 3, {vwr[0]}
        v_xor_b32 {vwr[1]}, 64, {vwr[0]}
        v_mov_b32 {vkB}, {vl16}
        v_add_u32 {vkA}, 32768, {vl16}
        s_add_u32 {s_h1}, {s_hb}, 4096
        s_add_u32 {s_h2}, {s_hb}, 8192""")
    for r in range(4):
        setup2 += [f's_add_u32 {s_t0}, {s_w}, {r + 1}', f's_and_b32 {s_t0}, {s_t0}, 3', f's_lshl_b32 {s_t0}, {s_t0}, 10', f'v_add_u32 {vA[r]}, {s_t0}, {vl16}']
    setup3 = lines(f"""
        v_and_b32 {vu1}, 7, {vl}
        v_bfe_u32 {vu2}, {vl}, 4, 1
        v_lshl_add_u32 {vo}, {vu2}, 3, {vu1}
        v_bfe_u32 {vu2}, {vl}, 3, 1
        v_lshl_add_u32 {vo}, {vu2}, 4, {vo}
        v_lshrrev_b32 {vu2}, 3, {vo}
        v_lshlrev_b32 {vu2}, 7, {vu2}
        v_lshl_add_u32 {vsc[0]}, {vu1}, 2, {vu2}
        v_lshlrev_b32 {vo}, 4, {vo}
        v_lshrrev_b32 {vu2}, 5, {vl}
        v_lshl_add_u32 {vo}, {vu2}, 9, {vo}
        v_bfe_u32 {vu2}, {vl}, 3, 2
        v_lshlrev_b32 {vu2}, 7, {vu2}
        v_lshl_add_u32 {vsc[1]}, {vu1}, 2, {vu2}
        s_lshl_b32 {s_t0}, {s_mb}, 1
        s_add_u32 {s_t0}, {s_t0}, {s_wr}
        s_mul_i32 {s_t0}, {s_t0}, 288
        s_lshl_b32 {s_t1}, {s_h}, 1
        s_add_u32 {s_t0}, {s_t0}, {s_t1}
        s_add_u32 {s_t0}, {s_t0}, 224
        s_lshl_b32 {s_t0}, {s_t0}, 12
        s_lshl_b32 {s_t1}, {s_wc}, 11
        s_add_u32 {s_t0}, {s_t0}, {s_t1}
        s_add_u32 {s_ob}, {s_t0}, {WS_A}
        s_add_u32 {s_ob2}, {s_ob}, 4096
        s_mov_b32 {s_thr}, {hex(f32bits(2.0 ** 40 if not force_slow else 0.5))}
        v_lshlrev_b32 {vpa}, 3, {vl}
        s_lshr_b32 {s_t2}, {s_mt}, 1
        s_lshl_b32 {s_t2}, {s_t2}, 9""")
    poll_h = f'buffer_load_dwordx2 {vpoll}, {vpa}, {sfl}, {s_t2} offen sc1'
    cond2 = [f'v_min_u32 {vu1}, {vpoll[0]}, {vpoll[1]}', f'v_cmp_gt_u32 vcc, 2, {vu1}']
    og_loads = [f's_lshl_b32 {s_t0}, {s_mt}, 11', f's_add_u32 {s_t0}, {s_t0}, {WS_G + 32}']
    for r in range(4):
        og_loads += [f'v_lshrrev_b32 {vu1}, 10, {vA[r]}', f'v_lshl_add_u32 {vu1}, {vu1}, 9, {vsc[1]}', f'buffer_load_dword {vog[r]}, {vu1}, {sws}, {s_t0} offen']
    g_loads = [f's_lshl_b32 {s_t0}, {s_mb}, 2', f's_add_u32 {s_t0}, {s_t0}, {s_w}', f's_lshl_b32 {s_t0}, {s_t0}, 10', f's_add_u32 {s_t0}, {s_t0}, {WS_G}'] + \
              [f'buffer_load_dword {vg[q]}, {vsc[0]}, {sws}, {s_t0} offen offset:{q * 512}' for q in range(2)]
    early_o = [oload(t, f's_add_u32 m0, {s_wb}, {(8 + t % 4) * 2048}' if t % 4 < 2 else f's_add_u32 m0, {s_p}, {QS + (t % 4 - 2) * 2048}', 'WO') for t in range(8)]
    WO = [R('a', aa.p + 8 * t, 8) for t in range(4)] + [R('a', 8 * t, 8) for t in range(11)] + [Sx[0][0:8]]
    assert Wf[0].a == 88 and aa.p + 32 <= 256
    vw3 = [va2(), va2()]
    def oslot(t):
        if t >= 8: return vw2, (t - 8) * 2048, f's_add_u32 m0, {s_p}, {(t - 8) * 2048}'
        if t % 4 < 2: return vwr, (8 + t % 4) * 2048, None
        return vw3, (t % 4 - 2) * 2048, None
    def woread(t):
        base, off, _ = oslot(t)
        return [f'ds_read_b64_tr_b16 {WO[t][4*nb+2*s_:4*nb+2*s_+2]}, {base[nb]} offset:{off + s_ * 512}' for nb in range(2) for s_ in range(2)]
    vw2 = [C[0][0], C[0][1]]
    setup3 += [f's_add_u32 {s_t0}, {s_p}, {QS}', f's_sub_u32 {s_t0}, {s_t0}, {s_wb}', f'v_add_u32 {vw3[0]}, {s_t0}, {vwr[0]}', f'v_add_u32 {vw3[1]}, {s_t0}, {vwr[1]}']
    assert NB == 8 and PM % 2 == 0
    PA = 48
    plan = {j: [] for j in range(PA)}; prej = {j: [] for j in range(PA)}
    plan[0] += setup1
    plan[1] += setup2[:21]; plan[2] += setup2[21:41]; plan[3] += setup2[41:61]; plan[4] += setup2[61:]; plan[KP] = [poll_kv] + plan[KP]
    plan[5] += check([f'v_cmp_gt_u32 vcc, 1, {vpoll[0]}'], [poll_kv], 'kv')
    d = kvdma(f's_add_u32 m0, {s_p}, 32768', 'KV0'); plan[5] += d[:3]; plan[6] += d[3:]
    d = kvdma(f's_add_u32 m0, {s_p}, 49152', 'KV1'); plan[7] += d[:3]; plan[8] += d[3:]
    for i in range(5):
        j = 13 + 8 * i
        prej[j] += [f'WAITTAG KV{i % 2}', 's_barrier']
        d = kvdma(f's_add_u32 m0, {s_p}, {(i % 4) * 16384}', f'KV{i % 2}')
        plan[j] += d[:5]; plan[j + 1] += d[5:]
    busy = (13, 21, 29, 37, 45)
    j = float(H0)
    for k in range(12):
        while int(j) in busy: j = int(j) + 1.0
        plan[int(j)].append(Ins(f'buffer_store_dwordx4 {hreg[k]}, {vl16}, {sws}, {(s_hb, s_h1, s_h2)[k // 4]} offen offset:{(k % 4) * 1024}{st_mod}', 'HST'))
        jl = int(j); j += HP
    plan[10] += setup3[:10]; plan[11] += setup3[10:20]; plan[12] += setup3[20:]
    def nextfree(j):
        while j in busy: j += 1
        return j
    jf = nextfree(jl + 3); plan[jf] += flag(2, 'FL', 'HST')
    jc = PM - 2 - DD
    while any(x in busy for x in range(jc, PM - 1)) and jc in busy: jc -= 1
    jp = jc - 3
    assert jp > jf, (jp, jf)
    plan[jp] += [poll_h]
    jj = 14
    for t in range(4):
        jj = nextfree(jj + 1); plan[jj] += early_o[t]
    jj = nextfree(jj + 3)
    for t in range(4):
        plan[jj] += (['WAITTAG WO'] if t == 0 else []) + woread(t); jj = nextfree(jj + 1)
    for t in range(4, 8):
        plan[jj] += (['s_waitcnt lgkmcnt(0)'] if t == 4 else []) + early_o[t]; jj = nextfree(jj + 1)
    assert jj <= PM
    plan[jc] += check(cond2, [poll_h], 'h') + [f's_lshl_b32 {s_t2}, {s_mb}, 9', poll_h]
    jj = jc
    for i in range(DD):
        jj = nextfree(jj + (1 if i else 0)); plan[jj] += dloads(i)
    assert jj <= PM - 2, (jj, PM)
    plan[PM - 1] = ['WAITTAG D0'] + wrd(vwr, 0, 0) + plan[PM - 1]
    plan[PM + 2] += og_loads
    plan[PM + 4] += check(cond2, [poll_h], 'g') + g_loads
    plan[PA - 1] += [f's_xor_b32 {s_p}, {s_p}, 32768']
    def mixed(j, st, nb, loop, misc=(), pre=(), zero=False):
        d = dloads(st + DD) if st + DD < 56 else []
        if nb == 0:
            period(j, loop, (st, 0), misc=wrd(vwr, (st % NB) * 2048, 1) + d[:4] + list(misc), pre=pre, zero=zero)
        else:
            period(j, loop, (st, 1), misc=[f'WAITTAG D{(st + 1) % NB}'] + wrd(vwr, ((st + 1) % NB) * 2048, 0) + d[4:] + list(misc), pre=pre, zero=zero)
    p.seg('partA')
    for j in range(PA):
        if ptrace == -1 and j in (0, 1, 5, 7, 9, 13, 15, 21, jf, jf + 1, jc, jc + 1, PM): pf.trace()
        if j < PM: period(j, misc=plan[j], pre=prej[j])
        else: mixed(j, (j - PM) // 2, j % 2, False, misc=plan[j], pre=prej[j], zero=(j < PM + 2))
    if ptrace == -1: pf.trace()
    ST0 = (PA - PM) // 2
    pf.stamp(4)
    p.e(f's_mov_b32 {s_cnt}, 5')
    p.seg('loop')
    p.e(f'{name}_loop:')
    for j in range(16):
        misc = []; pre = []
        if j in (5, 13):
            pre = [f'WAITTAG KV{1 if j == 5 else 0}', 's_barrier']
        if j in (5, 6, 13, 14):
            d = kvdma(f's_xor_b32 m0, {s_p}, 49152' if j < 8 else f's_mov_b32 m0, {s_p}', 'KV1' if j < 8 else 'KV0')
            misc = d[:5] if j in (5, 13) else d[5:]
        if j == 15: misc = [f's_xor_b32 {s_p}, {s_p}, 32768', f'v_xor_b32 {vkA}, 0x8000, {vkA}', f'v_xor_b32 {vkB}, 0x8000, {vkB}']
        mixed(j, ST0 + j // 2, j % 2, True, misc=misc, pre=pre)
    p.e(f's_sub_u32 {s_cnt}, {s_cnt}, 1\ns_cmp_lg_u32 {s_cnt}, 0\ns_cbranch_scc1 {name}_loop')

    p.seg('tail')
    pf.stamp(5)
    if ptrace == -2: pf.trace()
    p.add([cvt(15, 7), pv(15, 0), pv(15, 1), rsum(1)])
    def lsum():
        p.e(f"""
        v_accvgpr_read_b32 {vsc[0]}, {L[0][0]}
        v_accvgpr_read_b32 {vu0}, {L[0][1]}
        v_accvgpr_read_b32 {vsc[1]}, {L[1][0]}
        v_accvgpr_read_b32 {vu1}, {L[1][1]}
        v_add_f32 {vsc[0]}, {vsc[0]}, {vu0}
        v_add_f32 {vsc[1]}, {vsc[1]}, {vu1}
        """)
    lsum()
    p.e(f"""
    v_cmp_nle_f32 vcc, {vsc[0]}, {s_thr}
    v_cmp_nle_f32 {smask}, {vsc[1]}, {s_thr}
    s_or_b64 vcc, vcc, {smask}
    s_cbranch_vccnz {name}_slow
    """)
    p.seg('epi')
    p.e(f'{name}_epi:')
    p.e(f"""
    v_rcp_f32 {vsc[0]}, {vsc[0]}
    v_rcp_f32 {vsc[1]}, {vsc[1]}
    WAITTAG KV0 KV1
    s_barrier
    v_mul_f32 {vsc[0]}, {vsc[0]}, {vg[0]}
    v_mul_f32 {vsc[1]}, {vsc[1]}, {vg[1]}
    """)
    for q in range(2):
        for f in range(2):
            t_ = Sx[q][8 * f:8 * f + 8]
            for i in range(8): p.e(f'v_accvgpr_read_b32 {t_[i]}, {O[q][8*f+i]}')
            for i in range(8): p.e(f'v_mul_f32 {t_[i]}, {t_[i]}, {vsc[q]}')
            for i in range(4): p.e(f'v_cvt_pk_bf16_f32 {t_[i]}, {t_[2*i]}, {t_[2*i+1]}')
            p.e(f'buffer_store_dwordx4 {t_[0:4]}, {vo}, {sws}, {(s_ob, s_ob2)[f]} offen offset:{q * 1024}{st_mod}', 'OST')
    vout = C[0][4]; vrw = [C[0][5], C[0][6], C[0][7]]; vrr = C[0][8]
    LATE0 = ST0 + 40
    p.e(f's_lshl_b32 {s_p}, {s_w}, 14')
    sk = [s_h1, s_h2, s_hb, s_left]
    vA2 = [[vA[r], Sx[1][3 * r], Sx[1][3 * r + 1], Sx[1][3 * r + 2]] for r in range(4)]
    late2 = lines(f"""
        s_sub_u32 {s_t0}, {s_p}, {s_wb}
        v_add_u32 {vw2[0]}, {s_t0}, {vwr[0]}
        v_add_u32 {vw2[1]}, {s_t0}, {vwr[1]}
        s_lshl_b32 {s_t0}, {s_mt}, 18
        s_lshl_b32 {s_t1}, {s_nt}, 7
        s_add_u32 {s_t0}, {s_t0}, {s_t1}
        s_add_u32 {sout[0]}, {pout[0]}, {s_t0}
        s_addc_u32 {sout[1]}, {pout[1]}, 0
        s_sub_u32 {sout[2]}, {S * D * 2}, {s_t0}
        s_mov_b32 {sout[3]}, 0x00020000
        v_and_b32 {vu1}, 31, {vl}
        s_lshl_b32 {s_t0}, {s_w}, 16
        v_lshl_add_u32 {vout}, {vu1}, 11, {s_t0}
        v_lshrrev_b32 {vu1}, 5, {vl}
        v_lshl_add_u32 {vout}, {vu1}, 4, {vout}
        v_bfe_u32 {vu1}, {vl}, 1, 3
        v_and_b32 {vu2}, 1, {vl}
        v_lshlrev_b32 {vu2}, 2, {vu2}
        v_lshl_add_u32 {vpa}, {vu1}, 4, {vu2}
        s_lshr_b32 {s_t2}, {s_mt}, 1
        s_lshl_b32 {s_t2}, {s_t2}, 9
        s_lshl_b32 {s_t0}, {s_w}, 7
        s_add_u32 {s_t2}, {s_t2}, {s_t0}
        s_and_b32 {s_t0}, {s_mt}, 1
        s_lshl_b32 {s_t0}, {s_t0}, 3
        s_add_u32 {s_t2}, {s_t2}, {s_t0}
        s_mul_i32 {s_t0}, {s_w}, 24576
        v_add_u32 {vrr}, {s_t0}, {vl16}
        s_lshl_b32 {s_t1}, {s_w}, 16
        s_add_u32 {s_t1}, {s_t1}, {224 * 4096}""")
    late2[6:8] = [late2[6:8]]
    for r in range(3):
        late2 += [f'v_lshrrev_b32 {vu1}, 10, {vA[r]}', f'v_mul_u32_u24 {vu1}, 24576, {vu1}', f'v_add_u32 {vu1}, {(2 - r) * 8192}, {vu1}', f'v_add_u32 {vrw[r]}, {vu1}, {vl16}']
    for i in range(4):
        late2 += ([f's_add_u32 {s_t0}, {s_nt}, {i}', f's_and_b32 {s_t0}, {s_t0}, 3'] if ROT else [f's_mov_b32 {s_t0}, {i}'])
        late2 += [f's_lshl_b32 {s_t0}, {s_t0}, 14', f's_add_u32 {sk[i]}, {s_t1}, {s_t0}']
    for r in range(4):
        for i in range(1, 4): late2.append(f'v_add_u32 {vA2[r][i]}, {i * 4096}, {vA[r]}')
    poll_o = f'buffer_load_dword {vpoll[0]}, {vpa}, {sfl}, {s_t2} offen sc1'
    AB = [Ab[i // 4][i % 4] for i in range(32)]
    def aload(i):
        r, t = divmod(i, 16)
        return f'buffer_load_dwordx4 {AB[i % 32]}, {vA2[r][t % 4]}, {sA}, {sk[t // 4]} offen'
    vq_ = []
    o_next = 8
    for s_ in range(LATE0 + DD, 56):
        vq_.append((s_ - NB + 1, dloads(s_)))
        if o_next < 16: vq_.append((0, oload(o_next, oslot(o_next)[2], 'WO'))); o_next += 1
    while o_next < 16: vq_.append((0, oload(o_next, oslot(o_next)[2], 'WO'))); o_next += 1
    cur = []; a_next = 0; side = list(late2); checked = False
    for st in range(LATE0, 56):
        if ptrace == -2: pf.trace()
        n0 = wrd(vwr, (st % NB) * 2048, 1)
        n1 = ([f'WAITTAG D{(st + 1) % NB}'] + wrd(vwr, ((st + 1) % NB) * 2048, 0)) if st < 55 else []
        if st == LATE0 + 1: side = [flag(3, 'FL', 'OST')] + side
        if st == LATE0 + 2: side += [x for t in range(4, 8) for x in woread(t)]
        for c in range(8):
            nb, tb = divmod(c, 4)
            p.e(gm(Ab[st % NB], nb, tb if nb == 0 else 3 - tb))
            if c == 0: p.add(n0)
            if c == 4: p.add(n1)
            if st == LATE0 + OC - 1 and c == 1: p.e(poll_o)
            if st == LATE0 + OC and c == 1:
                assert not side
                p.add(check([f'v_cmp_gt_u32 vcc, 3, {vpoll[0]}'], [poll_o], 'o')); checked = True
            if not cur and vq_ and vq_[0][0] <= st: cur = list(vq_.pop(0)[1])
            if cur:
                while cur:
                    x = cur.pop(0); p.add([x])
                    if isinstance(x, Ins): break
                while cur and not any(isinstance(y, Ins) for y in cur): p.add([cur.pop(0)])
            elif checked and not vq_ and a_next < 30 and 48 + a_next // 4 < st:
                p.e(aload(a_next)); a_next += 1
            for _ in range(2):
                if side:
                    x = side.pop(0); p.add(x if isinstance(x, list) else [x])
    assert not cur and not vq_ and checked
    if ptrace == -2: pf.trace()
    p.e('WAITTAG WO')
    rds = [x for t in range(8, 16) for x in woread(t)]
    k = 0
    for r in range(4):
        for nb in range(2):
            for i in range(16):
                p.e(f'v_mul_f32 {acc3[nb][r][i]}, {acc3[nb][r][i]}, {vog[r]}')
                k += 1
                if k % 3 == 0 and rds: p.e(rds.pop(0))
                if k % 12 == 0 and a_next < 30: p.e(aload(a_next)); a_next += 1
    while a_next < 30: p.e(aload(a_next)); a_next += 1
    if ptrace == -2: pf.trace()
    p.e('s_waitcnt lgkmcnt(0)\ns_barrier')
    pf.stamp(6)
    wr = []
    for i in range(64):
        r, t = divmod(i, 16)
        if ptrace == -2 and i % 8 == 0: pf.trace()
        for nb in range(2):
            p.e(f'v_mfma_f32_32x32x16_bf16 {acc3[nb][r]}, {WO[t][4*nb:4*nb+4]}, {AB[i % 32]}, {acc3[nb][r]}')
            if nb == 0 and i + 30 < 64: p.e(aload(i + 30))
            if nb == 1 and wr and t >= 3: p.e(wr.pop(0))
        if t == 15 and r < 3:
            assert not wr
            wr = [f'ds_write_b128 {vrw[r]}, {acc3[nb][r][4*j:4*j+4]} offset:{(nb * 4 + j) * 1024}' for nb in range(2) for j in range(4)]
    pf.stamp(7)
    p.e('s_waitcnt lgkmcnt(0)\ns_barrier')
    for sl in range(3):
        for nb in range(2):
            for j in range(4): p.e(f'ds_read_b128 {acc3[nb][sl][4*j:4*j+4]}, {vrr} offset:{sl * 8192 + (nb * 4 + j) * 1024}')
    for nb in range(2):
        a_ = acc3[nb][3]
        for jp in range(2):
            for sl in range(3):
                for i in range(4 * jp, 4 * jp + 4): p.e(f'v_pk_add_f32 {a_[2*i:2*i+2]}, {a_[2*i:2*i+2]}, {acc3[nb][sl][2*i:2*i+2]}')
            o = Sx[0][8 + 4 * jp:12 + 4 * jp] if nb == 0 else P[0][4 * jp:4 * jp + 4]
            for i in range(4): p.e(f'v_cvt_pk_bf16_f32 {o[i]}, {a_[8 * jp + 2 * i]}, {a_[8 * jp + 2 * i + 1]}')
            p.e(f'v_permlane32_swap_b32 {o[0]}, {o[2]}\nv_permlane32_swap_b32 {o[1]}, {o[3]}')
            p.e(f'buffer_store_dwordx4 {o}, {vout}, {sout}, 0 offen offset:{nb * 64 + jp * 32}')
    pf.stamp(8)
    pf.flush(s_w, sws, vl, vu0)
    if dbg:
        p.e(f"""
        v_readlane_b32 {s_t0}, {vtr}, 44
        v_readlane_b32 {s_t1}, {vtr}, 45
        v_and_b32 {vu1}, 1, {vl}
        v_cmp_eq_u32 vcc, 0, {vu1}
        v_mov_b32 {vu1}, {s_t0}
        v_mov_b32 {vu2}, {s_t1}
        v_cndmask_b32 {vu1}, {vu2}, {vu1}, vcc
        v_sub_u32 {vu1}, {vtr}, {vu1}
        v_subrev_u32 {vu2}, 46, {vl}
        v_lshlrev_b32 {vu2}, 2, {vu2}
        v_cmp_gt_u32 vcc, 64, {vu2}
        v_cndmask_b32 {vu2}, 2.0, {vu2}, vcc
        s_mov_b32 {skv[0]}, {pdbg[0]}
        s_mov_b32 {skv[1]}, {pdbg[1]}
        s_movk_i32 {skv[2]}, 64
        s_lshl_b32 {s_t0}, s2, 2
        s_add_u32 {s_t0}, {s_t0}, {s_w}
        s_cmp_eq_u32 {s_t0}, {dbg - 1}
        s_cselect_b32 {s_t0}, 0, 2.0
        buffer_store_dword {vu1}, {vu2}, {skv}, {s_t0} offen
        """)
    p.e('s_endpgm')

    p.seg('slow0')
    p.e(f'{name}_slow:')
    p.e(f"""
    s_waitcnt vmcnt(0) lgkmcnt(0)
    v_mov_b32 {vu0}, 0xff800000
    v_mov_b32 {vu1}, 0xff800000
    s_mov_b32 {s_okv}, 0
    s_mov_b32 {skv[2]}, 262144
    """)
    p.seg('slow1')
    p.e(f'{name}_slow1:')
    for f in range(2): p.e(f'buffer_load_dwordx4 {K[0][4*f:4*f+4]}, {vl16}, {skv}, {s_okv} offen offset:{f * 1024}')
    for q in range(2):
        for f in range(2): p.e(qk(Sx[q], 0, q, f, '0'))
    rowmax(vu0, Sx[0], False); rowmax(vu1, Sx[1], False)
    p.e(f's_add_u32 {s_okv}, {s_okv}, 4096\ns_cmp_lt_u32 {s_okv}, 262144\ns_cbranch_scc1 {name}_slow1')
    p.seg('slow2')
    setc(0, vu0); setc(1, vu1)
    for q in range(2):
        for i in range(16): p.e(f'v_accvgpr_write_b32 {O[q][i]}, 0')
        for i in range(4): p.e(f'v_accvgpr_write_b32 {L[q][i]}, 0')
    p.e(f's_mov_b32 {s_okv}, 0')
    p.seg('slow3')
    p.e(f'{name}_slow3:')
    for f in range(2): p.e(f'buffer_load_dwordx4 {K[0][4*f:4*f+4]}, {vl16}, {skv}, {s_okv} offen offset:{f * 1024}')
    for f in range(2): p.e(f'buffer_load_dwordx4 {V[0][4*f:4*f+4]}, {vl16}, {skv}, {s_okv} offen offset:{2048 + f * 1024}')
    for q in range(2):
        for f in range(2): p.e(qk(Sx[q], 0, q, f, C[q]))
    for q in range(2):
        for i in range(16): p.e(f'v_exp_f32 {Sx[q][i]}, {Sx[q][i]}')
        for i in range(8): p.e(cvt(q, i))
        p.add([pv(q, 0), pv(q, 1), rsum(q)])
    p.e(f's_add_u32 {s_okv}, {s_okv}, 4096\ns_cmp_lt_u32 {s_okv}, 262144\ns_cbranch_scc1 {name}_slow3')
    p.seg('slow4')
    lsum()
    p.e(f's_branch {name}_epi')
    for lab, cond, reload_ in spins:
        p.seg(lab)
        p.e(f'{lab}_spin:\ns_mov_b32 {s_cnt if lab.endswith("cnt") else s_spin}, {SPIN}\n{lab}_again:\ns_sleep 2')
        p.add(reload_)
        p.e('s_waitcnt vmcnt(0)\ns_nop 1')
        p.add(cond)
        r_ = s_cnt if lab.endswith('cnt') else s_spin
        p.e(f's_nop 4\ns_cbranch_vccz {lab}_ok\ns_sub_u32 {r_}, {r_}, 1\ns_cmp_lg_u32 {r_}, 0\ns_cbranch_scc1 {lab}_again\ns_branch {lab}_ok')
    p.seg('end')
    p.e(f'{name}_end:\ns_endpgm')
    mid = ['join', 'partA', 'loop', 'loop', 'tail']
    slow = ['slow0', 'slow1', 'slow1', 'slow2', 'slow3', 'slow3', 'slow4']
    traces = []
    for wc in range(2):
        for x in ([], ['pfx']):
            traces.append(['pro'] + x + ['pro2', f'c{wc}a', f'c{wc}l1', f'c{wc}l2', f'c{wc}l1', f'c{wc}l2', f'c{wc}l1', f'c{wc}last'] + mid + ['epi'])
    traces.append(mid + slow + ['epi'])
    for lab, _, _ in spins: traces.append([lab])
    p.auto_waits(traces)
    nn = p.hazards(traces)
    return kernel_header(name) + p.text(), kernel_desc(name), dict(nops=nn, v=va.p, a=aa.p, s=max(sa.p, s_hi))

if __name__ == '__main__':
    import sys
    NAME = 'gated_mix__softmax_full_mha__glu_gated_bilinear__prompt'
    REF = f'cdna_kernels/{NAME}.s.ref'
    dst = sys.argv[1]
    kw = {a.split('=')[0]: float(a.split('=')[1]) if '.' in a else int(a.split('=')[1]) for a in sys.argv[2:] if '=' in a}
    t, d, info = gen_fused(NAME + '_kernel', prof='prof' in sys.argv, force_slow='slow' in sys.argv, **kw)
    print(info, file=sys.stderr)
    head = [l for l in open(REF).read().split('\n') if l.startswith(';') and '@launch' not in l]
    out = '\n'.join(head) + f'\n; @launch grid=(256,1,1) block=(256,1,1) lds={F_LDS}\n.amdgcn_target "amdgcn-amd-amdhsa--gfx950"\n' + t + d
    open(dst, 'w').write(out)
```

```python
from gen_common import *

X0, X1, W0, W1, QS = 0, 32768, 65536, 106496, 147456
F_LDS = 163840
WS_FL = 33 << 20
DBG_CNT = 64
SPIN = 40000

def gen_fused(name, prof=False, pfd=4, cq=8, cg=6.5, cx=4, NB=8, DD=4, PM=34, HP=1.0, force_slow=False, ptrace=0, dbg=0, exp_=0, VSP=2, PFP=18, OC=7, KP=3, H0=4, ROT=0, CPF=1, OUTM=0, CP0=1, CP2=0, FG=3, TLB=0, PG=3, E0=9, st_mod=' sc1'):
    pfm = 1; xpf = 1
    p = Prog()
    sa = Alloc('s', 4, 102); va = Alloc('v', 1, 256); aa = Alloc('a', 0, 256)
    ptr = sa(16, 4)
    px, pqkv, pwo, pwg, pwu, pwd, pgw = ptr[0:2], ptr[2:4], ptr[4:6], ptr[8:10], ptr[10:12], ptr[12:14], ptr[14:16]
    pod = sa(4, 4); pout, pdbg = pod[0:2], pod[2:4]
    pws = sa(2); smask = sa(2)
    sws = sa(4); sfl = sa(4); sdbg = sa(4)
    s_mb, s_h, s_w, s_wr, s_wc, s_t0, s_t1, s_t2, s_cnt, s_tr, s_hb = [sa() for _ in range(11)]
    s_pt = sa(4, 2)
    s_base = sa.p
    sx = sa(4); sq = sa(4); sg = sa(4); spf = sa(4); sp2 = sa(4); sp3 = sa(4)
    s_c0, s_c1, s_ox, s_oq, s_og, s_pfo, s_pfs, s_gs, s_grp, s_ano = [sa() for _ in range(10)]
    m0x = [[sa() for _ in range(2)] for _ in range(2)]
    m0w = [[sa() for _ in range(3)] for _ in range(2)]
    s_hi = sa.p

    vl, vpd, vflag, vtr, vflk = [va() for _ in range(5)]
    v_base = va.p
    pf = Prof2(p, prof, s_pt, vtr, s_tr)
    vdx = [va() for _ in range(8)]; vdq = [va() for _ in range(2)]; vdq.append(vdq[0]); vdg = [va() for _ in range(7)]
    vxr = [va() for _ in range(2)]; vqr = [va() for _ in range(2)]; vgr = [va() for _ in range(2)]
    vt0, vt1, vt2, vt3, vpf = [va() for _ in range(5)]
    vcnt = va(); vwo = va()
    vtmp = va(28, 4)
    assert vtmp.a == 36
    xf = [[aa(4, 4) for _ in range(8)] for _ in range(2)]
    NSLOT = 4; DIST = 3
    wf = [aa(4, 4) for _ in range(NSLOT)]
    acc = [[None] * 8 for _ in range(10)]
    for n in [0, 1, 6, 7, 8, 9, 2, 3, 4, 5]:
        for m in range(8):
            acc[n][m] = va(4, 4) if va.p + 4 <= 256 else aa(4, 4)

    def dma_x(st):
        L = []
        for i in range(8):
            pre = [f's_mov_b32 m0, {m0x[st][i // 4]}'] if i % 4 == 0 else []
            L.append((pre, Ins(f'buffer_load_dwordx4 {vdx[i]}, {sx}, {s_ox} offen offset:{(i % 4) * 1024} lds', f'S{st}')))
        return L
    def dma_w(st):
        L = []
        for i in range(10):
            pre = [f's_mov_b32 m0, {m0w[st][i // 4]}'] if i % 4 == 0 else []
            v, sr, so = (vdq[i - 7], sq, s_oq) if i >= 7 else (vdg[i], sg, s_og)
            L.append((pre, Ins(f'buffer_load_dwordx4 {v}, {sr}, {so} offen offset:{(i % 4) * 1024} lds', f'S{st}')))
        return L
    def emit(lst):
        for pre, ins in lst:
            p.add(pre); p.add([ins])
    adv = [f's_add_u32 {s_oq}, {s_oq}, {64 * 6144}', f's_add_u32 {s_og}, {s_og}, {64 * 7168}', f's_add_u32 {s_ox}, {s_ox}, 128']

    p.seg('pro')
    p.e(f"""
    s_cmp_ge_u32 s2, 256
    s_cbranch_scc1 {name}_end
    s_load_dwordx16 {ptr}, s[0:1], 0
    s_load_dwordx4 {pod}, s[0:1], 64
    s_load_dwordx2 {pws}, s[0:1], 80
    v_lshrrev_b32 {vt0}, 6, v0
    v_and_b32 {vl}, 63, v0
    s_lshr_b32 {s_t1}, s2, 3
    v_readfirstlane_b32 {s_w}, {vt0}
    s_and_b32 {s_mb}, {s_t1}, 7
    s_and_b32 {s_t0}, s2, 7
    s_lshr_b32 {s_t1}, {s_t1}, 3
    s_lshl_b32 {s_h}, {s_t0}, 2
    s_add_u32 {s_h}, {s_h}, {s_t1}
    s_lshr_b32 {s_wr}, {s_w}, 1
    s_and_b32 {s_wc}, {s_w}, 1
    """)
    if CP0:
        p.e(f"""
        s_getpc_b64 {sp3[0:2]}
        {name}_pcs:
        s_and_b32 {sp3[1]}, {sp3[1]}, 0xffff
        s_mov_b32 {sp3[2]}, {name}_join-{name}_pcs
        s_mov_b32 {sp3[3]}, 0x00020000
        s_lshr_b32 {s_t0}, s2, 3
        s_lshl_b32 {s_t0}, {s_t0}, 2
        s_add_u32 {s_t0}, {s_t0}, {s_w}
        s_lshl_b32 {s_t0}, {s_t0}, 7
        v_lshl_add_u32 {vwo}, {vl}, 14, {s_t0}
        """)
        p.add([Ins(f'buffer_load_dword {vpd}, {vwo}, {sp3}, 0 offen', 'pf')])
    if xpf:
        p.e(f"""
        v_and_b32 {vt0}, 7, {vl}
        v_lshrrev_b32 {vt1}, 3, {vl}
        v_mul_u32_u24 {vt2}, 86, {vt1}
        v_lshrrev_b32 {vt2}, 8, {vt2}
        v_mad_i32_i24 {vt1}, {vt2}, -3, {vt1}
        v_lshl_add_u32 {vt0}, {vt2}, 6, {vt0}
        s_lshl_b32 {s_t0}, {s_mb}, 3
        v_add_u32 {vt0}, {s_t0}, {vt0}
        s_cmp_eq_u32 {s_w}, 3
        s_movk_i32 {s_c0}, 7168
        s_cmov_b32 {s_c0}, 6144
        s_movk_i32 {s_c1}, 108
        s_cmov_b32 {s_c1}, 2048
        v_mul_u32_u24 {vt0}, {s_c0}, {vt0}
        v_mad_u32_u24 {vpf}, {vt1}, {s_c1}, {vt0}
        v_cmp_gt_u32 vcc, 48, {vl}
        s_lshl_b32 {s_t0}, {s_t1}, 17
        v_lshl_add_u32 {vt0}, {vl}, 11, {s_t0}
        v_cndmask_b32 {vpf}, 2.0, {vpf}, vcc
        s_cmp_eq_u32 {s_w}, 0
        s_cselect_b64 vcc, -1, 0
        v_cndmask_b32 {vpf}, {vpf}, {vt0}, vcc
        v_cndmask_b32 {vt3}, 2.0, {vt0}, vcc
        """)
    p.e(f"""
    s_lshl_b32 {s_t0}, {s_mb}, 19
    s_lshl_b32 {s_t1}, {s_h}, 6
    s_mul_i32 {s_t2}, {s_h}, 224
    s_waitcnt lgkmcnt(0)
    """)
    pf.stamp(0)
    pf.trace_init(vtr, s_tr)
    srd(p, sx, px, off_s=s_t0, size=S * D * 2, size_s=s_t0)
    srd(p, sq, pqkv, off_s=s_t1, size=D * 3072 * 2, size_s=s_t1)
    p.e(f"""
    s_cmp_ge_u32 {s_w}, 2
    s_cselect_b32 {s_t0}, {pwu[0]}, {pwg[0]}
    s_cselect_b32 {s_t1}, {pwu[1]}, {pwg[1]}
    s_add_u32 {sg[0]}, {s_t0}, {s_t2}
    s_addc_u32 {sg[1]}, {s_t1}, 0
    s_sub_u32 {sg[2]}, {D * F * 2}, {s_t2}
    s_mov_b32 {sg[3]}, 0x00020000
    """)
    if xpf:
        p.e(f"""
        s_cmp_eq_u32 {s_w}, 3
        s_cselect_b64 {spf[0:2]}, {sq[0:2]}, {sg[0:2]}
        s_cselect_b32 {spf[2]}, {sq[2]}, {sg[2]}
        s_cmp_eq_u32 {s_w}, 0
        s_cselect_b64 {spf[0:2]}, {sx[0:2]}, {spf[0:2]}
        s_cselect_b32 {spf[2]}, {sx[2]}, {spf[2]}
        s_mov_b32 {spf[3]}, 0x00020000
        """)
        p.add([Ins(f'buffer_load_dword {vpd}, {vpf}, {spf}, 0 offen', 'pf')])
        if xpf > 1: p.add([Ins(f'buffer_load_dword {vpd}, {vt3}, {spf}, 0 offen offset:128', 'pf')])
    if ptrace > 0: pf.trace()
    p.e(f"""
    v_lshrrev_b32 {vt0}, 3, {vl}
    v_and_b32 {vt1}, 7, {vl}
    v_lshrrev_b32 {vt2}, 4, {vl}
    v_xor_b32 {vt1}, {vt1}, {vt2}
    v_lshlrev_b32 {vt3}, 11, {vt0}
    s_lshl_b32 {s_t0}, {s_w}, 17
    v_add_u32 {vt3}, {s_t0}, {vt3}
    v_lshl_add_u32 {vdx[0]}, {vt1}, 4, {vt3}
    v_xor_b32 {vt1}, 4, {vt1}
    v_lshl_add_u32 {vdx[1]}, {vt1}, 4, {vt3}
    v_add_u32 {vdx[1]}, {16384 - 1024}, {vdx[1]}
    s_lshl_b32 {m0x[0][0]}, {s_w}, 13
    s_add_u32 {m0x[0][1]}, {m0x[0][0]}, 4096
    s_mov_b32 {s_ox}, 0
    """)
    for i in range(2, 8):
        p.e(f'v_add_u32 {vdx[i]}, {(i - i % 2) * 16384 - (i % 4 - i % 2) * 1024}, {vdx[i % 2]}')
    emit(dma_x(0))
    if ptrace > 0: pf.trace()
    p.e(f"""
    v_lshrrev_b32 {vt0}, 2, {vl}
    v_lshrrev_b32 {vt2}, 4, {vl}
    v_and_b32 {vt2}, 2, {vt2}
    v_and_b32 {vt1}, 3, {vl}
    v_xor_b32 {vt1}, {vt1}, {vt2}
    s_lshl_b32 {s_t1}, {s_w}, 4
    v_add_u32 {vt0}, {s_t1}, {vt0}
    v_mul_u32_u24 {vt0}, 6144, {vt0}
    v_lshl_add_u32 {vdq[1]}, {vt1}, 4, {vt0}
    v_add_u32 {vdq[0]}, 1024, {vdq[1]}
    s_mul_i32 {s_t1}, {s_w}, 10240
    s_mov_b32 {s_oq}, 0
    s_mov_b32 {s_og}, 0
    """)
    for st in range(2):
        for j in range(3): p.e(f's_add_u32 {m0w[st][j]}, {s_t1}, {(W0, W1)[st] + j * 4096}')
    w0 = dma_w(0)
    p.e(f's_mov_b32 m0, {m0w[0][1]}')
    emit(w0[7:])
    p.e(f"""
    s_mul_i32 {s_t0}, {s_wc}, {32 * 7168}
    s_movk_i32 {s_c0}, 6944
    s_movk_i32 {s_c1}, 28672
    v_mul_u32_u24 {vt3}, 4682, {vl}
    v_lshl_add_u32 {vpf}, {vl}, 4, {s_t0}
    """)
    for j in range(7):
        imm = (j % 4) * 1024
        tj = vt3
        if j:
            p.e(f'v_add_u32 {vt0}, {64 * j * 4682}, {vt3}'); tj = vt0
        p.e(f"""
        v_bfe_u32 {vt1}, {tj}, 18, 1
        v_bfe_u32 {vt2}, {tj}, 19, 1
        v_lshrrev_b32 {vt0}, 16, {tj}
        v_sub_u32 {vt1}, {vt1}, {vt2}
        v_mad_u32_u24 {vdg[j]}, {vt0}, {s_c0}, {vpf}
        v_mad_i32_i24 {vdg[j]}, {vt1}, {s_c1}, {vdg[j]}
        """)
        if j == 3: p.e(f'v_add_u32 {vpf}, 4096, {vpf}')
        emit([w0[j]])
    p.add(adv)
    if ptrace > 0: pf.trace()
    gx = [vtmp[4 * i:4 * i + 4] for i in range(4)]; gw = [vtmp[16:20], vtmp[20:24]]; t = vtmp[24:28]; z = [vt0, vt1]
    p.e(f's_mov_b32 {sp2[3]}, 0x00020000')
    gate_pre = [f's_mov_b32 {spf[0]}, {pgw[0]}', f's_mov_b32 {spf[1]}, {pgw[1]}', f's_movk_i32 {spf[2]}, 2048']
    p.e(f"""
    s_lshl_b32 {s_t0}, {s_h}, 3
    s_lshl_b32 {s_t1}, {s_w}, 1
    s_add_u32 {s_t0}, {s_t0}, {s_t1}
    s_lshl_b32 {s_t2}, {s_t0}, 11
    s_add_u32 {m0x[1][0]}, {m0x[0][0]}, {X1}
    s_add_u32 {m0x[1][1]}, {m0x[0][0]}, {X1 + 4096}
    """)
    gate_loads = [f'buffer_load_dwordx4 {gw[0]}, {z[0]}, {spf}, 0 offen', f'buffer_load_dwordx4 {gw[1]}, {z[0]}, {spf}, 0 offen offset:16'] + \
                 [f'buffer_load_dwordx4 {gx[i]}, {z[0]}, {sx}, {s_t2} offen offset:{(i // 2) * 2048 + (i % 2) * 16}' for i in range(4)]
    PD = pfd
    def pfetch():
        return [Ins(f'buffer_load_dword {vpd}, {vpf}, {spf}, {s_pfo} offen', 'pf'), f's_add_u32 {s_pfo}, {s_pfo}, {s_pfs}']
    def pfetch_d():
        return [Ins(f'buffer_load_dword {vpd}, {vt3}, {sp2}, {s_c1} offen', 'pf'), f's_add_u32 {s_c1}, {s_c1}, {4096 * 128}']
    if pfm:
        p.e(f"""
        s_cmp_eq_u32 {s_w}, 0
        s_cselect_b32 {spf[0]}, {pqkv[0]}, {pwg[0]}
        s_cselect_b32 {spf[1]}, {pqkv[1]}, {pwg[1]}
        s_cselect_b32 {s_t0}, 12, 14
        s_cmp_eq_u32 {s_w}, 2
        s_cselect_b32 {spf[0]}, {pwu[0]}, {spf[0]}
        s_cselect_b32 {spf[1]}, {pwu[1]}, {spf[1]}
        s_lshl_b32 {spf[2]}, {s_t0}, 19
        s_lshl_b32 {s_pfs}, {s_t0}, 15
        s_mul_i32 {s_t1}, {s_t0}, s2
        v_and_b32 {vt1}, 15, {vl}
        v_add_u32 {vt0}, {s_t1}, {vt1}
        v_lshlrev_b32 {vpf}, 7, {vt0}
        v_cmp_gt_u32 vcc, {s_t0}, {vt1}
        v_cndmask_b32 {vpf}, 2.0, {vpf}, vcc
        s_mov_b32 {spf[3]}, 0x00020000
        s_cmp_lg_u32 {s_w}, 3
        s_cbranch_scc1 {name}_pf0
        """)
        p.seg('pfx')
        p.e(f"""
        s_mov_b32 {spf[0]}, {px[0]}
        s_mov_b32 {spf[1]}, {px[1]}
        s_mov_b32 {spf[2]}, {S * D * 2}
        s_movk_i32 {s_pfs}, 128
        s_lshl_b32 {s_t1}, s2, 14
        v_lshl_add_u32 {vpf}, {vt1}, 11, {s_t1}
        v_cmp_gt_u32 vcc, 8, {vt1}
        v_cndmask_b32 {vpf}, 2.0, {vpf}, vcc
        """)
        p.seg('pro2')
        p.e(f"""
        {name}_pf0:
        v_lshrrev_b32 {vt0}, 4, {vl}
        v_mul_lo_u32 {vt0}, {vt0}, {s_pfs}
        v_add_u32 {vt0}, {vt0}, {vpf}
        v_cmp_eq_u32 vcc, 2.0, {vpf}
        v_cndmask_b32 {vt0}, {vt0}, {vpf}, vcc
        v_cmp_gt_u32 vcc, {16 * (PD - (2 if xpf > 1 else 1))}, {vl}
        v_cndmask_b32 {vt0}, 2.0, {vt0}, vcc
        s_lshl_b32 {s_pfo}, {s_pfs}, {1 if xpf > 1 else 0}
        """)
        p.add([Ins(f'buffer_load_dword {vpd}, {vt0}, {spf}, {s_pfo} offen', 'pf')])
        p.e(f"""
        v_cmp_gt_u32 vcc, 16, {vl}
        v_cndmask_b32 {vpf}, 2.0, {vpf}, vcc
        s_mul_i32 {s_pfo}, {s_pfs}, {PD}
        """)
    else:
        p.seg('pfx'); p.seg('pro2')
    if ptrace > 0: pf.trace()
    srd(p, sws, pws, size=WS_SIZE)
    srd(p, sfl, pws, off_imm=WS_FL, size=8192)
    p.e(f"""
    s_lshl_b32 {s_t0}, {s_mb}, 5
    s_add_u32 {s_t0}, {s_t0}, {s_h}
    s_lshl_b32 {s_t0}, {s_t0}, 2
    s_add_u32 {s_t0}, {s_t0}, {s_w}
    s_lshl_b32 {s_t0}, {s_t0}, 2
    v_mov_b32 {vt0}, {s_t0}
    v_cmp_eq_u32 vcc, 0, {vl}
    v_mov_b32 {vt1}, 0
    v_cndmask_b32 {vflag}, 2.0, {vt0}, vcc
    s_lshl_b32 {s_t0}, {s_h}, 3
    s_add_u32 {s_t0}, {s_t0}, {s_mb}
    s_lshl_b32 {s_t0}, {s_t0}, 2
    s_add_u32 {s_t0}, {s_t0}, {s_w}
    s_lshl_b32 {s_t0}, {s_t0}, 2
    s_add_u32 {s_t0}, {s_t0}, 4096
    v_mov_b32 {vt0}, {s_t0}
    buffer_store_dword {vt1}, {vflag}, {sfl}, 0 offen sc1
    v_cndmask_b32 {vflk}, 2.0, {vt0}, vcc
    buffer_store_dword {vt1}, {vflk}, {sfl}, 0 offen sc1
    """)
    p.e(f"""
    v_and_b32 {vt0}, 15, {vl}
    v_lshrrev_b32 {vt1}, 4, {vl}
    v_lshrrev_b32 {vt2}, 1, {vt0}
    v_xor_b32 {vt2}, {vt1}, {vt2}
    s_lshl_b32 {s_t0}, {s_wr}, 14
    v_lshl_add_u32 {vt3}, {vt0}, 7, {s_t0}
    v_lshl_add_u32 {vxr[0]}, {vt2}, 4, {vt3}
    v_xor_b32 {vxr[1]}, 64, {vxr[0]}
    v_and_b32 {vt3}, 3, {vt0}
    v_lshlrev_b32 {vt3}, 3, {vt3}
    v_lshrrev_b32 {vt0}, 2, {vt0}
    v_lshrrev_b32 {vt2}, 1, {vt1}
    v_and_b32 {vt1}, 1, {vt1}
    v_mul_u32_u24 {vqr[0]}, 10240, {vt2}
    v_mul_u32_u24 {vqr[1]}, {512 + 32}, {vt1}
    v_add3_u32 {vqr[0]}, {vqr[0]}, {vqr[1]}, {vt3}
    v_lshl_add_u32 {vqr[0]}, {vt0}, 6, {vqr[0]}
    s_lshl_b32 {s_t0}, {s_wc}, 10
    s_sub_u32 {s_t0}, {W0 + 8192}, {s_t0}
    v_add_u32 {vqr[0]}, {s_t0}, {vqr[0]}
    v_xor_b32 {vqr[1]}, 32, {vqr[0]}
    v_lshl_add_u32 {vt0}, {vt1}, 2, {vt0}
    v_lshl_add_u32 {vt0}, {vt2}, 4, {vt0}
    v_mul_u32_u24 {vt0}, 224, {vt0}
    s_mul_i32 {s_t0}, {s_wc}, 96
    s_add_u32 {s_t0}, {s_t0}, {W0}
    v_add3_u32 {vgr[0]}, {vt0}, {vt3}, {s_t0}
    v_add_u32 {vgr[1]}, 20480, {vgr[0]}
    s_lshl_b32 {s_t0}, {s_mb}, 5
    s_add_u32 {s_t0}, {s_t0}, {s_h}
    s_lshl_b32 {s_t0}, {s_t0}, 7
    s_lshl_b32 {s_t1}, {s_w}, 3
    s_add_u32 {s_t0}, {s_t0}, {s_t1}
    s_add_u32 {s_gs}, {s_t0}, {WS_G}
    v_lshlrev_b32 {z[0]}, 5, {vl}
    """)
    if ptrace > 0: pf.trace()
    p.e('WAITTAG S0')
    if ptrace > 0: pf.trace()
    p.e('s_barrier')
    if ptrace > 0: pf.trace()
    pf.stamp(1)

    def gate_ops():
        L = []
        for r in range(2):
            for j in range(8):
                xr = gx[2 * r + j // 4][j % 4]; wr_ = gw[j // 4][j % 4]
                L += [f'v_lshlrev_b32 {t[0]}, 16, {xr}', f'v_lshlrev_b32 {t[1]}, 16, {wr_}',
                      f'v_and_b32 {t[2]}, 0xffff0000, {xr}', f'v_and_b32 {t[3]}, 0xffff0000, {wr_}',
                      f'v_mul_f32 {t[0]}, {t[0]}, {t[1]}', f'v_mul_f32 {t[2]}, {t[2]}, {t[3]}',
                      f'v_cvt_pk_bf16_f32 {t[0]}, {t[0]}, {t[2]}', f'v_lshlrev_b32 {t[1]}, 16, {t[0]}',
                      f'v_and_b32 {t[2]}, 0xffff0000, {t[0]}']
                if j == 0: L.append(f'v_add_f32 {z[r]}, {t[1]}, {t[2]}')
                else: L += [f'v_add_f32 {t[1]}, {t[1]}, {t[2]}', f'v_add_f32 {z[r]}, {z[r]}, {t[1]}']
        for mode in ('quad_perm:[1,0,3,2]', 'quad_perm:[2,3,0,1]', 'row_half_mirror', 'row_mirror'):
            for r in range(2): L.append(f'v_add_f32_dpp {z[r]}, {z[r]}, {z[r]} {mode} row_mask:0xf bank_mask:0xf')
        for op in ('v_permlane16_swap_b32', 'v_permlane32_swap_b32'):
            for r in range(2): L.append(f'v_mov_b32 {t[r]}, {z[r]}')
            for r in range(2): L.append(f'{op} {t[r]}, {z[r]}')
            for r in range(2): L.append(f'v_add_f32 {z[r]}, {z[r]}, {t[r]}')
        L += f"""v_and_b32 {t[1]}, 1, {vl}
        v_cmp_eq_u32 vcc, 1, {t[1]}
        v_and_b32 {t[3]}, 2, {vl}
        v_cndmask_b32 {t[0]}, {z[0]}, {z[1]}, vcc
        v_cvt_pk_bf16_f32 {t[0]}, {t[0]}, {t[0]}
        v_and_b32 {t[0]}, 0xffff0000, {t[0]}
        v_mul_f32 {t[0]}, {hex(f32bits(-math.log2(math.e)))}, {t[0]}
        v_exp_f32 {t[0]}, {t[0]}
        v_cmp_eq_u32 vcc, 2, {t[3]}
        v_add_f32 {t[0]}, 1.0, {t[0]}
        v_rcp_f32 {t[0]}, {t[0]}
        v_lshlrev_b32 {t[3]}, 4, {t[3]}
        v_cvt_pk_bf16_f32 {t[0]}, {t[0]}, {t[0]}
        v_and_b32 {t[0]}, 0xffff0000, {t[0]}
        v_sub_f32 {t[2]}, 1.0, {t[0]}
        v_cvt_pk_bf16_f32 {t[2]}, {t[2]}, {t[2]}
        v_and_b32 {t[2]}, 0xffff0000, {t[2]}
        v_cndmask_b32 {t[0]}, {t[0]}, {t[2]}, vcc
        v_lshl_add_u32 {t[3]}, {t[1]}, 2, {t[3]}
        v_cmp_gt_u32 vcc, 4, {vl}
        v_cndmask_b32 {t[3]}, 2.0, {t[3]}, vcc
        buffer_store_dword {t[0]}, {t[3]}, {sws}, {s_gs} offen{st_mod}""".split('\n')
        return [x.strip() for x in L]

    def wread(j, st, wc):
        ks, n = divmod(j, 10)
        slot = wf[j % NSLOT]
        nq = 4 if wc == 0 else 2
        if n < nq: base = vqr[n % 2]; off = ks * 20480 + (1024 if (wc == 0 and n < 2) else 0); so = 256
        else: base = vgr[(n - nq) % 2]; off = ks * 10240 + ((n - nq) // 2) * 32; so = 1792
        off += st * (W1 - W0)
        return [f'ds_read_b64_tr_b16 {slot[2 * s:2 * s + 2]}, {base} offset:{off + s * so}' for s in range(2)]
    def xread(m, ks, st):
        return f'ds_read_b128 {xf[ks][m]}, {vxr[ks]} offset:{st * (X1 - X0) + m * 2048}'

    for m in range(8): p.e(xread(m, 0, 0))
    p.e(f's_cmp_eq_u32 {s_wc}, 1')
    p.e(f's_cbranch_scc1 {name}_c1')

    def stage(st, wc, first=False, last=False, extra=None, fill=None, estep=2, postbar=None, nodma1=False, early=None):
        slots = {}
        for j in range(20):
            jj = j + DIST
            if jj < 20: rd = wread(jj, st, wc)
            elif last: continue
            else: rd = wread(jj - 20, st ^ 1, wc)
            place(slots, 8 * j + 0, rd[0]); place(slots, 8 * j + 2, rd[1])
        for m in range(8): place(slots, 8 * (1 + m) + 4, xread(m, 1, st))
        bar = 8 * (20 - DIST)
        if not last:
            for m, c in enumerate((1, 3, 4, 6, 9, 11, 12, 14)): place(slots, bar + c, xread(m, 0, st ^ 1))
        pos = []; c = 1.0
        for k in range(18):
            pos.append(int(c)); c += cg if k < 7 else (cq if k < 10 else cx)
        endc = int(c) - (160 - bar)
        if first:
            pos = [x + 160 - bar for x in pos]; endc += 160 - bar
        if not last:
            dl = dma_w(st ^ 1) + dma_x(st ^ 1)
            for k in range(18):
                c = pos[k] - (160 - bar)
                if c < 0: continue
                for x in dl[k][0]: place(slots, max(c - 1, 0), x)
                place(slots, c, dl[k][1])
            for i, x in enumerate(adv): place(slots, endc - 2 + i, x)
            if first: pos = [x - (160 - bar) for x in pos]
            dl = dma_w(st) + dma_x(st)
            for k in range(18):
                c = bar + pos[k]
                if c >= 160 or nodma1: continue
                for x in dl[k][0]: place(slots, c - 1, x)
                place(slots, c, dl[k][1])
        if early:
            c = (pos[PFP] - (0 if first else 160 - bar) - 2) if PFP < 18 else endc + 1
            for x in early: place(slots, max(c, 0), x); c += 1
            if PFP >= 18: endc = c + 1
        c = endc + 1
        for x in (extra or []):
            if isinstance(x, list):
                for y in x: place(slots, c, y)
                c += estep; continue
            place(slots, c, x)
            c += 3 if (isinstance(x, Ins) or x.startswith('buffer')) else estep
        assert c < bar
        for i, x in enumerate(postbar or []): place(slots, bar + 13 + i, x)
        fill = [x if isinstance(x, tuple) else (0, x) for x in (fill or [])]
        for c in range(160):
            ks, r = divmod(c, 80); n, mi = divmod(r, 8)
            m = mi if n % 2 == 0 else 7 - mi
            if c == 0 and not first: p.e('s_waitcnt lgkmcnt(2)')
            if c == bar and not last:
                p.e(f'WAITTAG S{st ^ 1} LGKM0')
                p.e('s_barrier')
                if ptrace > 1: pf.trace()
            w = wf[(ks * 10 + n) % NSLOT]; x = xf[ks][m]
            a, b = (x, w) if (wc == 1 and n < 2) else (w, x)
            cin = '0' if (first and ks == 0) else str(acc[n][m])
            p.e(f'v_mfma_f32_16x16x32_bf16 {acc[n][m]}, {a}, {b}, {cin}')
            here = slots.get(c, [])
            p.add(here)
            if c >= 1:
                for _ in range(2 - len(here)):
                    if fill and fill[0][0] <= c: p.add([fill.pop(0)[1]])
        return [x[1] for x in fill]

    def toreg(tile, tmp):
        if tile.k == 'v': return tile
        for i in range(4): p.e(f'v_accvgpr_read_b32 {tmp[i]}, {tile[i]}')
        return tmp
    def pack(o, t0, t1):
        p.e(f'v_cvt_pk_bf16_f32 {o[0]}, {t0[0]}, {t0[1]}\nv_cvt_pk_bf16_f32 {o[1]}, {t0[2]}, {t0[3]}')
        p.e(f'v_cvt_pk_bf16_f32 {o[2]}, {t1[0]}, {t1[1]}\nv_cvt_pk_bf16_f32 {o[3]}, {t1[2]}, {t1[3]}')

    def pf_setup():
        L = f"""s_lshl_b32 {s_t0}, s2, 2
        s_add_u32 {s_t0}, {s_t0}, {s_w}
        s_lshl_b32 {s_t1}, {s_t0}, 9
        v_lshl_add_u32 {vt3}, {vl}, 7, {s_t1}
        v_cmp_gt_u32 vcc, 4, {vl}
        s_mov_b32 {sp2[0]}, {pwd[0]}
        s_mov_b32 {sp2[1]}, {pwd[1]}
        s_mov_b32 {sp2[2]}, {F * D * 2}
        v_cndmask_b32 {vt3}, 2.0, {vt3}, vcc
        s_mov_b32 {s_c1}, 0""".split('\n')
        return [x.strip() for x in L]
    def pf3_setup():
        L = f"""s_mov_b32 {sp3[0]}, {pgw[0]}
        s_mov_b32 {sp3[1]}, {pgw[1]}
        s_movk_i32 {sp3[2]}, 2048
        s_mov_b32 {sp3[3]}, 0x00020000
        v_lshlrev_b32 {vwo}, 7, {vl}""".split('\n')
        L2 = f"""s_lshl_b32 {s_t0}, s2, 2
        s_add_u32 {s_t0}, {s_t0}, {s_w}
        s_lshl_b32 {s_t1}, {s_t0}, 11
        v_lshl_add_u32 {vwo}, {vl}, 7, {s_t1}
        v_cmp_gt_u32 {smask}, 16, {vl}
        s_mov_b32 {sp3[0]}, {pwo[0]}
        s_mov_b32 {sp3[1]}, {pwo[1]}
        s_mov_b32 {sp3[2]}, {D * D * 2}
        v_cndmask_b32 {vwo}, 2.0, {vwo}, {smask}""".split('\n')
        return [x.strip() for x in L] + [Ins(f'buffer_load_dword {vpd}, {vwo}, {sp3}, 0 offen', 'pf')] + [x.strip() for x in L2]
    def tlb_touch():
        return [f's_cmp_eq_u32 {s_w}, 1', f's_cselect_b32 {sp2[0]}, {pout[0]}, {pws[0]}', f's_cselect_b32 {sp2[1]}, {pout[1]}, {pws[1]}',
                f's_mov_b32 {sp2[2]}, {34 << 20}', f's_cmov_b32 {sp2[2]}, {S * D * 2}', f's_cmp_lt_u32 {s_w}, 2', f's_cselect_b32 {s_t0}, 0, 2.0',
                f'v_lshlrev_b32 {vt3}, 20, {vl}', Ins(f'buffer_load_dword {vpd}, {vt3}, {sp2}, {s_t0} offen sc1', 'pf')]
    pf_wo = [f's_cmp_eq_u32 {s_cnt}, 2', f's_cselect_b32 {s_t0}, 0, 2.0', Ins(f'buffer_load_dword {vpd}, {vwo}, {sp3}, {s_t0} offen', 'pf')]
    gate_sel = [f's_cmp_eq_u32 {s_cnt}, 0', f's_cselect_b32 {s_t0}, {s_t2}, 2.0', f's_cselect_b32 {s_t1}, 0, 2.0',
                f's_cselect_b32 {sp3[0]}, {pgw[0]}, {sp3[0]}', f's_cselect_b32 {sp3[1]}, {pgw[1]}, {sp3[1]}', f's_cselect_b32 {sp3[2]}, 0x800, {sp3[2]}']
    gate_loads = [f'buffer_load_dwordx4 {gw[i]}, {z[0]}, {sp3}, {s_t1} offen offset:{16 * i}' for i in range(2)] + \
                 [f'buffer_load_dwordx4 {gx[i]}, {z[0]}, {sx}, {s_t0} offen offset:{(i // 2) * 2048 + (i % 2) * 16}' for i in range(4)]

    spins = []
    def check(cond_lines, reload_lines, tag):
        lab = f'{name}_{tag}'
        spins.append((lab, cond_lines, reload_lines))
        return cond_lines + [f's_cbranch_vccnz {lab}_spin', f'{lab}_ok:']

    def lines(s): return [x.strip() for x in s.strip().split('\n')]
    def rd(tile, tmp):
        if tile.k == 'v': return tile, []
        return tmp, [f'v_accvgpr_read_b32 {tmp[i]}, {tile[i]}' for i in range(4)]
    def packl(o, t0, t1):
        return [f'v_cvt_pk_bf16_f32 {o[0]}, {t0[0]}, {t0[1]}', f'v_cvt_pk_bf16_f32 {o[1]}, {t0[2]}, {t0[3]}',
                f'v_cvt_pk_bf16_f32 {o[2]}, {t1[0]}, {t1[1]}', f'v_cvt_pk_bf16_f32 {o[3]}, {t1[2]}, {t1[3]}']
    def mul4(d, a_, b_, pk):
        if pk: return [f'v_pk_mul_f32 {d[2*i:2*i+2]}, {a_[2*i:2*i+2]}, {b_ if b_.k == "s" else b_[2*i:2*i+2]}' for i in range(2)]
        return [f'v_mul_f32 {d[i]}, {b_[0] if b_.k == "s" else b_[i]}, {a_[i]}' for i in range(4)]
    def hpiece(n, j, o, pk):
        L = []; tt = []
        for mm in range(2):
            g_, l0 = rd(acc[n][2 * j + mm], vtmp[8 * mm:8 * mm + 4]); u_, l1 = rd(acc[n + 1][2 * j + mm], vtmp[8 * mm + 4:8 * mm + 8])
            L += l0 + l1 + mul4(g_, g_, u_, pk); tt.append(g_)
        return L + packl(o, tt[0], tt[1]) + [f'v_permlane16_swap_b32 {o[0]}, {o[2]}', f'v_permlane16_swap_b32 {o[1]}, {o[3]}']
    hreg = [acc[7][2 * j] for j in range(4)] + [acc[6][2 * j] for j in range(4)] + [acc[8][2 * j] for j in range(4)]

    vq = vdx[0]; vh = vdx[1]; vql = vdx[2]; vqq = vdx[3]
    s_b, s_qs = s_oq, R('s', sx.a, 2)
    def epi_setup(wc):
        L = lines(f"""
        v_and_b32 {vt0}, 15, {vl}
        v_lshrrev_b32 {vt1}, 4, {vl}
        v_lshlrev_b32 {vq}, 9, {vt1}
        v_lshlrev_b32 {vh}, 4, {vl}
        s_lshl_b32 {s_t0}, {s_h}, 6
        s_lshl_b32 {s_t1}, {s_mb}, 3
        s_add_u32 {s_t0}, {s_t0}, {s_t1}
        s_lshl_b32 {s_t1}, {s_wr}, 2
        s_add_u32 {s_t0}, {s_t0}, {s_t1}
        s_lshl_b32 {s_b}, {s_t0}, 12
        s_add_u32 {s_b}, {s_b}, {WS_KV}
        s_add_u32 {s_og}, {s_b}, 4096
        s_add_u32 {s_ox}, {s_b}, 8192
        s_add_u32 {s_c0}, {s_b}, 12288
        s_lshl_b32 {s_t0}, {s_mb}, 1
        s_add_u32 {s_t0}, {s_t0}, {s_wr}
        s_mul_i32 {s_t0}, {s_t0}, 288
        s_mul_i32 {s_t1}, {s_h}, 7
        s_add_u32 {s_t0}, {s_t0}, {s_t1}
        s_lshl_b32 {s_t0}, {s_t0}, 12
        s_add_u32 {s_hb}, {s_t0}, {WS_A + 4 * 4096 * wc}
        s_sub_u32 {s_c1}, {s_hb}, 4096
        s_lshl_b32 {s_t1}, {s_wr}, 14""")
        if wc == 0:
            L += lines(f"""
            v_lshrrev_b32 {vt2}, 3, {vt0}
            v_lshl_add_u32 {vq}, {vt2}, 8, {vq}
            v_and_b32 {vt2}, 7, {vt0}
            v_lshl_add_u32 {vq}, {vt2}, 4, {vq}
            v_add_u32 {vql}, {s_t1}, {vq}
            s_lshl_b32 {s_t1}, {s_wr}, 13
            s_add_u32 {s_t1}, {s_t1}, {QS}
            v_add_u32 {vqq}, {s_t1}, {vq}
            s_mov_b32 {s_qs[0]}, {hex(f32bits(QSCALE))}
            s_mov_b32 {s_qs[1]}, {s_qs[0]}""")
        else:
            L += [f'v_lshl_add_u32 {vq}, {vt0}, 4, {vq}', f'v_add_u32 {vql}, {s_t1}, {vq}']
        return L
    kvb = [s_b, s_og, s_ox, s_c0]
    def epi_early(wc, npk):
        F_ = []
        outs = [vtmp[16 + 4 * i:20 + 4 * i] for i in range(3)]
        if wc == 0:
            for m in range(7, -1, -1):
                o = acc[0][m]
                L = packl(o, acc[0][m], acc[1][m]) + [Ins(f'buffer_store_dwordx4 {o}, {vq}, {sws}, {kvb[m // 2]} offen offset:{(m % 2) * 128}{st_mod}', 'KVST'),
                                                       f'ds_write_b128 {vql}, {o} offset:{(m // 2) * 4096 + (m % 2) * 128}']
                F_ += [(88 + (7 - m) + 4, x) for x in L]
            for i, m in enumerate(range(7, -1, -1)):
                o = outs[i % 3]
                t0, l0 = rd(acc[2][m], vtmp[0:4]); t1, l1 = rd(acc[3][m], vtmp[4:8])
                L = l0 + l1 + mul4(t0, t0, s_qs, i >= npk) + mul4(t1, t1, s_qs, i >= npk) + packl(o, t0, t1) + [f'ds_write_b128 {vqq}, {o} offset:{(m // 2) * 2048 + (m % 2) * 128}']
                F_ += [(104 + (7 - m) + 4, x) for x in L]
        else:
            for nt, js in ((0, range(4)), (1, range(3, -1, -1))):
                for j in js:
                    o = acc[nt][2 * j]
                    L = packl(o, acc[nt][2 * j], acc[nt][2 * j + 1]) + [Ins(f'buffer_store_dwordx4 {o}, {vq}, {sws}, {kvb[j]} offen offset:{2048 + nt * 256}{st_mod}', 'KVST'),
                                                                         f'ds_write_b128 {vql}, {o} offset:{j * 4096 + 2048 + nt * 256}']
                    F_ += [((81 + 2 * j if nt == 0 else 95 - 2 * j) + 4, x) for x in L]
            for i, j in enumerate(range(3, -1, -1)):
                o = outs[i % 3]
                L = hpiece(2, j, o, i >= npk) + [Ins(f'buffer_store_dwordx4 {o}, {vh}, {sws}, {s_c1} offen offset:{j * 1024}{st_mod}', 'HST')]
                F_ += [(111 - 2 * j + 4, x) for x in L]
        return F_
    def epi_late():
        for j in range(4): p.add(hpiece(6, j, hreg[4 + j], True))
        p.add([f'v_mov_b32 {vt0}, 1', 'WAITTAG KVST', Ins(f'buffer_store_dword {vt0}, {vflk}, {sfl}, 0 offen sc1', 'FL')])
        for j in range(4): p.add(hpiece(4, j, hreg[j], True))
        for j in range(4): p.add(hpiece(8, j, hreg[8 + j], True))

    announce_setup = lines(f"""
        s_mov_b32 {sdbg[0]}, {pdbg[0]}
        s_mov_b32 {sdbg[1]}, {pdbg[1]}
        s_movk_i32 {sdbg[2]}, 256
        s_mov_b32 {sdbg[3]}, 0x00020000
        s_and_b32 {s_ano}, s2, 7
        s_lshl_b32 {s_ano}, {s_ano}, 2
        s_and_b32 {s_grp}, {s_mb}, 3
        s_add_u32 {s_grp}, {s_grp}, 3
        v_mov_b32 {vt2}, 1
        v_cmp_eq_u32 {smask}, 0, v0
        v_cndmask_b32 {vt1}, 2.0, 0, {smask}""")
    announce = [f's_cmp_eq_u32 {s_cnt}, {s_grp}', f's_cselect_b32 {s_t0}, {s_ano}, 2.0',
                f'buffer_atomic_add {vt2}, {vt1}, {sdbg}, {s_t0} offen offset:{DBG_CNT} sc1']
    cnt_addr = [f'v_and_b32 {vpf}, 7, {vl}', f'v_lshlrev_b32 {vpf}, 2, {vpf}']
    cnt_load = f'buffer_load_dword {vcnt}, {vpf}, {sdbg}, 0 offen offset:{DBG_CNT} sc1'

    def code_pf(wc):
        lab = f'{name}_pc{wc}'
        return [[f's_getpc_b64 {sp3[0:2]}', f'{lab}:'], f's_and_b32 {sp3[1]}, {sp3[1]}, 0xffff', f's_mov_b32 {sp3[2]}, {name}_end-{lab}',
                f's_lshr_b32 {s_t0}, s2, 3', f's_lshl_b32 {s_t1}, {s_t0}, 8', f'v_and_b32 {vwo}, 1, {vl}', f'v_lshlrev_b32 {vwo}, 7, {vwo}',
                f's_lshl_b32 {s_t0}, {s_t0}, 2', f's_add_u32 {s_t0}, {s_t0}, {s_w}', f's_lshl_b32 {s_t0}, {s_t0}, 8',
                f's_add_u32 {s_t0}, {s_t0}, {name}_join-{lab}', f'v_mov_b32 {vt2}, {s_t0}', f'v_mov_b32 {vt3}, {s_t1}',
                f'v_cmp_gt_u32 {smask}, 2, {vl}', f'v_cndmask_b32 {vt2}, {vt2}, {vt3}, {smask}', f'v_add_u32 {vwo}, {vwo}, {vt2}',
                f'v_cmp_gt_u32 {smask}, 4, {vl}', f'v_cndmask_b32 {vwo}, 2.0, {vwo}, {smask}',
                Ins(f'buffer_load_dword {vpd}, {vwo}, {sp3}, 0 offen', 'pf')]
    for wc in range(2):
        p.seg(f'c{wc}a')
        if wc == 1: p.e(f'{name}_c1:')
        for j in range(DIST): p.add(wread(j, 0, wc))
        stage(0, wc, first=True, early=pfetch(), extra=(tlb_touch() if TLB else []) + pf3_setup(), estep=1, fill=announce_setup, postbar=pf_setup())
        p.e(f's_mov_b32 {s_cnt}, 6')
        p.seg(f'c{wc}l1')
        p.e(f'{name}_c{wc}loop:')
        stage(1, wc, early=pfetch() + pfetch_d(), extra=gate_sel + gate_loads, estep=1)
        p.e(f's_cmp_eq_u32 {s_cnt}, 0\ns_cbranch_scc1 {name}_c{wc}out')
        p.seg(f'c{wc}l2')
        stage(0, wc, early=pfetch() + pfetch_d(), extra=announce + pf_wo)
        p.e(f's_sub_u32 {s_cnt}, {s_cnt}, 1\ns_branch {name}_c{wc}loop')
        p.seg(f'c{wc}last')
        p.e(f'{name}_c{wc}out:')
        rest = stage(0, wc, early=pfetch_d(), extra=code_pf(wc) if CPF else None, estep=1, fill=gate_ops(), nodma1=True)
        rest = stage(1, wc, last=True, fill=rest + cnt_addr + [cnt_load] + epi_setup(wc) + epi_early(wc, 3 if wc == 0 else 2))
        pf.stamp(2)
        if ptrace == -1: pf.trace()
        p.add(rest)
        if ptrace == -1: pf.trace()
        epi_late()
        if ptrace == -1: pf.trace()
        if wc == 0: p.e(f's_branch {name}_join')
    p.seg('join')
    p.e(f'{name}_join:')
    p.add(check([f'v_cmp_gt_u32 vcc, 32, {vcnt}'], [cnt_load], 'cnt'))

    sa.p = s_base; va.p = v_base; aa.p = 0
    skv = sa(4); sA = sa(4); swd = sa(4); swo = sa(4); sout = sa(4)
    s_okv, s_left, s_p, s_oa, s_ow, s_wb, s_ob, s_ob2, s_thr, s_mt, s_nt, s_oo, s_spin, s_h1, s_h2, s_rt, s_win = [sa() for _ in range(17)]
    scp = sa(4)
    vl16, vkA, vkB, vdma, vo, vidx, vu0, vu1, vu2, vpa = [va() for _ in range(10)]
    vdd = [va() for _ in range(2)]; vdo = [va() for _ in range(2)]; vwr = [va() for _ in range(2)]
    vg = va(2); vog = va(4); vpoll = va(2, 2); vsc = va(2)
    ones = va(4, 4)
    vA = [va() for _ in range(4)]
    assert va.p <= 46 and va.p > vwo.a
    va2 = Alloc('v', va.p, 48)
    va.p = 48
    Sx = [va(16, 4) for _ in range(2)]; P = [va(8, 4) for _ in range(2)]; C = [va(16, 4) for _ in range(2)]
    acc3 = [[va(16, 4) for _ in range(4)] for _ in range(2)]
    O = [aa(16, 4) for _ in range(2)]; L = [aa(4, 4) for _ in range(2)]
    Q = [aa(8, 4) for _ in range(2)]; K = [aa(8, 4) for _ in range(2)]; V = [aa(8, 4) for _ in range(2)]
    Wf = [aa(4, 4) for _ in range(2)]
    Ab = [[aa(4, 4) for _ in range(4)] for _ in range(8)]

    p.e(f"""
    v_lshlrev_b32 {vl16}, 4, {vl}
    s_lshl_b32 {s_p}, {s_w}, 12
    s_add_u32 {s_t0}, {s_p}, {QS}
    v_add_u32 {vu0}, {s_t0}, {vl16}
    s_waitcnt lgkmcnt(0)
    s_barrier
    """)
    pf.stamp(3)
    def kread(kb, loop=False):
        base, o = (vl16, (kb % 16) * 4096) if not loop else ((vkA, kb * 4096) if kb < 8 else (vkB, (kb - 8) * 4096))
        return [f'ds_read_b128 {K[kb % 2][4*f:4*f+4]}, {base} offset:{o + f * 1024}' for f in range(2)]
    def vread(kb, loop=False):
        base, o = (vl16, (kb % 16) * 4096) if not loop else (vkA, kb * 4096)
        return [f'ds_read_b128 {V[kb % 2][4*f:4*f+4]}, {base} offset:{o + 2048 + f * 1024}' for f in range(2)]
    def qk(dst, kb, q, f, cin):
        return f'v_mfma_f32_32x32x16_bf16 {dst}, {K[kb % 2][4*f:4*f+4]}, {Q[q][4*f:4*f+4]}, {cin if f == 0 else dst}'
    def pv(j, f, zero=False):
        q = j % 2; kb = (j // 2) % 2
        return f'v_mfma_f32_32x32x16_bf16 {O[q]}, {V[kb][4*f:4*f+4]}, {P[q][4*f:4*f+4]}, {"0" if zero else O[q]}'
    def rsum(q): return f'v_smfmac_f32_16x16x64_bf16 {L[q]}, {ones}, {P[q]}, {vidx}'
    def cvt(j, i): return f'v_cvt_pk_bf16_f32 {P[j % 2][i]}, {Sx[j % 2][2*i]}, {Sx[j % 2][2*i+1]}'
    def rowmax(dst, src, init):
        lst = [src[i] for i in range(16)]
        if init:
            p.e(f'v_max3_f32 {dst}, {lst[0]}, {lst[1]}, {lst[2]}'); lst = lst[3:]
        while len(lst) >= 2:
            p.e(f'v_max3_f32 {dst}, {dst}, {lst[0]}, {lst[1]}'); lst = lst[2:]
        if lst: p.e(f'v_max_f32 {dst}, {dst}, {lst[0]}')
    def setc(q, m):
        p.e(f'v_mov_b32 {vu2}, {m}\nv_permlane32_swap_b32 {vu2}, {m}\nv_max_f32 {m}, {m}, {vu2}')
        for i in range(16): p.e(f'v_sub_f32 {C[q][i]}, 0, {m}')
    for q in range(2):
        for f in range(2): p.e(f'ds_read_b128 {Q[q][4*f:4*f+4]}, {vu0} offset:{q * 2048 + f * 1024}')
    p.add(kread(0)); p.add(kread(1))
    p.e(f"""
    v_bfe_u32 {vu0}, {vl}, 2, 1
    v_bfe_u32 {vu1}, {vl}, 1, 1
    v_mov_b32 {vu2}, 0x3f803f80
    v_or_b32 {vidx}, {vu0}, {vu1}
    v_cmp_eq_u32 vcc, 0, {vidx}
    v_xor_b32 {vu0}, 1, {vu0}
    v_or_b32 {vidx}, {vu0}, {vu1}
    v_cndmask_b32 {ones[0]}, 0, {vu2}, vcc
    v_cndmask_b32 {ones[1]}, 0, {vu2}, vcc
    v_cmp_eq_u32 vcc, 0, {vidx}
    v_and_b32 {vu0}, 1, {vl}
    v_mov_b32 {vu1}, 0xeeeeeeee
    v_cndmask_b32 {ones[2]}, 0, {vu2}, vcc
    v_cndmask_b32 {ones[3]}, 0, {vu2}, vcc
    v_cmp_eq_u32 vcc, 0, {vu0}
    v_mov_b32 {vu2}, 0x44444444
    v_add_u32 {vdma}, {s_p}, {vl16}
    v_cndmask_b32 {vidx}, {vu1}, {vu2}, vcc
    """)
    for q in range(2):
        for f in range(2): p.e(qk(C[q], 0, q, f, '0'))
    for q in range(2):
        for i in range(4): p.e(f'v_accvgpr_write_b32 {L[q][i]}, 0')
    p.e(f's_lshl_b32 {s_t0}, {s_h}, 18')
    srd(p, skv, pws, off_s=s_t0, off_imm=WS_KV, size=262144)
    rowmax(vu0, C[0], True); rowmax(vu1, C[1], True)
    setc(0, vu0)
    p.e(qk(Sx[0], 0, 0, 0, C[0])); p.e(qk(Sx[0], 0, 0, 1, C[0]))
    setc(1, vu1)

    def flag(val, tag, wait):
        return [f'v_mov_b32 {vu0}, {val}', f'WAITTAG {wait}', Ins(f'buffer_store_dword {vu0}, {vflag}, {sfl}, 0 offen sc1', tag)]
    def kvdma(m0line, tag):
        return [m0line] + [Ins(f'buffer_load_dwordx4 {vdma}, {skv}, {s_okv} offen offset:{i * 1024} lds', tag) for i in range(4)] + \
               [f's_add_u32 {s_okv}, {s_okv}, 16384', f's_and_b32 {s_okv}, {s_okv}, 0x3ffff',
                f's_sub_u32 {s_left}, {s_left}, 1', f's_cselect_b32 {skv[2]}, 0, {skv[2]}']
    def dloads(s):
        b = s % NB
        return [f's_add_u32 m0, {s_wb}, {b * 2048}'] + \
               [Ins(f'buffer_load_dwordx4 {vdd[hh]}, {swd}, {s_ow} offen offset:{hh * 1024} lds', f'D{b}') for hh in range(2)] + \
               [Ins(f'buffer_load_dwordx4 {Ab[b][r]}, {vA[r]}, {sA}, {s_oa} offen', f'D{b}') for r in range(4)] + \
               ([f's_add_u32 {s_ow}, {s_ow}, 32768', f's_add_u32 {s_oa}, {s_oa}, 4096'] if not ROT else
                ([f's_add_u32 {s_win}, {s_win}, 32768'] if s % 8 == 7 else []) +
                [f's_add_u32 {s_rt}, {s_rt}, 4096', f's_and_b32 {s_rt}, {s_rt}, 0x7000', f's_add_u32 {s_oa}, {s_win}, {s_rt}', f's_lshl_b32 {s_ow}, {s_oa}, 3'])
    def wrd(base, off, nb):
        return [f'ds_read_b64_tr_b16 {Wf[nb][2*s:2*s+2]}, {base[nb]} offset:{off + s * 512}' for s in range(2)]
    def gm(buf, nb, tb, zero=False):
        return f'v_mfma_f32_32x32x16_bf16 {acc3[nb][tb]}, {Wf[nb]}, {buf[tb]}, {"0" if zero else acc3[nb][tb]}'
    def oload(t, m0line, tag):
        return [m0line] + [Ins(f'buffer_load_dwordx4 {vdo[hh]}, {swo}, {s_oo} offen offset:{hh * 1024} lds', tag) for hh in range(2)] + [f's_add_u32 {s_oo}, {s_oo}, 32768', f's_and_b32 {s_oo}, {s_oo}, 0x7ffff']

    def period(j, loop=False, item=None, misc=(), pre=(), zero=False):
        s = Sx[j % 2]
        E = [f'v_exp_f32 {s[i]}, {s[i]}' for i in range(16)]
        jn = j + 1
        m1 = qk(Sx[jn % 2], jn // 2, jn % 2, 0, C[jn % 2]); m2 = qk(Sx[jn % 2], jn // 2, jn % 2, 1, None)
        rd = kread((j + 1) // 2 + 1, loop) if j % 2 == 1 else vread(j // 2, loop)
        first = (j == 0 and not loop)
        zo = (j <= 2 and not loop)
        c7 = [] if first else [cvt(j - 1, 7)]
        p0 = [] if first else [pv(j - 1, 0, zo)]; p1 = [] if first else [pv(j - 1, 1)]; rs = [] if first else [rsum((j - 1) % 2)]
        V_ = [E[0]] + c7
        for i in range(7): V_ += [E[2 * i + 1], E[2 * i + 2], cvt(j, i)]
        V_.append(E[15])
        if item is None:
            p.add(V_[:1 + len(c7)]); V_ = V_[1 + len(c7):]
            M = [m1, m2] + p0 + p1 + rs; G = []
        else:
            st, nb = item
            G = [gm(Ab[st % NB], nb, tb if nb == 0 else 3 - tb, zero) for tb in range(4)]
            M = [G[0], m1, G[1], m2, G[2]] + p0 + [G[3]] + p1 + rs
        if loop and exp_ & 1: M = [x for x in M if x not in G]
        if loop and exp_ & 8: misc = [x for x in misc if not (isinstance(x, Ins) and x.tag and x.tag.startswith('D'))]
        misc = list(misc)
        for k in range(len(misc)):
            if isinstance(misc[k], str) and ' m0,' in misc[k]:
                q_ = k
                while q_ > 0 and not (isinstance(misc[q_ - 1], Ins) and misc[q_ - 1].text.endswith(' lds')): q_ -= 1
                misc.insert(q_, misc.pop(k))
        items = []
        for x in list(pre) + rd + list(misc):
            if items and isinstance(items[-1][-1], str) and items[-1][-1].split()[0] in ('WAITTAG', 's_cbranch_vccnz', 'v_cmp_gt_u32', 's_getpc_b64'): items[-1].append(x)
            else: items.append([x])
        isvm = lambda it: any((y.text if isinstance(y, Ins) else y).startswith('buffer') for y in it)
        n = len(M); last = n - 1 if M[-1].startswith('v_smfmac') else n
        gap = [[] for _ in range(n)]
        nvm = sum(map(isvm, items))
        step = VSP if nvm * VSP <= last else 1
        per = max(2 if item is not None else 1, -(-len(items) // last))
        g = 0; lastvm = -9
        for k, it in enumerate(items):
            if isvm(it):
                left = sum(map(isvm, items[k:]))
                g = max(g, min(lastvm + step, last - 1 - (left - 1) * step))
                g = max(g, 0); lastvm = g
            elif len(gap[g]) >= per and g < last - 1: g += 1
            gap[g].append(it)
        cost = lambda x: 8 if x.startswith('v_exp') else 4
        occ = lambda x: 32 if '32x32' in x else 16
        mc = [4 * sum(1 for it in gp for y in it if not (isinstance(y, str) and y.endswith(':'))) for gp in gap]
        if item is not None: mc[-1] += 4
        tot = sum(map(cost, V_)) + sum(mc) + (12 if item is None else 0)
        room = sum(occ(x) - 8 for x in M)
        acc_ = 0.0; done = 0
        for q_, m_ in enumerate(M):
            p.add([m_])
            for it in gap[q_]: p.add(it)
            acc_ += (occ(m_) - 8) * tot / room; done += mc[q_]
            k = 0
            while V_ and (done + cost(V_[0]) / 2 <= acc_ or (item is not None and q_ == 0 and k < 1 + len(c7))):
                done += cost(V_[0]); p.add([V_.pop(0)]); k += 1
        p.add(V_)

    setup1 = lines(f"""
        s_lshl_b32 {s_okv}, {s_mb}, 15
        s_add_u32 {s_okv}, {s_okv}, 32768
        s_and_b32 {s_okv}, {s_okv}, 0x3ffff
        s_movk_i32 {s_left}, 13
        v_and_b32 {vu1}, 31, {vl}
        v_lshlrev_b32 {vpa}, 2, {vu1}
        s_lshl_b32 {s_t2}, {s_h}, 7
        s_add_u32 {s_t2}, {s_t2}, 4096""")
    poll_kv = f'buffer_load_dword {vpoll[0]}, {vpa}, {sfl}, {s_t2} offen sc1'
    setup2 = lines(f"""
        s_and_b32 {s_t0}, s2, 7
        s_lshr_b32 {s_t1}, s2, 3
        s_lshr_b32 {s_mt}, {s_t0}, 1
        s_lshl_b32 {s_mt}, {s_mt}, 2
        s_and_b32 {s_nt}, {s_t0}, 1
        s_lshl_b32 {s_nt}, {s_nt}, 3
        s_and_b32 {s_t0}, {s_t1}, 3
        s_add_u32 {s_mt}, {s_mt}, {s_t0}
        s_lshr_b32 {s_t0}, {s_t1}, 2
        s_add_u32 {s_nt}, {s_nt}, {s_t0}
        s_lshl_b32 {s_t0}, {s_nt}, 7
        s_lshl_b32 {s_t1}, {s_w}, 19
        s_add_u32 {s_t1}, {s_t1}, {s_t0}
        s_add_u32 {swo[0]}, {pwo[0]}, {s_t1}
        s_addc_u32 {swo[1]}, {pwo[1]}, 0
        s_sub_u32 {swo[2]}, {D * D * 2}, {s_t1}
        s_mov_b32 {swo[3]}, 0x00020000
        s_add_u32 {swd[0]}, {pwd[0]}, {s_t0}
        s_addc_u32 {swd[1]}, {pwd[1]}, 0
        s_sub_u32 {swd[2]}, {F * D * 2}, {s_t0}
        s_mov_b32 {swd[3]}, 0x00020000
        s_mul_i32 {s_t0}, {s_mt}, {288 * 4096}
        s_add_u32 {s_t0}, {s_t0}, {WS_A}
        s_add_u32 {sA[0]}, {pws[0]}, {s_t0}
        s_addc_u32 {sA[1]}, {pws[1]}, 0
        s_mov_b32 {sA[2]}, {288 * 4096}
        s_mov_b32 {sA[3]}, 0x00020000
        s_mul_i32 {s_win}, {s_w}, {56 * 4096}
        s_lshl_b32 {s_rt}, {s_mt}, 1
        s_add_u32 {s_rt}, {s_rt}, {s_nt}
        s_and_b32 {s_rt}, {s_rt}, {7 if ROT else 0}
        s_lshl_b32 {s_rt}, {s_rt}, 12
        s_add_u32 {s_oa}, {s_win}, {s_rt}
        s_lshl_b32 {s_ow}, {s_oa}, 3
        s_and_b32 {s_oo}, {s_nt}, {3 if ROT else 0}
        s_lshl_b32 {s_oo}, {s_oo}, 17
        s_mul_i32 {s_wb}, {s_w}, 20480
        s_add_u32 {s_wb}, {s_wb}, {W0}
        v_lshrrev_b32 {vu1}, 3, {vl}
        v_and_b32 {vu2}, 2, {vu1}
        v_lshlrev_b32 {vu2}, 1, {vu2}
        v_and_b32 {vdd[1]}, 7, {vl}
        v_xor_b32 {vu2}, {vu2}, {vdd[1]}
        v_lshlrev_b32 {vu2}, 4, {vu2}
        v_lshl_add_u32 {vdd[0]}, {vu1}, 11, {vu2}
        v_add_u32 {vdd[1]}, {8 * 2048 - 1024}, {vdd[0]}
        v_lshrrev_b32 {vu1}, 5, {vl}
        v_lshl_add_u32 {vdo[0]}, {vu1}, 13, {vdd[0]}
        v_add_u32 {vdo[1]}, {4 * 2048 - 1024}, {vdo[0]}
        v_lshl_add_u32 {vwr[0]}, {vu1}, 10, {s_wb}
        v_bfe_u32 {vu1}, {vl}, 2, 2
        v_lshl_add_u32 {vwr[0]}, {vu1}, 7, {vwr[0]}
        v_bfe_u32 {vu1}, {vl}, 3, 1
        v_lshl_add_u32 {vwr[0]}, {vu1}, 6, {vwr[0]}
        v_bfe_u32 {vu1}, {vl}, 4, 1
        v_lshl_add_u32 {vwr[0]}, {vu1}, 5, {vwr[0]}
        v_and_b32 {vu1}, 3, {vl}
        v_lshl_add_u32 {vwr[0]}, {vu1}, 3, {vwr[0]}
        v_xor_b32 {vwr[1]}, 64, {vwr[0]}
        v_mov_b32 {vkB}, {vl16}
        v_add_u32 {vkA}, 32768, {vl16}
        s_add_u32 {s_h1}, {s_hb}, 4096
        s_add_u32 {s_h2}, {s_hb}, 8192""")
    for r in range(4):
        setup2 += [f's_add_u32 {s_t0}, {s_w}, {r + 1}', f's_and_b32 {s_t0}, {s_t0}, 3', f's_lshl_b32 {s_t0}, {s_t0}, 10', f'v_add_u32 {vA[r]}, {s_t0}, {vl16}']
    setup3 = lines(f"""
        v_and_b32 {vu1}, 7, {vl}
        v_bfe_u32 {vu2}, {vl}, 4, 1
        v_lshl_add_u32 {vo}, {vu2}, 3, {vu1}
        v_bfe_u32 {vu2}, {vl}, 3, 1
        v_lshl_add_u32 {vo}, {vu2}, 4, {vo}
        v_lshrrev_b32 {vu2}, 3, {vo}
        v_lshlrev_b32 {vu2}, 7, {vu2}
        v_lshl_add_u32 {vsc[0]}, {vu1}, 2, {vu2}
        v_lshlrev_b32 {vo}, 4, {vo}
        v_lshrrev_b32 {vu2}, 5, {vl}
        v_lshl_add_u32 {vo}, {vu2}, 9, {vo}
        v_bfe_u32 {vu2}, {vl}, 3, 2
        v_lshlrev_b32 {vu2}, 7, {vu2}
        v_lshl_add_u32 {vsc[1]}, {vu1}, 2, {vu2}
        s_lshl_b32 {s_t0}, {s_mb}, 1
        s_add_u32 {s_t0}, {s_t0}, {s_wr}
        s_mul_i32 {s_t0}, {s_t0}, 288
        s_lshl_b32 {s_t1}, {s_h}, 1
        s_add_u32 {s_t0}, {s_t0}, {s_t1}
        s_add_u32 {s_t0}, {s_t0}, 224
        s_lshl_b32 {s_t0}, {s_t0}, 12
        s_lshl_b32 {s_t1}, {s_wc}, 11
        s_add_u32 {s_t0}, {s_t0}, {s_t1}
        s_add_u32 {s_ob}, {s_t0}, {WS_A}
        s_add_u32 {s_ob2}, {s_ob}, 4096
        s_mov_b32 {s_thr}, {hex(f32bits(2.0 ** 40 if not force_slow else 0.5))}
        v_lshlrev_b32 {vpa}, 3, {vl}
        s_lshr_b32 {s_t2}, {s_mt}, 1
        s_lshl_b32 {s_t2}, {s_t2}, 9""")
    poll_h = f'buffer_load_dwordx2 {vpoll}, {vpa}, {sfl}, {s_t2} offen sc1'
    cond2 = [f'v_min_u32 {vu1}, {vpoll[0]}, {vpoll[1]}', f'v_cmp_gt_u32 vcc, 2, {vu1}']
    og_loads = [f's_lshl_b32 {s_t0}, {s_mt}, 11', f's_add_u32 {s_t0}, {s_t0}, {WS_G + 32}']
    for r in range(4):
        og_loads += [f'v_lshrrev_b32 {vu1}, 10, {vA[r]}', f'v_lshl_add_u32 {vu1}, {vu1}, 9, {vsc[1]}', f'buffer_load_dword {vog[r]}, {vu1}, {sws}, {s_t0} offen']
    g_loads = [f's_lshl_b32 {s_t0}, {s_mb}, 2', f's_add_u32 {s_t0}, {s_t0}, {s_w}', f's_lshl_b32 {s_t0}, {s_t0}, 10', f's_add_u32 {s_t0}, {s_t0}, {WS_G}'] + \
              [f'buffer_load_dword {vg[q]}, {vsc[0]}, {sws}, {s_t0} offen offset:{q * 512}' for q in range(2)]
    early_o = [oload(t, f's_add_u32 m0, {s_wb}, {(8 + t % 4) * 2048}' if t % 4 < 2 else f's_add_u32 m0, {s_p}, {QS + (t % 4 - 2) * 2048}', 'WO') for t in range(8)]
    WO = [R('a', aa.p + 8 * t, 8) for t in range(4)] + [R('a', 8 * t, 8) for t in range(11)] + [Sx[0][0:8]]
    assert Wf[0].a == 88 and aa.p + 32 <= 256
    vw3 = [va2(), va2()]
    def oslot(t):
        if t >= 8: return vw2, (t - 8) * 2048, f's_add_u32 m0, {s_p}, {(t - 8) * 2048}'
        if t % 4 < 2: return vwr, (8 + t % 4) * 2048, None
        return vw3, (t % 4 - 2) * 2048, None
    def woread(t):
        base, off, _ = oslot(t)
        return [f'ds_read_b64_tr_b16 {WO[t][4*nb+2*s_:4*nb+2*s_+2]}, {base[nb]} offset:{off + s_ * 512}' for nb in range(2) for s_ in range(2)]
    vw2 = [C[0][0], C[0][1]]
    setup3 += [f's_add_u32 {s_t0}, {s_p}, {QS}', f's_sub_u32 {s_t0}, {s_t0}, {s_wb}', f'v_add_u32 {vw3[0]}, {s_t0}, {vwr[0]}', f'v_add_u32 {vw3[1]}, {s_t0}, {vwr[1]}']
    assert NB == 8 and PM % 2 == 0
    PA = 48
    plan = {j: [] for j in range(PA)}; prej = {j: [] for j in range(PA)}
    plan[0] += setup1
    plan[1] += setup2[:21]; plan[2] += setup2[21:41]; plan[3] += setup2[41:61]; plan[4] += setup2[61:]; plan[KP] = [poll_kv] + plan[KP]
    plan[5] += check([f'v_cmp_gt_u32 vcc, 1, {vpoll[0]}'], [poll_kv], 'kv')
    d = kvdma(f's_add_u32 m0, {s_p}, 32768', 'KV0'); plan[5] += d[:3]; plan[6] += d[3:]
    d = kvdma(f's_add_u32 m0, {s_p}, 49152', 'KV1'); plan[7] += d[:3]; plan[8] += d[3:]
    for i in range(5):
        j = 13 + 8 * i
        prej[j] += [f'WAITTAG KV{i % 2}', 's_barrier']
        d = kvdma(f's_add_u32 m0, {s_p}, {(i % 4) * 16384}', f'KV{i % 2}')
        plan[j] += d[:5]; plan[j + 1] += d[5:]
    busy = (13, 21, 29, 37, 45)
    j = float(H0)
    for k in range(12):
        while int(j) in busy: j = int(j) + 1.0
        plan[int(j)].append(Ins(f'buffer_store_dwordx4 {hreg[k]}, {vl16}, {sws}, {(s_hb, s_h1, s_h2)[k // 4]} offen offset:{(k % 4) * 1024}{st_mod}', 'HST'))
        jl = int(j); j += HP
    plan[10] += setup3[:10]; plan[11] += setup3[10:20]; plan[12] += setup3[20:]
    def nextfree(j):
        while j in busy: j += 1
        return j
    jf = nextfree(jl + FG); plan[jf] += flag(2, 'FL', 'HST')
    jc = PM - 2 - DD
    while any(x in busy for x in range(jc, PM - 1)) and jc in busy: jc -= 1
    jp = jc - PG
    assert jp > jf, (jp, jf)
    plan[jp] += [poll_h]
    jj = E0
    for t in range(4):
        jj = nextfree(jj + 1); plan[jj] += early_o[t]
    jj = nextfree(jj + 3)
    for t in range(4):
        plan[jj] += (['WAITTAG WO'] if t == 0 else []) + woread(t); jj = nextfree(jj + 1)
    for t in range(4, 8):
        plan[jj] += (['s_waitcnt lgkmcnt(0)'] if t == 4 else []) + early_o[t]; jj = nextfree(jj + 1)
    assert jj <= PM
    plan[jc] += check(cond2, [poll_h], 'h') + [f's_lshl_b32 {s_t2}, {s_mb}, 9', poll_h]
    jj = jc
    for i in range(DD):
        jj = nextfree(jj + (1 if i else 0)); plan[jj] += dloads(i)
    assert jj <= PM - 2, (jj, PM)
    plan[PM - 1] = ['WAITTAG D0'] + wrd(vwr, 0, 0) + plan[PM - 1]
    plan[PM + 2] += og_loads
    plan[PM + 4] += check(cond2, [poll_h], 'g') + g_loads
    plan[PA - 1] += [f's_xor_b32 {s_p}, {s_p}, 32768']
    vcp = va2()
    if CP2:
        plan[PM - 3] += [f's_getpc_b64 {scp[0:2]}', f'{name}_pct:', f's_and_b32 {scp[1]}, {scp[1]}, 0xffff', f's_mov_b32 {scp[2]}, {name}_slow-{name}_pct',
                         f's_mov_b32 {scp[3]}, 0x00020000', f's_lshr_b32 {s_t0}, s2, 3', f's_lshl_b32 {s_t0}, {s_t0}, 2', f's_add_u32 {s_t0}, {s_t0}, {s_w}',
                         f's_lshl_b32 {s_t0}, {s_t0}, 7', f's_add_u32 {s_t0}, {s_t0}, {name}_tail-{name}_pct', f'v_lshl_add_u32 {vcp}, {vl}, 14, {s_t0}']
    def mixed(j, st, nb, loop, misc=(), pre=(), zero=False):
        d = dloads(st + DD) if st + DD < 56 else []
        if nb == 0:
            period(j, loop, (st, 0), misc=wrd(vwr, (st % NB) * 2048, 1) + d[:4] + list(misc), pre=pre, zero=zero)
        else:
            period(j, loop, (st, 1), misc=[f'WAITTAG D{(st + 1) % NB}'] + wrd(vwr, ((st + 1) % NB) * 2048, 0) + d[4:] + list(misc), pre=pre, zero=zero)
    p.seg('partA')
    for j in range(PA):
        if ptrace == -1 and j in (0, 1, 5, 7, 9, 13, 15, 21, jf, jf + 1, jc, jc + 1, PM): pf.trace()
        if j < PM: period(j, misc=plan[j], pre=prej[j])
        else: mixed(j, (j - PM) // 2, j % 2, False, misc=plan[j], pre=prej[j], zero=(j < PM + 2))
    if ptrace == -1: pf.trace()
    ST0 = (PA - PM) // 2
    pf.stamp(4)
    p.e(f's_mov_b32 {s_cnt}, 5')
    p.seg('loop')
    p.e(f'{name}_loop:')
    for j in range(16):
        misc = []; pre = []
        if j in (5, 13):
            pre = [f'WAITTAG KV{1 if j == 5 else 0}', 's_barrier']
        if j in (5, 6, 13, 14):
            d = kvdma(f's_xor_b32 m0, {s_p}, 49152' if j < 8 else f's_mov_b32 m0, {s_p}', 'KV1' if j < 8 else 'KV0')
            misc = d[:5] if j in (5, 13) else d[5:]
        if j == 9 and CP2: misc = [Ins(f'buffer_load_dword {vpd}, {vcp}, {scp}, 0 offen', 'pf')]
        if j == 15: misc = [f's_xor_b32 {s_p}, {s_p}, 32768', f'v_xor_b32 {vkA}, 0x8000, {vkA}', f'v_xor_b32 {vkB}, 0x8000, {vkB}']
        mixed(j, ST0 + j // 2, j % 2, True, misc=misc, pre=pre)
    p.e(f's_sub_u32 {s_cnt}, {s_cnt}, 1\ns_cmp_lg_u32 {s_cnt}, 0\ns_cbranch_scc1 {name}_loop')

    p.seg('tail')
    p.e(f'{name}_tail:')
    pf.stamp(5)
    if ptrace == -2: pf.trace()
    p.add([cvt(15, 7), pv(15, 0), pv(15, 1), rsum(1)])
    def lsum():
        p.e(f"""
        v_accvgpr_read_b32 {vsc[0]}, {L[0][0]}
        v_accvgpr_read_b32 {vu0}, {L[0][1]}
        v_accvgpr_read_b32 {vsc[1]}, {L[1][0]}
        v_accvgpr_read_b32 {vu1}, {L[1][1]}
        v_add_f32 {vsc[0]}, {vsc[0]}, {vu0}
        v_add_f32 {vsc[1]}, {vsc[1]}, {vu1}
        """)
    lsum()
    p.e(f"""
    v_cmp_nle_f32 vcc, {vsc[0]}, {s_thr}
    v_cmp_nle_f32 {smask}, {vsc[1]}, {s_thr}
    s_or_b64 vcc, vcc, {smask}
    s_cbranch_vccnz {name}_slow
    """)
    p.seg('epi')
    p.e(f'{name}_epi:')
    p.e(f"""
    v_rcp_f32 {vsc[0]}, {vsc[0]}
    v_rcp_f32 {vsc[1]}, {vsc[1]}
    WAITTAG KV0 KV1
    s_barrier
    v_mul_f32 {vsc[0]}, {vsc[0]}, {vg[0]}
    v_mul_f32 {vsc[1]}, {vsc[1]}, {vg[1]}
    """)
    for q in range(2):
        for f in range(2):
            t_ = Sx[q][8 * f:8 * f + 8]
            for i in range(8): p.e(f'v_accvgpr_read_b32 {t_[i]}, {O[q][8*f+i]}')
            for i in range(8): p.e(f'v_mul_f32 {t_[i]}, {t_[i]}, {vsc[q]}')
            for i in range(4): p.e(f'v_cvt_pk_bf16_f32 {t_[i]}, {t_[2*i]}, {t_[2*i+1]}')
            p.e(f'buffer_store_dwordx4 {t_[0:4]}, {vo}, {sws}, {(s_ob, s_ob2)[f]} offen offset:{q * 1024}{st_mod}', 'OST')
    vout = C[0][4]; vrw = [C[0][5], C[0][6], C[0][7]]; vrr = C[0][8]
    LATE0 = ST0 + 40
    p.e(f's_lshl_b32 {s_p}, {s_w}, 14')
    sk = [s_h1, s_h2, s_hb, s_left]
    vA2 = [[vA[r], Sx[1][3 * r], Sx[1][3 * r + 1], Sx[1][3 * r + 2]] for r in range(4)]
    late2 = lines(f"""
        s_sub_u32 {s_t0}, {s_p}, {s_wb}
        v_add_u32 {vw2[0]}, {s_t0}, {vwr[0]}
        v_add_u32 {vw2[1]}, {s_t0}, {vwr[1]}
        s_lshl_b32 {s_t0}, {s_mt}, 18
        s_lshl_b32 {s_t1}, {s_nt}, 7
        s_add_u32 {s_t0}, {s_t0}, {s_t1}
        s_add_u32 {sout[0]}, {pout[0]}, {s_t0}
        s_addc_u32 {sout[1]}, {pout[1]}, 0
        s_sub_u32 {sout[2]}, {S * D * 2}, {s_t0}
        s_mov_b32 {sout[3]}, 0x00020000
        v_and_b32 {vu1}, 31, {vl}
        s_lshl_b32 {s_t0}, {s_w}, 16
        v_lshl_add_u32 {vout}, {vu1}, 11, {s_t0}
        v_lshrrev_b32 {vu1}, 5, {vl}
        v_lshl_add_u32 {vout}, {vu1}, 4, {vout}
        v_bfe_u32 {vu1}, {vl}, 1, 3
        v_and_b32 {vu2}, 1, {vl}
        v_lshlrev_b32 {vu2}, 2, {vu2}
        v_lshl_add_u32 {vpa}, {vu1}, 4, {vu2}
        s_lshr_b32 {s_t2}, {s_mt}, 1
        s_lshl_b32 {s_t2}, {s_t2}, 9
        s_lshl_b32 {s_t0}, {s_w}, 7
        s_add_u32 {s_t2}, {s_t2}, {s_t0}
        s_and_b32 {s_t0}, {s_mt}, 1
        s_lshl_b32 {s_t0}, {s_t0}, 3
        s_add_u32 {s_t2}, {s_t2}, {s_t0}
        s_mul_i32 {s_t0}, {s_w}, 24576
        v_add_u32 {vrr}, {s_t0}, {vl16}
        s_lshl_b32 {s_t1}, {s_w}, 16
        s_add_u32 {s_t1}, {s_t1}, {224 * 4096}""")
    late2[6:8] = [late2[6:8]]
    for r in range(3):
        late2 += [f'v_lshrrev_b32 {vu1}, 10, {vA[r]}', f'v_mul_u32_u24 {vu1}, 24576, {vu1}', f'v_add_u32 {vu1}, {(2 - r) * 8192}, {vu1}', f'v_add_u32 {vrw[r]}, {vu1}, {vl16}']
    for i in range(4):
        late2 += ([f's_add_u32 {s_t0}, {s_nt}, {i}', f's_and_b32 {s_t0}, {s_t0}, 3'] if ROT else [f's_mov_b32 {s_t0}, {i}'])
        late2 += [f's_lshl_b32 {s_t0}, {s_t0}, 14', f's_add_u32 {sk[i]}, {s_t1}, {s_t0}']
    for r in range(4):
        for i in range(1, 4): late2.append(f'v_add_u32 {vA2[r][i]}, {i * 4096}, {vA[r]}')
    poll_o = f'buffer_load_dword {vpoll[0]}, {vpa}, {sfl}, {s_t2} offen sc1'
    AB = [Ab[i // 4][i % 4] for i in range(32)]
    def aload(i):
        r, t = divmod(i, 16)
        return f'buffer_load_dwordx4 {AB[i % 32]}, {vA2[r][t % 4]}, {sA}, {sk[t // 4]} offen'
    vq_ = []
    o_next = 8
    for s_ in range(LATE0 + DD, 56):
        vq_.append((s_ - NB + 1, dloads(s_)))
        if o_next < 16: vq_.append((0, oload(o_next, oslot(o_next)[2], 'WO'))); o_next += 1
    while o_next < 16: vq_.append((0, oload(o_next, oslot(o_next)[2], 'WO'))); o_next += 1
    cur = []; a_next = 0; side = list(late2); checked = False
    for st in range(LATE0, 56):
        if ptrace == -2: pf.trace()
        n0 = wrd(vwr, (st % NB) * 2048, 1)
        n1 = ([f'WAITTAG D{(st + 1) % NB}'] + wrd(vwr, ((st + 1) % NB) * 2048, 0)) if st < 55 else []
        if st == LATE0 + 1: side = [flag(3, 'FL', 'OST')] + side
        if st == LATE0 + 2: side += [x for t in range(4, 8) for x in woread(t)]
        for c in range(8):
            nb, tb = divmod(c, 4)
            p.e(gm(Ab[st % NB], nb, tb if nb == 0 else 3 - tb))
            if c == 0: p.add(n0)
            if c == 4: p.add(n1)
            if st == LATE0 + OC - 1 and c == 1: p.e(poll_o)
            if st == LATE0 + OC and c == 1:
                assert not side
                p.add(check([f'v_cmp_gt_u32 vcc, 3, {vpoll[0]}'], [poll_o], 'o')); checked = True
            if not cur and vq_ and vq_[0][0] <= st: cur = list(vq_.pop(0)[1])
            if cur:
                while cur:
                    x = cur.pop(0); p.add([x])
                    if isinstance(x, Ins): break
                while cur and not any(isinstance(y, Ins) for y in cur): p.add([cur.pop(0)])
            elif checked and not vq_ and a_next < 30 and 48 + a_next // 4 < st:
                p.e(aload(a_next)); a_next += 1
            for _ in range(2):
                if side:
                    x = side.pop(0); p.add(x if isinstance(x, list) else [x])
    assert not cur and not vq_ and checked
    if ptrace == -2: pf.trace()
    pf.stamp(6)
    def scale(r): return [f'v_mul_f32 {acc3[nb][r][i]}, {acc3[nb][r][i]}, {vog[r]}' for nb in range(2) for i in range(16)]
    p.e('WAITTAG WO')
    rds = [x for t in range(8, 16) for x in woread(t)]
    for k, x in enumerate(scale(0)):
        p.e(x)
        if k % 4 == 1: p.e(rds.pop(0))
        if k % 8 == 3 and a_next < 30: p.e(aload(a_next)); a_next += 1
    side = []
    for k, x in enumerate(scale(1) + scale(2) + scale(3)):
        side.append(x)
        if k % 3 == 0 and rds: side.append(rds.pop(0))
    assert not rds
    wr = []; fin = []
    for i in range(64):
        r, t = divmod(i, 16)
        if ptrace == -2 and i % 8 == 0: pf.trace()
        for nb in range(2):
            if i == 16 + 2 and nb == 0:
                assert not side
                p.e('s_waitcnt lgkmcnt(0)\ns_barrier')
            if i == 48 + 7 and nb == 0:
                assert not wr
                p.e('s_waitcnt lgkmcnt(0)\ns_barrier')
                fin = [f'ds_read_b128 {acc3[n_][sl][4*j:4*j+4]}, {vrr} offset:{sl * 8192 + (n_ * 4 + j) * 1024}' for n_ in range(2) for j in range(4) for sl in range(3)]
                fin += [None] * 4
                for n_ in range(2):
                    for e in range(16):
                        fin += [f'v_add_f32 {acc3[n_][0][e]}, {acc3[n_][0][e]}, {acc3[n_][1][e]}', f'v_add_f32 {acc3[n_][0][e]}, {acc3[n_][0][e]}, {acc3[n_][2][e]}']
            p.e(f'v_mfma_f32_32x32x16_bf16 {acc3[nb][r]}, {WO[t][4*nb:4*nb+4]}, {AB[i % 32]}, {acc3[nb][r]}')
            if a_next < 64 and a_next <= i + 30 and (nb == 0 or a_next < i + 28): p.e(aload(a_next)); a_next += 1
            if wr and t >= 2: p.e(wr.pop(0))
            for _ in range(5):
                if side: p.e(side.pop(0))
            for _ in range(4 if (fin and fin[0] and fin[0].startswith('ds')) else 5):
                if fin:
                    x = fin.pop(0)
                    if x: p.e(x)
        if t == 15 and r < 3:
            assert not wr
            wr = [f'ds_write_b128 {vrw[r]}, {acc3[nb][r][4*j:4*j+4]} offset:{(nb * 4 + j) * 1024}' for nb in range(2) for j in range(4)]
    assert a_next == 64
    pf.stamp(7)
    p.add([x for x in fin if x])
    for nb in range(2):
        a_ = acc3[nb][3]
        for jp in range(2):
            for i in range(4 * jp, 4 * jp + 4): p.e(f'v_pk_add_f32 {a_[2*i:2*i+2]}, {a_[2*i:2*i+2]}, {acc3[nb][0][2*i:2*i+2]}')
            o = Sx[0][8 + 4 * jp:12 + 4 * jp] if nb == 0 else P[0][4 * jp:4 * jp + 4]
            for i in range(4): p.e(f'v_cvt_pk_bf16_f32 {o[i]}, {a_[8 * jp + 2 * i]}, {a_[8 * jp + 2 * i + 1]}')
            p.e(f'v_permlane32_swap_b32 {o[0]}, {o[2]}\nv_permlane32_swap_b32 {o[1]}, {o[3]}')
            p.e(f'buffer_store_dwordx4 {o}, {vout}, {sout}, 0 offen offset:{nb * 64 + jp * 32}' + ('', ' sc1', ' nt', ' sc0 sc1')[OUTM])
    pf.stamp(8)
    pf.flush(s_w, sws, vl, vu0)
    if dbg:
        p.e(f"""
        v_readlane_b32 {s_t0}, {vtr}, 44
        v_readlane_b32 {s_t1}, {vtr}, 45
        v_and_b32 {vu1}, 1, {vl}
        v_cmp_eq_u32 vcc, 0, {vu1}
        v_mov_b32 {vu1}, {s_t0}
        v_mov_b32 {vu2}, {s_t1}
        v_cndmask_b32 {vu1}, {vu2}, {vu1}, vcc
        v_sub_u32 {vu1}, {vtr}, {vu1}
        v_subrev_u32 {vu2}, 46, {vl}
        v_lshlrev_b32 {vu2}, 2, {vu2}
        v_cmp_gt_u32 vcc, 64, {vu2}
        v_cndmask_b32 {vu2}, 2.0, {vu2}, vcc
        s_mov_b32 {skv[0]}, {pdbg[0]}
        s_mov_b32 {skv[1]}, {pdbg[1]}
        s_movk_i32 {skv[2]}, 64
        s_lshl_b32 {s_t0}, s2, 2
        s_add_u32 {s_t0}, {s_t0}, {s_w}
        s_cmp_eq_u32 {s_t0}, {dbg - 1}
        s_cselect_b32 {s_t0}, 0, 2.0
        buffer_store_dword {vu1}, {vu2}, {skv}, {s_t0} offen
        """)
    p.e('s_endpgm')

    p.seg('slow0')
    p.e(f'{name}_slow:')
    p.e(f"""
    s_waitcnt vmcnt(0) lgkmcnt(0)
    v_mov_b32 {vu0}, 0xff800000
    v_mov_b32 {vu1}, 0xff800000
    s_mov_b32 {s_okv}, 0
    s_mov_b32 {skv[2]}, 262144
    """)
    p.seg('slow1')
    p.e(f'{name}_slow1:')
    for f in range(2): p.e(f'buffer_load_dwordx4 {K[0][4*f:4*f+4]}, {vl16}, {skv}, {s_okv} offen offset:{f * 1024}')
    for q in range(2):
        for f in range(2): p.e(qk(Sx[q], 0, q, f, '0'))
    rowmax(vu0, Sx[0], False); rowmax(vu1, Sx[1], False)
    p.e(f's_add_u32 {s_okv}, {s_okv}, 4096\ns_cmp_lt_u32 {s_okv}, 262144\ns_cbranch_scc1 {name}_slow1')
    p.seg('slow2')
    setc(0, vu0); setc(1, vu1)
    for q in range(2):
        for i in range(16): p.e(f'v_accvgpr_write_b32 {O[q][i]}, 0')
        for i in range(4): p.e(f'v_accvgpr_write_b32 {L[q][i]}, 0')
    p.e(f's_mov_b32 {s_okv}, 0')
    p.seg('slow3')
    p.e(f'{name}_slow3:')
    for f in range(2): p.e(f'buffer_load_dwordx4 {K[0][4*f:4*f+4]}, {vl16}, {skv}, {s_okv} offen offset:{f * 1024}')
    for f in range(2): p.e(f'buffer_load_dwordx4 {V[0][4*f:4*f+4]}, {vl16}, {skv}, {s_okv} offen offset:{2048 + f * 1024}')
    for q in range(2):
        for f in range(2): p.e(qk(Sx[q], 0, q, f, C[q]))
    for q in range(2):
        for i in range(16): p.e(f'v_exp_f32 {Sx[q][i]}, {Sx[q][i]}')
        for i in range(8): p.e(cvt(q, i))
        p.add([pv(q, 0), pv(q, 1), rsum(q)])
    p.e(f's_add_u32 {s_okv}, {s_okv}, 4096\ns_cmp_lt_u32 {s_okv}, 262144\ns_cbranch_scc1 {name}_slow3')
    p.seg('slow4')
    lsum()
    p.e(f's_branch {name}_epi')
    for lab, cond, reload_ in spins:
        p.seg(lab)
        p.e(f'{lab}_spin:\ns_mov_b32 {s_cnt if lab.endswith("cnt") else s_spin}, {SPIN}\n{lab}_again:\ns_sleep 2')
        p.add(reload_)
        p.e('s_waitcnt vmcnt(0)\ns_nop 1')
        p.add(cond)
        r_ = s_cnt if lab.endswith('cnt') else s_spin
        p.e(f's_nop 4\ns_cbranch_vccz {lab}_ok\ns_sub_u32 {r_}, {r_}, 1\ns_cmp_lg_u32 {r_}, 0\ns_cbranch_scc1 {lab}_again\ns_branch {lab}_ok')
    p.seg('end')
    p.e(f'{name}_end:\ns_endpgm')
    mid = ['join', 'partA', 'loop', 'loop', 'tail']
    slow = ['slow0', 'slow1', 'slow1', 'slow2', 'slow3', 'slow3', 'slow4']
    traces = []
    for wc in range(2):
        for x in ([], ['pfx']):
            traces.append(['pro'] + x + ['pro2', f'c{wc}a', f'c{wc}l1', f'c{wc}l2', f'c{wc}l1', f'c{wc}l2', f'c{wc}l1', f'c{wc}last'] + mid + ['epi'])
    traces.append(mid + slow + ['epi'])
    for lab, _, _ in spins: traces.append([lab])
    p.auto_waits(traces)
    nn = p.hazards(traces)
    return kernel_header(name) + p.text(), kernel_desc(name), dict(nops=nn, v=va.p, a=aa.p, s=max(sa.p, s_hi))

if __name__ == '__main__':
    import sys
    NAME = 'gated_mix__softmax_full_mha__glu_gated_bilinear__prompt'
    REF = f'cdna_kernels/{NAME}.s.ref'
    dst = sys.argv[1]
    kw = {a.split('=')[0]: float(a.split('=')[1]) if '.' in a else int(a.split('=')[1]) for a in sys.argv[2:] if '=' in a}
    t, d, info = gen_fused(NAME + '_kernel', prof='prof' in sys.argv, force_slow='slow' in sys.argv, **kw)
    print(info, file=sys.stderr)
    head = [l for l in open(REF).read().split('\n') if l.startswith(';') and '@launch' not in l]
    out = '\n'.join(head) + f'\n; @launch grid=(256,1,1) block=(256,1,1) lds={F_LDS}\n.amdgcn_target "amdgcn-amd-amdhsa--gfx950"\n' + t + d
    open(dst, 'w').write(out)
```

```python
from gen_common import *

X0, X1, W0, W1, QS = 0, 32768, 65536, 106496, 147456
F_LDS = 163840
WS_FL = 33 << 20
DBG_CNT = 64
SPIN = 40000

def gen_fused(name, prof=False, pfd=4, cq=8, cg=6.5, cx=4, NB=8, DD=4, PM=38, HP=1.0, force_slow=False, ptrace=0, dbg=0, exp_=0, VSP=2, PFP=18, OC=8, KP=3, H0=7, ROT=0, CPF=1, OUTM=0, CP0=1, CP2=0, FG=3, TLB=0, PRA=0, PRB=0, PG=3, E0=14, st_mod=' sc1'):
    pfm = 1; xpf = 1
    p = Prog()
    sa = Alloc('s', 4, 102); va = Alloc('v', 1, 256); aa = Alloc('a', 0, 256)
    ptr = sa(16, 4)
    px, pqkv, pwo, pwg, pwu, pwd, pgw = ptr[0:2], ptr[2:4], ptr[4:6], ptr[8:10], ptr[10:12], ptr[12:14], ptr[14:16]
    pod = sa(4, 4); pout, pdbg = pod[0:2], pod[2:4]
    pws = sa(2); smask = sa(2)
    sws = sa(4); sfl = sa(4); sdbg = sa(4)
    s_mb, s_h, s_w, s_wr, s_wc, s_t0, s_t1, s_t2, s_cnt, s_tr, s_hb = [sa() for _ in range(11)]
    s_pt = sa(4, 2)
    s_base = sa.p
    sx = sa(4); sq = sa(4); sg = sa(4); spf = sa(4); sp2 = sa(4); sp3 = sa(4)
    s_c0, s_c1, s_ox, s_oq, s_og, s_pfo, s_pfs, s_gs, s_grp, s_ano = [sa() for _ in range(10)]
    m0x = [[sa() for _ in range(2)] for _ in range(2)]
    m0w = [[sa() for _ in range(3)] for _ in range(2)]
    s_hi = sa.p

    vl, vpd, vflag, vtr, vflk = [va() for _ in range(5)]
    v_base = va.p
    pf = Prof2(p, prof, s_pt, vtr, s_tr)
    vdx = [va() for _ in range(8)]; vdq = [va() for _ in range(2)]; vdq.append(vdq[0]); vdg = [va() for _ in range(7)]
    vxr = [va() for _ in range(2)]; vqr = [va() for _ in range(2)]; vgr = [va() for _ in range(2)]
    vt0, vt1, vt2, vt3, vpf = [va() for _ in range(5)]
    vcnt = va(); vwo = va()
    vtmp = va(28, 4)
    assert vtmp.a == 36
    xf = [[aa(4, 4) for _ in range(8)] for _ in range(2)]
    NSLOT = 4; DIST = 3
    wf = [aa(4, 4) for _ in range(NSLOT)]
    acc = [[None] * 8 for _ in range(10)]
    for n in [0, 1, 6, 7, 8, 9, 2, 3, 4, 5]:
        for m in range(8):
            acc[n][m] = va(4, 4) if va.p + 4 <= 256 else aa(4, 4)

    def dma_x(st):
        L = []
        for i in range(8):
            pre = [f's_mov_b32 m0, {m0x[st][i // 4]}'] if i % 4 == 0 else []
            L.append((pre, Ins(f'buffer_load_dwordx4 {vdx[i]}, {sx}, {s_ox} offen offset:{(i % 4) * 1024} lds', f'S{st}')))
        return L
    def dma_w(st):
        L = []
        for i in range(10):
            pre = [f's_mov_b32 m0, {m0w[st][i // 4]}'] if i % 4 == 0 else []
            v, sr, so = (vdq[i - 7], sq, s_oq) if i >= 7 else (vdg[i], sg, s_og)
            L.append((pre, Ins(f'buffer_load_dwordx4 {v}, {sr}, {so} offen offset:{(i % 4) * 1024} lds', f'S{st}')))
        return L
    def emit(lst):
        for pre, ins in lst:
            p.add(pre); p.add([ins])
    adv = [f's_add_u32 {s_oq}, {s_oq}, {64 * 6144}', f's_add_u32 {s_og}, {s_og}, {64 * 7168}', f's_add_u32 {s_ox}, {s_ox}, 128']

    p.seg('pro')
    p.e(f"""
    s_cmp_ge_u32 s2, 256
    s_cbranch_scc1 {name}_end
    s_load_dwordx16 {ptr}, s[0:1], 0
    s_load_dwordx4 {pod}, s[0:1], 64
    s_load_dwordx2 {pws}, s[0:1], 80
    v_lshrrev_b32 {vt0}, 6, v0
    v_and_b32 {vl}, 63, v0
    s_lshr_b32 {s_t1}, s2, 3
    v_readfirstlane_b32 {s_w}, {vt0}
    s_and_b32 {s_mb}, {s_t1}, 7
    s_and_b32 {s_t0}, s2, 7
    s_lshr_b32 {s_t1}, {s_t1}, 3
    s_lshl_b32 {s_h}, {s_t0}, 2
    s_add_u32 {s_h}, {s_h}, {s_t1}
    s_lshr_b32 {s_wr}, {s_w}, 1
    s_and_b32 {s_wc}, {s_w}, 1
    """)
    if CP0:
        p.e(f"""
        s_getpc_b64 {sp3[0:2]}
        {name}_pcs:
        s_and_b32 {sp3[1]}, {sp3[1]}, 0xffff
        s_mov_b32 {sp3[2]}, {name}_join-{name}_pcs
        s_mov_b32 {sp3[3]}, 0x00020000
        s_lshr_b32 {s_t0}, s2, 3
        s_lshl_b32 {s_t0}, {s_t0}, 2
        s_add_u32 {s_t0}, {s_t0}, {s_w}
        s_lshl_b32 {s_t0}, {s_t0}, 7
        v_lshl_add_u32 {vwo}, {vl}, 14, {s_t0}
        """)
        p.add([Ins(f'buffer_load_dword {vpd}, {vwo}, {sp3}, 0 offen', 'pf')])
    if xpf:
        p.e(f"""
        v_and_b32 {vt0}, 7, {vl}
        v_lshrrev_b32 {vt1}, 3, {vl}
        v_mul_u32_u24 {vt2}, 86, {vt1}
        v_lshrrev_b32 {vt2}, 8, {vt2}
        v_mad_i32_i24 {vt1}, {vt2}, -3, {vt1}
        v_lshl_add_u32 {vt0}, {vt2}, 6, {vt0}
        s_lshl_b32 {s_t0}, {s_mb}, 3
        v_add_u32 {vt0}, {s_t0}, {vt0}
        s_cmp_eq_u32 {s_w}, 3
        s_movk_i32 {s_c0}, 7168
        s_cmov_b32 {s_c0}, 6144
        s_movk_i32 {s_c1}, 108
        s_cmov_b32 {s_c1}, 2048
        v_mul_u32_u24 {vt0}, {s_c0}, {vt0}
        v_mad_u32_u24 {vpf}, {vt1}, {s_c1}, {vt0}
        v_cmp_gt_u32 vcc, 48, {vl}
        s_lshl_b32 {s_t0}, {s_t1}, 17
        v_lshl_add_u32 {vt0}, {vl}, 11, {s_t0}
        v_cndmask_b32 {vpf}, 2.0, {vpf}, vcc
        s_cmp_eq_u32 {s_w}, 0
        s_cselect_b64 vcc, -1, 0
        v_cndmask_b32 {vpf}, {vpf}, {vt0}, vcc
        v_cndmask_b32 {vt3}, 2.0, {vt0}, vcc
        """)
    p.e(f"""
    s_lshl_b32 {s_t0}, {s_mb}, 19
    s_lshl_b32 {s_t1}, {s_h}, 6
    s_mul_i32 {s_t2}, {s_h}, 224
    s_waitcnt lgkmcnt(0)
    """)
    pf.stamp(0)
    pf.trace_init(vtr, s_tr)
    srd(p, sx, px, off_s=s_t0, size=S * D * 2, size_s=s_t0)
    srd(p, sq, pqkv, off_s=s_t1, size=D * 3072 * 2, size_s=s_t1)
    p.e(f"""
    s_cmp_ge_u32 {s_w}, 2
    s_cselect_b32 {s_t0}, {pwu[0]}, {pwg[0]}
    s_cselect_b32 {s_t1}, {pwu[1]}, {pwg[1]}
    s_add_u32 {sg[0]}, {s_t0}, {s_t2}
    s_addc_u32 {sg[1]}, {s_t1}, 0
    s_sub_u32 {sg[2]}, {D * F * 2}, {s_t2}
    s_mov_b32 {sg[3]}, 0x00020000
    """)
    if xpf:
        p.e(f"""
        s_cmp_eq_u32 {s_w}, 3
        s_cselect_b64 {spf[0:2]}, {sq[0:2]}, {sg[0:2]}
        s_cselect_b32 {spf[2]}, {sq[2]}, {sg[2]}
        s_cmp_eq_u32 {s_w}, 0
        s_cselect_b64 {spf[0:2]}, {sx[0:2]}, {spf[0:2]}
        s_cselect_b32 {spf[2]}, {sx[2]}, {spf[2]}
        s_mov_b32 {spf[3]}, 0x00020000
        """)
        p.add([Ins(f'buffer_load_dword {vpd}, {vpf}, {spf}, 0 offen', 'pf')])
        if xpf > 1: p.add([Ins(f'buffer_load_dword {vpd}, {vt3}, {spf}, 0 offen offset:128', 'pf')])
    if ptrace > 0: pf.trace()
    p.e(f"""
    v_lshrrev_b32 {vt0}, 3, {vl}
    v_and_b32 {vt1}, 7, {vl}
    v_lshrrev_b32 {vt2}, 4, {vl}
    v_xor_b32 {vt1}, {vt1}, {vt2}
    v_lshlrev_b32 {vt3}, 11, {vt0}
    s_lshl_b32 {s_t0}, {s_w}, 17
    v_add_u32 {vt3}, {s_t0}, {vt3}
    v_lshl_add_u32 {vdx[0]}, {vt1}, 4, {vt3}
    v_xor_b32 {vt1}, 4, {vt1}
    v_lshl_add_u32 {vdx[1]}, {vt1}, 4, {vt3}
    v_add_u32 {vdx[1]}, {16384 - 1024}, {vdx[1]}
    s_lshl_b32 {m0x[0][0]}, {s_w}, 13
    s_add_u32 {m0x[0][1]}, {m0x[0][0]}, 4096
    s_mov_b32 {s_ox}, 0
    """)
    for i in range(2, 8):
        p.e(f'v_add_u32 {vdx[i]}, {(i - i % 2) * 16384 - (i % 4 - i % 2) * 1024}, {vdx[i % 2]}')
    emit(dma_x(0))
    if ptrace > 0: pf.trace()
    p.e(f"""
    v_lshrrev_b32 {vt0}, 2, {vl}
    v_lshrrev_b32 {vt2}, 4, {vl}
    v_and_b32 {vt2}, 2, {vt2}
    v_and_b32 {vt1}, 3, {vl}
    v_xor_b32 {vt1}, {vt1}, {vt2}
    s_lshl_b32 {s_t1}, {s_w}, 4
    v_add_u32 {vt0}, {s_t1}, {vt0}
    v_mul_u32_u24 {vt0}, 6144, {vt0}
    v_lshl_add_u32 {vdq[1]}, {vt1}, 4, {vt0}
    v_add_u32 {vdq[0]}, 1024, {vdq[1]}
    s_mul_i32 {s_t1}, {s_w}, 10240
    s_mov_b32 {s_oq}, 0
    s_mov_b32 {s_og}, 0
    """)
    for st in range(2):
        for j in range(3): p.e(f's_add_u32 {m0w[st][j]}, {s_t1}, {(W0, W1)[st] + j * 4096}')
    w0 = dma_w(0)
    p.e(f's_mov_b32 m0, {m0w[0][1]}')
    emit(w0[7:])
    p.e(f"""
    s_mul_i32 {s_t0}, {s_wc}, {32 * 7168}
    s_movk_i32 {s_c0}, 6944
    s_movk_i32 {s_c1}, 28672
    v_mul_u32_u24 {vt3}, 4682, {vl}
    v_lshl_add_u32 {vpf}, {vl}, 4, {s_t0}
    """)
    for j in range(7):
        imm = (j % 4) * 1024
        tj = vt3
        if j:
            p.e(f'v_add_u32 {vt0}, {64 * j * 4682}, {vt3}'); tj = vt0
        p.e(f"""
        v_bfe_u32 {vt1}, {tj}, 18, 1
        v_bfe_u32 {vt2}, {tj}, 19, 1
        v_lshrrev_b32 {vt0}, 16, {tj}
        v_sub_u32 {vt1}, {vt1}, {vt2}
        v_mad_u32_u24 {vdg[j]}, {vt0}, {s_c0}, {vpf}
        v_mad_i32_i24 {vdg[j]}, {vt1}, {s_c1}, {vdg[j]}
        """)
        if j == 3: p.e(f'v_add_u32 {vpf}, 4096, {vpf}')
        emit([w0[j]])
    p.add(adv)
    if ptrace > 0: pf.trace()
    gx = [vtmp[4 * i:4 * i + 4] for i in range(4)]; gw = [vtmp[16:20], vtmp[20:24]]; t = vtmp[24:28]; z = [vt0, vt1]
    p.e(f's_mov_b32 {sp2[3]}, 0x00020000')
    gate_pre = [f's_mov_b32 {spf[0]}, {pgw[0]}', f's_mov_b32 {spf[1]}, {pgw[1]}', f's_movk_i32 {spf[2]}, 2048']
    p.e(f"""
    s_lshl_b32 {s_t0}, {s_h}, 3
    s_lshl_b32 {s_t1}, {s_w}, 1
    s_add_u32 {s_t0}, {s_t0}, {s_t1}
    s_lshl_b32 {s_t2}, {s_t0}, 11
    s_add_u32 {m0x[1][0]}, {m0x[0][0]}, {X1}
    s_add_u32 {m0x[1][1]}, {m0x[0][0]}, {X1 + 4096}
    """)
    gate_loads = [f'buffer_load_dwordx4 {gw[0]}, {z[0]}, {spf}, 0 offen', f'buffer_load_dwordx4 {gw[1]}, {z[0]}, {spf}, 0 offen offset:16'] + \
                 [f'buffer_load_dwordx4 {gx[i]}, {z[0]}, {sx}, {s_t2} offen offset:{(i // 2) * 2048 + (i % 2) * 16}' for i in range(4)]
    PD = pfd
    def pfetch():
        return [Ins(f'buffer_load_dword {vpd}, {vpf}, {spf}, {s_pfo} offen', 'pf'), f's_add_u32 {s_pfo}, {s_pfo}, {s_pfs}']
    def pfetch_d():
        return [Ins(f'buffer_load_dword {vpd}, {vt3}, {sp2}, {s_c1} offen', 'pf'), f's_add_u32 {s_c1}, {s_c1}, {4096 * 128}']
    if pfm:
        p.e(f"""
        s_cmp_eq_u32 {s_w}, 0
        s_cselect_b32 {spf[0]}, {pqkv[0]}, {pwg[0]}
        s_cselect_b32 {spf[1]}, {pqkv[1]}, {pwg[1]}
        s_cselect_b32 {s_t0}, 12, 14
        s_cmp_eq_u32 {s_w}, 2
        s_cselect_b32 {spf[0]}, {pwu[0]}, {spf[0]}
        s_cselect_b32 {spf[1]}, {pwu[1]}, {spf[1]}
        s_lshl_b32 {spf[2]}, {s_t0}, 19
        s_lshl_b32 {s_pfs}, {s_t0}, 15
        s_mul_i32 {s_t1}, {s_t0}, s2
        v_and_b32 {vt1}, 15, {vl}
        v_add_u32 {vt0}, {s_t1}, {vt1}
        v_lshlrev_b32 {vpf}, 7, {vt0}
        v_cmp_gt_u32 vcc, {s_t0}, {vt1}
        v_cndmask_b32 {vpf}, 2.0, {vpf}, vcc
        s_mov_b32 {spf[3]}, 0x00020000
        s_cmp_lg_u32 {s_w}, 3
        s_cbranch_scc1 {name}_pf0
        """)
        p.seg('pfx')
        p.e(f"""
        s_mov_b32 {spf[0]}, {px[0]}
        s_mov_b32 {spf[1]}, {px[1]}
        s_mov_b32 {spf[2]}, {S * D * 2}
        s_movk_i32 {s_pfs}, 128
        s_lshl_b32 {s_t1}, s2, 14
        v_lshl_add_u32 {vpf}, {vt1}, 11, {s_t1}
        v_cmp_gt_u32 vcc, 8, {vt1}
        v_cndmask_b32 {vpf}, 2.0, {vpf}, vcc
        """)
        p.seg('pro2')
        p.e(f"""
        {name}_pf0:
        v_lshrrev_b32 {vt0}, 4, {vl}
        v_mul_lo_u32 {vt0}, {vt0}, {s_pfs}
        v_add_u32 {vt0}, {vt0}, {vpf}
        v_cmp_eq_u32 vcc, 2.0, {vpf}
        v_cndmask_b32 {vt0}, {vt0}, {vpf}, vcc
        v_cmp_gt_u32 vcc, {16 * (PD - (2 if xpf > 1 else 1))}, {vl}
        v_cndmask_b32 {vt0}, 2.0, {vt0}, vcc
        s_lshl_b32 {s_pfo}, {s_pfs}, {1 if xpf > 1 else 0}
        """)
        p.add([Ins(f'buffer_load_dword {vpd}, {vt0}, {spf}, {s_pfo} offen', 'pf')])
        p.e(f"""
        v_cmp_gt_u32 vcc, 16, {vl}
        v_cndmask_b32 {vpf}, 2.0, {vpf}, vcc
        s_mul_i32 {s_pfo}, {s_pfs}, {PD}
        """)
    else:
        p.seg('pfx'); p.seg('pro2')
    if ptrace > 0: pf.trace()
    srd(p, sws, pws, size=WS_SIZE)
    srd(p, sfl, pws, off_imm=WS_FL, size=8192)
    p.e(f"""
    s_lshl_b32 {s_t0}, {s_mb}, 5
    s_add_u32 {s_t0}, {s_t0}, {s_h}
    s_lshl_b32 {s_t0}, {s_t0}, 2
    s_add_u32 {s_t0}, {s_t0}, {s_w}
    s_lshl_b32 {s_t0}, {s_t0}, 2
    v_mov_b32 {vt0}, {s_t0}
    v_cmp_eq_u32 vcc, 0, {vl}
    v_mov_b32 {vt1}, 0
    v_cndmask_b32 {vflag}, 2.0, {vt0}, vcc
    s_lshl_b32 {s_t0}, {s_h}, 3
    s_add_u32 {s_t0}, {s_t0}, {s_mb}
    s_lshl_b32 {s_t0}, {s_t0}, 2
    s_add_u32 {s_t0}, {s_t0}, {s_w}
    s_lshl_b32 {s_t0}, {s_t0}, 2
    s_add_u32 {s_t0}, {s_t0}, 4096
    v_mov_b32 {vt0}, {s_t0}
    buffer_store_dword {vt1}, {vflag}, {sfl}, 0 offen sc1
    v_cndmask_b32 {vflk}, 2.0, {vt0}, vcc
    buffer_store_dword {vt1}, {vflk}, {sfl}, 0 offen sc1
    """)
    p.e(f"""
    v_and_b32 {vt0}, 15, {vl}
    v_lshrrev_b32 {vt1}, 4, {vl}
    v_lshrrev_b32 {vt2}, 1, {vt0}
    v_xor_b32 {vt2}, {vt1}, {vt2}
    s_lshl_b32 {s_t0}, {s_wr}, 14
    v_lshl_add_u32 {vt3}, {vt0}, 7, {s_t0}
    v_lshl_add_u32 {vxr[0]}, {vt2}, 4, {vt3}
    v_xor_b32 {vxr[1]}, 64, {vxr[0]}
    v_and_b32 {vt3}, 3, {vt0}
    v_lshlrev_b32 {vt3}, 3, {vt3}
    v_lshrrev_b32 {vt0}, 2, {vt0}
    v_lshrrev_b32 {vt2}, 1, {vt1}
    v_and_b32 {vt1}, 1, {vt1}
    v_mul_u32_u24 {vqr[0]}, 10240, {vt2}
    v_mul_u32_u24 {vqr[1]}, {512 + 32}, {vt1}
    v_add3_u32 {vqr[0]}, {vqr[0]}, {vqr[1]}, {vt3}
    v_lshl_add_u32 {vqr[0]}, {vt0}, 6, {vqr[0]}
    s_lshl_b32 {s_t0}, {s_wc}, 10
    s_sub_u32 {s_t0}, {W0 + 8192}, {s_t0}
    v_add_u32 {vqr[0]}, {s_t0}, {vqr[0]}
    v_xor_b32 {vqr[1]}, 32, {vqr[0]}
    v_lshl_add_u32 {vt0}, {vt1}, 2, {vt0}
    v_lshl_add_u32 {vt0}, {vt2}, 4, {vt0}
    v_mul_u32_u24 {vt0}, 224, {vt0}
    s_mul_i32 {s_t0}, {s_wc}, 96
    s_add_u32 {s_t0}, {s_t0}, {W0}
    v_add3_u32 {vgr[0]}, {vt0}, {vt3}, {s_t0}
    v_add_u32 {vgr[1]}, 20480, {vgr[0]}
    s_lshl_b32 {s_t0}, {s_mb}, 5
    s_add_u32 {s_t0}, {s_t0}, {s_h}
    s_lshl_b32 {s_t0}, {s_t0}, 7
    s_lshl_b32 {s_t1}, {s_w}, 3
    s_add_u32 {s_t0}, {s_t0}, {s_t1}
    s_add_u32 {s_gs}, {s_t0}, {WS_G}
    v_lshlrev_b32 {z[0]}, 5, {vl}
    """)
    if ptrace > 0: pf.trace()
    p.e('WAITTAG S0')
    if ptrace > 0: pf.trace()
    p.e('s_barrier')
    if ptrace > 0: pf.trace()
    pf.stamp(1)

    def gate_ops():
        L = []
        for r in range(2):
            for j in range(8):
                xr = gx[2 * r + j // 4][j % 4]; wr_ = gw[j // 4][j % 4]
                L += [f'v_lshlrev_b32 {t[0]}, 16, {xr}', f'v_lshlrev_b32 {t[1]}, 16, {wr_}',
                      f'v_and_b32 {t[2]}, 0xffff0000, {xr}', f'v_and_b32 {t[3]}, 0xffff0000, {wr_}',
                      f'v_mul_f32 {t[0]}, {t[0]}, {t[1]}', f'v_mul_f32 {t[2]}, {t[2]}, {t[3]}',
                      f'v_cvt_pk_bf16_f32 {t[0]}, {t[0]}, {t[2]}', f'v_lshlrev_b32 {t[1]}, 16, {t[0]}',
                      f'v_and_b32 {t[2]}, 0xffff0000, {t[0]}']
                if j == 0: L.append(f'v_add_f32 {z[r]}, {t[1]}, {t[2]}')
                else: L += [f'v_add_f32 {t[1]}, {t[1]}, {t[2]}', f'v_add_f32 {z[r]}, {z[r]}, {t[1]}']
        for mode in ('quad_perm:[1,0,3,2]', 'quad_perm:[2,3,0,1]', 'row_half_mirror', 'row_mirror'):
            for r in range(2): L.append(f'v_add_f32_dpp {z[r]}, {z[r]}, {z[r]} {mode} row_mask:0xf bank_mask:0xf')
        for op in ('v_permlane16_swap_b32', 'v_permlane32_swap_b32'):
            for r in range(2): L.append(f'v_mov_b32 {t[r]}, {z[r]}')
            for r in range(2): L.append(f'{op} {t[r]}, {z[r]}')
            for r in range(2): L.append(f'v_add_f32 {z[r]}, {z[r]}, {t[r]}')
        L += f"""v_and_b32 {t[1]}, 1, {vl}
        v_cmp_eq_u32 vcc, 1, {t[1]}
        v_and_b32 {t[3]}, 2, {vl}
        v_cndmask_b32 {t[0]}, {z[0]}, {z[1]}, vcc
        v_cvt_pk_bf16_f32 {t[0]}, {t[0]}, {t[0]}
        v_and_b32 {t[0]}, 0xffff0000, {t[0]}
        v_mul_f32 {t[0]}, {hex(f32bits(-math.log2(math.e)))}, {t[0]}
        v_exp_f32 {t[0]}, {t[0]}
        v_cmp_eq_u32 vcc, 2, {t[3]}
        v_add_f32 {t[0]}, 1.0, {t[0]}
        v_rcp_f32 {t[0]}, {t[0]}
        v_lshlrev_b32 {t[3]}, 4, {t[3]}
        v_cvt_pk_bf16_f32 {t[0]}, {t[0]}, {t[0]}
        v_and_b32 {t[0]}, 0xffff0000, {t[0]}
        v_sub_f32 {t[2]}, 1.0, {t[0]}
        v_cvt_pk_bf16_f32 {t[2]}, {t[2]}, {t[2]}
        v_and_b32 {t[2]}, 0xffff0000, {t[2]}
        v_cndmask_b32 {t[0]}, {t[0]}, {t[2]}, vcc
        v_lshl_add_u32 {t[3]}, {t[1]}, 2, {t[3]}
        v_cmp_gt_u32 vcc, 4, {vl}
        v_cndmask_b32 {t[3]}, 2.0, {t[3]}, vcc
        buffer_store_dword {t[0]}, {t[3]}, {sws}, {s_gs} offen{st_mod}""".split('\n')
        return [x.strip() for x in L]

    def wread(j, st, wc):
        ks, n = divmod(j, 10)
        slot = wf[j % NSLOT]
        nq = 4 if wc == 0 else 2
        if n < nq: base = vqr[n % 2]; off = ks * 20480 + (1024 if (wc == 0 and n < 2) else 0); so = 256
        else: base = vgr[(n - nq) % 2]; off = ks * 10240 + ((n - nq) // 2) * 32; so = 1792
        off += st * (W1 - W0)
        return [f'ds_read_b64_tr_b16 {slot[2 * s:2 * s + 2]}, {base} offset:{off + s * so}' for s in range(2)]
    def xread(m, ks, st):
        return f'ds_read_b128 {xf[ks][m]}, {vxr[ks]} offset:{st * (X1 - X0) + m * 2048}'

    for m in range(8): p.e(xread(m, 0, 0))
    p.e(f's_cmp_eq_u32 {s_wc}, 1')
    p.e(f's_cbranch_scc1 {name}_c1')

    def stage(st, wc, first=False, last=False, extra=None, fill=None, estep=2, postbar=None, nodma1=False, early=None):
        slots = {}
        for j in range(20):
            jj = j + DIST
            if jj < 20: rd = wread(jj, st, wc)
            elif last: continue
            else: rd = wread(jj - 20, st ^ 1, wc)
            place(slots, 8 * j + 0, rd[0]); place(slots, 8 * j + 2, rd[1])
        for m in range(8): place(slots, 8 * (1 + m) + 4, xread(m, 1, st))
        bar = 8 * (20 - DIST)
        if not last:
            for m, c in enumerate((1, 3, 4, 6, 9, 11, 12, 14)): place(slots, bar + c, xread(m, 0, st ^ 1))
        pos = []; c = 1.0
        for k in range(18):
            pos.append(int(c)); c += cg if k < 7 else (cq if k < 10 else cx)
        endc = int(c) - (160 - bar)
        if first:
            pos = [x + 160 - bar for x in pos]; endc += 160 - bar
        if not last:
            dl = dma_w(st ^ 1) + dma_x(st ^ 1)
            for k in range(18):
                c = pos[k] - (160 - bar)
                if c < 0: continue
                for x in dl[k][0]: place(slots, max(c - 1, 0), x)
                place(slots, c, dl[k][1])
            for i, x in enumerate(adv): place(slots, endc - 2 + i, x)
            if first: pos = [x - (160 - bar) for x in pos]
            dl = dma_w(st) + dma_x(st)
            for k in range(18):
                c = bar + pos[k]
                if c >= 160 or nodma1: continue
                for x in dl[k][0]: place(slots, c - 1, x)
                place(slots, c, dl[k][1])
        if early:
            c = (pos[PFP] - (0 if first else 160 - bar) - 2) if PFP < 18 else endc + 1
            for x in early: place(slots, max(c, 0), x); c += 1
            if PFP >= 18: endc = c + 1
        c = endc + 1
        for x in (extra or []):
            if isinstance(x, list):
                for y in x: place(slots, c, y)
                c += estep; continue
            place(slots, c, x)
            c += 3 if (isinstance(x, Ins) or x.startswith('buffer')) else estep
        assert c < bar
        for i, x in enumerate(postbar or []): place(slots, bar + 13 + i, x)
        fill = [x if isinstance(x, tuple) else (0, x) for x in (fill or [])]
        for c in range(160):
            ks, r = divmod(c, 80); n, mi = divmod(r, 8)
            m = mi if n % 2 == 0 else 7 - mi
            if c == 0 and not first: p.e('s_waitcnt lgkmcnt(2)')
            if c == bar and not last:
                p.e(f'WAITTAG S{st ^ 1} LGKM0')
                p.e('s_barrier')
                if ptrace > 1: pf.trace()
            w = wf[(ks * 10 + n) % NSLOT]; x = xf[ks][m]
            a, b = (x, w) if (wc == 1 and n < 2) else (w, x)
            cin = '0' if (first and ks == 0) else str(acc[n][m])
            p.e(f'v_mfma_f32_16x16x32_bf16 {acc[n][m]}, {a}, {b}, {cin}')
            here = slots.get(c, [])
            p.add(here)
            if c >= 1:
                for _ in range(2 - len(here)):
                    if fill and fill[0][0] <= c: p.add([fill.pop(0)[1]])
        return [x[1] for x in fill]

    def toreg(tile, tmp):
        if tile.k == 'v': return tile
        for i in range(4): p.e(f'v_accvgpr_read_b32 {tmp[i]}, {tile[i]}')
        return tmp
    def pack(o, t0, t1):
        p.e(f'v_cvt_pk_bf16_f32 {o[0]}, {t0[0]}, {t0[1]}\nv_cvt_pk_bf16_f32 {o[1]}, {t0[2]}, {t0[3]}')
        p.e(f'v_cvt_pk_bf16_f32 {o[2]}, {t1[0]}, {t1[1]}\nv_cvt_pk_bf16_f32 {o[3]}, {t1[2]}, {t1[3]}')

    def pf_setup():
        L = f"""s_lshl_b32 {s_t0}, s2, 2
        s_add_u32 {s_t0}, {s_t0}, {s_w}
        s_lshl_b32 {s_t1}, {s_t0}, 9
        v_lshl_add_u32 {vt3}, {vl}, 7, {s_t1}
        v_cmp_gt_u32 vcc, 4, {vl}
        s_mov_b32 {sp2[0]}, {pwd[0]}
        s_mov_b32 {sp2[1]}, {pwd[1]}
        s_mov_b32 {sp2[2]}, {F * D * 2}
        v_cndmask_b32 {vt3}, 2.0, {vt3}, vcc
        s_mov_b32 {s_c1}, 0""".split('\n')
        return [x.strip() for x in L]
    def pf3_setup():
        L = f"""s_mov_b32 {sp3[0]}, {pgw[0]}
        s_mov_b32 {sp3[1]}, {pgw[1]}
        s_movk_i32 {sp3[2]}, 2048
        s_mov_b32 {sp3[3]}, 0x00020000
        v_lshlrev_b32 {vwo}, 7, {vl}""".split('\n')
        L2 = f"""s_lshl_b32 {s_t0}, s2, 2
        s_add_u32 {s_t0}, {s_t0}, {s_w}
        s_lshl_b32 {s_t1}, {s_t0}, 11
        v_lshl_add_u32 {vwo}, {vl}, 7, {s_t1}
        v_cmp_gt_u32 {smask}, 16, {vl}
        s_mov_b32 {sp3[0]}, {pwo[0]}
        s_mov_b32 {sp3[1]}, {pwo[1]}
        s_mov_b32 {sp3[2]}, {D * D * 2}
        v_cndmask_b32 {vwo}, 2.0, {vwo}, {smask}""".split('\n')
        return [x.strip() for x in L] + [Ins(f'buffer_load_dword {vpd}, {vwo}, {sp3}, 0 offen', 'pf')] + [x.strip() for x in L2]
    def tlb_touch():
        return [f's_cmp_eq_u32 {s_w}, 1', f's_cselect_b32 {sp2[0]}, {pout[0]}, {pws[0]}', f's_cselect_b32 {sp2[1]}, {pout[1]}, {pws[1]}',
                f's_mov_b32 {sp2[2]}, {34 << 20}', f's_cmov_b32 {sp2[2]}, {S * D * 2}', f's_cmp_lt_u32 {s_w}, 2', f's_cselect_b32 {s_t0}, 0, 2.0',
                f'v_lshlrev_b32 {vt3}, 20, {vl}', Ins(f'buffer_load_dword {vpd}, {vt3}, {sp2}, {s_t0} offen sc1', 'pf')]
    pf_wo = [f's_cmp_eq_u32 {s_cnt}, 2', f's_cselect_b32 {s_t0}, 0, 2.0', Ins(f'buffer_load_dword {vpd}, {vwo}, {sp3}, {s_t0} offen', 'pf')]
    gate_sel = [f's_cmp_eq_u32 {s_cnt}, 0', f's_cselect_b32 {s_t0}, {s_t2}, 2.0', f's_cselect_b32 {s_t1}, 0, 2.0',
                f's_cselect_b32 {sp3[0]}, {pgw[0]}, {sp3[0]}', f's_cselect_b32 {sp3[1]}, {pgw[1]}, {sp3[1]}', f's_cselect_b32 {sp3[2]}, 0x800, {sp3[2]}']
    gate_loads = [f'buffer_load_dwordx4 {gw[i]}, {z[0]}, {sp3}, {s_t1} offen offset:{16 * i}' for i in range(2)] + \
                 [f'buffer_load_dwordx4 {gx[i]}, {z[0]}, {sx}, {s_t0} offen offset:{(i // 2) * 2048 + (i % 2) * 16}' for i in range(4)]

    spins = []
    def check(cond_lines, reload_lines, tag):
        lab = f'{name}_{tag}'
        spins.append((lab, cond_lines, reload_lines))
        return cond_lines + [f's_cbranch_vccnz {lab}_spin', f'{lab}_ok:']

    def lines(s): return [x.strip() for x in s.strip().split('\n')]
    def rd(tile, tmp):
        if tile.k == 'v': return tile, []
        return tmp, [f'v_accvgpr_read_b32 {tmp[i]}, {tile[i]}' for i in range(4)]
    def packl(o, t0, t1):
        return [f'v_cvt_pk_bf16_f32 {o[0]}, {t0[0]}, {t0[1]}', f'v_cvt_pk_bf16_f32 {o[1]}, {t0[2]}, {t0[3]}',
                f'v_cvt_pk_bf16_f32 {o[2]}, {t1[0]}, {t1[1]}', f'v_cvt_pk_bf16_f32 {o[3]}, {t1[2]}, {t1[3]}']
    def mul4(d, a_, b_, pk):
        if pk: return [f'v_pk_mul_f32 {d[2*i:2*i+2]}, {a_[2*i:2*i+2]}, {b_ if b_.k == "s" else b_[2*i:2*i+2]}' for i in range(2)]
        return [f'v_mul_f32 {d[i]}, {b_[0] if b_.k == "s" else b_[i]}, {a_[i]}' for i in range(4)]
    def hpiece(n, j, o, pk):
        L = []; tt = []
        for mm in range(2):
            g_, l0 = rd(acc[n][2 * j + mm], vtmp[8 * mm:8 * mm + 4]); u_, l1 = rd(acc[n + 1][2 * j + mm], vtmp[8 * mm + 4:8 * mm + 8])
            L += l0 + l1 + mul4(g_, g_, u_, pk); tt.append(g_)
        return L + packl(o, tt[0], tt[1]) + [f'v_permlane16_swap_b32 {o[0]}, {o[2]}', f'v_permlane16_swap_b32 {o[1]}, {o[3]}']
    hreg = [acc[7][2 * j] for j in range(4)] + [acc[6][2 * j] for j in range(4)] + [acc[8][2 * j] for j in range(4)]

    vq = vdx[0]; vh = vdx[1]; vql = vdx[2]; vqq = vdx[3]
    s_b, s_qs = s_oq, R('s', sx.a, 2)
    def epi_setup(wc):
        L = lines(f"""
        v_and_b32 {vt0}, 15, {vl}
        v_lshrrev_b32 {vt1}, 4, {vl}
        v_lshlrev_b32 {vq}, 9, {vt1}
        v_lshlrev_b32 {vh}, 4, {vl}
        s_lshl_b32 {s_t0}, {s_h}, 6
        s_lshl_b32 {s_t1}, {s_mb}, 3
        s_add_u32 {s_t0}, {s_t0}, {s_t1}
        s_lshl_b32 {s_t1}, {s_wr}, 2
        s_add_u32 {s_t0}, {s_t0}, {s_t1}
        s_lshl_b32 {s_b}, {s_t0}, 12
        s_add_u32 {s_b}, {s_b}, {WS_KV}
        s_add_u32 {s_og}, {s_b}, 4096
        s_add_u32 {s_ox}, {s_b}, 8192
        s_add_u32 {s_c0}, {s_b}, 12288
        s_lshl_b32 {s_t0}, {s_mb}, 1
        s_add_u32 {s_t0}, {s_t0}, {s_wr}
        s_mul_i32 {s_t0}, {s_t0}, 288
        s_mul_i32 {s_t1}, {s_h}, 7
        s_add_u32 {s_t0}, {s_t0}, {s_t1}
        s_lshl_b32 {s_t0}, {s_t0}, 12
        s_add_u32 {s_hb}, {s_t0}, {WS_A + 4 * 4096 * wc}
        s_sub_u32 {s_c1}, {s_hb}, 4096
        s_lshl_b32 {s_t1}, {s_wr}, 14""")
        if wc == 0:
            L += lines(f"""
            v_lshrrev_b32 {vt2}, 3, {vt0}
            v_lshl_add_u32 {vq}, {vt2}, 8, {vq}
            v_and_b32 {vt2}, 7, {vt0}
            v_lshl_add_u32 {vq}, {vt2}, 4, {vq}
            v_add_u32 {vql}, {s_t1}, {vq}
            s_lshl_b32 {s_t1}, {s_wr}, 13
            s_add_u32 {s_t1}, {s_t1}, {QS}
            v_add_u32 {vqq}, {s_t1}, {vq}
            s_mov_b32 {s_qs[0]}, {hex(f32bits(QSCALE))}
            s_mov_b32 {s_qs[1]}, {s_qs[0]}""")
        else:
            L += [f'v_lshl_add_u32 {vq}, {vt0}, 4, {vq}', f'v_add_u32 {vql}, {s_t1}, {vq}']
        return L
    kvb = [s_b, s_og, s_ox, s_c0]
    def epi_early(wc, npk):
        F_ = []
        outs = [vtmp[16 + 4 * i:20 + 4 * i] for i in range(3)]
        if wc == 0:
            for m in range(7, -1, -1):
                o = acc[0][m]
                L = packl(o, acc[0][m], acc[1][m]) + [Ins(f'buffer_store_dwordx4 {o}, {vq}, {sws}, {kvb[m // 2]} offen offset:{(m % 2) * 128}{st_mod}', 'KVST'),
                                                       f'ds_write_b128 {vql}, {o} offset:{(m // 2) * 4096 + (m % 2) * 128}']
                F_ += [(88 + (7 - m) + 4, x) for x in L]
            for i, m in enumerate(range(7, -1, -1)):
                o = outs[i % 3]
                t0, l0 = rd(acc[2][m], vtmp[0:4]); t1, l1 = rd(acc[3][m], vtmp[4:8])
                L = l0 + l1 + mul4(t0, t0, s_qs, i >= npk) + mul4(t1, t1, s_qs, i >= npk) + packl(o, t0, t1) + [f'ds_write_b128 {vqq}, {o} offset:{(m // 2) * 2048 + (m % 2) * 128}']
                F_ += [(104 + (7 - m) + 4, x) for x in L]
        else:
            for nt, js in ((0, range(4)), (1, range(3, -1, -1))):
                for j in js:
                    o = acc[nt][2 * j]
                    L = packl(o, acc[nt][2 * j], acc[nt][2 * j + 1]) + [Ins(f'buffer_store_dwordx4 {o}, {vq}, {sws}, {kvb[j]} offen offset:{2048 + nt * 256}{st_mod}', 'KVST'),
                                                                         f'ds_write_b128 {vql}, {o} offset:{j * 4096 + 2048 + nt * 256}']
                    F_ += [((81 + 2 * j if nt == 0 else 95 - 2 * j) + 4, x) for x in L]
            for i, j in enumerate(range(3, -1, -1)):
                o = outs[i % 3]
                L = hpiece(2, j, o, i >= npk) + [Ins(f'buffer_store_dwordx4 {o}, {vh}, {sws}, {s_c1} offen offset:{j * 1024}{st_mod}', 'HST')]
                F_ += [(111 - 2 * j + 4, x) for x in L]
        return F_
    def epi_late():
        for j in range(4): p.add(hpiece(6, j, hreg[4 + j], True))
        p.add([f'v_mov_b32 {vt0}, 1', 'WAITTAG KVST', Ins(f'buffer_store_dword {vt0}, {vflk}, {sfl}, 0 offen sc1', 'FL')])
        for j in range(4): p.add(hpiece(4, j, hreg[j], True))
        for j in range(4): p.add(hpiece(8, j, hreg[8 + j], True))

    announce_setup = lines(f"""
        s_mov_b32 {sdbg[0]}, {pdbg[0]}
        s_mov_b32 {sdbg[1]}, {pdbg[1]}
        s_movk_i32 {sdbg[2]}, 256
        s_mov_b32 {sdbg[3]}, 0x00020000
        s_and_b32 {s_ano}, s2, 7
        s_lshl_b32 {s_ano}, {s_ano}, 2
        s_and_b32 {s_grp}, {s_mb}, 3
        s_add_u32 {s_grp}, {s_grp}, 3
        v_mov_b32 {vt2}, 1
        v_cmp_eq_u32 {smask}, 0, v0
        v_cndmask_b32 {vt1}, 2.0, 0, {smask}""")
    announce = [f's_cmp_eq_u32 {s_cnt}, {s_grp}', f's_cselect_b32 {s_t0}, {s_ano}, 2.0',
                f'buffer_atomic_add {vt2}, {vt1}, {sdbg}, {s_t0} offen offset:{DBG_CNT} sc1']
    cnt_addr = [f'v_and_b32 {vpf}, 7, {vl}', f'v_lshlrev_b32 {vpf}, 2, {vpf}']
    cnt_load = f'buffer_load_dword {vcnt}, {vpf}, {sdbg}, 0 offen offset:{DBG_CNT} sc1'

    def code_pf(wc):
        lab = f'{name}_pc{wc}'
        return [[f's_getpc_b64 {sp3[0:2]}', f'{lab}:'], f's_and_b32 {sp3[1]}, {sp3[1]}, 0xffff', f's_mov_b32 {sp3[2]}, {name}_end-{lab}',
                f's_lshr_b32 {s_t0}, s2, 3', f's_lshl_b32 {s_t1}, {s_t0}, 8', f'v_and_b32 {vwo}, 1, {vl}', f'v_lshlrev_b32 {vwo}, 7, {vwo}',
                f's_lshl_b32 {s_t0}, {s_t0}, 2', f's_add_u32 {s_t0}, {s_t0}, {s_w}', f's_lshl_b32 {s_t0}, {s_t0}, 8',
                f's_add_u32 {s_t0}, {s_t0}, {name}_join-{lab}', f'v_mov_b32 {vt2}, {s_t0}', f'v_mov_b32 {vt3}, {s_t1}',
                f'v_cmp_gt_u32 {smask}, 2, {vl}', f'v_cndmask_b32 {vt2}, {vt2}, {vt3}, {smask}', f'v_add_u32 {vwo}, {vwo}, {vt2}',
                f'v_cmp_gt_u32 {smask}, 4, {vl}', f'v_cndmask_b32 {vwo}, 2.0, {vwo}, {smask}',
                Ins(f'buffer_load_dword {vpd}, {vwo}, {sp3}, 0 offen', 'pf')]
    for wc in range(2):
        p.seg(f'c{wc}a')
        if wc == 1: p.e(f'{name}_c1:')
        for j in range(DIST): p.add(wread(j, 0, wc))
        stage(0, wc, first=True, early=pfetch(), extra=(tlb_touch() if TLB else []) + pf3_setup(), estep=1, fill=announce_setup, postbar=pf_setup())
        p.e(f's_mov_b32 {s_cnt}, 6')
        p.seg(f'c{wc}l1')
        p.e(f'{name}_c{wc}loop:')
        stage(1, wc, early=pfetch() + pfetch_d(), extra=gate_sel + gate_loads, estep=1)
        p.e(f's_cmp_eq_u32 {s_cnt}, 0\ns_cbranch_scc1 {name}_c{wc}out')
        p.seg(f'c{wc}l2')
        stage(0, wc, early=pfetch() + pfetch_d(), extra=announce + pf_wo)
        p.e(f's_sub_u32 {s_cnt}, {s_cnt}, 1\ns_branch {name}_c{wc}loop')
        p.seg(f'c{wc}last')
        p.e(f'{name}_c{wc}out:')
        rest = stage(0, wc, early=pfetch_d(), extra=code_pf(wc) if CPF else None, estep=1, fill=gate_ops(), nodma1=True)
        rest = stage(1, wc, last=True, fill=rest + cnt_addr + [cnt_load] + epi_setup(wc) + epi_early(wc, 3 if wc == 0 else 2))
        pf.stamp(2)
        if ptrace == -1: pf.trace()
        p.add(rest)
        if ptrace == -1: pf.trace()
        epi_late()
        if ptrace == -1: pf.trace()
        if wc == 0: p.e(f's_branch {name}_join')
    p.seg('join')
    p.e(f'{name}_join:')
    p.add(check([f'v_cmp_gt_u32 vcc, 32, {vcnt}'], [cnt_load], 'cnt'))

    sa.p = s_base; va.p = v_base; aa.p = 0
    skv = sa(4); sA = sa(4); swd = sa(4); swo = sa(4); sout = sa(4)
    s_okv, s_left, s_p, s_oa, s_ow, s_wb, s_ob, s_ob2, s_thr, s_mt, s_nt, s_oo, s_spin, s_h1, s_h2, s_rt, s_win = [sa() for _ in range(17)]
    scp = sa(4)
    vl16, vkA, vkB, vdma, vo, vidx, vu0, vu1, vu2, vpa = [va() for _ in range(10)]
    vdd = [va() for _ in range(2)]; vdo = [va() for _ in range(2)]; vwr = [va() for _ in range(2)]
    vg = va(2); vog = va(4); vpoll = va(2, 2); vsc = va(2)
    ones = va(4, 4)
    vA = [va() for _ in range(4)]
    assert va.p <= 46 and va.p > vwo.a
    va2 = Alloc('v', va.p, 48)
    va.p = 48
    Sx = [va(16, 4) for _ in range(2)]; P = [va(8, 4) for _ in range(2)]; C = [va(16, 4) for _ in range(2)]
    acc3 = [[va(16, 4) for _ in range(4)] for _ in range(2)]
    O = [aa(16, 4) for _ in range(2)]; L = [aa(4, 4) for _ in range(2)]
    Q = [aa(8, 4) for _ in range(2)]; K = [aa(8, 4) for _ in range(2)]; V = [aa(8, 4) for _ in range(2)]
    Wf = [aa(4, 4) for _ in range(2)]
    Ab = [[aa(4, 4) for _ in range(4)] for _ in range(8)]

    p.e(f"""
    v_lshlrev_b32 {vl16}, 4, {vl}
    s_lshl_b32 {s_p}, {s_w}, 12
    s_add_u32 {s_t0}, {s_p}, {QS}
    v_add_u32 {vu0}, {s_t0}, {vl16}
    s_waitcnt lgkmcnt(0)
    s_barrier
    """)
    pf.stamp(3)
    def kread(kb, loop=False):
        base, o = (vl16, (kb % 16) * 4096) if not loop else ((vkA, kb * 4096) if kb < 8 else (vkB, (kb - 8) * 4096))
        return [f'ds_read_b128 {K[kb % 2][4*f:4*f+4]}, {base} offset:{o + f * 1024}' for f in range(2)]
    def vread(kb, loop=False):
        base, o = (vl16, (kb % 16) * 4096) if not loop else (vkA, kb * 4096)
        return [f'ds_read_b128 {V[kb % 2][4*f:4*f+4]}, {base} offset:{o + 2048 + f * 1024}' for f in range(2)]
    def qk(dst, kb, q, f, cin):
        return f'v_mfma_f32_32x32x16_bf16 {dst}, {K[kb % 2][4*f:4*f+4]}, {Q[q][4*f:4*f+4]}, {cin if f == 0 else dst}'
    def pv(j, f, zero=False):
        q = j % 2; kb = (j // 2) % 2
        return f'v_mfma_f32_32x32x16_bf16 {O[q]}, {V[kb][4*f:4*f+4]}, {P[q][4*f:4*f+4]}, {"0" if zero else O[q]}'
    def rsum(q): return f'v_smfmac_f32_16x16x64_bf16 {L[q]}, {ones}, {P[q]}, {vidx}'
    def cvt(j, i): return f'v_cvt_pk_bf16_f32 {P[j % 2][i]}, {Sx[j % 2][2*i]}, {Sx[j % 2][2*i+1]}'
    def rowmax(dst, src, init):
        lst = [src[i] for i in range(16)]
        if init:
            p.e(f'v_max3_f32 {dst}, {lst[0]}, {lst[1]}, {lst[2]}'); lst = lst[3:]
        while len(lst) >= 2:
            p.e(f'v_max3_f32 {dst}, {dst}, {lst[0]}, {lst[1]}'); lst = lst[2:]
        if lst: p.e(f'v_max_f32 {dst}, {dst}, {lst[0]}')
    def setc(q, m):
        p.e(f'v_mov_b32 {vu2}, {m}\nv_permlane32_swap_b32 {vu2}, {m}\nv_max_f32 {m}, {m}, {vu2}')
        for i in range(16): p.e(f'v_sub_f32 {C[q][i]}, 0, {m}')
    for q in range(2):
        for f in range(2): p.e(f'ds_read_b128 {Q[q][4*f:4*f+4]}, {vu0} offset:{q * 2048 + f * 1024}')
    p.add(kread(0)); p.add(kread(1))
    p.e(f"""
    v_bfe_u32 {vu0}, {vl}, 2, 1
    v_bfe_u32 {vu1}, {vl}, 1, 1
    v_mov_b32 {vu2}, 0x3f803f80
    v_or_b32 {vidx}, {vu0}, {vu1}
    v_cmp_eq_u32 vcc, 0, {vidx}
    v_xor_b32 {vu0}, 1, {vu0}
    v_or_b32 {vidx}, {vu0}, {vu1}
    v_cndmask_b32 {ones[0]}, 0, {vu2}, vcc
    v_cndmask_b32 {ones[1]}, 0, {vu2}, vcc
    v_cmp_eq_u32 vcc, 0, {vidx}
    v_and_b32 {vu0}, 1, {vl}
    v_mov_b32 {vu1}, 0xeeeeeeee
    v_cndmask_b32 {ones[2]}, 0, {vu2}, vcc
    v_cndmask_b32 {ones[3]}, 0, {vu2}, vcc
    v_cmp_eq_u32 vcc, 0, {vu0}
    v_mov_b32 {vu2}, 0x44444444
    v_add_u32 {vdma}, {s_p}, {vl16}
    v_cndmask_b32 {vidx}, {vu1}, {vu2}, vcc
    """)
    for q in range(2):
        for f in range(2): p.e(qk(C[q], 0, q, f, '0'))
    for q in range(2):
        for i in range(4): p.e(f'v_accvgpr_write_b32 {L[q][i]}, 0')
    p.e(f's_lshl_b32 {s_t0}, {s_h}, 18')
    srd(p, skv, pws, off_s=s_t0, off_imm=WS_KV, size=262144)
    rowmax(vu0, C[0], True); rowmax(vu1, C[1], True)
    setc(0, vu0)
    p.e(qk(Sx[0], 0, 0, 0, C[0])); p.e(qk(Sx[0], 0, 0, 1, C[0]))
    setc(1, vu1)

    def flag(val, tag, wait):
        return [f'v_mov_b32 {vu0}, {val}', f'WAITTAG {wait}', Ins(f'buffer_store_dword {vu0}, {vflag}, {sfl}, 0 offen sc1', tag)]
    def kvdma(m0line, tag):
        return [m0line] + [Ins(f'buffer_load_dwordx4 {vdma}, {skv}, {s_okv} offen offset:{i * 1024} lds', tag) for i in range(4)] + \
               [f's_add_u32 {s_okv}, {s_okv}, 16384', f's_and_b32 {s_okv}, {s_okv}, 0x3ffff',
                f's_sub_u32 {s_left}, {s_left}, 1', f's_cselect_b32 {skv[2]}, 0, {skv[2]}']
    def dloads(s):
        b = s % NB
        return [f's_add_u32 m0, {s_wb}, {b * 2048}'] + \
               [Ins(f'buffer_load_dwordx4 {vdd[hh]}, {swd}, {s_ow} offen offset:{hh * 1024} lds', f'D{b}') for hh in range(2)] + \
               [Ins(f'buffer_load_dwordx4 {Ab[b][r]}, {vA[r]}, {sA}, {s_oa} offen', f'D{b}') for r in range(4)] + \
               ([f's_add_u32 {s_ow}, {s_ow}, 32768', f's_add_u32 {s_oa}, {s_oa}, 4096'] if not ROT else
                ([f's_add_u32 {s_win}, {s_win}, 32768'] if s % 8 == 7 else []) +
                [f's_add_u32 {s_rt}, {s_rt}, 4096', f's_and_b32 {s_rt}, {s_rt}, 0x7000', f's_add_u32 {s_oa}, {s_win}, {s_rt}', f's_lshl_b32 {s_ow}, {s_oa}, 3'])
    def wrd(base, off, nb):
        return [f'ds_read_b64_tr_b16 {Wf[nb][2*s:2*s+2]}, {base[nb]} offset:{off + s * 512}' for s in range(2)]
    def gm(buf, nb, tb, zero=False):
        return f'v_mfma_f32_32x32x16_bf16 {acc3[nb][tb]}, {Wf[nb]}, {buf[tb]}, {"0" if zero else acc3[nb][tb]}'
    def oload(t, m0line, tag):
        return [m0line] + [Ins(f'buffer_load_dwordx4 {vdo[hh]}, {swo}, {s_oo} offen offset:{hh * 1024} lds', tag) for hh in range(2)] + [f's_add_u32 {s_oo}, {s_oo}, 32768', f's_and_b32 {s_oo}, {s_oo}, 0x7ffff']

    def period(j, loop=False, item=None, misc=(), pre=(), zero=False):
        s = Sx[j % 2]
        E = [f'v_exp_f32 {s[i]}, {s[i]}' for i in range(16)]
        jn = j + 1
        m1 = qk(Sx[jn % 2], jn // 2, jn % 2, 0, C[jn % 2]); m2 = qk(Sx[jn % 2], jn // 2, jn % 2, 1, None)
        rd = kread((j + 1) // 2 + 1, loop) if j % 2 == 1 else vread(j // 2, loop)
        first = (j == 0 and not loop)
        zo = (j <= 2 and not loop)
        c7 = [] if first else [cvt(j - 1, 7)]
        p0 = [] if first else [pv(j - 1, 0, zo)]; p1 = [] if first else [pv(j - 1, 1)]; rs = [] if first else [rsum((j - 1) % 2)]
        V_ = [E[0]] + c7
        for i in range(7): V_ += [E[2 * i + 1], E[2 * i + 2], cvt(j, i)]
        V_.append(E[15])
        if item is None:
            p.add(V_[:1 + len(c7)]); V_ = V_[1 + len(c7):]
            M = [m1, m2] + p0 + p1 + rs; G = []
        else:
            st, nb = item
            G = [gm(Ab[st % NB], nb, tb if nb == 0 else 3 - tb, zero) for tb in range(4)]
            M = [G[0], m1, G[1], m2, G[2]] + p0 + [G[3]] + p1 + rs
        if loop and exp_ & 1: M = [x for x in M if x not in G]
        if loop and exp_ & 8: misc = [x for x in misc if not (isinstance(x, Ins) and x.tag and x.tag.startswith('D'))]
        misc = list(misc)
        for k in range(len(misc)):
            if isinstance(misc[k], str) and ' m0,' in misc[k]:
                q_ = k
                while q_ > 0 and not (isinstance(misc[q_ - 1], Ins) and misc[q_ - 1].text.endswith(' lds')): q_ -= 1
                misc.insert(q_, misc.pop(k))
        items = []
        for x in list(pre) + rd + list(misc):
            if items and isinstance(items[-1][-1], str) and items[-1][-1].split()[0] in ('WAITTAG', 's_cbranch_vccnz', 'v_cmp_gt_u32', 's_getpc_b64'): items[-1].append(x)
            else: items.append([x])
        isvm = lambda it: any((y.text if isinstance(y, Ins) else y).startswith('buffer') for y in it)
        n = len(M); last = n - 1 if M[-1].startswith('v_smfmac') else n
        gap = [[] for _ in range(n)]
        nvm = sum(map(isvm, items))
        step = VSP if nvm * VSP <= last else 1
        per = max(2 if item is not None else 1, -(-len(items) // last))
        g = 0; lastvm = -9
        for k, it in enumerate(items):
            if isvm(it):
                left = sum(map(isvm, items[k:]))
                g = max(g, min(lastvm + step, last - 1 - (left - 1) * step))
                g = max(g, 0); lastvm = g
            elif len(gap[g]) >= per and g < last - 1: g += 1
            gap[g].append(it)
        cost = lambda x: 8 if x.startswith('v_exp') else 4
        occ = lambda x: 32 if '32x32' in x else 16
        mc = [4 * sum(1 for it in gp for y in it if not (isinstance(y, str) and y.endswith(':'))) for gp in gap]
        if item is not None: mc[-1] += 4
        tot = sum(map(cost, V_)) + sum(mc) + (12 if item is None else 0)
        room = sum(occ(x) - 8 for x in M)
        acc_ = 0.0; done = 0
        for q_, m_ in enumerate(M):
            p.add([m_])
            for it in gap[q_]: p.add(it)
            acc_ += (occ(m_) - 8) * tot / room; done += mc[q_]
            k = 0
            while V_ and (done + cost(V_[0]) / 2 <= acc_ or (item is not None and q_ == 0 and k < 1 + len(c7))):
                done += cost(V_[0]); p.add([V_.pop(0)]); k += 1
        p.add(V_)

    setup1 = lines(f"""
        s_lshl_b32 {s_okv}, {s_mb}, 15
        s_add_u32 {s_okv}, {s_okv}, 32768
        s_and_b32 {s_okv}, {s_okv}, 0x3ffff
        s_movk_i32 {s_left}, 13
        v_and_b32 {vu1}, 31, {vl}
        v_lshlrev_b32 {vpa}, 2, {vu1}
        s_lshl_b32 {s_t2}, {s_h}, 7
        s_add_u32 {s_t2}, {s_t2}, 4096""")
    poll_kv = f'buffer_load_dword {vpoll[0]}, {vpa}, {sfl}, {s_t2} offen sc1'
    setup2 = lines(f"""
        s_and_b32 {s_t0}, s2, 7
        s_lshr_b32 {s_t1}, s2, 3
        s_lshr_b32 {s_mt}, {s_t0}, 1
        s_lshl_b32 {s_mt}, {s_mt}, 2
        s_and_b32 {s_nt}, {s_t0}, 1
        s_lshl_b32 {s_nt}, {s_nt}, 3
        s_and_b32 {s_t0}, {s_t1}, 3
        s_add_u32 {s_mt}, {s_mt}, {s_t0}
        s_lshr_b32 {s_t0}, {s_t1}, 2
        s_add_u32 {s_nt}, {s_nt}, {s_t0}
        s_lshl_b32 {s_t0}, {s_nt}, 7
        s_lshl_b32 {s_t1}, {s_w}, 19
        s_add_u32 {s_t1}, {s_t1}, {s_t0}
        s_add_u32 {swo[0]}, {pwo[0]}, {s_t1}
        s_addc_u32 {swo[1]}, {pwo[1]}, 0
        s_sub_u32 {swo[2]}, {D * D * 2}, {s_t1}
        s_mov_b32 {swo[3]}, 0x00020000
        s_add_u32 {swd[0]}, {pwd[0]}, {s_t0}
        s_addc_u32 {swd[1]}, {pwd[1]}, 0
        s_sub_u32 {swd[2]}, {F * D * 2}, {s_t0}
        s_mov_b32 {swd[3]}, 0x00020000
        s_mul_i32 {s_t0}, {s_mt}, {288 * 4096}
        s_add_u32 {s_t0}, {s_t0}, {WS_A}
        s_add_u32 {sA[0]}, {pws[0]}, {s_t0}
        s_addc_u32 {sA[1]}, {pws[1]}, 0
        s_mov_b32 {sA[2]}, {288 * 4096}
        s_mov_b32 {sA[3]}, 0x00020000
        s_mul_i32 {s_win}, {s_w}, {56 * 4096}
        s_lshl_b32 {s_rt}, {s_mt}, 1
        s_add_u32 {s_rt}, {s_rt}, {s_nt}
        s_and_b32 {s_rt}, {s_rt}, {7 if ROT else 0}
        s_lshl_b32 {s_rt}, {s_rt}, 12
        s_add_u32 {s_oa}, {s_win}, {s_rt}
        s_lshl_b32 {s_ow}, {s_oa}, 3
        s_and_b32 {s_oo}, {s_nt}, {3 if ROT else 0}
        s_lshl_b32 {s_oo}, {s_oo}, 17
        s_mul_i32 {s_wb}, {s_w}, 20480
        s_add_u32 {s_wb}, {s_wb}, {W0}
        v_lshrrev_b32 {vu1}, 3, {vl}
        v_and_b32 {vu2}, 2, {vu1}
        v_lshlrev_b32 {vu2}, 1, {vu2}
        v_and_b32 {vdd[1]}, 7, {vl}
        v_xor_b32 {vu2}, {vu2}, {vdd[1]}
        v_lshlrev_b32 {vu2}, 4, {vu2}
        v_lshl_add_u32 {vdd[0]}, {vu1}, 11, {vu2}
        v_add_u32 {vdd[1]}, {8 * 2048 - 1024}, {vdd[0]}
        v_lshrrev_b32 {vu1}, 5, {vl}
        v_lshl_add_u32 {vdo[0]}, {vu1}, 13, {vdd[0]}
        v_add_u32 {vdo[1]}, {4 * 2048 - 1024}, {vdo[0]}
        v_lshl_add_u32 {vwr[0]}, {vu1}, 10, {s_wb}
        v_bfe_u32 {vu1}, {vl}, 2, 2
        v_lshl_add_u32 {vwr[0]}, {vu1}, 7, {vwr[0]}
        v_bfe_u32 {vu1}, {vl}, 3, 1
        v_lshl_add_u32 {vwr[0]}, {vu1}, 6, {vwr[0]}
        v_bfe_u32 {vu1}, {vl}, 4, 1
        v_lshl_add_u32 {vwr[0]}, {vu1}, 5, {vwr[0]}
        v_and_b32 {vu1}, 3, {vl}
        v_lshl_add_u32 {vwr[0]}, {vu1}, 3, {vwr[0]}
        v_xor_b32 {vwr[1]}, 64, {vwr[0]}
        v_mov_b32 {vkB}, {vl16}
        v_add_u32 {vkA}, 32768, {vl16}
        s_add_u32 {s_h1}, {s_hb}, 4096
        s_add_u32 {s_h2}, {s_hb}, 8192""")
    for r in range(4):
        setup2 += [f's_add_u32 {s_t0}, {s_w}, {r + 1}', f's_and_b32 {s_t0}, {s_t0}, 3', f's_lshl_b32 {s_t0}, {s_t0}, 10', f'v_add_u32 {vA[r]}, {s_t0}, {vl16}']
    setup3 = lines(f"""
        v_and_b32 {vu1}, 7, {vl}
        v_bfe_u32 {vu2}, {vl}, 4, 1
        v_lshl_add_u32 {vo}, {vu2}, 3, {vu1}
        v_bfe_u32 {vu2}, {vl}, 3, 1
        v_lshl_add_u32 {vo}, {vu2}, 4, {vo}
        v_lshrrev_b32 {vu2}, 3, {vo}
        v_lshlrev_b32 {vu2}, 7, {vu2}
        v_lshl_add_u32 {vsc[0]}, {vu1}, 2, {vu2}
        v_lshlrev_b32 {vo}, 4, {vo}
        v_lshrrev_b32 {vu2}, 5, {vl}
        v_lshl_add_u32 {vo}, {vu2}, 9, {vo}
        v_bfe_u32 {vu2}, {vl}, 3, 2
        v_lshlrev_b32 {vu2}, 7, {vu2}
        v_lshl_add_u32 {vsc[1]}, {vu1}, 2, {vu2}
        s_lshl_b32 {s_t0}, {s_mb}, 1
        s_add_u32 {s_t0}, {s_t0}, {s_wr}
        s_mul_i32 {s_t0}, {s_t0}, 288
        s_lshl_b32 {s_t1}, {s_h}, 1
        s_add_u32 {s_t0}, {s_t0}, {s_t1}
        s_add_u32 {s_t0}, {s_t0}, 224
        s_lshl_b32 {s_t0}, {s_t0}, 12
        s_lshl_b32 {s_t1}, {s_wc}, 11
        s_add_u32 {s_t0}, {s_t0}, {s_t1}
        s_add_u32 {s_ob}, {s_t0}, {WS_A}
        s_add_u32 {s_ob2}, {s_ob}, 4096
        s_mov_b32 {s_thr}, {hex(f32bits(2.0 ** 40 if not force_slow else 0.5))}
        v_lshlrev_b32 {vpa}, 3, {vl}
        s_lshr_b32 {s_t2}, {s_mt}, 1
        s_lshl_b32 {s_t2}, {s_t2}, 9""")
    poll_h = f'buffer_load_dwordx2 {vpoll}, {vpa}, {sfl}, {s_t2} offen sc1'
    cond2 = [f'v_min_u32 {vu1}, {vpoll[0]}, {vpoll[1]}', f'v_cmp_gt_u32 vcc, 2, {vu1}']
    og_loads = [f's_lshl_b32 {s_t0}, {s_mt}, 11', f's_add_u32 {s_t0}, {s_t0}, {WS_G + 32}']
    for r in range(4):
        og_loads += [f'v_lshrrev_b32 {vu1}, 10, {vA[r]}', f'v_lshl_add_u32 {vu1}, {vu1}, 9, {vsc[1]}', f'buffer_load_dword {vog[r]}, {vu1}, {sws}, {s_t0} offen']
    g_loads = [f's_lshl_b32 {s_t0}, {s_mb}, 2', f's_add_u32 {s_t0}, {s_t0}, {s_w}', f's_lshl_b32 {s_t0}, {s_t0}, 10', f's_add_u32 {s_t0}, {s_t0}, {WS_G}'] + \
              [f'buffer_load_dword {vg[q]}, {vsc[0]}, {sws}, {s_t0} offen offset:{q * 512}' for q in range(2)]
    early_o = [oload(t, f's_add_u32 m0, {s_wb}, {(8 + t % 4) * 2048}' if t % 4 < 2 else f's_add_u32 m0, {s_p}, {QS + (t % 4 - 2) * 2048}', 'WO') for t in range(8)]
    WO = [R('a', aa.p + 8 * t, 8) for t in range(4)] + [R('a', 8 * t, 8) for t in range(11)] + [Sx[0][0:8]]
    assert Wf[0].a == 88 and aa.p + 32 <= 256
    vw3 = [va2(), va2()]
    def oslot(t):
        if t >= 8: return vw2, (t - 8) * 2048, f's_add_u32 m0, {s_p}, {(t - 8) * 2048}'
        if t % 4 < 2: return vwr, (8 + t % 4) * 2048, None
        return vw3, (t % 4 - 2) * 2048, None
    def woread(t):
        base, off, _ = oslot(t)
        return [f'ds_read_b64_tr_b16 {WO[t][4*nb+2*s_:4*nb+2*s_+2]}, {base[nb]} offset:{off + s_ * 512}' for nb in range(2) for s_ in range(2)]
    vw2 = [C[0][0], C[0][1]]
    setup3 += [f's_add_u32 {s_t0}, {s_p}, {QS}', f's_sub_u32 {s_t0}, {s_t0}, {s_wb}', f'v_add_u32 {vw3[0]}, {s_t0}, {vwr[0]}', f'v_add_u32 {vw3[1]}, {s_t0}, {vwr[1]}']
    assert NB == 8 and PM % 2 == 0
    PA = 48
    plan = {j: [] for j in range(PA)}; prej = {j: [] for j in range(PA)}
    plan[0] += setup1
    plan[1] += setup2[:21]; plan[2] += setup2[21:41]; plan[3] += setup2[41:61]; plan[4] += setup2[61:]; plan[KP] = [poll_kv] + plan[KP]
    plan[5] += check([f'v_cmp_gt_u32 vcc, 1, {vpoll[0]}'], [poll_kv], 'kv')
    d = kvdma(f's_add_u32 m0, {s_p}, 32768', 'KV0'); plan[5] += d[:3]; plan[6] += d[3:]
    d = kvdma(f's_add_u32 m0, {s_p}, 49152', 'KV1'); plan[7] += d[:3]; plan[8] += d[3:]
    for i in range(5):
        j = 13 + 8 * i
        prej[j] += [f'WAITTAG KV{i % 2}', 's_barrier']
        d = kvdma(f's_add_u32 m0, {s_p}, {(i % 4) * 16384}', f'KV{i % 2}')
        plan[j] += d[:5]; plan[j + 1] += d[5:]
    busy = (13, 21, 29, 37, 45)
    j = float(H0)
    for k in range(12):
        while int(j) in busy: j = int(j) + 1.0
        plan[int(j)].append(Ins(f'buffer_store_dwordx4 {hreg[k]}, {vl16}, {sws}, {(s_hb, s_h1, s_h2)[k // 4]} offen offset:{(k % 4) * 1024}{st_mod}', 'HST'))
        jl = int(j); j += HP
    plan[10] += setup3[:10]; plan[11] += setup3[10:20]; plan[12] += setup3[20:]
    def nextfree(j):
        while j in busy: j += 1
        return j
    jf = nextfree(jl + FG); plan[jf] += flag(2, 'FL', 'HST')
    jc = PM - 2 - DD
    while any(x in busy for x in range(jc, PM - 1)) and jc in busy: jc -= 1
    jp = jc - PG
    assert jp > jf, (jp, jf)
    plan[jp] += [poll_h]
    jj = E0
    for t in range(4):
        jj = nextfree(jj + 1); plan[jj] += early_o[t]
    jj = nextfree(jj + 3)
    for t in range(4):
        plan[jj] += (['WAITTAG WO'] if t == 0 else []) + woread(t); jj = nextfree(jj + 1)
    for t in range(4, 8):
        plan[jj] += (['s_waitcnt lgkmcnt(0)'] if t == 4 else []) + early_o[t]; jj = nextfree(jj + 1)
    assert jj <= PM
    plan[jc] += check(cond2, [poll_h], 'h') + [f's_lshl_b32 {s_t2}, {s_mb}, 9', poll_h]
    jj = jc
    for i in range(DD):
        jj = nextfree(jj + (1 if i else 0)); plan[jj] += dloads(i)
    assert jj <= PM - 2, (jj, PM)
    plan[PM - 1] = ['WAITTAG D0'] + wrd(vwr, 0, 0) + plan[PM - 1]
    plan[PM + 2] += og_loads
    plan[PM + 4] += check(cond2, [poll_h], 'g') + g_loads
    plan[PA - 1] += [f's_xor_b32 {s_p}, {s_p}, 32768']
    vcp = va2()
    if CP2:
        plan[PM - 3] += [f's_getpc_b64 {scp[0:2]}', f'{name}_pct:', f's_and_b32 {scp[1]}, {scp[1]}, 0xffff', f's_mov_b32 {scp[2]}, {name}_slow-{name}_pct',
                         f's_mov_b32 {scp[3]}, 0x00020000', f's_lshr_b32 {s_t0}, s2, 3', f's_lshl_b32 {s_t0}, {s_t0}, 2', f's_add_u32 {s_t0}, {s_t0}, {s_w}',
                         f's_lshl_b32 {s_t0}, {s_t0}, 7', f's_add_u32 {s_t0}, {s_t0}, {name}_tail-{name}_pct', f'v_lshl_add_u32 {vcp}, {vl}, 14, {s_t0}']
    def mixed(j, st, nb, loop, misc=(), pre=(), zero=False):
        d = dloads(st + DD) if st + DD < 56 else []
        if nb == 0:
            period(j, loop, (st, 0), misc=wrd(vwr, (st % NB) * 2048, 1) + d[:4] + list(misc), pre=pre, zero=zero)
        else:
            period(j, loop, (st, 1), misc=[f'WAITTAG D{(st + 1) % NB}'] + wrd(vwr, ((st + 1) % NB) * 2048, 0) + d[4:] + list(misc), pre=pre, zero=zero)
    p.seg('partA')
    for j in range(PA):
        if ptrace == -1 and j in (0, 1, 5, 7, 9, 13, 15, 21, jf, jf + 1, jc, jc + 1, PM): pf.trace()
        if j < PM: period(j, misc=plan[j], pre=prej[j])
        else: mixed(j, (j - PM) // 2, j % 2, False, misc=plan[j], pre=prej[j], zero=(j < PM + 2))
    if ptrace == -1: pf.trace()
    ST0 = (PA - PM) // 2
    pf.stamp(4)
    p.e(f's_mov_b32 {s_cnt}, 5')
    p.seg('loop')
    p.e(f'{name}_loop:')
    for j in range(16):
        misc = []; pre = []
        if j in (5, 13):
            pre = [f'WAITTAG KV{1 if j == 5 else 0}', 's_barrier']
        if j in (5, 6, 13, 14):
            d = kvdma(f's_xor_b32 m0, {s_p}, 49152' if j < 8 else f's_mov_b32 m0, {s_p}', 'KV1' if j < 8 else 'KV0')
            misc = d[:5] if j in (5, 13) else d[5:]
        if j == 9 and CP2: misc = [Ins(f'buffer_load_dword {vpd}, {vcp}, {scp}, 0 offen', 'pf')]
        if j == 15: misc = [f's_xor_b32 {s_p}, {s_p}, 32768', f'v_xor_b32 {vkA}, 0x8000, {vkA}', f'v_xor_b32 {vkB}, 0x8000, {vkB}']
        mixed(j, ST0 + j // 2, j % 2, True, misc=misc, pre=pre)
    p.e(f's_sub_u32 {s_cnt}, {s_cnt}, 1\ns_cmp_lg_u32 {s_cnt}, 0\ns_cbranch_scc1 {name}_loop')

    p.seg('tail')
    p.e(f'{name}_tail:')
    pf.stamp(5)
    if ptrace == -2: pf.trace()
    p.add([cvt(15, 7), pv(15, 0), pv(15, 1), rsum(1)])
    def lsum():
        p.e(f"""
        v_accvgpr_read_b32 {vsc[0]}, {L[0][0]}
        v_accvgpr_read_b32 {vu0}, {L[0][1]}
        v_accvgpr_read_b32 {vsc[1]}, {L[1][0]}
        v_accvgpr_read_b32 {vu1}, {L[1][1]}
        v_add_f32 {vsc[0]}, {vsc[0]}, {vu0}
        v_add_f32 {vsc[1]}, {vsc[1]}, {vu1}
        """)
    lsum()
    p.e(f"""
    v_cmp_nle_f32 vcc, {vsc[0]}, {s_thr}
    v_cmp_nle_f32 {smask}, {vsc[1]}, {s_thr}
    s_or_b64 vcc, vcc, {smask}
    s_cbranch_vccnz {name}_slow
    """)
    p.seg('epi')
    p.e(f'{name}_epi:')
    p.e(f"""
    v_rcp_f32 {vsc[0]}, {vsc[0]}
    v_rcp_f32 {vsc[1]}, {vsc[1]}
    WAITTAG KV0 KV1
    s_barrier
    v_mul_f32 {vsc[0]}, {vsc[0]}, {vg[0]}
    v_mul_f32 {vsc[1]}, {vsc[1]}, {vg[1]}
    """)
    for q in range(2):
        for f in range(2):
            t_ = Sx[q][8 * f:8 * f + 8]
            for i in range(8): p.e(f'v_accvgpr_read_b32 {t_[i]}, {O[q][8*f+i]}')
            for i in range(8): p.e(f'v_mul_f32 {t_[i]}, {t_[i]}, {vsc[q]}')
            for i in range(4): p.e(f'v_cvt_pk_bf16_f32 {t_[i]}, {t_[2*i]}, {t_[2*i+1]}')
            p.e(f'buffer_store_dwordx4 {t_[0:4]}, {vo}, {sws}, {(s_ob, s_ob2)[f]} offen offset:{q * 1024}{st_mod}', 'OST')
    vout = C[0][4]; vrw = [C[0][5], C[0][6], C[0][7]]; vrr = C[0][8]
    LATE0 = ST0 + 40
    p.e(f's_lshl_b32 {s_p}, {s_w}, 14')
    sk = [s_h1, s_h2, s_hb, s_left]
    vA2 = [[vA[r], Sx[1][3 * r], Sx[1][3 * r + 1], Sx[1][3 * r + 2]] for r in range(4)]
    late2 = lines(f"""
        s_sub_u32 {s_t0}, {s_p}, {s_wb}
        v_add_u32 {vw2[0]}, {s_t0}, {vwr[0]}
        v_add_u32 {vw2[1]}, {s_t0}, {vwr[1]}
        s_lshl_b32 {s_t0}, {s_mt}, 18
        s_lshl_b32 {s_t1}, {s_nt}, 7
        s_add_u32 {s_t0}, {s_t0}, {s_t1}
        s_add_u32 {sout[0]}, {pout[0]}, {s_t0}
        s_addc_u32 {sout[1]}, {pout[1]}, 0
        s_sub_u32 {sout[2]}, {S * D * 2}, {s_t0}
        s_mov_b32 {sout[3]}, 0x00020000
        v_and_b32 {vu1}, 31, {vl}
        s_lshl_b32 {s_t0}, {s_w}, 16
        v_lshl_add_u32 {vout}, {vu1}, 11, {s_t0}
        v_lshrrev_b32 {vu1}, 5, {vl}
        v_lshl_add_u32 {vout}, {vu1}, 4, {vout}
        v_bfe_u32 {vu1}, {vl}, 1, 3
        v_and_b32 {vu2}, 1, {vl}
        v_lshlrev_b32 {vu2}, 2, {vu2}
        v_lshl_add_u32 {vpa}, {vu1}, 4, {vu2}
        s_lshr_b32 {s_t2}, {s_mt}, 1
        s_lshl_b32 {s_t2}, {s_t2}, 9
        s_lshl_b32 {s_t0}, {s_w}, 7
        s_add_u32 {s_t2}, {s_t2}, {s_t0}
        s_and_b32 {s_t0}, {s_mt}, 1
        s_lshl_b32 {s_t0}, {s_t0}, 3
        s_add_u32 {s_t2}, {s_t2}, {s_t0}
        s_mul_i32 {s_t0}, {s_w}, 24576
        v_add_u32 {vrr}, {s_t0}, {vl16}
        s_lshl_b32 {s_t1}, {s_w}, 16
        s_add_u32 {s_t1}, {s_t1}, {224 * 4096}""")
    late2[6:8] = [late2[6:8]]
    for r in range(3):
        late2 += [f'v_lshrrev_b32 {vu1}, 10, {vA[r]}', f'v_mul_u32_u24 {vu1}, 24576, {vu1}', f'v_add_u32 {vu1}, {(2 - r) * 8192}, {vu1}', f'v_add_u32 {vrw[r]}, {vu1}, {vl16}']
    for i in range(4):
        late2 += ([f's_add_u32 {s_t0}, {s_nt}, {i}', f's_and_b32 {s_t0}, {s_t0}, 3'] if ROT else [f's_mov_b32 {s_t0}, {i}'])
        late2 += [f's_lshl_b32 {s_t0}, {s_t0}, 14', f's_add_u32 {sk[i]}, {s_t1}, {s_t0}']
    for r in range(4):
        for i in range(1, 4): late2.append(f'v_add_u32 {vA2[r][i]}, {i * 4096}, {vA[r]}')
    poll_o = f'buffer_load_dword {vpoll[0]}, {vpa}, {sfl}, {s_t2} offen sc1'
    AB = [Ab[i // 4][i % 4] for i in range(32)]
    def aload(i):
        r, t = divmod(i, 16)
        return f'buffer_load_dwordx4 {AB[i % 32]}, {vA2[r][t % 4]}, {sA}, {sk[t // 4]} offen'
    vq_ = []
    o_next = 8
    for s_ in range(LATE0 + DD, 56):
        vq_.append((s_ - NB + 1, dloads(s_)))
        if o_next < 16: vq_.append((0, oload(o_next, oslot(o_next)[2], 'WO'))); o_next += 1
    while o_next < 16: vq_.append((0, oload(o_next, oslot(o_next)[2], 'WO'))); o_next += 1
    cur = []; a_next = 0; side = list(late2); checked = False
    for st in range(LATE0, 56):
        if ptrace == -2: pf.trace()
        n0 = wrd(vwr, (st % NB) * 2048, 1)
        n1 = ([f'WAITTAG D{(st + 1) % NB}'] + wrd(vwr, ((st + 1) % NB) * 2048, 0)) if st < 55 else []
        if st == LATE0 + 1: side = [flag(3, 'FL', 'OST')] + side
        if st == LATE0 + 2: side += [x for t in range(4, 8) for x in woread(t)]
        for c in range(8):
            nb, tb = divmod(c, 4)
            p.e(gm(Ab[st % NB], nb, tb if nb == 0 else 3 - tb))
            if c == 0: p.add(n0)
            if c == 4: p.add(n1)
            if st == LATE0 + OC - 1 and c == 1: p.e(poll_o)
            if st == LATE0 + OC and c == 1:
                assert not side
                p.add(check([f'v_cmp_gt_u32 vcc, 3, {vpoll[0]}'], [poll_o], 'o')); checked = True
            if not cur and vq_ and vq_[0][0] <= st: cur = list(vq_.pop(0)[1])
            if cur:
                while cur:
                    x = cur.pop(0); p.add([x])
                    if isinstance(x, Ins): break
                while cur and not any(isinstance(y, Ins) for y in cur): p.add([cur.pop(0)])
            elif checked and not vq_ and a_next < 30 and 48 + a_next // 4 < st:
                p.e(aload(a_next)); a_next += 1
            for _ in range(2):
                if side:
                    x = side.pop(0); p.add(x if isinstance(x, list) else [x])
    assert not cur and not vq_ and checked
    if ptrace == -2: pf.trace()
    pf.stamp(6)
    def scale(r): return [f'v_mul_f32 {acc3[nb][r][i]}, {acc3[nb][r][i]}, {vog[r]}' for nb in range(2) for i in range(16)]
    p.e('WAITTAG WO')
    rds = [x for t in range(8, 16) for x in woread(t)]
    for k, x in enumerate(scale(0)):
        p.e(x)
        if k % 4 == 1: p.e(rds.pop(0))
        if k % 8 == 3 and a_next < 30: p.e(aload(a_next)); a_next += 1
    side = []
    for k, x in enumerate(scale(1) + scale(2) + scale(3)):
        side.append(x)
        if k % 3 == 0 and rds: side.append(rds.pop(0))
    assert not rds
    wr = []; fin = []
    for i in range(64):
        r, t = divmod(i, 16)
        if ptrace == -2 and i % 8 == 0: pf.trace()
        for nb in range(2):
            if i == 16 + 2 and nb == 0:
                assert not side
                p.e('s_waitcnt lgkmcnt(0)\ns_barrier')
            if i == 48 + 7 and nb == 0:
                assert not wr
                p.e('s_waitcnt lgkmcnt(0)\ns_barrier')
                fin = [f'ds_read_b128 {acc3[n_][sl][4*j:4*j+4]}, {vrr} offset:{sl * 8192 + (n_ * 4 + j) * 1024}' for n_ in range(2) for j in range(4) for sl in range(3)]
                fin += [None] * 4
                for n_ in range(2):
                    for e in range(16):
                        fin += [f'v_add_f32 {acc3[n_][0][e]}, {acc3[n_][0][e]}, {acc3[n_][1][e]}', f'v_add_f32 {acc3[n_][0][e]}, {acc3[n_][0][e]}, {acc3[n_][2][e]}']
            p.e(f'v_mfma_f32_32x32x16_bf16 {acc3[nb][r]}, {WO[t][4*nb:4*nb+4]}, {AB[i % 32]}, {acc3[nb][r]}')
            if a_next < 64 and a_next <= i + 30 and (nb == 0 or a_next < i + 28): p.e(aload(a_next)); a_next += 1
            if wr and t >= 2: p.e(wr.pop(0))
            for _ in range(5):
                if side: p.e(side.pop(0))
            for _ in range(4 if (fin and fin[0] and fin[0].startswith('ds')) else 5):
                if fin:
                    x = fin.pop(0)
                    if x: p.e(x)
        if t == 15 and r < 3:
            assert not wr
            wr = [f'ds_write_b128 {vrw[r]}, {acc3[nb][r][4*j:4*j+4]} offset:{(nb * 4 + j) * 1024}' for nb in range(2) for j in range(4)]
    assert a_next == 64
    pf.stamp(7)
    p.add([x for x in fin if x])
    for nb in range(2):
        a_ = acc3[nb][3]
        for jp in range(2):
            for i in range(4 * jp, 4 * jp + 4): p.e(f'v_pk_add_f32 {a_[2*i:2*i+2]}, {a_[2*i:2*i+2]}, {acc3[nb][0][2*i:2*i+2]}')
            o = Sx[0][8 + 4 * jp:12 + 4 * jp] if nb == 0 else P[0][4 * jp:4 * jp + 4]
            for i in range(4): p.e(f'v_cvt_pk_bf16_f32 {o[i]}, {a_[8 * jp + 2 * i]}, {a_[8 * jp + 2 * i + 1]}')
            p.e(f'v_permlane32_swap_b32 {o[0]}, {o[2]}\nv_permlane32_swap_b32 {o[1]}, {o[3]}')
            p.e(f'buffer_store_dwordx4 {o}, {vout}, {sout}, 0 offen offset:{nb * 64 + jp * 32}' + ('', ' sc1', ' nt', ' sc0 sc1')[OUTM])
    pf.stamp(8)
    pf.flush(s_w, sws, vl, vu0)
    if PRB:
        p.e(f"""
        s_cmp_lg_u32 s2, 0
        s_cbranch_scc1 {name}_probe_done
        v_readlane_b32 {s_t0}, {vtr}, {44 + 2 * PRA}
        v_readlane_b32 {s_t1}, {vtr}, {44 + 2 * PRB}
        v_readlane_b32 {s_t2}, {vtr}, 62
        s_nop 4
        s_sub_u32 {s_t0}, {s_t1}, {s_t0}
        s_min_u32 {s_t0}, {s_t0}, 20000
        s_lshl_b32 {s_t0}, {s_t0}, 2
        s_mov_b32 {s_cnt}, 200000
        {name}_probe:
        s_memrealtime {s_pt[0:2]}
        s_waitcnt lgkmcnt(0)
        s_sub_u32 {s_t1}, {s_pt[0]}, {s_t2}
        s_cmp_ge_u32 {s_t1}, {s_t0}
        s_cbranch_scc1 {name}_probe_done
        s_sub_u32 {s_cnt}, {s_cnt}, 1
        s_cmp_lg_u32 {s_cnt}, 0
        s_cbranch_scc1 {name}_probe
        {name}_probe_done:
        """)
    if dbg:
        p.e(f"""
        v_readlane_b32 {s_t0}, {vtr}, 44
        v_readlane_b32 {s_t1}, {vtr}, 45
        v_and_b32 {vu1}, 1, {vl}
        v_cmp_eq_u32 vcc, 0, {vu1}
        v_mov_b32 {vu1}, {s_t0}
        v_mov_b32 {vu2}, {s_t1}
        v_cndmask_b32 {vu1}, {vu2}, {vu1}, vcc
        v_sub_u32 {vu1}, {vtr}, {vu1}
        v_subrev_u32 {vu2}, 46, {vl}
        v_lshlrev_b32 {vu2}, 2, {vu2}
        v_cmp_gt_u32 vcc, 64, {vu2}
        v_cndmask_b32 {vu2}, 2.0, {vu2}, vcc
        s_mov_b32 {skv[0]}, {pdbg[0]}
        s_mov_b32 {skv[1]}, {pdbg[1]}
        s_movk_i32 {skv[2]}, 64
        s_lshl_b32 {s_t0}, s2, 2
        s_add_u32 {s_t0}, {s_t0}, {s_w}
        s_cmp_eq_u32 {s_t0}, {dbg - 1}
        s_cselect_b32 {s_t0}, 0, 2.0
        buffer_store_dword {vu1}, {vu2}, {skv}, {s_t0} offen
        """)
    p.e('s_endpgm')

    p.seg('slow0')
    p.e(f'{name}_slow:')
    p.e(f"""
    s_waitcnt vmcnt(0) lgkmcnt(0)
    v_mov_b32 {vu0}, 0xff800000
    v_mov_b32 {vu1}, 0xff800000
    s_mov_b32 {s_okv}, 0
    s_mov_b32 {skv[2]}, 262144
    """)
    p.seg('slow1')
    p.e(f'{name}_slow1:')
    for f in range(2): p.e(f'buffer_load_dwordx4 {K[0][4*f:4*f+4]}, {vl16}, {skv}, {s_okv} offen offset:{f * 1024}')
    for q in range(2):
        for f in range(2): p.e(qk(Sx[q], 0, q, f, '0'))
    rowmax(vu0, Sx[0], False); rowmax(vu1, Sx[1], False)
    p.e(f's_add_u32 {s_okv}, {s_okv}, 4096\ns_cmp_lt_u32 {s_okv}, 262144\ns_cbranch_scc1 {name}_slow1')
    p.seg('slow2')
    setc(0, vu0); setc(1, vu1)
    for q in range(2):
        for i in range(16): p.e(f'v_accvgpr_write_b32 {O[q][i]}, 0')
        for i in range(4): p.e(f'v_accvgpr_write_b32 {L[q][i]}, 0')
    p.e(f's_mov_b32 {s_okv}, 0')
    p.seg('slow3')
    p.e(f'{name}_slow3:')
    for f in range(2): p.e(f'buffer_load_dwordx4 {K[0][4*f:4*f+4]}, {vl16}, {skv}, {s_okv} offen offset:{f * 1024}')
    for f in range(2): p.e(f'buffer_load_dwordx4 {V[0][4*f:4*f+4]}, {vl16}, {skv}, {s_okv} offen offset:{2048 + f * 1024}')
    for q in range(2):
        for f in range(2): p.e(qk(Sx[q], 0, q, f, C[q]))
    for q in range(2):
        for i in range(16): p.e(f'v_exp_f32 {Sx[q][i]}, {Sx[q][i]}')
        for i in range(8): p.e(cvt(q, i))
        p.add([pv(q, 0), pv(q, 1), rsum(q)])
    p.e(f's_add_u32 {s_okv}, {s_okv}, 4096\ns_cmp_lt_u32 {s_okv}, 262144\ns_cbranch_scc1 {name}_slow3')
    p.seg('slow4')
    lsum()
    p.e(f's_branch {name}_epi')
    for lab, cond, reload_ in spins:
        p.seg(lab)
        p.e(f'{lab}_spin:\ns_mov_b32 {s_cnt if lab.endswith("cnt") else s_spin}, {SPIN}\n{lab}_again:\ns_sleep 2')
        p.add(reload_)
        p.e('s_waitcnt vmcnt(0)\ns_nop 1')
        p.add(cond)
        r_ = s_cnt if lab.endswith('cnt') else s_spin
        p.e(f's_nop 4\ns_cbranch_vccz {lab}_ok\ns_sub_u32 {r_}, {r_}, 1\ns_cmp_lg_u32 {r_}, 0\ns_cbranch_scc1 {lab}_again\ns_branch {lab}_ok')
    p.seg('end')
    p.e(f'{name}_end:\ns_endpgm')
    mid = ['join', 'partA', 'loop', 'loop', 'tail']
    slow = ['slow0', 'slow1', 'slow1', 'slow2', 'slow3', 'slow3', 'slow4']
    traces = []
    for wc in range(2):
        for x in ([], ['pfx']):
            traces.append(['pro'] + x + ['pro2', f'c{wc}a', f'c{wc}l1', f'c{wc}l2', f'c{wc}l1', f'c{wc}l2', f'c{wc}l1', f'c{wc}last'] + mid + ['epi'])
    traces.append(mid + slow + ['epi'])
    for lab, _, _ in spins: traces.append([lab])
    p.auto_waits(traces)
    nn = p.hazards(traces)
    return kernel_header(name) + p.text(), kernel_desc(name), dict(nops=nn, v=va.p, a=aa.p, s=max(sa.p, s_hi))

if __name__ == '__main__':
    import sys
    NAME = 'gated_mix__softmax_full_mha__glu_gated_bilinear__prompt'
    REF = f'cdna_kernels/{NAME}.s.ref'
    dst = sys.argv[1]
    kw = {a.split('=')[0]: float(a.split('=')[1]) if '.' in a else int(a.split('=')[1]) for a in sys.argv[2:] if '=' in a}
    t, d, info = gen_fused(NAME + '_kernel', prof='prof' in sys.argv, force_slow='slow' in sys.argv, **kw)
    print(info, file=sys.stderr)
    head = [l for l in open(REF).read().split('\n') if l.startswith(';') and '@launch' not in l]
    out = '\n'.join(head) + f'\n; @launch grid=(256,1,1) block=(256,1,1) lds={F_LDS}\n.amdgcn_target "amdgcn-amd-amdhsa--gfx950"\n' + t + d
    open(dst, 'w').write(out)
```

```python
from gen_common import *

X0, X1, W0, W1, QS = 0, 32768, 65536, 106496, 147456
F_LDS = 163840
WS_FL = 33 << 20
DBG_CNT = 64
SPIN = 40000

def gen_fused(name, prof=False, pfd=4, cq=8, cg=6.5, cx=4, NB=8, DD=4, PM=38, HP=1.0, force_slow=False, ptrace=0, dbg=0, exp_=0, VSP=2, PFP=18, OC=8, KP=3, H0=7, ROT=0, CPF=1, OUTM=0, CP0=1, CP2=0, FG=3, TLB=0, F0=0, FS=1.0, GD=2, SMC=16, VMC=8, VPEN=16, MW=1, PRA=0, PRB=0, PG=3, E0=14, st_mod=' sc1'):
    pfm = 1; xpf = 1
    p = Prog()
    sa = Alloc('s', 4, 102); va = Alloc('v', 1, 256); aa = Alloc('a', 0, 256)
    ptr = sa(16, 4)
    px, pqkv, pwo, pwg, pwu, pwd, pgw = ptr[0:2], ptr[2:4], ptr[4:6], ptr[8:10], ptr[10:12], ptr[12:14], ptr[14:16]
    pod = sa(4, 4); pout, pdbg = pod[0:2], pod[2:4]
    pws = sa(2); smask = sa(2)
    sws = sa(4); sfl = sa(4); sdbg = sa(4)
    s_mb, s_h, s_w, s_wr, s_wc, s_t0, s_t1, s_t2, s_cnt, s_tr, s_hb = [sa() for _ in range(11)]
    s_pt = sa(4, 2)
    s_base = sa.p
    sx = sa(4); sq = sa(4); sg = sa(4); spf = sa(4); sp2 = sa(4); sp3 = sa(4)
    s_c0, s_c1, s_ox, s_oq, s_og, s_pfo, s_pfs, s_gs, s_grp, s_ano = [sa() for _ in range(10)]
    s_mx, s_mw, s_msk = sa(), sa(), sa()
    sp4 = sa(4)
    s_hi = sa.p

    vl, vpd, vflag, vtr, vflk = [va() for _ in range(5)]
    v_base = va.p
    pf = Prof2(p, prof, s_pt, vtr, s_tr)
    vdx = [va() for _ in range(8)]; vdq = [va() for _ in range(2)]; vdq.append(vdq[0]); vdg = [va() for _ in range(7)]
    vxr = [va() for _ in range(2)]; vqr = [va() for _ in range(2)]; vgr = [va() for _ in range(2)]
    vt0, vt1, vt2, vt3, vpf = [va() for _ in range(5)]
    vcnt = va(); vwo = va()
    vtmp = va(28, 4)
    assert vtmp.a == 36
    xf = [[aa(4, 4) for _ in range(8)] for _ in range(2)]
    NSLOT = 4; DIST = 3
    wf = [aa(4, 4) for _ in range(NSLOT)]
    acc = [[None] * 8 for _ in range(10)]
    for n in [0, 1, 6, 7, 8, 9, 2, 3, 4, 5]:
        for m in range(8):
            acc[n][m] = va(4, 4) if va.p + 4 <= 256 else aa(4, 4)

    def dma_x(st):
        L = []
        for i in range(8):
            pre = [f's_add_u32 m0, {s_mx}, {(X0, X1)[st] + (i // 4) * 4096}'] if i % 4 == 0 else []
            L.append((pre, Ins(f'buffer_load_dwordx4 {vdx[i]}, {sx}, {s_ox} offen offset:{(i % 4) * 1024} lds', f'S{st}')))
        return L
    def dma_w(st):
        L = []
        for i in range(10):
            pre = [f's_add_u32 m0, {s_mw}, {(W0, W1)[st] + (i // 4) * 4096}'] if i % 4 == 0 else []
            v, sr, so = (vdq[i - 7], sq, s_oq) if i >= 7 else (vdg[i], sg, s_og)
            L.append((pre, Ins(f'buffer_load_dwordx4 {v}, {sr}, {so} offen offset:{(i % 4) * 1024} lds', f'S{st}')))
        return L
    def emit(lst):
        for pre, ins in lst:
            p.add(pre); p.add([ins])
    adv = [f's_add_u32 {s_oq}, {s_oq}, {64 * 6144}', f's_add_u32 {s_og}, {s_og}, {64 * 7168}', f's_add_u32 {s_ox}, {s_ox}, 128']

    p.seg('pro')
    p.e(f"""
    s_cmp_ge_u32 s2, 256
    s_cbranch_scc1 {name}_end
    s_load_dwordx16 {ptr}, s[0:1], 0
    s_load_dwordx4 {pod}, s[0:1], 64
    s_load_dwordx2 {pws}, s[0:1], 80
    v_lshrrev_b32 {vt0}, 6, v0
    v_and_b32 {vl}, 63, v0
    s_lshr_b32 {s_t1}, s2, 3
    v_readfirstlane_b32 {s_w}, {vt0}
    s_and_b32 {s_mb}, {s_t1}, 7
    s_and_b32 {s_t0}, s2, 7
    s_lshr_b32 {s_t1}, {s_t1}, 3
    s_lshl_b32 {s_h}, {s_t0}, 2
    s_add_u32 {s_h}, {s_h}, {s_t1}
    s_lshr_b32 {s_wr}, {s_w}, 1
    s_and_b32 {s_wc}, {s_w}, 1
    """)
    if CP0:
        p.e(f"""
        s_getpc_b64 {sp3[0:2]}
        {name}_pcs:
        s_and_b32 {sp3[1]}, {sp3[1]}, 0xffff
        s_mov_b32 {sp3[2]}, {name}_join-{name}_pcs
        s_mov_b32 {sp3[3]}, 0x00020000
        s_lshr_b32 {s_t0}, s2, 3
        s_lshl_b32 {s_t0}, {s_t0}, 2
        s_add_u32 {s_t0}, {s_t0}, {s_w}
        s_lshl_b32 {s_t0}, {s_t0}, 7
        v_lshl_add_u32 {vwo}, {vl}, 14, {s_t0}
        """)
        p.add([Ins(f'buffer_load_dword {vpd}, {vwo}, {sp3}, 0 offen', 'pf')])
    if xpf:
        p.e(f"""
        v_and_b32 {vt0}, 7, {vl}
        v_lshrrev_b32 {vt1}, 3, {vl}
        v_mul_u32_u24 {vt2}, 86, {vt1}
        v_lshrrev_b32 {vt2}, 8, {vt2}
        v_mad_i32_i24 {vt1}, {vt2}, -3, {vt1}
        v_lshl_add_u32 {vt0}, {vt2}, 6, {vt0}
        s_lshl_b32 {s_t0}, {s_mb}, 3
        v_add_u32 {vt0}, {s_t0}, {vt0}
        s_cmp_eq_u32 {s_w}, 3
        s_movk_i32 {s_c0}, 7168
        s_cmov_b32 {s_c0}, 6144
        s_movk_i32 {s_c1}, 108
        s_cmov_b32 {s_c1}, 2048
        v_mul_u32_u24 {vt0}, {s_c0}, {vt0}
        v_mad_u32_u24 {vpf}, {vt1}, {s_c1}, {vt0}
        v_cmp_gt_u32 vcc, 48, {vl}
        s_lshl_b32 {s_t0}, {s_t1}, 17
        v_lshl_add_u32 {vt0}, {vl}, 11, {s_t0}
        v_cndmask_b32 {vpf}, 2.0, {vpf}, vcc
        s_cmp_eq_u32 {s_w}, 0
        s_cselect_b64 vcc, -1, 0
        v_cndmask_b32 {vpf}, {vpf}, {vt0}, vcc
        v_cndmask_b32 {vt3}, 2.0, {vt0}, vcc
        """)
    p.e(f"""
    s_lshl_b32 {s_t0}, {s_mb}, 19
    s_lshl_b32 {s_t1}, {s_h}, 6
    s_mul_i32 {s_t2}, {s_h}, 224
    s_waitcnt lgkmcnt(0)
    """)
    pf.stamp(0)
    pf.trace_init(vtr, s_tr)
    srd(p, sx, px, off_s=s_t0, size=S * D * 2, size_s=s_t0)
    srd(p, sq, pqkv, off_s=s_t1, size=D * 3072 * 2, size_s=s_t1)
    p.e(f"""
    s_cmp_ge_u32 {s_w}, 2
    s_cselect_b32 {s_t0}, {pwu[0]}, {pwg[0]}
    s_cselect_b32 {s_t1}, {pwu[1]}, {pwg[1]}
    s_add_u32 {sg[0]}, {s_t0}, {s_t2}
    s_addc_u32 {sg[1]}, {s_t1}, 0
    s_sub_u32 {sg[2]}, {D * F * 2}, {s_t2}
    s_mov_b32 {sg[3]}, 0x00020000
    """)
    if xpf:
        p.e(f"""
        s_cmp_eq_u32 {s_w}, 3
        s_cselect_b64 {spf[0:2]}, {sq[0:2]}, {sg[0:2]}
        s_cselect_b32 {spf[2]}, {sq[2]}, {sg[2]}
        s_cmp_eq_u32 {s_w}, 0
        s_cselect_b64 {spf[0:2]}, {sx[0:2]}, {spf[0:2]}
        s_cselect_b32 {spf[2]}, {sx[2]}, {spf[2]}
        s_mov_b32 {spf[3]}, 0x00020000
        """)
        p.add([Ins(f'buffer_load_dword {vpd}, {vpf}, {spf}, 0 offen', 'pf')])
        if xpf > 1: p.add([Ins(f'buffer_load_dword {vpd}, {vt3}, {spf}, 0 offen offset:128', 'pf')])
    if ptrace > 0: pf.trace()
    p.e(f"""
    v_lshrrev_b32 {vt0}, 3, {vl}
    v_and_b32 {vt1}, 7, {vl}
    v_lshrrev_b32 {vt2}, 4, {vl}
    v_xor_b32 {vt1}, {vt1}, {vt2}
    v_lshlrev_b32 {vt3}, 11, {vt0}
    s_lshl_b32 {s_t0}, {s_w}, 17
    v_add_u32 {vt3}, {s_t0}, {vt3}
    v_lshl_add_u32 {vdx[0]}, {vt1}, 4, {vt3}
    v_xor_b32 {vt1}, 4, {vt1}
    v_lshl_add_u32 {vdx[1]}, {vt1}, 4, {vt3}
    v_add_u32 {vdx[1]}, {16384 - 1024}, {vdx[1]}
    s_lshl_b32 {s_mx}, {s_w}, 13
    s_mov_b32 {s_ox}, 0
    """)
    for i in range(2, 8):
        p.e(f'v_add_u32 {vdx[i]}, {(i - i % 2) * 16384 - (i % 4 - i % 2) * 1024}, {vdx[i % 2]}')
    emit(dma_x(0))
    if ptrace > 0: pf.trace()
    p.e(f"""
    v_lshrrev_b32 {vt0}, 2, {vl}
    v_lshrrev_b32 {vt2}, 4, {vl}
    v_and_b32 {vt2}, 2, {vt2}
    v_and_b32 {vt1}, 3, {vl}
    v_xor_b32 {vt1}, {vt1}, {vt2}
    s_lshl_b32 {s_t1}, {s_w}, 4
    v_add_u32 {vt0}, {s_t1}, {vt0}
    v_mul_u32_u24 {vt0}, 6144, {vt0}
    v_lshl_add_u32 {vdq[1]}, {vt1}, 4, {vt0}
    v_add_u32 {vdq[0]}, 1024, {vdq[1]}
    s_mul_i32 {s_mw}, {s_w}, 10240
    s_mov_b32 {s_oq}, 0
    s_mov_b32 {s_og}, 0
    """)
    w0 = dma_w(0)
    p.e(f's_add_u32 m0, {s_mw}, {W0 + 4096}')
    emit(w0[7:])
    p.e(f"""
    s_mul_i32 {s_t0}, {s_wc}, {32 * 7168}
    s_movk_i32 {s_c0}, 6944
    s_movk_i32 {s_c1}, 28672
    v_mul_u32_u24 {vt3}, 4682, {vl}
    v_lshl_add_u32 {vpf}, {vl}, 4, {s_t0}
    """)
    for j in range(7):
        imm = (j % 4) * 1024
        tj = vt3
        if j:
            p.e(f'v_add_u32 {vt0}, {64 * j * 4682}, {vt3}'); tj = vt0
        p.e(f"""
        v_bfe_u32 {vt1}, {tj}, 18, 1
        v_bfe_u32 {vt2}, {tj}, 19, 1
        v_lshrrev_b32 {vt0}, 16, {tj}
        v_sub_u32 {vt1}, {vt1}, {vt2}
        v_mad_u32_u24 {vdg[j]}, {vt0}, {s_c0}, {vpf}
        v_mad_i32_i24 {vdg[j]}, {vt1}, {s_c1}, {vdg[j]}
        """)
        if j == 3: p.e(f'v_add_u32 {vpf}, 4096, {vpf}')
        emit([w0[j]])
    p.add(adv)
    if ptrace > 0: pf.trace()
    gx = [vtmp[4 * i:4 * i + 4] for i in range(4)]; gw = [vtmp[16:20], vtmp[20:24]]; t = vtmp[24:28]; z = [vt0, vt1]
    p.e(f's_mov_b32 {sp2[3]}, 0x00020000')
    gate_pre = [f's_mov_b32 {spf[0]}, {pgw[0]}', f's_mov_b32 {spf[1]}, {pgw[1]}', f's_movk_i32 {spf[2]}, 2048']
    p.e(f"""
    s_lshl_b32 {s_t0}, {s_h}, 3
    s_lshl_b32 {s_t1}, {s_w}, 1
    s_add_u32 {s_t0}, {s_t0}, {s_t1}
    s_lshl_b32 {s_t2}, {s_t0}, 11
    s_mov_b32 {s_msk}, 0xffff0000
    """)
    gate_loads = [f'buffer_load_dwordx4 {gw[0]}, {z[0]}, {spf}, 0 offen', f'buffer_load_dwordx4 {gw[1]}, {z[0]}, {spf}, 0 offen offset:16'] + \
                 [f'buffer_load_dwordx4 {gx[i]}, {z[0]}, {sx}, {s_t2} offen offset:{(i // 2) * 2048 + (i % 2) * 16}' for i in range(4)]
    PD = pfd
    def pfetch():
        return [Ins(f'buffer_load_dword {vpd}, {vpf}, {spf}, {s_pfo} offen', 'pf'), f's_add_u32 {s_pfo}, {s_pfo}, {s_pfs}']
    def pfetch_d():
        return [Ins(f'buffer_load_dword {vpd}, {vt3}, {sp2}, {s_c1} offen', 'pf'), f's_add_u32 {s_c1}, {s_c1}, {4096 * 128}']
    if pfm:
        p.e(f"""
        s_cmp_eq_u32 {s_w}, 0
        s_cselect_b32 {spf[0]}, {pqkv[0]}, {pwg[0]}
        s_cselect_b32 {spf[1]}, {pqkv[1]}, {pwg[1]}
        s_cselect_b32 {s_t0}, 12, 14
        s_cmp_eq_u32 {s_w}, 2
        s_cselect_b32 {spf[0]}, {pwu[0]}, {spf[0]}
        s_cselect_b32 {spf[1]}, {pwu[1]}, {spf[1]}
        s_lshl_b32 {spf[2]}, {s_t0}, 19
        s_lshl_b32 {s_pfs}, {s_t0}, 15
        s_mul_i32 {s_t1}, {s_t0}, s2
        v_and_b32 {vt1}, 15, {vl}
        v_add_u32 {vt0}, {s_t1}, {vt1}
        v_lshlrev_b32 {vpf}, 7, {vt0}
        v_cmp_gt_u32 vcc, {s_t0}, {vt1}
        v_cndmask_b32 {vpf}, 2.0, {vpf}, vcc
        s_mov_b32 {spf[3]}, 0x00020000
        s_cmp_lg_u32 {s_w}, 3
        s_cbranch_scc1 {name}_pf0
        """)
        p.seg('pfx')
        p.e(f"""
        s_mov_b32 {spf[0]}, {px[0]}
        s_mov_b32 {spf[1]}, {px[1]}
        s_mov_b32 {spf[2]}, {S * D * 2}
        s_movk_i32 {s_pfs}, 128
        s_lshl_b32 {s_t1}, s2, 14
        v_lshl_add_u32 {vpf}, {vt1}, 11, {s_t1}
        v_cmp_gt_u32 vcc, 8, {vt1}
        v_cndmask_b32 {vpf}, 2.0, {vpf}, vcc
        """)
        p.seg('pro2')
        p.e(f"""
        {name}_pf0:
        v_lshrrev_b32 {vt0}, 4, {vl}
        v_mul_lo_u32 {vt0}, {vt0}, {s_pfs}
        v_add_u32 {vt0}, {vt0}, {vpf}
        v_cmp_eq_u32 vcc, 2.0, {vpf}
        v_cndmask_b32 {vt0}, {vt0}, {vpf}, vcc
        v_cmp_gt_u32 vcc, {16 * (PD - (2 if xpf > 1 else 1))}, {vl}
        v_cndmask_b32 {vt0}, 2.0, {vt0}, vcc
        s_lshl_b32 {s_pfo}, {s_pfs}, {1 if xpf > 1 else 0}
        """)
        p.add([Ins(f'buffer_load_dword {vpd}, {vt0}, {spf}, {s_pfo} offen', 'pf')])
        p.e(f"""
        v_cmp_gt_u32 vcc, 16, {vl}
        v_cndmask_b32 {vpf}, 2.0, {vpf}, vcc
        s_mul_i32 {s_pfo}, {s_pfs}, {PD}
        """)
    else:
        p.seg('pfx'); p.seg('pro2')
    if ptrace > 0: pf.trace()
    srd(p, sws, pws, size=WS_SIZE)
    srd(p, sfl, pws, off_imm=WS_FL, size=8192)
    p.e(f"""
    s_lshl_b32 {s_t0}, {s_mb}, 5
    s_add_u32 {s_t0}, {s_t0}, {s_h}
    s_lshl_b32 {s_t0}, {s_t0}, 2
    s_add_u32 {s_t0}, {s_t0}, {s_w}
    s_lshl_b32 {s_t0}, {s_t0}, 2
    v_mov_b32 {vt0}, {s_t0}
    v_cmp_eq_u32 vcc, 0, {vl}
    v_mov_b32 {vt1}, 0
    v_cndmask_b32 {vflag}, 2.0, {vt0}, vcc
    s_lshl_b32 {s_t0}, {s_h}, 3
    s_add_u32 {s_t0}, {s_t0}, {s_mb}
    s_lshl_b32 {s_t0}, {s_t0}, 2
    s_add_u32 {s_t0}, {s_t0}, {s_w}
    s_lshl_b32 {s_t0}, {s_t0}, 2
    s_add_u32 {s_t0}, {s_t0}, 4096
    v_mov_b32 {vt0}, {s_t0}
    buffer_store_dword {vt1}, {vflag}, {sfl}, 0 offen sc1
    v_cndmask_b32 {vflk}, 2.0, {vt0}, vcc
    buffer_store_dword {vt1}, {vflk}, {sfl}, 0 offen sc1
    """)
    p.e(f"""
    v_and_b32 {vt0}, 15, {vl}
    v_lshrrev_b32 {vt1}, 4, {vl}
    v_lshrrev_b32 {vt2}, 1, {vt0}
    v_xor_b32 {vt2}, {vt1}, {vt2}
    s_lshl_b32 {s_t0}, {s_wr}, 14
    v_lshl_add_u32 {vt3}, {vt0}, 7, {s_t0}
    v_lshl_add_u32 {vxr[0]}, {vt2}, 4, {vt3}
    v_xor_b32 {vxr[1]}, 64, {vxr[0]}
    v_and_b32 {vt3}, 3, {vt0}
    v_lshlrev_b32 {vt3}, 3, {vt3}
    v_lshrrev_b32 {vt0}, 2, {vt0}
    v_lshrrev_b32 {vt2}, 1, {vt1}
    v_and_b32 {vt1}, 1, {vt1}
    v_mul_u32_u24 {vqr[0]}, 10240, {vt2}
    v_mul_u32_u24 {vqr[1]}, {512 + 32}, {vt1}
    v_add3_u32 {vqr[0]}, {vqr[0]}, {vqr[1]}, {vt3}
    v_lshl_add_u32 {vqr[0]}, {vt0}, 6, {vqr[0]}
    s_lshl_b32 {s_t0}, {s_wc}, 10
    s_sub_u32 {s_t0}, {W0 + 8192}, {s_t0}
    v_add_u32 {vqr[0]}, {s_t0}, {vqr[0]}
    v_xor_b32 {vqr[1]}, 32, {vqr[0]}
    v_lshl_add_u32 {vt0}, {vt1}, 2, {vt0}
    v_lshl_add_u32 {vt0}, {vt2}, 4, {vt0}
    v_mul_u32_u24 {vt0}, 224, {vt0}
    s_mul_i32 {s_t0}, {s_wc}, 96
    s_add_u32 {s_t0}, {s_t0}, {W0}
    v_add3_u32 {vgr[0]}, {vt0}, {vt3}, {s_t0}
    v_add_u32 {vgr[1]}, 20480, {vgr[0]}
    s_lshl_b32 {s_t0}, {s_mb}, 5
    s_add_u32 {s_t0}, {s_t0}, {s_h}
    s_lshl_b32 {s_t0}, {s_t0}, 7
    s_lshl_b32 {s_t1}, {s_w}, 3
    s_add_u32 {s_t0}, {s_t0}, {s_t1}
    s_add_u32 {s_gs}, {s_t0}, {WS_G}
    v_lshlrev_b32 {z[0]}, 5, {vl}
    """)
    if ptrace > 0: pf.trace()
    p.e('WAITTAG S0')
    if ptrace > 0: pf.trace()
    p.e('s_barrier')
    if ptrace > 0: pf.trace()
    pf.stamp(1)

    def gate_ops():
        L = []
        for r in range(2):
            for j in range(8):
                xr = gx[2 * r + j // 4][j % 4]; wr_ = gw[j // 4][j % 4]
                L += [f'v_lshlrev_b32 {t[0]}, 16, {xr}', f'v_lshlrev_b32 {t[1]}, 16, {wr_}',
                      f'v_and_b32 {t[2]}, {s_msk}, {xr}', f'v_and_b32 {t[3]}, {s_msk}, {wr_}',
                      f'v_mul_f32 {t[0]}, {t[0]}, {t[1]}', f'v_mul_f32 {t[2]}, {t[2]}, {t[3]}',
                      f'v_cvt_pk_bf16_f32 {t[0]}, {t[0]}, {t[2]}', f'v_lshlrev_b32 {t[1]}, 16, {t[0]}',
                      f'v_and_b32 {t[2]}, {s_msk}, {t[0]}']
                if j == 0: L.append(f'v_add_f32 {z[r]}, {t[1]}, {t[2]}')
                else: L += [f'v_add_f32 {t[1]}, {t[1]}, {t[2]}', f'v_add_f32 {z[r]}, {z[r]}, {t[1]}']
        for mode in ('quad_perm:[1,0,3,2]', 'quad_perm:[2,3,0,1]', 'row_half_mirror', 'row_mirror'):
            for r in range(2): L.append(f'v_add_f32_dpp {z[r]}, {z[r]}, {z[r]} {mode} row_mask:0xf bank_mask:0xf')
        for op in ('v_permlane16_swap_b32', 'v_permlane32_swap_b32'):
            for r in range(2): L.append(f'v_mov_b32 {t[r]}, {z[r]}')
            for r in range(2): L.append(f'{op} {t[r]}, {z[r]}')
            for r in range(2): L.append(f'v_add_f32 {z[r]}, {z[r]}, {t[r]}')
        L += f"""v_and_b32 {t[1]}, 1, {vl}
        v_cmp_eq_u32 vcc, 1, {t[1]}
        v_and_b32 {t[3]}, 2, {vl}
        v_cndmask_b32 {t[0]}, {z[0]}, {z[1]}, vcc
        v_cvt_pk_bf16_f32 {t[0]}, {t[0]}, {t[0]}
        v_and_b32 {t[0]}, {s_msk}, {t[0]}
        v_mul_f32 {t[0]}, {hex(f32bits(-math.log2(math.e)))}, {t[0]}
        v_exp_f32 {t[0]}, {t[0]}
        v_cmp_eq_u32 vcc, 2, {t[3]}
        v_add_f32 {t[0]}, 1.0, {t[0]}
        v_rcp_f32 {t[0]}, {t[0]}
        v_lshlrev_b32 {t[3]}, 4, {t[3]}
        v_cvt_pk_bf16_f32 {t[0]}, {t[0]}, {t[0]}
        v_and_b32 {t[0]}, {s_msk}, {t[0]}
        v_sub_f32 {t[2]}, 1.0, {t[0]}
        v_cvt_pk_bf16_f32 {t[2]}, {t[2]}, {t[2]}
        v_and_b32 {t[2]}, {s_msk}, {t[2]}
        v_cndmask_b32 {t[0]}, {t[0]}, {t[2]}, vcc
        v_lshl_add_u32 {t[3]}, {t[1]}, 2, {t[3]}
        v_cmp_gt_u32 vcc, 4, {vl}
        v_cndmask_b32 {t[3]}, 2.0, {t[3]}, vcc
        buffer_store_dword {t[0]}, {t[3]}, {sws}, {s_gs} offen{st_mod}""".split('\n')
        return [x.strip() for x in L]

    def wread(j, st, wc):
        ks, n = divmod(j, 10)
        slot = wf[j % NSLOT]
        nq = 4 if wc == 0 else 2
        if n < nq: base = vqr[n % 2]; off = ks * 20480 + (1024 if (wc == 0 and n < 2) else 0); so = 256
        else: base = vgr[(n - nq) % 2]; off = ks * 10240 + ((n - nq) // 2) * 32; so = 1792
        off += st * (W1 - W0)
        return [f'ds_read_b64_tr_b16 {slot[2 * s:2 * s + 2]}, {base} offset:{off + s * so}' for s in range(2)]
    def xread(m, ks, st):
        return f'ds_read_b128 {xf[ks][m]}, {vxr[ks]} offset:{st * (X1 - X0) + m * 2048}'

    for m in range(8): p.e(xread(m, 0, 0))
    p.e(f's_cmp_eq_u32 {s_wc}, 1')
    p.e(f's_cbranch_scc1 {name}_c1')

    def stage(st, wc, first=False, last=False, extra=None, fill=None, estep=2, postbar=None, nodma1=False, early=None, dens=2):
        slots = {}
        for j in range(20):
            jj = j + DIST
            if jj < 20: rd = wread(jj, st, wc)
            elif last: continue
            else: rd = wread(jj - 20, st ^ 1, wc)
            place(slots, 8 * j + 0, rd[0]); place(slots, 8 * j + 2, rd[1])
        for m in range(8): place(slots, 8 * (1 + m) + 4, xread(m, 1, st))
        bar = 8 * (20 - DIST)
        if not last:
            for m, c in enumerate((1, 3, 4, 6, 9, 11, 12, 14)): place(slots, bar + c, xread(m, 0, st ^ 1))
        pos = []; c = 1.0
        for k in range(18):
            pos.append(int(c)); c += cg if k < 7 else (cq if k < 10 else cx)
        endc = int(c) - (160 - bar)
        pos0 = pos
        if first:
            pos = [int(F0 + x * FS) + 160 - bar for x in pos]; endc = int(F0 + (endc + 160 - bar) * FS)
        if not last:
            dl = dma_w(st ^ 1) + dma_x(st ^ 1)
            for k in range(18):
                c = pos[k] - (160 - bar)
                if c < 0: continue
                for x in dl[k][0]: place(slots, max(c - 1, 0), x)
                place(slots, c, dl[k][1])
            for i, x in enumerate(adv): place(slots, endc - 2 + i, x)
            if first: pos = pos0
            dl = dma_w(st) + dma_x(st)
            for k in range(18):
                c = bar + pos[k]
                if c >= 160 or nodma1: continue
                for x in dl[k][0]: place(slots, c - 1, x)
                place(slots, c, dl[k][1])
        if early:
            c = (pos[PFP] - (0 if first else 160 - bar) - 2) if PFP < 18 else endc + 1
            for x in early: place(slots, max(c, 0), x); c += 1
            if PFP >= 18: endc = c + 1
        c = endc + 1
        for x in (extra or []):
            if isinstance(x, list):
                for y in x: place(slots, c, y)
                c += estep; continue
            place(slots, c, x)
            c += 3 if (isinstance(x, Ins) or x.startswith('buffer')) else estep
        assert c < bar
        for i, x in enumerate(postbar or []): place(slots, bar + 13 + i, x)
        fill = [x if isinstance(x, tuple) else (0, x) for x in (fill or [])]
        for c in range(160):
            ks, r = divmod(c, 80); n, mi = divmod(r, 8)
            m = mi if n % 2 == 0 else 7 - mi
            if c == 0 and not first: p.e('s_waitcnt lgkmcnt(2)')
            if c == bar and not last:
                p.e(f'WAITTAG S{st ^ 1} LGKM0')
                p.e('s_barrier')
                if ptrace > 1: pf.trace()
            w = wf[(ks * 10 + n) % NSLOT]; x = xf[ks][m]
            a, b = (x, w) if (wc == 1 and n < 2) else (w, x)
            cin = '0' if (first and ks == 0) else str(acc[n][m])
            p.e(f'v_mfma_f32_16x16x32_bf16 {acc[n][m]}, {a}, {b}, {cin}')
            here = slots.get(c, [])
            p.add(here)
            if c >= 1:
                for _ in range(min(dens, 2 - len(here))):
                    if fill and fill[0][0] <= c:
                        x = fill.pop(0)[1]; p.add(x if isinstance(x, list) else [x])
        return [x[1] for x in fill]

    def toreg(tile, tmp):
        if tile.k == 'v': return tile
        for i in range(4): p.e(f'v_accvgpr_read_b32 {tmp[i]}, {tile[i]}')
        return tmp
    def pack(o, t0, t1):
        p.e(f'v_cvt_pk_bf16_f32 {o[0]}, {t0[0]}, {t0[1]}\nv_cvt_pk_bf16_f32 {o[1]}, {t0[2]}, {t0[3]}')
        p.e(f'v_cvt_pk_bf16_f32 {o[2]}, {t1[0]}, {t1[1]}\nv_cvt_pk_bf16_f32 {o[3]}, {t1[2]}, {t1[3]}')

    def pf_setup():
        L = f"""s_lshl_b32 {s_t0}, s2, 2
        s_add_u32 {s_t0}, {s_t0}, {s_w}
        s_lshl_b32 {s_t1}, {s_t0}, 9
        v_lshl_add_u32 {vt3}, {vl}, 7, {s_t1}
        v_cmp_gt_u32 vcc, 4, {vl}
        s_mov_b32 {sp2[0]}, {pwd[0]}
        s_mov_b32 {sp2[1]}, {pwd[1]}
        s_mov_b32 {sp2[2]}, {F * D * 2}
        v_cndmask_b32 {vt3}, 2.0, {vt3}, vcc
        s_mov_b32 {s_c1}, 0""".split('\n')
        return [x.strip() for x in L]
    def pf3_setup():
        L = f"""s_mov_b32 {sp3[0]}, {pgw[0]}
        s_mov_b32 {sp3[1]}, {pgw[1]}
        s_movk_i32 {sp3[2]}, 2048
        s_mov_b32 {sp3[3]}, 0x00020000
        v_lshlrev_b32 {vwo}, 7, {vl}""".split('\n')
        L2 = f"""s_lshl_b32 {s_t0}, s2, 2
        s_add_u32 {s_t0}, {s_t0}, {s_w}
        s_lshl_b32 {s_t1}, {s_t0}, 11
        v_lshl_add_u32 {vwo}, {vl}, 7, {s_t1}
        v_cmp_gt_u32 {smask}, 16, {vl}
        s_mov_b32 {sp3[0]}, {pwo[0]}
        s_mov_b32 {sp3[1]}, {pwo[1]}
        s_mov_b32 {sp3[2]}, {D * D * 2}
        v_cndmask_b32 {vwo}, 2.0, {vwo}, {smask}""".split('\n')
        return [x.strip() for x in L] + [Ins(f'buffer_load_dword {vpd}, {vwo}, {sp3}, 0 offen', 'pf')] + [x.strip() for x in L2]
    def tlb_touch():
        return [f's_cmp_eq_u32 {s_w}, 1', f's_cselect_b32 {sp2[0]}, {pout[0]}, {pws[0]}', f's_cselect_b32 {sp2[1]}, {pout[1]}, {pws[1]}',
                f's_mov_b32 {sp2[2]}, {34 << 20}', f's_cmov_b32 {sp2[2]}, {S * D * 2}', f's_cmp_lt_u32 {s_w}, 2', f's_cselect_b32 {s_t0}, 0, 2.0',
                f'v_lshlrev_b32 {vt3}, 20, {vl}', Ins(f'buffer_load_dword {vpd}, {vt3}, {sp2}, {s_t0} offen sc1', 'pf')]
    pf_wo = [f's_cmp_eq_u32 {s_cnt}, 2', f's_cselect_b32 {s_t0}, 0, 2.0', Ins(f'buffer_load_dword {vpd}, {vwo}, {sp3}, {s_t0} offen', 'pf')]
    gate_sel = [f's_cmp_eq_u32 {s_cnt}, 0', f's_cselect_b32 {s_t0}, {s_t2}, 2.0', f's_cselect_b32 {s_t1}, 0, 2.0',
                f's_cselect_b32 {sp3[0]}, {pgw[0]}, {sp3[0]}', f's_cselect_b32 {sp3[1]}, {pgw[1]}, {sp3[1]}', f's_cselect_b32 {sp3[2]}, 0x800, {sp3[2]}']
    gate_loads = [f'buffer_load_dwordx4 {gw[i]}, {z[0]}, {sp3}, {s_t1} offen offset:{16 * i}' for i in range(2)] + \
                 [f'buffer_load_dwordx4 {gx[i]}, {z[0]}, {sx}, {s_t0} offen offset:{(i // 2) * 2048 + (i % 2) * 16}' for i in range(4)]

    spins = []
    def check(cond_lines, reload_lines, tag):
        lab = f'{name}_{tag}'
        spins.append((lab, cond_lines, reload_lines))
        return cond_lines + [f's_cbranch_vccnz {lab}_spin', f'{lab}_ok:']

    def lines(s): return [x.strip() for x in s.strip().split('\n')]
    def rd(tile, tmp):
        if tile.k == 'v': return tile, []
        return tmp, [f'v_accvgpr_read_b32 {tmp[i]}, {tile[i]}' for i in range(4)]
    def packl(o, t0, t1):
        return [f'v_cvt_pk_bf16_f32 {o[0]}, {t0[0]}, {t0[1]}', f'v_cvt_pk_bf16_f32 {o[1]}, {t0[2]}, {t0[3]}',
                f'v_cvt_pk_bf16_f32 {o[2]}, {t1[0]}, {t1[1]}', f'v_cvt_pk_bf16_f32 {o[3]}, {t1[2]}, {t1[3]}']
    def mul4(d, a_, b_, pk):
        if pk: return [f'v_pk_mul_f32 {d[2*i:2*i+2]}, {a_[2*i:2*i+2]}, {b_ if b_.k == "s" else b_[2*i:2*i+2]}' for i in range(2)]
        return [f'v_mul_f32 {d[i]}, {b_[0] if b_.k == "s" else b_[i]}, {a_[i]}' for i in range(4)]
    def hpiece(n, j, o, pk):
        L = []; tt = []
        for mm in range(2):
            g_, l0 = rd(acc[n][2 * j + mm], vtmp[8 * mm:8 * mm + 4]); u_, l1 = rd(acc[n + 1][2 * j + mm], vtmp[8 * mm + 4:8 * mm + 8])
            L += l0 + l1 + mul4(g_, g_, u_, pk); tt.append(g_)
        return L + packl(o, tt[0], tt[1]) + [f'v_permlane16_swap_b32 {o[0]}, {o[2]}', f'v_permlane16_swap_b32 {o[1]}, {o[3]}']
    hreg = [acc[7][2 * j] for j in range(4)] + [acc[6][2 * j] for j in range(4)] + [acc[8][2 * j] for j in range(4)]

    vq = vdx[0]; vh = vdx[1]; vql = vdx[2]; vqq = vdx[3]
    s_b, s_qs = s_oq, R('s', sx.a, 2)
    def epi_setup(wc):
        L = lines(f"""
        v_and_b32 {vt0}, 15, {vl}
        v_lshrrev_b32 {vt1}, 4, {vl}
        v_lshlrev_b32 {vq}, 9, {vt1}
        v_lshlrev_b32 {vh}, 4, {vl}
        s_lshl_b32 {s_t0}, {s_h}, 6
        s_lshl_b32 {s_t1}, {s_mb}, 3
        s_add_u32 {s_t0}, {s_t0}, {s_t1}
        s_lshl_b32 {s_t1}, {s_wr}, 2
        s_add_u32 {s_t0}, {s_t0}, {s_t1}
        s_lshl_b32 {s_b}, {s_t0}, 12
        s_add_u32 {s_b}, {s_b}, {WS_KV}
        s_add_u32 {s_og}, {s_b}, 4096
        s_add_u32 {s_ox}, {s_b}, 8192
        s_add_u32 {s_c0}, {s_b}, 12288
        s_lshl_b32 {s_t0}, {s_mb}, 1
        s_add_u32 {s_t0}, {s_t0}, {s_wr}
        s_mul_i32 {s_t0}, {s_t0}, 288
        s_mul_i32 {s_t1}, {s_h}, 7
        s_add_u32 {s_t0}, {s_t0}, {s_t1}
        s_lshl_b32 {s_t0}, {s_t0}, 12
        s_add_u32 {s_hb}, {s_t0}, {WS_A + 4 * 4096 * wc}
        s_sub_u32 {s_c1}, {s_hb}, 4096
        s_lshl_b32 {s_t1}, {s_wr}, 14""")
        if wc == 0:
            L += lines(f"""
            v_lshrrev_b32 {vt2}, 3, {vt0}
            v_lshl_add_u32 {vq}, {vt2}, 8, {vq}
            v_and_b32 {vt2}, 7, {vt0}
            v_lshl_add_u32 {vq}, {vt2}, 4, {vq}
            v_add_u32 {vql}, {s_t1}, {vq}
            s_lshl_b32 {s_t1}, {s_wr}, 13
            s_add_u32 {s_t1}, {s_t1}, {QS}
            v_add_u32 {vqq}, {s_t1}, {vq}
            s_mov_b32 {s_qs[0]}, {hex(f32bits(QSCALE))}
            s_mov_b32 {s_qs[1]}, {s_qs[0]}""")
        else:
            L += [f'v_lshl_add_u32 {vq}, {vt0}, 4, {vq}', f'v_add_u32 {vql}, {s_t1}, {vq}']
        return L
    kvb = [s_b, s_og, s_ox, s_c0]
    def epi_early(wc, npk):
        F_ = []
        outs = [vtmp[16 + 4 * i:20 + 4 * i] for i in range(3)]
        if wc == 0:
            for m in range(7, -1, -1):
                o = acc[0][m]
                L = packl(o, acc[0][m], acc[1][m]) + [Ins(f'buffer_store_dwordx4 {o}, {vq}, {sws}, {kvb[m // 2]} offen offset:{(m % 2) * 128}{st_mod}', 'KVST'),
                                                       f'ds_write_b128 {vql}, {o} offset:{(m // 2) * 4096 + (m % 2) * 128}']
                F_ += [(88 + (7 - m) + 4, x) for x in L]
            for i, m in enumerate(range(7, -1, -1)):
                o = outs[i % 3]
                t0, l0 = rd(acc[2][m], vtmp[0:4]); t1, l1 = rd(acc[3][m], vtmp[4:8])
                L = l0 + l1 + mul4(t0, t0, s_qs, i >= npk) + mul4(t1, t1, s_qs, i >= npk) + packl(o, t0, t1) + [f'ds_write_b128 {vqq}, {o} offset:{(m // 2) * 2048 + (m % 2) * 128}']
                F_ += [(104 + (7 - m) + 4, x) for x in L]
        else:
            for nt, js in ((0, range(4)), (1, range(3, -1, -1))):
                for j in js:
                    o = acc[nt][2 * j]
                    L = packl(o, acc[nt][2 * j], acc[nt][2 * j + 1]) + [Ins(f'buffer_store_dwordx4 {o}, {vq}, {sws}, {kvb[j]} offen offset:{2048 + nt * 256}{st_mod}', 'KVST'),
                                                                         f'ds_write_b128 {vql}, {o} offset:{j * 4096 + 2048 + nt * 256}']
                    F_ += [((81 + 2 * j if nt == 0 else 95 - 2 * j) + 4, x) for x in L]
            for i, j in enumerate(range(3, -1, -1)):
                o = outs[i % 3]
                L = hpiece(2, j, o, i >= npk) + [Ins(f'buffer_store_dwordx4 {o}, {vh}, {sws}, {s_c1} offen offset:{j * 1024}{st_mod}', 'HST')]
                F_ += [(111 - 2 * j + 4, x) for x in L]
        return F_
    def epi_late():
        for j in range(4): p.add(hpiece(6, j, hreg[4 + j], True))
        p.add([f'v_mov_b32 {vt0}, 1', 'WAITTAG KVST', Ins(f'buffer_store_dword {vt0}, {vflk}, {sfl}, 0 offen sc1', 'FL')])
        for j in range(4): p.add(hpiece(4, j, hreg[j], True))
        for j in range(4): p.add(hpiece(8, j, hreg[8 + j], True))

    announce_setup = lines(f"""
        s_mov_b32 {sdbg[0]}, {pdbg[0]}
        s_mov_b32 {sdbg[1]}, {pdbg[1]}
        s_movk_i32 {sdbg[2]}, 256
        s_mov_b32 {sdbg[3]}, 0x00020000
        s_and_b32 {s_ano}, s2, 7
        s_lshl_b32 {s_ano}, {s_ano}, 2
        s_and_b32 {s_grp}, {s_mb}, 3
        s_add_u32 {s_grp}, {s_grp}, 3
        v_mov_b32 {vt2}, 1
        v_cmp_eq_u32 {smask}, 0, v0
        v_cndmask_b32 {vt1}, 2.0, 0, {smask}""")
    announce = [f's_cmp_eq_u32 {s_cnt}, {s_grp}', f's_cselect_b32 {s_t0}, {s_ano}, 2.0',
                f'buffer_atomic_add {vt2}, {vt1}, {sdbg}, {s_t0} offen offset:{DBG_CNT} sc1']
    cnt_addr = [f'v_and_b32 {vpf}, 7, {vl}', f'v_lshlrev_b32 {vpf}, 2, {vpf}']
    cnt_load = f'buffer_load_dword {vcnt}, {vpf}, {sdbg}, 0 offen offset:{DBG_CNT} sc1'

    def code_setup(wc):
        lab = f'{name}_pc{wc}'
        return [[f's_getpc_b64 {sp4[0:2]}', f'{lab}:'], f's_and_b32 {sp4[1]}, {sp4[1]}, 0xffff', f's_mov_b32 {sp4[2]}, {name}_end-{lab}', f's_mov_b32 {sp4[3]}, 0x00020000',
                f's_lshr_b32 {s_t0}, s2, 3', f's_lshl_b32 {s_t1}, {s_t0}, 8', f's_add_u32 {s_t1}, {s_t1}, {name}_c{wc}out-{lab}', f'v_and_b32 {vcnt}, 1, {vl}', f'v_lshlrev_b32 {vcnt}, 7, {vcnt}',
                f's_lshl_b32 {s_t0}, {s_t0}, 2', f's_add_u32 {s_t0}, {s_t0}, {s_w}', f's_lshl_b32 {s_t0}, {s_t0}, 8',
                f's_add_u32 {s_t0}, {s_t0}, {name}_join-{lab}', f'v_mov_b32 {vtmp[0]}, {s_t0}', f'v_mov_b32 {vtmp[1]}, {s_t1}',
                f'v_cmp_gt_u32 vcc, 2, {vl}', f'v_cndmask_b32 {vtmp[0]}, {vtmp[0]}, {vtmp[1]}, vcc', f'v_add_u32 {vcnt}, {vcnt}, {vtmp[0]}',
                f'v_cmp_gt_u32 vcc, 4, {vl}', f'v_cndmask_b32 {vcnt}, 2.0, {vcnt}, vcc']
    code_pf = [f's_cmp_eq_u32 {s_cnt}, 1', f's_cselect_b32 {s_t0}, 0, 2.0', Ins(f'buffer_load_dword {vpd}, {vcnt}, {sp4}, {s_t0} offen', 'pf')]
    for wc in range(2):
        p.seg(f'c{wc}a')
        if wc == 1: p.e(f'{name}_c1:')
        for j in range(DIST): p.add(wread(j, 0, wc))
        stage(0, wc, first=True, early=pfetch(), extra=(tlb_touch() if TLB else []) + pf3_setup(), estep=1, fill=announce_setup + code_setup(wc), postbar=pf_setup())
        p.e(f's_mov_b32 {s_cnt}, 6')
        p.seg(f'c{wc}l1')
        p.e(f'{name}_c{wc}loop:')
        stage(1, wc, early=pfetch() + pfetch_d(), extra=gate_sel + gate_loads, estep=1)
        p.e(f's_cmp_eq_u32 {s_cnt}, 0\ns_cbranch_scc1 {name}_c{wc}out')
        p.seg(f'c{wc}l2')
        stage(0, wc, early=pfetch() + pfetch_d(), extra=announce + pf_wo + (code_pf if CPF else []))
        p.e(f's_sub_u32 {s_cnt}, {s_cnt}, 1\ns_branch {name}_c{wc}loop')
        p.seg(f'c{wc}last')
        p.e(f'{name}_c{wc}out:')
        rest = stage(0, wc, early=pfetch_d(), fill=gate_ops(), nodma1=True, dens=GD)
        rest = stage(1, wc, last=True, fill=rest + cnt_addr + [cnt_load] + epi_setup(wc) + epi_early(wc, 3 if wc == 0 else 2))
        pf.stamp(2)
        if ptrace == -1: pf.trace()
        p.add(rest)
        if ptrace == -1: pf.trace()
        epi_late()
        if ptrace == -1: pf.trace()
        if wc == 0: p.e(f's_branch {name}_join')
    p.seg('join')
    p.e(f'{name}_join:')
    p.add(check([f'v_cmp_gt_u32 vcc, 32, {vcnt}'], [cnt_load], 'cnt'))

    sa.p = s_base; va.p = v_base; aa.p = 0
    skv = sa(4); sA = sa(4); swd = sa(4); swo = sa(4); sout = sa(4)
    s_okv, s_left, s_p, s_oa, s_ow, s_wb, s_ob, s_ob2, s_thr, s_mt, s_nt, s_oo, s_spin, s_h1, s_h2, s_rt, s_win = [sa() for _ in range(17)]
    scp = sa(4)
    vl16, vkA, vkB, vdma, vo, vidx, vu0, vu1, vu2, vpa = [va() for _ in range(10)]
    vdd = [va() for _ in range(2)]; vdo = [va() for _ in range(2)]; vwr = [va() for _ in range(2)]
    vg = va(2); vog = va(4); vpoll = va(2, 2); vsc = va(2)
    ones = va(4, 4)
    vA = [va() for _ in range(4)]
    assert va.p <= 46 and va.p > vwo.a
    va2 = Alloc('v', va.p, 48)
    va.p = 48
    Sx = [va(16, 4) for _ in range(2)]; P = [va(8, 4) for _ in range(2)]; C = [va(16, 4) for _ in range(2)]
    acc3 = [[va(16, 4) for _ in range(4)] for _ in range(2)]
    O = [aa(16, 4) for _ in range(2)]; L = [aa(4, 4) for _ in range(2)]
    Q = [aa(8, 4) for _ in range(2)]; K = [aa(8, 4) for _ in range(2)]; V = [aa(8, 4) for _ in range(2)]
    Wf = [aa(4, 4) for _ in range(2)]
    Ab = [[aa(4, 4) for _ in range(4)] for _ in range(8)]

    p.e(f"""
    v_lshlrev_b32 {vl16}, 4, {vl}
    s_lshl_b32 {s_p}, {s_w}, 12
    s_add_u32 {s_t0}, {s_p}, {QS}
    v_add_u32 {vu0}, {s_t0}, {vl16}
    s_waitcnt lgkmcnt(0)
    s_barrier
    """)
    pf.stamp(3)
    def kread(kb, loop=False):
        base, o = (vl16, (kb % 16) * 4096) if not loop else ((vkA, kb * 4096) if kb < 8 else (vkB, (kb - 8) * 4096))
        return [f'ds_read_b128 {K[kb % 2][4*f:4*f+4]}, {base} offset:{o + f * 1024}' for f in range(2)]
    def vread(kb, loop=False):
        base, o = (vl16, (kb % 16) * 4096) if not loop else (vkA, kb * 4096)
        return [f'ds_read_b128 {V[kb % 2][4*f:4*f+4]}, {base} offset:{o + 2048 + f * 1024}' for f in range(2)]
    def qk(dst, kb, q, f, cin):
        return f'v_mfma_f32_32x32x16_bf16 {dst}, {K[kb % 2][4*f:4*f+4]}, {Q[q][4*f:4*f+4]}, {cin if f == 0 else dst}'
    def pv(j, f, zero=False):
        q = j % 2; kb = (j // 2) % 2
        return f'v_mfma_f32_32x32x16_bf16 {O[q]}, {V[kb][4*f:4*f+4]}, {P[q][4*f:4*f+4]}, {"0" if zero else O[q]}'
    def rsum(q): return f'v_smfmac_f32_16x16x64_bf16 {L[q]}, {ones}, {P[q]}, {vidx}'
    def cvt(j, i): return f'v_cvt_pk_bf16_f32 {P[j % 2][i]}, {Sx[j % 2][2*i]}, {Sx[j % 2][2*i+1]}'
    def rowmax(dst, src, init):
        lst = [src[i] for i in range(16)]
        if init:
            p.e(f'v_max3_f32 {dst}, {lst[0]}, {lst[1]}, {lst[2]}'); lst = lst[3:]
        while len(lst) >= 2:
            p.e(f'v_max3_f32 {dst}, {dst}, {lst[0]}, {lst[1]}'); lst = lst[2:]
        if lst: p.e(f'v_max_f32 {dst}, {dst}, {lst[0]}')
    def setc(q, m):
        p.e(f'v_mov_b32 {vu2}, {m}\nv_permlane32_swap_b32 {vu2}, {m}\nv_max_f32 {m}, {m}, {vu2}')
        for i in range(16): p.e(f'v_sub_f32 {C[q][i]}, 0, {m}')
    for q in range(2):
        for f in range(2): p.e(f'ds_read_b128 {Q[q][4*f:4*f+4]}, {vu0} offset:{q * 2048 + f * 1024}')
    p.add(kread(0)); p.add(kread(1))
    p.e(f"""
    v_bfe_u32 {vu0}, {vl}, 2, 1
    v_bfe_u32 {vu1}, {vl}, 1, 1
    v_mov_b32 {vu2}, 0x3f803f80
    v_or_b32 {vidx}, {vu0}, {vu1}
    v_cmp_eq_u32 vcc, 0, {vidx}
    v_xor_b32 {vu0}, 1, {vu0}
    v_or_b32 {vidx}, {vu0}, {vu1}
    v_cndmask_b32 {ones[0]}, 0, {vu2}, vcc
    v_cndmask_b32 {ones[1]}, 0, {vu2}, vcc
    v_cmp_eq_u32 vcc, 0, {vidx}
    v_and_b32 {vu0}, 1, {vl}
    v_mov_b32 {vu1}, 0xeeeeeeee
    v_cndmask_b32 {ones[2]}, 0, {vu2}, vcc
    v_cndmask_b32 {ones[3]}, 0, {vu2}, vcc
    v_cmp_eq_u32 vcc, 0, {vu0}
    v_mov_b32 {vu2}, 0x44444444
    v_add_u32 {vdma}, {s_p}, {vl16}
    v_cndmask_b32 {vidx}, {vu1}, {vu2}, vcc
    """)
    for q in range(2):
        for f in range(2): p.e(qk(C[q], 0, q, f, '0'))
    for q in range(2):
        for i in range(4): p.e(f'v_accvgpr_write_b32 {L[q][i]}, 0')
    p.e(f's_lshl_b32 {s_t0}, {s_h}, 18')
    srd(p, skv, pws, off_s=s_t0, off_imm=WS_KV, size=262144)
    rowmax(vu0, C[0], True); rowmax(vu1, C[1], True)
    setc(0, vu0)
    p.e(qk(Sx[0], 0, 0, 0, C[0])); p.e(qk(Sx[0], 0, 0, 1, C[0]))
    setc(1, vu1)

    def flag(val, tag, wait):
        return [f'v_mov_b32 {vu0}, {val}', f'WAITTAG {wait}', Ins(f'buffer_store_dword {vu0}, {vflag}, {sfl}, 0 offen sc1', tag)]
    def kvdma(m0line, tag):
        return [m0line] + [Ins(f'buffer_load_dwordx4 {vdma}, {skv}, {s_okv} offen offset:{i * 1024} lds', tag) for i in range(4)] + \
               [f's_add_u32 {s_okv}, {s_okv}, 16384', f's_and_b32 {s_okv}, {s_okv}, 0x3ffff',
                f's_sub_u32 {s_left}, {s_left}, 1', f's_cselect_b32 {skv[2]}, 0, {skv[2]}']
    def dloads(s):
        b = s % NB
        return [f's_add_u32 m0, {s_wb}, {b * 2048}'] + \
               [Ins(f'buffer_load_dwordx4 {vdd[hh]}, {swd}, {s_ow} offen offset:{hh * 1024} lds', f'D{b}') for hh in range(2)] + \
               [Ins(f'buffer_load_dwordx4 {Ab[b][r]}, {vA[r]}, {sA}, {s_oa} offen', f'D{b}') for r in range(4)] + \
               ([f's_add_u32 {s_ow}, {s_ow}, 32768', f's_add_u32 {s_oa}, {s_oa}, 4096'] if not ROT else
                ([f's_add_u32 {s_win}, {s_win}, 32768'] if s % 8 == 7 else []) +
                [f's_add_u32 {s_rt}, {s_rt}, 4096', f's_and_b32 {s_rt}, {s_rt}, 0x7000', f's_add_u32 {s_oa}, {s_win}, {s_rt}', f's_lshl_b32 {s_ow}, {s_oa}, 3'])
    def wrd(base, off, nb):
        return [f'ds_read_b64_tr_b16 {Wf[nb][2*s:2*s+2]}, {base[nb]} offset:{off + s * 512}' for s in range(2)]
    def gm(buf, nb, tb, zero=False):
        return f'v_mfma_f32_32x32x16_bf16 {acc3[nb][tb]}, {Wf[nb]}, {buf[tb]}, {"0" if zero else acc3[nb][tb]}'
    def oload(t, m0line, tag):
        return [m0line] + [Ins(f'buffer_load_dwordx4 {vdo[hh]}, {swo}, {s_oo} offen offset:{hh * 1024} lds', tag) for hh in range(2)] + [f's_add_u32 {s_oo}, {s_oo}, 32768', f's_and_b32 {s_oo}, {s_oo}, 0x7ffff']

    def period(j, loop=False, item=None, misc=(), pre=(), zero=False):
        s = Sx[j % 2]
        E = [f'v_exp_f32 {s[i]}, {s[i]}' for i in range(16)]
        jn = j + 1
        m1 = qk(Sx[jn % 2], jn // 2, jn % 2, 0, C[jn % 2]); m2 = qk(Sx[jn % 2], jn // 2, jn % 2, 1, None)
        rd = kread((j + 1) // 2 + 1, loop) if j % 2 == 1 else vread(j // 2, loop)
        first = (j == 0 and not loop)
        zo = (j <= 2 and not loop)
        c7 = [] if first else [cvt(j - 1, 7)]
        p0 = [] if first else [pv(j - 1, 0, zo)]; p1 = [] if first else [pv(j - 1, 1)]; rs = [] if first else [rsum((j - 1) % 2)]
        V_ = [E[0]] + c7
        for i in range(7): V_ += [E[2 * i + 1], E[2 * i + 2], cvt(j, i)]
        V_.append(E[15])
        if item is None:
            p.add(V_[:1 + len(c7)]); V_ = V_[1 + len(c7):]
            M = [m1, m2] + p0 + p1 + rs; G = []
        else:
            st, nb = item
            G = [gm(Ab[st % NB], nb, tb if nb == 0 else 3 - tb, zero) for tb in range(4)]
            M = [G[0], m1, G[1], m2, G[2]] + p0 + [G[3]] + p1 + rs
        if loop and exp_ & 1: M = [x for x in M if x not in G]
        if loop and exp_ & 8: misc = [x for x in misc if not (isinstance(x, Ins) and x.tag and x.tag.startswith('D'))]
        misc = list(misc)
        for k in range(len(misc)):
            if isinstance(misc[k], str) and ' m0,' in misc[k]:
                q_ = k
                while q_ > 0 and not (isinstance(misc[q_ - 1], Ins) and misc[q_ - 1].text.endswith(' lds')): q_ -= 1
                misc.insert(q_, misc.pop(k))
        items = []
        for x in list(pre) + rd + list(misc):
            if items and isinstance(items[-1][-1], str) and items[-1][-1].split()[0] in ('WAITTAG', 's_cbranch_vccnz', 'v_cmp_gt_u32', 's_getpc_b64'): items[-1].append(x)
            else: items.append([x])
        isvm = lambda it: any((y.text if isinstance(y, Ins) else y).startswith('buffer') for y in it)
        n = len(M); last = n - 1 if M[-1].startswith('v_smfmac') else n
        cost = lambda x: 8 if x.startswith('v_exp') else 4
        occ = [32 if '32x32' in x else 16 for x in M]
        iss = [8 if 'smfmac' not in x else SMC for x in M]
        ic = [sum((VMC if (y.text if isinstance(y, Ins) else y).startswith('buffer') else 4) for y in it if not (isinstance(y, str) and y.endswith(':'))) for it in items]
        vc = [cost(x) for x in V_]
        tailc = (4 if item is not None else 12 + (4 if j % 2 == 0 else 0))
        if item is None: iss[-1] += 0
        import functools
        @functools.lru_cache(None)
        def best(g, a_, b_, pv_):
            if g == n: return (0, ()) if (a_ == len(items) and b_ == len(V_)) else (10 ** 9, ())
            res = (10 ** 9, ())
            lo = 0
            if g == 0 and item is not None: lo = 1 + len(c7)
            for na in range(0, len(items) - a_ + 1):
                if g == 0 and na < min(len(items), npre): continue
                nv_ = sum(map(isvm, items[a_:a_ + na]))
                ca = sum(ic[a_:a_ + na])
                if g < n - 1 and ca > 64: break
                pen = (VPEN * max(0, nv_ - 1) + (VPEN // 2 if (nv_ and pv_) else 0)) + (0.01 * g * na)
                for nb_ in range(lo, len(V_) - b_ + 1):
                    f_ = iss[g] + ca + sum(vc[b_:b_ + nb_]) + (tailc if g == n - 1 else 0)
                    if f_ > 120 and g < n - 1: break
                    r_ = best(g + 1, a_ + na, b_ + nb_, nv_ > 0)
                    t_ = max(occ[g], f_) + pen + r_[0] + 0.001 * (f_ - occ[g]) ** 2
                    if t_ < res[0]: res = (t_, ((na, nb_),) + r_[1])
            return res
        npre = len([1 for it in items if any(y in pre for y in it if isinstance(y, str))])
        tot_, asg = best(0, 0, 0, False)
        assert tot_ < 10 ** 8
        a_ = b_ = 0
        for q_, m_ in enumerate(M):
            p.add([m_])
            na, nb_ = asg[q_]
            for it in items[a_:a_ + na]: p.add(it)
            p.add(V_[b_:b_ + nb_]); a_ += na; b_ += nb_

    setup1 = lines(f"""
        s_lshl_b32 {s_okv}, {s_mb}, 15
        s_add_u32 {s_okv}, {s_okv}, 32768
        s_and_b32 {s_okv}, {s_okv}, 0x3ffff
        s_movk_i32 {s_left}, 13
        v_and_b32 {vu1}, 31, {vl}
        v_lshlrev_b32 {vpa}, 2, {vu1}
        s_lshl_b32 {s_t2}, {s_h}, 7
        s_add_u32 {s_t2}, {s_t2}, 4096""")
    poll_kv = f'buffer_load_dword {vpoll[0]}, {vpa}, {sfl}, {s_t2} offen sc1'
    setup2 = lines(f"""
        s_and_b32 {s_t0}, s2, 7
        s_lshr_b32 {s_t1}, s2, 3
        s_lshr_b32 {s_mt}, {s_t0}, 1
        s_lshl_b32 {s_mt}, {s_mt}, 2
        s_and_b32 {s_nt}, {s_t0}, 1
        s_lshl_b32 {s_nt}, {s_nt}, 3
        s_and_b32 {s_t0}, {s_t1}, 3
        s_add_u32 {s_mt}, {s_mt}, {s_t0}
        s_lshr_b32 {s_t0}, {s_t1}, 2
        s_add_u32 {s_nt}, {s_nt}, {s_t0}
        s_lshl_b32 {s_t0}, {s_nt}, 7
        s_lshl_b32 {s_t1}, {s_w}, 19
        s_add_u32 {s_t1}, {s_t1}, {s_t0}
        s_add_u32 {swo[0]}, {pwo[0]}, {s_t1}
        s_addc_u32 {swo[1]}, {pwo[1]}, 0
        s_sub_u32 {swo[2]}, {D * D * 2}, {s_t1}
        s_mov_b32 {swo[3]}, 0x00020000
        s_add_u32 {swd[0]}, {pwd[0]}, {s_t0}
        s_addc_u32 {swd[1]}, {pwd[1]}, 0
        s_sub_u32 {swd[2]}, {F * D * 2}, {s_t0}
        s_mov_b32 {swd[3]}, 0x00020000
        s_mul_i32 {s_t0}, {s_mt}, {288 * 4096}
        s_add_u32 {s_t0}, {s_t0}, {WS_A}
        s_add_u32 {sA[0]}, {pws[0]}, {s_t0}
        s_addc_u32 {sA[1]}, {pws[1]}, 0
        s_mov_b32 {sA[2]}, {288 * 4096}
        s_mov_b32 {sA[3]}, 0x00020000
        s_mul_i32 {s_win}, {s_w}, {56 * 4096}
        s_lshl_b32 {s_rt}, {s_mt}, 1
        s_add_u32 {s_rt}, {s_rt}, {s_nt}
        s_and_b32 {s_rt}, {s_rt}, {7 if ROT else 0}
        s_lshl_b32 {s_rt}, {s_rt}, 12
        s_add_u32 {s_oa}, {s_win}, {s_rt}
        s_lshl_b32 {s_ow}, {s_oa}, 3
        s_and_b32 {s_oo}, {s_nt}, {3 if ROT else 0}
        s_lshl_b32 {s_oo}, {s_oo}, 17
        s_mul_i32 {s_wb}, {s_w}, 20480
        s_add_u32 {s_wb}, {s_wb}, {W0}
        v_lshrrev_b32 {vu1}, 3, {vl}
        v_and_b32 {vu2}, 2, {vu1}
        v_lshlrev_b32 {vu2}, 1, {vu2}
        v_and_b32 {vdd[1]}, 7, {vl}
        v_xor_b32 {vu2}, {vu2}, {vdd[1]}
        v_lshlrev_b32 {vu2}, 4, {vu2}
        v_lshl_add_u32 {vdd[0]}, {vu1}, 11, {vu2}
        v_add_u32 {vdd[1]}, {8 * 2048 - 1024}, {vdd[0]}
        v_lshrrev_b32 {vu1}, 5, {vl}
        v_lshl_add_u32 {vdo[0]}, {vu1}, 13, {vdd[0]}
        v_add_u32 {vdo[1]}, {4 * 2048 - 1024}, {vdo[0]}
        v_lshl_add_u32 {vwr[0]}, {vu1}, 10, {s_wb}
        v_bfe_u32 {vu1}, {vl}, 2, 2
        v_lshl_add_u32 {vwr[0]}, {vu1}, 7, {vwr[0]}
        v_bfe_u32 {vu1}, {vl}, 3, 1
        v_lshl_add_u32 {vwr[0]}, {vu1}, 6, {vwr[0]}
        v_bfe_u32 {vu1}, {vl}, 4, 1
        v_lshl_add_u32 {vwr[0]}, {vu1}, 5, {vwr[0]}
        v_and_b32 {vu1}, 3, {vl}
        v_lshl_add_u32 {vwr[0]}, {vu1}, 3, {vwr[0]}
        v_xor_b32 {vwr[1]}, 64, {vwr[0]}
        v_mov_b32 {vkB}, {vl16}
        v_add_u32 {vkA}, 32768, {vl16}
        s_add_u32 {s_h1}, {s_hb}, 4096
        s_add_u32 {s_h2}, {s_hb}, 8192""")
    for r in range(4):
        setup2 += [f's_add_u32 {s_t0}, {s_w}, {r + 1}', f's_and_b32 {s_t0}, {s_t0}, 3', f's_lshl_b32 {s_t0}, {s_t0}, 10', f'v_add_u32 {vA[r]}, {s_t0}, {vl16}']
    setup3 = lines(f"""
        v_and_b32 {vu1}, 7, {vl}
        v_bfe_u32 {vu2}, {vl}, 4, 1
        v_lshl_add_u32 {vo}, {vu2}, 3, {vu1}
        v_bfe_u32 {vu2}, {vl}, 3, 1
        v_lshl_add_u32 {vo}, {vu2}, 4, {vo}
        v_lshrrev_b32 {vu2}, 3, {vo}
        v_lshlrev_b32 {vu2}, 7, {vu2}
        v_lshl_add_u32 {vsc[0]}, {vu1}, 2, {vu2}
        v_lshlrev_b32 {vo}, 4, {vo}
        v_lshrrev_b32 {vu2}, 5, {vl}
        v_lshl_add_u32 {vo}, {vu2}, 9, {vo}
        v_bfe_u32 {vu2}, {vl}, 3, 2
        v_lshlrev_b32 {vu2}, 7, {vu2}
        v_lshl_add_u32 {vsc[1]}, {vu1}, 2, {vu2}
        s_lshl_b32 {s_t0}, {s_mb}, 1
        s_add_u32 {s_t0}, {s_t0}, {s_wr}
        s_mul_i32 {s_t0}, {s_t0}, 288
        s_lshl_b32 {s_t1}, {s_h}, 1
        s_add_u32 {s_t0}, {s_t0}, {s_t1}
        s_add_u32 {s_t0}, {s_t0}, 224
        s_lshl_b32 {s_t0}, {s_t0}, 12
        s_lshl_b32 {s_t1}, {s_wc}, 11
        s_add_u32 {s_t0}, {s_t0}, {s_t1}
        s_add_u32 {s_ob}, {s_t0}, {WS_A}
        s_add_u32 {s_ob2}, {s_ob}, 4096
        s_mov_b32 {s_thr}, {hex(f32bits(2.0 ** 40 if not force_slow else 0.5))}
        v_lshlrev_b32 {vpa}, 3, {vl}
        s_lshr_b32 {s_t2}, {s_mt}, 1
        s_lshl_b32 {s_t2}, {s_t2}, 9""")
    poll_h = f'buffer_load_dwordx2 {vpoll}, {vpa}, {sfl}, {s_t2} offen sc1'
    cond2 = [f'v_min_u32 {vu1}, {vpoll[0]}, {vpoll[1]}', f'v_cmp_gt_u32 vcc, 2, {vu1}']
    og_loads = [f's_lshl_b32 {s_t0}, {s_mt}, 11', f's_add_u32 {s_t0}, {s_t0}, {WS_G + 32}']
    for r in range(4):
        og_loads += [f'v_lshrrev_b32 {vu1}, 10, {vA[r]}', f'v_lshl_add_u32 {vu1}, {vu1}, 9, {vsc[1]}', f'buffer_load_dword {vog[r]}, {vu1}, {sws}, {s_t0} offen']
    g_loads = [f's_lshl_b32 {s_t0}, {s_mb}, 2', f's_add_u32 {s_t0}, {s_t0}, {s_w}', f's_lshl_b32 {s_t0}, {s_t0}, 10', f's_add_u32 {s_t0}, {s_t0}, {WS_G}'] + \
              [f'buffer_load_dword {vg[q]}, {vsc[0]}, {sws}, {s_t0} offen offset:{q * 512}' for q in range(2)]
    early_o = [oload(t, f's_add_u32 m0, {s_wb}, {(8 + t % 4) * 2048}' if t % 4 < 2 else f's_add_u32 m0, {s_p}, {QS + (t % 4 - 2) * 2048}', 'WO') for t in range(8)]
    WO = [R('a', aa.p + 8 * t, 8) for t in range(4)] + [R('a', 8 * t, 8) for t in range(11)] + [Sx[0][0:8]]
    assert Wf[0].a == 88 and aa.p + 32 <= 256
    vw3 = [va2(), va2()]
    def oslot(t):
        if t >= 8: return vw2, (t - 8) * 2048, f's_add_u32 m0, {s_p}, {(t - 8) * 2048}'
        if t % 4 < 2: return vwr, (8 + t % 4) * 2048, None
        return vw3, (t % 4 - 2) * 2048, None
    def woread(t):
        base, off, _ = oslot(t)
        return [f'ds_read_b64_tr_b16 {WO[t][4*nb+2*s_:4*nb+2*s_+2]}, {base[nb]} offset:{off + s_ * 512}' for nb in range(2) for s_ in range(2)]
    vw2 = [C[0][0], C[0][1]]
    setup3 += [f's_add_u32 {s_t0}, {s_p}, {QS}', f's_sub_u32 {s_t0}, {s_t0}, {s_wb}', f'v_add_u32 {vw3[0]}, {s_t0}, {vwr[0]}', f'v_add_u32 {vw3[1]}, {s_t0}, {vwr[1]}']
    assert NB == 8 and PM % 2 == 0
    PA = 48
    plan = {j: [] for j in range(PA)}; prej = {j: [] for j in range(PA)}
    plan[0] += setup1
    plan[1] += setup2[:21]; plan[2] += setup2[21:41]; plan[3] += setup2[41:61]; plan[4] += setup2[61:]; plan[KP] = [poll_kv] + plan[KP]
    plan[5] += check([f'v_cmp_gt_u32 vcc, 1, {vpoll[0]}'], [poll_kv], 'kv')
    d = kvdma(f's_add_u32 m0, {s_p}, 32768', 'KV0'); plan[5] += d[:3]; plan[6] += d[3:]
    d = kvdma(f's_add_u32 m0, {s_p}, 49152', 'KV1'); plan[7] += d[:3]; plan[8] += d[3:]
    for i in range(5):
        j = 13 + 8 * i
        prej[j] += [f'WAITTAG KV{i % 2}', 's_barrier']
        d = kvdma(f's_add_u32 m0, {s_p}, {(i % 4) * 16384}', f'KV{i % 2}')
        plan[j] += d[:5]; plan[j + 1] += d[5:]
    busy = (13, 21, 29, 37, 45)
    j = float(H0)
    for k in range(12):
        while int(j) in busy: j = int(j) + 1.0
        plan[int(j)].append(Ins(f'buffer_store_dwordx4 {hreg[k]}, {vl16}, {sws}, {(s_hb, s_h1, s_h2)[k // 4]} offen offset:{(k % 4) * 1024}{st_mod}', 'HST'))
        jl = int(j); j += HP
    plan[10] += setup3[:10]; plan[11] += setup3[10:20]; plan[12] += setup3[20:]
    def nextfree(j):
        while j in busy: j += 1
        return j
    jf = nextfree(jl + FG); plan[jf] += flag(2, 'FL', 'HST')
    jc = PM - 2 - DD
    while any(x in busy for x in range(jc, PM - 1)) and jc in busy: jc -= 1
    jp = jc - PG
    assert jp > jf, (jp, jf)
    plan[jp] += [poll_h]
    jj = E0
    for t in range(4):
        jj = nextfree(jj + 1); plan[jj] += early_o[t]
    jj = nextfree(jj + 3)
    for t in range(4):
        plan[jj] += (['WAITTAG WO'] if t == 0 else []) + woread(t); jj = nextfree(jj + 1)
    for t in range(4, 8):
        plan[jj] += (['s_waitcnt lgkmcnt(0)'] if t == 4 else []) + early_o[t]; jj = nextfree(jj + 1)
    assert jj <= PM
    plan[jc] += check(cond2, [poll_h], 'h') + [f's_lshl_b32 {s_t2}, {s_mb}, 9', poll_h]
    jj = jc
    for i in range(DD):
        jj = nextfree(jj + (1 if i else 0)); plan[jj] += dloads(i)
    assert jj <= PM - 2, (jj, PM)
    plan[PM - 1] = ['WAITTAG D0'] + wrd(vwr, 0, 0) + plan[PM - 1]
    plan[PM + 2] += og_loads
    plan[PM + 4] += check(cond2, [poll_h], 'g') + g_loads
    plan[PA - 1] += [f's_xor_b32 {s_p}, {s_p}, 32768']
    vcp = va2()
    if CP2:
        plan[PM - 3] += [f's_getpc_b64 {scp[0:2]}', f'{name}_pct:', f's_and_b32 {scp[1]}, {scp[1]}, 0xffff', f's_mov_b32 {scp[2]}, {name}_slow-{name}_pct',
                         f's_mov_b32 {scp[3]}, 0x00020000', f's_lshr_b32 {s_t0}, s2, 3', f's_lshl_b32 {s_t0}, {s_t0}, 2', f's_add_u32 {s_t0}, {s_t0}, {s_w}',
                         f's_lshl_b32 {s_t0}, {s_t0}, 7', f's_add_u32 {s_t0}, {s_t0}, {name}_tail-{name}_pct', f'v_lshl_add_u32 {vcp}, {vl}, 14, {s_t0}']
    def mixed(j, st, nb, loop, misc=(), pre=(), zero=False):
        d = dloads(st + DD) if st + DD < 56 else []
        if nb == 0:
            period(j, loop, (st, 0), misc=wrd(vwr, (st % NB) * 2048, 1) + d[:4] + list(misc), pre=pre, zero=zero)
        else:
            if MW: p.e(f'WAITTAG D{(st + 1) % NB} LGKM0')
            period(j, loop, (st, 1), misc=([] if MW else [f'WAITTAG D{(st + 1) % NB}']) + wrd(vwr, ((st + 1) % NB) * 2048, 0) + d[4:] + list(misc), pre=pre, zero=zero)
    p.seg('partA')
    for j in range(PA):
        if ptrace == -1 and j in (0, 1, 5, 7, 9, 13, 15, 21, jf, jf + 1, jc, jc + 1, PM): pf.trace()
        if j < PM: period(j, misc=plan[j], pre=prej[j])
        else: mixed(j, (j - PM) // 2, j % 2, False, misc=plan[j], pre=prej[j], zero=(j < PM + 2))
    if ptrace == -1: pf.trace()
    ST0 = (PA - PM) // 2
    pf.stamp(4)
    p.e(f's_mov_b32 {s_cnt}, 5')
    p.seg('loop')
    p.e(f'{name}_loop:')
    for j in range(16):
        misc = []; pre = []
        if j in (5, 13):
            pre = [f'WAITTAG KV{1 if j == 5 else 0}', 's_barrier']
        if j in (5, 6, 13, 14):
            d = kvdma(f's_xor_b32 m0, {s_p}, 49152' if j < 8 else f's_mov_b32 m0, {s_p}', 'KV1' if j < 8 else 'KV0')
            misc = d[:5] if j in (5, 13) else d[5:]
        if j == 9 and CP2: misc = [Ins(f'buffer_load_dword {vpd}, {vcp}, {scp}, 0 offen', 'pf')]
        if j == 15: misc = [f's_xor_b32 {s_p}, {s_p}, 32768', f'v_xor_b32 {vkA}, 0x8000, {vkA}', f'v_xor_b32 {vkB}, 0x8000, {vkB}']
        mixed(j, ST0 + j // 2, j % 2, True, misc=misc, pre=pre)
    p.e(f's_sub_u32 {s_cnt}, {s_cnt}, 1\ns_cmp_lg_u32 {s_cnt}, 0\ns_cbranch_scc1 {name}_loop')

    p.seg('tail')
    p.e(f'{name}_tail:')
    pf.stamp(5)
    if ptrace == -2: pf.trace()
    p.add([cvt(15, 7), pv(15, 0), pv(15, 1), rsum(1)])
    def lsum():
        p.e(f"""
        v_accvgpr_read_b32 {vsc[0]}, {L[0][0]}
        v_accvgpr_read_b32 {vu0}, {L[0][1]}
        v_accvgpr_read_b32 {vsc[1]}, {L[1][0]}
        v_accvgpr_read_b32 {vu1}, {L[1][1]}
        v_add_f32 {vsc[0]}, {vsc[0]}, {vu0}
        v_add_f32 {vsc[1]}, {vsc[1]}, {vu1}
        """)
    lsum()
    p.e(f"""
    v_cmp_nle_f32 vcc, {vsc[0]}, {s_thr}
    v_cmp_nle_f32 {smask}, {vsc[1]}, {s_thr}
    s_or_b64 vcc, vcc, {smask}
    s_cbranch_vccnz {name}_slow
    """)
    p.seg('epi')
    p.e(f'{name}_epi:')
    p.e(f"""
    v_rcp_f32 {vsc[0]}, {vsc[0]}
    v_rcp_f32 {vsc[1]}, {vsc[1]}
    WAITTAG KV0 KV1
    s_barrier
    v_mul_f32 {vsc[0]}, {vsc[0]}, {vg[0]}
    v_mul_f32 {vsc[1]}, {vsc[1]}, {vg[1]}
    """)
    for q in range(2):
        for f in range(2):
            t_ = Sx[q][8 * f:8 * f + 8]
            for i in range(8): p.e(f'v_accvgpr_read_b32 {t_[i]}, {O[q][8*f+i]}')
            for i in range(8): p.e(f'v_mul_f32 {t_[i]}, {t_[i]}, {vsc[q]}')
            for i in range(4): p.e(f'v_cvt_pk_bf16_f32 {t_[i]}, {t_[2*i]}, {t_[2*i+1]}')
            p.e(f'buffer_store_dwordx4 {t_[0:4]}, {vo}, {sws}, {(s_ob, s_ob2)[f]} offen offset:{q * 1024}{st_mod}', 'OST')
    vout = C[0][4]; vrw = [C[0][5], C[0][6], C[0][7]]; vrr = C[0][8]
    LATE0 = ST0 + 40
    p.e(f's_lshl_b32 {s_p}, {s_w}, 14')
    sk = [s_h1, s_h2, s_hb, s_left]
    vA2 = [[vA[r], Sx[1][3 * r], Sx[1][3 * r + 1], Sx[1][3 * r + 2]] for r in range(4)]
    late2 = lines(f"""
        s_sub_u32 {s_t0}, {s_p}, {s_wb}
        v_add_u32 {vw2[0]}, {s_t0}, {vwr[0]}
        v_add_u32 {vw2[1]}, {s_t0}, {vwr[1]}
        s_lshl_b32 {s_t0}, {s_mt}, 18
        s_lshl_b32 {s_t1}, {s_nt}, 7
        s_add_u32 {s_t0}, {s_t0}, {s_t1}
        s_add_u32 {sout[0]}, {pout[0]}, {s_t0}
        s_addc_u32 {sout[1]}, {pout[1]}, 0
        s_sub_u32 {sout[2]}, {S * D * 2}, {s_t0}
        s_mov_b32 {sout[3]}, 0x00020000
        v_and_b32 {vu1}, 31, {vl}
        s_lshl_b32 {s_t0}, {s_w}, 16
        v_lshl_add_u32 {vout}, {vu1}, 11, {s_t0}
        v_lshrrev_b32 {vu1}, 5, {vl}
        v_lshl_add_u32 {vout}, {vu1}, 4, {vout}
        v_bfe_u32 {vu1}, {vl}, 1, 3
        v_and_b32 {vu2}, 1, {vl}
        v_lshlrev_b32 {vu2}, 2, {vu2}
        v_lshl_add_u32 {vpa}, {vu1}, 4, {vu2}
        s_lshr_b32 {s_t2}, {s_mt}, 1
        s_lshl_b32 {s_t2}, {s_t2}, 9
        s_lshl_b32 {s_t0}, {s_w}, 7
        s_add_u32 {s_t2}, {s_t2}, {s_t0}
        s_and_b32 {s_t0}, {s_mt}, 1
        s_lshl_b32 {s_t0}, {s_t0}, 3
        s_add_u32 {s_t2}, {s_t2}, {s_t0}
        s_mul_i32 {s_t0}, {s_w}, 24576
        v_add_u32 {vrr}, {s_t0}, {vl16}
        s_lshl_b32 {s_t1}, {s_w}, 16
        s_add_u32 {s_t1}, {s_t1}, {224 * 4096}""")
    late2[6:8] = [late2[6:8]]
    for r in range(3):
        late2 += [f'v_lshrrev_b32 {vu1}, 10, {vA[r]}', f'v_mul_u32_u24 {vu1}, 24576, {vu1}', f'v_add_u32 {vu1}, {(2 - r) * 8192}, {vu1}', f'v_add_u32 {vrw[r]}, {vu1}, {vl16}']
    for i in range(4):
        late2 += ([f's_add_u32 {s_t0}, {s_nt}, {i}', f's_and_b32 {s_t0}, {s_t0}, 3'] if ROT else [f's_mov_b32 {s_t0}, {i}'])
        late2 += [f's_lshl_b32 {s_t0}, {s_t0}, 14', f's_add_u32 {sk[i]}, {s_t1}, {s_t0}']
    for r in range(4):
        for i in range(1, 4): late2.append(f'v_add_u32 {vA2[r][i]}, {i * 4096}, {vA[r]}')
    poll_o = f'buffer_load_dword {vpoll[0]}, {vpa}, {sfl}, {s_t2} offen sc1'
    AB = [Ab[i // 4][i % 4] for i in range(32)]
    def aload(i):
        r, t = divmod(i, 16)
        return f'buffer_load_dwordx4 {AB[i % 32]}, {vA2[r][t % 4]}, {sA}, {sk[t // 4]} offen'
    vq_ = []
    o_next = 8
    for s_ in range(LATE0 + DD, 56):
        vq_.append((s_ - NB + 1, dloads(s_)))
        if o_next < 16: vq_.append((0, oload(o_next, oslot(o_next)[2], 'WO'))); o_next += 1
    while o_next < 16: vq_.append((0, oload(o_next, oslot(o_next)[2], 'WO'))); o_next += 1
    cur = []; a_next = 0; side = list(late2); checked = False
    for st in range(LATE0, 56):
        if ptrace == -2: pf.trace()
        n0 = wrd(vwr, (st % NB) * 2048, 1)
        n1 = ([f'WAITTAG D{(st + 1) % NB}'] + wrd(vwr, ((st + 1) % NB) * 2048, 0)) if st < 55 else []
        if st == LATE0 + 1: side = [flag(3, 'FL', 'OST')] + side
        if st == LATE0 + 2: side += [x for t in range(4, 8) for x in woread(t)]
        for c in range(8):
            nb, tb = divmod(c, 4)
            p.e(gm(Ab[st % NB], nb, tb if nb == 0 else 3 - tb))
            if c == 0: p.add(n0)
            if c == 4: p.add(n1)
            if st == LATE0 + OC - 1 and c == 1: p.e(poll_o)
            if st == LATE0 + OC and c == 1:
                assert not side
                p.add(check([f'v_cmp_gt_u32 vcc, 3, {vpoll[0]}'], [poll_o], 'o')); checked = True
            if not cur and vq_ and vq_[0][0] <= st: cur = list(vq_.pop(0)[1])
            if cur:
                while cur:
                    x = cur.pop(0); p.add([x])
                    if isinstance(x, Ins): break
                while cur and not any(isinstance(y, Ins) for y in cur): p.add([cur.pop(0)])
            elif checked and not vq_ and a_next < 30 and 48 + a_next // 4 < st:
                p.e(aload(a_next)); a_next += 1
            for _ in range(2):
                if side:
                    x = side.pop(0); p.add(x if isinstance(x, list) else [x])
    assert not cur and not vq_ and checked
    if ptrace == -2: pf.trace()
    pf.stamp(6)
    def scale(r): return [f'v_mul_f32 {acc3[nb][r][i]}, {acc3[nb][r][i]}, {vog[r]}' for nb in range(2) for i in range(16)]
    p.e('WAITTAG WO')
    rds = [x for t in range(8, 16) for x in woread(t)]
    for k, x in enumerate(scale(0)):
        p.e(x)
        if k % 4 == 1: p.e(rds.pop(0))
        if k % 8 == 3 and a_next < 30: p.e(aload(a_next)); a_next += 1
    side = []
    for k, x in enumerate(scale(1) + scale(2) + scale(3)):
        side.append(x)
        if k % 3 == 0 and rds: side.append(rds.pop(0))
    assert not rds
    wr = []; fin = []
    for i in range(64):
        r, t = divmod(i, 16)
        if ptrace == -2 and i % 8 == 0: pf.trace()
        for nb in range(2):
            if i == 16 + 2 and nb == 0:
                assert not side
                p.e('s_waitcnt lgkmcnt(0)\ns_barrier')
            if i == 48 + 7 and nb == 0:
                assert not wr
                p.e('s_waitcnt lgkmcnt(0)\ns_barrier')
                fin = [f'ds_read_b128 {acc3[n_][sl][4*j:4*j+4]}, {vrr} offset:{sl * 8192 + (n_ * 4 + j) * 1024}' for n_ in range(2) for j in range(4) for sl in range(3)]
                fin += [None] * 4
                for n_ in range(2):
                    for e in range(16):
                        fin += [f'v_add_f32 {acc3[n_][0][e]}, {acc3[n_][0][e]}, {acc3[n_][1][e]}', f'v_add_f32 {acc3[n_][0][e]}, {acc3[n_][0][e]}, {acc3[n_][2][e]}']
            p.e(f'v_mfma_f32_32x32x16_bf16 {acc3[nb][r]}, {WO[t][4*nb:4*nb+4]}, {AB[i % 32]}, {acc3[nb][r]}')
            if a_next < 64 and a_next <= i + 30 and (nb == 0 or a_next < i + 28): p.e(aload(a_next)); a_next += 1
            if wr and t >= 2: p.e(wr.pop(0))
            for _ in range(5):
                if side: p.e(side.pop(0))
            for _ in range(4 if (fin and fin[0] and fin[0].startswith('ds')) else 5):
                if fin:
                    x = fin.pop(0)
                    if x: p.e(x)
        if t == 15 and r < 3:
            assert not wr
            wr = [f'ds_write_b128 {vrw[r]}, {acc3[nb][r][4*j:4*j+4]} offset:{(nb * 4 + j) * 1024}' for nb in range(2) for j in range(4)]
    assert a_next == 64
    pf.stamp(7)
    p.add([x for x in fin if x])
    for nb in range(2):
        a_ = acc3[nb][3]
        for jp in range(2):
            for i in range(4 * jp, 4 * jp + 4): p.e(f'v_pk_add_f32 {a_[2*i:2*i+2]}, {a_[2*i:2*i+2]}, {acc3[nb][0][2*i:2*i+2]}')
            o = Sx[0][8 + 4 * jp:12 + 4 * jp] if nb == 0 else P[0][4 * jp:4 * jp + 4]
            for i in range(4): p.e(f'v_cvt_pk_bf16_f32 {o[i]}, {a_[8 * jp + 2 * i]}, {a_[8 * jp + 2 * i + 1]}')
            p.e(f'v_permlane32_swap_b32 {o[0]}, {o[2]}\nv_permlane32_swap_b32 {o[1]}, {o[3]}')
            p.e(f'buffer_store_dwordx4 {o}, {vout}, {sout}, 0 offen offset:{nb * 64 + jp * 32}' + ('', ' sc1', ' nt', ' sc0 sc1')[OUTM])
    pf.stamp(8)
    pf.flush(s_w, sws, vl, vu0)
    if PRB:
        p.e(f"""
        s_cmp_lg_u32 s2, 0
        s_cbranch_scc1 {name}_probe_done
        v_readlane_b32 {s_t0}, {vtr}, {44 + 2 * PRA}
        v_readlane_b32 {s_t1}, {vtr}, {44 + 2 * PRB}
        v_readlane_b32 {s_t2}, {vtr}, 62
        s_nop 4
        s_sub_u32 {s_t0}, {s_t1}, {s_t0}
        s_min_u32 {s_t0}, {s_t0}, 20000
        s_lshl_b32 {s_t0}, {s_t0}, 2
        s_mov_b32 {s_cnt}, 200000
        {name}_probe:
        s_memrealtime {s_pt[0:2]}
        s_waitcnt lgkmcnt(0)
        s_sub_u32 {s_t1}, {s_pt[0]}, {s_t2}
        s_cmp_ge_u32 {s_t1}, {s_t0}
        s_cbranch_scc1 {name}_probe_done
        s_sub_u32 {s_cnt}, {s_cnt}, 1
        s_cmp_lg_u32 {s_cnt}, 0
        s_cbranch_scc1 {name}_probe
        {name}_probe_done:
        """)
    if dbg:
        p.e(f"""
        v_readlane_b32 {s_t0}, {vtr}, 44
        v_readlane_b32 {s_t1}, {vtr}, 45
        v_and_b32 {vu1}, 1, {vl}
        v_cmp_eq_u32 vcc, 0, {vu1}
        v_mov_b32 {vu1}, {s_t0}
        v_mov_b32 {vu2}, {s_t1}
        v_cndmask_b32 {vu1}, {vu2}, {vu1}, vcc
        v_sub_u32 {vu1}, {vtr}, {vu1}
        v_subrev_u32 {vu2}, 46, {vl}
        v_lshlrev_b32 {vu2}, 2, {vu2}
        v_cmp_gt_u32 vcc, 64, {vu2}
        v_cndmask_b32 {vu2}, 2.0, {vu2}, vcc
        s_mov_b32 {skv[0]}, {pdbg[0]}
        s_mov_b32 {skv[1]}, {pdbg[1]}
        s_movk_i32 {skv[2]}, 64
        s_lshl_b32 {s_t0}, s2, 2
        s_add_u32 {s_t0}, {s_t0}, {s_w}
        s_cmp_eq_u32 {s_t0}, {dbg - 1}
        s_cselect_b32 {s_t0}, 0, 2.0
        buffer_store_dword {vu1}, {vu2}, {skv}, {s_t0} offen
        """)
    p.e('s_endpgm')

    p.seg('slow0')
    p.e(f'{name}_slow:')
    p.e(f"""
    s_waitcnt vmcnt(0) lgkmcnt(0)
    v_mov_b32 {vu0}, 0xff800000
    v_mov_b32 {vu1}, 0xff800000
    s_mov_b32 {s_okv}, 0
    s_mov_b32 {skv[2]}, 262144
    """)
    p.seg('slow1')
    p.e(f'{name}_slow1:')
    for f in range(2): p.e(f'buffer_load_dwordx4 {K[0][4*f:4*f+4]}, {vl16}, {skv}, {s_okv} offen offset:{f * 1024}')
    for q in range(2):
        for f in range(2): p.e(qk(Sx[q], 0, q, f, '0'))
    rowmax(vu0, Sx[0], False); rowmax(vu1, Sx[1], False)
    p.e(f's_add_u32 {s_okv}, {s_okv}, 4096\ns_cmp_lt_u32 {s_okv}, 262144\ns_cbranch_scc1 {name}_slow1')
    p.seg('slow2')
    setc(0, vu0); setc(1, vu1)
    for q in range(2):
        for i in range(16): p.e(f'v_accvgpr_write_b32 {O[q][i]}, 0')
        for i in range(4): p.e(f'v_accvgpr_write_b32 {L[q][i]}, 0')
    p.e(f's_mov_b32 {s_okv}, 0')
    p.seg('slow3')
    p.e(f'{name}_slow3:')
    for f in range(2): p.e(f'buffer_load_dwordx4 {K[0][4*f:4*f+4]}, {vl16}, {skv}, {s_okv} offen offset:{f * 1024}')
    for f in range(2): p.e(f'buffer_load_dwordx4 {V[0][4*f:4*f+4]}, {vl16}, {skv}, {s_okv} offen offset:{2048 + f * 1024}')
    for q in range(2):
        for f in range(2): p.e(qk(Sx[q], 0, q, f, C[q]))
    for q in range(2):
        for i in range(16): p.e(f'v_exp_f32 {Sx[q][i]}, {Sx[q][i]}')
        for i in range(8): p.e(cvt(q, i))
        p.add([pv(q, 0), pv(q, 1), rsum(q)])
    p.e(f's_add_u32 {s_okv}, {s_okv}, 4096\ns_cmp_lt_u32 {s_okv}, 262144\ns_cbranch_scc1 {name}_slow3')
    p.seg('slow4')
    lsum()
    p.e(f's_branch {name}_epi')
    for lab, cond, reload_ in spins:
        p.seg(lab)
        p.e(f'{lab}_spin:\ns_mov_b32 {s_cnt if lab.endswith("cnt") else s_spin}, {SPIN}\n{lab}_again:\ns_sleep 2')
        p.add(reload_)
        p.e('s_waitcnt vmcnt(0)\ns_nop 1')
        p.add(cond)
        r_ = s_cnt if lab.endswith('cnt') else s_spin
        p.e(f's_nop 4\ns_cbranch_vccz {lab}_ok\ns_sub_u32 {r_}, {r_}, 1\ns_cmp_lg_u32 {r_}, 0\ns_cbranch_scc1 {lab}_again\ns_branch {lab}_ok')
    p.seg('end')
    p.e(f'{name}_end:\ns_endpgm')
    mid = ['join', 'partA', 'loop', 'loop', 'tail']
    slow = ['slow0', 'slow1', 'slow1', 'slow2', 'slow3', 'slow3', 'slow4']
    traces = []
    for wc in range(2):
        for x in ([], ['pfx']):
            traces.append(['pro'] + x + ['pro2', f'c{wc}a', f'c{wc}l1', f'c{wc}l2', f'c{wc}l1', f'c{wc}l2', f'c{wc}l1', f'c{wc}last'] + mid + ['epi'])
    traces.append(mid + slow + ['epi'])
    for lab, _, _ in spins: traces.append([lab])
    p.auto_waits(traces)
    nn = p.hazards(traces)
    return kernel_header(name) + p.text(), kernel_desc(name), dict(nops=nn, v=va.p, a=aa.p, s=max(sa.p, s_hi))

if __name__ == '__main__':
    import sys
    NAME = 'gated_mix__softmax_full_mha__glu_gated_bilinear__prompt'
    REF = f'cdna_kernels/{NAME}.s.ref'
    dst = sys.argv[1]
    kw = {a.split('=')[0]: float(a.split('=')[1]) if '.' in a else int(a.split('=')[1]) for a in sys.argv[2:] if '=' in a}
    t, d, info = gen_fused(NAME + '_kernel', prof='prof' in sys.argv, force_slow='slow' in sys.argv, **kw)
    print(info, file=sys.stderr)
    head = [l for l in open(REF).read().split('\n') if l.startswith(';') and '@launch' not in l]
    out = '\n'.join(head) + f'\n; @launch grid=(256,1,1) block=(256,1,1) lds={F_LDS}\n.amdgcn_target "amdgcn-amd-amdhsa--gfx950"\n' + t + d
    open(dst, 'w').write(out)
```

```python
from gen_common import *

X0, X1, W0, W1, QS = 0, 32768, 65536, 106496, 147456
F_LDS = 163840
WS_FL = 33 << 20
DBG_CNT = 64
SPIN = 40000

def gen_fused(name, prof=False, pfd=3, cq=8, cg=6.5, cx=4, NB=8, DA=4, DW=3, RP=6, PM=36, HP=1.25, force_slow=False, ptrace=0, dbg=0, exp_=0, VSP=2, PFP=18, OC=7, KP=1, H0=2, ROT=0, CPF=1, OUTM=0, CP0=1, CP2=0, FG=3, TLB=0, EV=1, DL=6, PA=48, PK=0, PKR=1, AW=1, KF=100, KC=5, FOFF=0, S1P=10, MWT=0, LM1=0, LM2=0, PO=3, LP=0, PRE=-1, PF0=0, PD0=3, xpf=1, F0=0, FS=1.0, GD=2, SMC=16, VMC=8, VPEN=16, MW=1, PRA=0, PRB=0, PG=3, E0=11, st_mod=' sc1'):
    pfm = 1
    lm1 = ('', ' sc1', ' nt', ' sc0')[LM1]; lm2 = ('', ' sc1', ' nt', ' sc0')[LM2]
    p = Prog()
    sa = Alloc('s', 4, 102); va = Alloc('v', 1, 256); aa = Alloc('a', 0, 256)
    ptr = sa(16, 4)
    px, pqkv, pwo, pwg, pwu, pwd, pgw = ptr[0:2], ptr[2:4], ptr[4:6], ptr[8:10], ptr[10:12], ptr[12:14], ptr[14:16]
    pod = sa(4, 4); pout, pdbg = pod[0:2], pod[2:4]
    pws = sa(2); smask = sa(2)
    sws = sa(4); sfl = sa(4); sdbg = sa(4)
    s_mb, s_h, s_w, s_wr, s_wc, s_t0, s_t1, s_t2, s_cnt, s_tr, s_hb = [sa() for _ in range(11)]
    s_pt = sa(4, 2)
    s_base = sa.p
    sx = sa(4); sq = sa(4); sg = sa(4); spf = sa(4); sp2 = sa(4); sp3 = sa(4)
    s_c0, s_c1, s_ox, s_oq, s_og, s_pfo, s_pfs, s_gs, s_grp, s_ano = [sa() for _ in range(10)]
    s_mx, s_mw, s_msk = sa(), sa(), sa()
    sp4 = sa(4)
    s_hi = sa.p

    vl, vpd, vflag, vtr, vflk = [va() for _ in range(5)]
    v_base = va.p
    pf = Prof2(p, prof, s_pt, vtr, s_tr)
    vdx = [va() for _ in range(8)]; vdq = [va() for _ in range(2)]; vdq.append(vdq[0]); vdg = [va() for _ in range(7)]
    vxr = [va() for _ in range(2)]; vqr = [va() for _ in range(2)]; vgr = [va() for _ in range(2)]
    vt0, vt1, vt2, vt3, vpf = [va() for _ in range(5)]
    vcnt = va(); vwo = va()
    vtmp = va(28, 4)
    assert vtmp.a == 36
    xlo = [[aa(8, 4) for _ in range(4)] for _ in range(2)]; xhi = [aa(8, 4) for _ in range(4)]
    def xf(st, m, ks): return (xlo[st][m] if m < 4 else xhi[m - 4])[4 * ks:4 * ks + 4]
    NSLOT = 4; DIST = 3
    wf = [aa(8, 4) for _ in range(NSLOT)]
    acc = [[None] * 8 for _ in range(10)]
    for n in [0, 1, 6, 7, 8, 9, 2, 3, 4, 5]:
        for m in range(8):
            acc[n][m] = va(4, 4) if va.p + 4 <= 256 else aa(4, 4)

    def lines(s): return [x.strip() for x in s.strip().split('\n')]
    def dma_x(st):
        L = []
        for i in range(8):
            pre = [f's_add_u32 m0, {s_mx}, {(X0, X1)[st] + (i // 4) * 4096}'] if i % 4 == 0 else []
            L.append((pre, Ins(f'buffer_load_dwordx4 {vdx[i]}, {sx}, {s_ox} offen offset:{(i % 4) * 1024}{lm1} lds', f'S{st}')))
        return L
    def dma_w(st):
        L = []
        for i in range(10):
            pre = [f's_add_u32 m0, {s_mw}, {(W0, W1)[st] + (i // 4) * 4096}'] if i % 4 == 0 else []
            v, sr, so = (vdq[i - 7], sq, s_oq) if i >= 7 else (vdg[i], sg, s_og)
            L.append((pre, Ins(f'buffer_load_dwordx4 {v}, {sr}, {so} offen offset:{(i % 4) * 1024}{lm1} lds', f'S{st}')))
        return L
    def emit(lst):
        for pre, ins in lst:
            p.add(pre); p.add([ins])
    adv = [f's_add_u32 {s_oq}, {s_oq}, {64 * 6144}', f's_add_u32 {s_og}, {s_og}, {64 * 7168}', f's_add_u32 {s_ox}, {s_ox}, 128']

    p.seg('pro')
    p.e(f"""
    s_cmp_ge_u32 s2, 256
    s_cbranch_scc1 {name}_end
    """)
    if ptrace == 3:
        p.e(f's_memtime {s_pt[2:4]}\ns_waitcnt lgkmcnt(0)\ns_mov_b32 {s_hb}, {s_pt[2]}')
    p.e(f"""
    s_load_dwordx16 {ptr}, s[0:1], 0
    s_load_dwordx4 {pod}, s[0:1], 64
    s_load_dwordx2 {pws}, s[0:1], 80
    v_lshrrev_b32 {vt0}, 6, v0
    v_and_b32 {vl}, 63, v0
    s_lshr_b32 {s_t1}, s2, 3
    v_readfirstlane_b32 {s_w}, {vt0}
    s_and_b32 {s_mb}, {s_t1}, 7
    s_and_b32 {s_t0}, s2, 7
    s_lshr_b32 {s_t1}, {s_t1}, 3
    s_lshl_b32 {s_h}, {s_t0}, 2
    s_add_u32 {s_h}, {s_h}, {s_t1}
    s_lshr_b32 {s_wr}, {s_w}, 1
    s_and_b32 {s_wc}, {s_w}, 1
    """)
    if CP0:
        p.e(f"""
        s_getpc_b64 {sp3[0:2]}
        {name}_pcs:
        s_and_b32 {sp3[1]}, {sp3[1]}, 0xffff
        s_mov_b32 {sp3[2]}, {name}_join-{name}_pcs
        s_mov_b32 {sp3[3]}, 0x00020000
        s_lshr_b32 {s_t0}, s2, 3
        s_lshl_b32 {s_t0}, {s_t0}, 2
        s_add_u32 {s_t0}, {s_t0}, {s_w}
        s_lshl_b32 {s_t0}, {s_t0}, 7
        v_lshl_add_u32 {vwo}, {vl}, 14, {s_t0}
        """)
        p.add([Ins(f'buffer_load_dword {vpd}, {vwo}, {sp3}, 0 offen', 'pf')])
    vxp, vgp = vtmp[0], vtmp[1]
    p.e(f"""
    v_and_b32 {vt0}, 7, {vl}
    v_lshrrev_b32 {vt1}, 3, {vl}
    v_mul_u32_u24 {vt2}, 86, {vt1}
    v_lshrrev_b32 {vt2}, 8, {vt2}
    v_mad_i32_i24 {vt1}, {vt2}, -3, {vt1}
    v_lshl_add_u32 {vt0}, {vt2}, 6, {vt0}
    s_lshl_b32 {s_t0}, {s_mb}, 3
    v_add_u32 {vt0}, {s_t0}, {vt0}
    s_cmp_eq_u32 {s_w}, 3
    s_movk_i32 {s_c0}, 7168
    s_cmov_b32 {s_c0}, 6144
    s_movk_i32 {s_c1}, 108
    s_cmov_b32 {s_c1}, 2048
    v_mul_u32_u24 {vt0}, {s_c0}, {vt0}
    v_mad_u32_u24 {vxp}, {vt1}, {s_c1}, {vt0}
    v_cmp_gt_u32 vcc, 48, {vl}
    s_lshl_b32 {s_t0}, {s_t1}, 17
    v_lshl_add_u32 {vt0}, {vl}, 11, {s_t0}
    v_cndmask_b32 {vxp}, 2.0, {vxp}, vcc
    s_cmp_eq_u32 {s_w}, 0
    s_cselect_b64 vcc, -1, 0
    v_cndmask_b32 {vxp}, {vxp}, {vt0}, vcc
    """)
    x_addr = lines(f"""
    v_lshrrev_b32 {vt0}, 3, {vl}
    v_and_b32 {vt1}, 7, {vl}
    v_lshrrev_b32 {vt2}, 4, {vl}
    v_xor_b32 {vt1}, {vt1}, {vt2}
    v_lshlrev_b32 {vt3}, 11, {vt0}
    s_lshl_b32 {s_c0}, {s_w}, 17
    v_add_u32 {vt3}, {s_c0}, {vt3}
    v_lshl_add_u32 {vdx[0]}, {vt1}, 4, {vt3}
    v_xor_b32 {vt1}, 4, {vt1}
    v_lshl_add_u32 {vdx[1]}, {vt1}, 4, {vt3}
    v_add_u32 {vdx[1]}, {16384 - 1024}, {vdx[1]}
    s_lshl_b32 {s_mx}, {s_w}, 13
    s_mov_b32 {s_ox}, 0""") + [f'v_add_u32 {vdx[i]}, {(i - i % 2) * 16384 - (i % 4 - i % 2) * 1024}, {vdx[i % 2]}' for i in range(2, 8)]
    q_addr = lines(f"""
    v_lshrrev_b32 {vt0}, 2, {vl}
    v_and_b32 {vt2}, 2, {vt2}
    v_and_b32 {vt1}, 3, {vl}
    v_xor_b32 {vt1}, {vt1}, {vt2}
    s_lshl_b32 {s_c0}, {s_w}, 4
    v_add_u32 {vt0}, {s_c0}, {vt0}
    v_mul_u32_u24 {vt0}, 6144, {vt0}
    v_lshl_add_u32 {vdq[1]}, {vt1}, 4, {vt0}
    v_add_u32 {vdq[0]}, 1024, {vdq[1]}
    s_mul_i32 {s_mw}, {s_w}, 10240
    s_mov_b32 {s_oq}, 0
    s_mov_b32 {s_og}, 0""")
    if PRE >= 0: p.add(x_addr + q_addr)
    def gu_offsets():
        L = [lines(f"""
        s_mul_i32 {s_t0}, {s_wc}, {32 * 7168}
        s_movk_i32 {s_c0}, 6944
        s_movk_i32 {s_c1}, 28672
        v_mul_u32_u24 {vt3}, 4682, {vl}
        v_lshl_add_u32 {vtmp[2]}, {vl}, 4, {s_t0}""")]
        for j in range(7):
            tj = vt3; q_ = []
            if j:
                q_.append(f'v_add_u32 {vt0}, {64 * j * 4682}, {vt3}'); tj = vt0
            q_ += lines(f"""
            v_bfe_u32 {vt1}, {tj}, 18, 1
            v_bfe_u32 {vt2}, {tj}, 19, 1
            v_lshrrev_b32 {vt0}, 16, {tj}
            v_sub_u32 {vt1}, {vt1}, {vt2}
            v_mad_u32_u24 {vdg[j]}, {vt0}, {s_c0}, {vtmp[2]}
            v_mad_i32_i24 {vdg[j]}, {vt1}, {s_c1}, {vdg[j]}""")
            if j == 3: q_.append(f'v_add_u32 {vtmp[2]}, 4096, {vtmp[2]}')
            L.append(q_)
        return L
    gu = gu_offsets()
    if PRE >= 1:
        for q_ in gu: p.add(q_)
    PD = pfd
    gpf_addr = lines(f"""
        s_cmp_eq_u32 {s_w}, 0
        s_cselect_b32 {s_grp}, 12, 14
        s_lshl_b32 {s_pfs}, {s_grp}, 15
        s_cmp_eq_u32 {s_w}, 3
        s_cselect_b32 {s_grp}, 8, {s_grp}
        s_cselect_b32 {s_pfs}, 0x80, {s_pfs}
        s_cselect_b32 {s_ano}, 11, 7
        s_mul_i32 {s_t1}, {s_grp}, s2
        v_and_b32 {vt1}, 15, {vl}
        v_add_u32 {vt0}, {s_t1}, {vt1}
        v_lshlrev_b32 {vpf}, {s_ano}, {vt0}
        v_lshrrev_b32 {vt0}, 4, {vl}
        v_mul_lo_u32 {vt0}, {vt0}, {s_pfs}
        v_add_u32 {vgp}, {vt0}, {vpf}
        v_cmp_gt_u32 vcc, {s_grp}, {vt1}
        v_cmp_gt_u32 {smask}, {16 * (PD0 - 1)}, {vl}
        s_and_b64 {smask}, {smask}, vcc
        v_cndmask_b32 {vgp}, 2.0, {vgp}, {smask}
        v_cmp_gt_u32 vcc, {s_grp}, {vl}
        s_mul_i32 {s_pfo}, {s_pfs}, {PD0}
        v_cndmask_b32 {vpf}, 2.0, {vpf}, vcc""")
    gpf_issue = lines(f"""
        s_cmp_eq_u32 {s_w}, 0
        s_cselect_b64 {spf[0:2]}, {pqkv}, {pwg}
        s_cmp_eq_u32 {s_w}, 2
        s_cselect_b64 {spf[0:2]}, {pwu}, {spf[0:2]}
        s_cmp_eq_u32 {s_w}, 3
        s_cselect_b64 {spf[0:2]}, {px}, {spf[0:2]}
        s_lshl_b32 {spf[2]}, {s_grp}, 19""") + [Ins(f'buffer_load_dword {vpd}, {vgp}, {spf}, {s_pfs} offen', 'pf')]
    def pfetch():
        return [Ins(f'buffer_load_dword {vpd}, {vpf}, {spf}, {s_pfo} offen', 'pf'), f's_add_u32 {s_pfo}, {s_pfo}, {s_pfs}']
    def pfetch_d():
        return [Ins(f'buffer_load_dword {vpd}, {vt3}, {sp2}, {s_c1} offen', 'pf'), f's_add_u32 {s_c1}, {s_c1}, {1024 * DL * 128}']
    rd_addr = lines(f"""
    v_and_b32 {vt0}, 15, {vl}
    v_lshrrev_b32 {vt1}, 4, {vl}
    v_lshrrev_b32 {vt2}, 1, {vt0}
    v_xor_b32 {vt2}, {vt1}, {vt2}
    s_lshl_b32 {s_t0}, {s_wr}, 14
    v_lshl_add_u32 {vt3}, {vt0}, 7, {s_t0}
    v_lshl_add_u32 {vxr[0]}, {vt2}, 4, {vt3}
    v_xor_b32 {vxr[1]}, 64, {vxr[0]}
    v_and_b32 {vt3}, 3, {vt0}
    v_lshlrev_b32 {vt3}, 3, {vt3}
    v_lshrrev_b32 {vt0}, 2, {vt0}
    v_lshrrev_b32 {vt2}, 1, {vt1}
    v_and_b32 {vt1}, 1, {vt1}
    v_mul_u32_u24 {vqr[0]}, 10240, {vt2}
    v_mul_u32_u24 {vqr[1]}, {512 + 32}, {vt1}
    v_add3_u32 {vqr[0]}, {vqr[0]}, {vqr[1]}, {vt3}
    v_lshl_add_u32 {vqr[0]}, {vt0}, 6, {vqr[0]}
    s_lshl_b32 {s_t0}, {s_wc}, 10
    s_sub_u32 {s_t0}, {W0 + 8192}, {s_t0}
    v_add_u32 {vqr[0]}, {s_t0}, {vqr[0]}
    v_xor_b32 {vqr[1]}, 32, {vqr[0]}
    v_lshl_add_u32 {vt0}, {vt1}, 2, {vt0}
    v_lshl_add_u32 {vt0}, {vt2}, 4, {vt0}
    v_mul_u32_u24 {vt0}, 224, {vt0}
    s_mul_i32 {s_t0}, {s_wc}, 96
    s_add_u32 {s_t0}, {s_t0}, {W0}
    v_add3_u32 {vgr[0]}, {vt0}, {vt3}, {s_t0}
    v_add_u32 {vgr[1]}, 20480, {vgr[0]}""")
    if PRE >= 2 or PF0: p.add(gpf_addr)
    if PRE >= 3: p.add(rd_addr)
    p.e(f"""
    s_lshl_b32 {s_t0}, {s_mb}, 19
    s_lshl_b32 {s_t1}, {s_h}, 6
    s_mul_i32 {s_t2}, {s_h}, 224
    s_mov_b32 {sx[3]}, 0x00020000
    s_mov_b32 {sq[3]}, 0x00020000
    s_mov_b32 {sg[3]}, 0x00020000
    s_mov_b32 {spf[3]}, 0x00020000
    s_sub_u32 {sx[2]}, {S * D * 2}, {s_t0}
    s_sub_u32 {sq[2]}, {D * 3072 * 2}, {s_t1}
    s_sub_u32 {sg[2]}, {D * F * 2}, {s_t2}
    s_waitcnt lgkmcnt(0)
    """)
    pf.stamp(0)
    pf.trace_init(vtr, s_tr)
    if ptrace == 3:
        p.e(f'v_writelane_b32 {vtr}, {s_hb}, 0\ns_mov_b32 {s_tr}, 1')
        pf.trace()
    p.e(f"""
    s_add_u32 {sx[0]}, {px[0]}, {s_t0}
    s_addc_u32 {sx[1]}, {px[1]}, 0
    s_add_u32 {sq[0]}, {pqkv[0]}, {s_t1}
    s_addc_u32 {sq[1]}, {pqkv[1]}, 0
    s_cmp_ge_u32 {s_w}, 2
    s_cselect_b64 {sg[0:2]}, {pwu}, {pwg}
    s_add_u32 {sg[0]}, {sg[0]}, {s_t2}
    s_addc_u32 {sg[1]}, {sg[1]}, 0
    s_cmp_eq_u32 {s_w}, 3
    s_cselect_b64 {spf[0:2]}, {sq[0:2]}, {sg[0:2]}
    s_cselect_b32 {spf[2]}, {sq[2]}, {sg[2]}
    s_cmp_eq_u32 {s_w}, 0
    s_cselect_b64 {spf[0:2]}, {sx[0:2]}, {spf[0:2]}
    s_cselect_b32 {spf[2]}, {sx[2]}, {spf[2]}
    """)
    if xpf: p.add([Ins(f'buffer_load_dword {vpd}, {vxp}, {spf}, 0 offen', 'pf')])
    if PF0: p.add(gpf_issue)
    if ptrace > 0: pf.trace()
    if PRE < 0: p.add(x_addr)
    emit(dma_x(0))
    if ptrace > 0: pf.trace()
    if PRE < 0: p.add(q_addr)
    w0 = dma_w(0)
    p.e(f's_add_u32 m0, {s_mw}, {W0 + 4096}')
    emit(w0[7:])
    if PRE < 1: p.add(gu[0])
    for j in range(7):
        if PRE < 1: p.add(gu[j + 1])
        emit([w0[j]])
    p.add(adv)
    if ptrace > 0: pf.trace()
    emit((dma_w(1) + dma_x(1))[:S1P])
    if PRE < 2 and not PF0: p.add(gpf_addr)
    if not PF0: p.add(gpf_issue)
    if PRE < 3: p.add(rd_addr)
    gx = [vtmp[4 * i:4 * i + 4] for i in range(4)]; gw = [vtmp[16:20], vtmp[20:24]]; t = vtmp[24:28]; z = [vt0, vt1]
    flag_setup = [[f's_add_u32 {sfl[0]}, {pws[0]}, {WS_FL}', f's_addc_u32 {sfl[1]}, {pws[1]}, 0']] + lines(f"""
    s_movk_i32 {sfl[2]}, 8192
    s_mov_b32 {sfl[3]}, 0x00020000
    s_mov_b32 {sws[0]}, {pws[0]}
    s_mov_b32 {sws[1]}, {pws[1]}
    s_mov_b32 {sws[2]}, {WS_SIZE}
    s_mov_b32 {sws[3]}, 0x00020000
    s_mov_b32 {sp2[3]}, 0x00020000
    s_lshl_b32 {s_t0}, {s_mb}, 5
    s_add_u32 {s_t0}, {s_t0}, {s_h}
    s_lshl_b32 {s_gs}, {s_t0}, 7
    s_lshl_b32 {s_t0}, {s_t0}, 2
    s_add_u32 {s_t0}, {s_t0}, {s_w}
    s_lshl_b32 {s_t0}, {s_t0}, 2
    v_mov_b32 {vt0}, {s_t0}
    v_cmp_eq_u32 vcc, 0, {vl}
    v_mov_b32 {vt3}, 0
    v_cndmask_b32 {vflag}, 2.0, {vt0}, vcc
    s_lshl_b32 {s_t0}, {s_h}, 3
    s_add_u32 {s_t0}, {s_t0}, {s_mb}
    s_lshl_b32 {s_t0}, {s_t0}, 2
    s_add_u32 {s_t0}, {s_t0}, {s_w}
    s_lshl_b32 {s_t0}, {s_t0}, 2
    s_add_u32 {s_t0}, {s_t0}, 4096
    v_mov_b32 {vt0}, {s_t0}
    buffer_store_dword {vt3}, {vflag}, {sfl}, 0 offen sc1
    v_cndmask_b32 {vflk}, 2.0, {vt0}, vcc
    s_lshl_b32 {s_t1}, {s_w}, 3
    buffer_store_dword {vt3}, {vflk}, {sfl}, 0 offen sc1
    s_add_u32 {s_gs}, {s_gs}, {s_t1}
    s_add_u32 {s_gs}, {s_gs}, {WS_G}
    s_lshl_b32 {s_t0}, {s_h}, 3
    s_lshl_b32 {s_t1}, {s_w}, 1
    s_add_u32 {s_t0}, {s_t0}, {s_t1}
    s_lshl_b32 {s_t2}, {s_t0}, 11
    s_mov_b32 {s_msk}, 0xffff0000
    v_lshlrev_b32 {z[0]}, 5, {vl}""")
    if ptrace > 0: pf.trace()
    p.e('WAITTAG S0')
    if ptrace > 0: pf.trace()
    p.e('s_barrier')
    if ptrace > 0: pf.trace()
    pf.stamp(1)

    def gate_ops():
        L = []
        for r in range(2):
            for j in range(8):
                xr = gx[2 * r + j // 4][j % 4]; wr_ = gw[j // 4][j % 4]
                L += [f'v_lshlrev_b32 {t[0]}, 16, {xr}', f'v_lshlrev_b32 {t[1]}, 16, {wr_}',
                      f'v_and_b32 {t[2]}, {s_msk}, {xr}', f'v_and_b32 {t[3]}, {s_msk}, {wr_}',
                      f'v_mul_f32 {t[0]}, {t[0]}, {t[1]}', f'v_mul_f32 {t[2]}, {t[2]}, {t[3]}',
                      f'v_cvt_pk_bf16_f32 {t[0]}, {t[0]}, {t[2]}', f'v_lshlrev_b32 {t[1]}, 16, {t[0]}',
                      f'v_and_b32 {t[2]}, {s_msk}, {t[0]}']
                if j == 0: L.append(f'v_add_f32 {z[r]}, {t[1]}, {t[2]}')
                else: L += [f'v_add_f32 {t[1]}, {t[1]}, {t[2]}', f'v_add_f32 {z[r]}, {z[r]}, {t[1]}']
        for mode in ('quad_perm:[1,0,3,2]', 'quad_perm:[2,3,0,1]', 'row_half_mirror', 'row_mirror'):
            for r in range(2): L.append(f'v_add_f32_dpp {z[r]}, {z[r]}, {z[r]} {mode} row_mask:0xf bank_mask:0xf')
        for op in ('v_permlane16_swap_b32', 'v_permlane32_swap_b32'):
            for r in range(2): L.append(f'v_mov_b32 {t[r]}, {z[r]}')
            for r in range(2): L.append(f'{op} {t[r]}, {z[r]}')
            for r in range(2): L.append(f'v_add_f32 {z[r]}, {z[r]}, {t[r]}')
        L += f"""v_and_b32 {t[1]}, 1, {vl}
        v_cmp_eq_u32 vcc, 1, {t[1]}
        v_and_b32 {t[3]}, 2, {vl}
        v_cndmask_b32 {t[0]}, {z[0]}, {z[1]}, vcc
        v_cvt_pk_bf16_f32 {t[0]}, {t[0]}, {t[0]}
        v_and_b32 {t[0]}, {s_msk}, {t[0]}
        v_mul_f32 {t[0]}, {hex(f32bits(-math.log2(math.e)))}, {t[0]}
        v_exp_f32 {t[0]}, {t[0]}
        v_cmp_eq_u32 vcc, 2, {t[3]}
        v_add_f32 {t[0]}, 1.0, {t[0]}
        v_rcp_f32 {t[0]}, {t[0]}
        v_lshlrev_b32 {t[3]}, 4, {t[3]}
        v_cvt_pk_bf16_f32 {t[0]}, {t[0]}, {t[0]}
        v_and_b32 {t[0]}, {s_msk}, {t[0]}
        v_sub_f32 {t[2]}, 1.0, {t[0]}
        v_cvt_pk_bf16_f32 {t[2]}, {t[2]}, {t[2]}
        v_and_b32 {t[2]}, {s_msk}, {t[2]}
        v_cndmask_b32 {t[0]}, {t[0]}, {t[2]}, vcc
        v_lshl_add_u32 {t[3]}, {t[1]}, 2, {t[3]}
        v_cmp_gt_u32 vcc, 4, {vl}
        v_cndmask_b32 {t[3]}, 2.0, {t[3]}, vcc
        buffer_store_dword {t[0]}, {t[3]}, {sws}, {s_gs} offen{st_mod}""".split('\n')
        return [x.strip() for x in L]

    def wread(n, st, wc):
        slot = wf[(10 * st + n) % NSLOT]
        nq = 4 if wc == 0 else 2
        L = []
        for ks in range(2):
            if n < nq: base = vqr[n % 2]; off = ks * 20480 + (1024 if (wc == 0 and n < 2) else 0); so = 256
            else: base = vgr[(n - nq) % 2]; off = ks * 10240 + ((n - nq) // 2) * 32; so = 1792
            off += st * (W1 - W0)
            L += [f'ds_read_b64_tr_b16 {slot[4 * ks + 2 * s:4 * ks + 2 * s + 2]}, {base} offset:{off + s * so}' for s in range(2)]
        return L
    def xread(m, ks, st):
        return f'ds_read_b128 {xf(st, m, ks)}, {vxr[ks]} offset:{st * (X1 - X0) + m * 2048}'

    for m in range(2):
        for ks in range(2): p.e(xread(m, ks, 0))
    p.e(f's_cmp_eq_u32 {s_wc}, 1')
    p.e(f's_cbranch_scc1 {name}_c1')

    def stage(st, wc, first=False, last=False, extra=None, fill=None, estep=2, postbar=None, nodma1=False, early=None, dens=2):
        slots = {}
        for j in range(10):
            jj = j + DIST
            if jj < 10: rd = wread(jj, st, wc)
            elif last: continue
            else: rd = wread(jj - 10, st ^ 1, wc)
            for i, x in enumerate(rd): place(slots, 16 * j + ((0, 2, 4, 6) if j < 9 else (0, 11, 13, 15))[i], x)
        bar = 16 * (10 - DIST)
        if not last:
            for i in range(8): place(slots, bar + 8 + (0, 2, 4, 6, 16, 18, 20, 22)[i], xread(i // 2, i % 2, st ^ 1))
            for i in range(8): place(slots, 144 + (2, 3, 4, 5, 7, 8, 9, 10)[i], xread(7 - i // 2, i % 2, st ^ 1))
        pos = []; c = 1.0
        for k in range(18):
            pos.append(int(c)); c += cg if k < 7 else (cq if k < 10 else cx)
        endc = int(c) - (160 - bar)
        pos0 = pos
        if first:
            sh = pos[S1P] - 1
            pos = [(int(F0 + (x - sh) * FS) + 160 - bar) if k >= S1P else -1 for k, x in enumerate(pos)]; endc = int(F0 + (endc + 160 - bar - sh) * FS)
        if not last:
            dl = dma_w(st ^ 1) + dma_x(st ^ 1)
            for k in range(18):
                c = pos[k] - (160 - bar)
                if c < 0: continue
                for x in dl[k][0]: place(slots, max(c - 1, 0), x)
                place(slots, c, dl[k][1])
            for i, x in enumerate(adv): place(slots, endc - 2 + i, x)
            if first: pos = pos0
            dl = dma_w(st) + dma_x(st)
            for k in range(18):
                c = bar + pos[k]
                if c >= 160 or nodma1: continue
                for x in dl[k][0]: place(slots, c - 1, x)
                place(slots, c, dl[k][1])
        if early:
            c = (pos[PFP] - (0 if first else 160 - bar) - 2) if PFP < 18 else endc + 1
            for x in early: place(slots, max(c, 0), x); c += 1
            if PFP >= 18: endc = c + 1
        c = endc + 1
        for x in (extra or []):
            if isinstance(x, list):
                for y in x: place(slots, c, y)
                c += estep; continue
            place(slots, c, x)
            c += 3 if (isinstance(x, Ins) or x.startswith('buffer')) else estep
        assert c < bar
        for i, x in enumerate(postbar or []): place(slots, bar + 13 + 2 * i, x)
        if FOFF:
            for c in sorted(slots):
                if c % 2 == 0 and c + 1 < 160 and len(slots.get(c + 1, [])) + len(slots[c]) <= FOFF:
                    slots[c + 1] = slots[c] + slots.get(c + 1, []); slots[c] = []
        fill = [x if isinstance(x, tuple) else (0, x) for x in (fill or [])]
        for c in range(160):
            n, r = divmod(c, 16); mi, ks = divmod(r, 2)
            m = mi if n % 2 == 0 else 7 - mi
            if c == bar and not last:
                p.e(f'WAITTAG S{st ^ 1} LGKM0')
                p.e('s_barrier')
                if ptrace > 1: pf.trace()
            if MWT and not first and c == 8: p.e('s_waitcnt lgkmcnt(4)')
            if MWT and r == 0 and 0 < n and c != bar and not (first and n < 3) and not last: p.e(f's_waitcnt lgkmcnt({8 if n <= 7 else 12})')
            w = wf[(10 * st + n) % NSLOT][4 * ks:4 * ks + 4]; x = xf(st, m, ks)
            a, b = (x, w) if (wc == 1 and n < 2) else (w, x)
            cin = '0' if (first and ks == 0) else str(acc[n][m])
            p.e(f'v_mfma_f32_16x16x32_bf16 {acc[n][m]}, {a}, {b}, {cin}')
            here = slots.get(c, [])
            p.add(here)
            if c >= 1:
                for _ in range(min(dens, 2 - len(here))):
                    if fill and fill[0][0] <= c:
                        x = fill.pop(0)[1]; p.add(x if isinstance(x, list) else [x])
        return [x[1] for x in fill]

    def toreg(tile, tmp):
        if tile.k == 'v': return tile
        for i in range(4): p.e(f'v_accvgpr_read_b32 {tmp[i]}, {tile[i]}')
        return tmp
    def pack(o, t0, t1):
        p.e(f'v_cvt_pk_bf16_f32 {o[0]}, {t0[0]}, {t0[1]}\nv_cvt_pk_bf16_f32 {o[1]}, {t0[2]}, {t0[3]}')
        p.e(f'v_cvt_pk_bf16_f32 {o[2]}, {t1[0]}, {t1[1]}\nv_cvt_pk_bf16_f32 {o[3]}, {t1[2]}, {t1[3]}')

    def pf_setup():
        L = f"""s_lshl_b32 {s_t0}, s2, 2
        s_add_u32 {s_t0}, {s_t0}, {s_w}
        s_mul_i32 {s_t1}, {s_t0}, {DL * 128}
        v_lshl_add_u32 {vt3}, {vl}, 7, {s_t1}
        v_cmp_gt_u32 vcc, {DL}, {vl}
        s_mov_b32 {sp2[0]}, {pwd[0]}
        s_mov_b32 {sp2[1]}, {pwd[1]}
        s_mov_b32 {sp2[2]}, {F * D * 2}
        v_cndmask_b32 {vt3}, 2.0, {vt3}, vcc
        s_mov_b32 {s_c1}, 0""".split('\n')
        return [x.strip() for x in L]
    def pf3_setup():
        L = f"""s_mov_b32 {sp3[0]}, {pgw[0]}
        s_mov_b32 {sp3[1]}, {pgw[1]}
        s_movk_i32 {sp3[2]}, 2048
        s_mov_b32 {sp3[3]}, 0x00020000
        v_lshlrev_b32 {vwo}, 7, {vl}""".split('\n')
        L2 = f"""s_lshl_b32 {s_t0}, s2, 2
        s_add_u32 {s_t0}, {s_t0}, {s_w}
        s_lshl_b32 {s_t1}, {s_t0}, 11
        v_lshl_add_u32 {vwo}, {vl}, 7, {s_t1}
        v_cmp_gt_u32 {smask}, 16, {vl}
        s_mov_b32 {sp3[0]}, {pwo[0]}
        s_mov_b32 {sp3[1]}, {pwo[1]}
        s_mov_b32 {sp3[2]}, {D * D * 2}
        v_cndmask_b32 {vwo}, 2.0, {vwo}, {smask}""".split('\n')
        return [x.strip() for x in L] + [Ins(f'buffer_load_dword {vpd}, {vwo}, {sp3}, 0 offen', 'pf')] + [x.strip() for x in L2]
    def tlb_touch():
        return [f's_cmp_eq_u32 {s_w}, 1', f's_cselect_b32 {sp2[0]}, {pout[0]}, {pws[0]}', f's_cselect_b32 {sp2[1]}, {pout[1]}, {pws[1]}',
                f's_mov_b32 {sp2[2]}, {34 << 20}', f's_cmov_b32 {sp2[2]}, {S * D * 2}', f's_cmp_lt_u32 {s_w}, 2', f's_cselect_b32 {s_t0}, 0, 2.0',
                f'v_lshlrev_b32 {vt3}, 20, {vl}', Ins(f'buffer_load_dword {vpd}, {vt3}, {sp2}, {s_t0} offen sc1', 'pf')]
    pf_wo = [f's_cmp_eq_u32 {s_cnt}, 2', f's_cselect_b32 {s_t0}, 0, 2.0', Ins(f'buffer_load_dword {vpd}, {vwo}, {sp3}, {s_t0} offen', 'pf')]
    gate_sel = [f's_cmp_eq_u32 {s_cnt}, 0', f's_cselect_b32 {s_t0}, {s_t2}, 2.0', f's_cselect_b32 {s_t1}, 0, 2.0',
                f's_cselect_b32 {sp3[0]}, {pgw[0]}, {sp3[0]}', f's_cselect_b32 {sp3[1]}, {pgw[1]}, {sp3[1]}', f's_cselect_b32 {sp3[2]}, 0x800, {sp3[2]}']
    gate_loads = [f'buffer_load_dwordx4 {gw[i]}, {z[0]}, {sp3}, {s_t1} offen offset:{16 * i}' for i in range(2)] + \
                 [f'buffer_load_dwordx4 {gx[i]}, {z[0]}, {sx}, {s_t0} offen offset:{(i // 2) * 2048 + (i % 2) * 16}' for i in range(4)]

    spins = []
    def check(cond_lines, reload_lines, tag):
        lab = f'{name}_{tag}'
        spins.append((lab, cond_lines, reload_lines))
        return cond_lines + [f's_cbranch_vccnz {lab}_spin', f'{lab}_ok:']

    def lines(s): return [x.strip() for x in s.strip().split('\n')]
    def rd(tile, tmp):
        if tile.k == 'v': return tile, []
        return tmp, [f'v_accvgpr_read_b32 {tmp[i]}, {tile[i]}' for i in range(4)]
    def packl(o, t0, t1):
        return [f'v_cvt_pk_bf16_f32 {o[0]}, {t0[0]}, {t0[1]}', f'v_cvt_pk_bf16_f32 {o[1]}, {t0[2]}, {t0[3]}',
                f'v_cvt_pk_bf16_f32 {o[2]}, {t1[0]}, {t1[1]}', f'v_cvt_pk_bf16_f32 {o[3]}, {t1[2]}, {t1[3]}']
    def mul4(d, a_, b_, pk):
        if pk: return [f'v_pk_mul_f32 {d[2*i:2*i+2]}, {a_[2*i:2*i+2]}, {b_ if b_.k == "s" else b_[2*i:2*i+2]}' for i in range(2)]
        return [f'v_mul_f32 {d[i]}, {b_[0] if b_.k == "s" else b_[i]}, {a_[i]}' for i in range(4)]
    def hpiece(n, j, o, pk):
        L = []; tt = []
        for mm in range(2):
            g_, l0 = rd(acc[n][2 * j + mm], vtmp[8 * mm:8 * mm + 4]); u_, l1 = rd(acc[n + 1][2 * j + mm], vtmp[8 * mm + 4:8 * mm + 8])
            L += l0 + l1 + mul4(g_, g_, u_, pk); tt.append(g_)
        return L + packl(o, tt[0], tt[1]) + [f'v_permlane16_swap_b32 {o[0]}, {o[2]}', f'v_permlane16_swap_b32 {o[1]}, {o[3]}']
    hreg = [acc[7][2 * j] for j in range(4)] + [acc[6][2 * j] for j in range(4)] + [acc[8][2 * j] for j in range(4)]

    vq = vdx[0]; vh = vdx[1]; vql = vdx[2]; vqq = vdx[3]
    s_b, s_qs = s_oq, R('s', sx.a, 2)
    def epi_setup(wc):
        L = lines(f"""
        v_and_b32 {vt0}, 15, {vl}
        v_lshrrev_b32 {vt1}, 4, {vl}
        v_lshlrev_b32 {vq}, 9, {vt1}
        v_lshlrev_b32 {vh}, 4, {vl}
        s_lshl_b32 {s_t0}, {s_h}, 6
        s_lshl_b32 {s_t1}, {s_mb}, 3
        s_add_u32 {s_t0}, {s_t0}, {s_t1}
        s_lshl_b32 {s_t1}, {s_wr}, 2
        s_add_u32 {s_t0}, {s_t0}, {s_t1}
        s_lshl_b32 {s_b}, {s_t0}, 12
        s_add_u32 {s_b}, {s_b}, {WS_KV}
        s_add_u32 {s_og}, {s_b}, 4096
        s_add_u32 {s_ox}, {s_b}, 8192
        s_add_u32 {s_c0}, {s_b}, 12288
        s_lshl_b32 {s_t0}, {s_mb}, 1
        s_add_u32 {s_t0}, {s_t0}, {s_wr}
        s_mul_i32 {s_t0}, {s_t0}, 288
        s_mul_i32 {s_t1}, {s_h}, 7
        s_add_u32 {s_t0}, {s_t0}, {s_t1}
        s_lshl_b32 {s_t0}, {s_t0}, 12
        s_add_u32 {s_hb}, {s_t0}, {WS_A + 4 * 4096 * wc}
        s_sub_u32 {s_c1}, {s_hb}, 4096
        s_lshl_b32 {s_t1}, {s_wr}, 14""")
        if wc == 0:
            L += lines(f"""
            v_lshrrev_b32 {vt2}, 3, {vt0}
            v_lshl_add_u32 {vq}, {vt2}, 8, {vq}
            v_and_b32 {vt2}, 7, {vt0}
            v_lshl_add_u32 {vq}, {vt2}, 4, {vq}
            v_add_u32 {vql}, {s_t1}, {vq}
            s_lshl_b32 {s_t1}, {s_wr}, 13
            s_add_u32 {s_t1}, {s_t1}, {QS}
            v_add_u32 {vqq}, {s_t1}, {vq}
            s_mov_b32 {s_qs[0]}, {hex(f32bits(QSCALE))}
            s_mov_b32 {s_qs[1]}, {s_qs[0]}""")
        else:
            L += [f'v_lshl_add_u32 {vq}, {vt0}, 4, {vq}', f'v_add_u32 {vql}, {s_t1}, {vq}']
        return L
    kvb = [s_b, s_og, s_ox, s_c0]
    def epi_early(wc, npk):
        F_ = []
        outs = [vtmp[16 + 4 * i:20 + 4 * i] for i in range(3)]
        if wc == 0:
            for m in range(7, -1, -1):
                o = acc[0][m]
                L = packl(o, acc[0][m], acc[1][m]) + [Ins(f'buffer_store_dwordx4 {o}, {vq}, {sws}, {kvb[m // 2]} offen offset:{(m % 2) * 128}{st_mod}', 'KVST'),
                                                       f'ds_write_b128 {vql}, {o} offset:{(m // 2) * 4096 + (m % 2) * 128}']
                F_ += [(17 + 2 * (7 - m) + 4, x) for x in L]
            for i, m in enumerate(range(7, -1, -1)):
                o = outs[i % 3]
                t0, l0 = rd(acc[2][m], vtmp[0:4]); t1, l1 = rd(acc[3][m], vtmp[4:8])
                L = l0 + l1 + mul4(t0, t0, s_qs, i >= npk) + mul4(t1, t1, s_qs, i >= npk) + packl(o, t0, t1) + [f'ds_write_b128 {vqq}, {o} offset:{(m // 2) * 2048 + (m % 2) * 128}']
                F_ += [(49 + 2 * (7 - m) + 4, x) for x in L]
        else:
            for nt, js in ((0, range(4)), (1, range(3, -1, -1))):
                for j in js:
                    o = acc[nt][2 * j]
                    L = packl(o, acc[nt][2 * j], acc[nt][2 * j + 1]) + [Ins(f'buffer_store_dwordx4 {o}, {vq}, {sws}, {kvb[j]} offen offset:{2048 + nt * 256}{st_mod}', 'KVST'),
                                                                         f'ds_write_b128 {vql}, {o} offset:{j * 4096 + 2048 + nt * 256}']
                    F_ += [((3 + 4 * j if nt == 0 else 31 - 4 * j) + 4, x) for x in L]
            for i, j in enumerate(range(3, -1, -1)):
                o = outs[i % 3]
                L = hpiece(2, j, o, i >= npk) + [Ins(f'buffer_store_dwordx4 {o}, {vh}, {sws}, {s_c1} offen offset:{j * 1024}{st_mod}', 'HST')]
                F_ += [(63 - 4 * j + 4, x) for x in L]
        for j in range(3, -1, -1):
            F_ += [(127 - 4 * j + 4, x) for x in hpiece(6, j, hreg[4 + j], PK)]
            F_ += [(127 - 4 * j + 4, x) for x in hpiece(4, j, hreg[j], PK)]
        k = max(i for i, x in enumerate(F_) if isinstance(x[1], Ins) and x[1].tag == 'KVST')
        F_[k + KF:k + KF] = [(0, [f'v_mov_b32 {vt0}, 1', 'WAITTAG KVST', Ins(f'buffer_store_dword {vt0}, {vflk}, {sfl}, 0 offen sc1', 'FL')])]
        return F_
    def epi_late():
        for j in range(3, -1, -1): p.add(hpiece(8, j, hreg[8 + j], True))

    announce_setup = lines(f"""
        s_mov_b32 {sdbg[0]}, {pdbg[0]}
        s_mov_b32 {sdbg[1]}, {pdbg[1]}
        s_movk_i32 {sdbg[2]}, 256
        s_mov_b32 {sdbg[3]}, 0x00020000
        s_and_b32 {s_ano}, s2, 7
        s_lshl_b32 {s_ano}, {s_ano}, 2
        s_and_b32 {s_grp}, {s_mb}, 3
        s_add_u32 {s_grp}, {s_grp}, 3
        v_mov_b32 {vt2}, 1
        v_cmp_eq_u32 {smask}, 0, v0
        v_cndmask_b32 {vt1}, 2.0, 0, {smask}""")
    announce = [f's_cmp_eq_u32 {s_cnt}, {s_grp}', f's_cselect_b32 {s_t0}, {s_ano}, 2.0',
                f'buffer_atomic_add {vt2}, {vt1}, {sdbg}, {s_t0} offen offset:{DBG_CNT} sc1']
    cnt_addr = [f'v_and_b32 {vpf}, 7, {vl}', f'v_lshlrev_b32 {vpf}, 2, {vpf}']
    cnt_load = f'buffer_load_dword {vcnt}, {vpf}, {sdbg}, 0 offen offset:{DBG_CNT} sc1'

    def code_setup(wc):
        lab = f'{name}_pc{wc}'
        return [[f's_getpc_b64 {sp4[0:2]}', f'{lab}:'], f's_and_b32 {sp4[1]}, {sp4[1]}, 0xffff', f's_mov_b32 {sp4[2]}, {name}_end-{lab}', f's_mov_b32 {sp4[3]}, 0x00020000',
                f's_lshr_b32 {s_t0}, s2, 3', f's_lshl_b32 {s_t1}, {s_t0}, 8', f's_add_u32 {s_t1}, {s_t1}, {name}_c{wc}out-{lab}', f'v_and_b32 {vcnt}, 1, {vl}', f'v_lshlrev_b32 {vcnt}, 7, {vcnt}',
                f's_lshl_b32 {s_t0}, {s_t0}, 2', f's_add_u32 {s_t0}, {s_t0}, {s_w}', f's_lshl_b32 {s_t0}, {s_t0}, 8',
                f's_add_u32 {s_t0}, {s_t0}, {name}_join-{lab}', f'v_mov_b32 {vtmp[0]}, {s_t0}', f'v_mov_b32 {vtmp[1]}, {s_t1}',
                f'v_cmp_gt_u32 vcc, 2, {vl}', f'v_cndmask_b32 {vtmp[0]}, {vtmp[0]}, {vtmp[1]}, vcc', f'v_add_u32 {vcnt}, {vcnt}, {vtmp[0]}',
                f'v_cmp_gt_u32 vcc, 4, {vl}', f'v_cndmask_b32 {vcnt}, 2.0, {vcnt}, vcc']
    code_pf = [f's_cmp_eq_u32 {s_cnt}, 1', f's_cselect_b32 {s_t0}, 0, 2.0', Ins(f'buffer_load_dword {vpd}, {vcnt}, {sp4}, {s_t0} offen', 'pf')]
    for wc in range(2):
        p.seg(f'c{wc}a')
        if wc == 1: p.e(f'{name}_c1:')
        p.add(wread(0, 0, wc))
        for m in range(2, 8):
            for ks in range(2): p.e(xread(m, ks, 0))
        for j in range(1, DIST): p.add(wread(j, 0, wc))
        left = stage(0, wc, first=True, early=[x for _ in range(PD - PD0 + 1) for x in pfetch()], fill=flag_setup + announce_setup + code_setup(wc) + pf3_setup() + pf_setup())
        assert not left
        p.e(f's_mov_b32 {s_cnt}, 6')
        p.seg(f'c{wc}l1')
        p.e(f'{name}_c{wc}loop:')
        stage(1, wc, early=pfetch() + pfetch_d(), extra=gate_sel + gate_loads, estep=1)
        p.e(f's_cmp_eq_u32 {s_cnt}, 0\ns_cbranch_scc1 {name}_c{wc}out')
        p.seg(f'c{wc}l2')
        stage(0, wc, early=pfetch() + pfetch_d(), extra=announce + pf_wo + (code_pf if CPF else []))
        p.e(f's_sub_u32 {s_cnt}, {s_cnt}, 1\ns_branch {name}_c{wc}loop')
        p.seg(f'c{wc}last')
        p.e(f'{name}_c{wc}out:')
        rest = stage(0, wc, early=pfetch_d(), fill=gate_ops(), nodma1=True, dens=GD)
        rest = stage(1, wc, last=True, fill=rest + cnt_addr + [cnt_load] + epi_setup(wc) + epi_early(wc, 99))
        pf.stamp(2)
        if ptrace == -1: pf.trace()
        k = max([i for i, x in enumerate(rest) if isinstance(x, str) and x.startswith('ds_write')] + [-1]) + 1
        for x in rest[:k]: p.add(x if isinstance(x, list) else [x])
        rest = rest[k:]
        if PKR:
            out = []; i = 0
            while i < len(rest):
                x = rest[i]; y = rest[i + 1] if i + 1 < len(rest) else None
                if isinstance(x, str) and isinstance(y, str) and x.startswith('v_mul_f32') and y.startswith('v_mul_f32'):
                    a0, b0, c0 = [int(t.strip()[1:]) for t in x[10:].split(',')]; a1, b1, c1 = [int(t.strip()[1:]) for t in y[10:].split(',')]
                    if a0 % 2 == 0 and b0 % 2 == 0 and (a1, b1, c1) == (a0 + 1, b0 + 1, c0 + 1):
                        out.append(f'v_pk_mul_f32 v[{a0}:{a1}], v[{b0}:{b1}], v[{c0}:{c1}]'); i += 2; continue
                out.append(x); i += 1
            rest = out
        va_, vb_ = vdg[0], vdg[1]
        p.e(f"""
        v_lshlrev_b32 {va_}, 4, {vl}
        s_lshl_b32 {s_t0}, {s_w}, 12
        s_add_u32 {s_t0}, {s_t0}, {QS}
        v_add_u32 {vb_}, {s_t0}, {va_}
        s_waitcnt lgkmcnt(0)
        s_barrier
        """)
        for q in range(2):
            for f in range(2): p.e(f'ds_read_b128 a[{40 + 8 * q + 4 * f}:{43 + 8 * q + 4 * f}], {vb_} offset:{q * 2048 + f * 1024}')
        for i in range(4): p.e(f'ds_read_b128 a[{56 + 4 * i}:{59 + 4 * i}], {va_} offset:{(i // 2) * 4096 + (i % 2) * 1024}')
        pre = [f'v_mfma_f32_32x32x16_bf16 v[{64 + 16 * q}:{79 + 16 * q}], a[{56 + 4 * f}:{59 + 4 * f}], a[{40 + 8 * q + 4 * f}:{43 + 8 * q + 4 * f}], ' + ('0' if f == 0 else f'v[{64 + 16 * q}:{79 + 16 * q}]')
               for q in range(2) for f in range(2)]
        rest = rest + [x for j in range(3, -1, -1) for x in hpiece(8, j, hreg[8 + j], True)]
        for i, x in enumerate(rest):
            p.add(x if isinstance(x, list) else [x])
            if i >= 24 and (i - 24) % 7 == 0 and pre: p.e(pre.pop(0))
        p.add(pre)
        if ptrace == -1: pf.trace()
        if ptrace == -1: pf.trace()
        if wc == 0: p.e(f's_branch {name}_join')
    p.seg('join')
    p.e(f'{name}_join:')
    p.add(check([f'v_cmp_gt_u32 vcc, 32, {vcnt}'], [cnt_load], 'cnt'))

    sa.p = s_base; va.p = v_base; aa.p = 0
    skv = sa(4); sA = sa(4); swd = sa(4); swo = sa(4); sout = sa(4)
    s_okv, s_left, s_p, s_oa, s_ow, s_wb, s_ob, s_ob2, s_thr, s_mt, s_nt, s_oo, s_spin, s_h1, s_h2, s_rt, s_win = [sa() for _ in range(17)]
    scp = sa(4)
    vl16, vkA, vkB, vdma, vo, vidx, vu0, vu1, vu2, vpa = [va() for _ in range(10)]
    vdd = [va() for _ in range(2)]; vdo = [va() for _ in range(2)]; vwr = [va() for _ in range(2)]
    vg = va(2); vog = va(4); vpoll = va(2, 2); vsc = va(2)
    ones = va(4, 4)
    vA = [va() for _ in range(4)]
    assert va.p <= 46 and va.p > vwo.a
    va2 = Alloc('v', va.p, 48)
    va.p = 48
    Sx = [va(16, 4) for _ in range(2)]; P = [va(8, 4) for _ in range(2)]; C = [va(16, 4) for _ in range(2)]
    acc3 = [[va(16, 4) for _ in range(4)] for _ in range(2)]
    O = [aa(16, 4) for _ in range(2)]; L = [aa(4, 4) for _ in range(2)]
    Q = [aa(8, 4) for _ in range(2)]; K = [aa(8, 4) for _ in range(2)]; V = [aa(8, 4) for _ in range(2)]
    Wf = [aa(4, 4) for _ in range(2)]
    Ab = [[aa(4, 4) for _ in range(4)] for _ in range(8)]

    p.e(f"""
    v_lshlrev_b32 {vl16}, 4, {vl}
    s_lshl_b32 {s_p}, {s_w}, 12
    """)
    assert Q[0].a == 40 and K[0].a == 56 and Sx[1].a == 64 and P[0].a == 80
    pf.stamp(3)
    def kread(kb, loop=False):
        base, o = (vl16, (kb % 16) * 4096) if not loop else ((vkA, kb * 4096) if kb < 8 else (vkB, (kb - 8) * 4096))
        return [f'ds_read_b128 {K[kb % 2][4*f:4*f+4]}, {base} offset:{o + f * 1024}' for f in range(2)]
    def vread(kb, loop=False):
        base, o = (vl16, (kb % 16) * 4096) if not loop else (vkA, kb * 4096)
        return [f'ds_read_b128 {V[kb % 2][4*f:4*f+4]}, {base} offset:{o + 2048 + f * 1024}' for f in range(2)]
    def qk(dst, kb, q, f, cin):
        return f'v_mfma_f32_32x32x16_bf16 {dst}, {K[kb % 2][4*f:4*f+4]}, {Q[q][4*f:4*f+4]}, {cin if f == 0 else dst}'
    def pv(j, f, zero=False):
        q = j % 2; kb = (j // 2) % 2
        return f'v_mfma_f32_32x32x16_bf16 {O[q]}, {V[kb][4*f:4*f+4]}, {P[q][4*f:4*f+4]}, {"0" if zero else O[q]}'
    def rsum(q): return f'v_smfmac_f32_16x16x64_bf16 {L[q]}, {ones}, {P[q]}, {vidx}'
    def cvt(j, i): return f'v_cvt_pk_bf16_f32 {P[j % 2][i]}, {Sx[j % 2][2*i]}, {Sx[j % 2][2*i+1]}'
    def rowmax(dst, src, init):
        lst = [src[i] for i in range(16)]
        if init:
            p.e(f'v_max3_f32 {dst}, {lst[0]}, {lst[1]}, {lst[2]}'); lst = lst[3:]
        while len(lst) >= 2:
            p.e(f'v_max3_f32 {dst}, {dst}, {lst[0]}, {lst[1]}'); lst = lst[2:]
        if lst: p.e(f'v_max_f32 {dst}, {dst}, {lst[0]}')
    def setc(q, m):
        p.e(f'v_mov_b32 {vu2}, {m}\nv_permlane32_swap_b32 {vu2}, {m}\nv_max_f32 {m}, {m}, {vu2}')
        for i in range(16): p.e(f'v_sub_f32 {C[q][i]}, 0, {m}')
    rowmax(vu0, R('v', 64, 16), True); rowmax(vu1, R('v', 80, 16), True)
    setc(0, vu0)
    p.e(qk(Sx[0], 0, 0, 0, C[0])); p.e(qk(Sx[0], 0, 0, 1, C[0]))
    setc(1, vu1)
    p.e(f"""
    v_bfe_u32 {vu0}, {vl}, 2, 1
    v_bfe_u32 {vu1}, {vl}, 1, 1
    v_mov_b32 {vu2}, 0x3f803f80
    v_or_b32 {vidx}, {vu0}, {vu1}
    v_cmp_eq_u32 vcc, 0, {vidx}
    v_xor_b32 {vu0}, 1, {vu0}
    v_or_b32 {vidx}, {vu0}, {vu1}
    v_cndmask_b32 {ones[0]}, 0, {vu2}, vcc
    v_cndmask_b32 {ones[1]}, 0, {vu2}, vcc
    v_cmp_eq_u32 vcc, 0, {vidx}
    v_and_b32 {vu0}, 1, {vl}
    v_mov_b32 {vu1}, 0xeeeeeeee
    v_cndmask_b32 {ones[2]}, 0, {vu2}, vcc
    v_cndmask_b32 {ones[3]}, 0, {vu2}, vcc
    v_cmp_eq_u32 vcc, 0, {vu0}
    v_mov_b32 {vu2}, 0x44444444
    v_add_u32 {vdma}, {s_p}, {vl16}
    v_cndmask_b32 {vidx}, {vu1}, {vu2}, vcc
    """)
    for q in range(2):
        for i in range(2): p.e(f'v_accvgpr_write_b32 {L[q][i]}, 0')
    p.e(f's_lshl_b32 {s_t0}, {s_h}, 18')
    srd(p, skv, pws, off_s=s_t0, off_imm=WS_KV, size=262144)

    def flag(val, tag, wait):
        return [f'v_mov_b32 {vu0}, {val}', f'WAITTAG {wait}', Ins(f'buffer_store_dword {vu0}, {vflag}, {sfl}, 0 offen sc1', tag)]
    def kvdma(m0line, tag):
        return [m0line] + [Ins(f'buffer_load_dwordx4 {vdma}, {skv}, {s_okv} offen offset:{i * 1024}{lm2} lds', tag) for i in range(4)] + \
               [f's_add_u32 {s_okv}, {s_okv}, 16384', f's_and_b32 {s_okv}, {s_okv}, 0x3ffff',
                f's_sub_u32 {s_left}, {s_left}, 1', f's_cselect_b32 {skv[2]}, 0, {skv[2]}']
    NW = 4
    def wload(s):
        return [f's_add_u32 m0, {s_wb}, {(s % NW) * 2048}'] + \
               [Ins(f'buffer_load_dwordx4 {vdd[hh]}, {swd}, {s_ow} offen offset:{hh * 1024}{lm2} lds', f'D{s % NW}') for hh in range(2)] + [f's_add_u32 {s_ow}, {s_ow}, 32768']
    def hload(s):
        return [Ins(f'buffer_load_dwordx4 {Ab[s % NB][r]}, {vA[r]}, {sA}, {s_oa} offen{lm2}', f'A{s % NB}') for r in range(4)] + [f's_add_u32 {s_oa}, {s_oa}, 4096']
    def wrd(base, off, nb):
        return [f'ds_read_b64_tr_b16 {Wf[nb][2*s:2*s+2]}, {base[nb]} offset:{off + s * 512}' for s in range(2)]
    def gm(buf, nb, tb, zero=False):
        return f'v_mfma_f32_32x32x16_bf16 {acc3[nb][tb]}, {Wf[nb]}, {buf[tb]}, {"0" if zero else acc3[nb][tb]}'
    def oload(t, m0line, tag):
        return [m0line] + [Ins(f'buffer_load_dwordx4 {vdo[hh]}, {swo}, {s_oo} offen offset:{hh * 1024} lds', tag) for hh in range(2)] + [f's_add_u32 {s_oo}, {s_oo}, 32768', f's_and_b32 {s_oo}, {s_oo}, 0x7ffff']

    zplan = {}
    def period(j, loop=False, item=None, misc=(), pre=(), zero=False):
        s = Sx[j % 2]
        E = [f'v_exp_f32 {s[i]}, {s[i]}' for i in range(16)]
        jn = j + 1
        m1 = qk(Sx[jn % 2], jn // 2, jn % 2, 0, C[jn % 2]); m2 = qk(Sx[jn % 2], jn // 2, jn % 2, 1, None)
        rd = kread((j + 1) // 2 + 1, loop) if j % 2 == 1 else vread(j // 2, loop)
        first = (j == 0 and not loop)
        zo = (j <= 2 and not loop)
        c7 = [] if first else [cvt(j - 1, 7)]
        p0 = [] if first else [pv(j - 1, 0, zo)]; p1 = [] if first else [pv(j - 1, 1)]; rs = [] if first else [rsum((j - 1) % 2)]
        V_ = [E[0]] + c7
        for i in range(7): V_ += [E[2 * i + 1], E[2 * i + 2], cvt(j, i)]
        V_.append(E[15])
        if item is None:
            p.add(V_[:1 + len(c7)]); V_ = V_[1 + len(c7):]
            if AW and j % 2 == 1: p.e('s_waitcnt lgkmcnt(0)')
            z_ = [] if loop else zplan.get(j, [])
            M = [m1] + z_[:1] + [m2] + p0 + z_[1:] + p1 + rs; G = []
        else:
            st, nb = item
            G = [gm(Ab[st % NB], nb, tb if nb == 0 else 3 - tb, zero) for tb in range(4)]
            M = [G[0], m1, G[1], m2, G[2]] + p0 + [G[3]] + p1 + rs
        if loop and exp_ & 1: M = [x for x in M if x not in G]
        if loop and exp_ & 8: misc = [x for x in misc if not (isinstance(x, Ins) and x.tag and x.tag.startswith('D'))]
        misc = list(misc)
        for k in range(len(misc)):
            if isinstance(misc[k], str) and ' m0,' in misc[k]:
                q_ = k
                while q_ > 0 and not (isinstance(misc[q_ - 1], Ins) and misc[q_ - 1].text.endswith(' lds')): q_ -= 1
                misc.insert(q_, misc.pop(k))
        items = []
        for x in list(pre) + rd + list(misc):
            if items and isinstance(items[-1][-1], str) and items[-1][-1].split()[0] in ('WAITTAG', 's_cbranch_vccnz', 'v_cmp_gt_u32', 's_getpc_b64'): items[-1].append(x)
            else: items.append([x])
        isvm = lambda it: any((y.text if isinstance(y, Ins) else y).startswith('buffer') for y in it)
        n = len(M); last = n - 1 if M[-1].startswith('v_smfmac') else n
        cost = lambda x: 8 if x.startswith('v_exp') else 4
        occ = [32 if '32x32' in x else 16 for x in M]
        iss = [8 if 'smfmac' not in x else SMC for x in M]
        ic = [sum((VMC if (y.text if isinstance(y, Ins) else y).startswith('buffer') else 4) for y in it if not (isinstance(y, str) and y.endswith(':'))) for it in items]
        vc = [cost(x) for x in V_]
        tailc = (4 if item is not None else 12 + (4 if j % 2 == 0 else 0))
        if item is None: iss[-1] += 0
        import functools
        @functools.lru_cache(None)
        def best(g, a_, b_, pv_):
            if g == n: return (0, ()) if (a_ == len(items) and b_ == len(V_)) else (10 ** 9, ())
            res = (10 ** 9, ())
            lo = 0
            if g == 0 and item is not None: lo = 1 + len(c7)
            for na in range(0, len(items) - a_ + 1):
                if g == 0 and na < min(len(items), npre): continue
                nv_ = sum(map(isvm, items[a_:a_ + na]))
                ca = sum(ic[a_:a_ + na])
                if g < n - 1 and ca > 64: break
                pen = (VPEN * max(0, nv_ - 1) + (VPEN // 2 if (nv_ and pv_) else 0)) + (0.01 * g * na)
                for nb_ in range(lo, len(V_) - b_ + 1):
                    f_ = iss[g] + ca + sum(vc[b_:b_ + nb_]) + (tailc if g == n - 1 else 0)
                    if f_ > 120 and g < n - 1: break
                    r_ = best(g + 1, a_ + na, b_ + nb_, nv_ > 0)
                    t_ = max(occ[g], f_) + pen + r_[0] + 0.001 * (f_ - occ[g]) ** 2
                    if t_ < res[0]: res = (t_, ((na, nb_),) + r_[1])
            return res
        npre = len([1 for it in items if any(y in pre for y in it if isinstance(y, str))])
        tot_, asg = best(0, 0, 0, False)
        assert tot_ < 10 ** 8
        a_ = b_ = 0
        for q_, m_ in enumerate(M):
            p.add([m_])
            na, nb_ = asg[q_]
            for it in items[a_:a_ + na]: p.add(it)
            p.add(V_[b_:b_ + nb_]); a_ += na; b_ += nb_

    setup1 = lines(f"""
        s_lshl_b32 {s_okv}, {s_mb}, 15
        s_add_u32 {s_okv}, {s_okv}, 32768
        s_and_b32 {s_okv}, {s_okv}, 0x3ffff
        s_movk_i32 {s_left}, 13
        v_and_b32 {vu1}, 31, {vl}
        v_lshlrev_b32 {vpa}, 2, {vu1}
        s_lshl_b32 {s_t2}, {s_h}, 7
        s_add_u32 {s_t2}, {s_t2}, 4096""")
    poll_kv = f'buffer_load_dword {vpoll[0]}, {vpa}, {sfl}, {s_t2} offen sc1'
    setup2 = lines(f"""
        s_and_b32 {s_t0}, s2, 7
        s_lshr_b32 {s_t1}, s2, 3
        s_lshr_b32 {s_mt}, {s_t0}, 1
        s_lshl_b32 {s_mt}, {s_mt}, 2
        s_and_b32 {s_nt}, {s_t0}, 1
        s_lshl_b32 {s_nt}, {s_nt}, 3
        s_and_b32 {s_t0}, {s_t1}, 3
        s_add_u32 {s_mt}, {s_mt}, {s_t0}
        s_lshr_b32 {s_t0}, {s_t1}, 2
        s_add_u32 {s_nt}, {s_nt}, {s_t0}
        s_lshl_b32 {s_t0}, {s_nt}, 7
        s_lshl_b32 {s_t1}, {s_w}, 19
        s_add_u32 {s_t1}, {s_t1}, {s_t0}
        s_add_u32 {swo[0]}, {pwo[0]}, {s_t1}
        s_addc_u32 {swo[1]}, {pwo[1]}, 0
        s_sub_u32 {swo[2]}, {D * D * 2}, {s_t1}
        s_mov_b32 {swo[3]}, 0x00020000
        s_add_u32 {swd[0]}, {pwd[0]}, {s_t0}
        s_addc_u32 {swd[1]}, {pwd[1]}, 0
        s_sub_u32 {swd[2]}, {F * D * 2}, {s_t0}
        s_mov_b32 {swd[3]}, 0x00020000
        s_mul_i32 {s_t0}, {s_mt}, {288 * 4096}
        s_add_u32 {s_t0}, {s_t0}, {WS_A}
        s_add_u32 {sA[0]}, {pws[0]}, {s_t0}
        s_addc_u32 {sA[1]}, {pws[1]}, 0
        s_mov_b32 {sA[2]}, {288 * 4096}
        s_mov_b32 {sA[3]}, 0x00020000
        s_mul_i32 {s_win}, {s_w}, {56 * 4096}
        s_lshl_b32 {s_rt}, {s_mt}, 1
        s_add_u32 {s_rt}, {s_rt}, {s_nt}
        s_and_b32 {s_rt}, {s_rt}, {7 if ROT else 0}
        s_lshl_b32 {s_rt}, {s_rt}, 12
        s_add_u32 {s_oa}, {s_win}, {s_rt}
        s_lshl_b32 {s_ow}, {s_oa}, 3
        s_and_b32 {s_oo}, {s_nt}, {3 if ROT else 0}
        s_lshl_b32 {s_oo}, {s_oo}, 17
        s_mul_i32 {s_wb}, {s_w}, 20480
        s_add_u32 {s_wb}, {s_wb}, {W0}
        v_lshrrev_b32 {vu1}, 3, {vl}
        v_and_b32 {vu2}, 2, {vu1}
        v_lshlrev_b32 {vu2}, 1, {vu2}
        v_and_b32 {vdd[1]}, 7, {vl}
        v_xor_b32 {vu2}, {vu2}, {vdd[1]}
        v_lshlrev_b32 {vu2}, 4, {vu2}
        v_lshl_add_u32 {vdd[0]}, {vu1}, 11, {vu2}
        v_add_u32 {vdd[1]}, {8 * 2048 - 1024}, {vdd[0]}
        v_lshrrev_b32 {vu1}, 5, {vl}
        v_lshl_add_u32 {vdo[0]}, {vu1}, 13, {vdd[0]}
        v_add_u32 {vdo[1]}, {4 * 2048 - 1024}, {vdo[0]}
        v_lshl_add_u32 {vwr[0]}, {vu1}, 10, {s_wb}
        v_bfe_u32 {vu1}, {vl}, 2, 2
        v_lshl_add_u32 {vwr[0]}, {vu1}, 7, {vwr[0]}
        v_bfe_u32 {vu1}, {vl}, 3, 1
        v_lshl_add_u32 {vwr[0]}, {vu1}, 6, {vwr[0]}
        v_bfe_u32 {vu1}, {vl}, 4, 1
        v_lshl_add_u32 {vwr[0]}, {vu1}, 5, {vwr[0]}
        v_and_b32 {vu1}, 3, {vl}
        v_lshl_add_u32 {vwr[0]}, {vu1}, 3, {vwr[0]}
        v_xor_b32 {vwr[1]}, 64, {vwr[0]}
        v_mov_b32 {vkB if PA == 48 else vkA}, {vl16}
        v_add_u32 {vkA if PA == 48 else vkB}, 32768, {vl16}
        s_add_u32 {s_h1}, {s_hb}, 4096
        s_add_u32 {s_h2}, {s_hb}, 8192""")
    for r in range(4):
        setup2 += [f's_add_u32 {s_t0}, {s_w}, {r + 1}', f's_and_b32 {s_t0}, {s_t0}, 3', f's_lshl_b32 {s_t0}, {s_t0}, 10', f'v_add_u32 {vA[r]}, {s_t0}, {vl16}']
    setup3 = lines(f"""
        v_and_b32 {vu1}, 7, {vl}
        v_bfe_u32 {vu2}, {vl}, 4, 1
        v_lshl_add_u32 {vo}, {vu2}, 3, {vu1}
        v_bfe_u32 {vu2}, {vl}, 3, 1
        v_lshl_add_u32 {vo}, {vu2}, 4, {vo}
        v_lshrrev_b32 {vu2}, 3, {vo}
        v_lshlrev_b32 {vu2}, 7, {vu2}
        v_lshl_add_u32 {vsc[0]}, {vu1}, 2, {vu2}
        v_lshlrev_b32 {vo}, 4, {vo}
        v_lshrrev_b32 {vu2}, 5, {vl}
        v_lshl_add_u32 {vo}, {vu2}, 9, {vo}
        v_bfe_u32 {vu2}, {vl}, 3, 2
        v_lshlrev_b32 {vu2}, 7, {vu2}
        v_lshl_add_u32 {vsc[1]}, {vu1}, 2, {vu2}
        s_lshl_b32 {s_t0}, {s_mb}, 1
        s_add_u32 {s_t0}, {s_t0}, {s_wr}
        s_mul_i32 {s_t0}, {s_t0}, 288
        s_lshl_b32 {s_t1}, {s_h}, 1
        s_add_u32 {s_t0}, {s_t0}, {s_t1}
        s_add_u32 {s_t0}, {s_t0}, 224
        s_lshl_b32 {s_t0}, {s_t0}, 12
        s_lshl_b32 {s_t1}, {s_wc}, 11
        s_add_u32 {s_t0}, {s_t0}, {s_t1}
        s_add_u32 {s_ob}, {s_t0}, {WS_A}
        s_add_u32 {s_ob2}, {s_ob}, 4096
        s_mov_b32 {s_thr}, {hex(f32bits(2.0 ** 40 if not force_slow else 0.5))}
        v_lshlrev_b32 {vpa}, 3, {vl}
        s_lshr_b32 {s_t2}, {s_mt}, 1
        s_lshl_b32 {s_t2}, {s_t2}, 9""")
    poll_h = f'buffer_load_dwordx2 {vpoll}, {vpa}, {sfl}, {s_t2} offen sc1'
    cond2 = [f'v_min_u32 {vu1}, {vpoll[0]}, {vpoll[1]}', f'v_cmp_gt_u32 vcc, 2, {vu1}']
    og_loads = [f's_lshl_b32 {s_t0}, {s_mt}, 11', f's_add_u32 {s_t0}, {s_t0}, {WS_G + 32}']
    for r in range(4):
        og_loads += [f'v_lshrrev_b32 {vu1}, 10, {vA[r]}', f'v_lshl_add_u32 {vu1}, {vu1}, 9, {vsc[1]}', f'buffer_load_dword {vog[r]}, {vu1}, {sws}, {s_t0} offen']
    g_loads = [f's_lshl_b32 {s_t0}, {s_mb}, 2', f's_add_u32 {s_t0}, {s_t0}, {s_w}', f's_lshl_b32 {s_t0}, {s_t0}, 10', f's_add_u32 {s_t0}, {s_t0}, {WS_G}'] + \
              [f'buffer_load_dword {vg[q]}, {vsc[0]}, {sws}, {s_t0} offen offset:{q * 512}' for q in range(2)]
    def oslot(t):
        if t >= 12: return vw2, (t - 12) * 2048, f's_add_u32 m0, {s_p}, {(t - 12) * 2048}'
        k = t if t < 4 else t - 4
        if k < 6: return vwr, (NW + k) * 2048, f's_add_u32 m0, {s_wb}, {(NW + k) * 2048}'
        return vw3, (k - 6) * 2048, f's_add_u32 m0, {s_p}, {QS + (k - 6) * 2048}'
    WO = [R('a', aa.p + 8 * t, 8) for t in range(4)] + [R('a', 8 * t, 8) for t in range(11)] + [Sx[0][0:8]]
    assert Wf[0].a == 88 and aa.p + 32 <= 256
    vw3 = [va2(), va2()]
    def woread(t):
        base, off, _ = oslot(t)
        return [f'ds_read_b64_tr_b16 {WO[t][4*nb+2*s_:4*nb+2*s_+2]}, {base[nb]} offset:{off + s_ * 512}' for nb in range(2) for s_ in range(2)]
    vw2 = [C[0][0], C[0][1]]
    setup3 += [f's_add_u32 {s_t0}, {s_p}, {QS}', f's_sub_u32 {s_t0}, {s_t0}, {s_wb}', f'v_add_u32 {vw3[0]}, {s_t0}, {vwr[0]}', f'v_add_u32 {vw3[1]}, {s_t0}, {vwr[1]}']
    early_o = [oload(t, oslot(t)[2], 'WO') for t in range(12)]
    assert NB == 8 and PM % 2 == 0 and DW <= 3 and DA <= 7
    plan = {j: [] for j in range(PA)}; prej = {j: [] for j in range(PA)}
    plan[0] += setup1
    plan[1] += setup2[:21]; plan[2] += setup2[21:41]; plan[3] += setup2[41:61]; plan[4] += setup2[61:]; plan[KP] = (plan[KP] + [poll_kv]) if KP == 0 else ([poll_kv] + plan[KP])
    plan[KC] += check([f'v_cmp_gt_u32 vcc, 1, {vpoll[0]}'], [poll_kv], 'kv')
    d = kvdma(f's_add_u32 m0, {s_p}, 32768', 'KV0'); plan[KC] += d[:3]; plan[KC + 1] += d[3:]
    d = kvdma(f's_add_u32 m0, {s_p}, 49152', 'KV1'); plan[KC + 2] += d[:3]; plan[KC + 3] += d[3:]
    for i in range(5 if PA == 48 else 3):
        j = 13 + 8 * i
        prej[j] += [f'WAITTAG KV{i % 2}', 's_barrier']
        d = kvdma(f's_add_u32 m0, {s_p}, {(i % 4) * 16384}', f'KV{i % 2}')
        plan[j] += d[:5]; plan[j + 1] += d[5:]
    busy = (13, 21, 29, 37, 45)
    j = float(H0)
    for k in range(12):
        while int(j) in busy: j = int(j) + 1.0
        plan[int(j)].append(Ins(f'buffer_store_dwordx4 {hreg[k]}, {vl16}, {sws}, {(s_hb, s_h1, s_h2)[k // 4]} offen offset:{(k % 4) * 1024}{st_mod}', 'HST'))
        jl = int(j); j += HP
    plan[10] += setup3[:10]; plan[11] += setup3[10:20]; plan[12] += setup3[20:]
    def nextfree(j):
        while j in busy: j += 1
        return j
    jf = nextfree(jl + FG); plan[jf] += flag(2, 'FL', 'HST')
    ramp = []
    for i in range(max(DA, DW)):
        if i < DW: ramp += wload(i)
        if i < DA: ramp += hload(i)
    groups = []; curg = []; nv = 0
    for x in ramp:
        if isinstance(x, str) and ' m0,' in x and nv + 2 > RP: groups.append(curg); curg = []; nv = 0
        if isinstance(x, Ins):
            if nv >= RP and not x.text.endswith(' lds'): groups.append(curg); curg = []; nv = 0
            nv += 1
        curg.append(x)
    groups.append(curg)
    jc = PM - 1; k = len(groups)
    while k:
        jc -= 1
        if jc not in busy: k -= 1
    jp = jc - PG
    assert jp > jf, (jp, jf)
    plan[jp] += [poll_h]
    jj = E0
    for t in range(0, 4, 2):
        jj = nextfree(jj + 1); plan[jj] += early_o[t] + early_o[t + 1]
    jj = nextfree(jj + 3)
    for t in range(4):
        plan[jj] += (['WAITTAG WO'] if t == 0 else []) + woread(t); jj = nextfree(jj + 1)
    for t in range(4, 12):
        plan[jj] += (['s_waitcnt lgkmcnt(0)'] if t == 4 else []) + early_o[t]
        if t % 2 == 1 or jj < jl: jj = nextfree(jj + 1)
    assert jj <= jc + 1, (jj, jc)
    plan[jc] += check(cond2, [poll_h], 'h') + [f's_lshl_b32 {s_t2}, {s_mb}, 9', poll_h]
    jj = jc
    for g_ in groups:
        plan[jj] += g_; jl2 = jj; jj = nextfree(jj + 1)
    assert jl2 <= PM - 2, (jl2, PM)
    plan[PM - 1] = ['WAITTAG D0 A0'] + wrd(vwr, 0, 0) + plan[PM - 1]
    NZ = PM == PA
    if NZ:
        plan[PM - 3] += og_loads
        plan[PM - 1] += check(cond2, [poll_h], 'g') + g_loads
        plan[jf + 1] += [f'v_accvgpr_write_b32 {Wf[1][i]}, 0' for i in range(4)]
        for k in range(8): zplan.setdefault(jf + 2 + k // 2, []).append(f'v_mfma_f32_32x32x16_bf16 {acc3[k // 4][k % 4]}, {Wf[1]}, {Wf[1]}, 0')
        assert jf + 6 < PM
    else:
        plan[PM + 2] += og_loads
        plan[PM + 4] += check(cond2, [poll_h], 'g') + g_loads
    if PA == 48: plan[PA - 1] += [f's_xor_b32 {s_p}, {s_p}, 32768']
    vcp = va2()
    if CP2:
        plan[PM - 3] += [f's_getpc_b64 {scp[0:2]}', f'{name}_pct:', f's_and_b32 {scp[1]}, {scp[1]}, 0xffff', f's_mov_b32 {scp[2]}, {name}_slow-{name}_pct',
                         f's_mov_b32 {scp[3]}, 0x00020000', f's_lshr_b32 {s_t0}, s2, 3', f's_lshl_b32 {s_t0}, {s_t0}, 2', f's_add_u32 {s_t0}, {s_t0}, {s_w}',
                         f's_lshl_b32 {s_t0}, {s_t0}, 7', f's_add_u32 {s_t0}, {s_t0}, {name}_tail-{name}_pct', f'v_lshl_add_u32 {vcp}, {vl}, 14, {s_t0}']
    def mixed(j, st, nb, loop, misc=(), pre=(), zero=False):
        dw = wload(st + DW); da = hload(st + DA)
        if nb == 0:
            period(j, loop, (st, 0), misc=wrd(vwr, (st % NW) * 2048, 1) + dw + da[:1] + list(misc), pre=pre, zero=zero)
        else:
            p.e(f'WAITTAG D{(st + 1) % NW} A{(st + 1) % NB} LGKM0')
            period(j, loop, (st, 1), misc=wrd(vwr, ((st + 1) % NW) * 2048, 0) + da[1:] + list(misc), pre=pre, zero=zero)
    p.seg('partA')
    for j in range(PA):
        if ptrace == -1 and j in (0, 1, 5, 7, 9, 13, 15, 21, jf, jf + 1, jc, jc + 1, PM): pf.trace()
        if j < PM: period(j, misc=plan[j], pre=prej[j])
        else: mixed(j, (j - PM) // 2, j % 2, False, misc=plan[j], pre=prej[j], zero=(j < PM + 2))
    if ptrace == -1: pf.trace()
    ST0 = (PA - PM) // 2
    pf.stamp(4)
    p.e(f's_mov_b32 {s_cnt}, {(128 - PA) // 16}')
    p.seg('loop')
    p.e(f'{name}_loop:')
    for j in range(16):
        misc = []; pre = []
        if j in (5, 13):
            pre = [f'WAITTAG KV{1 if j == 5 else 0}', 's_barrier']
        if j in (5, 6, 13, 14):
            d = kvdma(f's_xor_b32 m0, {s_p}, 49152' if j < 8 else f's_mov_b32 m0, {s_p}', 'KV1' if j < 8 else 'KV0')
            misc = d[:5] if j in (5, 13) else d[5:]
        if j == 9 and CP2: misc = [Ins(f'buffer_load_dword {vpd}, {vcp}, {scp}, 0 offen', 'pf')]
        if j == 15: misc = [f's_xor_b32 {s_p}, {s_p}, 32768', f'v_xor_b32 {vkA}, 0x8000, {vkA}', f'v_xor_b32 {vkB}, 0x8000, {vkB}']
        mixed(j, ST0 + j // 2, j % 2, True, misc=misc, pre=pre)
    p.e(f's_sub_u32 {s_cnt}, {s_cnt}, 1\ns_cmp_lg_u32 {s_cnt}, 0\ns_cbranch_scc1 {name}_loop')

    p.seg('tail')
    p.e(f'{name}_tail:')
    pf.stamp(5)
    if ptrace == -2: pf.trace()
    p.add([cvt(15, 7), pv(15, 0), pv(15, 1), rsum(1)])
    def lsum():
        p.e(f"""
        v_accvgpr_read_b32 {vsc[0]}, {L[0][0]}
        v_accvgpr_read_b32 {vu0}, {L[0][1]}
        v_accvgpr_read_b32 {vsc[1]}, {L[1][0]}
        v_accvgpr_read_b32 {vu1}, {L[1][1]}
        v_add_f32 {vsc[0]}, {vsc[0]}, {vu0}
        v_add_f32 {vsc[1]}, {vsc[1]}, {vu1}
        """)
    lsum()
    p.e(f"""
    v_cmp_nle_f32 vcc, {vsc[0]}, {s_thr}
    v_cmp_nle_f32 {smask}, {vsc[1]}, {s_thr}
    s_or_b64 vcc, vcc, {smask}
    s_cbranch_vccnz {name}_slow
    """)
    p.seg('epi')
    p.e(f'{name}_epi:')
    LATE0 = ST0 + (128 - PA) // 2
    vs2 = [P[1][0:2], P[1][2:4]]
    vq_ = []
    o_next = 12
    for st_ in range(LATE0, 56):
        if st_ + DW < 56: vq_.append((st_ + DW - NW + 1, wload(st_ + DW)))
        if st_ + DA < 56: vq_.append((st_ + DA - NB + 1, hload(st_ + DA)))
        if o_next < 16: vq_.append((0, oload(o_next, oslot(o_next)[2], 'WO'))); o_next += 1
    assert o_next == 16
    cur = []
    def onevm(st):
        nonlocal cur
        if not cur and vq_ and vq_[0][0] <= st: cur = list(vq_.pop(0)[1])
        if not cur: return False
        while cur:
            x = cur.pop(0); p.add([x])
            if isinstance(x, Ins): break
        while cur and not any(isinstance(y, Ins) for y in cur): p.add([cur.pop(0)])
        return True
    p.e(f"""
    v_rcp_f32 {vsc[0]}, {vsc[0]}
    v_rcp_f32 {vsc[1]}, {vsc[1]}
    s_lshl_b32 {s_p}, {s_w}, 14
    WAITTAG KV0 KV1
    s_barrier
    v_mul_f32 {vs2[0][0]}, {vsc[0]}, {vg[0]}
    v_mul_f32 {vs2[1][0]}, {vsc[1]}, {vg[1]}
    v_mov_b32 {vs2[0][1]}, {vs2[0][0]}
    v_mov_b32 {vs2[1][1]}, {vs2[1][0]}
    """)
    for q in range(2):
        for f in range(2):
            t_ = Sx[q][8 * f:8 * f + 8]
            if EV: onevm(LATE0)
            for i in range(8): p.e(f'v_accvgpr_read_b32 {t_[i]}, {O[q][8*f+i]}')
            if EV > 1: onevm(LATE0)
            for i in range(4): p.e(f'v_pk_mul_f32 {t_[2*i:2*i+2]}, {t_[2*i:2*i+2]}, {vs2[q]}')
            for i in range(4): p.e(f'v_cvt_pk_bf16_f32 {t_[i]}, {t_[2*i]}, {t_[2*i+1]}')
            p.e(f'buffer_store_dwordx4 {t_[0:4]}, {vo}, {sws}, {(s_ob, s_ob2)[f]} offen offset:{q * 1024}{st_mod}', 'OST')
    vout = C[0][4]; vrw = [C[0][5], C[0][6], C[0][7]]; vrr = C[0][8]
    sk = [s_h1, s_h2, s_hb, s_left]
    vA2 = [[vA[r], Sx[1][3 * r], Sx[1][3 * r + 1], Sx[1][3 * r + 2]] for r in range(4)]
    late2 = lines(f"""
        s_sub_u32 {s_t0}, {s_p}, {s_wb}
        v_add_u32 {vw2[0]}, {s_t0}, {vwr[0]}
        v_add_u32 {vw2[1]}, {s_t0}, {vwr[1]}
        s_lshl_b32 {s_t0}, {s_mt}, 18
        s_lshl_b32 {s_t1}, {s_nt}, 7
        s_add_u32 {s_t0}, {s_t0}, {s_t1}
        s_add_u32 {sout[0]}, {pout[0]}, {s_t0}
        s_addc_u32 {sout[1]}, {pout[1]}, 0
        s_sub_u32 {sout[2]}, {S * D * 2}, {s_t0}
        s_mov_b32 {sout[3]}, 0x00020000
        v_and_b32 {vu1}, 31, {vl}
        s_lshl_b32 {s_t0}, {s_w}, 16
        v_lshl_add_u32 {vout}, {vu1}, 11, {s_t0}
        v_lshrrev_b32 {vu1}, 5, {vl}
        v_lshl_add_u32 {vout}, {vu1}, 4, {vout}
        v_bfe_u32 {vu1}, {vl}, 1, 3
        v_and_b32 {vu2}, 1, {vl}
        v_lshlrev_b32 {vu2}, 2, {vu2}
        v_lshl_add_u32 {vpa}, {vu1}, 4, {vu2}
        s_lshr_b32 {s_t2}, {s_mt}, 1
        s_lshl_b32 {s_t2}, {s_t2}, 9
        s_lshl_b32 {s_t0}, {s_w}, 7
        s_add_u32 {s_t2}, {s_t2}, {s_t0}
        s_and_b32 {s_t0}, {s_mt}, 1
        s_lshl_b32 {s_t0}, {s_t0}, 3
        s_add_u32 {s_t2}, {s_t2}, {s_t0}
        s_mul_i32 {s_t0}, {s_w}, 24576
        v_add_u32 {vrr}, {s_t0}, {vl16}
        s_lshl_b32 {s_t1}, {s_w}, 16
        s_add_u32 {s_t1}, {s_t1}, {224 * 4096}""")
    late2[6:8] = [late2[6:8]]
    for r in range(3):
        late2 += [f'v_lshrrev_b32 {vu1}, 10, {vA[r]}', f'v_mul_u32_u24 {vu1}, 24576, {vu1}', f'v_add_u32 {vu1}, {(2 - r) * 8192}, {vu1}', f'v_add_u32 {vrw[r]}, {vu1}, {vl16}']
    for i in range(4):
        late2 += ([f's_add_u32 {s_t0}, {s_nt}, {i}', f's_and_b32 {s_t0}, {s_t0}, 3'] if ROT else [f's_mov_b32 {s_t0}, {i}'])
        late2 += [f's_lshl_b32 {s_t0}, {s_t0}, 14', f's_add_u32 {sk[i]}, {s_t1}, {s_t0}']
    for r in range(4):
        for i in range(1, 4): late2.append(f'v_add_u32 {vA2[r][i]}, {i * 4096}, {vA[r]}')
    poll_o = f'buffer_load_dword {vpoll[0]}, {vpa}, {sfl}, {s_t2} offen sc1'
    AB = [Ab[i // 4][i % 4] for i in range(32)]
    def aload(i):
        r, t = divmod(i, 16)
        return f'buffer_load_dwordx4 {AB[i % 32]}, {vA2[r][t % 4]}, {sA}, {sk[t // 4]} offen{lm2}'
    a_next = 0; side = list(late2); checked = False
    for st in range(LATE0, 56):
        if ptrace == -2: pf.trace()
        n0 = wrd(vwr, (st % NW) * 2048, 1)
        n1 = ([f'WAITTAG D{(st + 1) % NW} A{(st + 1) % NB}'] + wrd(vwr, ((st + 1) % NW) * 2048, 0)) if st < 55 else []
        if st == LATE0 + 1: side = [flag(3, 'FL', 'OST')] + side
        if st == LATE0 + 2: side += [x for t in range(4, 12) for x in woread(t)]
        for c in range(8):
            nb, tb = divmod(c, 4)
            p.e(gm(Ab[st % NB], nb, tb if nb == 0 else 3 - tb))
            if c == 0: p.add(n0)
            if c == 4: p.add(n1)
            if st == LATE0 + OC - PO and c == 1:
                assert not any(isinstance(y, str) and (str(vpa) + ',' in y or str(s_t2) + ',' in y) for y in side)
                p.e(poll_o)
            if st == LATE0 + OC and c == 1:
                p.add(check([f'v_cmp_gt_u32 vcc, 3, {vpoll[0]}'], [poll_o], 'o')); checked = True
            if onevm(st): pass
            elif checked and a_next < 30 and 48 + a_next // 4 < st:
                assert not any(y in late2 for y in side)
                p.e(aload(a_next)); a_next += 1
            for _ in range(3 if st < LATE0 + 2 else 2):
                if side:
                    x = side.pop(0); p.add(x if isinstance(x, list) else [x])
    assert not cur and not vq_ and checked and not side
    if ptrace == -2: pf.trace()
    pf.stamp(6)
    def scale(r): return [f'v_mul_f32 {acc3[nb][r][i]}, {acc3[nb][r][i]}, {vog[r]}' for nb in range(2) for i in range(16)]
    p.e('WAITTAG WO')
    rds = [x for t in range(12, 16) for x in woread(t)]
    for k, x in enumerate(scale(0)):
        p.e(x)
        if k % 4 == 1 and rds: p.e(rds.pop(0))
        if k % 8 == 3 and a_next < 30: p.e(aload(a_next)); a_next += 1
    side = []
    for k, x in enumerate(scale(1)):
        side.append(x)
        if rds: side.append(rds.pop(0))
    assert not rds
    def rdpart(sl, dst): return [f'ds_read_b128 {acc3[n_][dst][4*j:4*j+4]}, {vrr} offset:{sl * 8192 + (n_ * 4 + j) * 1024}' for n_ in range(2) for j in range(4)]
    def addpart(src): return [f'v_add_f32 {acc3[n_][0][e]}, {acc3[n_][0][e]}, {acc3[n_][src][e]}' for n_ in range(2) for e in range(16)]
    wr = []; dens = 2
    for i in range(64):
        r, t = divmod(i, 16)
        if ptrace == -2 and i % 8 == 0: pf.trace()
        for nb in range(2):
            if nb == 0:
                if i == 16: side += scale(2)
                if i == 16 + 2:
                    p.e('s_waitcnt lgkmcnt(0)\ns_barrier')
                if i == 32:
                    assert not side
                    side += scale(3)
                if i == 32 + 11:
                    assert not wr and not side
                    p.e('s_waitcnt lgkmcnt(0)\ns_barrier')
                    side += rdpart(2, 0) + rdpart(1, 1) + [None] * 4 + addpart(1); dens = 3
                if i == 48 + 7:
                    assert not wr and not side
                    p.e('s_waitcnt lgkmcnt(0)\ns_barrier')
                    side += rdpart(0, 2) + [None] * 6 + addpart(2)
            p.e(f'v_mfma_f32_32x32x16_bf16 {acc3[nb][r]}, {WO[t][4*nb:4*nb+4]}, {AB[i % 32]}, {acc3[nb][r]}')
            if a_next < 64 and a_next <= i + 30 and (nb == 0 or a_next < i + 28): p.e(aload(a_next)); a_next += 1
            if wr and t >= 2 and (nb == 1 or r == 3): p.e(wr.pop(0))
            for _ in range(dens):
                if side:
                    x = side.pop(0)
                    if x: p.e(x)
        if t == 15 and r < 3:
            assert not wr
            wr = [f'ds_write_b128 {vrw[r]}, {acc3[nb][r][4*j:4*j+4]} offset:{(nb * 4 + j) * 1024}' for nb in range(2) for j in range(4)]
    fin = side
    assert a_next == 64
    pf.stamp(7)
    p.add([x for x in fin if x])
    for nb in range(2):
        a_ = acc3[nb][3]
        for jp in range(2):
            for i in range(4 * jp, 4 * jp + 4): p.e(f'v_pk_add_f32 {a_[2*i:2*i+2]}, {a_[2*i:2*i+2]}, {acc3[nb][0][2*i:2*i+2]}')
            o = Sx[0][8 + 4 * jp:12 + 4 * jp] if nb == 0 else P[0][4 * jp:4 * jp + 4]
            for i in range(4): p.e(f'v_cvt_pk_bf16_f32 {o[i]}, {a_[8 * jp + 2 * i]}, {a_[8 * jp + 2 * i + 1]}')
            p.e(f'v_permlane32_swap_b32 {o[0]}, {o[2]}\nv_permlane32_swap_b32 {o[1]}, {o[3]}')
            p.e(f'buffer_store_dwordx4 {o}, {vout}, {sout}, 0 offen offset:{nb * 64 + jp * 32}' + ('', ' sc1', ' nt', ' sc0 sc1')[OUTM])
    pf.stamp(8)
    pf.flush(s_w, sws, vl, vu0)
    if PRB:
        p.e(f"""
        s_cmp_lg_u32 s2, 0
        s_cbranch_scc1 {name}_probe_done
        v_readlane_b32 {s_t0}, {vtr}, {44 + 2 * PRA}
        v_readlane_b32 {s_t1}, {vtr}, {44 + 2 * PRB}
        v_readlane_b32 {s_t2}, {vtr}, 62
        s_nop 4
        s_sub_u32 {s_t0}, {s_t1}, {s_t0}
        s_min_u32 {s_t0}, {s_t0}, 20000
        s_lshl_b32 {s_t0}, {s_t0}, 2
        s_mov_b32 {s_cnt}, 200000
        {name}_probe:
        s_memrealtime {s_pt[0:2]}
        s_waitcnt lgkmcnt(0)
        s_sub_u32 {s_t1}, {s_pt[0]}, {s_t2}
        s_cmp_ge_u32 {s_t1}, {s_t0}
        s_cbranch_scc1 {name}_probe_done
        s_sub_u32 {s_cnt}, {s_cnt}, 1
        s_cmp_lg_u32 {s_cnt}, 0
        s_cbranch_scc1 {name}_probe
        {name}_probe_done:
        """)
    if dbg:
        p.e(f"""
        v_readlane_b32 {s_t0}, {vtr}, 44
        v_readlane_b32 {s_t1}, {vtr}, 45
        v_and_b32 {vu1}, 1, {vl}
        v_cmp_eq_u32 vcc, 0, {vu1}
        v_mov_b32 {vu1}, {s_t0}
        v_mov_b32 {vu2}, {s_t1}
        v_cndmask_b32 {vu1}, {vu2}, {vu1}, vcc
        v_sub_u32 {vu1}, {vtr}, {vu1}
        v_subrev_u32 {vu2}, 46, {vl}
        v_lshlrev_b32 {vu2}, 2, {vu2}
        v_cmp_gt_u32 vcc, 64, {vu2}
        v_cndmask_b32 {vu2}, 2.0, {vu2}, vcc
        s_mov_b32 {skv[0]}, {pdbg[0]}
        s_mov_b32 {skv[1]}, {pdbg[1]}
        s_movk_i32 {skv[2]}, 64
        s_lshl_b32 {s_t0}, s2, 2
        s_add_u32 {s_t0}, {s_t0}, {s_w}
        s_cmp_eq_u32 {s_t0}, {dbg - 1}
        s_cselect_b32 {s_t0}, 0, 2.0
        buffer_store_dword {vu1}, {vu2}, {skv}, {s_t0} offen
        """)
    p.e('s_endpgm')

    p.seg('slow0')
    p.e(f'{name}_slow:')
    p.e(f"""
    s_waitcnt vmcnt(0) lgkmcnt(0)
    v_mov_b32 {vu0}, 0xff800000
    v_mov_b32 {vu1}, 0xff800000
    s_mov_b32 {s_okv}, 0
    s_mov_b32 {skv[2]}, 262144
    """)
    p.seg('slow1')
    p.e(f'{name}_slow1:')
    for f in range(2): p.e(f'buffer_load_dwordx4 {K[0][4*f:4*f+4]}, {vl16}, {skv}, {s_okv} offen offset:{f * 1024}')
    for q in range(2):
        for f in range(2): p.e(qk(Sx[q], 0, q, f, '0'))
    rowmax(vu0, Sx[0], False); rowmax(vu1, Sx[1], False)
    p.e(f's_add_u32 {s_okv}, {s_okv}, 4096\ns_cmp_lt_u32 {s_okv}, 262144\ns_cbranch_scc1 {name}_slow1')
    p.seg('slow2')
    setc(0, vu0); setc(1, vu1)
    for q in range(2):
        for i in range(16): p.e(f'v_accvgpr_write_b32 {O[q][i]}, 0')
        for i in range(4): p.e(f'v_accvgpr_write_b32 {L[q][i]}, 0')
    p.e(f's_mov_b32 {s_okv}, 0')
    p.seg('slow3')
    p.e(f'{name}_slow3:')
    for f in range(2): p.e(f'buffer_load_dwordx4 {K[0][4*f:4*f+4]}, {vl16}, {skv}, {s_okv} offen offset:{f * 1024}')
    for f in range(2): p.e(f'buffer_load_dwordx4 {V[0][4*f:4*f+4]}, {vl16}, {skv}, {s_okv} offen offset:{2048 + f * 1024}')
    for q in range(2):
        for f in range(2): p.e(qk(Sx[q], 0, q, f, C[q]))
    for q in range(2):
        for i in range(16): p.e(f'v_exp_f32 {Sx[q][i]}, {Sx[q][i]}')
        for i in range(8): p.e(cvt(q, i))
        p.add([pv(q, 0), pv(q, 1), rsum(q)])
    p.e(f's_add_u32 {s_okv}, {s_okv}, 4096\ns_cmp_lt_u32 {s_okv}, 262144\ns_cbranch_scc1 {name}_slow3')
    p.seg('slow4')
    lsum()
    p.e(f's_branch {name}_epi')
    for lab, cond, reload_ in spins:
        p.seg(lab)
        p.e(f'{lab}_spin:\ns_mov_b32 {s_cnt if lab.endswith("cnt") else s_spin}, {SPIN}\n{lab}_again:\ns_sleep 2')
        p.add(reload_)
        p.e('s_waitcnt vmcnt(0)\ns_nop 1')
        p.add(cond)
        r_ = s_cnt if lab.endswith('cnt') else s_spin
        p.e(f's_nop 4\ns_cbranch_vccz {lab}_ok\ns_sub_u32 {r_}, {r_}, 1\ns_cmp_lg_u32 {r_}, 0\ns_cbranch_scc1 {lab}_again\ns_branch {lab}_ok')
    p.seg('end')
    p.e(f'{name}_end:\ns_endpgm')
    mid = ['join', 'partA', 'loop', 'loop', 'tail']
    slow = ['slow0', 'slow1', 'slow1', 'slow2', 'slow3', 'slow3', 'slow4']
    traces = []
    for wc in range(2):
        for x in ([],):
            traces.append(['pro'] + x + [f'c{wc}a', f'c{wc}l1', f'c{wc}l2', f'c{wc}l1', f'c{wc}l2', f'c{wc}l1', f'c{wc}last'] + mid + ['epi'])
    traces.append(mid + slow + ['epi'])
    for lab, _, _ in spins: traces.append([lab])
    p.auto_waits(traces)
    nn = p.hazards(traces)
    return kernel_header(name) + p.text(), kernel_desc(name), dict(nops=nn, v=va.p, a=aa.p, s=max(sa.p, s_hi))

if __name__ == '__main__':
    import sys
    NAME = 'gated_mix__softmax_full_mha__glu_gated_bilinear__prompt'
    REF = f'cdna_kernels/{NAME}.s.ref'
    dst = sys.argv[1]
    kw = {a.split('=')[0]: float(a.split('=')[1]) if '.' in a else int(a.split('=')[1]) for a in sys.argv[2:] if '=' in a}
    t, d, info = gen_fused(NAME + '_kernel', prof='prof' in sys.argv, force_slow='slow' in sys.argv, **kw)
    print(info, file=sys.stderr)
    head = [l for l in open(REF).read().split('\n') if l.startswith(';') and '@launch' not in l]
    out = '\n'.join(head) + f'\n; @launch grid=(256,1,1) block=(256,1,1) lds={F_LDS}\n.amdgcn_target "amdgcn-amd-amdhsa--gfx950"\n' + t + d
    open(dst, 'w').write(out)
```

```python
from gen_common import *

X0, X1, W0, W1, QS = 0, 32768, 65536, 106496, 147456
F_LDS = 163840
WS_FL = 33 << 20
WS_T = 36 << 20
DBG_CNT = 64
SPIN = 40000

def gen_fused(name, prof=False, pfd=3, cq=8, cg=6.5, cx=4, NB=8, DA=4, DW=3, RP=6, PM=36, HP=1.25, force_slow=False, ptrace=0, dbg=0, exp_=0, VSP=2, PFP=18, OC=8, KP=1, H0=2, ROT=0, CPF=1, OUTM=1, CP0=1, CP2=0, FG=3, TLB=0, EV=1, DL=6, PT=0, GP=0, TT=1, TP1=0, TP2=0, AL=16, ALS=2, ALM=18, FT=1, PA=48, AS=1, KS=2, PK=0, PKR=1, AW=1, KF=100, KC=5, FOFF=0, S1P=10, MWT=0, LM1=0, LM2=0, PO=3, LP=0, PRE=-1, PF0=0, PD0=3, xpf=1, F0=0, FS=1.0, GD=2, SMC=16, VMC=8, VPEN=16, MW=1, PRA=0, PRB=0, PG=3, E0=11, st_mod=' sc1'):
    pfm = 1
    kv_mod = '' if exp_ & 64 else st_mod
    lm1 = ('', ' sc1', ' nt', ' sc0')[LM1]; lm2 = ('', ' sc1', ' nt', ' sc0')[LM2]
    p = Prog()
    sa = Alloc('s', 4, 102); va = Alloc('v', 1, 256); aa = Alloc('a', 0, 256)
    ptr = sa(16, 4)
    px, pqkv, pwo, pwg, pwu, pwd, pgw = ptr[0:2], ptr[2:4], ptr[4:6], ptr[8:10], ptr[10:12], ptr[12:14], ptr[14:16]
    pod = sa(4, 4); pout, pdbg = pod[0:2], pod[2:4]
    pws = sa(2); smask = sa(2)
    sws = sa(4); sfl = sa(4); sdbg = sa(4)
    s_mb, s_h, s_w, s_wr, s_wc, s_t0, s_t1, s_t2, s_cnt, s_tr, s_hb = [sa() for _ in range(11)]
    s_pt = sa(4, 2)
    s_base = sa.p
    sx = sa(4); sq = sa(4); sg = sa(4); spf = sa(4); sp2 = sa(4); sp3 = sa(4)
    s_c0, s_c1, s_ox, s_oq, s_og, s_pfo, s_pfs, s_gs, s_grp, s_ano = [sa() for _ in range(10)]
    s_mx, s_mw, s_msk = sa(), sa(), sa()
    sp4 = sa(4)
    s_hi = sa.p

    vl, vpd, vflag, vtr, vflk = [va() for _ in range(5)]
    v_base = va.p
    pf = Prof2(p, prof, s_pt, vtr, s_tr)
    vdx = [va() for _ in range(8)]; vdq = [va() for _ in range(2)]; vdq.append(vdq[0]); vdg = [va() for _ in range(7)]
    vxr = [va() for _ in range(2)]; vqr = [va() for _ in range(2)]; vgr = [va() for _ in range(2)]
    vt0, vt1, vt2, vt3, vpf = [va() for _ in range(5)]
    vcnt = va(); vwo = va()
    vtmp = va(28, 4)
    assert vtmp.a == 36
    xlo = [[aa(8, 4) for _ in range(4)] for _ in range(2)]; xhi = [aa(8, 4) for _ in range(4)]
    def xf(st, m, ks): return (xlo[st][m] if m < 4 else xhi[m - 4])[4 * ks:4 * ks + 4]
    NSLOT = 4; DIST = 3
    wf = [aa(8, 4) for _ in range(NSLOT)]
    acc = [[None] * 8 for _ in range(10)]
    for n in [0, 1, 6, 7, 8, 9, 2, 3, 4, 5]:
        for m in range(8):
            acc[n][m] = va(4, 4) if va.p + 4 <= 256 else aa(4, 4)

    def lines(s): return [x.strip() for x in s.strip().split('\n')]
    def dma_x(st):
        L = []
        for i in range(8):
            pre = [f's_add_u32 m0, {s_mx}, {(X0, X1)[st] + (i // 4) * 4096}'] if i % 4 == 0 else []
            L.append((pre, Ins(f'buffer_load_dwordx4 {vdx[i]}, {sx}, {s_ox} offen offset:{(i % 4) * 1024}{lm1} lds', f'S{st}')))
        return L
    def dma_w(st):
        L = []
        for i in range(10):
            pre = [f's_add_u32 m0, {s_mw}, {(W0, W1)[st] + (i // 4) * 4096}'] if i % 4 == 0 else []
            v, sr, so = (vdq[i - 7], sq, s_oq) if i >= 7 else (vdg[i], sg, s_og)
            L.append((pre, Ins(f'buffer_load_dwordx4 {v}, {sr}, {so} offen offset:{(i % 4) * 1024}{lm1} lds', f'S{st}')))
        return L
    def emit(lst):
        for pre, ins in lst:
            p.add(pre); p.add([ins])
    adv = [f's_add_u32 {s_oq}, {s_oq}, {64 * 6144}', f's_add_u32 {s_og}, {s_og}, {64 * 7168}', f's_add_u32 {s_ox}, {s_ox}, 128']

    p.seg('pro')
    p.e(f"""
    s_cmp_ge_u32 s2, 256
    s_cbranch_scc1 {name}_end
    """)
    if ptrace == 3:
        p.e(f's_memtime {s_pt[2:4]}\ns_waitcnt lgkmcnt(0)\ns_mov_b32 {s_hb}, {s_pt[2]}')
    p.e(f"""
    s_load_dwordx16 {ptr}, s[0:1], 0
    s_load_dwordx4 {pod}, s[0:1], 64
    s_load_dwordx2 {pws}, s[0:1], 80
    v_lshrrev_b32 {vt0}, 6, v0
    v_and_b32 {vl}, 63, v0
    s_lshr_b32 {s_t1}, s2, 3
    v_readfirstlane_b32 {s_w}, {vt0}
    s_and_b32 {s_mb}, {s_t1}, 7
    s_and_b32 {s_t0}, s2, 7
    s_lshr_b32 {s_t1}, {s_t1}, 3
    s_lshl_b32 {s_h}, {s_t0}, 2
    s_add_u32 {s_h}, {s_h}, {s_t1}
    s_lshr_b32 {s_wr}, {s_w}, 1
    s_and_b32 {s_wc}, {s_w}, 1
    """)
    if CP0:
        p.e(f"""
        s_getpc_b64 {sp3[0:2]}
        {name}_pcs:
        s_and_b32 {sp3[1]}, {sp3[1]}, 0xffff
        s_mov_b32 {sp3[2]}, {name}_join-{name}_pcs
        s_mov_b32 {sp3[3]}, 0x00020000
        s_lshr_b32 {s_t0}, s2, 3
        s_lshl_b32 {s_t0}, {s_t0}, 2
        s_add_u32 {s_t0}, {s_t0}, {s_w}
        s_lshl_b32 {s_t0}, {s_t0}, 7
        v_lshl_add_u32 {vwo}, {vl}, 14, {s_t0}
        """)
        p.add([Ins(f'buffer_load_dword {vpd}, {vwo}, {sp3}, 0 offen', 'pf')])
    vxp, vgp = vtmp[0], vtmp[1]
    p.e(f"""
    v_and_b32 {vt0}, 7, {vl}
    v_lshrrev_b32 {vt1}, 3, {vl}
    v_mul_u32_u24 {vt2}, 86, {vt1}
    v_lshrrev_b32 {vt2}, 8, {vt2}
    v_mad_i32_i24 {vt1}, {vt2}, -3, {vt1}
    v_lshl_add_u32 {vt0}, {vt2}, 6, {vt0}
    s_lshl_b32 {s_t0}, {s_mb}, 3
    v_add_u32 {vt0}, {s_t0}, {vt0}
    s_cmp_eq_u32 {s_w}, 3
    s_movk_i32 {s_c0}, 7168
    s_cmov_b32 {s_c0}, 6144
    s_movk_i32 {s_c1}, 108
    s_cmov_b32 {s_c1}, 2048
    v_mul_u32_u24 {vt0}, {s_c0}, {vt0}
    v_mad_u32_u24 {vxp}, {vt1}, {s_c1}, {vt0}
    v_cmp_gt_u32 vcc, 48, {vl}
    s_lshl_b32 {s_t0}, {s_t1}, 17
    v_lshl_add_u32 {vt0}, {vl}, 11, {s_t0}
    v_cndmask_b32 {vxp}, 2.0, {vxp}, vcc
    s_cmp_eq_u32 {s_w}, 0
    s_cselect_b64 vcc, -1, 0
    v_cndmask_b32 {vxp}, {vxp}, {vt0}, vcc
    """)
    x_addr = lines(f"""
    v_lshrrev_b32 {vt0}, 3, {vl}
    v_and_b32 {vt1}, 7, {vl}
    v_lshrrev_b32 {vt2}, 4, {vl}
    v_xor_b32 {vt1}, {vt1}, {vt2}
    v_lshlrev_b32 {vt3}, 11, {vt0}
    s_lshl_b32 {s_c0}, {s_w}, 17
    v_add_u32 {vt3}, {s_c0}, {vt3}
    v_lshl_add_u32 {vdx[0]}, {vt1}, 4, {vt3}
    v_xor_b32 {vt1}, 4, {vt1}
    v_lshl_add_u32 {vdx[1]}, {vt1}, 4, {vt3}
    v_add_u32 {vdx[1]}, {16384 - 1024}, {vdx[1]}
    s_lshl_b32 {s_mx}, {s_w}, 13
    s_mov_b32 {s_ox}, 0""") + [f'v_add_u32 {vdx[i]}, {(i - i % 2) * 16384 - (i % 4 - i % 2) * 1024}, {vdx[i % 2]}' for i in range(2, 8)]
    q_addr = lines(f"""
    v_lshrrev_b32 {vt0}, 2, {vl}
    v_and_b32 {vt2}, 2, {vt2}
    v_and_b32 {vt1}, 3, {vl}
    v_xor_b32 {vt1}, {vt1}, {vt2}
    s_lshl_b32 {s_c0}, {s_w}, 4
    v_add_u32 {vt0}, {s_c0}, {vt0}
    v_mul_u32_u24 {vt0}, 6144, {vt0}
    v_lshl_add_u32 {vdq[1]}, {vt1}, 4, {vt0}
    v_add_u32 {vdq[0]}, 1024, {vdq[1]}
    s_mul_i32 {s_mw}, {s_w}, 10240
    s_mov_b32 {s_oq}, 0
    s_mov_b32 {s_og}, 0""")
    if PRE >= 0: p.add(x_addr + q_addr)
    def gu_offsets():
        L = [lines(f"""
        s_mul_i32 {s_t0}, {s_wc}, {32 * 7168}
        s_movk_i32 {s_c0}, 6944
        s_movk_i32 {s_c1}, 28672
        v_mul_u32_u24 {vt3}, 4682, {vl}
        v_lshl_add_u32 {vtmp[2]}, {vl}, 4, {s_t0}""")]
        for j in range(7):
            tj = vt3; q_ = []
            if j:
                q_.append(f'v_add_u32 {vt0}, {64 * j * 4682}, {vt3}'); tj = vt0
            q_ += lines(f"""
            v_bfe_u32 {vt1}, {tj}, 18, 1
            v_bfe_u32 {vt2}, {tj}, 19, 1
            v_lshrrev_b32 {vt0}, 16, {tj}
            v_sub_u32 {vt1}, {vt1}, {vt2}
            v_mad_u32_u24 {vdg[j]}, {vt0}, {s_c0}, {vtmp[2]}
            v_mad_i32_i24 {vdg[j]}, {vt1}, {s_c1}, {vdg[j]}""")
            if j == 3: q_.append(f'v_add_u32 {vtmp[2]}, 4096, {vtmp[2]}')
            L.append(q_)
        return L
    gu = gu_offsets()
    if PRE >= 1:
        for q_ in gu: p.add(q_)
    PD = pfd
    gpf_addr = lines(f"""
        s_cmp_eq_u32 {s_w}, 0
        s_cselect_b32 {s_grp}, 12, 14
        s_lshl_b32 {s_pfs}, {s_grp}, 15
        s_cmp_eq_u32 {s_w}, 3
        s_cselect_b32 {s_grp}, 8, {s_grp}
        s_cselect_b32 {s_pfs}, 0x80, {s_pfs}
        s_cselect_b32 {s_ano}, 11, 7
        s_mul_i32 {s_t1}, {s_grp}, s2
        v_and_b32 {vt1}, 15, {vl}
        v_add_u32 {vt0}, {s_t1}, {vt1}
        v_lshlrev_b32 {vpf}, {s_ano}, {vt0}
        v_lshrrev_b32 {vt0}, 4, {vl}
        v_mul_lo_u32 {vt0}, {vt0}, {s_pfs}
        v_add_u32 {vgp}, {vt0}, {vpf}
        v_cmp_gt_u32 vcc, {s_grp}, {vt1}
        v_cmp_gt_u32 {smask}, {16 * (PD0 - 1)}, {vl}
        s_and_b64 {smask}, {smask}, vcc
        v_cndmask_b32 {vgp}, 2.0, {vgp}, {smask}
        v_cmp_gt_u32 vcc, {s_grp}, {vl}
        s_mul_i32 {s_pfo}, {s_pfs}, {PD0}
        v_cndmask_b32 {vpf}, 2.0, {vpf}, vcc""")
    gpf_issue = lines(f"""
        s_cmp_eq_u32 {s_w}, 0
        s_cselect_b64 {spf[0:2]}, {pqkv}, {pwg}
        s_cmp_eq_u32 {s_w}, 2
        s_cselect_b64 {spf[0:2]}, {pwu}, {spf[0:2]}
        s_cmp_eq_u32 {s_w}, 3
        s_cselect_b64 {spf[0:2]}, {px}, {spf[0:2]}
        s_lshl_b32 {spf[2]}, {s_grp}, 19""") + [Ins(f'buffer_load_dword {vpd}, {vgp}, {spf}, {s_pfs} offen', 'pf')]
    def pfetch():
        return [Ins(f'buffer_load_dword {vpd}, {vpf}, {spf}, {s_pfo} offen', 'pf'), f's_add_u32 {s_pfo}, {s_pfo}, {s_pfs}']
    def pfetch_d():
        return [Ins(f'buffer_load_dword {vpd}, {vt3}, {sp2}, {s_c1} offen', 'pf'), f's_add_u32 {s_c1}, {s_c1}, {1024 * DL * 128}']
    rd_addr = lines(f"""
    v_and_b32 {vt0}, 15, {vl}
    v_lshrrev_b32 {vt1}, 4, {vl}
    v_lshrrev_b32 {vt2}, 1, {vt0}
    v_xor_b32 {vt2}, {vt1}, {vt2}
    s_lshl_b32 {s_t0}, {s_wr}, 14
    v_lshl_add_u32 {vt3}, {vt0}, 7, {s_t0}
    v_lshl_add_u32 {vxr[0]}, {vt2}, 4, {vt3}
    v_xor_b32 {vxr[1]}, 64, {vxr[0]}
    v_and_b32 {vt3}, 3, {vt0}
    v_lshlrev_b32 {vt3}, 3, {vt3}
    v_lshrrev_b32 {vt0}, 2, {vt0}
    v_lshrrev_b32 {vt2}, 1, {vt1}
    v_and_b32 {vt1}, 1, {vt1}
    v_mul_u32_u24 {vqr[0]}, 10240, {vt2}
    v_mul_u32_u24 {vqr[1]}, {512 + 32}, {vt1}
    v_add3_u32 {vqr[0]}, {vqr[0]}, {vqr[1]}, {vt3}
    v_lshl_add_u32 {vqr[0]}, {vt0}, 6, {vqr[0]}
    s_lshl_b32 {s_t0}, {s_wc}, 10
    s_sub_u32 {s_t0}, {W0 + 8192}, {s_t0}
    v_add_u32 {vqr[0]}, {s_t0}, {vqr[0]}
    v_xor_b32 {vqr[1]}, 32, {vqr[0]}
    v_lshl_add_u32 {vt0}, {vt1}, 2, {vt0}
    v_lshl_add_u32 {vt0}, {vt2}, 4, {vt0}
    v_mul_u32_u24 {vt0}, 224, {vt0}
    s_mul_i32 {s_t0}, {s_wc}, 96
    s_add_u32 {s_t0}, {s_t0}, {W0}
    v_add3_u32 {vgr[0]}, {vt0}, {vt3}, {s_t0}
    v_add_u32 {vgr[1]}, 20480, {vgr[0]}""")
    if PRE >= 2 or PF0: p.add(gpf_addr)
    if PRE >= 3: p.add(rd_addr)
    p.e(f"""
    s_lshl_b32 {s_t0}, {s_mb}, 19
    s_lshl_b32 {s_t1}, {s_h}, 6
    s_mul_i32 {s_t2}, {s_h}, 224
    s_mov_b32 {sx[3]}, 0x00020000
    s_mov_b32 {sq[3]}, 0x00020000
    s_mov_b32 {sg[3]}, 0x00020000
    s_mov_b32 {spf[3]}, 0x00020000
    s_sub_u32 {sx[2]}, {S * D * 2}, {s_t0}
    s_sub_u32 {sq[2]}, {D * 3072 * 2}, {s_t1}
    s_sub_u32 {sg[2]}, {D * F * 2}, {s_t2}
    s_waitcnt lgkmcnt(0)
    """)
    pf.stamp(0)
    pf.trace_init(vtr, s_tr)
    if ptrace == 3:
        p.e(f'v_writelane_b32 {vtr}, {s_hb}, 0\ns_mov_b32 {s_tr}, 1')
        pf.trace()
    p.e(f"""
    s_add_u32 {sx[0]}, {px[0]}, {s_t0}
    s_addc_u32 {sx[1]}, {px[1]}, 0
    s_add_u32 {sq[0]}, {pqkv[0]}, {s_t1}
    s_addc_u32 {sq[1]}, {pqkv[1]}, 0
    s_cmp_ge_u32 {s_w}, 2
    s_cselect_b64 {sg[0:2]}, {pwu}, {pwg}
    s_add_u32 {sg[0]}, {sg[0]}, {s_t2}
    s_addc_u32 {sg[1]}, {sg[1]}, 0
    s_cmp_eq_u32 {s_w}, 3
    s_cselect_b64 {spf[0:2]}, {sq[0:2]}, {sg[0:2]}
    s_cselect_b32 {spf[2]}, {sq[2]}, {sg[2]}
    s_cmp_eq_u32 {s_w}, 0
    s_cselect_b64 {spf[0:2]}, {sx[0:2]}, {spf[0:2]}
    s_cselect_b32 {spf[2]}, {sx[2]}, {spf[2]}
    """)
    if xpf: p.add([Ins(f'buffer_load_dword {vpd}, {vxp}, {spf}, 0 offen', 'pf')])
    if PF0: p.add(gpf_issue)
    if ptrace > 0: pf.trace()
    if PRE < 0: p.add(x_addr)
    emit(dma_x(0))
    if ptrace > 0: pf.trace()
    if PRE < 0: p.add(q_addr)
    w0 = dma_w(0)
    p.e(f's_add_u32 m0, {s_mw}, {W0 + 4096}')
    emit(w0[7:])
    if PRE < 1: p.add(gu[0])
    for j in range(7):
        if PRE < 1: p.add(gu[j + 1])
        emit([w0[j]])
    p.add(adv)
    if ptrace > 0: pf.trace()
    emit((dma_w(1) + dma_x(1))[:S1P])
    if PRE < 2 and not PF0: p.add(gpf_addr)
    if not PF0: p.add(gpf_issue)
    if PRE < 3: p.add(rd_addr)
    gx = [vtmp[4 * i:4 * i + 4] for i in range(4)]; gw = [vtmp[16:20], vtmp[20:24]]; t = vtmp[24:28]; z = [vt0, vt1]
    flag_setup = [[f's_add_u32 {sfl[0]}, {pws[0]}, {WS_FL}', f's_addc_u32 {sfl[1]}, {pws[1]}, 0']] + lines(f"""
    s_movk_i32 {sfl[2]}, 8192
    s_mov_b32 {sfl[3]}, 0x00020000
    s_mov_b32 {sws[0]}, {pws[0]}
    s_mov_b32 {sws[1]}, {pws[1]}
    s_mov_b32 {sws[2]}, {WS_SIZE}
    s_mov_b32 {sws[3]}, 0x00020000
    s_mov_b32 {sp2[3]}, 0x00020000
    s_lshl_b32 {s_t0}, {s_mb}, 5
    s_add_u32 {s_t0}, {s_t0}, {s_h}
    s_lshl_b32 {s_gs}, {s_t0}, 7
    s_lshl_b32 {s_t0}, {s_t0}, 2
    s_add_u32 {s_t0}, {s_t0}, {s_w}
    s_lshl_b32 {s_t0}, {s_t0}, 2
    v_mov_b32 {vt0}, {s_t0}
    v_cmp_eq_u32 vcc, 0, {vl}
    v_mov_b32 {vt3}, 0
    v_cndmask_b32 {vflag}, 2.0, {vt0}, vcc
    s_lshl_b32 {s_t0}, {s_h}, 3
    s_add_u32 {s_t0}, {s_t0}, {s_mb}
    s_lshl_b32 {s_t0}, {s_t0}, 2
    s_add_u32 {s_t0}, {s_t0}, {s_w}
    s_lshl_b32 {s_t0}, {s_t0}, 2
    s_add_u32 {s_t0}, {s_t0}, 4096
    v_mov_b32 {vt0}, {s_t0}
    buffer_store_dword {vt3}, {vflag}, {sfl}, 0 offen sc1
    v_cndmask_b32 {vflk}, 2.0, {vt0}, vcc
    s_lshl_b32 {s_t1}, {s_w}, 3
    buffer_store_dword {vt3}, {vflk}, {sfl}, 0 offen sc1
    s_add_u32 {s_gs}, {s_gs}, {s_t1}
    s_add_u32 {s_gs}, {s_gs}, {WS_G}
    s_lshl_b32 {s_t0}, {s_h}, 3
    s_lshl_b32 {s_t1}, {s_w}, 1
    s_add_u32 {s_t0}, {s_t0}, {s_t1}
    s_lshl_b32 {s_t2}, {s_t0}, 11
    s_mov_b32 {s_msk}, 0xffff0000
    v_lshlrev_b32 {z[0]}, 5, {vl}""")
    if ptrace > 0: pf.trace()
    p.e('WAITTAG S0')
    if ptrace > 0: pf.trace()
    p.e('s_barrier')
    if ptrace > 0: pf.trace()
    pf.stamp(1)

    def gate_ops():
        L = []
        for r in range(2):
            for j in range(8):
                xr = gx[2 * r + j // 4][j % 4]; wr_ = gw[j // 4][j % 4]
                L += [f'v_lshlrev_b32 {t[0]}, 16, {xr}', f'v_lshlrev_b32 {t[1]}, 16, {wr_}',
                      f'v_and_b32 {t[2]}, {s_msk}, {xr}', f'v_and_b32 {t[3]}, {s_msk}, {wr_}',
                      f'v_mul_f32 {t[0]}, {t[0]}, {t[1]}', f'v_mul_f32 {t[2]}, {t[2]}, {t[3]}',
                      f'v_cvt_pk_bf16_f32 {t[0]}, {t[0]}, {t[2]}', f'v_lshlrev_b32 {t[1]}, 16, {t[0]}',
                      f'v_and_b32 {t[2]}, {s_msk}, {t[0]}']
                if j == 0: L.append(f'v_add_f32 {z[r]}, {t[1]}, {t[2]}')
                else: L += [f'v_add_f32 {t[1]}, {t[1]}, {t[2]}', f'v_add_f32 {z[r]}, {z[r]}, {t[1]}']
        for mode in ('quad_perm:[1,0,3,2]', 'quad_perm:[2,3,0,1]', 'row_half_mirror', 'row_mirror'):
            for r in range(2): L.append(f'v_add_f32_dpp {z[r]}, {z[r]}, {z[r]} {mode} row_mask:0xf bank_mask:0xf')
        for op in ('v_permlane16_swap_b32', 'v_permlane32_swap_b32'):
            for r in range(2): L.append(f'v_mov_b32 {t[r]}, {z[r]}')
            for r in range(2): L.append(f'{op} {t[r]}, {z[r]}')
            for r in range(2): L.append(f'v_add_f32 {z[r]}, {z[r]}, {t[r]}')
        L += f"""v_and_b32 {t[1]}, 1, {vl}
        v_cmp_eq_u32 vcc, 1, {t[1]}
        v_and_b32 {t[3]}, 2, {vl}
        v_cndmask_b32 {t[0]}, {z[0]}, {z[1]}, vcc
        v_cvt_pk_bf16_f32 {t[0]}, {t[0]}, {t[0]}
        v_and_b32 {t[0]}, {s_msk}, {t[0]}
        v_mul_f32 {t[0]}, {hex(f32bits(-math.log2(math.e)))}, {t[0]}
        v_exp_f32 {t[0]}, {t[0]}
        v_cmp_eq_u32 vcc, 2, {t[3]}
        v_add_f32 {t[0]}, 1.0, {t[0]}
        v_rcp_f32 {t[0]}, {t[0]}
        v_lshlrev_b32 {t[3]}, 4, {t[3]}
        v_cvt_pk_bf16_f32 {t[0]}, {t[0]}, {t[0]}
        v_and_b32 {t[0]}, {s_msk}, {t[0]}
        v_sub_f32 {t[2]}, 1.0, {t[0]}
        v_cvt_pk_bf16_f32 {t[2]}, {t[2]}, {t[2]}
        v_and_b32 {t[2]}, {s_msk}, {t[2]}
        v_cndmask_b32 {t[0]}, {t[0]}, {t[2]}, vcc
        v_lshl_add_u32 {t[3]}, {t[1]}, 2, {t[3]}
        v_cmp_gt_u32 vcc, 4, {vl}
        v_cndmask_b32 {t[3]}, 2.0, {t[3]}, vcc
        buffer_store_dword {t[0]}, {t[3]}, {sws}, {s_gs} offen{st_mod}""".split('\n')
        return [x.strip() for x in L]

    def wread(n, st, wc):
        slot = wf[(10 * st + n) % NSLOT]
        nq = 4 if wc == 0 else 2
        L = []
        for ks in range(2):
            if n < nq: base = vqr[n % 2]; off = ks * 20480 + (1024 if (wc == 0 and n < 2) else 0); so = 256
            else: base = vgr[(n - nq) % 2]; off = ks * 10240 + ((n - nq) // 2) * 32; so = 1792
            off += st * (W1 - W0)
            L += [f'ds_read_b64_tr_b16 {slot[4 * ks + 2 * s:4 * ks + 2 * s + 2]}, {base} offset:{off + s * so}' for s in range(2)]
        return L
    def xread(m, ks, st):
        return f'ds_read_b128 {xf(st, m, ks)}, {vxr[ks]} offset:{st * (X1 - X0) + m * 2048}'

    for m in range(2):
        for ks in range(2): p.e(xread(m, ks, 0))
    p.e(f's_cmp_eq_u32 {s_wc}, 1')
    p.e(f's_cbranch_scc1 {name}_c1')

    def stage(st, wc, first=False, last=False, extra=None, fill=None, estep=2, postbar=None, nodma1=False, early=None, dens=2):
        slots = {}
        for j in range(10):
            jj = j + DIST
            if jj < 10: rd = wread(jj, st, wc)
            elif last: continue
            else: rd = wread(jj - 10, st ^ 1, wc)
            for i, x in enumerate(rd): place(slots, 16 * j + ((0, 2, 4, 6) if j < 9 else (0, 11, 13, 15))[i], x)
        bar = 16 * (10 - DIST)
        if not last:
            for i in range(8): place(slots, bar + 8 + (0, 2, 4, 6, 16, 18, 20, 22)[i], xread(i // 2, i % 2, st ^ 1))
            for i in range(8): place(slots, 144 + (2, 3, 4, 5, 7, 8, 9, 10)[i], xread(7 - i // 2, i % 2, st ^ 1))
        pos = []; c = 1.0
        for k in range(18):
            pos.append(int(c)); c += cg if k < 7 else (cq if k < 10 else cx)
        endc = int(c) - (160 - bar)
        pos0 = pos
        if first:
            sh = pos[S1P] - 1
            pos = [(int(F0 + (x - sh) * FS) + 160 - bar) if k >= S1P else -1 for k, x in enumerate(pos)]; endc = int(F0 + (endc + 160 - bar - sh) * FS)
        if not last:
            dl = dma_w(st ^ 1) + dma_x(st ^ 1)
            for k in range(18):
                c = pos[k] - (160 - bar)
                if c < 0: continue
                for x in dl[k][0]: place(slots, max(c - 1, 0), x)
                place(slots, c, dl[k][1])
            for i, x in enumerate(adv): place(slots, endc - 2 + i, x)
            if first: pos = pos0
            dl = dma_w(st) + dma_x(st)
            for k in range(18):
                c = bar + pos[k]
                if c >= 160 or nodma1: continue
                for x in dl[k][0]: place(slots, c - 1, x)
                place(slots, c, dl[k][1])
        if early:
            c = (pos[PFP] - (0 if first else 160 - bar) - 2) if PFP < 18 else endc + 1
            for x in early: place(slots, max(c, 0), x); c += 1
            if PFP >= 18: endc = c + 1
        c = endc + 1
        for x in (extra or []):
            if isinstance(x, list):
                for y in x: place(slots, c, y)
                c += estep; continue
            place(slots, c, x)
            c += 3 if (isinstance(x, Ins) or x.startswith('buffer')) else estep
        assert c < bar
        for i, x in enumerate(postbar or []):
            for y in (x if isinstance(x, list) else [x]):
                if y is not None: place(slots, bar + 3 + 2 * i, y)
        if FOFF:
            for c in sorted(slots):
                if c % 2 == 0 and c + 1 < 160 and len(slots.get(c + 1, [])) + len(slots[c]) <= FOFF:
                    slots[c + 1] = slots[c] + slots.get(c + 1, []); slots[c] = []
        fill = [x if isinstance(x, tuple) else (0, x) for x in (fill or [])]
        for c in range(160):
            n, r = divmod(c, 16); mi, ks = divmod(r, 2)
            m = mi if n % 2 == 0 else 7 - mi
            if c == bar and not last:
                p.e(f'WAITTAG S{st ^ 1} LGKM0')
                p.e('s_barrier')
                if ptrace > 1: pf.trace()
            if MWT and not first and c == 8: p.e('s_waitcnt lgkmcnt(4)')
            if MWT and r == 0 and 0 < n and c != bar and not (first and n < 3) and not last: p.e(f's_waitcnt lgkmcnt({8 if n <= 7 else 12})')
            w = wf[(10 * st + n) % NSLOT][4 * ks:4 * ks + 4]; x = xf(st, m, ks)
            a, b = (x, w) if (wc == 1 and n < 2) else (w, x)
            cin = '0' if (first and ks == 0) else str(acc[n][m])
            p.e(f'v_mfma_f32_16x16x32_bf16 {acc[n][m]}, {a}, {b}, {cin}')
            here = slots.get(c, [])
            p.add(here)
            if c >= 1:
                for _ in range(min(dens, 2 - len(here))):
                    if fill and fill[0][0] <= c:
                        x = fill.pop(0)[1]; p.add(x if isinstance(x, list) else [x])
        return [x[1] for x in fill]

    def toreg(tile, tmp):
        if tile.k == 'v': return tile
        for i in range(4): p.e(f'v_accvgpr_read_b32 {tmp[i]}, {tile[i]}')
        return tmp
    def pack(o, t0, t1):
        p.e(f'v_cvt_pk_bf16_f32 {o[0]}, {t0[0]}, {t0[1]}\nv_cvt_pk_bf16_f32 {o[1]}, {t0[2]}, {t0[3]}')
        p.e(f'v_cvt_pk_bf16_f32 {o[2]}, {t1[0]}, {t1[1]}\nv_cvt_pk_bf16_f32 {o[3]}, {t1[2]}, {t1[3]}')

    def pf_setup():
        L = f"""s_lshl_b32 {s_t0}, s2, 2
        s_add_u32 {s_t0}, {s_t0}, {s_w}
        s_mul_i32 {s_t1}, {s_t0}, {DL * 128}
        v_lshl_add_u32 {vt3}, {vl}, 7, {s_t1}
        v_cmp_gt_u32 vcc, {DL}, {vl}
        s_mov_b32 {sp2[0]}, {pwd[0]}
        s_mov_b32 {sp2[1]}, {pwd[1]}
        s_mov_b32 {sp2[2]}, {F * D * 2}
        v_cndmask_b32 {vt3}, 2.0, {vt3}, vcc
        s_mov_b32 {s_c1}, 0""".split('\n')
        return [x.strip() for x in L]
    def tp_setup():
        a_, b_ = vtmp[27], vtmp[26]
        return lines(f"""
        s_lshl_b32 {s_t0}, s2, 2
        s_add_u32 {s_t0}, {s_t0}, {s_w}
        s_lshr_b32 {s_t1}, {s_t0}, 4
        s_lshl_b32 {s_c1}, {s_t1}, 15
        s_lshl_b32 {s_c0}, {s_t1}, 12
        s_and_b32 {s_t0}, {s_t0}, 15
        s_lshr_b32 {s_t1}, {s_t0}, 1
        s_mul_i32 {s_t1}, {s_t1}, {224 * 4096}
        s_add_u32 {s_c0}, {s_c0}, {s_t1}
        s_and_b32 {s_t1}, {s_t0}, 1
        s_lshl_b32 {s_t1}, {s_t1}, 11
        s_add_u32 {s_c0}, {s_c0}, {s_t1}
        s_add_u32 {s_c0}, {s_c0}, {WS_T}
        s_lshl_b32 {s_t0}, {s_t0}, 7
        s_mov_b32 {sp2[0]}, {pwd[0]}
        s_mov_b32 {sp2[1]}, {pwd[1]}
        s_mov_b32 {sp2[2]}, {F * D * 2}
        v_lshrrev_b32 {a_}, 3, {vl}
        v_and_b32 {b_}, 2, {a_}
        v_lshlrev_b32 {b_}, 1, {b_}
        v_and_b32 {vt3}, 7, {vl}
        v_xor_b32 {b_}, {b_}, {vt3}
        v_lshl_add_u32 {b_}, {b_}, 4, {s_t0}
        v_lshl_add_u32 {vt3}, {a_}, 11, {b_}
        s_lshl_b32 {s_t0}, {s_w}, 12
        s_add_u32 {s_t0}, {s_t0}, {QS}
        v_lshrrev_b32 {a_}, 5, {vl}
        v_lshl_add_u32 {vtmp[24]}, {a_}, 10, {s_t0}
        v_bfe_u32 {a_}, {vl}, 2, 2
        v_lshl_add_u32 {vtmp[24]}, {a_}, 7, {vtmp[24]}
        v_bfe_u32 {a_}, {vl}, 3, 1
        v_lshl_add_u32 {vtmp[24]}, {a_}, 6, {vtmp[24]}
        v_bfe_u32 {a_}, {vl}, 4, 1
        v_lshl_add_u32 {vtmp[24]}, {a_}, 5, {vtmp[24]}
        v_and_b32 {a_}, 3, {vl}
        v_lshl_add_u32 {vtmp[24]}, {a_}, 3, {vtmp[24]}
        v_xor_b32 {vtmp[25]}, 64, {vtmp[24]}
        v_lshlrev_b32 {vtmp[26]}, 4, {vl}
        s_lshl_b32 {s_t0}, s2, 2
        s_add_u32 {s_t0}, {s_t0}, {s_w}
        s_and_b32 {s_t0}, {s_t0}, 15
        s_lshl_b32 {s_t0}, {s_t0}, 7
        v_lshl_add_u32 {a_}, {vl}, 11, {s_t0}
        v_cmp_gt_u32 vcc, 16, {vl}
        v_cndmask_b32 {a_}, 2.0, {a_}, vcc""") + [tp_touch()]
    def tp_touch():
        return Ins(f'buffer_load_dword {vpd}, {vtmp[27]}, {sp2}, {s_c1} offen', 'pf')
    def tp_load():
        return [f's_lshr_b32 {s_t0}, {s_mx}, 1', f's_add_u32 m0, {s_t0}, {QS}', f's_add_u32 {s_t1}, {s_c1}, {8 * 2048 - 1024}',
                Ins(f'buffer_load_dwordx4 {vt3}, {sp2}, {s_c1} offen lds', 'TP'), Ins(f'buffer_load_dwordx4 {vt3}, {sp2}, {s_t1} offen offset:1024 lds', 'TP')]
    def tp_store():
        L = ['WAITTAG TP'] + [f'ds_read_b64_tr_b16 {vtmp[4 * nb + 2 * s_:4 * nb + 2 * s_ + 2]}, {vtmp[24 + nb]} offset:{s_ * 512}' for nb in range(2) for s_ in range(2)]
        L = [L[:2]] + L[2:]
        L += [[f's_cmp_lt_u32 {s_c1}, {224 * 32768}', f's_cselect_b32 {s_t0}, {s_c0}, 2.0'], f's_add_u32 {s_c1}, {s_c1}, {64 * 32768}', f's_add_u32 {s_c0}, {s_c0}, {64 * 4096}', None, None]
        L += [Ins(f'buffer_store_dwordx4 {vtmp[4 * nb:4 * nb + 4]}, {vtmp[26]}, {sws}, {s_t0} offen offset:{nb * 1024}{st_mod}', 'HST') for nb in range(2)]
        if TT: L.insert(7, tp_touch())
        return L
    def pf3_setup():
        L = f"""s_mov_b32 {sp3[0]}, {pgw[0]}
        s_mov_b32 {sp3[1]}, {pgw[1]}
        s_movk_i32 {sp3[2]}, 2048
        s_mov_b32 {sp3[3]}, 0x00020000
        v_lshlrev_b32 {vwo}, 7, {vl}""".split('\n')
        L2 = f"""s_lshl_b32 {s_t0}, s2, 2
        s_add_u32 {s_t0}, {s_t0}, {s_w}
        s_lshl_b32 {s_t1}, {s_t0}, 11
        v_lshl_add_u32 {vwo}, {vl}, 7, {s_t1}
        v_cmp_gt_u32 {smask}, 16, {vl}
        s_mov_b32 {sp3[0]}, {pwo[0]}
        s_mov_b32 {sp3[1]}, {pwo[1]}
        s_mov_b32 {sp3[2]}, {D * D * 2}
        v_cndmask_b32 {vwo}, 2.0, {vwo}, {smask}""".split('\n')
        return [x.strip() for x in L] + [Ins(f'buffer_load_dword {vpd}, {vwo}, {sp3}, 0 offen', 'pf')] + [x.strip() for x in L2]
    def tlb_touch():
        return [f's_cmp_eq_u32 {s_w}, 1', f's_cselect_b32 {sp2[0]}, {pout[0]}, {pws[0]}', f's_cselect_b32 {sp2[1]}, {pout[1]}, {pws[1]}',
                f's_mov_b32 {sp2[2]}, {34 << 20}', f's_cmov_b32 {sp2[2]}, {S * D * 2}', f's_cmp_lt_u32 {s_w}, 2', f's_cselect_b32 {s_t0}, 0, 2.0',
                f'v_lshlrev_b32 {vt3}, 20, {vl}', Ins(f'buffer_load_dword {vpd}, {vt3}, {sp2}, {s_t0} offen sc1', 'pf')]
    def tlb_touch2():
        L = tlb_touch()
        return [L[0:5], L[5:7]] + L[7:]
    pf_wo = [f's_cmp_eq_u32 {s_cnt}, 2', f's_cselect_b32 {s_t0}, 0, 2.0', Ins(f'buffer_load_dword {vpd}, {vwo}, {sp3}, {s_t0} offen', 'pf')]
    gate_sel = [f's_cmp_eq_u32 {s_cnt}, 0', f's_cselect_b32 {s_t0}, {s_t2}, 2.0', f's_cselect_b32 {s_t1}, 0, 2.0',
                f's_cselect_b32 {sp3[0]}, {pgw[0]}, {sp3[0]}', f's_cselect_b32 {sp3[1]}, {pgw[1]}, {sp3[1]}', f's_cselect_b32 {sp3[2]}, 0x800, {sp3[2]}']
    gate_loads = [f'buffer_load_dwordx4 {gw[i]}, {z[0]}, {sp3}, {s_t1} offen offset:{16 * i}' for i in range(2)] + \
                 [f'buffer_load_dwordx4 {gx[i]}, {z[0]}, {sx}, {s_t0} offen offset:{(i // 2) * 2048 + (i % 2) * 16}' for i in range(4)]

    spins = []
    def check(cond_lines, reload_lines, tag):
        lab = f'{name}_{tag}'
        spins.append((lab, cond_lines, reload_lines))
        return cond_lines + [f's_cbranch_vccnz {lab}_spin', f'{lab}_ok:']

    def lines(s): return [x.strip() for x in s.strip().split('\n')]
    def rd(tile, tmp):
        if tile.k == 'v': return tile, []
        return tmp, [f'v_accvgpr_read_b32 {tmp[i]}, {tile[i]}' for i in range(4)]
    def packl(o, t0, t1):
        return [f'v_cvt_pk_bf16_f32 {o[0]}, {t0[0]}, {t0[1]}', f'v_cvt_pk_bf16_f32 {o[1]}, {t0[2]}, {t0[3]}',
                f'v_cvt_pk_bf16_f32 {o[2]}, {t1[0]}, {t1[1]}', f'v_cvt_pk_bf16_f32 {o[3]}, {t1[2]}, {t1[3]}']
    def mul4(d, a_, b_, pk):
        if pk: return [f'v_pk_mul_f32 {d[2*i:2*i+2]}, {a_[2*i:2*i+2]}, {b_ if b_.k == "s" else b_[2*i:2*i+2]}' for i in range(2)]
        return [f'v_mul_f32 {d[i]}, {b_[0] if b_.k == "s" else b_[i]}, {a_[i]}' for i in range(4)]
    def hpiece(n, j, o, pk):
        L = []; tt = []
        for mm in range(2):
            g_, l0 = rd(acc[n][2 * j + mm], vtmp[8 * mm:8 * mm + 4]); u_, l1 = rd(acc[n + 1][2 * j + mm], vtmp[8 * mm + 4:8 * mm + 8])
            L += l0 + l1 + mul4(g_, g_, u_, pk); tt.append(g_)
        return L + packl(o, tt[0], tt[1]) + [f'v_permlane16_swap_b32 {o[0]}, {o[2]}', f'v_permlane16_swap_b32 {o[1]}, {o[3]}']
    hreg = [acc[7][2 * j] for j in range(4)] + [acc[6][2 * j] for j in range(4)] + [acc[8][2 * j] for j in range(4)]

    vq = vdx[0]; vh = vdx[1]; vql = vdx[2]; vqq = vdx[3]
    s_b, s_qs = s_oq, R('s', sx.a, 2)
    def epi_setup(wc):
        L = lines(f"""
        v_and_b32 {vt0}, 15, {vl}
        v_lshrrev_b32 {vt1}, 4, {vl}
        v_lshlrev_b32 {vq}, 9, {vt1}
        v_lshlrev_b32 {vh}, 4, {vl}
        s_lshl_b32 {s_t0}, {s_h}, 6
        s_lshl_b32 {s_t1}, {s_mb}, 3
        s_add_u32 {s_t0}, {s_t0}, {s_t1}
        s_lshl_b32 {s_t1}, {s_wr}, 2
        s_add_u32 {s_t0}, {s_t0}, {s_t1}
        s_lshl_b32 {s_b}, {s_t0}, 12
        s_add_u32 {s_b}, {s_b}, {WS_KV}
        s_add_u32 {s_og}, {s_b}, 4096
        s_add_u32 {s_ox}, {s_b}, 8192
        s_add_u32 {s_c0}, {s_b}, 12288
        s_lshl_b32 {s_t0}, {s_mb}, 1
        s_add_u32 {s_t0}, {s_t0}, {s_wr}
        s_mul_i32 {s_t0}, {s_t0}, 288
        s_mul_i32 {s_t1}, {s_h}, 7
        s_add_u32 {s_t0}, {s_t0}, {s_t1}
        s_lshl_b32 {s_t0}, {s_t0}, 12
        s_add_u32 {s_hb}, {s_t0}, {WS_A + 4 * 4096 * wc}
        s_sub_u32 {s_c1}, {s_hb}, 4096
        s_lshl_b32 {s_t1}, {s_wr}, 14""")
        if wc == 0:
            L += lines(f"""
            v_lshrrev_b32 {vt2}, 3, {vt0}
            v_lshl_add_u32 {vq}, {vt2}, 8, {vq}
            v_and_b32 {vt2}, 7, {vt0}
            v_lshl_add_u32 {vq}, {vt2}, 4, {vq}
            v_add_u32 {vql}, {s_t1}, {vq}
            s_lshl_b32 {s_t1}, {s_wr}, 13
            s_add_u32 {s_t1}, {s_t1}, {QS}
            v_add_u32 {vqq}, {s_t1}, {vq}
            s_mov_b32 {s_qs[0]}, {hex(f32bits(QSCALE))}
            s_mov_b32 {s_qs[1]}, {s_qs[0]}""")
        else:
            L += [f'v_lshl_add_u32 {vq}, {vt0}, 4, {vq}', f'v_add_u32 {vql}, {s_t1}, {vq}']
        return L
    kvb = [s_b, s_og, s_ox, s_c0]
    def epi_early(wc, npk):
        F_ = []
        outs = [vtmp[16 + 4 * i:20 + 4 * i] for i in range(3)]
        if wc == 0:
            for m in range(7, -1, -1):
                o = acc[0][m]
                L = packl(o, acc[0][m], acc[1][m]) + [Ins(f'buffer_store_dwordx4 {o}, {vq}, {sws}, {kvb[m // 2]} offen offset:{(m % 2) * 128}{kv_mod}', 'KVST'),
                                                       f'ds_write_b128 {vql}, {o} offset:{(m // 2) * 4096 + (m % 2) * 128}']
                F_ += [(17 + 2 * (7 - m) + 4, x) for x in L]
            for i, m in enumerate(range(7, -1, -1)):
                o = outs[i % 3]
                t0, l0 = rd(acc[2][m], vtmp[0:4]); t1, l1 = rd(acc[3][m], vtmp[4:8])
                L = l0 + l1 + mul4(t0, t0, s_qs, i >= npk) + mul4(t1, t1, s_qs, i >= npk) + packl(o, t0, t1) + [f'ds_write_b128 {vqq}, {o} offset:{(m // 2) * 2048 + (m % 2) * 128}']
                F_ += [(49 + 2 * (7 - m) + 4, x) for x in L]
        else:
            for nt, js in ((0, range(4)), (1, range(3, -1, -1))):
                for j in js:
                    o = acc[nt][2 * j]
                    L = packl(o, acc[nt][2 * j], acc[nt][2 * j + 1]) + [Ins(f'buffer_store_dwordx4 {o}, {vq}, {sws}, {kvb[j]} offen offset:{2048 + nt * 256}{kv_mod}', 'KVST'),
                                                                         f'ds_write_b128 {vql}, {o} offset:{j * 4096 + 2048 + nt * 256}']
                    F_ += [((3 + 4 * j if nt == 0 else 31 - 4 * j) + 4, x) for x in L]
            for i, j in enumerate(range(3, -1, -1)):
                o = outs[i % 3]
                L = hpiece(2, j, o, i >= npk) + [Ins(f'buffer_store_dwordx4 {o}, {vh}, {sws}, {s_c1} offen offset:{j * 1024}{st_mod}', 'HST')]
                F_ += [(63 - 4 * j + 4, x) for x in L]
        for j in range(3, -1, -1):
            F_ += [(127 - 4 * j + 4, x) for x in hpiece(6, j, hreg[4 + j], PK)]
            F_ += [(127 - 4 * j + 4, x) for x in hpiece(4, j, hreg[j], PK)]
        k = max(i for i, x in enumerate(F_) if isinstance(x[1], Ins) and x[1].tag == 'KVST')
        F_[k + KF:k + KF] = [(0, [f'v_mov_b32 {vt0}, 1', 'WAITTAG KVST', Ins(f'buffer_store_dword {vt0}, {vflk}, {sfl}, 0 offen sc1', 'FL')])]
        return F_
    def epi_late():
        for j in range(3, -1, -1): p.add(hpiece(8, j, hreg[8 + j], True))

    announce_setup = lines(f"""
        s_mov_b32 {sdbg[0]}, {pdbg[0]}
        s_mov_b32 {sdbg[1]}, {pdbg[1]}
        s_movk_i32 {sdbg[2]}, 256
        s_mov_b32 {sdbg[3]}, 0x00020000
        s_and_b32 {s_ano}, s2, 7
        s_lshl_b32 {s_ano}, {s_ano}, 2
        s_and_b32 {s_grp}, {s_mb}, 3
        s_add_u32 {s_grp}, {s_grp}, 3
        v_mov_b32 {vt2}, 1
        v_cmp_eq_u32 {smask}, 0, v0
        v_cndmask_b32 {vt1}, 2.0, 0, {smask}""")
    if PT:
        k = announce_setup.index(f's_add_u32 {s_grp}, {s_grp}, 3')
        announce_setup[k:k + 1] = [[f's_cmp_lt_u32 {s_grp}, 2', f's_cselect_b32 {s_grp}, {s_grp}, 16'], f's_add_u32 {s_grp}, {s_grp}, 1']
    announce1 = [f's_add_u32 {s_t0}, {s_cnt}, 16', [f's_cmp_eq_u32 {s_t0}, {s_grp}', f's_cselect_b32 {s_t0}, {s_ano}, 2.0'],
                 f'buffer_atomic_add {vt2}, {vt1}, {sdbg}, {s_t0} offen offset:{DBG_CNT} sc1']
    announce = [f's_cmp_eq_u32 {s_cnt}, {s_grp}', f's_cselect_b32 {s_t0}, {s_ano}, 2.0',
                f'buffer_atomic_add {vt2}, {vt1}, {sdbg}, {s_t0} offen offset:{DBG_CNT} sc1']
    cnt_addr = [f'v_and_b32 {vpf}, 7, {vl}', f'v_lshlrev_b32 {vpf}, 2, {vpf}']
    cnt_load = f'buffer_load_dword {vcnt}, {vpf}, {sdbg}, 0 offen offset:{DBG_CNT} sc1'

    def code_setup(wc):
        lab = f'{name}_pc{wc}'
        return [[f's_getpc_b64 {sp4[0:2]}', f'{lab}:'], f's_and_b32 {sp4[1]}, {sp4[1]}, 0xffff', f's_mov_b32 {sp4[2]}, {name}_end-{lab}', f's_mov_b32 {sp4[3]}, 0x00020000',
                f's_lshr_b32 {s_t0}, s2, 3', f's_lshl_b32 {s_t1}, {s_t0}, 8', f's_add_u32 {s_t1}, {s_t1}, {name}_c{wc}out-{lab}', f'v_and_b32 {vcnt}, 1, {vl}', f'v_lshlrev_b32 {vcnt}, 7, {vcnt}',
                f's_lshl_b32 {s_t0}, {s_t0}, 2', f's_add_u32 {s_t0}, {s_t0}, {s_w}', f's_lshl_b32 {s_t0}, {s_t0}, 8',
                f's_add_u32 {s_t0}, {s_t0}, {name}_join-{lab}', f'v_mov_b32 {vtmp[0]}, {s_t0}', f'v_mov_b32 {vtmp[1]}, {s_t1}',
                f'v_cmp_gt_u32 vcc, 2, {vl}', f'v_cndmask_b32 {vtmp[0]}, {vtmp[0]}, {vtmp[1]}, vcc', f'v_add_u32 {vcnt}, {vcnt}, {vtmp[0]}',
                f'v_cmp_gt_u32 vcc, 4, {vl}', f'v_cndmask_b32 {vcnt}, 2.0, {vcnt}, vcc']
    code_pf = [f's_cmp_eq_u32 {s_cnt}, 1', f's_cselect_b32 {s_t0}, 0, 2.0', Ins(f'buffer_load_dword {vpd}, {vcnt}, {sp4}, {s_t0} offen', 'pf')]
    for wc in range(2):
        p.seg(f'c{wc}a')
        if wc == 1: p.e(f'{name}_c1:')
        p.add(wread(0, 0, wc))
        for m in range(2, 8):
            for ks in range(2): p.e(xread(m, ks, 0))
        for j in range(1, DIST): p.add(wread(j, 0, wc))
        left = stage(0, wc, first=True, early=[x for _ in range(PD - PD0 + 1) for x in pfetch()], fill=flag_setup + announce_setup + code_setup(wc) + pf3_setup() + (tlb_touch2() if TLB else []) + (tp_setup() if PT else pf_setup()))
        assert not left
        p.e(f's_mov_b32 {s_cnt}, 6')
        p.seg(f'c{wc}l1')
        p.e(f'{name}_c{wc}loop:')
        stage(1, wc, early=pfetch() + (tp_load() if PT else pfetch_d()), extra=gate_sel + gate_loads + (announce1 if PT else []), estep=1)
        p.e(f's_cmp_eq_u32 {s_cnt}, 0\ns_cbranch_scc1 {name}_c{wc}out')
        p.seg(f'c{wc}l2')
        stage(0, wc, early=pfetch() + ([] if PT else pfetch_d()), extra=([x for x in tp_store() if x is not None] if PT else []) + announce + pf_wo + (code_pf if CPF else []), estep=1 if PT else 2)
        p.e(f's_sub_u32 {s_cnt}, {s_cnt}, 1\ns_branch {name}_c{wc}loop')
        p.seg(f'c{wc}last')
        p.e(f'{name}_c{wc}out:')
        rest = stage(0, wc, early=None if PT else pfetch_d(), fill=gate_ops(), nodma1=True, dens=GD)
        rest = stage(1, wc, last=True, fill=rest + cnt_addr + [cnt_load] + epi_setup(wc) + epi_early(wc, 99))
        pf.stamp(2)
        if ptrace == -1: pf.trace()
        k = max([i for i, x in enumerate(rest) if isinstance(x, str) and x.startswith('ds_write')] + [-1]) + 1
        for x in rest[:k]: p.add(x if isinstance(x, list) else [x])
        rest = rest[k:]
        if PKR:
            out = []; i = 0
            while i < len(rest):
                x = rest[i]; y = rest[i + 1] if i + 1 < len(rest) else None
                if isinstance(x, str) and isinstance(y, str) and x.startswith('v_mul_f32') and y.startswith('v_mul_f32'):
                    a0, b0, c0 = [int(t.strip()[1:]) for t in x[10:].split(',')]; a1, b1, c1 = [int(t.strip()[1:]) for t in y[10:].split(',')]
                    if a0 % 2 == 0 and b0 % 2 == 0 and (a1, b1, c1) == (a0 + 1, b0 + 1, c0 + 1):
                        out.append(f'v_pk_mul_f32 v[{a0}:{a1}], v[{b0}:{b1}], v[{c0}:{c1}]'); i += 2; continue
                out.append(x); i += 1
            rest = out
        va_, vb_ = vdg[0], vdg[1]
        p.e(f"""
        v_lshlrev_b32 {va_}, 4, {vl}
        s_lshl_b32 {s_t0}, {s_w}, 12
        s_add_u32 {s_t0}, {s_t0}, {QS}
        v_add_u32 {vb_}, {s_t0}, {va_}
        s_waitcnt lgkmcnt(0)
        s_barrier
        """)
        for q in range(2):
            for f in range(2): p.e(f'ds_read_b128 a[{40 + 8 * q + 4 * f}:{43 + 8 * q + 4 * f}], {vb_} offset:{q * 2048 + f * 1024}')
        for i in range(4): p.e(f'ds_read_b128 a[{56 + 4 * i}:{59 + 4 * i}], {va_} offset:{(i // 2) * 4096 + (i % 2) * 1024}')
        pre = [f'v_mfma_f32_32x32x16_bf16 v[{64 + 16 * q}:{79 + 16 * q}], a[{56 + 4 * f}:{59 + 4 * f}], a[{40 + 8 * q + 4 * f}:{43 + 8 * q + 4 * f}], ' + ('0' if f == 0 else f'v[{64 + 16 * q}:{79 + 16 * q}]')
               for q in range(2) for f in range(2)]
        rest = rest + [x for j in range(3, -1, -1) for x in hpiece(8, j, hreg[8 + j], True)]
        for i, x in enumerate(rest):
            p.add(x if isinstance(x, list) else [x])
            if i >= 24 and (i - 24) % 7 == 0 and pre: p.e(pre.pop(0))
        p.add(pre)
        if ptrace == -1: pf.trace()
        if ptrace == -1: pf.trace()
        if wc == 0: p.e(f's_branch {name}_join')
    p.seg('join')
    p.e(f'{name}_join:')
    p.add(check([f'v_cmp_gt_u32 vcc, 32, {vcnt}'], [cnt_load], 'cnt'))

    sa.p = s_base; va.p = v_base; aa.p = 0
    skv = sa(4); sA = sa(4); swd = sa(4); swo = sa(4); sout = sa(4)
    s_okv, s_left, s_p, s_oa, s_ow, s_wb, s_ob, s_ob2, s_thr, s_mt, s_nt, s_oo, s_spin, s_h1, s_h2, s_rt, s_win = [sa() for _ in range(17)]
    scp = sa(4)
    vl16, vkA, vkB, vdma, vo, vidx, vu0, vu1, vu2, vpa = [va() for _ in range(10)]
    vdd = [va() for _ in range(2)]; vdo = [va() for _ in range(2)]; vwr = [va() for _ in range(2)]
    vg = va(2); vog = va(4); vpoll = va(2, 2); vsc = va(2)
    ones = va(4, 4)
    vA = [va() for _ in range(4)]
    assert va.p <= 46 and va.p > vwo.a
    va2 = Alloc('v', va.p, 48)
    va.p = 48
    Sx = [va(16, 4) for _ in range(2)]; P = [va(8, 4) for _ in range(2)]; C = [va(16, 4) for _ in range(2)]
    acc3 = [[va(16, 4) for _ in range(4)] for _ in range(2)]
    O = [aa(16, 4) for _ in range(2)]; L = [aa(4, 4) for _ in range(2)]
    Q = [aa(8, 4) for _ in range(2)]; K = [aa(8, 4) for _ in range(2)]; V = [aa(8, 4) for _ in range(2)]
    Wf = [aa(4, 4) for _ in range(2)]
    Ab = [[aa(4, 4) for _ in range(4)] for _ in range(8)]
    if PT:
        NB = 4; DA = DW = 3
        Wb = [[Ab[4 + i // 2][2 * (i % 2)], Ab[4 + i // 2][2 * (i % 2) + 1]] for i in range(4)]

    p.e(f"""
    v_lshlrev_b32 {vl16}, 4, {vl}
    s_lshl_b32 {s_p}, {s_w}, 12
    """)
    assert Q[0].a == 40 and K[0].a == 56 and Sx[1].a == 64 and P[0].a == 80
    pf.stamp(3)
    def kread(kb, loop=False):
        base, o = (vl16, (kb % 16) * 4096) if not loop else ((vkA, kb * 4096) if kb < 8 else (vkB, (kb - 8) * 4096))
        return [f'ds_read_b128 {K[kb % 2][4*f:4*f+4]}, {base} offset:{o + f * 1024}' for f in range(2)]
    def vread(kb, loop=False):
        base, o = (vl16, (kb % 16) * 4096) if not loop else (vkA, kb * 4096)
        return [f'ds_read_b128 {V[kb % 2][4*f:4*f+4]}, {base} offset:{o + 2048 + f * 1024}' for f in range(2)]
    def qk(dst, kb, q, f, cin):
        return f'v_mfma_f32_32x32x16_bf16 {dst}, {K[kb % 2][4*f:4*f+4]}, {Q[q][4*f:4*f+4]}, {cin if f == 0 else dst}'
    def pv(j, f, zero=False):
        q = j % 2; kb = (j // 2) % 2
        return f'v_mfma_f32_32x32x16_bf16 {O[q]}, {V[kb][4*f:4*f+4]}, {P[q][4*f:4*f+4]}, {"0" if zero else O[q]}'
    def rsum(q): return f'v_smfmac_f32_16x16x64_bf16 {L[q]}, {ones}, {P[q]}, {vidx}'
    def cvt(j, i): return f'v_cvt_pk_bf16_f32 {P[j % 2][i]}, {Sx[j % 2][2*i]}, {Sx[j % 2][2*i+1]}'
    def rowmax(dst, src, init):
        lst = [src[i] for i in range(16)]
        if init:
            p.e(f'v_max3_f32 {dst}, {lst[0]}, {lst[1]}, {lst[2]}'); lst = lst[3:]
        while len(lst) >= 2:
            p.e(f'v_max3_f32 {dst}, {dst}, {lst[0]}, {lst[1]}'); lst = lst[2:]
        if lst: p.e(f'v_max_f32 {dst}, {dst}, {lst[0]}')
    def setc(q, m):
        p.e(f'v_mov_b32 {vu2}, {m}\nv_permlane32_swap_b32 {vu2}, {m}\nv_max_f32 {m}, {m}, {vu2}')
        for i in range(16): p.e(f'v_sub_f32 {C[q][i]}, 0, {m}')
    rowmax(vu0, R('v', 64, 16), True); rowmax(vu1, R('v', 80, 16), True)
    setc(0, vu0)
    p.e(qk(Sx[0], 0, 0, 0, C[0])); p.e(qk(Sx[0], 0, 0, 1, C[0]))
    setc(1, vu1)
    p.e(f"""
    v_bfe_u32 {vu0}, {vl}, 2, 1
    v_bfe_u32 {vu1}, {vl}, 1, 1
    v_mov_b32 {vu2}, 0x3f803f80
    v_or_b32 {vidx}, {vu0}, {vu1}
    v_cmp_eq_u32 vcc, 0, {vidx}
    v_xor_b32 {vu0}, 1, {vu0}
    v_or_b32 {vidx}, {vu0}, {vu1}
    v_cndmask_b32 {ones[0]}, 0, {vu2}, vcc
    v_cndmask_b32 {ones[1]}, 0, {vu2}, vcc
    v_cmp_eq_u32 vcc, 0, {vidx}
    v_and_b32 {vu0}, 1, {vl}
    v_mov_b32 {vu1}, 0xeeeeeeee
    v_cndmask_b32 {ones[2]}, 0, {vu2}, vcc
    v_cndmask_b32 {ones[3]}, 0, {vu2}, vcc
    v_cmp_eq_u32 vcc, 0, {vu0}
    v_mov_b32 {vu2}, 0x44444444
    v_add_u32 {vdma}, {s_p}, {vl16}
    v_cndmask_b32 {vidx}, {vu1}, {vu2}, vcc
    """)
    for q in range(2):
        for i in range(2): p.e(f'v_accvgpr_write_b32 {L[q][i]}, 0')
    p.e(f's_lshl_b32 {s_t0}, {s_h}, 18')
    srd(p, skv, pws, off_s=s_t0, off_imm=WS_KV, size=262144)

    def flag(val, tag, wait):
        return [f'v_mov_b32 {vu0}, {val}', f'WAITTAG {wait}', Ins(f'buffer_store_dword {vu0}, {vflag}, {sfl}, 0 offen sc1', tag)]
    def kvdma(m0line, tag, count=True):
        return [m0line] + [Ins(f'buffer_load_dwordx4 {vdma}, {skv}, {s_okv} offen offset:{i * 1024}{lm2} lds', tag) for i in range(4)] + \
               [f's_add_u32 {s_okv}, {s_okv}, 16384', f's_and_b32 {s_okv}, {s_okv}, 0x3ffff'] + \
               ([f's_sub_u32 {s_left}, {s_left}, 1', f's_cselect_b32 {skv[2]}, 0, {skv[2]}'] if count else [])
    NW = 4
    def wload(s):
        if PT: return [Ins(f'buffer_load_dwordx4 {Wb[s % 4][nb]}, {vl16}, {swd}, {s_oa} offen offset:{nb * 1024}{lm2}', f'D{s % NW}') for nb in range(2)]
        return [f's_add_u32 m0, {s_wb}, {(s % NW) * 2048}'] + \
               [Ins(f'buffer_load_dwordx4 {vdd[hh]}, {swd}, {s_ow} offen offset:{hh * 1024}{lm2} lds', f'D{s % NW}') for hh in range(2)] + [f's_add_u32 {s_ow}, {s_ow}, 32768']
    def hload(s):
        return [Ins(f'buffer_load_dwordx4 {Ab[s % NB][r]}, {vA[r]}, {sA}, {s_oa} offen{lm2}', f'A{s % NB}') for r in range(4)] + [f's_add_u32 {s_oa}, {s_oa}, 4096']
    def wrd(base, off, nb):
        if PT: return []
        return [f'ds_read_b64_tr_b16 {Wf[nb][2*s:2*s+2]}, {base[nb]} offset:{off + s * 512}' for s in range(2)]
    def gm(st, nb, tb, zero=False):
        return f'v_mfma_f32_32x32x16_bf16 {acc3[nb][tb]}, {Wb[st % 4][nb] if PT else Wf[nb]}, {Ab[st % NB][tb]}, {"0" if zero else acc3[nb][tb]}'
    def oload(t, m0line, tag):
        return [m0line] + [Ins(f'buffer_load_dwordx4 {vdo[hh]}, {swo}, {s_oo} offen offset:{hh * 1024} lds', tag) for hh in range(2)] + [f's_add_u32 {s_oo}, {s_oo}, 32768']

    zplan = {}
    def period(j, loop=False, item=None, misc=(), pre=(), zero=False):
        s = Sx[j % 2]
        E = [f'v_exp_f32 {s[i]}, {s[i]}' for i in range(16)]
        jn = j + 1
        m1 = qk(Sx[jn % 2], jn // 2, jn % 2, 0, C[jn % 2]); m2 = qk(Sx[jn % 2], jn // 2, jn % 2, 1, None)
        rd = kread((j + 1) // 2 + 1, loop) if j % 2 == 1 else vread(j // 2, loop)
        first = (j == 0 and not loop)
        zo = (j <= 2 and not loop)
        c7 = [] if first else [cvt(j - 1, 7)]
        p0 = [] if first else [pv(j - 1, 0, zo)]; p1 = [] if first else [pv(j - 1, 1)]; rs = [] if first else [rsum((j - 1) % 2)]
        V_ = [E[0]] + c7
        for i in range(7): V_ += [E[2 * i + 1], E[2 * i + 2], cvt(j, i)]
        V_.append(E[15])
        if item is None:
            p.add(V_[:1 + len(c7)]); V_ = V_[1 + len(c7):]
            if AW and j % 2 == 1: p.e('s_waitcnt lgkmcnt(0)')
            z_ = [] if loop else zplan.get(j, [])
            M = [m1] + z_[:1] + [m2] + p0 + z_[1:] + p1 + rs; G = []
        else:
            st, nb = item
            G = [gm(st, nb, tb if nb == 0 else 3 - tb, zero) for tb in range(4)]
            M = [G[0], m1, G[1], m2, G[2]] + p0 + [G[3]] + p1 + rs
        if loop and exp_ & 1: M = [x for x in M if x not in G]
        if loop and exp_ & 8: misc = [x for x in misc if not (isinstance(x, Ins) and x.tag and x.tag.startswith('D'))]
        misc = list(misc)
        for k in range(len(misc)):
            if isinstance(misc[k], str) and ' m0,' in misc[k]:
                q_ = k
                while q_ > 0 and not (isinstance(misc[q_ - 1], Ins) and misc[q_ - 1].text.endswith(' lds')): q_ -= 1
                misc.insert(q_, misc.pop(k))
        items = []
        for x in list(pre) + rd + list(misc):
            if items and isinstance(items[-1][-1], str) and items[-1][-1].split()[0] in ('WAITTAG', 's_cbranch_vccnz', 'v_cmp_gt_u32', 's_getpc_b64', 's_cmp_eq_u32'): items[-1].append(x)
            else: items.append([x])
        isvm = lambda it: any((y.text if isinstance(y, Ins) else y).startswith('buffer') for y in it)
        n = len(M); last = n - 1 if M[-1].startswith('v_smfmac') else n
        cost = lambda x: 8 if x.startswith('v_exp') else 4
        occ = [32 if '32x32' in x else 16 for x in M]
        iss = [8 if 'smfmac' not in x else SMC for x in M]
        ic = [sum((VMC if (y.text if isinstance(y, Ins) else y).startswith('buffer') else 4) for y in it if not (isinstance(y, str) and y.endswith(':'))) for it in items]
        vc = [cost(x) for x in V_]
        tailc = (4 if item is not None else 12 + (4 if j % 2 == 0 else 0))
        if item is None: iss[-1] += 0
        import functools
        @functools.lru_cache(None)
        def best(g, a_, b_, pv_):
            if g == n: return (0, ()) if (a_ == len(items) and b_ == len(V_)) else (10 ** 9, ())
            res = (10 ** 9, ())
            lo = 0
            if g == 0 and item is not None: lo = 1 + len(c7)
            for na in range(0, len(items) - a_ + 1):
                if g == 0 and na < min(len(items), npre): continue
                nv_ = sum(map(isvm, items[a_:a_ + na]))
                ca = sum(ic[a_:a_ + na])
                if g < n - 1 and ca > 64: break
                pen = (VPEN * max(0, nv_ - 1) + (VPEN // 2 if (nv_ and pv_) else 0)) + (0.01 * g * na)
                for nb_ in range(lo, len(V_) - b_ + 1):
                    f_ = iss[g] + ca + sum(vc[b_:b_ + nb_]) + (tailc if g == n - 1 else 0)
                    if f_ > 120 and g < n - 1: break
                    r_ = best(g + 1, a_ + na, b_ + nb_, nv_ > 0)
                    t_ = max(occ[g], f_) + pen + r_[0] + 0.001 * (f_ - occ[g]) ** 2
                    if t_ < res[0]: res = (t_, ((na, nb_),) + r_[1])
            return res
        npre = len([1 for it in items if any(y in pre for y in it if isinstance(y, str))])
        tot_, asg = best(0, 0, 0, False)
        assert tot_ < 10 ** 8
        if dbg == -1: print(j, loop, item, round(tot_), len(items), sum(map(isvm, items)))
        a_ = b_ = 0
        for q_, m_ in enumerate(M):
            p.add([m_])
            na, nb_ = asg[q_]
            for it in items[a_:a_ + na]: p.add(it)
            p.add(V_[b_:b_ + nb_]); a_ += na; b_ += nb_

    setup1 = lines(f"""
        s_lshl_b32 {s_okv}, {s_mb}, 15
        s_add_u32 {s_okv}, {s_okv}, 32768
        s_and_b32 {s_okv}, {s_okv}, 0x3ffff
        s_movk_i32 {s_left}, {13 - (PA // 8 + (0 if KS == 2 else 1))}
        v_and_b32 {vu1}, 31, {vl}
        v_lshlrev_b32 {vpa}, 2, {vu1}
        s_lshl_b32 {s_t2}, {s_h}, 7
        s_add_u32 {s_t2}, {s_t2}, 4096""")
    poll_kv = f'buffer_load_dword {vpoll[0]}, {vpa}, {sfl}, {s_t2} offen sc1'
    setup2 = lines(f"""
        s_and_b32 {s_t0}, s2, 7
        s_lshr_b32 {s_t1}, s2, 3
        s_lshr_b32 {s_mt}, {s_t0}, 1
        s_lshl_b32 {s_mt}, {s_mt}, 2
        s_and_b32 {s_nt}, {s_t0}, 1
        s_lshl_b32 {s_nt}, {s_nt}, 3
        s_and_b32 {s_t0}, {s_t1}, 3
        s_add_u32 {s_mt}, {s_mt}, {s_t0}
        s_lshr_b32 {s_t0}, {s_t1}, 2
        s_add_u32 {s_nt}, {s_nt}, {s_t0}
        s_lshl_b32 {s_t0}, {s_nt}, 7
        s_lshl_b32 {s_t1}, {s_w}, 19
        s_add_u32 {s_t1}, {s_t1}, {s_t0}
        s_add_u32 {swo[0]}, {pwo[0]}, {s_t1}
        s_addc_u32 {swo[1]}, {pwo[1]}, 0
        s_sub_u32 {swo[2]}, {D * D * 2}, {s_t1}
        s_mov_b32 {swo[3]}, 0x00020000
        s_add_u32 {swd[0]}, {pwd[0]}, {s_t0}
        s_addc_u32 {swd[1]}, {pwd[1]}, 0
        s_sub_u32 {swd[2]}, {F * D * 2}, {s_t0}
        s_mov_b32 {swd[3]}, 0x00020000
        s_mul_i32 {s_t0}, {s_mt}, {288 * 4096}
        s_add_u32 {s_t0}, {s_t0}, {WS_A}
        s_add_u32 {sA[0]}, {pws[0]}, {s_t0}
        s_addc_u32 {sA[1]}, {pws[1]}, 0
        s_mov_b32 {sA[2]}, {288 * 4096}
        s_mov_b32 {sA[3]}, 0x00020000
        s_mul_i32 {s_oa}, {s_w}, {56 * 4096}
        s_lshl_b32 {s_ow}, {s_oa}, 3
        s_mov_b32 {s_oo}, 0
        s_mul_i32 {s_wb}, {s_w}, 20480
        s_add_u32 {s_wb}, {s_wb}, {W0}
        v_lshrrev_b32 {vu1}, 3, {vl}
        v_and_b32 {vu2}, 2, {vu1}
        v_lshlrev_b32 {vu2}, 1, {vu2}
        v_and_b32 {vdd[1]}, 7, {vl}
        v_xor_b32 {vu2}, {vu2}, {vdd[1]}
        v_lshlrev_b32 {vu2}, 4, {vu2}
        v_lshl_add_u32 {vdd[0]}, {vu1}, 11, {vu2}
        v_add_u32 {vdd[1]}, {8 * 2048 - 1024}, {vdd[0]}
        v_lshrrev_b32 {vu1}, 5, {vl}
        v_lshl_add_u32 {vdo[0]}, {vu1}, 13, {vdd[0]}
        v_add_u32 {vdo[1]}, {4 * 2048 - 1024}, {vdo[0]}
        v_lshl_add_u32 {vwr[0]}, {vu1}, 10, {s_wb}
        v_bfe_u32 {vu1}, {vl}, 2, 2
        v_lshl_add_u32 {vwr[0]}, {vu1}, 7, {vwr[0]}
        v_bfe_u32 {vu1}, {vl}, 3, 1
        v_lshl_add_u32 {vwr[0]}, {vu1}, 6, {vwr[0]}
        v_bfe_u32 {vu1}, {vl}, 4, 1
        v_lshl_add_u32 {vwr[0]}, {vu1}, 5, {vwr[0]}
        v_and_b32 {vu1}, 3, {vl}
        v_lshl_add_u32 {vwr[0]}, {vu1}, 3, {vwr[0]}
        v_xor_b32 {vwr[1]}, 64, {vwr[0]}
        v_mov_b32 {vkB if PA == 48 else vkA}, {vl16}
        v_add_u32 {vkA if PA == 48 else vkB}, 32768, {vl16}
        s_nop 0
        s_nop 0""")
    setup2 = setup2[:-2]
    setup1 += [f's_add_u32 {s_h1}, {s_hb}, 4096', f's_add_u32 {s_h2}, {s_hb}, 8192']
    if PT:
        setup2 += lines(f"""
        s_lshr_b32 {s_t0}, {s_nt}, 1
        s_mul_i32 {s_t0}, {s_t0}, {224 * 4096}
        s_and_b32 {s_t1}, {s_nt}, 1
        s_lshl_b32 {s_t1}, {s_t1}, 11
        s_add_u32 {s_t0}, {s_t0}, {s_t1}
        s_add_u32 {s_t0}, {s_t0}, {WS_T}
        s_add_u32 {swd[0]}, {pws[0]}, {s_t0}
        s_addc_u32 {swd[1]}, {pws[1]}, 0
        s_mov_b32 {swd[2]}, {224 * 4096 - 2048}""")
    for r in range(4):
        setup2 += [f's_add_u32 {s_t0}, {s_w}, {r + 1}', f's_and_b32 {s_t0}, {s_t0}, 3', f's_lshl_b32 {s_t0}, {s_t0}, 10', f'v_add_u32 {vA[r]}, {s_t0}, {vl16}']
    setup3 = lines(f"""
        v_and_b32 {vu1}, 7, {vl}
        v_bfe_u32 {vu2}, {vl}, 4, 1
        v_lshl_add_u32 {vo}, {vu2}, 3, {vu1}
        v_bfe_u32 {vu2}, {vl}, 3, 1
        v_lshl_add_u32 {vo}, {vu2}, 4, {vo}
        v_lshrrev_b32 {vu2}, 3, {vo}
        v_lshlrev_b32 {vu2}, 7, {vu2}
        v_lshl_add_u32 {vsc[0]}, {vu1}, 2, {vu2}
        v_lshlrev_b32 {vo}, 4, {vo}
        v_lshrrev_b32 {vu2}, 5, {vl}
        v_lshl_add_u32 {vo}, {vu2}, 9, {vo}
        v_bfe_u32 {vu2}, {vl}, 3, 2
        v_lshlrev_b32 {vu2}, 7, {vu2}
        v_lshl_add_u32 {vsc[1]}, {vu1}, 2, {vu2}
        s_lshl_b32 {s_t0}, {s_mb}, 1
        s_add_u32 {s_t0}, {s_t0}, {s_wr}
        s_mul_i32 {s_t0}, {s_t0}, 288
        s_lshl_b32 {s_t1}, {s_h}, 1
        s_add_u32 {s_t0}, {s_t0}, {s_t1}
        s_add_u32 {s_t0}, {s_t0}, 224
        s_lshl_b32 {s_t0}, {s_t0}, 12
        s_lshl_b32 {s_t1}, {s_wc}, 11
        s_add_u32 {s_t0}, {s_t0}, {s_t1}
        s_add_u32 {s_ob}, {s_t0}, {WS_A}
        s_add_u32 {s_ob2}, {s_ob}, 4096
        s_mov_b32 {s_thr}, {hex(f32bits(2.0 ** 40 if not force_slow else 0.5))}
        v_lshlrev_b32 {vpa}, 3, {vl}
        s_lshr_b32 {s_t2}, {s_mt}, 1
        s_lshl_b32 {s_t2}, {s_t2}, 9""")
    poll_h = f'buffer_load_dwordx2 {vpoll}, {vpa}, {sfl}, {s_t2} offen sc1'
    cond2 = [f'v_min_u32 {vu1}, {vpoll[0]}, {vpoll[1]}', f'v_cmp_gt_u32 vcc, 2, {vu1}']
    og_loads = [f's_lshl_b32 {s_t0}, {s_mt}, 11', f's_add_u32 {s_t0}, {s_t0}, {WS_G + 32}']
    for r in range(4):
        og_loads += [f'v_lshrrev_b32 {vu1}, 10, {vA[r]}', f'v_lshl_add_u32 {vu1}, {vu1}, 9, {vsc[1]}', f'buffer_load_dword {vog[r]}, {vu1}, {sws}, {s_t0} offen']
    g_loads = [f's_lshl_b32 {s_t0}, {s_mb}, 2', f's_add_u32 {s_t0}, {s_t0}, {s_w}', f's_lshl_b32 {s_t0}, {s_t0}, 10', f's_add_u32 {s_t0}, {s_t0}, {WS_G}'] + \
              [f'buffer_load_dword {vg[q]}, {vsc[0]}, {sws}, {s_t0} offen offset:{q * 512}' for q in range(2)]
    NE = 16 if PT else 12
    def oslot(t):
        if t >= NE: return vw2, (t - NE) * 2048, f's_add_u32 m0, {s_p}, {(t - NE) * 2048}'
        k = t if t < 4 else t - 4
        n0 = 0 if PT else NW
        if k < 10 - n0: return vwr, (n0 + k) * 2048, f's_add_u32 m0, {s_wb}, {(n0 + k) * 2048}'
        return vw3, (k - 10 + n0) * 2048, f's_add_u32 m0, {s_p}, {QS + (k - 10 + n0) * 2048}'
    WO = [R('a', aa.p + 8 * t, 8) for t in range(4)] + [R('a', 8 * t, 8) for t in range(11)] + [Sx[0][0:8]]
    assert Wf[0].a == 88 and aa.p + 32 <= 256
    vw3 = [va2(), va2()]
    def woread(t):
        base, off, _ = oslot(t)
        return [f'ds_read_b64_tr_b16 {WO[t][4*nb+2*s_:4*nb+2*s_+2]}, {base[nb]} offset:{off + s_ * 512}' for nb in range(2) for s_ in range(2)]
    vw2 = [C[0][0], C[0][1]]
    setup3 += [f's_add_u32 {s_t0}, {s_p}, {QS}', f's_sub_u32 {s_t0}, {s_t0}, {s_wb}', f'v_add_u32 {vw3[0]}, {s_t0}, {vwr[0]}', f'v_add_u32 {vw3[1]}, {s_t0}, {vwr[1]}']
    early_o = [oload(t, oslot(t)[2], 'WO') for t in range(NE)]
    assert PM % 2 == 0 and DW <= 3 and DA <= 7
    plan = {j: [] for j in range(PA)}; prej = {j: [] for j in range(PA)}
    plan[0] += setup1
    plan[1] += setup2[:21]; plan[2] += setup2[21:38]; plan[3] += setup2[38:55]; plan[4] += setup2[55:]; plan[KP] = (plan[KP] + [poll_kv]) if KP == 0 else ([poll_kv] + plan[KP])
    plan[KC] += check([f'v_cmp_gt_u32 vcc, 1, {vpoll[0]}'], [poll_kv], 'kv')
    d = kvdma(f's_add_u32 m0, {s_p}, 32768', 'KV0', False); plan[KC] += d[:3]; plan[KC + 1] += d[3:]
    d = kvdma(f's_add_u32 m0, {s_p}, 49152', 'KV1', False); plan[KC + 2] += d[:3]; plan[KC + 3] += d[3:]
    for i in range(5 if PA == 48 else 3):
        j = 13 + 8 * i
        prej[j] += [f'WAITTAG KV{i % 2}', 's_barrier']
        d = kvdma(f's_add_u32 m0, {s_p}, {(i % 4) * 16384}', f'KV{i % 2}', False)
        if KS == 2 and j == PA - 3: plan[j] += d[:2]; plan[j + 2] += d[:1] + [d[2]]
        elif KS and j >= PM: plan[j] += d[:3]; plan[j + 2] += d[:1] + d[3:]
        else: plan[j] += d[:5]; plan[j + 1] += d[5:]
    busy = (13, 21, 29, 37, 45)
    j = float(H0)
    for k in range(12):
        while int(j) in busy: j = int(j) + 1.0
        plan[int(j)].append(Ins(f'buffer_store_dwordx4 {hreg[k]}, {vl16}, {sws}, {(s_hb, s_h1, s_h2)[k // 4]} offen offset:{(k % 4) * 1024}{st_mod}', 'HST'))
        jl = int(j); j += HP
    plan[10] += setup3[:10]; plan[11] += setup3[10:20]; plan[12] += setup3[20:]
    def nextfree(j):
        while j in busy: j += 1
        return j
    jf = nextfree(jl + FG); plan[jf] += flag(2, 'FL', 'HST')
    ramp = []
    for i in range(max(DA, DW)):
        if i < DW: ramp += wload(i)
        if i < DA: ramp += hload(i)
    groups = []; curg = []; nv = 0
    for x in ramp:
        if isinstance(x, str) and ' m0,' in x and nv + 2 > RP: groups.append(curg); curg = []; nv = 0
        if isinstance(x, Ins):
            if nv >= RP and not x.text.endswith(' lds'): groups.append(curg); curg = []; nv = 0
            nv += 1
        curg.append(x)
    groups.append(curg)
    jc = PM - 1; k = len(groups)
    while k:
        jc -= 1
        if jc not in busy: k -= 1
    jp = jc - PG
    assert jp > jf, (jp, jf)
    if PT and GP:
        vgl = R('v', 224, 16)
        poll_all = [f'buffer_load_dwordx4 {vgl[4 * i:4 * i + 4]}, {vl16}, {sfl}, 0 offen offset:{i * 1024} sc1' for i in range(4)]
        cond_all = [f'v_min3_u32 {vu1}, {vgl[0]}, {vgl[1]}, {vgl[2]}'] + [f'v_min3_u32 {vu1}, {vu1}, {vgl[i]}, {vgl[i + 1]}' for i in range(3, 15, 2)] + \
                   [f'v_min_u32 {vu1}, {vu1}, {vgl[15]}', f'v_cmp_gt_u32 vcc, 2, {vu1}']
        plan[jp] += poll_all
    else: plan[jp] += [poll_h]
    jj = E0
    for t in range(0, 4, 2):
        jj = nextfree(jj + 1); plan[jj] += early_o[t] + early_o[t + 1]
    jj = nextfree(jj + 3)
    for t in range(4):
        plan[jj] += (['WAITTAG WO'] if t == 0 else []) + woread(t); jj = nextfree(jj + 1)
    for t in range(4, NE):
        plan[jj] += (['s_waitcnt lgkmcnt(0)'] if t == 4 else []) + early_o[t]
        if t % 2 == 1 or jj < jl: jj = nextfree(jj + 1)
    assert jj <= jc + 1, (jj, jc)
    if PT and GP: plan[jc] += check(cond_all, poll_all, 'h')
    else: plan[jc] += check(cond2, [poll_h], 'h') + [f's_lshl_b32 {s_t2}, {s_mb}, 9', poll_h]
    jj = jc
    for g_ in groups:
        plan[jj] += g_; jl2 = jj; jj = nextfree(jj + 1)
    assert jl2 <= PM - 2, (jl2, PM)
    plan[PM - 1] = ['WAITTAG D0 A0'] + wrd(vwr, 0, 0) + plan[PM - 1]
    NZ = PM == PA
    if NZ:
        plan[PM - 3] += og_loads
        plan[PM - 1] += check(cond2, [poll_h], 'g') + g_loads
        plan[jf + 1] += [f'v_accvgpr_write_b32 {Wf[1][i]}, 0' for i in range(4)]
        for k in range(8): zplan.setdefault(jf + 2 + k // 2, []).append(f'v_mfma_f32_32x32x16_bf16 {acc3[k // 4][k % 4]}, {Wf[1]}, {Wf[1]}, 0')
        assert jf + 6 < PM
    else:
        plan[PM + 2] += og_loads
        plan[PM + 4] += ([] if (PT and GP) else check(cond2, [poll_h], 'g')) + g_loads
    if PA == 48: plan[PA - 1] += [f's_xor_b32 {s_p}, {s_p}, 32768']
    vcp = va2()
    vtp = [va2() for _ in range(3)]
    L0 = (PA - PM) // 2 + (128 - PA) // 2
    nA = (56 - L0 - DA) * 4; nW = (56 - L0 - DW) * 4; nO = (16 - NE) * 4
    if TP1:
        plan[26] += lines(f"""
        s_and_b32 {s_t0}, {s_nt}, 7
        s_mul_i32 {s_t0}, {s_t0}, {nA}
        s_mul_i32 {s_t1}, {s_w}, {56 * 32}
        s_add_u32 {s_t0}, {s_t0}, {s_t1}
        s_add_u32 {s_t0}, {s_t0}, {(L0 + DA) * 32}
        v_add_u32 {vu1}, {s_t0}, {vl}
        v_lshlrev_b32 {vu1}, 7, {vu1}
        v_cmp_lt_u32 {smask}, {vl}, {nA}
        v_cndmask_b32 {vtp[0]}, 2.0, {vu1}, {smask}""")
        plan[27] += lines(f"""
        s_and_b32 {s_t1}, {s_mt}, 3
        s_mul_i32 {s_t0}, {s_t1}, {nO}
        s_add_u32 {s_t0}, {s_t0}, {NE * 16}
        v_add_u32 {vu1}, {s_t0}, {vl}
        v_lshlrev_b32 {vu1}, 11, {vu1}
        v_cmp_lt_u32 {smask}, {vl}, {nO}
        v_cndmask_b32 {vtp[2]}, 2.0, {vu1}, {smask}
        s_mul_i32 {s_t0}, {s_t1}, {nW}
        s_mul_i32 {s_t1}, {s_w}, {56 * 16}
        s_add_u32 {s_t0}, {s_t0}, {s_t1}
        s_add_u32 {s_t0}, {s_t0}, {(L0 + DW) * 16}
        v_add_u32 {vu1}, {s_t0}, {vl}
        v_lshlrev_b32 {vu1}, 11, {vu1}
        v_cmp_lt_u32 {smask}, {vl}, {nW}
        v_cndmask_b32 {vtp[1]}, 2.0, {vu1}, {smask}""")
    if CP2:
        plan[PM - 3] += [f's_getpc_b64 {scp[0:2]}', f'{name}_pct:', f's_and_b32 {scp[1]}, {scp[1]}, 0xffff', f's_mov_b32 {scp[2]}, {name}_slow-{name}_pct',
                         f's_mov_b32 {scp[3]}, 0x00020000', f's_lshr_b32 {s_t0}, s2, 3', f's_lshl_b32 {s_t0}, {s_t0}, 2', f's_add_u32 {s_t0}, {s_t0}, {s_w}',
                         f's_lshl_b32 {s_t0}, {s_t0}, 7', f's_add_u32 {s_t0}, {s_t0}, {name}_tail-{name}_pct', f'v_lshl_add_u32 {vcp}, {vl}, 14, {s_t0}']
    def mixed(j, st, nb, loop, misc=(), pre=(), zero=False):
        dw = wload(st + DW); da = hload(st + DA)
        if loop and exp_ & 32:
            dw = [Ins(f'buffer_load_dwordx4 a[{224 + 8 * (st % 4) + 4 * hh}:{227 + 8 * (st % 4) + 4 * hh}], {vl16}, {swd}, {s_ow} offen offset:{hh * 1024}', f'D{(st + DW) % NW}') for hh in range(2)] + dw[3:]
            if nb == 0: period(j, loop, (st, 0), misc=dw + da[:1] + list(misc), pre=pre, zero=zero)
            else:
                p.e(f'WAITTAG D{(st + 1) % NW} A{(st + 1) % NB} LGKM0')
                period(j, loop, (st, 1), misc=da[1:] + list(misc), pre=pre, zero=zero)
            return
        if nb == 0:
            period(j, loop, (st, 0), misc=wrd(vwr, (st % NW) * 2048, 1) + dw + da[:AS] + list(misc), pre=pre, zero=zero)
        else:
            p.e(f'WAITTAG D{(st + 1) % NW} A{(st + 1) % NB} LGKM0')
            period(j, loop, (st, 1), misc=wrd(vwr, ((st + 1) % NW) * 2048, 0) + da[AS:] + list(misc), pre=pre, zero=zero)
    p.seg('partA')
    for j in range(PA):
        if ptrace == -1 and j in (0, 1, 5, 7, 9, 13, 15, 21, jf, jf + 1, jc, jc + 1, PM): pf.trace()
        if j < PM: period(j, misc=plan[j], pre=prej[j])
        else: mixed(j, (j - PM) // 2, j % 2, False, misc=plan[j], pre=prej[j], zero=(j < PM + 2))
    if ptrace == -1: pf.trace()
    ST0 = (PA - PM) // 2
    pf.stamp(4)
    p.e(f's_mov_b32 {s_cnt}, {(128 - PA) // 16}')
    p.seg('loop')
    p.e(f'{name}_loop:')
    for j in range(16):
        misc = []; pre = []
        if j in (5, 13):
            pre = [f'WAITTAG KV{1 if j == 5 else 0}', 's_barrier']
        if KS == 0 and j in (5, 6, 13, 14):
            d = kvdma(f's_xor_b32 m0, {s_p}, 49152' if j < 8 else f's_mov_b32 m0, {s_p}', 'KV1' if j < 8 else 'KV0')
            misc = d[:5] if j in (5, 13) else d[5:]
        if KS == 1 and j in (5, 7, 13, 15):
            d = kvdma(f's_xor_b32 m0, {s_p}, 49152' if j < 8 else f's_mov_b32 m0, {s_p}', 'KV1' if j < 8 else 'KV0')
            misc = d[:3] if j in (5, 13) else d[:1] + d[3:]
        if KS == 2 and j % 2 == 1:
            first_ = 5 <= j < 13
            d = kvdma(f's_xor_b32 m0, {s_p}, 49152' if first_ else (f's_mov_b32 m0, {s_p}' if j >= 13 else f's_xor_b32 m0, {s_p}, 32768'), 'KV1' if first_ else 'KV0')
            k = ((j - 5) // 2) % 4
            misc = d[:1] + [d[1 + k]] + (d[5:] if k == 3 else [])
        if TP1 and j == 2: misc = misc + [f's_cmp_eq_u32 {s_cnt}, 1', f's_cselect_b32 {s_t0}, 0, 2.0']
        if TP1 and j in (4, 6, 8): misc = misc + [Ins(f'buffer_load_dword {vpd}, {vtp[j // 2 - 2]}, {(sA, swd, swo)[j // 2 - 2]}, {s_t0} offen', 'pf')]
        if j == 9 and CP2: misc = [Ins(f'buffer_load_dword {vpd}, {vcp}, {scp}, 0 offen', 'pf')]
        if j == 15: misc = misc + [f's_xor_b32 {s_p}, {s_p}, 32768', f'v_xor_b32 {vkA}, 0x8000, {vkA}', f'v_xor_b32 {vkB}, 0x8000, {vkB}']
        if ptrace == -3:
            p.e(f's_memtime {s_pt[2:4]}\ns_waitcnt lgkmcnt(0)\nv_writelane_b32 {vtr}, {s_pt[2]}, {j}')
        mixed(j, ST0 + j // 2, j % 2, True, misc=misc, pre=pre)
    p.e(f's_sub_u32 {s_cnt}, {s_cnt}, 1\ns_cmp_lg_u32 {s_cnt}, 0\ns_cbranch_scc1 {name}_loop')

    p.seg('tail')
    p.e(f'{name}_tail:')
    pf.stamp(5)
    if ptrace == -2: pf.trace()
    p.add([cvt(15, 7), pv(15, 0), pv(15, 1), rsum(1)])
    def lsum():
        p.e(f"""
        v_accvgpr_read_b32 {vsc[0]}, {L[0][0]}
        v_accvgpr_read_b32 {vu0}, {L[0][1]}
        v_accvgpr_read_b32 {vsc[1]}, {L[1][0]}
        v_accvgpr_read_b32 {vu1}, {L[1][1]}
        v_add_f32 {vsc[0]}, {vsc[0]}, {vu0}
        v_add_f32 {vsc[1]}, {vsc[1]}, {vu1}
        """)
    lsum()
    p.e(f"""
    v_cmp_nle_f32 vcc, {vsc[0]}, {s_thr}
    v_cmp_nle_f32 {smask}, {vsc[1]}, {s_thr}
    s_or_b64 vcc, vcc, {smask}
    s_cbranch_vccnz {name}_slow
    """)
    p.seg('epi')
    p.e(f'{name}_epi:')
    LATE0 = ST0 + (128 - PA) // 2
    vs2 = [P[1][0:2], P[1][2:4]]
    vq_ = []
    o_next = NE
    for st_ in range(LATE0, 56):
        if st_ + DW < 56: vq_.append((st_ + DW - NW + 1, wload(st_ + DW)))
        if st_ + DA < 56: vq_.append((st_ + DA - NB + 1, hload(st_ + DA)))
        if o_next < 16: vq_.append((0, oload(o_next, oslot(o_next)[2], 'WO'))); o_next += 1
    assert o_next == 16
    cur = []
    def onevm(st):
        nonlocal cur
        if not cur and vq_ and vq_[0][0] <= st: cur = list(vq_.pop(0)[1])
        if not cur: return False
        while cur:
            x = cur.pop(0); p.add([x])
            if isinstance(x, Ins): break
        while cur and not any(isinstance(y, Ins) for y in cur): p.add([cur.pop(0)])
        return True
    p.e(f"""
    v_rcp_f32 {vsc[0]}, {vsc[0]}
    v_rcp_f32 {vsc[1]}, {vsc[1]}
    s_mul_i32 {s_p}, {s_wr}, 49152
    s_lshl_b32 {s_t0}, {s_wc}, 13
    s_add_u32 {s_p}, {s_p}, {s_t0}
    s_barrier
    v_mul_f32 {vs2[0][0]}, {vsc[0]}, {vg[0]}
    v_mul_f32 {vs2[1][0]}, {vsc[1]}, {vg[1]}
    v_mov_b32 {vs2[0][1]}, {vs2[0][0]}
    v_mov_b32 {vs2[1][1]}, {vs2[1][0]}
    """)
    for q in range(2):
        for f in range(2):
            t_ = Sx[q][8 * f:8 * f + 8]
            if EV: onevm(LATE0)
            for i in range(8): p.e(f'v_accvgpr_read_b32 {t_[i]}, {O[q][8*f+i]}')
            if EV > 1: onevm(LATE0)
            for i in range(4): p.e(f'v_pk_mul_f32 {t_[2*i:2*i+2]}, {t_[2*i:2*i+2]}, {vs2[q]}')
            for i in range(4): p.e(f'v_cvt_pk_bf16_f32 {t_[i]}, {t_[2*i]}, {t_[2*i+1]}')
            p.e(f'buffer_store_dwordx4 {t_[0:4]}, {vo}, {sws}, {(s_ob, s_ob2)[f]} offen offset:{q * 1024}{st_mod}', 'OST')
    vout = C[0][4]; vrw = [C[0][5], C[0][6], C[0][7]]; vrr = C[0][8]
    sk = [s_h1, s_h2, s_hb, s_left]
    vA2 = [[vA[r], Sx[1][3 * r], Sx[1][3 * r + 1], Sx[1][3 * r + 2]] for r in range(4)]
    late2 = lines(f"""
        s_sub_u32 {s_t0}, {s_p}, {s_wb}
        v_add_u32 {vw2[0]}, {s_t0}, {vwr[0]}
        v_add_u32 {vw2[1]}, {s_t0}, {vwr[1]}
        s_lshl_b32 {s_t0}, {s_mt}, 18
        s_lshl_b32 {s_t1}, {s_nt}, 7
        s_add_u32 {s_t0}, {s_t0}, {s_t1}
        s_add_u32 {sout[0]}, {pout[0]}, {s_t0}
        s_addc_u32 {sout[1]}, {pout[1]}, 0
        s_sub_u32 {sout[2]}, {S * D * 2}, {s_t0}
        s_mov_b32 {sout[3]}, 0x00020000
        v_and_b32 {vu1}, 31, {vl}
        s_lshl_b32 {s_t0}, {s_w}, 16
        v_lshl_add_u32 {vout}, {vu1}, 11, {s_t0}
        v_lshrrev_b32 {vu1}, 5, {vl}
        v_lshl_add_u32 {vout}, {vu1}, 4, {vout}
        v_bfe_u32 {vu1}, {vl}, 1, 3
        v_and_b32 {vu2}, 1, {vl}
        v_lshlrev_b32 {vu2}, 2, {vu2}
        v_lshl_add_u32 {vpa}, {vu1}, 4, {vu2}
        s_lshr_b32 {s_t2}, {s_mt}, 1
        s_lshl_b32 {s_t2}, {s_t2}, 9
        s_lshl_b32 {s_t0}, {s_w}, 7
        s_add_u32 {s_t2}, {s_t2}, {s_t0}
        s_and_b32 {s_t0}, {s_mt}, 1
        s_lshl_b32 {s_t0}, {s_t0}, 3
        s_add_u32 {s_t2}, {s_t2}, {s_t0}
        s_mul_i32 {s_t0}, {s_w}, 24576
        v_add_u32 {vrr}, {s_t0}, {vl16}
        s_lshl_b32 {s_t1}, {s_w}, 16
        s_add_u32 {s_t1}, {s_t1}, {224 * 4096}""")
    late2[6:8] = [late2[6:8]]
    for r in range(3):
        late2 += [f'v_lshrrev_b32 {vu1}, 10, {vA[r]}', f'v_mul_u32_u24 {vu1}, 24576, {vu1}', f'v_add_u32 {vu1}, {(2 - r) * 8192}, {vu1}', f'v_add_u32 {vrw[r]}, {vu1}, {vl16}']
    for i in range(4):
        late2 += [f's_add_u32 {sk[i]}, {s_t1}, {i * 16384}']
    for r in range(4):
        for i in range(1, 4): late2.append(f'v_add_u32 {vA2[r][i]}, {i * 4096}, {vA[r]}')
    vtw = [C[1][i] for i in range(4)]; vtr_ = C[1][4]; sf = [0, s_ow, s_oo, s_ob]
    fin_setup = lines(f"""
        s_lshl_b32 {s_t0}, {s_w}, 12
        s_add_u32 {s_t0}, {s_t0}, {QS}
        v_and_b32 {vu1}, 31, {vl}
        v_lshl_add_u32 {vtw[0]}, {vu1}, 7, {s_t0}
        v_lshrrev_b32 {vu2}, 5, {vl}
        v_xor_b32 {vu2}, {vu2}, {vl}
        v_and_b32 {vu2}, 7, {vu2}
        v_lshl_add_u32 {vtw[0]}, {vu2}, 4, {vtw[0]}
        v_xor_b32 {vtw[1]}, 32, {vtw[0]}
        v_xor_b32 {vtw[2]}, 64, {vtw[0]}
        v_xor_b32 {vtw[3]}, 0x60, {vtw[0]}
        v_lshrrev_b32 {vu1}, 3, {vl}
        v_xor_b32 {vu2}, {vu1}, {vl}
        v_and_b32 {vu2}, 7, {vu2}
        v_lshl_add_u32 {vtr_}, {vu1}, 7, {s_t0}
        v_lshl_add_u32 {vtr_}, {vu2}, 4, {vtr_}
        v_and_b32 {vu2}, 7, {vl}
        v_lshlrev_b32 {vu2}, 4, {vu2}
        s_lshl_b32 {s_t0}, {s_w}, 16
        v_lshl_add_u32 {vout}, {vu1}, 11, {s_t0}
        v_add_u32 {vout}, {vout}, {vu2}""") + [f's_mov_b32 {sf[i]}, {i * 16384}' for i in range(1, 4)]
    poll_o = f'buffer_load_dword {vpoll[0]}, {vpa}, {sfl}, {s_t2} offen sc1'
    AB = [Ab[i // 4][i % 4] for i in range(32)]
    abfree = [48 + i // 4 for i in range(32)]
    if PT:
        AB = [Ab[6 + i // 4][i % 4] for i in range(8)]; abfree = [0] * 8
        for b in range(4):
            AB += Ab[b] + Wb[b]; abfree += [52 + b] * 6
    def aload(i):
        r, t = divmod(i, 16)
        return f'buffer_load_dwordx4 {AB[i % 32]}, {vA2[r][t % 4]}, {sA}, {sk[t // 4]} offen{lm2}'
    a_next = 0; side = list(late2); checked = False
    for st in range(LATE0, 56):
        if ptrace == -2: pf.trace()
        n0 = wrd(vwr, (st % NW) * 2048, 1)
        n1 = ([f'WAITTAG D{(st + 1) % NW} A{(st + 1) % NB}'] + wrd(vwr, ((st + 1) % NW) * 2048, 0)) if st < 55 else []
        if st == LATE0 + 1: side = [flag(3, 'FL', 'OST')] + side
        if st == LATE0 + 2: side += [x for t in range(4, NE) for x in woread(t)]
        for c in range(8):
            nb, tb = divmod(c, 4)
            p.e(gm(st, nb, tb if nb == 0 else 3 - tb))
            if c == 0: p.add(n0)
            if c == 4: p.add(n1)
            if st == LATE0 + OC - PO and c == 1:
                assert not any(isinstance(y, str) and (str(vpa) + ',' in y or str(s_t2) + ',' in y) for y in side)
                p.e(poll_o)
            if st == LATE0 + OC and c == 1:
                p.add(check([f'v_cmp_gt_u32 vcc, 3, {vpoll[0]}'], [poll_o], 'o')); checked = True
                if TP2:
                    p.e(f's_and_b32 {s_t0}, {s_nt}, 7\ns_lshl_b32 {s_t0}, {s_t0}, 13\ns_add_u32 {s_t0}, {s_t0}, {sk[0]}\nv_lshlrev_b32 {vu1}, 7, {vl}')
                    p.add([Ins(f'buffer_load_dword {vpd}, {vu1}, {sA}, {s_t0} offen', 'pf')])
            if onevm(st): pass
            elif checked and a_next < AL and abfree[a_next] < st and st >= 56 - ALS:
                assert not any(y in late2 for y in side)
                p.e(aload(a_next)); a_next += 1
            for _ in range(3 if st < LATE0 + 2 else 2):
                if side:
                    x = side.pop(0); p.add(x if isinstance(x, list) else [x])
    assert not cur and not vq_ and checked and not side
    if ptrace == -2: pf.trace()
    pf.stamp(6)
    def scale(r): return [f'v_mul_f32 {acc3[nb][r][i]}, {acc3[nb][r][i]}, {vog[r]}' for nb in range(2) for i in range(16)]
    p.e('WAITTAG WO')
    rds = [x for t in range(NE, 16) for x in woread(t)]
    for k, x in enumerate(scale(0)):
        p.e(x)
        if k % 4 == 1 and rds: p.e(rds.pop(0))
        if k % 8 == 3 and a_next < AL + 4: p.e(aload(a_next)); a_next += 1
    side = []
    for k, x in enumerate(scale(1)):
        side.append(x)
        if rds: side.append(rds.pop(0))
    assert not rds
    def rdpart(sl, dst): return [f'ds_read_b128 {acc3[n_][dst][4*j:4*j+4]}, {vrr} offset:{sl * 8192 + (n_ * 4 + j) * 1024}' for n_ in range(2) for j in range(4)]
    def addpart(src): return [f'v_add_f32 {acc3[n_][0][e]}, {acc3[n_][0][e]}, {acc3[n_][src][e]}' for n_ in range(2) for e in range(16)]
    wr = []; dens = 2
    for i in range(64):
        r, t = divmod(i, 16)
        if ptrace == -2 and i % 8 == 0: pf.trace()
        for nb in range(2):
            if nb == 0:
                if i == 16: side += scale(2)
                if i == 16 + 2:
                    p.e('s_waitcnt lgkmcnt(0)\ns_barrier')
                if i == 32:
                    assert not side
                    side += scale(3); dens = 3 if FT else 2
                if i == 33 and FT:
                    side += fin_setup
                if i == 32 + 11:
                    assert not wr and not side
                    p.e('s_waitcnt lgkmcnt(0)\ns_barrier')
                    side += rdpart(2, 0) + rdpart(1, 1) + [None] * 4 + addpart(1); dens = 3
                if i == 48 + 7:
                    assert not wr and not side
                    p.e('s_waitcnt lgkmcnt(0)\ns_barrier')
                    side += rdpart(0, 2) + [None] * 6 + addpart(2)
            p.e(f'v_mfma_f32_32x32x16_bf16 {acc3[nb][r]}, {WO[t][4*nb:4*nb+4]}, {AB[i % 32]}, {acc3[nb][r]}')
            if a_next < 64 and a_next <= i + 30 and (nb == 0 or a_next < i + ALM): p.e(aload(a_next)); a_next += 1
            if wr and t >= 2 and (nb == 1 or r == 3): p.e(wr.pop(0))
            for _ in range(dens):
                if side:
                    x = side.pop(0)
                    if x: p.e(x)
        if t == 15 and r < 3:
            assert not wr
            wr = [f'ds_write_b128 {vrw[r]}, {acc3[nb][r][4*j:4*j+4]} offset:{(nb * 4 + j) * 1024}' for nb in range(2) for j in range(4)]
    fin = side
    assert a_next == 64
    pf.stamp(7)
    p.add([x for x in fin if x])
    for nb in range(2):
        a_ = acc3[nb][3]
        for jp in range(2):
            for i in range(4 * jp, 4 * jp + 4): p.e(f'v_pk_add_f32 {a_[2*i:2*i+2]}, {a_[2*i:2*i+2]}, {acc3[nb][0][2*i:2*i+2]}')
            o = Sx[0][8 + 4 * jp:12 + 4 * jp] if nb == 0 else P[0][4 * jp:4 * jp + 4]
            for i in range(4): p.e(f'v_cvt_pk_bf16_f32 {o[i]}, {a_[8 * jp + 2 * i]}, {a_[8 * jp + 2 * i + 1]}')
            p.e(f'v_permlane32_swap_b32 {o[0]}, {o[2]}\nv_permlane32_swap_b32 {o[1]}, {o[3]}')
            if FT: p.e(f'ds_write_b128 {vtw[2 * nb + jp]}, {o}')
            else: p.e(f'buffer_store_dwordx4 {o}, {vout}, {sout}, 0 offen offset:{nb * 64 + jp * 32}' + ('', ' sc1', ' nt', ' sc0 sc1')[OUTM])
    if FT:
        p.e('s_waitcnt lgkmcnt(0)')
        for i in range(4): p.e(f'ds_read_b128 {acc3[0][1][4*i:4*i+4]}, {vtr_} offset:{i * 1024}')
        for i in range(4): p.e(f'buffer_store_dwordx4 {acc3[0][1][4*i:4*i+4]}, {vout}, {sout}, {sf[i]} offen' + ('', ' sc1', ' nt', ' sc0 sc1')[OUTM])
    pf.stamp(8)
    pf.flush(s_w, sws, vl, vu0)
    if PRB:
        p.e(f"""
        v_readlane_b32 {s_t0}, {vtr}, {44 + 2 * PRA}
        v_readlane_b32 {s_t1}, {vtr}, {44 + 2 * PRB}
        v_readlane_b32 {s_t2}, {vtr}, 62
        s_nop 4
        s_sub_u32 {s_t0}, {s_t1}, {s_t0}
        s_min_u32 {s_t0}, {s_t0}, 20000
        s_lshl_b32 {s_t0}, {s_t0}, 2
        s_mov_b32 {s_cnt}, 200000
        {name}_probe:
        s_memrealtime {s_pt[0:2]}
        s_waitcnt lgkmcnt(0)
        s_sub_u32 {s_t1}, {s_pt[0]}, {s_t2}
        s_cmp_ge_u32 {s_t1}, {s_t0}
        s_cbranch_scc1 {name}_probe_done
        s_sub_u32 {s_cnt}, {s_cnt}, 1
        s_cmp_lg_u32 {s_cnt}, 0
        s_cbranch_scc1 {name}_probe
        {name}_probe_done:
        """)
    if dbg > 0:
        p.e(f"""
        v_readlane_b32 {s_t0}, {vtr}, 44
        v_readlane_b32 {s_t1}, {vtr}, 45
        v_and_b32 {vu1}, 1, {vl}
        v_cmp_eq_u32 vcc, 0, {vu1}
        v_mov_b32 {vu1}, {s_t0}
        v_mov_b32 {vu2}, {s_t1}
        v_cndmask_b32 {vu1}, {vu2}, {vu1}, vcc
        v_sub_u32 {vu1}, {vtr}, {vu1}
        v_subrev_u32 {vu2}, 46, {vl}
        v_lshlrev_b32 {vu2}, 2, {vu2}
        v_cmp_gt_u32 vcc, 64, {vu2}
        v_cndmask_b32 {vu2}, 2.0, {vu2}, vcc
        s_mov_b32 {skv[0]}, {pdbg[0]}
        s_mov_b32 {skv[1]}, {pdbg[1]}
        s_movk_i32 {skv[2]}, 64
        s_lshl_b32 {s_t0}, s2, 2
        s_add_u32 {s_t0}, {s_t0}, {s_w}
        s_cmp_eq_u32 {s_t0}, {dbg - 1}
        s_cselect_b32 {s_t0}, 0, 2.0
        buffer_store_dword {vu1}, {vu2}, {skv}, {s_t0} offen
        """)
    p.e('s_endpgm')

    p.seg('slow0')
    p.e(f'{name}_slow:')
    p.e(f"""
    s_waitcnt vmcnt(0) lgkmcnt(0)
    v_mov_b32 {vu0}, 0xff800000
    v_mov_b32 {vu1}, 0xff800000
    s_mov_b32 {s_okv}, 0
    s_mov_b32 {skv[2]}, 262144
    """)
    p.seg('slow1')
    p.e(f'{name}_slow1:')
    for f in range(2): p.e(f'buffer_load_dwordx4 {K[0][4*f:4*f+4]}, {vl16}, {skv}, {s_okv} offen offset:{f * 1024}')
    for q in range(2):
        for f in range(2): p.e(qk(Sx[q], 0, q, f, '0'))
    rowmax(vu0, Sx[0], False); rowmax(vu1, Sx[1], False)
    p.e(f's_add_u32 {s_okv}, {s_okv}, 4096\ns_cmp_lt_u32 {s_okv}, 262144\ns_cbranch_scc1 {name}_slow1')
    p.seg('slow2')
    setc(0, vu0); setc(1, vu1)
    for q in range(2):
        for i in range(16): p.e(f'v_accvgpr_write_b32 {O[q][i]}, 0')
        for i in range(4): p.e(f'v_accvgpr_write_b32 {L[q][i]}, 0')
    p.e(f's_mov_b32 {s_okv}, 0')
    p.seg('slow3')
    p.e(f'{name}_slow3:')
    for f in range(2): p.e(f'buffer_load_dwordx4 {K[0][4*f:4*f+4]}, {vl16}, {skv}, {s_okv} offen offset:{f * 1024}')
    for f in range(2): p.e(f'buffer_load_dwordx4 {V[0][4*f:4*f+4]}, {vl16}, {skv}, {s_okv} offen offset:{2048 + f * 1024}')
    for q in range(2):
        for f in range(2): p.e(qk(Sx[q], 0, q, f, C[q]))
    for q in range(2):
        for i in range(16): p.e(f'v_exp_f32 {Sx[q][i]}, {Sx[q][i]}')
        for i in range(8): p.e(cvt(q, i))
        p.add([pv(q, 0), pv(q, 1), rsum(q)])
    p.e(f's_add_u32 {s_okv}, {s_okv}, 4096\ns_cmp_lt_u32 {s_okv}, 262144\ns_cbranch_scc1 {name}_slow3')
    p.seg('slow4')
    lsum()
    p.e(f's_branch {name}_epi')
    for lab, cond, reload_ in spins:
        p.seg(lab)
        p.e(f'{lab}_spin:\ns_mov_b32 {s_cnt if lab.endswith("cnt") else s_spin}, {SPIN}\n{lab}_again:\ns_sleep 2')
        p.add(reload_)
        p.e('s_waitcnt vmcnt(0)\ns_nop 1')
        p.add(cond)
        r_ = s_cnt if lab.endswith('cnt') else s_spin
        p.e(f's_nop 4\ns_cbranch_vccz {lab}_ok\ns_sub_u32 {r_}, {r_}, 1\ns_cmp_lg_u32 {r_}, 0\ns_cbranch_scc1 {lab}_again\ns_branch {lab}_ok')
    p.seg('end')
    p.e(f'{name}_end:\ns_endpgm')
    mid = ['join', 'partA', 'loop', 'loop', 'tail']
    slow = ['slow0', 'slow1', 'slow1', 'slow2', 'slow3', 'slow3', 'slow4']
    traces = []
    for wc in range(2):
        for x in ([],):
            traces.append(['pro'] + x + [f'c{wc}a', f'c{wc}l1', f'c{wc}l2', f'c{wc}l1', f'c{wc}l2', f'c{wc}l1', f'c{wc}last'] + mid + ['epi'])
    traces.append(mid + slow + ['epi'])
    for lab, _, _ in spins: traces.append([lab])
    p.auto_waits(traces)
    nn = p.hazards(traces)
    return kernel_header(name) + p.text(), kernel_desc(name), dict(nops=nn, v=va.p, a=aa.p, s=max(sa.p, s_hi))

if __name__ == '__main__':
    import sys
    NAME = 'gated_mix__softmax_full_mha__glu_gated_bilinear__prompt'
    REF = f'cdna_kernels/{NAME}.s.ref'
    dst = sys.argv[1]
    kw = {a.split('=')[0]: float(a.split('=')[1]) if '.' in a else int(a.split('=')[1]) for a in sys.argv[2:] if '=' in a}
    t, d, info = gen_fused(NAME + '_kernel', prof='prof' in sys.argv, force_slow='slow' in sys.argv, **kw)
    print(info, file=sys.stderr)
    head = [l for l in open(REF).read().split('\n') if l.startswith(';') and '@launch' not in l]
    out = '\n'.join(head) + f'\n; @launch grid=(256,1,1) block=(256,1,1) lds={F_LDS}\n.amdgcn_target "amdgcn-amd-amdhsa--gfx950"\n' + t + d
    open(dst, 'w').write(out)
```

```python
from gen_common import *

X0, X1, W0, W1, QS = 0, 32768, 65536, 106496, 147456
F_LDS = 163840
WS_FL = 33 << 20
WS_T = 36 << 20
DBG_CNT = 64
SPIN = 40000

def gen_fused(name, prof=False, pfd=3, cq=8, cg=6.5, cx=4, NB=8, DA=4, DW=3, RP=6, PM=36, HP=1.25, force_slow=False, ptrace=0, dbg=0, exp_=0, VSP=2, PFP=18, OC=8, KP=1, H0=2, ROT=0, CPF=1, OUTM=1, CP0=1, CP2=0, FG=3, TLB=0, EV=1, DL=6, PT=0, GP=0, PRS=2, TT=1, TP1=0, TP2=0, AL=16, ALS=2, ALM=18, FT=1, PA=48, AS=1, KS=2, PK=0, PKR=1, AW=1, KF=100, KC=5, FOFF=0, S1P=10, MWT=0, LM1=0, LM2=0, PO=3, LP=0, PRE=-1, PF0=0, PD0=3, xpf=1, F0=0, FS=1.0, GD=2, SMC=16, VMC=8, VPEN=16, MW=1, PRA=0, PRB=0, PG=3, E0=11, st_mod=' sc1'):
    pfm = 1
    kv_mod = '' if exp_ & 64 else st_mod
    lm1 = ('', ' sc1', ' nt', ' sc0')[LM1]; lm2 = ('', ' sc1', ' nt', ' sc0')[LM2]
    p = Prog()
    sa = Alloc('s', 4, 102); va = Alloc('v', 1, 256); aa = Alloc('a', 0, 256)
    ptr = sa(16, 4)
    px, pqkv, pwo, pwg, pwu, pwd, pgw = ptr[0:2], ptr[2:4], ptr[4:6], ptr[8:10], ptr[10:12], ptr[12:14], ptr[14:16]
    pod = sa(4, 4); pout, pdbg = pod[0:2], pod[2:4]
    pws = sa(2); smask = sa(2)
    sws = sa(4); sfl = sa(4); sdbg = sa(4)
    s_mb, s_h, s_w, s_wr, s_wc, s_t0, s_t1, s_t2, s_cnt, s_tr, s_hb = [sa() for _ in range(11)]
    s_pt = sa(4, 2)
    s_base = sa.p
    sx = sa(4); sq = sa(4); sg = sa(4); spf = sa(4); sp2 = sa(4); sp3 = sa(4)
    s_c0, s_c1, s_ox, s_oq, s_og, s_pfo, s_pfs, s_gs, s_grp, s_ano = [sa() for _ in range(10)]
    s_mx, s_mw, s_msk = sa(), sa(), sa()
    sp4 = sa(4)
    s_hi = sa.p

    vl, vpd, vflag, vtr, vflk = [va() for _ in range(5)]
    v_base = va.p
    pf = Prof2(p, prof, s_pt, vtr, s_tr)
    vdx = [va() for _ in range(8)]; vdq = [va() for _ in range(2)]; vdq.append(vdq[0]); vdg = [va() for _ in range(7)]
    vxr = [va() for _ in range(2)]; vqr = [va() for _ in range(2)]; vgr = [va() for _ in range(2)]
    vt0, vt1, vt2, vt3, vpf = [va() for _ in range(5)]
    vcnt = va(); vwo = va()
    vtmp = va(28, 4)
    assert vtmp.a == 36
    xlo = [[aa(8, 4) for _ in range(4)] for _ in range(2)]; xhi = [aa(8, 4) for _ in range(4)]
    def xf(st, m, ks): return (xlo[st][m] if m < 4 else xhi[m - 4])[4 * ks:4 * ks + 4]
    NSLOT = 4; DIST = 3
    wf = [aa(8, 4) for _ in range(NSLOT)]
    acc = [[None] * 8 for _ in range(10)]
    for n in [0, 1, 6, 7, 8, 9, 2, 3, 4, 5]:
        for m in range(8):
            acc[n][m] = va(4, 4) if va.p + 4 <= 256 else aa(4, 4)

    def lines(s): return [x.strip() for x in s.strip().split('\n')]
    def dma_x(st):
        L = []
        for i in range(8):
            pre = [f's_add_u32 m0, {s_mx}, {(X0, X1)[st] + (i // 4) * 4096}'] if i % 4 == 0 else []
            L.append((pre, Ins(f'buffer_load_dwordx4 {vdx[i]}, {sx}, {s_ox} offen offset:{(i % 4) * 1024}{lm1} lds', f'S{st}')))
        return L
    def dma_w(st):
        L = []
        for i in range(10):
            pre = [f's_add_u32 m0, {s_mw}, {(W0, W1)[st] + (i // 4) * 4096}'] if i % 4 == 0 else []
            v, sr, so = (vdq[i - 7], sq, s_oq) if i >= 7 else (vdg[i], sg, s_og)
            L.append((pre, Ins(f'buffer_load_dwordx4 {v}, {sr}, {so} offen offset:{(i % 4) * 1024}{lm1} lds', f'S{st}')))
        return L
    def emit(lst):
        for pre, ins in lst:
            p.add(pre); p.add([ins])
    adv = [f's_add_u32 {s_oq}, {s_oq}, {64 * 6144}', f's_add_u32 {s_og}, {s_og}, {64 * 7168}', f's_add_u32 {s_ox}, {s_ox}, 128']

    p.seg('pro')
    p.e(f"""
    s_cmp_ge_u32 s2, 256
    s_cbranch_scc1 {name}_end
    """)
    if ptrace == 3:
        p.e(f's_memtime {s_pt[2:4]}\ns_waitcnt lgkmcnt(0)\ns_mov_b32 {s_hb}, {s_pt[2]}')
    if PRA == -1:
        p.e(f's_memrealtime {s_pt[2:4]}\ns_waitcnt lgkmcnt(0)\ns_mov_b32 {s_hb}, {s_pt[2]}')
    p.e(f"""
    s_load_dwordx16 {ptr}, s[0:1], 0
    s_load_dwordx4 {pod}, s[0:1], 64
    s_load_dwordx2 {pws}, s[0:1], 80
    v_lshrrev_b32 {vt0}, 6, v0
    v_and_b32 {vl}, 63, v0
    s_lshr_b32 {s_t1}, s2, 3
    v_readfirstlane_b32 {s_w}, {vt0}
    s_and_b32 {s_mb}, {s_t1}, 7
    s_and_b32 {s_t0}, s2, 7
    s_lshr_b32 {s_t1}, {s_t1}, 3
    s_lshl_b32 {s_h}, {s_t0}, 2
    s_add_u32 {s_h}, {s_h}, {s_t1}
    s_lshr_b32 {s_wr}, {s_w}, 1
    s_and_b32 {s_wc}, {s_w}, 1
    """)
    if CP0:
        p.e(f"""
        s_getpc_b64 {sp3[0:2]}
        {name}_pcs:
        s_and_b32 {sp3[1]}, {sp3[1]}, 0xffff
        s_mov_b32 {sp3[2]}, {name}_join-{name}_pcs
        s_mov_b32 {sp3[3]}, 0x00020000
        s_lshr_b32 {s_t0}, s2, 3
        s_lshl_b32 {s_t0}, {s_t0}, 2
        s_add_u32 {s_t0}, {s_t0}, {s_w}
        s_lshl_b32 {s_t0}, {s_t0}, 7
        v_lshl_add_u32 {vwo}, {vl}, 14, {s_t0}
        """)
        p.add([Ins(f'buffer_load_dword {vpd}, {vwo}, {sp3}, 0 offen', 'pf')])
    vxp, vgp = vtmp[0], vtmp[1]
    p.e(f"""
    v_and_b32 {vt0}, 7, {vl}
    v_lshrrev_b32 {vt1}, 3, {vl}
    v_mul_u32_u24 {vt2}, 86, {vt1}
    v_lshrrev_b32 {vt2}, 8, {vt2}
    v_mad_i32_i24 {vt1}, {vt2}, -3, {vt1}
    v_lshl_add_u32 {vt0}, {vt2}, 6, {vt0}
    s_lshl_b32 {s_t0}, {s_mb}, 3
    v_add_u32 {vt0}, {s_t0}, {vt0}
    s_cmp_eq_u32 {s_w}, 3
    s_movk_i32 {s_c0}, 7168
    s_cmov_b32 {s_c0}, 6144
    s_movk_i32 {s_c1}, 108
    s_cmov_b32 {s_c1}, 2048
    v_mul_u32_u24 {vt0}, {s_c0}, {vt0}
    v_mad_u32_u24 {vxp}, {vt1}, {s_c1}, {vt0}
    v_cmp_gt_u32 vcc, 48, {vl}
    s_lshl_b32 {s_t0}, {s_t1}, 17
    v_lshl_add_u32 {vt0}, {vl}, 11, {s_t0}
    v_cndmask_b32 {vxp}, 2.0, {vxp}, vcc
    s_cmp_eq_u32 {s_w}, 0
    s_cselect_b64 vcc, -1, 0
    v_cndmask_b32 {vxp}, {vxp}, {vt0}, vcc
    """)
    x_addr = lines(f"""
    v_lshrrev_b32 {vt0}, 3, {vl}
    v_and_b32 {vt1}, 7, {vl}
    v_lshrrev_b32 {vt2}, 4, {vl}
    v_xor_b32 {vt1}, {vt1}, {vt2}
    v_lshlrev_b32 {vt3}, 11, {vt0}
    s_lshl_b32 {s_c0}, {s_w}, 17
    v_add_u32 {vt3}, {s_c0}, {vt3}
    v_lshl_add_u32 {vdx[0]}, {vt1}, 4, {vt3}
    v_xor_b32 {vt1}, 4, {vt1}
    v_lshl_add_u32 {vdx[1]}, {vt1}, 4, {vt3}
    v_add_u32 {vdx[1]}, {16384 - 1024}, {vdx[1]}
    s_lshl_b32 {s_mx}, {s_w}, 13
    s_mov_b32 {s_ox}, 0""") + [f'v_add_u32 {vdx[i]}, {(i - i % 2) * 16384 - (i % 4 - i % 2) * 1024}, {vdx[i % 2]}' for i in range(2, 8)]
    q_addr = lines(f"""
    v_lshrrev_b32 {vt0}, 2, {vl}
    v_and_b32 {vt2}, 2, {vt2}
    v_and_b32 {vt1}, 3, {vl}
    v_xor_b32 {vt1}, {vt1}, {vt2}
    s_lshl_b32 {s_c0}, {s_w}, 4
    v_add_u32 {vt0}, {s_c0}, {vt0}
    v_mul_u32_u24 {vt0}, 6144, {vt0}
    v_lshl_add_u32 {vdq[1]}, {vt1}, 4, {vt0}
    v_add_u32 {vdq[0]}, 1024, {vdq[1]}
    s_mul_i32 {s_mw}, {s_w}, 10240
    s_mov_b32 {s_oq}, 0
    s_mov_b32 {s_og}, 0""")
    if PRE >= 0: p.add(x_addr + q_addr)
    def gu_offsets():
        L = [lines(f"""
        s_mul_i32 {s_t0}, {s_wc}, {32 * 7168}
        s_movk_i32 {s_c0}, 6944
        s_movk_i32 {s_c1}, 28672
        v_mul_u32_u24 {vt3}, 4682, {vl}
        v_lshl_add_u32 {vtmp[2]}, {vl}, 4, {s_t0}""")]
        for j in range(7):
            tj = vt3; q_ = []
            if j:
                q_.append(f'v_add_u32 {vt0}, {64 * j * 4682}, {vt3}'); tj = vt0
            q_ += lines(f"""
            v_bfe_u32 {vt1}, {tj}, 18, 1
            v_bfe_u32 {vt2}, {tj}, 19, 1
            v_lshrrev_b32 {vt0}, 16, {tj}
            v_sub_u32 {vt1}, {vt1}, {vt2}
            v_mad_u32_u24 {vdg[j]}, {vt0}, {s_c0}, {vtmp[2]}
            v_mad_i32_i24 {vdg[j]}, {vt1}, {s_c1}, {vdg[j]}""")
            if j == 3: q_.append(f'v_add_u32 {vtmp[2]}, 4096, {vtmp[2]}')
            L.append(q_)
        return L
    gu = gu_offsets()
    if PRE >= 1:
        for q_ in gu: p.add(q_)
    PD = pfd
    gpf_addr = lines(f"""
        s_cmp_eq_u32 {s_w}, 0
        s_cselect_b32 {s_grp}, 12, 14
        s_lshl_b32 {s_pfs}, {s_grp}, 15
        s_cmp_eq_u32 {s_w}, 3
        s_cselect_b32 {s_grp}, 8, {s_grp}
        s_cselect_b32 {s_pfs}, 0x80, {s_pfs}
        s_cselect_b32 {s_ano}, 11, 7
        s_mul_i32 {s_t1}, {s_grp}, s2
        v_and_b32 {vt1}, 15, {vl}
        v_add_u32 {vt0}, {s_t1}, {vt1}
        v_lshlrev_b32 {vpf}, {s_ano}, {vt0}
        v_lshrrev_b32 {vt0}, 4, {vl}
        v_mul_lo_u32 {vt0}, {vt0}, {s_pfs}
        v_add_u32 {vgp}, {vt0}, {vpf}
        v_cmp_gt_u32 vcc, {s_grp}, {vt1}
        v_cmp_gt_u32 {smask}, {16 * (PD0 - 1)}, {vl}
        s_and_b64 {smask}, {smask}, vcc
        v_cndmask_b32 {vgp}, 2.0, {vgp}, {smask}
        v_cmp_gt_u32 vcc, {s_grp}, {vl}
        s_mul_i32 {s_pfo}, {s_pfs}, {PD0}
        v_cndmask_b32 {vpf}, 2.0, {vpf}, vcc""")
    gpf_issue = lines(f"""
        s_cmp_eq_u32 {s_w}, 0
        s_cselect_b64 {spf[0:2]}, {pqkv}, {pwg}
        s_cmp_eq_u32 {s_w}, 2
        s_cselect_b64 {spf[0:2]}, {pwu}, {spf[0:2]}
        s_cmp_eq_u32 {s_w}, 3
        s_cselect_b64 {spf[0:2]}, {px}, {spf[0:2]}
        s_lshl_b32 {spf[2]}, {s_grp}, 19""") + [Ins(f'buffer_load_dword {vpd}, {vgp}, {spf}, {s_pfs} offen', 'pf')]
    def pfetch():
        return [Ins(f'buffer_load_dword {vpd}, {vpf}, {spf}, {s_pfo} offen', 'pf'), f's_add_u32 {s_pfo}, {s_pfo}, {s_pfs}']
    def pfetch_d():
        return [Ins(f'buffer_load_dword {vpd}, {vt3}, {sp2}, {s_c1} offen', 'pf'), f's_add_u32 {s_c1}, {s_c1}, {1024 * DL * 128}']
    rd_addr = lines(f"""
    v_and_b32 {vt0}, 15, {vl}
    v_lshrrev_b32 {vt1}, 4, {vl}
    v_lshrrev_b32 {vt2}, 1, {vt0}
    v_xor_b32 {vt2}, {vt1}, {vt2}
    s_lshl_b32 {s_t0}, {s_wr}, 14
    v_lshl_add_u32 {vt3}, {vt0}, 7, {s_t0}
    v_lshl_add_u32 {vxr[0]}, {vt2}, 4, {vt3}
    v_xor_b32 {vxr[1]}, 64, {vxr[0]}
    v_and_b32 {vt3}, 3, {vt0}
    v_lshlrev_b32 {vt3}, 3, {vt3}
    v_lshrrev_b32 {vt0}, 2, {vt0}
    v_lshrrev_b32 {vt2}, 1, {vt1}
    v_and_b32 {vt1}, 1, {vt1}
    v_mul_u32_u24 {vqr[0]}, 10240, {vt2}
    v_mul_u32_u24 {vqr[1]}, {512 + 32}, {vt1}
    v_add3_u32 {vqr[0]}, {vqr[0]}, {vqr[1]}, {vt3}
    v_lshl_add_u32 {vqr[0]}, {vt0}, 6, {vqr[0]}
    s_lshl_b32 {s_t0}, {s_wc}, 10
    s_sub_u32 {s_t0}, {W0 + 8192}, {s_t0}
    v_add_u32 {vqr[0]}, {s_t0}, {vqr[0]}
    v_xor_b32 {vqr[1]}, 32, {vqr[0]}
    v_lshl_add_u32 {vt0}, {vt1}, 2, {vt0}
    v_lshl_add_u32 {vt0}, {vt2}, 4, {vt0}
    v_mul_u32_u24 {vt0}, 224, {vt0}
    s_mul_i32 {s_t0}, {s_wc}, 96
    s_add_u32 {s_t0}, {s_t0}, {W0}
    v_add3_u32 {vgr[0]}, {vt0}, {vt3}, {s_t0}
    v_add_u32 {vgr[1]}, 20480, {vgr[0]}""")
    if PRE >= 2 or PF0: p.add(gpf_addr)
    if PRE >= 3: p.add(rd_addr)
    p.e(f"""
    s_lshl_b32 {s_t0}, {s_mb}, 19
    s_lshl_b32 {s_t1}, {s_h}, 6
    s_mul_i32 {s_t2}, {s_h}, 224
    s_mov_b32 {sx[3]}, 0x00020000
    s_mov_b32 {sq[3]}, 0x00020000
    s_mov_b32 {sg[3]}, 0x00020000
    s_mov_b32 {spf[3]}, 0x00020000
    s_sub_u32 {sx[2]}, {S * D * 2}, {s_t0}
    s_sub_u32 {sq[2]}, {D * 3072 * 2}, {s_t1}
    s_sub_u32 {sg[2]}, {D * F * 2}, {s_t2}
    s_waitcnt lgkmcnt(0)
    """)
    pf.stamp(0)
    pf.trace_init(vtr, s_tr)
    if PRA == -1: p.e(f'v_writelane_b32 {vtr}, {s_hb}, 42')
    if ptrace == 3:
        p.e(f'v_writelane_b32 {vtr}, {s_hb}, 0\ns_mov_b32 {s_tr}, 1')
        pf.trace()
    p.e(f"""
    s_add_u32 {sx[0]}, {px[0]}, {s_t0}
    s_addc_u32 {sx[1]}, {px[1]}, 0
    s_add_u32 {sq[0]}, {pqkv[0]}, {s_t1}
    s_addc_u32 {sq[1]}, {pqkv[1]}, 0
    s_cmp_ge_u32 {s_w}, 2
    s_cselect_b64 {sg[0:2]}, {pwu}, {pwg}
    s_add_u32 {sg[0]}, {sg[0]}, {s_t2}
    s_addc_u32 {sg[1]}, {sg[1]}, 0
    s_cmp_eq_u32 {s_w}, 3
    s_cselect_b64 {spf[0:2]}, {sq[0:2]}, {sg[0:2]}
    s_cselect_b32 {spf[2]}, {sq[2]}, {sg[2]}
    s_cmp_eq_u32 {s_w}, 0
    s_cselect_b64 {spf[0:2]}, {sx[0:2]}, {spf[0:2]}
    s_cselect_b32 {spf[2]}, {sx[2]}, {spf[2]}
    """)
    if xpf: p.add([Ins(f'buffer_load_dword {vpd}, {vxp}, {spf}, 0 offen', 'pf')])
    if PF0: p.add(gpf_issue)
    if ptrace > 0: pf.trace()
    if PRE < 0: p.add(x_addr)
    emit(dma_x(0))
    if ptrace > 0: pf.trace()
    if PRE < 0: p.add(q_addr)
    w0 = dma_w(0)
    p.e(f's_add_u32 m0, {s_mw}, {W0 + 4096}')
    emit(w0[7:])
    if PRE < 1: p.add(gu[0])
    for j in range(7):
        if PRE < 1: p.add(gu[j + 1])
        emit([w0[j]])
    p.add(adv)
    if ptrace > 0: pf.trace()
    emit((dma_w(1) + dma_x(1))[:S1P])
    if PRE < 2 and not PF0: p.add(gpf_addr)
    if not PF0: p.add(gpf_issue)
    if PRE < 3: p.add(rd_addr)
    gx = [vtmp[4 * i:4 * i + 4] for i in range(4)]; gw = [vtmp[16:20], vtmp[20:24]]; t = vtmp[24:28]; z = [vt0, vt1]
    flag_setup = [[f's_add_u32 {sfl[0]}, {pws[0]}, {WS_FL}', f's_addc_u32 {sfl[1]}, {pws[1]}, 0']] + lines(f"""
    s_movk_i32 {sfl[2]}, 8192
    s_mov_b32 {sfl[3]}, 0x00020000
    s_mov_b32 {sws[0]}, {pws[0]}
    s_mov_b32 {sws[1]}, {pws[1]}
    s_mov_b32 {sws[2]}, {WS_SIZE}
    s_mov_b32 {sws[3]}, 0x00020000
    s_mov_b32 {sp2[3]}, 0x00020000
    s_lshl_b32 {s_t0}, {s_mb}, 5
    s_add_u32 {s_t0}, {s_t0}, {s_h}
    s_lshl_b32 {s_gs}, {s_t0}, 7
    s_lshl_b32 {s_t0}, {s_t0}, 2
    s_add_u32 {s_t0}, {s_t0}, {s_w}
    s_lshl_b32 {s_t0}, {s_t0}, 2
    v_mov_b32 {vt0}, {s_t0}
    v_cmp_eq_u32 vcc, 0, {vl}
    v_mov_b32 {vt3}, 0
    v_cndmask_b32 {vflag}, 2.0, {vt0}, vcc
    s_lshl_b32 {s_t0}, {s_h}, 3
    s_add_u32 {s_t0}, {s_t0}, {s_mb}
    s_lshl_b32 {s_t0}, {s_t0}, 2
    s_add_u32 {s_t0}, {s_t0}, {s_w}
    s_lshl_b32 {s_t0}, {s_t0}, 2
    s_add_u32 {s_t0}, {s_t0}, 4096
    v_mov_b32 {vt0}, {s_t0}
    buffer_store_dword {vt3}, {vflag}, {sfl}, 0 offen sc1
    v_cndmask_b32 {vflk}, 2.0, {vt0}, vcc
    s_lshl_b32 {s_t1}, {s_w}, 3
    buffer_store_dword {vt3}, {vflk}, {sfl}, 0 offen sc1
    s_add_u32 {s_gs}, {s_gs}, {s_t1}
    s_add_u32 {s_gs}, {s_gs}, {WS_G}
    s_lshl_b32 {s_t0}, {s_h}, 3
    s_lshl_b32 {s_t1}, {s_w}, 1
    s_add_u32 {s_t0}, {s_t0}, {s_t1}
    s_lshl_b32 {s_t2}, {s_t0}, 11
    s_mov_b32 {s_msk}, 0xffff0000
    v_lshlrev_b32 {z[0]}, 5, {vl}""")
    if ptrace > 0: pf.trace()
    p.e('WAITTAG S0')
    if ptrace > 0: pf.trace()
    p.e('s_barrier')
    if ptrace > 0: pf.trace()
    pf.stamp(1)

    def gate_ops():
        L = []
        for r in range(2):
            for j in range(8):
                xr = gx[2 * r + j // 4][j % 4]; wr_ = gw[j // 4][j % 4]
                L += [f'v_lshlrev_b32 {t[0]}, 16, {xr}', f'v_lshlrev_b32 {t[1]}, 16, {wr_}',
                      f'v_and_b32 {t[2]}, {s_msk}, {xr}', f'v_and_b32 {t[3]}, {s_msk}, {wr_}',
                      f'v_mul_f32 {t[0]}, {t[0]}, {t[1]}', f'v_mul_f32 {t[2]}, {t[2]}, {t[3]}',
                      f'v_cvt_pk_bf16_f32 {t[0]}, {t[0]}, {t[2]}', f'v_lshlrev_b32 {t[1]}, 16, {t[0]}',
                      f'v_and_b32 {t[2]}, {s_msk}, {t[0]}']
                if j == 0: L.append(f'v_add_f32 {z[r]}, {t[1]}, {t[2]}')
                else: L += [f'v_add_f32 {t[1]}, {t[1]}, {t[2]}', f'v_add_f32 {z[r]}, {z[r]}, {t[1]}']
        for mode in ('quad_perm:[1,0,3,2]', 'quad_perm:[2,3,0,1]', 'row_half_mirror', 'row_mirror'):
            for r in range(2): L.append(f'v_add_f32_dpp {z[r]}, {z[r]}, {z[r]} {mode} row_mask:0xf bank_mask:0xf')
        for op in ('v_permlane16_swap_b32', 'v_permlane32_swap_b32'):
            for r in range(2): L.append(f'v_mov_b32 {t[r]}, {z[r]}')
            for r in range(2): L.append(f'{op} {t[r]}, {z[r]}')
            for r in range(2): L.append(f'v_add_f32 {z[r]}, {z[r]}, {t[r]}')
        L += f"""v_and_b32 {t[1]}, 1, {vl}
        v_cmp_eq_u32 vcc, 1, {t[1]}
        v_and_b32 {t[3]}, 2, {vl}
        v_cndmask_b32 {t[0]}, {z[0]}, {z[1]}, vcc
        v_cvt_pk_bf16_f32 {t[0]}, {t[0]}, {t[0]}
        v_and_b32 {t[0]}, {s_msk}, {t[0]}
        v_mul_f32 {t[0]}, {hex(f32bits(-math.log2(math.e)))}, {t[0]}
        v_exp_f32 {t[0]}, {t[0]}
        v_cmp_eq_u32 vcc, 2, {t[3]}
        v_add_f32 {t[0]}, 1.0, {t[0]}
        v_rcp_f32 {t[0]}, {t[0]}
        v_lshlrev_b32 {t[3]}, 4, {t[3]}
        v_cvt_pk_bf16_f32 {t[0]}, {t[0]}, {t[0]}
        v_and_b32 {t[0]}, {s_msk}, {t[0]}
        v_sub_f32 {t[2]}, 1.0, {t[0]}
        v_cvt_pk_bf16_f32 {t[2]}, {t[2]}, {t[2]}
        v_and_b32 {t[2]}, {s_msk}, {t[2]}
        v_cndmask_b32 {t[0]}, {t[0]}, {t[2]}, vcc
        v_lshl_add_u32 {t[3]}, {t[1]}, 2, {t[3]}
        v_cmp_gt_u32 vcc, 4, {vl}
        v_cndmask_b32 {t[3]}, 2.0, {t[3]}, vcc
        buffer_store_dword {t[0]}, {t[3]}, {sws}, {s_gs} offen{st_mod}""".split('\n')
        return [x.strip() for x in L]

    def wread(n, st, wc):
        slot = wf[(10 * st + n) % NSLOT]
        nq = 4 if wc == 0 else 2
        L = []
        for ks in range(2):
            if n < nq: base = vqr[n % 2]; off = ks * 20480 + (1024 if (wc == 0 and n < 2) else 0); so = 256
            else: base = vgr[(n - nq) % 2]; off = ks * 10240 + ((n - nq) // 2) * 32; so = 1792
            off += st * (W1 - W0)
            L += [f'ds_read_b64_tr_b16 {slot[4 * ks + 2 * s:4 * ks + 2 * s + 2]}, {base} offset:{off + s * so}' for s in range(2)]
        return L
    def xread(m, ks, st):
        return f'ds_read_b128 {xf(st, m, ks)}, {vxr[ks]} offset:{st * (X1 - X0) + m * 2048}'

    for m in range(2):
        for ks in range(2): p.e(xread(m, ks, 0))
    p.e(f's_cmp_eq_u32 {s_wc}, 1')
    p.e(f's_cbranch_scc1 {name}_c1')

    def stage(st, wc, first=False, last=False, extra=None, fill=None, estep=2, postbar=None, nodma1=False, early=None, dens=2):
        slots = {}
        for j in range(10):
            jj = j + DIST
            if jj < 10: rd = wread(jj, st, wc)
            elif last: continue
            else: rd = wread(jj - 10, st ^ 1, wc)
            for i, x in enumerate(rd): place(slots, 16 * j + ((0, 2, 4, 6) if j < 9 else (0, 11, 13, 15))[i], x)
        bar = 16 * (10 - DIST)
        if not last:
            for i in range(8): place(slots, bar + 8 + (0, 2, 4, 6, 16, 18, 20, 22)[i], xread(i // 2, i % 2, st ^ 1))
            for i in range(8): place(slots, 144 + (2, 3, 4, 5, 7, 8, 9, 10)[i], xread(7 - i // 2, i % 2, st ^ 1))
        pos = []; c = 1.0
        for k in range(18):
            pos.append(int(c)); c += cg if k < 7 else (cq if k < 10 else cx)
        endc = int(c) - (160 - bar)
        pos0 = pos
        if first:
            sh = pos[S1P] - 1
            pos = [(int(F0 + (x - sh) * FS) + 160 - bar) if k >= S1P else -1 for k, x in enumerate(pos)]; endc = int(F0 + (endc + 160 - bar - sh) * FS)
        if not last:
            dl = dma_w(st ^ 1) + dma_x(st ^ 1)
            for k in range(18):
                c = pos[k] - (160 - bar)
                if c < 0: continue
                for x in dl[k][0]: place(slots, max(c - 1, 0), x)
                place(slots, c, dl[k][1])
            for i, x in enumerate(adv): place(slots, endc - 2 + i, x)
            if first: pos = pos0
            dl = dma_w(st) + dma_x(st)
            for k in range(18):
                c = bar + pos[k]
                if c >= 160 or nodma1: continue
                for x in dl[k][0]: place(slots, c - 1, x)
                place(slots, c, dl[k][1])
        if early:
            c = (pos[PFP] - (0 if first else 160 - bar) - 2) if PFP < 18 else endc + 1
            for x in early: place(slots, max(c, 0), x); c += 1
            if PFP >= 18: endc = c + 1
        c = endc + 1
        for x in (extra or []):
            if isinstance(x, list):
                for y in x: place(slots, c, y)
                c += estep; continue
            place(slots, c, x)
            c += 3 if (isinstance(x, Ins) or x.startswith('buffer')) else estep
        assert c < bar
        for i, x in enumerate(postbar or []):
            for y in (x if isinstance(x, list) else [x]):
                if y is not None: place(slots, bar + 3 + 2 * i, y)
        if FOFF:
            for c in sorted(slots):
                if c % 2 == 0 and c + 1 < 160 and len(slots.get(c + 1, [])) + len(slots[c]) <= FOFF:
                    slots[c + 1] = slots[c] + slots.get(c + 1, []); slots[c] = []
        fill = [x if isinstance(x, tuple) else (0, x) for x in (fill or [])]
        for c in range(160):
            n, r = divmod(c, 16); mi, ks = divmod(r, 2)
            m = mi if n % 2 == 0 else 7 - mi
            if c == bar and not last:
                p.e(f'WAITTAG S{st ^ 1} LGKM0')
                p.e('s_barrier')
                if ptrace > 1: pf.trace()
            if MWT and not first and c == 8: p.e('s_waitcnt lgkmcnt(4)')
            if MWT and r == 0 and 0 < n and c != bar and not (first and n < 3) and not last: p.e(f's_waitcnt lgkmcnt({8 if n <= 7 else 12})')
            w = wf[(10 * st + n) % NSLOT][4 * ks:4 * ks + 4]; x = xf(st, m, ks)
            a, b = (x, w) if (wc == 1 and n < 2) else (w, x)
            cin = '0' if (first and ks == 0) else str(acc[n][m])
            p.e(f'v_mfma_f32_16x16x32_bf16 {acc[n][m]}, {a}, {b}, {cin}')
            here = slots.get(c, [])
            p.add(here)
            if c >= 1:
                for _ in range(min(dens, 2 - len(here))):
                    if fill and fill[0][0] <= c:
                        x = fill.pop(0)[1]; p.add(x if isinstance(x, list) else [x])
        return [x[1] for x in fill]

    def toreg(tile, tmp):
        if tile.k == 'v': return tile
        for i in range(4): p.e(f'v_accvgpr_read_b32 {tmp[i]}, {tile[i]}')
        return tmp
    def pack(o, t0, t1):
        p.e(f'v_cvt_pk_bf16_f32 {o[0]}, {t0[0]}, {t0[1]}\nv_cvt_pk_bf16_f32 {o[1]}, {t0[2]}, {t0[3]}')
        p.e(f'v_cvt_pk_bf16_f32 {o[2]}, {t1[0]}, {t1[1]}\nv_cvt_pk_bf16_f32 {o[3]}, {t1[2]}, {t1[3]}')

    def pf_setup():
        L = f"""s_lshl_b32 {s_t0}, s2, 2
        s_add_u32 {s_t0}, {s_t0}, {s_w}
        s_mul_i32 {s_t1}, {s_t0}, {DL * 128}
        v_lshl_add_u32 {vt3}, {vl}, 7, {s_t1}
        v_cmp_gt_u32 vcc, {DL}, {vl}
        s_mov_b32 {sp2[0]}, {pwd[0]}
        s_mov_b32 {sp2[1]}, {pwd[1]}
        s_mov_b32 {sp2[2]}, {F * D * 2}
        v_cndmask_b32 {vt3}, 2.0, {vt3}, vcc
        s_mov_b32 {s_c1}, 0""".split('\n')
        return [x.strip() for x in L]
    def tp_setup():
        a_, b_ = vtmp[27], vtmp[26]
        return lines(f"""
        s_lshl_b32 {s_t0}, s2, 2
        s_add_u32 {s_t0}, {s_t0}, {s_w}
        s_lshr_b32 {s_t1}, {s_t0}, 4
        s_lshl_b32 {s_c1}, {s_t1}, 15
        s_lshl_b32 {s_c0}, {s_t1}, 12
        s_and_b32 {s_t0}, {s_t0}, 15
        s_lshr_b32 {s_t1}, {s_t0}, 1
        s_mul_i32 {s_t1}, {s_t1}, {224 * 4096}
        s_add_u32 {s_c0}, {s_c0}, {s_t1}
        s_and_b32 {s_t1}, {s_t0}, 1
        s_lshl_b32 {s_t1}, {s_t1}, 11
        s_add_u32 {s_c0}, {s_c0}, {s_t1}
        s_add_u32 {s_c0}, {s_c0}, {WS_T}
        s_lshl_b32 {s_t0}, {s_t0}, 7
        s_mov_b32 {sp2[0]}, {pwd[0]}
        s_mov_b32 {sp2[1]}, {pwd[1]}
        s_mov_b32 {sp2[2]}, {F * D * 2}
        v_lshrrev_b32 {a_}, 3, {vl}
        v_and_b32 {b_}, 2, {a_}
        v_lshlrev_b32 {b_}, 1, {b_}
        v_and_b32 {vt3}, 7, {vl}
        v_xor_b32 {b_}, {b_}, {vt3}
        v_lshl_add_u32 {b_}, {b_}, 4, {s_t0}
        v_lshl_add_u32 {vt3}, {a_}, 11, {b_}
        s_lshl_b32 {s_t0}, {s_w}, 12
        s_add_u32 {s_t0}, {s_t0}, {QS}
        v_lshrrev_b32 {a_}, 5, {vl}
        v_lshl_add_u32 {vtmp[24]}, {a_}, 10, {s_t0}
        v_bfe_u32 {a_}, {vl}, 2, 2
        v_lshl_add_u32 {vtmp[24]}, {a_}, 7, {vtmp[24]}
        v_bfe_u32 {a_}, {vl}, 3, 1
        v_lshl_add_u32 {vtmp[24]}, {a_}, 6, {vtmp[24]}
        v_bfe_u32 {a_}, {vl}, 4, 1
        v_lshl_add_u32 {vtmp[24]}, {a_}, 5, {vtmp[24]}
        v_and_b32 {a_}, 3, {vl}
        v_lshl_add_u32 {vtmp[24]}, {a_}, 3, {vtmp[24]}
        v_xor_b32 {vtmp[25]}, 64, {vtmp[24]}
        v_lshlrev_b32 {vtmp[26]}, 4, {vl}
        s_lshl_b32 {s_t0}, s2, 2
        s_add_u32 {s_t0}, {s_t0}, {s_w}
        s_and_b32 {s_t0}, {s_t0}, 15
        s_lshl_b32 {s_t0}, {s_t0}, 7
        v_lshl_add_u32 {a_}, {vl}, 11, {s_t0}
        v_cmp_gt_u32 vcc, 16, {vl}
        v_cndmask_b32 {a_}, 2.0, {a_}, vcc""") + [tp_touch()]
    def tp_touch():
        return Ins(f'buffer_load_dword {vpd}, {vtmp[27]}, {sp2}, {s_c1} offen', 'pf')
    def tp_load():
        return [f's_lshr_b32 {s_t0}, {s_mx}, 1', f's_add_u32 m0, {s_t0}, {QS}', f's_add_u32 {s_t1}, {s_c1}, {8 * 2048 - 1024}',
                Ins(f'buffer_load_dwordx4 {vt3}, {sp2}, {s_c1} offen lds', 'TP'), Ins(f'buffer_load_dwordx4 {vt3}, {sp2}, {s_t1} offen offset:1024 lds', 'TP')]
    def tp_store():
        L = ['WAITTAG TP'] + [f'ds_read_b64_tr_b16 {vtmp[4 * nb + 2 * s_:4 * nb + 2 * s_ + 2]}, {vtmp[24 + nb]} offset:{s_ * 512}' for nb in range(2) for s_ in range(2)]
        L = [L[:2]] + L[2:]
        L += [[f's_cmp_lt_u32 {s_c1}, {224 * 32768}', f's_cselect_b32 {s_t0}, {s_c0}, 2.0'], f's_add_u32 {s_c1}, {s_c1}, {64 * 32768}', f's_add_u32 {s_c0}, {s_c0}, {64 * 4096}', None, None]
        L += [Ins(f'buffer_store_dwordx4 {vtmp[4 * nb:4 * nb + 4]}, {vtmp[26]}, {sws}, {s_t0} offen offset:{nb * 1024}{st_mod}', 'HST') for nb in range(2)]
        if TT: L.insert(7, tp_touch())
        return L
    def pf3_setup():
        L = f"""s_mov_b32 {sp3[0]}, {pgw[0]}
        s_mov_b32 {sp3[1]}, {pgw[1]}
        s_movk_i32 {sp3[2]}, 2048
        s_mov_b32 {sp3[3]}, 0x00020000
        v_lshlrev_b32 {vwo}, 7, {vl}""".split('\n')
        L2 = f"""s_lshl_b32 {s_t0}, s2, 2
        s_add_u32 {s_t0}, {s_t0}, {s_w}
        s_lshl_b32 {s_t1}, {s_t0}, 11
        v_lshl_add_u32 {vwo}, {vl}, 7, {s_t1}
        v_cmp_gt_u32 {smask}, 16, {vl}
        s_mov_b32 {sp3[0]}, {pwo[0]}
        s_mov_b32 {sp3[1]}, {pwo[1]}
        s_mov_b32 {sp3[2]}, {D * D * 2}
        v_cndmask_b32 {vwo}, 2.0, {vwo}, {smask}""".split('\n')
        return [x.strip() for x in L] + [Ins(f'buffer_load_dword {vpd}, {vwo}, {sp3}, 0 offen', 'pf')] + [x.strip() for x in L2]
    def tlb_touch():
        return [f's_cmp_eq_u32 {s_w}, 1', f's_cselect_b32 {sp2[0]}, {pout[0]}, {pws[0]}', f's_cselect_b32 {sp2[1]}, {pout[1]}, {pws[1]}',
                f's_mov_b32 {sp2[2]}, {34 << 20}', f's_cmov_b32 {sp2[2]}, {S * D * 2}', f's_cmp_lt_u32 {s_w}, 2', f's_cselect_b32 {s_t0}, 0, 2.0',
                f'v_lshlrev_b32 {vt3}, 20, {vl}', Ins(f'buffer_load_dword {vpd}, {vt3}, {sp2}, {s_t0} offen sc1', 'pf')]
    def tlb_touch2():
        L = tlb_touch()
        return [L[0:5], L[5:7]] + L[7:]
    pf_wo = [f's_cmp_eq_u32 {s_cnt}, 2', f's_cselect_b32 {s_t0}, 0, 2.0', Ins(f'buffer_load_dword {vpd}, {vwo}, {sp3}, {s_t0} offen', 'pf')]
    gate_sel = [f's_cmp_eq_u32 {s_cnt}, 0', f's_cselect_b32 {s_t0}, {s_t2}, 2.0', f's_cselect_b32 {s_t1}, 0, 2.0',
                f's_cselect_b32 {sp3[0]}, {pgw[0]}, {sp3[0]}', f's_cselect_b32 {sp3[1]}, {pgw[1]}, {sp3[1]}', f's_cselect_b32 {sp3[2]}, 0x800, {sp3[2]}']
    gate_loads = [f'buffer_load_dwordx4 {gw[i]}, {z[0]}, {sp3}, {s_t1} offen offset:{16 * i}' for i in range(2)] + \
                 [f'buffer_load_dwordx4 {gx[i]}, {z[0]}, {sx}, {s_t0} offen offset:{(i // 2) * 2048 + (i % 2) * 16}' for i in range(4)]

    spins = []
    def check(cond_lines, reload_lines, tag):
        lab = f'{name}_{tag}'
        spins.append((lab, cond_lines, reload_lines))
        return cond_lines + [f's_cbranch_vccnz {lab}_spin', f'{lab}_ok:']

    def lines(s): return [x.strip() for x in s.strip().split('\n')]
    def rd(tile, tmp):
        if tile.k == 'v': return tile, []
        return tmp, [f'v_accvgpr_read_b32 {tmp[i]}, {tile[i]}' for i in range(4)]
    def packl(o, t0, t1):
        return [f'v_cvt_pk_bf16_f32 {o[0]}, {t0[0]}, {t0[1]}', f'v_cvt_pk_bf16_f32 {o[1]}, {t0[2]}, {t0[3]}',
                f'v_cvt_pk_bf16_f32 {o[2]}, {t1[0]}, {t1[1]}', f'v_cvt_pk_bf16_f32 {o[3]}, {t1[2]}, {t1[3]}']
    def mul4(d, a_, b_, pk):
        if pk: return [f'v_pk_mul_f32 {d[2*i:2*i+2]}, {a_[2*i:2*i+2]}, {b_ if b_.k == "s" else b_[2*i:2*i+2]}' for i in range(2)]
        return [f'v_mul_f32 {d[i]}, {b_[0] if b_.k == "s" else b_[i]}, {a_[i]}' for i in range(4)]
    def hpiece(n, j, o, pk):
        L = []; tt = []
        for mm in range(2):
            g_, l0 = rd(acc[n][2 * j + mm], vtmp[8 * mm:8 * mm + 4]); u_, l1 = rd(acc[n + 1][2 * j + mm], vtmp[8 * mm + 4:8 * mm + 8])
            L += l0 + l1 + mul4(g_, g_, u_, pk); tt.append(g_)
        return L + packl(o, tt[0], tt[1]) + [f'v_permlane16_swap_b32 {o[0]}, {o[2]}', f'v_permlane16_swap_b32 {o[1]}, {o[3]}']
    hreg = [acc[7][2 * j] for j in range(4)] + [acc[6][2 * j] for j in range(4)] + [acc[8][2 * j] for j in range(4)]

    vq = vdx[0]; vh = vdx[1]; vql = vdx[2]; vqq = vdx[3]
    s_b, s_qs = s_oq, R('s', sx.a, 2)
    def epi_setup(wc):
        L = lines(f"""
        v_and_b32 {vt0}, 15, {vl}
        v_lshrrev_b32 {vt1}, 4, {vl}
        v_lshlrev_b32 {vq}, 9, {vt1}
        v_lshlrev_b32 {vh}, 4, {vl}
        s_lshl_b32 {s_t0}, {s_h}, 6
        s_lshl_b32 {s_t1}, {s_mb}, 3
        s_add_u32 {s_t0}, {s_t0}, {s_t1}
        s_lshl_b32 {s_t1}, {s_wr}, 2
        s_add_u32 {s_t0}, {s_t0}, {s_t1}
        s_lshl_b32 {s_b}, {s_t0}, 12
        s_add_u32 {s_b}, {s_b}, {WS_KV}
        s_add_u32 {s_og}, {s_b}, 4096
        s_add_u32 {s_ox}, {s_b}, 8192
        s_add_u32 {s_c0}, {s_b}, 12288
        s_lshl_b32 {s_t0}, {s_mb}, 1
        s_add_u32 {s_t0}, {s_t0}, {s_wr}
        s_mul_i32 {s_t0}, {s_t0}, 288
        s_mul_i32 {s_t1}, {s_h}, 7
        s_add_u32 {s_t0}, {s_t0}, {s_t1}
        s_lshl_b32 {s_t0}, {s_t0}, 12
        s_add_u32 {s_hb}, {s_t0}, {WS_A + 4 * 4096 * wc}
        s_sub_u32 {s_c1}, {s_hb}, 4096
        s_lshl_b32 {s_t1}, {s_wr}, 14""")
        if wc == 0:
            L += lines(f"""
            v_lshrrev_b32 {vt2}, 3, {vt0}
            v_lshl_add_u32 {vq}, {vt2}, 8, {vq}
            v_and_b32 {vt2}, 7, {vt0}
            v_lshl_add_u32 {vq}, {vt2}, 4, {vq}
            v_add_u32 {vql}, {s_t1}, {vq}
            s_lshl_b32 {s_t1}, {s_wr}, 13
            s_add_u32 {s_t1}, {s_t1}, {QS}
            v_add_u32 {vqq}, {s_t1}, {vq}
            s_mov_b32 {s_qs[0]}, {hex(f32bits(QSCALE))}
            s_mov_b32 {s_qs[1]}, {s_qs[0]}""")
        else:
            L += [f'v_lshl_add_u32 {vq}, {vt0}, 4, {vq}', f'v_add_u32 {vql}, {s_t1}, {vq}']
        return L
    kvb = [s_b, s_og, s_ox, s_c0]
    def epi_early(wc, npk):
        F_ = []
        outs = [vtmp[16 + 4 * i:20 + 4 * i] for i in range(3)]
        if wc == 0:
            for m in range(7, -1, -1):
                o = acc[0][m]
                L = packl(o, acc[0][m], acc[1][m]) + [Ins(f'buffer_store_dwordx4 {o}, {vq}, {sws}, {kvb[m // 2]} offen offset:{(m % 2) * 128}{kv_mod}', 'KVST'),
                                                       f'ds_write_b128 {vql}, {o} offset:{(m // 2) * 4096 + (m % 2) * 128}']
                F_ += [(17 + 2 * (7 - m) + 4, x) for x in L]
            for i, m in enumerate(range(7, -1, -1)):
                o = outs[i % 3]
                t0, l0 = rd(acc[2][m], vtmp[0:4]); t1, l1 = rd(acc[3][m], vtmp[4:8])
                L = l0 + l1 + mul4(t0, t0, s_qs, i >= npk) + mul4(t1, t1, s_qs, i >= npk) + packl(o, t0, t1) + [f'ds_write_b128 {vqq}, {o} offset:{(m // 2) * 2048 + (m % 2) * 128}']
                F_ += [(49 + 2 * (7 - m) + 4, x) for x in L]
        else:
            for nt, js in ((0, range(4)), (1, range(3, -1, -1))):
                for j in js:
                    o = acc[nt][2 * j]
                    L = packl(o, acc[nt][2 * j], acc[nt][2 * j + 1]) + [Ins(f'buffer_store_dwordx4 {o}, {vq}, {sws}, {kvb[j]} offen offset:{2048 + nt * 256}{kv_mod}', 'KVST'),
                                                                         f'ds_write_b128 {vql}, {o} offset:{j * 4096 + 2048 + nt * 256}']
                    F_ += [((3 + 4 * j if nt == 0 else 31 - 4 * j) + 4, x) for x in L]
            for i, j in enumerate(range(3, -1, -1)):
                o = outs[i % 3]
                L = hpiece(2, j, o, i >= npk) + [Ins(f'buffer_store_dwordx4 {o}, {vh}, {sws}, {s_c1} offen offset:{j * 1024}{st_mod}', 'HST')]
                F_ += [(63 - 4 * j + 4, x) for x in L]
        for j in range(3, -1, -1):
            F_ += [(127 - 4 * j + 4, x) for x in hpiece(6, j, hreg[4 + j], PK)]
            F_ += [(127 - 4 * j + 4, x) for x in hpiece(4, j, hreg[j], PK)]
        k = max(i for i, x in enumerate(F_) if isinstance(x[1], Ins) and x[1].tag == 'KVST')
        F_[k + KF:k + KF] = [(0, [f'v_mov_b32 {vt0}, 1', 'WAITTAG KVST', Ins(f'buffer_store_dword {vt0}, {vflk}, {sfl}, 0 offen sc1', 'FL')])]
        return F_
    def epi_late():
        for j in range(3, -1, -1): p.add(hpiece(8, j, hreg[8 + j], True))

    announce_setup = lines(f"""
        s_mov_b32 {sdbg[0]}, {pdbg[0]}
        s_mov_b32 {sdbg[1]}, {pdbg[1]}
        s_movk_i32 {sdbg[2]}, 256
        s_mov_b32 {sdbg[3]}, 0x00020000
        s_and_b32 {s_ano}, s2, 7
        s_lshl_b32 {s_ano}, {s_ano}, 2
        s_and_b32 {s_grp}, {s_mb}, 3
        s_add_u32 {s_grp}, {s_grp}, 3
        v_mov_b32 {vt2}, 1
        v_cmp_eq_u32 {smask}, 0, v0
        v_cndmask_b32 {vt1}, 2.0, 0, {smask}""")
    if PT:
        k = announce_setup.index(f's_add_u32 {s_grp}, {s_grp}, 3')
        announce_setup[k:k + 1] = [[f's_cmp_lt_u32 {s_grp}, 2', f's_cselect_b32 {s_grp}, {s_grp}, 16'], f's_add_u32 {s_grp}, {s_grp}, 1']
    announce1 = [f's_add_u32 {s_t0}, {s_cnt}, 16', [f's_cmp_eq_u32 {s_t0}, {s_grp}', f's_cselect_b32 {s_t0}, {s_ano}, 2.0'],
                 f'buffer_atomic_add {vt2}, {vt1}, {sdbg}, {s_t0} offen offset:{DBG_CNT} sc1']
    announce = [f's_cmp_eq_u32 {s_cnt}, {s_grp}', f's_cselect_b32 {s_t0}, {s_ano}, 2.0',
                f'buffer_atomic_add {vt2}, {vt1}, {sdbg}, {s_t0} offen offset:{DBG_CNT} sc1']
    cnt_addr = [f'v_and_b32 {vpf}, 7, {vl}', f'v_lshlrev_b32 {vpf}, 2, {vpf}']
    cnt_load = f'buffer_load_dword {vcnt}, {vpf}, {sdbg}, 0 offen offset:{DBG_CNT} sc1'

    def code_setup(wc):
        lab = f'{name}_pc{wc}'
        return [[f's_getpc_b64 {sp4[0:2]}', f'{lab}:'], f's_and_b32 {sp4[1]}, {sp4[1]}, 0xffff', f's_mov_b32 {sp4[2]}, {name}_end-{lab}', f's_mov_b32 {sp4[3]}, 0x00020000',
                f's_lshr_b32 {s_t0}, s2, 3', f's_lshl_b32 {s_t1}, {s_t0}, 8', f's_add_u32 {s_t1}, {s_t1}, {name}_c{wc}out-{lab}', f'v_and_b32 {vcnt}, 1, {vl}', f'v_lshlrev_b32 {vcnt}, 7, {vcnt}',
                f's_lshl_b32 {s_t0}, {s_t0}, 2', f's_add_u32 {s_t0}, {s_t0}, {s_w}', f's_lshl_b32 {s_t0}, {s_t0}, 8',
                f's_add_u32 {s_t0}, {s_t0}, {name}_join-{lab}', f'v_mov_b32 {vtmp[0]}, {s_t0}', f'v_mov_b32 {vtmp[1]}, {s_t1}',
                f'v_cmp_gt_u32 vcc, 2, {vl}', f'v_cndmask_b32 {vtmp[0]}, {vtmp[0]}, {vtmp[1]}, vcc', f'v_add_u32 {vcnt}, {vcnt}, {vtmp[0]}',
                f'v_cmp_gt_u32 vcc, 4, {vl}', f'v_cndmask_b32 {vcnt}, 2.0, {vcnt}, vcc']
    code_pf = [f's_cmp_eq_u32 {s_cnt}, 1', f's_cselect_b32 {s_t0}, 0, 2.0', Ins(f'buffer_load_dword {vpd}, {vcnt}, {sp4}, {s_t0} offen', 'pf')]
    for wc in range(2):
        p.seg(f'c{wc}a')
        if wc == 1: p.e(f'{name}_c1:')
        p.add(wread(0, 0, wc))
        for m in range(2, 8):
            for ks in range(2): p.e(xread(m, ks, 0))
        for j in range(1, DIST): p.add(wread(j, 0, wc))
        left = stage(0, wc, first=True, early=[x for _ in range(PD - PD0 + 1) for x in pfetch()], fill=flag_setup + announce_setup + code_setup(wc) + pf3_setup() + (tlb_touch2() if TLB else []) + (tp_setup() if PT else pf_setup()))
        assert not left
        p.e(f's_mov_b32 {s_cnt}, 6')
        p.seg(f'c{wc}l1')
        p.e(f'{name}_c{wc}loop:')
        stage(1, wc, early=pfetch() + (tp_load() if PT else pfetch_d()), extra=gate_sel + gate_loads + (announce1 if PT else []), estep=1)
        p.e(f's_cmp_eq_u32 {s_cnt}, 0\ns_cbranch_scc1 {name}_c{wc}out')
        p.seg(f'c{wc}l2')
        stage(0, wc, early=pfetch() + ([] if PT else pfetch_d()), extra=([x for x in tp_store() if x is not None] if PT else []) + announce + pf_wo + (code_pf if CPF else []), estep=1 if PT else 2)
        p.e(f's_sub_u32 {s_cnt}, {s_cnt}, 1\ns_branch {name}_c{wc}loop')
        p.seg(f'c{wc}last')
        p.e(f'{name}_c{wc}out:')
        rest = stage(0, wc, early=None if PT else pfetch_d(), fill=gate_ops(), nodma1=True, dens=GD)
        rest = stage(1, wc, last=True, fill=rest + cnt_addr + [cnt_load] + epi_setup(wc) + epi_early(wc, 99))
        pf.stamp(2)
        if ptrace == -1: pf.trace()
        k = max([i for i, x in enumerate(rest) if isinstance(x, str) and x.startswith('ds_write')] + [-1]) + 1
        for x in rest[:k]: p.add(x if isinstance(x, list) else [x])
        rest = rest[k:]
        if PKR:
            out = []; i = 0
            while i < len(rest):
                x = rest[i]; y = rest[i + 1] if i + 1 < len(rest) else None
                if isinstance(x, str) and isinstance(y, str) and x.startswith('v_mul_f32') and y.startswith('v_mul_f32'):
                    a0, b0, c0 = [int(t.strip()[1:]) for t in x[10:].split(',')]; a1, b1, c1 = [int(t.strip()[1:]) for t in y[10:].split(',')]
                    if a0 % 2 == 0 and b0 % 2 == 0 and (a1, b1, c1) == (a0 + 1, b0 + 1, c0 + 1):
                        out.append(f'v_pk_mul_f32 v[{a0}:{a1}], v[{b0}:{b1}], v[{c0}:{c1}]'); i += 2; continue
                out.append(x); i += 1
            rest = out
        va_, vb_ = vdg[0], vdg[1]
        p.e(f"""
        v_lshlrev_b32 {va_}, 4, {vl}
        s_lshl_b32 {s_t0}, {s_w}, 12
        s_add_u32 {s_t0}, {s_t0}, {QS}
        v_add_u32 {vb_}, {s_t0}, {va_}
        s_waitcnt lgkmcnt(0)
        s_barrier
        """)
        for q in range(2):
            for f in range(2): p.e(f'ds_read_b128 a[{40 + 8 * q + 4 * f}:{43 + 8 * q + 4 * f}], {vb_} offset:{q * 2048 + f * 1024}')
        for i in range(4): p.e(f'ds_read_b128 a[{56 + 4 * i}:{59 + 4 * i}], {va_} offset:{(i // 2) * 4096 + (i % 2) * 1024}')
        pre = [f'v_mfma_f32_32x32x16_bf16 v[{64 + 16 * q}:{79 + 16 * q}], a[{56 + 4 * f}:{59 + 4 * f}], a[{40 + 8 * q + 4 * f}:{43 + 8 * q + 4 * f}], ' + ('0' if f == 0 else f'v[{64 + 16 * q}:{79 + 16 * q}]')
               for q in range(2) for f in range(2)]
        rest = rest + [x for j in range(3, -1, -1) for x in hpiece(8, j, hreg[8 + j], True)]
        for i, x in enumerate(rest):
            p.add(x if isinstance(x, list) else [x])
            if i >= 24 and (i - 24) % 7 == 0 and pre: p.e(pre.pop(0))
        p.add(pre)
        if ptrace == -1: pf.trace()
        if ptrace == -1: pf.trace()
        if wc == 0: p.e(f's_branch {name}_join')
    p.seg('join')
    p.e(f'{name}_join:')
    p.add(check([f'v_cmp_gt_u32 vcc, 32, {vcnt}'], [cnt_load], 'cnt'))

    sa.p = s_base; va.p = v_base; aa.p = 0
    skv = sa(4); sA = sa(4); swd = sa(4); swo = sa(4); sout = sa(4)
    s_okv, s_left, s_p, s_oa, s_ow, s_wb, s_ob, s_ob2, s_thr, s_mt, s_nt, s_oo, s_spin, s_h1, s_h2, s_rt, s_win = [sa() for _ in range(17)]
    scp = sa(4)
    vl16, vkA, vkB, vdma, vo, vidx, vu0, vu1, vu2, vpa = [va() for _ in range(10)]
    vdd = [va() for _ in range(2)]; vdo = [va() for _ in range(2)]; vwr = [va() for _ in range(2)]
    vg = va(2); vog = va(4); vpoll = va(2, 2); vsc = va(2)
    ones = va(4, 4)
    vA = [va() for _ in range(4)]
    assert va.p <= 46 and va.p > vwo.a
    va2 = Alloc('v', va.p, 48)
    va.p = 48
    Sx = [va(16, 4) for _ in range(2)]; P = [va(8, 4) for _ in range(2)]; C = [va(16, 4) for _ in range(2)]
    acc3 = [[va(16, 4) for _ in range(4)] for _ in range(2)]
    O = [aa(16, 4) for _ in range(2)]; L = [aa(4, 4) for _ in range(2)]
    Q = [aa(8, 4) for _ in range(2)]; K = [aa(8, 4) for _ in range(2)]; V = [aa(8, 4) for _ in range(2)]
    Wf = [aa(4, 4) for _ in range(2)]
    Ab = [[aa(4, 4) for _ in range(4)] for _ in range(8)]
    if PT:
        NB = 4; DA = DW = 3
        Wb = [[Ab[4 + i // 2][2 * (i % 2)], Ab[4 + i // 2][2 * (i % 2) + 1]] for i in range(4)]

    p.e(f"""
    v_lshlrev_b32 {vl16}, 4, {vl}
    s_lshl_b32 {s_p}, {s_w}, 12
    """)
    assert Q[0].a == 40 and K[0].a == 56 and Sx[1].a == 64 and P[0].a == 80
    pf.stamp(3)
    def kread(kb, loop=False):
        base, o = (vl16, (kb % 16) * 4096) if not loop else ((vkA, kb * 4096) if kb < 8 else (vkB, (kb - 8) * 4096))
        return [f'ds_read_b128 {K[kb % 2][4*f:4*f+4]}, {base} offset:{o + f * 1024}' for f in range(2)]
    def vread(kb, loop=False):
        base, o = (vl16, (kb % 16) * 4096) if not loop else (vkA, kb * 4096)
        return [f'ds_read_b128 {V[kb % 2][4*f:4*f+4]}, {base} offset:{o + 2048 + f * 1024}' for f in range(2)]
    def qk(dst, kb, q, f, cin):
        return f'v_mfma_f32_32x32x16_bf16 {dst}, {K[kb % 2][4*f:4*f+4]}, {Q[q][4*f:4*f+4]}, {cin if f == 0 else dst}'
    def pv(j, f, zero=False):
        q = j % 2; kb = (j // 2) % 2
        return f'v_mfma_f32_32x32x16_bf16 {O[q]}, {V[kb][4*f:4*f+4]}, {P[q][4*f:4*f+4]}, {"0" if zero else O[q]}'
    def rsum(q): return f'v_smfmac_f32_16x16x64_bf16 {L[q]}, {ones}, {P[q]}, {vidx}'
    def cvt(j, i): return f'v_cvt_pk_bf16_f32 {P[j % 2][i]}, {Sx[j % 2][2*i]}, {Sx[j % 2][2*i+1]}'
    def rowmax(dst, src, init):
        lst = [src[i] for i in range(16)]
        if init:
            p.e(f'v_max3_f32 {dst}, {lst[0]}, {lst[1]}, {lst[2]}'); lst = lst[3:]
        while len(lst) >= 2:
            p.e(f'v_max3_f32 {dst}, {dst}, {lst[0]}, {lst[1]}'); lst = lst[2:]
        if lst: p.e(f'v_max_f32 {dst}, {dst}, {lst[0]}')
    def setc(q, m):
        p.e(f'v_mov_b32 {vu2}, {m}\nv_permlane32_swap_b32 {vu2}, {m}\nv_max_f32 {m}, {m}, {vu2}')
        for i in range(16): p.e(f'v_sub_f32 {C[q][i]}, 0, {m}')
    rowmax(vu0, R('v', 64, 16), True); rowmax(vu1, R('v', 80, 16), True)
    setc(0, vu0)
    p.e(qk(Sx[0], 0, 0, 0, C[0])); p.e(qk(Sx[0], 0, 0, 1, C[0]))
    setc(1, vu1)
    p.e(f"""
    v_bfe_u32 {vu0}, {vl}, 2, 1
    v_bfe_u32 {vu1}, {vl}, 1, 1
    v_mov_b32 {vu2}, 0x3f803f80
    v_or_b32 {vidx}, {vu0}, {vu1}
    v_cmp_eq_u32 vcc, 0, {vidx}
    v_xor_b32 {vu0}, 1, {vu0}
    v_or_b32 {vidx}, {vu0}, {vu1}
    v_cndmask_b32 {ones[0]}, 0, {vu2}, vcc
    v_cndmask_b32 {ones[1]}, 0, {vu2}, vcc
    v_cmp_eq_u32 vcc, 0, {vidx}
    v_and_b32 {vu0}, 1, {vl}
    v_mov_b32 {vu1}, 0xeeeeeeee
    v_cndmask_b32 {ones[2]}, 0, {vu2}, vcc
    v_cndmask_b32 {ones[3]}, 0, {vu2}, vcc
    v_cmp_eq_u32 vcc, 0, {vu0}
    v_mov_b32 {vu2}, 0x44444444
    v_add_u32 {vdma}, {s_p}, {vl16}
    v_cndmask_b32 {vidx}, {vu1}, {vu2}, vcc
    """)
    for q in range(2):
        for i in range(2): p.e(f'v_accvgpr_write_b32 {L[q][i]}, 0')
    p.e(f's_lshl_b32 {s_t0}, {s_h}, 18')
    srd(p, skv, pws, off_s=s_t0, off_imm=WS_KV, size=262144)

    def flag(val, tag, wait):
        return [f'v_mov_b32 {vu0}, {val}', f'WAITTAG {wait}', Ins(f'buffer_store_dword {vu0}, {vflag}, {sfl}, 0 offen sc1', tag)]
    def kvdma(m0line, tag, count=True):
        return [m0line] + [Ins(f'buffer_load_dwordx4 {vdma}, {skv}, {s_okv} offen offset:{i * 1024}{lm2} lds', tag) for i in range(4)] + \
               [f's_add_u32 {s_okv}, {s_okv}, 16384', f's_and_b32 {s_okv}, {s_okv}, 0x3ffff'] + \
               ([f's_sub_u32 {s_left}, {s_left}, 1', f's_cselect_b32 {skv[2]}, 0, {skv[2]}'] if count else [])
    NW = 4
    def wload(s):
        if PT: return [Ins(f'buffer_load_dwordx4 {Wb[s % 4][nb]}, {vl16}, {swd}, {s_oa} offen offset:{nb * 1024}{lm2}', f'D{s % NW}') for nb in range(2)]
        return [f's_add_u32 m0, {s_wb}, {(s % NW) * 2048}'] + \
               [Ins(f'buffer_load_dwordx4 {vdd[hh]}, {swd}, {s_ow} offen offset:{hh * 1024}{lm2} lds', f'D{s % NW}') for hh in range(2)] + [f's_add_u32 {s_ow}, {s_ow}, 32768']
    def hload(s):
        return [Ins(f'buffer_load_dwordx4 {Ab[s % NB][r]}, {vA[r]}, {sA}, {s_oa} offen{lm2}', f'A{s % NB}') for r in range(4)] + [f's_add_u32 {s_oa}, {s_oa}, 4096']
    def wrd(base, off, nb):
        if PT: return []
        return [f'ds_read_b64_tr_b16 {Wf[nb][2*s:2*s+2]}, {base[nb]} offset:{off + s * 512}' for s in range(2)]
    def gm(st, nb, tb, zero=False):
        return f'v_mfma_f32_32x32x16_bf16 {acc3[nb][tb]}, {Wb[st % 4][nb] if PT else Wf[nb]}, {Ab[st % NB][tb]}, {"0" if zero else acc3[nb][tb]}'
    def oload(t, m0line, tag):
        return [m0line] + [Ins(f'buffer_load_dwordx4 {vdo[hh]}, {swo}, {s_oo} offen offset:{hh * 1024} lds', tag) for hh in range(2)] + [f's_add_u32 {s_oo}, {s_oo}, 32768']

    zplan = {}
    def period(j, loop=False, item=None, misc=(), pre=(), zero=False):
        s = Sx[j % 2]
        E = [f'v_exp_f32 {s[i]}, {s[i]}' for i in range(16)]
        jn = j + 1
        m1 = qk(Sx[jn % 2], jn // 2, jn % 2, 0, C[jn % 2]); m2 = qk(Sx[jn % 2], jn // 2, jn % 2, 1, None)
        rd = kread((j + 1) // 2 + 1, loop) if j % 2 == 1 else vread(j // 2, loop)
        first = (j == 0 and not loop)
        zo = (j <= 2 and not loop)
        c7 = [] if first else [cvt(j - 1, 7)]
        p0 = [] if first else [pv(j - 1, 0, zo)]; p1 = [] if first else [pv(j - 1, 1)]; rs = [] if first else [rsum((j - 1) % 2)]
        V_ = [E[0]] + c7
        for i in range(7): V_ += [E[2 * i + 1], E[2 * i + 2], cvt(j, i)]
        V_.append(E[15])
        if item is None:
            p.add(V_[:1 + len(c7)]); V_ = V_[1 + len(c7):]
            if AW and j % 2 == 1: p.e('s_waitcnt lgkmcnt(0)')
            z_ = [] if loop else zplan.get(j, [])
            M = [m1] + z_[:1] + [m2] + p0 + z_[1:] + p1 + rs; G = []
        else:
            st, nb = item
            G = [gm(st, nb, tb if nb == 0 else 3 - tb, zero) for tb in range(4)]
            M = [G[0], m1, G[1], m2, G[2]] + p0 + [G[3]] + p1 + rs
        if loop and exp_ & 1: M = [x for x in M if x not in G]
        if loop and exp_ & 8: misc = [x for x in misc if not (isinstance(x, Ins) and x.tag and x.tag.startswith('D'))]
        misc = list(misc)
        for k in range(len(misc)):
            if isinstance(misc[k], str) and ' m0,' in misc[k]:
                q_ = k
                while q_ > 0 and not (isinstance(misc[q_ - 1], Ins) and misc[q_ - 1].text.endswith(' lds')): q_ -= 1
                misc.insert(q_, misc.pop(k))
        items = []
        for x in list(pre) + rd + list(misc):
            if items and isinstance(items[-1][-1], str) and items[-1][-1].split()[0] in ('WAITTAG', 's_cbranch_vccnz', 'v_cmp_gt_u32', 's_getpc_b64', 's_cmp_eq_u32'): items[-1].append(x)
            else: items.append([x])
        isvm = lambda it: any((y.text if isinstance(y, Ins) else y).startswith('buffer') for y in it)
        n = len(M); last = n - 1 if M[-1].startswith('v_smfmac') else n
        cost = lambda x: 8 if x.startswith('v_exp') else 4
        occ = [32 if '32x32' in x else 16 for x in M]
        iss = [8 if 'smfmac' not in x else SMC for x in M]
        ic = [sum((VMC if (y.text if isinstance(y, Ins) else y).startswith('buffer') else 4) for y in it if not (isinstance(y, str) and y.endswith(':'))) for it in items]
        vc = [cost(x) for x in V_]
        tailc = (4 if item is not None else 12 + (4 if j % 2 == 0 else 0))
        if item is None: iss[-1] += 0
        import functools
        @functools.lru_cache(None)
        def best(g, a_, b_, pv_):
            if g == n: return (0, ()) if (a_ == len(items) and b_ == len(V_)) else (10 ** 9, ())
            res = (10 ** 9, ())
            lo = 0
            if g == 0 and item is not None: lo = 1 + len(c7)
            for na in range(0, len(items) - a_ + 1):
                if g == 0 and na < min(len(items), npre): continue
                nv_ = sum(map(isvm, items[a_:a_ + na]))
                ca = sum(ic[a_:a_ + na])
                if g < n - 1 and ca > 64: break
                pen = (VPEN * max(0, nv_ - 1) + (VPEN // 2 if (nv_ and pv_) else 0)) + (0.01 * g * na)
                for nb_ in range(lo, len(V_) - b_ + 1):
                    f_ = iss[g] + ca + sum(vc[b_:b_ + nb_]) + (tailc if g == n - 1 else 0)
                    if f_ > 120 and g < n - 1: break
                    r_ = best(g + 1, a_ + na, b_ + nb_, nv_ > 0)
                    t_ = max(occ[g], f_) + pen + r_[0] + 0.001 * (f_ - occ[g]) ** 2
                    if t_ < res[0]: res = (t_, ((na, nb_),) + r_[1])
            return res
        npre = len([1 for it in items if any(y in pre for y in it if isinstance(y, str))])
        tot_, asg = best(0, 0, 0, False)
        assert tot_ < 10 ** 8
        if dbg == -1: print(j, loop, item, round(tot_), len(items), sum(map(isvm, items)))
        a_ = b_ = 0
        for q_, m_ in enumerate(M):
            p.add([m_])
            na, nb_ = asg[q_]
            for it in items[a_:a_ + na]: p.add(it)
            p.add(V_[b_:b_ + nb_]); a_ += na; b_ += nb_

    setup1 = lines(f"""
        s_lshl_b32 {s_okv}, {s_mb}, 15
        s_add_u32 {s_okv}, {s_okv}, 32768
        s_and_b32 {s_okv}, {s_okv}, 0x3ffff
        s_movk_i32 {s_left}, {13 - (PA // 8 + (0 if KS == 2 else 1))}
        v_and_b32 {vu1}, 31, {vl}
        v_lshlrev_b32 {vpa}, 2, {vu1}
        s_lshl_b32 {s_t2}, {s_h}, 7
        s_add_u32 {s_t2}, {s_t2}, 4096""")
    poll_kv = f'buffer_load_dword {vpoll[0]}, {vpa}, {sfl}, {s_t2} offen sc1'
    setup2 = lines(f"""
        s_and_b32 {s_t0}, s2, 7
        s_lshr_b32 {s_t1}, s2, 3
        s_lshr_b32 {s_mt}, {s_t0}, 1
        s_lshl_b32 {s_mt}, {s_mt}, 2
        s_and_b32 {s_nt}, {s_t0}, 1
        s_lshl_b32 {s_nt}, {s_nt}, 3
        s_and_b32 {s_t0}, {s_t1}, 3
        s_add_u32 {s_mt}, {s_mt}, {s_t0}
        s_lshr_b32 {s_t0}, {s_t1}, 2
        s_add_u32 {s_nt}, {s_nt}, {s_t0}
        s_lshl_b32 {s_t0}, {s_nt}, 7
        s_lshl_b32 {s_t1}, {s_w}, 19
        s_add_u32 {s_t1}, {s_t1}, {s_t0}
        s_add_u32 {swo[0]}, {pwo[0]}, {s_t1}
        s_addc_u32 {swo[1]}, {pwo[1]}, 0
        s_sub_u32 {swo[2]}, {D * D * 2}, {s_t1}
        s_mov_b32 {swo[3]}, 0x00020000
        s_add_u32 {swd[0]}, {pwd[0]}, {s_t0}
        s_addc_u32 {swd[1]}, {pwd[1]}, 0
        s_sub_u32 {swd[2]}, {F * D * 2}, {s_t0}
        s_mov_b32 {swd[3]}, 0x00020000
        s_mul_i32 {s_t0}, {s_mt}, {288 * 4096}
        s_add_u32 {s_t0}, {s_t0}, {WS_A}
        s_add_u32 {sA[0]}, {pws[0]}, {s_t0}
        s_addc_u32 {sA[1]}, {pws[1]}, 0
        s_mov_b32 {sA[2]}, {288 * 4096}
        s_mov_b32 {sA[3]}, 0x00020000
        s_mul_i32 {s_oa}, {s_w}, {56 * 4096}
        s_lshl_b32 {s_ow}, {s_oa}, 3
        s_mov_b32 {s_oo}, 0
        s_mul_i32 {s_wb}, {s_w}, 20480
        s_add_u32 {s_wb}, {s_wb}, {W0}
        v_lshrrev_b32 {vu1}, 3, {vl}
        v_and_b32 {vu2}, 2, {vu1}
        v_lshlrev_b32 {vu2}, 1, {vu2}
        v_and_b32 {vdd[1]}, 7, {vl}
        v_xor_b32 {vu2}, {vu2}, {vdd[1]}
        v_lshlrev_b32 {vu2}, 4, {vu2}
        v_lshl_add_u32 {vdd[0]}, {vu1}, 11, {vu2}
        v_add_u32 {vdd[1]}, {8 * 2048 - 1024}, {vdd[0]}
        v_lshrrev_b32 {vu1}, 5, {vl}
        v_lshl_add_u32 {vdo[0]}, {vu1}, 13, {vdd[0]}
        v_add_u32 {vdo[1]}, {4 * 2048 - 1024}, {vdo[0]}
        v_lshl_add_u32 {vwr[0]}, {vu1}, 10, {s_wb}
        v_bfe_u32 {vu1}, {vl}, 2, 2
        v_lshl_add_u32 {vwr[0]}, {vu1}, 7, {vwr[0]}
        v_bfe_u32 {vu1}, {vl}, 3, 1
        v_lshl_add_u32 {vwr[0]}, {vu1}, 6, {vwr[0]}
        v_bfe_u32 {vu1}, {vl}, 4, 1
        v_lshl_add_u32 {vwr[0]}, {vu1}, 5, {vwr[0]}
        v_and_b32 {vu1}, 3, {vl}
        v_lshl_add_u32 {vwr[0]}, {vu1}, 3, {vwr[0]}
        v_xor_b32 {vwr[1]}, 64, {vwr[0]}
        v_mov_b32 {vkB if PA == 48 else vkA}, {vl16}
        v_add_u32 {vkA if PA == 48 else vkB}, 32768, {vl16}
        s_nop 0
        s_nop 0""")
    setup2 = setup2[:-2]
    setup1 += [f's_add_u32 {s_h1}, {s_hb}, 4096', f's_add_u32 {s_h2}, {s_hb}, 8192']
    if PT:
        setup2 += lines(f"""
        s_lshr_b32 {s_t0}, {s_nt}, 1
        s_mul_i32 {s_t0}, {s_t0}, {224 * 4096}
        s_and_b32 {s_t1}, {s_nt}, 1
        s_lshl_b32 {s_t1}, {s_t1}, 11
        s_add_u32 {s_t0}, {s_t0}, {s_t1}
        s_add_u32 {s_t0}, {s_t0}, {WS_T}
        s_add_u32 {swd[0]}, {pws[0]}, {s_t0}
        s_addc_u32 {swd[1]}, {pws[1]}, 0
        s_mov_b32 {swd[2]}, {224 * 4096 - 2048}""")
    for r in range(4):
        setup2 += [f's_add_u32 {s_t0}, {s_w}, {r + 1}', f's_and_b32 {s_t0}, {s_t0}, 3', f's_lshl_b32 {s_t0}, {s_t0}, 10', f'v_add_u32 {vA[r]}, {s_t0}, {vl16}']
    setup3 = lines(f"""
        v_and_b32 {vu1}, 7, {vl}
        v_bfe_u32 {vu2}, {vl}, 4, 1
        v_lshl_add_u32 {vo}, {vu2}, 3, {vu1}
        v_bfe_u32 {vu2}, {vl}, 3, 1
        v_lshl_add_u32 {vo}, {vu2}, 4, {vo}
        v_lshrrev_b32 {vu2}, 3, {vo}
        v_lshlrev_b32 {vu2}, 7, {vu2}
        v_lshl_add_u32 {vsc[0]}, {vu1}, 2, {vu2}
        v_lshlrev_b32 {vo}, 4, {vo}
        v_lshrrev_b32 {vu2}, 5, {vl}
        v_lshl_add_u32 {vo}, {vu2}, 9, {vo}
        v_bfe_u32 {vu2}, {vl}, 3, 2
        v_lshlrev_b32 {vu2}, 7, {vu2}
        v_lshl_add_u32 {vsc[1]}, {vu1}, 2, {vu2}
        s_lshl_b32 {s_t0}, {s_mb}, 1
        s_add_u32 {s_t0}, {s_t0}, {s_wr}
        s_mul_i32 {s_t0}, {s_t0}, 288
        s_lshl_b32 {s_t1}, {s_h}, 1
        s_add_u32 {s_t0}, {s_t0}, {s_t1}
        s_add_u32 {s_t0}, {s_t0}, 224
        s_lshl_b32 {s_t0}, {s_t0}, 12
        s_lshl_b32 {s_t1}, {s_wc}, 11
        s_add_u32 {s_t0}, {s_t0}, {s_t1}
        s_add_u32 {s_ob}, {s_t0}, {WS_A}
        s_add_u32 {s_ob2}, {s_ob}, 4096
        s_mov_b32 {s_thr}, {hex(f32bits(2.0 ** 40 if not force_slow else 0.5))}
        v_lshlrev_b32 {vpa}, 3, {vl}
        s_lshr_b32 {s_t2}, {s_mt}, 1
        s_lshl_b32 {s_t2}, {s_t2}, 9""")
    poll_h = f'buffer_load_dwordx2 {vpoll}, {vpa}, {sfl}, {s_t2} offen sc1'
    cond2 = [f'v_min_u32 {vu1}, {vpoll[0]}, {vpoll[1]}', f'v_cmp_gt_u32 vcc, 2, {vu1}']
    og_loads = [f's_lshl_b32 {s_t0}, {s_mt}, 11', f's_add_u32 {s_t0}, {s_t0}, {WS_G + 32}']
    for r in range(4):
        og_loads += [f'v_lshrrev_b32 {vu1}, 10, {vA[r]}', f'v_lshl_add_u32 {vu1}, {vu1}, 9, {vsc[1]}', f'buffer_load_dword {vog[r]}, {vu1}, {sws}, {s_t0} offen']
    g_loads = [f's_lshl_b32 {s_t0}, {s_mb}, 2', f's_add_u32 {s_t0}, {s_t0}, {s_w}', f's_lshl_b32 {s_t0}, {s_t0}, 10', f's_add_u32 {s_t0}, {s_t0}, {WS_G}'] + \
              [f'buffer_load_dword {vg[q]}, {vsc[0]}, {sws}, {s_t0} offen offset:{q * 512}' for q in range(2)]
    NE = 16 if PT else 12
    def oslot(t):
        if t >= NE: return vw2, (t - NE) * 2048, f's_add_u32 m0, {s_p}, {(t - NE) * 2048}'
        k = t if t < 4 else t - 4
        n0 = 0 if PT else NW
        if k < 10 - n0: return vwr, (n0 + k) * 2048, f's_add_u32 m0, {s_wb}, {(n0 + k) * 2048}'
        return vw3, (k - 10 + n0) * 2048, f's_add_u32 m0, {s_p}, {QS + (k - 10 + n0) * 2048}'
    WO = [R('a', aa.p + 8 * t, 8) for t in range(4)] + [R('a', 8 * t, 8) for t in range(11)] + [Sx[0][0:8]]
    assert Wf[0].a == 88 and aa.p + 32 <= 256
    vw3 = [va2(), va2()]
    def woread(t):
        base, off, _ = oslot(t)
        return [f'ds_read_b64_tr_b16 {WO[t][4*nb+2*s_:4*nb+2*s_+2]}, {base[nb]} offset:{off + s_ * 512}' for nb in range(2) for s_ in range(2)]
    vw2 = [C[0][0], C[0][1]]
    setup3 += [f's_add_u32 {s_t0}, {s_p}, {QS}', f's_sub_u32 {s_t0}, {s_t0}, {s_wb}', f'v_add_u32 {vw3[0]}, {s_t0}, {vwr[0]}', f'v_add_u32 {vw3[1]}, {s_t0}, {vwr[1]}']
    early_o = [oload(t, oslot(t)[2], 'WO') for t in range(NE)]
    assert PM % 2 == 0 and DW <= 3 and DA <= 7
    plan = {j: [] for j in range(PA)}; prej = {j: [] for j in range(PA)}
    plan[0] += setup1
    plan[1] += setup2[:21]; plan[2] += setup2[21:38]; plan[3] += setup2[38:55]; plan[4] += setup2[55:]; plan[KP] = (plan[KP] + [poll_kv]) if KP == 0 else ([poll_kv] + plan[KP])
    plan[KC] += check([f'v_cmp_gt_u32 vcc, 1, {vpoll[0]}'], [poll_kv], 'kv')
    d = kvdma(f's_add_u32 m0, {s_p}, 32768', 'KV0', False); plan[KC] += d[:3]; plan[KC + 1] += d[3:]
    d = kvdma(f's_add_u32 m0, {s_p}, 49152', 'KV1', False); plan[KC + 2] += d[:3]; plan[KC + 3] += d[3:]
    for i in range(5 if PA == 48 else 3):
        j = 13 + 8 * i
        prej[j] += [f'WAITTAG KV{i % 2}', 's_barrier']
        d = kvdma(f's_add_u32 m0, {s_p}, {(i % 4) * 16384}', f'KV{i % 2}', False)
        if KS == 2 and j == PA - 3: plan[j] += d[:2]; plan[j + 2] += d[:1] + [d[2]]
        elif KS and j >= PM: plan[j] += d[:3]; plan[j + 2] += d[:1] + d[3:]
        else: plan[j] += d[:5]; plan[j + 1] += d[5:]
    busy = (13, 21, 29, 37, 45)
    j = float(H0)
    for k in range(12):
        while int(j) in busy: j = int(j) + 1.0
        plan[int(j)].append(Ins(f'buffer_store_dwordx4 {hreg[k]}, {vl16}, {sws}, {(s_hb, s_h1, s_h2)[k // 4]} offen offset:{(k % 4) * 1024}{st_mod}', 'HST'))
        jl = int(j); j += HP
    plan[10] += setup3[:10]; plan[11] += setup3[10:20]; plan[12] += setup3[20:]
    def nextfree(j):
        while j in busy: j += 1
        return j
    jf = nextfree(jl + FG); plan[jf] += flag(2, 'FL', 'HST')
    ramp = []
    for i in range(max(DA, DW)):
        if i < DW: ramp += wload(i)
        if i < DA: ramp += hload(i)
    groups = []; curg = []; nv = 0
    for x in ramp:
        if isinstance(x, str) and ' m0,' in x and nv + 2 > RP: groups.append(curg); curg = []; nv = 0
        if isinstance(x, Ins):
            if nv >= RP and not x.text.endswith(' lds'): groups.append(curg); curg = []; nv = 0
            nv += 1
        curg.append(x)
    groups.append(curg)
    jc = PM - 1; k = len(groups)
    while k:
        jc -= 1
        if jc not in busy: k -= 1
    jp = jc - PG
    assert jp > jf, (jp, jf)
    if PT and GP:
        vgl = R('v', 224, 16)
        poll_all = [f'buffer_load_dwordx4 {vgl[4 * i:4 * i + 4]}, {vl16}, {sfl}, 0 offen offset:{i * 1024} sc1' for i in range(4)]
        cond_all = [f'v_min3_u32 {vu1}, {vgl[0]}, {vgl[1]}, {vgl[2]}'] + [f'v_min3_u32 {vu1}, {vu1}, {vgl[i]}, {vgl[i + 1]}' for i in range(3, 15, 2)] + \
                   [f'v_min_u32 {vu1}, {vu1}, {vgl[15]}', f'v_cmp_gt_u32 vcc, 2, {vu1}']
        plan[jp] += poll_all
    else: plan[jp] += [poll_h]
    jj = E0
    for t in range(0, 4, 2):
        jj = nextfree(jj + 1); plan[jj] += early_o[t] + early_o[t + 1]
    jj = nextfree(jj + 3)
    for t in range(4):
        plan[jj] += (['WAITTAG WO'] if t == 0 else []) + woread(t); jj = nextfree(jj + 1)
    for t in range(4, NE):
        plan[jj] += (['s_waitcnt lgkmcnt(0)'] if t == 4 else []) + early_o[t]
        if t % 2 == 1 or jj < jl: jj = nextfree(jj + 1)
    assert jj <= jc + 1, (jj, jc)
    if PT and GP: plan[jc] += check(cond_all, poll_all, 'h')
    else: plan[jc] += check(cond2, [poll_h], 'h') + [f's_lshl_b32 {s_t2}, {s_mb}, 9', poll_h]
    jj = jc
    for g_ in groups:
        plan[jj] += g_; jl2 = jj; jj = nextfree(jj + 1)
    assert jl2 <= PM - 2, (jl2, PM)
    plan[PM - 1] = ['WAITTAG D0 A0'] + wrd(vwr, 0, 0) + plan[PM - 1]
    NZ = PM == PA
    if NZ:
        plan[PM - 3] += og_loads
        plan[PM - 1] += check(cond2, [poll_h], 'g') + g_loads
        plan[jf + 1] += [f'v_accvgpr_write_b32 {Wf[1][i]}, 0' for i in range(4)]
        for k in range(8): zplan.setdefault(jf + 2 + k // 2, []).append(f'v_mfma_f32_32x32x16_bf16 {acc3[k // 4][k % 4]}, {Wf[1]}, {Wf[1]}, 0')
        assert jf + 6 < PM
    else:
        plan[PM + 2] += og_loads
        plan[PM + 4] += ([] if (PT and GP) else check(cond2, [poll_h], 'g')) + g_loads
    if PA == 48: plan[PA - 1] += [f's_xor_b32 {s_p}, {s_p}, 32768']
    vcp = va2()
    vtp = [va2() for _ in range(3)]
    L0 = (PA - PM) // 2 + (128 - PA) // 2
    nA = (56 - L0 - DA) * 4; nW = (56 - L0 - DW) * 4; nO = (16 - NE) * 4
    if TP1:
        plan[26] += lines(f"""
        s_and_b32 {s_t0}, {s_nt}, 7
        s_mul_i32 {s_t0}, {s_t0}, {nA}
        s_mul_i32 {s_t1}, {s_w}, {56 * 32}
        s_add_u32 {s_t0}, {s_t0}, {s_t1}
        s_add_u32 {s_t0}, {s_t0}, {(L0 + DA) * 32}
        v_add_u32 {vu1}, {s_t0}, {vl}
        v_lshlrev_b32 {vu1}, 7, {vu1}
        v_cmp_lt_u32 {smask}, {vl}, {nA}
        v_cndmask_b32 {vtp[0]}, 2.0, {vu1}, {smask}""")
        plan[27] += lines(f"""
        s_and_b32 {s_t1}, {s_mt}, 3
        s_mul_i32 {s_t0}, {s_t1}, {nO}
        s_add_u32 {s_t0}, {s_t0}, {NE * 16}
        v_add_u32 {vu1}, {s_t0}, {vl}
        v_lshlrev_b32 {vu1}, 11, {vu1}
        v_cmp_lt_u32 {smask}, {vl}, {nO}
        v_cndmask_b32 {vtp[2]}, 2.0, {vu1}, {smask}
        s_mul_i32 {s_t0}, {s_t1}, {nW}
        s_mul_i32 {s_t1}, {s_w}, {56 * 16}
        s_add_u32 {s_t0}, {s_t0}, {s_t1}
        s_add_u32 {s_t0}, {s_t0}, {(L0 + DW) * 16}
        v_add_u32 {vu1}, {s_t0}, {vl}
        v_lshlrev_b32 {vu1}, 11, {vu1}
        v_cmp_lt_u32 {smask}, {vl}, {nW}
        v_cndmask_b32 {vtp[1]}, 2.0, {vu1}, {smask}""")
    if CP2:
        plan[PM - 3] += [f's_getpc_b64 {scp[0:2]}', f'{name}_pct:', f's_and_b32 {scp[1]}, {scp[1]}, 0xffff', f's_mov_b32 {scp[2]}, {name}_slow-{name}_pct',
                         f's_mov_b32 {scp[3]}, 0x00020000', f's_lshr_b32 {s_t0}, s2, 3', f's_lshl_b32 {s_t0}, {s_t0}, 2', f's_add_u32 {s_t0}, {s_t0}, {s_w}',
                         f's_lshl_b32 {s_t0}, {s_t0}, 7', f's_add_u32 {s_t0}, {s_t0}, {name}_tail-{name}_pct', f'v_lshl_add_u32 {vcp}, {vl}, 14, {s_t0}']
    def mixed(j, st, nb, loop, misc=(), pre=(), zero=False):
        dw = wload(st + DW); da = hload(st + DA)
        if loop and exp_ & 32:
            dw = [Ins(f'buffer_load_dwordx4 a[{224 + 8 * (st % 4) + 4 * hh}:{227 + 8 * (st % 4) + 4 * hh}], {vl16}, {swd}, {s_ow} offen offset:{hh * 1024}', f'D{(st + DW) % NW}') for hh in range(2)] + dw[3:]
            if nb == 0: period(j, loop, (st, 0), misc=dw + da[:1] + list(misc), pre=pre, zero=zero)
            else:
                p.e(f'WAITTAG D{(st + 1) % NW} A{(st + 1) % NB} LGKM0')
                period(j, loop, (st, 1), misc=da[1:] + list(misc), pre=pre, zero=zero)
            return
        if nb == 0:
            period(j, loop, (st, 0), misc=wrd(vwr, (st % NW) * 2048, 1) + dw + da[:AS] + list(misc), pre=pre, zero=zero)
        else:
            p.e(f'WAITTAG D{(st + 1) % NW} A{(st + 1) % NB} LGKM0')
            period(j, loop, (st, 1), misc=wrd(vwr, ((st + 1) % NW) * 2048, 0) + da[AS:] + list(misc), pre=pre, zero=zero)
    p.seg('partA')
    for j in range(PA):
        if ptrace == -1 and j in (0, 1, 5, 7, 9, 13, 15, 21, jf, jf + 1, jc, jc + 1, PM): pf.trace()
        if j < PM: period(j, misc=plan[j], pre=prej[j])
        else: mixed(j, (j - PM) // 2, j % 2, False, misc=plan[j], pre=prej[j], zero=(j < PM + 2))
    if ptrace == -1: pf.trace()
    ST0 = (PA - PM) // 2
    pf.stamp(4)
    p.e(f's_mov_b32 {s_cnt}, {(128 - PA) // 16}')
    p.seg('loop')
    p.e(f'{name}_loop:')
    for j in range(16):
        misc = []; pre = []
        if j in (5, 13):
            pre = [f'WAITTAG KV{1 if j == 5 else 0}', 's_barrier']
        if KS == 0 and j in (5, 6, 13, 14):
            d = kvdma(f's_xor_b32 m0, {s_p}, 49152' if j < 8 else f's_mov_b32 m0, {s_p}', 'KV1' if j < 8 else 'KV0')
            misc = d[:5] if j in (5, 13) else d[5:]
        if KS == 1 and j in (5, 7, 13, 15):
            d = kvdma(f's_xor_b32 m0, {s_p}, 49152' if j < 8 else f's_mov_b32 m0, {s_p}', 'KV1' if j < 8 else 'KV0')
            misc = d[:3] if j in (5, 13) else d[:1] + d[3:]
        if KS == 2 and j % 2 == 1:
            first_ = 5 <= j < 13
            d = kvdma(f's_xor_b32 m0, {s_p}, 49152' if first_ else (f's_mov_b32 m0, {s_p}' if j >= 13 else f's_xor_b32 m0, {s_p}, 32768'), 'KV1' if first_ else 'KV0')
            k = ((j - 5) // 2) % 4
            misc = d[:1] + [d[1 + k]] + (d[5:] if k == 3 else [])
        if TP1 and j == 2: misc = misc + [f's_cmp_eq_u32 {s_cnt}, 1', f's_cselect_b32 {s_t0}, 0, 2.0']
        if TP1 and j in (4, 6, 8): misc = misc + [Ins(f'buffer_load_dword {vpd}, {vtp[j // 2 - 2]}, {(sA, swd, swo)[j // 2 - 2]}, {s_t0} offen', 'pf')]
        if j == 9 and CP2: misc = [Ins(f'buffer_load_dword {vpd}, {vcp}, {scp}, 0 offen', 'pf')]
        if j == 15: misc = misc + [f's_xor_b32 {s_p}, {s_p}, 32768', f'v_xor_b32 {vkA}, 0x8000, {vkA}', f'v_xor_b32 {vkB}, 0x8000, {vkB}']
        if ptrace == -3:
            p.e(f's_memtime {s_pt[2:4]}\ns_waitcnt lgkmcnt(0)\nv_writelane_b32 {vtr}, {s_pt[2]}, {j}')
        mixed(j, ST0 + j // 2, j % 2, True, misc=misc, pre=pre)
    p.e(f's_sub_u32 {s_cnt}, {s_cnt}, 1\ns_cmp_lg_u32 {s_cnt}, 0\ns_cbranch_scc1 {name}_loop')

    p.seg('tail')
    p.e(f'{name}_tail:')
    pf.stamp(5)
    if ptrace == -2: pf.trace()
    p.add([cvt(15, 7), pv(15, 0), pv(15, 1), rsum(1)])
    def lsum():
        p.e(f"""
        v_accvgpr_read_b32 {vsc[0]}, {L[0][0]}
        v_accvgpr_read_b32 {vu0}, {L[0][1]}
        v_accvgpr_read_b32 {vsc[1]}, {L[1][0]}
        v_accvgpr_read_b32 {vu1}, {L[1][1]}
        v_add_f32 {vsc[0]}, {vsc[0]}, {vu0}
        v_add_f32 {vsc[1]}, {vsc[1]}, {vu1}
        """)
    lsum()
    p.e(f"""
    v_cmp_nle_f32 vcc, {vsc[0]}, {s_thr}
    v_cmp_nle_f32 {smask}, {vsc[1]}, {s_thr}
    s_or_b64 vcc, vcc, {smask}
    s_cbranch_vccnz {name}_slow
    """)
    p.seg('epi')
    p.e(f'{name}_epi:')
    LATE0 = ST0 + (128 - PA) // 2
    vs2 = [P[1][0:2], P[1][2:4]]
    vq_ = []
    o_next = NE
    for st_ in range(LATE0, 56):
        if st_ + DW < 56: vq_.append((st_ + DW - NW + 1, wload(st_ + DW)))
        if st_ + DA < 56: vq_.append((st_ + DA - NB + 1, hload(st_ + DA)))
        if o_next < 16: vq_.append((0, oload(o_next, oslot(o_next)[2], 'WO'))); o_next += 1
    assert o_next == 16
    cur = []
    def onevm(st):
        nonlocal cur
        if not cur and vq_ and vq_[0][0] <= st: cur = list(vq_.pop(0)[1])
        if not cur: return False
        while cur:
            x = cur.pop(0); p.add([x])
            if isinstance(x, Ins): break
        while cur and not any(isinstance(y, Ins) for y in cur): p.add([cur.pop(0)])
        return True
    p.e(f"""
    v_rcp_f32 {vsc[0]}, {vsc[0]}
    v_rcp_f32 {vsc[1]}, {vsc[1]}
    s_mul_i32 {s_p}, {s_wr}, 49152
    s_lshl_b32 {s_t0}, {s_wc}, 13
    s_add_u32 {s_p}, {s_p}, {s_t0}
    s_barrier
    v_mul_f32 {vs2[0][0]}, {vsc[0]}, {vg[0]}
    v_mul_f32 {vs2[1][0]}, {vsc[1]}, {vg[1]}
    v_mov_b32 {vs2[0][1]}, {vs2[0][0]}
    v_mov_b32 {vs2[1][1]}, {vs2[1][0]}
    """)
    for q in range(2):
        for f in range(2):
            t_ = Sx[q][8 * f:8 * f + 8]
            if EV: onevm(LATE0)
            for i in range(8): p.e(f'v_accvgpr_read_b32 {t_[i]}, {O[q][8*f+i]}')
            if EV > 1: onevm(LATE0)
            for i in range(4): p.e(f'v_pk_mul_f32 {t_[2*i:2*i+2]}, {t_[2*i:2*i+2]}, {vs2[q]}')
            for i in range(4): p.e(f'v_cvt_pk_bf16_f32 {t_[i]}, {t_[2*i]}, {t_[2*i+1]}')
            p.e(f'buffer_store_dwordx4 {t_[0:4]}, {vo}, {sws}, {(s_ob, s_ob2)[f]} offen offset:{q * 1024}{st_mod}', 'OST')
    vout = C[0][4]; vrw = [C[0][5], C[0][6], C[0][7]]; vrr = C[0][8]
    sk = [s_h1, s_h2, s_hb, s_left]
    vA2 = [[vA[r], Sx[1][3 * r], Sx[1][3 * r + 1], Sx[1][3 * r + 2]] for r in range(4)]
    late2 = lines(f"""
        s_sub_u32 {s_t0}, {s_p}, {s_wb}
        v_add_u32 {vw2[0]}, {s_t0}, {vwr[0]}
        v_add_u32 {vw2[1]}, {s_t0}, {vwr[1]}
        s_lshl_b32 {s_t0}, {s_mt}, 18
        s_lshl_b32 {s_t1}, {s_nt}, 7
        s_add_u32 {s_t0}, {s_t0}, {s_t1}
        s_add_u32 {sout[0]}, {pout[0]}, {s_t0}
        s_addc_u32 {sout[1]}, {pout[1]}, 0
        s_sub_u32 {sout[2]}, {S * D * 2}, {s_t0}
        s_mov_b32 {sout[3]}, 0x00020000
        v_and_b32 {vu1}, 31, {vl}
        s_lshl_b32 {s_t0}, {s_w}, 16
        v_lshl_add_u32 {vout}, {vu1}, 11, {s_t0}
        v_lshrrev_b32 {vu1}, 5, {vl}
        v_lshl_add_u32 {vout}, {vu1}, 4, {vout}
        v_bfe_u32 {vu1}, {vl}, 1, 3
        v_and_b32 {vu2}, 1, {vl}
        v_lshlrev_b32 {vu2}, 2, {vu2}
        v_lshl_add_u32 {vpa}, {vu1}, 4, {vu2}
        s_lshr_b32 {s_t2}, {s_mt}, 1
        s_lshl_b32 {s_t2}, {s_t2}, 9
        s_lshl_b32 {s_t0}, {s_w}, 7
        s_add_u32 {s_t2}, {s_t2}, {s_t0}
        s_and_b32 {s_t0}, {s_mt}, 1
        s_lshl_b32 {s_t0}, {s_t0}, 3
        s_add_u32 {s_t2}, {s_t2}, {s_t0}
        s_mul_i32 {s_t0}, {s_w}, 24576
        v_add_u32 {vrr}, {s_t0}, {vl16}
        s_lshl_b32 {s_t1}, {s_w}, 16
        s_add_u32 {s_t1}, {s_t1}, {224 * 4096}""")
    late2[6:8] = [late2[6:8]]
    for r in range(3):
        late2 += [f'v_lshrrev_b32 {vu1}, 10, {vA[r]}', f'v_mul_u32_u24 {vu1}, 24576, {vu1}', f'v_add_u32 {vu1}, {(2 - r) * 8192}, {vu1}', f'v_add_u32 {vrw[r]}, {vu1}, {vl16}']
    for i in range(4):
        late2 += [f's_add_u32 {sk[i]}, {s_t1}, {i * 16384}']
    for r in range(4):
        for i in range(1, 4): late2.append(f'v_add_u32 {vA2[r][i]}, {i * 4096}, {vA[r]}')
    vtw = [C[1][i] for i in range(4)]; vtr_ = C[1][4]; sf = [0, s_ow, s_oo, s_ob]
    fin_setup = lines(f"""
        s_lshl_b32 {s_t0}, {s_w}, 12
        s_add_u32 {s_t0}, {s_t0}, {QS}
        v_and_b32 {vu1}, 31, {vl}
        v_lshl_add_u32 {vtw[0]}, {vu1}, 7, {s_t0}
        v_lshrrev_b32 {vu2}, 5, {vl}
        v_xor_b32 {vu2}, {vu2}, {vl}
        v_and_b32 {vu2}, 7, {vu2}
        v_lshl_add_u32 {vtw[0]}, {vu2}, 4, {vtw[0]}
        v_xor_b32 {vtw[1]}, 32, {vtw[0]}
        v_xor_b32 {vtw[2]}, 64, {vtw[0]}
        v_xor_b32 {vtw[3]}, 0x60, {vtw[0]}
        v_lshrrev_b32 {vu1}, 3, {vl}
        v_xor_b32 {vu2}, {vu1}, {vl}
        v_and_b32 {vu2}, 7, {vu2}
        v_lshl_add_u32 {vtr_}, {vu1}, 7, {s_t0}
        v_lshl_add_u32 {vtr_}, {vu2}, 4, {vtr_}
        v_and_b32 {vu2}, 7, {vl}
        v_lshlrev_b32 {vu2}, 4, {vu2}
        s_lshl_b32 {s_t0}, {s_w}, 16
        v_lshl_add_u32 {vout}, {vu1}, 11, {s_t0}
        v_add_u32 {vout}, {vout}, {vu2}""") + [f's_mov_b32 {sf[i]}, {i * 16384}' for i in range(1, 4)]
    poll_o = f'buffer_load_dword {vpoll[0]}, {vpa}, {sfl}, {s_t2} offen sc1'
    AB = [Ab[i // 4][i % 4] for i in range(32)]
    abfree = [48 + i // 4 for i in range(32)]
    if PT:
        AB = [Ab[6 + i // 4][i % 4] for i in range(8)]; abfree = [0] * 8
        for b in range(4):
            AB += Ab[b] + Wb[b]; abfree += [52 + b] * 6
    def aload(i):
        r, t = divmod(i, 16)
        return f'buffer_load_dwordx4 {AB[i % 32]}, {vA2[r][t % 4]}, {sA}, {sk[t // 4]} offen{lm2}'
    a_next = 0; side = list(late2); checked = False
    for st in range(LATE0, 56):
        if ptrace == -2: pf.trace()
        n0 = wrd(vwr, (st % NW) * 2048, 1)
        n1 = ([f'WAITTAG D{(st + 1) % NW} A{(st + 1) % NB}'] + wrd(vwr, ((st + 1) % NW) * 2048, 0)) if st < 55 else []
        if st == LATE0 + 1: side = [flag(3, 'FL', 'OST')] + side
        if st == LATE0 + 2: side += [x for t in range(4, NE) for x in woread(t)]
        for c in range(8):
            nb, tb = divmod(c, 4)
            p.e(gm(st, nb, tb if nb == 0 else 3 - tb))
            if c == 0: p.add(n0)
            if c == 4: p.add(n1)
            if st == LATE0 + OC - PO and c == 1:
                assert not any(isinstance(y, str) and (str(vpa) + ',' in y or str(s_t2) + ',' in y) for y in side)
                p.e(poll_o)
            if st == LATE0 + OC and c == 1:
                p.add(check([f'v_cmp_gt_u32 vcc, 3, {vpoll[0]}'], [poll_o], 'o')); checked = True
                if TP2:
                    p.e(f's_and_b32 {s_t0}, {s_nt}, 7\ns_lshl_b32 {s_t0}, {s_t0}, 13\ns_add_u32 {s_t0}, {s_t0}, {sk[0]}\nv_lshlrev_b32 {vu1}, 7, {vl}')
                    p.add([Ins(f'buffer_load_dword {vpd}, {vu1}, {sA}, {s_t0} offen', 'pf')])
            if onevm(st): pass
            elif checked and a_next < AL and abfree[a_next] < st and st >= 56 - ALS:
                assert not any(y in late2 for y in side)
                p.e(aload(a_next)); a_next += 1
            for _ in range(3 if st < LATE0 + 2 else 2):
                if side:
                    x = side.pop(0); p.add(x if isinstance(x, list) else [x])
    assert not cur and not vq_ and checked and not side
    if ptrace == -2: pf.trace()
    pf.stamp(6)
    def scale(r): return [f'v_mul_f32 {acc3[nb][r][i]}, {acc3[nb][r][i]}, {vog[r]}' for nb in range(2) for i in range(16)]
    p.e('WAITTAG WO')
    rds = [x for t in range(NE, 16) for x in woread(t)]
    for k, x in enumerate(scale(0)):
        p.e(x)
        if k % 4 == 1 and rds: p.e(rds.pop(0))
        if k % 8 == 3 and a_next < AL + 4: p.e(aload(a_next)); a_next += 1
    side = []
    for k, x in enumerate(scale(1)):
        side.append(x)
        if rds: side.append(rds.pop(0))
    assert not rds
    def rdpart(sl, dst): return [f'ds_read_b128 {acc3[n_][dst][4*j:4*j+4]}, {vrr} offset:{sl * 8192 + (n_ * 4 + j) * 1024}' for n_ in range(2) for j in range(4)]
    def addpart(src): return [f'v_add_f32 {acc3[n_][0][e]}, {acc3[n_][0][e]}, {acc3[n_][src][e]}' for n_ in range(2) for e in range(16)]
    wr = []; dens = 2
    for i in range(64):
        r, t = divmod(i, 16)
        if ptrace == -2 and i % 8 == 0: pf.trace()
        for nb in range(2):
            if nb == 0:
                if i == 16: side += scale(2)
                if i == 16 + 2:
                    p.e('s_waitcnt lgkmcnt(0)\ns_barrier')
                if i == 32:
                    assert not side
                    side += scale(3); dens = 3 if FT else 2
                if i == 33 and FT:
                    side += fin_setup
                if i == 32 + 11:
                    assert not wr and not side
                    p.e('s_waitcnt lgkmcnt(0)\ns_barrier')
                    side += rdpart(2, 0) + rdpart(1, 1) + [None] * 4 + addpart(1); dens = 3
                if i == 48 + 7:
                    assert not wr and not side
                    p.e('s_waitcnt lgkmcnt(0)\ns_barrier')
                    side += rdpart(0, 2) + [None] * 6 + addpart(2)
            p.e(f'v_mfma_f32_32x32x16_bf16 {acc3[nb][r]}, {WO[t][4*nb:4*nb+4]}, {AB[i % 32]}, {acc3[nb][r]}')
            if a_next < 64 and a_next <= i + 30 and (nb == 0 or a_next < i + ALM): p.e(aload(a_next)); a_next += 1
            if wr and t >= 2 and (nb == 1 or r == 3): p.e(wr.pop(0))
            for _ in range(dens):
                if side:
                    x = side.pop(0)
                    if x: p.e(x)
        if t == 15 and r < 3:
            assert not wr
            wr = [f'ds_write_b128 {vrw[r]}, {acc3[nb][r][4*j:4*j+4]} offset:{(nb * 4 + j) * 1024}' for nb in range(2) for j in range(4)]
    fin = side
    assert a_next == 64
    pf.stamp(7)
    p.add([x for x in fin if x])
    for nb in range(2):
        a_ = acc3[nb][3]
        for jp in range(2):
            for i in range(4 * jp, 4 * jp + 4): p.e(f'v_pk_add_f32 {a_[2*i:2*i+2]}, {a_[2*i:2*i+2]}, {acc3[nb][0][2*i:2*i+2]}')
            o = Sx[0][8 + 4 * jp:12 + 4 * jp] if nb == 0 else P[0][4 * jp:4 * jp + 4]
            for i in range(4): p.e(f'v_cvt_pk_bf16_f32 {o[i]}, {a_[8 * jp + 2 * i]}, {a_[8 * jp + 2 * i + 1]}')
            p.e(f'v_permlane32_swap_b32 {o[0]}, {o[2]}\nv_permlane32_swap_b32 {o[1]}, {o[3]}')
            if FT: p.e(f'ds_write_b128 {vtw[2 * nb + jp]}, {o}')
            else: p.e(f'buffer_store_dwordx4 {o}, {vout}, {sout}, 0 offen offset:{nb * 64 + jp * 32}' + ('', ' sc1', ' nt', ' sc0 sc1')[OUTM])
    if FT:
        p.e('s_waitcnt lgkmcnt(0)')
        for i in range(4): p.e(f'ds_read_b128 {acc3[0][1][4*i:4*i+4]}, {vtr_} offset:{i * 1024}')
        for i in range(4): p.e(f'buffer_store_dwordx4 {acc3[0][1][4*i:4*i+4]}, {vout}, {sout}, {sf[i]} offen' + ('', ' sc1', ' nt', ' sc0 sc1')[OUTM])
    pf.stamp(8)
    pf.flush(s_w, sws, vl, vu0)
    if PRB or PRA:
        p.e(f"""
        v_readlane_b32 {s_t0}, {vtr}, {44 + 2 * PRA}
        v_readlane_b32 {s_t1}, {vtr}, {44 + 2 * PRB}
        v_readlane_b32 {s_t2}, {vtr}, 62
        s_nop 4
        s_sub_u32 {s_t0}, {s_t1}, {s_t0}
        s_min_u32 {s_t0}, {s_t0}, 20000
        s_lshl_b32 {s_t0}, {s_t0}, {PRS}
        s_mov_b32 {s_cnt}, 200000
        {name}_probe:
        s_memrealtime {s_pt[0:2]}
        s_waitcnt lgkmcnt(0)
        s_sub_u32 {s_t1}, {s_pt[0]}, {s_t2}
        s_cmp_ge_u32 {s_t1}, {s_t0}
        s_cbranch_scc1 {name}_probe_done
        s_sub_u32 {s_cnt}, {s_cnt}, 1
        s_cmp_lg_u32 {s_cnt}, 0
        s_cbranch_scc1 {name}_probe
        {name}_probe_done:
        """)
    if dbg > 0:
        p.e(f"""
        v_readlane_b32 {s_t0}, {vtr}, 44
        v_readlane_b32 {s_t1}, {vtr}, 45
        v_and_b32 {vu1}, 1, {vl}
        v_cmp_eq_u32 vcc, 0, {vu1}
        v_mov_b32 {vu1}, {s_t0}
        v_mov_b32 {vu2}, {s_t1}
        v_cndmask_b32 {vu1}, {vu2}, {vu1}, vcc
        v_sub_u32 {vu1}, {vtr}, {vu1}
        v_subrev_u32 {vu2}, 46, {vl}
        v_lshlrev_b32 {vu2}, 2, {vu2}
        v_cmp_gt_u32 vcc, 64, {vu2}
        v_cndmask_b32 {vu2}, 2.0, {vu2}, vcc
        s_mov_b32 {skv[0]}, {pdbg[0]}
        s_mov_b32 {skv[1]}, {pdbg[1]}
        s_movk_i32 {skv[2]}, 64
        s_lshl_b32 {s_t0}, s2, 2
        s_add_u32 {s_t0}, {s_t0}, {s_w}
        s_cmp_eq_u32 {s_t0}, {dbg - 1}
        s_cselect_b32 {s_t0}, 0, 2.0
        buffer_store_dword {vu1}, {vu2}, {skv}, {s_t0} offen
        """)
    p.e('s_endpgm')

    p.seg('slow0')
    p.e(f'{name}_slow:')
    p.e(f"""
    s_waitcnt vmcnt(0) lgkmcnt(0)
    v_mov_b32 {vu0}, 0xff800000
    v_mov_b32 {vu1}, 0xff800000
    s_mov_b32 {s_okv}, 0
    s_mov_b32 {skv[2]}, 262144
    """)
    p.seg('slow1')
    p.e(f'{name}_slow1:')
    for f in range(2): p.e(f'buffer_load_dwordx4 {K[0][4*f:4*f+4]}, {vl16}, {skv}, {s_okv} offen offset:{f * 1024}')
    for q in range(2):
        for f in range(2): p.e(qk(Sx[q], 0, q, f, '0'))
    rowmax(vu0, Sx[0], False); rowmax(vu1, Sx[1], False)
    p.e(f's_add_u32 {s_okv}, {s_okv}, 4096\ns_cmp_lt_u32 {s_okv}, 262144\ns_cbranch_scc1 {name}_slow1')
    p.seg('slow2')
    setc(0, vu0); setc(1, vu1)
    for q in range(2):
        for i in range(16): p.e(f'v_accvgpr_write_b32 {O[q][i]}, 0')
        for i in range(4): p.e(f'v_accvgpr_write_b32 {L[q][i]}, 0')
    p.e(f's_mov_b32 {s_okv}, 0')
    p.seg('slow3')
    p.e(f'{name}_slow3:')
    for f in range(2): p.e(f'buffer_load_dwordx4 {K[0][4*f:4*f+4]}, {vl16}, {skv}, {s_okv} offen offset:{f * 1024}')
    for f in range(2): p.e(f'buffer_load_dwordx4 {V[0][4*f:4*f+4]}, {vl16}, {skv}, {s_okv} offen offset:{2048 + f * 1024}')
    for q in range(2):
        for f in range(2): p.e(qk(Sx[q], 0, q, f, C[q]))
    for q in range(2):
        for i in range(16): p.e(f'v_exp_f32 {Sx[q][i]}, {Sx[q][i]}')
        for i in range(8): p.e(cvt(q, i))
        p.add([pv(q, 0), pv(q, 1), rsum(q)])
    p.e(f's_add_u32 {s_okv}, {s_okv}, 4096\ns_cmp_lt_u32 {s_okv}, 262144\ns_cbranch_scc1 {name}_slow3')
    p.seg('slow4')
    lsum()
    p.e(f's_branch {name}_epi')
    for lab, cond, reload_ in spins:
        p.seg(lab)
        p.e(f'{lab}_spin:\ns_mov_b32 {s_cnt if lab.endswith("cnt") else s_spin}, {SPIN}\n{lab}_again:\ns_sleep 2')
        p.add(reload_)
        p.e('s_waitcnt vmcnt(0)\ns_nop 1')
        p.add(cond)
        r_ = s_cnt if lab.endswith('cnt') else s_spin
        p.e(f's_nop 4\ns_cbranch_vccz {lab}_ok\ns_sub_u32 {r_}, {r_}, 1\ns_cmp_lg_u32 {r_}, 0\ns_cbranch_scc1 {lab}_again\ns_branch {lab}_ok')
    p.seg('end')
    p.e(f'{name}_end:\ns_endpgm')
    mid = ['join', 'partA', 'loop', 'loop', 'tail']
    slow = ['slow0', 'slow1', 'slow1', 'slow2', 'slow3', 'slow3', 'slow4']
    traces = []
    for wc in range(2):
        for x in ([],):
            traces.append(['pro'] + x + [f'c{wc}a', f'c{wc}l1', f'c{wc}l2', f'c{wc}l1', f'c{wc}l2', f'c{wc}l1', f'c{wc}last'] + mid + ['epi'])
    traces.append(mid + slow + ['epi'])
    for lab, _, _ in spins: traces.append([lab])
    p.auto_waits(traces)
    nn = p.hazards(traces)
    return kernel_header(name) + p.text(), kernel_desc(name), dict(nops=nn, v=va.p, a=aa.p, s=max(sa.p, s_hi))

if __name__ == '__main__':
    import sys
    NAME = 'gated_mix__softmax_full_mha__glu_gated_bilinear__prompt'
    REF = f'cdna_kernels/{NAME}.s.ref'
    dst = sys.argv[1]
    kw = {a.split('=')[0]: float(a.split('=')[1]) if '.' in a else int(a.split('=')[1]) for a in sys.argv[2:] if '=' in a}
    t, d, info = gen_fused(NAME + '_kernel', prof='prof' in sys.argv, force_slow='slow' in sys.argv, **kw)
    print(info, file=sys.stderr)
    head = [l for l in open(REF).read().split('\n') if l.startswith(';') and '@launch' not in l]
    out = '\n'.join(head) + f'\n; @launch grid=(256,1,1) block=(256,1,1) lds={F_LDS}\n.amdgcn_target "amdgcn-amd-amdhsa--gfx950"\n' + t + d
    open(dst, 'w').write(out)
```

```python
from gen_common import *

X0, X1, W0, W1, QS = 0, 32768, 65536, 106496, 147456
F_LDS = 163840
WS_FL = 33 << 20
WS_T = 36 << 20
DBG_CNT = 64
SPIN = 40000

def gen_fused(name, prof=False, pfd=3, cq=8, cg=6.5, cx=4, NB=8, DA=4, DW=3, RP=6, PM=36, HP=1.25, force_slow=False, ptrace=0, dbg=0, exp_=0, VSP=2, PFP=18, OC=8, KP=1, H0=2, ROT=0, CPF=1, OUTM=1, CP0=1, CP2=0, FG=3, TLB=0, EV=1, DL=6, PT=0, GP=0, XP2=0, PRS=2, TT=1, TP1=0, TP2=0, AL=16, ALS=2, ALM=18, FT=1, PA=48, AS=1, KS=2, PK=0, PKR=1, AW=1, KF=100, KC=5, FOFF=0, S1P=10, MWT=0, LM1=0, LM2=0, PO=3, LP=0, PRE=-1, PF0=0, PD0=3, xpf=1, F0=0, FS=1.0, GD=2, SMC=16, VMC=8, VPEN=16, MW=1, PRA=0, PRB=0, PG=3, E0=11, st_mod=' sc1'):
    pfm = 1
    kv_mod = '' if exp_ & 64 else st_mod
    lm1 = ('', ' sc1', ' nt', ' sc0')[LM1]; lm2 = ('', ' sc1', ' nt', ' sc0')[LM2]
    p = Prog()
    sa = Alloc('s', 4, 102); va = Alloc('v', 1, 256); aa = Alloc('a', 0, 256)
    ptr = sa(16, 4)
    px, pqkv, pwo, pwg, pwu, pwd, pgw = ptr[0:2], ptr[2:4], ptr[4:6], ptr[8:10], ptr[10:12], ptr[12:14], ptr[14:16]
    pod = sa(4, 4); pout, pdbg = pod[0:2], pod[2:4]
    pws = sa(2); smask = sa(2)
    sws = sa(4); sfl = sa(4); sdbg = sa(4)
    s_mb, s_h, s_w, s_wr, s_wc, s_t0, s_t1, s_t2, s_cnt, s_tr, s_hb = [sa() for _ in range(11)]
    s_pt = sa(4, 2)
    s_base = sa.p
    sx = sa(4); sq = sa(4); sg = sa(4); spf = sa(4); sp2 = sa(4); sp3 = sa(4)
    s_c0, s_c1, s_ox, s_oq, s_og, s_pfo, s_pfs, s_gs, s_grp, s_ano = [sa() for _ in range(10)]
    s_mx, s_mw, s_msk = sa(), sa(), sa()
    sp4 = sa(4)
    s_hi = sa.p

    vl, vpd, vflag, vtr, vflk = [va() for _ in range(5)]
    v_base = va.p
    pf = Prof2(p, prof, s_pt, vtr, s_tr)
    vdx = [va() for _ in range(8)]; vdq = [va() for _ in range(2)]; vdq.append(vdq[0]); vdg = [va() for _ in range(7)]
    vxr = [va() for _ in range(2)]; vqr = [va() for _ in range(2)]; vgr = [va() for _ in range(2)]
    vt0, vt1, vt2, vt3, vpf = [va() for _ in range(5)]
    vcnt = va(); vwo = va()
    vtmp = va(28, 4)
    assert vtmp.a == 36
    xlo = [[aa(8, 4) for _ in range(4)] for _ in range(2)]; xhi = [aa(8, 4) for _ in range(4)]
    def xf(st, m, ks): return (xlo[st][m] if m < 4 else xhi[m - 4])[4 * ks:4 * ks + 4]
    NSLOT = 4; DIST = 3
    wf = [aa(8, 4) for _ in range(NSLOT)]
    acc = [[None] * 8 for _ in range(10)]
    for n in [0, 1, 6, 7, 8, 9, 2, 3, 4, 5]:
        for m in range(8):
            acc[n][m] = va(4, 4) if va.p + 4 <= 256 else aa(4, 4)

    def lines(s): return [x.strip() for x in s.strip().split('\n')]
    def dma_x(st):
        L = []
        for i in range(8):
            pre = [f's_add_u32 m0, {s_mx}, {(X0, X1)[st] + (i // 4) * 4096}'] if i % 4 == 0 else []
            L.append((pre, Ins(f'buffer_load_dwordx4 {vdx[i]}, {sx}, {s_ox} offen offset:{(i % 4) * 1024}{lm1} lds', f'S{st}')))
        return L
    def dma_w(st):
        L = []
        for i in range(10):
            pre = [f's_add_u32 m0, {s_mw}, {(W0, W1)[st] + (i // 4) * 4096}'] if i % 4 == 0 else []
            v, sr, so = (vdq[i - 7], sq, s_oq) if i >= 7 else (vdg[i], sg, s_og)
            L.append((pre, Ins(f'buffer_load_dwordx4 {v}, {sr}, {so} offen offset:{(i % 4) * 1024}{lm1} lds', f'S{st}')))
        return L
    def emit(lst):
        for pre, ins in lst:
            p.add(pre); p.add([ins])
    adv = [f's_add_u32 {s_oq}, {s_oq}, {64 * 6144}', f's_add_u32 {s_og}, {s_og}, {64 * 7168}', f's_add_u32 {s_ox}, {s_ox}, 128']

    p.seg('pro')
    p.e(f"""
    s_cmp_ge_u32 s2, 256
    s_cbranch_scc1 {name}_end
    """)
    if ptrace == 3:
        p.e(f's_memtime {s_pt[2:4]}\ns_waitcnt lgkmcnt(0)\ns_mov_b32 {s_hb}, {s_pt[2]}')
    if PRA == -1:
        p.e(f's_memrealtime {s_pt[2:4]}\ns_waitcnt lgkmcnt(0)\ns_mov_b32 {s_hb}, {s_pt[2]}')
    p.e(f"""
    s_load_dwordx16 {ptr}, s[0:1], 0
    s_load_dwordx4 {pod}, s[0:1], 64
    s_load_dwordx2 {pws}, s[0:1], 80
    v_lshrrev_b32 {vt0}, 6, v0
    v_and_b32 {vl}, 63, v0
    s_lshr_b32 {s_t1}, s2, 3
    v_readfirstlane_b32 {s_w}, {vt0}
    s_and_b32 {s_mb}, {s_t1}, 7
    s_and_b32 {s_t0}, s2, 7
    s_lshr_b32 {s_t1}, {s_t1}, 3
    s_lshl_b32 {s_h}, {s_t0}, 2
    s_add_u32 {s_h}, {s_h}, {s_t1}
    s_lshr_b32 {s_wr}, {s_w}, 1
    s_and_b32 {s_wc}, {s_w}, 1
    """)
    if CP0:
        p.e(f"""
        s_getpc_b64 {sp3[0:2]}
        {name}_pcs:
        s_and_b32 {sp3[1]}, {sp3[1]}, 0xffff
        s_mov_b32 {sp3[2]}, {name}_join-{name}_pcs
        s_mov_b32 {sp3[3]}, 0x00020000
        s_lshr_b32 {s_t0}, s2, 3
        s_lshl_b32 {s_t0}, {s_t0}, 2
        s_add_u32 {s_t0}, {s_t0}, {s_w}
        s_lshl_b32 {s_t0}, {s_t0}, 7
        v_lshl_add_u32 {vwo}, {vl}, 14, {s_t0}
        """)
        p.add([Ins(f'buffer_load_dword {vpd}, {vwo}, {sp3}, 0 offen', 'pf')])
    vxp, vgp = vtmp[0], vtmp[1]
    if XP2: p.e(f'v_mov_b32 {vtmp[3]}, 2.0')
    p.e(f"""
    v_and_b32 {vt0}, 7, {vl}
    v_lshrrev_b32 {vt1}, 3, {vl}
    v_mul_u32_u24 {vt2}, 86, {vt1}
    v_lshrrev_b32 {vt2}, 8, {vt2}
    v_mad_i32_i24 {vt1}, {vt2}, -3, {vt1}
    v_lshl_add_u32 {vt0}, {vt2}, 6, {vt0}
    s_lshl_b32 {s_t0}, {s_mb}, 3
    v_add_u32 {vt0}, {s_t0}, {vt0}
    s_cmp_eq_u32 {s_w}, 3
    s_movk_i32 {s_c0}, 7168
    s_cmov_b32 {s_c0}, 6144
    s_movk_i32 {s_c1}, 108
    s_cmov_b32 {s_c1}, 2048
    v_mul_u32_u24 {vt0}, {s_c0}, {vt0}
    v_mad_u32_u24 {vxp}, {vt1}, {s_c1}, {vt0}
    v_cmp_gt_u32 vcc, 48, {vl}
    s_lshl_b32 {s_t0}, {s_t1}, 17
    v_lshl_add_u32 {vt0}, {vl}, 11, {s_t0}
    v_cndmask_b32 {vxp}, 2.0, {vxp}, vcc
    s_cmp_eq_u32 {s_w}, 0
    s_cselect_b64 vcc, -1, 0
    v_cndmask_b32 {vxp}, {vxp}, {vt0 if not XP2 else vtmp[3]}, vcc
    """)
    if XP2:
        p.e(f"""
        s_lshl_b32 {s_c0}, {s_w}, 15
        s_add_u32 {s_t0}, {s_t0}, {s_c0}
        v_lshrrev_b32 {vt0}, 1, {vl}
        v_lshl_add_u32 {vt0}, {vt0}, 11, {s_t0}
        v_and_b32 {vt1}, 1, {vl}
        v_lshl_add_u32 {vt0}, {vt1}, 7, {vt0}
        v_cmp_gt_u32 vcc, 32, {vl}
        v_cndmask_b32 {vtmp[4]}, 2.0, {vt0}, vcc
        """)
    x_addr = lines(f"""
    v_lshrrev_b32 {vt0}, 3, {vl}
    v_and_b32 {vt1}, 7, {vl}
    v_lshrrev_b32 {vt2}, 4, {vl}
    v_xor_b32 {vt1}, {vt1}, {vt2}
    v_lshlrev_b32 {vt3}, 11, {vt0}
    s_lshl_b32 {s_c0}, {s_w}, 17
    v_add_u32 {vt3}, {s_c0}, {vt3}
    v_lshl_add_u32 {vdx[0]}, {vt1}, 4, {vt3}
    v_xor_b32 {vt1}, 4, {vt1}
    v_lshl_add_u32 {vdx[1]}, {vt1}, 4, {vt3}
    v_add_u32 {vdx[1]}, {16384 - 1024}, {vdx[1]}
    s_lshl_b32 {s_mx}, {s_w}, 13
    s_mov_b32 {s_ox}, 0""") + [f'v_add_u32 {vdx[i]}, {(i - i % 2) * 16384 - (i % 4 - i % 2) * 1024}, {vdx[i % 2]}' for i in range(2, 8)]
    q_addr = lines(f"""
    v_lshrrev_b32 {vt0}, 2, {vl}
    v_and_b32 {vt2}, 2, {vt2}
    v_and_b32 {vt1}, 3, {vl}
    v_xor_b32 {vt1}, {vt1}, {vt2}
    s_lshl_b32 {s_c0}, {s_w}, 4
    v_add_u32 {vt0}, {s_c0}, {vt0}
    v_mul_u32_u24 {vt0}, 6144, {vt0}
    v_lshl_add_u32 {vdq[1]}, {vt1}, 4, {vt0}
    v_add_u32 {vdq[0]}, 1024, {vdq[1]}
    s_mul_i32 {s_mw}, {s_w}, 10240
    s_mov_b32 {s_oq}, 0
    s_mov_b32 {s_og}, 0""")
    if PRE >= 0: p.add(x_addr + q_addr)
    def gu_offsets():
        L = [lines(f"""
        s_mul_i32 {s_t0}, {s_wc}, {32 * 7168}
        s_movk_i32 {s_c0}, 6944
        s_movk_i32 {s_c1}, 28672
        v_mul_u32_u24 {vt3}, 4682, {vl}
        v_lshl_add_u32 {vtmp[2]}, {vl}, 4, {s_t0}""")]
        for j in range(7):
            tj = vt3; q_ = []
            if j:
                q_.append(f'v_add_u32 {vt0}, {64 * j * 4682}, {vt3}'); tj = vt0
            q_ += lines(f"""
            v_bfe_u32 {vt1}, {tj}, 18, 1
            v_bfe_u32 {vt2}, {tj}, 19, 1
            v_lshrrev_b32 {vt0}, 16, {tj}
            v_sub_u32 {vt1}, {vt1}, {vt2}
            v_mad_u32_u24 {vdg[j]}, {vt0}, {s_c0}, {vtmp[2]}
            v_mad_i32_i24 {vdg[j]}, {vt1}, {s_c1}, {vdg[j]}""")
            if j == 3: q_.append(f'v_add_u32 {vtmp[2]}, 4096, {vtmp[2]}')
            L.append(q_)
        return L
    gu = gu_offsets()
    if PRE >= 1:
        for q_ in gu: p.add(q_)
    PD = pfd
    gpf_addr = lines(f"""
        s_cmp_eq_u32 {s_w}, 0
        s_cselect_b32 {s_grp}, 12, 14
        s_lshl_b32 {s_pfs}, {s_grp}, 15
        s_cmp_eq_u32 {s_w}, 3
        s_cselect_b32 {s_grp}, 8, {s_grp}
        s_cselect_b32 {s_pfs}, 0x80, {s_pfs}
        s_cselect_b32 {s_ano}, 11, 7
        s_mul_i32 {s_t1}, {s_grp}, s2
        v_and_b32 {vt1}, 15, {vl}
        v_add_u32 {vt0}, {s_t1}, {vt1}
        v_lshlrev_b32 {vpf}, {s_ano}, {vt0}
        v_lshrrev_b32 {vt0}, 4, {vl}
        v_mul_lo_u32 {vt0}, {vt0}, {s_pfs}
        v_add_u32 {vgp}, {vt0}, {vpf}
        v_cmp_gt_u32 vcc, {s_grp}, {vt1}
        v_cmp_gt_u32 {smask}, {16 * (PD0 - 1)}, {vl}
        s_and_b64 {smask}, {smask}, vcc
        v_cndmask_b32 {vgp}, 2.0, {vgp}, {smask}
        v_cmp_gt_u32 vcc, {s_grp}, {vl}
        s_mul_i32 {s_pfo}, {s_pfs}, {PD0}
        v_cndmask_b32 {vpf}, 2.0, {vpf}, vcc""")
    gpf_issue = lines(f"""
        s_cmp_eq_u32 {s_w}, 0
        s_cselect_b64 {spf[0:2]}, {pqkv}, {pwg}
        s_cmp_eq_u32 {s_w}, 2
        s_cselect_b64 {spf[0:2]}, {pwu}, {spf[0:2]}
        s_cmp_eq_u32 {s_w}, 3
        s_cselect_b64 {spf[0:2]}, {px}, {spf[0:2]}
        s_lshl_b32 {spf[2]}, {s_grp}, 19""") + [Ins(f'buffer_load_dword {vpd}, {vgp}, {spf}, {s_pfs} offen', 'pf')]
    def pfetch():
        return [Ins(f'buffer_load_dword {vpd}, {vpf}, {spf}, {s_pfo} offen', 'pf'), f's_add_u32 {s_pfo}, {s_pfo}, {s_pfs}']
    def pfetch_d():
        return [Ins(f'buffer_load_dword {vpd}, {vt3}, {sp2}, {s_c1} offen', 'pf'), f's_add_u32 {s_c1}, {s_c1}, {1024 * DL * 128}']
    rd_addr = lines(f"""
    v_and_b32 {vt0}, 15, {vl}
    v_lshrrev_b32 {vt1}, 4, {vl}
    v_lshrrev_b32 {vt2}, 1, {vt0}
    v_xor_b32 {vt2}, {vt1}, {vt2}
    s_lshl_b32 {s_t0}, {s_wr}, 14
    v_lshl_add_u32 {vt3}, {vt0}, 7, {s_t0}
    v_lshl_add_u32 {vxr[0]}, {vt2}, 4, {vt3}
    v_xor_b32 {vxr[1]}, 64, {vxr[0]}
    v_and_b32 {vt3}, 3, {vt0}
    v_lshlrev_b32 {vt3}, 3, {vt3}
    v_lshrrev_b32 {vt0}, 2, {vt0}
    v_lshrrev_b32 {vt2}, 1, {vt1}
    v_and_b32 {vt1}, 1, {vt1}
    v_mul_u32_u24 {vqr[0]}, 10240, {vt2}
    v_mul_u32_u24 {vqr[1]}, {512 + 32}, {vt1}
    v_add3_u32 {vqr[0]}, {vqr[0]}, {vqr[1]}, {vt3}
    v_lshl_add_u32 {vqr[0]}, {vt0}, 6, {vqr[0]}
    s_lshl_b32 {s_t0}, {s_wc}, 10
    s_sub_u32 {s_t0}, {W0 + 8192}, {s_t0}
    v_add_u32 {vqr[0]}, {s_t0}, {vqr[0]}
    v_xor_b32 {vqr[1]}, 32, {vqr[0]}
    v_lshl_add_u32 {vt0}, {vt1}, 2, {vt0}
    v_lshl_add_u32 {vt0}, {vt2}, 4, {vt0}
    v_mul_u32_u24 {vt0}, 224, {vt0}
    s_mul_i32 {s_t0}, {s_wc}, 96
    s_add_u32 {s_t0}, {s_t0}, {W0}
    v_add3_u32 {vgr[0]}, {vt0}, {vt3}, {s_t0}
    v_add_u32 {vgr[1]}, 20480, {vgr[0]}""")
    if PRE >= 2 or PF0: p.add(gpf_addr)
    if PRE >= 3: p.add(rd_addr)
    p.e(f"""
    s_lshl_b32 {s_t0}, {s_mb}, 19
    s_lshl_b32 {s_t1}, {s_h}, 6
    s_mul_i32 {s_t2}, {s_h}, 224
    s_mov_b32 {sx[3]}, 0x00020000
    s_mov_b32 {sq[3]}, 0x00020000
    s_mov_b32 {sg[3]}, 0x00020000
    s_mov_b32 {spf[3]}, 0x00020000
    s_sub_u32 {sx[2]}, {S * D * 2}, {s_t0}
    s_sub_u32 {sq[2]}, {D * 3072 * 2}, {s_t1}
    s_sub_u32 {sg[2]}, {D * F * 2}, {s_t2}
    s_waitcnt lgkmcnt(0)
    """)
    pf.stamp(0)
    pf.trace_init(vtr, s_tr)
    if PRA == -1: p.e(f'v_writelane_b32 {vtr}, {s_hb}, 42')
    if ptrace == 3:
        p.e(f'v_writelane_b32 {vtr}, {s_hb}, 0\ns_mov_b32 {s_tr}, 1')
        pf.trace()
    p.e(f"""
    s_add_u32 {sx[0]}, {px[0]}, {s_t0}
    s_addc_u32 {sx[1]}, {px[1]}, 0
    s_add_u32 {sq[0]}, {pqkv[0]}, {s_t1}
    s_addc_u32 {sq[1]}, {pqkv[1]}, 0
    s_cmp_ge_u32 {s_w}, 2
    s_cselect_b64 {sg[0:2]}, {pwu}, {pwg}
    s_add_u32 {sg[0]}, {sg[0]}, {s_t2}
    s_addc_u32 {sg[1]}, {sg[1]}, 0
    s_cmp_eq_u32 {s_w}, 3
    s_cselect_b64 {spf[0:2]}, {sq[0:2]}, {sg[0:2]}
    s_cselect_b32 {spf[2]}, {sq[2]}, {sg[2]}
    s_cmp_eq_u32 {s_w}, 0
    s_cselect_b64 {spf[0:2]}, {sx[0:2]}, {spf[0:2]}
    s_cselect_b32 {spf[2]}, {sx[2]}, {spf[2]}
    """)
    if XP2: p.add([Ins(f'buffer_load_dword {vpd}, {vtmp[4]}, {sx}, 0 offen', 'pf')])
    if xpf: p.add([Ins(f'buffer_load_dword {vpd}, {vxp}, {spf}, 0 offen', 'pf')])
    if PF0: p.add(gpf_issue)
    if ptrace > 0: pf.trace()
    if PRE < 0: p.add(x_addr)
    emit(dma_x(0))
    if ptrace > 0: pf.trace()
    if PRE < 0: p.add(q_addr)
    w0 = dma_w(0)
    p.e(f's_add_u32 m0, {s_mw}, {W0 + 4096}')
    emit(w0[7:])
    if PRE < 1: p.add(gu[0])
    for j in range(7):
        if PRE < 1: p.add(gu[j + 1])
        emit([w0[j]])
    p.add(adv)
    if ptrace > 0: pf.trace()
    emit((dma_w(1) + dma_x(1))[:S1P])
    if PRE < 2 and not PF0: p.add(gpf_addr)
    if not PF0: p.add(gpf_issue)
    if PRE < 3: p.add(rd_addr)
    gx = [vtmp[4 * i:4 * i + 4] for i in range(4)]; gw = [vtmp[16:20], vtmp[20:24]]; t = vtmp[24:28]; z = [vt0, vt1]
    flag_setup = [[f's_add_u32 {sfl[0]}, {pws[0]}, {WS_FL}', f's_addc_u32 {sfl[1]}, {pws[1]}, 0']] + lines(f"""
    s_movk_i32 {sfl[2]}, 8192
    s_mov_b32 {sfl[3]}, 0x00020000
    s_mov_b32 {sws[0]}, {pws[0]}
    s_mov_b32 {sws[1]}, {pws[1]}
    s_mov_b32 {sws[2]}, {WS_SIZE}
    s_mov_b32 {sws[3]}, 0x00020000
    s_mov_b32 {sp2[3]}, 0x00020000
    s_lshl_b32 {s_t0}, {s_mb}, 5
    s_add_u32 {s_t0}, {s_t0}, {s_h}
    s_lshl_b32 {s_gs}, {s_t0}, 7
    s_lshl_b32 {s_t0}, {s_t0}, 2
    s_add_u32 {s_t0}, {s_t0}, {s_w}
    s_lshl_b32 {s_t0}, {s_t0}, 2
    v_mov_b32 {vt0}, {s_t0}
    v_cmp_eq_u32 vcc, 0, {vl}
    v_mov_b32 {vt3}, 0
    v_cndmask_b32 {vflag}, 2.0, {vt0}, vcc
    s_lshl_b32 {s_t0}, {s_h}, 3
    s_add_u32 {s_t0}, {s_t0}, {s_mb}
    s_lshl_b32 {s_t0}, {s_t0}, 2
    s_add_u32 {s_t0}, {s_t0}, {s_w}
    s_lshl_b32 {s_t0}, {s_t0}, 2
    s_add_u32 {s_t0}, {s_t0}, 4096
    v_mov_b32 {vt0}, {s_t0}
    buffer_store_dword {vt3}, {vflag}, {sfl}, 0 offen sc1
    v_cndmask_b32 {vflk}, 2.0, {vt0}, vcc
    s_lshl_b32 {s_t1}, {s_w}, 3
    buffer_store_dword {vt3}, {vflk}, {sfl}, 0 offen sc1
    s_add_u32 {s_gs}, {s_gs}, {s_t1}
    s_add_u32 {s_gs}, {s_gs}, {WS_G}
    s_lshl_b32 {s_t0}, {s_h}, 3
    s_lshl_b32 {s_t1}, {s_w}, 1
    s_add_u32 {s_t0}, {s_t0}, {s_t1}
    s_lshl_b32 {s_t2}, {s_t0}, 11
    s_mov_b32 {s_msk}, 0xffff0000
    v_lshlrev_b32 {z[0]}, 5, {vl}""")
    if ptrace > 0: pf.trace()
    p.e('WAITTAG S0')
    if ptrace > 0: pf.trace()
    p.e('s_barrier')
    if ptrace > 0: pf.trace()
    pf.stamp(1)

    def gate_ops():
        L = []
        for r in range(2):
            for j in range(8):
                xr = gx[2 * r + j // 4][j % 4]; wr_ = gw[j // 4][j % 4]
                L += [f'v_lshlrev_b32 {t[0]}, 16, {xr}', f'v_lshlrev_b32 {t[1]}, 16, {wr_}',
                      f'v_and_b32 {t[2]}, {s_msk}, {xr}', f'v_and_b32 {t[3]}, {s_msk}, {wr_}',
                      f'v_mul_f32 {t[0]}, {t[0]}, {t[1]}', f'v_mul_f32 {t[2]}, {t[2]}, {t[3]}',
                      f'v_cvt_pk_bf16_f32 {t[0]}, {t[0]}, {t[2]}', f'v_lshlrev_b32 {t[1]}, 16, {t[0]}',
                      f'v_and_b32 {t[2]}, {s_msk}, {t[0]}']
                if j == 0: L.append(f'v_add_f32 {z[r]}, {t[1]}, {t[2]}')
                else: L += [f'v_add_f32 {t[1]}, {t[1]}, {t[2]}', f'v_add_f32 {z[r]}, {z[r]}, {t[1]}']
        for mode in ('quad_perm:[1,0,3,2]', 'quad_perm:[2,3,0,1]', 'row_half_mirror', 'row_mirror'):
            for r in range(2): L.append(f'v_add_f32_dpp {z[r]}, {z[r]}, {z[r]} {mode} row_mask:0xf bank_mask:0xf')
        for op in ('v_permlane16_swap_b32', 'v_permlane32_swap_b32'):
            for r in range(2): L.append(f'v_mov_b32 {t[r]}, {z[r]}')
            for r in range(2): L.append(f'{op} {t[r]}, {z[r]}')
            for r in range(2): L.append(f'v_add_f32 {z[r]}, {z[r]}, {t[r]}')
        L += f"""v_and_b32 {t[1]}, 1, {vl}
        v_cmp_eq_u32 vcc, 1, {t[1]}
        v_and_b32 {t[3]}, 2, {vl}
        v_cndmask_b32 {t[0]}, {z[0]}, {z[1]}, vcc
        v_cvt_pk_bf16_f32 {t[0]}, {t[0]}, {t[0]}
        v_and_b32 {t[0]}, {s_msk}, {t[0]}
        v_mul_f32 {t[0]}, {hex(f32bits(-math.log2(math.e)))}, {t[0]}
        v_exp_f32 {t[0]}, {t[0]}
        v_cmp_eq_u32 vcc, 2, {t[3]}
        v_add_f32 {t[0]}, 1.0, {t[0]}
        v_rcp_f32 {t[0]}, {t[0]}
        v_lshlrev_b32 {t[3]}, 4, {t[3]}
        v_cvt_pk_bf16_f32 {t[0]}, {t[0]}, {t[0]}
        v_and_b32 {t[0]}, {s_msk}, {t[0]}
        v_sub_f32 {t[2]}, 1.0, {t[0]}
        v_cvt_pk_bf16_f32 {t[2]}, {t[2]}, {t[2]}
        v_and_b32 {t[2]}, {s_msk}, {t[2]}
        v_cndmask_b32 {t[0]}, {t[0]}, {t[2]}, vcc
        v_lshl_add_u32 {t[3]}, {t[1]}, 2, {t[3]}
        v_cmp_gt_u32 vcc, 4, {vl}
        v_cndmask_b32 {t[3]}, 2.0, {t[3]}, vcc
        buffer_store_dword {t[0]}, {t[3]}, {sws}, {s_gs} offen{st_mod}""".split('\n')
        return [x.strip() for x in L]

    def wread(n, st, wc):
        slot = wf[(10 * st + n) % NSLOT]
        nq = 4 if wc == 0 else 2
        L = []
        for ks in range(2):
            if n < nq: base = vqr[n % 2]; off = ks * 20480 + (1024 if (wc == 0 and n < 2) else 0); so = 256
            else: base = vgr[(n - nq) % 2]; off = ks * 10240 + ((n - nq) // 2) * 32; so = 1792
            off += st * (W1 - W0)
            L += [f'ds_read_b64_tr_b16 {slot[4 * ks + 2 * s:4 * ks + 2 * s + 2]}, {base} offset:{off + s * so}' for s in range(2)]
        return L
    def xread(m, ks, st):
        return f'ds_read_b128 {xf(st, m, ks)}, {vxr[ks]} offset:{st * (X1 - X0) + m * 2048}'

    for m in range(2):
        for ks in range(2): p.e(xread(m, ks, 0))
    p.e(f's_cmp_eq_u32 {s_wc}, 1')
    p.e(f's_cbranch_scc1 {name}_c1')

    def stage(st, wc, first=False, last=False, extra=None, fill=None, estep=2, postbar=None, nodma1=False, early=None, dens=2):
        slots = {}
        for j in range(10):
            jj = j + DIST
            if jj < 10: rd = wread(jj, st, wc)
            elif last: continue
            else: rd = wread(jj - 10, st ^ 1, wc)
            for i, x in enumerate(rd): place(slots, 16 * j + ((0, 2, 4, 6) if j < 9 else (0, 11, 13, 15))[i], x)
        bar = 16 * (10 - DIST)
        if not last:
            for i in range(8): place(slots, bar + 8 + (0, 2, 4, 6, 16, 18, 20, 22)[i], xread(i // 2, i % 2, st ^ 1))
            for i in range(8): place(slots, 144 + (2, 3, 4, 5, 7, 8, 9, 10)[i], xread(7 - i // 2, i % 2, st ^ 1))
        pos = []; c = 1.0
        for k in range(18):
            pos.append(int(c)); c += cg if k < 7 else (cq if k < 10 else cx)
        endc = int(c) - (160 - bar)
        pos0 = pos
        if first:
            sh = pos[S1P] - 1
            pos = [(int(F0 + (x - sh) * FS) + 160 - bar) if k >= S1P else -1 for k, x in enumerate(pos)]; endc = int(F0 + (endc + 160 - bar - sh) * FS)
        if not last:
            dl = dma_w(st ^ 1) + dma_x(st ^ 1)
            for k in range(18):
                c = pos[k] - (160 - bar)
                if c < 0: continue
                for x in dl[k][0]: place(slots, max(c - 1, 0), x)
                place(slots, c, dl[k][1])
            for i, x in enumerate(adv): place(slots, endc - 2 + i, x)
            if first: pos = pos0
            dl = dma_w(st) + dma_x(st)
            for k in range(18):
                c = bar + pos[k]
                if c >= 160 or nodma1: continue
                for x in dl[k][0]: place(slots, c - 1, x)
                place(slots, c, dl[k][1])
        if early:
            c = (pos[PFP] - (0 if first else 160 - bar) - 2) if PFP < 18 else endc + 1
            for x in early: place(slots, max(c, 0), x); c += 1
            if PFP >= 18: endc = c + 1
        c = endc + 1
        for x in (extra or []):
            if isinstance(x, list):
                for y in x: place(slots, c, y)
                c += estep; continue
            place(slots, c, x)
            c += 3 if (isinstance(x, Ins) or x.startswith('buffer')) else estep
        assert c < bar
        for i, x in enumerate(postbar or []):
            for y in (x if isinstance(x, list) else [x]):
                if y is not None: place(slots, bar + 3 + 2 * i, y)
        if FOFF:
            for c in sorted(slots):
                if c % 2 == 0 and c + 1 < 160 and len(slots.get(c + 1, [])) + len(slots[c]) <= FOFF:
                    slots[c + 1] = slots[c] + slots.get(c + 1, []); slots[c] = []
        fill = [x if isinstance(x, tuple) else (0, x) for x in (fill or [])]
        for c in range(160):
            n, r = divmod(c, 16); mi, ks = divmod(r, 2)
            m = mi if n % 2 == 0 else 7 - mi
            if c == bar and not last:
                p.e(f'WAITTAG S{st ^ 1} LGKM0')
                p.e('s_barrier')
                if ptrace > 1: pf.trace()
            if MWT and not first and c == 8: p.e('s_waitcnt lgkmcnt(4)')
            if MWT and r == 0 and 0 < n and c != bar and not (first and n < 3) and not last: p.e(f's_waitcnt lgkmcnt({8 if n <= 7 else 12})')
            w = wf[(10 * st + n) % NSLOT][4 * ks:4 * ks + 4]; x = xf(st, m, ks)
            a, b = (x, w) if (wc == 1 and n < 2) else (w, x)
            cin = '0' if (first and ks == 0) else str(acc[n][m])
            p.e(f'v_mfma_f32_16x16x32_bf16 {acc[n][m]}, {a}, {b}, {cin}')
            here = slots.get(c, [])
            p.add(here)
            if c >= 1:
                for _ in range(min(dens, 2 - len(here))):
                    if fill and fill[0][0] <= c:
                        x = fill.pop(0)[1]; p.add(x if isinstance(x, list) else [x])
        return [x[1] for x in fill]

    def toreg(tile, tmp):
        if tile.k == 'v': return tile
        for i in range(4): p.e(f'v_accvgpr_read_b32 {tmp[i]}, {tile[i]}')
        return tmp
    def pack(o, t0, t1):
        p.e(f'v_cvt_pk_bf16_f32 {o[0]}, {t0[0]}, {t0[1]}\nv_cvt_pk_bf16_f32 {o[1]}, {t0[2]}, {t0[3]}')
        p.e(f'v_cvt_pk_bf16_f32 {o[2]}, {t1[0]}, {t1[1]}\nv_cvt_pk_bf16_f32 {o[3]}, {t1[2]}, {t1[3]}')

    def pf_setup():
        L = f"""s_lshl_b32 {s_t0}, s2, 2
        s_add_u32 {s_t0}, {s_t0}, {s_w}
        s_mul_i32 {s_t1}, {s_t0}, {DL * 128}
        v_lshl_add_u32 {vt3}, {vl}, 7, {s_t1}
        v_cmp_gt_u32 vcc, {DL}, {vl}
        s_mov_b32 {sp2[0]}, {pwd[0]}
        s_mov_b32 {sp2[1]}, {pwd[1]}
        s_mov_b32 {sp2[2]}, {F * D * 2}
        v_cndmask_b32 {vt3}, 2.0, {vt3}, vcc
        s_mov_b32 {s_c1}, 0""".split('\n')
        return [x.strip() for x in L]
    def tp_setup():
        a_, b_ = vtmp[27], vtmp[26]
        return lines(f"""
        s_lshl_b32 {s_t0}, s2, 2
        s_add_u32 {s_t0}, {s_t0}, {s_w}
        s_lshr_b32 {s_t1}, {s_t0}, 4
        s_lshl_b32 {s_c1}, {s_t1}, 15
        s_lshl_b32 {s_c0}, {s_t1}, 12
        s_and_b32 {s_t0}, {s_t0}, 15
        s_lshr_b32 {s_t1}, {s_t0}, 1
        s_mul_i32 {s_t1}, {s_t1}, {224 * 4096}
        s_add_u32 {s_c0}, {s_c0}, {s_t1}
        s_and_b32 {s_t1}, {s_t0}, 1
        s_lshl_b32 {s_t1}, {s_t1}, 11
        s_add_u32 {s_c0}, {s_c0}, {s_t1}
        s_add_u32 {s_c0}, {s_c0}, {WS_T}
        s_lshl_b32 {s_t0}, {s_t0}, 7
        s_mov_b32 {sp2[0]}, {pwd[0]}
        s_mov_b32 {sp2[1]}, {pwd[1]}
        s_mov_b32 {sp2[2]}, {F * D * 2}
        v_lshrrev_b32 {a_}, 3, {vl}
        v_and_b32 {b_}, 2, {a_}
        v_lshlrev_b32 {b_}, 1, {b_}
        v_and_b32 {vt3}, 7, {vl}
        v_xor_b32 {b_}, {b_}, {vt3}
        v_lshl_add_u32 {b_}, {b_}, 4, {s_t0}
        v_lshl_add_u32 {vt3}, {a_}, 11, {b_}
        s_lshl_b32 {s_t0}, {s_w}, 12
        s_add_u32 {s_t0}, {s_t0}, {QS}
        v_lshrrev_b32 {a_}, 5, {vl}
        v_lshl_add_u32 {vtmp[24]}, {a_}, 10, {s_t0}
        v_bfe_u32 {a_}, {vl}, 2, 2
        v_lshl_add_u32 {vtmp[24]}, {a_}, 7, {vtmp[24]}
        v_bfe_u32 {a_}, {vl}, 3, 1
        v_lshl_add_u32 {vtmp[24]}, {a_}, 6, {vtmp[24]}
        v_bfe_u32 {a_}, {vl}, 4, 1
        v_lshl_add_u32 {vtmp[24]}, {a_}, 5, {vtmp[24]}
        v_and_b32 {a_}, 3, {vl}
        v_lshl_add_u32 {vtmp[24]}, {a_}, 3, {vtmp[24]}
        v_xor_b32 {vtmp[25]}, 64, {vtmp[24]}
        v_lshlrev_b32 {vtmp[26]}, 4, {vl}
        s_lshl_b32 {s_t0}, s2, 2
        s_add_u32 {s_t0}, {s_t0}, {s_w}
        s_and_b32 {s_t0}, {s_t0}, 15
        s_lshl_b32 {s_t0}, {s_t0}, 7
        v_lshl_add_u32 {a_}, {vl}, 11, {s_t0}
        v_cmp_gt_u32 vcc, 16, {vl}
        v_cndmask_b32 {a_}, 2.0, {a_}, vcc""") + [tp_touch()]
    def tp_touch():
        return Ins(f'buffer_load_dword {vpd}, {vtmp[27]}, {sp2}, {s_c1} offen', 'pf')
    def tp_load():
        return [f's_lshr_b32 {s_t0}, {s_mx}, 1', f's_add_u32 m0, {s_t0}, {QS}', f's_add_u32 {s_t1}, {s_c1}, {8 * 2048 - 1024}',
                Ins(f'buffer_load_dwordx4 {vt3}, {sp2}, {s_c1} offen lds', 'TP'), Ins(f'buffer_load_dwordx4 {vt3}, {sp2}, {s_t1} offen offset:1024 lds', 'TP')]
    def tp_store():
        L = ['WAITTAG TP'] + [f'ds_read_b64_tr_b16 {vtmp[4 * nb + 2 * s_:4 * nb + 2 * s_ + 2]}, {vtmp[24 + nb]} offset:{s_ * 512}' for nb in range(2) for s_ in range(2)]
        L = [L[:2]] + L[2:]
        L += [[f's_cmp_lt_u32 {s_c1}, {224 * 32768}', f's_cselect_b32 {s_t0}, {s_c0}, 2.0'], f's_add_u32 {s_c1}, {s_c1}, {64 * 32768}', f's_add_u32 {s_c0}, {s_c0}, {64 * 4096}', None, None]
        L += [Ins(f'buffer_store_dwordx4 {vtmp[4 * nb:4 * nb + 4]}, {vtmp[26]}, {sws}, {s_t0} offen offset:{nb * 1024}{st_mod}', 'HST') for nb in range(2)]
        if TT: L.insert(7, tp_touch())
        return L
    def pf3_setup():
        L = f"""s_mov_b32 {sp3[0]}, {pgw[0]}
        s_mov_b32 {sp3[1]}, {pgw[1]}
        s_movk_i32 {sp3[2]}, 2048
        s_mov_b32 {sp3[3]}, 0x00020000
        v_lshlrev_b32 {vwo}, 7, {vl}""".split('\n')
        L2 = f"""s_lshl_b32 {s_t0}, s2, 2
        s_add_u32 {s_t0}, {s_t0}, {s_w}
        s_lshl_b32 {s_t1}, {s_t0}, 11
        v_lshl_add_u32 {vwo}, {vl}, 7, {s_t1}
        v_cmp_gt_u32 {smask}, 16, {vl}
        s_mov_b32 {sp3[0]}, {pwo[0]}
        s_mov_b32 {sp3[1]}, {pwo[1]}
        s_mov_b32 {sp3[2]}, {D * D * 2}
        v_cndmask_b32 {vwo}, 2.0, {vwo}, {smask}""".split('\n')
        return [x.strip() for x in L] + [Ins(f'buffer_load_dword {vpd}, {vwo}, {sp3}, 0 offen', 'pf')] + [x.strip() for x in L2]
    def tlb_touch():
        return [f's_cmp_eq_u32 {s_w}, 1', f's_cselect_b32 {sp2[0]}, {pout[0]}, {pws[0]}', f's_cselect_b32 {sp2[1]}, {pout[1]}, {pws[1]}',
                f's_mov_b32 {sp2[2]}, {34 << 20}', f's_cmov_b32 {sp2[2]}, {S * D * 2}', f's_cmp_lt_u32 {s_w}, 2', f's_cselect_b32 {s_t0}, 0, 2.0',
                f'v_lshlrev_b32 {vt3}, 20, {vl}', Ins(f'buffer_load_dword {vpd}, {vt3}, {sp2}, {s_t0} offen sc1', 'pf')]
    def tlb_touch2():
        L = tlb_touch()
        return [L[0:5], L[5:7]] + L[7:]
    pf_wo = [f's_cmp_eq_u32 {s_cnt}, 2', f's_cselect_b32 {s_t0}, 0, 2.0', Ins(f'buffer_load_dword {vpd}, {vwo}, {sp3}, {s_t0} offen', 'pf')]
    gate_sel = [f's_cmp_eq_u32 {s_cnt}, 0', f's_cselect_b32 {s_t0}, {s_t2}, 2.0', f's_cselect_b32 {s_t1}, 0, 2.0',
                f's_cselect_b32 {sp3[0]}, {pgw[0]}, {sp3[0]}', f's_cselect_b32 {sp3[1]}, {pgw[1]}, {sp3[1]}', f's_cselect_b32 {sp3[2]}, 0x800, {sp3[2]}']
    gate_loads = [f'buffer_load_dwordx4 {gw[i]}, {z[0]}, {sp3}, {s_t1} offen offset:{16 * i}' for i in range(2)] + \
                 [f'buffer_load_dwordx4 {gx[i]}, {z[0]}, {sx}, {s_t0} offen offset:{(i // 2) * 2048 + (i % 2) * 16}' for i in range(4)]

    spins = []
    def check(cond_lines, reload_lines, tag):
        lab = f'{name}_{tag}'
        spins.append((lab, cond_lines, reload_lines))
        return cond_lines + [f's_cbranch_vccnz {lab}_spin', f'{lab}_ok:']

    def lines(s): return [x.strip() for x in s.strip().split('\n')]
    def rd(tile, tmp):
        if tile.k == 'v': return tile, []
        return tmp, [f'v_accvgpr_read_b32 {tmp[i]}, {tile[i]}' for i in range(4)]
    def packl(o, t0, t1):
        return [f'v_cvt_pk_bf16_f32 {o[0]}, {t0[0]}, {t0[1]}', f'v_cvt_pk_bf16_f32 {o[1]}, {t0[2]}, {t0[3]}',
                f'v_cvt_pk_bf16_f32 {o[2]}, {t1[0]}, {t1[1]}', f'v_cvt_pk_bf16_f32 {o[3]}, {t1[2]}, {t1[3]}']
    def mul4(d, a_, b_, pk):
        if pk: return [f'v_pk_mul_f32 {d[2*i:2*i+2]}, {a_[2*i:2*i+2]}, {b_ if b_.k == "s" else b_[2*i:2*i+2]}' for i in range(2)]
        return [f'v_mul_f32 {d[i]}, {b_[0] if b_.k == "s" else b_[i]}, {a_[i]}' for i in range(4)]
    def hpiece(n, j, o, pk):
        L = []; tt = []
        for mm in range(2):
            g_, l0 = rd(acc[n][2 * j + mm], vtmp[8 * mm:8 * mm + 4]); u_, l1 = rd(acc[n + 1][2 * j + mm], vtmp[8 * mm + 4:8 * mm + 8])
            L += l0 + l1 + mul4(g_, g_, u_, pk); tt.append(g_)
        return L + packl(o, tt[0], tt[1]) + [f'v_permlane16_swap_b32 {o[0]}, {o[2]}', f'v_permlane16_swap_b32 {o[1]}, {o[3]}']
    hreg = [acc[7][2 * j] for j in range(4)] + [acc[6][2 * j] for j in range(4)] + [acc[8][2 * j] for j in range(4)]

    vq = vdx[0]; vh = vdx[1]; vql = vdx[2]; vqq = vdx[3]
    s_b, s_qs = s_oq, R('s', sx.a, 2)
    def epi_setup(wc):
        L = lines(f"""
        v_and_b32 {vt0}, 15, {vl}
        v_lshrrev_b32 {vt1}, 4, {vl}
        v_lshlrev_b32 {vq}, 9, {vt1}
        v_lshlrev_b32 {vh}, 4, {vl}
        s_lshl_b32 {s_t0}, {s_h}, 6
        s_lshl_b32 {s_t1}, {s_mb}, 3
        s_add_u32 {s_t0}, {s_t0}, {s_t1}
        s_lshl_b32 {s_t1}, {s_wr}, 2
        s_add_u32 {s_t0}, {s_t0}, {s_t1}
        s_lshl_b32 {s_b}, {s_t0}, 12
        s_add_u32 {s_b}, {s_b}, {WS_KV}
        s_add_u32 {s_og}, {s_b}, 4096
        s_add_u32 {s_ox}, {s_b}, 8192
        s_add_u32 {s_c0}, {s_b}, 12288
        s_lshl_b32 {s_t0}, {s_mb}, 1
        s_add_u32 {s_t0}, {s_t0}, {s_wr}
        s_mul_i32 {s_t0}, {s_t0}, 288
        s_mul_i32 {s_t1}, {s_h}, 7
        s_add_u32 {s_t0}, {s_t0}, {s_t1}
        s_lshl_b32 {s_t0}, {s_t0}, 12
        s_add_u32 {s_hb}, {s_t0}, {WS_A + 4 * 4096 * wc}
        s_sub_u32 {s_c1}, {s_hb}, 4096
        s_lshl_b32 {s_t1}, {s_wr}, 14""")
        if wc == 0:
            L += lines(f"""
            v_lshrrev_b32 {vt2}, 3, {vt0}
            v_lshl_add_u32 {vq}, {vt2}, 8, {vq}
            v_and_b32 {vt2}, 7, {vt0}
            v_lshl_add_u32 {vq}, {vt2}, 4, {vq}
            v_add_u32 {vql}, {s_t1}, {vq}
            s_lshl_b32 {s_t1}, {s_wr}, 13
            s_add_u32 {s_t1}, {s_t1}, {QS}
            v_add_u32 {vqq}, {s_t1}, {vq}
            s_mov_b32 {s_qs[0]}, {hex(f32bits(QSCALE))}
            s_mov_b32 {s_qs[1]}, {s_qs[0]}""")
        else:
            L += [f'v_lshl_add_u32 {vq}, {vt0}, 4, {vq}', f'v_add_u32 {vql}, {s_t1}, {vq}']
        return L
    kvb = [s_b, s_og, s_ox, s_c0]
    def epi_early(wc, npk):
        F_ = []
        outs = [vtmp[16 + 4 * i:20 + 4 * i] for i in range(3)]
        if wc == 0:
            for m in range(7, -1, -1):
                o = acc[0][m]
                L = packl(o, acc[0][m], acc[1][m]) + [Ins(f'buffer_store_dwordx4 {o}, {vq}, {sws}, {kvb[m // 2]} offen offset:{(m % 2) * 128}{kv_mod}', 'KVST'),
                                                       f'ds_write_b128 {vql}, {o} offset:{(m // 2) * 4096 + (m % 2) * 128}']
                F_ += [(17 + 2 * (7 - m) + 4, x) for x in L]
            for i, m in enumerate(range(7, -1, -1)):
                o = outs[i % 3]
                t0, l0 = rd(acc[2][m], vtmp[0:4]); t1, l1 = rd(acc[3][m], vtmp[4:8])
                L = l0 + l1 + mul4(t0, t0, s_qs, i >= npk) + mul4(t1, t1, s_qs, i >= npk) + packl(o, t0, t1) + [f'ds_write_b128 {vqq}, {o} offset:{(m // 2) * 2048 + (m % 2) * 128}']
                F_ += [(49 + 2 * (7 - m) + 4, x) for x in L]
        else:
            for nt, js in ((0, range(4)), (1, range(3, -1, -1))):
                for j in js:
                    o = acc[nt][2 * j]
                    L = packl(o, acc[nt][2 * j], acc[nt][2 * j + 1]) + [Ins(f'buffer_store_dwordx4 {o}, {vq}, {sws}, {kvb[j]} offen offset:{2048 + nt * 256}{kv_mod}', 'KVST'),
                                                                         f'ds_write_b128 {vql}, {o} offset:{j * 4096 + 2048 + nt * 256}']
                    F_ += [((3 + 4 * j if nt == 0 else 31 - 4 * j) + 4, x) for x in L]
            for i, j in enumerate(range(3, -1, -1)):
                o = outs[i % 3]
                L = hpiece(2, j, o, i >= npk) + [Ins(f'buffer_store_dwordx4 {o}, {vh}, {sws}, {s_c1} offen offset:{j * 1024}{st_mod}', 'HST')]
                F_ += [(63 - 4 * j + 4, x) for x in L]
        for j in range(3, -1, -1):
            F_ += [(127 - 4 * j + 4, x) for x in hpiece(6, j, hreg[4 + j], PK)]
            F_ += [(127 - 4 * j + 4, x) for x in hpiece(4, j, hreg[j], PK)]
        k = max(i for i, x in enumerate(F_) if isinstance(x[1], Ins) and x[1].tag == 'KVST')
        F_[k + KF:k + KF] = [(0, [f'v_mov_b32 {vt0}, 1', 'WAITTAG KVST', Ins(f'buffer_store_dword {vt0}, {vflk}, {sfl}, 0 offen sc1', 'FL')])]
        return F_
    def epi_late():
        for j in range(3, -1, -1): p.add(hpiece(8, j, hreg[8 + j], True))

    announce_setup = lines(f"""
        s_mov_b32 {sdbg[0]}, {pdbg[0]}
        s_mov_b32 {sdbg[1]}, {pdbg[1]}
        s_movk_i32 {sdbg[2]}, 256
        s_mov_b32 {sdbg[3]}, 0x00020000
        s_and_b32 {s_ano}, s2, 7
        s_lshl_b32 {s_ano}, {s_ano}, 2
        s_and_b32 {s_grp}, {s_mb}, 3
        s_add_u32 {s_grp}, {s_grp}, 3
        v_mov_b32 {vt2}, 1
        v_cmp_eq_u32 {smask}, 0, v0
        v_cndmask_b32 {vt1}, 2.0, 0, {smask}""")
    if PT:
        k = announce_setup.index(f's_add_u32 {s_grp}, {s_grp}, 3')
        announce_setup[k:k + 1] = [[f's_cmp_lt_u32 {s_grp}, 2', f's_cselect_b32 {s_grp}, {s_grp}, 16'], f's_add_u32 {s_grp}, {s_grp}, 1']
    announce1 = [f's_add_u32 {s_t0}, {s_cnt}, 16', [f's_cmp_eq_u32 {s_t0}, {s_grp}', f's_cselect_b32 {s_t0}, {s_ano}, 2.0'],
                 f'buffer_atomic_add {vt2}, {vt1}, {sdbg}, {s_t0} offen offset:{DBG_CNT} sc1']
    announce = [f's_cmp_eq_u32 {s_cnt}, {s_grp}', f's_cselect_b32 {s_t0}, {s_ano}, 2.0',
                f'buffer_atomic_add {vt2}, {vt1}, {sdbg}, {s_t0} offen offset:{DBG_CNT} sc1']
    cnt_addr = [f'v_and_b32 {vpf}, 7, {vl}', f'v_lshlrev_b32 {vpf}, 2, {vpf}']
    cnt_load = f'buffer_load_dword {vcnt}, {vpf}, {sdbg}, 0 offen offset:{DBG_CNT} sc1'

    def code_setup(wc):
        lab = f'{name}_pc{wc}'
        return [[f's_getpc_b64 {sp4[0:2]}', f'{lab}:'], f's_and_b32 {sp4[1]}, {sp4[1]}, 0xffff', f's_mov_b32 {sp4[2]}, {name}_end-{lab}', f's_mov_b32 {sp4[3]}, 0x00020000',
                f's_lshr_b32 {s_t0}, s2, 3', f's_lshl_b32 {s_t1}, {s_t0}, 8', f's_add_u32 {s_t1}, {s_t1}, {name}_c{wc}out-{lab}', f'v_and_b32 {vcnt}, 1, {vl}', f'v_lshlrev_b32 {vcnt}, 7, {vcnt}',
                f's_lshl_b32 {s_t0}, {s_t0}, 2', f's_add_u32 {s_t0}, {s_t0}, {s_w}', f's_lshl_b32 {s_t0}, {s_t0}, 8',
                f's_add_u32 {s_t0}, {s_t0}, {name}_join-{lab}', f'v_mov_b32 {vtmp[0]}, {s_t0}', f'v_mov_b32 {vtmp[1]}, {s_t1}',
                f'v_cmp_gt_u32 vcc, 2, {vl}', f'v_cndmask_b32 {vtmp[0]}, {vtmp[0]}, {vtmp[1]}, vcc', f'v_add_u32 {vcnt}, {vcnt}, {vtmp[0]}',
                f'v_cmp_gt_u32 vcc, 4, {vl}', f'v_cndmask_b32 {vcnt}, 2.0, {vcnt}, vcc']
    code_pf = [f's_cmp_eq_u32 {s_cnt}, 1', f's_cselect_b32 {s_t0}, 0, 2.0', Ins(f'buffer_load_dword {vpd}, {vcnt}, {sp4}, {s_t0} offen', 'pf')]
    for wc in range(2):
        p.seg(f'c{wc}a')
        if wc == 1: p.e(f'{name}_c1:')
        p.add(wread(0, 0, wc))
        for m in range(2, 8):
            for ks in range(2): p.e(xread(m, ks, 0))
        for j in range(1, DIST): p.add(wread(j, 0, wc))
        left = stage(0, wc, first=True, early=[x for _ in range(PD - PD0 + 1) for x in pfetch()], fill=flag_setup + announce_setup + code_setup(wc) + pf3_setup() + (tlb_touch2() if TLB else []) + (tp_setup() if PT else pf_setup()))
        assert not left
        p.e(f's_mov_b32 {s_cnt}, 6')
        p.seg(f'c{wc}l1')
        p.e(f'{name}_c{wc}loop:')
        stage(1, wc, early=pfetch() + (tp_load() if PT else pfetch_d()), extra=gate_sel + gate_loads + (announce1 if PT else []), estep=1)
        p.e(f's_cmp_eq_u32 {s_cnt}, 0\ns_cbranch_scc1 {name}_c{wc}out')
        p.seg(f'c{wc}l2')
        stage(0, wc, early=pfetch() + ([] if PT else pfetch_d()), extra=([x for x in tp_store() if x is not None] if PT else []) + announce + pf_wo + (code_pf if CPF else []), estep=1 if PT else 2)
        p.e(f's_sub_u32 {s_cnt}, {s_cnt}, 1\ns_branch {name}_c{wc}loop')
        p.seg(f'c{wc}last')
        p.e(f'{name}_c{wc}out:')
        rest = stage(0, wc, early=None if PT else pfetch_d(), fill=gate_ops(), nodma1=True, dens=GD)
        rest = stage(1, wc, last=True, fill=rest + cnt_addr + [cnt_load] + epi_setup(wc) + epi_early(wc, 99))
        pf.stamp(2)
        if ptrace == -1: pf.trace()
        k = max([i for i, x in enumerate(rest) if isinstance(x, str) and x.startswith('ds_write')] + [-1]) + 1
        for x in rest[:k]: p.add(x if isinstance(x, list) else [x])
        rest = rest[k:]
        if PKR:
            out = []; i = 0
            while i < len(rest):
                x = rest[i]; y = rest[i + 1] if i + 1 < len(rest) else None
                if isinstance(x, str) and isinstance(y, str) and x.startswith('v_mul_f32') and y.startswith('v_mul_f32'):
                    a0, b0, c0 = [int(t.strip()[1:]) for t in x[10:].split(',')]; a1, b1, c1 = [int(t.strip()[1:]) for t in y[10:].split(',')]
                    if a0 % 2 == 0 and b0 % 2 == 0 and (a1, b1, c1) == (a0 + 1, b0 + 1, c0 + 1):
                        out.append(f'v_pk_mul_f32 v[{a0}:{a1}], v[{b0}:{b1}], v[{c0}:{c1}]'); i += 2; continue
                out.append(x); i += 1
            rest = out
        va_, vb_ = vdg[0], vdg[1]
        p.e(f"""
        v_lshlrev_b32 {va_}, 4, {vl}
        s_lshl_b32 {s_t0}, {s_w}, 12
        s_add_u32 {s_t0}, {s_t0}, {QS}
        v_add_u32 {vb_}, {s_t0}, {va_}
        s_waitcnt lgkmcnt(0)
        s_barrier
        """)
        for q in range(2):
            for f in range(2): p.e(f'ds_read_b128 a[{40 + 8 * q + 4 * f}:{43 + 8 * q + 4 * f}], {vb_} offset:{q * 2048 + f * 1024}')
        for i in range(4): p.e(f'ds_read_b128 a[{56 + 4 * i}:{59 + 4 * i}], {va_} offset:{(i // 2) * 4096 + (i % 2) * 1024}')
        pre = [f'v_mfma_f32_32x32x16_bf16 v[{64 + 16 * q}:{79 + 16 * q}], a[{56 + 4 * f}:{59 + 4 * f}], a[{40 + 8 * q + 4 * f}:{43 + 8 * q + 4 * f}], ' + ('0' if f == 0 else f'v[{64 + 16 * q}:{79 + 16 * q}]')
               for q in range(2) for f in range(2)]
        rest = rest + [x for j in range(3, -1, -1) for x in hpiece(8, j, hreg[8 + j], True)]
        for i, x in enumerate(rest):
            p.add(x if isinstance(x, list) else [x])
            if i >= 24 and (i - 24) % 7 == 0 and pre: p.e(pre.pop(0))
        p.add(pre)
        if ptrace == -1: pf.trace()
        if ptrace == -1: pf.trace()
        if wc == 0: p.e(f's_branch {name}_join')
    p.seg('join')
    p.e(f'{name}_join:')
    p.add(check([f'v_cmp_gt_u32 vcc, 32, {vcnt}'], [cnt_load], 'cnt'))

    sa.p = s_base; va.p = v_base; aa.p = 0
    skv = sa(4); sA = sa(4); swd = sa(4); swo = sa(4); sout = sa(4)
    s_okv, s_left, s_p, s_oa, s_ow, s_wb, s_ob, s_ob2, s_thr, s_mt, s_nt, s_oo, s_spin, s_h1, s_h2, s_rt, s_win = [sa() for _ in range(17)]
    scp = sa(4)
    vl16, vkA, vkB, vdma, vo, vidx, vu0, vu1, vu2, vpa = [va() for _ in range(10)]
    vdd = [va() for _ in range(2)]; vdo = [va() for _ in range(2)]; vwr = [va() for _ in range(2)]
    vg = va(2); vog = va(4); vpoll = va(2, 2); vsc = va(2)
    ones = va(4, 4)
    vA = [va() for _ in range(4)]
    assert va.p <= 46 and va.p > vwo.a
    va2 = Alloc('v', va.p, 48)
    va.p = 48
    Sx = [va(16, 4) for _ in range(2)]; P = [va(8, 4) for _ in range(2)]; C = [va(16, 4) for _ in range(2)]
    acc3 = [[va(16, 4) for _ in range(4)] for _ in range(2)]
    O = [aa(16, 4) for _ in range(2)]; L = [aa(4, 4) for _ in range(2)]
    Q = [aa(8, 4) for _ in range(2)]; K = [aa(8, 4) for _ in range(2)]; V = [aa(8, 4) for _ in range(2)]
    Wf = [aa(4, 4) for _ in range(2)]
    Ab = [[aa(4, 4) for _ in range(4)] for _ in range(8)]
    if PT:
        NB = 4; DA = DW = 3
        Wb = [[Ab[4 + i // 2][2 * (i % 2)], Ab[4 + i // 2][2 * (i % 2) + 1]] for i in range(4)]

    p.e(f"""
    v_lshlrev_b32 {vl16}, 4, {vl}
    s_lshl_b32 {s_p}, {s_w}, 12
    """)
    assert Q[0].a == 40 and K[0].a == 56 and Sx[1].a == 64 and P[0].a == 80
    pf.stamp(3)
    def kread(kb, loop=False):
        base, o = (vl16, (kb % 16) * 4096) if not loop else ((vkA, kb * 4096) if kb < 8 else (vkB, (kb - 8) * 4096))
        return [f'ds_read_b128 {K[kb % 2][4*f:4*f+4]}, {base} offset:{o + f * 1024}' for f in range(2)]
    def vread(kb, loop=False):
        base, o = (vl16, (kb % 16) * 4096) if not loop else (vkA, kb * 4096)
        return [f'ds_read_b128 {V[kb % 2][4*f:4*f+4]}, {base} offset:{o + 2048 + f * 1024}' for f in range(2)]
    def qk(dst, kb, q, f, cin):
        return f'v_mfma_f32_32x32x16_bf16 {dst}, {K[kb % 2][4*f:4*f+4]}, {Q[q][4*f:4*f+4]}, {cin if f == 0 else dst}'
    def pv(j, f, zero=False):
        q = j % 2; kb = (j // 2) % 2
        return f'v_mfma_f32_32x32x16_bf16 {O[q]}, {V[kb][4*f:4*f+4]}, {P[q][4*f:4*f+4]}, {"0" if zero else O[q]}'
    def rsum(q): return f'v_smfmac_f32_16x16x64_bf16 {L[q]}, {ones}, {P[q]}, {vidx}'
    def cvt(j, i): return f'v_cvt_pk_bf16_f32 {P[j % 2][i]}, {Sx[j % 2][2*i]}, {Sx[j % 2][2*i+1]}'
    def rowmax(dst, src, init):
        lst = [src[i] for i in range(16)]
        if init:
            p.e(f'v_max3_f32 {dst}, {lst[0]}, {lst[1]}, {lst[2]}'); lst = lst[3:]
        while len(lst) >= 2:
            p.e(f'v_max3_f32 {dst}, {dst}, {lst[0]}, {lst[1]}'); lst = lst[2:]
        if lst: p.e(f'v_max_f32 {dst}, {dst}, {lst[0]}')
    def setc(q, m):
        p.e(f'v_mov_b32 {vu2}, {m}\nv_permlane32_swap_b32 {vu2}, {m}\nv_max_f32 {m}, {m}, {vu2}')
        for i in range(16): p.e(f'v_sub_f32 {C[q][i]}, 0, {m}')
    rowmax(vu0, R('v', 64, 16), True); rowmax(vu1, R('v', 80, 16), True)
    setc(0, vu0)
    p.e(qk(Sx[0], 0, 0, 0, C[0])); p.e(qk(Sx[0], 0, 0, 1, C[0]))
    setc(1, vu1)
    p.e(f"""
    v_bfe_u32 {vu0}, {vl}, 2, 1
    v_bfe_u32 {vu1}, {vl}, 1, 1
    v_mov_b32 {vu2}, 0x3f803f80
    v_or_b32 {vidx}, {vu0}, {vu1}
    v_cmp_eq_u32 vcc, 0, {vidx}
    v_xor_b32 {vu0}, 1, {vu0}
    v_or_b32 {vidx}, {vu0}, {vu1}
    v_cndmask_b32 {ones[0]}, 0, {vu2}, vcc
    v_cndmask_b32 {ones[1]}, 0, {vu2}, vcc
    v_cmp_eq_u32 vcc, 0, {vidx}
    v_and_b32 {vu0}, 1, {vl}
    v_mov_b32 {vu1}, 0xeeeeeeee
    v_cndmask_b32 {ones[2]}, 0, {vu2}, vcc
    v_cndmask_b32 {ones[3]}, 0, {vu2}, vcc
    v_cmp_eq_u32 vcc, 0, {vu0}
    v_mov_b32 {vu2}, 0x44444444
    v_add_u32 {vdma}, {s_p}, {vl16}
    v_cndmask_b32 {vidx}, {vu1}, {vu2}, vcc
    """)
    for q in range(2):
        for i in range(2): p.e(f'v_accvgpr_write_b32 {L[q][i]}, 0')
    p.e(f's_lshl_b32 {s_t0}, {s_h}, 18')
    srd(p, skv, pws, off_s=s_t0, off_imm=WS_KV, size=262144)

    def flag(val, tag, wait):
        return [f'v_mov_b32 {vu0}, {val}', f'WAITTAG {wait}', Ins(f'buffer_store_dword {vu0}, {vflag}, {sfl}, 0 offen sc1', tag)]
    def kvdma(m0line, tag, count=True):
        return [m0line] + [Ins(f'buffer_load_dwordx4 {vdma}, {skv}, {s_okv} offen offset:{i * 1024}{lm2} lds', tag) for i in range(4)] + \
               [f's_add_u32 {s_okv}, {s_okv}, 16384', f's_and_b32 {s_okv}, {s_okv}, 0x3ffff'] + \
               ([f's_sub_u32 {s_left}, {s_left}, 1', f's_cselect_b32 {skv[2]}, 0, {skv[2]}'] if count else [])
    NW = 4
    def wload(s):
        if PT: return [Ins(f'buffer_load_dwordx4 {Wb[s % 4][nb]}, {vl16}, {swd}, {s_oa} offen offset:{nb * 1024}{lm2}', f'D{s % NW}') for nb in range(2)]
        return [f's_add_u32 m0, {s_wb}, {(s % NW) * 2048}'] + \
               [Ins(f'buffer_load_dwordx4 {vdd[hh]}, {swd}, {s_ow} offen offset:{hh * 1024}{lm2} lds', f'D{s % NW}') for hh in range(2)] + [f's_add_u32 {s_ow}, {s_ow}, 32768']
    def hload(s):
        return [Ins(f'buffer_load_dwordx4 {Ab[s % NB][r]}, {vA[r]}, {sA}, {s_oa} offen{lm2}', f'A{s % NB}') for r in range(4)] + [f's_add_u32 {s_oa}, {s_oa}, 4096']
    def wrd(base, off, nb):
        if PT: return []
        return [f'ds_read_b64_tr_b16 {Wf[nb][2*s:2*s+2]}, {base[nb]} offset:{off + s * 512}' for s in range(2)]
    def gm(st, nb, tb, zero=False):
        return f'v_mfma_f32_32x32x16_bf16 {acc3[nb][tb]}, {Wb[st % 4][nb] if PT else Wf[nb]}, {Ab[st % NB][tb]}, {"0" if zero else acc3[nb][tb]}'
    def oload(t, m0line, tag):
        return [m0line] + [Ins(f'buffer_load_dwordx4 {vdo[hh]}, {swo}, {s_oo} offen offset:{hh * 1024} lds', tag) for hh in range(2)] + [f's_add_u32 {s_oo}, {s_oo}, 32768']

    zplan = {}
    def period(j, loop=False, item=None, misc=(), pre=(), zero=False):
        s = Sx[j % 2]
        E = [f'v_exp_f32 {s[i]}, {s[i]}' for i in range(16)]
        jn = j + 1
        m1 = qk(Sx[jn % 2], jn // 2, jn % 2, 0, C[jn % 2]); m2 = qk(Sx[jn % 2], jn // 2, jn % 2, 1, None)
        rd = kread((j + 1) // 2 + 1, loop) if j % 2 == 1 else vread(j // 2, loop)
        first = (j == 0 and not loop)
        zo = (j <= 2 and not loop)
        c7 = [] if first else [cvt(j - 1, 7)]
        p0 = [] if first else [pv(j - 1, 0, zo)]; p1 = [] if first else [pv(j - 1, 1)]; rs = [] if first else [rsum((j - 1) % 2)]
        V_ = [E[0]] + c7
        for i in range(7): V_ += [E[2 * i + 1], E[2 * i + 2], cvt(j, i)]
        V_.append(E[15])
        if item is None:
            p.add(V_[:1 + len(c7)]); V_ = V_[1 + len(c7):]
            if AW and j % 2 == 1: p.e('s_waitcnt lgkmcnt(0)')
            z_ = [] if loop else zplan.get(j, [])
            M = [m1] + z_[:1] + [m2] + p0 + z_[1:] + p1 + rs; G = []
        else:
            st, nb = item
            G = [gm(st, nb, tb if nb == 0 else 3 - tb, zero) for tb in range(4)]
            M = [G[0], m1, G[1], m2, G[2]] + p0 + [G[3]] + p1 + rs
        if loop and exp_ & 1: M = [x for x in M if x not in G]
        if loop and exp_ & 8: misc = [x for x in misc if not (isinstance(x, Ins) and x.tag and x.tag.startswith('D'))]
        misc = list(misc)
        for k in range(len(misc)):
            if isinstance(misc[k], str) and ' m0,' in misc[k]:
                q_ = k
                while q_ > 0 and not (isinstance(misc[q_ - 1], Ins) and misc[q_ - 1].text.endswith(' lds')): q_ -= 1
                misc.insert(q_, misc.pop(k))
        items = []
        for x in list(pre) + rd + list(misc):
            if items and isinstance(items[-1][-1], str) and items[-1][-1].split()[0] in ('WAITTAG', 's_cbranch_vccnz', 'v_cmp_gt_u32', 's_getpc_b64', 's_cmp_eq_u32'): items[-1].append(x)
            else: items.append([x])
        isvm = lambda it: any((y.text if isinstance(y, Ins) else y).startswith('buffer') for y in it)
        n = len(M); last = n - 1 if M[-1].startswith('v_smfmac') else n
        cost = lambda x: 8 if x.startswith('v_exp') else 4
        occ = [32 if '32x32' in x else 16 for x in M]
        iss = [8 if 'smfmac' not in x else SMC for x in M]
        ic = [sum((VMC if (y.text if isinstance(y, Ins) else y).startswith('buffer') else 4) for y in it if not (isinstance(y, str) and y.endswith(':'))) for it in items]
        vc = [cost(x) for x in V_]
        tailc = (4 if item is not None else 12 + (4 if j % 2 == 0 else 0))
        if item is None: iss[-1] += 0
        import functools
        @functools.lru_cache(None)
        def best(g, a_, b_, pv_):
            if g == n: return (0, ()) if (a_ == len(items) and b_ == len(V_)) else (10 ** 9, ())
            res = (10 ** 9, ())
            lo = 0
            if g == 0 and item is not None: lo = 1 + len(c7)
            for na in range(0, len(items) - a_ + 1):
                if g == 0 and na < min(len(items), npre): continue
                nv_ = sum(map(isvm, items[a_:a_ + na]))
                ca = sum(ic[a_:a_ + na])
                if g < n - 1 and ca > 64: break
                pen = (VPEN * max(0, nv_ - 1) + (VPEN // 2 if (nv_ and pv_) else 0)) + (0.01 * g * na)
                for nb_ in range(lo, len(V_) - b_ + 1):
                    f_ = iss[g] + ca + sum(vc[b_:b_ + nb_]) + (tailc if g == n - 1 else 0)
                    if f_ > 120 and g < n - 1: break
                    r_ = best(g + 1, a_ + na, b_ + nb_, nv_ > 0)
                    t_ = max(occ[g], f_) + pen + r_[0] + 0.001 * (f_ - occ[g]) ** 2
                    if t_ < res[0]: res = (t_, ((na, nb_),) + r_[1])
            return res
        npre = len([1 for it in items if any(y in pre for y in it if isinstance(y, str))])
        tot_, asg = best(0, 0, 0, False)
        assert tot_ < 10 ** 8
        if dbg == -1: print(j, loop, item, round(tot_), len(items), sum(map(isvm, items)))
        a_ = b_ = 0
        for q_, m_ in enumerate(M):
            p.add([m_])
            na, nb_ = asg[q_]
            for it in items[a_:a_ + na]: p.add(it)
            p.add(V_[b_:b_ + nb_]); a_ += na; b_ += nb_

    setup1 = lines(f"""
        s_lshl_b32 {s_okv}, {s_mb}, 15
        s_add_u32 {s_okv}, {s_okv}, 32768
        s_and_b32 {s_okv}, {s_okv}, 0x3ffff
        s_movk_i32 {s_left}, {13 - (PA // 8 + (0 if KS == 2 else 1))}
        v_and_b32 {vu1}, 31, {vl}
        v_lshlrev_b32 {vpa}, 2, {vu1}
        s_lshl_b32 {s_t2}, {s_h}, 7
        s_add_u32 {s_t2}, {s_t2}, 4096""")
    poll_kv = f'buffer_load_dword {vpoll[0]}, {vpa}, {sfl}, {s_t2} offen sc1'
    setup2 = lines(f"""
        s_and_b32 {s_t0}, s2, 7
        s_lshr_b32 {s_t1}, s2, 3
        s_lshr_b32 {s_mt}, {s_t0}, 1
        s_lshl_b32 {s_mt}, {s_mt}, 2
        s_and_b32 {s_nt}, {s_t0}, 1
        s_lshl_b32 {s_nt}, {s_nt}, 3
        s_and_b32 {s_t0}, {s_t1}, 3
        s_add_u32 {s_mt}, {s_mt}, {s_t0}
        s_lshr_b32 {s_t0}, {s_t1}, 2
        s_add_u32 {s_nt}, {s_nt}, {s_t0}
        s_lshl_b32 {s_t0}, {s_nt}, 7
        s_lshl_b32 {s_t1}, {s_w}, 19
        s_add_u32 {s_t1}, {s_t1}, {s_t0}
        s_add_u32 {swo[0]}, {pwo[0]}, {s_t1}
        s_addc_u32 {swo[1]}, {pwo[1]}, 0
        s_sub_u32 {swo[2]}, {D * D * 2}, {s_t1}
        s_mov_b32 {swo[3]}, 0x00020000
        s_add_u32 {swd[0]}, {pwd[0]}, {s_t0}
        s_addc_u32 {swd[1]}, {pwd[1]}, 0
        s_sub_u32 {swd[2]}, {F * D * 2}, {s_t0}
        s_mov_b32 {swd[3]}, 0x00020000
        s_mul_i32 {s_t0}, {s_mt}, {288 * 4096}
        s_add_u32 {s_t0}, {s_t0}, {WS_A}
        s_add_u32 {sA[0]}, {pws[0]}, {s_t0}
        s_addc_u32 {sA[1]}, {pws[1]}, 0
        s_mov_b32 {sA[2]}, {288 * 4096}
        s_mov_b32 {sA[3]}, 0x00020000
        s_mul_i32 {s_oa}, {s_w}, {56 * 4096}
        s_lshl_b32 {s_ow}, {s_oa}, 3
        s_mov_b32 {s_oo}, 0
        s_mul_i32 {s_wb}, {s_w}, 20480
        s_add_u32 {s_wb}, {s_wb}, {W0}
        v_lshrrev_b32 {vu1}, 3, {vl}
        v_and_b32 {vu2}, 2, {vu1}
        v_lshlrev_b32 {vu2}, 1, {vu2}
        v_and_b32 {vdd[1]}, 7, {vl}
        v_xor_b32 {vu2}, {vu2}, {vdd[1]}
        v_lshlrev_b32 {vu2}, 4, {vu2}
        v_lshl_add_u32 {vdd[0]}, {vu1}, 11, {vu2}
        v_add_u32 {vdd[1]}, {8 * 2048 - 1024}, {vdd[0]}
        v_lshrrev_b32 {vu1}, 5, {vl}
        v_lshl_add_u32 {vdo[0]}, {vu1}, 13, {vdd[0]}
        v_add_u32 {vdo[1]}, {4 * 2048 - 1024}, {vdo[0]}
        v_lshl_add_u32 {vwr[0]}, {vu1}, 10, {s_wb}
        v_bfe_u32 {vu1}, {vl}, 2, 2
        v_lshl_add_u32 {vwr[0]}, {vu1}, 7, {vwr[0]}
        v_bfe_u32 {vu1}, {vl}, 3, 1
        v_lshl_add_u32 {vwr[0]}, {vu1}, 6, {vwr[0]}
        v_bfe_u32 {vu1}, {vl}, 4, 1
        v_lshl_add_u32 {vwr[0]}, {vu1}, 5, {vwr[0]}
        v_and_b32 {vu1}, 3, {vl}
        v_lshl_add_u32 {vwr[0]}, {vu1}, 3, {vwr[0]}
        v_xor_b32 {vwr[1]}, 64, {vwr[0]}
        v_mov_b32 {vkB if PA == 48 else vkA}, {vl16}
        v_add_u32 {vkA if PA == 48 else vkB}, 32768, {vl16}
        s_nop 0
        s_nop 0""")
    setup2 = setup2[:-2]
    setup1 += [f's_add_u32 {s_h1}, {s_hb}, 4096', f's_add_u32 {s_h2}, {s_hb}, 8192']
    if PT:
        setup2 += lines(f"""
        s_lshr_b32 {s_t0}, {s_nt}, 1
        s_mul_i32 {s_t0}, {s_t0}, {224 * 4096}
        s_and_b32 {s_t1}, {s_nt}, 1
        s_lshl_b32 {s_t1}, {s_t1}, 11
        s_add_u32 {s_t0}, {s_t0}, {s_t1}
        s_add_u32 {s_t0}, {s_t0}, {WS_T}
        s_add_u32 {swd[0]}, {pws[0]}, {s_t0}
        s_addc_u32 {swd[1]}, {pws[1]}, 0
        s_mov_b32 {swd[2]}, {224 * 4096 - 2048}""")
    for r in range(4):
        setup2 += [f's_add_u32 {s_t0}, {s_w}, {r + 1}', f's_and_b32 {s_t0}, {s_t0}, 3', f's_lshl_b32 {s_t0}, {s_t0}, 10', f'v_add_u32 {vA[r]}, {s_t0}, {vl16}']
    setup3 = lines(f"""
        v_and_b32 {vu1}, 7, {vl}
        v_bfe_u32 {vu2}, {vl}, 4, 1
        v_lshl_add_u32 {vo}, {vu2}, 3, {vu1}
        v_bfe_u32 {vu2}, {vl}, 3, 1
        v_lshl_add_u32 {vo}, {vu2}, 4, {vo}
        v_lshrrev_b32 {vu2}, 3, {vo}
        v_lshlrev_b32 {vu2}, 7, {vu2}
        v_lshl_add_u32 {vsc[0]}, {vu1}, 2, {vu2}
        v_lshlrev_b32 {vo}, 4, {vo}
        v_lshrrev_b32 {vu2}, 5, {vl}
        v_lshl_add_u32 {vo}, {vu2}, 9, {vo}
        v_bfe_u32 {vu2}, {vl}, 3, 2
        v_lshlrev_b32 {vu2}, 7, {vu2}
        v_lshl_add_u32 {vsc[1]}, {vu1}, 2, {vu2}
        s_lshl_b32 {s_t0}, {s_mb}, 1
        s_add_u32 {s_t0}, {s_t0}, {s_wr}
        s_mul_i32 {s_t0}, {s_t0}, 288
        s_lshl_b32 {s_t1}, {s_h}, 1
        s_add_u32 {s_t0}, {s_t0}, {s_t1}
        s_add_u32 {s_t0}, {s_t0}, 224
        s_lshl_b32 {s_t0}, {s_t0}, 12
        s_lshl_b32 {s_t1}, {s_wc}, 11
        s_add_u32 {s_t0}, {s_t0}, {s_t1}
        s_add_u32 {s_ob}, {s_t0}, {WS_A}
        s_add_u32 {s_ob2}, {s_ob}, 4096
        s_mov_b32 {s_thr}, {hex(f32bits(2.0 ** 40 if not force_slow else 0.5))}
        v_lshlrev_b32 {vpa}, 3, {vl}
        s_lshr_b32 {s_t2}, {s_mt}, 1
        s_lshl_b32 {s_t2}, {s_t2}, 9""")
    poll_h = f'buffer_load_dwordx2 {vpoll}, {vpa}, {sfl}, {s_t2} offen sc1'
    cond2 = [f'v_min_u32 {vu1}, {vpoll[0]}, {vpoll[1]}', f'v_cmp_gt_u32 vcc, 2, {vu1}']
    og_loads = [f's_lshl_b32 {s_t0}, {s_mt}, 11', f's_add_u32 {s_t0}, {s_t0}, {WS_G + 32}']
    for r in range(4):
        og_loads += [f'v_lshrrev_b32 {vu1}, 10, {vA[r]}', f'v_lshl_add_u32 {vu1}, {vu1}, 9, {vsc[1]}', f'buffer_load_dword {vog[r]}, {vu1}, {sws}, {s_t0} offen']
    g_loads = [f's_lshl_b32 {s_t0}, {s_mb}, 2', f's_add_u32 {s_t0}, {s_t0}, {s_w}', f's_lshl_b32 {s_t0}, {s_t0}, 10', f's_add_u32 {s_t0}, {s_t0}, {WS_G}'] + \
              [f'buffer_load_dword {vg[q]}, {vsc[0]}, {sws}, {s_t0} offen offset:{q * 512}' for q in range(2)]
    NE = 16 if PT else 12
    def oslot(t):
        if t >= NE: return vw2, (t - NE) * 2048, f's_add_u32 m0, {s_p}, {(t - NE) * 2048}'
        k = t if t < 4 else t - 4
        n0 = 0 if PT else NW
        if k < 10 - n0: return vwr, (n0 + k) * 2048, f's_add_u32 m0, {s_wb}, {(n0 + k) * 2048}'
        return vw3, (k - 10 + n0) * 2048, f's_add_u32 m0, {s_p}, {QS + (k - 10 + n0) * 2048}'
    WO = [R('a', aa.p + 8 * t, 8) for t in range(4)] + [R('a', 8 * t, 8) for t in range(11)] + [Sx[0][0:8]]
    assert Wf[0].a == 88 and aa.p + 32 <= 256
    vw3 = [va2(), va2()]
    def woread(t):
        base, off, _ = oslot(t)
        return [f'ds_read_b64_tr_b16 {WO[t][4*nb+2*s_:4*nb+2*s_+2]}, {base[nb]} offset:{off + s_ * 512}' for nb in range(2) for s_ in range(2)]
    vw2 = [C[0][0], C[0][1]]
    setup3 += [f's_add_u32 {s_t0}, {s_p}, {QS}', f's_sub_u32 {s_t0}, {s_t0}, {s_wb}', f'v_add_u32 {vw3[0]}, {s_t0}, {vwr[0]}', f'v_add_u32 {vw3[1]}, {s_t0}, {vwr[1]}']
    early_o = [oload(t, oslot(t)[2], 'WO') for t in range(NE)]
    assert PM % 2 == 0 and DW <= 3 and DA <= 7
    plan = {j: [] for j in range(PA)}; prej = {j: [] for j in range(PA)}
    plan[0] += setup1
    plan[1] += setup2[:21]; plan[2] += setup2[21:38]; plan[3] += setup2[38:55]; plan[4] += setup2[55:]; plan[KP] = (plan[KP] + [poll_kv]) if KP == 0 else ([poll_kv] + plan[KP])
    plan[KC] += check([f'v_cmp_gt_u32 vcc, 1, {vpoll[0]}'], [poll_kv], 'kv')
    d = kvdma(f's_add_u32 m0, {s_p}, 32768', 'KV0', False); plan[KC] += d[:3]; plan[KC + 1] += d[3:]
    d = kvdma(f's_add_u32 m0, {s_p}, 49152', 'KV1', False); plan[KC + 2] += d[:3]; plan[KC + 3] += d[3:]
    for i in range(5 if PA == 48 else 3):
        j = 13 + 8 * i
        prej[j] += [f'WAITTAG KV{i % 2}', 's_barrier']
        d = kvdma(f's_add_u32 m0, {s_p}, {(i % 4) * 16384}', f'KV{i % 2}', False)
        if KS == 2 and j == PA - 3: plan[j] += d[:2]; plan[j + 2] += d[:1] + [d[2]]
        elif KS and j >= PM: plan[j] += d[:3]; plan[j + 2] += d[:1] + d[3:]
        else: plan[j] += d[:5]; plan[j + 1] += d[5:]
    busy = (13, 21, 29, 37, 45)
    j = float(H0)
    for k in range(12):
        while int(j) in busy: j = int(j) + 1.0
        plan[int(j)].append(Ins(f'buffer_store_dwordx4 {hreg[k]}, {vl16}, {sws}, {(s_hb, s_h1, s_h2)[k // 4]} offen offset:{(k % 4) * 1024}{st_mod}', 'HST'))
        jl = int(j); j += HP
    plan[10] += setup3[:10]; plan[11] += setup3[10:20]; plan[12] += setup3[20:]
    def nextfree(j):
        while j in busy: j += 1
        return j
    jf = nextfree(jl + FG); plan[jf] += flag(2, 'FL', 'HST')
    ramp = []
    for i in range(max(DA, DW)):
        if i < DW: ramp += wload(i)
        if i < DA: ramp += hload(i)
    groups = []; curg = []; nv = 0
    for x in ramp:
        if isinstance(x, str) and ' m0,' in x and nv + 2 > RP: groups.append(curg); curg = []; nv = 0
        if isinstance(x, Ins):
            if nv >= RP and not x.text.endswith(' lds'): groups.append(curg); curg = []; nv = 0
            nv += 1
        curg.append(x)
    groups.append(curg)
    jc = PM - 1; k = len(groups)
    while k:
        jc -= 1
        if jc not in busy: k -= 1
    jp = jc - PG
    assert jp > jf, (jp, jf)
    if PT and GP:
        vgl = R('v', 224, 16)
        poll_all = [f'buffer_load_dwordx4 {vgl[4 * i:4 * i + 4]}, {vl16}, {sfl}, 0 offen offset:{i * 1024} sc1' for i in range(4)]
        cond_all = [f'v_min3_u32 {vu1}, {vgl[0]}, {vgl[1]}, {vgl[2]}'] + [f'v_min3_u32 {vu1}, {vu1}, {vgl[i]}, {vgl[i + 1]}' for i in range(3, 15, 2)] + \
                   [f'v_min_u32 {vu1}, {vu1}, {vgl[15]}', f'v_cmp_gt_u32 vcc, 2, {vu1}']
        plan[jp] += poll_all
    else: plan[jp] += [poll_h]
    jj = E0
    for t in range(0, 4, 2):
        jj = nextfree(jj + 1); plan[jj] += early_o[t] + early_o[t + 1]
    jj = nextfree(jj + 3)
    for t in range(4):
        plan[jj] += (['WAITTAG WO'] if t == 0 else []) + woread(t); jj = nextfree(jj + 1)
    for t in range(4, NE):
        plan[jj] += (['s_waitcnt lgkmcnt(0)'] if t == 4 else []) + early_o[t]
        if t % 2 == 1 or jj < jl: jj = nextfree(jj + 1)
    assert jj <= jc + 1, (jj, jc)
    if PT and GP: plan[jc] += check(cond_all, poll_all, 'h')
    else: plan[jc] += check(cond2, [poll_h], 'h') + [f's_lshl_b32 {s_t2}, {s_mb}, 9', poll_h]
    jj = jc
    for g_ in groups:
        plan[jj] += g_; jl2 = jj; jj = nextfree(jj + 1)
    assert jl2 <= PM - 2, (jl2, PM)
    plan[PM - 1] = ['WAITTAG D0 A0'] + wrd(vwr, 0, 0) + plan[PM - 1]
    NZ = PM == PA
    if NZ:
        plan[PM - 3] += og_loads
        plan[PM - 1] += check(cond2, [poll_h], 'g') + g_loads
        plan[jf + 1] += [f'v_accvgpr_write_b32 {Wf[1][i]}, 0' for i in range(4)]
        for k in range(8): zplan.setdefault(jf + 2 + k // 2, []).append(f'v_mfma_f32_32x32x16_bf16 {acc3[k // 4][k % 4]}, {Wf[1]}, {Wf[1]}, 0')
        assert jf + 6 < PM
    else:
        plan[PM + 2] += og_loads
        plan[PM + 4] += ([] if (PT and GP) else check(cond2, [poll_h], 'g')) + g_loads
    if PA == 48: plan[PA - 1] += [f's_xor_b32 {s_p}, {s_p}, 32768']
    vcp = va2()
    vtp = [va2() for _ in range(3)]
    L0 = (PA - PM) // 2 + (128 - PA) // 2
    nA = (56 - L0 - DA) * 4; nW = (56 - L0 - DW) * 4; nO = (16 - NE) * 4
    if TP1:
        plan[26] += lines(f"""
        s_and_b32 {s_t0}, {s_nt}, 7
        s_mul_i32 {s_t0}, {s_t0}, {nA}
        s_mul_i32 {s_t1}, {s_w}, {56 * 32}
        s_add_u32 {s_t0}, {s_t0}, {s_t1}
        s_add_u32 {s_t0}, {s_t0}, {(L0 + DA) * 32}
        v_add_u32 {vu1}, {s_t0}, {vl}
        v_lshlrev_b32 {vu1}, 7, {vu1}
        v_cmp_lt_u32 {smask}, {vl}, {nA}
        v_cndmask_b32 {vtp[0]}, 2.0, {vu1}, {smask}""")
        plan[27] += lines(f"""
        s_and_b32 {s_t1}, {s_mt}, 3
        s_mul_i32 {s_t0}, {s_t1}, {nO}
        s_add_u32 {s_t0}, {s_t0}, {NE * 16}
        v_add_u32 {vu1}, {s_t0}, {vl}
        v_lshlrev_b32 {vu1}, 11, {vu1}
        v_cmp_lt_u32 {smask}, {vl}, {nO}
        v_cndmask_b32 {vtp[2]}, 2.0, {vu1}, {smask}
        s_mul_i32 {s_t0}, {s_t1}, {nW}
        s_mul_i32 {s_t1}, {s_w}, {56 * 16}
        s_add_u32 {s_t0}, {s_t0}, {s_t1}
        s_add_u32 {s_t0}, {s_t0}, {(L0 + DW) * 16}
        v_add_u32 {vu1}, {s_t0}, {vl}
        v_lshlrev_b32 {vu1}, 11, {vu1}
        v_cmp_lt_u32 {smask}, {vl}, {nW}
        v_cndmask_b32 {vtp[1]}, 2.0, {vu1}, {smask}""")
    if CP2:
        plan[PM - 3] += [f's_getpc_b64 {scp[0:2]}', f'{name}_pct:', f's_and_b32 {scp[1]}, {scp[1]}, 0xffff', f's_mov_b32 {scp[2]}, {name}_slow-{name}_pct',
                         f's_mov_b32 {scp[3]}, 0x00020000', f's_lshr_b32 {s_t0}, s2, 3', f's_lshl_b32 {s_t0}, {s_t0}, 2', f's_add_u32 {s_t0}, {s_t0}, {s_w}',
                         f's_lshl_b32 {s_t0}, {s_t0}, 7', f's_add_u32 {s_t0}, {s_t0}, {name}_tail-{name}_pct', f'v_lshl_add_u32 {vcp}, {vl}, 14, {s_t0}']
    def mixed(j, st, nb, loop, misc=(), pre=(), zero=False):
        dw = wload(st + DW); da = hload(st + DA)
        if loop and exp_ & 32:
            dw = [Ins(f'buffer_load_dwordx4 a[{224 + 8 * (st % 4) + 4 * hh}:{227 + 8 * (st % 4) + 4 * hh}], {vl16}, {swd}, {s_ow} offen offset:{hh * 1024}', f'D{(st + DW) % NW}') for hh in range(2)] + dw[3:]
            if nb == 0: period(j, loop, (st, 0), misc=dw + da[:1] + list(misc), pre=pre, zero=zero)
            else:
                p.e(f'WAITTAG D{(st + 1) % NW} A{(st + 1) % NB} LGKM0')
                period(j, loop, (st, 1), misc=da[1:] + list(misc), pre=pre, zero=zero)
            return
        if nb == 0:
            period(j, loop, (st, 0), misc=wrd(vwr, (st % NW) * 2048, 1) + dw + da[:AS] + list(misc), pre=pre, zero=zero)
        else:
            p.e(f'WAITTAG D{(st + 1) % NW} A{(st + 1) % NB} LGKM0')
            period(j, loop, (st, 1), misc=wrd(vwr, ((st + 1) % NW) * 2048, 0) + da[AS:] + list(misc), pre=pre, zero=zero)
    p.seg('partA')
    for j in range(PA):
        if ptrace == -1 and j in (0, 1, 5, 7, 9, 13, 15, 21, jf, jf + 1, jc, jc + 1, PM): pf.trace()
        if j < PM: period(j, misc=plan[j], pre=prej[j])
        else: mixed(j, (j - PM) // 2, j % 2, False, misc=plan[j], pre=prej[j], zero=(j < PM + 2))
    if ptrace == -1: pf.trace()
    ST0 = (PA - PM) // 2
    pf.stamp(4)
    p.e(f's_mov_b32 {s_cnt}, {(128 - PA) // 16}')
    p.seg('loop')
    p.e(f'{name}_loop:')
    for j in range(16):
        misc = []; pre = []
        if j in (5, 13):
            pre = [f'WAITTAG KV{1 if j == 5 else 0}', 's_barrier']
        if KS == 0 and j in (5, 6, 13, 14):
            d = kvdma(f's_xor_b32 m0, {s_p}, 49152' if j < 8 else f's_mov_b32 m0, {s_p}', 'KV1' if j < 8 else 'KV0')
            misc = d[:5] if j in (5, 13) else d[5:]
        if KS == 1 and j in (5, 7, 13, 15):
            d = kvdma(f's_xor_b32 m0, {s_p}, 49152' if j < 8 else f's_mov_b32 m0, {s_p}', 'KV1' if j < 8 else 'KV0')
            misc = d[:3] if j in (5, 13) else d[:1] + d[3:]
        if KS == 2 and j % 2 == 1:
            first_ = 5 <= j < 13
            d = kvdma(f's_xor_b32 m0, {s_p}, 49152' if first_ else (f's_mov_b32 m0, {s_p}' if j >= 13 else f's_xor_b32 m0, {s_p}, 32768'), 'KV1' if first_ else 'KV0')
            k = ((j - 5) // 2) % 4
            misc = d[:1] + [d[1 + k]] + (d[5:] if k == 3 else [])
        if TP1 and j == 2: misc = misc + [f's_cmp_eq_u32 {s_cnt}, 1', f's_cselect_b32 {s_t0}, 0, 2.0']
        if TP1 and j in (4, 6, 8): misc = misc + [Ins(f'buffer_load_dword {vpd}, {vtp[j // 2 - 2]}, {(sA, swd, swo)[j // 2 - 2]}, {s_t0} offen', 'pf')]
        if j == 9 and CP2: misc = [Ins(f'buffer_load_dword {vpd}, {vcp}, {scp}, 0 offen', 'pf')]
        if j == 15: misc = misc + [f's_xor_b32 {s_p}, {s_p}, 32768', f'v_xor_b32 {vkA}, 0x8000, {vkA}', f'v_xor_b32 {vkB}, 0x8000, {vkB}']
        if ptrace == -3:
            p.e(f's_memtime {s_pt[2:4]}\ns_waitcnt lgkmcnt(0)\nv_writelane_b32 {vtr}, {s_pt[2]}, {j}')
        mixed(j, ST0 + j // 2, j % 2, True, misc=misc, pre=pre)
    p.e(f's_sub_u32 {s_cnt}, {s_cnt}, 1\ns_cmp_lg_u32 {s_cnt}, 0\ns_cbranch_scc1 {name}_loop')

    p.seg('tail')
    p.e(f'{name}_tail:')
    pf.stamp(5)
    if ptrace == -2: pf.trace()
    p.add([cvt(15, 7), pv(15, 0), pv(15, 1), rsum(1)])
    def lsum():
        p.e(f"""
        v_accvgpr_read_b32 {vsc[0]}, {L[0][0]}
        v_accvgpr_read_b32 {vu0}, {L[0][1]}
        v_accvgpr_read_b32 {vsc[1]}, {L[1][0]}
        v_accvgpr_read_b32 {vu1}, {L[1][1]}
        v_add_f32 {vsc[0]}, {vsc[0]}, {vu0}
        v_add_f32 {vsc[1]}, {vsc[1]}, {vu1}
        """)
    lsum()
    p.e(f"""
    v_cmp_nle_f32 vcc, {vsc[0]}, {s_thr}
    v_cmp_nle_f32 {smask}, {vsc[1]}, {s_thr}
    s_or_b64 vcc, vcc, {smask}
    s_cbranch_vccnz {name}_slow
    """)
    p.seg('epi')
    p.e(f'{name}_epi:')
    LATE0 = ST0 + (128 - PA) // 2
    vs2 = [P[1][0:2], P[1][2:4]]
    vq_ = []
    o_next = NE
    for st_ in range(LATE0, 56):
        if st_ + DW < 56: vq_.append((st_ + DW - NW + 1, wload(st_ + DW)))
        if st_ + DA < 56: vq_.append((st_ + DA - NB + 1, hload(st_ + DA)))
        if o_next < 16: vq_.append((0, oload(o_next, oslot(o_next)[2], 'WO'))); o_next += 1
    assert o_next == 16
    cur = []
    def onevm(st):
        nonlocal cur
        if not cur and vq_ and vq_[0][0] <= st: cur = list(vq_.pop(0)[1])
        if not cur: return False
        while cur:
            x = cur.pop(0); p.add([x])
            if isinstance(x, Ins): break
        while cur and not any(isinstance(y, Ins) for y in cur): p.add([cur.pop(0)])
        return True
    p.e(f"""
    v_rcp_f32 {vsc[0]}, {vsc[0]}
    v_rcp_f32 {vsc[1]}, {vsc[1]}
    s_mul_i32 {s_p}, {s_wr}, 49152
    s_lshl_b32 {s_t0}, {s_wc}, 13
    s_add_u32 {s_p}, {s_p}, {s_t0}
    s_barrier
    v_mul_f32 {vs2[0][0]}, {vsc[0]}, {vg[0]}
    v_mul_f32 {vs2[1][0]}, {vsc[1]}, {vg[1]}
    v_mov_b32 {vs2[0][1]}, {vs2[0][0]}
    v_mov_b32 {vs2[1][1]}, {vs2[1][0]}
    """)
    for q in range(2):
        for f in range(2):
            t_ = Sx[q][8 * f:8 * f + 8]
            if EV: onevm(LATE0)
            for i in range(8): p.e(f'v_accvgpr_read_b32 {t_[i]}, {O[q][8*f+i]}')
            if EV > 1: onevm(LATE0)
            for i in range(4): p.e(f'v_pk_mul_f32 {t_[2*i:2*i+2]}, {t_[2*i:2*i+2]}, {vs2[q]}')
            for i in range(4): p.e(f'v_cvt_pk_bf16_f32 {t_[i]}, {t_[2*i]}, {t_[2*i+1]}')
            p.e(f'buffer_store_dwordx4 {t_[0:4]}, {vo}, {sws}, {(s_ob, s_ob2)[f]} offen offset:{q * 1024}{st_mod}', 'OST')
    vout = C[0][4]; vrw = [C[0][5], C[0][6], C[0][7]]; vrr = C[0][8]
    sk = [s_h1, s_h2, s_hb, s_left]
    vA2 = [[vA[r], Sx[1][3 * r], Sx[1][3 * r + 1], Sx[1][3 * r + 2]] for r in range(4)]
    late2 = lines(f"""
        s_sub_u32 {s_t0}, {s_p}, {s_wb}
        v_add_u32 {vw2[0]}, {s_t0}, {vwr[0]}
        v_add_u32 {vw2[1]}, {s_t0}, {vwr[1]}
        s_lshl_b32 {s_t0}, {s_mt}, 18
        s_lshl_b32 {s_t1}, {s_nt}, 7
        s_add_u32 {s_t0}, {s_t0}, {s_t1}
        s_add_u32 {sout[0]}, {pout[0]}, {s_t0}
        s_addc_u32 {sout[1]}, {pout[1]}, 0
        s_sub_u32 {sout[2]}, {S * D * 2}, {s_t0}
        s_mov_b32 {sout[3]}, 0x00020000
        v_and_b32 {vu1}, 31, {vl}
        s_lshl_b32 {s_t0}, {s_w}, 16
        v_lshl_add_u32 {vout}, {vu1}, 11, {s_t0}
        v_lshrrev_b32 {vu1}, 5, {vl}
        v_lshl_add_u32 {vout}, {vu1}, 4, {vout}
        v_bfe_u32 {vu1}, {vl}, 1, 3
        v_and_b32 {vu2}, 1, {vl}
        v_lshlrev_b32 {vu2}, 2, {vu2}
        v_lshl_add_u32 {vpa}, {vu1}, 4, {vu2}
        s_lshr_b32 {s_t2}, {s_mt}, 1
        s_lshl_b32 {s_t2}, {s_t2}, 9
        s_lshl_b32 {s_t0}, {s_w}, 7
        s_add_u32 {s_t2}, {s_t2}, {s_t0}
        s_and_b32 {s_t0}, {s_mt}, 1
        s_lshl_b32 {s_t0}, {s_t0}, 3
        s_add_u32 {s_t2}, {s_t2}, {s_t0}
        s_mul_i32 {s_t0}, {s_w}, 24576
        v_add_u32 {vrr}, {s_t0}, {vl16}
        s_lshl_b32 {s_t1}, {s_w}, 16
        s_add_u32 {s_t1}, {s_t1}, {224 * 4096}""")
    late2[6:8] = [late2[6:8]]
    for r in range(3):
        late2 += [f'v_lshrrev_b32 {vu1}, 10, {vA[r]}', f'v_mul_u32_u24 {vu1}, 24576, {vu1}', f'v_add_u32 {vu1}, {(2 - r) * 8192}, {vu1}', f'v_add_u32 {vrw[r]}, {vu1}, {vl16}']
    for i in range(4):
        late2 += [f's_add_u32 {sk[i]}, {s_t1}, {i * 16384}']
    for r in range(4):
        for i in range(1, 4): late2.append(f'v_add_u32 {vA2[r][i]}, {i * 4096}, {vA[r]}')
    vtw = [C[1][i] for i in range(4)]; vtr_ = C[1][4]; sf = [0, s_ow, s_oo, s_ob]
    fin_setup = lines(f"""
        s_lshl_b32 {s_t0}, {s_w}, 12
        s_add_u32 {s_t0}, {s_t0}, {QS}
        v_and_b32 {vu1}, 31, {vl}
        v_lshl_add_u32 {vtw[0]}, {vu1}, 7, {s_t0}
        v_lshrrev_b32 {vu2}, 5, {vl}
        v_xor_b32 {vu2}, {vu2}, {vl}
        v_and_b32 {vu2}, 7, {vu2}
        v_lshl_add_u32 {vtw[0]}, {vu2}, 4, {vtw[0]}
        v_xor_b32 {vtw[1]}, 32, {vtw[0]}
        v_xor_b32 {vtw[2]}, 64, {vtw[0]}
        v_xor_b32 {vtw[3]}, 0x60, {vtw[0]}
        v_lshrrev_b32 {vu1}, 3, {vl}
        v_xor_b32 {vu2}, {vu1}, {vl}
        v_and_b32 {vu2}, 7, {vu2}
        v_lshl_add_u32 {vtr_}, {vu1}, 7, {s_t0}
        v_lshl_add_u32 {vtr_}, {vu2}, 4, {vtr_}
        v_and_b32 {vu2}, 7, {vl}
        v_lshlrev_b32 {vu2}, 4, {vu2}
        s_lshl_b32 {s_t0}, {s_w}, 16
        v_lshl_add_u32 {vout}, {vu1}, 11, {s_t0}
        v_add_u32 {vout}, {vout}, {vu2}""") + [f's_mov_b32 {sf[i]}, {i * 16384}' for i in range(1, 4)]
    poll_o = f'buffer_load_dword {vpoll[0]}, {vpa}, {sfl}, {s_t2} offen sc1'
    AB = [Ab[i // 4][i % 4] for i in range(32)]
    abfree = [48 + i // 4 for i in range(32)]
    if PT:
        AB = [Ab[6 + i // 4][i % 4] for i in range(8)]; abfree = [0] * 8
        for b in range(4):
            AB += Ab[b] + Wb[b]; abfree += [52 + b] * 6
    def aload(i):
        r, t = divmod(i, 16)
        return f'buffer_load_dwordx4 {AB[i % 32]}, {vA2[r][t % 4]}, {sA}, {sk[t // 4]} offen{lm2}'
    a_next = 0; side = list(late2); checked = False
    for st in range(LATE0, 56):
        if ptrace == -2: pf.trace()
        n0 = wrd(vwr, (st % NW) * 2048, 1)
        n1 = ([f'WAITTAG D{(st + 1) % NW} A{(st + 1) % NB}'] + wrd(vwr, ((st + 1) % NW) * 2048, 0)) if st < 55 else []
        if st == LATE0 + 1: side = [flag(3, 'FL', 'OST')] + side
        if st == LATE0 + 2: side += [x for t in range(4, NE) for x in woread(t)]
        for c in range(8):
            nb, tb = divmod(c, 4)
            p.e(gm(st, nb, tb if nb == 0 else 3 - tb))
            if c == 0: p.add(n0)
            if c == 4: p.add(n1)
            if st == LATE0 + OC - PO and c == 1:
                assert not any(isinstance(y, str) and (str(vpa) + ',' in y or str(s_t2) + ',' in y) for y in side)
                p.e(poll_o)
            if st == LATE0 + OC and c == 1:
                p.add(check([f'v_cmp_gt_u32 vcc, 3, {vpoll[0]}'], [poll_o], 'o')); checked = True
                if TP2:
                    p.e(f's_and_b32 {s_t0}, {s_nt}, 7\ns_lshl_b32 {s_t0}, {s_t0}, 13\ns_add_u32 {s_t0}, {s_t0}, {sk[0]}\nv_lshlrev_b32 {vu1}, 7, {vl}')
                    p.add([Ins(f'buffer_load_dword {vpd}, {vu1}, {sA}, {s_t0} offen', 'pf')])
            if onevm(st): pass
            elif checked and a_next < AL and abfree[a_next] < st and st >= 56 - ALS:
                assert not any(y in late2 for y in side)
                p.e(aload(a_next)); a_next += 1
            for _ in range(3 if st < LATE0 + 2 else 2):
                if side:
                    x = side.pop(0); p.add(x if isinstance(x, list) else [x])
    assert not cur and not vq_ and checked and not side
    if ptrace == -2: pf.trace()
    pf.stamp(6)
    def scale(r): return [f'v_mul_f32 {acc3[nb][r][i]}, {acc3[nb][r][i]}, {vog[r]}' for nb in range(2) for i in range(16)]
    p.e('WAITTAG WO')
    rds = [x for t in range(NE, 16) for x in woread(t)]
    for k, x in enumerate(scale(0)):
        p.e(x)
        if k % 4 == 1 and rds: p.e(rds.pop(0))
        if k % 8 == 3 and a_next < AL + 4: p.e(aload(a_next)); a_next += 1
    side = []
    for k, x in enumerate(scale(1)):
        side.append(x)
        if rds: side.append(rds.pop(0))
    assert not rds
    def rdpart(sl, dst): return [f'ds_read_b128 {acc3[n_][dst][4*j:4*j+4]}, {vrr} offset:{sl * 8192 + (n_ * 4 + j) * 1024}' for n_ in range(2) for j in range(4)]
    def addpart(src): return [f'v_add_f32 {acc3[n_][0][e]}, {acc3[n_][0][e]}, {acc3[n_][src][e]}' for n_ in range(2) for e in range(16)]
    wr = []; dens = 2
    for i in range(64):
        r, t = divmod(i, 16)
        if ptrace == -2 and i % 8 == 0: pf.trace()
        for nb in range(2):
            if nb == 0:
                if i == 16: side += scale(2)
                if i == 16 + 2:
                    p.e('s_waitcnt lgkmcnt(0)\ns_barrier')
                if i == 32:
                    assert not side
                    side += scale(3); dens = 3 if FT else 2
                if i == 33 and FT:
                    side += fin_setup
                if i == 32 + 11:
                    assert not wr and not side
                    p.e('s_waitcnt lgkmcnt(0)\ns_barrier')
                    side += rdpart(2, 0) + rdpart(1, 1) + [None] * 4 + addpart(1); dens = 3
                if i == 48 + 7:
                    assert not wr and not side
                    p.e('s_waitcnt lgkmcnt(0)\ns_barrier')
                    side += rdpart(0, 2) + [None] * 6 + addpart(2)
            p.e(f'v_mfma_f32_32x32x16_bf16 {acc3[nb][r]}, {WO[t][4*nb:4*nb+4]}, {AB[i % 32]}, {acc3[nb][r]}')
            if a_next < 64 and a_next <= i + 30 and (nb == 0 or a_next < i + ALM): p.e(aload(a_next)); a_next += 1
            if wr and t >= 2 and (nb == 1 or r == 3): p.e(wr.pop(0))
            for _ in range(dens):
                if side:
                    x = side.pop(0)
                    if x: p.e(x)
        if t == 15 and r < 3:
            assert not wr
            wr = [f'ds_write_b128 {vrw[r]}, {acc3[nb][r][4*j:4*j+4]} offset:{(nb * 4 + j) * 1024}' for nb in range(2) for j in range(4)]
    fin = side
    assert a_next == 64
    pf.stamp(7)
    p.add([x for x in fin if x])
    for nb in range(2):
        a_ = acc3[nb][3]
        for jp in range(2):
            for i in range(4 * jp, 4 * jp + 4): p.e(f'v_pk_add_f32 {a_[2*i:2*i+2]}, {a_[2*i:2*i+2]}, {acc3[nb][0][2*i:2*i+2]}')
            o = Sx[0][8 + 4 * jp:12 + 4 * jp] if nb == 0 else P[0][4 * jp:4 * jp + 4]
            for i in range(4): p.e(f'v_cvt_pk_bf16_f32 {o[i]}, {a_[8 * jp + 2 * i]}, {a_[8 * jp + 2 * i + 1]}')
            p.e(f'v_permlane32_swap_b32 {o[0]}, {o[2]}\nv_permlane32_swap_b32 {o[1]}, {o[3]}')
            if FT: p.e(f'ds_write_b128 {vtw[2 * nb + jp]}, {o}')
            else: p.e(f'buffer_store_dwordx4 {o}, {vout}, {sout}, 0 offen offset:{nb * 64 + jp * 32}' + ('', ' sc1', ' nt', ' sc0 sc1')[OUTM])
    if FT:
        p.e('s_waitcnt lgkmcnt(0)')
        for i in range(4): p.e(f'ds_read_b128 {acc3[0][1][4*i:4*i+4]}, {vtr_} offset:{i * 1024}')
        for i in range(4): p.e(f'buffer_store_dwordx4 {acc3[0][1][4*i:4*i+4]}, {vout}, {sout}, {sf[i]} offen' + ('', ' sc1', ' nt', ' sc0 sc1')[OUTM])
    pf.stamp(8)
    pf.flush(s_w, sws, vl, vu0)
    if PRB or PRA:
        p.e(f"""
        v_readlane_b32 {s_t0}, {vtr}, {44 + 2 * PRA}
        v_readlane_b32 {s_t1}, {vtr}, {44 + 2 * PRB}
        v_readlane_b32 {s_t2}, {vtr}, 62
        s_nop 4
        s_sub_u32 {s_t0}, {s_t1}, {s_t0}
        s_min_u32 {s_t0}, {s_t0}, 20000
        s_lshl_b32 {s_t0}, {s_t0}, {PRS}
        s_mov_b32 {s_cnt}, 200000
        {name}_probe:
        s_memrealtime {s_pt[0:2]}
        s_waitcnt lgkmcnt(0)
        s_sub_u32 {s_t1}, {s_pt[0]}, {s_t2}
        s_cmp_ge_u32 {s_t1}, {s_t0}
        s_cbranch_scc1 {name}_probe_done
        s_sub_u32 {s_cnt}, {s_cnt}, 1
        s_cmp_lg_u32 {s_cnt}, 0
        s_cbranch_scc1 {name}_probe
        {name}_probe_done:
        """)
    if dbg > 0:
        p.e(f"""
        v_readlane_b32 {s_t0}, {vtr}, 44
        v_readlane_b32 {s_t1}, {vtr}, 45
        v_and_b32 {vu1}, 1, {vl}
        v_cmp_eq_u32 vcc, 0, {vu1}
        v_mov_b32 {vu1}, {s_t0}
        v_mov_b32 {vu2}, {s_t1}
        v_cndmask_b32 {vu1}, {vu2}, {vu1}, vcc
        v_sub_u32 {vu1}, {vtr}, {vu1}
        v_subrev_u32 {vu2}, 46, {vl}
        v_lshlrev_b32 {vu2}, 2, {vu2}
        v_cmp_gt_u32 vcc, 64, {vu2}
        v_cndmask_b32 {vu2}, 2.0, {vu2}, vcc
        s_mov_b32 {skv[0]}, {pdbg[0]}
        s_mov_b32 {skv[1]}, {pdbg[1]}
        s_movk_i32 {skv[2]}, 64
        s_lshl_b32 {s_t0}, s2, 2
        s_add_u32 {s_t0}, {s_t0}, {s_w}
        s_cmp_eq_u32 {s_t0}, {dbg - 1}
        s_cselect_b32 {s_t0}, 0, 2.0
        buffer_store_dword {vu1}, {vu2}, {skv}, {s_t0} offen
        """)
    p.e('s_endpgm')

    p.seg('slow0')
    p.e(f'{name}_slow:')
    p.e(f"""
    s_waitcnt vmcnt(0) lgkmcnt(0)
    v_mov_b32 {vu0}, 0xff800000
    v_mov_b32 {vu1}, 0xff800000
    s_mov_b32 {s_okv}, 0
    s_mov_b32 {skv[2]}, 262144
    """)
    p.seg('slow1')
    p.e(f'{name}_slow1:')
    for f in range(2): p.e(f'buffer_load_dwordx4 {K[0][4*f:4*f+4]}, {vl16}, {skv}, {s_okv} offen offset:{f * 1024}')
    for q in range(2):
        for f in range(2): p.e(qk(Sx[q], 0, q, f, '0'))
    rowmax(vu0, Sx[0], False); rowmax(vu1, Sx[1], False)
    p.e(f's_add_u32 {s_okv}, {s_okv}, 4096\ns_cmp_lt_u32 {s_okv}, 262144\ns_cbranch_scc1 {name}_slow1')
    p.seg('slow2')
    setc(0, vu0); setc(1, vu1)
    for q in range(2):
        for i in range(16): p.e(f'v_accvgpr_write_b32 {O[q][i]}, 0')
        for i in range(4): p.e(f'v_accvgpr_write_b32 {L[q][i]}, 0')
    p.e(f's_mov_b32 {s_okv}, 0')
    p.seg('slow3')
    p.e(f'{name}_slow3:')
    for f in range(2): p.e(f'buffer_load_dwordx4 {K[0][4*f:4*f+4]}, {vl16}, {skv}, {s_okv} offen offset:{f * 1024}')
    for f in range(2): p.e(f'buffer_load_dwordx4 {V[0][4*f:4*f+4]}, {vl16}, {skv}, {s_okv} offen offset:{2048 + f * 1024}')
    for q in range(2):
        for f in range(2): p.e(qk(Sx[q], 0, q, f, C[q]))
    for q in range(2):
        for i in range(16): p.e(f'v_exp_f32 {Sx[q][i]}, {Sx[q][i]}')
        for i in range(8): p.e(cvt(q, i))
        p.add([pv(q, 0), pv(q, 1), rsum(q)])
    p.e(f's_add_u32 {s_okv}, {s_okv}, 4096\ns_cmp_lt_u32 {s_okv}, 262144\ns_cbranch_scc1 {name}_slow3')
    p.seg('slow4')
    lsum()
    p.e(f's_branch {name}_epi')
    for lab, cond, reload_ in spins:
        p.seg(lab)
        p.e(f'{lab}_spin:\ns_mov_b32 {s_cnt if lab.endswith("cnt") else s_spin}, {SPIN}\n{lab}_again:\ns_sleep 2')
        p.add(reload_)
        p.e('s_waitcnt vmcnt(0)\ns_nop 1')
        p.add(cond)
        r_ = s_cnt if lab.endswith('cnt') else s_spin
        p.e(f's_nop 4\ns_cbranch_vccz {lab}_ok\ns_sub_u32 {r_}, {r_}, 1\ns_cmp_lg_u32 {r_}, 0\ns_cbranch_scc1 {lab}_again\ns_branch {lab}_ok')
    p.seg('end')
    p.e(f'{name}_end:\ns_endpgm')
    mid = ['join', 'partA', 'loop', 'loop', 'tail']
    slow = ['slow0', 'slow1', 'slow1', 'slow2', 'slow3', 'slow3', 'slow4']
    traces = []
    for wc in range(2):
        for x in ([],):
            traces.append(['pro'] + x + [f'c{wc}a', f'c{wc}l1', f'c{wc}l2', f'c{wc}l1', f'c{wc}l2', f'c{wc}l1', f'c{wc}last'] + mid + ['epi'])
    traces.append(mid + slow + ['epi'])
    for lab, _, _ in spins: traces.append([lab])
    p.auto_waits(traces)
    nn = p.hazards(traces)
    return kernel_header(name) + p.text(), kernel_desc(name), dict(nops=nn, v=va.p, a=aa.p, s=max(sa.p, s_hi))

if __name__ == '__main__':
    import sys
    NAME = 'gated_mix__softmax_full_mha__glu_gated_bilinear__prompt'
    REF = f'cdna_kernels/{NAME}.s.ref'
    dst = sys.argv[1]
    kw = {a.split('=')[0]: float(a.split('=')[1]) if '.' in a else int(a.split('=')[1]) for a in sys.argv[2:] if '=' in a}
    t, d, info = gen_fused(NAME + '_kernel', prof='prof' in sys.argv, force_slow='slow' in sys.argv, **kw)
    print(info, file=sys.stderr)
    head = [l for l in open(REF).read().split('\n') if l.startswith(';') and '@launch' not in l]
    doc = '''; One persistent launch, 256 workgroups x 4 waves (one wave per SIMD, 512 registers, 160 KiB LDS).
;   phase 1  x[256 rows] @ [wq_h wk_h wv_h | w_gate 112 cols | w_up 112 cols], 16x16x32 MFMA, LDS-DMA double buffer.
;   phase 2  softmax(QK^T)V for the block's 256 queries (32x32x16 MFMA), interleaved with the down projection of a
'''
    out = '\n'.join(head) + f'\n; @launch grid=(256,1,1) block=(256,1,1) lds={F_LDS}\n' + doc + '.amdgcn_target "amdgcn-amd-amdhsa--gfx950"\n' + t + d
    open(dst, 'w').write(out)
```

```python
from gen_common import *

X0, X1, W0, W1, QS = 0, 32768, 65536, 106496, 147456
F_LDS = 163840
WS_FL = 33 << 20
WS_T = 36 << 20
DBG_CNT = 64
SPIN = 40000

def gen_fused(name, prof=False, pfd=3, cq=8, cg=6.5, cx=4, NB=8, DA=4, DW=3, RP=6, PM=36, HP=1.25, force_slow=False, ptrace=0, dbg=0, exp_=0, VSP=2, PFP=18, OC=8, KP=1, H0=2, ROT=0, CPF=1, OUTM=1, CP0=1, CP2=0, FG=3, TLB=0, EV=1, DL=6, PT=0, GP=0, NOPF=0, XP2=0, PRS=2, TT=1, TP1=0, TP2=0, AL=16, ALS=2, ALM=18, FT=1, PA=48, AS=1, KS=2, PK=0, PKR=1, AW=1, KF=100, KC=5, FOFF=0, S1P=10, MWT=0, LM1=0, LM2=0, PO=3, LP=0, PRE=-1, PF0=0, PD0=3, xpf=1, F0=0, FS=1.0, GD=2, SMC=16, VMC=8, VPEN=16, MW=1, PRA=0, PRB=0, PG=3, E0=11, st_mod=' sc1'):
    pfm = 1
    kv_mod = '' if exp_ & 64 else st_mod
    lm1 = ('', ' sc1', ' nt', ' sc0')[LM1]; lm2 = ('', ' sc1', ' nt', ' sc0')[LM2]
    p = Prog()
    sa = Alloc('s', 4, 102); va = Alloc('v', 1, 256); aa = Alloc('a', 0, 256)
    ptr = sa(16, 4)
    px, pqkv, pwo, pwg, pwu, pwd, pgw = ptr[0:2], ptr[2:4], ptr[4:6], ptr[8:10], ptr[10:12], ptr[12:14], ptr[14:16]
    pod = sa(4, 4); pout, pdbg = pod[0:2], pod[2:4]
    pws = sa(2); smask = sa(2)
    sws = sa(4); sfl = sa(4); sdbg = sa(4)
    s_mb, s_h, s_w, s_wr, s_wc, s_t0, s_t1, s_t2, s_cnt, s_tr, s_hb = [sa() for _ in range(11)]
    s_pt = sa(4, 2)
    s_base = sa.p
    sx = sa(4); sq = sa(4); sg = sa(4); spf = sa(4); sp2 = sa(4); sp3 = sa(4)
    s_c0, s_c1, s_ox, s_oq, s_og, s_pfo, s_pfs, s_gs, s_grp, s_ano = [sa() for _ in range(10)]
    s_mx, s_mw, s_msk = sa(), sa(), sa()
    sp4 = sa(4)
    s_hi = sa.p

    vl, vpd, vflag, vtr, vflk = [va() for _ in range(5)]
    v_base = va.p
    pf = Prof2(p, prof, s_pt, vtr, s_tr)
    vdx = [va() for _ in range(8)]; vdq = [va() for _ in range(2)]; vdq.append(vdq[0]); vdg = [va() for _ in range(7)]
    vxr = [va() for _ in range(2)]; vqr = [va() for _ in range(2)]; vgr = [va() for _ in range(2)]
    vt0, vt1, vt2, vt3, vpf = [va() for _ in range(5)]
    vcnt = va(); vwo = va()
    vtmp = va(28, 4)
    assert vtmp.a == 36
    xlo = [[aa(8, 4) for _ in range(4)] for _ in range(2)]; xhi = [aa(8, 4) for _ in range(4)]
    def xf(st, m, ks): return (xlo[st][m] if m < 4 else xhi[m - 4])[4 * ks:4 * ks + 4]
    NSLOT = 4; DIST = 3
    wf = [aa(8, 4) for _ in range(NSLOT)]
    acc = [[None] * 8 for _ in range(10)]
    for n in [0, 1, 6, 7, 8, 9, 2, 3, 4, 5]:
        for m in range(8):
            acc[n][m] = va(4, 4) if va.p + 4 <= 256 else aa(4, 4)

    def lines(s): return [x.strip() for x in s.strip().split('\n')]
    def dma_x(st):
        L = []
        for i in range(8):
            pre = [f's_add_u32 m0, {s_mx}, {(X0, X1)[st] + (i // 4) * 4096}'] if i % 4 == 0 else []
            L.append((pre, Ins(f'buffer_load_dwordx4 {vdx[i]}, {sx}, {s_ox} offen offset:{(i % 4) * 1024}{lm1} lds', f'S{st}')))
        return L
    def dma_w(st):
        L = []
        for i in range(10):
            pre = [f's_add_u32 m0, {s_mw}, {(W0, W1)[st] + (i // 4) * 4096}'] if i % 4 == 0 else []
            v, sr, so = (vdq[i - 7], sq, s_oq) if i >= 7 else (vdg[i], sg, s_og)
            L.append((pre, Ins(f'buffer_load_dwordx4 {v}, {sr}, {so} offen offset:{(i % 4) * 1024}{lm1} lds', f'S{st}')))
        return L
    def emit(lst):
        for pre, ins in lst:
            p.add(pre); p.add([ins])
    adv = [f's_add_u32 {s_oq}, {s_oq}, {64 * 6144}', f's_add_u32 {s_og}, {s_og}, {64 * 7168}', f's_add_u32 {s_ox}, {s_ox}, 128']

    p.seg('pro')
    p.e(f"""
    s_cmp_ge_u32 s2, 256
    s_cbranch_scc1 {name}_end
    """)
    if ptrace == 3:
        p.e(f's_memtime {s_pt[2:4]}\ns_waitcnt lgkmcnt(0)\ns_mov_b32 {s_hb}, {s_pt[2]}')
    if PRA == -1:
        p.e(f's_memrealtime {s_pt[2:4]}\ns_waitcnt lgkmcnt(0)\ns_mov_b32 {s_hb}, {s_pt[2]}')
    p.e(f"""
    s_load_dwordx16 {ptr}, s[0:1], 0
    s_load_dwordx4 {pod}, s[0:1], 64
    s_load_dwordx2 {pws}, s[0:1], 80
    v_lshrrev_b32 {vt0}, 6, v0
    v_and_b32 {vl}, 63, v0
    s_lshr_b32 {s_t1}, s2, 3
    v_readfirstlane_b32 {s_w}, {vt0}
    s_and_b32 {s_mb}, {s_t1}, 7
    s_and_b32 {s_t0}, s2, 7
    s_lshr_b32 {s_t1}, {s_t1}, 3
    s_lshl_b32 {s_h}, {s_t0}, 2
    s_add_u32 {s_h}, {s_h}, {s_t1}
    s_lshr_b32 {s_wr}, {s_w}, 1
    s_and_b32 {s_wc}, {s_w}, 1
    """)
    if CP0:
        p.e(f"""
        s_getpc_b64 {sp3[0:2]}
        {name}_pcs:
        s_and_b32 {sp3[1]}, {sp3[1]}, 0xffff
        s_mov_b32 {sp3[2]}, {name}_join-{name}_pcs
        s_mov_b32 {sp3[3]}, 0x00020000
        s_lshr_b32 {s_t0}, s2, 3
        s_lshl_b32 {s_t0}, {s_t0}, 2
        s_add_u32 {s_t0}, {s_t0}, {s_w}
        s_lshl_b32 {s_t0}, {s_t0}, 7
        v_lshl_add_u32 {vwo}, {vl}, 14, {s_t0}
        """)
        p.add([Ins(f'buffer_load_dword {vpd}, {vwo}, {sp3}, 0 offen', 'pf')])
    vxp, vgp = vtmp[0], vtmp[1]
    if XP2: p.e(f'v_mov_b32 {vtmp[3]}, 2.0')
    p.e(f"""
    v_and_b32 {vt0}, 7, {vl}
    v_lshrrev_b32 {vt1}, 3, {vl}
    v_mul_u32_u24 {vt2}, 86, {vt1}
    v_lshrrev_b32 {vt2}, 8, {vt2}
    v_mad_i32_i24 {vt1}, {vt2}, -3, {vt1}
    v_lshl_add_u32 {vt0}, {vt2}, 6, {vt0}
    s_lshl_b32 {s_t0}, {s_mb}, 3
    v_add_u32 {vt0}, {s_t0}, {vt0}
    s_cmp_eq_u32 {s_w}, 3
    s_movk_i32 {s_c0}, 7168
    s_cmov_b32 {s_c0}, 6144
    s_movk_i32 {s_c1}, 108
    s_cmov_b32 {s_c1}, 2048
    v_mul_u32_u24 {vt0}, {s_c0}, {vt0}
    v_mad_u32_u24 {vxp}, {vt1}, {s_c1}, {vt0}
    v_cmp_gt_u32 vcc, 48, {vl}
    s_lshl_b32 {s_t0}, {s_t1}, 17
    v_lshl_add_u32 {vt0}, {vl}, 11, {s_t0}
    v_cndmask_b32 {vxp}, 2.0, {vxp}, vcc
    s_cmp_eq_u32 {s_w}, 0
    s_cselect_b64 vcc, -1, 0
    v_cndmask_b32 {vxp}, {vxp}, {vt0 if not XP2 else vtmp[3]}, vcc
    """)
    if XP2:
        p.e(f"""
        s_lshl_b32 {s_c0}, {s_w}, 15
        s_add_u32 {s_t0}, {s_t0}, {s_c0}
        v_lshrrev_b32 {vt0}, 1, {vl}
        v_lshl_add_u32 {vt0}, {vt0}, 11, {s_t0}
        v_and_b32 {vt1}, 1, {vl}
        v_lshl_add_u32 {vt0}, {vt1}, 7, {vt0}
        v_cmp_gt_u32 vcc, 32, {vl}
        v_cndmask_b32 {vtmp[4]}, 2.0, {vt0}, vcc
        """)
    x_addr = lines(f"""
    v_lshrrev_b32 {vt0}, 3, {vl}
    v_and_b32 {vt1}, 7, {vl}
    v_lshrrev_b32 {vt2}, 4, {vl}
    v_xor_b32 {vt1}, {vt1}, {vt2}
    v_lshlrev_b32 {vt3}, 11, {vt0}
    s_lshl_b32 {s_c0}, {s_w}, 17
    v_add_u32 {vt3}, {s_c0}, {vt3}
    v_lshl_add_u32 {vdx[0]}, {vt1}, 4, {vt3}
    v_xor_b32 {vt1}, 4, {vt1}
    v_lshl_add_u32 {vdx[1]}, {vt1}, 4, {vt3}
    v_add_u32 {vdx[1]}, {16384 - 1024}, {vdx[1]}
    s_lshl_b32 {s_mx}, {s_w}, 13
    s_mov_b32 {s_ox}, 0""") + [f'v_add_u32 {vdx[i]}, {(i - i % 2) * 16384 - (i % 4 - i % 2) * 1024}, {vdx[i % 2]}' for i in range(2, 8)]
    q_addr = lines(f"""
    v_lshrrev_b32 {vt0}, 2, {vl}
    v_and_b32 {vt2}, 2, {vt2}
    v_and_b32 {vt1}, 3, {vl}
    v_xor_b32 {vt1}, {vt1}, {vt2}
    s_lshl_b32 {s_c0}, {s_w}, 4
    v_add_u32 {vt0}, {s_c0}, {vt0}
    v_mul_u32_u24 {vt0}, 6144, {vt0}
    v_lshl_add_u32 {vdq[1]}, {vt1}, 4, {vt0}
    v_add_u32 {vdq[0]}, 1024, {vdq[1]}
    s_mul_i32 {s_mw}, {s_w}, 10240
    s_mov_b32 {s_oq}, 0
    s_mov_b32 {s_og}, 0""")
    if PRE >= 0: p.add(x_addr + q_addr)
    def gu_offsets():
        L = [lines(f"""
        s_mul_i32 {s_t0}, {s_wc}, {32 * 7168}
        s_movk_i32 {s_c0}, 6944
        s_movk_i32 {s_c1}, 28672
        v_mul_u32_u24 {vt3}, 4682, {vl}
        v_lshl_add_u32 {vtmp[2]}, {vl}, 4, {s_t0}""")]
        for j in range(7):
            tj = vt3; q_ = []
            if j:
                q_.append(f'v_add_u32 {vt0}, {64 * j * 4682}, {vt3}'); tj = vt0
            q_ += lines(f"""
            v_bfe_u32 {vt1}, {tj}, 18, 1
            v_bfe_u32 {vt2}, {tj}, 19, 1
            v_lshrrev_b32 {vt0}, 16, {tj}
            v_sub_u32 {vt1}, {vt1}, {vt2}
            v_mad_u32_u24 {vdg[j]}, {vt0}, {s_c0}, {vtmp[2]}
            v_mad_i32_i24 {vdg[j]}, {vt1}, {s_c1}, {vdg[j]}""")
            if j == 3: q_.append(f'v_add_u32 {vtmp[2]}, 4096, {vtmp[2]}')
            L.append(q_)
        return L
    gu = gu_offsets()
    if PRE >= 1:
        for q_ in gu: p.add(q_)
    PD = pfd
    gpf_addr = lines(f"""
        s_cmp_eq_u32 {s_w}, 0
        s_cselect_b32 {s_grp}, 12, 14
        s_lshl_b32 {s_pfs}, {s_grp}, 15
        s_cmp_eq_u32 {s_w}, 3
        s_cselect_b32 {s_grp}, 8, {s_grp}
        s_cselect_b32 {s_pfs}, 0x80, {s_pfs}
        s_cselect_b32 {s_ano}, 11, 7
        s_mul_i32 {s_t1}, {s_grp}, s2
        v_and_b32 {vt1}, 15, {vl}
        v_add_u32 {vt0}, {s_t1}, {vt1}
        v_lshlrev_b32 {vpf}, {s_ano}, {vt0}
        v_lshrrev_b32 {vt0}, 4, {vl}
        v_mul_lo_u32 {vt0}, {vt0}, {s_pfs}
        v_add_u32 {vgp}, {vt0}, {vpf}
        v_cmp_gt_u32 vcc, {s_grp}, {vt1}
        v_cmp_gt_u32 {smask}, {16 * (PD0 - 1)}, {vl}
        s_and_b64 {smask}, {smask}, vcc
        v_cndmask_b32 {vgp}, 2.0, {vgp}, {smask}
        v_cmp_gt_u32 vcc, {s_grp}, {vl}
        s_mul_i32 {s_pfo}, {s_pfs}, {PD0}
        v_cndmask_b32 {vpf}, 2.0, {vpf}, vcc""")
    gpf_issue = lines(f"""
        s_cmp_eq_u32 {s_w}, 0
        s_cselect_b64 {spf[0:2]}, {pqkv}, {pwg}
        s_cmp_eq_u32 {s_w}, 2
        s_cselect_b64 {spf[0:2]}, {pwu}, {spf[0:2]}
        s_cmp_eq_u32 {s_w}, 3
        s_cselect_b64 {spf[0:2]}, {px}, {spf[0:2]}
        s_lshl_b32 {spf[2]}, {s_grp}, 19""") + [Ins(f'buffer_load_dword {vpd}, {vgp}, {spf}, {s_pfs} offen', 'pf')]
    def pfetch():
        if NOPF & 1: return []
        return [Ins(f'buffer_load_dword {vpd}, {vpf}, {spf}, {s_pfo} offen', 'pf'), f's_add_u32 {s_pfo}, {s_pfo}, {s_pfs}']
    def pfetch_d():
        if NOPF & 2: return []
        return [Ins(f'buffer_load_dword {vpd}, {vt3}, {sp2}, {s_c1} offen', 'pf'), f's_add_u32 {s_c1}, {s_c1}, {1024 * DL * 128}']
    rd_addr = lines(f"""
    v_and_b32 {vt0}, 15, {vl}
    v_lshrrev_b32 {vt1}, 4, {vl}
    v_lshrrev_b32 {vt2}, 1, {vt0}
    v_xor_b32 {vt2}, {vt1}, {vt2}
    s_lshl_b32 {s_t0}, {s_wr}, 14
    v_lshl_add_u32 {vt3}, {vt0}, 7, {s_t0}
    v_lshl_add_u32 {vxr[0]}, {vt2}, 4, {vt3}
    v_xor_b32 {vxr[1]}, 64, {vxr[0]}
    v_and_b32 {vt3}, 3, {vt0}
    v_lshlrev_b32 {vt3}, 3, {vt3}
    v_lshrrev_b32 {vt0}, 2, {vt0}
    v_lshrrev_b32 {vt2}, 1, {vt1}
    v_and_b32 {vt1}, 1, {vt1}
    v_mul_u32_u24 {vqr[0]}, 10240, {vt2}
    v_mul_u32_u24 {vqr[1]}, {512 + 32}, {vt1}
    v_add3_u32 {vqr[0]}, {vqr[0]}, {vqr[1]}, {vt3}
    v_lshl_add_u32 {vqr[0]}, {vt0}, 6, {vqr[0]}
    s_lshl_b32 {s_t0}, {s_wc}, 10
    s_sub_u32 {s_t0}, {W0 + 8192}, {s_t0}
    v_add_u32 {vqr[0]}, {s_t0}, {vqr[0]}
    v_xor_b32 {vqr[1]}, 32, {vqr[0]}
    v_lshl_add_u32 {vt0}, {vt1}, 2, {vt0}
    v_lshl_add_u32 {vt0}, {vt2}, 4, {vt0}
    v_mul_u32_u24 {vt0}, 224, {vt0}
    s_mul_i32 {s_t0}, {s_wc}, 96
    s_add_u32 {s_t0}, {s_t0}, {W0}
    v_add3_u32 {vgr[0]}, {vt0}, {vt3}, {s_t0}
    v_add_u32 {vgr[1]}, 20480, {vgr[0]}""")
    if PRE >= 2 or PF0: p.add(gpf_addr)
    if PRE >= 3: p.add(rd_addr)
    p.e(f"""
    s_lshl_b32 {s_t0}, {s_mb}, 19
    s_lshl_b32 {s_t1}, {s_h}, 6
    s_mul_i32 {s_t2}, {s_h}, 224
    s_mov_b32 {sx[3]}, 0x00020000
    s_mov_b32 {sq[3]}, 0x00020000
    s_mov_b32 {sg[3]}, 0x00020000
    s_mov_b32 {spf[3]}, 0x00020000
    s_sub_u32 {sx[2]}, {S * D * 2}, {s_t0}
    s_sub_u32 {sq[2]}, {D * 3072 * 2}, {s_t1}
    s_sub_u32 {sg[2]}, {D * F * 2}, {s_t2}
    s_waitcnt lgkmcnt(0)
    """)
    pf.stamp(0)
    pf.trace_init(vtr, s_tr)
    if PRA == -1: p.e(f'v_writelane_b32 {vtr}, {s_hb}, 42')
    if ptrace == 3:
        p.e(f'v_writelane_b32 {vtr}, {s_hb}, 0\ns_mov_b32 {s_tr}, 1')
        pf.trace()
    p.e(f"""
    s_add_u32 {sx[0]}, {px[0]}, {s_t0}
    s_addc_u32 {sx[1]}, {px[1]}, 0
    s_add_u32 {sq[0]}, {pqkv[0]}, {s_t1}
    s_addc_u32 {sq[1]}, {pqkv[1]}, 0
    s_cmp_ge_u32 {s_w}, 2
    s_cselect_b64 {sg[0:2]}, {pwu}, {pwg}
    s_add_u32 {sg[0]}, {sg[0]}, {s_t2}
    s_addc_u32 {sg[1]}, {sg[1]}, 0
    s_cmp_eq_u32 {s_w}, 3
    s_cselect_b64 {spf[0:2]}, {sq[0:2]}, {sg[0:2]}
    s_cselect_b32 {spf[2]}, {sq[2]}, {sg[2]}
    s_cmp_eq_u32 {s_w}, 0
    s_cselect_b64 {spf[0:2]}, {sx[0:2]}, {spf[0:2]}
    s_cselect_b32 {spf[2]}, {sx[2]}, {spf[2]}
    """)
    if XP2: p.add([Ins(f'buffer_load_dword {vpd}, {vtmp[4]}, {sx}, 0 offen', 'pf')])
    if xpf: p.add([Ins(f'buffer_load_dword {vpd}, {vxp}, {spf}, 0 offen', 'pf')])
    if PF0: p.add(gpf_issue)
    if ptrace > 0: pf.trace()
    if PRE < 0: p.add(x_addr)
    emit(dma_x(0))
    if ptrace > 0: pf.trace()
    if PRE < 0: p.add(q_addr)
    w0 = dma_w(0)
    p.e(f's_add_u32 m0, {s_mw}, {W0 + 4096}')
    emit(w0[7:])
    if PRE < 1: p.add(gu[0])
    for j in range(7):
        if PRE < 1: p.add(gu[j + 1])
        emit([w0[j]])
    p.add(adv)
    if ptrace > 0: pf.trace()
    emit((dma_w(1) + dma_x(1))[:S1P])
    if PRE < 2 and not PF0 and not NOPF & 4: p.add(gpf_addr)
    if not PF0 and not NOPF & 4: p.add(gpf_issue)
    if PRE < 3: p.add(rd_addr)
    gx = [vtmp[4 * i:4 * i + 4] for i in range(4)]; gw = [vtmp[16:20], vtmp[20:24]]; t = vtmp[24:28]; z = [vt0, vt1]
    flag_setup = [[f's_add_u32 {sfl[0]}, {pws[0]}, {WS_FL}', f's_addc_u32 {sfl[1]}, {pws[1]}, 0']] + lines(f"""
    s_movk_i32 {sfl[2]}, 8192
    s_mov_b32 {sfl[3]}, 0x00020000
    s_mov_b32 {sws[0]}, {pws[0]}
    s_mov_b32 {sws[1]}, {pws[1]}
    s_mov_b32 {sws[2]}, {WS_SIZE}
    s_mov_b32 {sws[3]}, 0x00020000
    s_mov_b32 {sp2[3]}, 0x00020000
    s_lshl_b32 {s_t0}, {s_mb}, 5
    s_add_u32 {s_t0}, {s_t0}, {s_h}
    s_lshl_b32 {s_gs}, {s_t0}, 7
    s_lshl_b32 {s_t0}, {s_t0}, 2
    s_add_u32 {s_t0}, {s_t0}, {s_w}
    s_lshl_b32 {s_t0}, {s_t0}, 2
    v_mov_b32 {vt0}, {s_t0}
    v_cmp_eq_u32 vcc, 0, {vl}
    v_mov_b32 {vt3}, 0
    v_cndmask_b32 {vflag}, 2.0, {vt0}, vcc
    s_lshl_b32 {s_t0}, {s_h}, 3
    s_add_u32 {s_t0}, {s_t0}, {s_mb}
    s_lshl_b32 {s_t0}, {s_t0}, 2
    s_add_u32 {s_t0}, {s_t0}, {s_w}
    s_lshl_b32 {s_t0}, {s_t0}, 2
    s_add_u32 {s_t0}, {s_t0}, 4096
    v_mov_b32 {vt0}, {s_t0}
    buffer_store_dword {vt3}, {vflag}, {sfl}, 0 offen sc1
    v_cndmask_b32 {vflk}, 2.0, {vt0}, vcc
    s_lshl_b32 {s_t1}, {s_w}, 3
    buffer_store_dword {vt3}, {vflk}, {sfl}, 0 offen sc1
    s_add_u32 {s_gs}, {s_gs}, {s_t1}
    s_add_u32 {s_gs}, {s_gs}, {WS_G}
    s_lshl_b32 {s_t0}, {s_h}, 3
    s_lshl_b32 {s_t1}, {s_w}, 1
    s_add_u32 {s_t0}, {s_t0}, {s_t1}
    s_lshl_b32 {s_t2}, {s_t0}, 11
    s_mov_b32 {s_msk}, 0xffff0000
    v_lshlrev_b32 {z[0]}, 5, {vl}""")
    if ptrace > 0: pf.trace()
    p.e('WAITTAG S0')
    if ptrace > 0: pf.trace()
    p.e('s_barrier')
    if ptrace > 0: pf.trace()
    pf.stamp(1)

    def gate_ops():
        L = []
        for r in range(2):
            for j in range(8):
                xr = gx[2 * r + j // 4][j % 4]; wr_ = gw[j // 4][j % 4]
                L += [f'v_lshlrev_b32 {t[0]}, 16, {xr}', f'v_lshlrev_b32 {t[1]}, 16, {wr_}',
                      f'v_and_b32 {t[2]}, {s_msk}, {xr}', f'v_and_b32 {t[3]}, {s_msk}, {wr_}',
                      f'v_mul_f32 {t[0]}, {t[0]}, {t[1]}', f'v_mul_f32 {t[2]}, {t[2]}, {t[3]}',
                      f'v_cvt_pk_bf16_f32 {t[0]}, {t[0]}, {t[2]}', f'v_lshlrev_b32 {t[1]}, 16, {t[0]}',
                      f'v_and_b32 {t[2]}, {s_msk}, {t[0]}']
                if j == 0: L.append(f'v_add_f32 {z[r]}, {t[1]}, {t[2]}')
                else: L += [f'v_add_f32 {t[1]}, {t[1]}, {t[2]}', f'v_add_f32 {z[r]}, {z[r]}, {t[1]}']
        for mode in ('quad_perm:[1,0,3,2]', 'quad_perm:[2,3,0,1]', 'row_half_mirror', 'row_mirror'):
            for r in range(2): L.append(f'v_add_f32_dpp {z[r]}, {z[r]}, {z[r]} {mode} row_mask:0xf bank_mask:0xf')
        for op in ('v_permlane16_swap_b32', 'v_permlane32_swap_b32'):
            for r in range(2): L.append(f'v_mov_b32 {t[r]}, {z[r]}')
            for r in range(2): L.append(f'{op} {t[r]}, {z[r]}')
            for r in range(2): L.append(f'v_add_f32 {z[r]}, {z[r]}, {t[r]}')
        L += f"""v_and_b32 {t[1]}, 1, {vl}
        v_cmp_eq_u32 vcc, 1, {t[1]}
        v_and_b32 {t[3]}, 2, {vl}
        v_cndmask_b32 {t[0]}, {z[0]}, {z[1]}, vcc
        v_cvt_pk_bf16_f32 {t[0]}, {t[0]}, {t[0]}
        v_and_b32 {t[0]}, {s_msk}, {t[0]}
        v_mul_f32 {t[0]}, {hex(f32bits(-math.log2(math.e)))}, {t[0]}
        v_exp_f32 {t[0]}, {t[0]}
        v_cmp_eq_u32 vcc, 2, {t[3]}
        v_add_f32 {t[0]}, 1.0, {t[0]}
        v_rcp_f32 {t[0]}, {t[0]}
        v_lshlrev_b32 {t[3]}, 4, {t[3]}
        v_cvt_pk_bf16_f32 {t[0]}, {t[0]}, {t[0]}
        v_and_b32 {t[0]}, {s_msk}, {t[0]}
        v_sub_f32 {t[2]}, 1.0, {t[0]}
        v_cvt_pk_bf16_f32 {t[2]}, {t[2]}, {t[2]}
        v_and_b32 {t[2]}, {s_msk}, {t[2]}
        v_cndmask_b32 {t[0]}, {t[0]}, {t[2]}, vcc
        v_lshl_add_u32 {t[3]}, {t[1]}, 2, {t[3]}
        v_cmp_gt_u32 vcc, 4, {vl}
        v_cndmask_b32 {t[3]}, 2.0, {t[3]}, vcc
        buffer_store_dword {t[0]}, {t[3]}, {sws}, {s_gs} offen{st_mod}""".split('\n')
        return [x.strip() for x in L]

    def wread(n, st, wc):
        slot = wf[(10 * st + n) % NSLOT]
        nq = 4 if wc == 0 else 2
        L = []
        for ks in range(2):
            if n < nq: base = vqr[n % 2]; off = ks * 20480 + (1024 if (wc == 0 and n < 2) else 0); so = 256
            else: base = vgr[(n - nq) % 2]; off = ks * 10240 + ((n - nq) // 2) * 32; so = 1792
            off += st * (W1 - W0)
            L += [f'ds_read_b64_tr_b16 {slot[4 * ks + 2 * s:4 * ks + 2 * s + 2]}, {base} offset:{off + s * so}' for s in range(2)]
        return L
    def xread(m, ks, st):
        return f'ds_read_b128 {xf(st, m, ks)}, {vxr[ks]} offset:{st * (X1 - X0) + m * 2048}'

    for m in range(2):
        for ks in range(2): p.e(xread(m, ks, 0))
    p.e(f's_cmp_eq_u32 {s_wc}, 1')
    p.e(f's_cbranch_scc1 {name}_c1')

    def stage(st, wc, first=False, last=False, extra=None, fill=None, estep=2, postbar=None, nodma1=False, early=None, dens=2):
        slots = {}
        for j in range(10):
            jj = j + DIST
            if jj < 10: rd = wread(jj, st, wc)
            elif last: continue
            else: rd = wread(jj - 10, st ^ 1, wc)
            for i, x in enumerate(rd): place(slots, 16 * j + ((0, 2, 4, 6) if j < 9 else (0, 11, 13, 15))[i], x)
        bar = 16 * (10 - DIST)
        if not last:
            for i in range(8): place(slots, bar + 8 + (0, 2, 4, 6, 16, 18, 20, 22)[i], xread(i // 2, i % 2, st ^ 1))
            for i in range(8): place(slots, 144 + (2, 3, 4, 5, 7, 8, 9, 10)[i], xread(7 - i // 2, i % 2, st ^ 1))
        pos = []; c = 1.0
        for k in range(18):
            pos.append(int(c)); c += cg if k < 7 else (cq if k < 10 else cx)
        endc = int(c) - (160 - bar)
        pos0 = pos
        if first:
            sh = pos[S1P] - 1
            pos = [(int(F0 + (x - sh) * FS) + 160 - bar) if k >= S1P else -1 for k, x in enumerate(pos)]; endc = int(F0 + (endc + 160 - bar - sh) * FS)
        if not last:
            dl = dma_w(st ^ 1) + dma_x(st ^ 1)
            for k in range(18):
                c = pos[k] - (160 - bar)
                if c < 0: continue
                for x in dl[k][0]: place(slots, max(c - 1, 0), x)
                place(slots, c, dl[k][1])
            for i, x in enumerate(adv): place(slots, endc - 2 + i, x)
            if first: pos = pos0
            dl = dma_w(st) + dma_x(st)
            for k in range(18):
                c = bar + pos[k]
                if c >= 160 or nodma1: continue
                for x in dl[k][0]: place(slots, c - 1, x)
                place(slots, c, dl[k][1])
        if early:
            c = (pos[PFP] - (0 if first else 160 - bar) - 2) if PFP < 18 else endc + 1
            for x in early: place(slots, max(c, 0), x); c += 1
            if PFP >= 18: endc = c + 1
        c = endc + 1
        for x in (extra or []):
            if isinstance(x, list):
                for y in x: place(slots, c, y)
                c += estep; continue
            place(slots, c, x)
            c += 3 if (isinstance(x, Ins) or x.startswith('buffer')) else estep
        assert c < bar
        for i, x in enumerate(postbar or []):
            for y in (x if isinstance(x, list) else [x]):
                if y is not None: place(slots, bar + 3 + 2 * i, y)
        if FOFF:
            for c in sorted(slots):
                if c % 2 == 0 and c + 1 < 160 and len(slots.get(c + 1, [])) + len(slots[c]) <= FOFF:
                    slots[c + 1] = slots[c] + slots.get(c + 1, []); slots[c] = []
        fill = [x if isinstance(x, tuple) else (0, x) for x in (fill or [])]
        for c in range(160):
            n, r = divmod(c, 16); mi, ks = divmod(r, 2)
            m = mi if n % 2 == 0 else 7 - mi
            if c == bar and not last:
                p.e(f'WAITTAG S{st ^ 1} LGKM0')
                p.e('s_barrier')
                if ptrace > 1: pf.trace()
            if MWT and not first and c == 8: p.e('s_waitcnt lgkmcnt(4)')
            if MWT and r == 0 and 0 < n and c != bar and not (first and n < 3) and not last: p.e(f's_waitcnt lgkmcnt({8 if n <= 7 else 12})')
            w = wf[(10 * st + n) % NSLOT][4 * ks:4 * ks + 4]; x = xf(st, m, ks)
            a, b = (x, w) if (wc == 1 and n < 2) else (w, x)
            cin = '0' if (first and ks == 0) else str(acc[n][m])
            p.e(f'v_mfma_f32_16x16x32_bf16 {acc[n][m]}, {a}, {b}, {cin}')
            here = slots.get(c, [])
            p.add(here)
            if c >= 1:
                for _ in range(min(dens, 2 - len(here))):
                    if fill and fill[0][0] <= c:
                        x = fill.pop(0)[1]; p.add(x if isinstance(x, list) else [x])
        return [x[1] for x in fill]

    def toreg(tile, tmp):
        if tile.k == 'v': return tile
        for i in range(4): p.e(f'v_accvgpr_read_b32 {tmp[i]}, {tile[i]}')
        return tmp
    def pack(o, t0, t1):
        p.e(f'v_cvt_pk_bf16_f32 {o[0]}, {t0[0]}, {t0[1]}\nv_cvt_pk_bf16_f32 {o[1]}, {t0[2]}, {t0[3]}')
        p.e(f'v_cvt_pk_bf16_f32 {o[2]}, {t1[0]}, {t1[1]}\nv_cvt_pk_bf16_f32 {o[3]}, {t1[2]}, {t1[3]}')

    def pf_setup():
        L = f"""s_lshl_b32 {s_t0}, s2, 2
        s_add_u32 {s_t0}, {s_t0}, {s_w}
        s_mul_i32 {s_t1}, {s_t0}, {DL * 128}
        v_lshl_add_u32 {vt3}, {vl}, 7, {s_t1}
        v_cmp_gt_u32 vcc, {DL}, {vl}
        s_mov_b32 {sp2[0]}, {pwd[0]}
        s_mov_b32 {sp2[1]}, {pwd[1]}
        s_mov_b32 {sp2[2]}, {F * D * 2}
        v_cndmask_b32 {vt3}, 2.0, {vt3}, vcc
        s_mov_b32 {s_c1}, 0""".split('\n')
        return [x.strip() for x in L]
    def tp_setup():
        a_, b_ = vtmp[27], vtmp[26]
        return lines(f"""
        s_lshl_b32 {s_t0}, s2, 2
        s_add_u32 {s_t0}, {s_t0}, {s_w}
        s_lshr_b32 {s_t1}, {s_t0}, 4
        s_lshl_b32 {s_c1}, {s_t1}, 15
        s_lshl_b32 {s_c0}, {s_t1}, 12
        s_and_b32 {s_t0}, {s_t0}, 15
        s_lshr_b32 {s_t1}, {s_t0}, 1
        s_mul_i32 {s_t1}, {s_t1}, {224 * 4096}
        s_add_u32 {s_c0}, {s_c0}, {s_t1}
        s_and_b32 {s_t1}, {s_t0}, 1
        s_lshl_b32 {s_t1}, {s_t1}, 11
        s_add_u32 {s_c0}, {s_c0}, {s_t1}
        s_add_u32 {s_c0}, {s_c0}, {WS_T}
        s_lshl_b32 {s_t0}, {s_t0}, 7
        s_mov_b32 {sp2[0]}, {pwd[0]}
        s_mov_b32 {sp2[1]}, {pwd[1]}
        s_mov_b32 {sp2[2]}, {F * D * 2}
        v_lshrrev_b32 {a_}, 3, {vl}
        v_and_b32 {b_}, 2, {a_}
        v_lshlrev_b32 {b_}, 1, {b_}
        v_and_b32 {vt3}, 7, {vl}
        v_xor_b32 {b_}, {b_}, {vt3}
        v_lshl_add_u32 {b_}, {b_}, 4, {s_t0}
        v_lshl_add_u32 {vt3}, {a_}, 11, {b_}
        s_lshl_b32 {s_t0}, {s_w}, 12
        s_add_u32 {s_t0}, {s_t0}, {QS}
        v_lshrrev_b32 {a_}, 5, {vl}
        v_lshl_add_u32 {vtmp[24]}, {a_}, 10, {s_t0}
        v_bfe_u32 {a_}, {vl}, 2, 2
        v_lshl_add_u32 {vtmp[24]}, {a_}, 7, {vtmp[24]}
        v_bfe_u32 {a_}, {vl}, 3, 1
        v_lshl_add_u32 {vtmp[24]}, {a_}, 6, {vtmp[24]}
        v_bfe_u32 {a_}, {vl}, 4, 1
        v_lshl_add_u32 {vtmp[24]}, {a_}, 5, {vtmp[24]}
        v_and_b32 {a_}, 3, {vl}
        v_lshl_add_u32 {vtmp[24]}, {a_}, 3, {vtmp[24]}
        v_xor_b32 {vtmp[25]}, 64, {vtmp[24]}
        v_lshlrev_b32 {vtmp[26]}, 4, {vl}
        s_lshl_b32 {s_t0}, s2, 2
        s_add_u32 {s_t0}, {s_t0}, {s_w}
        s_and_b32 {s_t0}, {s_t0}, 15
        s_lshl_b32 {s_t0}, {s_t0}, 7
        v_lshl_add_u32 {a_}, {vl}, 11, {s_t0}
        v_cmp_gt_u32 vcc, 16, {vl}
        v_cndmask_b32 {a_}, 2.0, {a_}, vcc""") + [tp_touch()]
    def tp_touch():
        return Ins(f'buffer_load_dword {vpd}, {vtmp[27]}, {sp2}, {s_c1} offen', 'pf')
    def tp_load():
        return [f's_lshr_b32 {s_t0}, {s_mx}, 1', f's_add_u32 m0, {s_t0}, {QS}', f's_add_u32 {s_t1}, {s_c1}, {8 * 2048 - 1024}',
                Ins(f'buffer_load_dwordx4 {vt3}, {sp2}, {s_c1} offen lds', 'TP'), Ins(f'buffer_load_dwordx4 {vt3}, {sp2}, {s_t1} offen offset:1024 lds', 'TP')]
    def tp_store():
        L = ['WAITTAG TP'] + [f'ds_read_b64_tr_b16 {vtmp[4 * nb + 2 * s_:4 * nb + 2 * s_ + 2]}, {vtmp[24 + nb]} offset:{s_ * 512}' for nb in range(2) for s_ in range(2)]
        L = [L[:2]] + L[2:]
        L += [[f's_cmp_lt_u32 {s_c1}, {224 * 32768}', f's_cselect_b32 {s_t0}, {s_c0}, 2.0'], f's_add_u32 {s_c1}, {s_c1}, {64 * 32768}', f's_add_u32 {s_c0}, {s_c0}, {64 * 4096}', None, None]
        L += [Ins(f'buffer_store_dwordx4 {vtmp[4 * nb:4 * nb + 4]}, {vtmp[26]}, {sws}, {s_t0} offen offset:{nb * 1024}{st_mod}', 'HST') for nb in range(2)]
        if TT: L.insert(7, tp_touch())
        return L
    def pf3_setup():
        L = f"""s_mov_b32 {sp3[0]}, {pgw[0]}
        s_mov_b32 {sp3[1]}, {pgw[1]}
        s_movk_i32 {sp3[2]}, 2048
        s_mov_b32 {sp3[3]}, 0x00020000
        v_lshlrev_b32 {vwo}, 7, {vl}""".split('\n')
        L2 = f"""s_lshl_b32 {s_t0}, s2, 2
        s_add_u32 {s_t0}, {s_t0}, {s_w}
        s_lshl_b32 {s_t1}, {s_t0}, 11
        v_lshl_add_u32 {vwo}, {vl}, 7, {s_t1}
        v_cmp_gt_u32 {smask}, 16, {vl}
        s_mov_b32 {sp3[0]}, {pwo[0]}
        s_mov_b32 {sp3[1]}, {pwo[1]}
        s_mov_b32 {sp3[2]}, {D * D * 2}
        v_cndmask_b32 {vwo}, 2.0, {vwo}, {smask}""".split('\n')
        return [x.strip() for x in L] + [Ins(f'buffer_load_dword {vpd}, {vwo}, {sp3}, 0 offen', 'pf')] + [x.strip() for x in L2]
    def tlb_touch():
        return [f's_cmp_eq_u32 {s_w}, 1', f's_cselect_b32 {sp2[0]}, {pout[0]}, {pws[0]}', f's_cselect_b32 {sp2[1]}, {pout[1]}, {pws[1]}',
                f's_mov_b32 {sp2[2]}, {34 << 20}', f's_cmov_b32 {sp2[2]}, {S * D * 2}', f's_cmp_lt_u32 {s_w}, 2', f's_cselect_b32 {s_t0}, 0, 2.0',
                f'v_lshlrev_b32 {vt3}, 20, {vl}', Ins(f'buffer_load_dword {vpd}, {vt3}, {sp2}, {s_t0} offen sc1', 'pf')]
    def tlb_touch2():
        L = tlb_touch()
        return [L[0:5], L[5:7]] + L[7:]
    pf_wo = [f's_cmp_eq_u32 {s_cnt}, 2', f's_cselect_b32 {s_t0}, 0, 2.0', Ins(f'buffer_load_dword {vpd}, {vwo}, {sp3}, {s_t0} offen', 'pf')]
    gate_sel = [f's_cmp_eq_u32 {s_cnt}, 0', f's_cselect_b32 {s_t0}, {s_t2}, 2.0', f's_cselect_b32 {s_t1}, 0, 2.0',
                f's_cselect_b32 {sp3[0]}, {pgw[0]}, {sp3[0]}', f's_cselect_b32 {sp3[1]}, {pgw[1]}, {sp3[1]}', f's_cselect_b32 {sp3[2]}, 0x800, {sp3[2]}']
    gate_loads = [f'buffer_load_dwordx4 {gw[i]}, {z[0]}, {sp3}, {s_t1} offen offset:{16 * i}' for i in range(2)] + \
                 [f'buffer_load_dwordx4 {gx[i]}, {z[0]}, {sx}, {s_t0} offen offset:{(i // 2) * 2048 + (i % 2) * 16}' for i in range(4)]

    spins = []
    def check(cond_lines, reload_lines, tag):
        lab = f'{name}_{tag}'
        spins.append((lab, cond_lines, reload_lines))
        return cond_lines + [f's_cbranch_vccnz {lab}_spin', f'{lab}_ok:']

    def lines(s): return [x.strip() for x in s.strip().split('\n')]
    def rd(tile, tmp):
        if tile.k == 'v': return tile, []
        return tmp, [f'v_accvgpr_read_b32 {tmp[i]}, {tile[i]}' for i in range(4)]
    def packl(o, t0, t1):
        return [f'v_cvt_pk_bf16_f32 {o[0]}, {t0[0]}, {t0[1]}', f'v_cvt_pk_bf16_f32 {o[1]}, {t0[2]}, {t0[3]}',
                f'v_cvt_pk_bf16_f32 {o[2]}, {t1[0]}, {t1[1]}', f'v_cvt_pk_bf16_f32 {o[3]}, {t1[2]}, {t1[3]}']
    def mul4(d, a_, b_, pk):
        if pk: return [f'v_pk_mul_f32 {d[2*i:2*i+2]}, {a_[2*i:2*i+2]}, {b_ if b_.k == "s" else b_[2*i:2*i+2]}' for i in range(2)]
        return [f'v_mul_f32 {d[i]}, {b_[0] if b_.k == "s" else b_[i]}, {a_[i]}' for i in range(4)]
    def hpiece(n, j, o, pk):
        L = []; tt = []
        for mm in range(2):
            g_, l0 = rd(acc[n][2 * j + mm], vtmp[8 * mm:8 * mm + 4]); u_, l1 = rd(acc[n + 1][2 * j + mm], vtmp[8 * mm + 4:8 * mm + 8])
            L += l0 + l1 + mul4(g_, g_, u_, pk); tt.append(g_)
        return L + packl(o, tt[0], tt[1]) + [f'v_permlane16_swap_b32 {o[0]}, {o[2]}', f'v_permlane16_swap_b32 {o[1]}, {o[3]}']
    hreg = [acc[7][2 * j] for j in range(4)] + [acc[6][2 * j] for j in range(4)] + [acc[8][2 * j] for j in range(4)]

    vq = vdx[0]; vh = vdx[1]; vql = vdx[2]; vqq = vdx[3]
    s_b, s_qs = s_oq, R('s', sx.a, 2)
    def epi_setup(wc):
        L = lines(f"""
        v_and_b32 {vt0}, 15, {vl}
        v_lshrrev_b32 {vt1}, 4, {vl}
        v_lshlrev_b32 {vq}, 9, {vt1}
        v_lshlrev_b32 {vh}, 4, {vl}
        s_lshl_b32 {s_t0}, {s_h}, 6
        s_lshl_b32 {s_t1}, {s_mb}, 3
        s_add_u32 {s_t0}, {s_t0}, {s_t1}
        s_lshl_b32 {s_t1}, {s_wr}, 2
        s_add_u32 {s_t0}, {s_t0}, {s_t1}
        s_lshl_b32 {s_b}, {s_t0}, 12
        s_add_u32 {s_b}, {s_b}, {WS_KV}
        s_add_u32 {s_og}, {s_b}, 4096
        s_add_u32 {s_ox}, {s_b}, 8192
        s_add_u32 {s_c0}, {s_b}, 12288
        s_lshl_b32 {s_t0}, {s_mb}, 1
        s_add_u32 {s_t0}, {s_t0}, {s_wr}
        s_mul_i32 {s_t0}, {s_t0}, 288
        s_mul_i32 {s_t1}, {s_h}, 7
        s_add_u32 {s_t0}, {s_t0}, {s_t1}
        s_lshl_b32 {s_t0}, {s_t0}, 12
        s_add_u32 {s_hb}, {s_t0}, {WS_A + 4 * 4096 * wc}
        s_sub_u32 {s_c1}, {s_hb}, 4096
        s_lshl_b32 {s_t1}, {s_wr}, 14""")
        if wc == 0:
            L += lines(f"""
            v_lshrrev_b32 {vt2}, 3, {vt0}
            v_lshl_add_u32 {vq}, {vt2}, 8, {vq}
            v_and_b32 {vt2}, 7, {vt0}
            v_lshl_add_u32 {vq}, {vt2}, 4, {vq}
            v_add_u32 {vql}, {s_t1}, {vq}
            s_lshl_b32 {s_t1}, {s_wr}, 13
            s_add_u32 {s_t1}, {s_t1}, {QS}
            v_add_u32 {vqq}, {s_t1}, {vq}
            s_mov_b32 {s_qs[0]}, {hex(f32bits(QSCALE))}
            s_mov_b32 {s_qs[1]}, {s_qs[0]}""")
        else:
            L += [f'v_lshl_add_u32 {vq}, {vt0}, 4, {vq}', f'v_add_u32 {vql}, {s_t1}, {vq}']
        return L
    kvb = [s_b, s_og, s_ox, s_c0]
    def epi_early(wc, npk):
        F_ = []
        outs = [vtmp[16 + 4 * i:20 + 4 * i] for i in range(3)]
        if wc == 0:
            for m in range(7, -1, -1):
                o = acc[0][m]
                L = packl(o, acc[0][m], acc[1][m]) + [Ins(f'buffer_store_dwordx4 {o}, {vq}, {sws}, {kvb[m // 2]} offen offset:{(m % 2) * 128}{kv_mod}', 'KVST'),
                                                       f'ds_write_b128 {vql}, {o} offset:{(m // 2) * 4096 + (m % 2) * 128}']
                F_ += [(17 + 2 * (7 - m) + 4, x) for x in L]
            for i, m in enumerate(range(7, -1, -1)):
                o = outs[i % 3]
                t0, l0 = rd(acc[2][m], vtmp[0:4]); t1, l1 = rd(acc[3][m], vtmp[4:8])
                L = l0 + l1 + mul4(t0, t0, s_qs, i >= npk) + mul4(t1, t1, s_qs, i >= npk) + packl(o, t0, t1) + [f'ds_write_b128 {vqq}, {o} offset:{(m // 2) * 2048 + (m % 2) * 128}']
                F_ += [(49 + 2 * (7 - m) + 4, x) for x in L]
        else:
            for nt, js in ((0, range(4)), (1, range(3, -1, -1))):
                for j in js:
                    o = acc[nt][2 * j]
                    L = packl(o, acc[nt][2 * j], acc[nt][2 * j + 1]) + [Ins(f'buffer_store_dwordx4 {o}, {vq}, {sws}, {kvb[j]} offen offset:{2048 + nt * 256}{kv_mod}', 'KVST'),
                                                                         f'ds_write_b128 {vql}, {o} offset:{j * 4096 + 2048 + nt * 256}']
                    F_ += [((3 + 4 * j if nt == 0 else 31 - 4 * j) + 4, x) for x in L]
            for i, j in enumerate(range(3, -1, -1)):
                o = outs[i % 3]
                L = hpiece(2, j, o, i >= npk) + [Ins(f'buffer_store_dwordx4 {o}, {vh}, {sws}, {s_c1} offen offset:{j * 1024}{st_mod}', 'HST')]
                F_ += [(63 - 4 * j + 4, x) for x in L]
        for j in range(3, -1, -1):
            F_ += [(127 - 4 * j + 4, x) for x in hpiece(6, j, hreg[4 + j], PK)]
            F_ += [(127 - 4 * j + 4, x) for x in hpiece(4, j, hreg[j], PK)]
        k = max(i for i, x in enumerate(F_) if isinstance(x[1], Ins) and x[1].tag == 'KVST')
        F_[k + KF:k + KF] = [(0, [f'v_mov_b32 {vt0}, 1', 'WAITTAG KVST', Ins(f'buffer_store_dword {vt0}, {vflk}, {sfl}, 0 offen sc1', 'FL')])]
        return F_
    def epi_late():
        for j in range(3, -1, -1): p.add(hpiece(8, j, hreg[8 + j], True))

    announce_setup = lines(f"""
        s_mov_b32 {sdbg[0]}, {pdbg[0]}
        s_mov_b32 {sdbg[1]}, {pdbg[1]}
        s_movk_i32 {sdbg[2]}, 256
        s_mov_b32 {sdbg[3]}, 0x00020000
        s_and_b32 {s_ano}, s2, 7
        s_lshl_b32 {s_ano}, {s_ano}, 2
        s_and_b32 {s_grp}, {s_mb}, 3
        s_add_u32 {s_grp}, {s_grp}, 3
        v_mov_b32 {vt2}, 1
        v_cmp_eq_u32 {smask}, 0, v0
        v_cndmask_b32 {vt1}, 2.0, 0, {smask}""")
    if PT:
        k = announce_setup.index(f's_add_u32 {s_grp}, {s_grp}, 3')
        announce_setup[k:k + 1] = [[f's_cmp_lt_u32 {s_grp}, 2', f's_cselect_b32 {s_grp}, {s_grp}, 16'], f's_add_u32 {s_grp}, {s_grp}, 1']
    announce1 = [f's_add_u32 {s_t0}, {s_cnt}, 16', [f's_cmp_eq_u32 {s_t0}, {s_grp}', f's_cselect_b32 {s_t0}, {s_ano}, 2.0'],
                 f'buffer_atomic_add {vt2}, {vt1}, {sdbg}, {s_t0} offen offset:{DBG_CNT} sc1']
    announce = [f's_cmp_eq_u32 {s_cnt}, {s_grp}', f's_cselect_b32 {s_t0}, {s_ano}, 2.0',
                f'buffer_atomic_add {vt2}, {vt1}, {sdbg}, {s_t0} offen offset:{DBG_CNT} sc1']
    cnt_addr = [f'v_and_b32 {vpf}, 7, {vl}', f'v_lshlrev_b32 {vpf}, 2, {vpf}']
    cnt_load = f'buffer_load_dword {vcnt}, {vpf}, {sdbg}, 0 offen offset:{DBG_CNT} sc1'

    def code_setup(wc):
        lab = f'{name}_pc{wc}'
        return [[f's_getpc_b64 {sp4[0:2]}', f'{lab}:'], f's_and_b32 {sp4[1]}, {sp4[1]}, 0xffff', f's_mov_b32 {sp4[2]}, {name}_end-{lab}', f's_mov_b32 {sp4[3]}, 0x00020000',
                f's_lshr_b32 {s_t0}, s2, 3', f's_lshl_b32 {s_t1}, {s_t0}, 8', f's_add_u32 {s_t1}, {s_t1}, {name}_c{wc}out-{lab}', f'v_and_b32 {vcnt}, 1, {vl}', f'v_lshlrev_b32 {vcnt}, 7, {vcnt}',
                f's_lshl_b32 {s_t0}, {s_t0}, 2', f's_add_u32 {s_t0}, {s_t0}, {s_w}', f's_lshl_b32 {s_t0}, {s_t0}, 8',
                f's_add_u32 {s_t0}, {s_t0}, {name}_join-{lab}', f'v_mov_b32 {vtmp[0]}, {s_t0}', f'v_mov_b32 {vtmp[1]}, {s_t1}',
                f'v_cmp_gt_u32 vcc, 2, {vl}', f'v_cndmask_b32 {vtmp[0]}, {vtmp[0]}, {vtmp[1]}, vcc', f'v_add_u32 {vcnt}, {vcnt}, {vtmp[0]}',
                f'v_cmp_gt_u32 vcc, 4, {vl}', f'v_cndmask_b32 {vcnt}, 2.0, {vcnt}, vcc']
    code_pf = [f's_cmp_eq_u32 {s_cnt}, 1', f's_cselect_b32 {s_t0}, 0, 2.0', Ins(f'buffer_load_dword {vpd}, {vcnt}, {sp4}, {s_t0} offen', 'pf')]
    for wc in range(2):
        p.seg(f'c{wc}a')
        if wc == 1: p.e(f'{name}_c1:')
        p.add(wread(0, 0, wc))
        for m in range(2, 8):
            for ks in range(2): p.e(xread(m, ks, 0))
        for j in range(1, DIST): p.add(wread(j, 0, wc))
        left = stage(0, wc, first=True, early=[x for _ in range(PD - PD0 + 1) for x in pfetch()], fill=flag_setup + announce_setup + code_setup(wc) + pf3_setup() + (tlb_touch2() if TLB else []) + (tp_setup() if PT else pf_setup()))
        assert not left
        p.e(f's_mov_b32 {s_cnt}, 6')
        p.seg(f'c{wc}l1')
        p.e(f'{name}_c{wc}loop:')
        stage(1, wc, early=pfetch() + (tp_load() if PT else pfetch_d()), extra=gate_sel + gate_loads + (announce1 if PT else []), estep=1)
        p.e(f's_cmp_eq_u32 {s_cnt}, 0\ns_cbranch_scc1 {name}_c{wc}out')
        p.seg(f'c{wc}l2')
        stage(0, wc, early=pfetch() + ([] if PT else pfetch_d()), extra=([x for x in tp_store() if x is not None] if PT else []) + announce + ([] if NOPF & 2 else pf_wo) + (code_pf if CPF else []), estep=1 if PT else 2)
        p.e(f's_sub_u32 {s_cnt}, {s_cnt}, 1\ns_branch {name}_c{wc}loop')
        p.seg(f'c{wc}last')
        p.e(f'{name}_c{wc}out:')
        rest = stage(0, wc, early=None if PT else pfetch_d(), fill=gate_ops(), nodma1=True, dens=GD)
        rest = stage(1, wc, last=True, fill=rest + cnt_addr + [cnt_load] + epi_setup(wc) + epi_early(wc, 99))
        pf.stamp(2)
        if ptrace == -1: pf.trace()
        k = max([i for i, x in enumerate(rest) if isinstance(x, str) and x.startswith('ds_write')] + [-1]) + 1
        for x in rest[:k]: p.add(x if isinstance(x, list) else [x])
        rest = rest[k:]
        if PKR:
            out = []; i = 0
            while i < len(rest):
                x = rest[i]; y = rest[i + 1] if i + 1 < len(rest) else None
                if isinstance(x, str) and isinstance(y, str) and x.startswith('v_mul_f32') and y.startswith('v_mul_f32'):
                    a0, b0, c0 = [int(t.strip()[1:]) for t in x[10:].split(',')]; a1, b1, c1 = [int(t.strip()[1:]) for t in y[10:].split(',')]
                    if a0 % 2 == 0 and b0 % 2 == 0 and (a1, b1, c1) == (a0 + 1, b0 + 1, c0 + 1):
                        out.append(f'v_pk_mul_f32 v[{a0}:{a1}], v[{b0}:{b1}], v[{c0}:{c1}]'); i += 2; continue
                out.append(x); i += 1
            rest = out
        va_, vb_ = vdg[0], vdg[1]
        p.e(f"""
        v_lshlrev_b32 {va_}, 4, {vl}
        s_lshl_b32 {s_t0}, {s_w}, 12
        s_add_u32 {s_t0}, {s_t0}, {QS}
        v_add_u32 {vb_}, {s_t0}, {va_}
        s_waitcnt lgkmcnt(0)
        s_barrier
        """)
        for q in range(2):
            for f in range(2): p.e(f'ds_read_b128 a[{40 + 8 * q + 4 * f}:{43 + 8 * q + 4 * f}], {vb_} offset:{q * 2048 + f * 1024}')
        for i in range(4): p.e(f'ds_read_b128 a[{56 + 4 * i}:{59 + 4 * i}], {va_} offset:{(i // 2) * 4096 + (i % 2) * 1024}')
        pre = [f'v_mfma_f32_32x32x16_bf16 v[{64 + 16 * q}:{79 + 16 * q}], a[{56 + 4 * f}:{59 + 4 * f}], a[{40 + 8 * q + 4 * f}:{43 + 8 * q + 4 * f}], ' + ('0' if f == 0 else f'v[{64 + 16 * q}:{79 + 16 * q}]')
               for q in range(2) for f in range(2)]
        rest = rest + [x for j in range(3, -1, -1) for x in hpiece(8, j, hreg[8 + j], True)]
        for i, x in enumerate(rest):
            p.add(x if isinstance(x, list) else [x])
            if i >= 24 and (i - 24) % 7 == 0 and pre: p.e(pre.pop(0))
        p.add(pre)
        if ptrace == -1: pf.trace()
        if ptrace == -1: pf.trace()
        if wc == 0: p.e(f's_branch {name}_join')
    p.seg('join')
    p.e(f'{name}_join:')
    p.add(check([f'v_cmp_gt_u32 vcc, 32, {vcnt}'], [cnt_load], 'cnt'))

    sa.p = s_base; va.p = v_base; aa.p = 0
    skv = sa(4); sA = sa(4); swd = sa(4); swo = sa(4); sout = sa(4)
    s_okv, s_left, s_p, s_oa, s_ow, s_wb, s_ob, s_ob2, s_thr, s_mt, s_nt, s_oo, s_spin, s_h1, s_h2, s_rt, s_win = [sa() for _ in range(17)]
    scp = sa(4)
    vl16, vkA, vkB, vdma, vo, vidx, vu0, vu1, vu2, vpa = [va() for _ in range(10)]
    vdd = [va() for _ in range(2)]; vdo = [va() for _ in range(2)]; vwr = [va() for _ in range(2)]
    vg = va(2); vog = va(4); vpoll = va(2, 2); vsc = va(2)
    ones = va(4, 4)
    vA = [va() for _ in range(4)]
    assert va.p <= 46 and va.p > vwo.a
    va2 = Alloc('v', va.p, 48)
    va.p = 48
    Sx = [va(16, 4) for _ in range(2)]; P = [va(8, 4) for _ in range(2)]; C = [va(16, 4) for _ in range(2)]
    acc3 = [[va(16, 4) for _ in range(4)] for _ in range(2)]
    O = [aa(16, 4) for _ in range(2)]; L = [aa(4, 4) for _ in range(2)]
    Q = [aa(8, 4) for _ in range(2)]; K = [aa(8, 4) for _ in range(2)]; V = [aa(8, 4) for _ in range(2)]
    Wf = [aa(4, 4) for _ in range(2)]
    Ab = [[aa(4, 4) for _ in range(4)] for _ in range(8)]
    if PT:
        NB = 4; DA = DW = 3
        Wb = [[Ab[4 + i // 2][2 * (i % 2)], Ab[4 + i // 2][2 * (i % 2) + 1]] for i in range(4)]

    p.e(f"""
    v_lshlrev_b32 {vl16}, 4, {vl}
    s_lshl_b32 {s_p}, {s_w}, 12
    """)
    assert Q[0].a == 40 and K[0].a == 56 and Sx[1].a == 64 and P[0].a == 80
    pf.stamp(3)
    def kread(kb, loop=False):
        base, o = (vl16, (kb % 16) * 4096) if not loop else ((vkA, kb * 4096) if kb < 8 else (vkB, (kb - 8) * 4096))
        return [f'ds_read_b128 {K[kb % 2][4*f:4*f+4]}, {base} offset:{o + f * 1024}' for f in range(2)]
    def vread(kb, loop=False):
        base, o = (vl16, (kb % 16) * 4096) if not loop else (vkA, kb * 4096)
        return [f'ds_read_b128 {V[kb % 2][4*f:4*f+4]}, {base} offset:{o + 2048 + f * 1024}' for f in range(2)]
    def qk(dst, kb, q, f, cin):
        return f'v_mfma_f32_32x32x16_bf16 {dst}, {K[kb % 2][4*f:4*f+4]}, {Q[q][4*f:4*f+4]}, {cin if f == 0 else dst}'
    def pv(j, f, zero=False):
        q = j % 2; kb = (j // 2) % 2
        return f'v_mfma_f32_32x32x16_bf16 {O[q]}, {V[kb][4*f:4*f+4]}, {P[q][4*f:4*f+4]}, {"0" if zero else O[q]}'
    def rsum(q): return f'v_smfmac_f32_16x16x64_bf16 {L[q]}, {ones}, {P[q]}, {vidx}'
    def cvt(j, i): return f'v_cvt_pk_bf16_f32 {P[j % 2][i]}, {Sx[j % 2][2*i]}, {Sx[j % 2][2*i+1]}'
    def rowmax(dst, src, init):
        lst = [src[i] for i in range(16)]
        if init:
            p.e(f'v_max3_f32 {dst}, {lst[0]}, {lst[1]}, {lst[2]}'); lst = lst[3:]
        while len(lst) >= 2:
            p.e(f'v_max3_f32 {dst}, {dst}, {lst[0]}, {lst[1]}'); lst = lst[2:]
        if lst: p.e(f'v_max_f32 {dst}, {dst}, {lst[0]}')
    def setc(q, m):
        p.e(f'v_mov_b32 {vu2}, {m}\nv_permlane32_swap_b32 {vu2}, {m}\nv_max_f32 {m}, {m}, {vu2}')
        for i in range(16): p.e(f'v_sub_f32 {C[q][i]}, 0, {m}')
    rowmax(vu0, R('v', 64, 16), True); rowmax(vu1, R('v', 80, 16), True)
    setc(0, vu0)
    p.e(qk(Sx[0], 0, 0, 0, C[0])); p.e(qk(Sx[0], 0, 0, 1, C[0]))
    setc(1, vu1)
    p.e(f"""
    v_bfe_u32 {vu0}, {vl}, 2, 1
    v_bfe_u32 {vu1}, {vl}, 1, 1
    v_mov_b32 {vu2}, 0x3f803f80
    v_or_b32 {vidx}, {vu0}, {vu1}
    v_cmp_eq_u32 vcc, 0, {vidx}
    v_xor_b32 {vu0}, 1, {vu0}
    v_or_b32 {vidx}, {vu0}, {vu1}
    v_cndmask_b32 {ones[0]}, 0, {vu2}, vcc
    v_cndmask_b32 {ones[1]}, 0, {vu2}, vcc
    v_cmp_eq_u32 vcc, 0, {vidx}
    v_and_b32 {vu0}, 1, {vl}
    v_mov_b32 {vu1}, 0xeeeeeeee
    v_cndmask_b32 {ones[2]}, 0, {vu2}, vcc
    v_cndmask_b32 {ones[3]}, 0, {vu2}, vcc
    v_cmp_eq_u32 vcc, 0, {vu0}
    v_mov_b32 {vu2}, 0x44444444
    v_add_u32 {vdma}, {s_p}, {vl16}
    v_cndmask_b32 {vidx}, {vu1}, {vu2}, vcc
    """)
    for q in range(2):
        for i in range(2): p.e(f'v_accvgpr_write_b32 {L[q][i]}, 0')
    p.e(f's_lshl_b32 {s_t0}, {s_h}, 18')
    srd(p, skv, pws, off_s=s_t0, off_imm=WS_KV, size=262144)

    def flag(val, tag, wait):
        return [f'v_mov_b32 {vu0}, {val}', f'WAITTAG {wait}', Ins(f'buffer_store_dword {vu0}, {vflag}, {sfl}, 0 offen sc1', tag)]
    def kvdma(m0line, tag, count=True):
        return [m0line] + [Ins(f'buffer_load_dwordx4 {vdma}, {skv}, {s_okv} offen offset:{i * 1024}{lm2} lds', tag) for i in range(4)] + \
               [f's_add_u32 {s_okv}, {s_okv}, 16384', f's_and_b32 {s_okv}, {s_okv}, 0x3ffff'] + \
               ([f's_sub_u32 {s_left}, {s_left}, 1', f's_cselect_b32 {skv[2]}, 0, {skv[2]}'] if count else [])
    NW = 4
    def wload(s):
        if PT: return [Ins(f'buffer_load_dwordx4 {Wb[s % 4][nb]}, {vl16}, {swd}, {s_oa} offen offset:{nb * 1024}{lm2}', f'D{s % NW}') for nb in range(2)]
        return [f's_add_u32 m0, {s_wb}, {(s % NW) * 2048}'] + \
               [Ins(f'buffer_load_dwordx4 {vdd[hh]}, {swd}, {s_ow} offen offset:{hh * 1024}{lm2} lds', f'D{s % NW}') for hh in range(2)] + [f's_add_u32 {s_ow}, {s_ow}, 32768']
    def hload(s):
        return [Ins(f'buffer_load_dwordx4 {Ab[s % NB][r]}, {vA[r]}, {sA}, {s_oa} offen{lm2}', f'A{s % NB}') for r in range(4)] + [f's_add_u32 {s_oa}, {s_oa}, 4096']
    def wrd(base, off, nb):
        if PT: return []
        return [f'ds_read_b64_tr_b16 {Wf[nb][2*s:2*s+2]}, {base[nb]} offset:{off + s * 512}' for s in range(2)]
    def gm(st, nb, tb, zero=False):
        return f'v_mfma_f32_32x32x16_bf16 {acc3[nb][tb]}, {Wb[st % 4][nb] if PT else Wf[nb]}, {Ab[st % NB][tb]}, {"0" if zero else acc3[nb][tb]}'
    def oload(t, m0line, tag):
        return [m0line] + [Ins(f'buffer_load_dwordx4 {vdo[hh]}, {swo}, {s_oo} offen offset:{hh * 1024} lds', tag) for hh in range(2)] + [f's_add_u32 {s_oo}, {s_oo}, 32768']

    zplan = {}
    def period(j, loop=False, item=None, misc=(), pre=(), zero=False):
        s = Sx[j % 2]
        E = [f'v_exp_f32 {s[i]}, {s[i]}' for i in range(16)]
        jn = j + 1
        m1 = qk(Sx[jn % 2], jn // 2, jn % 2, 0, C[jn % 2]); m2 = qk(Sx[jn % 2], jn // 2, jn % 2, 1, None)
        rd = kread((j + 1) // 2 + 1, loop) if j % 2 == 1 else vread(j // 2, loop)
        first = (j == 0 and not loop)
        zo = (j <= 2 and not loop)
        c7 = [] if first else [cvt(j - 1, 7)]
        p0 = [] if first else [pv(j - 1, 0, zo)]; p1 = [] if first else [pv(j - 1, 1)]; rs = [] if first else [rsum((j - 1) % 2)]
        V_ = [E[0]] + c7
        for i in range(7): V_ += [E[2 * i + 1], E[2 * i + 2], cvt(j, i)]
        V_.append(E[15])
        if item is None:
            p.add(V_[:1 + len(c7)]); V_ = V_[1 + len(c7):]
            if AW and j % 2 == 1: p.e('s_waitcnt lgkmcnt(0)')
            z_ = [] if loop else zplan.get(j, [])
            M = [m1] + z_[:1] + [m2] + p0 + z_[1:] + p1 + rs; G = []
        else:
            st, nb = item
            G = [gm(st, nb, tb if nb == 0 else 3 - tb, zero) for tb in range(4)]
            M = [G[0], m1, G[1], m2, G[2]] + p0 + [G[3]] + p1 + rs
        if loop and exp_ & 1: M = [x for x in M if x not in G]
        if loop and exp_ & 8: misc = [x for x in misc if not (isinstance(x, Ins) and x.tag and x.tag.startswith('D'))]
        misc = list(misc)
        for k in range(len(misc)):
            if isinstance(misc[k], str) and ' m0,' in misc[k]:
                q_ = k
                while q_ > 0 and not (isinstance(misc[q_ - 1], Ins) and misc[q_ - 1].text.endswith(' lds')): q_ -= 1
                misc.insert(q_, misc.pop(k))
        items = []
        for x in list(pre) + rd + list(misc):
            if items and isinstance(items[-1][-1], str) and items[-1][-1].split()[0] in ('WAITTAG', 's_cbranch_vccnz', 'v_cmp_gt_u32', 's_getpc_b64', 's_cmp_eq_u32'): items[-1].append(x)
            else: items.append([x])
        isvm = lambda it: any((y.text if isinstance(y, Ins) else y).startswith('buffer') for y in it)
        n = len(M); last = n - 1 if M[-1].startswith('v_smfmac') else n
        cost = lambda x: 8 if x.startswith('v_exp') else 4
        occ = [32 if '32x32' in x else 16 for x in M]
        iss = [8 if 'smfmac' not in x else SMC for x in M]
        ic = [sum((VMC if (y.text if isinstance(y, Ins) else y).startswith('buffer') else 4) for y in it if not (isinstance(y, str) and y.endswith(':'))) for it in items]
        vc = [cost(x) for x in V_]
        tailc = (4 if item is not None else 12 + (4 if j % 2 == 0 else 0))
        if item is None: iss[-1] += 0
        import functools
        @functools.lru_cache(None)
        def best(g, a_, b_, pv_):
            if g == n: return (0, ()) if (a_ == len(items) and b_ == len(V_)) else (10 ** 9, ())
            res = (10 ** 9, ())
            lo = 0
            if g == 0 and item is not None: lo = 1 + len(c7)
            for na in range(0, len(items) - a_ + 1):
                if g == 0 and na < min(len(items), npre): continue
                nv_ = sum(map(isvm, items[a_:a_ + na]))
                ca = sum(ic[a_:a_ + na])
                if g < n - 1 and ca > 64: break
                pen = (VPEN * max(0, nv_ - 1) + (VPEN // 2 if (nv_ and pv_) else 0)) + (0.01 * g * na)
                for nb_ in range(lo, len(V_) - b_ + 1):
                    f_ = iss[g] + ca + sum(vc[b_:b_ + nb_]) + (tailc if g == n - 1 else 0)
                    if f_ > 120 and g < n - 1: break
                    r_ = best(g + 1, a_ + na, b_ + nb_, nv_ > 0)
                    t_ = max(occ[g], f_) + pen + r_[0] + 0.001 * (f_ - occ[g]) ** 2
                    if t_ < res[0]: res = (t_, ((na, nb_),) + r_[1])
            return res
        npre = len([1 for it in items if any(y in pre for y in it if isinstance(y, str))])
        tot_, asg = best(0, 0, 0, False)
        assert tot_ < 10 ** 8
        if dbg == -1: print(j, loop, item, round(tot_), len(items), sum(map(isvm, items)))
        a_ = b_ = 0
        for q_, m_ in enumerate(M):
            p.add([m_])
            na, nb_ = asg[q_]
            for it in items[a_:a_ + na]: p.add(it)
            p.add(V_[b_:b_ + nb_]); a_ += na; b_ += nb_

    setup1 = lines(f"""
        s_lshl_b32 {s_okv}, {s_mb}, 15
        s_add_u32 {s_okv}, {s_okv}, 32768
        s_and_b32 {s_okv}, {s_okv}, 0x3ffff
        s_movk_i32 {s_left}, {13 - (PA // 8 + (0 if KS == 2 else 1))}
        v_and_b32 {vu1}, 31, {vl}
        v_lshlrev_b32 {vpa}, 2, {vu1}
        s_lshl_b32 {s_t2}, {s_h}, 7
        s_add_u32 {s_t2}, {s_t2}, 4096""")
    poll_kv = f'buffer_load_dword {vpoll[0]}, {vpa}, {sfl}, {s_t2} offen sc1'
    setup2 = lines(f"""
        s_and_b32 {s_t0}, s2, 7
        s_lshr_b32 {s_t1}, s2, 3
        s_lshr_b32 {s_mt}, {s_t0}, 1
        s_lshl_b32 {s_mt}, {s_mt}, 2
        s_and_b32 {s_nt}, {s_t0}, 1
        s_lshl_b32 {s_nt}, {s_nt}, 3
        s_and_b32 {s_t0}, {s_t1}, 3
        s_add_u32 {s_mt}, {s_mt}, {s_t0}
        s_lshr_b32 {s_t0}, {s_t1}, 2
        s_add_u32 {s_nt}, {s_nt}, {s_t0}
        s_lshl_b32 {s_t0}, {s_nt}, 7
        s_lshl_b32 {s_t1}, {s_w}, 19
        s_add_u32 {s_t1}, {s_t1}, {s_t0}
        s_add_u32 {swo[0]}, {pwo[0]}, {s_t1}
        s_addc_u32 {swo[1]}, {pwo[1]}, 0
        s_sub_u32 {swo[2]}, {D * D * 2}, {s_t1}
        s_mov_b32 {swo[3]}, 0x00020000
        s_add_u32 {swd[0]}, {pwd[0]}, {s_t0}
        s_addc_u32 {swd[1]}, {pwd[1]}, 0
        s_sub_u32 {swd[2]}, {F * D * 2}, {s_t0}
        s_mov_b32 {swd[3]}, 0x00020000
        s_mul_i32 {s_t0}, {s_mt}, {288 * 4096}
        s_add_u32 {s_t0}, {s_t0}, {WS_A}
        s_add_u32 {sA[0]}, {pws[0]}, {s_t0}
        s_addc_u32 {sA[1]}, {pws[1]}, 0
        s_mov_b32 {sA[2]}, {288 * 4096}
        s_mov_b32 {sA[3]}, 0x00020000
        s_mul_i32 {s_oa}, {s_w}, {56 * 4096}
        s_lshl_b32 {s_ow}, {s_oa}, 3
        s_mov_b32 {s_oo}, 0
        s_mul_i32 {s_wb}, {s_w}, 20480
        s_add_u32 {s_wb}, {s_wb}, {W0}
        v_lshrrev_b32 {vu1}, 3, {vl}
        v_and_b32 {vu2}, 2, {vu1}
        v_lshlrev_b32 {vu2}, 1, {vu2}
        v_and_b32 {vdd[1]}, 7, {vl}
        v_xor_b32 {vu2}, {vu2}, {vdd[1]}
        v_lshlrev_b32 {vu2}, 4, {vu2}
        v_lshl_add_u32 {vdd[0]}, {vu1}, 11, {vu2}
        v_add_u32 {vdd[1]}, {8 * 2048 - 1024}, {vdd[0]}
        v_lshrrev_b32 {vu1}, 5, {vl}
        v_lshl_add_u32 {vdo[0]}, {vu1}, 13, {vdd[0]}
        v_add_u32 {vdo[1]}, {4 * 2048 - 1024}, {vdo[0]}
        v_lshl_add_u32 {vwr[0]}, {vu1}, 10, {s_wb}
        v_bfe_u32 {vu1}, {vl}, 2, 2
        v_lshl_add_u32 {vwr[0]}, {vu1}, 7, {vwr[0]}
        v_bfe_u32 {vu1}, {vl}, 3, 1
        v_lshl_add_u32 {vwr[0]}, {vu1}, 6, {vwr[0]}
        v_bfe_u32 {vu1}, {vl}, 4, 1
        v_lshl_add_u32 {vwr[0]}, {vu1}, 5, {vwr[0]}
        v_and_b32 {vu1}, 3, {vl}
        v_lshl_add_u32 {vwr[0]}, {vu1}, 3, {vwr[0]}
        v_xor_b32 {vwr[1]}, 64, {vwr[0]}
        v_mov_b32 {vkB if PA == 48 else vkA}, {vl16}
        v_add_u32 {vkA if PA == 48 else vkB}, 32768, {vl16}
        s_nop 0
        s_nop 0""")
    setup2 = setup2[:-2]
    setup1 += [f's_add_u32 {s_h1}, {s_hb}, 4096', f's_add_u32 {s_h2}, {s_hb}, 8192']
    if PT:
        setup2 += lines(f"""
        s_lshr_b32 {s_t0}, {s_nt}, 1
        s_mul_i32 {s_t0}, {s_t0}, {224 * 4096}
        s_and_b32 {s_t1}, {s_nt}, 1
        s_lshl_b32 {s_t1}, {s_t1}, 11
        s_add_u32 {s_t0}, {s_t0}, {s_t1}
        s_add_u32 {s_t0}, {s_t0}, {WS_T}
        s_add_u32 {swd[0]}, {pws[0]}, {s_t0}
        s_addc_u32 {swd[1]}, {pws[1]}, 0
        s_mov_b32 {swd[2]}, {224 * 4096 - 2048}""")
    for r in range(4):
        setup2 += [f's_add_u32 {s_t0}, {s_w}, {r + 1}', f's_and_b32 {s_t0}, {s_t0}, 3', f's_lshl_b32 {s_t0}, {s_t0}, 10', f'v_add_u32 {vA[r]}, {s_t0}, {vl16}']
    setup3 = lines(f"""
        v_and_b32 {vu1}, 7, {vl}
        v_bfe_u32 {vu2}, {vl}, 4, 1
        v_lshl_add_u32 {vo}, {vu2}, 3, {vu1}
        v_bfe_u32 {vu2}, {vl}, 3, 1
        v_lshl_add_u32 {vo}, {vu2}, 4, {vo}
        v_lshrrev_b32 {vu2}, 3, {vo}
        v_lshlrev_b32 {vu2}, 7, {vu2}
        v_lshl_add_u32 {vsc[0]}, {vu1}, 2, {vu2}
        v_lshlrev_b32 {vo}, 4, {vo}
        v_lshrrev_b32 {vu2}, 5, {vl}
        v_lshl_add_u32 {vo}, {vu2}, 9, {vo}
        v_bfe_u32 {vu2}, {vl}, 3, 2
        v_lshlrev_b32 {vu2}, 7, {vu2}
        v_lshl_add_u32 {vsc[1]}, {vu1}, 2, {vu2}
        s_lshl_b32 {s_t0}, {s_mb}, 1
        s_add_u32 {s_t0}, {s_t0}, {s_wr}
        s_mul_i32 {s_t0}, {s_t0}, 288
        s_lshl_b32 {s_t1}, {s_h}, 1
        s_add_u32 {s_t0}, {s_t0}, {s_t1}
        s_add_u32 {s_t0}, {s_t0}, 224
        s_lshl_b32 {s_t0}, {s_t0}, 12
        s_lshl_b32 {s_t1}, {s_wc}, 11
        s_add_u32 {s_t0}, {s_t0}, {s_t1}
        s_add_u32 {s_ob}, {s_t0}, {WS_A}
        s_add_u32 {s_ob2}, {s_ob}, 4096
        s_mov_b32 {s_thr}, {hex(f32bits(2.0 ** 40 if not force_slow else 0.5))}
        v_lshlrev_b32 {vpa}, 3, {vl}
        s_lshr_b32 {s_t2}, {s_mt}, 1
        s_lshl_b32 {s_t2}, {s_t2}, 9""")
    poll_h = f'buffer_load_dwordx2 {vpoll}, {vpa}, {sfl}, {s_t2} offen sc1'
    cond2 = [f'v_min_u32 {vu1}, {vpoll[0]}, {vpoll[1]}', f'v_cmp_gt_u32 vcc, 2, {vu1}']
    og_loads = [f's_lshl_b32 {s_t0}, {s_mt}, 11', f's_add_u32 {s_t0}, {s_t0}, {WS_G + 32}']
    for r in range(4):
        og_loads += [f'v_lshrrev_b32 {vu1}, 10, {vA[r]}', f'v_lshl_add_u32 {vu1}, {vu1}, 9, {vsc[1]}', f'buffer_load_dword {vog[r]}, {vu1}, {sws}, {s_t0} offen']
    g_loads = [f's_lshl_b32 {s_t0}, {s_mb}, 2', f's_add_u32 {s_t0}, {s_t0}, {s_w}', f's_lshl_b32 {s_t0}, {s_t0}, 10', f's_add_u32 {s_t0}, {s_t0}, {WS_G}'] + \
              [f'buffer_load_dword {vg[q]}, {vsc[0]}, {sws}, {s_t0} offen offset:{q * 512}' for q in range(2)]
    NE = 16 if PT else 12
    def oslot(t):
        if t >= NE: return vw2, (t - NE) * 2048, f's_add_u32 m0, {s_p}, {(t - NE) * 2048}'
        k = t if t < 4 else t - 4
        n0 = 0 if PT else NW
        if k < 10 - n0: return vwr, (n0 + k) * 2048, f's_add_u32 m0, {s_wb}, {(n0 + k) * 2048}'
        return vw3, (k - 10 + n0) * 2048, f's_add_u32 m0, {s_p}, {QS + (k - 10 + n0) * 2048}'
    WO = [R('a', aa.p + 8 * t, 8) for t in range(4)] + [R('a', 8 * t, 8) for t in range(11)] + [Sx[0][0:8]]
    assert Wf[0].a == 88 and aa.p + 32 <= 256
    vw3 = [va2(), va2()]
    def woread(t):
        base, off, _ = oslot(t)
        return [f'ds_read_b64_tr_b16 {WO[t][4*nb+2*s_:4*nb+2*s_+2]}, {base[nb]} offset:{off + s_ * 512}' for nb in range(2) for s_ in range(2)]
    vw2 = [C[0][0], C[0][1]]
    setup3 += [f's_add_u32 {s_t0}, {s_p}, {QS}', f's_sub_u32 {s_t0}, {s_t0}, {s_wb}', f'v_add_u32 {vw3[0]}, {s_t0}, {vwr[0]}', f'v_add_u32 {vw3[1]}, {s_t0}, {vwr[1]}']
    early_o = [oload(t, oslot(t)[2], 'WO') for t in range(NE)]
    assert PM % 2 == 0 and DW <= 3 and DA <= 7
    plan = {j: [] for j in range(PA)}; prej = {j: [] for j in range(PA)}
    plan[0] += setup1
    plan[1] += setup2[:21]; plan[2] += setup2[21:38]; plan[3] += setup2[38:55]; plan[4] += setup2[55:]; plan[KP] = (plan[KP] + [poll_kv]) if KP == 0 else ([poll_kv] + plan[KP])
    plan[KC] += check([f'v_cmp_gt_u32 vcc, 1, {vpoll[0]}'], [poll_kv], 'kv')
    d = kvdma(f's_add_u32 m0, {s_p}, 32768', 'KV0', False); plan[KC] += d[:3]; plan[KC + 1] += d[3:]
    d = kvdma(f's_add_u32 m0, {s_p}, 49152', 'KV1', False); plan[KC + 2] += d[:3]; plan[KC + 3] += d[3:]
    for i in range(5 if PA == 48 else 3):
        j = 13 + 8 * i
        prej[j] += [f'WAITTAG KV{i % 2}', 's_barrier']
        d = kvdma(f's_add_u32 m0, {s_p}, {(i % 4) * 16384}', f'KV{i % 2}', False)
        if KS == 2 and j == PA - 3: plan[j] += d[:2]; plan[j + 2] += d[:1] + [d[2]]
        elif KS and j >= PM: plan[j] += d[:3]; plan[j + 2] += d[:1] + d[3:]
        else: plan[j] += d[:5]; plan[j + 1] += d[5:]
    busy = (13, 21, 29, 37, 45)
    j = float(H0)
    for k in range(12):
        while int(j) in busy: j = int(j) + 1.0
        plan[int(j)].append(Ins(f'buffer_store_dwordx4 {hreg[k]}, {vl16}, {sws}, {(s_hb, s_h1, s_h2)[k // 4]} offen offset:{(k % 4) * 1024}{st_mod}', 'HST'))
        jl = int(j); j += HP
    plan[10] += setup3[:10]; plan[11] += setup3[10:20]; plan[12] += setup3[20:]
    def nextfree(j):
        while j in busy: j += 1
        return j
    jf = nextfree(jl + FG); plan[jf] += flag(2, 'FL', 'HST')
    ramp = []
    for i in range(max(DA, DW)):
        if i < DW: ramp += wload(i)
        if i < DA: ramp += hload(i)
    groups = []; curg = []; nv = 0
    for x in ramp:
        if isinstance(x, str) and ' m0,' in x and nv + 2 > RP: groups.append(curg); curg = []; nv = 0
        if isinstance(x, Ins):
            if nv >= RP and not x.text.endswith(' lds'): groups.append(curg); curg = []; nv = 0
            nv += 1
        curg.append(x)
    groups.append(curg)
    jc = PM - 1; k = len(groups)
    while k:
        jc -= 1
        if jc not in busy: k -= 1
    jp = jc - PG
    assert jp > jf, (jp, jf)
    if PT and GP:
        vgl = R('v', 224, 16)
        poll_all = [f'buffer_load_dwordx4 {vgl[4 * i:4 * i + 4]}, {vl16}, {sfl}, 0 offen offset:{i * 1024} sc1' for i in range(4)]
        cond_all = [f'v_min3_u32 {vu1}, {vgl[0]}, {vgl[1]}, {vgl[2]}'] + [f'v_min3_u32 {vu1}, {vu1}, {vgl[i]}, {vgl[i + 1]}' for i in range(3, 15, 2)] + \
                   [f'v_min_u32 {vu1}, {vu1}, {vgl[15]}', f'v_cmp_gt_u32 vcc, 2, {vu1}']
        plan[jp] += poll_all
    else: plan[jp] += [poll_h]
    jj = E0
    for t in range(0, 4, 2):
        jj = nextfree(jj + 1); plan[jj] += early_o[t] + early_o[t + 1]
    jj = nextfree(jj + 3)
    for t in range(4):
        plan[jj] += (['WAITTAG WO'] if t == 0 else []) + woread(t); jj = nextfree(jj + 1)
    for t in range(4, NE):
        plan[jj] += (['s_waitcnt lgkmcnt(0)'] if t == 4 else []) + early_o[t]
        if t % 2 == 1 or jj < jl: jj = nextfree(jj + 1)
    assert jj <= jc + 1, (jj, jc)
    if PT and GP: plan[jc] += check(cond_all, poll_all, 'h')
    else: plan[jc] += check(cond2, [poll_h], 'h') + [f's_lshl_b32 {s_t2}, {s_mb}, 9', poll_h]
    jj = jc
    for g_ in groups:
        plan[jj] += g_; jl2 = jj; jj = nextfree(jj + 1)
    assert jl2 <= PM - 2, (jl2, PM)
    plan[PM - 1] = ['WAITTAG D0 A0'] + wrd(vwr, 0, 0) + plan[PM - 1]
    NZ = PM == PA
    if NZ:
        plan[PM - 3] += og_loads
        plan[PM - 1] += check(cond2, [poll_h], 'g') + g_loads
        plan[jf + 1] += [f'v_accvgpr_write_b32 {Wf[1][i]}, 0' for i in range(4)]
        for k in range(8): zplan.setdefault(jf + 2 + k // 2, []).append(f'v_mfma_f32_32x32x16_bf16 {acc3[k // 4][k % 4]}, {Wf[1]}, {Wf[1]}, 0')
        assert jf + 6 < PM
    else:
        plan[PM + 2] += og_loads
        plan[PM + 4] += ([] if (PT and GP) else check(cond2, [poll_h], 'g')) + g_loads
    if PA == 48: plan[PA - 1] += [f's_xor_b32 {s_p}, {s_p}, 32768']
    vcp = va2()
    vtp = [va2() for _ in range(3)]
    L0 = (PA - PM) // 2 + (128 - PA) // 2
    nA = (56 - L0 - DA) * 4; nW = (56 - L0 - DW) * 4; nO = (16 - NE) * 4
    if TP1:
        plan[26] += lines(f"""
        s_and_b32 {s_t0}, {s_nt}, 7
        s_mul_i32 {s_t0}, {s_t0}, {nA}
        s_mul_i32 {s_t1}, {s_w}, {56 * 32}
        s_add_u32 {s_t0}, {s_t0}, {s_t1}
        s_add_u32 {s_t0}, {s_t0}, {(L0 + DA) * 32}
        v_add_u32 {vu1}, {s_t0}, {vl}
        v_lshlrev_b32 {vu1}, 7, {vu1}
        v_cmp_lt_u32 {smask}, {vl}, {nA}
        v_cndmask_b32 {vtp[0]}, 2.0, {vu1}, {smask}""")
        plan[27] += lines(f"""
        s_and_b32 {s_t1}, {s_mt}, 3
        s_mul_i32 {s_t0}, {s_t1}, {nO}
        s_add_u32 {s_t0}, {s_t0}, {NE * 16}
        v_add_u32 {vu1}, {s_t0}, {vl}
        v_lshlrev_b32 {vu1}, 11, {vu1}
        v_cmp_lt_u32 {smask}, {vl}, {nO}
        v_cndmask_b32 {vtp[2]}, 2.0, {vu1}, {smask}
        s_mul_i32 {s_t0}, {s_t1}, {nW}
        s_mul_i32 {s_t1}, {s_w}, {56 * 16}
        s_add_u32 {s_t0}, {s_t0}, {s_t1}
        s_add_u32 {s_t0}, {s_t0}, {(L0 + DW) * 16}
        v_add_u32 {vu1}, {s_t0}, {vl}
        v_lshlrev_b32 {vu1}, 11, {vu1}
        v_cmp_lt_u32 {smask}, {vl}, {nW}
        v_cndmask_b32 {vtp[1]}, 2.0, {vu1}, {smask}""")
    if CP2:
        plan[PM - 3] += [f's_getpc_b64 {scp[0:2]}', f'{name}_pct:', f's_and_b32 {scp[1]}, {scp[1]}, 0xffff', f's_mov_b32 {scp[2]}, {name}_slow-{name}_pct',
                         f's_mov_b32 {scp[3]}, 0x00020000', f's_lshr_b32 {s_t0}, s2, 3', f's_lshl_b32 {s_t0}, {s_t0}, 2', f's_add_u32 {s_t0}, {s_t0}, {s_w}',
                         f's_lshl_b32 {s_t0}, {s_t0}, 7', f's_add_u32 {s_t0}, {s_t0}, {name}_tail-{name}_pct', f'v_lshl_add_u32 {vcp}, {vl}, 14, {s_t0}']
    def mixed(j, st, nb, loop, misc=(), pre=(), zero=False):
        dw = wload(st + DW); da = hload(st + DA)
        if loop and exp_ & 32:
            dw = [Ins(f'buffer_load_dwordx4 a[{224 + 8 * (st % 4) + 4 * hh}:{227 + 8 * (st % 4) + 4 * hh}], {vl16}, {swd}, {s_ow} offen offset:{hh * 1024}', f'D{(st + DW) % NW}') for hh in range(2)] + dw[3:]
            if nb == 0: period(j, loop, (st, 0), misc=dw + da[:1] + list(misc), pre=pre, zero=zero)
            else:
                p.e(f'WAITTAG D{(st + 1) % NW} A{(st + 1) % NB} LGKM0')
                period(j, loop, (st, 1), misc=da[1:] + list(misc), pre=pre, zero=zero)
            return
        if nb == 0:
            period(j, loop, (st, 0), misc=wrd(vwr, (st % NW) * 2048, 1) + dw + da[:AS] + list(misc), pre=pre, zero=zero)
        else:
            p.e(f'WAITTAG D{(st + 1) % NW} A{(st + 1) % NB} LGKM0')
            period(j, loop, (st, 1), misc=wrd(vwr, ((st + 1) % NW) * 2048, 0) + da[AS:] + list(misc), pre=pre, zero=zero)
    p.seg('partA')
    for j in range(PA):
        if ptrace == -1 and j in (0, 1, 5, 7, 9, 13, 15, 21, jf, jf + 1, jc, jc + 1, PM): pf.trace()
        if j < PM: period(j, misc=plan[j], pre=prej[j])
        else: mixed(j, (j - PM) // 2, j % 2, False, misc=plan[j], pre=prej[j], zero=(j < PM + 2))
    if ptrace == -1: pf.trace()
    ST0 = (PA - PM) // 2
    pf.stamp(4)
    p.e(f's_mov_b32 {s_cnt}, {(128 - PA) // 16}')
    p.seg('loop')
    p.e(f'{name}_loop:')
    for j in range(16):
        misc = []; pre = []
        if j in (5, 13):
            pre = [f'WAITTAG KV{1 if j == 5 else 0}', 's_barrier']
        if KS == 0 and j in (5, 6, 13, 14):
            d = kvdma(f's_xor_b32 m0, {s_p}, 49152' if j < 8 else f's_mov_b32 m0, {s_p}', 'KV1' if j < 8 else 'KV0')
            misc = d[:5] if j in (5, 13) else d[5:]
        if KS == 1 and j in (5, 7, 13, 15):
            d = kvdma(f's_xor_b32 m0, {s_p}, 49152' if j < 8 else f's_mov_b32 m0, {s_p}', 'KV1' if j < 8 else 'KV0')
            misc = d[:3] if j in (5, 13) else d[:1] + d[3:]
        if KS == 2 and j % 2 == 1:
            first_ = 5 <= j < 13
            d = kvdma(f's_xor_b32 m0, {s_p}, 49152' if first_ else (f's_mov_b32 m0, {s_p}' if j >= 13 else f's_xor_b32 m0, {s_p}, 32768'), 'KV1' if first_ else 'KV0')
            k = ((j - 5) // 2) % 4
            misc = d[:1] + [d[1 + k]] + (d[5:] if k == 3 else [])
        if TP1 and j == 2: misc = misc + [f's_cmp_eq_u32 {s_cnt}, 1', f's_cselect_b32 {s_t0}, 0, 2.0']
        if TP1 and j in (4, 6, 8): misc = misc + [Ins(f'buffer_load_dword {vpd}, {vtp[j // 2 - 2]}, {(sA, swd, swo)[j // 2 - 2]}, {s_t0} offen', 'pf')]
        if j == 9 and CP2: misc = [Ins(f'buffer_load_dword {vpd}, {vcp}, {scp}, 0 offen', 'pf')]
        if j == 15: misc = misc + [f's_xor_b32 {s_p}, {s_p}, 32768', f'v_xor_b32 {vkA}, 0x8000, {vkA}', f'v_xor_b32 {vkB}, 0x8000, {vkB}']
        if ptrace == -3:
            p.e(f's_memtime {s_pt[2:4]}\ns_waitcnt lgkmcnt(0)\nv_writelane_b32 {vtr}, {s_pt[2]}, {j}')
        mixed(j, ST0 + j // 2, j % 2, True, misc=misc, pre=pre)
    p.e(f's_sub_u32 {s_cnt}, {s_cnt}, 1\ns_cmp_lg_u32 {s_cnt}, 0\ns_cbranch_scc1 {name}_loop')

    p.seg('tail')
    p.e(f'{name}_tail:')
    pf.stamp(5)
    if ptrace == -2: pf.trace()
    p.add([cvt(15, 7), pv(15, 0), pv(15, 1), rsum(1)])
    def lsum():
        p.e(f"""
        v_accvgpr_read_b32 {vsc[0]}, {L[0][0]}
        v_accvgpr_read_b32 {vu0}, {L[0][1]}
        v_accvgpr_read_b32 {vsc[1]}, {L[1][0]}
        v_accvgpr_read_b32 {vu1}, {L[1][1]}
        v_add_f32 {vsc[0]}, {vsc[0]}, {vu0}
        v_add_f32 {vsc[1]}, {vsc[1]}, {vu1}
        """)
    lsum()
    p.e(f"""
    v_cmp_nle_f32 vcc, {vsc[0]}, {s_thr}
    v_cmp_nle_f32 {smask}, {vsc[1]}, {s_thr}
    s_or_b64 vcc, vcc, {smask}
    s_cbranch_vccnz {name}_slow
    """)
    p.seg('epi')
    p.e(f'{name}_epi:')
    LATE0 = ST0 + (128 - PA) // 2
    vs2 = [P[1][0:2], P[1][2:4]]
    vq_ = []
    o_next = NE
    for st_ in range(LATE0, 56):
        if st_ + DW < 56: vq_.append((st_ + DW - NW + 1, wload(st_ + DW)))
        if st_ + DA < 56: vq_.append((st_ + DA - NB + 1, hload(st_ + DA)))
        if o_next < 16: vq_.append((0, oload(o_next, oslot(o_next)[2], 'WO'))); o_next += 1
    assert o_next == 16
    cur = []
    def onevm(st):
        nonlocal cur
        if not cur and vq_ and vq_[0][0] <= st: cur = list(vq_.pop(0)[1])
        if not cur: return False
        while cur:
            x = cur.pop(0); p.add([x])
            if isinstance(x, Ins): break
        while cur and not any(isinstance(y, Ins) for y in cur): p.add([cur.pop(0)])
        return True
    p.e(f"""
    v_rcp_f32 {vsc[0]}, {vsc[0]}
    v_rcp_f32 {vsc[1]}, {vsc[1]}
    s_mul_i32 {s_p}, {s_wr}, 49152
    s_lshl_b32 {s_t0}, {s_wc}, 13
    s_add_u32 {s_p}, {s_p}, {s_t0}
    s_barrier
    v_mul_f32 {vs2[0][0]}, {vsc[0]}, {vg[0]}
    v_mul_f32 {vs2[1][0]}, {vsc[1]}, {vg[1]}
    v_mov_b32 {vs2[0][1]}, {vs2[0][0]}
    v_mov_b32 {vs2[1][1]}, {vs2[1][0]}
    """)
    for q in range(2):
        for f in range(2):
            t_ = Sx[q][8 * f:8 * f + 8]
            if EV: onevm(LATE0)
            for i in range(8): p.e(f'v_accvgpr_read_b32 {t_[i]}, {O[q][8*f+i]}')
            if EV > 1: onevm(LATE0)
            for i in range(4): p.e(f'v_pk_mul_f32 {t_[2*i:2*i+2]}, {t_[2*i:2*i+2]}, {vs2[q]}')
            for i in range(4): p.e(f'v_cvt_pk_bf16_f32 {t_[i]}, {t_[2*i]}, {t_[2*i+1]}')
            p.e(f'buffer_store_dwordx4 {t_[0:4]}, {vo}, {sws}, {(s_ob, s_ob2)[f]} offen offset:{q * 1024}{st_mod}', 'OST')
    vout = C[0][4]; vrw = [C[0][5], C[0][6], C[0][7]]; vrr = C[0][8]
    sk = [s_h1, s_h2, s_hb, s_left]
    vA2 = [[vA[r], Sx[1][3 * r], Sx[1][3 * r + 1], Sx[1][3 * r + 2]] for r in range(4)]
    late2 = lines(f"""
        s_sub_u32 {s_t0}, {s_p}, {s_wb}
        v_add_u32 {vw2[0]}, {s_t0}, {vwr[0]}
        v_add_u32 {vw2[1]}, {s_t0}, {vwr[1]}
        s_lshl_b32 {s_t0}, {s_mt}, 18
        s_lshl_b32 {s_t1}, {s_nt}, 7
        s_add_u32 {s_t0}, {s_t0}, {s_t1}
        s_add_u32 {sout[0]}, {pout[0]}, {s_t0}
        s_addc_u32 {sout[1]}, {pout[1]}, 0
        s_sub_u32 {sout[2]}, {S * D * 2}, {s_t0}
        s_mov_b32 {sout[3]}, 0x00020000
        v_and_b32 {vu1}, 31, {vl}
        s_lshl_b32 {s_t0}, {s_w}, 16
        v_lshl_add_u32 {vout}, {vu1}, 11, {s_t0}
        v_lshrrev_b32 {vu1}, 5, {vl}
        v_lshl_add_u32 {vout}, {vu1}, 4, {vout}
        v_bfe_u32 {vu1}, {vl}, 1, 3
        v_and_b32 {vu2}, 1, {vl}
        v_lshlrev_b32 {vu2}, 2, {vu2}
        v_lshl_add_u32 {vpa}, {vu1}, 4, {vu2}
        s_lshr_b32 {s_t2}, {s_mt}, 1
        s_lshl_b32 {s_t2}, {s_t2}, 9
        s_lshl_b32 {s_t0}, {s_w}, 7
        s_add_u32 {s_t2}, {s_t2}, {s_t0}
        s_and_b32 {s_t0}, {s_mt}, 1
        s_lshl_b32 {s_t0}, {s_t0}, 3
        s_add_u32 {s_t2}, {s_t2}, {s_t0}
        s_mul_i32 {s_t0}, {s_w}, 24576
        v_add_u32 {vrr}, {s_t0}, {vl16}
        s_lshl_b32 {s_t1}, {s_w}, 16
        s_add_u32 {s_t1}, {s_t1}, {224 * 4096}""")
    late2[6:8] = [late2[6:8]]
    for r in range(3):
        late2 += [f'v_lshrrev_b32 {vu1}, 10, {vA[r]}', f'v_mul_u32_u24 {vu1}, 24576, {vu1}', f'v_add_u32 {vu1}, {(2 - r) * 8192}, {vu1}', f'v_add_u32 {vrw[r]}, {vu1}, {vl16}']
    for i in range(4):
        late2 += [f's_add_u32 {sk[i]}, {s_t1}, {i * 16384}']
    for r in range(4):
        for i in range(1, 4): late2.append(f'v_add_u32 {vA2[r][i]}, {i * 4096}, {vA[r]}')
    vtw = [C[1][i] for i in range(4)]; vtr_ = C[1][4]; sf = [0, s_ow, s_oo, s_ob]
    fin_setup = lines(f"""
        s_lshl_b32 {s_t0}, {s_w}, 12
        s_add_u32 {s_t0}, {s_t0}, {QS}
        v_and_b32 {vu1}, 31, {vl}
        v_lshl_add_u32 {vtw[0]}, {vu1}, 7, {s_t0}
        v_lshrrev_b32 {vu2}, 5, {vl}
        v_xor_b32 {vu2}, {vu2}, {vl}
        v_and_b32 {vu2}, 7, {vu2}
        v_lshl_add_u32 {vtw[0]}, {vu2}, 4, {vtw[0]}
        v_xor_b32 {vtw[1]}, 32, {vtw[0]}
        v_xor_b32 {vtw[2]}, 64, {vtw[0]}
        v_xor_b32 {vtw[3]}, 0x60, {vtw[0]}
        v_lshrrev_b32 {vu1}, 3, {vl}
        v_xor_b32 {vu2}, {vu1}, {vl}
        v_and_b32 {vu2}, 7, {vu2}
        v_lshl_add_u32 {vtr_}, {vu1}, 7, {s_t0}
        v_lshl_add_u32 {vtr_}, {vu2}, 4, {vtr_}
        v_and_b32 {vu2}, 7, {vl}
        v_lshlrev_b32 {vu2}, 4, {vu2}
        s_lshl_b32 {s_t0}, {s_w}, 16
        v_lshl_add_u32 {vout}, {vu1}, 11, {s_t0}
        v_add_u32 {vout}, {vout}, {vu2}""") + [f's_mov_b32 {sf[i]}, {i * 16384}' for i in range(1, 4)]
    poll_o = f'buffer_load_dword {vpoll[0]}, {vpa}, {sfl}, {s_t2} offen sc1'
    AB = [Ab[i // 4][i % 4] for i in range(32)]
    abfree = [48 + i // 4 for i in range(32)]
    if PT:
        AB = [Ab[6 + i // 4][i % 4] for i in range(8)]; abfree = [0] * 8
        for b in range(4):
            AB += Ab[b] + Wb[b]; abfree += [52 + b] * 6
    def aload(i):
        r, t = divmod(i, 16)
        return f'buffer_load_dwordx4 {AB[i % 32]}, {vA2[r][t % 4]}, {sA}, {sk[t // 4]} offen{lm2}'
    a_next = 0; side = list(late2); checked = False
    for st in range(LATE0, 56):
        if ptrace == -2: pf.trace()
        n0 = wrd(vwr, (st % NW) * 2048, 1)
        n1 = ([f'WAITTAG D{(st + 1) % NW} A{(st + 1) % NB}'] + wrd(vwr, ((st + 1) % NW) * 2048, 0)) if st < 55 else []
        if st == LATE0 + 1: side = [flag(3, 'FL', 'OST')] + side
        if st == LATE0 + 2: side += [x for t in range(4, NE) for x in woread(t)]
        for c in range(8):
            nb, tb = divmod(c, 4)
            p.e(gm(st, nb, tb if nb == 0 else 3 - tb))
            if c == 0: p.add(n0)
            if c == 4: p.add(n1)
            if st == LATE0 + OC - PO and c == 1:
                assert not any(isinstance(y, str) and (str(vpa) + ',' in y or str(s_t2) + ',' in y) for y in side)
                p.e(poll_o)
            if st == LATE0 + OC and c == 1:
                p.add(check([f'v_cmp_gt_u32 vcc, 3, {vpoll[0]}'], [poll_o], 'o')); checked = True
                if TP2:
                    p.e(f's_and_b32 {s_t0}, {s_nt}, 7\ns_lshl_b32 {s_t0}, {s_t0}, 13\ns_add_u32 {s_t0}, {s_t0}, {sk[0]}\nv_lshlrev_b32 {vu1}, 7, {vl}')
                    p.add([Ins(f'buffer_load_dword {vpd}, {vu1}, {sA}, {s_t0} offen', 'pf')])
            if onevm(st): pass
            elif checked and a_next < AL and abfree[a_next] < st and st >= 56 - ALS:
                assert not any(y in late2 for y in side)
                p.e(aload(a_next)); a_next += 1
            for _ in range(3 if st < LATE0 + 2 else 2):
                if side:
                    x = side.pop(0); p.add(x if isinstance(x, list) else [x])
    assert not cur and not vq_ and checked and not side
    if ptrace == -2: pf.trace()
    pf.stamp(6)
    def scale(r): return [f'v_mul_f32 {acc3[nb][r][i]}, {acc3[nb][r][i]}, {vog[r]}' for nb in range(2) for i in range(16)]
    p.e('WAITTAG WO')
    rds = [x for t in range(NE, 16) for x in woread(t)]
    for k, x in enumerate(scale(0)):
        p.e(x)
        if k % 4 == 1 and rds: p.e(rds.pop(0))
        if k % 8 == 3 and a_next < AL + 4: p.e(aload(a_next)); a_next += 1
    side = []
    for k, x in enumerate(scale(1)):
        side.append(x)
        if rds: side.append(rds.pop(0))
    assert not rds
    def rdpart(sl, dst): return [f'ds_read_b128 {acc3[n_][dst][4*j:4*j+4]}, {vrr} offset:{sl * 8192 + (n_ * 4 + j) * 1024}' for n_ in range(2) for j in range(4)]
    def addpart(src): return [f'v_add_f32 {acc3[n_][0][e]}, {acc3[n_][0][e]}, {acc3[n_][src][e]}' for n_ in range(2) for e in range(16)]
    wr = []; dens = 2
    for i in range(64):
        r, t = divmod(i, 16)
        if ptrace == -2 and i % 8 == 0: pf.trace()
        for nb in range(2):
            if nb == 0:
                if i == 16: side += scale(2)
                if i == 16 + 2:
                    p.e('s_waitcnt lgkmcnt(0)\ns_barrier')
                if i == 32:
                    assert not side
                    side += scale(3); dens = 3 if FT else 2
                if i == 33 and FT:
                    side += fin_setup
                if i == 32 + 11:
                    assert not wr and not side
                    p.e('s_waitcnt lgkmcnt(0)\ns_barrier')
                    side += rdpart(2, 0) + rdpart(1, 1) + [None] * 4 + addpart(1); dens = 3
                if i == 48 + 7:
                    assert not wr and not side
                    p.e('s_waitcnt lgkmcnt(0)\ns_barrier')
                    side += rdpart(0, 2) + [None] * 6 + addpart(2)
            p.e(f'v_mfma_f32_32x32x16_bf16 {acc3[nb][r]}, {WO[t][4*nb:4*nb+4]}, {AB[i % 32]}, {acc3[nb][r]}')
            if a_next < 64 and a_next <= i + 30 and (nb == 0 or a_next < i + ALM): p.e(aload(a_next)); a_next += 1
            if wr and t >= 2 and (nb == 1 or r == 3): p.e(wr.pop(0))
            for _ in range(dens):
                if side:
                    x = side.pop(0)
                    if x: p.e(x)
        if t == 15 and r < 3:
            assert not wr
            wr = [f'ds_write_b128 {vrw[r]}, {acc3[nb][r][4*j:4*j+4]} offset:{(nb * 4 + j) * 1024}' for nb in range(2) for j in range(4)]
    fin = side
    assert a_next == 64
    pf.stamp(7)
    p.add([x for x in fin if x])
    for nb in range(2):
        a_ = acc3[nb][3]
        for jp in range(2):
            for i in range(4 * jp, 4 * jp + 4): p.e(f'v_pk_add_f32 {a_[2*i:2*i+2]}, {a_[2*i:2*i+2]}, {acc3[nb][0][2*i:2*i+2]}')
            o = Sx[0][8 + 4 * jp:12 + 4 * jp] if nb == 0 else P[0][4 * jp:4 * jp + 4]
            for i in range(4): p.e(f'v_cvt_pk_bf16_f32 {o[i]}, {a_[8 * jp + 2 * i]}, {a_[8 * jp + 2 * i + 1]}')
            p.e(f'v_permlane32_swap_b32 {o[0]}, {o[2]}\nv_permlane32_swap_b32 {o[1]}, {o[3]}')
            if FT: p.e(f'ds_write_b128 {vtw[2 * nb + jp]}, {o}')
            else: p.e(f'buffer_store_dwordx4 {o}, {vout}, {sout}, 0 offen offset:{nb * 64 + jp * 32}' + ('', ' sc1', ' nt', ' sc0 sc1')[OUTM])
    if FT:
        p.e('s_waitcnt lgkmcnt(0)')
        for i in range(4): p.e(f'ds_read_b128 {acc3[0][1][4*i:4*i+4]}, {vtr_} offset:{i * 1024}')
        for i in range(4): p.e(f'buffer_store_dwordx4 {acc3[0][1][4*i:4*i+4]}, {vout}, {sout}, {sf[i]} offen' + ('', ' sc1', ' nt', ' sc0 sc1')[OUTM])
    pf.stamp(8)
    pf.flush(s_w, sws, vl, vu0)
    if PRB or PRA:
        p.e(f"""
        v_readlane_b32 {s_t0}, {vtr}, {44 + 2 * PRA}
        v_readlane_b32 {s_t1}, {vtr}, {44 + 2 * PRB}
        v_readlane_b32 {s_t2}, {vtr}, 62
        s_nop 4
        s_sub_u32 {s_t0}, {s_t1}, {s_t0}
        s_min_u32 {s_t0}, {s_t0}, 20000
        s_lshl_b32 {s_t0}, {s_t0}, {PRS}
        s_mov_b32 {s_cnt}, 200000
        {name}_probe:
        s_memrealtime {s_pt[0:2]}
        s_waitcnt lgkmcnt(0)
        s_sub_u32 {s_t1}, {s_pt[0]}, {s_t2}
        s_cmp_ge_u32 {s_t1}, {s_t0}
        s_cbranch_scc1 {name}_probe_done
        s_sub_u32 {s_cnt}, {s_cnt}, 1
        s_cmp_lg_u32 {s_cnt}, 0
        s_cbranch_scc1 {name}_probe
        {name}_probe_done:
        """)
    if dbg > 0:
        p.e(f"""
        v_readlane_b32 {s_t0}, {vtr}, 44
        v_readlane_b32 {s_t1}, {vtr}, 45
        v_and_b32 {vu1}, 1, {vl}
        v_cmp_eq_u32 vcc, 0, {vu1}
        v_mov_b32 {vu1}, {s_t0}
        v_mov_b32 {vu2}, {s_t1}
        v_cndmask_b32 {vu1}, {vu2}, {vu1}, vcc
        v_sub_u32 {vu1}, {vtr}, {vu1}
        v_subrev_u32 {vu2}, 46, {vl}
        v_lshlrev_b32 {vu2}, 2, {vu2}
        v_cmp_gt_u32 vcc, 64, {vu2}
        v_cndmask_b32 {vu2}, 2.0, {vu2}, vcc
        s_mov_b32 {skv[0]}, {pdbg[0]}
        s_mov_b32 {skv[1]}, {pdbg[1]}
        s_movk_i32 {skv[2]}, 64
        s_lshl_b32 {s_t0}, s2, 2
        s_add_u32 {s_t0}, {s_t0}, {s_w}
        s_cmp_eq_u32 {s_t0}, {dbg - 1}
        s_cselect_b32 {s_t0}, 0, 2.0
        buffer_store_dword {vu1}, {vu2}, {skv}, {s_t0} offen
        """)
    p.e('s_endpgm')

    p.seg('slow0')
    p.e(f'{name}_slow:')
    p.e(f"""
    s_waitcnt vmcnt(0) lgkmcnt(0)
    v_mov_b32 {vu0}, 0xff800000
    v_mov_b32 {vu1}, 0xff800000
    s_mov_b32 {s_okv}, 0
    s_mov_b32 {skv[2]}, 262144
    """)
    p.seg('slow1')
    p.e(f'{name}_slow1:')
    for f in range(2): p.e(f'buffer_load_dwordx4 {K[0][4*f:4*f+4]}, {vl16}, {skv}, {s_okv} offen offset:{f * 1024}')
    for q in range(2):
        for f in range(2): p.e(qk(Sx[q], 0, q, f, '0'))
    rowmax(vu0, Sx[0], False); rowmax(vu1, Sx[1], False)
    p.e(f's_add_u32 {s_okv}, {s_okv}, 4096\ns_cmp_lt_u32 {s_okv}, 262144\ns_cbranch_scc1 {name}_slow1')
    p.seg('slow2')
    setc(0, vu0); setc(1, vu1)
    for q in range(2):
        for i in range(16): p.e(f'v_accvgpr_write_b32 {O[q][i]}, 0')
        for i in range(4): p.e(f'v_accvgpr_write_b32 {L[q][i]}, 0')
    p.e(f's_mov_b32 {s_okv}, 0')
    p.seg('slow3')
    p.e(f'{name}_slow3:')
    for f in range(2): p.e(f'buffer_load_dwordx4 {K[0][4*f:4*f+4]}, {vl16}, {skv}, {s_okv} offen offset:{f * 1024}')
    for f in range(2): p.e(f'buffer_load_dwordx4 {V[0][4*f:4*f+4]}, {vl16}, {skv}, {s_okv} offen offset:{2048 + f * 1024}')
    for q in range(2):
        for f in range(2): p.e(qk(Sx[q], 0, q, f, C[q]))
    for q in range(2):
        for i in range(16): p.e(f'v_exp_f32 {Sx[q][i]}, {Sx[q][i]}')
        for i in range(8): p.e(cvt(q, i))
        p.add([pv(q, 0), pv(q, 1), rsum(q)])
    p.e(f's_add_u32 {s_okv}, {s_okv}, 4096\ns_cmp_lt_u32 {s_okv}, 262144\ns_cbranch_scc1 {name}_slow3')
    p.seg('slow4')
    lsum()
    p.e(f's_branch {name}_epi')
    for lab, cond, reload_ in spins:
        p.seg(lab)
        p.e(f'{lab}_spin:\ns_mov_b32 {s_cnt if lab.endswith("cnt") else s_spin}, {SPIN}\n{lab}_again:\ns_sleep 2')
        p.add(reload_)
        p.e('s_waitcnt vmcnt(0)\ns_nop 1')
        p.add(cond)
        r_ = s_cnt if lab.endswith('cnt') else s_spin
        p.e(f's_nop 4\ns_cbranch_vccz {lab}_ok\ns_sub_u32 {r_}, {r_}, 1\ns_cmp_lg_u32 {r_}, 0\ns_cbranch_scc1 {lab}_again\ns_branch {lab}_ok')
    p.seg('end')
    p.e(f'{name}_end:\ns_endpgm')
    mid = ['join', 'partA', 'loop', 'loop', 'tail']
    slow = ['slow0', 'slow1', 'slow1', 'slow2', 'slow3', 'slow3', 'slow4']
    traces = []
    for wc in range(2):
        for x in ([],):
            traces.append(['pro'] + x + [f'c{wc}a', f'c{wc}l1', f'c{wc}l2', f'c{wc}l1', f'c{wc}l2', f'c{wc}l1', f'c{wc}last'] + mid + ['epi'])
    traces.append(mid + slow + ['epi'])
    for lab, _, _ in spins: traces.append([lab])
    p.auto_waits(traces)
    nn = p.hazards(traces)
    return kernel_header(name) + p.text(), kernel_desc(name), dict(nops=nn, v=va.p, a=aa.p, s=max(sa.p, s_hi))

if __name__ == '__main__':
    import sys
    NAME = 'gated_mix__softmax_full_mha__glu_gated_bilinear__prompt'
    REF = f'cdna_kernels/{NAME}.s.ref'
    dst = sys.argv[1]
    kw = {a.split('=')[0]: float(a.split('=')[1]) if '.' in a else int(a.split('=')[1]) for a in sys.argv[2:] if '=' in a}
    t, d, info = gen_fused(NAME + '_kernel', prof='prof' in sys.argv, force_slow='slow' in sys.argv, **kw)
    print(info, file=sys.stderr)
    head = [l for l in open(REF).read().split('\n') if l.startswith(';') and '@launch' not in l]
    doc = '''; One persistent launch, 256 workgroups x 4 waves (one wave per SIMD, 512 registers, 160 KiB LDS).
;   phase 1  x[256 rows] @ [wq_h wk_h wv_h | w_gate 112 cols | w_up 112 cols], 16x16x32 MFMA, LDS-DMA double buffer.
;   phase 2  softmax(QK^T)V for the block's 256 queries (32x32x16 MFMA), interleaved with the down projection of a
'''
    out = '\n'.join(head) + f'\n; @launch grid=(256,1,1) block=(256,1,1) lds={F_LDS}\n' + doc + '.amdgcn_target "amdgcn-amd-amdhsa--gfx950"\n' + t + d
    open(dst, 'w').write(out)
```

```python
from gen_common import *

X0, X1, W0, W1, QS = 0, 32768, 65536, 106496, 147456
F_LDS = 163840
WS_FL = 33 << 20
WS_T = 36 << 20
DBG_CNT = 64
SPIN = 40000

def gen_fused(name, prof=False, pfd=3, cq=8, cg=6.5, cx=4, NB=8, DA=4, DW=3, RP=6, PM=36, HP=1.25, force_slow=False, ptrace=0, dbg=0, exp_=0, VSP=2, PFP=18, OC=8, KP=1, H0=2, ROT=0, CPF=1, OUTM=1, CP0=1, CP2=0, FG=3, TLB=0, EV=1, DL=6, PT=0, GP=0, OWN=0, NOPF=0, XP2=0, PRS=2, TT=1, TP1=0, TP2=0, AL=16, ALS=2, ALM=18, FT=1, PA=48, AS=1, KS=2, PK=0, PKR=1, AW=1, KF=100, KC=5, FOFF=0, S1P=10, MWT=0, LM1=0, LM2=0, PO=3, LP=0, PRE=-1, PF0=0, PD0=3, xpf=1, F0=0, FS=1.0, GD=2, SMC=16, VMC=8, VPEN=16, MW=1, PRA=0, PRB=0, PG=3, E0=11, st_mod=' sc1'):
    pfm = 1
    kv_mod = '' if exp_ & 64 else st_mod
    lm1 = ('', ' sc1', ' nt', ' sc0')[LM1]; lm2 = ('', ' sc1', ' nt', ' sc0')[LM2]
    p = Prog()
    sa = Alloc('s', 4, 102); va = Alloc('v', 1, 256); aa = Alloc('a', 0, 256)
    ptr = sa(16, 4)
    px, pqkv, pwo, pwg, pwu, pwd, pgw = ptr[0:2], ptr[2:4], ptr[4:6], ptr[8:10], ptr[10:12], ptr[12:14], ptr[14:16]
    pod = sa(4, 4); pout, pdbg = pod[0:2], pod[2:4]
    pws = sa(2); smask = sa(2)
    sws = sa(4); sfl = sa(4); sdbg = sa(4)
    s_mb, s_h, s_w, s_wr, s_wc, s_t0, s_t1, s_t2, s_cnt, s_tr, s_hb = [sa() for _ in range(11)]
    s_pt = sa(4, 2)
    s_base = sa.p
    sx = sa(4); sq = sa(4); sg = sa(4); spf = sa(4); sp2 = sa(4); sp3 = sa(4)
    s_c0, s_c1, s_ox, s_oq, s_og, s_pfo, s_pfs, s_gs, s_grp, s_ano = [sa() for _ in range(10)]
    s_mx, s_mw, s_msk = sa(), sa(), sa()
    sp4 = sa(4)
    s_hi = sa.p

    vl, vpd, vflag, vtr, vflk = [va() for _ in range(5)]
    v_base = va.p
    pf = Prof2(p, prof, s_pt, vtr, s_tr)
    vdx = [va() for _ in range(8)]; vdq = [va() for _ in range(2)]; vdq.append(vdq[0]); vdg = [va() for _ in range(7)]
    vxr = [va() for _ in range(2)]; vqr = [va() for _ in range(2)]; vgr = [va() for _ in range(2)]
    vt0, vt1, vt2, vt3, vpf = [va() for _ in range(5)]
    vcnt = va(); vwo = va()
    vtmp = va(28, 4)
    assert vtmp.a == 36
    xlo = [[aa(8, 4) for _ in range(4)] for _ in range(2)]; xhi = [aa(8, 4) for _ in range(4)]
    def xf(st, m, ks): return (xlo[st][m] if m < 4 else xhi[m - 4])[4 * ks:4 * ks + 4]
    NSLOT = 4; DIST = 3
    wf = [aa(8, 4) for _ in range(NSLOT)]
    acc = [[None] * 8 for _ in range(10)]
    for n in [0, 1, 6, 7, 8, 9, 2, 3, 4, 5]:
        for m in range(8):
            acc[n][m] = va(4, 4) if va.p + 4 <= 256 else aa(4, 4)

    def lines(s): return [x.strip() for x in s.strip().split('\n')]
    def dma_x(st):
        L = []
        for i in range(8):
            pre = [f's_add_u32 m0, {s_mx}, {(X0, X1)[st] + (i // 4) * 4096}'] if i % 4 == 0 else []
            L.append((pre, Ins(f'buffer_load_dwordx4 {vdx[i]}, {sx}, {s_ox} offen offset:{(i % 4) * 1024}{lm1} lds', f'S{st}')))
        return L
    def dma_w(st):
        L = []
        for i in range(10):
            pre = [f's_add_u32 m0, {s_mw}, {(W0, W1)[st] + (i // 4) * 4096}'] if i % 4 == 0 else []
            v, sr, so = (vdq[i - 7], sq, s_oq) if i >= 7 else (vdg[i], sg, s_og)
            L.append((pre, Ins(f'buffer_load_dwordx4 {v}, {sr}, {so} offen offset:{(i % 4) * 1024}{lm1} lds', f'S{st}')))
        return L
    def emit(lst):
        for pre, ins in lst:
            p.add(pre); p.add([ins])
    adv = [f's_add_u32 {s_oq}, {s_oq}, {64 * 6144}', f's_add_u32 {s_og}, {s_og}, {64 * 7168}', f's_add_u32 {s_ox}, {s_ox}, 128']

    p.seg('pro')
    p.e(f"""
    s_cmp_ge_u32 s2, 256
    s_cbranch_scc1 {name}_end
    """)
    if ptrace == 3:
        p.e(f's_memtime {s_pt[2:4]}\ns_waitcnt lgkmcnt(0)\ns_mov_b32 {s_hb}, {s_pt[2]}')
    if PRA == -1:
        p.e(f's_memrealtime {s_pt[2:4]}\ns_waitcnt lgkmcnt(0)\ns_mov_b32 {s_hb}, {s_pt[2]}')
    p.e(f"""
    s_load_dwordx16 {ptr}, s[0:1], 0
    s_load_dwordx4 {pod}, s[0:1], 64
    s_load_dwordx2 {pws}, s[0:1], 80
    v_lshrrev_b32 {vt0}, 6, v0
    v_and_b32 {vl}, 63, v0
    s_lshr_b32 {s_t1}, s2, 3
    v_readfirstlane_b32 {s_w}, {vt0}
    s_and_b32 {s_mb}, {s_t1}, 7
    s_and_b32 {s_t0}, s2, 7
    s_lshr_b32 {s_t1}, {s_t1}, 3
    s_lshl_b32 {s_h}, {s_t0}, 2
    s_add_u32 {s_h}, {s_h}, {s_t1}
    s_lshr_b32 {s_wr}, {s_w}, 1
    s_and_b32 {s_wc}, {s_w}, 1
    """)
    if CP0:
        p.e(f"""
        s_getpc_b64 {sp3[0:2]}
        {name}_pcs:
        s_and_b32 {sp3[1]}, {sp3[1]}, 0xffff
        s_mov_b32 {sp3[2]}, {name}_join-{name}_pcs
        s_mov_b32 {sp3[3]}, 0x00020000
        s_lshr_b32 {s_t0}, s2, 3
        s_lshl_b32 {s_t0}, {s_t0}, 2
        s_add_u32 {s_t0}, {s_t0}, {s_w}
        s_lshl_b32 {s_t0}, {s_t0}, 7
        v_lshl_add_u32 {vwo}, {vl}, 14, {s_t0}
        """)
        p.add([Ins(f'buffer_load_dword {vpd}, {vwo}, {sp3}, 0 offen', 'pf')])
    vxp, vgp = vtmp[0], vtmp[1]
    if XP2: p.e(f'v_mov_b32 {vtmp[3]}, 2.0')
    p.e(f"""
    v_and_b32 {vt0}, 7, {vl}
    v_lshrrev_b32 {vt1}, 3, {vl}
    v_mul_u32_u24 {vt2}, 86, {vt1}
    v_lshrrev_b32 {vt2}, 8, {vt2}
    v_mad_i32_i24 {vt1}, {vt2}, -3, {vt1}
    v_lshl_add_u32 {vt0}, {vt2}, 6, {vt0}
    s_lshl_b32 {s_t0}, {s_mb}, 3
    v_add_u32 {vt0}, {s_t0}, {vt0}
    s_cmp_eq_u32 {s_w}, 3
    s_movk_i32 {s_c0}, 7168
    s_cmov_b32 {s_c0}, 6144
    s_movk_i32 {s_c1}, 108
    s_cmov_b32 {s_c1}, 2048
    v_mul_u32_u24 {vt0}, {s_c0}, {vt0}
    v_mad_u32_u24 {vxp}, {vt1}, {s_c1}, {vt0}
    v_cmp_gt_u32 vcc, 48, {vl}
    s_lshl_b32 {s_t0}, {s_t1}, 17
    v_lshl_add_u32 {vt0}, {vl}, 11, {s_t0}
    v_cndmask_b32 {vxp}, 2.0, {vxp}, vcc
    s_cmp_eq_u32 {s_w}, 0
    s_cselect_b64 vcc, -1, 0
    v_cndmask_b32 {vxp}, {vxp}, {vt0 if not XP2 else vtmp[3]}, vcc
    """)
    if XP2:
        p.e(f"""
        s_lshl_b32 {s_c0}, {s_w}, 15
        s_add_u32 {s_t0}, {s_t0}, {s_c0}
        v_lshrrev_b32 {vt0}, 1, {vl}
        v_lshl_add_u32 {vt0}, {vt0}, 11, {s_t0}
        v_and_b32 {vt1}, 1, {vl}
        v_lshl_add_u32 {vt0}, {vt1}, 7, {vt0}
        v_cmp_gt_u32 vcc, 32, {vl}
        v_cndmask_b32 {vtmp[4]}, 2.0, {vt0}, vcc
        """)
    x_addr = lines(f"""
    v_lshrrev_b32 {vt0}, 3, {vl}
    v_and_b32 {vt1}, 7, {vl}
    v_lshrrev_b32 {vt2}, 4, {vl}
    v_xor_b32 {vt1}, {vt1}, {vt2}
    v_lshlrev_b32 {vt3}, 11, {vt0}
    s_lshl_b32 {s_c0}, {s_w}, 17
    v_add_u32 {vt3}, {s_c0}, {vt3}
    v_lshl_add_u32 {vdx[0]}, {vt1}, 4, {vt3}
    v_xor_b32 {vt1}, 4, {vt1}
    v_lshl_add_u32 {vdx[1]}, {vt1}, 4, {vt3}
    v_add_u32 {vdx[1]}, {16384 - 1024}, {vdx[1]}
    s_lshl_b32 {s_mx}, {s_w}, 13
    s_mov_b32 {s_ox}, 0""") + [f'v_add_u32 {vdx[i]}, {(i - i % 2) * 16384 - (i % 4 - i % 2) * 1024}, {vdx[i % 2]}' for i in range(2, 8)]
    q_addr = lines(f"""
    v_lshrrev_b32 {vt0}, 2, {vl}
    v_and_b32 {vt2}, 2, {vt2}
    v_and_b32 {vt1}, 3, {vl}
    v_xor_b32 {vt1}, {vt1}, {vt2}
    s_lshl_b32 {s_c0}, {s_w}, 4
    v_add_u32 {vt0}, {s_c0}, {vt0}
    v_mul_u32_u24 {vt0}, 6144, {vt0}
    v_lshl_add_u32 {vdq[1]}, {vt1}, 4, {vt0}
    v_add_u32 {vdq[0]}, 1024, {vdq[1]}
    s_mul_i32 {s_mw}, {s_w}, 10240
    s_mov_b32 {s_oq}, 0
    s_mov_b32 {s_og}, 0""")
    if PRE >= 0: p.add(x_addr + q_addr)
    def gu_offsets():
        L = [lines(f"""
        s_mul_i32 {s_t0}, {s_wc}, {32 * 7168}
        s_movk_i32 {s_c0}, 6944
        s_movk_i32 {s_c1}, 28672
        v_mul_u32_u24 {vt3}, 4682, {vl}
        v_lshl_add_u32 {vtmp[2]}, {vl}, 4, {s_t0}""")]
        for j in range(7):
            tj = vt3; q_ = []
            if j:
                q_.append(f'v_add_u32 {vt0}, {64 * j * 4682}, {vt3}'); tj = vt0
            q_ += lines(f"""
            v_bfe_u32 {vt1}, {tj}, 18, 1
            v_bfe_u32 {vt2}, {tj}, 19, 1
            v_lshrrev_b32 {vt0}, 16, {tj}
            v_sub_u32 {vt1}, {vt1}, {vt2}
            v_mad_u32_u24 {vdg[j]}, {vt0}, {s_c0}, {vtmp[2]}
            v_mad_i32_i24 {vdg[j]}, {vt1}, {s_c1}, {vdg[j]}""")
            if j == 3: q_.append(f'v_add_u32 {vtmp[2]}, 4096, {vtmp[2]}')
            L.append(q_)
        return L
    gu = gu_offsets()
    if PRE >= 1:
        for q_ in gu: p.add(q_)
    PD = pfd
    gpf_addr = lines(f"""
        s_cmp_eq_u32 {s_w}, 0
        s_cselect_b32 {s_grp}, 12, 14
        s_lshl_b32 {s_pfs}, {s_grp}, 15
        s_cmp_eq_u32 {s_w}, 3
        s_cselect_b32 {s_grp}, 8, {s_grp}
        s_cselect_b32 {s_pfs}, 0x80, {s_pfs}
        s_cselect_b32 {s_ano}, 11, 7
        s_mul_i32 {s_t1}, {s_grp}, s2
        v_and_b32 {vt1}, 15, {vl}
        v_add_u32 {vt0}, {s_t1}, {vt1}
        v_lshlrev_b32 {vpf}, {s_ano}, {vt0}
        v_lshrrev_b32 {vt0}, 4, {vl}
        v_mul_lo_u32 {vt0}, {vt0}, {s_pfs}
        v_add_u32 {vgp}, {vt0}, {vpf}
        v_cmp_gt_u32 vcc, {s_grp}, {vt1}
        v_cmp_gt_u32 {smask}, {16 * (PD0 - 1)}, {vl}
        s_and_b64 {smask}, {smask}, vcc
        v_cndmask_b32 {vgp}, 2.0, {vgp}, {smask}
        v_cmp_gt_u32 vcc, {s_grp}, {vl}
        s_mul_i32 {s_pfo}, {s_pfs}, {PD0}
        v_cndmask_b32 {vpf}, 2.0, {vpf}, vcc""")
    gpf_issue = lines(f"""
        s_cmp_eq_u32 {s_w}, 0
        s_cselect_b64 {spf[0:2]}, {pqkv}, {pwg}
        s_cmp_eq_u32 {s_w}, 2
        s_cselect_b64 {spf[0:2]}, {pwu}, {spf[0:2]}
        s_cmp_eq_u32 {s_w}, 3
        s_cselect_b64 {spf[0:2]}, {px}, {spf[0:2]}
        s_lshl_b32 {spf[2]}, {s_grp}, 19""") + [Ins(f'buffer_load_dword {vpd}, {vgp}, {spf}, {s_pfs} offen', 'pf')]
    if OWN:
        gpf_addr = lines(f"""
        s_cmp_eq_u32 {s_w}, 3
        s_mov_b32 {s_pfs}, {64 * 7168}
        s_cmov_b32 {s_pfs}, {64 * 6144}
        v_cmp_gt_u32 vcc, 24, {vl}
        s_lshl_b32 {s_t1}, s2, 14
        v_and_b32 {vt1}, 7, {vl}
        v_cndmask_b32 {vpf}, 2.0, {vxp}, vcc
        v_lshl_add_u32 {vt0}, {vt1}, 11, {s_t1}
        v_lshrrev_b32 {vt1}, 3, {vl}
        v_lshl_add_u32 {vgp}, {vt1}, 7, {vt0}
        v_cmp_gt_u32 vcc, 8, {vl}
        v_cmp_gt_u32 {smask}, {8 * (PD0 - 1)}, {vl}
        v_cndmask_b32 {vt0}, 2.0, {vt0}, vcc
        v_cndmask_b32 {vgp}, 2.0, {vgp}, {smask}
        s_cmp_eq_u32 {s_w}, 0
        s_cselect_b64 vcc, -1, 0
        s_cselect_b32 {s_pfs}, 0x80, {s_pfs}
        s_cselect_b64 {spf[0:2]}, {px}, {spf[0:2]}
        s_cselect_b32 {spf[2]}, {S * D * 2}, {spf[2]}
        s_cselect_b32 {s_t0}, 1, 2
        v_cndmask_b32 {vpf}, {vpf}, {vt0}, vcc
        v_cndmask_b32 {vgp}, {vpf}, {vgp}, vcc
        s_mul_i32 {s_t0}, {s_t0}, {s_pfs}
        s_mul_i32 {s_pfo}, {s_pfs}, {PD0}""")
        assert PD0 == 3 and PRE < 2 and not PF0 and not XP2
        gpf_issue = [Ins(f'buffer_load_dword {vpd}, {vgp}, {spf}, {s_t0} offen', 'pf')]
    def pfetch():
        if NOPF & 1: return []
        return [Ins(f'buffer_load_dword {vpd}, {vpf}, {spf}, {s_pfo} offen', 'pf'), f's_add_u32 {s_pfo}, {s_pfo}, {s_pfs}']
    def pfetch_d():
        if NOPF & 2: return []
        return [Ins(f'buffer_load_dword {vpd}, {vt3}, {sp2}, {s_c1} offen', 'pf'), f's_add_u32 {s_c1}, {s_c1}, {1024 * DL * 128}']
    rd_addr = lines(f"""
    v_and_b32 {vt0}, 15, {vl}
    v_lshrrev_b32 {vt1}, 4, {vl}
    v_lshrrev_b32 {vt2}, 1, {vt0}
    v_xor_b32 {vt2}, {vt1}, {vt2}
    s_lshl_b32 {s_t0}, {s_wr}, 14
    v_lshl_add_u32 {vt3}, {vt0}, 7, {s_t0}
    v_lshl_add_u32 {vxr[0]}, {vt2}, 4, {vt3}
    v_xor_b32 {vxr[1]}, 64, {vxr[0]}
    v_and_b32 {vt3}, 3, {vt0}
    v_lshlrev_b32 {vt3}, 3, {vt3}
    v_lshrrev_b32 {vt0}, 2, {vt0}
    v_lshrrev_b32 {vt2}, 1, {vt1}
    v_and_b32 {vt1}, 1, {vt1}
    v_mul_u32_u24 {vqr[0]}, 10240, {vt2}
    v_mul_u32_u24 {vqr[1]}, {512 + 32}, {vt1}
    v_add3_u32 {vqr[0]}, {vqr[0]}, {vqr[1]}, {vt3}
    v_lshl_add_u32 {vqr[0]}, {vt0}, 6, {vqr[0]}
    s_lshl_b32 {s_t0}, {s_wc}, 10
    s_sub_u32 {s_t0}, {W0 + 8192}, {s_t0}
    v_add_u32 {vqr[0]}, {s_t0}, {vqr[0]}
    v_xor_b32 {vqr[1]}, 32, {vqr[0]}
    v_lshl_add_u32 {vt0}, {vt1}, 2, {vt0}
    v_lshl_add_u32 {vt0}, {vt2}, 4, {vt0}
    v_mul_u32_u24 {vt0}, 224, {vt0}
    s_mul_i32 {s_t0}, {s_wc}, 96
    s_add_u32 {s_t0}, {s_t0}, {W0}
    v_add3_u32 {vgr[0]}, {vt0}, {vt3}, {s_t0}
    v_add_u32 {vgr[1]}, 20480, {vgr[0]}""")
    if PRE >= 2 or PF0: p.add(gpf_addr)
    if PRE >= 3: p.add(rd_addr)
    p.e(f"""
    s_lshl_b32 {s_t0}, {s_mb}, 19
    s_lshl_b32 {s_t1}, {s_h}, 6
    s_mul_i32 {s_t2}, {s_h}, 224
    s_mov_b32 {sx[3]}, 0x00020000
    s_mov_b32 {sq[3]}, 0x00020000
    s_mov_b32 {sg[3]}, 0x00020000
    s_mov_b32 {spf[3]}, 0x00020000
    s_sub_u32 {sx[2]}, {S * D * 2}, {s_t0}
    s_sub_u32 {sq[2]}, {D * 3072 * 2}, {s_t1}
    s_sub_u32 {sg[2]}, {D * F * 2}, {s_t2}
    s_waitcnt lgkmcnt(0)
    """)
    pf.stamp(0)
    pf.trace_init(vtr, s_tr)
    if PRA == -1: p.e(f'v_writelane_b32 {vtr}, {s_hb}, 42')
    if ptrace == 3:
        p.e(f'v_writelane_b32 {vtr}, {s_hb}, 0\ns_mov_b32 {s_tr}, 1')
        pf.trace()
    p.e(f"""
    s_add_u32 {sx[0]}, {px[0]}, {s_t0}
    s_addc_u32 {sx[1]}, {px[1]}, 0
    s_add_u32 {sq[0]}, {pqkv[0]}, {s_t1}
    s_addc_u32 {sq[1]}, {pqkv[1]}, 0
    s_cmp_ge_u32 {s_w}, 2
    s_cselect_b64 {sg[0:2]}, {pwu}, {pwg}
    s_add_u32 {sg[0]}, {sg[0]}, {s_t2}
    s_addc_u32 {sg[1]}, {sg[1]}, 0
    s_cmp_eq_u32 {s_w}, 3
    s_cselect_b64 {spf[0:2]}, {sq[0:2]}, {sg[0:2]}
    s_cselect_b32 {spf[2]}, {sq[2]}, {sg[2]}
    s_cmp_eq_u32 {s_w}, 0
    s_cselect_b64 {spf[0:2]}, {sx[0:2]}, {spf[0:2]}
    s_cselect_b32 {spf[2]}, {sx[2]}, {spf[2]}
    """)
    if XP2: p.add([Ins(f'buffer_load_dword {vpd}, {vtmp[4]}, {sx}, 0 offen', 'pf')])
    if xpf: p.add([Ins(f'buffer_load_dword {vpd}, {vxp}, {spf}, 0 offen', 'pf')])
    if PF0: p.add(gpf_issue)
    if ptrace > 0: pf.trace()
    if PRE < 0: p.add(x_addr)
    emit(dma_x(0))
    if ptrace > 0: pf.trace()
    if PRE < 0: p.add(q_addr)
    w0 = dma_w(0)
    p.e(f's_add_u32 m0, {s_mw}, {W0 + 4096}')
    emit(w0[7:])
    if PRE < 1: p.add(gu[0])
    for j in range(7):
        if PRE < 1: p.add(gu[j + 1])
        emit([w0[j]])
    p.add(adv)
    if ptrace > 0: pf.trace()
    emit((dma_w(1) + dma_x(1))[:S1P])
    if PRE < 2 and not PF0 and not NOPF & 4: p.add(gpf_addr)
    if not PF0 and not NOPF & 4: p.add(gpf_issue)
    if PRE < 3: p.add(rd_addr)
    gx = [vtmp[4 * i:4 * i + 4] for i in range(4)]; gw = [vtmp[16:20], vtmp[20:24]]; t = vtmp[24:28]; z = [vt0, vt1]
    flag_setup = [[f's_add_u32 {sfl[0]}, {pws[0]}, {WS_FL}', f's_addc_u32 {sfl[1]}, {pws[1]}, 0']] + lines(f"""
    s_movk_i32 {sfl[2]}, 8192
    s_mov_b32 {sfl[3]}, 0x00020000
    s_mov_b32 {sws[0]}, {pws[0]}
    s_mov_b32 {sws[1]}, {pws[1]}
    s_mov_b32 {sws[2]}, {WS_SIZE}
    s_mov_b32 {sws[3]}, 0x00020000
    s_mov_b32 {sp2[3]}, 0x00020000
    s_lshl_b32 {s_t0}, {s_mb}, 5
    s_add_u32 {s_t0}, {s_t0}, {s_h}
    s_lshl_b32 {s_gs}, {s_t0}, 7
    s_lshl_b32 {s_t0}, {s_t0}, 2
    s_add_u32 {s_t0}, {s_t0}, {s_w}
    s_lshl_b32 {s_t0}, {s_t0}, 2
    v_mov_b32 {vt0}, {s_t0}
    v_cmp_eq_u32 vcc, 0, {vl}
    v_mov_b32 {vt3}, 0
    v_cndmask_b32 {vflag}, 2.0, {vt0}, vcc
    s_lshl_b32 {s_t0}, {s_h}, 3
    s_add_u32 {s_t0}, {s_t0}, {s_mb}
    s_lshl_b32 {s_t0}, {s_t0}, 2
    s_add_u32 {s_t0}, {s_t0}, {s_w}
    s_lshl_b32 {s_t0}, {s_t0}, 2
    s_add_u32 {s_t0}, {s_t0}, 4096
    v_mov_b32 {vt0}, {s_t0}
    buffer_store_dword {vt3}, {vflag}, {sfl}, 0 offen sc1
    v_cndmask_b32 {vflk}, 2.0, {vt0}, vcc
    s_lshl_b32 {s_t1}, {s_w}, 3
    buffer_store_dword {vt3}, {vflk}, {sfl}, 0 offen sc1
    s_add_u32 {s_gs}, {s_gs}, {s_t1}
    s_add_u32 {s_gs}, {s_gs}, {WS_G}
    s_lshl_b32 {s_t0}, {s_h}, 3
    s_lshl_b32 {s_t1}, {s_w}, 1
    s_add_u32 {s_t0}, {s_t0}, {s_t1}
    s_lshl_b32 {s_t2}, {s_t0}, 11
    s_mov_b32 {s_msk}, 0xffff0000
    v_lshlrev_b32 {z[0]}, 5, {vl}""")
    if ptrace > 0: pf.trace()
    p.e('WAITTAG S0')
    if ptrace > 0: pf.trace()
    p.e('s_barrier')
    if ptrace > 0: pf.trace()
    pf.stamp(1)

    def gate_ops():
        L = []
        for r in range(2):
            for j in range(8):
                xr = gx[2 * r + j // 4][j % 4]; wr_ = gw[j // 4][j % 4]
                L += [f'v_lshlrev_b32 {t[0]}, 16, {xr}', f'v_lshlrev_b32 {t[1]}, 16, {wr_}',
                      f'v_and_b32 {t[2]}, {s_msk}, {xr}', f'v_and_b32 {t[3]}, {s_msk}, {wr_}',
                      f'v_mul_f32 {t[0]}, {t[0]}, {t[1]}', f'v_mul_f32 {t[2]}, {t[2]}, {t[3]}',
                      f'v_cvt_pk_bf16_f32 {t[0]}, {t[0]}, {t[2]}', f'v_lshlrev_b32 {t[1]}, 16, {t[0]}',
                      f'v_and_b32 {t[2]}, {s_msk}, {t[0]}']
                if j == 0: L.append(f'v_add_f32 {z[r]}, {t[1]}, {t[2]}')
                else: L += [f'v_add_f32 {t[1]}, {t[1]}, {t[2]}', f'v_add_f32 {z[r]}, {z[r]}, {t[1]}']
        for mode in ('quad_perm:[1,0,3,2]', 'quad_perm:[2,3,0,1]', 'row_half_mirror', 'row_mirror'):
            for r in range(2): L.append(f'v_add_f32_dpp {z[r]}, {z[r]}, {z[r]} {mode} row_mask:0xf bank_mask:0xf')
        for op in ('v_permlane16_swap_b32', 'v_permlane32_swap_b32'):
            for r in range(2): L.append(f'v_mov_b32 {t[r]}, {z[r]}')
            for r in range(2): L.append(f'{op} {t[r]}, {z[r]}')
            for r in range(2): L.append(f'v_add_f32 {z[r]}, {z[r]}, {t[r]}')
        L += f"""v_and_b32 {t[1]}, 1, {vl}
        v_cmp_eq_u32 vcc, 1, {t[1]}
        v_and_b32 {t[3]}, 2, {vl}
        v_cndmask_b32 {t[0]}, {z[0]}, {z[1]}, vcc
        v_cvt_pk_bf16_f32 {t[0]}, {t[0]}, {t[0]}
        v_and_b32 {t[0]}, {s_msk}, {t[0]}
        v_mul_f32 {t[0]}, {hex(f32bits(-math.log2(math.e)))}, {t[0]}
        v_exp_f32 {t[0]}, {t[0]}
        v_cmp_eq_u32 vcc, 2, {t[3]}
        v_add_f32 {t[0]}, 1.0, {t[0]}
        v_rcp_f32 {t[0]}, {t[0]}
        v_lshlrev_b32 {t[3]}, 4, {t[3]}
        v_cvt_pk_bf16_f32 {t[0]}, {t[0]}, {t[0]}
        v_and_b32 {t[0]}, {s_msk}, {t[0]}
        v_sub_f32 {t[2]}, 1.0, {t[0]}
        v_cvt_pk_bf16_f32 {t[2]}, {t[2]}, {t[2]}
        v_and_b32 {t[2]}, {s_msk}, {t[2]}
        v_cndmask_b32 {t[0]}, {t[0]}, {t[2]}, vcc
        v_lshl_add_u32 {t[3]}, {t[1]}, 2, {t[3]}
        v_cmp_gt_u32 vcc, 4, {vl}
        v_cndmask_b32 {t[3]}, 2.0, {t[3]}, vcc
        buffer_store_dword {t[0]}, {t[3]}, {sws}, {s_gs} offen{st_mod}""".split('\n')
        return [x.strip() for x in L]

    def wread(n, st, wc):
        slot = wf[(10 * st + n) % NSLOT]
        nq = 4 if wc == 0 else 2
        L = []
        for ks in range(2):
            if n < nq: base = vqr[n % 2]; off = ks * 20480 + (1024 if (wc == 0 and n < 2) else 0); so = 256
            else: base = vgr[(n - nq) % 2]; off = ks * 10240 + ((n - nq) // 2) * 32; so = 1792
            off += st * (W1 - W0)
            L += [f'ds_read_b64_tr_b16 {slot[4 * ks + 2 * s:4 * ks + 2 * s + 2]}, {base} offset:{off + s * so}' for s in range(2)]
        return L
    def xread(m, ks, st):
        return f'ds_read_b128 {xf(st, m, ks)}, {vxr[ks]} offset:{st * (X1 - X0) + m * 2048}'

    for m in range(2):
        for ks in range(2): p.e(xread(m, ks, 0))
    p.e(f's_cmp_eq_u32 {s_wc}, 1')
    p.e(f's_cbranch_scc1 {name}_c1')

    def stage(st, wc, first=False, last=False, extra=None, fill=None, estep=2, postbar=None, nodma1=False, early=None, dens=2):
        slots = {}
        for j in range(10):
            jj = j + DIST
            if jj < 10: rd = wread(jj, st, wc)
            elif last: continue
            else: rd = wread(jj - 10, st ^ 1, wc)
            for i, x in enumerate(rd): place(slots, 16 * j + ((0, 2, 4, 6) if j < 9 else (0, 11, 13, 15))[i], x)
        bar = 16 * (10 - DIST)
        if not last:
            for i in range(8): place(slots, bar + 8 + (0, 2, 4, 6, 16, 18, 20, 22)[i], xread(i // 2, i % 2, st ^ 1))
            for i in range(8): place(slots, 144 + (2, 3, 4, 5, 7, 8, 9, 10)[i], xread(7 - i // 2, i % 2, st ^ 1))
        pos = []; c = 1.0
        for k in range(18):
            pos.append(int(c)); c += cg if k < 7 else (cq if k < 10 else cx)
        endc = int(c) - (160 - bar)
        pos0 = pos
        if first:
            sh = pos[S1P] - 1
            pos = [(int(F0 + (x - sh) * FS) + 160 - bar) if k >= S1P else -1 for k, x in enumerate(pos)]; endc = int(F0 + (endc + 160 - bar - sh) * FS)
        if not last:
            dl = dma_w(st ^ 1) + dma_x(st ^ 1)
            for k in range(18):
                c = pos[k] - (160 - bar)
                if c < 0: continue
                for x in dl[k][0]: place(slots, max(c - 1, 0), x)
                place(slots, c, dl[k][1])
            for i, x in enumerate(adv): place(slots, endc - 2 + i, x)
            if first: pos = pos0
            dl = dma_w(st) + dma_x(st)
            for k in range(18):
                c = bar + pos[k]
                if c >= 160 or nodma1: continue
                for x in dl[k][0]: place(slots, c - 1, x)
                place(slots, c, dl[k][1])
        if early:
            c = (pos[PFP] - (0 if first else 160 - bar) - 2) if PFP < 18 else endc + 1
            for x in early: place(slots, max(c, 0), x); c += 1
            if PFP >= 18: endc = c + 1
        c = endc + 1
        for x in (extra or []):
            if isinstance(x, list):
                for y in x: place(slots, c, y)
                c += estep; continue
            place(slots, c, x)
            c += 3 if (isinstance(x, Ins) or x.startswith('buffer')) else estep
        assert c < bar
        for i, x in enumerate(postbar or []):
            for y in (x if isinstance(x, list) else [x]):
                if y is not None: place(slots, bar + 3 + 2 * i, y)
        if FOFF:
            for c in sorted(slots):
                if c % 2 == 0 and c + 1 < 160 and len(slots.get(c + 1, [])) + len(slots[c]) <= FOFF:
                    slots[c + 1] = slots[c] + slots.get(c + 1, []); slots[c] = []
        fill = [x if isinstance(x, tuple) else (0, x) for x in (fill or [])]
        for c in range(160):
            n, r = divmod(c, 16); mi, ks = divmod(r, 2)
            m = mi if n % 2 == 0 else 7 - mi
            if c == bar and not last:
                p.e(f'WAITTAG S{st ^ 1} LGKM0')
                p.e('s_barrier')
                if ptrace > 1: pf.trace()
            if MWT and not first and c == 8: p.e('s_waitcnt lgkmcnt(4)')
            if MWT and r == 0 and 0 < n and c != bar and not (first and n < 3) and not last: p.e(f's_waitcnt lgkmcnt({8 if n <= 7 else 12})')
            w = wf[(10 * st + n) % NSLOT][4 * ks:4 * ks + 4]; x = xf(st, m, ks)
            a, b = (x, w) if (wc == 1 and n < 2) else (w, x)
            cin = '0' if (first and ks == 0) else str(acc[n][m])
            p.e(f'v_mfma_f32_16x16x32_bf16 {acc[n][m]}, {a}, {b}, {cin}')
            here = slots.get(c, [])
            p.add(here)
            if c >= 1:
                for _ in range(min(dens, 2 - len(here))):
                    if fill and fill[0][0] <= c:
                        x = fill.pop(0)[1]; p.add(x if isinstance(x, list) else [x])
        return [x[1] for x in fill]

    def toreg(tile, tmp):
        if tile.k == 'v': return tile
        for i in range(4): p.e(f'v_accvgpr_read_b32 {tmp[i]}, {tile[i]}')
        return tmp
    def pack(o, t0, t1):
        p.e(f'v_cvt_pk_bf16_f32 {o[0]}, {t0[0]}, {t0[1]}\nv_cvt_pk_bf16_f32 {o[1]}, {t0[2]}, {t0[3]}')
        p.e(f'v_cvt_pk_bf16_f32 {o[2]}, {t1[0]}, {t1[1]}\nv_cvt_pk_bf16_f32 {o[3]}, {t1[2]}, {t1[3]}')

    def pf_setup():
        L = f"""s_lshl_b32 {s_t0}, s2, 2
        s_add_u32 {s_t0}, {s_t0}, {s_w}
        s_mul_i32 {s_t1}, {s_t0}, {DL * 128}
        v_lshl_add_u32 {vt3}, {vl}, 7, {s_t1}
        v_cmp_gt_u32 vcc, {DL}, {vl}
        s_mov_b32 {sp2[0]}, {pwd[0]}
        s_mov_b32 {sp2[1]}, {pwd[1]}
        s_mov_b32 {sp2[2]}, {F * D * 2}
        v_cndmask_b32 {vt3}, 2.0, {vt3}, vcc
        s_mov_b32 {s_c1}, 0""".split('\n')
        return [x.strip() for x in L]
    def tp_setup():
        a_, b_ = vtmp[27], vtmp[26]
        return lines(f"""
        s_lshl_b32 {s_t0}, s2, 2
        s_add_u32 {s_t0}, {s_t0}, {s_w}
        s_lshr_b32 {s_t1}, {s_t0}, 4
        s_lshl_b32 {s_c1}, {s_t1}, 15
        s_lshl_b32 {s_c0}, {s_t1}, 12
        s_and_b32 {s_t0}, {s_t0}, 15
        s_lshr_b32 {s_t1}, {s_t0}, 1
        s_mul_i32 {s_t1}, {s_t1}, {224 * 4096}
        s_add_u32 {s_c0}, {s_c0}, {s_t1}
        s_and_b32 {s_t1}, {s_t0}, 1
        s_lshl_b32 {s_t1}, {s_t1}, 11
        s_add_u32 {s_c0}, {s_c0}, {s_t1}
        s_add_u32 {s_c0}, {s_c0}, {WS_T}
        s_lshl_b32 {s_t0}, {s_t0}, 7
        s_mov_b32 {sp2[0]}, {pwd[0]}
        s_mov_b32 {sp2[1]}, {pwd[1]}
        s_mov_b32 {sp2[2]}, {F * D * 2}
        v_lshrrev_b32 {a_}, 3, {vl}
        v_and_b32 {b_}, 2, {a_}
        v_lshlrev_b32 {b_}, 1, {b_}
        v_and_b32 {vt3}, 7, {vl}
        v_xor_b32 {b_}, {b_}, {vt3}
        v_lshl_add_u32 {b_}, {b_}, 4, {s_t0}
        v_lshl_add_u32 {vt3}, {a_}, 11, {b_}
        s_lshl_b32 {s_t0}, {s_w}, 12
        s_add_u32 {s_t0}, {s_t0}, {QS}
        v_lshrrev_b32 {a_}, 5, {vl}
        v_lshl_add_u32 {vtmp[24]}, {a_}, 10, {s_t0}
        v_bfe_u32 {a_}, {vl}, 2, 2
        v_lshl_add_u32 {vtmp[24]}, {a_}, 7, {vtmp[24]}
        v_bfe_u32 {a_}, {vl}, 3, 1
        v_lshl_add_u32 {vtmp[24]}, {a_}, 6, {vtmp[24]}
        v_bfe_u32 {a_}, {vl}, 4, 1
        v_lshl_add_u32 {vtmp[24]}, {a_}, 5, {vtmp[24]}
        v_and_b32 {a_}, 3, {vl}
        v_lshl_add_u32 {vtmp[24]}, {a_}, 3, {vtmp[24]}
        v_xor_b32 {vtmp[25]}, 64, {vtmp[24]}
        v_lshlrev_b32 {vtmp[26]}, 4, {vl}
        s_lshl_b32 {s_t0}, s2, 2
        s_add_u32 {s_t0}, {s_t0}, {s_w}
        s_and_b32 {s_t0}, {s_t0}, 15
        s_lshl_b32 {s_t0}, {s_t0}, 7
        v_lshl_add_u32 {a_}, {vl}, 11, {s_t0}
        v_cmp_gt_u32 vcc, 16, {vl}
        v_cndmask_b32 {a_}, 2.0, {a_}, vcc""") + [tp_touch()]
    def tp_touch():
        return Ins(f'buffer_load_dword {vpd}, {vtmp[27]}, {sp2}, {s_c1} offen', 'pf')
    def tp_load():
        return [f's_lshr_b32 {s_t0}, {s_mx}, 1', f's_add_u32 m0, {s_t0}, {QS}', f's_add_u32 {s_t1}, {s_c1}, {8 * 2048 - 1024}',
                Ins(f'buffer_load_dwordx4 {vt3}, {sp2}, {s_c1} offen lds', 'TP'), Ins(f'buffer_load_dwordx4 {vt3}, {sp2}, {s_t1} offen offset:1024 lds', 'TP')]
    def tp_store():
        L = ['WAITTAG TP'] + [f'ds_read_b64_tr_b16 {vtmp[4 * nb + 2 * s_:4 * nb + 2 * s_ + 2]}, {vtmp[24 + nb]} offset:{s_ * 512}' for nb in range(2) for s_ in range(2)]
        L = [L[:2]] + L[2:]
        L += [[f's_cmp_lt_u32 {s_c1}, {224 * 32768}', f's_cselect_b32 {s_t0}, {s_c0}, 2.0'], f's_add_u32 {s_c1}, {s_c1}, {64 * 32768}', f's_add_u32 {s_c0}, {s_c0}, {64 * 4096}', None, None]
        L += [Ins(f'buffer_store_dwordx4 {vtmp[4 * nb:4 * nb + 4]}, {vtmp[26]}, {sws}, {s_t0} offen offset:{nb * 1024}{st_mod}', 'HST') for nb in range(2)]
        if TT: L.insert(7, tp_touch())
        return L
    def pf3_setup():
        L = f"""s_mov_b32 {sp3[0]}, {pgw[0]}
        s_mov_b32 {sp3[1]}, {pgw[1]}
        s_movk_i32 {sp3[2]}, 2048
        s_mov_b32 {sp3[3]}, 0x00020000
        v_lshlrev_b32 {vwo}, 7, {vl}""".split('\n')
        L2 = f"""s_lshl_b32 {s_t0}, s2, 2
        s_add_u32 {s_t0}, {s_t0}, {s_w}
        s_lshl_b32 {s_t1}, {s_t0}, 11
        v_lshl_add_u32 {vwo}, {vl}, 7, {s_t1}
        v_cmp_gt_u32 {smask}, 16, {vl}
        s_mov_b32 {sp3[0]}, {pwo[0]}
        s_mov_b32 {sp3[1]}, {pwo[1]}
        s_mov_b32 {sp3[2]}, {D * D * 2}
        v_cndmask_b32 {vwo}, 2.0, {vwo}, {smask}""".split('\n')
        return [x.strip() for x in L] + [Ins(f'buffer_load_dword {vpd}, {vwo}, {sp3}, 0 offen', 'pf')] + [x.strip() for x in L2]
    def tlb_touch():
        return [f's_cmp_eq_u32 {s_w}, 1', f's_cselect_b32 {sp2[0]}, {pout[0]}, {pws[0]}', f's_cselect_b32 {sp2[1]}, {pout[1]}, {pws[1]}',
                f's_mov_b32 {sp2[2]}, {34 << 20}', f's_cmov_b32 {sp2[2]}, {S * D * 2}', f's_cmp_lt_u32 {s_w}, 2', f's_cselect_b32 {s_t0}, 0, 2.0',
                f'v_lshlrev_b32 {vt3}, 20, {vl}', Ins(f'buffer_load_dword {vpd}, {vt3}, {sp2}, {s_t0} offen sc1', 'pf')]
    def tlb_touch2():
        L = tlb_touch()
        return [L[0:5], L[5:7]] + L[7:]
    pf_wo = [f's_cmp_eq_u32 {s_cnt}, 2', f's_cselect_b32 {s_t0}, 0, 2.0', Ins(f'buffer_load_dword {vpd}, {vwo}, {sp3}, {s_t0} offen', 'pf')]
    gate_sel = [f's_cmp_eq_u32 {s_cnt}, 0', f's_cselect_b32 {s_t0}, {s_t2}, 2.0', f's_cselect_b32 {s_t1}, 0, 2.0',
                f's_cselect_b32 {sp3[0]}, {pgw[0]}, {sp3[0]}', f's_cselect_b32 {sp3[1]}, {pgw[1]}, {sp3[1]}', f's_cselect_b32 {sp3[2]}, 0x800, {sp3[2]}']
    gate_loads = [f'buffer_load_dwordx4 {gw[i]}, {z[0]}, {sp3}, {s_t1} offen offset:{16 * i}' for i in range(2)] + \
                 [f'buffer_load_dwordx4 {gx[i]}, {z[0]}, {sx}, {s_t0} offen offset:{(i // 2) * 2048 + (i % 2) * 16}' for i in range(4)]

    spins = []
    def check(cond_lines, reload_lines, tag):
        lab = f'{name}_{tag}'
        spins.append((lab, cond_lines, reload_lines))
        return cond_lines + [f's_cbranch_vccnz {lab}_spin', f'{lab}_ok:']

    def lines(s): return [x.strip() for x in s.strip().split('\n')]
    def rd(tile, tmp):
        if tile.k == 'v': return tile, []
        return tmp, [f'v_accvgpr_read_b32 {tmp[i]}, {tile[i]}' for i in range(4)]
    def packl(o, t0, t1):
        return [f'v_cvt_pk_bf16_f32 {o[0]}, {t0[0]}, {t0[1]}', f'v_cvt_pk_bf16_f32 {o[1]}, {t0[2]}, {t0[3]}',
                f'v_cvt_pk_bf16_f32 {o[2]}, {t1[0]}, {t1[1]}', f'v_cvt_pk_bf16_f32 {o[3]}, {t1[2]}, {t1[3]}']
    def mul4(d, a_, b_, pk):
        if pk: return [f'v_pk_mul_f32 {d[2*i:2*i+2]}, {a_[2*i:2*i+2]}, {b_ if b_.k == "s" else b_[2*i:2*i+2]}' for i in range(2)]
        return [f'v_mul_f32 {d[i]}, {b_[0] if b_.k == "s" else b_[i]}, {a_[i]}' for i in range(4)]
    def hpiece(n, j, o, pk):
        L = []; tt = []
        for mm in range(2):
            g_, l0 = rd(acc[n][2 * j + mm], vtmp[8 * mm:8 * mm + 4]); u_, l1 = rd(acc[n + 1][2 * j + mm], vtmp[8 * mm + 4:8 * mm + 8])
            L += l0 + l1 + mul4(g_, g_, u_, pk); tt.append(g_)
        return L + packl(o, tt[0], tt[1]) + [f'v_permlane16_swap_b32 {o[0]}, {o[2]}', f'v_permlane16_swap_b32 {o[1]}, {o[3]}']
    hreg = [acc[7][2 * j] for j in range(4)] + [acc[6][2 * j] for j in range(4)] + [acc[8][2 * j] for j in range(4)]

    vq = vdx[0]; vh = vdx[1]; vql = vdx[2]; vqq = vdx[3]
    s_b, s_qs = s_oq, R('s', sx.a, 2)
    def epi_setup(wc):
        L = lines(f"""
        v_and_b32 {vt0}, 15, {vl}
        v_lshrrev_b32 {vt1}, 4, {vl}
        v_lshlrev_b32 {vq}, 9, {vt1}
        v_lshlrev_b32 {vh}, 4, {vl}
        s_lshl_b32 {s_t0}, {s_h}, 6
        s_lshl_b32 {s_t1}, {s_mb}, 3
        s_add_u32 {s_t0}, {s_t0}, {s_t1}
        s_lshl_b32 {s_t1}, {s_wr}, 2
        s_add_u32 {s_t0}, {s_t0}, {s_t1}
        s_lshl_b32 {s_b}, {s_t0}, 12
        s_add_u32 {s_b}, {s_b}, {WS_KV}
        s_add_u32 {s_og}, {s_b}, 4096
        s_add_u32 {s_ox}, {s_b}, 8192
        s_add_u32 {s_c0}, {s_b}, 12288
        s_lshl_b32 {s_t0}, {s_mb}, 1
        s_add_u32 {s_t0}, {s_t0}, {s_wr}
        s_mul_i32 {s_t0}, {s_t0}, 288
        s_mul_i32 {s_t1}, {s_h}, 7
        s_add_u32 {s_t0}, {s_t0}, {s_t1}
        s_lshl_b32 {s_t0}, {s_t0}, 12
        s_add_u32 {s_hb}, {s_t0}, {WS_A + 4 * 4096 * wc}
        s_sub_u32 {s_c1}, {s_hb}, 4096
        s_lshl_b32 {s_t1}, {s_wr}, 14""")
        if wc == 0:
            L += lines(f"""
            v_lshrrev_b32 {vt2}, 3, {vt0}
            v_lshl_add_u32 {vq}, {vt2}, 8, {vq}
            v_and_b32 {vt2}, 7, {vt0}
            v_lshl_add_u32 {vq}, {vt2}, 4, {vq}
            v_add_u32 {vql}, {s_t1}, {vq}
            s_lshl_b32 {s_t1}, {s_wr}, 13
            s_add_u32 {s_t1}, {s_t1}, {QS}
            v_add_u32 {vqq}, {s_t1}, {vq}
            s_mov_b32 {s_qs[0]}, {hex(f32bits(QSCALE))}
            s_mov_b32 {s_qs[1]}, {s_qs[0]}""")
        else:
            L += [f'v_lshl_add_u32 {vq}, {vt0}, 4, {vq}', f'v_add_u32 {vql}, {s_t1}, {vq}']
        return L
    kvb = [s_b, s_og, s_ox, s_c0]
    def epi_early(wc, npk):
        F_ = []
        outs = [vtmp[16 + 4 * i:20 + 4 * i] for i in range(3)]
        if wc == 0:
            for m in range(7, -1, -1):
                o = acc[0][m]
                L = packl(o, acc[0][m], acc[1][m]) + [Ins(f'buffer_store_dwordx4 {o}, {vq}, {sws}, {kvb[m // 2]} offen offset:{(m % 2) * 128}{kv_mod}', 'KVST'),
                                                       f'ds_write_b128 {vql}, {o} offset:{(m // 2) * 4096 + (m % 2) * 128}']
                F_ += [(17 + 2 * (7 - m) + 4, x) for x in L]
            for i, m in enumerate(range(7, -1, -1)):
                o = outs[i % 3]
                t0, l0 = rd(acc[2][m], vtmp[0:4]); t1, l1 = rd(acc[3][m], vtmp[4:8])
                L = l0 + l1 + mul4(t0, t0, s_qs, i >= npk) + mul4(t1, t1, s_qs, i >= npk) + packl(o, t0, t1) + [f'ds_write_b128 {vqq}, {o} offset:{(m // 2) * 2048 + (m % 2) * 128}']
                F_ += [(49 + 2 * (7 - m) + 4, x) for x in L]
        else:
            for nt, js in ((0, range(4)), (1, range(3, -1, -1))):
                for j in js:
                    o = acc[nt][2 * j]
                    L = packl(o, acc[nt][2 * j], acc[nt][2 * j + 1]) + [Ins(f'buffer_store_dwordx4 {o}, {vq}, {sws}, {kvb[j]} offen offset:{2048 + nt * 256}{kv_mod}', 'KVST'),
                                                                         f'ds_write_b128 {vql}, {o} offset:{j * 4096 + 2048 + nt * 256}']
                    F_ += [((3 + 4 * j if nt == 0 else 31 - 4 * j) + 4, x) for x in L]
            for i, j in enumerate(range(3, -1, -1)):
                o = outs[i % 3]
                L = hpiece(2, j, o, i >= npk) + [Ins(f'buffer_store_dwordx4 {o}, {vh}, {sws}, {s_c1} offen offset:{j * 1024}{st_mod}', 'HST')]
                F_ += [(63 - 4 * j + 4, x) for x in L]
        for j in range(3, -1, -1):
            F_ += [(127 - 4 * j + 4, x) for x in hpiece(6, j, hreg[4 + j], PK)]
            F_ += [(127 - 4 * j + 4, x) for x in hpiece(4, j, hreg[j], PK)]
        k = max(i for i, x in enumerate(F_) if isinstance(x[1], Ins) and x[1].tag == 'KVST')
        F_[k + KF:k + KF] = [(0, [f'v_mov_b32 {vt0}, 1', 'WAITTAG KVST', Ins(f'buffer_store_dword {vt0}, {vflk}, {sfl}, 0 offen sc1', 'FL')])]
        return F_
    def epi_late():
        for j in range(3, -1, -1): p.add(hpiece(8, j, hreg[8 + j], True))

    announce_setup = lines(f"""
        s_mov_b32 {sdbg[0]}, {pdbg[0]}
        s_mov_b32 {sdbg[1]}, {pdbg[1]}
        s_movk_i32 {sdbg[2]}, 256
        s_mov_b32 {sdbg[3]}, 0x00020000
        s_and_b32 {s_ano}, s2, 7
        s_lshl_b32 {s_ano}, {s_ano}, 2
        s_and_b32 {s_grp}, {s_mb}, 3
        s_add_u32 {s_grp}, {s_grp}, 3
        v_mov_b32 {vt2}, 1
        v_cmp_eq_u32 {smask}, 0, v0
        v_cndmask_b32 {vt1}, 2.0, 0, {smask}""")
    if PT:
        k = announce_setup.index(f's_add_u32 {s_grp}, {s_grp}, 3')
        announce_setup[k:k + 1] = [[f's_cmp_lt_u32 {s_grp}, 2', f's_cselect_b32 {s_grp}, {s_grp}, 16'], f's_add_u32 {s_grp}, {s_grp}, 1']
    announce1 = [f's_add_u32 {s_t0}, {s_cnt}, 16', [f's_cmp_eq_u32 {s_t0}, {s_grp}', f's_cselect_b32 {s_t0}, {s_ano}, 2.0'],
                 f'buffer_atomic_add {vt2}, {vt1}, {sdbg}, {s_t0} offen offset:{DBG_CNT} sc1']
    announce = [f's_cmp_eq_u32 {s_cnt}, {s_grp}', f's_cselect_b32 {s_t0}, {s_ano}, 2.0',
                f'buffer_atomic_add {vt2}, {vt1}, {sdbg}, {s_t0} offen offset:{DBG_CNT} sc1']
    cnt_addr = [f'v_and_b32 {vpf}, 7, {vl}', f'v_lshlrev_b32 {vpf}, 2, {vpf}']
    cnt_load = f'buffer_load_dword {vcnt}, {vpf}, {sdbg}, 0 offen offset:{DBG_CNT} sc1'

    def code_setup(wc):
        lab = f'{name}_pc{wc}'
        return [[f's_getpc_b64 {sp4[0:2]}', f'{lab}:'], f's_and_b32 {sp4[1]}, {sp4[1]}, 0xffff', f's_mov_b32 {sp4[2]}, {name}_end-{lab}', f's_mov_b32 {sp4[3]}, 0x00020000',
                f's_lshr_b32 {s_t0}, s2, 3', f's_lshl_b32 {s_t1}, {s_t0}, 8', f's_add_u32 {s_t1}, {s_t1}, {name}_c{wc}out-{lab}', f'v_and_b32 {vcnt}, 1, {vl}', f'v_lshlrev_b32 {vcnt}, 7, {vcnt}',
                f's_lshl_b32 {s_t0}, {s_t0}, 2', f's_add_u32 {s_t0}, {s_t0}, {s_w}', f's_lshl_b32 {s_t0}, {s_t0}, 8',
                f's_add_u32 {s_t0}, {s_t0}, {name}_join-{lab}', f'v_mov_b32 {vtmp[0]}, {s_t0}', f'v_mov_b32 {vtmp[1]}, {s_t1}',
                f'v_cmp_gt_u32 vcc, 2, {vl}', f'v_cndmask_b32 {vtmp[0]}, {vtmp[0]}, {vtmp[1]}, vcc', f'v_add_u32 {vcnt}, {vcnt}, {vtmp[0]}',
                f'v_cmp_gt_u32 vcc, 4, {vl}', f'v_cndmask_b32 {vcnt}, 2.0, {vcnt}, vcc']
    code_pf = [f's_cmp_eq_u32 {s_cnt}, 1', f's_cselect_b32 {s_t0}, 0, 2.0', Ins(f'buffer_load_dword {vpd}, {vcnt}, {sp4}, {s_t0} offen', 'pf')]
    for wc in range(2):
        p.seg(f'c{wc}a')
        if wc == 1: p.e(f'{name}_c1:')
        p.add(wread(0, 0, wc))
        for m in range(2, 8):
            for ks in range(2): p.e(xread(m, ks, 0))
        for j in range(1, DIST): p.add(wread(j, 0, wc))
        left = stage(0, wc, first=True, early=[x for _ in range(PD - PD0 + 1) for x in pfetch()], fill=flag_setup + announce_setup + code_setup(wc) + pf3_setup() + (tlb_touch2() if TLB else []) + (tp_setup() if PT else pf_setup()))
        assert not left
        p.e(f's_mov_b32 {s_cnt}, 6')
        p.seg(f'c{wc}l1')
        p.e(f'{name}_c{wc}loop:')
        stage(1, wc, early=pfetch() + (tp_load() if PT else pfetch_d()), extra=gate_sel + gate_loads + (announce1 if PT else []), estep=1)
        p.e(f's_cmp_eq_u32 {s_cnt}, 0\ns_cbranch_scc1 {name}_c{wc}out')
        p.seg(f'c{wc}l2')
        stage(0, wc, early=pfetch() + ([] if PT else pfetch_d()), extra=([x for x in tp_store() if x is not None] if PT else []) + announce + ([] if NOPF & 2 else pf_wo) + (code_pf if CPF else []), estep=1 if PT else 2)
        p.e(f's_sub_u32 {s_cnt}, {s_cnt}, 1\ns_branch {name}_c{wc}loop')
        p.seg(f'c{wc}last')
        p.e(f'{name}_c{wc}out:')
        rest = stage(0, wc, early=None if PT else pfetch_d(), fill=gate_ops(), nodma1=True, dens=GD)
        rest = stage(1, wc, last=True, fill=rest + cnt_addr + [cnt_load] + epi_setup(wc) + epi_early(wc, 99))
        pf.stamp(2)
        if ptrace == -1: pf.trace()
        k = max([i for i, x in enumerate(rest) if isinstance(x, str) and x.startswith('ds_write')] + [-1]) + 1
        for x in rest[:k]: p.add(x if isinstance(x, list) else [x])
        rest = rest[k:]
        if PKR:
            out = []; i = 0
            while i < len(rest):
                x = rest[i]; y = rest[i + 1] if i + 1 < len(rest) else None
                if isinstance(x, str) and isinstance(y, str) and x.startswith('v_mul_f32') and y.startswith('v_mul_f32'):
                    a0, b0, c0 = [int(t.strip()[1:]) for t in x[10:].split(',')]; a1, b1, c1 = [int(t.strip()[1:]) for t in y[10:].split(',')]
                    if a0 % 2 == 0 and b0 % 2 == 0 and (a1, b1, c1) == (a0 + 1, b0 + 1, c0 + 1):
                        out.append(f'v_pk_mul_f32 v[{a0}:{a1}], v[{b0}:{b1}], v[{c0}:{c1}]'); i += 2; continue
                out.append(x); i += 1
            rest = out
        va_, vb_ = vdg[0], vdg[1]
        p.e(f"""
        v_lshlrev_b32 {va_}, 4, {vl}
        s_lshl_b32 {s_t0}, {s_w}, 12
        s_add_u32 {s_t0}, {s_t0}, {QS}
        v_add_u32 {vb_}, {s_t0}, {va_}
        s_waitcnt lgkmcnt(0)
        s_barrier
        """)
        for q in range(2):
            for f in range(2): p.e(f'ds_read_b128 a[{40 + 8 * q + 4 * f}:{43 + 8 * q + 4 * f}], {vb_} offset:{q * 2048 + f * 1024}')
        for i in range(4): p.e(f'ds_read_b128 a[{56 + 4 * i}:{59 + 4 * i}], {va_} offset:{(i // 2) * 4096 + (i % 2) * 1024}')
        pre = [f'v_mfma_f32_32x32x16_bf16 v[{64 + 16 * q}:{79 + 16 * q}], a[{56 + 4 * f}:{59 + 4 * f}], a[{40 + 8 * q + 4 * f}:{43 + 8 * q + 4 * f}], ' + ('0' if f == 0 else f'v[{64 + 16 * q}:{79 + 16 * q}]')
               for q in range(2) for f in range(2)]
        rest = rest + [x for j in range(3, -1, -1) for x in hpiece(8, j, hreg[8 + j], True)]
        for i, x in enumerate(rest):
            p.add(x if isinstance(x, list) else [x])
            if i >= 24 and (i - 24) % 7 == 0 and pre: p.e(pre.pop(0))
        p.add(pre)
        if ptrace == -1: pf.trace()
        if ptrace == -1: pf.trace()
        if wc == 0: p.e(f's_branch {name}_join')
    p.seg('join')
    p.e(f'{name}_join:')
    p.add(check([f'v_cmp_gt_u32 vcc, 32, {vcnt}'], [cnt_load], 'cnt'))

    sa.p = s_base; va.p = v_base; aa.p = 0
    skv = sa(4); sA = sa(4); swd = sa(4); swo = sa(4); sout = sa(4)
    s_okv, s_left, s_p, s_oa, s_ow, s_wb, s_ob, s_ob2, s_thr, s_mt, s_nt, s_oo, s_spin, s_h1, s_h2, s_rt, s_win = [sa() for _ in range(17)]
    scp = sa(4)
    vl16, vkA, vkB, vdma, vo, vidx, vu0, vu1, vu2, vpa = [va() for _ in range(10)]
    vdd = [va() for _ in range(2)]; vdo = [va() for _ in range(2)]; vwr = [va() for _ in range(2)]
    vg = va(2); vog = va(4); vpoll = va(2, 2); vsc = va(2)
    ones = va(4, 4)
    vA = [va() for _ in range(4)]
    assert va.p <= 46 and va.p > vwo.a
    va2 = Alloc('v', va.p, 48)
    va.p = 48
    Sx = [va(16, 4) for _ in range(2)]; P = [va(8, 4) for _ in range(2)]; C = [va(16, 4) for _ in range(2)]
    acc3 = [[va(16, 4) for _ in range(4)] for _ in range(2)]
    O = [aa(16, 4) for _ in range(2)]; L = [aa(4, 4) for _ in range(2)]
    Q = [aa(8, 4) for _ in range(2)]; K = [aa(8, 4) for _ in range(2)]; V = [aa(8, 4) for _ in range(2)]
    Wf = [aa(4, 4) for _ in range(2)]
    Ab = [[aa(4, 4) for _ in range(4)] for _ in range(8)]
    if PT:
        NB = 4; DA = DW = 3
        Wb = [[Ab[4 + i // 2][2 * (i % 2)], Ab[4 + i // 2][2 * (i % 2) + 1]] for i in range(4)]

    p.e(f"""
    v_lshlrev_b32 {vl16}, 4, {vl}
    s_lshl_b32 {s_p}, {s_w}, 12
    """)
    assert Q[0].a == 40 and K[0].a == 56 and Sx[1].a == 64 and P[0].a == 80
    pf.stamp(3)
    def kread(kb, loop=False):
        base, o = (vl16, (kb % 16) * 4096) if not loop else ((vkA, kb * 4096) if kb < 8 else (vkB, (kb - 8) * 4096))
        return [f'ds_read_b128 {K[kb % 2][4*f:4*f+4]}, {base} offset:{o + f * 1024}' for f in range(2)]
    def vread(kb, loop=False):
        base, o = (vl16, (kb % 16) * 4096) if not loop else (vkA, kb * 4096)
        return [f'ds_read_b128 {V[kb % 2][4*f:4*f+4]}, {base} offset:{o + 2048 + f * 1024}' for f in range(2)]
    def qk(dst, kb, q, f, cin):
        return f'v_mfma_f32_32x32x16_bf16 {dst}, {K[kb % 2][4*f:4*f+4]}, {Q[q][4*f:4*f+4]}, {cin if f == 0 else dst}'
    def pv(j, f, zero=False):
        q = j % 2; kb = (j // 2) % 2
        return f'v_mfma_f32_32x32x16_bf16 {O[q]}, {V[kb][4*f:4*f+4]}, {P[q][4*f:4*f+4]}, {"0" if zero else O[q]}'
    def rsum(q): return f'v_smfmac_f32_16x16x64_bf16 {L[q]}, {ones}, {P[q]}, {vidx}'
    def cvt(j, i): return f'v_cvt_pk_bf16_f32 {P[j % 2][i]}, {Sx[j % 2][2*i]}, {Sx[j % 2][2*i+1]}'
    def rowmax(dst, src, init):
        lst = [src[i] for i in range(16)]
        if init:
            p.e(f'v_max3_f32 {dst}, {lst[0]}, {lst[1]}, {lst[2]}'); lst = lst[3:]
        while len(lst) >= 2:
            p.e(f'v_max3_f32 {dst}, {dst}, {lst[0]}, {lst[1]}'); lst = lst[2:]
        if lst: p.e(f'v_max_f32 {dst}, {dst}, {lst[0]}')
    def setc(q, m):
        p.e(f'v_mov_b32 {vu2}, {m}\nv_permlane32_swap_b32 {vu2}, {m}\nv_max_f32 {m}, {m}, {vu2}')
        for i in range(16): p.e(f'v_sub_f32 {C[q][i]}, 0, {m}')
    rowmax(vu0, R('v', 64, 16), True); rowmax(vu1, R('v', 80, 16), True)
    setc(0, vu0)
    p.e(qk(Sx[0], 0, 0, 0, C[0])); p.e(qk(Sx[0], 0, 0, 1, C[0]))
    setc(1, vu1)
    p.e(f"""
    v_bfe_u32 {vu0}, {vl}, 2, 1
    v_bfe_u32 {vu1}, {vl}, 1, 1
    v_mov_b32 {vu2}, 0x3f803f80
    v_or_b32 {vidx}, {vu0}, {vu1}
    v_cmp_eq_u32 vcc, 0, {vidx}
    v_xor_b32 {vu0}, 1, {vu0}
    v_or_b32 {vidx}, {vu0}, {vu1}
    v_cndmask_b32 {ones[0]}, 0, {vu2}, vcc
    v_cndmask_b32 {ones[1]}, 0, {vu2}, vcc
    v_cmp_eq_u32 vcc, 0, {vidx}
    v_and_b32 {vu0}, 1, {vl}
    v_mov_b32 {vu1}, 0xeeeeeeee
    v_cndmask_b32 {ones[2]}, 0, {vu2}, vcc
    v_cndmask_b32 {ones[3]}, 0, {vu2}, vcc
    v_cmp_eq_u32 vcc, 0, {vu0}
    v_mov_b32 {vu2}, 0x44444444
    v_add_u32 {vdma}, {s_p}, {vl16}
    v_cndmask_b32 {vidx}, {vu1}, {vu2}, vcc
    """)
    for q in range(2):
        for i in range(2): p.e(f'v_accvgpr_write_b32 {L[q][i]}, 0')
    p.e(f's_lshl_b32 {s_t0}, {s_h}, 18')
    srd(p, skv, pws, off_s=s_t0, off_imm=WS_KV, size=262144)

    def flag(val, tag, wait):
        return [f'v_mov_b32 {vu0}, {val}', f'WAITTAG {wait}', Ins(f'buffer_store_dword {vu0}, {vflag}, {sfl}, 0 offen sc1', tag)]
    def kvdma(m0line, tag, count=True):
        return [m0line] + [Ins(f'buffer_load_dwordx4 {vdma}, {skv}, {s_okv} offen offset:{i * 1024}{lm2} lds', tag) for i in range(4)] + \
               [f's_add_u32 {s_okv}, {s_okv}, 16384', f's_and_b32 {s_okv}, {s_okv}, 0x3ffff'] + \
               ([f's_sub_u32 {s_left}, {s_left}, 1', f's_cselect_b32 {skv[2]}, 0, {skv[2]}'] if count else [])
    NW = 4
    def wload(s):
        if PT: return [Ins(f'buffer_load_dwordx4 {Wb[s % 4][nb]}, {vl16}, {swd}, {s_oa} offen offset:{nb * 1024}{lm2}', f'D{s % NW}') for nb in range(2)]
        return [f's_add_u32 m0, {s_wb}, {(s % NW) * 2048}'] + \
               [Ins(f'buffer_load_dwordx4 {vdd[hh]}, {swd}, {s_ow} offen offset:{hh * 1024}{lm2} lds', f'D{s % NW}') for hh in range(2)] + [f's_add_u32 {s_ow}, {s_ow}, 32768']
    def hload(s):
        return [Ins(f'buffer_load_dwordx4 {Ab[s % NB][r]}, {vA[r]}, {sA}, {s_oa} offen{lm2}', f'A{s % NB}') for r in range(4)] + [f's_add_u32 {s_oa}, {s_oa}, 4096']
    def wrd(base, off, nb):
        if PT: return []
        return [f'ds_read_b64_tr_b16 {Wf[nb][2*s:2*s+2]}, {base[nb]} offset:{off + s * 512}' for s in range(2)]
    def gm(st, nb, tb, zero=False):
        return f'v_mfma_f32_32x32x16_bf16 {acc3[nb][tb]}, {Wb[st % 4][nb] if PT else Wf[nb]}, {Ab[st % NB][tb]}, {"0" if zero else acc3[nb][tb]}'
    def oload(t, m0line, tag):
        return [m0line] + [Ins(f'buffer_load_dwordx4 {vdo[hh]}, {swo}, {s_oo} offen offset:{hh * 1024} lds', tag) for hh in range(2)] + [f's_add_u32 {s_oo}, {s_oo}, 32768']

    zplan = {}
    def period(j, loop=False, item=None, misc=(), pre=(), zero=False):
        s = Sx[j % 2]
        E = [f'v_exp_f32 {s[i]}, {s[i]}' for i in range(16)]
        jn = j + 1
        m1 = qk(Sx[jn % 2], jn // 2, jn % 2, 0, C[jn % 2]); m2 = qk(Sx[jn % 2], jn // 2, jn % 2, 1, None)
        rd = kread((j + 1) // 2 + 1, loop) if j % 2 == 1 else vread(j // 2, loop)
        first = (j == 0 and not loop)
        zo = (j <= 2 and not loop)
        c7 = [] if first else [cvt(j - 1, 7)]
        p0 = [] if first else [pv(j - 1, 0, zo)]; p1 = [] if first else [pv(j - 1, 1)]; rs = [] if first else [rsum((j - 1) % 2)]
        V_ = [E[0]] + c7
        for i in range(7): V_ += [E[2 * i + 1], E[2 * i + 2], cvt(j, i)]
        V_.append(E[15])
        if item is None:
            p.add(V_[:1 + len(c7)]); V_ = V_[1 + len(c7):]
            if AW and j % 2 == 1: p.e('s_waitcnt lgkmcnt(0)')
            z_ = [] if loop else zplan.get(j, [])
            M = [m1] + z_[:1] + [m2] + p0 + z_[1:] + p1 + rs; G = []
        else:
            st, nb = item
            G = [gm(st, nb, tb if nb == 0 else 3 - tb, zero) for tb in range(4)]
            M = [G[0], m1, G[1], m2, G[2]] + p0 + [G[3]] + p1 + rs
        if loop and exp_ & 1: M = [x for x in M if x not in G]
        if loop and exp_ & 8: misc = [x for x in misc if not (isinstance(x, Ins) and x.tag and x.tag.startswith('D'))]
        misc = list(misc)
        for k in range(len(misc)):
            if isinstance(misc[k], str) and ' m0,' in misc[k]:
                q_ = k
                while q_ > 0 and not (isinstance(misc[q_ - 1], Ins) and misc[q_ - 1].text.endswith(' lds')): q_ -= 1
                misc.insert(q_, misc.pop(k))
        items = []
        for x in list(pre) + rd + list(misc):
            if items and isinstance(items[-1][-1], str) and items[-1][-1].split()[0] in ('WAITTAG', 's_cbranch_vccnz', 'v_cmp_gt_u32', 's_getpc_b64', 's_cmp_eq_u32'): items[-1].append(x)
            else: items.append([x])
        isvm = lambda it: any((y.text if isinstance(y, Ins) else y).startswith('buffer') for y in it)
        n = len(M); last = n - 1 if M[-1].startswith('v_smfmac') else n
        cost = lambda x: 8 if x.startswith('v_exp') else 4
        occ = [32 if '32x32' in x else 16 for x in M]
        iss = [8 if 'smfmac' not in x else SMC for x in M]
        ic = [sum((VMC if (y.text if isinstance(y, Ins) else y).startswith('buffer') else 4) for y in it if not (isinstance(y, str) and y.endswith(':'))) for it in items]
        vc = [cost(x) for x in V_]
        tailc = (4 if item is not None else 12 + (4 if j % 2 == 0 else 0))
        if item is None: iss[-1] += 0
        import functools
        @functools.lru_cache(None)
        def best(g, a_, b_, pv_):
            if g == n: return (0, ()) if (a_ == len(items) and b_ == len(V_)) else (10 ** 9, ())
            res = (10 ** 9, ())
            lo = 0
            if g == 0 and item is not None: lo = 1 + len(c7)
            for na in range(0, len(items) - a_ + 1):
                if g == 0 and na < min(len(items), npre): continue
                nv_ = sum(map(isvm, items[a_:a_ + na]))
                ca = sum(ic[a_:a_ + na])
                if g < n - 1 and ca > 64: break
                pen = (VPEN * max(0, nv_ - 1) + (VPEN // 2 if (nv_ and pv_) else 0)) + (0.01 * g * na)
                for nb_ in range(lo, len(V_) - b_ + 1):
                    f_ = iss[g] + ca + sum(vc[b_:b_ + nb_]) + (tailc if g == n - 1 else 0)
                    if f_ > 120 and g < n - 1: break
                    r_ = best(g + 1, a_ + na, b_ + nb_, nv_ > 0)
                    t_ = max(occ[g], f_) + pen + r_[0] + 0.001 * (f_ - occ[g]) ** 2
                    if t_ < res[0]: res = (t_, ((na, nb_),) + r_[1])
            return res
        npre = len([1 for it in items if any(y in pre for y in it if isinstance(y, str))])
        tot_, asg = best(0, 0, 0, False)
        assert tot_ < 10 ** 8
        if dbg == -1: print(j, loop, item, round(tot_), len(items), sum(map(isvm, items)))
        a_ = b_ = 0
        for q_, m_ in enumerate(M):
            p.add([m_])
            na, nb_ = asg[q_]
            for it in items[a_:a_ + na]: p.add(it)
            p.add(V_[b_:b_ + nb_]); a_ += na; b_ += nb_

    setup1 = lines(f"""
        s_lshl_b32 {s_okv}, {s_mb}, 15
        s_add_u32 {s_okv}, {s_okv}, 32768
        s_and_b32 {s_okv}, {s_okv}, 0x3ffff
        s_movk_i32 {s_left}, {13 - (PA // 8 + (0 if KS == 2 else 1))}
        v_and_b32 {vu1}, 31, {vl}
        v_lshlrev_b32 {vpa}, 2, {vu1}
        s_lshl_b32 {s_t2}, {s_h}, 7
        s_add_u32 {s_t2}, {s_t2}, 4096""")
    poll_kv = f'buffer_load_dword {vpoll[0]}, {vpa}, {sfl}, {s_t2} offen sc1'
    setup2 = lines(f"""
        s_and_b32 {s_t0}, s2, 7
        s_lshr_b32 {s_t1}, s2, 3
        s_lshr_b32 {s_mt}, {s_t0}, 1
        s_lshl_b32 {s_mt}, {s_mt}, 2
        s_and_b32 {s_nt}, {s_t0}, 1
        s_lshl_b32 {s_nt}, {s_nt}, 3
        s_and_b32 {s_t0}, {s_t1}, 3
        s_add_u32 {s_mt}, {s_mt}, {s_t0}
        s_lshr_b32 {s_t0}, {s_t1}, 2
        s_add_u32 {s_nt}, {s_nt}, {s_t0}
        s_lshl_b32 {s_t0}, {s_nt}, 7
        s_lshl_b32 {s_t1}, {s_w}, 19
        s_add_u32 {s_t1}, {s_t1}, {s_t0}
        s_add_u32 {swo[0]}, {pwo[0]}, {s_t1}
        s_addc_u32 {swo[1]}, {pwo[1]}, 0
        s_sub_u32 {swo[2]}, {D * D * 2}, {s_t1}
        s_mov_b32 {swo[3]}, 0x00020000
        s_add_u32 {swd[0]}, {pwd[0]}, {s_t0}
        s_addc_u32 {swd[1]}, {pwd[1]}, 0
        s_sub_u32 {swd[2]}, {F * D * 2}, {s_t0}
        s_mov_b32 {swd[3]}, 0x00020000
        s_mul_i32 {s_t0}, {s_mt}, {288 * 4096}
        s_add_u32 {s_t0}, {s_t0}, {WS_A}
        s_add_u32 {sA[0]}, {pws[0]}, {s_t0}
        s_addc_u32 {sA[1]}, {pws[1]}, 0
        s_mov_b32 {sA[2]}, {288 * 4096}
        s_mov_b32 {sA[3]}, 0x00020000
        s_mul_i32 {s_oa}, {s_w}, {56 * 4096}
        s_lshl_b32 {s_ow}, {s_oa}, 3
        s_mov_b32 {s_oo}, 0
        s_mul_i32 {s_wb}, {s_w}, 20480
        s_add_u32 {s_wb}, {s_wb}, {W0}
        v_lshrrev_b32 {vu1}, 3, {vl}
        v_and_b32 {vu2}, 2, {vu1}
        v_lshlrev_b32 {vu2}, 1, {vu2}
        v_and_b32 {vdd[1]}, 7, {vl}
        v_xor_b32 {vu2}, {vu2}, {vdd[1]}
        v_lshlrev_b32 {vu2}, 4, {vu2}
        v_lshl_add_u32 {vdd[0]}, {vu1}, 11, {vu2}
        v_add_u32 {vdd[1]}, {8 * 2048 - 1024}, {vdd[0]}
        v_lshrrev_b32 {vu1}, 5, {vl}
        v_lshl_add_u32 {vdo[0]}, {vu1}, 13, {vdd[0]}
        v_add_u32 {vdo[1]}, {4 * 2048 - 1024}, {vdo[0]}
        v_lshl_add_u32 {vwr[0]}, {vu1}, 10, {s_wb}
        v_bfe_u32 {vu1}, {vl}, 2, 2
        v_lshl_add_u32 {vwr[0]}, {vu1}, 7, {vwr[0]}
        v_bfe_u32 {vu1}, {vl}, 3, 1
        v_lshl_add_u32 {vwr[0]}, {vu1}, 6, {vwr[0]}
        v_bfe_u32 {vu1}, {vl}, 4, 1
        v_lshl_add_u32 {vwr[0]}, {vu1}, 5, {vwr[0]}
        v_and_b32 {vu1}, 3, {vl}
        v_lshl_add_u32 {vwr[0]}, {vu1}, 3, {vwr[0]}
        v_xor_b32 {vwr[1]}, 64, {vwr[0]}
        v_mov_b32 {vkB if PA == 48 else vkA}, {vl16}
        v_add_u32 {vkA if PA == 48 else vkB}, 32768, {vl16}
        s_nop 0
        s_nop 0""")
    setup2 = setup2[:-2]
    setup1 += [f's_add_u32 {s_h1}, {s_hb}, 4096', f's_add_u32 {s_h2}, {s_hb}, 8192']
    if PT:
        setup2 += lines(f"""
        s_lshr_b32 {s_t0}, {s_nt}, 1
        s_mul_i32 {s_t0}, {s_t0}, {224 * 4096}
        s_and_b32 {s_t1}, {s_nt}, 1
        s_lshl_b32 {s_t1}, {s_t1}, 11
        s_add_u32 {s_t0}, {s_t0}, {s_t1}
        s_add_u32 {s_t0}, {s_t0}, {WS_T}
        s_add_u32 {swd[0]}, {pws[0]}, {s_t0}
        s_addc_u32 {swd[1]}, {pws[1]}, 0
        s_mov_b32 {swd[2]}, {224 * 4096 - 2048}""")
    for r in range(4):
        setup2 += [f's_add_u32 {s_t0}, {s_w}, {r + 1}', f's_and_b32 {s_t0}, {s_t0}, 3', f's_lshl_b32 {s_t0}, {s_t0}, 10', f'v_add_u32 {vA[r]}, {s_t0}, {vl16}']
    setup3 = lines(f"""
        v_and_b32 {vu1}, 7, {vl}
        v_bfe_u32 {vu2}, {vl}, 4, 1
        v_lshl_add_u32 {vo}, {vu2}, 3, {vu1}
        v_bfe_u32 {vu2}, {vl}, 3, 1
        v_lshl_add_u32 {vo}, {vu2}, 4, {vo}
        v_lshrrev_b32 {vu2}, 3, {vo}
        v_lshlrev_b32 {vu2}, 7, {vu2}
        v_lshl_add_u32 {vsc[0]}, {vu1}, 2, {vu2}
        v_lshlrev_b32 {vo}, 4, {vo}
        v_lshrrev_b32 {vu2}, 5, {vl}
        v_lshl_add_u32 {vo}, {vu2}, 9, {vo}
        v_bfe_u32 {vu2}, {vl}, 3, 2
        v_lshlrev_b32 {vu2}, 7, {vu2}
        v_lshl_add_u32 {vsc[1]}, {vu1}, 2, {vu2}
        s_lshl_b32 {s_t0}, {s_mb}, 1
        s_add_u32 {s_t0}, {s_t0}, {s_wr}
        s_mul_i32 {s_t0}, {s_t0}, 288
        s_lshl_b32 {s_t1}, {s_h}, 1
        s_add_u32 {s_t0}, {s_t0}, {s_t1}
        s_add_u32 {s_t0}, {s_t0}, 224
        s_lshl_b32 {s_t0}, {s_t0}, 12
        s_lshl_b32 {s_t1}, {s_wc}, 11
        s_add_u32 {s_t0}, {s_t0}, {s_t1}
        s_add_u32 {s_ob}, {s_t0}, {WS_A}
        s_add_u32 {s_ob2}, {s_ob}, 4096
        s_mov_b32 {s_thr}, {hex(f32bits(2.0 ** 40 if not force_slow else 0.5))}
        v_lshlrev_b32 {vpa}, 3, {vl}
        s_lshr_b32 {s_t2}, {s_mt}, 1
        s_lshl_b32 {s_t2}, {s_t2}, 9""")
    poll_h = f'buffer_load_dwordx2 {vpoll}, {vpa}, {sfl}, {s_t2} offen sc1'
    cond2 = [f'v_min_u32 {vu1}, {vpoll[0]}, {vpoll[1]}', f'v_cmp_gt_u32 vcc, 2, {vu1}']
    og_loads = [f's_lshl_b32 {s_t0}, {s_mt}, 11', f's_add_u32 {s_t0}, {s_t0}, {WS_G + 32}']
    for r in range(4):
        og_loads += [f'v_lshrrev_b32 {vu1}, 10, {vA[r]}', f'v_lshl_add_u32 {vu1}, {vu1}, 9, {vsc[1]}', f'buffer_load_dword {vog[r]}, {vu1}, {sws}, {s_t0} offen']
    g_loads = [f's_lshl_b32 {s_t0}, {s_mb}, 2', f's_add_u32 {s_t0}, {s_t0}, {s_w}', f's_lshl_b32 {s_t0}, {s_t0}, 10', f's_add_u32 {s_t0}, {s_t0}, {WS_G}'] + \
              [f'buffer_load_dword {vg[q]}, {vsc[0]}, {sws}, {s_t0} offen offset:{q * 512}' for q in range(2)]
    NE = 16 if PT else 12
    def oslot(t):
        if t >= NE: return vw2, (t - NE) * 2048, f's_add_u32 m0, {s_p}, {(t - NE) * 2048}'
        k = t if t < 4 else t - 4
        n0 = 0 if PT else NW
        if k < 10 - n0: return vwr, (n0 + k) * 2048, f's_add_u32 m0, {s_wb}, {(n0 + k) * 2048}'
        return vw3, (k - 10 + n0) * 2048, f's_add_u32 m0, {s_p}, {QS + (k - 10 + n0) * 2048}'
    WO = [R('a', aa.p + 8 * t, 8) for t in range(4)] + [R('a', 8 * t, 8) for t in range(11)] + [Sx[0][0:8]]
    assert Wf[0].a == 88 and aa.p + 32 <= 256
    vw3 = [va2(), va2()]
    def woread(t):
        base, off, _ = oslot(t)
        return [f'ds_read_b64_tr_b16 {WO[t][4*nb+2*s_:4*nb+2*s_+2]}, {base[nb]} offset:{off + s_ * 512}' for nb in range(2) for s_ in range(2)]
    vw2 = [C[0][0], C[0][1]]
    setup3 += [f's_add_u32 {s_t0}, {s_p}, {QS}', f's_sub_u32 {s_t0}, {s_t0}, {s_wb}', f'v_add_u32 {vw3[0]}, {s_t0}, {vwr[0]}', f'v_add_u32 {vw3[1]}, {s_t0}, {vwr[1]}']
    early_o = [oload(t, oslot(t)[2], 'WO') for t in range(NE)]
    assert PM % 2 == 0 and DW <= 3 and DA <= 7
    plan = {j: [] for j in range(PA)}; prej = {j: [] for j in range(PA)}
    plan[0] += setup1
    plan[1] += setup2[:21]; plan[2] += setup2[21:38]; plan[3] += setup2[38:55]; plan[4] += setup2[55:]; plan[KP] = (plan[KP] + [poll_kv]) if KP == 0 else ([poll_kv] + plan[KP])
    plan[KC] += check([f'v_cmp_gt_u32 vcc, 1, {vpoll[0]}'], [poll_kv], 'kv')
    d = kvdma(f's_add_u32 m0, {s_p}, 32768', 'KV0', False); plan[KC] += d[:3]; plan[KC + 1] += d[3:]
    d = kvdma(f's_add_u32 m0, {s_p}, 49152', 'KV1', False); plan[KC + 2] += d[:3]; plan[KC + 3] += d[3:]
    for i in range(5 if PA == 48 else 3):
        j = 13 + 8 * i
        prej[j] += [f'WAITTAG KV{i % 2}', 's_barrier']
        d = kvdma(f's_add_u32 m0, {s_p}, {(i % 4) * 16384}', f'KV{i % 2}', False)
        if KS == 2 and j == PA - 3: plan[j] += d[:2]; plan[j + 2] += d[:1] + [d[2]]
        elif KS and j >= PM: plan[j] += d[:3]; plan[j + 2] += d[:1] + d[3:]
        else: plan[j] += d[:5]; plan[j + 1] += d[5:]
    busy = (13, 21, 29, 37, 45)
    j = float(H0)
    for k in range(12):
        while int(j) in busy: j = int(j) + 1.0
        plan[int(j)].append(Ins(f'buffer_store_dwordx4 {hreg[k]}, {vl16}, {sws}, {(s_hb, s_h1, s_h2)[k // 4]} offen offset:{(k % 4) * 1024}{st_mod}', 'HST'))
        jl = int(j); j += HP
    plan[10] += setup3[:10]; plan[11] += setup3[10:20]; plan[12] += setup3[20:]
    def nextfree(j):
        while j in busy: j += 1
        return j
    jf = nextfree(jl + FG); plan[jf] += flag(2, 'FL', 'HST')
    ramp = []
    for i in range(max(DA, DW)):
        if i < DW: ramp += wload(i)
        if i < DA: ramp += hload(i)
    groups = []; curg = []; nv = 0
    for x in ramp:
        if isinstance(x, str) and ' m0,' in x and nv + 2 > RP: groups.append(curg); curg = []; nv = 0
        if isinstance(x, Ins):
            if nv >= RP and not x.text.endswith(' lds'): groups.append(curg); curg = []; nv = 0
            nv += 1
        curg.append(x)
    groups.append(curg)
    jc = PM - 1; k = len(groups)
    while k:
        jc -= 1
        if jc not in busy: k -= 1
    jp = jc - PG
    assert jp > jf, (jp, jf)
    if PT and GP:
        vgl = R('v', 224, 16)
        poll_all = [f'buffer_load_dwordx4 {vgl[4 * i:4 * i + 4]}, {vl16}, {sfl}, 0 offen offset:{i * 1024} sc1' for i in range(4)]
        cond_all = [f'v_min3_u32 {vu1}, {vgl[0]}, {vgl[1]}, {vgl[2]}'] + [f'v_min3_u32 {vu1}, {vu1}, {vgl[i]}, {vgl[i + 1]}' for i in range(3, 15, 2)] + \
                   [f'v_min_u32 {vu1}, {vu1}, {vgl[15]}', f'v_cmp_gt_u32 vcc, 2, {vu1}']
        plan[jp] += poll_all
    else: plan[jp] += [poll_h]
    jj = E0
    for t in range(0, 4, 2):
        jj = nextfree(jj + 1); plan[jj] += early_o[t] + early_o[t + 1]
    jj = nextfree(jj + 3)
    for t in range(4):
        plan[jj] += (['WAITTAG WO'] if t == 0 else []) + woread(t); jj = nextfree(jj + 1)
    for t in range(4, NE):
        plan[jj] += (['s_waitcnt lgkmcnt(0)'] if t == 4 else []) + early_o[t]
        if t % 2 == 1 or jj < jl: jj = nextfree(jj + 1)
    assert jj <= jc + 1, (jj, jc)
    if PT and GP: plan[jc] += check(cond_all, poll_all, 'h')
    else: plan[jc] += check(cond2, [poll_h], 'h') + [f's_lshl_b32 {s_t2}, {s_mb}, 9', poll_h]
    jj = jc
    for g_ in groups:
        plan[jj] += g_; jl2 = jj; jj = nextfree(jj + 1)
    assert jl2 <= PM - 2, (jl2, PM)
    plan[PM - 1] = ['WAITTAG D0 A0'] + wrd(vwr, 0, 0) + plan[PM - 1]
    NZ = PM == PA
    if NZ:
        plan[PM - 3] += og_loads
        plan[PM - 1] += check(cond2, [poll_h], 'g') + g_loads
        plan[jf + 1] += [f'v_accvgpr_write_b32 {Wf[1][i]}, 0' for i in range(4)]
        for k in range(8): zplan.setdefault(jf + 2 + k // 2, []).append(f'v_mfma_f32_32x32x16_bf16 {acc3[k // 4][k % 4]}, {Wf[1]}, {Wf[1]}, 0')
        assert jf + 6 < PM
    else:
        plan[PM + 2] += og_loads
        plan[PM + 4] += ([] if (PT and GP) else check(cond2, [poll_h], 'g')) + g_loads
    if PA == 48: plan[PA - 1] += [f's_xor_b32 {s_p}, {s_p}, 32768']
    vcp = va2()
    vtp = [va2() for _ in range(3)]
    L0 = (PA - PM) // 2 + (128 - PA) // 2
    nA = (56 - L0 - DA) * 4; nW = (56 - L0 - DW) * 4; nO = (16 - NE) * 4
    if TP1:
        plan[26] += lines(f"""
        s_and_b32 {s_t0}, {s_nt}, 7
        s_mul_i32 {s_t0}, {s_t0}, {nA}
        s_mul_i32 {s_t1}, {s_w}, {56 * 32}
        s_add_u32 {s_t0}, {s_t0}, {s_t1}
        s_add_u32 {s_t0}, {s_t0}, {(L0 + DA) * 32}
        v_add_u32 {vu1}, {s_t0}, {vl}
        v_lshlrev_b32 {vu1}, 7, {vu1}
        v_cmp_lt_u32 {smask}, {vl}, {nA}
        v_cndmask_b32 {vtp[0]}, 2.0, {vu1}, {smask}""")
        plan[27] += lines(f"""
        s_and_b32 {s_t1}, {s_mt}, 3
        s_mul_i32 {s_t0}, {s_t1}, {nO}
        s_add_u32 {s_t0}, {s_t0}, {NE * 16}
        v_add_u32 {vu1}, {s_t0}, {vl}
        v_lshlrev_b32 {vu1}, 11, {vu1}
        v_cmp_lt_u32 {smask}, {vl}, {nO}
        v_cndmask_b32 {vtp[2]}, 2.0, {vu1}, {smask}
        s_mul_i32 {s_t0}, {s_t1}, {nW}
        s_mul_i32 {s_t1}, {s_w}, {56 * 16}
        s_add_u32 {s_t0}, {s_t0}, {s_t1}
        s_add_u32 {s_t0}, {s_t0}, {(L0 + DW) * 16}
        v_add_u32 {vu1}, {s_t0}, {vl}
        v_lshlrev_b32 {vu1}, 11, {vu1}
        v_cmp_lt_u32 {smask}, {vl}, {nW}
        v_cndmask_b32 {vtp[1]}, 2.0, {vu1}, {smask}""")
    if CP2:
        plan[PM - 3] += [f's_getpc_b64 {scp[0:2]}', f'{name}_pct:', f's_and_b32 {scp[1]}, {scp[1]}, 0xffff', f's_mov_b32 {scp[2]}, {name}_slow-{name}_pct',
                         f's_mov_b32 {scp[3]}, 0x00020000', f's_lshr_b32 {s_t0}, s2, 3', f's_lshl_b32 {s_t0}, {s_t0}, 2', f's_add_u32 {s_t0}, {s_t0}, {s_w}',
                         f's_lshl_b32 {s_t0}, {s_t0}, 7', f's_add_u32 {s_t0}, {s_t0}, {name}_tail-{name}_pct', f'v_lshl_add_u32 {vcp}, {vl}, 14, {s_t0}']
    def mixed(j, st, nb, loop, misc=(), pre=(), zero=False):
        dw = wload(st + DW); da = hload(st + DA)
        if loop and exp_ & 32:
            dw = [Ins(f'buffer_load_dwordx4 a[{224 + 8 * (st % 4) + 4 * hh}:{227 + 8 * (st % 4) + 4 * hh}], {vl16}, {swd}, {s_ow} offen offset:{hh * 1024}', f'D{(st + DW) % NW}') for hh in range(2)] + dw[3:]
            if nb == 0: period(j, loop, (st, 0), misc=dw + da[:1] + list(misc), pre=pre, zero=zero)
            else:
                p.e(f'WAITTAG D{(st + 1) % NW} A{(st + 1) % NB} LGKM0')
                period(j, loop, (st, 1), misc=da[1:] + list(misc), pre=pre, zero=zero)
            return
        if nb == 0:
            period(j, loop, (st, 0), misc=wrd(vwr, (st % NW) * 2048, 1) + dw + da[:AS] + list(misc), pre=pre, zero=zero)
        else:
            p.e(f'WAITTAG D{(st + 1) % NW} A{(st + 1) % NB} LGKM0')
            period(j, loop, (st, 1), misc=wrd(vwr, ((st + 1) % NW) * 2048, 0) + da[AS:] + list(misc), pre=pre, zero=zero)
    p.seg('partA')
    for j in range(PA):
        if ptrace == -1 and j in (0, 1, 5, 7, 9, 13, 15, 21, jf, jf + 1, jc, jc + 1, PM): pf.trace()
        if j < PM: period(j, misc=plan[j], pre=prej[j])
        else: mixed(j, (j - PM) // 2, j % 2, False, misc=plan[j], pre=prej[j], zero=(j < PM + 2))
    if ptrace == -1: pf.trace()
    ST0 = (PA - PM) // 2
    pf.stamp(4)
    p.e(f's_mov_b32 {s_cnt}, {(128 - PA) // 16}')
    p.seg('loop')
    p.e(f'{name}_loop:')
    for j in range(16):
        misc = []; pre = []
        if j in (5, 13):
            pre = [f'WAITTAG KV{1 if j == 5 else 0}', 's_barrier']
        if KS == 0 and j in (5, 6, 13, 14):
            d = kvdma(f's_xor_b32 m0, {s_p}, 49152' if j < 8 else f's_mov_b32 m0, {s_p}', 'KV1' if j < 8 else 'KV0')
            misc = d[:5] if j in (5, 13) else d[5:]
        if KS == 1 and j in (5, 7, 13, 15):
            d = kvdma(f's_xor_b32 m0, {s_p}, 49152' if j < 8 else f's_mov_b32 m0, {s_p}', 'KV1' if j < 8 else 'KV0')
            misc = d[:3] if j in (5, 13) else d[:1] + d[3:]
        if KS == 2 and j % 2 == 1:
            first_ = 5 <= j < 13
            d = kvdma(f's_xor_b32 m0, {s_p}, 49152' if first_ else (f's_mov_b32 m0, {s_p}' if j >= 13 else f's_xor_b32 m0, {s_p}, 32768'), 'KV1' if first_ else 'KV0')
            k = ((j - 5) // 2) % 4
            misc = d[:1] + [d[1 + k]] + (d[5:] if k == 3 else [])
        if TP1 and j == 2: misc = misc + [f's_cmp_eq_u32 {s_cnt}, 1', f's_cselect_b32 {s_t0}, 0, 2.0']
        if TP1 and j in (4, 6, 8): misc = misc + [Ins(f'buffer_load_dword {vpd}, {vtp[j // 2 - 2]}, {(sA, swd, swo)[j // 2 - 2]}, {s_t0} offen', 'pf')]
        if j == 9 and CP2: misc = [Ins(f'buffer_load_dword {vpd}, {vcp}, {scp}, 0 offen', 'pf')]
        if j == 15: misc = misc + [f's_xor_b32 {s_p}, {s_p}, 32768', f'v_xor_b32 {vkA}, 0x8000, {vkA}', f'v_xor_b32 {vkB}, 0x8000, {vkB}']
        if ptrace == -3:
            p.e(f's_memtime {s_pt[2:4]}\ns_waitcnt lgkmcnt(0)\nv_writelane_b32 {vtr}, {s_pt[2]}, {j}')
        mixed(j, ST0 + j // 2, j % 2, True, misc=misc, pre=pre)
    p.e(f's_sub_u32 {s_cnt}, {s_cnt}, 1\ns_cmp_lg_u32 {s_cnt}, 0\ns_cbranch_scc1 {name}_loop')

    p.seg('tail')
    p.e(f'{name}_tail:')
    pf.stamp(5)
    if ptrace == -2: pf.trace()
    p.add([cvt(15, 7), pv(15, 0), pv(15, 1), rsum(1)])
    def lsum():
        p.e(f"""
        v_accvgpr_read_b32 {vsc[0]}, {L[0][0]}
        v_accvgpr_read_b32 {vu0}, {L[0][1]}
        v_accvgpr_read_b32 {vsc[1]}, {L[1][0]}
        v_accvgpr_read_b32 {vu1}, {L[1][1]}
        v_add_f32 {vsc[0]}, {vsc[0]}, {vu0}
        v_add_f32 {vsc[1]}, {vsc[1]}, {vu1}
        """)
    lsum()
    p.e(f"""
    v_cmp_nle_f32 vcc, {vsc[0]}, {s_thr}
    v_cmp_nle_f32 {smask}, {vsc[1]}, {s_thr}
    s_or_b64 vcc, vcc, {smask}
    s_cbranch_vccnz {name}_slow
    """)
    p.seg('epi')
    p.e(f'{name}_epi:')
    LATE0 = ST0 + (128 - PA) // 2
    vs2 = [P[1][0:2], P[1][2:4]]
    vq_ = []
    o_next = NE
    for st_ in range(LATE0, 56):
        if st_ + DW < 56: vq_.append((st_ + DW - NW + 1, wload(st_ + DW)))
        if st_ + DA < 56: vq_.append((st_ + DA - NB + 1, hload(st_ + DA)))
        if o_next < 16: vq_.append((0, oload(o_next, oslot(o_next)[2], 'WO'))); o_next += 1
    assert o_next == 16
    cur = []
    def onevm(st):
        nonlocal cur
        if not cur and vq_ and vq_[0][0] <= st: cur = list(vq_.pop(0)[1])
        if not cur: return False
        while cur:
            x = cur.pop(0); p.add([x])
            if isinstance(x, Ins): break
        while cur and not any(isinstance(y, Ins) for y in cur): p.add([cur.pop(0)])
        return True
    p.e(f"""
    v_rcp_f32 {vsc[0]}, {vsc[0]}
    v_rcp_f32 {vsc[1]}, {vsc[1]}
    s_mul_i32 {s_p}, {s_wr}, 49152
    s_lshl_b32 {s_t0}, {s_wc}, 13
    s_add_u32 {s_p}, {s_p}, {s_t0}
    s_barrier
    v_mul_f32 {vs2[0][0]}, {vsc[0]}, {vg[0]}
    v_mul_f32 {vs2[1][0]}, {vsc[1]}, {vg[1]}
    v_mov_b32 {vs2[0][1]}, {vs2[0][0]}
    v_mov_b32 {vs2[1][1]}, {vs2[1][0]}
    """)
    for q in range(2):
        for f in range(2):
            t_ = Sx[q][8 * f:8 * f + 8]
            if EV: onevm(LATE0)
            for i in range(8): p.e(f'v_accvgpr_read_b32 {t_[i]}, {O[q][8*f+i]}')
            if EV > 1: onevm(LATE0)
            for i in range(4): p.e(f'v_pk_mul_f32 {t_[2*i:2*i+2]}, {t_[2*i:2*i+2]}, {vs2[q]}')
            for i in range(4): p.e(f'v_cvt_pk_bf16_f32 {t_[i]}, {t_[2*i]}, {t_[2*i+1]}')
            p.e(f'buffer_store_dwordx4 {t_[0:4]}, {vo}, {sws}, {(s_ob, s_ob2)[f]} offen offset:{q * 1024}{st_mod}', 'OST')
    vout = C[0][4]; vrw = [C[0][5], C[0][6], C[0][7]]; vrr = C[0][8]
    sk = [s_h1, s_h2, s_hb, s_left]
    vA2 = [[vA[r], Sx[1][3 * r], Sx[1][3 * r + 1], Sx[1][3 * r + 2]] for r in range(4)]
    late2 = lines(f"""
        s_sub_u32 {s_t0}, {s_p}, {s_wb}
        v_add_u32 {vw2[0]}, {s_t0}, {vwr[0]}
        v_add_u32 {vw2[1]}, {s_t0}, {vwr[1]}
        s_lshl_b32 {s_t0}, {s_mt}, 18
        s_lshl_b32 {s_t1}, {s_nt}, 7
        s_add_u32 {s_t0}, {s_t0}, {s_t1}
        s_add_u32 {sout[0]}, {pout[0]}, {s_t0}
        s_addc_u32 {sout[1]}, {pout[1]}, 0
        s_sub_u32 {sout[2]}, {S * D * 2}, {s_t0}
        s_mov_b32 {sout[3]}, 0x00020000
        v_and_b32 {vu1}, 31, {vl}
        s_lshl_b32 {s_t0}, {s_w}, 16
        v_lshl_add_u32 {vout}, {vu1}, 11, {s_t0}
        v_lshrrev_b32 {vu1}, 5, {vl}
        v_lshl_add_u32 {vout}, {vu1}, 4, {vout}
        v_bfe_u32 {vu1}, {vl}, 1, 3
        v_and_b32 {vu2}, 1, {vl}
        v_lshlrev_b32 {vu2}, 2, {vu2}
        v_lshl_add_u32 {vpa}, {vu1}, 4, {vu2}
        s_lshr_b32 {s_t2}, {s_mt}, 1
        s_lshl_b32 {s_t2}, {s_t2}, 9
        s_lshl_b32 {s_t0}, {s_w}, 7
        s_add_u32 {s_t2}, {s_t2}, {s_t0}
        s_and_b32 {s_t0}, {s_mt}, 1
        s_lshl_b32 {s_t0}, {s_t0}, 3
        s_add_u32 {s_t2}, {s_t2}, {s_t0}
        s_mul_i32 {s_t0}, {s_w}, 24576
        v_add_u32 {vrr}, {s_t0}, {vl16}
        s_lshl_b32 {s_t1}, {s_w}, 16
        s_add_u32 {s_t1}, {s_t1}, {224 * 4096}""")
    late2[6:8] = [late2[6:8]]
    for r in range(3):
        late2 += [f'v_lshrrev_b32 {vu1}, 10, {vA[r]}', f'v_mul_u32_u24 {vu1}, 24576, {vu1}', f'v_add_u32 {vu1}, {(2 - r) * 8192}, {vu1}', f'v_add_u32 {vrw[r]}, {vu1}, {vl16}']
    for i in range(4):
        late2 += [f's_add_u32 {sk[i]}, {s_t1}, {i * 16384}']
    for r in range(4):
        for i in range(1, 4): late2.append(f'v_add_u32 {vA2[r][i]}, {i * 4096}, {vA[r]}')
    vtw = [C[1][i] for i in range(4)]; vtr_ = C[1][4]; sf = [0, s_ow, s_oo, s_ob]
    fin_setup = lines(f"""
        s_lshl_b32 {s_t0}, {s_w}, 12
        s_add_u32 {s_t0}, {s_t0}, {QS}
        v_and_b32 {vu1}, 31, {vl}
        v_lshl_add_u32 {vtw[0]}, {vu1}, 7, {s_t0}
        v_lshrrev_b32 {vu2}, 5, {vl}
        v_xor_b32 {vu2}, {vu2}, {vl}
        v_and_b32 {vu2}, 7, {vu2}
        v_lshl_add_u32 {vtw[0]}, {vu2}, 4, {vtw[0]}
        v_xor_b32 {vtw[1]}, 32, {vtw[0]}
        v_xor_b32 {vtw[2]}, 64, {vtw[0]}
        v_xor_b32 {vtw[3]}, 0x60, {vtw[0]}
        v_lshrrev_b32 {vu1}, 3, {vl}
        v_xor_b32 {vu2}, {vu1}, {vl}
        v_and_b32 {vu2}, 7, {vu2}
        v_lshl_add_u32 {vtr_}, {vu1}, 7, {s_t0}
        v_lshl_add_u32 {vtr_}, {vu2}, 4, {vtr_}
        v_and_b32 {vu2}, 7, {vl}
        v_lshlrev_b32 {vu2}, 4, {vu2}
        s_lshl_b32 {s_t0}, {s_w}, 16
        v_lshl_add_u32 {vout}, {vu1}, 11, {s_t0}
        v_add_u32 {vout}, {vout}, {vu2}""") + [f's_mov_b32 {sf[i]}, {i * 16384}' for i in range(1, 4)]
    poll_o = f'buffer_load_dword {vpoll[0]}, {vpa}, {sfl}, {s_t2} offen sc1'
    AB = [Ab[i // 4][i % 4] for i in range(32)]
    abfree = [48 + i // 4 for i in range(32)]
    if PT:
        AB = [Ab[6 + i // 4][i % 4] for i in range(8)]; abfree = [0] * 8
        for b in range(4):
            AB += Ab[b] + Wb[b]; abfree += [52 + b] * 6
    def aload(i):
        r, t = divmod(i, 16)
        return f'buffer_load_dwordx4 {AB[i % 32]}, {vA2[r][t % 4]}, {sA}, {sk[t // 4]} offen{lm2}'
    a_next = 0; side = list(late2); checked = False
    for st in range(LATE0, 56):
        if ptrace == -2: pf.trace()
        n0 = wrd(vwr, (st % NW) * 2048, 1)
        n1 = ([f'WAITTAG D{(st + 1) % NW} A{(st + 1) % NB}'] + wrd(vwr, ((st + 1) % NW) * 2048, 0)) if st < 55 else []
        if st == LATE0 + 1: side = [flag(3, 'FL', 'OST')] + side
        if st == LATE0 + 2: side += [x for t in range(4, NE) for x in woread(t)]
        for c in range(8):
            nb, tb = divmod(c, 4)
            p.e(gm(st, nb, tb if nb == 0 else 3 - tb))
            if c == 0: p.add(n0)
            if c == 4: p.add(n1)
            if st == LATE0 + OC - PO and c == 1:
                assert not any(isinstance(y, str) and (str(vpa) + ',' in y or str(s_t2) + ',' in y) for y in side)
                p.e(poll_o)
            if st == LATE0 + OC and c == 1:
                p.add(check([f'v_cmp_gt_u32 vcc, 3, {vpoll[0]}'], [poll_o], 'o')); checked = True
                if TP2:
                    p.e(f's_and_b32 {s_t0}, {s_nt}, 7\ns_lshl_b32 {s_t0}, {s_t0}, 13\ns_add_u32 {s_t0}, {s_t0}, {sk[0]}\nv_lshlrev_b32 {vu1}, 7, {vl}')
                    p.add([Ins(f'buffer_load_dword {vpd}, {vu1}, {sA}, {s_t0} offen', 'pf')])
            if onevm(st): pass
            elif checked and a_next < AL and abfree[a_next] < st and st >= 56 - ALS:
                assert not any(y in late2 for y in side)
                p.e(aload(a_next)); a_next += 1
            for _ in range(3 if st < LATE0 + 2 else 2):
                if side:
                    x = side.pop(0); p.add(x if isinstance(x, list) else [x])
    assert not cur and not vq_ and checked and not side
    if ptrace == -2: pf.trace()
    pf.stamp(6)
    def scale(r): return [f'v_mul_f32 {acc3[nb][r][i]}, {acc3[nb][r][i]}, {vog[r]}' for nb in range(2) for i in range(16)]
    p.e('WAITTAG WO')
    rds = [x for t in range(NE, 16) for x in woread(t)]
    for k, x in enumerate(scale(0)):
        p.e(x)
        if k % 4 == 1 and rds: p.e(rds.pop(0))
        if k % 8 == 3 and a_next < AL + 4: p.e(aload(a_next)); a_next += 1
    side = []
    for k, x in enumerate(scale(1)):
        side.append(x)
        if rds: side.append(rds.pop(0))
    assert not rds
    def rdpart(sl, dst): return [f'ds_read_b128 {acc3[n_][dst][4*j:4*j+4]}, {vrr} offset:{sl * 8192 + (n_ * 4 + j) * 1024}' for n_ in range(2) for j in range(4)]
    def addpart(src): return [f'v_add_f32 {acc3[n_][0][e]}, {acc3[n_][0][e]}, {acc3[n_][src][e]}' for n_ in range(2) for e in range(16)]
    wr = []; dens = 2
    for i in range(64):
        r, t = divmod(i, 16)
        if ptrace == -2 and i % 8 == 0: pf.trace()
        for nb in range(2):
            if nb == 0:
                if i == 16: side += scale(2)
                if i == 16 + 2:
                    p.e('s_waitcnt lgkmcnt(0)\ns_barrier')
                if i == 32:
                    assert not side
                    side += scale(3); dens = 3 if FT else 2
                if i == 33 and FT:
                    side += fin_setup
                if i == 32 + 11:
                    assert not wr and not side
                    p.e('s_waitcnt lgkmcnt(0)\ns_barrier')
                    side += rdpart(2, 0) + rdpart(1, 1) + [None] * 4 + addpart(1); dens = 3
                if i == 48 + 7:
                    assert not wr and not side
                    p.e('s_waitcnt lgkmcnt(0)\ns_barrier')
                    side += rdpart(0, 2) + [None] * 6 + addpart(2)
            p.e(f'v_mfma_f32_32x32x16_bf16 {acc3[nb][r]}, {WO[t][4*nb:4*nb+4]}, {AB[i % 32]}, {acc3[nb][r]}')
            if a_next < 64 and a_next <= i + 30 and (nb == 0 or a_next < i + ALM): p.e(aload(a_next)); a_next += 1
            if wr and t >= 2 and (nb == 1 or r == 3): p.e(wr.pop(0))
            for _ in range(dens):
                if side:
                    x = side.pop(0)
                    if x: p.e(x)
        if t == 15 and r < 3:
            assert not wr
            wr = [f'ds_write_b128 {vrw[r]}, {acc3[nb][r][4*j:4*j+4]} offset:{(nb * 4 + j) * 1024}' for nb in range(2) for j in range(4)]
    fin = side
    assert a_next == 64
    pf.stamp(7)
    p.add([x for x in fin if x])
    for nb in range(2):
        a_ = acc3[nb][3]
        for jp in range(2):
            for i in range(4 * jp, 4 * jp + 4): p.e(f'v_pk_add_f32 {a_[2*i:2*i+2]}, {a_[2*i:2*i+2]}, {acc3[nb][0][2*i:2*i+2]}')
            o = Sx[0][8 + 4 * jp:12 + 4 * jp] if nb == 0 else P[0][4 * jp:4 * jp + 4]
            for i in range(4): p.e(f'v_cvt_pk_bf16_f32 {o[i]}, {a_[8 * jp + 2 * i]}, {a_[8 * jp + 2 * i + 1]}')
            p.e(f'v_permlane32_swap_b32 {o[0]}, {o[2]}\nv_permlane32_swap_b32 {o[1]}, {o[3]}')
            if FT: p.e(f'ds_write_b128 {vtw[2 * nb + jp]}, {o}')
            else: p.e(f'buffer_store_dwordx4 {o}, {vout}, {sout}, 0 offen offset:{nb * 64 + jp * 32}' + ('', ' sc1', ' nt', ' sc0 sc1')[OUTM])
    if FT:
        p.e('s_waitcnt lgkmcnt(0)')
        for i in range(4): p.e(f'ds_read_b128 {acc3[0][1][4*i:4*i+4]}, {vtr_} offset:{i * 1024}')
        for i in range(4): p.e(f'buffer_store_dwordx4 {acc3[0][1][4*i:4*i+4]}, {vout}, {sout}, {sf[i]} offen' + ('', ' sc1', ' nt', ' sc0 sc1')[OUTM])
    pf.stamp(8)
    pf.flush(s_w, sws, vl, vu0)
    if PRB or PRA:
        p.e(f"""
        v_readlane_b32 {s_t0}, {vtr}, {44 + 2 * PRA}
        v_readlane_b32 {s_t1}, {vtr}, {44 + 2 * PRB}
        v_readlane_b32 {s_t2}, {vtr}, 62
        s_nop 4
        s_sub_u32 {s_t0}, {s_t1}, {s_t0}
        s_min_u32 {s_t0}, {s_t0}, 20000
        s_lshl_b32 {s_t0}, {s_t0}, {PRS}
        s_mov_b32 {s_cnt}, 200000
        {name}_probe:
        s_memrealtime {s_pt[0:2]}
        s_waitcnt lgkmcnt(0)
        s_sub_u32 {s_t1}, {s_pt[0]}, {s_t2}
        s_cmp_ge_u32 {s_t1}, {s_t0}
        s_cbranch_scc1 {name}_probe_done
        s_sub_u32 {s_cnt}, {s_cnt}, 1
        s_cmp_lg_u32 {s_cnt}, 0
        s_cbranch_scc1 {name}_probe
        {name}_probe_done:
        """)
    if dbg > 0:
        p.e(f"""
        v_readlane_b32 {s_t0}, {vtr}, 44
        v_readlane_b32 {s_t1}, {vtr}, 45
        v_and_b32 {vu1}, 1, {vl}
        v_cmp_eq_u32 vcc, 0, {vu1}
        v_mov_b32 {vu1}, {s_t0}
        v_mov_b32 {vu2}, {s_t1}
        v_cndmask_b32 {vu1}, {vu2}, {vu1}, vcc
        v_sub_u32 {vu1}, {vtr}, {vu1}
        v_subrev_u32 {vu2}, 46, {vl}
        v_lshlrev_b32 {vu2}, 2, {vu2}
        v_cmp_gt_u32 vcc, 64, {vu2}
        v_cndmask_b32 {vu2}, 2.0, {vu2}, vcc
        s_mov_b32 {skv[0]}, {pdbg[0]}
        s_mov_b32 {skv[1]}, {pdbg[1]}
        s_movk_i32 {skv[2]}, 64
        s_lshl_b32 {s_t0}, s2, 2
        s_add_u32 {s_t0}, {s_t0}, {s_w}
        s_cmp_eq_u32 {s_t0}, {dbg - 1}
        s_cselect_b32 {s_t0}, 0, 2.0
        buffer_store_dword {vu1}, {vu2}, {skv}, {s_t0} offen
        """)
    p.e('s_endpgm')

    p.seg('slow0')
    p.e(f'{name}_slow:')
    p.e(f"""
    s_waitcnt vmcnt(0) lgkmcnt(0)
    v_mov_b32 {vu0}, 0xff800000
    v_mov_b32 {vu1}, 0xff800000
    s_mov_b32 {s_okv}, 0
    s_mov_b32 {skv[2]}, 262144
    """)
    p.seg('slow1')
    p.e(f'{name}_slow1:')
    for f in range(2): p.e(f'buffer_load_dwordx4 {K[0][4*f:4*f+4]}, {vl16}, {skv}, {s_okv} offen offset:{f * 1024}')
    for q in range(2):
        for f in range(2): p.e(qk(Sx[q], 0, q, f, '0'))
    rowmax(vu0, Sx[0], False); rowmax(vu1, Sx[1], False)
    p.e(f's_add_u32 {s_okv}, {s_okv}, 4096\ns_cmp_lt_u32 {s_okv}, 262144\ns_cbranch_scc1 {name}_slow1')
    p.seg('slow2')
    setc(0, vu0); setc(1, vu1)
    for q in range(2):
        for i in range(16): p.e(f'v_accvgpr_write_b32 {O[q][i]}, 0')
        for i in range(4): p.e(f'v_accvgpr_write_b32 {L[q][i]}, 0')
    p.e(f's_mov_b32 {s_okv}, 0')
    p.seg('slow3')
    p.e(f'{name}_slow3:')
    for f in range(2): p.e(f'buffer_load_dwordx4 {K[0][4*f:4*f+4]}, {vl16}, {skv}, {s_okv} offen offset:{f * 1024}')
    for f in range(2): p.e(f'buffer_load_dwordx4 {V[0][4*f:4*f+4]}, {vl16}, {skv}, {s_okv} offen offset:{2048 + f * 1024}')
    for q in range(2):
        for f in range(2): p.e(qk(Sx[q], 0, q, f, C[q]))
    for q in range(2):
        for i in range(16): p.e(f'v_exp_f32 {Sx[q][i]}, {Sx[q][i]}')
        for i in range(8): p.e(cvt(q, i))
        p.add([pv(q, 0), pv(q, 1), rsum(q)])
    p.e(f's_add_u32 {s_okv}, {s_okv}, 4096\ns_cmp_lt_u32 {s_okv}, 262144\ns_cbranch_scc1 {name}_slow3')
    p.seg('slow4')
    lsum()
    p.e(f's_branch {name}_epi')
    for lab, cond, reload_ in spins:
        p.seg(lab)
        p.e(f'{lab}_spin:\ns_mov_b32 {s_cnt if lab.endswith("cnt") else s_spin}, {SPIN}\n{lab}_again:\ns_sleep 2')
        p.add(reload_)
        p.e('s_waitcnt vmcnt(0)\ns_nop 1')
        p.add(cond)
        r_ = s_cnt if lab.endswith('cnt') else s_spin
        p.e(f's_nop 4\ns_cbranch_vccz {lab}_ok\ns_sub_u32 {r_}, {r_}, 1\ns_cmp_lg_u32 {r_}, 0\ns_cbranch_scc1 {lab}_again\ns_branch {lab}_ok')
    p.seg('end')
    p.e(f'{name}_end:\ns_endpgm')
    mid = ['join', 'partA', 'loop', 'loop', 'tail']
    slow = ['slow0', 'slow1', 'slow1', 'slow2', 'slow3', 'slow3', 'slow4']
    traces = []
    for wc in range(2):
        for x in ([],):
            traces.append(['pro'] + x + [f'c{wc}a', f'c{wc}l1', f'c{wc}l2', f'c{wc}l1', f'c{wc}l2', f'c{wc}l1', f'c{wc}last'] + mid + ['epi'])
    traces.append(mid + slow + ['epi'])
    for lab, _, _ in spins: traces.append([lab])
    p.auto_waits(traces)
    nn = p.hazards(traces)
    return kernel_header(name) + p.text(), kernel_desc(name), dict(nops=nn, v=va.p, a=aa.p, s=max(sa.p, s_hi))

if __name__ == '__main__':
    import sys
    NAME = 'gated_mix__softmax_full_mha__glu_gated_bilinear__prompt'
    REF = f'cdna_kernels/{NAME}.s.ref'
    dst = sys.argv[1]
    kw = {a.split('=')[0]: float(a.split('=')[1]) if '.' in a else int(a.split('=')[1]) for a in sys.argv[2:] if '=' in a}
    t, d, info = gen_fused(NAME + '_kernel', prof='prof' in sys.argv, force_slow='slow' in sys.argv, **kw)
    print(info, file=sys.stderr)
    head = [l for l in open(REF).read().split('\n') if l.startswith(';') and '@launch' not in l]
    doc = '''; One persistent launch, 256 workgroups x 4 waves (one wave per SIMD, 512 registers, 160 KiB LDS).
;   phase 1  x[256 rows] @ [wq_h wk_h wv_h | w_gate 112 cols | w_up 112 cols], 16x16x32 MFMA, LDS-DMA double buffer.
;   phase 2  softmax(QK^T)V for the block's 256 queries (32x32x16 MFMA), interleaved with the down projection of a
'''
    out = '\n'.join(head) + f'\n; @launch grid=(256,1,1) block=(256,1,1) lds={F_LDS}\n' + doc + '.amdgcn_target "amdgcn-amd-amdhsa--gfx950"\n' + t + d
    open(dst, 'w').write(out)
```

```python
from gen_common import *

X0, X1, W0, W1, QS = 0, 32768, 65536, 106496, 147456
F_LDS = 163840
WS_FL = 33 << 20
WS_T = 36 << 20
DBG_CNT = 64
SPIN = 40000

def gen_fused(name, prof=False, pfd=3, cq=8, cg=6.5, cx=4, NB=8, DA=4, DW=3, RP=6, PM=36, HP=1.25, force_slow=False, ptrace=0, dbg=0, exp_=0, VSP=2, PFP=18, OC=8, KP=1, H0=2, ROT=0, CPF=1, OUTM=1, CP0=1, CP2=0, FG=3, TLB=0, EV=1, DL=6, PT=0, GP=0, OWN=1, NOPF=0, XP2=0, PRS=2, TT=1, TP1=0, TP2=0, AL=16, ALS=2, ALM=18, FT=1, PA=48, AS=1, KS=2, PK=0, PKR=1, AW=1, KF=100, KC=5, FOFF=0, S1P=10, MWT=0, LM1=0, LM2=0, PO=3, LP=0, PRE=-1, PF0=0, PD0=3, xpf=1, F0=0, FS=1.0, GD=2, SMC=16, VMC=8, VPEN=16, MW=1, PRA=0, PRB=0, PG=3, E0=11, st_mod=' sc1'):
    pfm = 1
    kv_mod = '' if exp_ & 64 else st_mod
    lm1 = ('', ' sc1', ' nt', ' sc0')[LM1]; lm2 = ('', ' sc1', ' nt', ' sc0')[LM2]
    p = Prog()
    sa = Alloc('s', 4, 102); va = Alloc('v', 1, 256); aa = Alloc('a', 0, 256)
    ptr = sa(16, 4)
    px, pqkv, pwo, pwg, pwu, pwd, pgw = ptr[0:2], ptr[2:4], ptr[4:6], ptr[8:10], ptr[10:12], ptr[12:14], ptr[14:16]
    pod = sa(4, 4); pout, pdbg = pod[0:2], pod[2:4]
    pws = sa(2); smask = sa(2)
    sws = sa(4); sfl = sa(4); sdbg = sa(4)
    s_mb, s_h, s_w, s_wr, s_wc, s_t0, s_t1, s_t2, s_cnt, s_tr, s_hb = [sa() for _ in range(11)]
    s_pt = sa(4, 2)
    s_base = sa.p
    sx = sa(4); sq = sa(4); sg = sa(4); spf = sa(4); sp2 = sa(4); sp3 = sa(4)
    s_c0, s_c1, s_ox, s_oq, s_og, s_pfo, s_pfs, s_gs, s_grp, s_ano = [sa() for _ in range(10)]
    s_mx, s_mw, s_msk = sa(), sa(), sa()
    sp4 = sa(4)
    s_hi = sa.p

    vl, vpd, vflag, vtr, vflk = [va() for _ in range(5)]
    v_base = va.p
    pf = Prof2(p, prof, s_pt, vtr, s_tr)
    vdx = [va() for _ in range(8)]; vdq = [va() for _ in range(2)]; vdq.append(vdq[0]); vdg = [va() for _ in range(7)]
    vxr = [va() for _ in range(2)]; vqr = [va() for _ in range(2)]; vgr = [va() for _ in range(2)]
    vt0, vt1, vt2, vt3, vpf = [va() for _ in range(5)]
    vcnt = va(); vwo = va()
    vtmp = va(28, 4)
    assert vtmp.a == 36
    xlo = [[aa(8, 4) for _ in range(4)] for _ in range(2)]; xhi = [aa(8, 4) for _ in range(4)]
    def xf(st, m, ks): return (xlo[st][m] if m < 4 else xhi[m - 4])[4 * ks:4 * ks + 4]
    NSLOT = 4; DIST = 3
    wf = [aa(8, 4) for _ in range(NSLOT)]
    acc = [[None] * 8 for _ in range(10)]
    for n in [0, 1, 6, 7, 8, 9, 2, 3, 4, 5]:
        for m in range(8):
            acc[n][m] = va(4, 4) if va.p + 4 <= 256 else aa(4, 4)

    def lines(s): return [x.strip() for x in s.strip().split('\n')]
    def dma_x(st):
        L = []
        for i in range(8):
            pre = [f's_add_u32 m0, {s_mx}, {(X0, X1)[st] + (i // 4) * 4096}'] if i % 4 == 0 else []
            L.append((pre, Ins(f'buffer_load_dwordx4 {vdx[i]}, {sx}, {s_ox} offen offset:{(i % 4) * 1024}{lm1} lds', f'S{st}')))
        return L
    def dma_w(st):
        L = []
        for i in range(10):
            pre = [f's_add_u32 m0, {s_mw}, {(W0, W1)[st] + (i // 4) * 4096}'] if i % 4 == 0 else []
            v, sr, so = (vdq[i - 7], sq, s_oq) if i >= 7 else (vdg[i], sg, s_og)
            L.append((pre, Ins(f'buffer_load_dwordx4 {v}, {sr}, {so} offen offset:{(i % 4) * 1024}{lm1} lds', f'S{st}')))
        return L
    def emit(lst):
        for pre, ins in lst:
            p.add(pre); p.add([ins])
    adv = [f's_add_u32 {s_oq}, {s_oq}, {64 * 6144}', f's_add_u32 {s_og}, {s_og}, {64 * 7168}', f's_add_u32 {s_ox}, {s_ox}, 128']

    p.seg('pro')
    p.e(f"""
    s_cmp_ge_u32 s2, 256
    s_cbranch_scc1 {name}_end
    """)
    if ptrace == 3:
        p.e(f's_memtime {s_pt[2:4]}\ns_waitcnt lgkmcnt(0)\ns_mov_b32 {s_hb}, {s_pt[2]}')
    if PRA == -1:
        p.e(f's_memrealtime {s_pt[2:4]}\ns_waitcnt lgkmcnt(0)\ns_mov_b32 {s_hb}, {s_pt[2]}')
    p.e(f"""
    s_load_dwordx16 {ptr}, s[0:1], 0
    s_load_dwordx4 {pod}, s[0:1], 64
    s_load_dwordx2 {pws}, s[0:1], 80
    v_lshrrev_b32 {vt0}, 6, v0
    v_and_b32 {vl}, 63, v0
    s_lshr_b32 {s_t1}, s2, 3
    v_readfirstlane_b32 {s_w}, {vt0}
    s_and_b32 {s_mb}, {s_t1}, 7
    s_and_b32 {s_t0}, s2, 7
    s_lshr_b32 {s_t1}, {s_t1}, 3
    s_lshl_b32 {s_h}, {s_t0}, 2
    s_add_u32 {s_h}, {s_h}, {s_t1}
    s_lshr_b32 {s_wr}, {s_w}, 1
    s_and_b32 {s_wc}, {s_w}, 1
    """)
    if CP0:
        p.e(f"""
        s_getpc_b64 {sp3[0:2]}
        {name}_pcs:
        s_and_b32 {sp3[1]}, {sp3[1]}, 0xffff
        s_mov_b32 {sp3[2]}, {name}_join-{name}_pcs
        s_mov_b32 {sp3[3]}, 0x00020000
        s_lshr_b32 {s_t0}, s2, 3
        s_lshl_b32 {s_t0}, {s_t0}, 2
        s_add_u32 {s_t0}, {s_t0}, {s_w}
        s_lshl_b32 {s_t0}, {s_t0}, 7
        v_lshl_add_u32 {vwo}, {vl}, 14, {s_t0}
        """)
        p.add([Ins(f'buffer_load_dword {vpd}, {vwo}, {sp3}, 0 offen', 'pf')])
    vxp, vgp = vtmp[0], vtmp[1]
    if XP2: p.e(f'v_mov_b32 {vtmp[3]}, 2.0')
    p.e(f"""
    v_and_b32 {vt0}, 7, {vl}
    v_lshrrev_b32 {vt1}, 3, {vl}
    v_mul_u32_u24 {vt2}, 86, {vt1}
    v_lshrrev_b32 {vt2}, 8, {vt2}
    v_mad_i32_i24 {vt1}, {vt2}, -3, {vt1}
    v_lshl_add_u32 {vt0}, {vt2}, 6, {vt0}
    s_lshl_b32 {s_t0}, {s_mb}, 3
    v_add_u32 {vt0}, {s_t0}, {vt0}
    s_cmp_eq_u32 {s_w}, 3
    s_movk_i32 {s_c0}, 7168
    s_cmov_b32 {s_c0}, 6144
    s_movk_i32 {s_c1}, 108
    s_cmov_b32 {s_c1}, 2048
    v_mul_u32_u24 {vt0}, {s_c0}, {vt0}
    v_mad_u32_u24 {vxp}, {vt1}, {s_c1}, {vt0}
    v_cmp_gt_u32 vcc, 48, {vl}
    s_lshl_b32 {s_t0}, {s_t1}, 17
    v_lshl_add_u32 {vt0}, {vl}, 11, {s_t0}
    v_cndmask_b32 {vxp}, 2.0, {vxp}, vcc
    s_cmp_eq_u32 {s_w}, 0
    s_cselect_b64 vcc, -1, 0
    v_cndmask_b32 {vxp}, {vxp}, {vt0 if not XP2 else vtmp[3]}, vcc
    """)
    if XP2:
        p.e(f"""
        s_lshl_b32 {s_c0}, {s_w}, 15
        s_add_u32 {s_t0}, {s_t0}, {s_c0}
        v_lshrrev_b32 {vt0}, 1, {vl}
        v_lshl_add_u32 {vt0}, {vt0}, 11, {s_t0}
        v_and_b32 {vt1}, 1, {vl}
        v_lshl_add_u32 {vt0}, {vt1}, 7, {vt0}
        v_cmp_gt_u32 vcc, 32, {vl}
        v_cndmask_b32 {vtmp[4]}, 2.0, {vt0}, vcc
        """)
    x_addr = lines(f"""
    v_lshrrev_b32 {vt0}, 3, {vl}
    v_and_b32 {vt1}, 7, {vl}
    v_lshrrev_b32 {vt2}, 4, {vl}
    v_xor_b32 {vt1}, {vt1}, {vt2}
    v_lshlrev_b32 {vt3}, 11, {vt0}
    s_lshl_b32 {s_c0}, {s_w}, 17
    v_add_u32 {vt3}, {s_c0}, {vt3}
    v_lshl_add_u32 {vdx[0]}, {vt1}, 4, {vt3}
    v_xor_b32 {vt1}, 4, {vt1}
    v_lshl_add_u32 {vdx[1]}, {vt1}, 4, {vt3}
    v_add_u32 {vdx[1]}, {16384 - 1024}, {vdx[1]}
    s_lshl_b32 {s_mx}, {s_w}, 13
    s_mov_b32 {s_ox}, 0""") + [f'v_add_u32 {vdx[i]}, {(i - i % 2) * 16384 - (i % 4 - i % 2) * 1024}, {vdx[i % 2]}' for i in range(2, 8)]
    q_addr = lines(f"""
    v_lshrrev_b32 {vt0}, 2, {vl}
    v_and_b32 {vt2}, 2, {vt2}
    v_and_b32 {vt1}, 3, {vl}
    v_xor_b32 {vt1}, {vt1}, {vt2}
    s_lshl_b32 {s_c0}, {s_w}, 4
    v_add_u32 {vt0}, {s_c0}, {vt0}
    v_mul_u32_u24 {vt0}, 6144, {vt0}
    v_lshl_add_u32 {vdq[1]}, {vt1}, 4, {vt0}
    v_add_u32 {vdq[0]}, 1024, {vdq[1]}
    s_mul_i32 {s_mw}, {s_w}, 10240
    s_mov_b32 {s_oq}, 0
    s_mov_b32 {s_og}, 0""")
    if PRE >= 0: p.add(x_addr + q_addr)
    def gu_offsets():
        L = [lines(f"""
        s_mul_i32 {s_t0}, {s_wc}, {32 * 7168}
        s_movk_i32 {s_c0}, 6944
        s_movk_i32 {s_c1}, 28672
        v_mul_u32_u24 {vt3}, 4682, {vl}
        v_lshl_add_u32 {vtmp[2]}, {vl}, 4, {s_t0}""")]
        for j in range(7):
            tj = vt3; q_ = []
            if j:
                q_.append(f'v_add_u32 {vt0}, {64 * j * 4682}, {vt3}'); tj = vt0
            q_ += lines(f"""
            v_bfe_u32 {vt1}, {tj}, 18, 1
            v_bfe_u32 {vt2}, {tj}, 19, 1
            v_lshrrev_b32 {vt0}, 16, {tj}
            v_sub_u32 {vt1}, {vt1}, {vt2}
            v_mad_u32_u24 {vdg[j]}, {vt0}, {s_c0}, {vtmp[2]}
            v_mad_i32_i24 {vdg[j]}, {vt1}, {s_c1}, {vdg[j]}""")
            if j == 3: q_.append(f'v_add_u32 {vtmp[2]}, 4096, {vtmp[2]}')
            L.append(q_)
        return L
    gu = gu_offsets()
    if PRE >= 1:
        for q_ in gu: p.add(q_)
    PD = pfd
    gpf_addr = lines(f"""
        s_cmp_eq_u32 {s_w}, 0
        s_cselect_b32 {s_grp}, 12, 14
        s_lshl_b32 {s_pfs}, {s_grp}, 15
        s_cmp_eq_u32 {s_w}, 3
        s_cselect_b32 {s_grp}, 8, {s_grp}
        s_cselect_b32 {s_pfs}, 0x80, {s_pfs}
        s_cselect_b32 {s_ano}, 11, 7
        s_mul_i32 {s_t1}, {s_grp}, s2
        v_and_b32 {vt1}, 15, {vl}
        v_add_u32 {vt0}, {s_t1}, {vt1}
        v_lshlrev_b32 {vpf}, {s_ano}, {vt0}
        v_lshrrev_b32 {vt0}, 4, {vl}
        v_mul_lo_u32 {vt0}, {vt0}, {s_pfs}
        v_add_u32 {vgp}, {vt0}, {vpf}
        v_cmp_gt_u32 vcc, {s_grp}, {vt1}
        v_cmp_gt_u32 {smask}, {16 * (PD0 - 1)}, {vl}
        s_and_b64 {smask}, {smask}, vcc
        v_cndmask_b32 {vgp}, 2.0, {vgp}, {smask}
        v_cmp_gt_u32 vcc, {s_grp}, {vl}
        s_mul_i32 {s_pfo}, {s_pfs}, {PD0}
        v_cndmask_b32 {vpf}, 2.0, {vpf}, vcc""")
    gpf_issue = lines(f"""
        s_cmp_eq_u32 {s_w}, 0
        s_cselect_b64 {spf[0:2]}, {pqkv}, {pwg}
        s_cmp_eq_u32 {s_w}, 2
        s_cselect_b64 {spf[0:2]}, {pwu}, {spf[0:2]}
        s_cmp_eq_u32 {s_w}, 3
        s_cselect_b64 {spf[0:2]}, {px}, {spf[0:2]}
        s_lshl_b32 {spf[2]}, {s_grp}, 19""") + [Ins(f'buffer_load_dword {vpd}, {vgp}, {spf}, {s_pfs} offen', 'pf')]
    if OWN:
        gpf_addr = lines(f"""
        s_cmp_eq_u32 {s_w}, 3
        s_mov_b32 {s_pfs}, {64 * 7168}
        s_cmov_b32 {s_pfs}, {64 * 6144}
        v_cmp_gt_u32 vcc, 24, {vl}
        s_lshl_b32 {s_t1}, s2, 14
        v_and_b32 {vt1}, 7, {vl}
        v_cndmask_b32 {vpf}, 2.0, {vxp}, vcc
        v_lshl_add_u32 {vt0}, {vt1}, 11, {s_t1}
        v_lshrrev_b32 {vt1}, 3, {vl}
        v_lshl_add_u32 {vgp}, {vt1}, 7, {vt0}
        v_cmp_gt_u32 vcc, 8, {vl}
        v_cmp_gt_u32 {smask}, {8 * (PD0 - 1)}, {vl}
        v_cndmask_b32 {vt0}, 2.0, {vt0}, vcc
        v_cndmask_b32 {vgp}, 2.0, {vgp}, {smask}
        s_cmp_eq_u32 {s_w}, 0
        s_cselect_b64 vcc, -1, 0
        s_cselect_b32 {s_pfs}, 0x80, {s_pfs}
        s_cselect_b64 {spf[0:2]}, {px}, {spf[0:2]}
        s_cselect_b32 {spf[2]}, {S * D * 2}, {spf[2]}
        s_cselect_b32 {s_t0}, 1, 2
        v_cndmask_b32 {vpf}, {vpf}, {vt0}, vcc
        v_cndmask_b32 {vgp}, {vpf}, {vgp}, vcc
        s_mul_i32 {s_t0}, {s_t0}, {s_pfs}
        s_mul_i32 {s_pfo}, {s_pfs}, {PD0}""")
        if OWN == 2:
            gpf_addr = lines(f"""
            s_cmp_eq_u32 {s_w}, 3
            s_mov_b32 {s_pfs}, {64 * 7168}
            s_cmov_b32 {s_pfs}, {64 * 6144}
            s_cmp_eq_u32 {s_w}, 0
            s_cselect_b32 {s_t1}, 64, 24
            s_cselect_b32 {s_pfs}, 0x80, {s_pfs}
            s_cselect_b32 {s_t0}, 1, 2
            v_cmp_gt_u32 vcc, {s_t1}, {vl}
            s_mul_i32 {s_t0}, {s_t0}, {s_pfs}
            s_add_u32 {s_pfo}, {s_t0}, {s_pfs}
            v_cndmask_b32 {vpf}, 2.0, {vxp}, vcc
            v_mov_b32 {vgp}, {vpf}""")
        assert PD0 == 3 and PRE < 2 and not PF0 and not XP2
        gpf_issue = [Ins(f'buffer_load_dword {vpd}, {vgp}, {spf}, {s_t0} offen', 'pf')]
    def pfetch():
        if NOPF & 1: return []
        return [Ins(f'buffer_load_dword {vpd}, {vpf}, {spf}, {s_pfo} offen', 'pf'), f's_add_u32 {s_pfo}, {s_pfo}, {s_pfs}']
    def pfetch_d():
        if NOPF & 2: return []
        return [Ins(f'buffer_load_dword {vpd}, {vt3}, {sp2}, {s_c1} offen', 'pf'), f's_add_u32 {s_c1}, {s_c1}, {1024 * DL * 128}']
    rd_addr = lines(f"""
    v_and_b32 {vt0}, 15, {vl}
    v_lshrrev_b32 {vt1}, 4, {vl}
    v_lshrrev_b32 {vt2}, 1, {vt0}
    v_xor_b32 {vt2}, {vt1}, {vt2}
    s_lshl_b32 {s_t0}, {s_wr}, 14
    v_lshl_add_u32 {vt3}, {vt0}, 7, {s_t0}
    v_lshl_add_u32 {vxr[0]}, {vt2}, 4, {vt3}
    v_xor_b32 {vxr[1]}, 64, {vxr[0]}
    v_and_b32 {vt3}, 3, {vt0}
    v_lshlrev_b32 {vt3}, 3, {vt3}
    v_lshrrev_b32 {vt0}, 2, {vt0}
    v_lshrrev_b32 {vt2}, 1, {vt1}
    v_and_b32 {vt1}, 1, {vt1}
    v_mul_u32_u24 {vqr[0]}, 10240, {vt2}
    v_mul_u32_u24 {vqr[1]}, {512 + 32}, {vt1}
    v_add3_u32 {vqr[0]}, {vqr[0]}, {vqr[1]}, {vt3}
    v_lshl_add_u32 {vqr[0]}, {vt0}, 6, {vqr[0]}
    s_lshl_b32 {s_t0}, {s_wc}, 10
    s_sub_u32 {s_t0}, {W0 + 8192}, {s_t0}
    v_add_u32 {vqr[0]}, {s_t0}, {vqr[0]}
    v_xor_b32 {vqr[1]}, 32, {vqr[0]}
    v_lshl_add_u32 {vt0}, {vt1}, 2, {vt0}
    v_lshl_add_u32 {vt0}, {vt2}, 4, {vt0}
    v_mul_u32_u24 {vt0}, 224, {vt0}
    s_mul_i32 {s_t0}, {s_wc}, 96
    s_add_u32 {s_t0}, {s_t0}, {W0}
    v_add3_u32 {vgr[0]}, {vt0}, {vt3}, {s_t0}
    v_add_u32 {vgr[1]}, 20480, {vgr[0]}""")
    if PRE >= 2 or PF0: p.add(gpf_addr)
    if PRE >= 3: p.add(rd_addr)
    p.e(f"""
    s_lshl_b32 {s_t0}, {s_mb}, 19
    s_lshl_b32 {s_t1}, {s_h}, 6
    s_mul_i32 {s_t2}, {s_h}, 224
    s_mov_b32 {sx[3]}, 0x00020000
    s_mov_b32 {sq[3]}, 0x00020000
    s_mov_b32 {sg[3]}, 0x00020000
    s_mov_b32 {spf[3]}, 0x00020000
    s_sub_u32 {sx[2]}, {S * D * 2}, {s_t0}
    s_sub_u32 {sq[2]}, {D * 3072 * 2}, {s_t1}
    s_sub_u32 {sg[2]}, {D * F * 2}, {s_t2}
    s_waitcnt lgkmcnt(0)
    """)
    pf.stamp(0)
    pf.trace_init(vtr, s_tr)
    if PRA == -1: p.e(f'v_writelane_b32 {vtr}, {s_hb}, 42')
    if ptrace == 3:
        p.e(f'v_writelane_b32 {vtr}, {s_hb}, 0\ns_mov_b32 {s_tr}, 1')
        pf.trace()
    p.e(f"""
    s_add_u32 {sx[0]}, {px[0]}, {s_t0}
    s_addc_u32 {sx[1]}, {px[1]}, 0
    s_add_u32 {sq[0]}, {pqkv[0]}, {s_t1}
    s_addc_u32 {sq[1]}, {pqkv[1]}, 0
    s_cmp_ge_u32 {s_w}, 2
    s_cselect_b64 {sg[0:2]}, {pwu}, {pwg}
    s_add_u32 {sg[0]}, {sg[0]}, {s_t2}
    s_addc_u32 {sg[1]}, {sg[1]}, 0
    s_cmp_eq_u32 {s_w}, 3
    s_cselect_b64 {spf[0:2]}, {sq[0:2]}, {sg[0:2]}
    s_cselect_b32 {spf[2]}, {sq[2]}, {sg[2]}
    s_cmp_eq_u32 {s_w}, 0
    s_cselect_b64 {spf[0:2]}, {sx[0:2]}, {spf[0:2]}
    s_cselect_b32 {spf[2]}, {sx[2]}, {spf[2]}
    """)
    if XP2: p.add([Ins(f'buffer_load_dword {vpd}, {vtmp[4]}, {sx}, 0 offen', 'pf')])
    if xpf: p.add([Ins(f'buffer_load_dword {vpd}, {vxp}, {spf}, 0 offen', 'pf')])
    if PF0: p.add(gpf_issue)
    if ptrace > 0: pf.trace()
    if PRE < 0: p.add(x_addr)
    emit(dma_x(0))
    if ptrace > 0: pf.trace()
    if PRE < 0: p.add(q_addr)
    w0 = dma_w(0)
    p.e(f's_add_u32 m0, {s_mw}, {W0 + 4096}')
    emit(w0[7:])
    if PRE < 1: p.add(gu[0])
    for j in range(7):
        if PRE < 1: p.add(gu[j + 1])
        emit([w0[j]])
    p.add(adv)
    if ptrace > 0: pf.trace()
    emit((dma_w(1) + dma_x(1))[:S1P])
    if PRE < 2 and not PF0 and not NOPF & 4: p.add(gpf_addr)
    if not PF0 and not NOPF & 4: p.add(gpf_issue)
    if PRE < 3: p.add(rd_addr)
    gx = [vtmp[4 * i:4 * i + 4] for i in range(4)]; gw = [vtmp[16:20], vtmp[20:24]]; t = vtmp[24:28]; z = [vt0, vt1]
    flag_setup = [[f's_add_u32 {sfl[0]}, {pws[0]}, {WS_FL}', f's_addc_u32 {sfl[1]}, {pws[1]}, 0']] + lines(f"""
    s_movk_i32 {sfl[2]}, 8192
    s_mov_b32 {sfl[3]}, 0x00020000
    s_mov_b32 {sws[0]}, {pws[0]}
    s_mov_b32 {sws[1]}, {pws[1]}
    s_mov_b32 {sws[2]}, {WS_SIZE}
    s_mov_b32 {sws[3]}, 0x00020000
    s_mov_b32 {sp2[3]}, 0x00020000
    s_lshl_b32 {s_t0}, {s_mb}, 5
    s_add_u32 {s_t0}, {s_t0}, {s_h}
    s_lshl_b32 {s_gs}, {s_t0}, 7
    s_lshl_b32 {s_t0}, {s_t0}, 2
    s_add_u32 {s_t0}, {s_t0}, {s_w}
    s_lshl_b32 {s_t0}, {s_t0}, 2
    v_mov_b32 {vt0}, {s_t0}
    v_cmp_eq_u32 vcc, 0, {vl}
    v_mov_b32 {vt3}, 0
    v_cndmask_b32 {vflag}, 2.0, {vt0}, vcc
    s_lshl_b32 {s_t0}, {s_h}, 3
    s_add_u32 {s_t0}, {s_t0}, {s_mb}
    s_lshl_b32 {s_t0}, {s_t0}, 2
    s_add_u32 {s_t0}, {s_t0}, {s_w}
    s_lshl_b32 {s_t0}, {s_t0}, 2
    s_add_u32 {s_t0}, {s_t0}, 4096
    v_mov_b32 {vt0}, {s_t0}
    buffer_store_dword {vt3}, {vflag}, {sfl}, 0 offen sc1
    v_cndmask_b32 {vflk}, 2.0, {vt0}, vcc
    s_lshl_b32 {s_t1}, {s_w}, 3
    buffer_store_dword {vt3}, {vflk}, {sfl}, 0 offen sc1
    s_add_u32 {s_gs}, {s_gs}, {s_t1}
    s_add_u32 {s_gs}, {s_gs}, {WS_G}
    s_lshl_b32 {s_t0}, {s_h}, 3
    s_lshl_b32 {s_t1}, {s_w}, 1
    s_add_u32 {s_t0}, {s_t0}, {s_t1}
    s_lshl_b32 {s_t2}, {s_t0}, 11
    s_mov_b32 {s_msk}, 0xffff0000
    v_lshlrev_b32 {z[0]}, 5, {vl}""")
    if ptrace > 0: pf.trace()
    p.e('WAITTAG S0')
    if ptrace > 0: pf.trace()
    p.e('s_barrier')
    if ptrace > 0: pf.trace()
    pf.stamp(1)

    def gate_ops():
        L = []
        for r in range(2):
            for j in range(8):
                xr = gx[2 * r + j // 4][j % 4]; wr_ = gw[j // 4][j % 4]
                L += [f'v_lshlrev_b32 {t[0]}, 16, {xr}', f'v_lshlrev_b32 {t[1]}, 16, {wr_}',
                      f'v_and_b32 {t[2]}, {s_msk}, {xr}', f'v_and_b32 {t[3]}, {s_msk}, {wr_}',
                      f'v_mul_f32 {t[0]}, {t[0]}, {t[1]}', f'v_mul_f32 {t[2]}, {t[2]}, {t[3]}',
                      f'v_cvt_pk_bf16_f32 {t[0]}, {t[0]}, {t[2]}', f'v_lshlrev_b32 {t[1]}, 16, {t[0]}',
                      f'v_and_b32 {t[2]}, {s_msk}, {t[0]}']
                if j == 0: L.append(f'v_add_f32 {z[r]}, {t[1]}, {t[2]}')
                else: L += [f'v_add_f32 {t[1]}, {t[1]}, {t[2]}', f'v_add_f32 {z[r]}, {z[r]}, {t[1]}']
        for mode in ('quad_perm:[1,0,3,2]', 'quad_perm:[2,3,0,1]', 'row_half_mirror', 'row_mirror'):
            for r in range(2): L.append(f'v_add_f32_dpp {z[r]}, {z[r]}, {z[r]} {mode} row_mask:0xf bank_mask:0xf')
        for op in ('v_permlane16_swap_b32', 'v_permlane32_swap_b32'):
            for r in range(2): L.append(f'v_mov_b32 {t[r]}, {z[r]}')
            for r in range(2): L.append(f'{op} {t[r]}, {z[r]}')
            for r in range(2): L.append(f'v_add_f32 {z[r]}, {z[r]}, {t[r]}')
        L += f"""v_and_b32 {t[1]}, 1, {vl}
        v_cmp_eq_u32 vcc, 1, {t[1]}
        v_and_b32 {t[3]}, 2, {vl}
        v_cndmask_b32 {t[0]}, {z[0]}, {z[1]}, vcc
        v_cvt_pk_bf16_f32 {t[0]}, {t[0]}, {t[0]}
        v_and_b32 {t[0]}, {s_msk}, {t[0]}
        v_mul_f32 {t[0]}, {hex(f32bits(-math.log2(math.e)))}, {t[0]}
        v_exp_f32 {t[0]}, {t[0]}
        v_cmp_eq_u32 vcc, 2, {t[3]}
        v_add_f32 {t[0]}, 1.0, {t[0]}
        v_rcp_f32 {t[0]}, {t[0]}
        v_lshlrev_b32 {t[3]}, 4, {t[3]}
        v_cvt_pk_bf16_f32 {t[0]}, {t[0]}, {t[0]}
        v_and_b32 {t[0]}, {s_msk}, {t[0]}
        v_sub_f32 {t[2]}, 1.0, {t[0]}
        v_cvt_pk_bf16_f32 {t[2]}, {t[2]}, {t[2]}
        v_and_b32 {t[2]}, {s_msk}, {t[2]}
        v_cndmask_b32 {t[0]}, {t[0]}, {t[2]}, vcc
        v_lshl_add_u32 {t[3]}, {t[1]}, 2, {t[3]}
        v_cmp_gt_u32 vcc, 4, {vl}
        v_cndmask_b32 {t[3]}, 2.0, {t[3]}, vcc
        buffer_store_dword {t[0]}, {t[3]}, {sws}, {s_gs} offen{st_mod}""".split('\n')
        return [x.strip() for x in L]

    def wread(n, st, wc):
        slot = wf[(10 * st + n) % NSLOT]
        nq = 4 if wc == 0 else 2
        L = []
        for ks in range(2):
            if n < nq: base = vqr[n % 2]; off = ks * 20480 + (1024 if (wc == 0 and n < 2) else 0); so = 256
            else: base = vgr[(n - nq) % 2]; off = ks * 10240 + ((n - nq) // 2) * 32; so = 1792
            off += st * (W1 - W0)
            L += [f'ds_read_b64_tr_b16 {slot[4 * ks + 2 * s:4 * ks + 2 * s + 2]}, {base} offset:{off + s * so}' for s in range(2)]
        return L
    def xread(m, ks, st):
        return f'ds_read_b128 {xf(st, m, ks)}, {vxr[ks]} offset:{st * (X1 - X0) + m * 2048}'

    for m in range(2):
        for ks in range(2): p.e(xread(m, ks, 0))
    p.e(f's_cmp_eq_u32 {s_wc}, 1')
    p.e(f's_cbranch_scc1 {name}_c1')

    def stage(st, wc, first=False, last=False, extra=None, fill=None, estep=2, postbar=None, nodma1=False, early=None, dens=2):
        slots = {}
        for j in range(10):
            jj = j + DIST
            if jj < 10: rd = wread(jj, st, wc)
            elif last: continue
            else: rd = wread(jj - 10, st ^ 1, wc)
            for i, x in enumerate(rd): place(slots, 16 * j + ((0, 2, 4, 6) if j < 9 else (0, 11, 13, 15))[i], x)
        bar = 16 * (10 - DIST)
        if not last:
            for i in range(8): place(slots, bar + 8 + (0, 2, 4, 6, 16, 18, 20, 22)[i], xread(i // 2, i % 2, st ^ 1))
            for i in range(8): place(slots, 144 + (2, 3, 4, 5, 7, 8, 9, 10)[i], xread(7 - i // 2, i % 2, st ^ 1))
        pos = []; c = 1.0
        for k in range(18):
            pos.append(int(c)); c += cg if k < 7 else (cq if k < 10 else cx)
        endc = int(c) - (160 - bar)
        pos0 = pos
        if first:
            sh = pos[S1P] - 1
            pos = [(int(F0 + (x - sh) * FS) + 160 - bar) if k >= S1P else -1 for k, x in enumerate(pos)]; endc = int(F0 + (endc + 160 - bar - sh) * FS)
        if not last:
            dl = dma_w(st ^ 1) + dma_x(st ^ 1)
            for k in range(18):
                c = pos[k] - (160 - bar)
                if c < 0: continue
                for x in dl[k][0]: place(slots, max(c - 1, 0), x)
                place(slots, c, dl[k][1])
            for i, x in enumerate(adv): place(slots, endc - 2 + i, x)
            if first: pos = pos0
            dl = dma_w(st) + dma_x(st)
            for k in range(18):
                c = bar + pos[k]
                if c >= 160 or nodma1: continue
                for x in dl[k][0]: place(slots, c - 1, x)
                place(slots, c, dl[k][1])
        if early:
            c = (pos[PFP] - (0 if first else 160 - bar) - 2) if PFP < 18 else endc + 1
            for x in early: place(slots, max(c, 0), x); c += 1
            if PFP >= 18: endc = c + 1
        c = endc + 1
        for x in (extra or []):
            if isinstance(x, list):
                for y in x: place(slots, c, y)
                c += estep; continue
            place(slots, c, x)
            c += 3 if (isinstance(x, Ins) or x.startswith('buffer')) else estep
        assert c < bar
        for i, x in enumerate(postbar or []):
            for y in (x if isinstance(x, list) else [x]):
                if y is not None: place(slots, bar + 3 + 2 * i, y)
        if FOFF:
            for c in sorted(slots):
                if c % 2 == 0 and c + 1 < 160 and len(slots.get(c + 1, [])) + len(slots[c]) <= FOFF:
                    slots[c + 1] = slots[c] + slots.get(c + 1, []); slots[c] = []
        fill = [x if isinstance(x, tuple) else (0, x) for x in (fill or [])]
        for c in range(160):
            n, r = divmod(c, 16); mi, ks = divmod(r, 2)
            m = mi if n % 2 == 0 else 7 - mi
            if c == bar and not last:
                p.e(f'WAITTAG S{st ^ 1} LGKM0')
                p.e('s_barrier')
                if ptrace > 1: pf.trace()
            if MWT and not first and c == 8: p.e('s_waitcnt lgkmcnt(4)')
            if MWT and r == 0 and 0 < n and c != bar and not (first and n < 3) and not last: p.e(f's_waitcnt lgkmcnt({8 if n <= 7 else 12})')
            w = wf[(10 * st + n) % NSLOT][4 * ks:4 * ks + 4]; x = xf(st, m, ks)
            a, b = (x, w) if (wc == 1 and n < 2) else (w, x)
            cin = '0' if (first and ks == 0) else str(acc[n][m])
            p.e(f'v_mfma_f32_16x16x32_bf16 {acc[n][m]}, {a}, {b}, {cin}')
            here = slots.get(c, [])
            p.add(here)
            if c >= 1:
                for _ in range(min(dens, 2 - len(here))):
                    if fill and fill[0][0] <= c:
                        x = fill.pop(0)[1]; p.add(x if isinstance(x, list) else [x])
        return [x[1] for x in fill]

    def toreg(tile, tmp):
        if tile.k == 'v': return tile
        for i in range(4): p.e(f'v_accvgpr_read_b32 {tmp[i]}, {tile[i]}')
        return tmp
    def pack(o, t0, t1):
        p.e(f'v_cvt_pk_bf16_f32 {o[0]}, {t0[0]}, {t0[1]}\nv_cvt_pk_bf16_f32 {o[1]}, {t0[2]}, {t0[3]}')
        p.e(f'v_cvt_pk_bf16_f32 {o[2]}, {t1[0]}, {t1[1]}\nv_cvt_pk_bf16_f32 {o[3]}, {t1[2]}, {t1[3]}')

    def pf_setup():
        L = f"""s_lshl_b32 {s_t0}, s2, 2
        s_add_u32 {s_t0}, {s_t0}, {s_w}
        s_mul_i32 {s_t1}, {s_t0}, {DL * 128}
        v_lshl_add_u32 {vt3}, {vl}, 7, {s_t1}
        v_cmp_gt_u32 vcc, {DL}, {vl}
        s_mov_b32 {sp2[0]}, {pwd[0]}
        s_mov_b32 {sp2[1]}, {pwd[1]}
        s_mov_b32 {sp2[2]}, {F * D * 2}
        v_cndmask_b32 {vt3}, 2.0, {vt3}, vcc
        s_mov_b32 {s_c1}, 0""".split('\n')
        return [x.strip() for x in L]
    def tp_setup():
        a_, b_ = vtmp[27], vtmp[26]
        return lines(f"""
        s_lshl_b32 {s_t0}, s2, 2
        s_add_u32 {s_t0}, {s_t0}, {s_w}
        s_lshr_b32 {s_t1}, {s_t0}, 4
        s_lshl_b32 {s_c1}, {s_t1}, 15
        s_lshl_b32 {s_c0}, {s_t1}, 12
        s_and_b32 {s_t0}, {s_t0}, 15
        s_lshr_b32 {s_t1}, {s_t0}, 1
        s_mul_i32 {s_t1}, {s_t1}, {224 * 4096}
        s_add_u32 {s_c0}, {s_c0}, {s_t1}
        s_and_b32 {s_t1}, {s_t0}, 1
        s_lshl_b32 {s_t1}, {s_t1}, 11
        s_add_u32 {s_c0}, {s_c0}, {s_t1}
        s_add_u32 {s_c0}, {s_c0}, {WS_T}
        s_lshl_b32 {s_t0}, {s_t0}, 7
        s_mov_b32 {sp2[0]}, {pwd[0]}
        s_mov_b32 {sp2[1]}, {pwd[1]}
        s_mov_b32 {sp2[2]}, {F * D * 2}
        v_lshrrev_b32 {a_}, 3, {vl}
        v_and_b32 {b_}, 2, {a_}
        v_lshlrev_b32 {b_}, 1, {b_}
        v_and_b32 {vt3}, 7, {vl}
        v_xor_b32 {b_}, {b_}, {vt3}
        v_lshl_add_u32 {b_}, {b_}, 4, {s_t0}
        v_lshl_add_u32 {vt3}, {a_}, 11, {b_}
        s_lshl_b32 {s_t0}, {s_w}, 12
        s_add_u32 {s_t0}, {s_t0}, {QS}
        v_lshrrev_b32 {a_}, 5, {vl}
        v_lshl_add_u32 {vtmp[24]}, {a_}, 10, {s_t0}
        v_bfe_u32 {a_}, {vl}, 2, 2
        v_lshl_add_u32 {vtmp[24]}, {a_}, 7, {vtmp[24]}
        v_bfe_u32 {a_}, {vl}, 3, 1
        v_lshl_add_u32 {vtmp[24]}, {a_}, 6, {vtmp[24]}
        v_bfe_u32 {a_}, {vl}, 4, 1
        v_lshl_add_u32 {vtmp[24]}, {a_}, 5, {vtmp[24]}
        v_and_b32 {a_}, 3, {vl}
        v_lshl_add_u32 {vtmp[24]}, {a_}, 3, {vtmp[24]}
        v_xor_b32 {vtmp[25]}, 64, {vtmp[24]}
        v_lshlrev_b32 {vtmp[26]}, 4, {vl}
        s_lshl_b32 {s_t0}, s2, 2
        s_add_u32 {s_t0}, {s_t0}, {s_w}
        s_and_b32 {s_t0}, {s_t0}, 15
        s_lshl_b32 {s_t0}, {s_t0}, 7
        v_lshl_add_u32 {a_}, {vl}, 11, {s_t0}
        v_cmp_gt_u32 vcc, 16, {vl}
        v_cndmask_b32 {a_}, 2.0, {a_}, vcc""") + [tp_touch()]
    def tp_touch():
        return Ins(f'buffer_load_dword {vpd}, {vtmp[27]}, {sp2}, {s_c1} offen', 'pf')
    def tp_load():
        return [f's_lshr_b32 {s_t0}, {s_mx}, 1', f's_add_u32 m0, {s_t0}, {QS}', f's_add_u32 {s_t1}, {s_c1}, {8 * 2048 - 1024}',
                Ins(f'buffer_load_dwordx4 {vt3}, {sp2}, {s_c1} offen lds', 'TP'), Ins(f'buffer_load_dwordx4 {vt3}, {sp2}, {s_t1} offen offset:1024 lds', 'TP')]
    def tp_store():
        L = ['WAITTAG TP'] + [f'ds_read_b64_tr_b16 {vtmp[4 * nb + 2 * s_:4 * nb + 2 * s_ + 2]}, {vtmp[24 + nb]} offset:{s_ * 512}' for nb in range(2) for s_ in range(2)]
        L = [L[:2]] + L[2:]
        L += [[f's_cmp_lt_u32 {s_c1}, {224 * 32768}', f's_cselect_b32 {s_t0}, {s_c0}, 2.0'], f's_add_u32 {s_c1}, {s_c1}, {64 * 32768}', f's_add_u32 {s_c0}, {s_c0}, {64 * 4096}', None, None]
        L += [Ins(f'buffer_store_dwordx4 {vtmp[4 * nb:4 * nb + 4]}, {vtmp[26]}, {sws}, {s_t0} offen offset:{nb * 1024}{st_mod}', 'HST') for nb in range(2)]
        if TT: L.insert(7, tp_touch())
        return L
    def pf3_setup():
        L = f"""s_mov_b32 {sp3[0]}, {pgw[0]}
        s_mov_b32 {sp3[1]}, {pgw[1]}
        s_movk_i32 {sp3[2]}, 2048
        s_mov_b32 {sp3[3]}, 0x00020000
        v_lshlrev_b32 {vwo}, 7, {vl}""".split('\n')
        L2 = f"""s_lshl_b32 {s_t0}, s2, 2
        s_add_u32 {s_t0}, {s_t0}, {s_w}
        s_lshl_b32 {s_t1}, {s_t0}, 11
        v_lshl_add_u32 {vwo}, {vl}, 7, {s_t1}
        v_cmp_gt_u32 {smask}, 16, {vl}
        s_mov_b32 {sp3[0]}, {pwo[0]}
        s_mov_b32 {sp3[1]}, {pwo[1]}
        s_mov_b32 {sp3[2]}, {D * D * 2}
        v_cndmask_b32 {vwo}, 2.0, {vwo}, {smask}""".split('\n')
        return [x.strip() for x in L] + [Ins(f'buffer_load_dword {vpd}, {vwo}, {sp3}, 0 offen', 'pf')] + [x.strip() for x in L2]
    def tlb_touch():
        return [f's_cmp_eq_u32 {s_w}, 1', f's_cselect_b32 {sp2[0]}, {pout[0]}, {pws[0]}', f's_cselect_b32 {sp2[1]}, {pout[1]}, {pws[1]}',
                f's_mov_b32 {sp2[2]}, {34 << 20}', f's_cmov_b32 {sp2[2]}, {S * D * 2}', f's_cmp_lt_u32 {s_w}, 2', f's_cselect_b32 {s_t0}, 0, 2.0',
                f'v_lshlrev_b32 {vt3}, 20, {vl}', Ins(f'buffer_load_dword {vpd}, {vt3}, {sp2}, {s_t0} offen sc1', 'pf')]
    def tlb_touch2():
        L = tlb_touch()
        return [L[0:5], L[5:7]] + L[7:]
    pf_wo = [f's_cmp_eq_u32 {s_cnt}, 2', f's_cselect_b32 {s_t0}, 0, 2.0', Ins(f'buffer_load_dword {vpd}, {vwo}, {sp3}, {s_t0} offen', 'pf')]
    gate_sel = [f's_cmp_eq_u32 {s_cnt}, 0', f's_cselect_b32 {s_t0}, {s_t2}, 2.0', f's_cselect_b32 {s_t1}, 0, 2.0',
                f's_cselect_b32 {sp3[0]}, {pgw[0]}, {sp3[0]}', f's_cselect_b32 {sp3[1]}, {pgw[1]}, {sp3[1]}', f's_cselect_b32 {sp3[2]}, 0x800, {sp3[2]}']
    gate_loads = [f'buffer_load_dwordx4 {gw[i]}, {z[0]}, {sp3}, {s_t1} offen offset:{16 * i}' for i in range(2)] + \
                 [f'buffer_load_dwordx4 {gx[i]}, {z[0]}, {sx}, {s_t0} offen offset:{(i // 2) * 2048 + (i % 2) * 16}' for i in range(4)]

    spins = []
    def check(cond_lines, reload_lines, tag):
        lab = f'{name}_{tag}'
        spins.append((lab, cond_lines, reload_lines))
        return cond_lines + [f's_cbranch_vccnz {lab}_spin', f'{lab}_ok:']

    def lines(s): return [x.strip() for x in s.strip().split('\n')]
    def rd(tile, tmp):
        if tile.k == 'v': return tile, []
        return tmp, [f'v_accvgpr_read_b32 {tmp[i]}, {tile[i]}' for i in range(4)]
    def packl(o, t0, t1):
        return [f'v_cvt_pk_bf16_f32 {o[0]}, {t0[0]}, {t0[1]}', f'v_cvt_pk_bf16_f32 {o[1]}, {t0[2]}, {t0[3]}',
                f'v_cvt_pk_bf16_f32 {o[2]}, {t1[0]}, {t1[1]}', f'v_cvt_pk_bf16_f32 {o[3]}, {t1[2]}, {t1[3]}']
    def mul4(d, a_, b_, pk):
        if pk: return [f'v_pk_mul_f32 {d[2*i:2*i+2]}, {a_[2*i:2*i+2]}, {b_ if b_.k == "s" else b_[2*i:2*i+2]}' for i in range(2)]
        return [f'v_mul_f32 {d[i]}, {b_[0] if b_.k == "s" else b_[i]}, {a_[i]}' for i in range(4)]
    def hpiece(n, j, o, pk):
        L = []; tt = []
        for mm in range(2):
            g_, l0 = rd(acc[n][2 * j + mm], vtmp[8 * mm:8 * mm + 4]); u_, l1 = rd(acc[n + 1][2 * j + mm], vtmp[8 * mm + 4:8 * mm + 8])
            L += l0 + l1 + mul4(g_, g_, u_, pk); tt.append(g_)
        return L + packl(o, tt[0], tt[1]) + [f'v_permlane16_swap_b32 {o[0]}, {o[2]}', f'v_permlane16_swap_b32 {o[1]}, {o[3]}']
    hreg = [acc[7][2 * j] for j in range(4)] + [acc[6][2 * j] for j in range(4)] + [acc[8][2 * j] for j in range(4)]

    vq = vdx[0]; vh = vdx[1]; vql = vdx[2]; vqq = vdx[3]
    s_b, s_qs = s_oq, R('s', sx.a, 2)
    def epi_setup(wc):
        L = lines(f"""
        v_and_b32 {vt0}, 15, {vl}
        v_lshrrev_b32 {vt1}, 4, {vl}
        v_lshlrev_b32 {vq}, 9, {vt1}
        v_lshlrev_b32 {vh}, 4, {vl}
        s_lshl_b32 {s_t0}, {s_h}, 6
        s_lshl_b32 {s_t1}, {s_mb}, 3
        s_add_u32 {s_t0}, {s_t0}, {s_t1}
        s_lshl_b32 {s_t1}, {s_wr}, 2
        s_add_u32 {s_t0}, {s_t0}, {s_t1}
        s_lshl_b32 {s_b}, {s_t0}, 12
        s_add_u32 {s_b}, {s_b}, {WS_KV}
        s_add_u32 {s_og}, {s_b}, 4096
        s_add_u32 {s_ox}, {s_b}, 8192
        s_add_u32 {s_c0}, {s_b}, 12288
        s_lshl_b32 {s_t0}, {s_mb}, 1
        s_add_u32 {s_t0}, {s_t0}, {s_wr}
        s_mul_i32 {s_t0}, {s_t0}, 288
        s_mul_i32 {s_t1}, {s_h}, 7
        s_add_u32 {s_t0}, {s_t0}, {s_t1}
        s_lshl_b32 {s_t0}, {s_t0}, 12
        s_add_u32 {s_hb}, {s_t0}, {WS_A + 4 * 4096 * wc}
        s_sub_u32 {s_c1}, {s_hb}, 4096
        s_lshl_b32 {s_t1}, {s_wr}, 14""")
        if wc == 0:
            L += lines(f"""
            v_lshrrev_b32 {vt2}, 3, {vt0}
            v_lshl_add_u32 {vq}, {vt2}, 8, {vq}
            v_and_b32 {vt2}, 7, {vt0}
            v_lshl_add_u32 {vq}, {vt2}, 4, {vq}
            v_add_u32 {vql}, {s_t1}, {vq}
            s_lshl_b32 {s_t1}, {s_wr}, 13
            s_add_u32 {s_t1}, {s_t1}, {QS}
            v_add_u32 {vqq}, {s_t1}, {vq}
            s_mov_b32 {s_qs[0]}, {hex(f32bits(QSCALE))}
            s_mov_b32 {s_qs[1]}, {s_qs[0]}""")
        else:
            L += [f'v_lshl_add_u32 {vq}, {vt0}, 4, {vq}', f'v_add_u32 {vql}, {s_t1}, {vq}']
        return L
    kvb = [s_b, s_og, s_ox, s_c0]
    def epi_early(wc, npk):
        F_ = []
        outs = [vtmp[16 + 4 * i:20 + 4 * i] for i in range(3)]
        if wc == 0:
            for m in range(7, -1, -1):
                o = acc[0][m]
                L = packl(o, acc[0][m], acc[1][m]) + [Ins(f'buffer_store_dwordx4 {o}, {vq}, {sws}, {kvb[m // 2]} offen offset:{(m % 2) * 128}{kv_mod}', 'KVST'),
                                                       f'ds_write_b128 {vql}, {o} offset:{(m // 2) * 4096 + (m % 2) * 128}']
                F_ += [(17 + 2 * (7 - m) + 4, x) for x in L]
            for i, m in enumerate(range(7, -1, -1)):
                o = outs[i % 3]
                t0, l0 = rd(acc[2][m], vtmp[0:4]); t1, l1 = rd(acc[3][m], vtmp[4:8])
                L = l0 + l1 + mul4(t0, t0, s_qs, i >= npk) + mul4(t1, t1, s_qs, i >= npk) + packl(o, t0, t1) + [f'ds_write_b128 {vqq}, {o} offset:{(m // 2) * 2048 + (m % 2) * 128}']
                F_ += [(49 + 2 * (7 - m) + 4, x) for x in L]
        else:
            for nt, js in ((0, range(4)), (1, range(3, -1, -1))):
                for j in js:
                    o = acc[nt][2 * j]
                    L = packl(o, acc[nt][2 * j], acc[nt][2 * j + 1]) + [Ins(f'buffer_store_dwordx4 {o}, {vq}, {sws}, {kvb[j]} offen offset:{2048 + nt * 256}{kv_mod}', 'KVST'),
                                                                         f'ds_write_b128 {vql}, {o} offset:{j * 4096 + 2048 + nt * 256}']
                    F_ += [((3 + 4 * j if nt == 0 else 31 - 4 * j) + 4, x) for x in L]
            for i, j in enumerate(range(3, -1, -1)):
                o = outs[i % 3]
                L = hpiece(2, j, o, i >= npk) + [Ins(f'buffer_store_dwordx4 {o}, {vh}, {sws}, {s_c1} offen offset:{j * 1024}{st_mod}', 'HST')]
                F_ += [(63 - 4 * j + 4, x) for x in L]
        for j in range(3, -1, -1):
            F_ += [(127 - 4 * j + 4, x) for x in hpiece(6, j, hreg[4 + j], PK)]
            F_ += [(127 - 4 * j + 4, x) for x in hpiece(4, j, hreg[j], PK)]
        k = max(i for i, x in enumerate(F_) if isinstance(x[1], Ins) and x[1].tag == 'KVST')
        F_[k + KF:k + KF] = [(0, [f'v_mov_b32 {vt0}, 1', 'WAITTAG KVST', Ins(f'buffer_store_dword {vt0}, {vflk}, {sfl}, 0 offen sc1', 'FL')])]
        return F_
    def epi_late():
        for j in range(3, -1, -1): p.add(hpiece(8, j, hreg[8 + j], True))

    announce_setup = lines(f"""
        s_mov_b32 {sdbg[0]}, {pdbg[0]}
        s_mov_b32 {sdbg[1]}, {pdbg[1]}
        s_movk_i32 {sdbg[2]}, 256
        s_mov_b32 {sdbg[3]}, 0x00020000
        s_and_b32 {s_ano}, s2, 7
        s_lshl_b32 {s_ano}, {s_ano}, 2
        s_and_b32 {s_grp}, {s_mb}, 3
        s_add_u32 {s_grp}, {s_grp}, 3
        v_mov_b32 {vt2}, 1
        v_cmp_eq_u32 {smask}, 0, v0
        v_cndmask_b32 {vt1}, 2.0, 0, {smask}""")
    if PT:
        k = announce_setup.index(f's_add_u32 {s_grp}, {s_grp}, 3')
        announce_setup[k:k + 1] = [[f's_cmp_lt_u32 {s_grp}, 2', f's_cselect_b32 {s_grp}, {s_grp}, 16'], f's_add_u32 {s_grp}, {s_grp}, 1']
    announce1 = [f's_add_u32 {s_t0}, {s_cnt}, 16', [f's_cmp_eq_u32 {s_t0}, {s_grp}', f's_cselect_b32 {s_t0}, {s_ano}, 2.0'],
                 f'buffer_atomic_add {vt2}, {vt1}, {sdbg}, {s_t0} offen offset:{DBG_CNT} sc1']
    announce = [f's_cmp_eq_u32 {s_cnt}, {s_grp}', f's_cselect_b32 {s_t0}, {s_ano}, 2.0',
                f'buffer_atomic_add {vt2}, {vt1}, {sdbg}, {s_t0} offen offset:{DBG_CNT} sc1']
    cnt_addr = [f'v_and_b32 {vpf}, 7, {vl}', f'v_lshlrev_b32 {vpf}, 2, {vpf}']
    cnt_load = f'buffer_load_dword {vcnt}, {vpf}, {sdbg}, 0 offen offset:{DBG_CNT} sc1'

    def code_setup(wc):
        lab = f'{name}_pc{wc}'
        return [[f's_getpc_b64 {sp4[0:2]}', f'{lab}:'], f's_and_b32 {sp4[1]}, {sp4[1]}, 0xffff', f's_mov_b32 {sp4[2]}, {name}_end-{lab}', f's_mov_b32 {sp4[3]}, 0x00020000',
                f's_lshr_b32 {s_t0}, s2, 3', f's_lshl_b32 {s_t1}, {s_t0}, 8', f's_add_u32 {s_t1}, {s_t1}, {name}_c{wc}out-{lab}', f'v_and_b32 {vcnt}, 1, {vl}', f'v_lshlrev_b32 {vcnt}, 7, {vcnt}',
                f's_lshl_b32 {s_t0}, {s_t0}, 2', f's_add_u32 {s_t0}, {s_t0}, {s_w}', f's_lshl_b32 {s_t0}, {s_t0}, 8',
                f's_add_u32 {s_t0}, {s_t0}, {name}_join-{lab}', f'v_mov_b32 {vtmp[0]}, {s_t0}', f'v_mov_b32 {vtmp[1]}, {s_t1}',
                f'v_cmp_gt_u32 vcc, 2, {vl}', f'v_cndmask_b32 {vtmp[0]}, {vtmp[0]}, {vtmp[1]}, vcc', f'v_add_u32 {vcnt}, {vcnt}, {vtmp[0]}',
                f'v_cmp_gt_u32 vcc, 4, {vl}', f'v_cndmask_b32 {vcnt}, 2.0, {vcnt}, vcc']
    code_pf = [f's_cmp_eq_u32 {s_cnt}, 1', f's_cselect_b32 {s_t0}, 0, 2.0', Ins(f'buffer_load_dword {vpd}, {vcnt}, {sp4}, {s_t0} offen', 'pf')]
    for wc in range(2):
        p.seg(f'c{wc}a')
        if wc == 1: p.e(f'{name}_c1:')
        p.add(wread(0, 0, wc))
        for m in range(2, 8):
            for ks in range(2): p.e(xread(m, ks, 0))
        for j in range(1, DIST): p.add(wread(j, 0, wc))
        left = stage(0, wc, first=True, early=[x for _ in range(PD - PD0 + 1) for x in pfetch()], fill=flag_setup + announce_setup + code_setup(wc) + pf3_setup() + (tlb_touch2() if TLB else []) + (tp_setup() if PT else pf_setup()))
        assert not left
        p.e(f's_mov_b32 {s_cnt}, 6')
        p.seg(f'c{wc}l1')
        p.e(f'{name}_c{wc}loop:')
        stage(1, wc, early=pfetch() + (tp_load() if PT else pfetch_d()), extra=gate_sel + gate_loads + (announce1 if PT else []), estep=1)
        p.e(f's_cmp_eq_u32 {s_cnt}, 0\ns_cbranch_scc1 {name}_c{wc}out')
        p.seg(f'c{wc}l2')
        stage(0, wc, early=pfetch() + ([] if PT else pfetch_d()), extra=([x for x in tp_store() if x is not None] if PT else []) + announce + ([] if NOPF & 2 else pf_wo) + (code_pf if CPF else []), estep=1 if PT else 2)
        p.e(f's_sub_u32 {s_cnt}, {s_cnt}, 1\ns_branch {name}_c{wc}loop')
        p.seg(f'c{wc}last')
        p.e(f'{name}_c{wc}out:')
        rest = stage(0, wc, early=None if PT else pfetch_d(), fill=gate_ops(), nodma1=True, dens=GD)
        rest = stage(1, wc, last=True, fill=rest + cnt_addr + [cnt_load] + epi_setup(wc) + epi_early(wc, 99))
        pf.stamp(2)
        if ptrace == -1: pf.trace()
        k = max([i for i, x in enumerate(rest) if isinstance(x, str) and x.startswith('ds_write')] + [-1]) + 1
        for x in rest[:k]: p.add(x if isinstance(x, list) else [x])
        rest = rest[k:]
        if PKR:
            out = []; i = 0
            while i < len(rest):
                x = rest[i]; y = rest[i + 1] if i + 1 < len(rest) else None
                if isinstance(x, str) and isinstance(y, str) and x.startswith('v_mul_f32') and y.startswith('v_mul_f32'):
                    a0, b0, c0 = [int(t.strip()[1:]) for t in x[10:].split(',')]; a1, b1, c1 = [int(t.strip()[1:]) for t in y[10:].split(',')]
                    if a0 % 2 == 0 and b0 % 2 == 0 and (a1, b1, c1) == (a0 + 1, b0 + 1, c0 + 1):
                        out.append(f'v_pk_mul_f32 v[{a0}:{a1}], v[{b0}:{b1}], v[{c0}:{c1}]'); i += 2; continue
                out.append(x); i += 1
            rest = out
        va_, vb_ = vdg[0], vdg[1]
        p.e(f"""
        v_lshlrev_b32 {va_}, 4, {vl}
        s_lshl_b32 {s_t0}, {s_w}, 12
        s_add_u32 {s_t0}, {s_t0}, {QS}
        v_add_u32 {vb_}, {s_t0}, {va_}
        s_waitcnt lgkmcnt(0)
        s_barrier
        """)
        for q in range(2):
            for f in range(2): p.e(f'ds_read_b128 a[{40 + 8 * q + 4 * f}:{43 + 8 * q + 4 * f}], {vb_} offset:{q * 2048 + f * 1024}')
        for i in range(4): p.e(f'ds_read_b128 a[{56 + 4 * i}:{59 + 4 * i}], {va_} offset:{(i // 2) * 4096 + (i % 2) * 1024}')
        pre = [f'v_mfma_f32_32x32x16_bf16 v[{64 + 16 * q}:{79 + 16 * q}], a[{56 + 4 * f}:{59 + 4 * f}], a[{40 + 8 * q + 4 * f}:{43 + 8 * q + 4 * f}], ' + ('0' if f == 0 else f'v[{64 + 16 * q}:{79 + 16 * q}]')
               for q in range(2) for f in range(2)]
        rest = rest + [x for j in range(3, -1, -1) for x in hpiece(8, j, hreg[8 + j], True)]
        for i, x in enumerate(rest):
            p.add(x if isinstance(x, list) else [x])
            if i >= 24 and (i - 24) % 7 == 0 and pre: p.e(pre.pop(0))
        p.add(pre)
        if ptrace == -1: pf.trace()
        if ptrace == -1: pf.trace()
        if wc == 0: p.e(f's_branch {name}_join')
    p.seg('join')
    p.e(f'{name}_join:')
    p.add(check([f'v_cmp_gt_u32 vcc, 32, {vcnt}'], [cnt_load], 'cnt'))

    sa.p = s_base; va.p = v_base; aa.p = 0
    skv = sa(4); sA = sa(4); swd = sa(4); swo = sa(4); sout = sa(4)
    s_okv, s_left, s_p, s_oa, s_ow, s_wb, s_ob, s_ob2, s_thr, s_mt, s_nt, s_oo, s_spin, s_h1, s_h2, s_rt, s_win = [sa() for _ in range(17)]
    scp = sa(4)
    vl16, vkA, vkB, vdma, vo, vidx, vu0, vu1, vu2, vpa = [va() for _ in range(10)]
    vdd = [va() for _ in range(2)]; vdo = [va() for _ in range(2)]; vwr = [va() for _ in range(2)]
    vg = va(2); vog = va(4); vpoll = va(2, 2); vsc = va(2)
    ones = va(4, 4)
    vA = [va() for _ in range(4)]
    assert va.p <= 46 and va.p > vwo.a
    va2 = Alloc('v', va.p, 48)
    va.p = 48
    Sx = [va(16, 4) for _ in range(2)]; P = [va(8, 4) for _ in range(2)]; C = [va(16, 4) for _ in range(2)]
    acc3 = [[va(16, 4) for _ in range(4)] for _ in range(2)]
    O = [aa(16, 4) for _ in range(2)]; L = [aa(4, 4) for _ in range(2)]
    Q = [aa(8, 4) for _ in range(2)]; K = [aa(8, 4) for _ in range(2)]; V = [aa(8, 4) for _ in range(2)]
    Wf = [aa(4, 4) for _ in range(2)]
    Ab = [[aa(4, 4) for _ in range(4)] for _ in range(8)]
    if PT:
        NB = 4; DA = DW = 3
        Wb = [[Ab[4 + i // 2][2 * (i % 2)], Ab[4 + i // 2][2 * (i % 2) + 1]] for i in range(4)]

    p.e(f"""
    v_lshlrev_b32 {vl16}, 4, {vl}
    s_lshl_b32 {s_p}, {s_w}, 12
    """)
    assert Q[0].a == 40 and K[0].a == 56 and Sx[1].a == 64 and P[0].a == 80
    pf.stamp(3)
    def kread(kb, loop=False):
        base, o = (vl16, (kb % 16) * 4096) if not loop else ((vkA, kb * 4096) if kb < 8 else (vkB, (kb - 8) * 4096))
        return [f'ds_read_b128 {K[kb % 2][4*f:4*f+4]}, {base} offset:{o + f * 1024}' for f in range(2)]
    def vread(kb, loop=False):
        base, o = (vl16, (kb % 16) * 4096) if not loop else (vkA, kb * 4096)
        return [f'ds_read_b128 {V[kb % 2][4*f:4*f+4]}, {base} offset:{o + 2048 + f * 1024}' for f in range(2)]
    def qk(dst, kb, q, f, cin):
        return f'v_mfma_f32_32x32x16_bf16 {dst}, {K[kb % 2][4*f:4*f+4]}, {Q[q][4*f:4*f+4]}, {cin if f == 0 else dst}'
    def pv(j, f, zero=False):
        q = j % 2; kb = (j // 2) % 2
        return f'v_mfma_f32_32x32x16_bf16 {O[q]}, {V[kb][4*f:4*f+4]}, {P[q][4*f:4*f+4]}, {"0" if zero else O[q]}'
    def rsum(q): return f'v_smfmac_f32_16x16x64_bf16 {L[q]}, {ones}, {P[q]}, {vidx}'
    def cvt(j, i): return f'v_cvt_pk_bf16_f32 {P[j % 2][i]}, {Sx[j % 2][2*i]}, {Sx[j % 2][2*i+1]}'
    def rowmax(dst, src, init):
        lst = [src[i] for i in range(16)]
        if init:
            p.e(f'v_max3_f32 {dst}, {lst[0]}, {lst[1]}, {lst[2]}'); lst = lst[3:]
        while len(lst) >= 2:
            p.e(f'v_max3_f32 {dst}, {dst}, {lst[0]}, {lst[1]}'); lst = lst[2:]
        if lst: p.e(f'v_max_f32 {dst}, {dst}, {lst[0]}')
    def setc(q, m):
        p.e(f'v_mov_b32 {vu2}, {m}\nv_permlane32_swap_b32 {vu2}, {m}\nv_max_f32 {m}, {m}, {vu2}')
        for i in range(16): p.e(f'v_sub_f32 {C[q][i]}, 0, {m}')
    rowmax(vu0, R('v', 64, 16), True); rowmax(vu1, R('v', 80, 16), True)
    setc(0, vu0)
    p.e(qk(Sx[0], 0, 0, 0, C[0])); p.e(qk(Sx[0], 0, 0, 1, C[0]))
    setc(1, vu1)
    p.e(f"""
    v_bfe_u32 {vu0}, {vl}, 2, 1
    v_bfe_u32 {vu1}, {vl}, 1, 1
    v_mov_b32 {vu2}, 0x3f803f80
    v_or_b32 {vidx}, {vu0}, {vu1}
    v_cmp_eq_u32 vcc, 0, {vidx}
    v_xor_b32 {vu0}, 1, {vu0}
    v_or_b32 {vidx}, {vu0}, {vu1}
    v_cndmask_b32 {ones[0]}, 0, {vu2}, vcc
    v_cndmask_b32 {ones[1]}, 0, {vu2}, vcc
    v_cmp_eq_u32 vcc, 0, {vidx}
    v_and_b32 {vu0}, 1, {vl}
    v_mov_b32 {vu1}, 0xeeeeeeee
    v_cndmask_b32 {ones[2]}, 0, {vu2}, vcc
    v_cndmask_b32 {ones[3]}, 0, {vu2}, vcc
    v_cmp_eq_u32 vcc, 0, {vu0}
    v_mov_b32 {vu2}, 0x44444444
    v_add_u32 {vdma}, {s_p}, {vl16}
    v_cndmask_b32 {vidx}, {vu1}, {vu2}, vcc
    """)
    for q in range(2):
        for i in range(2): p.e(f'v_accvgpr_write_b32 {L[q][i]}, 0')
    p.e(f's_lshl_b32 {s_t0}, {s_h}, 18')
    srd(p, skv, pws, off_s=s_t0, off_imm=WS_KV, size=262144)

    def flag(val, tag, wait):
        return [f'v_mov_b32 {vu0}, {val}', f'WAITTAG {wait}', Ins(f'buffer_store_dword {vu0}, {vflag}, {sfl}, 0 offen sc1', tag)]
    def kvdma(m0line, tag, count=True):
        return [m0line] + [Ins(f'buffer_load_dwordx4 {vdma}, {skv}, {s_okv} offen offset:{i * 1024}{lm2} lds', tag) for i in range(4)] + \
               [f's_add_u32 {s_okv}, {s_okv}, 16384', f's_and_b32 {s_okv}, {s_okv}, 0x3ffff'] + \
               ([f's_sub_u32 {s_left}, {s_left}, 1', f's_cselect_b32 {skv[2]}, 0, {skv[2]}'] if count else [])
    NW = 4
    def wload(s):
        if PT: return [Ins(f'buffer_load_dwordx4 {Wb[s % 4][nb]}, {vl16}, {swd}, {s_oa} offen offset:{nb * 1024}{lm2}', f'D{s % NW}') for nb in range(2)]
        return [f's_add_u32 m0, {s_wb}, {(s % NW) * 2048}'] + \
               [Ins(f'buffer_load_dwordx4 {vdd[hh]}, {swd}, {s_ow} offen offset:{hh * 1024}{lm2} lds', f'D{s % NW}') for hh in range(2)] + [f's_add_u32 {s_ow}, {s_ow}, 32768']
    def hload(s):
        return [Ins(f'buffer_load_dwordx4 {Ab[s % NB][r]}, {vA[r]}, {sA}, {s_oa} offen{lm2}', f'A{s % NB}') for r in range(4)] + [f's_add_u32 {s_oa}, {s_oa}, 4096']
    def wrd(base, off, nb):
        if PT: return []
        return [f'ds_read_b64_tr_b16 {Wf[nb][2*s:2*s+2]}, {base[nb]} offset:{off + s * 512}' for s in range(2)]
    def gm(st, nb, tb, zero=False):
        return f'v_mfma_f32_32x32x16_bf16 {acc3[nb][tb]}, {Wb[st % 4][nb] if PT else Wf[nb]}, {Ab[st % NB][tb]}, {"0" if zero else acc3[nb][tb]}'
    def oload(t, m0line, tag):
        return [m0line] + [Ins(f'buffer_load_dwordx4 {vdo[hh]}, {swo}, {s_oo} offen offset:{hh * 1024} lds', tag) for hh in range(2)] + [f's_add_u32 {s_oo}, {s_oo}, 32768']

    zplan = {}
    def period(j, loop=False, item=None, misc=(), pre=(), zero=False):
        s = Sx[j % 2]
        E = [f'v_exp_f32 {s[i]}, {s[i]}' for i in range(16)]
        jn = j + 1
        m1 = qk(Sx[jn % 2], jn // 2, jn % 2, 0, C[jn % 2]); m2 = qk(Sx[jn % 2], jn // 2, jn % 2, 1, None)
        rd = kread((j + 1) // 2 + 1, loop) if j % 2 == 1 else vread(j // 2, loop)
        first = (j == 0 and not loop)
        zo = (j <= 2 and not loop)
        c7 = [] if first else [cvt(j - 1, 7)]
        p0 = [] if first else [pv(j - 1, 0, zo)]; p1 = [] if first else [pv(j - 1, 1)]; rs = [] if first else [rsum((j - 1) % 2)]
        V_ = [E[0]] + c7
        for i in range(7): V_ += [E[2 * i + 1], E[2 * i + 2], cvt(j, i)]
        V_.append(E[15])
        if item is None:
            p.add(V_[:1 + len(c7)]); V_ = V_[1 + len(c7):]
            if AW and j % 2 == 1: p.e('s_waitcnt lgkmcnt(0)')
            z_ = [] if loop else zplan.get(j, [])
            M = [m1] + z_[:1] + [m2] + p0 + z_[1:] + p1 + rs; G = []
        else:
            st, nb = item
            G = [gm(st, nb, tb if nb == 0 else 3 - tb, zero) for tb in range(4)]
            M = [G[0], m1, G[1], m2, G[2]] + p0 + [G[3]] + p1 + rs
        if loop and exp_ & 1: M = [x for x in M if x not in G]
        if loop and exp_ & 8: misc = [x for x in misc if not (isinstance(x, Ins) and x.tag and x.tag.startswith('D'))]
        misc = list(misc)
        for k in range(len(misc)):
            if isinstance(misc[k], str) and ' m0,' in misc[k]:
                q_ = k
                while q_ > 0 and not (isinstance(misc[q_ - 1], Ins) and misc[q_ - 1].text.endswith(' lds')): q_ -= 1
                misc.insert(q_, misc.pop(k))
        items = []
        for x in list(pre) + rd + list(misc):
            if items and isinstance(items[-1][-1], str) and items[-1][-1].split()[0] in ('WAITTAG', 's_cbranch_vccnz', 'v_cmp_gt_u32', 's_getpc_b64', 's_cmp_eq_u32'): items[-1].append(x)
            else: items.append([x])
        isvm = lambda it: any((y.text if isinstance(y, Ins) else y).startswith('buffer') for y in it)
        n = len(M); last = n - 1 if M[-1].startswith('v_smfmac') else n
        cost = lambda x: 8 if x.startswith('v_exp') else 4
        occ = [32 if '32x32' in x else 16 for x in M]
        iss = [8 if 'smfmac' not in x else SMC for x in M]
        ic = [sum((VMC if (y.text if isinstance(y, Ins) else y).startswith('buffer') else 4) for y in it if not (isinstance(y, str) and y.endswith(':'))) for it in items]
        vc = [cost(x) for x in V_]
        tailc = (4 if item is not None else 12 + (4 if j % 2 == 0 else 0))
        if item is None: iss[-1] += 0
        import functools
        @functools.lru_cache(None)
        def best(g, a_, b_, pv_):
            if g == n: return (0, ()) if (a_ == len(items) and b_ == len(V_)) else (10 ** 9, ())
            res = (10 ** 9, ())
            lo = 0
            if g == 0 and item is not None: lo = 1 + len(c7)
            for na in range(0, len(items) - a_ + 1):
                if g == 0 and na < min(len(items), npre): continue
                nv_ = sum(map(isvm, items[a_:a_ + na]))
                ca = sum(ic[a_:a_ + na])
                if g < n - 1 and ca > 64: break
                pen = (VPEN * max(0, nv_ - 1) + (VPEN // 2 if (nv_ and pv_) else 0)) + (0.01 * g * na)
                for nb_ in range(lo, len(V_) - b_ + 1):
                    f_ = iss[g] + ca + sum(vc[b_:b_ + nb_]) + (tailc if g == n - 1 else 0)
                    if f_ > 120 and g < n - 1: break
                    r_ = best(g + 1, a_ + na, b_ + nb_, nv_ > 0)
                    t_ = max(occ[g], f_) + pen + r_[0] + 0.001 * (f_ - occ[g]) ** 2
                    if t_ < res[0]: res = (t_, ((na, nb_),) + r_[1])
            return res
        npre = len([1 for it in items if any(y in pre for y in it if isinstance(y, str))])
        tot_, asg = best(0, 0, 0, False)
        assert tot_ < 10 ** 8
        if dbg == -1: print(j, loop, item, round(tot_), len(items), sum(map(isvm, items)))
        a_ = b_ = 0
        for q_, m_ in enumerate(M):
            p.add([m_])
            na, nb_ = asg[q_]
            for it in items[a_:a_ + na]: p.add(it)
            p.add(V_[b_:b_ + nb_]); a_ += na; b_ += nb_

    setup1 = lines(f"""
        s_lshl_b32 {s_okv}, {s_mb}, 15
        s_add_u32 {s_okv}, {s_okv}, 32768
        s_and_b32 {s_okv}, {s_okv}, 0x3ffff
        s_movk_i32 {s_left}, {13 - (PA // 8 + (0 if KS == 2 else 1))}
        v_and_b32 {vu1}, 31, {vl}
        v_lshlrev_b32 {vpa}, 2, {vu1}
        s_lshl_b32 {s_t2}, {s_h}, 7
        s_add_u32 {s_t2}, {s_t2}, 4096""")
    poll_kv = f'buffer_load_dword {vpoll[0]}, {vpa}, {sfl}, {s_t2} offen sc1'
    setup2 = lines(f"""
        s_and_b32 {s_t0}, s2, 7
        s_lshr_b32 {s_t1}, s2, 3
        s_lshr_b32 {s_mt}, {s_t0}, 1
        s_lshl_b32 {s_mt}, {s_mt}, 2
        s_and_b32 {s_nt}, {s_t0}, 1
        s_lshl_b32 {s_nt}, {s_nt}, 3
        s_and_b32 {s_t0}, {s_t1}, 3
        s_add_u32 {s_mt}, {s_mt}, {s_t0}
        s_lshr_b32 {s_t0}, {s_t1}, 2
        s_add_u32 {s_nt}, {s_nt}, {s_t0}
        s_lshl_b32 {s_t0}, {s_nt}, 7
        s_lshl_b32 {s_t1}, {s_w}, 19
        s_add_u32 {s_t1}, {s_t1}, {s_t0}
        s_add_u32 {swo[0]}, {pwo[0]}, {s_t1}
        s_addc_u32 {swo[1]}, {pwo[1]}, 0
        s_sub_u32 {swo[2]}, {D * D * 2}, {s_t1}
        s_mov_b32 {swo[3]}, 0x00020000
        s_add_u32 {swd[0]}, {pwd[0]}, {s_t0}
        s_addc_u32 {swd[1]}, {pwd[1]}, 0
        s_sub_u32 {swd[2]}, {F * D * 2}, {s_t0}
        s_mov_b32 {swd[3]}, 0x00020000
        s_mul_i32 {s_t0}, {s_mt}, {288 * 4096}
        s_add_u32 {s_t0}, {s_t0}, {WS_A}
        s_add_u32 {sA[0]}, {pws[0]}, {s_t0}
        s_addc_u32 {sA[1]}, {pws[1]}, 0
        s_mov_b32 {sA[2]}, {288 * 4096}
        s_mov_b32 {sA[3]}, 0x00020000
        s_mul_i32 {s_oa}, {s_w}, {56 * 4096}
        s_lshl_b32 {s_ow}, {s_oa}, 3
        s_mov_b32 {s_oo}, 0
        s_mul_i32 {s_wb}, {s_w}, 20480
        s_add_u32 {s_wb}, {s_wb}, {W0}
        v_lshrrev_b32 {vu1}, 3, {vl}
        v_and_b32 {vu2}, 2, {vu1}
        v_lshlrev_b32 {vu2}, 1, {vu2}
        v_and_b32 {vdd[1]}, 7, {vl}
        v_xor_b32 {vu2}, {vu2}, {vdd[1]}
        v_lshlrev_b32 {vu2}, 4, {vu2}
        v_lshl_add_u32 {vdd[0]}, {vu1}, 11, {vu2}
        v_add_u32 {vdd[1]}, {8 * 2048 - 1024}, {vdd[0]}
        v_lshrrev_b32 {vu1}, 5, {vl}
        v_lshl_add_u32 {vdo[0]}, {vu1}, 13, {vdd[0]}
        v_add_u32 {vdo[1]}, {4 * 2048 - 1024}, {vdo[0]}
        v_lshl_add_u32 {vwr[0]}, {vu1}, 10, {s_wb}
        v_bfe_u32 {vu1}, {vl}, 2, 2
        v_lshl_add_u32 {vwr[0]}, {vu1}, 7, {vwr[0]}
        v_bfe_u32 {vu1}, {vl}, 3, 1
        v_lshl_add_u32 {vwr[0]}, {vu1}, 6, {vwr[0]}
        v_bfe_u32 {vu1}, {vl}, 4, 1
        v_lshl_add_u32 {vwr[0]}, {vu1}, 5, {vwr[0]}
        v_and_b32 {vu1}, 3, {vl}
        v_lshl_add_u32 {vwr[0]}, {vu1}, 3, {vwr[0]}
        v_xor_b32 {vwr[1]}, 64, {vwr[0]}
        v_mov_b32 {vkB if PA == 48 else vkA}, {vl16}
        v_add_u32 {vkA if PA == 48 else vkB}, 32768, {vl16}
        s_nop 0
        s_nop 0""")
    setup2 = setup2[:-2]
    setup1 += [f's_add_u32 {s_h1}, {s_hb}, 4096', f's_add_u32 {s_h2}, {s_hb}, 8192']
    if PT:
        setup2 += lines(f"""
        s_lshr_b32 {s_t0}, {s_nt}, 1
        s_mul_i32 {s_t0}, {s_t0}, {224 * 4096}
        s_and_b32 {s_t1}, {s_nt}, 1
        s_lshl_b32 {s_t1}, {s_t1}, 11
        s_add_u32 {s_t0}, {s_t0}, {s_t1}
        s_add_u32 {s_t0}, {s_t0}, {WS_T}
        s_add_u32 {swd[0]}, {pws[0]}, {s_t0}
        s_addc_u32 {swd[1]}, {pws[1]}, 0
        s_mov_b32 {swd[2]}, {224 * 4096 - 2048}""")
    for r in range(4):
        setup2 += [f's_add_u32 {s_t0}, {s_w}, {r + 1}', f's_and_b32 {s_t0}, {s_t0}, 3', f's_lshl_b32 {s_t0}, {s_t0}, 10', f'v_add_u32 {vA[r]}, {s_t0}, {vl16}']
    setup3 = lines(f"""
        v_and_b32 {vu1}, 7, {vl}
        v_bfe_u32 {vu2}, {vl}, 4, 1
        v_lshl_add_u32 {vo}, {vu2}, 3, {vu1}
        v_bfe_u32 {vu2}, {vl}, 3, 1
        v_lshl_add_u32 {vo}, {vu2}, 4, {vo}
        v_lshrrev_b32 {vu2}, 3, {vo}
        v_lshlrev_b32 {vu2}, 7, {vu2}
        v_lshl_add_u32 {vsc[0]}, {vu1}, 2, {vu2}
        v_lshlrev_b32 {vo}, 4, {vo}
        v_lshrrev_b32 {vu2}, 5, {vl}
        v_lshl_add_u32 {vo}, {vu2}, 9, {vo}
        v_bfe_u32 {vu2}, {vl}, 3, 2
        v_lshlrev_b32 {vu2}, 7, {vu2}
        v_lshl_add_u32 {vsc[1]}, {vu1}, 2, {vu2}
        s_lshl_b32 {s_t0}, {s_mb}, 1
        s_add_u32 {s_t0}, {s_t0}, {s_wr}
        s_mul_i32 {s_t0}, {s_t0}, 288
        s_lshl_b32 {s_t1}, {s_h}, 1
        s_add_u32 {s_t0}, {s_t0}, {s_t1}
        s_add_u32 {s_t0}, {s_t0}, 224
        s_lshl_b32 {s_t0}, {s_t0}, 12
        s_lshl_b32 {s_t1}, {s_wc}, 11
        s_add_u32 {s_t0}, {s_t0}, {s_t1}
        s_add_u32 {s_ob}, {s_t0}, {WS_A}
        s_add_u32 {s_ob2}, {s_ob}, 4096
        s_mov_b32 {s_thr}, {hex(f32bits(2.0 ** 40 if not force_slow else 0.5))}
        v_lshlrev_b32 {vpa}, 3, {vl}
        s_lshr_b32 {s_t2}, {s_mt}, 1
        s_lshl_b32 {s_t2}, {s_t2}, 9""")
    poll_h = f'buffer_load_dwordx2 {vpoll}, {vpa}, {sfl}, {s_t2} offen sc1'
    cond2 = [f'v_min_u32 {vu1}, {vpoll[0]}, {vpoll[1]}', f'v_cmp_gt_u32 vcc, 2, {vu1}']
    og_loads = [f's_lshl_b32 {s_t0}, {s_mt}, 11', f's_add_u32 {s_t0}, {s_t0}, {WS_G + 32}']
    for r in range(4):
        og_loads += [f'v_lshrrev_b32 {vu1}, 10, {vA[r]}', f'v_lshl_add_u32 {vu1}, {vu1}, 9, {vsc[1]}', f'buffer_load_dword {vog[r]}, {vu1}, {sws}, {s_t0} offen']
    g_loads = [f's_lshl_b32 {s_t0}, {s_mb}, 2', f's_add_u32 {s_t0}, {s_t0}, {s_w}', f's_lshl_b32 {s_t0}, {s_t0}, 10', f's_add_u32 {s_t0}, {s_t0}, {WS_G}'] + \
              [f'buffer_load_dword {vg[q]}, {vsc[0]}, {sws}, {s_t0} offen offset:{q * 512}' for q in range(2)]
    NE = 16 if PT else 12
    def oslot(t):
        if t >= NE: return vw2, (t - NE) * 2048, f's_add_u32 m0, {s_p}, {(t - NE) * 2048}'
        k = t if t < 4 else t - 4
        n0 = 0 if PT else NW
        if k < 10 - n0: return vwr, (n0 + k) * 2048, f's_add_u32 m0, {s_wb}, {(n0 + k) * 2048}'
        return vw3, (k - 10 + n0) * 2048, f's_add_u32 m0, {s_p}, {QS + (k - 10 + n0) * 2048}'
    WO = [R('a', aa.p + 8 * t, 8) for t in range(4)] + [R('a', 8 * t, 8) for t in range(11)] + [Sx[0][0:8]]
    assert Wf[0].a == 88 and aa.p + 32 <= 256
    vw3 = [va2(), va2()]
    def woread(t):
        base, off, _ = oslot(t)
        return [f'ds_read_b64_tr_b16 {WO[t][4*nb+2*s_:4*nb+2*s_+2]}, {base[nb]} offset:{off + s_ * 512}' for nb in range(2) for s_ in range(2)]
    vw2 = [C[0][0], C[0][1]]
    setup3 += [f's_add_u32 {s_t0}, {s_p}, {QS}', f's_sub_u32 {s_t0}, {s_t0}, {s_wb}', f'v_add_u32 {vw3[0]}, {s_t0}, {vwr[0]}', f'v_add_u32 {vw3[1]}, {s_t0}, {vwr[1]}']
    early_o = [oload(t, oslot(t)[2], 'WO') for t in range(NE)]
    assert PM % 2 == 0 and DW <= 3 and DA <= 7
    plan = {j: [] for j in range(PA)}; prej = {j: [] for j in range(PA)}
    plan[0] += setup1
    plan[1] += setup2[:21]; plan[2] += setup2[21:38]; plan[3] += setup2[38:55]; plan[4] += setup2[55:]; plan[KP] = (plan[KP] + [poll_kv]) if KP == 0 else ([poll_kv] + plan[KP])
    plan[KC] += check([f'v_cmp_gt_u32 vcc, 1, {vpoll[0]}'], [poll_kv], 'kv')
    d = kvdma(f's_add_u32 m0, {s_p}, 32768', 'KV0', False); plan[KC] += d[:3]; plan[KC + 1] += d[3:]
    d = kvdma(f's_add_u32 m0, {s_p}, 49152', 'KV1', False); plan[KC + 2] += d[:3]; plan[KC + 3] += d[3:]
    for i in range(5 if PA == 48 else 3):
        j = 13 + 8 * i
        prej[j] += [f'WAITTAG KV{i % 2}', 's_barrier']
        d = kvdma(f's_add_u32 m0, {s_p}, {(i % 4) * 16384}', f'KV{i % 2}', False)
        if KS == 2 and j == PA - 3: plan[j] += d[:2]; plan[j + 2] += d[:1] + [d[2]]
        elif KS and j >= PM: plan[j] += d[:3]; plan[j + 2] += d[:1] + d[3:]
        else: plan[j] += d[:5]; plan[j + 1] += d[5:]
    busy = (13, 21, 29, 37, 45)
    j = float(H0)
    for k in range(12):
        while int(j) in busy: j = int(j) + 1.0
        plan[int(j)].append(Ins(f'buffer_store_dwordx4 {hreg[k]}, {vl16}, {sws}, {(s_hb, s_h1, s_h2)[k // 4]} offen offset:{(k % 4) * 1024}{st_mod}', 'HST'))
        jl = int(j); j += HP
    plan[10] += setup3[:10]; plan[11] += setup3[10:20]; plan[12] += setup3[20:]
    def nextfree(j):
        while j in busy: j += 1
        return j
    jf = nextfree(jl + FG); plan[jf] += flag(2, 'FL', 'HST')
    ramp = []
    for i in range(max(DA, DW)):
        if i < DW: ramp += wload(i)
        if i < DA: ramp += hload(i)
    groups = []; curg = []; nv = 0
    for x in ramp:
        if isinstance(x, str) and ' m0,' in x and nv + 2 > RP: groups.append(curg); curg = []; nv = 0
        if isinstance(x, Ins):
            if nv >= RP and not x.text.endswith(' lds'): groups.append(curg); curg = []; nv = 0
            nv += 1
        curg.append(x)
    groups.append(curg)
    jc = PM - 1; k = len(groups)
    while k:
        jc -= 1
        if jc not in busy: k -= 1
    jp = jc - PG
    assert jp > jf, (jp, jf)
    if PT and GP:
        vgl = R('v', 224, 16)
        poll_all = [f'buffer_load_dwordx4 {vgl[4 * i:4 * i + 4]}, {vl16}, {sfl}, 0 offen offset:{i * 1024} sc1' for i in range(4)]
        cond_all = [f'v_min3_u32 {vu1}, {vgl[0]}, {vgl[1]}, {vgl[2]}'] + [f'v_min3_u32 {vu1}, {vu1}, {vgl[i]}, {vgl[i + 1]}' for i in range(3, 15, 2)] + \
                   [f'v_min_u32 {vu1}, {vu1}, {vgl[15]}', f'v_cmp_gt_u32 vcc, 2, {vu1}']
        plan[jp] += poll_all
    else: plan[jp] += [poll_h]
    jj = E0
    for t in range(0, 4, 2):
        jj = nextfree(jj + 1); plan[jj] += early_o[t] + early_o[t + 1]
    jj = nextfree(jj + 3)
    for t in range(4):
        plan[jj] += (['WAITTAG WO'] if t == 0 else []) + woread(t); jj = nextfree(jj + 1)
    for t in range(4, NE):
        plan[jj] += (['s_waitcnt lgkmcnt(0)'] if t == 4 else []) + early_o[t]
        if t % 2 == 1 or jj < jl: jj = nextfree(jj + 1)
    assert jj <= jc + 1, (jj, jc)
    if PT and GP: plan[jc] += check(cond_all, poll_all, 'h')
    else: plan[jc] += check(cond2, [poll_h], 'h') + [f's_lshl_b32 {s_t2}, {s_mb}, 9', poll_h]
    jj = jc
    for g_ in groups:
        plan[jj] += g_; jl2 = jj; jj = nextfree(jj + 1)
    assert jl2 <= PM - 2, (jl2, PM)
    plan[PM - 1] = ['WAITTAG D0 A0'] + wrd(vwr, 0, 0) + plan[PM - 1]
    NZ = PM == PA
    if NZ:
        plan[PM - 3] += og_loads
        plan[PM - 1] += check(cond2, [poll_h], 'g') + g_loads
        plan[jf + 1] += [f'v_accvgpr_write_b32 {Wf[1][i]}, 0' for i in range(4)]
        for k in range(8): zplan.setdefault(jf + 2 + k // 2, []).append(f'v_mfma_f32_32x32x16_bf16 {acc3[k // 4][k % 4]}, {Wf[1]}, {Wf[1]}, 0')
        assert jf + 6 < PM
    else:
        plan[PM + 2] += og_loads
        plan[PM + 4] += ([] if (PT and GP) else check(cond2, [poll_h], 'g')) + g_loads
    if PA == 48: plan[PA - 1] += [f's_xor_b32 {s_p}, {s_p}, 32768']
    vcp = va2()
    vtp = [va2() for _ in range(3)]
    L0 = (PA - PM) // 2 + (128 - PA) // 2
    nA = (56 - L0 - DA) * 4; nW = (56 - L0 - DW) * 4; nO = (16 - NE) * 4
    if TP1:
        plan[26] += lines(f"""
        s_and_b32 {s_t0}, {s_nt}, 7
        s_mul_i32 {s_t0}, {s_t0}, {nA}
        s_mul_i32 {s_t1}, {s_w}, {56 * 32}
        s_add_u32 {s_t0}, {s_t0}, {s_t1}
        s_add_u32 {s_t0}, {s_t0}, {(L0 + DA) * 32}
        v_add_u32 {vu1}, {s_t0}, {vl}
        v_lshlrev_b32 {vu1}, 7, {vu1}
        v_cmp_lt_u32 {smask}, {vl}, {nA}
        v_cndmask_b32 {vtp[0]}, 2.0, {vu1}, {smask}""")
        plan[27] += lines(f"""
        s_and_b32 {s_t1}, {s_mt}, 3
        s_mul_i32 {s_t0}, {s_t1}, {nO}
        s_add_u32 {s_t0}, {s_t0}, {NE * 16}
        v_add_u32 {vu1}, {s_t0}, {vl}
        v_lshlrev_b32 {vu1}, 11, {vu1}
        v_cmp_lt_u32 {smask}, {vl}, {nO}
        v_cndmask_b32 {vtp[2]}, 2.0, {vu1}, {smask}
        s_mul_i32 {s_t0}, {s_t1}, {nW}
        s_mul_i32 {s_t1}, {s_w}, {56 * 16}
        s_add_u32 {s_t0}, {s_t0}, {s_t1}
        s_add_u32 {s_t0}, {s_t0}, {(L0 + DW) * 16}
        v_add_u32 {vu1}, {s_t0}, {vl}
        v_lshlrev_b32 {vu1}, 11, {vu1}
        v_cmp_lt_u32 {smask}, {vl}, {nW}
        v_cndmask_b32 {vtp[1]}, 2.0, {vu1}, {smask}""")
    if CP2:
        plan[PM - 3] += [f's_getpc_b64 {scp[0:2]}', f'{name}_pct:', f's_and_b32 {scp[1]}, {scp[1]}, 0xffff', f's_mov_b32 {scp[2]}, {name}_slow-{name}_pct',
                         f's_mov_b32 {scp[3]}, 0x00020000', f's_lshr_b32 {s_t0}, s2, 3', f's_lshl_b32 {s_t0}, {s_t0}, 2', f's_add_u32 {s_t0}, {s_t0}, {s_w}',
                         f's_lshl_b32 {s_t0}, {s_t0}, 7', f's_add_u32 {s_t0}, {s_t0}, {name}_tail-{name}_pct', f'v_lshl_add_u32 {vcp}, {vl}, 14, {s_t0}']
    def mixed(j, st, nb, loop, misc=(), pre=(), zero=False):
        dw = wload(st + DW); da = hload(st + DA)
        if loop and exp_ & 32:
            dw = [Ins(f'buffer_load_dwordx4 a[{224 + 8 * (st % 4) + 4 * hh}:{227 + 8 * (st % 4) + 4 * hh}], {vl16}, {swd}, {s_ow} offen offset:{hh * 1024}', f'D{(st + DW) % NW}') for hh in range(2)] + dw[3:]
            if nb == 0: period(j, loop, (st, 0), misc=dw + da[:1] + list(misc), pre=pre, zero=zero)
            else:
                p.e(f'WAITTAG D{(st + 1) % NW} A{(st + 1) % NB} LGKM0')
                period(j, loop, (st, 1), misc=da[1:] + list(misc), pre=pre, zero=zero)
            return
        if nb == 0:
            period(j, loop, (st, 0), misc=wrd(vwr, (st % NW) * 2048, 1) + dw + da[:AS] + list(misc), pre=pre, zero=zero)
        else:
            p.e(f'WAITTAG D{(st + 1) % NW} A{(st + 1) % NB} LGKM0')
            period(j, loop, (st, 1), misc=wrd(vwr, ((st + 1) % NW) * 2048, 0) + da[AS:] + list(misc), pre=pre, zero=zero)
    p.seg('partA')
    for j in range(PA):
        if ptrace == -1 and j in (0, 1, 5, 7, 9, 13, 15, 21, jf, jf + 1, jc, jc + 1, PM): pf.trace()
        if j < PM: period(j, misc=plan[j], pre=prej[j])
        else: mixed(j, (j - PM) // 2, j % 2, False, misc=plan[j], pre=prej[j], zero=(j < PM + 2))
    if ptrace == -1: pf.trace()
    ST0 = (PA - PM) // 2
    pf.stamp(4)
    p.e(f's_mov_b32 {s_cnt}, {(128 - PA) // 16}')
    p.seg('loop')
    p.e(f'{name}_loop:')
    for j in range(16):
        misc = []; pre = []
        if j in (5, 13):
            pre = [f'WAITTAG KV{1 if j == 5 else 0}', 's_barrier']
        if KS == 0 and j in (5, 6, 13, 14):
            d = kvdma(f's_xor_b32 m0, {s_p}, 49152' if j < 8 else f's_mov_b32 m0, {s_p}', 'KV1' if j < 8 else 'KV0')
            misc = d[:5] if j in (5, 13) else d[5:]
        if KS == 1 and j in (5, 7, 13, 15):
            d = kvdma(f's_xor_b32 m0, {s_p}, 49152' if j < 8 else f's_mov_b32 m0, {s_p}', 'KV1' if j < 8 else 'KV0')
            misc = d[:3] if j in (5, 13) else d[:1] + d[3:]
        if KS == 2 and j % 2 == 1:
            first_ = 5 <= j < 13
            d = kvdma(f's_xor_b32 m0, {s_p}, 49152' if first_ else (f's_mov_b32 m0, {s_p}' if j >= 13 else f's_xor_b32 m0, {s_p}, 32768'), 'KV1' if first_ else 'KV0')
            k = ((j - 5) // 2) % 4
            misc = d[:1] + [d[1 + k]] + (d[5:] if k == 3 else [])
        if TP1 and j == 2: misc = misc + [f's_cmp_eq_u32 {s_cnt}, 1', f's_cselect_b32 {s_t0}, 0, 2.0']
        if TP1 and j in (4, 6, 8): misc = misc + [Ins(f'buffer_load_dword {vpd}, {vtp[j // 2 - 2]}, {(sA, swd, swo)[j // 2 - 2]}, {s_t0} offen', 'pf')]
        if j == 9 and CP2: misc = [Ins(f'buffer_load_dword {vpd}, {vcp}, {scp}, 0 offen', 'pf')]
        if j == 15: misc = misc + [f's_xor_b32 {s_p}, {s_p}, 32768', f'v_xor_b32 {vkA}, 0x8000, {vkA}', f'v_xor_b32 {vkB}, 0x8000, {vkB}']
        if ptrace == -3:
            p.e(f's_memtime {s_pt[2:4]}\ns_waitcnt lgkmcnt(0)\nv_writelane_b32 {vtr}, {s_pt[2]}, {j}')
        mixed(j, ST0 + j // 2, j % 2, True, misc=misc, pre=pre)
    p.e(f's_sub_u32 {s_cnt}, {s_cnt}, 1\ns_cmp_lg_u32 {s_cnt}, 0\ns_cbranch_scc1 {name}_loop')

    p.seg('tail')
    p.e(f'{name}_tail:')
    pf.stamp(5)
    if ptrace == -2: pf.trace()
    p.add([cvt(15, 7), pv(15, 0), pv(15, 1), rsum(1)])
    def lsum():
        p.e(f"""
        v_accvgpr_read_b32 {vsc[0]}, {L[0][0]}
        v_accvgpr_read_b32 {vu0}, {L[0][1]}
        v_accvgpr_read_b32 {vsc[1]}, {L[1][0]}
        v_accvgpr_read_b32 {vu1}, {L[1][1]}
        v_add_f32 {vsc[0]}, {vsc[0]}, {vu0}
        v_add_f32 {vsc[1]}, {vsc[1]}, {vu1}
        """)
    lsum()
    p.e(f"""
    v_cmp_nle_f32 vcc, {vsc[0]}, {s_thr}
    v_cmp_nle_f32 {smask}, {vsc[1]}, {s_thr}
    s_or_b64 vcc, vcc, {smask}
    s_cbranch_vccnz {name}_slow
    """)
    p.seg('epi')
    p.e(f'{name}_epi:')
    LATE0 = ST0 + (128 - PA) // 2
    vs2 = [P[1][0:2], P[1][2:4]]
    vq_ = []
    o_next = NE
    for st_ in range(LATE0, 56):
        if st_ + DW < 56: vq_.append((st_ + DW - NW + 1, wload(st_ + DW)))
        if st_ + DA < 56: vq_.append((st_ + DA - NB + 1, hload(st_ + DA)))
        if o_next < 16: vq_.append((0, oload(o_next, oslot(o_next)[2], 'WO'))); o_next += 1
    assert o_next == 16
    cur = []
    def onevm(st):
        nonlocal cur
        if not cur and vq_ and vq_[0][0] <= st: cur = list(vq_.pop(0)[1])
        if not cur: return False
        while cur:
            x = cur.pop(0); p.add([x])
            if isinstance(x, Ins): break
        while cur and not any(isinstance(y, Ins) for y in cur): p.add([cur.pop(0)])
        return True
    p.e(f"""
    v_rcp_f32 {vsc[0]}, {vsc[0]}
    v_rcp_f32 {vsc[1]}, {vsc[1]}
    s_mul_i32 {s_p}, {s_wr}, 49152
    s_lshl_b32 {s_t0}, {s_wc}, 13
    s_add_u32 {s_p}, {s_p}, {s_t0}
    s_barrier
    v_mul_f32 {vs2[0][0]}, {vsc[0]}, {vg[0]}
    v_mul_f32 {vs2[1][0]}, {vsc[1]}, {vg[1]}
    v_mov_b32 {vs2[0][1]}, {vs2[0][0]}
    v_mov_b32 {vs2[1][1]}, {vs2[1][0]}
    """)
    for q in range(2):
        for f in range(2):
            t_ = Sx[q][8 * f:8 * f + 8]
            if EV: onevm(LATE0)
            for i in range(8): p.e(f'v_accvgpr_read_b32 {t_[i]}, {O[q][8*f+i]}')
            if EV > 1: onevm(LATE0)
            for i in range(4): p.e(f'v_pk_mul_f32 {t_[2*i:2*i+2]}, {t_[2*i:2*i+2]}, {vs2[q]}')
            for i in range(4): p.e(f'v_cvt_pk_bf16_f32 {t_[i]}, {t_[2*i]}, {t_[2*i+1]}')
            p.e(f'buffer_store_dwordx4 {t_[0:4]}, {vo}, {sws}, {(s_ob, s_ob2)[f]} offen offset:{q * 1024}{st_mod}', 'OST')
    vout = C[0][4]; vrw = [C[0][5], C[0][6], C[0][7]]; vrr = C[0][8]
    sk = [s_h1, s_h2, s_hb, s_left]
    vA2 = [[vA[r], Sx[1][3 * r], Sx[1][3 * r + 1], Sx[1][3 * r + 2]] for r in range(4)]
    late2 = lines(f"""
        s_sub_u32 {s_t0}, {s_p}, {s_wb}
        v_add_u32 {vw2[0]}, {s_t0}, {vwr[0]}
        v_add_u32 {vw2[1]}, {s_t0}, {vwr[1]}
        s_lshl_b32 {s_t0}, {s_mt}, 18
        s_lshl_b32 {s_t1}, {s_nt}, 7
        s_add_u32 {s_t0}, {s_t0}, {s_t1}
        s_add_u32 {sout[0]}, {pout[0]}, {s_t0}
        s_addc_u32 {sout[1]}, {pout[1]}, 0
        s_sub_u32 {sout[2]}, {S * D * 2}, {s_t0}
        s_mov_b32 {sout[3]}, 0x00020000
        v_and_b32 {vu1}, 31, {vl}
        s_lshl_b32 {s_t0}, {s_w}, 16
        v_lshl_add_u32 {vout}, {vu1}, 11, {s_t0}
        v_lshrrev_b32 {vu1}, 5, {vl}
        v_lshl_add_u32 {vout}, {vu1}, 4, {vout}
        v_bfe_u32 {vu1}, {vl}, 1, 3
        v_and_b32 {vu2}, 1, {vl}
        v_lshlrev_b32 {vu2}, 2, {vu2}
        v_lshl_add_u32 {vpa}, {vu1}, 4, {vu2}
        s_lshr_b32 {s_t2}, {s_mt}, 1
        s_lshl_b32 {s_t2}, {s_t2}, 9
        s_lshl_b32 {s_t0}, {s_w}, 7
        s_add_u32 {s_t2}, {s_t2}, {s_t0}
        s_and_b32 {s_t0}, {s_mt}, 1
        s_lshl_b32 {s_t0}, {s_t0}, 3
        s_add_u32 {s_t2}, {s_t2}, {s_t0}
        s_mul_i32 {s_t0}, {s_w}, 24576
        v_add_u32 {vrr}, {s_t0}, {vl16}
        s_lshl_b32 {s_t1}, {s_w}, 16
        s_add_u32 {s_t1}, {s_t1}, {224 * 4096}""")
    late2[6:8] = [late2[6:8]]
    for r in range(3):
        late2 += [f'v_lshrrev_b32 {vu1}, 10, {vA[r]}', f'v_mul_u32_u24 {vu1}, 24576, {vu1}', f'v_add_u32 {vu1}, {(2 - r) * 8192}, {vu1}', f'v_add_u32 {vrw[r]}, {vu1}, {vl16}']
    for i in range(4):
        late2 += [f's_add_u32 {sk[i]}, {s_t1}, {i * 16384}']
    for r in range(4):
        for i in range(1, 4): late2.append(f'v_add_u32 {vA2[r][i]}, {i * 4096}, {vA[r]}')
    vtw = [C[1][i] for i in range(4)]; vtr_ = C[1][4]; sf = [0, s_ow, s_oo, s_ob]
    fin_setup = lines(f"""
        s_lshl_b32 {s_t0}, {s_w}, 12
        s_add_u32 {s_t0}, {s_t0}, {QS}
        v_and_b32 {vu1}, 31, {vl}
        v_lshl_add_u32 {vtw[0]}, {vu1}, 7, {s_t0}
        v_lshrrev_b32 {vu2}, 5, {vl}
        v_xor_b32 {vu2}, {vu2}, {vl}
        v_and_b32 {vu2}, 7, {vu2}
        v_lshl_add_u32 {vtw[0]}, {vu2}, 4, {vtw[0]}
        v_xor_b32 {vtw[1]}, 32, {vtw[0]}
        v_xor_b32 {vtw[2]}, 64, {vtw[0]}
        v_xor_b32 {vtw[3]}, 0x60, {vtw[0]}
        v_lshrrev_b32 {vu1}, 3, {vl}
        v_xor_b32 {vu2}, {vu1}, {vl}
        v_and_b32 {vu2}, 7, {vu2}
        v_lshl_add_u32 {vtr_}, {vu1}, 7, {s_t0}
        v_lshl_add_u32 {vtr_}, {vu2}, 4, {vtr_}
        v_and_b32 {vu2}, 7, {vl}
        v_lshlrev_b32 {vu2}, 4, {vu2}
        s_lshl_b32 {s_t0}, {s_w}, 16
        v_lshl_add_u32 {vout}, {vu1}, 11, {s_t0}
        v_add_u32 {vout}, {vout}, {vu2}""") + [f's_mov_b32 {sf[i]}, {i * 16384}' for i in range(1, 4)]
    poll_o = f'buffer_load_dword {vpoll[0]}, {vpa}, {sfl}, {s_t2} offen sc1'
    AB = [Ab[i // 4][i % 4] for i in range(32)]
    abfree = [48 + i // 4 for i in range(32)]
    if PT:
        AB = [Ab[6 + i // 4][i % 4] for i in range(8)]; abfree = [0] * 8
        for b in range(4):
            AB += Ab[b] + Wb[b]; abfree += [52 + b] * 6
    def aload(i):
        r, t = divmod(i, 16)
        return f'buffer_load_dwordx4 {AB[i % 32]}, {vA2[r][t % 4]}, {sA}, {sk[t // 4]} offen{lm2}'
    a_next = 0; side = list(late2); checked = False
    for st in range(LATE0, 56):
        if ptrace == -2: pf.trace()
        n0 = wrd(vwr, (st % NW) * 2048, 1)
        n1 = ([f'WAITTAG D{(st + 1) % NW} A{(st + 1) % NB}'] + wrd(vwr, ((st + 1) % NW) * 2048, 0)) if st < 55 else []
        if st == LATE0 + 1: side = [flag(3, 'FL', 'OST')] + side
        if st == LATE0 + 2: side += [x for t in range(4, NE) for x in woread(t)]
        for c in range(8):
            nb, tb = divmod(c, 4)
            p.e(gm(st, nb, tb if nb == 0 else 3 - tb))
            if c == 0: p.add(n0)
            if c == 4: p.add(n1)
            if st == LATE0 + OC - PO and c == 1:
                assert not any(isinstance(y, str) and (str(vpa) + ',' in y or str(s_t2) + ',' in y) for y in side)
                p.e(poll_o)
            if st == LATE0 + OC and c == 1:
                p.add(check([f'v_cmp_gt_u32 vcc, 3, {vpoll[0]}'], [poll_o], 'o')); checked = True
                if TP2:
                    p.e(f's_and_b32 {s_t0}, {s_nt}, 7\ns_lshl_b32 {s_t0}, {s_t0}, 13\ns_add_u32 {s_t0}, {s_t0}, {sk[0]}\nv_lshlrev_b32 {vu1}, 7, {vl}')
                    p.add([Ins(f'buffer_load_dword {vpd}, {vu1}, {sA}, {s_t0} offen', 'pf')])
            if onevm(st): pass
            elif checked and a_next < AL and abfree[a_next] < st and st >= 56 - ALS:
                assert not any(y in late2 for y in side)
                p.e(aload(a_next)); a_next += 1
            for _ in range(3 if st < LATE0 + 2 else 2):
                if side:
                    x = side.pop(0); p.add(x if isinstance(x, list) else [x])
    assert not cur and not vq_ and checked and not side
    if ptrace == -2: pf.trace()
    pf.stamp(6)
    def scale(r): return [f'v_mul_f32 {acc3[nb][r][i]}, {acc3[nb][r][i]}, {vog[r]}' for nb in range(2) for i in range(16)]
    p.e('WAITTAG WO')
    rds = [x for t in range(NE, 16) for x in woread(t)]
    for k, x in enumerate(scale(0)):
        p.e(x)
        if k % 4 == 1 and rds: p.e(rds.pop(0))
        if k % 8 == 3 and a_next < AL + 4: p.e(aload(a_next)); a_next += 1
    side = []
    for k, x in enumerate(scale(1)):
        side.append(x)
        if rds: side.append(rds.pop(0))
    assert not rds
    def rdpart(sl, dst): return [f'ds_read_b128 {acc3[n_][dst][4*j:4*j+4]}, {vrr} offset:{sl * 8192 + (n_ * 4 + j) * 1024}' for n_ in range(2) for j in range(4)]
    def addpart(src): return [f'v_add_f32 {acc3[n_][0][e]}, {acc3[n_][0][e]}, {acc3[n_][src][e]}' for n_ in range(2) for e in range(16)]
    wr = []; dens = 2
    for i in range(64):
        r, t = divmod(i, 16)
        if ptrace == -2 and i % 8 == 0: pf.trace()
        for nb in range(2):
            if nb == 0:
                if i == 16: side += scale(2)
                if i == 16 + 2:
                    p.e('s_waitcnt lgkmcnt(0)\ns_barrier')
                if i == 32:
                    assert not side
                    side += scale(3); dens = 3 if FT else 2
                if i == 33 and FT:
                    side += fin_setup
                if i == 32 + 11:
                    assert not wr and not side
                    p.e('s_waitcnt lgkmcnt(0)\ns_barrier')
                    side += rdpart(2, 0) + rdpart(1, 1) + [None] * 4 + addpart(1); dens = 3
                if i == 48 + 7:
                    assert not wr and not side
                    p.e('s_waitcnt lgkmcnt(0)\ns_barrier')
                    side += rdpart(0, 2) + [None] * 6 + addpart(2)
            p.e(f'v_mfma_f32_32x32x16_bf16 {acc3[nb][r]}, {WO[t][4*nb:4*nb+4]}, {AB[i % 32]}, {acc3[nb][r]}')
            if a_next < 64 and a_next <= i + 30 and (nb == 0 or a_next < i + ALM): p.e(aload(a_next)); a_next += 1
            if wr and t >= 2 and (nb == 1 or r == 3): p.e(wr.pop(0))
            for _ in range(dens):
                if side:
                    x = side.pop(0)
                    if x: p.e(x)
        if t == 15 and r < 3:
            assert not wr
            wr = [f'ds_write_b128 {vrw[r]}, {acc3[nb][r][4*j:4*j+4]} offset:{(nb * 4 + j) * 1024}' for nb in range(2) for j in range(4)]
    fin = side
    assert a_next == 64
    pf.stamp(7)
    p.add([x for x in fin if x])
    for nb in range(2):
        a_ = acc3[nb][3]
        for jp in range(2):
            for i in range(4 * jp, 4 * jp + 4): p.e(f'v_pk_add_f32 {a_[2*i:2*i+2]}, {a_[2*i:2*i+2]}, {acc3[nb][0][2*i:2*i+2]}')
            o = Sx[0][8 + 4 * jp:12 + 4 * jp] if nb == 0 else P[0][4 * jp:4 * jp + 4]
            for i in range(4): p.e(f'v_cvt_pk_bf16_f32 {o[i]}, {a_[8 * jp + 2 * i]}, {a_[8 * jp + 2 * i + 1]}')
            p.e(f'v_permlane32_swap_b32 {o[0]}, {o[2]}\nv_permlane32_swap_b32 {o[1]}, {o[3]}')
            if FT: p.e(f'ds_write_b128 {vtw[2 * nb + jp]}, {o}')
            else: p.e(f'buffer_store_dwordx4 {o}, {vout}, {sout}, 0 offen offset:{nb * 64 + jp * 32}' + ('', ' sc1', ' nt', ' sc0 sc1')[OUTM])
    if FT:
        p.e('s_waitcnt lgkmcnt(0)')
        for i in range(4): p.e(f'ds_read_b128 {acc3[0][1][4*i:4*i+4]}, {vtr_} offset:{i * 1024}')
        for i in range(4): p.e(f'buffer_store_dwordx4 {acc3[0][1][4*i:4*i+4]}, {vout}, {sout}, {sf[i]} offen' + ('', ' sc1', ' nt', ' sc0 sc1')[OUTM])
    pf.stamp(8)
    pf.flush(s_w, sws, vl, vu0)
    if PRB or PRA:
        p.e(f"""
        v_readlane_b32 {s_t0}, {vtr}, {44 + 2 * PRA}
        v_readlane_b32 {s_t1}, {vtr}, {44 + 2 * PRB}
        v_readlane_b32 {s_t2}, {vtr}, 62
        s_nop 4
        s_sub_u32 {s_t0}, {s_t1}, {s_t0}
        s_min_u32 {s_t0}, {s_t0}, 20000
        s_lshl_b32 {s_t0}, {s_t0}, {PRS}
        s_mov_b32 {s_cnt}, 200000
        {name}_probe:
        s_memrealtime {s_pt[0:2]}
        s_waitcnt lgkmcnt(0)
        s_sub_u32 {s_t1}, {s_pt[0]}, {s_t2}
        s_cmp_ge_u32 {s_t1}, {s_t0}
        s_cbranch_scc1 {name}_probe_done
        s_sub_u32 {s_cnt}, {s_cnt}, 1
        s_cmp_lg_u32 {s_cnt}, 0
        s_cbranch_scc1 {name}_probe
        {name}_probe_done:
        """)
    if dbg > 0:
        p.e(f"""
        v_readlane_b32 {s_t0}, {vtr}, 44
        v_readlane_b32 {s_t1}, {vtr}, 45
        v_and_b32 {vu1}, 1, {vl}
        v_cmp_eq_u32 vcc, 0, {vu1}
        v_mov_b32 {vu1}, {s_t0}
        v_mov_b32 {vu2}, {s_t1}
        v_cndmask_b32 {vu1}, {vu2}, {vu1}, vcc
        v_sub_u32 {vu1}, {vtr}, {vu1}
        v_subrev_u32 {vu2}, 46, {vl}
        v_lshlrev_b32 {vu2}, 2, {vu2}
        v_cmp_gt_u32 vcc, 64, {vu2}
        v_cndmask_b32 {vu2}, 2.0, {vu2}, vcc
        s_mov_b32 {skv[0]}, {pdbg[0]}
        s_mov_b32 {skv[1]}, {pdbg[1]}
        s_movk_i32 {skv[2]}, 64
        s_lshl_b32 {s_t0}, s2, 2
        s_add_u32 {s_t0}, {s_t0}, {s_w}
        s_cmp_eq_u32 {s_t0}, {dbg - 1}
        s_cselect_b32 {s_t0}, 0, 2.0
        buffer_store_dword {vu1}, {vu2}, {skv}, {s_t0} offen
        """)
    p.e('s_endpgm')

    p.seg('slow0')
    p.e(f'{name}_slow:')
    p.e(f"""
    s_waitcnt vmcnt(0) lgkmcnt(0)
    v_mov_b32 {vu0}, 0xff800000
    v_mov_b32 {vu1}, 0xff800000
    s_mov_b32 {s_okv}, 0
    s_mov_b32 {skv[2]}, 262144
    """)
    p.seg('slow1')
    p.e(f'{name}_slow1:')
    for f in range(2): p.e(f'buffer_load_dwordx4 {K[0][4*f:4*f+4]}, {vl16}, {skv}, {s_okv} offen offset:{f * 1024}')
    for q in range(2):
        for f in range(2): p.e(qk(Sx[q], 0, q, f, '0'))
    rowmax(vu0, Sx[0], False); rowmax(vu1, Sx[1], False)
    p.e(f's_add_u32 {s_okv}, {s_okv}, 4096\ns_cmp_lt_u32 {s_okv}, 262144\ns_cbranch_scc1 {name}_slow1')
    p.seg('slow2')
    setc(0, vu0); setc(1, vu1)
    for q in range(2):
        for i in range(16): p.e(f'v_accvgpr_write_b32 {O[q][i]}, 0')
        for i in range(4): p.e(f'v_accvgpr_write_b32 {L[q][i]}, 0')
    p.e(f's_mov_b32 {s_okv}, 0')
    p.seg('slow3')
    p.e(f'{name}_slow3:')
    for f in range(2): p.e(f'buffer_load_dwordx4 {K[0][4*f:4*f+4]}, {vl16}, {skv}, {s_okv} offen offset:{f * 1024}')
    for f in range(2): p.e(f'buffer_load_dwordx4 {V[0][4*f:4*f+4]}, {vl16}, {skv}, {s_okv} offen offset:{2048 + f * 1024}')
    for q in range(2):
        for f in range(2): p.e(qk(Sx[q], 0, q, f, C[q]))
    for q in range(2):
        for i in range(16): p.e(f'v_exp_f32 {Sx[q][i]}, {Sx[q][i]}')
        for i in range(8): p.e(cvt(q, i))
        p.add([pv(q, 0), pv(q, 1), rsum(q)])
    p.e(f's_add_u32 {s_okv}, {s_okv}, 4096\ns_cmp_lt_u32 {s_okv}, 262144\ns_cbranch_scc1 {name}_slow3')
    p.seg('slow4')
    lsum()
    p.e(f's_branch {name}_epi')
    for lab, cond, reload_ in spins:
        p.seg(lab)
        p.e(f'{lab}_spin:\ns_mov_b32 {s_cnt if lab.endswith("cnt") else s_spin}, {SPIN}\n{lab}_again:\ns_sleep 2')
        p.add(reload_)
        p.e('s_waitcnt vmcnt(0)\ns_nop 1')
        p.add(cond)
        r_ = s_cnt if lab.endswith('cnt') else s_spin
        p.e(f's_nop 4\ns_cbranch_vccz {lab}_ok\ns_sub_u32 {r_}, {r_}, 1\ns_cmp_lg_u32 {r_}, 0\ns_cbranch_scc1 {lab}_again\ns_branch {lab}_ok')
    p.seg('end')
    p.e(f'{name}_end:\ns_endpgm')
    mid = ['join', 'partA', 'loop', 'loop', 'tail']
    slow = ['slow0', 'slow1', 'slow1', 'slow2', 'slow3', 'slow3', 'slow4']
    traces = []
    for wc in range(2):
        for x in ([],):
            traces.append(['pro'] + x + [f'c{wc}a', f'c{wc}l1', f'c{wc}l2', f'c{wc}l1', f'c{wc}l2', f'c{wc}l1', f'c{wc}last'] + mid + ['epi'])
    traces.append(mid + slow + ['epi'])
    for lab, _, _ in spins: traces.append([lab])
    p.auto_waits(traces)
    nn = p.hazards(traces)
    return kernel_header(name) + p.text(), kernel_desc(name), dict(nops=nn, v=va.p, a=aa.p, s=max(sa.p, s_hi))

if __name__ == '__main__':
    import sys
    NAME = 'gated_mix__softmax_full_mha__glu_gated_bilinear__prompt'
    REF = f'cdna_kernels/{NAME}.s.ref'
    dst = sys.argv[1]
    kw = {a.split('=')[0]: float(a.split('=')[1]) if '.' in a else int(a.split('=')[1]) for a in sys.argv[2:] if '=' in a}
    t, d, info = gen_fused(NAME + '_kernel', prof='prof' in sys.argv, force_slow='slow' in sys.argv, **kw)
    print(info, file=sys.stderr)
    head = [l for l in open(REF).read().split('\n') if l.startswith(';') and '@launch' not in l]
    doc = '''; One persistent launch, 256 workgroups x 4 waves (one wave per SIMD, 512 registers, 160 KiB LDS).
;   phase 1  x[256 rows] @ [wq_h wk_h wv_h | w_gate 112 cols | w_up 112 cols], 16x16x32 MFMA, LDS-DMA double buffer.
;   phase 2  softmax(QK^T)V for the block's 256 queries (32x32x16 MFMA), interleaved with the down projection of a
'''
    out = '\n'.join(head) + f'\n; @launch grid=(256,1,1) block=(256,1,1) lds={F_LDS}\n' + doc + '.amdgcn_target "amdgcn-amd-amdhsa--gfx950"\n' + t + d
    open(dst, 'w').write(out)
```

```python
from gen_common import *

X0, X1, W0, W1, QS = 0, 32768, 65536, 106496, 147456
F_LDS = 163840
WS_FL = 33 << 20
WS_T = 36 << 20
DBG_CNT = 64
SPIN = 40000

def gen_fused(name, prof=False, pfd=3, cq=8, cg=6.5, cx=4, NB=8, DA=4, DW=3, RP=6, PM=36, HP=1.25, force_slow=False, ptrace=0, dbg=0, exp_=0, VSP=2, PFP=18, OC=8, KP=1, H0=2, ROT=0, CPF=1, OUTM=1, CP0=1, CP2=0, FG=3, TLB=0, EV=1, DL=6, PT=0, GP=0, OWN=1, NOPF=0, XP2=0, PRS=2, TT=1, TP1=0, TP2=0, AL=16, ALS=2, ALM=18, FT=1, PA=48, AS=1, KS=2, PK=0, PKR=1, AW=1, KF=100, KC=5, FOFF=0, S1P=10, MWT=0, LM1=0, LM2=0, PO=3, LP=0, PRE=-1, PF0=0, PD0=3, xpf=1, F0=0, FS=1.0, GD=2, SMC=16, VMC=8, VPEN=16, MW=1, PRA=0, PRB=0, PG=3, E0=11, st_mod=' sc1'):
    pfm = 1
    kv_mod = '' if exp_ & 64 else st_mod
    lm1 = ('', ' sc1', ' nt', ' sc0')[LM1]; lm2 = ('', ' sc1', ' nt', ' sc0')[LM2]
    p = Prog()
    sa = Alloc('s', 4, 102); va = Alloc('v', 1, 256); aa = Alloc('a', 0, 256)
    ptr = sa(16, 4)
    px, pqkv, pwo, pwg, pwu, pwd, pgw = ptr[0:2], ptr[2:4], ptr[4:6], ptr[8:10], ptr[10:12], ptr[12:14], ptr[14:16]
    pod = sa(4, 4); pout, pdbg = pod[0:2], pod[2:4]
    pws = sa(2); smask = sa(2)
    sws = sa(4); sfl = sa(4); sdbg = sa(4)
    s_mb, s_h, s_w, s_wr, s_wc, s_t0, s_t1, s_t2, s_cnt, s_tr, s_hb = [sa() for _ in range(11)]
    s_pt = sa(4, 2)
    s_base = sa.p
    sx = sa(4); sq = sa(4); sg = sa(4); spf = sa(4); sp2 = sa(4); sp3 = sa(4)
    s_c0, s_c1, s_ox, s_oq, s_og, s_pfo, s_pfs, s_gs, s_grp, s_ano = [sa() for _ in range(10)]
    s_mx, s_mw, s_msk = sa(), sa(), sa()
    s_hi = sa.p

    vl, vpd, vflag, vtr, vflk = [va() for _ in range(5)]
    v_base = va.p
    pf = Prof2(p, prof, s_pt, vtr, s_tr)
    vdx = [va() for _ in range(8)]; vdq = [va() for _ in range(2)]; vdq.append(vdq[0]); vdg = [va() for _ in range(7)]
    vxr = [va() for _ in range(2)]; vqr = [va() for _ in range(2)]; vgr = [va() for _ in range(2)]
    vt0, vt1, vt2, vt3, vpf = [va() for _ in range(5)]
    vcnt = va(); vwo = va()
    vtmp = va(28, 4)
    assert vtmp.a == 36
    xlo = [[aa(8, 4) for _ in range(4)] for _ in range(2)]; xhi = [aa(8, 4) for _ in range(4)]
    def xf(st, m, ks): return (xlo[st][m] if m < 4 else xhi[m - 4])[4 * ks:4 * ks + 4]
    NSLOT = 4; DIST = 3
    wf = [aa(8, 4) for _ in range(NSLOT)]
    acc = [[None] * 8 for _ in range(10)]
    for n in [0, 1, 6, 7, 8, 9, 2, 3, 4, 5]:
        for m in range(8):
            acc[n][m] = va(4, 4) if va.p + 4 <= 256 else aa(4, 4)

    def lines(s): return [x.strip() for x in s.strip().split('\n')]
    def dma_x(st):
        L = []
        for i in range(8):
            pre = [f's_add_u32 m0, {s_mx}, {(X0, X1)[st] + (i // 4) * 4096}'] if i % 4 == 0 else []
            L.append((pre, Ins(f'buffer_load_dwordx4 {vdx[i]}, {sx}, {s_ox} offen offset:{(i % 4) * 1024}{lm1} lds', f'S{st}')))
        return L
    def dma_w(st):
        L = []
        for i in range(10):
            pre = [f's_add_u32 m0, {s_mw}, {(W0, W1)[st] + (i // 4) * 4096}'] if i % 4 == 0 else []
            v, sr, so = (vdq[i - 7], sq, s_oq) if i >= 7 else (vdg[i], sg, s_og)
            L.append((pre, Ins(f'buffer_load_dwordx4 {v}, {sr}, {so} offen offset:{(i % 4) * 1024}{lm1} lds', f'S{st}')))
        return L
    def emit(lst):
        for pre, ins in lst:
            p.add(pre); p.add([ins])
    adv = [f's_add_u32 {s_oq}, {s_oq}, {64 * 6144}', f's_add_u32 {s_og}, {s_og}, {64 * 7168}', f's_add_u32 {s_ox}, {s_ox}, 128']

    p.seg('pro')
    p.e(f"""
    s_cmp_ge_u32 s2, 256
    s_cbranch_scc1 {name}_end
    """)
    if ptrace == 3:
        p.e(f's_memtime {s_pt[2:4]}\ns_waitcnt lgkmcnt(0)\ns_mov_b32 {s_hb}, {s_pt[2]}')
    if PRA == -1:
        p.e(f's_memrealtime {s_pt[2:4]}\ns_waitcnt lgkmcnt(0)\ns_mov_b32 {s_hb}, {s_pt[2]}')
    p.e(f"""
    s_load_dwordx16 {ptr}, s[0:1], 0
    s_load_dwordx4 {pod}, s[0:1], 64
    s_load_dwordx2 {pws}, s[0:1], 80
    v_lshrrev_b32 {vt0}, 6, v0
    v_and_b32 {vl}, 63, v0
    s_lshr_b32 {s_t1}, s2, 3
    v_readfirstlane_b32 {s_w}, {vt0}
    s_and_b32 {s_mb}, {s_t1}, 7
    s_and_b32 {s_t0}, s2, 7
    s_lshr_b32 {s_t1}, {s_t1}, 3
    s_lshl_b32 {s_h}, {s_t0}, 2
    s_add_u32 {s_h}, {s_h}, {s_t1}
    s_lshr_b32 {s_wr}, {s_w}, 1
    s_and_b32 {s_wc}, {s_w}, 1
    """)
    vca = vtmp[24:26]
    if CP0:
        p.e(f"""
        s_getpc_b64 {smask}
        {name}_pcs:
        s_lshr_b32 {s_t0}, s2, 3
        s_lshl_b32 {s_t0}, {s_t0}, 2
        s_add_u32 {s_t0}, {s_t0}, {s_w}
        s_lshl_b32 {s_t0}, {s_t0}, 7
        v_and_b32 {vt0}, 1, {vl}
        v_lshl_add_u32 {vt0}, {vt0}, 14, {s_t0}
        v_min_u32 {vt0}, {name}_join-{name}_pcs, {vt0}
        v_mov_b32 {vca[1]}, {smask[1]}
        v_add_co_u32 {vca[0]}, vcc, {smask[0]}, {vt0}
        v_addc_co_u32 {vca[1]}, vcc, 0, {vca[1]}, vcc
        """)
        p.add([Ins(f'global_load_dword {vpd}, {vca}, off', 'pf')])
    vxp, vgp = vtmp[0], vtmp[1]
    if XP2: p.e(f'v_mov_b32 {vtmp[3]}, 2.0')
    p.e(f"""
    v_and_b32 {vt0}, 7, {vl}
    v_lshrrev_b32 {vt1}, 3, {vl}
    v_mul_u32_u24 {vt2}, 86, {vt1}
    v_lshrrev_b32 {vt2}, 8, {vt2}
    v_mad_i32_i24 {vt1}, {vt2}, -3, {vt1}
    v_lshl_add_u32 {vt0}, {vt2}, 6, {vt0}
    s_lshl_b32 {s_t0}, {s_mb}, 3
    v_add_u32 {vt0}, {s_t0}, {vt0}
    s_cmp_eq_u32 {s_w}, 3
    s_movk_i32 {s_c0}, 7168
    s_cmov_b32 {s_c0}, 6144
    s_movk_i32 {s_c1}, 108
    s_cmov_b32 {s_c1}, 2048
    v_mul_u32_u24 {vt0}, {s_c0}, {vt0}
    v_mad_u32_u24 {vxp}, {vt1}, {s_c1}, {vt0}
    v_cmp_gt_u32 vcc, 48, {vl}
    s_lshl_b32 {s_t0}, {s_t1}, 17
    v_lshl_add_u32 {vt0}, {vl}, 11, {s_t0}
    v_cndmask_b32 {vxp}, 2.0, {vxp}, vcc
    s_cmp_eq_u32 {s_w}, 0
    s_cselect_b64 vcc, -1, 0
    v_cndmask_b32 {vxp}, {vxp}, {vt0 if not XP2 else vtmp[3]}, vcc
    """)
    if XP2:
        p.e(f"""
        s_lshl_b32 {s_c0}, {s_w}, 15
        s_add_u32 {s_t0}, {s_t0}, {s_c0}
        v_lshrrev_b32 {vt0}, 1, {vl}
        v_lshl_add_u32 {vt0}, {vt0}, 11, {s_t0}
        v_and_b32 {vt1}, 1, {vl}
        v_lshl_add_u32 {vt0}, {vt1}, 7, {vt0}
        v_cmp_gt_u32 vcc, 32, {vl}
        v_cndmask_b32 {vtmp[4]}, 2.0, {vt0}, vcc
        """)
    x_addr = lines(f"""
    v_lshrrev_b32 {vt0}, 3, {vl}
    v_and_b32 {vt1}, 7, {vl}
    v_lshrrev_b32 {vt2}, 4, {vl}
    v_xor_b32 {vt1}, {vt1}, {vt2}
    v_lshlrev_b32 {vt3}, 11, {vt0}
    s_lshl_b32 {s_c0}, {s_w}, 17
    v_add_u32 {vt3}, {s_c0}, {vt3}
    v_lshl_add_u32 {vdx[0]}, {vt1}, 4, {vt3}
    v_xor_b32 {vt1}, 4, {vt1}
    v_lshl_add_u32 {vdx[1]}, {vt1}, 4, {vt3}
    v_add_u32 {vdx[1]}, {16384 - 1024}, {vdx[1]}
    s_lshl_b32 {s_mx}, {s_w}, 13
    s_mov_b32 {s_ox}, 0""") + [f'v_add_u32 {vdx[i]}, {(i - i % 2) * 16384 - (i % 4 - i % 2) * 1024}, {vdx[i % 2]}' for i in range(2, 8)]
    q_addr = lines(f"""
    v_lshrrev_b32 {vt0}, 2, {vl}
    v_and_b32 {vt2}, 2, {vt2}
    v_and_b32 {vt1}, 3, {vl}
    v_xor_b32 {vt1}, {vt1}, {vt2}
    s_lshl_b32 {s_c0}, {s_w}, 4
    v_add_u32 {vt0}, {s_c0}, {vt0}
    v_mul_u32_u24 {vt0}, 6144, {vt0}
    v_lshl_add_u32 {vdq[1]}, {vt1}, 4, {vt0}
    v_add_u32 {vdq[0]}, 1024, {vdq[1]}
    s_mul_i32 {s_mw}, {s_w}, 10240
    s_mov_b32 {s_oq}, 0
    s_mov_b32 {s_og}, 0""")
    if PRE >= 0: p.add(x_addr + q_addr)
    def gu_offsets():
        L = [lines(f"""
        s_mul_i32 {s_t0}, {s_wc}, {32 * 7168}
        s_movk_i32 {s_c0}, 6944
        s_movk_i32 {s_c1}, 28672
        v_mul_u32_u24 {vt3}, 4682, {vl}
        v_lshl_add_u32 {vtmp[2]}, {vl}, 4, {s_t0}""")]
        for j in range(7):
            tj = vt3; q_ = []
            if j:
                q_.append(f'v_add_u32 {vt0}, {64 * j * 4682}, {vt3}'); tj = vt0
            q_ += lines(f"""
            v_bfe_u32 {vt1}, {tj}, 18, 1
            v_bfe_u32 {vt2}, {tj}, 19, 1
            v_lshrrev_b32 {vt0}, 16, {tj}
            v_sub_u32 {vt1}, {vt1}, {vt2}
            v_mad_u32_u24 {vdg[j]}, {vt0}, {s_c0}, {vtmp[2]}
            v_mad_i32_i24 {vdg[j]}, {vt1}, {s_c1}, {vdg[j]}""")
            if j == 3: q_.append(f'v_add_u32 {vtmp[2]}, 4096, {vtmp[2]}')
            L.append(q_)
        return L
    gu = gu_offsets()
    if PRE >= 1:
        for q_ in gu: p.add(q_)
    PD = pfd
    gpf_addr = lines(f"""
        s_cmp_eq_u32 {s_w}, 0
        s_cselect_b32 {s_grp}, 12, 14
        s_lshl_b32 {s_pfs}, {s_grp}, 15
        s_cmp_eq_u32 {s_w}, 3
        s_cselect_b32 {s_grp}, 8, {s_grp}
        s_cselect_b32 {s_pfs}, 0x80, {s_pfs}
        s_cselect_b32 {s_ano}, 11, 7
        s_mul_i32 {s_t1}, {s_grp}, s2
        v_and_b32 {vt1}, 15, {vl}
        v_add_u32 {vt0}, {s_t1}, {vt1}
        v_lshlrev_b32 {vpf}, {s_ano}, {vt0}
        v_lshrrev_b32 {vt0}, 4, {vl}
        v_mul_lo_u32 {vt0}, {vt0}, {s_pfs}
        v_add_u32 {vgp}, {vt0}, {vpf}
        v_cmp_gt_u32 vcc, {s_grp}, {vt1}
        v_cmp_gt_u32 {smask}, {16 * (PD0 - 1)}, {vl}
        s_and_b64 {smask}, {smask}, vcc
        v_cndmask_b32 {vgp}, 2.0, {vgp}, {smask}
        v_cmp_gt_u32 vcc, {s_grp}, {vl}
        s_mul_i32 {s_pfo}, {s_pfs}, {PD0}
        v_cndmask_b32 {vpf}, 2.0, {vpf}, vcc""")
    gpf_issue = lines(f"""
        s_cmp_eq_u32 {s_w}, 0
        s_cselect_b64 {spf[0:2]}, {pqkv}, {pwg}
        s_cmp_eq_u32 {s_w}, 2
        s_cselect_b64 {spf[0:2]}, {pwu}, {spf[0:2]}
        s_cmp_eq_u32 {s_w}, 3
        s_cselect_b64 {spf[0:2]}, {px}, {spf[0:2]}
        s_lshl_b32 {spf[2]}, {s_grp}, 19""") + [Ins(f'buffer_load_dword {vpd}, {vgp}, {spf}, {s_pfs} offen', 'pf')]
    if OWN:
        gpf_addr = lines(f"""
        s_cmp_eq_u32 {s_w}, 3
        s_mov_b32 {s_pfs}, {64 * 7168}
        s_cmov_b32 {s_pfs}, {64 * 6144}
        v_cmp_gt_u32 vcc, 24, {vl}
        s_lshl_b32 {s_t1}, s2, 14
        v_and_b32 {vt1}, 7, {vl}
        v_cndmask_b32 {vpf}, 2.0, {vxp}, vcc
        v_lshl_add_u32 {vt0}, {vt1}, 11, {s_t1}
        v_lshrrev_b32 {vt1}, 3, {vl}
        v_lshl_add_u32 {vgp}, {vt1}, 7, {vt0}
        v_cmp_gt_u32 vcc, 8, {vl}
        v_cmp_gt_u32 {smask}, {8 * (PD0 - 1)}, {vl}
        v_cndmask_b32 {vt0}, 2.0, {vt0}, vcc
        v_cndmask_b32 {vgp}, 2.0, {vgp}, {smask}
        s_cmp_eq_u32 {s_w}, 0
        s_cselect_b64 vcc, -1, 0
        s_cselect_b32 {s_pfs}, 0x80, {s_pfs}
        s_cselect_b64 {spf[0:2]}, {px}, {spf[0:2]}
        s_cselect_b32 {spf[2]}, {S * D * 2}, {spf[2]}
        s_cselect_b32 {s_t0}, 1, 2
        v_cndmask_b32 {vpf}, {vpf}, {vt0}, vcc
        v_cndmask_b32 {vgp}, {vpf}, {vgp}, vcc
        s_mul_i32 {s_t0}, {s_t0}, {s_pfs}
        s_mul_i32 {s_pfo}, {s_pfs}, {PD0}""")
        if OWN == 2:
            gpf_addr = lines(f"""
            s_cmp_eq_u32 {s_w}, 3
            s_mov_b32 {s_pfs}, {64 * 7168}
            s_cmov_b32 {s_pfs}, {64 * 6144}
            s_cmp_eq_u32 {s_w}, 0
            s_cselect_b32 {s_t1}, 64, 24
            s_cselect_b32 {s_pfs}, 0x80, {s_pfs}
            s_cselect_b32 {s_t0}, 1, 2
            v_cmp_gt_u32 vcc, {s_t1}, {vl}
            s_mul_i32 {s_t0}, {s_t0}, {s_pfs}
            s_add_u32 {s_pfo}, {s_t0}, {s_pfs}
            v_cndmask_b32 {vpf}, 2.0, {vxp}, vcc
            v_mov_b32 {vgp}, {vpf}""")
        assert PD0 == 3 and PRE < 2 and not PF0 and not XP2
        gpf_issue = [Ins(f'buffer_load_dword {vpd}, {vgp}, {spf}, {s_t0} offen', 'pf')]
    def pfetch():
        if NOPF & 1: return []
        return [Ins(f'buffer_load_dword {vpd}, {vpf}, {spf}, {s_pfo} offen', 'pf'), f's_add_u32 {s_pfo}, {s_pfo}, {s_pfs}']
    def pfetch_d():
        if NOPF & 2: return []
        return [Ins(f'buffer_load_dword {vpd}, {vt3}, {sp2}, {s_c1} offen', 'pf'), f's_add_u32 {s_c1}, {s_c1}, {1024 * DL * 128}']
    rd_addr = lines(f"""
    v_and_b32 {vt0}, 15, {vl}
    v_lshrrev_b32 {vt1}, 4, {vl}
    v_lshrrev_b32 {vt2}, 1, {vt0}
    v_xor_b32 {vt2}, {vt1}, {vt2}
    s_lshl_b32 {s_t0}, {s_wr}, 14
    v_lshl_add_u32 {vt3}, {vt0}, 7, {s_t0}
    v_lshl_add_u32 {vxr[0]}, {vt2}, 4, {vt3}
    v_xor_b32 {vxr[1]}, 64, {vxr[0]}
    v_and_b32 {vt3}, 3, {vt0}
    v_lshlrev_b32 {vt3}, 3, {vt3}
    v_lshrrev_b32 {vt0}, 2, {vt0}
    v_lshrrev_b32 {vt2}, 1, {vt1}
    v_and_b32 {vt1}, 1, {vt1}
    v_mul_u32_u24 {vqr[0]}, 10240, {vt2}
    v_mul_u32_u24 {vqr[1]}, {512 + 32}, {vt1}
    v_add3_u32 {vqr[0]}, {vqr[0]}, {vqr[1]}, {vt3}
    v_lshl_add_u32 {vqr[0]}, {vt0}, 6, {vqr[0]}
    s_lshl_b32 {s_t0}, {s_wc}, 10
    s_sub_u32 {s_t0}, {W0 + 8192}, {s_t0}
    v_add_u32 {vqr[0]}, {s_t0}, {vqr[0]}
    v_xor_b32 {vqr[1]}, 32, {vqr[0]}
    v_lshl_add_u32 {vt0}, {vt1}, 2, {vt0}
    v_lshl_add_u32 {vt0}, {vt2}, 4, {vt0}
    v_mul_u32_u24 {vt0}, 224, {vt0}
    s_mul_i32 {s_t0}, {s_wc}, 96
    s_add_u32 {s_t0}, {s_t0}, {W0}
    v_add3_u32 {vgr[0]}, {vt0}, {vt3}, {s_t0}
    v_add_u32 {vgr[1]}, 20480, {vgr[0]}""")
    if PRE >= 2 or PF0: p.add(gpf_addr)
    if PRE >= 3: p.add(rd_addr)
    p.e(f"""
    s_lshl_b32 {s_t0}, {s_mb}, 19
    s_lshl_b32 {s_t1}, {s_h}, 6
    s_mul_i32 {s_t2}, {s_h}, 224
    s_mov_b32 {sx[3]}, 0x00020000
    s_mov_b32 {sq[3]}, 0x00020000
    s_mov_b32 {sg[3]}, 0x00020000
    s_mov_b32 {spf[3]}, 0x00020000
    s_sub_u32 {sx[2]}, {S * D * 2}, {s_t0}
    s_sub_u32 {sq[2]}, {D * 3072 * 2}, {s_t1}
    s_sub_u32 {sg[2]}, {D * F * 2}, {s_t2}
    s_waitcnt lgkmcnt(0)
    """)
    pf.stamp(0)
    pf.trace_init(vtr, s_tr)
    if PRA == -1: p.e(f'v_writelane_b32 {vtr}, {s_hb}, 42')
    if ptrace == 3:
        p.e(f'v_writelane_b32 {vtr}, {s_hb}, 0\ns_mov_b32 {s_tr}, 1')
        pf.trace()
    p.e(f"""
    s_add_u32 {sx[0]}, {px[0]}, {s_t0}
    s_addc_u32 {sx[1]}, {px[1]}, 0
    s_add_u32 {sq[0]}, {pqkv[0]}, {s_t1}
    s_addc_u32 {sq[1]}, {pqkv[1]}, 0
    s_cmp_ge_u32 {s_w}, 2
    s_cselect_b64 {sg[0:2]}, {pwu}, {pwg}
    s_add_u32 {sg[0]}, {sg[0]}, {s_t2}
    s_addc_u32 {sg[1]}, {sg[1]}, 0
    s_cmp_eq_u32 {s_w}, 3
    s_cselect_b64 {spf[0:2]}, {sq[0:2]}, {sg[0:2]}
    s_cselect_b32 {spf[2]}, {sq[2]}, {sg[2]}
    s_cmp_eq_u32 {s_w}, 0
    s_cselect_b64 {spf[0:2]}, {sx[0:2]}, {spf[0:2]}
    s_cselect_b32 {spf[2]}, {sx[2]}, {spf[2]}
    """)
    if XP2: p.add([Ins(f'buffer_load_dword {vpd}, {vtmp[4]}, {sx}, 0 offen', 'pf')])
    if xpf: p.add([Ins(f'buffer_load_dword {vpd}, {vxp}, {spf}, 0 offen', 'pf')])
    if PF0: p.add(gpf_issue)
    if ptrace > 0: pf.trace()
    if PRE < 0: p.add(x_addr)
    emit(dma_x(0))
    if ptrace > 0: pf.trace()
    if PRE < 0: p.add(q_addr)
    w0 = dma_w(0)
    p.e(f's_add_u32 m0, {s_mw}, {W0 + 4096}')
    emit(w0[7:])
    if PRE < 1: p.add(gu[0])
    for j in range(7):
        if PRE < 1: p.add(gu[j + 1])
        emit([w0[j]])
    p.add(adv)
    if ptrace > 0: pf.trace()
    emit((dma_w(1) + dma_x(1))[:S1P])
    if PRE < 2 and not PF0 and not NOPF & 4: p.add(gpf_addr)
    if not PF0 and not NOPF & 4: p.add(gpf_issue)
    if PRE < 3: p.add(rd_addr)
    gx = [vtmp[4 * i:4 * i + 4] for i in range(4)]; gw = [vtmp[16:20], vtmp[20:24]]; t = vtmp[24:28]; z = [vt0, vt1]
    flag_setup = [[f's_add_u32 {sfl[0]}, {pws[0]}, {WS_FL}', f's_addc_u32 {sfl[1]}, {pws[1]}, 0']] + lines(f"""
    s_movk_i32 {sfl[2]}, 8192
    s_mov_b32 {sfl[3]}, 0x00020000
    s_mov_b32 {sws[0]}, {pws[0]}
    s_mov_b32 {sws[1]}, {pws[1]}
    s_mov_b32 {sws[2]}, {WS_SIZE}
    s_mov_b32 {sws[3]}, 0x00020000
    s_mov_b32 {sp2[3]}, 0x00020000
    s_lshl_b32 {s_t0}, {s_mb}, 5
    s_add_u32 {s_t0}, {s_t0}, {s_h}
    s_lshl_b32 {s_gs}, {s_t0}, 7
    s_lshl_b32 {s_t0}, {s_t0}, 2
    s_add_u32 {s_t0}, {s_t0}, {s_w}
    s_lshl_b32 {s_t0}, {s_t0}, 2
    v_mov_b32 {vt0}, {s_t0}
    v_cmp_eq_u32 vcc, 0, {vl}
    v_mov_b32 {vt3}, 0
    v_cndmask_b32 {vflag}, 2.0, {vt0}, vcc
    s_lshl_b32 {s_t0}, {s_h}, 3
    s_add_u32 {s_t0}, {s_t0}, {s_mb}
    s_lshl_b32 {s_t0}, {s_t0}, 2
    s_add_u32 {s_t0}, {s_t0}, {s_w}
    s_lshl_b32 {s_t0}, {s_t0}, 2
    s_add_u32 {s_t0}, {s_t0}, 4096
    v_mov_b32 {vt0}, {s_t0}
    buffer_store_dword {vt3}, {vflag}, {sfl}, 0 offen sc1
    v_cndmask_b32 {vflk}, 2.0, {vt0}, vcc
    s_lshl_b32 {s_t1}, {s_w}, 3
    buffer_store_dword {vt3}, {vflk}, {sfl}, 0 offen sc1
    s_add_u32 {s_gs}, {s_gs}, {s_t1}
    s_add_u32 {s_gs}, {s_gs}, {WS_G}
    s_lshl_b32 {s_t0}, {s_h}, 3
    s_lshl_b32 {s_t1}, {s_w}, 1
    s_add_u32 {s_t0}, {s_t0}, {s_t1}
    s_lshl_b32 {s_t2}, {s_t0}, 11
    s_mov_b32 {s_msk}, 0xffff0000
    v_lshlrev_b32 {z[0]}, 5, {vl}""")
    if ptrace > 0: pf.trace()
    p.e('WAITTAG S0')
    if ptrace > 0: pf.trace()
    p.e('s_barrier')
    if ptrace > 0: pf.trace()
    pf.stamp(1)

    def gate_ops():
        L = []
        for r in range(2):
            for j in range(8):
                xr = gx[2 * r + j // 4][j % 4]; wr_ = gw[j // 4][j % 4]
                L += [f'v_lshlrev_b32 {t[0]}, 16, {xr}', f'v_lshlrev_b32 {t[1]}, 16, {wr_}',
                      f'v_and_b32 {t[2]}, {s_msk}, {xr}', f'v_and_b32 {t[3]}, {s_msk}, {wr_}',
                      f'v_mul_f32 {t[0]}, {t[0]}, {t[1]}', f'v_mul_f32 {t[2]}, {t[2]}, {t[3]}',
                      f'v_cvt_pk_bf16_f32 {t[0]}, {t[0]}, {t[2]}', f'v_lshlrev_b32 {t[1]}, 16, {t[0]}',
                      f'v_and_b32 {t[2]}, {s_msk}, {t[0]}']
                if j == 0: L.append(f'v_add_f32 {z[r]}, {t[1]}, {t[2]}')
                else: L += [f'v_add_f32 {t[1]}, {t[1]}, {t[2]}', f'v_add_f32 {z[r]}, {z[r]}, {t[1]}']
        for mode in ('quad_perm:[1,0,3,2]', 'quad_perm:[2,3,0,1]', 'row_half_mirror', 'row_mirror'):
            for r in range(2): L.append(f'v_add_f32_dpp {z[r]}, {z[r]}, {z[r]} {mode} row_mask:0xf bank_mask:0xf')
        for op in ('v_permlane16_swap_b32', 'v_permlane32_swap_b32'):
            for r in range(2): L.append(f'v_mov_b32 {t[r]}, {z[r]}')
            for r in range(2): L.append(f'{op} {t[r]}, {z[r]}')
            for r in range(2): L.append(f'v_add_f32 {z[r]}, {z[r]}, {t[r]}')
        L += f"""v_and_b32 {t[1]}, 1, {vl}
        v_cmp_eq_u32 vcc, 1, {t[1]}
        v_and_b32 {t[3]}, 2, {vl}
        v_cndmask_b32 {t[0]}, {z[0]}, {z[1]}, vcc
        v_cvt_pk_bf16_f32 {t[0]}, {t[0]}, {t[0]}
        v_and_b32 {t[0]}, {s_msk}, {t[0]}
        v_mul_f32 {t[0]}, {hex(f32bits(-math.log2(math.e)))}, {t[0]}
        v_exp_f32 {t[0]}, {t[0]}
        v_cmp_eq_u32 vcc, 2, {t[3]}
        v_add_f32 {t[0]}, 1.0, {t[0]}
        v_rcp_f32 {t[0]}, {t[0]}
        v_lshlrev_b32 {t[3]}, 4, {t[3]}
        v_cvt_pk_bf16_f32 {t[0]}, {t[0]}, {t[0]}
        v_and_b32 {t[0]}, {s_msk}, {t[0]}
        v_sub_f32 {t[2]}, 1.0, {t[0]}
        v_cvt_pk_bf16_f32 {t[2]}, {t[2]}, {t[2]}
        v_and_b32 {t[2]}, {s_msk}, {t[2]}
        v_cndmask_b32 {t[0]}, {t[0]}, {t[2]}, vcc
        v_lshl_add_u32 {t[3]}, {t[1]}, 2, {t[3]}
        v_cmp_gt_u32 vcc, 4, {vl}
        v_cndmask_b32 {t[3]}, 2.0, {t[3]}, vcc
        buffer_store_dword {t[0]}, {t[3]}, {sws}, {s_gs} offen{st_mod}""".split('\n')
        return [x.strip() for x in L]

    def wread(n, st, wc):
        slot = wf[(10 * st + n) % NSLOT]
        nq = 4 if wc == 0 else 2
        L = []
        for ks in range(2):
            if n < nq: base = vqr[n % 2]; off = ks * 20480 + (1024 if (wc == 0 and n < 2) else 0); so = 256
            else: base = vgr[(n - nq) % 2]; off = ks * 10240 + ((n - nq) // 2) * 32; so = 1792
            off += st * (W1 - W0)
            L += [f'ds_read_b64_tr_b16 {slot[4 * ks + 2 * s:4 * ks + 2 * s + 2]}, {base} offset:{off + s * so}' for s in range(2)]
        return L
    def xread(m, ks, st):
        return f'ds_read_b128 {xf(st, m, ks)}, {vxr[ks]} offset:{st * (X1 - X0) + m * 2048}'

    for m in range(2):
        for ks in range(2): p.e(xread(m, ks, 0))
    p.e(f's_cmp_eq_u32 {s_wc}, 1')
    p.e(f's_cbranch_scc1 {name}_c1')

    def stage(st, wc, first=False, last=False, extra=None, fill=None, estep=2, postbar=None, nodma1=False, early=None, dens=2):
        slots = {}
        for j in range(10):
            jj = j + DIST
            if jj < 10: rd = wread(jj, st, wc)
            elif last: continue
            else: rd = wread(jj - 10, st ^ 1, wc)
            for i, x in enumerate(rd): place(slots, 16 * j + ((0, 2, 4, 6) if j < 9 else (0, 11, 13, 15))[i], x)
        bar = 16 * (10 - DIST)
        if not last:
            for i in range(8): place(slots, bar + 8 + (0, 2, 4, 6, 16, 18, 20, 22)[i], xread(i // 2, i % 2, st ^ 1))
            for i in range(8): place(slots, 144 + (2, 3, 4, 5, 7, 8, 9, 10)[i], xread(7 - i // 2, i % 2, st ^ 1))
        pos = []; c = 1.0
        for k in range(18):
            pos.append(int(c)); c += cg if k < 7 else (cq if k < 10 else cx)
        endc = int(c) - (160 - bar)
        pos0 = pos
        if first:
            sh = pos[S1P] - 1
            pos = [(int(F0 + (x - sh) * FS) + 160 - bar) if k >= S1P else -1 for k, x in enumerate(pos)]; endc = int(F0 + (endc + 160 - bar - sh) * FS)
        if not last:
            dl = dma_w(st ^ 1) + dma_x(st ^ 1)
            for k in range(18):
                c = pos[k] - (160 - bar)
                if c < 0: continue
                for x in dl[k][0]: place(slots, max(c - 1, 0), x)
                place(slots, c, dl[k][1])
            for i, x in enumerate(adv): place(slots, endc - 2 + i, x)
            if first: pos = pos0
            dl = dma_w(st) + dma_x(st)
            for k in range(18):
                c = bar + pos[k]
                if c >= 160 or nodma1: continue
                for x in dl[k][0]: place(slots, c - 1, x)
                place(slots, c, dl[k][1])
        if early:
            c = (pos[PFP] - (0 if first else 160 - bar) - 2) if PFP < 18 else endc + 1
            for x in early: place(slots, max(c, 0), x); c += 1
            if PFP >= 18: endc = c + 1
        c = endc + 1
        for x in (extra or []):
            if isinstance(x, list):
                for y in x: place(slots, c, y)
                c += estep; continue
            place(slots, c, x)
            c += 3 if (isinstance(x, Ins) or x.startswith('buffer')) else estep
        assert c < bar
        for i, x in enumerate(postbar or []):
            for y in (x if isinstance(x, list) else [x]):
                if y is not None: place(slots, bar + 3 + 2 * i, y)
        if FOFF:
            for c in sorted(slots):
                if c % 2 == 0 and c + 1 < 160 and len(slots.get(c + 1, [])) + len(slots[c]) <= FOFF:
                    slots[c + 1] = slots[c] + slots.get(c + 1, []); slots[c] = []
        fill = [x if isinstance(x, tuple) else (0, x) for x in (fill or [])]
        for c in range(160):
            n, r = divmod(c, 16); mi, ks = divmod(r, 2)
            m = mi if n % 2 == 0 else 7 - mi
            if c == bar and not last:
                p.e(f'WAITTAG S{st ^ 1} LGKM0')
                p.e('s_barrier')
                if ptrace > 1: pf.trace()
            if MWT and not first and c == 8: p.e('s_waitcnt lgkmcnt(4)')
            if MWT and r == 0 and 0 < n and c != bar and not (first and n < 3) and not last: p.e(f's_waitcnt lgkmcnt({8 if n <= 7 else 12})')
            w = wf[(10 * st + n) % NSLOT][4 * ks:4 * ks + 4]; x = xf(st, m, ks)
            a, b = (x, w) if (wc == 1 and n < 2) else (w, x)
            cin = '0' if (first and ks == 0) else str(acc[n][m])
            p.e(f'v_mfma_f32_16x16x32_bf16 {acc[n][m]}, {a}, {b}, {cin}')
            here = slots.get(c, [])
            p.add(here)
            if c >= 1:
                for _ in range(min(dens, 2 - len(here))):
                    if fill and fill[0][0] <= c:
                        x = fill.pop(0)[1]; p.add(x if isinstance(x, list) else [x])
        return [x[1] for x in fill]

    def toreg(tile, tmp):
        if tile.k == 'v': return tile
        for i in range(4): p.e(f'v_accvgpr_read_b32 {tmp[i]}, {tile[i]}')
        return tmp
    def pack(o, t0, t1):
        p.e(f'v_cvt_pk_bf16_f32 {o[0]}, {t0[0]}, {t0[1]}\nv_cvt_pk_bf16_f32 {o[1]}, {t0[2]}, {t0[3]}')
        p.e(f'v_cvt_pk_bf16_f32 {o[2]}, {t1[0]}, {t1[1]}\nv_cvt_pk_bf16_f32 {o[3]}, {t1[2]}, {t1[3]}')

    def pf_setup():
        L = f"""s_lshl_b32 {s_t0}, s2, 2
        s_add_u32 {s_t0}, {s_t0}, {s_w}
        s_mul_i32 {s_t1}, {s_t0}, {DL * 128}
        v_lshl_add_u32 {vt3}, {vl}, 7, {s_t1}
        v_cmp_gt_u32 vcc, {DL}, {vl}
        s_mov_b32 {sp2[0]}, {pwd[0]}
        s_mov_b32 {sp2[1]}, {pwd[1]}
        s_mov_b32 {sp2[2]}, {F * D * 2}
        v_cndmask_b32 {vt3}, 2.0, {vt3}, vcc
        s_mov_b32 {s_c1}, 0""".split('\n')
        return [x.strip() for x in L]
    def tp_setup():
        a_, b_ = vtmp[27], vtmp[26]
        return lines(f"""
        s_lshl_b32 {s_t0}, s2, 2
        s_add_u32 {s_t0}, {s_t0}, {s_w}
        s_lshr_b32 {s_t1}, {s_t0}, 4
        s_lshl_b32 {s_c1}, {s_t1}, 15
        s_lshl_b32 {s_c0}, {s_t1}, 12
        s_and_b32 {s_t0}, {s_t0}, 15
        s_lshr_b32 {s_t1}, {s_t0}, 1
        s_mul_i32 {s_t1}, {s_t1}, {224 * 4096}
        s_add_u32 {s_c0}, {s_c0}, {s_t1}
        s_and_b32 {s_t1}, {s_t0}, 1
        s_lshl_b32 {s_t1}, {s_t1}, 11
        s_add_u32 {s_c0}, {s_c0}, {s_t1}
        s_add_u32 {s_c0}, {s_c0}, {WS_T}
        s_lshl_b32 {s_t0}, {s_t0}, 7
        s_mov_b32 {sp2[0]}, {pwd[0]}
        s_mov_b32 {sp2[1]}, {pwd[1]}
        s_mov_b32 {sp2[2]}, {F * D * 2}
        v_lshrrev_b32 {a_}, 3, {vl}
        v_and_b32 {b_}, 2, {a_}
        v_lshlrev_b32 {b_}, 1, {b_}
        v_and_b32 {vt3}, 7, {vl}
        v_xor_b32 {b_}, {b_}, {vt3}
        v_lshl_add_u32 {b_}, {b_}, 4, {s_t0}
        v_lshl_add_u32 {vt3}, {a_}, 11, {b_}
        s_lshl_b32 {s_t0}, {s_w}, 12
        s_add_u32 {s_t0}, {s_t0}, {QS}
        v_lshrrev_b32 {a_}, 5, {vl}
        v_lshl_add_u32 {vtmp[24]}, {a_}, 10, {s_t0}
        v_bfe_u32 {a_}, {vl}, 2, 2
        v_lshl_add_u32 {vtmp[24]}, {a_}, 7, {vtmp[24]}
        v_bfe_u32 {a_}, {vl}, 3, 1
        v_lshl_add_u32 {vtmp[24]}, {a_}, 6, {vtmp[24]}
        v_bfe_u32 {a_}, {vl}, 4, 1
        v_lshl_add_u32 {vtmp[24]}, {a_}, 5, {vtmp[24]}
        v_and_b32 {a_}, 3, {vl}
        v_lshl_add_u32 {vtmp[24]}, {a_}, 3, {vtmp[24]}
        v_xor_b32 {vtmp[25]}, 64, {vtmp[24]}
        v_lshlrev_b32 {vtmp[26]}, 4, {vl}
        s_lshl_b32 {s_t0}, s2, 2
        s_add_u32 {s_t0}, {s_t0}, {s_w}
        s_and_b32 {s_t0}, {s_t0}, 15
        s_lshl_b32 {s_t0}, {s_t0}, 7
        v_lshl_add_u32 {a_}, {vl}, 11, {s_t0}
        v_cmp_gt_u32 vcc, 16, {vl}
        v_cndmask_b32 {a_}, 2.0, {a_}, vcc""") + [tp_touch()]
    def tp_touch():
        return Ins(f'buffer_load_dword {vpd}, {vtmp[27]}, {sp2}, {s_c1} offen', 'pf')
    def tp_load():
        return [f's_lshr_b32 {s_t0}, {s_mx}, 1', f's_add_u32 m0, {s_t0}, {QS}', f's_add_u32 {s_t1}, {s_c1}, {8 * 2048 - 1024}',
                Ins(f'buffer_load_dwordx4 {vt3}, {sp2}, {s_c1} offen lds', 'TP'), Ins(f'buffer_load_dwordx4 {vt3}, {sp2}, {s_t1} offen offset:1024 lds', 'TP')]
    def tp_store():
        L = ['WAITTAG TP'] + [f'ds_read_b64_tr_b16 {vtmp[4 * nb + 2 * s_:4 * nb + 2 * s_ + 2]}, {vtmp[24 + nb]} offset:{s_ * 512}' for nb in range(2) for s_ in range(2)]
        L = [L[:2]] + L[2:]
        L += [[f's_cmp_lt_u32 {s_c1}, {224 * 32768}', f's_cselect_b32 {s_t0}, {s_c0}, 2.0'], f's_add_u32 {s_c1}, {s_c1}, {64 * 32768}', f's_add_u32 {s_c0}, {s_c0}, {64 * 4096}', None, None]
        L += [Ins(f'buffer_store_dwordx4 {vtmp[4 * nb:4 * nb + 4]}, {vtmp[26]}, {sws}, {s_t0} offen offset:{nb * 1024}{st_mod}', 'HST') for nb in range(2)]
        if TT: L.insert(7, tp_touch())
        return L
    def pf3_setup():
        L = f"""s_mov_b32 {sp3[0]}, {pgw[0]}
        s_mov_b32 {sp3[1]}, {pgw[1]}
        s_movk_i32 {sp3[2]}, 2048
        s_mov_b32 {sp3[3]}, 0x00020000
        v_lshlrev_b32 {vwo}, 7, {vl}""".split('\n')
        L2 = f"""s_lshl_b32 {s_t0}, s2, 2
        s_add_u32 {s_t0}, {s_t0}, {s_w}
        s_lshl_b32 {s_t1}, {s_t0}, 11
        v_lshl_add_u32 {vwo}, {vl}, 7, {s_t1}
        v_cmp_gt_u32 {smask}, 16, {vl}
        s_mov_b32 {sp3[0]}, {pwo[0]}
        s_mov_b32 {sp3[1]}, {pwo[1]}
        s_mov_b32 {sp3[2]}, {D * D * 2}
        v_cndmask_b32 {vwo}, 2.0, {vwo}, {smask}""".split('\n')
        return [x.strip() for x in L] + [Ins(f'buffer_load_dword {vpd}, {vwo}, {sp3}, 0 offen', 'pf')] + [x.strip() for x in L2]
    def tlb_touch():
        return [f's_cmp_eq_u32 {s_w}, 1', f's_cselect_b32 {sp2[0]}, {pout[0]}, {pws[0]}', f's_cselect_b32 {sp2[1]}, {pout[1]}, {pws[1]}',
                f's_mov_b32 {sp2[2]}, {34 << 20}', f's_cmov_b32 {sp2[2]}, {S * D * 2}', f's_cmp_lt_u32 {s_w}, 2', f's_cselect_b32 {s_t0}, 0, 2.0',
                f'v_lshlrev_b32 {vt3}, 20, {vl}', Ins(f'buffer_load_dword {vpd}, {vt3}, {sp2}, {s_t0} offen sc1', 'pf')]
    def tlb_touch2():
        L = tlb_touch()
        return [L[0:5], L[5:7]] + L[7:]
    pf_wo = [f's_cmp_eq_u32 {s_cnt}, 2', f's_cselect_b32 {s_t0}, 0, 2.0', Ins(f'buffer_load_dword {vpd}, {vwo}, {sp3}, {s_t0} offen', 'pf')]
    gate_sel = [f's_cmp_eq_u32 {s_cnt}, 0', f's_cselect_b32 {s_t0}, {s_t2}, 2.0', f's_cselect_b32 {s_t1}, 0, 2.0',
                f's_cselect_b32 {sp3[0]}, {pgw[0]}, {sp3[0]}', f's_cselect_b32 {sp3[1]}, {pgw[1]}, {sp3[1]}', f's_cselect_b32 {sp3[2]}, 0x800, {sp3[2]}']
    gate_loads = [f'buffer_load_dwordx4 {gw[i]}, {z[0]}, {sp3}, {s_t1} offen offset:{16 * i}' for i in range(2)] + \
                 [f'buffer_load_dwordx4 {gx[i]}, {z[0]}, {sx}, {s_t0} offen offset:{(i // 2) * 2048 + (i % 2) * 16}' for i in range(4)]

    spins = []
    def check(cond_lines, reload_lines, tag):
        lab = f'{name}_{tag}'
        spins.append((lab, cond_lines, reload_lines))
        return cond_lines + [f's_cbranch_vccnz {lab}_spin', f'{lab}_ok:']

    def lines(s): return [x.strip() for x in s.strip().split('\n')]
    def rd(tile, tmp):
        if tile.k == 'v': return tile, []
        return tmp, [f'v_accvgpr_read_b32 {tmp[i]}, {tile[i]}' for i in range(4)]
    def packl(o, t0, t1):
        return [f'v_cvt_pk_bf16_f32 {o[0]}, {t0[0]}, {t0[1]}', f'v_cvt_pk_bf16_f32 {o[1]}, {t0[2]}, {t0[3]}',
                f'v_cvt_pk_bf16_f32 {o[2]}, {t1[0]}, {t1[1]}', f'v_cvt_pk_bf16_f32 {o[3]}, {t1[2]}, {t1[3]}']
    def mul4(d, a_, b_, pk):
        if pk: return [f'v_pk_mul_f32 {d[2*i:2*i+2]}, {a_[2*i:2*i+2]}, {b_ if b_.k == "s" else b_[2*i:2*i+2]}' for i in range(2)]
        return [f'v_mul_f32 {d[i]}, {b_[0] if b_.k == "s" else b_[i]}, {a_[i]}' for i in range(4)]
    def hpiece(n, j, o, pk):
        L = []; tt = []
        for mm in range(2):
            g_, l0 = rd(acc[n][2 * j + mm], vtmp[8 * mm:8 * mm + 4]); u_, l1 = rd(acc[n + 1][2 * j + mm], vtmp[8 * mm + 4:8 * mm + 8])
            L += l0 + l1 + mul4(g_, g_, u_, pk); tt.append(g_)
        return L + packl(o, tt[0], tt[1]) + [f'v_permlane16_swap_b32 {o[0]}, {o[2]}', f'v_permlane16_swap_b32 {o[1]}, {o[3]}']
    hreg = [acc[7][2 * j] for j in range(4)] + [acc[6][2 * j] for j in range(4)] + [acc[8][2 * j] for j in range(4)]

    vq = vdx[0]; vh = vdx[1]; vql = vdx[2]; vqq = vdx[3]
    s_b, s_qs = s_oq, R('s', sx.a, 2)
    def epi_setup(wc):
        L = lines(f"""
        v_and_b32 {vt0}, 15, {vl}
        v_lshrrev_b32 {vt1}, 4, {vl}
        v_lshlrev_b32 {vq}, 9, {vt1}
        v_lshlrev_b32 {vh}, 4, {vl}
        s_lshl_b32 {s_t0}, {s_h}, 6
        s_lshl_b32 {s_t1}, {s_mb}, 3
        s_add_u32 {s_t0}, {s_t0}, {s_t1}
        s_lshl_b32 {s_t1}, {s_wr}, 2
        s_add_u32 {s_t0}, {s_t0}, {s_t1}
        s_lshl_b32 {s_b}, {s_t0}, 12
        s_add_u32 {s_b}, {s_b}, {WS_KV}
        s_add_u32 {s_og}, {s_b}, 4096
        s_add_u32 {s_ox}, {s_b}, 8192
        s_add_u32 {s_c0}, {s_b}, 12288
        s_lshl_b32 {s_t0}, {s_mb}, 1
        s_add_u32 {s_t0}, {s_t0}, {s_wr}
        s_mul_i32 {s_t0}, {s_t0}, 288
        s_mul_i32 {s_t1}, {s_h}, 7
        s_add_u32 {s_t0}, {s_t0}, {s_t1}
        s_lshl_b32 {s_t0}, {s_t0}, 12
        s_add_u32 {s_hb}, {s_t0}, {WS_A + 4 * 4096 * wc}
        s_sub_u32 {s_c1}, {s_hb}, 4096
        s_lshl_b32 {s_t1}, {s_wr}, 14""")
        if wc == 0:
            L += lines(f"""
            v_lshrrev_b32 {vt2}, 3, {vt0}
            v_lshl_add_u32 {vq}, {vt2}, 8, {vq}
            v_and_b32 {vt2}, 7, {vt0}
            v_lshl_add_u32 {vq}, {vt2}, 4, {vq}
            v_add_u32 {vql}, {s_t1}, {vq}
            s_lshl_b32 {s_t1}, {s_wr}, 13
            s_add_u32 {s_t1}, {s_t1}, {QS}
            v_add_u32 {vqq}, {s_t1}, {vq}
            s_mov_b32 {s_qs[0]}, {hex(f32bits(QSCALE))}
            s_mov_b32 {s_qs[1]}, {s_qs[0]}""")
        else:
            L += [f'v_lshl_add_u32 {vq}, {vt0}, 4, {vq}', f'v_add_u32 {vql}, {s_t1}, {vq}']
        return L
    kvb = [s_b, s_og, s_ox, s_c0]
    def epi_early(wc, npk):
        F_ = []
        outs = [vtmp[16 + 4 * i:20 + 4 * i] for i in range(3)]
        if wc == 0:
            for m in range(7, -1, -1):
                o = acc[0][m]
                L = packl(o, acc[0][m], acc[1][m]) + [Ins(f'buffer_store_dwordx4 {o}, {vq}, {sws}, {kvb[m // 2]} offen offset:{(m % 2) * 128}{kv_mod}', 'KVST'),
                                                       f'ds_write_b128 {vql}, {o} offset:{(m // 2) * 4096 + (m % 2) * 128}']
                F_ += [(17 + 2 * (7 - m) + 4, x) for x in L]
            for i, m in enumerate(range(7, -1, -1)):
                o = outs[i % 3]
                t0, l0 = rd(acc[2][m], vtmp[0:4]); t1, l1 = rd(acc[3][m], vtmp[4:8])
                L = l0 + l1 + mul4(t0, t0, s_qs, i >= npk) + mul4(t1, t1, s_qs, i >= npk) + packl(o, t0, t1) + [f'ds_write_b128 {vqq}, {o} offset:{(m // 2) * 2048 + (m % 2) * 128}']
                F_ += [(49 + 2 * (7 - m) + 4, x) for x in L]
        else:
            for nt, js in ((0, range(4)), (1, range(3, -1, -1))):
                for j in js:
                    o = acc[nt][2 * j]
                    L = packl(o, acc[nt][2 * j], acc[nt][2 * j + 1]) + [Ins(f'buffer_store_dwordx4 {o}, {vq}, {sws}, {kvb[j]} offen offset:{2048 + nt * 256}{kv_mod}', 'KVST'),
                                                                         f'ds_write_b128 {vql}, {o} offset:{j * 4096 + 2048 + nt * 256}']
                    F_ += [((3 + 4 * j if nt == 0 else 31 - 4 * j) + 4, x) for x in L]
            for i, j in enumerate(range(3, -1, -1)):
                o = outs[i % 3]
                L = hpiece(2, j, o, i >= npk) + [Ins(f'buffer_store_dwordx4 {o}, {vh}, {sws}, {s_c1} offen offset:{j * 1024}{st_mod}', 'HST')]
                F_ += [(63 - 4 * j + 4, x) for x in L]
        for j in range(3, -1, -1):
            F_ += [(127 - 4 * j + 4, x) for x in hpiece(6, j, hreg[4 + j], PK)]
            F_ += [(127 - 4 * j + 4, x) for x in hpiece(4, j, hreg[j], PK)]
        k = max(i for i, x in enumerate(F_) if isinstance(x[1], Ins) and x[1].tag == 'KVST')
        F_[k + KF:k + KF] = [(0, [f'v_mov_b32 {vt0}, 1', 'WAITTAG KVST', Ins(f'buffer_store_dword {vt0}, {vflk}, {sfl}, 0 offen sc1', 'FL')])]
        return F_
    def epi_late():
        for j in range(3, -1, -1): p.add(hpiece(8, j, hreg[8 + j], True))

    announce_setup = lines(f"""
        s_mov_b32 {sdbg[0]}, {pdbg[0]}
        s_mov_b32 {sdbg[1]}, {pdbg[1]}
        s_movk_i32 {sdbg[2]}, 256
        s_mov_b32 {sdbg[3]}, 0x00020000
        s_and_b32 {s_ano}, s2, 7
        s_lshl_b32 {s_ano}, {s_ano}, 2
        s_and_b32 {s_grp}, {s_mb}, 3
        s_add_u32 {s_grp}, {s_grp}, 3
        v_mov_b32 {vt2}, 1
        v_cmp_eq_u32 {smask}, 0, v0
        v_cndmask_b32 {vt1}, 2.0, 0, {smask}""")
    if PT:
        k = announce_setup.index(f's_add_u32 {s_grp}, {s_grp}, 3')
        announce_setup[k:k + 1] = [[f's_cmp_lt_u32 {s_grp}, 2', f's_cselect_b32 {s_grp}, {s_grp}, 16'], f's_add_u32 {s_grp}, {s_grp}, 1']
    announce1 = [f's_add_u32 {s_t0}, {s_cnt}, 16', [f's_cmp_eq_u32 {s_t0}, {s_grp}', f's_cselect_b32 {s_t0}, {s_ano}, 2.0'],
                 f'buffer_atomic_add {vt2}, {vt1}, {sdbg}, {s_t0} offen offset:{DBG_CNT} sc1']
    announce = [f's_cmp_eq_u32 {s_cnt}, {s_grp}', f's_cselect_b32 {s_t0}, {s_ano}, 2.0',
                f'buffer_atomic_add {vt2}, {vt1}, {sdbg}, {s_t0} offen offset:{DBG_CNT} sc1']
    cnt_addr = [f'v_and_b32 {vpf}, 7, {vl}', f'v_lshlrev_b32 {vpf}, 2, {vpf}']
    cnt_load = f'buffer_load_dword {vcnt}, {vpf}, {sdbg}, 0 offen offset:{DBG_CNT} sc1'

    def code_setup(wc):
        lab = f'{name}_pc{wc}'
        return [[f's_getpc_b64 {smask}', f'{lab}:'],
                f's_lshr_b32 {s_t0}, s2, 3', f's_lshl_b32 {s_t1}, {s_t0}, 8', f's_add_u32 {s_t1}, {s_t1}, {name}_c{wc}out-{lab}', f'v_and_b32 {vcnt}, 1, {vl}', f'v_lshlrev_b32 {vcnt}, 7, {vcnt}',
                f's_lshl_b32 {s_t0}, {s_t0}, 2', f's_add_u32 {s_t0}, {s_t0}, {s_w}', f's_lshl_b32 {s_t0}, {s_t0}, 8',
                f's_add_u32 {s_t0}, {s_t0}, {name}_join-{lab}', f'v_mov_b32 {vtmp[0]}, {s_t0}', f'v_mov_b32 {vtmp[1]}, {s_t1}', f'v_and_b32 {vtmp[2]}, 2, {vl}',
                f'v_cmp_eq_u32 vcc, 0, {vtmp[2]}', f'v_cndmask_b32 {vtmp[0]}, {vtmp[0]}, {vtmp[1]}, vcc', f'v_add_u32 {vcnt}, {vcnt}, {vtmp[0]}',
                f'v_min_u32 {vcnt}, {name}_end-{lab}, {vcnt}', f'v_mov_b32 {vca[1]}, {smask[1]}',
                [f'v_add_co_u32 {vca[0]}, vcc, {smask[0]}, {vcnt}', f'v_addc_co_u32 {vca[1]}, vcc, 0, {vca[1]}, vcc']]
    code_pf = [Ins(f'global_load_dword {vpd}, {vca}, off', 'pf')]
    assert not PT
    for wc in range(2):
        p.seg(f'c{wc}a')
        if wc == 1: p.e(f'{name}_c1:')
        p.add(wread(0, 0, wc))
        for m in range(2, 8):
            for ks in range(2): p.e(xread(m, ks, 0))
        for j in range(1, DIST): p.add(wread(j, 0, wc))
        left = stage(0, wc, first=True, early=[x for _ in range(PD - PD0 + 1) for x in pfetch()], fill=flag_setup + announce_setup + code_setup(wc) + pf3_setup() + (tlb_touch2() if TLB else []) + (tp_setup() if PT else pf_setup()))
        assert not left
        p.e(f's_mov_b32 {s_cnt}, 6')
        p.seg(f'c{wc}l1')
        p.e(f'{name}_c{wc}loop:')
        stage(1, wc, early=pfetch() + (tp_load() if PT else pfetch_d()), extra=gate_sel + gate_loads + (announce1 if PT else []), estep=1)
        p.e(f's_cmp_eq_u32 {s_cnt}, 0\ns_cbranch_scc1 {name}_c{wc}out')
        p.seg(f'c{wc}l2')
        stage(0, wc, early=pfetch() + ([] if PT else pfetch_d()), extra=([x for x in tp_store() if x is not None] if PT else []) + announce + ([] if NOPF & 2 else pf_wo) + (code_pf if CPF else []), estep=1 if PT else 2)
        p.e(f's_sub_u32 {s_cnt}, {s_cnt}, 1\ns_branch {name}_c{wc}loop')
        p.seg(f'c{wc}last')
        p.e(f'{name}_c{wc}out:')
        rest = stage(0, wc, early=None if PT else pfetch_d(), fill=gate_ops(), nodma1=True, dens=GD)
        rest = stage(1, wc, last=True, fill=rest + cnt_addr + [cnt_load] + epi_setup(wc) + epi_early(wc, 99))
        pf.stamp(2)
        if ptrace == -1: pf.trace()
        k = max([i for i, x in enumerate(rest) if isinstance(x, str) and x.startswith('ds_write')] + [-1]) + 1
        for x in rest[:k]: p.add(x if isinstance(x, list) else [x])
        rest = rest[k:]
        if PKR:
            out = []; i = 0
            while i < len(rest):
                x = rest[i]; y = rest[i + 1] if i + 1 < len(rest) else None
                if isinstance(x, str) and isinstance(y, str) and x.startswith('v_mul_f32') and y.startswith('v_mul_f32'):
                    a0, b0, c0 = [int(t.strip()[1:]) for t in x[10:].split(',')]; a1, b1, c1 = [int(t.strip()[1:]) for t in y[10:].split(',')]
                    if a0 % 2 == 0 and b0 % 2 == 0 and (a1, b1, c1) == (a0 + 1, b0 + 1, c0 + 1):
                        out.append(f'v_pk_mul_f32 v[{a0}:{a1}], v[{b0}:{b1}], v[{c0}:{c1}]'); i += 2; continue
                out.append(x); i += 1
            rest = out
        va_, vb_ = vdg[0], vdg[1]
        p.e(f"""
        v_lshlrev_b32 {va_}, 4, {vl}
        s_lshl_b32 {s_t0}, {s_w}, 12
        s_add_u32 {s_t0}, {s_t0}, {QS}
        v_add_u32 {vb_}, {s_t0}, {va_}
        s_waitcnt lgkmcnt(0)
        s_barrier
        """)
        for q in range(2):
            for f in range(2): p.e(f'ds_read_b128 a[{40 + 8 * q + 4 * f}:{43 + 8 * q + 4 * f}], {vb_} offset:{q * 2048 + f * 1024}')
        for i in range(4): p.e(f'ds_read_b128 a[{56 + 4 * i}:{59 + 4 * i}], {va_} offset:{(i // 2) * 4096 + (i % 2) * 1024}')
        pre = [f'v_mfma_f32_32x32x16_bf16 v[{64 + 16 * q}:{79 + 16 * q}], a[{56 + 4 * f}:{59 + 4 * f}], a[{40 + 8 * q + 4 * f}:{43 + 8 * q + 4 * f}], ' + ('0' if f == 0 else f'v[{64 + 16 * q}:{79 + 16 * q}]')
               for q in range(2) for f in range(2)]
        rest = rest + [x for j in range(3, -1, -1) for x in hpiece(8, j, hreg[8 + j], True)]
        for i, x in enumerate(rest):
            p.add(x if isinstance(x, list) else [x])
            if i >= 24 and (i - 24) % 7 == 0 and pre: p.e(pre.pop(0))
        p.add(pre)
        if ptrace == -1: pf.trace()
        if ptrace == -1: pf.trace()
        if wc == 0: p.e(f's_branch {name}_join')
    p.seg('join')
    p.e(f'{name}_join:')
    p.add(check([f'v_cmp_gt_u32 vcc, 32, {vcnt}'], [cnt_load], 'cnt'))

    sa.p = s_base; va.p = v_base; aa.p = 0
    skv = sa(4); sA = sa(4); swd = sa(4); swo = sa(4); sout = sa(4)
    s_okv, s_left, s_p, s_oa, s_ow, s_wb, s_ob, s_ob2, s_thr, s_mt, s_nt, s_oo, s_spin, s_h1, s_h2, s_rt, s_win = [sa() for _ in range(17)]
    scp = sa(4)
    vl16, vkA, vkB, vdma, vo, vidx, vu0, vu1, vu2, vpa = [va() for _ in range(10)]
    vdd = [va() for _ in range(2)]; vdo = [va() for _ in range(2)]; vwr = [va() for _ in range(2)]
    vg = va(2); vog = va(4); vpoll = va(2, 2); vsc = va(2)
    ones = va(4, 4)
    vA = [va() for _ in range(4)]
    assert va.p <= 46 and va.p > vwo.a
    va2 = Alloc('v', va.p, 48)
    va.p = 48
    Sx = [va(16, 4) for _ in range(2)]; P = [va(8, 4) for _ in range(2)]; C = [va(16, 4) for _ in range(2)]
    acc3 = [[va(16, 4) for _ in range(4)] for _ in range(2)]
    O = [aa(16, 4) for _ in range(2)]; L = [aa(4, 4) for _ in range(2)]
    Q = [aa(8, 4) for _ in range(2)]; K = [aa(8, 4) for _ in range(2)]; V = [aa(8, 4) for _ in range(2)]
    Wf = [aa(4, 4) for _ in range(2)]
    Ab = [[aa(4, 4) for _ in range(4)] for _ in range(8)]
    if PT:
        NB = 4; DA = DW = 3
        Wb = [[Ab[4 + i // 2][2 * (i % 2)], Ab[4 + i // 2][2 * (i % 2) + 1]] for i in range(4)]

    p.e(f"""
    v_lshlrev_b32 {vl16}, 4, {vl}
    s_lshl_b32 {s_p}, {s_w}, 12
    """)
    assert Q[0].a == 40 and K[0].a == 56 and Sx[1].a == 64 and P[0].a == 80
    pf.stamp(3)
    def kread(kb, loop=False):
        base, o = (vl16, (kb % 16) * 4096) if not loop else ((vkA, kb * 4096) if kb < 8 else (vkB, (kb - 8) * 4096))
        return [f'ds_read_b128 {K[kb % 2][4*f:4*f+4]}, {base} offset:{o + f * 1024}' for f in range(2)]
    def vread(kb, loop=False):
        base, o = (vl16, (kb % 16) * 4096) if not loop else (vkA, kb * 4096)
        return [f'ds_read_b128 {V[kb % 2][4*f:4*f+4]}, {base} offset:{o + 2048 + f * 1024}' for f in range(2)]
    def qk(dst, kb, q, f, cin):
        return f'v_mfma_f32_32x32x16_bf16 {dst}, {K[kb % 2][4*f:4*f+4]}, {Q[q][4*f:4*f+4]}, {cin if f == 0 else dst}'
    def pv(j, f, zero=False):
        q = j % 2; kb = (j // 2) % 2
        return f'v_mfma_f32_32x32x16_bf16 {O[q]}, {V[kb][4*f:4*f+4]}, {P[q][4*f:4*f+4]}, {"0" if zero else O[q]}'
    def rsum(q): return f'v_smfmac_f32_16x16x64_bf16 {L[q]}, {ones}, {P[q]}, {vidx}'
    def cvt(j, i): return f'v_cvt_pk_bf16_f32 {P[j % 2][i]}, {Sx[j % 2][2*i]}, {Sx[j % 2][2*i+1]}'
    def rowmax(dst, src, init):
        lst = [src[i] for i in range(16)]
        if init:
            p.e(f'v_max3_f32 {dst}, {lst[0]}, {lst[1]}, {lst[2]}'); lst = lst[3:]
        while len(lst) >= 2:
            p.e(f'v_max3_f32 {dst}, {dst}, {lst[0]}, {lst[1]}'); lst = lst[2:]
        if lst: p.e(f'v_max_f32 {dst}, {dst}, {lst[0]}')
    def setc(q, m):
        p.e(f'v_mov_b32 {vu2}, {m}\nv_permlane32_swap_b32 {vu2}, {m}\nv_max_f32 {m}, {m}, {vu2}')
        for i in range(16): p.e(f'v_sub_f32 {C[q][i]}, 0, {m}')
    rowmax(vu0, R('v', 64, 16), True); rowmax(vu1, R('v', 80, 16), True)
    setc(0, vu0)
    p.e(qk(Sx[0], 0, 0, 0, C[0])); p.e(qk(Sx[0], 0, 0, 1, C[0]))
    setc(1, vu1)
    p.e(f"""
    v_bfe_u32 {vu0}, {vl}, 2, 1
    v_bfe_u32 {vu1}, {vl}, 1, 1
    v_mov_b32 {vu2}, 0x3f803f80
    v_or_b32 {vidx}, {vu0}, {vu1}
    v_cmp_eq_u32 vcc, 0, {vidx}
    v_xor_b32 {vu0}, 1, {vu0}
    v_or_b32 {vidx}, {vu0}, {vu1}
    v_cndmask_b32 {ones[0]}, 0, {vu2}, vcc
    v_cndmask_b32 {ones[1]}, 0, {vu2}, vcc
    v_cmp_eq_u32 vcc, 0, {vidx}
    v_and_b32 {vu0}, 1, {vl}
    v_mov_b32 {vu1}, 0xeeeeeeee
    v_cndmask_b32 {ones[2]}, 0, {vu2}, vcc
    v_cndmask_b32 {ones[3]}, 0, {vu2}, vcc
    v_cmp_eq_u32 vcc, 0, {vu0}
    v_mov_b32 {vu2}, 0x44444444
    v_add_u32 {vdma}, {s_p}, {vl16}
    v_cndmask_b32 {vidx}, {vu1}, {vu2}, vcc
    """)
    for q in range(2):
        for i in range(2): p.e(f'v_accvgpr_write_b32 {L[q][i]}, 0')
    p.e(f's_lshl_b32 {s_t0}, {s_h}, 18')
    srd(p, skv, pws, off_s=s_t0, off_imm=WS_KV, size=262144)

    def flag(val, tag, wait):
        return [f'v_mov_b32 {vu0}, {val}', f'WAITTAG {wait}', Ins(f'buffer_store_dword {vu0}, {vflag}, {sfl}, 0 offen sc1', tag)]
    def kvdma(m0line, tag, count=True):
        return [m0line] + [Ins(f'buffer_load_dwordx4 {vdma}, {skv}, {s_okv} offen offset:{i * 1024}{lm2} lds', tag) for i in range(4)] + \
               [f's_add_u32 {s_okv}, {s_okv}, 16384', f's_and_b32 {s_okv}, {s_okv}, 0x3ffff'] + \
               ([f's_sub_u32 {s_left}, {s_left}, 1', f's_cselect_b32 {skv[2]}, 0, {skv[2]}'] if count else [])
    NW = 4
    def wload(s):
        if PT: return [Ins(f'buffer_load_dwordx4 {Wb[s % 4][nb]}, {vl16}, {swd}, {s_oa} offen offset:{nb * 1024}{lm2}', f'D{s % NW}') for nb in range(2)]
        return [f's_add_u32 m0, {s_wb}, {(s % NW) * 2048}'] + \
               [Ins(f'buffer_load_dwordx4 {vdd[hh]}, {swd}, {s_ow} offen offset:{hh * 1024}{lm2} lds', f'D{s % NW}') for hh in range(2)] + [f's_add_u32 {s_ow}, {s_ow}, 32768']
    def hload(s):
        return [Ins(f'buffer_load_dwordx4 {Ab[s % NB][r]}, {vA[r]}, {sA}, {s_oa} offen{lm2}', f'A{s % NB}') for r in range(4)] + [f's_add_u32 {s_oa}, {s_oa}, 4096']
    def wrd(base, off, nb):
        if PT: return []
        return [f'ds_read_b64_tr_b16 {Wf[nb][2*s:2*s+2]}, {base[nb]} offset:{off + s * 512}' for s in range(2)]
    def gm(st, nb, tb, zero=False):
        return f'v_mfma_f32_32x32x16_bf16 {acc3[nb][tb]}, {Wb[st % 4][nb] if PT else Wf[nb]}, {Ab[st % NB][tb]}, {"0" if zero else acc3[nb][tb]}'
    def oload(t, m0line, tag):
        return [m0line] + [Ins(f'buffer_load_dwordx4 {vdo[hh]}, {swo}, {s_oo} offen offset:{hh * 1024} lds', tag) for hh in range(2)] + [f's_add_u32 {s_oo}, {s_oo}, 32768']

    zplan = {}
    def period(j, loop=False, item=None, misc=(), pre=(), zero=False):
        s = Sx[j % 2]
        E = [f'v_exp_f32 {s[i]}, {s[i]}' for i in range(16)]
        jn = j + 1
        m1 = qk(Sx[jn % 2], jn // 2, jn % 2, 0, C[jn % 2]); m2 = qk(Sx[jn % 2], jn // 2, jn % 2, 1, None)
        rd = kread((j + 1) // 2 + 1, loop) if j % 2 == 1 else vread(j // 2, loop)
        first = (j == 0 and not loop)
        zo = (j <= 2 and not loop)
        c7 = [] if first else [cvt(j - 1, 7)]
        p0 = [] if first else [pv(j - 1, 0, zo)]; p1 = [] if first else [pv(j - 1, 1)]; rs = [] if first else [rsum((j - 1) % 2)]
        V_ = [E[0]] + c7
        for i in range(7): V_ += [E[2 * i + 1], E[2 * i + 2], cvt(j, i)]
        V_.append(E[15])
        if item is None:
            p.add(V_[:1 + len(c7)]); V_ = V_[1 + len(c7):]
            if AW and j % 2 == 1: p.e('s_waitcnt lgkmcnt(0)')
            z_ = [] if loop else zplan.get(j, [])
            M = [m1] + z_[:1] + [m2] + p0 + z_[1:] + p1 + rs; G = []
        else:
            st, nb = item
            G = [gm(st, nb, tb if nb == 0 else 3 - tb, zero) for tb in range(4)]
            M = [G[0], m1, G[1], m2, G[2]] + p0 + [G[3]] + p1 + rs
        if loop and exp_ & 1: M = [x for x in M if x not in G]
        if loop and exp_ & 8: misc = [x for x in misc if not (isinstance(x, Ins) and x.tag and x.tag.startswith('D'))]
        misc = list(misc)
        for k in range(len(misc)):
            if isinstance(misc[k], str) and ' m0,' in misc[k]:
                q_ = k
                while q_ > 0 and not (isinstance(misc[q_ - 1], Ins) and misc[q_ - 1].text.endswith(' lds')): q_ -= 1
                misc.insert(q_, misc.pop(k))
        items = []
        for x in list(pre) + rd + list(misc):
            if items and isinstance(items[-1][-1], str) and items[-1][-1].split()[0] in ('WAITTAG', 's_cbranch_vccnz', 'v_cmp_gt_u32', 's_getpc_b64', 's_cmp_eq_u32'): items[-1].append(x)
            else: items.append([x])
        isvm = lambda it: any((y.text if isinstance(y, Ins) else y).startswith('buffer') for y in it)
        n = len(M); last = n - 1 if M[-1].startswith('v_smfmac') else n
        cost = lambda x: 8 if x.startswith('v_exp') else 4
        occ = [32 if '32x32' in x else 16 for x in M]
        iss = [8 if 'smfmac' not in x else SMC for x in M]
        ic = [sum((VMC if (y.text if isinstance(y, Ins) else y).startswith('buffer') else 4) for y in it if not (isinstance(y, str) and y.endswith(':'))) for it in items]
        vc = [cost(x) for x in V_]
        tailc = (4 if item is not None else 12 + (4 if j % 2 == 0 else 0))
        if item is None: iss[-1] += 0
        import functools
        @functools.lru_cache(None)
        def best(g, a_, b_, pv_):
            if g == n: return (0, ()) if (a_ == len(items) and b_ == len(V_)) else (10 ** 9, ())
            res = (10 ** 9, ())
            lo = 0
            if g == 0 and item is not None: lo = 1 + len(c7)
            for na in range(0, len(items) - a_ + 1):
                if g == 0 and na < min(len(items), npre): continue
                nv_ = sum(map(isvm, items[a_:a_ + na]))
                ca = sum(ic[a_:a_ + na])
                if g < n - 1 and ca > 64: break
                pen = (VPEN * max(0, nv_ - 1) + (VPEN // 2 if (nv_ and pv_) else 0)) + (0.01 * g * na)
                for nb_ in range(lo, len(V_) - b_ + 1):
                    f_ = iss[g] + ca + sum(vc[b_:b_ + nb_]) + (tailc if g == n - 1 else 0)
                    if f_ > 120 and g < n - 1: break
                    r_ = best(g + 1, a_ + na, b_ + nb_, nv_ > 0)
                    t_ = max(occ[g], f_) + pen + r_[0] + 0.001 * (f_ - occ[g]) ** 2
                    if t_ < res[0]: res = (t_, ((na, nb_),) + r_[1])
            return res
        npre = len([1 for it in items if any(y in pre for y in it if isinstance(y, str))])
        tot_, asg = best(0, 0, 0, False)
        assert tot_ < 10 ** 8
        if dbg == -1: print(j, loop, item, round(tot_), len(items), sum(map(isvm, items)))
        a_ = b_ = 0
        for q_, m_ in enumerate(M):
            p.add([m_])
            na, nb_ = asg[q_]
            for it in items[a_:a_ + na]: p.add(it)
            p.add(V_[b_:b_ + nb_]); a_ += na; b_ += nb_

    setup1 = lines(f"""
        s_lshl_b32 {s_okv}, {s_mb}, 15
        s_add_u32 {s_okv}, {s_okv}, 32768
        s_and_b32 {s_okv}, {s_okv}, 0x3ffff
        s_movk_i32 {s_left}, {13 - (PA // 8 + (0 if KS == 2 else 1))}
        v_and_b32 {vu1}, 31, {vl}
        v_lshlrev_b32 {vpa}, 2, {vu1}
        s_lshl_b32 {s_t2}, {s_h}, 7
        s_add_u32 {s_t2}, {s_t2}, 4096""")
    poll_kv = f'buffer_load_dword {vpoll[0]}, {vpa}, {sfl}, {s_t2} offen sc1'
    setup2 = lines(f"""
        s_and_b32 {s_t0}, s2, 7
        s_lshr_b32 {s_t1}, s2, 3
        s_lshr_b32 {s_mt}, {s_t0}, 1
        s_lshl_b32 {s_mt}, {s_mt}, 2
        s_and_b32 {s_nt}, {s_t0}, 1
        s_lshl_b32 {s_nt}, {s_nt}, 3
        s_and_b32 {s_t0}, {s_t1}, 3
        s_add_u32 {s_mt}, {s_mt}, {s_t0}
        s_lshr_b32 {s_t0}, {s_t1}, 2
        s_add_u32 {s_nt}, {s_nt}, {s_t0}
        s_lshl_b32 {s_t0}, {s_nt}, 7
        s_lshl_b32 {s_t1}, {s_w}, 19
        s_add_u32 {s_t1}, {s_t1}, {s_t0}
        s_add_u32 {swo[0]}, {pwo[0]}, {s_t1}
        s_addc_u32 {swo[1]}, {pwo[1]}, 0
        s_sub_u32 {swo[2]}, {D * D * 2}, {s_t1}
        s_mov_b32 {swo[3]}, 0x00020000
        s_add_u32 {swd[0]}, {pwd[0]}, {s_t0}
        s_addc_u32 {swd[1]}, {pwd[1]}, 0
        s_sub_u32 {swd[2]}, {F * D * 2}, {s_t0}
        s_mov_b32 {swd[3]}, 0x00020000
        s_mul_i32 {s_t0}, {s_mt}, {288 * 4096}
        s_add_u32 {s_t0}, {s_t0}, {WS_A}
        s_add_u32 {sA[0]}, {pws[0]}, {s_t0}
        s_addc_u32 {sA[1]}, {pws[1]}, 0
        s_mov_b32 {sA[2]}, {288 * 4096}
        s_mov_b32 {sA[3]}, 0x00020000
        s_mul_i32 {s_oa}, {s_w}, {56 * 4096}
        s_lshl_b32 {s_ow}, {s_oa}, 3
        s_mov_b32 {s_oo}, 0
        s_mul_i32 {s_wb}, {s_w}, 20480
        s_add_u32 {s_wb}, {s_wb}, {W0}
        v_lshrrev_b32 {vu1}, 3, {vl}
        v_and_b32 {vu2}, 2, {vu1}
        v_lshlrev_b32 {vu2}, 1, {vu2}
        v_and_b32 {vdd[1]}, 7, {vl}
        v_xor_b32 {vu2}, {vu2}, {vdd[1]}
        v_lshlrev_b32 {vu2}, 4, {vu2}
        v_lshl_add_u32 {vdd[0]}, {vu1}, 11, {vu2}
        v_add_u32 {vdd[1]}, {8 * 2048 - 1024}, {vdd[0]}
        v_lshrrev_b32 {vu1}, 5, {vl}
        v_lshl_add_u32 {vdo[0]}, {vu1}, 13, {vdd[0]}
        v_add_u32 {vdo[1]}, {4 * 2048 - 1024}, {vdo[0]}
        v_lshl_add_u32 {vwr[0]}, {vu1}, 10, {s_wb}
        v_bfe_u32 {vu1}, {vl}, 2, 2
        v_lshl_add_u32 {vwr[0]}, {vu1}, 7, {vwr[0]}
        v_bfe_u32 {vu1}, {vl}, 3, 1
        v_lshl_add_u32 {vwr[0]}, {vu1}, 6, {vwr[0]}
        v_bfe_u32 {vu1}, {vl}, 4, 1
        v_lshl_add_u32 {vwr[0]}, {vu1}, 5, {vwr[0]}
        v_and_b32 {vu1}, 3, {vl}
        v_lshl_add_u32 {vwr[0]}, {vu1}, 3, {vwr[0]}
        v_xor_b32 {vwr[1]}, 64, {vwr[0]}
        v_mov_b32 {vkB if PA == 48 else vkA}, {vl16}
        v_add_u32 {vkA if PA == 48 else vkB}, 32768, {vl16}
        s_nop 0
        s_nop 0""")
    setup2 = setup2[:-2]
    setup1 += [f's_add_u32 {s_h1}, {s_hb}, 4096', f's_add_u32 {s_h2}, {s_hb}, 8192']
    if PT:
        setup2 += lines(f"""
        s_lshr_b32 {s_t0}, {s_nt}, 1
        s_mul_i32 {s_t0}, {s_t0}, {224 * 4096}
        s_and_b32 {s_t1}, {s_nt}, 1
        s_lshl_b32 {s_t1}, {s_t1}, 11
        s_add_u32 {s_t0}, {s_t0}, {s_t1}
        s_add_u32 {s_t0}, {s_t0}, {WS_T}
        s_add_u32 {swd[0]}, {pws[0]}, {s_t0}
        s_addc_u32 {swd[1]}, {pws[1]}, 0
        s_mov_b32 {swd[2]}, {224 * 4096 - 2048}""")
    for r in range(4):
        setup2 += [f's_add_u32 {s_t0}, {s_w}, {r + 1}', f's_and_b32 {s_t0}, {s_t0}, 3', f's_lshl_b32 {s_t0}, {s_t0}, 10', f'v_add_u32 {vA[r]}, {s_t0}, {vl16}']
    setup3 = lines(f"""
        v_and_b32 {vu1}, 7, {vl}
        v_bfe_u32 {vu2}, {vl}, 4, 1
        v_lshl_add_u32 {vo}, {vu2}, 3, {vu1}
        v_bfe_u32 {vu2}, {vl}, 3, 1
        v_lshl_add_u32 {vo}, {vu2}, 4, {vo}
        v_lshrrev_b32 {vu2}, 3, {vo}
        v_lshlrev_b32 {vu2}, 7, {vu2}
        v_lshl_add_u32 {vsc[0]}, {vu1}, 2, {vu2}
        v_lshlrev_b32 {vo}, 4, {vo}
        v_lshrrev_b32 {vu2}, 5, {vl}
        v_lshl_add_u32 {vo}, {vu2}, 9, {vo}
        v_bfe_u32 {vu2}, {vl}, 3, 2
        v_lshlrev_b32 {vu2}, 7, {vu2}
        v_lshl_add_u32 {vsc[1]}, {vu1}, 2, {vu2}
        s_lshl_b32 {s_t0}, {s_mb}, 1
        s_add_u32 {s_t0}, {s_t0}, {s_wr}
        s_mul_i32 {s_t0}, {s_t0}, 288
        s_lshl_b32 {s_t1}, {s_h}, 1
        s_add_u32 {s_t0}, {s_t0}, {s_t1}
        s_add_u32 {s_t0}, {s_t0}, 224
        s_lshl_b32 {s_t0}, {s_t0}, 12
        s_lshl_b32 {s_t1}, {s_wc}, 11
        s_add_u32 {s_t0}, {s_t0}, {s_t1}
        s_add_u32 {s_ob}, {s_t0}, {WS_A}
        s_add_u32 {s_ob2}, {s_ob}, 4096
        s_mov_b32 {s_thr}, {hex(f32bits(2.0 ** 40 if not force_slow else 0.5))}
        v_lshlrev_b32 {vpa}, 3, {vl}
        s_lshr_b32 {s_t2}, {s_mt}, 1
        s_lshl_b32 {s_t2}, {s_t2}, 9""")
    poll_h = f'buffer_load_dwordx2 {vpoll}, {vpa}, {sfl}, {s_t2} offen sc1'
    cond2 = [f'v_min_u32 {vu1}, {vpoll[0]}, {vpoll[1]}', f'v_cmp_gt_u32 vcc, 2, {vu1}']
    og_loads = [f's_lshl_b32 {s_t0}, {s_mt}, 11', f's_add_u32 {s_t0}, {s_t0}, {WS_G + 32}']
    for r in range(4):
        og_loads += [f'v_lshrrev_b32 {vu1}, 10, {vA[r]}', f'v_lshl_add_u32 {vu1}, {vu1}, 9, {vsc[1]}', f'buffer_load_dword {vog[r]}, {vu1}, {sws}, {s_t0} offen']
    g_loads = [f's_lshl_b32 {s_t0}, {s_mb}, 2', f's_add_u32 {s_t0}, {s_t0}, {s_w}', f's_lshl_b32 {s_t0}, {s_t0}, 10', f's_add_u32 {s_t0}, {s_t0}, {WS_G}'] + \
              [f'buffer_load_dword {vg[q]}, {vsc[0]}, {sws}, {s_t0} offen offset:{q * 512}' for q in range(2)]
    NE = 16 if PT else 12
    def oslot(t):
        if t >= NE: return vw2, (t - NE) * 2048, f's_add_u32 m0, {s_p}, {(t - NE) * 2048}'
        k = t if t < 4 else t - 4
        n0 = 0 if PT else NW
        if k < 10 - n0: return vwr, (n0 + k) * 2048, f's_add_u32 m0, {s_wb}, {(n0 + k) * 2048}'
        return vw3, (k - 10 + n0) * 2048, f's_add_u32 m0, {s_p}, {QS + (k - 10 + n0) * 2048}'
    WO = [R('a', aa.p + 8 * t, 8) for t in range(4)] + [R('a', 8 * t, 8) for t in range(11)] + [Sx[0][0:8]]
    assert Wf[0].a == 88 and aa.p + 32 <= 256
    vw3 = [va2(), va2()]
    def woread(t):
        base, off, _ = oslot(t)
        return [f'ds_read_b64_tr_b16 {WO[t][4*nb+2*s_:4*nb+2*s_+2]}, {base[nb]} offset:{off + s_ * 512}' for nb in range(2) for s_ in range(2)]
    vw2 = [C[0][0], C[0][1]]
    setup3 += [f's_add_u32 {s_t0}, {s_p}, {QS}', f's_sub_u32 {s_t0}, {s_t0}, {s_wb}', f'v_add_u32 {vw3[0]}, {s_t0}, {vwr[0]}', f'v_add_u32 {vw3[1]}, {s_t0}, {vwr[1]}']
    early_o = [oload(t, oslot(t)[2], 'WO') for t in range(NE)]
    assert PM % 2 == 0 and DW <= 3 and DA <= 7
    plan = {j: [] for j in range(PA)}; prej = {j: [] for j in range(PA)}
    plan[0] += setup1
    plan[1] += setup2[:21]; plan[2] += setup2[21:38]; plan[3] += setup2[38:55]; plan[4] += setup2[55:]; plan[KP] = (plan[KP] + [poll_kv]) if KP == 0 else ([poll_kv] + plan[KP])
    plan[KC] += check([f'v_cmp_gt_u32 vcc, 1, {vpoll[0]}'], [poll_kv], 'kv')
    d = kvdma(f's_add_u32 m0, {s_p}, 32768', 'KV0', False); plan[KC] += d[:3]; plan[KC + 1] += d[3:]
    d = kvdma(f's_add_u32 m0, {s_p}, 49152', 'KV1', False); plan[KC + 2] += d[:3]; plan[KC + 3] += d[3:]
    for i in range(5 if PA == 48 else 3):
        j = 13 + 8 * i
        prej[j] += [f'WAITTAG KV{i % 2}', 's_barrier']
        d = kvdma(f's_add_u32 m0, {s_p}, {(i % 4) * 16384}', f'KV{i % 2}', False)
        if KS == 2 and j == PA - 3: plan[j] += d[:2]; plan[j + 2] += d[:1] + [d[2]]
        elif KS and j >= PM: plan[j] += d[:3]; plan[j + 2] += d[:1] + d[3:]
        else: plan[j] += d[:5]; plan[j + 1] += d[5:]
    busy = (13, 21, 29, 37, 45)
    j = float(H0)
    for k in range(12):
        while int(j) in busy: j = int(j) + 1.0
        plan[int(j)].append(Ins(f'buffer_store_dwordx4 {hreg[k]}, {vl16}, {sws}, {(s_hb, s_h1, s_h2)[k // 4]} offen offset:{(k % 4) * 1024}{st_mod}', 'HST'))
        jl = int(j); j += HP
    plan[10] += setup3[:10]; plan[11] += setup3[10:20]; plan[12] += setup3[20:]
    def nextfree(j):
        while j in busy: j += 1
        return j
    jf = nextfree(jl + FG); plan[jf] += flag(2, 'FL', 'HST')
    ramp = []
    for i in range(max(DA, DW)):
        if i < DW: ramp += wload(i)
        if i < DA: ramp += hload(i)
    groups = []; curg = []; nv = 0
    for x in ramp:
        if isinstance(x, str) and ' m0,' in x and nv + 2 > RP: groups.append(curg); curg = []; nv = 0
        if isinstance(x, Ins):
            if nv >= RP and not x.text.endswith(' lds'): groups.append(curg); curg = []; nv = 0
            nv += 1
        curg.append(x)
    groups.append(curg)
    jc = PM - 1; k = len(groups)
    while k:
        jc -= 1
        if jc not in busy: k -= 1
    jp = jc - PG
    assert jp > jf, (jp, jf)
    if PT and GP:
        vgl = R('v', 224, 16)
        poll_all = [f'buffer_load_dwordx4 {vgl[4 * i:4 * i + 4]}, {vl16}, {sfl}, 0 offen offset:{i * 1024} sc1' for i in range(4)]
        cond_all = [f'v_min3_u32 {vu1}, {vgl[0]}, {vgl[1]}, {vgl[2]}'] + [f'v_min3_u32 {vu1}, {vu1}, {vgl[i]}, {vgl[i + 1]}' for i in range(3, 15, 2)] + \
                   [f'v_min_u32 {vu1}, {vu1}, {vgl[15]}', f'v_cmp_gt_u32 vcc, 2, {vu1}']
        plan[jp] += poll_all
    else: plan[jp] += [poll_h]
    jj = E0
    for t in range(0, 4, 2):
        jj = nextfree(jj + 1); plan[jj] += early_o[t] + early_o[t + 1]
    jj = nextfree(jj + 3)
    for t in range(4):
        plan[jj] += (['WAITTAG WO'] if t == 0 else []) + woread(t); jj = nextfree(jj + 1)
    for t in range(4, NE):
        plan[jj] += (['s_waitcnt lgkmcnt(0)'] if t == 4 else []) + early_o[t]
        if t % 2 == 1 or jj < jl: jj = nextfree(jj + 1)
    assert jj <= jc + 1, (jj, jc)
    if PT and GP: plan[jc] += check(cond_all, poll_all, 'h')
    else: plan[jc] += check(cond2, [poll_h], 'h') + [f's_lshl_b32 {s_t2}, {s_mb}, 9', poll_h]
    jj = jc
    for g_ in groups:
        plan[jj] += g_; jl2 = jj; jj = nextfree(jj + 1)
    assert jl2 <= PM - 2, (jl2, PM)
    plan[PM - 1] = ['WAITTAG D0 A0'] + wrd(vwr, 0, 0) + plan[PM - 1]
    NZ = PM == PA
    if NZ:
        plan[PM - 3] += og_loads
        plan[PM - 1] += check(cond2, [poll_h], 'g') + g_loads
        plan[jf + 1] += [f'v_accvgpr_write_b32 {Wf[1][i]}, 0' for i in range(4)]
        for k in range(8): zplan.setdefault(jf + 2 + k // 2, []).append(f'v_mfma_f32_32x32x16_bf16 {acc3[k // 4][k % 4]}, {Wf[1]}, {Wf[1]}, 0')
        assert jf + 6 < PM
    else:
        plan[PM + 2] += og_loads
        plan[PM + 4] += ([] if (PT and GP) else check(cond2, [poll_h], 'g')) + g_loads
    if PA == 48: plan[PA - 1] += [f's_xor_b32 {s_p}, {s_p}, 32768']
    vcp = va2()
    vtp = [va2() for _ in range(3)]
    L0 = (PA - PM) // 2 + (128 - PA) // 2
    nA = (56 - L0 - DA) * 4; nW = (56 - L0 - DW) * 4; nO = (16 - NE) * 4
    if TP1:
        plan[26] += lines(f"""
        s_and_b32 {s_t0}, {s_nt}, 7
        s_mul_i32 {s_t0}, {s_t0}, {nA}
        s_mul_i32 {s_t1}, {s_w}, {56 * 32}
        s_add_u32 {s_t0}, {s_t0}, {s_t1}
        s_add_u32 {s_t0}, {s_t0}, {(L0 + DA) * 32}
        v_add_u32 {vu1}, {s_t0}, {vl}
        v_lshlrev_b32 {vu1}, 7, {vu1}
        v_cmp_lt_u32 {smask}, {vl}, {nA}
        v_cndmask_b32 {vtp[0]}, 2.0, {vu1}, {smask}""")
        plan[27] += lines(f"""
        s_and_b32 {s_t1}, {s_mt}, 3
        s_mul_i32 {s_t0}, {s_t1}, {nO}
        s_add_u32 {s_t0}, {s_t0}, {NE * 16}
        v_add_u32 {vu1}, {s_t0}, {vl}
        v_lshlrev_b32 {vu1}, 11, {vu1}
        v_cmp_lt_u32 {smask}, {vl}, {nO}
        v_cndmask_b32 {vtp[2]}, 2.0, {vu1}, {smask}
        s_mul_i32 {s_t0}, {s_t1}, {nW}
        s_mul_i32 {s_t1}, {s_w}, {56 * 16}
        s_add_u32 {s_t0}, {s_t0}, {s_t1}
        s_add_u32 {s_t0}, {s_t0}, {(L0 + DW) * 16}
        v_add_u32 {vu1}, {s_t0}, {vl}
        v_lshlrev_b32 {vu1}, 11, {vu1}
        v_cmp_lt_u32 {smask}, {vl}, {nW}
        v_cndmask_b32 {vtp[1]}, 2.0, {vu1}, {smask}""")
    if CP2:
        plan[PM - 3] += [f's_getpc_b64 {scp[0:2]}', f'{name}_pct:', f's_and_b32 {scp[1]}, {scp[1]}, 0xffff', f's_mov_b32 {scp[2]}, {name}_slow-{name}_pct',
                         f's_mov_b32 {scp[3]}, 0x00020000', f's_lshr_b32 {s_t0}, s2, 3', f's_lshl_b32 {s_t0}, {s_t0}, 2', f's_add_u32 {s_t0}, {s_t0}, {s_w}',
                         f's_lshl_b32 {s_t0}, {s_t0}, 7', f's_add_u32 {s_t0}, {s_t0}, {name}_tail-{name}_pct', f'v_lshl_add_u32 {vcp}, {vl}, 14, {s_t0}']
    def mixed(j, st, nb, loop, misc=(), pre=(), zero=False):
        dw = wload(st + DW); da = hload(st + DA)
        if loop and exp_ & 32:
            dw = [Ins(f'buffer_load_dwordx4 a[{224 + 8 * (st % 4) + 4 * hh}:{227 + 8 * (st % 4) + 4 * hh}], {vl16}, {swd}, {s_ow} offen offset:{hh * 1024}', f'D{(st + DW) % NW}') for hh in range(2)] + dw[3:]
            if nb == 0: period(j, loop, (st, 0), misc=dw + da[:1] + list(misc), pre=pre, zero=zero)
            else:
                p.e(f'WAITTAG D{(st + 1) % NW} A{(st + 1) % NB} LGKM0')
                period(j, loop, (st, 1), misc=da[1:] + list(misc), pre=pre, zero=zero)
            return
        if nb == 0:
            period(j, loop, (st, 0), misc=wrd(vwr, (st % NW) * 2048, 1) + dw + da[:AS] + list(misc), pre=pre, zero=zero)
        else:
            p.e(f'WAITTAG D{(st + 1) % NW} A{(st + 1) % NB} LGKM0')
            period(j, loop, (st, 1), misc=wrd(vwr, ((st + 1) % NW) * 2048, 0) + da[AS:] + list(misc), pre=pre, zero=zero)
    p.seg('partA')
    for j in range(PA):
        if ptrace == -1 and j in (0, 1, 5, 7, 9, 13, 15, 21, jf, jf + 1, jc, jc + 1, PM): pf.trace()
        if j < PM: period(j, misc=plan[j], pre=prej[j])
        else: mixed(j, (j - PM) // 2, j % 2, False, misc=plan[j], pre=prej[j], zero=(j < PM + 2))
    if ptrace == -1: pf.trace()
    ST0 = (PA - PM) // 2
    pf.stamp(4)
    p.e(f's_mov_b32 {s_cnt}, {(128 - PA) // 16}')
    p.seg('loop')
    p.e(f'{name}_loop:')
    for j in range(16):
        misc = []; pre = []
        if j in (5, 13):
            pre = [f'WAITTAG KV{1 if j == 5 else 0}', 's_barrier']
        if KS == 0 and j in (5, 6, 13, 14):
            d = kvdma(f's_xor_b32 m0, {s_p}, 49152' if j < 8 else f's_mov_b32 m0, {s_p}', 'KV1' if j < 8 else 'KV0')
            misc = d[:5] if j in (5, 13) else d[5:]
        if KS == 1 and j in (5, 7, 13, 15):
            d = kvdma(f's_xor_b32 m0, {s_p}, 49152' if j < 8 else f's_mov_b32 m0, {s_p}', 'KV1' if j < 8 else 'KV0')
            misc = d[:3] if j in (5, 13) else d[:1] + d[3:]
        if KS == 2 and j % 2 == 1:
            first_ = 5 <= j < 13
            d = kvdma(f's_xor_b32 m0, {s_p}, 49152' if first_ else (f's_mov_b32 m0, {s_p}' if j >= 13 else f's_xor_b32 m0, {s_p}, 32768'), 'KV1' if first_ else 'KV0')
            k = ((j - 5) // 2) % 4
            misc = d[:1] + [d[1 + k]] + (d[5:] if k == 3 else [])
        if TP1 and j == 2: misc = misc + [f's_cmp_eq_u32 {s_cnt}, 1', f's_cselect_b32 {s_t0}, 0, 2.0']
        if TP1 and j in (4, 6, 8): misc = misc + [Ins(f'buffer_load_dword {vpd}, {vtp[j // 2 - 2]}, {(sA, swd, swo)[j // 2 - 2]}, {s_t0} offen', 'pf')]
        if j == 9 and CP2: misc = [Ins(f'buffer_load_dword {vpd}, {vcp}, {scp}, 0 offen', 'pf')]
        if j == 15: misc = misc + [f's_xor_b32 {s_p}, {s_p}, 32768', f'v_xor_b32 {vkA}, 0x8000, {vkA}', f'v_xor_b32 {vkB}, 0x8000, {vkB}']
        if ptrace == -3:
            p.e(f's_memtime {s_pt[2:4]}\ns_waitcnt lgkmcnt(0)\nv_writelane_b32 {vtr}, {s_pt[2]}, {j}')
        mixed(j, ST0 + j // 2, j % 2, True, misc=misc, pre=pre)
    p.e(f's_sub_u32 {s_cnt}, {s_cnt}, 1\ns_cmp_lg_u32 {s_cnt}, 0\ns_cbranch_scc1 {name}_loop')

    p.seg('tail')
    p.e(f'{name}_tail:')
    pf.stamp(5)
    if ptrace == -2: pf.trace()
    p.add([cvt(15, 7), pv(15, 0), pv(15, 1), rsum(1)])
    def lsum():
        p.e(f"""
        v_accvgpr_read_b32 {vsc[0]}, {L[0][0]}
        v_accvgpr_read_b32 {vu0}, {L[0][1]}
        v_accvgpr_read_b32 {vsc[1]}, {L[1][0]}
        v_accvgpr_read_b32 {vu1}, {L[1][1]}
        v_add_f32 {vsc[0]}, {vsc[0]}, {vu0}
        v_add_f32 {vsc[1]}, {vsc[1]}, {vu1}
        """)
    lsum()
    p.e(f"""
    v_cmp_nle_f32 vcc, {vsc[0]}, {s_thr}
    v_cmp_nle_f32 {smask}, {vsc[1]}, {s_thr}
    s_or_b64 vcc, vcc, {smask}
    s_cbranch_vccnz {name}_slow
    """)
    p.seg('epi')
    p.e(f'{name}_epi:')
    LATE0 = ST0 + (128 - PA) // 2
    vs2 = [P[1][0:2], P[1][2:4]]
    vq_ = []
    o_next = NE
    for st_ in range(LATE0, 56):
        if st_ + DW < 56: vq_.append((st_ + DW - NW + 1, wload(st_ + DW)))
        if st_ + DA < 56: vq_.append((st_ + DA - NB + 1, hload(st_ + DA)))
        if o_next < 16: vq_.append((0, oload(o_next, oslot(o_next)[2], 'WO'))); o_next += 1
    assert o_next == 16
    cur = []
    def onevm(st):
        nonlocal cur
        if not cur and vq_ and vq_[0][0] <= st: cur = list(vq_.pop(0)[1])
        if not cur: return False
        while cur:
            x = cur.pop(0); p.add([x])
            if isinstance(x, Ins): break
        while cur and not any(isinstance(y, Ins) for y in cur): p.add([cur.pop(0)])
        return True
    p.e(f"""
    v_rcp_f32 {vsc[0]}, {vsc[0]}
    v_rcp_f32 {vsc[1]}, {vsc[1]}
    s_mul_i32 {s_p}, {s_wr}, 49152
    s_lshl_b32 {s_t0}, {s_wc}, 13
    s_add_u32 {s_p}, {s_p}, {s_t0}
    s_barrier
    v_mul_f32 {vs2[0][0]}, {vsc[0]}, {vg[0]}
    v_mul_f32 {vs2[1][0]}, {vsc[1]}, {vg[1]}
    v_mov_b32 {vs2[0][1]}, {vs2[0][0]}
    v_mov_b32 {vs2[1][1]}, {vs2[1][0]}
    """)
    for q in range(2):
        for f in range(2):
            t_ = Sx[q][8 * f:8 * f + 8]
            if EV: onevm(LATE0)
            for i in range(8): p.e(f'v_accvgpr_read_b32 {t_[i]}, {O[q][8*f+i]}')
            if EV > 1: onevm(LATE0)
            for i in range(4): p.e(f'v_pk_mul_f32 {t_[2*i:2*i+2]}, {t_[2*i:2*i+2]}, {vs2[q]}')
            for i in range(4): p.e(f'v_cvt_pk_bf16_f32 {t_[i]}, {t_[2*i]}, {t_[2*i+1]}')
            p.e(f'buffer_store_dwordx4 {t_[0:4]}, {vo}, {sws}, {(s_ob, s_ob2)[f]} offen offset:{q * 1024}{st_mod}', 'OST')
    vout = C[0][4]; vrw = [C[0][5], C[0][6], C[0][7]]; vrr = C[0][8]
    sk = [s_h1, s_h2, s_hb, s_left]
    vA2 = [[vA[r], Sx[1][3 * r], Sx[1][3 * r + 1], Sx[1][3 * r + 2]] for r in range(4)]
    late2 = lines(f"""
        s_sub_u32 {s_t0}, {s_p}, {s_wb}
        v_add_u32 {vw2[0]}, {s_t0}, {vwr[0]}
        v_add_u32 {vw2[1]}, {s_t0}, {vwr[1]}
        s_lshl_b32 {s_t0}, {s_mt}, 18
        s_lshl_b32 {s_t1}, {s_nt}, 7
        s_add_u32 {s_t0}, {s_t0}, {s_t1}
        s_add_u32 {sout[0]}, {pout[0]}, {s_t0}
        s_addc_u32 {sout[1]}, {pout[1]}, 0
        s_sub_u32 {sout[2]}, {S * D * 2}, {s_t0}
        s_mov_b32 {sout[3]}, 0x00020000
        v_and_b32 {vu1}, 31, {vl}
        s_lshl_b32 {s_t0}, {s_w}, 16
        v_lshl_add_u32 {vout}, {vu1}, 11, {s_t0}
        v_lshrrev_b32 {vu1}, 5, {vl}
        v_lshl_add_u32 {vout}, {vu1}, 4, {vout}
        v_bfe_u32 {vu1}, {vl}, 1, 3
        v_and_b32 {vu2}, 1, {vl}
        v_lshlrev_b32 {vu2}, 2, {vu2}
        v_lshl_add_u32 {vpa}, {vu1}, 4, {vu2}
        s_lshr_b32 {s_t2}, {s_mt}, 1
        s_lshl_b32 {s_t2}, {s_t2}, 9
        s_lshl_b32 {s_t0}, {s_w}, 7
        s_add_u32 {s_t2}, {s_t2}, {s_t0}
        s_and_b32 {s_t0}, {s_mt}, 1
        s_lshl_b32 {s_t0}, {s_t0}, 3
        s_add_u32 {s_t2}, {s_t2}, {s_t0}
        s_mul_i32 {s_t0}, {s_w}, 24576
        v_add_u32 {vrr}, {s_t0}, {vl16}
        s_lshl_b32 {s_t1}, {s_w}, 16
        s_add_u32 {s_t1}, {s_t1}, {224 * 4096}""")
    late2[6:8] = [late2[6:8]]
    for r in range(3):
        late2 += [f'v_lshrrev_b32 {vu1}, 10, {vA[r]}', f'v_mul_u32_u24 {vu1}, 24576, {vu1}', f'v_add_u32 {vu1}, {(2 - r) * 8192}, {vu1}', f'v_add_u32 {vrw[r]}, {vu1}, {vl16}']
    for i in range(4):
        late2 += [f's_add_u32 {sk[i]}, {s_t1}, {i * 16384}']
    for r in range(4):
        for i in range(1, 4): late2.append(f'v_add_u32 {vA2[r][i]}, {i * 4096}, {vA[r]}')
    vtw = [C[1][i] for i in range(4)]; vtr_ = C[1][4]; sf = [0, s_ow, s_oo, s_ob]
    fin_setup = lines(f"""
        s_lshl_b32 {s_t0}, {s_w}, 12
        s_add_u32 {s_t0}, {s_t0}, {QS}
        v_and_b32 {vu1}, 31, {vl}
        v_lshl_add_u32 {vtw[0]}, {vu1}, 7, {s_t0}
        v_lshrrev_b32 {vu2}, 5, {vl}
        v_xor_b32 {vu2}, {vu2}, {vl}
        v_and_b32 {vu2}, 7, {vu2}
        v_lshl_add_u32 {vtw[0]}, {vu2}, 4, {vtw[0]}
        v_xor_b32 {vtw[1]}, 32, {vtw[0]}
        v_xor_b32 {vtw[2]}, 64, {vtw[0]}
        v_xor_b32 {vtw[3]}, 0x60, {vtw[0]}
        v_lshrrev_b32 {vu1}, 3, {vl}
        v_xor_b32 {vu2}, {vu1}, {vl}
        v_and_b32 {vu2}, 7, {vu2}
        v_lshl_add_u32 {vtr_}, {vu1}, 7, {s_t0}
        v_lshl_add_u32 {vtr_}, {vu2}, 4, {vtr_}
        v_and_b32 {vu2}, 7, {vl}
        v_lshlrev_b32 {vu2}, 4, {vu2}
        s_lshl_b32 {s_t0}, {s_w}, 16
        v_lshl_add_u32 {vout}, {vu1}, 11, {s_t0}
        v_add_u32 {vout}, {vout}, {vu2}""") + [f's_mov_b32 {sf[i]}, {i * 16384}' for i in range(1, 4)]
    poll_o = f'buffer_load_dword {vpoll[0]}, {vpa}, {sfl}, {s_t2} offen sc1'
    AB = [Ab[i // 4][i % 4] for i in range(32)]
    abfree = [48 + i // 4 for i in range(32)]
    if PT:
        AB = [Ab[6 + i // 4][i % 4] for i in range(8)]; abfree = [0] * 8
        for b in range(4):
            AB += Ab[b] + Wb[b]; abfree += [52 + b] * 6
    def aload(i):
        r, t = divmod(i, 16)
        return f'buffer_load_dwordx4 {AB[i % 32]}, {vA2[r][t % 4]}, {sA}, {sk[t // 4]} offen{lm2}'
    a_next = 0; side = list(late2); checked = False
    for st in range(LATE0, 56):
        if ptrace == -2: pf.trace()
        n0 = wrd(vwr, (st % NW) * 2048, 1)
        n1 = ([f'WAITTAG D{(st + 1) % NW} A{(st + 1) % NB}'] + wrd(vwr, ((st + 1) % NW) * 2048, 0)) if st < 55 else []
        if st == LATE0 + 1: side = [flag(3, 'FL', 'OST')] + side
        if st == LATE0 + 2: side += [x for t in range(4, NE) for x in woread(t)]
        for c in range(8):
            nb, tb = divmod(c, 4)
            p.e(gm(st, nb, tb if nb == 0 else 3 - tb))
            if c == 0: p.add(n0)
            if c == 4: p.add(n1)
            if st == LATE0 + OC - PO and c == 1:
                assert not any(isinstance(y, str) and (str(vpa) + ',' in y or str(s_t2) + ',' in y) for y in side)
                p.e(poll_o)
            if st == LATE0 + OC and c == 1:
                p.add(check([f'v_cmp_gt_u32 vcc, 3, {vpoll[0]}'], [poll_o], 'o')); checked = True
                if TP2:
                    p.e(f's_and_b32 {s_t0}, {s_nt}, 7\ns_lshl_b32 {s_t0}, {s_t0}, 13\ns_add_u32 {s_t0}, {s_t0}, {sk[0]}\nv_lshlrev_b32 {vu1}, 7, {vl}')
                    p.add([Ins(f'buffer_load_dword {vpd}, {vu1}, {sA}, {s_t0} offen', 'pf')])
            if onevm(st): pass
            elif checked and a_next < AL and abfree[a_next] < st and st >= 56 - ALS:
                assert not any(y in late2 for y in side)
                p.e(aload(a_next)); a_next += 1
            for _ in range(3 if st < LATE0 + 2 else 2):
                if side:
                    x = side.pop(0); p.add(x if isinstance(x, list) else [x])
    assert not cur and not vq_ and checked and not side
    if ptrace == -2: pf.trace()
    pf.stamp(6)
    def scale(r): return [f'v_mul_f32 {acc3[nb][r][i]}, {acc3[nb][r][i]}, {vog[r]}' for nb in range(2) for i in range(16)]
    p.e('WAITTAG WO')
    rds = [x for t in range(NE, 16) for x in woread(t)]
    for k, x in enumerate(scale(0)):
        p.e(x)
        if k % 4 == 1 and rds: p.e(rds.pop(0))
        if k % 8 == 3 and a_next < AL + 4: p.e(aload(a_next)); a_next += 1
    side = []
    for k, x in enumerate(scale(1)):
        side.append(x)
        if rds: side.append(rds.pop(0))
    assert not rds
    def rdpart(sl, dst): return [f'ds_read_b128 {acc3[n_][dst][4*j:4*j+4]}, {vrr} offset:{sl * 8192 + (n_ * 4 + j) * 1024}' for n_ in range(2) for j in range(4)]
    def addpart(src): return [f'v_add_f32 {acc3[n_][0][e]}, {acc3[n_][0][e]}, {acc3[n_][src][e]}' for n_ in range(2) for e in range(16)]
    wr = []; dens = 2
    for i in range(64):
        r, t = divmod(i, 16)
        if ptrace == -2 and i % 8 == 0: pf.trace()
        for nb in range(2):
            if nb == 0:
                if i == 16: side += scale(2)
                if i == 16 + 2:
                    p.e('s_waitcnt lgkmcnt(0)\ns_barrier')
                if i == 32:
                    assert not side
                    side += scale(3); dens = 3 if FT else 2
                if i == 33 and FT:
                    side += fin_setup
                if i == 32 + 11:
                    assert not wr and not side
                    p.e('s_waitcnt lgkmcnt(0)\ns_barrier')
                    side += rdpart(2, 0) + rdpart(1, 1) + [None] * 4 + addpart(1); dens = 3
                if i == 48 + 7:
                    assert not wr and not side
                    p.e('s_waitcnt lgkmcnt(0)\ns_barrier')
                    side += rdpart(0, 2) + [None] * 6 + addpart(2)
            p.e(f'v_mfma_f32_32x32x16_bf16 {acc3[nb][r]}, {WO[t][4*nb:4*nb+4]}, {AB[i % 32]}, {acc3[nb][r]}')
            if a_next < 64 and a_next <= i + 30 and (nb == 0 or a_next < i + ALM): p.e(aload(a_next)); a_next += 1
            if wr and t >= 2 and (nb == 1 or r == 3): p.e(wr.pop(0))
            for _ in range(dens):
                if side:
                    x = side.pop(0)
                    if x: p.e(x)
        if t == 15 and r < 3:
            assert not wr
            wr = [f'ds_write_b128 {vrw[r]}, {acc3[nb][r][4*j:4*j+4]} offset:{(nb * 4 + j) * 1024}' for nb in range(2) for j in range(4)]
    fin = side
    assert a_next == 64
    pf.stamp(7)
    p.add([x for x in fin if x])
    for nb in range(2):
        a_ = acc3[nb][3]
        for jp in range(2):
            for i in range(4 * jp, 4 * jp + 4): p.e(f'v_pk_add_f32 {a_[2*i:2*i+2]}, {a_[2*i:2*i+2]}, {acc3[nb][0][2*i:2*i+2]}')
            o = Sx[0][8 + 4 * jp:12 + 4 * jp] if nb == 0 else P[0][4 * jp:4 * jp + 4]
            for i in range(4): p.e(f'v_cvt_pk_bf16_f32 {o[i]}, {a_[8 * jp + 2 * i]}, {a_[8 * jp + 2 * i + 1]}')
            p.e(f'v_permlane32_swap_b32 {o[0]}, {o[2]}\nv_permlane32_swap_b32 {o[1]}, {o[3]}')
            if FT: p.e(f'ds_write_b128 {vtw[2 * nb + jp]}, {o}')
            else: p.e(f'buffer_store_dwordx4 {o}, {vout}, {sout}, 0 offen offset:{nb * 64 + jp * 32}' + ('', ' sc1', ' nt', ' sc0 sc1')[OUTM])
    if FT:
        p.e('s_waitcnt lgkmcnt(0)')
        for i in range(4): p.e(f'ds_read_b128 {acc3[0][1][4*i:4*i+4]}, {vtr_} offset:{i * 1024}')
        for i in range(4): p.e(f'buffer_store_dwordx4 {acc3[0][1][4*i:4*i+4]}, {vout}, {sout}, {sf[i]} offen' + ('', ' sc1', ' nt', ' sc0 sc1')[OUTM])
    pf.stamp(8)
    pf.flush(s_w, sws, vl, vu0)
    if PRB or PRA:
        p.e(f"""
        v_readlane_b32 {s_t0}, {vtr}, {44 + 2 * PRA}
        v_readlane_b32 {s_t1}, {vtr}, {44 + 2 * PRB}
        v_readlane_b32 {s_t2}, {vtr}, 62
        s_nop 4
        s_sub_u32 {s_t0}, {s_t1}, {s_t0}
        s_min_u32 {s_t0}, {s_t0}, 20000
        s_lshl_b32 {s_t0}, {s_t0}, {PRS}
        s_mov_b32 {s_cnt}, 200000
        {name}_probe:
        s_memrealtime {s_pt[0:2]}
        s_waitcnt lgkmcnt(0)
        s_sub_u32 {s_t1}, {s_pt[0]}, {s_t2}
        s_cmp_ge_u32 {s_t1}, {s_t0}
        s_cbranch_scc1 {name}_probe_done
        s_sub_u32 {s_cnt}, {s_cnt}, 1
        s_cmp_lg_u32 {s_cnt}, 0
        s_cbranch_scc1 {name}_probe
        {name}_probe_done:
        """)
    if dbg > 0:
        p.e(f"""
        v_readlane_b32 {s_t0}, {vtr}, 44
        v_readlane_b32 {s_t1}, {vtr}, 45
        v_and_b32 {vu1}, 1, {vl}
        v_cmp_eq_u32 vcc, 0, {vu1}
        v_mov_b32 {vu1}, {s_t0}
        v_mov_b32 {vu2}, {s_t1}
        v_cndmask_b32 {vu1}, {vu2}, {vu1}, vcc
        v_sub_u32 {vu1}, {vtr}, {vu1}
        v_subrev_u32 {vu2}, 46, {vl}
        v_lshlrev_b32 {vu2}, 2, {vu2}
        v_cmp_gt_u32 vcc, 64, {vu2}
        v_cndmask_b32 {vu2}, 2.0, {vu2}, vcc
        s_mov_b32 {skv[0]}, {pdbg[0]}
        s_mov_b32 {skv[1]}, {pdbg[1]}
        s_movk_i32 {skv[2]}, 64
        s_lshl_b32 {s_t0}, s2, 2
        s_add_u32 {s_t0}, {s_t0}, {s_w}
        s_cmp_eq_u32 {s_t0}, {dbg - 1}
        s_cselect_b32 {s_t0}, 0, 2.0
        buffer_store_dword {vu1}, {vu2}, {skv}, {s_t0} offen
        """)
    p.e('s_endpgm')

    p.seg('slow0')
    p.e(f'{name}_slow:')
    p.e(f"""
    s_waitcnt vmcnt(0) lgkmcnt(0)
    v_mov_b32 {vu0}, 0xff800000
    v_mov_b32 {vu1}, 0xff800000
    s_mov_b32 {s_okv}, 0
    s_mov_b32 {skv[2]}, 262144
    """)
    p.seg('slow1')
    p.e(f'{name}_slow1:')
    for f in range(2): p.e(f'buffer_load_dwordx4 {K[0][4*f:4*f+4]}, {vl16}, {skv}, {s_okv} offen offset:{f * 1024}')
    for q in range(2):
        for f in range(2): p.e(qk(Sx[q], 0, q, f, '0'))
    rowmax(vu0, Sx[0], False); rowmax(vu1, Sx[1], False)
    p.e(f's_add_u32 {s_okv}, {s_okv}, 4096\ns_cmp_lt_u32 {s_okv}, 262144\ns_cbranch_scc1 {name}_slow1')
    p.seg('slow2')
    setc(0, vu0); setc(1, vu1)
    for q in range(2):
        for i in range(16): p.e(f'v_accvgpr_write_b32 {O[q][i]}, 0')
        for i in range(4): p.e(f'v_accvgpr_write_b32 {L[q][i]}, 0')
    p.e(f's_mov_b32 {s_okv}, 0')
    p.seg('slow3')
    p.e(f'{name}_slow3:')
    for f in range(2): p.e(f'buffer_load_dwordx4 {K[0][4*f:4*f+4]}, {vl16}, {skv}, {s_okv} offen offset:{f * 1024}')
    for f in range(2): p.e(f'buffer_load_dwordx4 {V[0][4*f:4*f+4]}, {vl16}, {skv}, {s_okv} offen offset:{2048 + f * 1024}')
    for q in range(2):
        for f in range(2): p.e(qk(Sx[q], 0, q, f, C[q]))
    for q in range(2):
        for i in range(16): p.e(f'v_exp_f32 {Sx[q][i]}, {Sx[q][i]}')
        for i in range(8): p.e(cvt(q, i))
        p.add([pv(q, 0), pv(q, 1), rsum(q)])
    p.e(f's_add_u32 {s_okv}, {s_okv}, 4096\ns_cmp_lt_u32 {s_okv}, 262144\ns_cbranch_scc1 {name}_slow3')
    p.seg('slow4')
    lsum()
    p.e(f's_branch {name}_epi')
    for lab, cond, reload_ in spins:
        p.seg(lab)
        p.e(f'{lab}_spin:\ns_mov_b32 {s_cnt if lab.endswith("cnt") else s_spin}, {SPIN}\n{lab}_again:\ns_sleep 2')
        p.add(reload_)
        p.e('s_waitcnt vmcnt(0)\ns_nop 1')
        p.add(cond)
        r_ = s_cnt if lab.endswith('cnt') else s_spin
        p.e(f's_nop 4\ns_cbranch_vccz {lab}_ok\ns_sub_u32 {r_}, {r_}, 1\ns_cmp_lg_u32 {r_}, 0\ns_cbranch_scc1 {lab}_again\ns_branch {lab}_ok')
    p.seg('end')
    p.e(f'{name}_end:\ns_endpgm')
    mid = ['join', 'partA', 'loop', 'loop', 'tail']
    slow = ['slow0', 'slow1', 'slow1', 'slow2', 'slow3', 'slow3', 'slow4']
    traces = []
    for wc in range(2):
        for x in ([],):
            traces.append(['pro'] + x + [f'c{wc}a', f'c{wc}l1', f'c{wc}l2', f'c{wc}l1', f'c{wc}l2', f'c{wc}l1', f'c{wc}last'] + mid + ['epi'])
    traces.append(mid + slow + ['epi'])
    for lab, _, _ in spins: traces.append([lab])
    p.auto_waits(traces)
    nn = p.hazards(traces)
    return kernel_header(name) + p.text(), kernel_desc(name), dict(nops=nn, v=va.p, a=aa.p, s=max(sa.p, s_hi))

if __name__ == '__main__':
    import sys
    NAME = 'gated_mix__softmax_full_mha__glu_gated_bilinear__prompt'
    REF = f'cdna_kernels/{NAME}.s.ref'
    dst = sys.argv[1]
    kw = {a.split('=')[0]: float(a.split('=')[1]) if '.' in a else int(a.split('=')[1]) for a in sys.argv[2:] if '=' in a}
    t, d, info = gen_fused(NAME + '_kernel', prof='prof' in sys.argv, force_slow='slow' in sys.argv, **kw)
    print(info, file=sys.stderr)
    head = [l for l in open(REF).read().split('\n') if l.startswith(';') and '@launch' not in l]
    doc = '''; One persistent launch, 256 workgroups x 4 waves (one wave per SIMD, 512 registers, 160 KiB LDS).
;   phase 1  x[256 rows] @ [wq_h wk_h wv_h | w_gate 112 cols | w_up 112 cols], 16x16x32 MFMA, LDS-DMA double buffer.
;   phase 2  softmax(QK^T)V for the block's 256 queries (32x32x16 MFMA), interleaved with the down projection of a
'''
    out = '\n'.join(head) + f'\n; @launch grid=(256,1,1) block=(256,1,1) lds={F_LDS}\n' + doc + '.amdgcn_target "amdgcn-amd-amdhsa--gfx950"\n' + t + d
    open(dst, 'w').write(out)
```

```python
from gen_common import *

X0, X1, W0, W1, QS = 0, 32768, 65536, 106496, 147456
F_LDS = 163840
WS_FL = 33 << 20
WS_T = 36 << 20
DBG_CNT = 64
SPIN = 40000

def gen_fused(name, prof=False, pfd=3, cq=8, cg=6.5, cx=4, NB=8, DA=4, DW=3, RP=6, PM=36, HP=1.25, force_slow=False, ptrace=0, dbg=0, exp_=0, VSP=2, PFP=18, OC=8, KP=1, H0=2, ROT=0, CPF=1, OUTM=1, CP0=1, CP2=0, FG=3, TLB=0, EV=1, DL=6, PT=0, GP=0, CONCE=0, OWN=1, NOPF=0, XP2=0, PRS=2, TT=1, TP1=0, TP2=0, AL=16, ALS=2, ALM=18, FT=1, PA=48, AS=1, KS=2, PK=0, PKR=1, AW=1, KF=100, KC=5, FOFF=0, S1P=10, MWT=0, LM1=0, LM2=0, PO=3, LP=0, PRE=-1, PF0=0, PD0=3, xpf=1, F0=0, FS=1.0, GD=2, SMC=16, VMC=8, VPEN=16, MW=1, PRA=0, PRB=0, PG=3, E0=11, st_mod=' sc1'):
    pfm = 1
    kv_mod = '' if exp_ & 64 else st_mod
    lm1 = ('', ' sc1', ' nt', ' sc0')[LM1]; lm2 = ('', ' sc1', ' nt', ' sc0')[LM2]
    p = Prog()
    sa = Alloc('s', 4, 102); va = Alloc('v', 1, 256); aa = Alloc('a', 0, 256)
    ptr = sa(16, 4)
    px, pqkv, pwo, pwg, pwu, pwd, pgw = ptr[0:2], ptr[2:4], ptr[4:6], ptr[8:10], ptr[10:12], ptr[12:14], ptr[14:16]
    pod = sa(4, 4); pout, pdbg = pod[0:2], pod[2:4]
    pws = sa(2); smask = sa(2)
    sws = sa(4); sfl = sa(4); sdbg = sa(4)
    s_mb, s_h, s_w, s_wr, s_wc, s_t0, s_t1, s_t2, s_cnt, s_tr, s_hb = [sa() for _ in range(11)]
    s_pt = sa(4, 2)
    s_base = sa.p
    sx = sa(4); sq = sa(4); sg = sa(4); spf = sa(4); sp2 = sa(4); sp3 = sa(4)
    s_c0, s_c1, s_ox, s_oq, s_og, s_pfo, s_pfs, s_gs, s_grp, s_ano = [sa() for _ in range(10)]
    s_mx, s_mw, s_msk = sa(), sa(), sa()
    s_hi = sa.p

    vl, vpd, vflag, vtr, vflk = [va() for _ in range(5)]
    v_base = va.p
    pf = Prof2(p, prof, s_pt, vtr, s_tr)
    vdx = [va() for _ in range(8)]; vdq = [va() for _ in range(2)]; vdq.append(vdq[0]); vdg = [va() for _ in range(7)]
    vxr = [va() for _ in range(2)]; vqr = [va() for _ in range(2)]; vgr = [va() for _ in range(2)]
    vt0, vt1, vt2, vt3, vpf = [va() for _ in range(5)]
    vcnt = va(); vwo = va()
    vtmp = va(28, 4)
    assert vtmp.a == 36
    xlo = [[aa(8, 4) for _ in range(4)] for _ in range(2)]; xhi = [aa(8, 4) for _ in range(4)]
    def xf(st, m, ks): return (xlo[st][m] if m < 4 else xhi[m - 4])[4 * ks:4 * ks + 4]
    NSLOT = 4; DIST = 3
    wf = [aa(8, 4) for _ in range(NSLOT)]
    acc = [[None] * 8 for _ in range(10)]
    for n in [0, 1, 6, 7, 8, 9, 2, 3, 4, 5]:
        for m in range(8):
            acc[n][m] = va(4, 4) if va.p + 4 <= 256 else aa(4, 4)

    def lines(s): return [x.strip() for x in s.strip().split('\n')]
    def dma_x(st):
        L = []
        for i in range(8):
            pre = [f's_add_u32 m0, {s_mx}, {(X0, X1)[st] + (i // 4) * 4096}'] if i % 4 == 0 else []
            L.append((pre, Ins(f'buffer_load_dwordx4 {vdx[i]}, {sx}, {s_ox} offen offset:{(i % 4) * 1024}{lm1} lds', f'S{st}')))
        return L
    def dma_w(st):
        L = []
        for i in range(10):
            pre = [f's_add_u32 m0, {s_mw}, {(W0, W1)[st] + (i // 4) * 4096}'] if i % 4 == 0 else []
            v, sr, so = (vdq[i - 7], sq, s_oq) if i >= 7 else (vdg[i], sg, s_og)
            L.append((pre, Ins(f'buffer_load_dwordx4 {v}, {sr}, {so} offen offset:{(i % 4) * 1024}{lm1} lds', f'S{st}')))
        return L
    def emit(lst):
        for pre, ins in lst:
            p.add(pre); p.add([ins])
    adv = [f's_add_u32 {s_oq}, {s_oq}, {64 * 6144}', f's_add_u32 {s_og}, {s_og}, {64 * 7168}', f's_add_u32 {s_ox}, {s_ox}, 128']

    p.seg('pro')
    p.e(f"""
    s_cmp_ge_u32 s2, 256
    s_cbranch_scc1 {name}_end
    """)
    if ptrace == 3:
        p.e(f's_memtime {s_pt[2:4]}\ns_waitcnt lgkmcnt(0)\ns_mov_b32 {s_hb}, {s_pt[2]}')
    if PRA == -1:
        p.e(f's_memrealtime {s_pt[2:4]}\ns_waitcnt lgkmcnt(0)\ns_mov_b32 {s_hb}, {s_pt[2]}')
    p.e(f"""
    s_load_dwordx16 {ptr}, s[0:1], 0
    s_load_dwordx4 {pod}, s[0:1], 64
    s_load_dwordx2 {pws}, s[0:1], 80
    v_lshrrev_b32 {vt0}, 6, v0
    v_and_b32 {vl}, 63, v0
    s_lshr_b32 {s_t1}, s2, 3
    v_readfirstlane_b32 {s_w}, {vt0}
    s_and_b32 {s_mb}, {s_t1}, 7
    s_and_b32 {s_t0}, s2, 7
    s_lshr_b32 {s_t1}, {s_t1}, 3
    s_lshl_b32 {s_h}, {s_t0}, 2
    s_add_u32 {s_h}, {s_h}, {s_t1}
    s_lshr_b32 {s_wr}, {s_w}, 1
    s_and_b32 {s_wc}, {s_w}, 1
    """)
    vca = vtmp[24:26]
    if CP0:
        p.e(f"""
        s_getpc_b64 {smask}
        {name}_pcs:
        s_lshr_b32 {s_t0}, s2, 3
        s_lshl_b32 {s_t0}, {s_t0}, 2
        s_add_u32 {s_t0}, {s_t0}, {s_w}
        s_lshl_b32 {s_t0}, {s_t0}, 7
        v_and_b32 {vt0}, 1, {vl}
        v_lshl_add_u32 {vt0}, {vt0}, 14, {s_t0}
        v_min_u32 {vt0}, {name}_join-{name}_pcs, {vt0}
        v_mov_b32 {vca[1]}, {smask[1]}
        v_add_co_u32 {vca[0]}, vcc, {smask[0]}, {vt0}
        v_addc_co_u32 {vca[1]}, vcc, 0, {vca[1]}, vcc
        """)
        p.add([Ins(f'global_load_dword {vpd}, {vca}, off', 'pf')])
    vxp, vgp = vtmp[0], vtmp[1]
    if XP2: p.e(f'v_mov_b32 {vtmp[3]}, 2.0')
    p.e(f"""
    v_and_b32 {vt0}, 7, {vl}
    v_lshrrev_b32 {vt1}, 3, {vl}
    v_mul_u32_u24 {vt2}, 86, {vt1}
    v_lshrrev_b32 {vt2}, 8, {vt2}
    v_mad_i32_i24 {vt1}, {vt2}, -3, {vt1}
    v_lshl_add_u32 {vt0}, {vt2}, 6, {vt0}
    s_lshl_b32 {s_t0}, {s_mb}, 3
    v_add_u32 {vt0}, {s_t0}, {vt0}
    s_cmp_eq_u32 {s_w}, 3
    s_movk_i32 {s_c0}, 7168
    s_cmov_b32 {s_c0}, 6144
    s_movk_i32 {s_c1}, 108
    s_cmov_b32 {s_c1}, 2048
    v_mul_u32_u24 {vt0}, {s_c0}, {vt0}
    v_mad_u32_u24 {vxp}, {vt1}, {s_c1}, {vt0}
    v_cmp_gt_u32 vcc, 48, {vl}
    s_lshl_b32 {s_t0}, {s_t1}, 17
    v_lshl_add_u32 {vt0}, {vl}, 11, {s_t0}
    v_cndmask_b32 {vxp}, 2.0, {vxp}, vcc
    s_cmp_eq_u32 {s_w}, 0
    s_cselect_b64 vcc, -1, 0
    v_cndmask_b32 {vxp}, {vxp}, {vt0 if not XP2 else vtmp[3]}, vcc
    """)
    if XP2:
        p.e(f"""
        s_lshl_b32 {s_c0}, {s_w}, 15
        s_add_u32 {s_t0}, {s_t0}, {s_c0}
        v_lshrrev_b32 {vt0}, 1, {vl}
        v_lshl_add_u32 {vt0}, {vt0}, 11, {s_t0}
        v_and_b32 {vt1}, 1, {vl}
        v_lshl_add_u32 {vt0}, {vt1}, 7, {vt0}
        v_cmp_gt_u32 vcc, 32, {vl}
        v_cndmask_b32 {vtmp[4]}, 2.0, {vt0}, vcc
        """)
    x_addr = lines(f"""
    v_lshrrev_b32 {vt0}, 3, {vl}
    v_and_b32 {vt1}, 7, {vl}
    v_lshrrev_b32 {vt2}, 4, {vl}
    v_xor_b32 {vt1}, {vt1}, {vt2}
    v_lshlrev_b32 {vt3}, 11, {vt0}
    s_lshl_b32 {s_c0}, {s_w}, 17
    v_add_u32 {vt3}, {s_c0}, {vt3}
    v_lshl_add_u32 {vdx[0]}, {vt1}, 4, {vt3}
    v_xor_b32 {vt1}, 4, {vt1}
    v_lshl_add_u32 {vdx[1]}, {vt1}, 4, {vt3}
    v_add_u32 {vdx[1]}, {16384 - 1024}, {vdx[1]}
    s_lshl_b32 {s_mx}, {s_w}, 13
    s_mov_b32 {s_ox}, 0""") + [f'v_add_u32 {vdx[i]}, {(i - i % 2) * 16384 - (i % 4 - i % 2) * 1024}, {vdx[i % 2]}' for i in range(2, 8)]
    q_addr = lines(f"""
    v_lshrrev_b32 {vt0}, 2, {vl}
    v_and_b32 {vt2}, 2, {vt2}
    v_and_b32 {vt1}, 3, {vl}
    v_xor_b32 {vt1}, {vt1}, {vt2}
    s_lshl_b32 {s_c0}, {s_w}, 4
    v_add_u32 {vt0}, {s_c0}, {vt0}
    v_mul_u32_u24 {vt0}, 6144, {vt0}
    v_lshl_add_u32 {vdq[1]}, {vt1}, 4, {vt0}
    v_add_u32 {vdq[0]}, 1024, {vdq[1]}
    s_mul_i32 {s_mw}, {s_w}, 10240
    s_mov_b32 {s_oq}, 0
    s_mov_b32 {s_og}, 0""")
    if PRE >= 0: p.add(x_addr + q_addr)
    def gu_offsets():
        L = [lines(f"""
        s_mul_i32 {s_t0}, {s_wc}, {32 * 7168}
        s_movk_i32 {s_c0}, 6944
        s_movk_i32 {s_c1}, 28672
        v_mul_u32_u24 {vt3}, 4682, {vl}
        v_lshl_add_u32 {vtmp[2]}, {vl}, 4, {s_t0}""")]
        for j in range(7):
            tj = vt3; q_ = []
            if j:
                q_.append(f'v_add_u32 {vt0}, {64 * j * 4682}, {vt3}'); tj = vt0
            q_ += lines(f"""
            v_bfe_u32 {vt1}, {tj}, 18, 1
            v_bfe_u32 {vt2}, {tj}, 19, 1
            v_lshrrev_b32 {vt0}, 16, {tj}
            v_sub_u32 {vt1}, {vt1}, {vt2}
            v_mad_u32_u24 {vdg[j]}, {vt0}, {s_c0}, {vtmp[2]}
            v_mad_i32_i24 {vdg[j]}, {vt1}, {s_c1}, {vdg[j]}""")
            if j == 3: q_.append(f'v_add_u32 {vtmp[2]}, 4096, {vtmp[2]}')
            L.append(q_)
        return L
    gu = gu_offsets()
    if PRE >= 1:
        for q_ in gu: p.add(q_)
    PD = pfd
    gpf_addr = lines(f"""
        s_cmp_eq_u32 {s_w}, 0
        s_cselect_b32 {s_grp}, 12, 14
        s_lshl_b32 {s_pfs}, {s_grp}, 15
        s_cmp_eq_u32 {s_w}, 3
        s_cselect_b32 {s_grp}, 8, {s_grp}
        s_cselect_b32 {s_pfs}, 0x80, {s_pfs}
        s_cselect_b32 {s_ano}, 11, 7
        s_mul_i32 {s_t1}, {s_grp}, s2
        v_and_b32 {vt1}, 15, {vl}
        v_add_u32 {vt0}, {s_t1}, {vt1}
        v_lshlrev_b32 {vpf}, {s_ano}, {vt0}
        v_lshrrev_b32 {vt0}, 4, {vl}
        v_mul_lo_u32 {vt0}, {vt0}, {s_pfs}
        v_add_u32 {vgp}, {vt0}, {vpf}
        v_cmp_gt_u32 vcc, {s_grp}, {vt1}
        v_cmp_gt_u32 {smask}, {16 * (PD0 - 1)}, {vl}
        s_and_b64 {smask}, {smask}, vcc
        v_cndmask_b32 {vgp}, 2.0, {vgp}, {smask}
        v_cmp_gt_u32 vcc, {s_grp}, {vl}
        s_mul_i32 {s_pfo}, {s_pfs}, {PD0}
        v_cndmask_b32 {vpf}, 2.0, {vpf}, vcc""")
    gpf_issue = lines(f"""
        s_cmp_eq_u32 {s_w}, 0
        s_cselect_b64 {spf[0:2]}, {pqkv}, {pwg}
        s_cmp_eq_u32 {s_w}, 2
        s_cselect_b64 {spf[0:2]}, {pwu}, {spf[0:2]}
        s_cmp_eq_u32 {s_w}, 3
        s_cselect_b64 {spf[0:2]}, {px}, {spf[0:2]}
        s_lshl_b32 {spf[2]}, {s_grp}, 19""") + [Ins(f'buffer_load_dword {vpd}, {vgp}, {spf}, {s_pfs} offen', 'pf')]
    if OWN:
        gpf_addr = lines(f"""
        s_cmp_eq_u32 {s_w}, 3
        s_mov_b32 {s_pfs}, {64 * 7168}
        s_cmov_b32 {s_pfs}, {64 * 6144}
        v_cmp_gt_u32 vcc, 24, {vl}
        s_lshl_b32 {s_t1}, s2, 14
        v_and_b32 {vt1}, 7, {vl}
        v_cndmask_b32 {vpf}, 2.0, {vxp}, vcc
        v_lshl_add_u32 {vt0}, {vt1}, 11, {s_t1}
        v_lshrrev_b32 {vt1}, 3, {vl}
        v_lshl_add_u32 {vgp}, {vt1}, 7, {vt0}
        v_cmp_gt_u32 vcc, 8, {vl}
        v_cmp_gt_u32 {smask}, {8 * (PD0 - 1)}, {vl}
        v_cndmask_b32 {vt0}, 2.0, {vt0}, vcc
        v_cndmask_b32 {vgp}, 2.0, {vgp}, {smask}
        s_cmp_eq_u32 {s_w}, 0
        s_cselect_b64 vcc, -1, 0
        s_cselect_b32 {s_pfs}, 0x80, {s_pfs}
        s_cselect_b64 {spf[0:2]}, {px}, {spf[0:2]}
        s_cselect_b32 {spf[2]}, {S * D * 2}, {spf[2]}
        s_cselect_b32 {s_t0}, 1, 2
        v_cndmask_b32 {vpf}, {vpf}, {vt0}, vcc
        v_cndmask_b32 {vgp}, {vpf}, {vgp}, vcc
        s_mul_i32 {s_t0}, {s_t0}, {s_pfs}
        s_mul_i32 {s_pfo}, {s_pfs}, {PD0}""")
        if OWN == 2:
            gpf_addr = lines(f"""
            s_cmp_eq_u32 {s_w}, 3
            s_mov_b32 {s_pfs}, {64 * 7168}
            s_cmov_b32 {s_pfs}, {64 * 6144}
            s_cmp_eq_u32 {s_w}, 0
            s_cselect_b32 {s_t1}, 64, 24
            s_cselect_b32 {s_pfs}, 0x80, {s_pfs}
            s_cselect_b32 {s_t0}, 1, 2
            v_cmp_gt_u32 vcc, {s_t1}, {vl}
            s_mul_i32 {s_t0}, {s_t0}, {s_pfs}
            s_add_u32 {s_pfo}, {s_t0}, {s_pfs}
            v_cndmask_b32 {vpf}, 2.0, {vxp}, vcc
            v_mov_b32 {vgp}, {vpf}""")
        assert PD0 == 3 and PRE < 2 and not PF0 and not XP2
        gpf_issue = [Ins(f'buffer_load_dword {vpd}, {vgp}, {spf}, {s_t0} offen', 'pf')]
    def pfetch():
        if NOPF & 1: return []
        return [Ins(f'buffer_load_dword {vpd}, {vpf}, {spf}, {s_pfo} offen', 'pf'), f's_add_u32 {s_pfo}, {s_pfo}, {s_pfs}']
    def pfetch_d():
        if NOPF & 2: return []
        return [Ins(f'buffer_load_dword {vpd}, {vt3}, {sp2}, {s_c1} offen', 'pf'), f's_add_u32 {s_c1}, {s_c1}, {1024 * DL * 128}']
    rd_addr = lines(f"""
    v_and_b32 {vt0}, 15, {vl}
    v_lshrrev_b32 {vt1}, 4, {vl}
    v_lshrrev_b32 {vt2}, 1, {vt0}
    v_xor_b32 {vt2}, {vt1}, {vt2}
    s_lshl_b32 {s_t0}, {s_wr}, 14
    v_lshl_add_u32 {vt3}, {vt0}, 7, {s_t0}
    v_lshl_add_u32 {vxr[0]}, {vt2}, 4, {vt3}
    v_xor_b32 {vxr[1]}, 64, {vxr[0]}
    v_and_b32 {vt3}, 3, {vt0}
    v_lshlrev_b32 {vt3}, 3, {vt3}
    v_lshrrev_b32 {vt0}, 2, {vt0}
    v_lshrrev_b32 {vt2}, 1, {vt1}
    v_and_b32 {vt1}, 1, {vt1}
    v_mul_u32_u24 {vqr[0]}, 10240, {vt2}
    v_mul_u32_u24 {vqr[1]}, {512 + 32}, {vt1}
    v_add3_u32 {vqr[0]}, {vqr[0]}, {vqr[1]}, {vt3}
    v_lshl_add_u32 {vqr[0]}, {vt0}, 6, {vqr[0]}
    s_lshl_b32 {s_t0}, {s_wc}, 10
    s_sub_u32 {s_t0}, {W0 + 8192}, {s_t0}
    v_add_u32 {vqr[0]}, {s_t0}, {vqr[0]}
    v_xor_b32 {vqr[1]}, 32, {vqr[0]}
    v_lshl_add_u32 {vt0}, {vt1}, 2, {vt0}
    v_lshl_add_u32 {vt0}, {vt2}, 4, {vt0}
    v_mul_u32_u24 {vt0}, 224, {vt0}
    s_mul_i32 {s_t0}, {s_wc}, 96
    s_add_u32 {s_t0}, {s_t0}, {W0}
    v_add3_u32 {vgr[0]}, {vt0}, {vt3}, {s_t0}
    v_add_u32 {vgr[1]}, 20480, {vgr[0]}""")
    if PRE >= 2 or PF0: p.add(gpf_addr)
    if PRE >= 3: p.add(rd_addr)
    p.e(f"""
    s_lshl_b32 {s_t0}, {s_mb}, 19
    s_lshl_b32 {s_t1}, {s_h}, 6
    s_mul_i32 {s_t2}, {s_h}, 224
    s_mov_b32 {sx[3]}, 0x00020000
    s_mov_b32 {sq[3]}, 0x00020000
    s_mov_b32 {sg[3]}, 0x00020000
    s_mov_b32 {spf[3]}, 0x00020000
    s_sub_u32 {sx[2]}, {S * D * 2}, {s_t0}
    s_sub_u32 {sq[2]}, {D * 3072 * 2}, {s_t1}
    s_sub_u32 {sg[2]}, {D * F * 2}, {s_t2}
    s_waitcnt lgkmcnt(0)
    """)
    pf.stamp(0)
    pf.trace_init(vtr, s_tr)
    if PRA == -1: p.e(f'v_writelane_b32 {vtr}, {s_hb}, 42')
    if ptrace == 3:
        p.e(f'v_writelane_b32 {vtr}, {s_hb}, 0\ns_mov_b32 {s_tr}, 1')
        pf.trace()
    p.e(f"""
    s_add_u32 {sx[0]}, {px[0]}, {s_t0}
    s_addc_u32 {sx[1]}, {px[1]}, 0
    s_add_u32 {sq[0]}, {pqkv[0]}, {s_t1}
    s_addc_u32 {sq[1]}, {pqkv[1]}, 0
    s_cmp_ge_u32 {s_w}, 2
    s_cselect_b64 {sg[0:2]}, {pwu}, {pwg}
    s_add_u32 {sg[0]}, {sg[0]}, {s_t2}
    s_addc_u32 {sg[1]}, {sg[1]}, 0
    s_cmp_eq_u32 {s_w}, 3
    s_cselect_b64 {spf[0:2]}, {sq[0:2]}, {sg[0:2]}
    s_cselect_b32 {spf[2]}, {sq[2]}, {sg[2]}
    s_cmp_eq_u32 {s_w}, 0
    s_cselect_b64 {spf[0:2]}, {sx[0:2]}, {spf[0:2]}
    s_cselect_b32 {spf[2]}, {sx[2]}, {spf[2]}
    """)
    if XP2: p.add([Ins(f'buffer_load_dword {vpd}, {vtmp[4]}, {sx}, 0 offen', 'pf')])
    if xpf: p.add([Ins(f'buffer_load_dword {vpd}, {vxp}, {spf}, 0 offen', 'pf')])
    if PF0: p.add(gpf_issue)
    if ptrace > 0: pf.trace()
    if PRE < 0: p.add(x_addr)
    emit(dma_x(0))
    if ptrace > 0: pf.trace()
    if PRE < 0: p.add(q_addr)
    w0 = dma_w(0)
    p.e(f's_add_u32 m0, {s_mw}, {W0 + 4096}')
    emit(w0[7:])
    if PRE < 1: p.add(gu[0])
    for j in range(7):
        if PRE < 1: p.add(gu[j + 1])
        emit([w0[j]])
    p.add(adv)
    if ptrace > 0: pf.trace()
    emit((dma_w(1) + dma_x(1))[:S1P])
    if PRE < 2 and not PF0 and not NOPF & 4: p.add(gpf_addr)
    if not PF0 and not NOPF & 4: p.add(gpf_issue)
    if PRE < 3: p.add(rd_addr)
    gx = [vtmp[4 * i:4 * i + 4] for i in range(4)]; gw = [vtmp[16:20], vtmp[20:24]]; t = vtmp[24:28]; z = [vt0, vt1]
    flag_setup = [[f's_add_u32 {sfl[0]}, {pws[0]}, {WS_FL}', f's_addc_u32 {sfl[1]}, {pws[1]}, 0']] + lines(f"""
    s_movk_i32 {sfl[2]}, 8192
    s_mov_b32 {sfl[3]}, 0x00020000
    s_mov_b32 {sws[0]}, {pws[0]}
    s_mov_b32 {sws[1]}, {pws[1]}
    s_mov_b32 {sws[2]}, {WS_SIZE}
    s_mov_b32 {sws[3]}, 0x00020000
    s_mov_b32 {sp2[3]}, 0x00020000
    s_lshl_b32 {s_t0}, {s_mb}, 5
    s_add_u32 {s_t0}, {s_t0}, {s_h}
    s_lshl_b32 {s_gs}, {s_t0}, 7
    s_lshl_b32 {s_t0}, {s_t0}, 2
    s_add_u32 {s_t0}, {s_t0}, {s_w}
    s_lshl_b32 {s_t0}, {s_t0}, 2
    v_mov_b32 {vt0}, {s_t0}
    v_cmp_eq_u32 vcc, 0, {vl}
    v_mov_b32 {vt3}, 0
    v_cndmask_b32 {vflag}, 2.0, {vt0}, vcc
    s_lshl_b32 {s_t0}, {s_h}, 3
    s_add_u32 {s_t0}, {s_t0}, {s_mb}
    s_lshl_b32 {s_t0}, {s_t0}, 2
    s_add_u32 {s_t0}, {s_t0}, {s_w}
    s_lshl_b32 {s_t0}, {s_t0}, 2
    s_add_u32 {s_t0}, {s_t0}, 4096
    v_mov_b32 {vt0}, {s_t0}
    buffer_store_dword {vt3}, {vflag}, {sfl}, 0 offen sc1
    v_cndmask_b32 {vflk}, 2.0, {vt0}, vcc
    s_lshl_b32 {s_t1}, {s_w}, 3
    buffer_store_dword {vt3}, {vflk}, {sfl}, 0 offen sc1
    s_add_u32 {s_gs}, {s_gs}, {s_t1}
    s_add_u32 {s_gs}, {s_gs}, {WS_G}
    s_lshl_b32 {s_t0}, {s_h}, 3
    s_lshl_b32 {s_t1}, {s_w}, 1
    s_add_u32 {s_t0}, {s_t0}, {s_t1}
    s_lshl_b32 {s_t2}, {s_t0}, 11
    s_mov_b32 {s_msk}, 0xffff0000
    v_lshlrev_b32 {z[0]}, 5, {vl}""")
    if ptrace > 0: pf.trace()
    p.e('WAITTAG S0')
    if ptrace > 0: pf.trace()
    p.e('s_barrier')
    if ptrace > 0: pf.trace()
    pf.stamp(1)

    def gate_ops():
        L = []
        for r in range(2):
            for j in range(8):
                xr = gx[2 * r + j // 4][j % 4]; wr_ = gw[j // 4][j % 4]
                L += [f'v_lshlrev_b32 {t[0]}, 16, {xr}', f'v_lshlrev_b32 {t[1]}, 16, {wr_}',
                      f'v_and_b32 {t[2]}, {s_msk}, {xr}', f'v_and_b32 {t[3]}, {s_msk}, {wr_}',
                      f'v_mul_f32 {t[0]}, {t[0]}, {t[1]}', f'v_mul_f32 {t[2]}, {t[2]}, {t[3]}',
                      f'v_cvt_pk_bf16_f32 {t[0]}, {t[0]}, {t[2]}', f'v_lshlrev_b32 {t[1]}, 16, {t[0]}',
                      f'v_and_b32 {t[2]}, {s_msk}, {t[0]}']
                if j == 0: L.append(f'v_add_f32 {z[r]}, {t[1]}, {t[2]}')
                else: L += [f'v_add_f32 {t[1]}, {t[1]}, {t[2]}', f'v_add_f32 {z[r]}, {z[r]}, {t[1]}']
        for mode in ('quad_perm:[1,0,3,2]', 'quad_perm:[2,3,0,1]', 'row_half_mirror', 'row_mirror'):
            for r in range(2): L.append(f'v_add_f32_dpp {z[r]}, {z[r]}, {z[r]} {mode} row_mask:0xf bank_mask:0xf')
        for op in ('v_permlane16_swap_b32', 'v_permlane32_swap_b32'):
            for r in range(2): L.append(f'v_mov_b32 {t[r]}, {z[r]}')
            for r in range(2): L.append(f'{op} {t[r]}, {z[r]}')
            for r in range(2): L.append(f'v_add_f32 {z[r]}, {z[r]}, {t[r]}')
        L += f"""v_and_b32 {t[1]}, 1, {vl}
        v_cmp_eq_u32 vcc, 1, {t[1]}
        v_and_b32 {t[3]}, 2, {vl}
        v_cndmask_b32 {t[0]}, {z[0]}, {z[1]}, vcc
        v_cvt_pk_bf16_f32 {t[0]}, {t[0]}, {t[0]}
        v_and_b32 {t[0]}, {s_msk}, {t[0]}
        v_mul_f32 {t[0]}, {hex(f32bits(-math.log2(math.e)))}, {t[0]}
        v_exp_f32 {t[0]}, {t[0]}
        v_cmp_eq_u32 vcc, 2, {t[3]}
        v_add_f32 {t[0]}, 1.0, {t[0]}
        v_rcp_f32 {t[0]}, {t[0]}
        v_lshlrev_b32 {t[3]}, 4, {t[3]}
        v_cvt_pk_bf16_f32 {t[0]}, {t[0]}, {t[0]}
        v_and_b32 {t[0]}, {s_msk}, {t[0]}
        v_sub_f32 {t[2]}, 1.0, {t[0]}
        v_cvt_pk_bf16_f32 {t[2]}, {t[2]}, {t[2]}
        v_and_b32 {t[2]}, {s_msk}, {t[2]}
        v_cndmask_b32 {t[0]}, {t[0]}, {t[2]}, vcc
        v_lshl_add_u32 {t[3]}, {t[1]}, 2, {t[3]}
        v_cmp_gt_u32 vcc, 4, {vl}
        v_cndmask_b32 {t[3]}, 2.0, {t[3]}, vcc
        buffer_store_dword {t[0]}, {t[3]}, {sws}, {s_gs} offen{st_mod}""".split('\n')
        return [x.strip() for x in L]

    def wread(n, st, wc):
        slot = wf[(10 * st + n) % NSLOT]
        nq = 4 if wc == 0 else 2
        L = []
        for ks in range(2):
            if n < nq: base = vqr[n % 2]; off = ks * 20480 + (1024 if (wc == 0 and n < 2) else 0); so = 256
            else: base = vgr[(n - nq) % 2]; off = ks * 10240 + ((n - nq) // 2) * 32; so = 1792
            off += st * (W1 - W0)
            L += [f'ds_read_b64_tr_b16 {slot[4 * ks + 2 * s:4 * ks + 2 * s + 2]}, {base} offset:{off + s * so}' for s in range(2)]
        return L
    def xread(m, ks, st):
        return f'ds_read_b128 {xf(st, m, ks)}, {vxr[ks]} offset:{st * (X1 - X0) + m * 2048}'

    for m in range(2):
        for ks in range(2): p.e(xread(m, ks, 0))
    p.e(f's_cmp_eq_u32 {s_wc}, 1')
    p.e(f's_cbranch_scc1 {name}_c1')

    def stage(st, wc, first=False, last=False, extra=None, fill=None, estep=2, postbar=None, nodma1=False, early=None, dens=2):
        slots = {}
        for j in range(10):
            jj = j + DIST
            if jj < 10: rd = wread(jj, st, wc)
            elif last: continue
            else: rd = wread(jj - 10, st ^ 1, wc)
            for i, x in enumerate(rd): place(slots, 16 * j + ((0, 2, 4, 6) if j < 9 else (0, 11, 13, 15))[i], x)
        bar = 16 * (10 - DIST)
        if not last:
            for i in range(8): place(slots, bar + 8 + (0, 2, 4, 6, 16, 18, 20, 22)[i], xread(i // 2, i % 2, st ^ 1))
            for i in range(8): place(slots, 144 + (2, 3, 4, 5, 7, 8, 9, 10)[i], xread(7 - i // 2, i % 2, st ^ 1))
        pos = []; c = 1.0
        for k in range(18):
            pos.append(int(c)); c += cg if k < 7 else (cq if k < 10 else cx)
        endc = int(c) - (160 - bar)
        pos0 = pos
        if first:
            sh = pos[S1P] - 1
            pos = [(int(F0 + (x - sh) * FS) + 160 - bar) if k >= S1P else -1 for k, x in enumerate(pos)]; endc = int(F0 + (endc + 160 - bar - sh) * FS)
        if not last:
            dl = dma_w(st ^ 1) + dma_x(st ^ 1)
            for k in range(18):
                c = pos[k] - (160 - bar)
                if c < 0: continue
                for x in dl[k][0]: place(slots, max(c - 1, 0), x)
                place(slots, c, dl[k][1])
            for i, x in enumerate(adv): place(slots, endc - 2 + i, x)
            if first: pos = pos0
            dl = dma_w(st) + dma_x(st)
            for k in range(18):
                c = bar + pos[k]
                if c >= 160 or nodma1: continue
                for x in dl[k][0]: place(slots, c - 1, x)
                place(slots, c, dl[k][1])
        if early:
            c = (pos[PFP] - (0 if first else 160 - bar) - 2) if PFP < 18 else endc + 1
            for x in early: place(slots, max(c, 0), x); c += 1
            if PFP >= 18: endc = c + 1
        c = endc + 1
        for x in (extra or []):
            if isinstance(x, list):
                for y in x: place(slots, c, y)
                c += estep; continue
            place(slots, c, x)
            c += 3 if (isinstance(x, Ins) or x.startswith('buffer')) else estep
        assert c < bar
        for i, x in enumerate(postbar or []):
            for y in (x if isinstance(x, list) else [x]):
                if y is not None: place(slots, bar + 3 + 2 * i, y)
        if FOFF:
            for c in sorted(slots):
                if c % 2 == 0 and c + 1 < 160 and len(slots.get(c + 1, [])) + len(slots[c]) <= FOFF:
                    slots[c + 1] = slots[c] + slots.get(c + 1, []); slots[c] = []
        fill = [x if isinstance(x, tuple) else (0, x) for x in (fill or [])]
        for c in range(160):
            n, r = divmod(c, 16); mi, ks = divmod(r, 2)
            m = mi if n % 2 == 0 else 7 - mi
            if c == bar and not last:
                p.e(f'WAITTAG S{st ^ 1} LGKM0')
                p.e('s_barrier')
                if ptrace > 1: pf.trace()
            if MWT and not first and c == 8: p.e('s_waitcnt lgkmcnt(4)')
            if MWT and r == 0 and 0 < n and c != bar and not (first and n < 3) and not last: p.e(f's_waitcnt lgkmcnt({8 if n <= 7 else 12})')
            w = wf[(10 * st + n) % NSLOT][4 * ks:4 * ks + 4]; x = xf(st, m, ks)
            a, b = (x, w) if (wc == 1 and n < 2) else (w, x)
            cin = '0' if (first and ks == 0) else str(acc[n][m])
            p.e(f'v_mfma_f32_16x16x32_bf16 {acc[n][m]}, {a}, {b}, {cin}')
            here = slots.get(c, [])
            p.add(here)
            if c >= 1:
                for _ in range(min(dens, 2 - len(here))):
                    if fill and fill[0][0] <= c:
                        x = fill.pop(0)[1]; p.add(x if isinstance(x, list) else [x])
        return [x[1] for x in fill]

    def toreg(tile, tmp):
        if tile.k == 'v': return tile
        for i in range(4): p.e(f'v_accvgpr_read_b32 {tmp[i]}, {tile[i]}')
        return tmp
    def pack(o, t0, t1):
        p.e(f'v_cvt_pk_bf16_f32 {o[0]}, {t0[0]}, {t0[1]}\nv_cvt_pk_bf16_f32 {o[1]}, {t0[2]}, {t0[3]}')
        p.e(f'v_cvt_pk_bf16_f32 {o[2]}, {t1[0]}, {t1[1]}\nv_cvt_pk_bf16_f32 {o[3]}, {t1[2]}, {t1[3]}')

    def pf_setup():
        L = f"""s_lshl_b32 {s_t0}, s2, 2
        s_add_u32 {s_t0}, {s_t0}, {s_w}
        s_mul_i32 {s_t1}, {s_t0}, {DL * 128}
        v_lshl_add_u32 {vt3}, {vl}, 7, {s_t1}
        v_cmp_gt_u32 vcc, {DL}, {vl}
        s_mov_b32 {sp2[0]}, {pwd[0]}
        s_mov_b32 {sp2[1]}, {pwd[1]}
        s_mov_b32 {sp2[2]}, {F * D * 2}
        v_cndmask_b32 {vt3}, 2.0, {vt3}, vcc
        s_mov_b32 {s_c1}, 0""".split('\n')
        return [x.strip() for x in L]
    def tp_setup():
        a_, b_ = vtmp[27], vtmp[26]
        return lines(f"""
        s_lshl_b32 {s_t0}, s2, 2
        s_add_u32 {s_t0}, {s_t0}, {s_w}
        s_lshr_b32 {s_t1}, {s_t0}, 4
        s_lshl_b32 {s_c1}, {s_t1}, 15
        s_lshl_b32 {s_c0}, {s_t1}, 12
        s_and_b32 {s_t0}, {s_t0}, 15
        s_lshr_b32 {s_t1}, {s_t0}, 1
        s_mul_i32 {s_t1}, {s_t1}, {224 * 4096}
        s_add_u32 {s_c0}, {s_c0}, {s_t1}
        s_and_b32 {s_t1}, {s_t0}, 1
        s_lshl_b32 {s_t1}, {s_t1}, 11
        s_add_u32 {s_c0}, {s_c0}, {s_t1}
        s_add_u32 {s_c0}, {s_c0}, {WS_T}
        s_lshl_b32 {s_t0}, {s_t0}, 7
        s_mov_b32 {sp2[0]}, {pwd[0]}
        s_mov_b32 {sp2[1]}, {pwd[1]}
        s_mov_b32 {sp2[2]}, {F * D * 2}
        v_lshrrev_b32 {a_}, 3, {vl}
        v_and_b32 {b_}, 2, {a_}
        v_lshlrev_b32 {b_}, 1, {b_}
        v_and_b32 {vt3}, 7, {vl}
        v_xor_b32 {b_}, {b_}, {vt3}
        v_lshl_add_u32 {b_}, {b_}, 4, {s_t0}
        v_lshl_add_u32 {vt3}, {a_}, 11, {b_}
        s_lshl_b32 {s_t0}, {s_w}, 12
        s_add_u32 {s_t0}, {s_t0}, {QS}
        v_lshrrev_b32 {a_}, 5, {vl}
        v_lshl_add_u32 {vtmp[24]}, {a_}, 10, {s_t0}
        v_bfe_u32 {a_}, {vl}, 2, 2
        v_lshl_add_u32 {vtmp[24]}, {a_}, 7, {vtmp[24]}
        v_bfe_u32 {a_}, {vl}, 3, 1
        v_lshl_add_u32 {vtmp[24]}, {a_}, 6, {vtmp[24]}
        v_bfe_u32 {a_}, {vl}, 4, 1
        v_lshl_add_u32 {vtmp[24]}, {a_}, 5, {vtmp[24]}
        v_and_b32 {a_}, 3, {vl}
        v_lshl_add_u32 {vtmp[24]}, {a_}, 3, {vtmp[24]}
        v_xor_b32 {vtmp[25]}, 64, {vtmp[24]}
        v_lshlrev_b32 {vtmp[26]}, 4, {vl}
        s_lshl_b32 {s_t0}, s2, 2
        s_add_u32 {s_t0}, {s_t0}, {s_w}
        s_and_b32 {s_t0}, {s_t0}, 15
        s_lshl_b32 {s_t0}, {s_t0}, 7
        v_lshl_add_u32 {a_}, {vl}, 11, {s_t0}
        v_cmp_gt_u32 vcc, 16, {vl}
        v_cndmask_b32 {a_}, 2.0, {a_}, vcc""") + [tp_touch()]
    def tp_touch():
        return Ins(f'buffer_load_dword {vpd}, {vtmp[27]}, {sp2}, {s_c1} offen', 'pf')
    def tp_load():
        return [f's_lshr_b32 {s_t0}, {s_mx}, 1', f's_add_u32 m0, {s_t0}, {QS}', f's_add_u32 {s_t1}, {s_c1}, {8 * 2048 - 1024}',
                Ins(f'buffer_load_dwordx4 {vt3}, {sp2}, {s_c1} offen lds', 'TP'), Ins(f'buffer_load_dwordx4 {vt3}, {sp2}, {s_t1} offen offset:1024 lds', 'TP')]
    def tp_store():
        L = ['WAITTAG TP'] + [f'ds_read_b64_tr_b16 {vtmp[4 * nb + 2 * s_:4 * nb + 2 * s_ + 2]}, {vtmp[24 + nb]} offset:{s_ * 512}' for nb in range(2) for s_ in range(2)]
        L = [L[:2]] + L[2:]
        L += [[f's_cmp_lt_u32 {s_c1}, {224 * 32768}', f's_cselect_b32 {s_t0}, {s_c0}, 2.0'], f's_add_u32 {s_c1}, {s_c1}, {64 * 32768}', f's_add_u32 {s_c0}, {s_c0}, {64 * 4096}', None, None]
        L += [Ins(f'buffer_store_dwordx4 {vtmp[4 * nb:4 * nb + 4]}, {vtmp[26]}, {sws}, {s_t0} offen offset:{nb * 1024}{st_mod}', 'HST') for nb in range(2)]
        if TT: L.insert(7, tp_touch())
        return L
    def pf3_setup():
        L = f"""s_mov_b32 {sp3[0]}, {pgw[0]}
        s_mov_b32 {sp3[1]}, {pgw[1]}
        s_movk_i32 {sp3[2]}, 2048
        s_mov_b32 {sp3[3]}, 0x00020000
        v_lshlrev_b32 {vwo}, 7, {vl}""".split('\n')
        L2 = f"""s_lshl_b32 {s_t0}, s2, 2
        s_add_u32 {s_t0}, {s_t0}, {s_w}
        s_lshl_b32 {s_t1}, {s_t0}, 11
        v_lshl_add_u32 {vwo}, {vl}, 7, {s_t1}
        v_cmp_gt_u32 {smask}, 16, {vl}
        s_mov_b32 {sp3[0]}, {pwo[0]}
        s_mov_b32 {sp3[1]}, {pwo[1]}
        s_mov_b32 {sp3[2]}, {D * D * 2}
        v_cndmask_b32 {vwo}, 2.0, {vwo}, {smask}""".split('\n')
        return [x.strip() for x in L] + [Ins(f'buffer_load_dword {vpd}, {vwo}, {sp3}, 0 offen', 'pf')] + [x.strip() for x in L2]
    def tlb_touch():
        return [f's_cmp_eq_u32 {s_w}, 1', f's_cselect_b32 {sp2[0]}, {pout[0]}, {pws[0]}', f's_cselect_b32 {sp2[1]}, {pout[1]}, {pws[1]}',
                f's_mov_b32 {sp2[2]}, {34 << 20}', f's_cmov_b32 {sp2[2]}, {S * D * 2}', f's_cmp_lt_u32 {s_w}, 2', f's_cselect_b32 {s_t0}, 0, 2.0',
                f'v_lshlrev_b32 {vt3}, 20, {vl}', Ins(f'buffer_load_dword {vpd}, {vt3}, {sp2}, {s_t0} offen sc1', 'pf')]
    def tlb_touch2():
        L = tlb_touch()
        return [L[0:5], L[5:7]] + L[7:]
    pf_wo = [f's_cmp_eq_u32 {s_cnt}, 2', f's_cselect_b32 {s_t0}, 0, 2.0', Ins(f'buffer_load_dword {vpd}, {vwo}, {sp3}, {s_t0} offen', 'pf')]
    gate_sel = [f's_cmp_eq_u32 {s_cnt}, 0', f's_cselect_b32 {s_t0}, {s_t2}, 2.0', f's_cselect_b32 {s_t1}, 0, 2.0',
                f's_cselect_b32 {sp3[0]}, {pgw[0]}, {sp3[0]}', f's_cselect_b32 {sp3[1]}, {pgw[1]}, {sp3[1]}', f's_cselect_b32 {sp3[2]}, 0x800, {sp3[2]}']
    gate_loads = [f'buffer_load_dwordx4 {gw[i]}, {z[0]}, {sp3}, {s_t1} offen offset:{16 * i}' for i in range(2)] + \
                 [f'buffer_load_dwordx4 {gx[i]}, {z[0]}, {sx}, {s_t0} offen offset:{(i // 2) * 2048 + (i % 2) * 16}' for i in range(4)]

    spins = []
    def check(cond_lines, reload_lines, tag):
        lab = f'{name}_{tag}'
        spins.append((lab, cond_lines, reload_lines))
        return cond_lines + [f's_cbranch_vccnz {lab}_spin', f'{lab}_ok:']

    def lines(s): return [x.strip() for x in s.strip().split('\n')]
    def rd(tile, tmp):
        if tile.k == 'v': return tile, []
        return tmp, [f'v_accvgpr_read_b32 {tmp[i]}, {tile[i]}' for i in range(4)]
    def packl(o, t0, t1):
        return [f'v_cvt_pk_bf16_f32 {o[0]}, {t0[0]}, {t0[1]}', f'v_cvt_pk_bf16_f32 {o[1]}, {t0[2]}, {t0[3]}',
                f'v_cvt_pk_bf16_f32 {o[2]}, {t1[0]}, {t1[1]}', f'v_cvt_pk_bf16_f32 {o[3]}, {t1[2]}, {t1[3]}']
    def mul4(d, a_, b_, pk):
        if pk: return [f'v_pk_mul_f32 {d[2*i:2*i+2]}, {a_[2*i:2*i+2]}, {b_ if b_.k == "s" else b_[2*i:2*i+2]}' for i in range(2)]
        return [f'v_mul_f32 {d[i]}, {b_[0] if b_.k == "s" else b_[i]}, {a_[i]}' for i in range(4)]
    def hpiece(n, j, o, pk):
        L = []; tt = []
        for mm in range(2):
            g_, l0 = rd(acc[n][2 * j + mm], vtmp[8 * mm:8 * mm + 4]); u_, l1 = rd(acc[n + 1][2 * j + mm], vtmp[8 * mm + 4:8 * mm + 8])
            L += l0 + l1 + mul4(g_, g_, u_, pk); tt.append(g_)
        return L + packl(o, tt[0], tt[1]) + [f'v_permlane16_swap_b32 {o[0]}, {o[2]}', f'v_permlane16_swap_b32 {o[1]}, {o[3]}']
    hreg = [acc[7][2 * j] for j in range(4)] + [acc[6][2 * j] for j in range(4)] + [acc[8][2 * j] for j in range(4)]

    vq = vdx[0]; vh = vdx[1]; vql = vdx[2]; vqq = vdx[3]
    s_b, s_qs = s_oq, R('s', sx.a, 2)
    def epi_setup(wc):
        L = lines(f"""
        v_and_b32 {vt0}, 15, {vl}
        v_lshrrev_b32 {vt1}, 4, {vl}
        v_lshlrev_b32 {vq}, 9, {vt1}
        v_lshlrev_b32 {vh}, 4, {vl}
        s_lshl_b32 {s_t0}, {s_h}, 6
        s_lshl_b32 {s_t1}, {s_mb}, 3
        s_add_u32 {s_t0}, {s_t0}, {s_t1}
        s_lshl_b32 {s_t1}, {s_wr}, 2
        s_add_u32 {s_t0}, {s_t0}, {s_t1}
        s_lshl_b32 {s_b}, {s_t0}, 12
        s_add_u32 {s_b}, {s_b}, {WS_KV}
        s_add_u32 {s_og}, {s_b}, 4096
        s_add_u32 {s_ox}, {s_b}, 8192
        s_add_u32 {s_c0}, {s_b}, 12288
        s_lshl_b32 {s_t0}, {s_mb}, 1
        s_add_u32 {s_t0}, {s_t0}, {s_wr}
        s_mul_i32 {s_t0}, {s_t0}, 288
        s_mul_i32 {s_t1}, {s_h}, 7
        s_add_u32 {s_t0}, {s_t0}, {s_t1}
        s_lshl_b32 {s_t0}, {s_t0}, 12
        s_add_u32 {s_hb}, {s_t0}, {WS_A + 4 * 4096 * wc}
        s_sub_u32 {s_c1}, {s_hb}, 4096
        s_lshl_b32 {s_t1}, {s_wr}, 14""")
        if wc == 0:
            L += lines(f"""
            v_lshrrev_b32 {vt2}, 3, {vt0}
            v_lshl_add_u32 {vq}, {vt2}, 8, {vq}
            v_and_b32 {vt2}, 7, {vt0}
            v_lshl_add_u32 {vq}, {vt2}, 4, {vq}
            v_add_u32 {vql}, {s_t1}, {vq}
            s_lshl_b32 {s_t1}, {s_wr}, 13
            s_add_u32 {s_t1}, {s_t1}, {QS}
            v_add_u32 {vqq}, {s_t1}, {vq}
            s_mov_b32 {s_qs[0]}, {hex(f32bits(QSCALE))}
            s_mov_b32 {s_qs[1]}, {s_qs[0]}""")
        else:
            L += [f'v_lshl_add_u32 {vq}, {vt0}, 4, {vq}', f'v_add_u32 {vql}, {s_t1}, {vq}']
        return L
    kvb = [s_b, s_og, s_ox, s_c0]
    def epi_early(wc, npk):
        F_ = []
        outs = [vtmp[16 + 4 * i:20 + 4 * i] for i in range(3)]
        if wc == 0:
            for m in range(7, -1, -1):
                o = acc[0][m]
                L = packl(o, acc[0][m], acc[1][m]) + [Ins(f'buffer_store_dwordx4 {o}, {vq}, {sws}, {kvb[m // 2]} offen offset:{(m % 2) * 128}{kv_mod}', 'KVST'),
                                                       f'ds_write_b128 {vql}, {o} offset:{(m // 2) * 4096 + (m % 2) * 128}']
                F_ += [(17 + 2 * (7 - m) + 4, x) for x in L]
            for i, m in enumerate(range(7, -1, -1)):
                o = outs[i % 3]
                t0, l0 = rd(acc[2][m], vtmp[0:4]); t1, l1 = rd(acc[3][m], vtmp[4:8])
                L = l0 + l1 + mul4(t0, t0, s_qs, i >= npk) + mul4(t1, t1, s_qs, i >= npk) + packl(o, t0, t1) + [f'ds_write_b128 {vqq}, {o} offset:{(m // 2) * 2048 + (m % 2) * 128}']
                F_ += [(49 + 2 * (7 - m) + 4, x) for x in L]
        else:
            for nt, js in ((0, range(4)), (1, range(3, -1, -1))):
                for j in js:
                    o = acc[nt][2 * j]
                    L = packl(o, acc[nt][2 * j], acc[nt][2 * j + 1]) + [Ins(f'buffer_store_dwordx4 {o}, {vq}, {sws}, {kvb[j]} offen offset:{2048 + nt * 256}{kv_mod}', 'KVST'),
                                                                         f'ds_write_b128 {vql}, {o} offset:{j * 4096 + 2048 + nt * 256}']
                    F_ += [((3 + 4 * j if nt == 0 else 31 - 4 * j) + 4, x) for x in L]
            for i, j in enumerate(range(3, -1, -1)):
                o = outs[i % 3]
                L = hpiece(2, j, o, i >= npk) + [Ins(f'buffer_store_dwordx4 {o}, {vh}, {sws}, {s_c1} offen offset:{j * 1024}{st_mod}', 'HST')]
                F_ += [(63 - 4 * j + 4, x) for x in L]
        for j in range(3, -1, -1):
            F_ += [(127 - 4 * j + 4, x) for x in hpiece(6, j, hreg[4 + j], PK)]
            F_ += [(127 - 4 * j + 4, x) for x in hpiece(4, j, hreg[j], PK)]
        k = max(i for i, x in enumerate(F_) if isinstance(x[1], Ins) and x[1].tag == 'KVST')
        F_[k + KF:k + KF] = [(0, [f'v_mov_b32 {vt0}, 1', 'WAITTAG KVST', Ins(f'buffer_store_dword {vt0}, {vflk}, {sfl}, 0 offen sc1', 'FL')])]
        return F_
    def epi_late():
        for j in range(3, -1, -1): p.add(hpiece(8, j, hreg[8 + j], True))

    announce_setup = lines(f"""
        s_mov_b32 {sdbg[0]}, {pdbg[0]}
        s_mov_b32 {sdbg[1]}, {pdbg[1]}
        s_movk_i32 {sdbg[2]}, 256
        s_mov_b32 {sdbg[3]}, 0x00020000
        s_and_b32 {s_ano}, s2, 7
        s_lshl_b32 {s_ano}, {s_ano}, 2
        s_and_b32 {s_grp}, {s_mb}, 3
        s_add_u32 {s_grp}, {s_grp}, 3
        v_mov_b32 {vt2}, 1
        v_cmp_eq_u32 {smask}, 0, v0
        v_cndmask_b32 {vt1}, 2.0, 0, {smask}""")
    if PT:
        k = announce_setup.index(f's_add_u32 {s_grp}, {s_grp}, 3')
        announce_setup[k:k + 1] = [[f's_cmp_lt_u32 {s_grp}, 2', f's_cselect_b32 {s_grp}, {s_grp}, 16'], f's_add_u32 {s_grp}, {s_grp}, 1']
    announce1 = [f's_add_u32 {s_t0}, {s_cnt}, 16', [f's_cmp_eq_u32 {s_t0}, {s_grp}', f's_cselect_b32 {s_t0}, {s_ano}, 2.0'],
                 f'buffer_atomic_add {vt2}, {vt1}, {sdbg}, {s_t0} offen offset:{DBG_CNT} sc1']
    announce = [f's_cmp_eq_u32 {s_cnt}, {s_grp}', f's_cselect_b32 {s_t0}, {s_ano}, 2.0',
                f'buffer_atomic_add {vt2}, {vt1}, {sdbg}, {s_t0} offen offset:{DBG_CNT} sc1']
    cnt_addr = [f'v_and_b32 {vpf}, 7, {vl}', f'v_lshlrev_b32 {vpf}, 2, {vpf}']
    cnt_load = f'buffer_load_dword {vcnt}, {vpf}, {sdbg}, 0 offen offset:{DBG_CNT} sc1'

    def code_setup(wc):
        lab = f'{name}_pc{wc}'
        return [[f's_getpc_b64 {smask}', f'{lab}:'],
                f's_lshr_b32 {s_t0}, s2, 3', f's_lshl_b32 {s_t1}, {s_t0}, 8', f's_add_u32 {s_t1}, {s_t1}, {name}_c{wc}out-{lab}', f'v_and_b32 {vcnt}, 1, {vl}', f'v_lshlrev_b32 {vcnt}, 7, {vcnt}',
                f's_lshl_b32 {s_t0}, {s_t0}, 2', f's_add_u32 {s_t0}, {s_t0}, {s_w}', f's_lshl_b32 {s_t0}, {s_t0}, 8',
                f's_add_u32 {s_t0}, {s_t0}, {name}_join-{lab}', f'v_mov_b32 {vtmp[0]}, {s_t0}', f'v_mov_b32 {vtmp[1]}, {s_t1}', f'v_and_b32 {vtmp[2]}, 2, {vl}',
                f'v_cmp_eq_u32 vcc, 0, {vtmp[2]}', f'v_cndmask_b32 {vtmp[0]}, {vtmp[0]}, {vtmp[1]}, vcc', f'v_add_u32 {vcnt}, {vcnt}, {vtmp[0]}',
                f'v_min_u32 {vcnt}, {name}_end-{lab}, {vcnt}', f'v_mov_b32 {vca[1]}, {smask[1]}',
                [f'v_add_co_u32 {vca[0]}, vcc, {smask[0]}, {vcnt}', f'v_addc_co_u32 {vca[1]}, vcc, 0, {vca[1]}, vcc']]
    def code_pf(wc):
        if not CONCE: return [Ins(f'global_load_dword {vpd}, {vca}, off', 'pf')]
        return [[f's_cmp_lg_u32 {s_cnt}, 1', f's_cbranch_scc1 {name}_nocp{wc}', Ins(f'global_load_dword {vpd}, {vca}, off', 'pfc'), f'{name}_nocp{wc}:']]
    assert not PT
    for wc in range(2):
        p.seg(f'c{wc}a')
        if wc == 1: p.e(f'{name}_c1:')
        p.add(wread(0, 0, wc))
        for m in range(2, 8):
            for ks in range(2): p.e(xread(m, ks, 0))
        for j in range(1, DIST): p.add(wread(j, 0, wc))
        left = stage(0, wc, first=True, early=[x for _ in range(PD - PD0 + 1) for x in pfetch()], fill=flag_setup + announce_setup + code_setup(wc) + pf3_setup() + (tlb_touch2() if TLB else []) + (tp_setup() if PT else pf_setup()))
        assert not left
        p.e(f's_mov_b32 {s_cnt}, 6')
        p.seg(f'c{wc}l1')
        p.e(f'{name}_c{wc}loop:')
        stage(1, wc, early=pfetch() + (tp_load() if PT else pfetch_d()), extra=gate_sel + gate_loads + (announce1 if PT else []), estep=1)
        p.e(f's_cmp_eq_u32 {s_cnt}, 0\ns_cbranch_scc1 {name}_c{wc}out')
        p.seg(f'c{wc}l2')
        stage(0, wc, early=pfetch() + ([] if PT else pfetch_d()), extra=([x for x in tp_store() if x is not None] if PT else []) + announce + ([] if NOPF & 2 else pf_wo) + (code_pf(wc) if CPF else []), estep=1 if PT else 2)
        p.e(f's_sub_u32 {s_cnt}, {s_cnt}, 1\ns_branch {name}_c{wc}loop')
        p.seg(f'c{wc}last')
        p.e(f'{name}_c{wc}out:')
        rest = stage(0, wc, early=None if PT else pfetch_d(), fill=gate_ops(), nodma1=True, dens=GD)
        rest = stage(1, wc, last=True, fill=rest + cnt_addr + [cnt_load] + epi_setup(wc) + epi_early(wc, 99))
        pf.stamp(2)
        if ptrace == -1: pf.trace()
        k = max([i for i, x in enumerate(rest) if isinstance(x, str) and x.startswith('ds_write')] + [-1]) + 1
        for x in rest[:k]: p.add(x if isinstance(x, list) else [x])
        rest = rest[k:]
        if PKR:
            out = []; i = 0
            while i < len(rest):
                x = rest[i]; y = rest[i + 1] if i + 1 < len(rest) else None
                if isinstance(x, str) and isinstance(y, str) and x.startswith('v_mul_f32') and y.startswith('v_mul_f32'):
                    a0, b0, c0 = [int(t.strip()[1:]) for t in x[10:].split(',')]; a1, b1, c1 = [int(t.strip()[1:]) for t in y[10:].split(',')]
                    if a0 % 2 == 0 and b0 % 2 == 0 and (a1, b1, c1) == (a0 + 1, b0 + 1, c0 + 1):
                        out.append(f'v_pk_mul_f32 v[{a0}:{a1}], v[{b0}:{b1}], v[{c0}:{c1}]'); i += 2; continue
                out.append(x); i += 1
            rest = out
        va_, vb_ = vdg[0], vdg[1]
        p.e(f"""
        v_lshlrev_b32 {va_}, 4, {vl}
        s_lshl_b32 {s_t0}, {s_w}, 12
        s_add_u32 {s_t0}, {s_t0}, {QS}
        v_add_u32 {vb_}, {s_t0}, {va_}
        s_waitcnt lgkmcnt(0)
        s_barrier
        """)
        for q in range(2):
            for f in range(2): p.e(f'ds_read_b128 a[{40 + 8 * q + 4 * f}:{43 + 8 * q + 4 * f}], {vb_} offset:{q * 2048 + f * 1024}')
        for i in range(4): p.e(f'ds_read_b128 a[{56 + 4 * i}:{59 + 4 * i}], {va_} offset:{(i // 2) * 4096 + (i % 2) * 1024}')
        pre = [f'v_mfma_f32_32x32x16_bf16 v[{64 + 16 * q}:{79 + 16 * q}], a[{56 + 4 * f}:{59 + 4 * f}], a[{40 + 8 * q + 4 * f}:{43 + 8 * q + 4 * f}], ' + ('0' if f == 0 else f'v[{64 + 16 * q}:{79 + 16 * q}]')
               for q in range(2) for f in range(2)]
        rest = rest + [x for j in range(3, -1, -1) for x in hpiece(8, j, hreg[8 + j], True)]
        for i, x in enumerate(rest):
            p.add(x if isinstance(x, list) else [x])
            if i >= 24 and (i - 24) % 7 == 0 and pre: p.e(pre.pop(0))
        p.add(pre)
        if ptrace == -1: pf.trace()
        if ptrace == -1: pf.trace()
        if wc == 0: p.e(f's_branch {name}_join')
    p.seg('join')
    p.e(f'{name}_join:')
    p.add(check([f'v_cmp_gt_u32 vcc, 32, {vcnt}'], [cnt_load], 'cnt'))

    sa.p = s_base; va.p = v_base; aa.p = 0
    skv = sa(4); sA = sa(4); swd = sa(4); swo = sa(4); sout = sa(4)
    s_okv, s_left, s_p, s_oa, s_ow, s_wb, s_ob, s_ob2, s_thr, s_mt, s_nt, s_oo, s_spin, s_h1, s_h2, s_rt, s_win = [sa() for _ in range(17)]
    scp = sa(4)
    vl16, vkA, vkB, vdma, vo, vidx, vu0, vu1, vu2, vpa = [va() for _ in range(10)]
    vdd = [va() for _ in range(2)]; vdo = [va() for _ in range(2)]; vwr = [va() for _ in range(2)]
    vg = va(2); vog = va(4); vpoll = va(2, 2); vsc = va(2)
    ones = va(4, 4)
    vA = [va() for _ in range(4)]
    assert va.p <= 46 and va.p > vwo.a
    va2 = Alloc('v', va.p, 48)
    va.p = 48
    Sx = [va(16, 4) for _ in range(2)]; P = [va(8, 4) for _ in range(2)]; C = [va(16, 4) for _ in range(2)]
    acc3 = [[va(16, 4) for _ in range(4)] for _ in range(2)]
    O = [aa(16, 4) for _ in range(2)]; L = [aa(4, 4) for _ in range(2)]
    Q = [aa(8, 4) for _ in range(2)]; K = [aa(8, 4) for _ in range(2)]; V = [aa(8, 4) for _ in range(2)]
    Wf = [aa(4, 4) for _ in range(2)]
    Ab = [[aa(4, 4) for _ in range(4)] for _ in range(8)]
    if PT:
        NB = 4; DA = DW = 3
        Wb = [[Ab[4 + i // 2][2 * (i % 2)], Ab[4 + i // 2][2 * (i % 2) + 1]] for i in range(4)]

    p.e(f"""
    v_lshlrev_b32 {vl16}, 4, {vl}
    s_lshl_b32 {s_p}, {s_w}, 12
    """)
    assert Q[0].a == 40 and K[0].a == 56 and Sx[1].a == 64 and P[0].a == 80
    pf.stamp(3)
    def kread(kb, loop=False):
        base, o = (vl16, (kb % 16) * 4096) if not loop else ((vkA, kb * 4096) if kb < 8 else (vkB, (kb - 8) * 4096))
        return [f'ds_read_b128 {K[kb % 2][4*f:4*f+4]}, {base} offset:{o + f * 1024}' for f in range(2)]
    def vread(kb, loop=False):
        base, o = (vl16, (kb % 16) * 4096) if not loop else (vkA, kb * 4096)
        return [f'ds_read_b128 {V[kb % 2][4*f:4*f+4]}, {base} offset:{o + 2048 + f * 1024}' for f in range(2)]
    def qk(dst, kb, q, f, cin):
        return f'v_mfma_f32_32x32x16_bf16 {dst}, {K[kb % 2][4*f:4*f+4]}, {Q[q][4*f:4*f+4]}, {cin if f == 0 else dst}'
    def pv(j, f, zero=False):
        q = j % 2; kb = (j // 2) % 2
        return f'v_mfma_f32_32x32x16_bf16 {O[q]}, {V[kb][4*f:4*f+4]}, {P[q][4*f:4*f+4]}, {"0" if zero else O[q]}'
    def rsum(q): return f'v_smfmac_f32_16x16x64_bf16 {L[q]}, {ones}, {P[q]}, {vidx}'
    def cvt(j, i): return f'v_cvt_pk_bf16_f32 {P[j % 2][i]}, {Sx[j % 2][2*i]}, {Sx[j % 2][2*i+1]}'
    def rowmax(dst, src, init):
        lst = [src[i] for i in range(16)]
        if init:
            p.e(f'v_max3_f32 {dst}, {lst[0]}, {lst[1]}, {lst[2]}'); lst = lst[3:]
        while len(lst) >= 2:
            p.e(f'v_max3_f32 {dst}, {dst}, {lst[0]}, {lst[1]}'); lst = lst[2:]
        if lst: p.e(f'v_max_f32 {dst}, {dst}, {lst[0]}')
    def setc(q, m):
        p.e(f'v_mov_b32 {vu2}, {m}\nv_permlane32_swap_b32 {vu2}, {m}\nv_max_f32 {m}, {m}, {vu2}')
        for i in range(16): p.e(f'v_sub_f32 {C[q][i]}, 0, {m}')
    rowmax(vu0, R('v', 64, 16), True); rowmax(vu1, R('v', 80, 16), True)
    setc(0, vu0)
    p.e(qk(Sx[0], 0, 0, 0, C[0])); p.e(qk(Sx[0], 0, 0, 1, C[0]))
    setc(1, vu1)
    p.e(f"""
    v_bfe_u32 {vu0}, {vl}, 2, 1
    v_bfe_u32 {vu1}, {vl}, 1, 1
    v_mov_b32 {vu2}, 0x3f803f80
    v_or_b32 {vidx}, {vu0}, {vu1}
    v_cmp_eq_u32 vcc, 0, {vidx}
    v_xor_b32 {vu0}, 1, {vu0}
    v_or_b32 {vidx}, {vu0}, {vu1}
    v_cndmask_b32 {ones[0]}, 0, {vu2}, vcc
    v_cndmask_b32 {ones[1]}, 0, {vu2}, vcc
    v_cmp_eq_u32 vcc, 0, {vidx}
    v_and_b32 {vu0}, 1, {vl}
    v_mov_b32 {vu1}, 0xeeeeeeee
    v_cndmask_b32 {ones[2]}, 0, {vu2}, vcc
    v_cndmask_b32 {ones[3]}, 0, {vu2}, vcc
    v_cmp_eq_u32 vcc, 0, {vu0}
    v_mov_b32 {vu2}, 0x44444444
    v_add_u32 {vdma}, {s_p}, {vl16}
    v_cndmask_b32 {vidx}, {vu1}, {vu2}, vcc
    """)
    for q in range(2):
        for i in range(2): p.e(f'v_accvgpr_write_b32 {L[q][i]}, 0')
    p.e(f's_lshl_b32 {s_t0}, {s_h}, 18')
    srd(p, skv, pws, off_s=s_t0, off_imm=WS_KV, size=262144)

    def flag(val, tag, wait):
        return [f'v_mov_b32 {vu0}, {val}', f'WAITTAG {wait}', Ins(f'buffer_store_dword {vu0}, {vflag}, {sfl}, 0 offen sc1', tag)]
    def kvdma(m0line, tag, count=True):
        return [m0line] + [Ins(f'buffer_load_dwordx4 {vdma}, {skv}, {s_okv} offen offset:{i * 1024}{lm2} lds', tag) for i in range(4)] + \
               [f's_add_u32 {s_okv}, {s_okv}, 16384', f's_and_b32 {s_okv}, {s_okv}, 0x3ffff'] + \
               ([f's_sub_u32 {s_left}, {s_left}, 1', f's_cselect_b32 {skv[2]}, 0, {skv[2]}'] if count else [])
    NW = 4
    def wload(s):
        if PT: return [Ins(f'buffer_load_dwordx4 {Wb[s % 4][nb]}, {vl16}, {swd}, {s_oa} offen offset:{nb * 1024}{lm2}', f'D{s % NW}') for nb in range(2)]
        return [f's_add_u32 m0, {s_wb}, {(s % NW) * 2048}'] + \
               [Ins(f'buffer_load_dwordx4 {vdd[hh]}, {swd}, {s_ow} offen offset:{hh * 1024}{lm2} lds', f'D{s % NW}') for hh in range(2)] + [f's_add_u32 {s_ow}, {s_ow}, 32768']
    def hload(s):
        return [Ins(f'buffer_load_dwordx4 {Ab[s % NB][r]}, {vA[r]}, {sA}, {s_oa} offen{lm2}', f'A{s % NB}') for r in range(4)] + [f's_add_u32 {s_oa}, {s_oa}, 4096']
    def wrd(base, off, nb):
        if PT: return []
        return [f'ds_read_b64_tr_b16 {Wf[nb][2*s:2*s+2]}, {base[nb]} offset:{off + s * 512}' for s in range(2)]
    def gm(st, nb, tb, zero=False):
        return f'v_mfma_f32_32x32x16_bf16 {acc3[nb][tb]}, {Wb[st % 4][nb] if PT else Wf[nb]}, {Ab[st % NB][tb]}, {"0" if zero else acc3[nb][tb]}'
    def oload(t, m0line, tag):
        return [m0line] + [Ins(f'buffer_load_dwordx4 {vdo[hh]}, {swo}, {s_oo} offen offset:{hh * 1024} lds', tag) for hh in range(2)] + [f's_add_u32 {s_oo}, {s_oo}, 32768']

    zplan = {}
    def period(j, loop=False, item=None, misc=(), pre=(), zero=False):
        s = Sx[j % 2]
        E = [f'v_exp_f32 {s[i]}, {s[i]}' for i in range(16)]
        jn = j + 1
        m1 = qk(Sx[jn % 2], jn // 2, jn % 2, 0, C[jn % 2]); m2 = qk(Sx[jn % 2], jn // 2, jn % 2, 1, None)
        rd = kread((j + 1) // 2 + 1, loop) if j % 2 == 1 else vread(j // 2, loop)
        first = (j == 0 and not loop)
        zo = (j <= 2 and not loop)
        c7 = [] if first else [cvt(j - 1, 7)]
        p0 = [] if first else [pv(j - 1, 0, zo)]; p1 = [] if first else [pv(j - 1, 1)]; rs = [] if first else [rsum((j - 1) % 2)]
        V_ = [E[0]] + c7
        for i in range(7): V_ += [E[2 * i + 1], E[2 * i + 2], cvt(j, i)]
        V_.append(E[15])
        if item is None:
            p.add(V_[:1 + len(c7)]); V_ = V_[1 + len(c7):]
            if AW and j % 2 == 1: p.e('s_waitcnt lgkmcnt(0)')
            z_ = [] if loop else zplan.get(j, [])
            M = [m1] + z_[:1] + [m2] + p0 + z_[1:] + p1 + rs; G = []
        else:
            st, nb = item
            G = [gm(st, nb, tb if nb == 0 else 3 - tb, zero) for tb in range(4)]
            M = [G[0], m1, G[1], m2, G[2]] + p0 + [G[3]] + p1 + rs
        if loop and exp_ & 1: M = [x for x in M if x not in G]
        if loop and exp_ & 8: misc = [x for x in misc if not (isinstance(x, Ins) and x.tag and x.tag.startswith('D'))]
        misc = list(misc)
        for k in range(len(misc)):
            if isinstance(misc[k], str) and ' m0,' in misc[k]:
                q_ = k
                while q_ > 0 and not (isinstance(misc[q_ - 1], Ins) and misc[q_ - 1].text.endswith(' lds')): q_ -= 1
                misc.insert(q_, misc.pop(k))
        items = []
        for x in list(pre) + rd + list(misc):
            if items and isinstance(items[-1][-1], str) and items[-1][-1].split()[0] in ('WAITTAG', 's_cbranch_vccnz', 'v_cmp_gt_u32', 's_getpc_b64', 's_cmp_eq_u32'): items[-1].append(x)
            else: items.append([x])
        isvm = lambda it: any((y.text if isinstance(y, Ins) else y).startswith('buffer') for y in it)
        n = len(M); last = n - 1 if M[-1].startswith('v_smfmac') else n
        cost = lambda x: 8 if x.startswith('v_exp') else 4
        occ = [32 if '32x32' in x else 16 for x in M]
        iss = [8 if 'smfmac' not in x else SMC for x in M]
        ic = [sum((VMC if (y.text if isinstance(y, Ins) else y).startswith('buffer') else 4) for y in it if not (isinstance(y, str) and y.endswith(':'))) for it in items]
        vc = [cost(x) for x in V_]
        tailc = (4 if item is not None else 12 + (4 if j % 2 == 0 else 0))
        if item is None: iss[-1] += 0
        import functools
        @functools.lru_cache(None)
        def best(g, a_, b_, pv_):
            if g == n: return (0, ()) if (a_ == len(items) and b_ == len(V_)) else (10 ** 9, ())
            res = (10 ** 9, ())
            lo = 0
            if g == 0 and item is not None: lo = 1 + len(c7)
            for na in range(0, len(items) - a_ + 1):
                if g == 0 and na < min(len(items), npre): continue
                nv_ = sum(map(isvm, items[a_:a_ + na]))
                ca = sum(ic[a_:a_ + na])
                if g < n - 1 and ca > 64: break
                pen = (VPEN * max(0, nv_ - 1) + (VPEN // 2 if (nv_ and pv_) else 0)) + (0.01 * g * na)
                for nb_ in range(lo, len(V_) - b_ + 1):
                    f_ = iss[g] + ca + sum(vc[b_:b_ + nb_]) + (tailc if g == n - 1 else 0)
                    if f_ > 120 and g < n - 1: break
                    r_ = best(g + 1, a_ + na, b_ + nb_, nv_ > 0)
                    t_ = max(occ[g], f_) + pen + r_[0] + 0.001 * (f_ - occ[g]) ** 2
                    if t_ < res[0]: res = (t_, ((na, nb_),) + r_[1])
            return res
        npre = len([1 for it in items if any(y in pre for y in it if isinstance(y, str))])
        tot_, asg = best(0, 0, 0, False)
        assert tot_ < 10 ** 8
        if dbg == -1: print(j, loop, item, round(tot_), len(items), sum(map(isvm, items)))
        a_ = b_ = 0
        for q_, m_ in enumerate(M):
            p.add([m_])
            na, nb_ = asg[q_]
            for it in items[a_:a_ + na]: p.add(it)
            p.add(V_[b_:b_ + nb_]); a_ += na; b_ += nb_

    setup1 = lines(f"""
        s_lshl_b32 {s_okv}, {s_mb}, 15
        s_add_u32 {s_okv}, {s_okv}, 32768
        s_and_b32 {s_okv}, {s_okv}, 0x3ffff
        s_movk_i32 {s_left}, {13 - (PA // 8 + (0 if KS == 2 else 1))}
        v_and_b32 {vu1}, 31, {vl}
        v_lshlrev_b32 {vpa}, 2, {vu1}
        s_lshl_b32 {s_t2}, {s_h}, 7
        s_add_u32 {s_t2}, {s_t2}, 4096""")
    poll_kv = f'buffer_load_dword {vpoll[0]}, {vpa}, {sfl}, {s_t2} offen sc1'
    setup2 = lines(f"""
        s_and_b32 {s_t0}, s2, 7
        s_lshr_b32 {s_t1}, s2, 3
        s_lshr_b32 {s_mt}, {s_t0}, 1
        s_lshl_b32 {s_mt}, {s_mt}, 2
        s_and_b32 {s_nt}, {s_t0}, 1
        s_lshl_b32 {s_nt}, {s_nt}, 3
        s_and_b32 {s_t0}, {s_t1}, 3
        s_add_u32 {s_mt}, {s_mt}, {s_t0}
        s_lshr_b32 {s_t0}, {s_t1}, 2
        s_add_u32 {s_nt}, {s_nt}, {s_t0}
        s_lshl_b32 {s_t0}, {s_nt}, 7
        s_lshl_b32 {s_t1}, {s_w}, 19
        s_add_u32 {s_t1}, {s_t1}, {s_t0}
        s_add_u32 {swo[0]}, {pwo[0]}, {s_t1}
        s_addc_u32 {swo[1]}, {pwo[1]}, 0
        s_sub_u32 {swo[2]}, {D * D * 2}, {s_t1}
        s_mov_b32 {swo[3]}, 0x00020000
        s_add_u32 {swd[0]}, {pwd[0]}, {s_t0}
        s_addc_u32 {swd[1]}, {pwd[1]}, 0
        s_sub_u32 {swd[2]}, {F * D * 2}, {s_t0}
        s_mov_b32 {swd[3]}, 0x00020000
        s_mul_i32 {s_t0}, {s_mt}, {288 * 4096}
        s_add_u32 {s_t0}, {s_t0}, {WS_A}
        s_add_u32 {sA[0]}, {pws[0]}, {s_t0}
        s_addc_u32 {sA[1]}, {pws[1]}, 0
        s_mov_b32 {sA[2]}, {288 * 4096}
        s_mov_b32 {sA[3]}, 0x00020000
        s_mul_i32 {s_oa}, {s_w}, {56 * 4096}
        s_lshl_b32 {s_ow}, {s_oa}, 3
        s_mov_b32 {s_oo}, 0
        s_mul_i32 {s_wb}, {s_w}, 20480
        s_add_u32 {s_wb}, {s_wb}, {W0}
        v_lshrrev_b32 {vu1}, 3, {vl}
        v_and_b32 {vu2}, 2, {vu1}
        v_lshlrev_b32 {vu2}, 1, {vu2}
        v_and_b32 {vdd[1]}, 7, {vl}
        v_xor_b32 {vu2}, {vu2}, {vdd[1]}
        v_lshlrev_b32 {vu2}, 4, {vu2}
        v_lshl_add_u32 {vdd[0]}, {vu1}, 11, {vu2}
        v_add_u32 {vdd[1]}, {8 * 2048 - 1024}, {vdd[0]}
        v_lshrrev_b32 {vu1}, 5, {vl}
        v_lshl_add_u32 {vdo[0]}, {vu1}, 13, {vdd[0]}
        v_add_u32 {vdo[1]}, {4 * 2048 - 1024}, {vdo[0]}
        v_lshl_add_u32 {vwr[0]}, {vu1}, 10, {s_wb}
        v_bfe_u32 {vu1}, {vl}, 2, 2
        v_lshl_add_u32 {vwr[0]}, {vu1}, 7, {vwr[0]}
        v_bfe_u32 {vu1}, {vl}, 3, 1
        v_lshl_add_u32 {vwr[0]}, {vu1}, 6, {vwr[0]}
        v_bfe_u32 {vu1}, {vl}, 4, 1
        v_lshl_add_u32 {vwr[0]}, {vu1}, 5, {vwr[0]}
        v_and_b32 {vu1}, 3, {vl}
        v_lshl_add_u32 {vwr[0]}, {vu1}, 3, {vwr[0]}
        v_xor_b32 {vwr[1]}, 64, {vwr[0]}
        v_mov_b32 {vkB if PA == 48 else vkA}, {vl16}
        v_add_u32 {vkA if PA == 48 else vkB}, 32768, {vl16}
        s_nop 0
        s_nop 0""")
    setup2 = setup2[:-2]
    setup1 += [f's_add_u32 {s_h1}, {s_hb}, 4096', f's_add_u32 {s_h2}, {s_hb}, 8192']
    if PT:
        setup2 += lines(f"""
        s_lshr_b32 {s_t0}, {s_nt}, 1
        s_mul_i32 {s_t0}, {s_t0}, {224 * 4096}
        s_and_b32 {s_t1}, {s_nt}, 1
        s_lshl_b32 {s_t1}, {s_t1}, 11
        s_add_u32 {s_t0}, {s_t0}, {s_t1}
        s_add_u32 {s_t0}, {s_t0}, {WS_T}
        s_add_u32 {swd[0]}, {pws[0]}, {s_t0}
        s_addc_u32 {swd[1]}, {pws[1]}, 0
        s_mov_b32 {swd[2]}, {224 * 4096 - 2048}""")
    for r in range(4):
        setup2 += [f's_add_u32 {s_t0}, {s_w}, {r + 1}', f's_and_b32 {s_t0}, {s_t0}, 3', f's_lshl_b32 {s_t0}, {s_t0}, 10', f'v_add_u32 {vA[r]}, {s_t0}, {vl16}']
    setup3 = lines(f"""
        v_and_b32 {vu1}, 7, {vl}
        v_bfe_u32 {vu2}, {vl}, 4, 1
        v_lshl_add_u32 {vo}, {vu2}, 3, {vu1}
        v_bfe_u32 {vu2}, {vl}, 3, 1
        v_lshl_add_u32 {vo}, {vu2}, 4, {vo}
        v_lshrrev_b32 {vu2}, 3, {vo}
        v_lshlrev_b32 {vu2}, 7, {vu2}
        v_lshl_add_u32 {vsc[0]}, {vu1}, 2, {vu2}
        v_lshlrev_b32 {vo}, 4, {vo}
        v_lshrrev_b32 {vu2}, 5, {vl}
        v_lshl_add_u32 {vo}, {vu2}, 9, {vo}
        v_bfe_u32 {vu2}, {vl}, 3, 2
        v_lshlrev_b32 {vu2}, 7, {vu2}
        v_lshl_add_u32 {vsc[1]}, {vu1}, 2, {vu2}
        s_lshl_b32 {s_t0}, {s_mb}, 1
        s_add_u32 {s_t0}, {s_t0}, {s_wr}
        s_mul_i32 {s_t0}, {s_t0}, 288
        s_lshl_b32 {s_t1}, {s_h}, 1
        s_add_u32 {s_t0}, {s_t0}, {s_t1}
        s_add_u32 {s_t0}, {s_t0}, 224
        s_lshl_b32 {s_t0}, {s_t0}, 12
        s_lshl_b32 {s_t1}, {s_wc}, 11
        s_add_u32 {s_t0}, {s_t0}, {s_t1}
        s_add_u32 {s_ob}, {s_t0}, {WS_A}
        s_add_u32 {s_ob2}, {s_ob}, 4096
        s_mov_b32 {s_thr}, {hex(f32bits(2.0 ** 40 if not force_slow else 0.5))}
        v_lshlrev_b32 {vpa}, 3, {vl}
        s_lshr_b32 {s_t2}, {s_mt}, 1
        s_lshl_b32 {s_t2}, {s_t2}, 9""")
    poll_h = f'buffer_load_dwordx2 {vpoll}, {vpa}, {sfl}, {s_t2} offen sc1'
    cond2 = [f'v_min_u32 {vu1}, {vpoll[0]}, {vpoll[1]}', f'v_cmp_gt_u32 vcc, 2, {vu1}']
    og_loads = [f's_lshl_b32 {s_t0}, {s_mt}, 11', f's_add_u32 {s_t0}, {s_t0}, {WS_G + 32}']
    for r in range(4):
        og_loads += [f'v_lshrrev_b32 {vu1}, 10, {vA[r]}', f'v_lshl_add_u32 {vu1}, {vu1}, 9, {vsc[1]}', f'buffer_load_dword {vog[r]}, {vu1}, {sws}, {s_t0} offen']
    g_loads = [f's_lshl_b32 {s_t0}, {s_mb}, 2', f's_add_u32 {s_t0}, {s_t0}, {s_w}', f's_lshl_b32 {s_t0}, {s_t0}, 10', f's_add_u32 {s_t0}, {s_t0}, {WS_G}'] + \
              [f'buffer_load_dword {vg[q]}, {vsc[0]}, {sws}, {s_t0} offen offset:{q * 512}' for q in range(2)]
    NE = 16 if PT else 12
    def oslot(t):
        if t >= NE: return vw2, (t - NE) * 2048, f's_add_u32 m0, {s_p}, {(t - NE) * 2048}'
        k = t if t < 4 else t - 4
        n0 = 0 if PT else NW
        if k < 10 - n0: return vwr, (n0 + k) * 2048, f's_add_u32 m0, {s_wb}, {(n0 + k) * 2048}'
        return vw3, (k - 10 + n0) * 2048, f's_add_u32 m0, {s_p}, {QS + (k - 10 + n0) * 2048}'
    WO = [R('a', aa.p + 8 * t, 8) for t in range(4)] + [R('a', 8 * t, 8) for t in range(11)] + [Sx[0][0:8]]
    assert Wf[0].a == 88 and aa.p + 32 <= 256
    vw3 = [va2(), va2()]
    def woread(t):
        base, off, _ = oslot(t)
        return [f'ds_read_b64_tr_b16 {WO[t][4*nb+2*s_:4*nb+2*s_+2]}, {base[nb]} offset:{off + s_ * 512}' for nb in range(2) for s_ in range(2)]
    vw2 = [C[0][0], C[0][1]]
    setup3 += [f's_add_u32 {s_t0}, {s_p}, {QS}', f's_sub_u32 {s_t0}, {s_t0}, {s_wb}', f'v_add_u32 {vw3[0]}, {s_t0}, {vwr[0]}', f'v_add_u32 {vw3[1]}, {s_t0}, {vwr[1]}']
    early_o = [oload(t, oslot(t)[2], 'WO') for t in range(NE)]
    assert PM % 2 == 0 and DW <= 3 and DA <= 7
    plan = {j: [] for j in range(PA)}; prej = {j: [] for j in range(PA)}
    plan[0] += setup1
    plan[1] += setup2[:21]; plan[2] += setup2[21:38]; plan[3] += setup2[38:55]; plan[4] += setup2[55:]; plan[KP] = (plan[KP] + [poll_kv]) if KP == 0 else ([poll_kv] + plan[KP])
    plan[KC] += check([f'v_cmp_gt_u32 vcc, 1, {vpoll[0]}'], [poll_kv], 'kv')
    d = kvdma(f's_add_u32 m0, {s_p}, 32768', 'KV0', False); plan[KC] += d[:3]; plan[KC + 1] += d[3:]
    d = kvdma(f's_add_u32 m0, {s_p}, 49152', 'KV1', False); plan[KC + 2] += d[:3]; plan[KC + 3] += d[3:]
    for i in range(5 if PA == 48 else 3):
        j = 13 + 8 * i
        prej[j] += [f'WAITTAG KV{i % 2}', 's_barrier']
        d = kvdma(f's_add_u32 m0, {s_p}, {(i % 4) * 16384}', f'KV{i % 2}', False)
        if KS == 2 and j == PA - 3: plan[j] += d[:2]; plan[j + 2] += d[:1] + [d[2]]
        elif KS and j >= PM: plan[j] += d[:3]; plan[j + 2] += d[:1] + d[3:]
        else: plan[j] += d[:5]; plan[j + 1] += d[5:]
    busy = (13, 21, 29, 37, 45)
    j = float(H0)
    for k in range(12):
        while int(j) in busy: j = int(j) + 1.0
        plan[int(j)].append(Ins(f'buffer_store_dwordx4 {hreg[k]}, {vl16}, {sws}, {(s_hb, s_h1, s_h2)[k // 4]} offen offset:{(k % 4) * 1024}{st_mod}', 'HST'))
        jl = int(j); j += HP
    plan[10] += setup3[:10]; plan[11] += setup3[10:20]; plan[12] += setup3[20:]
    def nextfree(j):
        while j in busy: j += 1
        return j
    jf = nextfree(jl + FG); plan[jf] += flag(2, 'FL', 'HST')
    ramp = []
    for i in range(max(DA, DW)):
        if i < DW: ramp += wload(i)
        if i < DA: ramp += hload(i)
    groups = []; curg = []; nv = 0
    for x in ramp:
        if isinstance(x, str) and ' m0,' in x and nv + 2 > RP: groups.append(curg); curg = []; nv = 0
        if isinstance(x, Ins):
            if nv >= RP and not x.text.endswith(' lds'): groups.append(curg); curg = []; nv = 0
            nv += 1
        curg.append(x)
    groups.append(curg)
    jc = PM - 1; k = len(groups)
    while k:
        jc -= 1
        if jc not in busy: k -= 1
    jp = jc - PG
    assert jp > jf, (jp, jf)
    if PT and GP:
        vgl = R('v', 224, 16)
        poll_all = [f'buffer_load_dwordx4 {vgl[4 * i:4 * i + 4]}, {vl16}, {sfl}, 0 offen offset:{i * 1024} sc1' for i in range(4)]
        cond_all = [f'v_min3_u32 {vu1}, {vgl[0]}, {vgl[1]}, {vgl[2]}'] + [f'v_min3_u32 {vu1}, {vu1}, {vgl[i]}, {vgl[i + 1]}' for i in range(3, 15, 2)] + \
                   [f'v_min_u32 {vu1}, {vu1}, {vgl[15]}', f'v_cmp_gt_u32 vcc, 2, {vu1}']
        plan[jp] += poll_all
    else: plan[jp] += [poll_h]
    jj = E0
    for t in range(0, 4, 2):
        jj = nextfree(jj + 1); plan[jj] += early_o[t] + early_o[t + 1]
    jj = nextfree(jj + 3)
    for t in range(4):
        plan[jj] += (['WAITTAG WO'] if t == 0 else []) + woread(t); jj = nextfree(jj + 1)
    for t in range(4, NE):
        plan[jj] += (['s_waitcnt lgkmcnt(0)'] if t == 4 else []) + early_o[t]
        if t % 2 == 1 or jj < jl: jj = nextfree(jj + 1)
    assert jj <= jc + 1, (jj, jc)
    if PT and GP: plan[jc] += check(cond_all, poll_all, 'h')
    else: plan[jc] += check(cond2, [poll_h], 'h') + [f's_lshl_b32 {s_t2}, {s_mb}, 9', poll_h]
    jj = jc
    for g_ in groups:
        plan[jj] += g_; jl2 = jj; jj = nextfree(jj + 1)
    assert jl2 <= PM - 2, (jl2, PM)
    plan[PM - 1] = ['WAITTAG D0 A0'] + wrd(vwr, 0, 0) + plan[PM - 1]
    NZ = PM == PA
    if NZ:
        plan[PM - 3] += og_loads
        plan[PM - 1] += check(cond2, [poll_h], 'g') + g_loads
        plan[jf + 1] += [f'v_accvgpr_write_b32 {Wf[1][i]}, 0' for i in range(4)]
        for k in range(8): zplan.setdefault(jf + 2 + k // 2, []).append(f'v_mfma_f32_32x32x16_bf16 {acc3[k // 4][k % 4]}, {Wf[1]}, {Wf[1]}, 0')
        assert jf + 6 < PM
    else:
        plan[PM + 2] += og_loads
        plan[PM + 4] += ([] if (PT and GP) else check(cond2, [poll_h], 'g')) + g_loads
    if PA == 48: plan[PA - 1] += [f's_xor_b32 {s_p}, {s_p}, 32768']
    vcp = va2()
    vtp = [va2() for _ in range(3)]
    L0 = (PA - PM) // 2 + (128 - PA) // 2
    nA = (56 - L0 - DA) * 4; nW = (56 - L0 - DW) * 4; nO = (16 - NE) * 4
    if TP1:
        plan[26] += lines(f"""
        s_and_b32 {s_t0}, {s_nt}, 7
        s_mul_i32 {s_t0}, {s_t0}, {nA}
        s_mul_i32 {s_t1}, {s_w}, {56 * 32}
        s_add_u32 {s_t0}, {s_t0}, {s_t1}
        s_add_u32 {s_t0}, {s_t0}, {(L0 + DA) * 32}
        v_add_u32 {vu1}, {s_t0}, {vl}
        v_lshlrev_b32 {vu1}, 7, {vu1}
        v_cmp_lt_u32 {smask}, {vl}, {nA}
        v_cndmask_b32 {vtp[0]}, 2.0, {vu1}, {smask}""")
        plan[27] += lines(f"""
        s_and_b32 {s_t1}, {s_mt}, 3
        s_mul_i32 {s_t0}, {s_t1}, {nO}
        s_add_u32 {s_t0}, {s_t0}, {NE * 16}
        v_add_u32 {vu1}, {s_t0}, {vl}
        v_lshlrev_b32 {vu1}, 11, {vu1}
        v_cmp_lt_u32 {smask}, {vl}, {nO}
        v_cndmask_b32 {vtp[2]}, 2.0, {vu1}, {smask}
        s_mul_i32 {s_t0}, {s_t1}, {nW}
        s_mul_i32 {s_t1}, {s_w}, {56 * 16}
        s_add_u32 {s_t0}, {s_t0}, {s_t1}
        s_add_u32 {s_t0}, {s_t0}, {(L0 + DW) * 16}
        v_add_u32 {vu1}, {s_t0}, {vl}
        v_lshlrev_b32 {vu1}, 11, {vu1}
        v_cmp_lt_u32 {smask}, {vl}, {nW}
        v_cndmask_b32 {vtp[1]}, 2.0, {vu1}, {smask}""")
    if CP2:
        plan[PM - 3] += [f's_getpc_b64 {scp[0:2]}', f'{name}_pct:', f's_and_b32 {scp[1]}, {scp[1]}, 0xffff', f's_mov_b32 {scp[2]}, {name}_slow-{name}_pct',
                         f's_mov_b32 {scp[3]}, 0x00020000', f's_lshr_b32 {s_t0}, s2, 3', f's_lshl_b32 {s_t0}, {s_t0}, 2', f's_add_u32 {s_t0}, {s_t0}, {s_w}',
                         f's_lshl_b32 {s_t0}, {s_t0}, 7', f's_add_u32 {s_t0}, {s_t0}, {name}_tail-{name}_pct', f'v_lshl_add_u32 {vcp}, {vl}, 14, {s_t0}']
    def mixed(j, st, nb, loop, misc=(), pre=(), zero=False):
        dw = wload(st + DW); da = hload(st + DA)
        if loop and exp_ & 32:
            dw = [Ins(f'buffer_load_dwordx4 a[{224 + 8 * (st % 4) + 4 * hh}:{227 + 8 * (st % 4) + 4 * hh}], {vl16}, {swd}, {s_ow} offen offset:{hh * 1024}', f'D{(st + DW) % NW}') for hh in range(2)] + dw[3:]
            if nb == 0: period(j, loop, (st, 0), misc=dw + da[:1] + list(misc), pre=pre, zero=zero)
            else:
                p.e(f'WAITTAG D{(st + 1) % NW} A{(st + 1) % NB} LGKM0')
                period(j, loop, (st, 1), misc=da[1:] + list(misc), pre=pre, zero=zero)
            return
        if nb == 0:
            period(j, loop, (st, 0), misc=wrd(vwr, (st % NW) * 2048, 1) + dw + da[:AS] + list(misc), pre=pre, zero=zero)
        else:
            p.e(f'WAITTAG D{(st + 1) % NW} A{(st + 1) % NB} LGKM0')
            period(j, loop, (st, 1), misc=wrd(vwr, ((st + 1) % NW) * 2048, 0) + da[AS:] + list(misc), pre=pre, zero=zero)
    p.seg('partA')
    for j in range(PA):
        if ptrace == -1 and j in (0, 1, 5, 7, 9, 13, 15, 21, jf, jf + 1, jc, jc + 1, PM): pf.trace()
        if j < PM: period(j, misc=plan[j], pre=prej[j])
        else: mixed(j, (j - PM) // 2, j % 2, False, misc=plan[j], pre=prej[j], zero=(j < PM + 2))
    if ptrace == -1: pf.trace()
    ST0 = (PA - PM) // 2
    pf.stamp(4)
    p.e(f's_mov_b32 {s_cnt}, {(128 - PA) // 16}')
    p.seg('loop')
    p.e(f'{name}_loop:')
    for j in range(16):
        misc = []; pre = []
        if j in (5, 13):
            pre = [f'WAITTAG KV{1 if j == 5 else 0}', 's_barrier']
        if KS == 0 and j in (5, 6, 13, 14):
            d = kvdma(f's_xor_b32 m0, {s_p}, 49152' if j < 8 else f's_mov_b32 m0, {s_p}', 'KV1' if j < 8 else 'KV0')
            misc = d[:5] if j in (5, 13) else d[5:]
        if KS == 1 and j in (5, 7, 13, 15):
            d = kvdma(f's_xor_b32 m0, {s_p}, 49152' if j < 8 else f's_mov_b32 m0, {s_p}', 'KV1' if j < 8 else 'KV0')
            misc = d[:3] if j in (5, 13) else d[:1] + d[3:]
        if KS == 2 and j % 2 == 1:
            first_ = 5 <= j < 13
            d = kvdma(f's_xor_b32 m0, {s_p}, 49152' if first_ else (f's_mov_b32 m0, {s_p}' if j >= 13 else f's_xor_b32 m0, {s_p}, 32768'), 'KV1' if first_ else 'KV0')
            k = ((j - 5) // 2) % 4
            misc = d[:1] + [d[1 + k]] + (d[5:] if k == 3 else [])
        if TP1 and j == 2: misc = misc + [f's_cmp_eq_u32 {s_cnt}, 1', f's_cselect_b32 {s_t0}, 0, 2.0']
        if TP1 and j in (4, 6, 8): misc = misc + [Ins(f'buffer_load_dword {vpd}, {vtp[j // 2 - 2]}, {(sA, swd, swo)[j // 2 - 2]}, {s_t0} offen', 'pf')]
        if j == 9 and CP2: misc = [Ins(f'buffer_load_dword {vpd}, {vcp}, {scp}, 0 offen', 'pf')]
        if j == 15: misc = misc + [f's_xor_b32 {s_p}, {s_p}, 32768', f'v_xor_b32 {vkA}, 0x8000, {vkA}', f'v_xor_b32 {vkB}, 0x8000, {vkB}']
        if ptrace == -3:
            p.e(f's_memtime {s_pt[2:4]}\ns_waitcnt lgkmcnt(0)\nv_writelane_b32 {vtr}, {s_pt[2]}, {j}')
        mixed(j, ST0 + j // 2, j % 2, True, misc=misc, pre=pre)
    p.e(f's_sub_u32 {s_cnt}, {s_cnt}, 1\ns_cmp_lg_u32 {s_cnt}, 0\ns_cbranch_scc1 {name}_loop')

    p.seg('tail')
    p.e(f'{name}_tail:')
    pf.stamp(5)
    if ptrace == -2: pf.trace()
    p.add([cvt(15, 7), pv(15, 0), pv(15, 1), rsum(1)])
    def lsum():
        p.e(f"""
        v_accvgpr_read_b32 {vsc[0]}, {L[0][0]}
        v_accvgpr_read_b32 {vu0}, {L[0][1]}
        v_accvgpr_read_b32 {vsc[1]}, {L[1][0]}
        v_accvgpr_read_b32 {vu1}, {L[1][1]}
        v_add_f32 {vsc[0]}, {vsc[0]}, {vu0}
        v_add_f32 {vsc[1]}, {vsc[1]}, {vu1}
        """)
    lsum()
    p.e(f"""
    v_cmp_nle_f32 vcc, {vsc[0]}, {s_thr}
    v_cmp_nle_f32 {smask}, {vsc[1]}, {s_thr}
    s_or_b64 vcc, vcc, {smask}
    s_cbranch_vccnz {name}_slow
    """)
    p.seg('epi')
    p.e(f'{name}_epi:')
    LATE0 = ST0 + (128 - PA) // 2
    vs2 = [P[1][0:2], P[1][2:4]]
    vq_ = []
    o_next = NE
    for st_ in range(LATE0, 56):
        if st_ + DW < 56: vq_.append((st_ + DW - NW + 1, wload(st_ + DW)))
        if st_ + DA < 56: vq_.append((st_ + DA - NB + 1, hload(st_ + DA)))
        if o_next < 16: vq_.append((0, oload(o_next, oslot(o_next)[2], 'WO'))); o_next += 1
    assert o_next == 16
    cur = []
    def onevm(st):
        nonlocal cur
        if not cur and vq_ and vq_[0][0] <= st: cur = list(vq_.pop(0)[1])
        if not cur: return False
        while cur:
            x = cur.pop(0); p.add([x])
            if isinstance(x, Ins): break
        while cur and not any(isinstance(y, Ins) for y in cur): p.add([cur.pop(0)])
        return True
    p.e(f"""
    v_rcp_f32 {vsc[0]}, {vsc[0]}
    v_rcp_f32 {vsc[1]}, {vsc[1]}
    s_mul_i32 {s_p}, {s_wr}, 49152
    s_lshl_b32 {s_t0}, {s_wc}, 13
    s_add_u32 {s_p}, {s_p}, {s_t0}
    s_barrier
    v_mul_f32 {vs2[0][0]}, {vsc[0]}, {vg[0]}
    v_mul_f32 {vs2[1][0]}, {vsc[1]}, {vg[1]}
    v_mov_b32 {vs2[0][1]}, {vs2[0][0]}
    v_mov_b32 {vs2[1][1]}, {vs2[1][0]}
    """)
    for q in range(2):
        for f in range(2):
            t_ = Sx[q][8 * f:8 * f + 8]
            if EV: onevm(LATE0)
            for i in range(8): p.e(f'v_accvgpr_read_b32 {t_[i]}, {O[q][8*f+i]}')
            if EV > 1: onevm(LATE0)
            for i in range(4): p.e(f'v_pk_mul_f32 {t_[2*i:2*i+2]}, {t_[2*i:2*i+2]}, {vs2[q]}')
            for i in range(4): p.e(f'v_cvt_pk_bf16_f32 {t_[i]}, {t_[2*i]}, {t_[2*i+1]}')
            p.e(f'buffer_store_dwordx4 {t_[0:4]}, {vo}, {sws}, {(s_ob, s_ob2)[f]} offen offset:{q * 1024}{st_mod}', 'OST')
    vout = C[0][4]; vrw = [C[0][5], C[0][6], C[0][7]]; vrr = C[0][8]
    sk = [s_h1, s_h2, s_hb, s_left]
    vA2 = [[vA[r], Sx[1][3 * r], Sx[1][3 * r + 1], Sx[1][3 * r + 2]] for r in range(4)]
    late2 = lines(f"""
        s_sub_u32 {s_t0}, {s_p}, {s_wb}
        v_add_u32 {vw2[0]}, {s_t0}, {vwr[0]}
        v_add_u32 {vw2[1]}, {s_t0}, {vwr[1]}
        s_lshl_b32 {s_t0}, {s_mt}, 18
        s_lshl_b32 {s_t1}, {s_nt}, 7
        s_add_u32 {s_t0}, {s_t0}, {s_t1}
        s_add_u32 {sout[0]}, {pout[0]}, {s_t0}
        s_addc_u32 {sout[1]}, {pout[1]}, 0
        s_sub_u32 {sout[2]}, {S * D * 2}, {s_t0}
        s_mov_b32 {sout[3]}, 0x00020000
        v_and_b32 {vu1}, 31, {vl}
        s_lshl_b32 {s_t0}, {s_w}, 16
        v_lshl_add_u32 {vout}, {vu1}, 11, {s_t0}
        v_lshrrev_b32 {vu1}, 5, {vl}
        v_lshl_add_u32 {vout}, {vu1}, 4, {vout}
        v_bfe_u32 {vu1}, {vl}, 1, 3
        v_and_b32 {vu2}, 1, {vl}
        v_lshlrev_b32 {vu2}, 2, {vu2}
        v_lshl_add_u32 {vpa}, {vu1}, 4, {vu2}
        s_lshr_b32 {s_t2}, {s_mt}, 1
        s_lshl_b32 {s_t2}, {s_t2}, 9
        s_lshl_b32 {s_t0}, {s_w}, 7
        s_add_u32 {s_t2}, {s_t2}, {s_t0}
        s_and_b32 {s_t0}, {s_mt}, 1
        s_lshl_b32 {s_t0}, {s_t0}, 3
        s_add_u32 {s_t2}, {s_t2}, {s_t0}
        s_mul_i32 {s_t0}, {s_w}, 24576
        v_add_u32 {vrr}, {s_t0}, {vl16}
        s_lshl_b32 {s_t1}, {s_w}, 16
        s_add_u32 {s_t1}, {s_t1}, {224 * 4096}""")
    late2[6:8] = [late2[6:8]]
    for r in range(3):
        late2 += [f'v_lshrrev_b32 {vu1}, 10, {vA[r]}', f'v_mul_u32_u24 {vu1}, 24576, {vu1}', f'v_add_u32 {vu1}, {(2 - r) * 8192}, {vu1}', f'v_add_u32 {vrw[r]}, {vu1}, {vl16}']
    for i in range(4):
        late2 += [f's_add_u32 {sk[i]}, {s_t1}, {i * 16384}']
    for r in range(4):
        for i in range(1, 4): late2.append(f'v_add_u32 {vA2[r][i]}, {i * 4096}, {vA[r]}')
    vtw = [C[1][i] for i in range(4)]; vtr_ = C[1][4]; sf = [0, s_ow, s_oo, s_ob]
    fin_setup = lines(f"""
        s_lshl_b32 {s_t0}, {s_w}, 12
        s_add_u32 {s_t0}, {s_t0}, {QS}
        v_and_b32 {vu1}, 31, {vl}
        v_lshl_add_u32 {vtw[0]}, {vu1}, 7, {s_t0}
        v_lshrrev_b32 {vu2}, 5, {vl}
        v_xor_b32 {vu2}, {vu2}, {vl}
        v_and_b32 {vu2}, 7, {vu2}
        v_lshl_add_u32 {vtw[0]}, {vu2}, 4, {vtw[0]}
        v_xor_b32 {vtw[1]}, 32, {vtw[0]}
        v_xor_b32 {vtw[2]}, 64, {vtw[0]}
        v_xor_b32 {vtw[3]}, 0x60, {vtw[0]}
        v_lshrrev_b32 {vu1}, 3, {vl}
        v_xor_b32 {vu2}, {vu1}, {vl}
        v_and_b32 {vu2}, 7, {vu2}
        v_lshl_add_u32 {vtr_}, {vu1}, 7, {s_t0}
        v_lshl_add_u32 {vtr_}, {vu2}, 4, {vtr_}
        v_and_b32 {vu2}, 7, {vl}
        v_lshlrev_b32 {vu2}, 4, {vu2}
        s_lshl_b32 {s_t0}, {s_w}, 16
        v_lshl_add_u32 {vout}, {vu1}, 11, {s_t0}
        v_add_u32 {vout}, {vout}, {vu2}""") + [f's_mov_b32 {sf[i]}, {i * 16384}' for i in range(1, 4)]
    poll_o = f'buffer_load_dword {vpoll[0]}, {vpa}, {sfl}, {s_t2} offen sc1'
    AB = [Ab[i // 4][i % 4] for i in range(32)]
    abfree = [48 + i // 4 for i in range(32)]
    if PT:
        AB = [Ab[6 + i // 4][i % 4] for i in range(8)]; abfree = [0] * 8
        for b in range(4):
            AB += Ab[b] + Wb[b]; abfree += [52 + b] * 6
    def aload(i):
        r, t = divmod(i, 16)
        return f'buffer_load_dwordx4 {AB[i % 32]}, {vA2[r][t % 4]}, {sA}, {sk[t // 4]} offen{lm2}'
    a_next = 0; side = list(late2); checked = False
    for st in range(LATE0, 56):
        if ptrace == -2: pf.trace()
        n0 = wrd(vwr, (st % NW) * 2048, 1)
        n1 = ([f'WAITTAG D{(st + 1) % NW} A{(st + 1) % NB}'] + wrd(vwr, ((st + 1) % NW) * 2048, 0)) if st < 55 else []
        if st == LATE0 + 1: side = [flag(3, 'FL', 'OST')] + side
        if st == LATE0 + 2: side += [x for t in range(4, NE) for x in woread(t)]
        for c in range(8):
            nb, tb = divmod(c, 4)
            p.e(gm(st, nb, tb if nb == 0 else 3 - tb))
            if c == 0: p.add(n0)
            if c == 4: p.add(n1)
            if st == LATE0 + OC - PO and c == 1:
                assert not any(isinstance(y, str) and (str(vpa) + ',' in y or str(s_t2) + ',' in y) for y in side)
                p.e(poll_o)
            if st == LATE0 + OC and c == 1:
                p.add(check([f'v_cmp_gt_u32 vcc, 3, {vpoll[0]}'], [poll_o], 'o')); checked = True
                if TP2:
                    p.e(f's_and_b32 {s_t0}, {s_nt}, 7\ns_lshl_b32 {s_t0}, {s_t0}, 13\ns_add_u32 {s_t0}, {s_t0}, {sk[0]}\nv_lshlrev_b32 {vu1}, 7, {vl}')
                    p.add([Ins(f'buffer_load_dword {vpd}, {vu1}, {sA}, {s_t0} offen', 'pf')])
            if onevm(st): pass
            elif checked and a_next < AL and abfree[a_next] < st and st >= 56 - ALS:
                assert not any(y in late2 for y in side)
                p.e(aload(a_next)); a_next += 1
            for _ in range(3 if st < LATE0 + 2 else 2):
                if side:
                    x = side.pop(0); p.add(x if isinstance(x, list) else [x])
    assert not cur and not vq_ and checked and not side
    if ptrace == -2: pf.trace()
    pf.stamp(6)
    def scale(r): return [f'v_mul_f32 {acc3[nb][r][i]}, {acc3[nb][r][i]}, {vog[r]}' for nb in range(2) for i in range(16)]
    p.e('WAITTAG WO')
    rds = [x for t in range(NE, 16) for x in woread(t)]
    for k, x in enumerate(scale(0)):
        p.e(x)
        if k % 4 == 1 and rds: p.e(rds.pop(0))
        if k % 8 == 3 and a_next < AL + 4: p.e(aload(a_next)); a_next += 1
    side = []
    for k, x in enumerate(scale(1)):
        side.append(x)
        if rds: side.append(rds.pop(0))
    assert not rds
    def rdpart(sl, dst): return [f'ds_read_b128 {acc3[n_][dst][4*j:4*j+4]}, {vrr} offset:{sl * 8192 + (n_ * 4 + j) * 1024}' for n_ in range(2) for j in range(4)]
    def addpart(src): return [f'v_add_f32 {acc3[n_][0][e]}, {acc3[n_][0][e]}, {acc3[n_][src][e]}' for n_ in range(2) for e in range(16)]
    wr = []; dens = 2
    for i in range(64):
        r, t = divmod(i, 16)
        if ptrace == -2 and i % 8 == 0: pf.trace()
        for nb in range(2):
            if nb == 0:
                if i == 16: side += scale(2)
                if i == 16 + 2:
                    p.e('s_waitcnt lgkmcnt(0)\ns_barrier')
                if i == 32:
                    assert not side
                    side += scale(3); dens = 3 if FT else 2
                if i == 33 and FT:
                    side += fin_setup
                if i == 32 + 11:
                    assert not wr and not side
                    p.e('s_waitcnt lgkmcnt(0)\ns_barrier')
                    side += rdpart(2, 0) + rdpart(1, 1) + [None] * 4 + addpart(1); dens = 3
                if i == 48 + 7:
                    assert not wr and not side
                    p.e('s_waitcnt lgkmcnt(0)\ns_barrier')
                    side += rdpart(0, 2) + [None] * 6 + addpart(2)
            p.e(f'v_mfma_f32_32x32x16_bf16 {acc3[nb][r]}, {WO[t][4*nb:4*nb+4]}, {AB[i % 32]}, {acc3[nb][r]}')
            if a_next < 64 and a_next <= i + 30 and (nb == 0 or a_next < i + ALM): p.e(aload(a_next)); a_next += 1
            if wr and t >= 2 and (nb == 1 or r == 3): p.e(wr.pop(0))
            for _ in range(dens):
                if side:
                    x = side.pop(0)
                    if x: p.e(x)
        if t == 15 and r < 3:
            assert not wr
            wr = [f'ds_write_b128 {vrw[r]}, {acc3[nb][r][4*j:4*j+4]} offset:{(nb * 4 + j) * 1024}' for nb in range(2) for j in range(4)]
    fin = side
    assert a_next == 64
    pf.stamp(7)
    p.add([x for x in fin if x])
    for nb in range(2):
        a_ = acc3[nb][3]
        for jp in range(2):
            for i in range(4 * jp, 4 * jp + 4): p.e(f'v_pk_add_f32 {a_[2*i:2*i+2]}, {a_[2*i:2*i+2]}, {acc3[nb][0][2*i:2*i+2]}')
            o = Sx[0][8 + 4 * jp:12 + 4 * jp] if nb == 0 else P[0][4 * jp:4 * jp + 4]
            for i in range(4): p.e(f'v_cvt_pk_bf16_f32 {o[i]}, {a_[8 * jp + 2 * i]}, {a_[8 * jp + 2 * i + 1]}')
            p.e(f'v_permlane32_swap_b32 {o[0]}, {o[2]}\nv_permlane32_swap_b32 {o[1]}, {o[3]}')
            if FT: p.e(f'ds_write_b128 {vtw[2 * nb + jp]}, {o}')
            else: p.e(f'buffer_store_dwordx4 {o}, {vout}, {sout}, 0 offen offset:{nb * 64 + jp * 32}' + ('', ' sc1', ' nt', ' sc0 sc1')[OUTM])
    if FT:
        p.e('s_waitcnt lgkmcnt(0)')
        for i in range(4): p.e(f'ds_read_b128 {acc3[0][1][4*i:4*i+4]}, {vtr_} offset:{i * 1024}')
        for i in range(4): p.e(f'buffer_store_dwordx4 {acc3[0][1][4*i:4*i+4]}, {vout}, {sout}, {sf[i]} offen' + ('', ' sc1', ' nt', ' sc0 sc1')[OUTM])
    pf.stamp(8)
    pf.flush(s_w, sws, vl, vu0)
    if PRB or PRA:
        p.e(f"""
        v_readlane_b32 {s_t0}, {vtr}, {44 + 2 * PRA}
        v_readlane_b32 {s_t1}, {vtr}, {44 + 2 * PRB}
        v_readlane_b32 {s_t2}, {vtr}, 62
        s_nop 4
        s_sub_u32 {s_t0}, {s_t1}, {s_t0}
        s_min_u32 {s_t0}, {s_t0}, 20000
        s_lshl_b32 {s_t0}, {s_t0}, {PRS}
        s_mov_b32 {s_cnt}, 200000
        {name}_probe:
        s_memrealtime {s_pt[0:2]}
        s_waitcnt lgkmcnt(0)
        s_sub_u32 {s_t1}, {s_pt[0]}, {s_t2}
        s_cmp_ge_u32 {s_t1}, {s_t0}
        s_cbranch_scc1 {name}_probe_done
        s_sub_u32 {s_cnt}, {s_cnt}, 1
        s_cmp_lg_u32 {s_cnt}, 0
        s_cbranch_scc1 {name}_probe
        {name}_probe_done:
        """)
    if dbg > 0:
        p.e(f"""
        v_readlane_b32 {s_t0}, {vtr}, 44
        v_readlane_b32 {s_t1}, {vtr}, 45
        v_and_b32 {vu1}, 1, {vl}
        v_cmp_eq_u32 vcc, 0, {vu1}
        v_mov_b32 {vu1}, {s_t0}
        v_mov_b32 {vu2}, {s_t1}
        v_cndmask_b32 {vu1}, {vu2}, {vu1}, vcc
        v_sub_u32 {vu1}, {vtr}, {vu1}
        v_subrev_u32 {vu2}, 46, {vl}
        v_lshlrev_b32 {vu2}, 2, {vu2}
        v_cmp_gt_u32 vcc, 64, {vu2}
        v_cndmask_b32 {vu2}, 2.0, {vu2}, vcc
        s_mov_b32 {skv[0]}, {pdbg[0]}
        s_mov_b32 {skv[1]}, {pdbg[1]}
        s_movk_i32 {skv[2]}, 64
        s_lshl_b32 {s_t0}, s2, 2
        s_add_u32 {s_t0}, {s_t0}, {s_w}
        s_cmp_eq_u32 {s_t0}, {dbg - 1}
        s_cselect_b32 {s_t0}, 0, 2.0
        buffer_store_dword {vu1}, {vu2}, {skv}, {s_t0} offen
        """)
    p.e('s_endpgm')

    p.seg('slow0')
    p.e(f'{name}_slow:')
    p.e(f"""
    s_waitcnt vmcnt(0) lgkmcnt(0)
    v_mov_b32 {vu0}, 0xff800000
    v_mov_b32 {vu1}, 0xff800000
    s_mov_b32 {s_okv}, 0
    s_mov_b32 {skv[2]}, 262144
    """)
    p.seg('slow1')
    p.e(f'{name}_slow1:')
    for f in range(2): p.e(f'buffer_load_dwordx4 {K[0][4*f:4*f+4]}, {vl16}, {skv}, {s_okv} offen offset:{f * 1024}')
    for q in range(2):
        for f in range(2): p.e(qk(Sx[q], 0, q, f, '0'))
    rowmax(vu0, Sx[0], False); rowmax(vu1, Sx[1], False)
    p.e(f's_add_u32 {s_okv}, {s_okv}, 4096\ns_cmp_lt_u32 {s_okv}, 262144\ns_cbranch_scc1 {name}_slow1')
    p.seg('slow2')
    setc(0, vu0); setc(1, vu1)
    for q in range(2):
        for i in range(16): p.e(f'v_accvgpr_write_b32 {O[q][i]}, 0')
        for i in range(4): p.e(f'v_accvgpr_write_b32 {L[q][i]}, 0')
    p.e(f's_mov_b32 {s_okv}, 0')
    p.seg('slow3')
    p.e(f'{name}_slow3:')
    for f in range(2): p.e(f'buffer_load_dwordx4 {K[0][4*f:4*f+4]}, {vl16}, {skv}, {s_okv} offen offset:{f * 1024}')
    for f in range(2): p.e(f'buffer_load_dwordx4 {V[0][4*f:4*f+4]}, {vl16}, {skv}, {s_okv} offen offset:{2048 + f * 1024}')
    for q in range(2):
        for f in range(2): p.e(qk(Sx[q], 0, q, f, C[q]))
    for q in range(2):
        for i in range(16): p.e(f'v_exp_f32 {Sx[q][i]}, {Sx[q][i]}')
        for i in range(8): p.e(cvt(q, i))
        p.add([pv(q, 0), pv(q, 1), rsum(q)])
    p.e(f's_add_u32 {s_okv}, {s_okv}, 4096\ns_cmp_lt_u32 {s_okv}, 262144\ns_cbranch_scc1 {name}_slow3')
    p.seg('slow4')
    lsum()
    p.e(f's_branch {name}_epi')
    for lab, cond, reload_ in spins:
        p.seg(lab)
        p.e(f'{lab}_spin:\ns_mov_b32 {s_cnt if lab.endswith("cnt") else s_spin}, {SPIN}\n{lab}_again:\ns_sleep 2')
        p.add(reload_)
        p.e('s_waitcnt vmcnt(0)\ns_nop 1')
        p.add(cond)
        r_ = s_cnt if lab.endswith('cnt') else s_spin
        p.e(f's_nop 4\ns_cbranch_vccz {lab}_ok\ns_sub_u32 {r_}, {r_}, 1\ns_cmp_lg_u32 {r_}, 0\ns_cbranch_scc1 {lab}_again\ns_branch {lab}_ok')
    p.seg('end')
    p.e(f'{name}_end:\ns_endpgm')
    mid = ['join', 'partA', 'loop', 'loop', 'tail']
    slow = ['slow0', 'slow1', 'slow1', 'slow2', 'slow3', 'slow3', 'slow4']
    traces = []
    for wc in range(2):
        for x in ([],):
            traces.append(['pro'] + x + [f'c{wc}a', f'c{wc}l1', f'c{wc}l2', f'c{wc}l1', f'c{wc}l2', f'c{wc}l1', f'c{wc}last'] + mid + ['epi'])
    traces.append(mid + slow + ['epi'])
    for lab, _, _ in spins: traces.append([lab])
    p.auto_waits(traces)
    nn = p.hazards(traces)
    return kernel_header(name) + p.text(), kernel_desc(name), dict(nops=nn, v=va.p, a=aa.p, s=max(sa.p, s_hi))

if __name__ == '__main__':
    import sys
    NAME = 'gated_mix__softmax_full_mha__glu_gated_bilinear__prompt'
    REF = f'cdna_kernels/{NAME}.s.ref'
    dst = sys.argv[1]
    kw = {a.split('=')[0]: float(a.split('=')[1]) if '.' in a else int(a.split('=')[1]) for a in sys.argv[2:] if '=' in a}
    t, d, info = gen_fused(NAME + '_kernel', prof='prof' in sys.argv, force_slow='slow' in sys.argv, **kw)
    print(info, file=sys.stderr)
    head = [l for l in open(REF).read().split('\n') if l.startswith(';') and '@launch' not in l]
    doc = '''; One persistent launch, 256 workgroups x 4 waves (one wave per SIMD, 512 registers, 160 KiB LDS).
;   phase 1  x[256 rows] @ [wq_h wk_h wv_h | w_gate 112 cols | w_up 112 cols], 16x16x32 MFMA, LDS-DMA double buffer.
;   phase 2  softmax(QK^T)V for the block's 256 queries (32x32x16 MFMA), interleaved with the down projection of a
'''
    out = '\n'.join(head) + f'\n; @launch grid=(256,1,1) block=(256,1,1) lds={F_LDS}\n' + doc + '.amdgcn_target "amdgcn-amd-amdhsa--gfx950"\n' + t + d
    open(dst, 'w').write(out)
```

```python
from gen_common import *

X0, X1, W0, W1, QS = 0, 32768, 65536, 106496, 147456
F_LDS = 163840
WS_FL = 33 << 20
WS_T = 36 << 20
DBG_CNT = 64
SPIN = 40000

def gen_fused(name, prof=False, pfd=3, cq=8, cg=6.5, cx=4, NB=8, DA=4, DW=3, RP=6, PM=36, HP=1.25, force_slow=False, ptrace=0, dbg=0, exp_=0, VSP=2, PFP=18, OC=8, KP=1, H0=2, ROT=0, CPF=1, OUTM=1, CP0=1, CP2=0, FG=3, TLB=0, EV=1, DL=6, PT=0, GP=0, JIT=0, JL=1, P13=1, CW=1, NBAR=0, EXA=0, EXJ=4, CONCE=0, OWN=1, NOPF=0, XP2=0, PRS=2, TT=1, TP1=0, TP2=0, AL=16, ALS=2, ALM=18, FT=1, PA=48, AS=1, KS=2, PK=0, PKR=1, AW=1, KF=100, KC=5, FOFF=0, S1P=10, MWT=0, LM1=0, LM2=0, PO=3, LP=0, PRE=-1, PF0=0, PD0=3, xpf=1, F0=0, FS=1.0, GD=2, SMC=16, VMC=8, VPEN=16, MW=1, PRA=0, PRB=0, PG=3, E0=11, st_mod=' sc1'):
    pfm = 1
    kv_mod = '' if exp_ & 64 else st_mod
    lm1 = ('', ' sc1', ' nt', ' sc0')[LM1]; lm2 = ('', ' sc1', ' nt', ' sc0')[LM2]
    p = Prog()
    sa = Alloc('s', 4, 102); va = Alloc('v', 1, 256); aa = Alloc('a', 0, 256)
    ptr = sa(16, 4)
    px, pqkv, pwo, pwg, pwu, pwd, pgw = ptr[0:2], ptr[2:4], ptr[4:6], ptr[8:10], ptr[10:12], ptr[12:14], ptr[14:16]
    pod = sa(4, 4); pout, pdbg = pod[0:2], pod[2:4]
    pws = sa(2); smask = sa(2)
    sws = sa(4); sfl = sa(4); sdbg = sa(4)
    s_mb, s_h, s_w, s_wr, s_wc, s_t0, s_t1, s_t2, s_cnt, s_tr, s_hb = [sa() for _ in range(11)]
    s_pt = sa(4, 2)
    s_base = sa.p
    sx = sa(4); sq = sa(4); sg = sa(4); spf = sa(4); sp2 = sa(4); sp3 = sa(4)
    s_c0, s_c1, s_ox, s_oq, s_og, s_pfo, s_pfs, s_gs, s_grp, s_ano = [sa() for _ in range(10)]
    s_mx, s_mw, s_msk = sa(), sa(), sa()
    s_hi = sa.p

    vl, vpd, vflag, vtr, vflk = [va() for _ in range(5)]
    v_base = va.p
    pf = Prof2(p, prof, s_pt, vtr, s_tr)
    vdx = [va() for _ in range(8)]; vdq = [va() for _ in range(2)]; vdq.append(vdq[0]); vdg = [va() for _ in range(7)]
    vxr = [va() for _ in range(2)]; vqr = [va() for _ in range(2)]; vgr = [va() for _ in range(2)]
    vt0, vt1, vt2, vt3, vpf = [va() for _ in range(5)]
    vcnt = va(); vwo = va()
    vtmp = va(28, 4)
    assert vtmp.a == 36
    xlo = [[aa(8, 4) for _ in range(4)] for _ in range(2)]; xhi = [aa(8, 4) for _ in range(4)]
    def xf(st, m, ks): return (xlo[st][m] if m < 4 else xhi[m - 4])[4 * ks:4 * ks + 4]
    NSLOT = 4; DIST = 3
    wf = [aa(8, 4) for _ in range(NSLOT)]
    acc = [[None] * 8 for _ in range(10)]
    for n in [0, 1, 6, 7, 8, 9, 2, 3, 4, 5]:
        for m in range(8):
            acc[n][m] = va(4, 4) if va.p + 4 <= 256 else aa(4, 4)

    def lines(s): return [x.strip() for x in s.strip().split('\n')]
    def dma_x(st):
        L = []
        for i in range(8):
            pre = [f's_add_u32 m0, {s_mx}, {(X0, X1)[st] + (i // 4) * 4096}'] if i % 4 == 0 else []
            L.append((pre, Ins(f'buffer_load_dwordx4 {vdx[i]}, {sx}, {s_ox} offen offset:{(i % 4) * 1024}{lm1} lds', f'S{st}')))
        return L
    def dma_w(st):
        L = []
        for i in range(10):
            pre = [f's_add_u32 m0, {s_mw}, {(W0, W1)[st] + (i // 4) * 4096}'] if i % 4 == 0 else []
            v, sr, so = (vdq[i - 7], sq, s_oq) if i >= 7 else (vdg[i], sg, s_og)
            L.append((pre, Ins(f'buffer_load_dwordx4 {v}, {sr}, {so} offen offset:{(i % 4) * 1024}{lm1} lds', f'S{st}')))
        return L
    def emit(lst):
        for pre, ins in lst:
            p.add(pre); p.add([ins])
    adv = [f's_add_u32 {s_oq}, {s_oq}, {64 * 6144}', f's_add_u32 {s_og}, {s_og}, {64 * 7168}', f's_add_u32 {s_ox}, {s_ox}, 128']

    jn = [0]
    def jitter(k, wave=True):
        if not JIT: return
        jn[0] += 1
        p.e(f"""
        s_mul_i32 {s_pt[0]}, s2, {4 if wave else 1}
        s_add_u32 {s_pt[0]}, {s_pt[0]}, {s_w if wave else 0}
        s_mul_i32 {s_pt[0]}, {s_pt[0]}, {(2654435761 * (JIT * 16 + k + 1)) % (1 << 31) | 1}
        s_lshr_b32 {s_pt[0]}, {s_pt[0]}, 29
        s_cmp_lg_u32 {s_pt[0]}, 0
        s_cbranch_scc1 {name}_j{jn[0]}
        s_sleep 127
        s_sleep 127
        {name}_j{jn[0]}:
        """)
    p.seg('pro')
    p.e(f"""
    s_cmp_ge_u32 s2, 256
    s_cbranch_scc1 {name}_end
    """)
    if ptrace == 3:
        p.e(f's_memtime {s_pt[2:4]}\ns_waitcnt lgkmcnt(0)\ns_mov_b32 {s_hb}, {s_pt[2]}')
    if PRA == -1:
        p.e(f's_memrealtime {s_pt[2:4]}\ns_waitcnt lgkmcnt(0)\ns_mov_b32 {s_hb}, {s_pt[2]}')
    p.e(f"""
    s_load_dwordx16 {ptr}, s[0:1], 0
    s_load_dwordx4 {pod}, s[0:1], 64
    s_load_dwordx2 {pws}, s[0:1], 80
    v_lshrrev_b32 {vt0}, 6, v0
    v_and_b32 {vl}, 63, v0
    s_lshr_b32 {s_t1}, s2, 3
    v_readfirstlane_b32 {s_w}, {vt0}
    s_and_b32 {s_mb}, {s_t1}, 7
    s_and_b32 {s_t0}, s2, 7
    s_lshr_b32 {s_t1}, {s_t1}, 3
    s_lshl_b32 {s_h}, {s_t0}, 2
    s_add_u32 {s_h}, {s_h}, {s_t1}
    s_lshr_b32 {s_wr}, {s_w}, 1
    s_and_b32 {s_wc}, {s_w}, 1
    """)
    vca = vtmp[24:26]
    for _ in range(JL): jitter(0, False)
    if CP0:
        p.e(f"""
        s_getpc_b64 {smask}
        {name}_pcs:
        s_lshr_b32 {s_t0}, s2, 3
        s_lshl_b32 {s_t0}, {s_t0}, 2
        s_add_u32 {s_t0}, {s_t0}, {s_w}
        s_lshl_b32 {s_t0}, {s_t0}, 7
        v_and_b32 {vt0}, 1, {vl}
        v_lshl_add_u32 {vt0}, {vt0}, 14, {s_t0}
        v_min_u32 {vt0}, {name}_join-{name}_pcs, {vt0}
        v_mov_b32 {vca[1]}, {smask[1]}
        v_add_co_u32 {vca[0]}, vcc, {smask[0]}, {vt0}
        v_addc_co_u32 {vca[1]}, vcc, 0, {vca[1]}, vcc
        """)
        p.add([Ins(f'global_load_dword {vpd}, {vca}, off', 'pf')])
    vxp, vgp = vtmp[0], vtmp[1]
    if XP2: p.e(f'v_mov_b32 {vtmp[3]}, 2.0')
    p.e(f"""
    v_and_b32 {vt0}, 7, {vl}
    v_lshrrev_b32 {vt1}, 3, {vl}
    v_mul_u32_u24 {vt2}, 86, {vt1}
    v_lshrrev_b32 {vt2}, 8, {vt2}
    v_mad_i32_i24 {vt1}, {vt2}, -3, {vt1}
    v_lshl_add_u32 {vt0}, {vt2}, 6, {vt0}
    s_lshl_b32 {s_t0}, {s_mb}, 3
    v_add_u32 {vt0}, {s_t0}, {vt0}
    s_cmp_eq_u32 {s_w}, 3
    s_movk_i32 {s_c0}, 7168
    s_cmov_b32 {s_c0}, 6144
    s_movk_i32 {s_c1}, 108
    s_cmov_b32 {s_c1}, 2048
    v_mul_u32_u24 {vt0}, {s_c0}, {vt0}
    v_mad_u32_u24 {vxp}, {vt1}, {s_c1}, {vt0}
    v_cmp_gt_u32 vcc, 48, {vl}
    s_lshl_b32 {s_t0}, {s_t1}, 17
    v_lshl_add_u32 {vt0}, {vl}, 11, {s_t0}
    v_cndmask_b32 {vxp}, 2.0, {vxp}, vcc
    s_cmp_eq_u32 {s_w}, 0
    s_cselect_b64 vcc, -1, 0
    v_cndmask_b32 {vxp}, {vxp}, {vt0 if not XP2 else vtmp[3]}, vcc
    """)
    if XP2:
        p.e(f"""
        s_lshl_b32 {s_c0}, {s_w}, 15
        s_add_u32 {s_t0}, {s_t0}, {s_c0}
        v_lshrrev_b32 {vt0}, 1, {vl}
        v_lshl_add_u32 {vt0}, {vt0}, 11, {s_t0}
        v_and_b32 {vt1}, 1, {vl}
        v_lshl_add_u32 {vt0}, {vt1}, 7, {vt0}
        v_cmp_gt_u32 vcc, 32, {vl}
        v_cndmask_b32 {vtmp[4]}, 2.0, {vt0}, vcc
        """)
    x_addr = lines(f"""
    v_lshrrev_b32 {vt0}, 3, {vl}
    v_and_b32 {vt1}, 7, {vl}
    v_lshrrev_b32 {vt2}, 4, {vl}
    v_xor_b32 {vt1}, {vt1}, {vt2}
    v_lshlrev_b32 {vt3}, 11, {vt0}
    s_lshl_b32 {s_c0}, {s_w}, 17
    v_add_u32 {vt3}, {s_c0}, {vt3}
    v_lshl_add_u32 {vdx[0]}, {vt1}, 4, {vt3}
    v_xor_b32 {vt1}, 4, {vt1}
    v_lshl_add_u32 {vdx[1]}, {vt1}, 4, {vt3}
    v_add_u32 {vdx[1]}, {16384 - 1024}, {vdx[1]}
    s_lshl_b32 {s_mx}, {s_w}, 13
    s_mov_b32 {s_ox}, 0""") + [f'v_add_u32 {vdx[i]}, {(i - i % 2) * 16384 - (i % 4 - i % 2) * 1024}, {vdx[i % 2]}' for i in range(2, 8)]
    q_addr = lines(f"""
    v_lshrrev_b32 {vt0}, 2, {vl}
    v_and_b32 {vt2}, 2, {vt2}
    v_and_b32 {vt1}, 3, {vl}
    v_xor_b32 {vt1}, {vt1}, {vt2}
    s_lshl_b32 {s_c0}, {s_w}, 4
    v_add_u32 {vt0}, {s_c0}, {vt0}
    v_mul_u32_u24 {vt0}, 6144, {vt0}
    v_lshl_add_u32 {vdq[1]}, {vt1}, 4, {vt0}
    v_add_u32 {vdq[0]}, 1024, {vdq[1]}
    s_mul_i32 {s_mw}, {s_w}, 10240
    s_mov_b32 {s_oq}, 0
    s_mov_b32 {s_og}, 0""")
    if PRE >= 0: p.add(x_addr + q_addr)
    def gu_offsets():
        L = [lines(f"""
        s_mul_i32 {s_t0}, {s_wc}, {32 * 7168}
        s_movk_i32 {s_c0}, 6944
        s_movk_i32 {s_c1}, 28672
        v_mul_u32_u24 {vt3}, 4682, {vl}
        v_lshl_add_u32 {vtmp[2]}, {vl}, 4, {s_t0}""")]
        for j in range(7):
            tj = vt3; q_ = []
            if j:
                q_.append(f'v_add_u32 {vt0}, {64 * j * 4682}, {vt3}'); tj = vt0
            q_ += lines(f"""
            v_bfe_u32 {vt1}, {tj}, 18, 1
            v_bfe_u32 {vt2}, {tj}, 19, 1
            v_lshrrev_b32 {vt0}, 16, {tj}
            v_sub_u32 {vt1}, {vt1}, {vt2}
            v_mad_u32_u24 {vdg[j]}, {vt0}, {s_c0}, {vtmp[2]}
            v_mad_i32_i24 {vdg[j]}, {vt1}, {s_c1}, {vdg[j]}""")
            if j == 3: q_.append(f'v_add_u32 {vtmp[2]}, 4096, {vtmp[2]}')
            L.append(q_)
        return L
    gu = gu_offsets()
    if PRE >= 1:
        for q_ in gu: p.add(q_)
    PD = pfd
    gpf_addr = lines(f"""
        s_cmp_eq_u32 {s_w}, 0
        s_cselect_b32 {s_grp}, 12, 14
        s_lshl_b32 {s_pfs}, {s_grp}, 15
        s_cmp_eq_u32 {s_w}, 3
        s_cselect_b32 {s_grp}, 8, {s_grp}
        s_cselect_b32 {s_pfs}, 0x80, {s_pfs}
        s_cselect_b32 {s_ano}, 11, 7
        s_mul_i32 {s_t1}, {s_grp}, s2
        v_and_b32 {vt1}, 15, {vl}
        v_add_u32 {vt0}, {s_t1}, {vt1}
        v_lshlrev_b32 {vpf}, {s_ano}, {vt0}
        v_lshrrev_b32 {vt0}, 4, {vl}
        v_mul_lo_u32 {vt0}, {vt0}, {s_pfs}
        v_add_u32 {vgp}, {vt0}, {vpf}
        v_cmp_gt_u32 vcc, {s_grp}, {vt1}
        v_cmp_gt_u32 {smask}, {16 * (PD0 - 1)}, {vl}
        s_and_b64 {smask}, {smask}, vcc
        v_cndmask_b32 {vgp}, 2.0, {vgp}, {smask}
        v_cmp_gt_u32 vcc, {s_grp}, {vl}
        s_mul_i32 {s_pfo}, {s_pfs}, {PD0}
        v_cndmask_b32 {vpf}, 2.0, {vpf}, vcc""")
    gpf_issue = lines(f"""
        s_cmp_eq_u32 {s_w}, 0
        s_cselect_b64 {spf[0:2]}, {pqkv}, {pwg}
        s_cmp_eq_u32 {s_w}, 2
        s_cselect_b64 {spf[0:2]}, {pwu}, {spf[0:2]}
        s_cmp_eq_u32 {s_w}, 3
        s_cselect_b64 {spf[0:2]}, {px}, {spf[0:2]}
        s_lshl_b32 {spf[2]}, {s_grp}, 19""") + [Ins(f'buffer_load_dword {vpd}, {vgp}, {spf}, {s_pfs} offen', 'pf')]
    if OWN:
        gpf_addr = lines(f"""
        s_cmp_eq_u32 {s_w}, 3
        s_mov_b32 {s_pfs}, {64 * 7168}
        s_cmov_b32 {s_pfs}, {64 * 6144}
        v_cmp_gt_u32 vcc, 24, {vl}
        s_lshl_b32 {s_t1}, s2, 14
        v_and_b32 {vt1}, 7, {vl}
        v_cndmask_b32 {vpf}, 2.0, {vxp}, vcc
        v_lshl_add_u32 {vt0}, {vt1}, 11, {s_t1}
        v_lshrrev_b32 {vt1}, 3, {vl}
        v_lshl_add_u32 {vgp}, {vt1}, 7, {vt0}
        v_cmp_gt_u32 vcc, 8, {vl}
        v_cmp_gt_u32 {smask}, {8 * (PD0 - 1)}, {vl}
        v_cndmask_b32 {vt0}, 2.0, {vt0}, vcc
        v_cndmask_b32 {vgp}, 2.0, {vgp}, {smask}
        s_cmp_eq_u32 {s_w}, 0
        s_cselect_b64 vcc, -1, 0
        s_cselect_b32 {s_pfs}, 0x80, {s_pfs}
        s_cselect_b64 {spf[0:2]}, {px}, {spf[0:2]}
        s_cselect_b32 {spf[2]}, {S * D * 2}, {spf[2]}
        s_cselect_b32 {s_t0}, 1, 2
        v_cndmask_b32 {vpf}, {vpf}, {vt0}, vcc
        v_cndmask_b32 {vgp}, {vpf}, {vgp}, vcc
        s_mul_i32 {s_t0}, {s_t0}, {s_pfs}
        s_mul_i32 {s_pfo}, {s_pfs}, {PD0}""")
        if OWN == 2:
            gpf_addr = lines(f"""
            s_cmp_eq_u32 {s_w}, 3
            s_mov_b32 {s_pfs}, {64 * 7168}
            s_cmov_b32 {s_pfs}, {64 * 6144}
            s_cmp_eq_u32 {s_w}, 0
            s_cselect_b32 {s_t1}, 64, 24
            s_cselect_b32 {s_pfs}, 0x80, {s_pfs}
            s_cselect_b32 {s_t0}, 1, 2
            v_cmp_gt_u32 vcc, {s_t1}, {vl}
            s_mul_i32 {s_t0}, {s_t0}, {s_pfs}
            s_add_u32 {s_pfo}, {s_t0}, {s_pfs}
            v_cndmask_b32 {vpf}, 2.0, {vxp}, vcc
            v_mov_b32 {vgp}, {vpf}""")
        assert PD0 == 3 and PRE < 2 and not PF0 and not XP2
        gpf_issue = [Ins(f'buffer_load_dword {vpd}, {vgp}, {spf}, {s_t0} offen', 'pf')]
    def pfetch():
        if NOPF & 1: return []
        return [Ins(f'buffer_load_dword {vpd}, {vpf}, {spf}, {s_pfo} offen', 'pf'), f's_add_u32 {s_pfo}, {s_pfo}, {s_pfs}']
    def pfetch_d():
        if NOPF & 2: return []
        return [Ins(f'buffer_load_dword {vpd}, {vt3}, {sp2}, {s_c1} offen', 'pf'), f's_add_u32 {s_c1}, {s_c1}, {1024 * DL * 128}']
    rd_addr = lines(f"""
    v_and_b32 {vt0}, 15, {vl}
    v_lshrrev_b32 {vt1}, 4, {vl}
    v_lshrrev_b32 {vt2}, 1, {vt0}
    v_xor_b32 {vt2}, {vt1}, {vt2}
    s_lshl_b32 {s_t0}, {s_wr}, 14
    v_lshl_add_u32 {vt3}, {vt0}, 7, {s_t0}
    v_lshl_add_u32 {vxr[0]}, {vt2}, 4, {vt3}
    v_xor_b32 {vxr[1]}, 64, {vxr[0]}
    v_and_b32 {vt3}, 3, {vt0}
    v_lshlrev_b32 {vt3}, 3, {vt3}
    v_lshrrev_b32 {vt0}, 2, {vt0}
    v_lshrrev_b32 {vt2}, 1, {vt1}
    v_and_b32 {vt1}, 1, {vt1}
    v_mul_u32_u24 {vqr[0]}, 10240, {vt2}
    v_mul_u32_u24 {vqr[1]}, {512 + 32}, {vt1}
    v_add3_u32 {vqr[0]}, {vqr[0]}, {vqr[1]}, {vt3}
    v_lshl_add_u32 {vqr[0]}, {vt0}, 6, {vqr[0]}
    s_lshl_b32 {s_t0}, {s_wc}, 10
    s_sub_u32 {s_t0}, {W0 + 8192}, {s_t0}
    v_add_u32 {vqr[0]}, {s_t0}, {vqr[0]}
    v_xor_b32 {vqr[1]}, 32, {vqr[0]}
    v_lshl_add_u32 {vt0}, {vt1}, 2, {vt0}
    v_lshl_add_u32 {vt0}, {vt2}, 4, {vt0}
    v_mul_u32_u24 {vt0}, 224, {vt0}
    s_mul_i32 {s_t0}, {s_wc}, 96
    s_add_u32 {s_t0}, {s_t0}, {W0}
    v_add3_u32 {vgr[0]}, {vt0}, {vt3}, {s_t0}
    v_add_u32 {vgr[1]}, 20480, {vgr[0]}""")
    if PRE >= 2 or PF0: p.add(gpf_addr)
    if PRE >= 3: p.add(rd_addr)
    p.e(f"""
    s_lshl_b32 {s_t0}, {s_mb}, 19
    s_lshl_b32 {s_t1}, {s_h}, 6
    s_mul_i32 {s_t2}, {s_h}, 224
    s_mov_b32 {sx[3]}, 0x00020000
    s_mov_b32 {sq[3]}, 0x00020000
    s_mov_b32 {sg[3]}, 0x00020000
    s_mov_b32 {spf[3]}, 0x00020000
    s_sub_u32 {sx[2]}, {S * D * 2}, {s_t0}
    s_sub_u32 {sq[2]}, {D * 3072 * 2}, {s_t1}
    s_sub_u32 {sg[2]}, {D * F * 2}, {s_t2}
    s_waitcnt lgkmcnt(0)
    """)
    pf.stamp(0)
    pf.trace_init(vtr, s_tr)
    if PRA == -1: p.e(f'v_writelane_b32 {vtr}, {s_hb}, 42')
    if ptrace == 3:
        p.e(f'v_writelane_b32 {vtr}, {s_hb}, 0\ns_mov_b32 {s_tr}, 1')
        pf.trace()
    p.e(f"""
    s_add_u32 {sx[0]}, {px[0]}, {s_t0}
    s_addc_u32 {sx[1]}, {px[1]}, 0
    s_add_u32 {sq[0]}, {pqkv[0]}, {s_t1}
    s_addc_u32 {sq[1]}, {pqkv[1]}, 0
    s_cmp_ge_u32 {s_w}, 2
    s_cselect_b64 {sg[0:2]}, {pwu}, {pwg}
    s_add_u32 {sg[0]}, {sg[0]}, {s_t2}
    s_addc_u32 {sg[1]}, {sg[1]}, 0
    s_cmp_eq_u32 {s_w}, 3
    s_cselect_b64 {spf[0:2]}, {sq[0:2]}, {sg[0:2]}
    s_cselect_b32 {spf[2]}, {sq[2]}, {sg[2]}
    s_cmp_eq_u32 {s_w}, 0
    s_cselect_b64 {spf[0:2]}, {sx[0:2]}, {spf[0:2]}
    s_cselect_b32 {spf[2]}, {sx[2]}, {spf[2]}
    """)
    if XP2: p.add([Ins(f'buffer_load_dword {vpd}, {vtmp[4]}, {sx}, 0 offen', 'pf')])
    if xpf: p.add([Ins(f'buffer_load_dword {vpd}, {vxp}, {spf}, 0 offen', 'pf')])
    if PF0: p.add(gpf_issue)
    if ptrace > 0: pf.trace()
    if PRE < 0: p.add(x_addr)
    emit(dma_x(0))
    if ptrace > 0: pf.trace()
    if PRE < 0: p.add(q_addr)
    w0 = dma_w(0)
    p.e(f's_add_u32 m0, {s_mw}, {W0 + 4096}')
    emit(w0[7:])
    if PRE < 1: p.add(gu[0])
    for j in range(7):
        if PRE < 1: p.add(gu[j + 1])
        emit([w0[j]])
    p.add(adv)
    if ptrace > 0: pf.trace()
    emit((dma_w(1) + dma_x(1))[:S1P])
    if PRE < 2 and not PF0 and not NOPF & 4: p.add(gpf_addr)
    if not PF0 and not NOPF & 4: p.add(gpf_issue)
    if PRE < 3: p.add(rd_addr)
    gx = [vtmp[4 * i:4 * i + 4] for i in range(4)]; gw = [vtmp[16:20], vtmp[20:24]]; t = vtmp[24:28]; z = [vt0, vt1]
    flag_setup = [[f's_add_u32 {sfl[0]}, {pws[0]}, {WS_FL}', f's_addc_u32 {sfl[1]}, {pws[1]}, 0']] + lines(f"""
    s_movk_i32 {sfl[2]}, 8192
    s_mov_b32 {sfl[3]}, 0x00020000
    s_mov_b32 {sws[0]}, {pws[0]}
    s_mov_b32 {sws[1]}, {pws[1]}
    s_mov_b32 {sws[2]}, {WS_SIZE}
    s_mov_b32 {sws[3]}, 0x00020000
    s_mov_b32 {sp2[3]}, 0x00020000
    s_lshl_b32 {s_t0}, {s_mb}, 5
    s_add_u32 {s_t0}, {s_t0}, {s_h}
    s_lshl_b32 {s_gs}, {s_t0}, 7
    s_lshl_b32 {s_t0}, {s_t0}, 2
    s_add_u32 {s_t0}, {s_t0}, {s_w}
    s_lshl_b32 {s_t0}, {s_t0}, 2
    v_mov_b32 {vt0}, {s_t0}
    v_cmp_eq_u32 vcc, 0, {vl}
    v_mov_b32 {vt3}, 0
    v_cndmask_b32 {vflag}, 2.0, {vt0}, vcc
    s_lshl_b32 {s_t0}, {s_h}, 3
    s_add_u32 {s_t0}, {s_t0}, {s_mb}
    s_lshl_b32 {s_t0}, {s_t0}, 2
    s_add_u32 {s_t0}, {s_t0}, {s_w}
    s_lshl_b32 {s_t0}, {s_t0}, 2
    s_add_u32 {s_t0}, {s_t0}, 4096
    v_mov_b32 {vt0}, {s_t0}
    buffer_store_dword {vt3}, {vflag}, {sfl}, 0 offen sc1
    v_cndmask_b32 {vflk}, 2.0, {vt0}, vcc
    s_lshl_b32 {s_t1}, {s_w}, 3
    buffer_store_dword {vt3}, {vflk}, {sfl}, 0 offen sc1
    s_add_u32 {s_gs}, {s_gs}, {s_t1}
    s_add_u32 {s_gs}, {s_gs}, {WS_G}
    s_lshl_b32 {s_t0}, {s_h}, 3
    s_lshl_b32 {s_t1}, {s_w}, 1
    s_add_u32 {s_t0}, {s_t0}, {s_t1}
    s_lshl_b32 {s_t2}, {s_t0}, 11
    s_mov_b32 {s_msk}, 0xffff0000
    v_lshlrev_b32 {z[0]}, 5, {vl}""")
    if ptrace > 0: pf.trace()
    p.e('WAITTAG S0')
    if ptrace > 0: pf.trace()
    p.e('s_barrier')
    if ptrace > 0: pf.trace()
    pf.stamp(1)

    def gate_ops():
        L = []
        for r in range(2):
            for j in range(8):
                xr = gx[2 * r + j // 4][j % 4]; wr_ = gw[j // 4][j % 4]
                L += [f'v_lshlrev_b32 {t[0]}, 16, {xr}', f'v_lshlrev_b32 {t[1]}, 16, {wr_}',
                      f'v_and_b32 {t[2]}, {s_msk}, {xr}', f'v_and_b32 {t[3]}, {s_msk}, {wr_}',
                      f'v_mul_f32 {t[0]}, {t[0]}, {t[1]}', f'v_mul_f32 {t[2]}, {t[2]}, {t[3]}',
                      f'v_cvt_pk_bf16_f32 {t[0]}, {t[0]}, {t[2]}', f'v_lshlrev_b32 {t[1]}, 16, {t[0]}',
                      f'v_and_b32 {t[2]}, {s_msk}, {t[0]}']
                if j == 0: L.append(f'v_add_f32 {z[r]}, {t[1]}, {t[2]}')
                else: L += [f'v_add_f32 {t[1]}, {t[1]}, {t[2]}', f'v_add_f32 {z[r]}, {z[r]}, {t[1]}']
        for mode in ('quad_perm:[1,0,3,2]', 'quad_perm:[2,3,0,1]', 'row_half_mirror', 'row_mirror'):
            for r in range(2): L.append(f'v_add_f32_dpp {z[r]}, {z[r]}, {z[r]} {mode} row_mask:0xf bank_mask:0xf')
        for op in ('v_permlane16_swap_b32', 'v_permlane32_swap_b32'):
            for r in range(2): L.append(f'v_mov_b32 {t[r]}, {z[r]}')
            for r in range(2): L.append(f'{op} {t[r]}, {z[r]}')
            for r in range(2): L.append(f'v_add_f32 {z[r]}, {z[r]}, {t[r]}')
        L += f"""v_and_b32 {t[1]}, 1, {vl}
        v_cmp_eq_u32 vcc, 1, {t[1]}
        v_and_b32 {t[3]}, 2, {vl}
        v_cndmask_b32 {t[0]}, {z[0]}, {z[1]}, vcc
        v_cvt_pk_bf16_f32 {t[0]}, {t[0]}, {t[0]}
        v_and_b32 {t[0]}, {s_msk}, {t[0]}
        v_mul_f32 {t[0]}, {hex(f32bits(-math.log2(math.e)))}, {t[0]}
        v_exp_f32 {t[0]}, {t[0]}
        v_cmp_eq_u32 vcc, 2, {t[3]}
        v_add_f32 {t[0]}, 1.0, {t[0]}
        v_rcp_f32 {t[0]}, {t[0]}
        v_lshlrev_b32 {t[3]}, 4, {t[3]}
        v_cvt_pk_bf16_f32 {t[0]}, {t[0]}, {t[0]}
        v_and_b32 {t[0]}, {s_msk}, {t[0]}
        v_sub_f32 {t[2]}, 1.0, {t[0]}
        v_cvt_pk_bf16_f32 {t[2]}, {t[2]}, {t[2]}
        v_and_b32 {t[2]}, {s_msk}, {t[2]}
        v_cndmask_b32 {t[0]}, {t[0]}, {t[2]}, vcc
        v_lshl_add_u32 {t[3]}, {t[1]}, 2, {t[3]}
        v_cmp_gt_u32 vcc, 4, {vl}
        v_cndmask_b32 {t[3]}, 2.0, {t[3]}, vcc
        buffer_store_dword {t[0]}, {t[3]}, {sws}, {s_gs} offen{st_mod}""".split('\n')
        return [x.strip() for x in L]

    def wread(n, st, wc):
        slot = wf[(10 * st + n) % NSLOT]
        nq = 4 if wc == 0 else 2
        L = []
        for ks in range(2):
            if n < nq: base = vqr[n % 2]; off = ks * 20480 + (1024 if (wc == 0 and n < 2) else 0); so = 256
            else: base = vgr[(n - nq) % 2]; off = ks * 10240 + ((n - nq) // 2) * 32; so = 1792
            off += st * (W1 - W0)
            L += [f'ds_read_b64_tr_b16 {slot[4 * ks + 2 * s:4 * ks + 2 * s + 2]}, {base} offset:{off + s * so}' for s in range(2)]
        return L
    def xread(m, ks, st):
        return f'ds_read_b128 {xf(st, m, ks)}, {vxr[ks]} offset:{st * (X1 - X0) + m * 2048}'

    for m in range(2):
        for ks in range(2): p.e(xread(m, ks, 0))
    p.e(f's_cmp_eq_u32 {s_wc}, 1')
    p.e(f's_cbranch_scc1 {name}_c1')

    def stage(st, wc, first=False, last=False, extra=None, fill=None, estep=2, postbar=None, nodma1=False, early=None, dens=2):
        slots = {}
        for j in range(10):
            jj = j + DIST
            if jj < 10: rd = wread(jj, st, wc)
            elif last: continue
            else: rd = wread(jj - 10, st ^ 1, wc)
            for i, x in enumerate(rd): place(slots, 16 * j + ((0, 2, 4, 6) if j < 9 else (0, 11, 13, 15))[i], x)
        bar = 16 * (10 - DIST)
        if not last:
            for i in range(8): place(slots, bar + 8 + (0, 2, 4, 6, 16, 18, 20, 22)[i], xread(i // 2, i % 2, st ^ 1))
            for i in range(8): place(slots, 144 + (2, 3, 4, 5, 7, 8, 9, 10)[i], xread(7 - i // 2, i % 2, st ^ 1))
        pos = []; c = 1.0
        for k in range(18):
            pos.append(int(c)); c += cg if k < 7 else (cq if k < 10 else cx)
        endc = int(c) - (160 - bar)
        pos0 = pos
        if first:
            sh = pos[S1P] - 1
            pos = [(int(F0 + (x - sh) * FS) + 160 - bar) if k >= S1P else -1 for k, x in enumerate(pos)]; endc = int(F0 + (endc + 160 - bar - sh) * FS)
        if not last:
            dl = dma_w(st ^ 1) + dma_x(st ^ 1)
            for k in range(18):
                c = pos[k] - (160 - bar)
                if c < 0: continue
                for x in dl[k][0]: place(slots, max(c - 1, 0), x)
                place(slots, c, dl[k][1])
            for i, x in enumerate(adv): place(slots, endc - 2 + i, x)
            if first: pos = pos0
            dl = dma_w(st) + dma_x(st)
            for k in range(18):
                c = bar + pos[k]
                if c >= 160 or nodma1: continue
                for x in dl[k][0]: place(slots, c - 1, x)
                place(slots, c, dl[k][1])
        if early:
            c = (pos[PFP] - (0 if first else 160 - bar) - 2) if PFP < 18 else endc + 1
            for x in early: place(slots, max(c, 0), x); c += 1
            if PFP >= 18: endc = c + 1
        c = endc + 1
        for x in (extra or []):
            if isinstance(x, list):
                for y in x: place(slots, c, y)
                c += estep; continue
            place(slots, c, x)
            c += 3 if (isinstance(x, Ins) or x.startswith('buffer')) else estep
        assert c < bar
        for i, x in enumerate(postbar or []):
            for y in (x if isinstance(x, list) else [x]):
                if y is not None: place(slots, bar + 3 + 2 * i, y)
        if FOFF:
            for c in sorted(slots):
                if c % 2 == 0 and c + 1 < 160 and len(slots.get(c + 1, [])) + len(slots[c]) <= FOFF:
                    slots[c + 1] = slots[c] + slots.get(c + 1, []); slots[c] = []
        fill = [x if isinstance(x, tuple) else (0, x) for x in (fill or [])]
        for c in range(160):
            n, r = divmod(c, 16); mi, ks = divmod(r, 2)
            m = mi if n % 2 == 0 else 7 - mi
            if c == bar and not last:
                p.e(f'WAITTAG S{st ^ 1} LGKM0')
                p.e('s_barrier')
                if ptrace > 1: pf.trace()
            if MWT and not first and c == 8: p.e('s_waitcnt lgkmcnt(4)')
            if MWT and r == 0 and 0 < n and c != bar and not (first and n < 3) and not last: p.e(f's_waitcnt lgkmcnt({8 if n <= 7 else 12})')
            w = wf[(10 * st + n) % NSLOT][4 * ks:4 * ks + 4]; x = xf(st, m, ks)
            a, b = (x, w) if (wc == 1 and n < 2) else (w, x)
            cin = '0' if (first and ks == 0) else str(acc[n][m])
            p.e(f'v_mfma_f32_16x16x32_bf16 {acc[n][m]}, {a}, {b}, {cin}')
            here = slots.get(c, [])
            p.add(here)
            if c >= 1:
                for _ in range(min(dens, 2 - len(here))):
                    if fill and fill[0][0] <= c:
                        x = fill.pop(0)[1]; p.add(x if isinstance(x, list) else [x])
        return [x[1] for x in fill]

    def toreg(tile, tmp):
        if tile.k == 'v': return tile
        for i in range(4): p.e(f'v_accvgpr_read_b32 {tmp[i]}, {tile[i]}')
        return tmp
    def pack(o, t0, t1):
        p.e(f'v_cvt_pk_bf16_f32 {o[0]}, {t0[0]}, {t0[1]}\nv_cvt_pk_bf16_f32 {o[1]}, {t0[2]}, {t0[3]}')
        p.e(f'v_cvt_pk_bf16_f32 {o[2]}, {t1[0]}, {t1[1]}\nv_cvt_pk_bf16_f32 {o[3]}, {t1[2]}, {t1[3]}')

    def pf_setup():
        L = f"""s_lshl_b32 {s_t0}, s2, 2
        s_add_u32 {s_t0}, {s_t0}, {s_w}
        s_mul_i32 {s_t1}, {s_t0}, {DL * 128}
        v_lshl_add_u32 {vt3}, {vl}, 7, {s_t1}
        v_cmp_gt_u32 vcc, {DL}, {vl}
        s_mov_b32 {sp2[0]}, {pwd[0]}
        s_mov_b32 {sp2[1]}, {pwd[1]}
        s_mov_b32 {sp2[2]}, {F * D * 2}
        v_cndmask_b32 {vt3}, 2.0, {vt3}, vcc
        s_mov_b32 {s_c1}, 0""".split('\n')
        return [x.strip() for x in L]
    def tp_setup():
        a_, b_ = vtmp[27], vtmp[26]
        return lines(f"""
        s_lshl_b32 {s_t0}, s2, 2
        s_add_u32 {s_t0}, {s_t0}, {s_w}
        s_lshr_b32 {s_t1}, {s_t0}, 4
        s_lshl_b32 {s_c1}, {s_t1}, 15
        s_lshl_b32 {s_c0}, {s_t1}, 12
        s_and_b32 {s_t0}, {s_t0}, 15
        s_lshr_b32 {s_t1}, {s_t0}, 1
        s_mul_i32 {s_t1}, {s_t1}, {224 * 4096}
        s_add_u32 {s_c0}, {s_c0}, {s_t1}
        s_and_b32 {s_t1}, {s_t0}, 1
        s_lshl_b32 {s_t1}, {s_t1}, 11
        s_add_u32 {s_c0}, {s_c0}, {s_t1}
        s_add_u32 {s_c0}, {s_c0}, {WS_T}
        s_lshl_b32 {s_t0}, {s_t0}, 7
        s_mov_b32 {sp2[0]}, {pwd[0]}
        s_mov_b32 {sp2[1]}, {pwd[1]}
        s_mov_b32 {sp2[2]}, {F * D * 2}
        v_lshrrev_b32 {a_}, 3, {vl}
        v_and_b32 {b_}, 2, {a_}
        v_lshlrev_b32 {b_}, 1, {b_}
        v_and_b32 {vt3}, 7, {vl}
        v_xor_b32 {b_}, {b_}, {vt3}
        v_lshl_add_u32 {b_}, {b_}, 4, {s_t0}
        v_lshl_add_u32 {vt3}, {a_}, 11, {b_}
        s_lshl_b32 {s_t0}, {s_w}, 12
        s_add_u32 {s_t0}, {s_t0}, {QS}
        v_lshrrev_b32 {a_}, 5, {vl}
        v_lshl_add_u32 {vtmp[24]}, {a_}, 10, {s_t0}
        v_bfe_u32 {a_}, {vl}, 2, 2
        v_lshl_add_u32 {vtmp[24]}, {a_}, 7, {vtmp[24]}
        v_bfe_u32 {a_}, {vl}, 3, 1
        v_lshl_add_u32 {vtmp[24]}, {a_}, 6, {vtmp[24]}
        v_bfe_u32 {a_}, {vl}, 4, 1
        v_lshl_add_u32 {vtmp[24]}, {a_}, 5, {vtmp[24]}
        v_and_b32 {a_}, 3, {vl}
        v_lshl_add_u32 {vtmp[24]}, {a_}, 3, {vtmp[24]}
        v_xor_b32 {vtmp[25]}, 64, {vtmp[24]}
        v_lshlrev_b32 {vtmp[26]}, 4, {vl}
        s_lshl_b32 {s_t0}, s2, 2
        s_add_u32 {s_t0}, {s_t0}, {s_w}
        s_and_b32 {s_t0}, {s_t0}, 15
        s_lshl_b32 {s_t0}, {s_t0}, 7
        v_lshl_add_u32 {a_}, {vl}, 11, {s_t0}
        v_cmp_gt_u32 vcc, 16, {vl}
        v_cndmask_b32 {a_}, 2.0, {a_}, vcc""") + [tp_touch()]
    def tp_touch():
        return Ins(f'buffer_load_dword {vpd}, {vtmp[27]}, {sp2}, {s_c1} offen', 'pf')
    def tp_load():
        return [f's_lshr_b32 {s_t0}, {s_mx}, 1', f's_add_u32 m0, {s_t0}, {QS}', f's_add_u32 {s_t1}, {s_c1}, {8 * 2048 - 1024}',
                Ins(f'buffer_load_dwordx4 {vt3}, {sp2}, {s_c1} offen lds', 'TP'), Ins(f'buffer_load_dwordx4 {vt3}, {sp2}, {s_t1} offen offset:1024 lds', 'TP')]
    def tp_store():
        L = ['WAITTAG TP'] + [f'ds_read_b64_tr_b16 {vtmp[4 * nb + 2 * s_:4 * nb + 2 * s_ + 2]}, {vtmp[24 + nb]} offset:{s_ * 512}' for nb in range(2) for s_ in range(2)]
        L = [L[:2]] + L[2:]
        L += [[f's_cmp_lt_u32 {s_c1}, {224 * 32768}', f's_cselect_b32 {s_t0}, {s_c0}, 2.0'], f's_add_u32 {s_c1}, {s_c1}, {64 * 32768}', f's_add_u32 {s_c0}, {s_c0}, {64 * 4096}', None, None]
        L += [Ins(f'buffer_store_dwordx4 {vtmp[4 * nb:4 * nb + 4]}, {vtmp[26]}, {sws}, {s_t0} offen offset:{nb * 1024}{st_mod}', 'HST') for nb in range(2)]
        if TT: L.insert(7, tp_touch())
        return L
    def pf3_setup():
        L = f"""s_mov_b32 {sp3[0]}, {pgw[0]}
        s_mov_b32 {sp3[1]}, {pgw[1]}
        s_movk_i32 {sp3[2]}, 2048
        s_mov_b32 {sp3[3]}, 0x00020000
        v_lshlrev_b32 {vwo}, 7, {vl}""".split('\n')
        L2 = f"""s_lshl_b32 {s_t0}, s2, 2
        s_add_u32 {s_t0}, {s_t0}, {s_w}
        s_lshl_b32 {s_t1}, {s_t0}, 11
        v_lshl_add_u32 {vwo}, {vl}, 7, {s_t1}
        v_cmp_gt_u32 {smask}, 16, {vl}
        s_mov_b32 {sp3[0]}, {pwo[0]}
        s_mov_b32 {sp3[1]}, {pwo[1]}
        s_mov_b32 {sp3[2]}, {D * D * 2}
        v_cndmask_b32 {vwo}, 2.0, {vwo}, {smask}""".split('\n')
        return [x.strip() for x in L] + [Ins(f'buffer_load_dword {vpd}, {vwo}, {sp3}, 0 offen', 'pf')] + [x.strip() for x in L2]
    def tlb_touch():
        return [f's_cmp_eq_u32 {s_w}, 1', f's_cselect_b32 {sp2[0]}, {pout[0]}, {pws[0]}', f's_cselect_b32 {sp2[1]}, {pout[1]}, {pws[1]}',
                f's_mov_b32 {sp2[2]}, {34 << 20}', f's_cmov_b32 {sp2[2]}, {S * D * 2}', f's_cmp_lt_u32 {s_w}, 2', f's_cselect_b32 {s_t0}, 0, 2.0',
                f'v_lshlrev_b32 {vt3}, 20, {vl}', Ins(f'buffer_load_dword {vpd}, {vt3}, {sp2}, {s_t0} offen sc1', 'pf')]
    def tlb_touch2():
        L = tlb_touch()
        return [L[0:5], L[5:7]] + L[7:]
    pf_wo = [f's_cmp_eq_u32 {s_cnt}, 2', f's_cselect_b32 {s_t0}, 0, 2.0', Ins(f'buffer_load_dword {vpd}, {vwo}, {sp3}, {s_t0} offen', 'pf')]
    gate_sel = [f's_cmp_eq_u32 {s_cnt}, 0', f's_cselect_b32 {s_t0}, {s_t2}, 2.0', f's_cselect_b32 {s_t1}, 0, 2.0',
                f's_cselect_b32 {sp3[0]}, {pgw[0]}, {sp3[0]}', f's_cselect_b32 {sp3[1]}, {pgw[1]}, {sp3[1]}', f's_cselect_b32 {sp3[2]}, 0x800, {sp3[2]}']
    gate_loads = [f'buffer_load_dwordx4 {gw[i]}, {z[0]}, {sp3}, {s_t1} offen offset:{16 * i}' for i in range(2)] + \
                 [f'buffer_load_dwordx4 {gx[i]}, {z[0]}, {sx}, {s_t0} offen offset:{(i // 2) * 2048 + (i % 2) * 16}' for i in range(4)]

    spins = []
    def check(cond_lines, reload_lines, tag):
        lab = f'{name}_{tag}'
        spins.append((lab, cond_lines, reload_lines))
        return cond_lines + [f's_cbranch_vccnz {lab}_spin', f'{lab}_ok:']

    def lines(s): return [x.strip() for x in s.strip().split('\n')]
    def rd(tile, tmp):
        if tile.k == 'v': return tile, []
        return tmp, [f'v_accvgpr_read_b32 {tmp[i]}, {tile[i]}' for i in range(4)]
    def packl(o, t0, t1):
        return [f'v_cvt_pk_bf16_f32 {o[0]}, {t0[0]}, {t0[1]}', f'v_cvt_pk_bf16_f32 {o[1]}, {t0[2]}, {t0[3]}',
                f'v_cvt_pk_bf16_f32 {o[2]}, {t1[0]}, {t1[1]}', f'v_cvt_pk_bf16_f32 {o[3]}, {t1[2]}, {t1[3]}']
    def mul4(d, a_, b_, pk):
        if pk: return [f'v_pk_mul_f32 {d[2*i:2*i+2]}, {a_[2*i:2*i+2]}, {b_ if b_.k == "s" else b_[2*i:2*i+2]}' for i in range(2)]
        return [f'v_mul_f32 {d[i]}, {b_[0] if b_.k == "s" else b_[i]}, {a_[i]}' for i in range(4)]
    def hpiece(n, j, o, pk):
        L = []; tt = []
        for mm in range(2):
            g_, l0 = rd(acc[n][2 * j + mm], vtmp[8 * mm:8 * mm + 4]); u_, l1 = rd(acc[n + 1][2 * j + mm], vtmp[8 * mm + 4:8 * mm + 8])
            L += l0 + l1 + mul4(g_, g_, u_, pk); tt.append(g_)
        return L + packl(o, tt[0], tt[1]) + [f'v_permlane16_swap_b32 {o[0]}, {o[2]}', f'v_permlane16_swap_b32 {o[1]}, {o[3]}']
    hreg = [acc[7][2 * j] for j in range(4)] + [acc[6][2 * j] for j in range(4)] + [acc[8][2 * j] for j in range(4)]

    vq = vdx[0]; vh = vdx[1]; vql = vdx[2]; vqq = vdx[3]
    s_b, s_qs = s_oq, R('s', sx.a, 2)
    def epi_setup(wc):
        L = lines(f"""
        v_and_b32 {vt0}, 15, {vl}
        v_lshrrev_b32 {vt1}, 4, {vl}
        v_lshlrev_b32 {vq}, 9, {vt1}
        v_lshlrev_b32 {vh}, 4, {vl}
        s_lshl_b32 {s_t0}, {s_h}, 6
        s_lshl_b32 {s_t1}, {s_mb}, 3
        s_add_u32 {s_t0}, {s_t0}, {s_t1}
        s_lshl_b32 {s_t1}, {s_wr}, 2
        s_add_u32 {s_t0}, {s_t0}, {s_t1}
        s_lshl_b32 {s_b}, {s_t0}, 12
        s_add_u32 {s_b}, {s_b}, {WS_KV}
        s_add_u32 {s_og}, {s_b}, 4096
        s_add_u32 {s_ox}, {s_b}, 8192
        s_add_u32 {s_c0}, {s_b}, 12288
        s_lshl_b32 {s_t0}, {s_mb}, 1
        s_add_u32 {s_t0}, {s_t0}, {s_wr}
        s_mul_i32 {s_t0}, {s_t0}, 288
        s_mul_i32 {s_t1}, {s_h}, 7
        s_add_u32 {s_t0}, {s_t0}, {s_t1}
        s_lshl_b32 {s_t0}, {s_t0}, 12
        s_add_u32 {s_hb}, {s_t0}, {WS_A + 4 * 4096 * wc}
        s_sub_u32 {s_c1}, {s_hb}, 4096
        s_lshl_b32 {s_t1}, {s_wr}, 14""")
        if wc == 0:
            L += lines(f"""
            v_lshrrev_b32 {vt2}, 3, {vt0}
            v_lshl_add_u32 {vq}, {vt2}, 8, {vq}
            v_and_b32 {vt2}, 7, {vt0}
            v_lshl_add_u32 {vq}, {vt2}, 4, {vq}
            v_add_u32 {vql}, {s_t1}, {vq}
            s_lshl_b32 {s_t1}, {s_wr}, 13
            s_add_u32 {s_t1}, {s_t1}, {QS}
            v_add_u32 {vqq}, {s_t1}, {vq}
            s_mov_b32 {s_qs[0]}, {hex(f32bits(QSCALE))}
            s_mov_b32 {s_qs[1]}, {s_qs[0]}""")
        else:
            L += [f'v_lshl_add_u32 {vq}, {vt0}, 4, {vq}', f'v_add_u32 {vql}, {s_t1}, {vq}']
        return L
    kvb = [s_b, s_og, s_ox, s_c0]
    def epi_early(wc, npk):
        F_ = []
        outs = [vtmp[16 + 4 * i:20 + 4 * i] for i in range(3)]
        if wc == 0:
            for m in range(7, -1, -1):
                o = acc[0][m]
                L = packl(o, acc[0][m], acc[1][m]) + [Ins(f'buffer_store_dwordx4 {o}, {vq}, {sws}, {kvb[m // 2]} offen offset:{(m % 2) * 128}{kv_mod}', 'KVST'),
                                                       f'ds_write_b128 {vql}, {o} offset:{(m // 2) * 4096 + (m % 2) * 128}']
                F_ += [(17 + 2 * (7 - m) + 4, x) for x in L]
            for i, m in enumerate(range(7, -1, -1)):
                o = outs[i % 3]
                t0, l0 = rd(acc[2][m], vtmp[0:4]); t1, l1 = rd(acc[3][m], vtmp[4:8])
                L = l0 + l1 + mul4(t0, t0, s_qs, i >= npk) + mul4(t1, t1, s_qs, i >= npk) + packl(o, t0, t1) + [f'ds_write_b128 {vqq}, {o} offset:{(m // 2) * 2048 + (m % 2) * 128}']
                F_ += [(49 + 2 * (7 - m) + 4, x) for x in L]
        else:
            for nt, js in ((0, range(4)), (1, range(3, -1, -1))):
                for j in js:
                    o = acc[nt][2 * j]
                    L = packl(o, acc[nt][2 * j], acc[nt][2 * j + 1]) + [Ins(f'buffer_store_dwordx4 {o}, {vq}, {sws}, {kvb[j]} offen offset:{2048 + nt * 256}{kv_mod}', 'KVST'),
                                                                         f'ds_write_b128 {vql}, {o} offset:{j * 4096 + 2048 + nt * 256}']
                    F_ += [((3 + 4 * j if nt == 0 else 31 - 4 * j) + 4, x) for x in L]
            for i, j in enumerate(range(3, -1, -1)):
                o = outs[i % 3]
                L = hpiece(2, j, o, i >= npk) + [Ins(f'buffer_store_dwordx4 {o}, {vh}, {sws}, {s_c1} offen offset:{j * 1024}{st_mod}', 'HST')]
                F_ += [(63 - 4 * j + 4, x) for x in L]
        for j in range(3, -1, -1):
            F_ += [(127 - 4 * j + 4, x) for x in hpiece(6, j, hreg[4 + j], PK)]
            F_ += [(127 - 4 * j + 4, x) for x in hpiece(4, j, hreg[j], PK)]
        k = max(i for i, x in enumerate(F_) if isinstance(x[1], Ins) and x[1].tag == 'KVST')
        F_[k + KF:k + KF] = [(0, [f'v_mov_b32 {vt0}, 1', 'WAITTAG KVST', Ins(f'buffer_store_dword {vt0}, {vflk}, {sfl}, 0 offen sc1', 'FL')])]
        return F_
    def epi_late():
        for j in range(3, -1, -1): p.add(hpiece(8, j, hreg[8 + j], True))

    announce_setup = lines(f"""
        s_mov_b32 {sdbg[0]}, {pdbg[0]}
        s_mov_b32 {sdbg[1]}, {pdbg[1]}
        s_movk_i32 {sdbg[2]}, 256
        s_mov_b32 {sdbg[3]}, 0x00020000
        s_and_b32 {s_ano}, s2, 7
        s_lshl_b32 {s_ano}, {s_ano}, 2
        s_and_b32 {s_grp}, {s_mb}, 3
        s_add_u32 {s_grp}, {s_grp}, 3
        v_mov_b32 {vt2}, 1
        v_cmp_eq_u32 {smask}, 0, v0
        v_cndmask_b32 {vt1}, 2.0, 0, {smask}""")
    if PT:
        k = announce_setup.index(f's_add_u32 {s_grp}, {s_grp}, 3')
        announce_setup[k:k + 1] = [[f's_cmp_lt_u32 {s_grp}, 2', f's_cselect_b32 {s_grp}, {s_grp}, 16'], f's_add_u32 {s_grp}, {s_grp}, 1']
    announce1 = [f's_add_u32 {s_t0}, {s_cnt}, 16', [f's_cmp_eq_u32 {s_t0}, {s_grp}', f's_cselect_b32 {s_t0}, {s_ano}, 2.0'],
                 f'buffer_atomic_add {vt2}, {vt1}, {sdbg}, {s_t0} offen offset:{DBG_CNT} sc1']
    announce = [f's_cmp_eq_u32 {s_cnt}, {s_grp}', f's_cselect_b32 {s_t0}, {s_ano}, 2.0',
                f'buffer_atomic_add {vt2}, {vt1}, {sdbg}, {s_t0} offen offset:{DBG_CNT} sc1']
    cnt_addr = [f'v_and_b32 {vpf}, 7, {vl}', f'v_lshlrev_b32 {vpf}, 2, {vpf}']
    cnt_load = f'buffer_load_dword {vcnt}, {vpf}, {sdbg}, 0 offen offset:{DBG_CNT} sc1'

    def code_setup(wc):
        lab = f'{name}_pc{wc}'
        nb_ = 1 + CW
        return [[f's_getpc_b64 {smask}', f'{lab}:'],
                f's_lshr_b32 {s_t0}, s2, 3', f's_lshl_b32 {s_t1}, {s_t0}, {7 + nb_}', f's_add_u32 {s_t1}, {s_t1}, {name}_c{wc}out-{lab}',
                f'v_and_b32 {vtmp[1]}, {(1 << nb_) - 1}, {vl}', f'v_lshl_add_u32 {vtmp[1]}, {vtmp[1]}, 7, {s_t1}',
                f's_lshl_b32 {s_t0}, {s_t0}, 2', f's_add_u32 {s_t0}, {s_t0}, {s_w}', f's_lshl_b32 {s_t0}, {s_t0}, 8',
                f's_add_u32 {s_t0}, {s_t0}, {name}_join-{lab}', f'v_and_b32 {vtmp[0]}, 1, {vl}', f'v_lshl_add_u32 {vtmp[0]}, {vtmp[0]}, 7, {s_t0}',
                f'v_and_b32 {vtmp[2]}, {1 << nb_}, {vl}', f'v_cmp_eq_u32 vcc, 0, {vtmp[2]}', f'v_cndmask_b32 {vcnt}, {vtmp[0]}, {vtmp[1]}, vcc',
                f'v_min_u32 {vcnt}, {name}_end-{lab}, {vcnt}', f'v_mov_b32 {vca[1]}, {smask[1]}',
                [f'v_add_co_u32 {vca[0]}, vcc, {smask[0]}, {vcnt}', f'v_addc_co_u32 {vca[1]}, vcc, 0, {vca[1]}, vcc']]
    def code_pf(wc):
        if not CONCE: return [Ins(f'global_load_dword {vpd}, {vca}, off', 'pf')]
        return [[f's_cmp_lg_u32 {s_cnt}, 1', f's_cbranch_scc1 {name}_nocp{wc}', Ins(f'global_load_dword {vpd}, {vca}, off', 'pfc'), f'{name}_nocp{wc}:']]
    assert not PT
    for wc in range(2):
        p.seg(f'c{wc}a')
        if wc == 1: p.e(f'{name}_c1:')
        p.add(wread(0, 0, wc))
        for m in range(2, 8):
            for ks in range(2): p.e(xread(m, ks, 0))
        for j in range(1, DIST): p.add(wread(j, 0, wc))
        left = stage(0, wc, first=True, early=[x for _ in range(PD - PD0 + 1) for x in pfetch()], fill=flag_setup + announce_setup + code_setup(wc) + pf3_setup() + (tlb_touch2() if TLB else []) + (tp_setup() if PT else pf_setup()))
        assert not left
        jitter(1)
        p.e(f's_mov_b32 {s_cnt}, 6')
        if P13:
            p.seg(f'c{wc}l1')
            p.e(f'{name}_c{wc}loop:')
            stage(1, wc, early=pfetch() + pfetch_d())
            p.seg(f'c{wc}l2')
            stage(0, wc, early=pfetch() + pfetch_d(), extra=announce + pf_wo + code_pf(wc))
            p.e(f's_sub_u32 {s_cnt}, {s_cnt}, 1\ns_cmp_lg_u32 {s_cnt}, 0\ns_cbranch_scc1 {name}_c{wc}loop')
            p.seg(f'c{wc}last')
            p.e(f'{name}_c{wc}out:')
            stage(1, wc, extra=gate_sel + gate_loads, estep=1)
        else:
            p.seg(f'c{wc}l1')
            p.e(f'{name}_c{wc}loop:')
            stage(1, wc, early=pfetch() + pfetch_d(), extra=gate_sel + gate_loads, estep=1)
            p.e(f's_cmp_eq_u32 {s_cnt}, 0\ns_cbranch_scc1 {name}_c{wc}out')
            p.seg(f'c{wc}l2')
            stage(0, wc, early=pfetch() + pfetch_d(), extra=announce + ([] if NOPF & 2 else pf_wo) + (code_pf(wc) if CPF else []))
            p.e(f's_sub_u32 {s_cnt}, {s_cnt}, 1\ns_branch {name}_c{wc}loop')
            p.seg(f'c{wc}last')
            p.e(f'{name}_c{wc}out:')
        jitter(2)
        rest = stage(0, wc, early=None if PT else pfetch_d(), fill=gate_ops(), nodma1=True, dens=GD)
        rest = stage(1, wc, last=True, fill=rest + cnt_addr + [cnt_load] + epi_setup(wc) + epi_early(wc, 99))
        pf.stamp(2)
        jitter(3)
        if ptrace == -1: pf.trace()
        k = max([i for i, x in enumerate(rest) if isinstance(x, str) and x.startswith('ds_write')] + [-1]) + 1
        for x in rest[:k]: p.add(x if isinstance(x, list) else [x])
        rest = rest[k:]
        if PKR:
            out = []; i = 0
            while i < len(rest):
                x = rest[i]; y = rest[i + 1] if i + 1 < len(rest) else None
                if isinstance(x, str) and isinstance(y, str) and x.startswith('v_mul_f32') and y.startswith('v_mul_f32'):
                    a0, b0, c0 = [int(t.strip()[1:]) for t in x[10:].split(',')]; a1, b1, c1 = [int(t.strip()[1:]) for t in y[10:].split(',')]
                    if a0 % 2 == 0 and b0 % 2 == 0 and (a1, b1, c1) == (a0 + 1, b0 + 1, c0 + 1):
                        out.append(f'v_pk_mul_f32 v[{a0}:{a1}], v[{b0}:{b1}], v[{c0}:{c1}]'); i += 2; continue
                out.append(x); i += 1
            rest = out
        va_, vb_ = vdg[0], vdg[1]
        p.e(f"""
        v_lshlrev_b32 {va_}, 4, {vl}
        s_lshl_b32 {s_t0}, {s_w}, 12
        s_add_u32 {s_t0}, {s_t0}, {QS}
        v_add_u32 {vb_}, {s_t0}, {va_}
        s_waitcnt lgkmcnt(0)
        s_barrier
        """)
        for q in range(2):
            for f in range(2): p.e(f'ds_read_b128 a[{40 + 8 * q + 4 * f}:{43 + 8 * q + 4 * f}], {vb_} offset:{q * 2048 + f * 1024}')
        for i in range(4): p.e(f'ds_read_b128 a[{56 + 4 * i}:{59 + 4 * i}], {va_} offset:{(i // 2) * 4096 + (i % 2) * 1024}')
        pre = [f'v_mfma_f32_32x32x16_bf16 v[{64 + 16 * q}:{79 + 16 * q}], a[{56 + 4 * f}:{59 + 4 * f}], a[{40 + 8 * q + 4 * f}:{43 + 8 * q + 4 * f}], ' + ('0' if f == 0 else f'v[{64 + 16 * q}:{79 + 16 * q}]')
               for q in range(2) for f in range(2)]
        rest = rest + [x for j in range(3, -1, -1) for x in hpiece(8, j, hreg[8 + j], True)]
        for i, x in enumerate(rest):
            p.add(x if isinstance(x, list) else [x])
            if i >= 24 and (i - 24) % 7 == 0 and pre: p.e(pre.pop(0))
        p.add(pre)
        if ptrace == -1: pf.trace()
        if ptrace == -1: pf.trace()
        if wc == 0: p.e(f's_branch {name}_join')
    p.seg('join')
    p.e(f'{name}_join:')
    p.add(check([f'v_cmp_gt_u32 vcc, 32, {vcnt}'], [cnt_load], 'cnt'))

    sa.p = s_base; va.p = v_base; aa.p = 0
    skv = sa(4); sA = sa(4); swd = sa(4); swo = sa(4); sout = sa(4)
    s_okv, s_left, s_p, s_oa, s_ow, s_wb, s_ob, s_ob2, s_thr, s_mt, s_nt, s_oo, s_spin, s_h1, s_h2, s_rt, s_win = [sa() for _ in range(17)]
    scp = sa(4)
    vl16, vkA, vkB, vdma, vo, vidx, vu0, vu1, vu2, vpa = [va() for _ in range(10)]
    vdd = [va() for _ in range(2)]; vdo = [va() for _ in range(2)]; vwr = [va() for _ in range(2)]
    vg = va(2); vog = va(4); vpoll = va(2, 2); vsc = va(2)
    ones = va(4, 4)
    vA = [va() for _ in range(4)]
    assert va.p <= 46 and va.p > vwo.a
    va2 = Alloc('v', va.p, 48)
    va.p = 48
    Sx = [va(16, 4) for _ in range(2)]; P = [va(8, 4) for _ in range(2)]; C = [va(16, 4) for _ in range(2)]
    acc3 = [[va(16, 4) for _ in range(4)] for _ in range(2)]
    O = [aa(16, 4) for _ in range(2)]; L = [aa(4, 4) for _ in range(2)]
    Q = [aa(8, 4) for _ in range(2)]; K = [aa(8, 4) for _ in range(2)]; V = [aa(8, 4) for _ in range(2)]
    Wf = [aa(4, 4) for _ in range(2)]
    Ab = [[aa(4, 4) for _ in range(4)] for _ in range(8)]
    if PT:
        NB = 4; DA = DW = 3
        Wb = [[Ab[4 + i // 2][2 * (i % 2)], Ab[4 + i // 2][2 * (i % 2) + 1]] for i in range(4)]

    p.e(f"""
    v_lshlrev_b32 {vl16}, 4, {vl}
    s_lshl_b32 {s_p}, {s_w}, 12
    """)
    assert Q[0].a == 40 and K[0].a == 56 and Sx[1].a == 64 and P[0].a == 80
    pf.stamp(3)
    jitter(4)
    def kread(kb, loop=False):
        base, o = (vl16, (kb % 16) * 4096) if not loop else ((vkA, kb * 4096) if kb < 8 else (vkB, (kb - 8) * 4096))
        return [f'ds_read_b128 {K[kb % 2][4*f:4*f+4]}, {base} offset:{o + f * 1024}' for f in range(2)]
    def vread(kb, loop=False):
        base, o = (vl16, (kb % 16) * 4096) if not loop else (vkA, kb * 4096)
        return [f'ds_read_b128 {V[kb % 2][4*f:4*f+4]}, {base} offset:{o + 2048 + f * 1024}' for f in range(2)]
    def qk(dst, kb, q, f, cin):
        return f'v_mfma_f32_32x32x16_bf16 {dst}, {K[kb % 2][4*f:4*f+4]}, {Q[q][4*f:4*f+4]}, {cin if f == 0 else dst}'
    def pv(j, f, zero=False):
        q = j % 2; kb = (j // 2) % 2
        return f'v_mfma_f32_32x32x16_bf16 {O[q]}, {V[kb][4*f:4*f+4]}, {P[q][4*f:4*f+4]}, {"0" if zero else O[q]}'
    def rsum(q): return f'v_smfmac_f32_16x16x64_bf16 {L[q]}, {ones}, {P[q]}, {vidx}'
    def cvt(j, i): return f'v_cvt_pk_bf16_f32 {P[j % 2][i]}, {Sx[j % 2][2*i]}, {Sx[j % 2][2*i+1]}'
    def rowmax(dst, src, init):
        lst = [src[i] for i in range(16)]
        if init:
            p.e(f'v_max3_f32 {dst}, {lst[0]}, {lst[1]}, {lst[2]}'); lst = lst[3:]
        while len(lst) >= 2:
            p.e(f'v_max3_f32 {dst}, {dst}, {lst[0]}, {lst[1]}'); lst = lst[2:]
        if lst: p.e(f'v_max_f32 {dst}, {dst}, {lst[0]}')
    def setc(q, m):
        p.e(f'v_mov_b32 {vu2}, {m}\nv_permlane32_swap_b32 {vu2}, {m}\nv_max_f32 {m}, {m}, {vu2}')
        for i in range(16): p.e(f'v_sub_f32 {C[q][i]}, 0, {m}')
    rowmax(vu0, R('v', 64, 16), True); rowmax(vu1, R('v', 80, 16), True)
    setc(0, vu0)
    p.e(qk(Sx[0], 0, 0, 0, C[0])); p.e(qk(Sx[0], 0, 0, 1, C[0]))
    setc(1, vu1)
    p.e(f"""
    v_bfe_u32 {vu0}, {vl}, 2, 1
    v_bfe_u32 {vu1}, {vl}, 1, 1
    v_mov_b32 {vu2}, 0x3f803f80
    v_or_b32 {vidx}, {vu0}, {vu1}
    v_cmp_eq_u32 vcc, 0, {vidx}
    v_xor_b32 {vu0}, 1, {vu0}
    v_or_b32 {vidx}, {vu0}, {vu1}
    v_cndmask_b32 {ones[0]}, 0, {vu2}, vcc
    v_cndmask_b32 {ones[1]}, 0, {vu2}, vcc
    v_cmp_eq_u32 vcc, 0, {vidx}
    v_and_b32 {vu0}, 1, {vl}
    v_mov_b32 {vu1}, 0xeeeeeeee
    v_cndmask_b32 {ones[2]}, 0, {vu2}, vcc
    v_cndmask_b32 {ones[3]}, 0, {vu2}, vcc
    v_cmp_eq_u32 vcc, 0, {vu0}
    v_mov_b32 {vu2}, 0x44444444
    v_add_u32 {vdma}, {s_p}, {vl16}
    v_cndmask_b32 {vidx}, {vu1}, {vu2}, vcc
    """)
    for q in range(2):
        for i in range(2): p.e(f'v_accvgpr_write_b32 {L[q][i]}, 0')
    p.e(f's_lshl_b32 {s_t0}, {s_h}, 18')
    srd(p, skv, pws, off_s=s_t0, off_imm=WS_KV, size=262144)

    def flag(val, tag, wait):
        return [f'v_mov_b32 {vu0}, {val}', f'WAITTAG {wait}', Ins(f'buffer_store_dword {vu0}, {vflag}, {sfl}, 0 offen sc1', tag)]
    def kvdma(m0line, tag, count=True):
        return [m0line] + [Ins(f'buffer_load_dwordx4 {vdma}, {skv}, {s_okv} offen offset:{i * 1024}{lm2} lds', tag) for i in range(4)] + \
               [f's_add_u32 {s_okv}, {s_okv}, 16384', f's_and_b32 {s_okv}, {s_okv}, 0x3ffff'] + \
               ([f's_sub_u32 {s_left}, {s_left}, 1', f's_cselect_b32 {skv[2]}, 0, {skv[2]}'] if count else [])
    NW = 4
    def wload(s):
        if PT: return [Ins(f'buffer_load_dwordx4 {Wb[s % 4][nb]}, {vl16}, {swd}, {s_oa} offen offset:{nb * 1024}{lm2}', f'D{s % NW}') for nb in range(2)]
        return [f's_add_u32 m0, {s_wb}, {(s % NW) * 2048}'] + \
               [Ins(f'buffer_load_dwordx4 {vdd[hh]}, {swd}, {s_ow} offen offset:{hh * 1024}{lm2} lds', f'D{s % NW}') for hh in range(2)] + [f's_add_u32 {s_ow}, {s_ow}, 32768']
    def hload(s):
        return [Ins(f'buffer_load_dwordx4 {Ab[s % NB][r]}, {vA[r]}, {sA}, {s_oa} offen{lm2}', f'A{s % NB}') for r in range(4)] + [f's_add_u32 {s_oa}, {s_oa}, 4096']
    def wrd(base, off, nb):
        if PT: return []
        return [f'ds_read_b64_tr_b16 {Wf[nb][2*s:2*s+2]}, {base[nb]} offset:{off + s * 512}' for s in range(2)]
    def gm(st, nb, tb, zero=False):
        return f'v_mfma_f32_32x32x16_bf16 {acc3[nb][tb]}, {Wb[st % 4][nb] if PT else Wf[nb]}, {Ab[st % NB][tb]}, {"0" if zero else acc3[nb][tb]}'
    def oload(t, m0line, tag):
        return [m0line] + [Ins(f'buffer_load_dwordx4 {vdo[hh]}, {swo}, {s_oo} offen offset:{hh * 1024} lds', tag) for hh in range(2)] + [f's_add_u32 {s_oo}, {s_oo}, 32768']

    zplan = {}
    def period(j, loop=False, item=None, misc=(), pre=(), zero=False):
        s = Sx[j % 2]
        E = [f'v_exp_f32 {s[i]}, {s[i]}' for i in range(16)]
        jn = j + 1
        m1 = qk(Sx[jn % 2], jn // 2, jn % 2, 0, C[jn % 2]); m2 = qk(Sx[jn % 2], jn // 2, jn % 2, 1, None)
        rd = kread((j + 1) // 2 + 1, loop) if j % 2 == 1 else vread(j // 2, loop)
        first = (j == 0 and not loop)
        zo = (j <= 2 and not loop)
        c7 = [] if first else [cvt(j - 1, 7)]
        p0 = [] if first else [pv(j - 1, 0, zo)]; p1 = [] if first else [pv(j - 1, 1)]; rs = [] if first else [rsum((j - 1) % 2)]
        V_ = [E[0]] + c7
        for i in range(7): V_ += [E[2 * i + 1], E[2 * i + 2], cvt(j, i)]
        V_.append(E[15])
        if item is None:
            p.add(V_[:1 + len(c7)]); V_ = V_[1 + len(c7):]
            if AW and j % 2 == 1: p.e('s_waitcnt lgkmcnt(0)')
            z_ = [] if loop else zplan.get(j, [])
            M = [m1] + z_[:1] + [m2] + p0 + z_[1:] + p1 + rs; G = []
        else:
            st, nb = item
            G = [gm(st, nb, tb if nb == 0 else 3 - tb, zero) for tb in range(4)]
            M = [G[0], m1, G[1], m2, G[2]] + p0 + [G[3]] + p1 + rs
        if loop and exp_ & 1: M = [x for x in M if x not in G]
        if loop and exp_ & 8: misc = [x for x in misc if not (isinstance(x, Ins) and x.tag and x.tag.startswith('D'))]
        misc = list(misc)
        for k in range(len(misc)):
            if isinstance(misc[k], str) and ' m0,' in misc[k]:
                q_ = k
                while q_ > 0 and not (isinstance(misc[q_ - 1], Ins) and misc[q_ - 1].text.endswith(' lds')): q_ -= 1
                misc.insert(q_, misc.pop(k))
        items = []
        for x in list(pre) + rd + list(misc):
            if items and isinstance(items[-1][-1], str) and items[-1][-1].split()[0] in ('WAITTAG', 's_cbranch_vccnz', 'v_cmp_gt_u32', 's_getpc_b64', 's_cmp_eq_u32'): items[-1].append(x)
            else: items.append([x])
        isvm = lambda it: any((y.text if isinstance(y, Ins) else y).startswith('buffer') for y in it)
        n = len(M); last = n - 1 if M[-1].startswith('v_smfmac') else n
        cost = lambda x: 8 if x.startswith('v_exp') else 4
        occ = [32 if '32x32' in x else 16 for x in M]
        iss = [8 if 'smfmac' not in x else SMC for x in M]
        ic = [sum((VMC if (y.text if isinstance(y, Ins) else y).startswith('buffer') else 4) for y in it if not (isinstance(y, str) and y.endswith(':'))) for it in items]
        vc = [cost(x) for x in V_]
        tailc = (4 if item is not None else 12 + (4 if j % 2 == 0 else 0))
        if item is None: iss[-1] += 0
        import functools
        @functools.lru_cache(None)
        def best(g, a_, b_, pv_):
            if g == n: return (0, ()) if (a_ == len(items) and b_ == len(V_)) else (10 ** 9, ())
            res = (10 ** 9, ())
            lo = 0
            if g == 0 and item is not None: lo = 1 + len(c7)
            for na in range(0, len(items) - a_ + 1):
                if g == 0 and na < min(len(items), npre): continue
                nv_ = sum(map(isvm, items[a_:a_ + na]))
                ca = sum(ic[a_:a_ + na])
                if g < n - 1 and ca > 64: break
                pen = (VPEN * max(0, nv_ - 1) + (VPEN // 2 if (nv_ and pv_) else 0)) + (0.01 * g * na)
                for nb_ in range(lo, len(V_) - b_ + 1):
                    f_ = iss[g] + ca + sum(vc[b_:b_ + nb_]) + (tailc if g == n - 1 else 0)
                    if f_ > 120 and g < n - 1: break
                    r_ = best(g + 1, a_ + na, b_ + nb_, nv_ > 0)
                    t_ = max(occ[g], f_) + pen + r_[0] + 0.001 * (f_ - occ[g]) ** 2
                    if t_ < res[0]: res = (t_, ((na, nb_),) + r_[1])
            return res
        npre = len([1 for it in items if any(y in pre for y in it if isinstance(y, str))])
        tot_, asg = best(0, 0, 0, False)
        assert tot_ < 10 ** 8
        if dbg == -1: print(j, loop, item, round(tot_), len(items), sum(map(isvm, items)))
        a_ = b_ = 0
        for q_, m_ in enumerate(M):
            p.add([m_])
            na, nb_ = asg[q_]
            for it in items[a_:a_ + na]: p.add(it)
            p.add(V_[b_:b_ + nb_]); a_ += na; b_ += nb_

    setup1 = lines(f"""
        s_lshl_b32 {s_okv}, {s_mb}, 15
        s_add_u32 {s_okv}, {s_okv}, 32768
        s_and_b32 {s_okv}, {s_okv}, 0x3ffff
        s_movk_i32 {s_left}, {13 - (PA // 8 + (0 if KS == 2 else 1))}
        v_and_b32 {vu1}, 31, {vl}
        v_lshlrev_b32 {vpa}, 2, {vu1}
        s_lshl_b32 {s_t2}, {s_h}, 7
        s_add_u32 {s_t2}, {s_t2}, 4096""")
    poll_kv = f'buffer_load_dword {vpoll[0]}, {vpa}, {sfl}, {s_t2} offen sc1'
    setup2 = lines(f"""
        s_and_b32 {s_t0}, s2, 7
        s_lshr_b32 {s_t1}, s2, 3
        s_lshr_b32 {s_mt}, {s_t0}, 1
        s_lshl_b32 {s_mt}, {s_mt}, 2
        s_and_b32 {s_nt}, {s_t0}, 1
        s_lshl_b32 {s_nt}, {s_nt}, 3
        s_and_b32 {s_t0}, {s_t1}, 3
        s_add_u32 {s_mt}, {s_mt}, {s_t0}
        s_lshr_b32 {s_t0}, {s_t1}, 2
        s_add_u32 {s_nt}, {s_nt}, {s_t0}
        s_lshl_b32 {s_t0}, {s_nt}, 7
        s_lshl_b32 {s_t1}, {s_w}, 19
        s_add_u32 {s_t1}, {s_t1}, {s_t0}
        s_add_u32 {swo[0]}, {pwo[0]}, {s_t1}
        s_addc_u32 {swo[1]}, {pwo[1]}, 0
        s_sub_u32 {swo[2]}, {D * D * 2}, {s_t1}
        s_mov_b32 {swo[3]}, 0x00020000
        s_add_u32 {swd[0]}, {pwd[0]}, {s_t0}
        s_addc_u32 {swd[1]}, {pwd[1]}, 0
        s_sub_u32 {swd[2]}, {F * D * 2}, {s_t0}
        s_mov_b32 {swd[3]}, 0x00020000
        s_mul_i32 {s_t0}, {s_mt}, {288 * 4096}
        s_add_u32 {s_t0}, {s_t0}, {WS_A}
        s_add_u32 {sA[0]}, {pws[0]}, {s_t0}
        s_addc_u32 {sA[1]}, {pws[1]}, 0
        s_mov_b32 {sA[2]}, {288 * 4096}
        s_mov_b32 {sA[3]}, 0x00020000
        s_mul_i32 {s_oa}, {s_w}, {56 * 4096}
        s_lshl_b32 {s_ow}, {s_oa}, 3
        s_mov_b32 {s_oo}, 0
        s_mul_i32 {s_wb}, {s_w}, 20480
        s_add_u32 {s_wb}, {s_wb}, {W0}
        v_lshrrev_b32 {vu1}, 3, {vl}
        v_and_b32 {vu2}, 2, {vu1}
        v_lshlrev_b32 {vu2}, 1, {vu2}
        v_and_b32 {vdd[1]}, 7, {vl}
        v_xor_b32 {vu2}, {vu2}, {vdd[1]}
        v_lshlrev_b32 {vu2}, 4, {vu2}
        v_lshl_add_u32 {vdd[0]}, {vu1}, 11, {vu2}
        v_add_u32 {vdd[1]}, {8 * 2048 - 1024}, {vdd[0]}
        v_lshrrev_b32 {vu1}, 5, {vl}
        v_lshl_add_u32 {vdo[0]}, {vu1}, 13, {vdd[0]}
        v_add_u32 {vdo[1]}, {4 * 2048 - 1024}, {vdo[0]}
        v_lshl_add_u32 {vwr[0]}, {vu1}, 10, {s_wb}
        v_bfe_u32 {vu1}, {vl}, 2, 2
        v_lshl_add_u32 {vwr[0]}, {vu1}, 7, {vwr[0]}
        v_bfe_u32 {vu1}, {vl}, 3, 1
        v_lshl_add_u32 {vwr[0]}, {vu1}, 6, {vwr[0]}
        v_bfe_u32 {vu1}, {vl}, 4, 1
        v_lshl_add_u32 {vwr[0]}, {vu1}, 5, {vwr[0]}
        v_and_b32 {vu1}, 3, {vl}
        v_lshl_add_u32 {vwr[0]}, {vu1}, 3, {vwr[0]}
        v_xor_b32 {vwr[1]}, 64, {vwr[0]}
        v_mov_b32 {vkB if PA == 48 else vkA}, {vl16}
        v_add_u32 {vkA if PA == 48 else vkB}, 32768, {vl16}
        s_nop 0
        s_nop 0""")
    setup2 = setup2[:-2]
    setup1 += [f's_add_u32 {s_h1}, {s_hb}, 4096', f's_add_u32 {s_h2}, {s_hb}, 8192']
    if PT:
        setup2 += lines(f"""
        s_lshr_b32 {s_t0}, {s_nt}, 1
        s_mul_i32 {s_t0}, {s_t0}, {224 * 4096}
        s_and_b32 {s_t1}, {s_nt}, 1
        s_lshl_b32 {s_t1}, {s_t1}, 11
        s_add_u32 {s_t0}, {s_t0}, {s_t1}
        s_add_u32 {s_t0}, {s_t0}, {WS_T}
        s_add_u32 {swd[0]}, {pws[0]}, {s_t0}
        s_addc_u32 {swd[1]}, {pws[1]}, 0
        s_mov_b32 {swd[2]}, {224 * 4096 - 2048}""")
    for r in range(4):
        setup2 += [f's_add_u32 {s_t0}, {s_w}, {r + 1}', f's_and_b32 {s_t0}, {s_t0}, 3', f's_lshl_b32 {s_t0}, {s_t0}, 10', f'v_add_u32 {vA[r]}, {s_t0}, {vl16}']
    setup3 = lines(f"""
        v_and_b32 {vu1}, 7, {vl}
        v_bfe_u32 {vu2}, {vl}, 4, 1
        v_lshl_add_u32 {vo}, {vu2}, 3, {vu1}
        v_bfe_u32 {vu2}, {vl}, 3, 1
        v_lshl_add_u32 {vo}, {vu2}, 4, {vo}
        v_lshrrev_b32 {vu2}, 3, {vo}
        v_lshlrev_b32 {vu2}, 7, {vu2}
        v_lshl_add_u32 {vsc[0]}, {vu1}, 2, {vu2}
        v_lshlrev_b32 {vo}, 4, {vo}
        v_lshrrev_b32 {vu2}, 5, {vl}
        v_lshl_add_u32 {vo}, {vu2}, 9, {vo}
        v_bfe_u32 {vu2}, {vl}, 3, 2
        v_lshlrev_b32 {vu2}, 7, {vu2}
        v_lshl_add_u32 {vsc[1]}, {vu1}, 2, {vu2}
        s_lshl_b32 {s_t0}, {s_mb}, 1
        s_add_u32 {s_t0}, {s_t0}, {s_wr}
        s_mul_i32 {s_t0}, {s_t0}, 288
        s_lshl_b32 {s_t1}, {s_h}, 1
        s_add_u32 {s_t0}, {s_t0}, {s_t1}
        s_add_u32 {s_t0}, {s_t0}, 224
        s_lshl_b32 {s_t0}, {s_t0}, 12
        s_lshl_b32 {s_t1}, {s_wc}, 11
        s_add_u32 {s_t0}, {s_t0}, {s_t1}
        s_add_u32 {s_ob}, {s_t0}, {WS_A}
        s_add_u32 {s_ob2}, {s_ob}, 4096
        s_mov_b32 {s_thr}, {hex(f32bits(2.0 ** 40 if not force_slow else 0.5))}
        v_lshlrev_b32 {vpa}, 3, {vl}
        s_lshr_b32 {s_t2}, {s_mt}, 1
        s_lshl_b32 {s_t2}, {s_t2}, 9""")
    poll_h = f'buffer_load_dwordx2 {vpoll}, {vpa}, {sfl}, {s_t2} offen sc1'
    cond2 = [f'v_min_u32 {vu1}, {vpoll[0]}, {vpoll[1]}', f'v_cmp_gt_u32 vcc, 2, {vu1}']
    og_loads = [f's_lshl_b32 {s_t0}, {s_mt}, 11', f's_add_u32 {s_t0}, {s_t0}, {WS_G + 32}']
    for r in range(4):
        og_loads += [f'v_lshrrev_b32 {vu1}, 10, {vA[r]}', f'v_lshl_add_u32 {vu1}, {vu1}, 9, {vsc[1]}', f'buffer_load_dword {vog[r]}, {vu1}, {sws}, {s_t0} offen']
    g_loads = [f's_lshl_b32 {s_t0}, {s_mb}, 2', f's_add_u32 {s_t0}, {s_t0}, {s_w}', f's_lshl_b32 {s_t0}, {s_t0}, 10', f's_add_u32 {s_t0}, {s_t0}, {WS_G}'] + \
              [f'buffer_load_dword {vg[q]}, {vsc[0]}, {sws}, {s_t0} offen offset:{q * 512}' for q in range(2)]
    NE = 16 if PT else 12
    def oslot(t):
        if t >= NE and NBAR: return vwr, (t - NE) * 2048, f's_add_u32 m0, {s_wb}, {(t - NE) * 2048}'
        if t >= NE: return vw2, (t - NE) * 2048, f's_add_u32 m0, {s_p}, {(t - NE) * 2048}'
        k = t if t < 4 else t - 4
        n0 = 0 if PT else NW
        if k < 10 - n0: return vwr, (n0 + k) * 2048, f's_add_u32 m0, {s_wb}, {(n0 + k) * 2048}'
        return vw3, (k - 10 + n0) * 2048, f's_add_u32 m0, {s_p}, {QS + (k - 10 + n0) * 2048}'
    WO = [R('a', aa.p + 8 * t, 8) for t in range(4)] + [R('a', 8 * t, 8) for t in range(11)] + [Sx[0][0:8]]
    assert Wf[0].a == 88 and aa.p + 32 <= 256
    vw3 = [va2(), va2()]
    def woread(t):
        base, off, _ = oslot(t)
        return [f'ds_read_b64_tr_b16 {WO[t][4*nb+2*s_:4*nb+2*s_+2]}, {base[nb]} offset:{off + s_ * 512}' for nb in range(2) for s_ in range(2)]
    vw2 = [C[0][0], C[0][1]]
    setup3 += [f's_add_u32 {s_t0}, {s_p}, {QS}', f's_sub_u32 {s_t0}, {s_t0}, {s_wb}', f'v_add_u32 {vw3[0]}, {s_t0}, {vwr[0]}', f'v_add_u32 {vw3[1]}, {s_t0}, {vwr[1]}']
    early_o = [oload(t, oslot(t)[2], 'WO') for t in range(NE)]
    assert PM % 2 == 0 and DW <= 3 and DA <= 7
    plan = {j: [] for j in range(PA)}; prej = {j: [] for j in range(PA)}
    plan[0] += setup1
    plan[1] += setup2[:21]; plan[2] += setup2[21:38]; plan[3] += setup2[38:55]; plan[4] += setup2[55:]; plan[KP] = (plan[KP] + [poll_kv]) if KP == 0 else ([poll_kv] + plan[KP])
    plan[KC] += check([f'v_cmp_gt_u32 vcc, 1, {vpoll[0]}'], [poll_kv], 'kv')
    d = kvdma(f's_add_u32 m0, {s_p}, 32768', 'KV0', False); plan[KC] += d[:3]; plan[KC + 1] += d[3:]
    d = kvdma(f's_add_u32 m0, {s_p}, 49152', 'KV1', False); plan[KC + 2] += d[:3]; plan[KC + 3] += d[3:]
    for i in range(5 if PA == 48 else 3):
        j = 13 + 8 * i
        prej[j] += [f'WAITTAG KV{i % 2}', 's_barrier']
        d = kvdma(f's_add_u32 m0, {s_p}, {(i % 4) * 16384}', f'KV{i % 2}', False)
        if KS == 2 and j == PA - 3: plan[j] += d[:2]; plan[j + 2] += d[:1] + [d[2]]
        elif KS and j >= PM: plan[j] += d[:3]; plan[j + 2] += d[:1] + d[3:]
        else: plan[j] += d[:5]; plan[j + 1] += d[5:]
    busy = (13, 21, 29, 37, 45)
    j = float(H0)
    for k in range(12):
        while int(j) in busy: j = int(j) + 1.0
        plan[int(j)].append(Ins(f'buffer_store_dwordx4 {hreg[k]}, {vl16}, {sws}, {(s_hb, s_h1, s_h2)[k // 4]} offen offset:{(k % 4) * 1024}{st_mod}', 'HST'))
        jl = int(j); j += HP
    plan[10] += setup3[:10]; plan[11] += setup3[10:20]; plan[12] += setup3[20:]
    def nextfree(j):
        while j in busy: j += 1
        return j
    jf = nextfree(jl + FG); plan[jf] += flag(2, 'FL', 'HST')
    ramp = []
    for i in range(max(DA, DW)):
        if i < DW: ramp += wload(i)
        if i < DA: ramp += hload(i)
    groups = []; curg = []; nv = 0
    for x in ramp:
        if isinstance(x, str) and ' m0,' in x and nv + 2 > RP: groups.append(curg); curg = []; nv = 0
        if isinstance(x, Ins):
            if nv >= RP and not x.text.endswith(' lds'): groups.append(curg); curg = []; nv = 0
            nv += 1
        curg.append(x)
    groups.append(curg)
    jc = PM - 1; k = len(groups)
    while k:
        jc -= 1
        if jc not in busy: k -= 1
    jp = jc - PG
    assert jp > jf, (jp, jf)
    if PT and GP:
        vgl = R('v', 224, 16)
        poll_all = [f'buffer_load_dwordx4 {vgl[4 * i:4 * i + 4]}, {vl16}, {sfl}, 0 offen offset:{i * 1024} sc1' for i in range(4)]
        cond_all = [f'v_min3_u32 {vu1}, {vgl[0]}, {vgl[1]}, {vgl[2]}'] + [f'v_min3_u32 {vu1}, {vu1}, {vgl[i]}, {vgl[i + 1]}' for i in range(3, 15, 2)] + \
                   [f'v_min_u32 {vu1}, {vu1}, {vgl[15]}', f'v_cmp_gt_u32 vcc, 2, {vu1}']
        plan[jp] += poll_all
    else: plan[jp] += [poll_h]
    jj = E0
    for t in range(0, 4, 2):
        jj = nextfree(jj + 1); plan[jj] += early_o[t] + early_o[t + 1]
    jj = nextfree(jj + 3)
    for t in range(4):
        plan[jj] += (['WAITTAG WO'] if t == 0 else []) + woread(t); jj = nextfree(jj + 1)
    for t in range(4, NE):
        plan[jj] += (['s_waitcnt lgkmcnt(0)'] if t == 4 else []) + early_o[t]
        if t % 2 == 1 or jj < jl: jj = nextfree(jj + 1)
    assert jj <= jc + 1, (jj, jc)
    if PT and GP: plan[jc] += check(cond_all, poll_all, 'h')
    else: plan[jc] += check(cond2, [poll_h], 'h') + [f's_lshl_b32 {s_t2}, {s_mb}, 9', poll_h]
    jj = jc
    for g_ in groups:
        plan[jj] += g_; jl2 = jj; jj = nextfree(jj + 1)
    assert jl2 <= PM - 2, (jl2, PM)
    plan[PM - 1] = ['WAITTAG D0 A0'] + wrd(vwr, 0, 0) + plan[PM - 1]
    NZ = PM == PA
    if NZ:
        plan[PM - 3] += og_loads
        plan[PM - 1] += check(cond2, [poll_h], 'g') + g_loads
        plan[jf + 1] += [f'v_accvgpr_write_b32 {Wf[1][i]}, 0' for i in range(4)]
        for k in range(8): zplan.setdefault(jf + 2 + k // 2, []).append(f'v_mfma_f32_32x32x16_bf16 {acc3[k // 4][k % 4]}, {Wf[1]}, {Wf[1]}, 0')
        assert jf + 6 < PM
    else:
        plan[PM + 2] += og_loads
        plan[PM + 4] += ([] if (PT and GP) else check(cond2, [poll_h], 'g')) + g_loads
    if PA == 48: plan[PA - 1] += [f's_xor_b32 {s_p}, {s_p}, 32768']
    vcp = va2()
    vtp = [va2() for _ in range(3)]
    L0 = (PA - PM) // 2 + (128 - PA) // 2
    nA = (56 - L0 - DA) * 4; nW = (56 - L0 - DW) * 4; nO = (16 - NE) * 4
    if TP1:
        plan[26] += lines(f"""
        s_and_b32 {s_t0}, {s_nt}, 7
        s_mul_i32 {s_t0}, {s_t0}, {nA}
        s_mul_i32 {s_t1}, {s_w}, {56 * 32}
        s_add_u32 {s_t0}, {s_t0}, {s_t1}
        s_add_u32 {s_t0}, {s_t0}, {(L0 + DA) * 32}
        v_add_u32 {vu1}, {s_t0}, {vl}
        v_lshlrev_b32 {vu1}, 7, {vu1}
        v_cmp_lt_u32 {smask}, {vl}, {nA}
        v_cndmask_b32 {vtp[0]}, 2.0, {vu1}, {smask}""")
        plan[27] += lines(f"""
        s_and_b32 {s_t1}, {s_mt}, 3
        s_mul_i32 {s_t0}, {s_t1}, {nO}
        s_add_u32 {s_t0}, {s_t0}, {NE * 16}
        v_add_u32 {vu1}, {s_t0}, {vl}
        v_lshlrev_b32 {vu1}, 11, {vu1}
        v_cmp_lt_u32 {smask}, {vl}, {nO}
        v_cndmask_b32 {vtp[2]}, 2.0, {vu1}, {smask}
        s_mul_i32 {s_t0}, {s_t1}, {nW}
        s_mul_i32 {s_t1}, {s_w}, {56 * 16}
        s_add_u32 {s_t0}, {s_t0}, {s_t1}
        s_add_u32 {s_t0}, {s_t0}, {(L0 + DW) * 16}
        v_add_u32 {vu1}, {s_t0}, {vl}
        v_lshlrev_b32 {vu1}, 11, {vu1}
        v_cmp_lt_u32 {smask}, {vl}, {nW}
        v_cndmask_b32 {vtp[1]}, 2.0, {vu1}, {smask}""")
    if CP2:
        plan[PM - 3] += [f's_getpc_b64 {scp[0:2]}', f'{name}_pct:', f's_and_b32 {scp[1]}, {scp[1]}, 0xffff', f's_mov_b32 {scp[2]}, {name}_slow-{name}_pct',
                         f's_mov_b32 {scp[3]}, 0x00020000', f's_lshr_b32 {s_t0}, s2, 3', f's_lshl_b32 {s_t0}, {s_t0}, 2', f's_add_u32 {s_t0}, {s_t0}, {s_w}',
                         f's_lshl_b32 {s_t0}, {s_t0}, 7', f's_add_u32 {s_t0}, {s_t0}, {name}_tail-{name}_pct', f'v_lshl_add_u32 {vcp}, {vl}, 14, {s_t0}']
    def mixed(j, st, nb, loop, misc=(), pre=(), zero=False):
        dw = wload(st + DW); da = hload(st + DA)
        if loop and exp_ & 32:
            dw = [Ins(f'buffer_load_dwordx4 a[{224 + 8 * (st % 4) + 4 * hh}:{227 + 8 * (st % 4) + 4 * hh}], {vl16}, {swd}, {s_ow} offen offset:{hh * 1024}', f'D{(st + DW) % NW}') for hh in range(2)] + dw[3:]
            if nb == 0: period(j, loop, (st, 0), misc=dw + da[:1] + list(misc), pre=pre, zero=zero)
            else:
                p.e(f'WAITTAG D{(st + 1) % NW} A{(st + 1) % NB} LGKM0')
                period(j, loop, (st, 1), misc=da[1:] + list(misc), pre=pre, zero=zero)
            return
        if nb == 0:
            period(j, loop, (st, 0), misc=wrd(vwr, (st % NW) * 2048, 1) + dw + da[:AS] + list(misc), pre=pre, zero=zero)
        else:
            p.e(f'WAITTAG D{(st + 1) % NW} A{(st + 1) % NB} LGKM0')
            period(j, loop, (st, 1), misc=wrd(vwr, ((st + 1) % NW) * 2048, 0) + da[AS:] + list(misc), pre=pre, zero=zero)
    p.seg('partA')
    for j in range(PA):
        if ptrace == -1 and j in (0, 1, 5, 7, 9, 13, 15, 21, jf, jf + 1, jc, jc + 1, PM): pf.trace()
        if j in (9, 19, 27, 41): jitter(5 + j)
        if j < PM: period(j, misc=plan[j], pre=prej[j])
        else: mixed(j, (j - PM) // 2, j % 2, False, misc=plan[j], pre=prej[j], zero=(j < PM + 2))
    if ptrace == -1: pf.trace()
    ST0 = (PA - PM) // 2
    pf.stamp(4)
    jitter(6)
    p.e(f's_mov_b32 {s_cnt}, {(128 - PA) // 16}')
    p.seg('loop')
    p.e(f'{name}_loop:')
    for j in range(16):
        misc = []; pre = []
        if j in (5, 13):
            pre = [f'WAITTAG KV{1 if j == 5 else 0}', 's_barrier']
        if KS == 0 and j in (5, 6, 13, 14):
            d = kvdma(f's_xor_b32 m0, {s_p}, 49152' if j < 8 else f's_mov_b32 m0, {s_p}', 'KV1' if j < 8 else 'KV0')
            misc = d[:5] if j in (5, 13) else d[5:]
        if KS == 1 and j in (5, 7, 13, 15):
            d = kvdma(f's_xor_b32 m0, {s_p}, 49152' if j < 8 else f's_mov_b32 m0, {s_p}', 'KV1' if j < 8 else 'KV0')
            misc = d[:3] if j in (5, 13) else d[:1] + d[3:]
        if KS == 2 and j % 2 == 1:
            first_ = 5 <= j < 13
            d = kvdma(f's_xor_b32 m0, {s_p}, 49152' if first_ else (f's_mov_b32 m0, {s_p}' if j >= 13 else f's_xor_b32 m0, {s_p}, 32768'), 'KV1' if first_ else 'KV0')
            k = ((j - 5) // 2) % 4
            misc = d[:1] + [d[1 + k]] + (d[5:] if k == 3 else [])
        if TP1 and j == 2: misc = misc + [f's_cmp_eq_u32 {s_cnt}, 1', f's_cselect_b32 {s_t0}, 0, 2.0']
        if TP1 and j in (4, 6, 8): misc = misc + [Ins(f'buffer_load_dword {vpd}, {vtp[j // 2 - 2]}, {(sA, swd, swo)[j // 2 - 2]}, {s_t0} offen', 'pf')]
        if j == 9 and CP2: misc = [Ins(f'buffer_load_dword {vpd}, {vcp}, {scp}, 0 offen', 'pf')]
        if j == 15: misc = misc + [f's_xor_b32 {s_p}, {s_p}, 32768', f'v_xor_b32 {vkA}, 0x8000, {vkA}', f'v_xor_b32 {vkB}, 0x8000, {vkB}']
        if EXA:
            lastst = ST0 + 7 + DA
            ex = [(k, r) for k in range(EXA) for r in range(4)]
            if j == EXJ - 1:
                misc = misc + [f's_add_u32 {s_t0}, {s_oa}, {(8 - (j + 1) // 2) * 4096}', f's_cmp_eq_u32 {s_cnt}, 1', f's_cselect_b32 {s_t0}, {s_t0}, 2.0']
            per = -(-len(ex) // (16 - EXJ))
            if j >= EXJ:
                for k, r in ex[(j - EXJ) * per:(j - EXJ + 1) * per]:
                    st_ = lastst + 1 + k
                    assert st_ - NB < ST0 + j // 2, (st_, j)
                    if r == 0 and k: misc = misc + [f's_add_u32 {s_t0}, {s_t0}, 4096']
                    misc = misc + [Ins(f'buffer_load_dwordx4 {Ab[st_ % NB][r]}, {vA[r]}, {sA}, {s_t0} offen{lm2}', f'A{st_ % NB}')]
        if j in (4, 11): jitter(30 + j)
        if ptrace == -3:
            p.e(f's_memtime {s_pt[2:4]}\ns_waitcnt lgkmcnt(0)\nv_writelane_b32 {vtr}, {s_pt[2]}, {j}')
        mixed(j, ST0 + j // 2, j % 2, True, misc=misc, pre=pre)
    p.e(f's_sub_u32 {s_cnt}, {s_cnt}, 1\ns_cmp_lg_u32 {s_cnt}, 0\ns_cbranch_scc1 {name}_loop')

    p.seg('tail')
    p.e(f'{name}_tail:')
    pf.stamp(5)
    jitter(7)
    if ptrace == -2: pf.trace()
    p.add([cvt(15, 7), pv(15, 0), pv(15, 1), rsum(1)])
    def lsum():
        p.e(f"""
        v_accvgpr_read_b32 {vsc[0]}, {L[0][0]}
        v_accvgpr_read_b32 {vu0}, {L[0][1]}
        v_accvgpr_read_b32 {vsc[1]}, {L[1][0]}
        v_accvgpr_read_b32 {vu1}, {L[1][1]}
        v_add_f32 {vsc[0]}, {vsc[0]}, {vu0}
        v_add_f32 {vsc[1]}, {vsc[1]}, {vu1}
        """)
    lsum()
    p.e(f"""
    v_cmp_nle_f32 vcc, {vsc[0]}, {s_thr}
    v_cmp_nle_f32 {smask}, {vsc[1]}, {s_thr}
    s_or_b64 vcc, vcc, {smask}
    s_cbranch_vccnz {name}_slow
    """)
    p.seg('epi')
    p.e(f'{name}_epi:')
    LATE0 = ST0 + (128 - PA) // 2
    vs2 = [P[1][0:2], P[1][2:4]]
    vq_ = []
    o_next = NE
    for st_ in range(LATE0, 56):
        if st_ + DW < 56: vq_.append((st_ + DW - NW + 1, wload(st_ + DW)))
        if st_ + DA + EXA < 56: vq_.append((st_ + DA + EXA - NB + 1, hload(st_ + DA + EXA)))
        if o_next < 16 and not NBAR: vq_.append((0, oload(o_next, oslot(o_next)[2], 'WO'))); o_next += 1
    last_o = []
    if NBAR:
        for t in range(NE, 15): vq_.append((53 + t - NE, oload(t, oslot(t)[2], 'WO')))
        last_o = oload(15, oslot(15)[2], 'WO2'); o_next = 16
    assert o_next == 16
    cur = []
    def onevm(st):
        nonlocal cur
        if not cur and vq_ and vq_[0][0] <= st: cur = list(vq_.pop(0)[1])
        if not cur: return False
        while cur:
            x = cur.pop(0); p.add([x])
            if isinstance(x, Ins): break
        while cur and not any(isinstance(y, Ins) for y in cur): p.add([cur.pop(0)])
        return True
    p.e(f"""
    v_rcp_f32 {vsc[0]}, {vsc[0]}
    v_rcp_f32 {vsc[1]}, {vsc[1]}
    {f's_add_u32 {s_oa}, {s_oa}, {EXA * 4096}' if EXA else ''}
    s_mul_i32 {s_p}, {s_wr}, 49152
    s_lshl_b32 {s_t0}, {s_wc}, 13
    s_add_u32 {s_p}, {s_p}, {s_t0}
    {'' if NBAR else 's_barrier'}
    v_mul_f32 {vs2[0][0]}, {vsc[0]}, {vg[0]}
    v_mul_f32 {vs2[1][0]}, {vsc[1]}, {vg[1]}
    v_mov_b32 {vs2[0][1]}, {vs2[0][0]}
    v_mov_b32 {vs2[1][1]}, {vs2[1][0]}
    """)
    for q in range(2):
        for f in range(2):
            t_ = Sx[q][8 * f:8 * f + 8]
            if EV: onevm(LATE0)
            for i in range(8): p.e(f'v_accvgpr_read_b32 {t_[i]}, {O[q][8*f+i]}')
            if EV > 1: onevm(LATE0)
            for i in range(4): p.e(f'v_pk_mul_f32 {t_[2*i:2*i+2]}, {t_[2*i:2*i+2]}, {vs2[q]}')
            for i in range(4): p.e(f'v_cvt_pk_bf16_f32 {t_[i]}, {t_[2*i]}, {t_[2*i+1]}')
            p.e(f'buffer_store_dwordx4 {t_[0:4]}, {vo}, {sws}, {(s_ob, s_ob2)[f]} offen offset:{q * 1024}{st_mod}', 'OST')
    vout = C[0][4]; vrw = [C[0][5], C[0][6], C[0][7]]; vrr = C[0][8]
    sk = [s_h1, s_h2, s_hb, s_left]
    vA2 = [[vA[r], Sx[1][3 * r], Sx[1][3 * r + 1], Sx[1][3 * r + 2]] for r in range(4)]
    late2 = lines(f"""
        s_sub_u32 {s_t0}, {s_p}, {s_wb}
        v_add_u32 {vw2[0]}, {s_t0}, {vwr[0]}
        v_add_u32 {vw2[1]}, {s_t0}, {vwr[1]}
        s_lshl_b32 {s_t0}, {s_mt}, 18
        s_lshl_b32 {s_t1}, {s_nt}, 7
        s_add_u32 {s_t0}, {s_t0}, {s_t1}
        s_add_u32 {sout[0]}, {pout[0]}, {s_t0}
        s_addc_u32 {sout[1]}, {pout[1]}, 0
        s_sub_u32 {sout[2]}, {S * D * 2}, {s_t0}
        s_mov_b32 {sout[3]}, 0x00020000
        v_and_b32 {vu1}, 31, {vl}
        s_lshl_b32 {s_t0}, {s_w}, 16
        v_lshl_add_u32 {vout}, {vu1}, 11, {s_t0}
        v_lshrrev_b32 {vu1}, 5, {vl}
        v_lshl_add_u32 {vout}, {vu1}, 4, {vout}
        v_bfe_u32 {vu1}, {vl}, 1, 3
        v_and_b32 {vu2}, 1, {vl}
        v_lshlrev_b32 {vu2}, 2, {vu2}
        v_lshl_add_u32 {vpa}, {vu1}, 4, {vu2}
        s_lshr_b32 {s_t2}, {s_mt}, 1
        s_lshl_b32 {s_t2}, {s_t2}, 9
        s_lshl_b32 {s_t0}, {s_w}, 7
        s_add_u32 {s_t2}, {s_t2}, {s_t0}
        s_and_b32 {s_t0}, {s_mt}, 1
        s_lshl_b32 {s_t0}, {s_t0}, 3
        s_add_u32 {s_t2}, {s_t2}, {s_t0}
        s_mul_i32 {s_t0}, {s_w}, 24576
        v_add_u32 {vrr}, {s_t0}, {vl16}
        s_lshl_b32 {s_t1}, {s_w}, 16
        s_add_u32 {s_t1}, {s_t1}, {224 * 4096}""")
    late2[6:8] = [late2[6:8]]
    for r in range(3):
        late2 += [f'v_lshrrev_b32 {vu1}, 10, {vA[r]}', f'v_mul_u32_u24 {vu1}, 24576, {vu1}', f'v_add_u32 {vu1}, {(2 - r) * 8192}, {vu1}', f'v_add_u32 {vrw[r]}, {vu1}, {vl16}']
    for i in range(4):
        late2 += [f's_add_u32 {sk[i]}, {s_t1}, {i * 16384}']
    for r in range(4):
        for i in range(1, 4): late2.append(f'v_add_u32 {vA2[r][i]}, {i * 4096}, {vA[r]}')
    vtw = [C[1][i] for i in range(4)]; vtr_ = C[1][4]; sf = [0, s_ow, s_oo, s_ob]
    fin_setup = lines(f"""
        s_lshl_b32 {s_t0}, {s_w}, 12
        s_add_u32 {s_t0}, {s_t0}, {QS}
        v_and_b32 {vu1}, 31, {vl}
        v_lshl_add_u32 {vtw[0]}, {vu1}, 7, {s_t0}
        v_lshrrev_b32 {vu2}, 5, {vl}
        v_xor_b32 {vu2}, {vu2}, {vl}
        v_and_b32 {vu2}, 7, {vu2}
        v_lshl_add_u32 {vtw[0]}, {vu2}, 4, {vtw[0]}
        v_xor_b32 {vtw[1]}, 32, {vtw[0]}
        v_xor_b32 {vtw[2]}, 64, {vtw[0]}
        v_xor_b32 {vtw[3]}, 0x60, {vtw[0]}
        v_lshrrev_b32 {vu1}, 3, {vl}
        v_xor_b32 {vu2}, {vu1}, {vl}
        v_and_b32 {vu2}, 7, {vu2}
        v_lshl_add_u32 {vtr_}, {vu1}, 7, {s_t0}
        v_lshl_add_u32 {vtr_}, {vu2}, 4, {vtr_}
        v_and_b32 {vu2}, 7, {vl}
        v_lshlrev_b32 {vu2}, 4, {vu2}
        s_lshl_b32 {s_t0}, {s_w}, 16
        v_lshl_add_u32 {vout}, {vu1}, 11, {s_t0}
        v_add_u32 {vout}, {vout}, {vu2}""") + [f's_mov_b32 {sf[i]}, {i * 16384}' for i in range(1, 4)]
    poll_o = f'buffer_load_dword {vpoll[0]}, {vpa}, {sfl}, {s_t2} offen sc1'
    AB = [Ab[i // 4][i % 4] for i in range(32)]
    abfree = [48 + i // 4 for i in range(32)]
    if PT:
        AB = [Ab[6 + i // 4][i % 4] for i in range(8)]; abfree = [0] * 8
        for b in range(4):
            AB += Ab[b] + Wb[b]; abfree += [52 + b] * 6
    def aload(i):
        r, t = divmod(i, 16)
        return f'buffer_load_dwordx4 {AB[i % 32]}, {vA2[r][t % 4]}, {sA}, {sk[t // 4]} offen{lm2}'
    a_next = 0; side = list(late2); checked = False
    for st in range(LATE0, 56):
        if ptrace == -2: pf.trace()
        n0 = wrd(vwr, (st % NW) * 2048, 1)
        n1 = ([f'WAITTAG D{(st + 1) % NW} A{(st + 1) % NB}'] + wrd(vwr, ((st + 1) % NW) * 2048, 0)) if st < 55 else []
        if st == LATE0 + 1: side = [flag(3, 'FL', 'OST')] + side
        if st == LATE0 + 2: side += [x for t in range(4, NE) for x in woread(t)]
        for c in range(8):
            nb, tb = divmod(c, 4)
            p.e(gm(st, nb, tb if nb == 0 else 3 - tb))
            if c == 0: p.add(n0)
            if c == 4: p.add(n1)
            if st == LATE0 + OC - PO and c == 1:
                assert not any(isinstance(y, str) and (str(vpa) + ',' in y or str(s_t2) + ',' in y) for y in side)
                p.e(poll_o)
            if st == LATE0 + OC and c == 1:
                p.add(check([f'v_cmp_gt_u32 vcc, 3, {vpoll[0]}'], [poll_o], 'o')); checked = True
                if TP2:
                    p.e(f's_and_b32 {s_t0}, {s_nt}, 7\ns_lshl_b32 {s_t0}, {s_t0}, 13\ns_add_u32 {s_t0}, {s_t0}, {sk[0]}\nv_lshlrev_b32 {vu1}, 7, {vl}')
                    p.add([Ins(f'buffer_load_dword {vpd}, {vu1}, {sA}, {s_t0} offen', 'pf')])
            if onevm(st): pass
            elif checked and a_next < AL and abfree[a_next] < st and st >= 56 - ALS:
                assert not any(y in late2 for y in side)
                p.e(aload(a_next)); a_next += 1
            for _ in range(3 if st < LATE0 + 2 else 2):
                if side:
                    x = side.pop(0); p.add(x if isinstance(x, list) else [x])
    assert not cur and not vq_ and checked and not side
    if ptrace == -2: pf.trace()
    pf.stamp(6)
    jitter(8)
    def scale(r): return [f'v_mul_f32 {acc3[nb][r][i]}, {acc3[nb][r][i]}, {vog[r]}' for nb in range(2) for i in range(16)]
    p.add(last_o)
    if not NBAR: p.e('WAITTAG WO')
    rds = [x for t in range(NE, 16) for x in woread(t)]
    rds_late = []
    if NBAR: rds_late = [None] * 24 + [['WAITTAG WO', rds[0]]] + rds[1:12] + [['WAITTAG WO2', rds[12]]] + rds[13:]; rds = []
    for k, x in enumerate(scale(0)):
        p.e(x)
        if k % 4 == 1 and rds: p.e(rds.pop(0))
        if k % 8 == 3 and a_next < AL + 4: p.e(aload(a_next)); a_next += 1
    side = []
    for k, x in enumerate(scale(1)):
        side.append(x)
        if rds: side.append(rds.pop(0))
    assert not rds
    if NBAR:
        mix = []
        while side or rds_late:
            if side: mix.append(side.pop(0))
            if rds_late:
                x = rds_late.pop(0)
                if x: mix.append(x)
        side = mix
    def rdpart(sl, dst): return [f'ds_read_b128 {acc3[n_][dst][4*j:4*j+4]}, {vrr} offset:{sl * 8192 + (n_ * 4 + j) * 1024}' for n_ in range(2) for j in range(4)]
    def addpart(src): return [f'v_add_f32 {acc3[n_][0][e]}, {acc3[n_][0][e]}, {acc3[n_][src][e]}' for n_ in range(2) for e in range(16)]
    wr = []; dens = 2
    for i in range(64):
        r, t = divmod(i, 16)
        if ptrace == -2 and i % 8 == 0: pf.trace()
        if i in (17, 30, 44, 52): jitter(60 + i)
        for nb in range(2):
            if nb == 0:
                if i == 16: side += scale(2)
                if i == 16 + 2:
                    p.e('s_waitcnt lgkmcnt(0)\ns_barrier')
                if i == 32:
                    assert not side
                    side += scale(3); dens = 3 if FT else 2
                if i == 33 and FT:
                    side += fin_setup
                if i == 32 + 11:
                    assert not wr and not side
                    p.e('s_waitcnt lgkmcnt(0)\ns_barrier')
                    side += rdpart(2, 0) + rdpart(1, 1) + [None] * 4 + addpart(1); dens = 3
                if i == 48 + 7:
                    assert not wr and not side
                    p.e('s_waitcnt lgkmcnt(0)\ns_barrier')
                    side += rdpart(0, 2) + [None] * 6 + addpart(2)
            p.e(f'v_mfma_f32_32x32x16_bf16 {acc3[nb][r]}, {WO[t][4*nb:4*nb+4]}, {AB[i % 32]}, {acc3[nb][r]}')
            if a_next < 64 and a_next <= i + 30 and (nb == 0 or a_next < i + ALM): p.e(aload(a_next)); a_next += 1
            if wr and t >= 2 and (nb == 1 or r == 3): p.e(wr.pop(0))
            for _ in range(dens):
                if side:
                    x = side.pop(0)
                    if x: p.add(x if isinstance(x, list) else [x])
        if t == 15 and r < 3:
            assert not wr
            wr = [f'ds_write_b128 {vrw[r]}, {acc3[nb][r][4*j:4*j+4]} offset:{(nb * 4 + j) * 1024}' for nb in range(2) for j in range(4)]
    fin = side
    assert a_next == 64
    pf.stamp(7)
    p.add([x for x in fin if x])
    for nb in range(2):
        a_ = acc3[nb][3]
        for jp in range(2):
            for i in range(4 * jp, 4 * jp + 4): p.e(f'v_pk_add_f32 {a_[2*i:2*i+2]}, {a_[2*i:2*i+2]}, {acc3[nb][0][2*i:2*i+2]}')
            o = Sx[0][8 + 4 * jp:12 + 4 * jp] if nb == 0 else P[0][4 * jp:4 * jp + 4]
            for i in range(4): p.e(f'v_cvt_pk_bf16_f32 {o[i]}, {a_[8 * jp + 2 * i]}, {a_[8 * jp + 2 * i + 1]}')
            p.e(f'v_permlane32_swap_b32 {o[0]}, {o[2]}\nv_permlane32_swap_b32 {o[1]}, {o[3]}')
            if FT: p.e(f'ds_write_b128 {vtw[2 * nb + jp]}, {o}')
            else: p.e(f'buffer_store_dwordx4 {o}, {vout}, {sout}, 0 offen offset:{nb * 64 + jp * 32}' + ('', ' sc1', ' nt', ' sc0 sc1')[OUTM])
    if FT:
        p.e('s_waitcnt lgkmcnt(0)')
        for i in range(4): p.e(f'ds_read_b128 {acc3[0][1][4*i:4*i+4]}, {vtr_} offset:{i * 1024}')
        for i in range(4): p.e(f'buffer_store_dwordx4 {acc3[0][1][4*i:4*i+4]}, {vout}, {sout}, {sf[i]} offen' + ('', ' sc1', ' nt', ' sc0 sc1')[OUTM])
    pf.stamp(8)
    pf.flush(s_w, sws, vl, vu0)
    if PRB or PRA:
        p.e(f"""
        v_readlane_b32 {s_t0}, {vtr}, {44 + 2 * PRA}
        v_readlane_b32 {s_t1}, {vtr}, {44 + 2 * PRB}
        v_readlane_b32 {s_t2}, {vtr}, 62
        s_nop 4
        s_sub_u32 {s_t0}, {s_t1}, {s_t0}
        s_min_u32 {s_t0}, {s_t0}, 20000
        s_lshl_b32 {s_t0}, {s_t0}, {PRS}
        s_mov_b32 {s_cnt}, 200000
        {name}_probe:
        s_memrealtime {s_pt[0:2]}
        s_waitcnt lgkmcnt(0)
        s_sub_u32 {s_t1}, {s_pt[0]}, {s_t2}
        s_cmp_ge_u32 {s_t1}, {s_t0}
        s_cbranch_scc1 {name}_probe_done
        s_sub_u32 {s_cnt}, {s_cnt}, 1
        s_cmp_lg_u32 {s_cnt}, 0
        s_cbranch_scc1 {name}_probe
        {name}_probe_done:
        """)
    if dbg > 0:
        p.e(f"""
        v_readlane_b32 {s_t0}, {vtr}, 44
        v_readlane_b32 {s_t1}, {vtr}, 45
        v_and_b32 {vu1}, 1, {vl}
        v_cmp_eq_u32 vcc, 0, {vu1}
        v_mov_b32 {vu1}, {s_t0}
        v_mov_b32 {vu2}, {s_t1}
        v_cndmask_b32 {vu1}, {vu2}, {vu1}, vcc
        v_sub_u32 {vu1}, {vtr}, {vu1}
        v_subrev_u32 {vu2}, 46, {vl}
        v_lshlrev_b32 {vu2}, 2, {vu2}
        v_cmp_gt_u32 vcc, 64, {vu2}
        v_cndmask_b32 {vu2}, 2.0, {vu2}, vcc
        s_mov_b32 {skv[0]}, {pdbg[0]}
        s_mov_b32 {skv[1]}, {pdbg[1]}
        s_movk_i32 {skv[2]}, 64
        s_lshl_b32 {s_t0}, s2, 2
        s_add_u32 {s_t0}, {s_t0}, {s_w}
        s_cmp_eq_u32 {s_t0}, {dbg - 1}
        s_cselect_b32 {s_t0}, 0, 2.0
        buffer_store_dword {vu1}, {vu2}, {skv}, {s_t0} offen
        """)
    p.e('s_endpgm')

    p.seg('slow0')
    p.e(f'{name}_slow:')
    p.e(f"""
    s_waitcnt vmcnt(0) lgkmcnt(0)
    v_mov_b32 {vu0}, 0xff800000
    v_mov_b32 {vu1}, 0xff800000
    s_mov_b32 {s_okv}, 0
    s_mov_b32 {skv[2]}, 262144
    """)
    p.seg('slow1')
    p.e(f'{name}_slow1:')
    for f in range(2): p.e(f'buffer_load_dwordx4 {K[0][4*f:4*f+4]}, {vl16}, {skv}, {s_okv} offen offset:{f * 1024}')
    for q in range(2):
        for f in range(2): p.e(qk(Sx[q], 0, q, f, '0'))
    rowmax(vu0, Sx[0], False); rowmax(vu1, Sx[1], False)
    p.e(f's_add_u32 {s_okv}, {s_okv}, 4096\ns_cmp_lt_u32 {s_okv}, 262144\ns_cbranch_scc1 {name}_slow1')
    p.seg('slow2')
    setc(0, vu0); setc(1, vu1)
    for q in range(2):
        for i in range(16): p.e(f'v_accvgpr_write_b32 {O[q][i]}, 0')
        for i in range(4): p.e(f'v_accvgpr_write_b32 {L[q][i]}, 0')
    p.e(f's_mov_b32 {s_okv}, 0')
    p.seg('slow3')
    p.e(f'{name}_slow3:')
    for f in range(2): p.e(f'buffer_load_dwordx4 {K[0][4*f:4*f+4]}, {vl16}, {skv}, {s_okv} offen offset:{f * 1024}')
    for f in range(2): p.e(f'buffer_load_dwordx4 {V[0][4*f:4*f+4]}, {vl16}, {skv}, {s_okv} offen offset:{2048 + f * 1024}')
    for q in range(2):
        for f in range(2): p.e(qk(Sx[q], 0, q, f, C[q]))
    for q in range(2):
        for i in range(16): p.e(f'v_exp_f32 {Sx[q][i]}, {Sx[q][i]}')
        for i in range(8): p.e(cvt(q, i))
        p.add([pv(q, 0), pv(q, 1), rsum(q)])
    p.e(f's_add_u32 {s_okv}, {s_okv}, 4096\ns_cmp_lt_u32 {s_okv}, 262144\ns_cbranch_scc1 {name}_slow3')
    p.seg('slow4')
    lsum()
    p.e(f's_branch {name}_epi')
    for lab, cond, reload_ in spins:
        p.seg(lab)
        p.e(f'{lab}_spin:\ns_mov_b32 {s_cnt if lab.endswith("cnt") else s_spin}, {SPIN}\n{lab}_again:\ns_sleep 2')
        p.add(reload_)
        p.e('s_waitcnt vmcnt(0)\ns_nop 1')
        p.add(cond)
        r_ = s_cnt if lab.endswith('cnt') else s_spin
        p.e(f's_nop 4\ns_cbranch_vccz {lab}_ok\ns_sub_u32 {r_}, {r_}, 1\ns_cmp_lg_u32 {r_}, 0\ns_cbranch_scc1 {lab}_again\ns_branch {lab}_ok')
    p.seg('end')
    p.e(f'{name}_end:\ns_endpgm')
    mid = ['join', 'partA', 'loop', 'loop', 'tail']
    slow = ['slow0', 'slow1', 'slow1', 'slow2', 'slow3', 'slow3', 'slow4']
    traces = []
    for wc in range(2):
        for x in ([],):
            traces.append(['pro'] + x + [f'c{wc}a', f'c{wc}l1', f'c{wc}l2', f'c{wc}l1', f'c{wc}l2'] + ([] if P13 else [f'c{wc}l1']) + [f'c{wc}last'] + mid + ['epi'])
    traces.append(mid + slow + ['epi'])
    for lab, _, _ in spins: traces.append([lab])
    p.auto_waits(traces)
    nn = p.hazards(traces)
    return kernel_header(name) + p.text(), kernel_desc(name), dict(nops=nn, v=va.p, a=aa.p, s=max(sa.p, s_hi))

if __name__ == '__main__':
    import sys
    NAME = 'gated_mix__softmax_full_mha__glu_gated_bilinear__prompt'
    REF = f'cdna_kernels/{NAME}.s.ref'
    dst = sys.argv[1]
    kw = {a.split('=')[0]: float(a.split('=')[1]) if '.' in a else int(a.split('=')[1]) for a in sys.argv[2:] if '=' in a}
    t, d, info = gen_fused(NAME + '_kernel', prof='prof' in sys.argv, force_slow='slow' in sys.argv, **kw)
    print(info, file=sys.stderr)
    head = [l for l in open(REF).read().split('\n') if l.startswith(';') and '@launch' not in l]
    doc = '''; One persistent launch, 256 workgroups x 4 waves (one wave per SIMD, 512 registers, 160 KiB LDS).
;   phase 1  x[256 rows] @ [wq_h wk_h wv_h | w_gate 112 cols | w_up 112 cols], 16x16x32 MFMA, LDS-DMA double buffer.
;   phase 2  softmax(QK^T)V for the block's 256 queries (32x32x16 MFMA), interleaved with the down projection of a
'''
    out = '\n'.join(head) + f'\n; @launch grid=(256,1,1) block=(256,1,1) lds={F_LDS}\n' + doc + '.amdgcn_target "amdgcn-amd-amdhsa--gfx950"\n' + t + d
    open(dst, 'w').write(out)
```

```python
from gen_common import *

X0, X1, W0, W1, QS = 0, 32768, 65536, 106496, 147456
F_LDS = 163840
WS_FL = 33 << 20
WS_T = 36 << 20
DBG_CNT = 64
SPIN = 40000

def gen_fused(name, prof=False, pfd=3, cq=8, cg=6.5, cx=4, NB=8, DA=4, DW=3, RP=6, PM=36, HP=1.25, force_slow=False, ptrace=0, dbg=0, exp_=0, VSP=2, PFP=18, OC=8, KP=1, H0=2, ROT=0, CPF=1, OUTM=1, CP0=1, CP2=0, FG=3, TLB=0, EV=1, DL=6, PT=0, GP=0, JIT=0, JL=1, P13=1, ES=0, CW=1, WOP=0, NBAR=0, EXA=0, EXJ=4, CONCE=0, OWN=1, NOPF=0, XP2=0, PRS=2, TT=1, TP1=0, TP2=0, AL=16, ALS=2, ALM=18, FT=1, PA=48, AS=1, KS=2, PK=0, PKR=1, AW=1, KF=100, KC=5, FOFF=0, S1P=10, MWT=0, LM1=0, LM2=0, PO=3, LP=0, PRE=-1, PF0=0, PD0=3, xpf=1, F0=0, FS=1.0, GD=2, SMC=16, VMC=8, VPEN=16, MW=1, PRA=0, PRB=0, PG=3, E0=11, st_mod=' sc1'):
    pfm = 1
    kv_mod = '' if exp_ & 64 else st_mod
    lm1 = ('', ' sc1', ' nt', ' sc0')[LM1]; lm2 = ('', ' sc1', ' nt', ' sc0')[LM2]
    p = Prog()
    sa = Alloc('s', 4, 102); va = Alloc('v', 1, 256); aa = Alloc('a', 0, 256)
    ptr = sa(16, 4)
    px, pqkv, pwo, pwg, pwu, pwd, pgw = ptr[0:2], ptr[2:4], ptr[4:6], ptr[8:10], ptr[10:12], ptr[12:14], ptr[14:16]
    pod = sa(4, 4); pout, pdbg = pod[0:2], pod[2:4]
    pws = sa(2); smask = sa(2)
    sws = sa(4); sfl = sa(4); sdbg = sa(4)
    s_mb, s_h, s_w, s_wr, s_wc, s_t0, s_t1, s_t2, s_cnt, s_tr, s_hb = [sa() for _ in range(11)]
    s_pt = sa(4, 2)
    s_base = sa.p
    sx = sa(4); sq = sa(4); sg = sa(4); spf = sa(4); sp2 = sa(4); sp3 = sa(4)
    s_c0, s_c1, s_ox, s_oq, s_og, s_pfo, s_pfs, s_gs, s_grp, s_ano = [sa() for _ in range(10)]
    s_mx, s_mw, s_msk = sa(), sa(), sa()
    s_hi = sa.p

    vl, vpd, vflag, vtr, vflk = [va() for _ in range(5)]
    v_base = va.p
    pf = Prof2(p, prof, s_pt, vtr, s_tr)
    vdx = [va() for _ in range(8)]; vdq = [va() for _ in range(2)]; vdq.append(vdq[0]); vdg = [va() for _ in range(7)]
    vxr = [va() for _ in range(2)]; vqr = [va() for _ in range(2)]; vgr = [va() for _ in range(2)]
    vt0, vt1, vt2, vt3, vpf = [va() for _ in range(5)]
    vcnt = va(); vwo = va()
    vtmp = va(28, 4)
    assert vtmp.a == 36
    xlo = [[aa(8, 4) for _ in range(4)] for _ in range(2)]; xhi = [aa(8, 4) for _ in range(4)]
    def xf(st, m, ks): return (xlo[st][m] if m < 4 else xhi[m - 4])[4 * ks:4 * ks + 4]
    NSLOT = 4; DIST = 3
    wf = [aa(8, 4) for _ in range(NSLOT)]
    acc = [[None] * 8 for _ in range(10)]
    for n in [0, 1, 6, 7, 8, 9, 2, 3, 4, 5]:
        for m in range(8):
            acc[n][m] = va(4, 4) if va.p + 4 <= 256 else aa(4, 4)

    def lines(s): return [x.strip() for x in s.strip().split('\n')]
    def dma_x(st):
        L = []
        for i in range(8):
            pre = [f's_add_u32 m0, {s_mx}, {(X0, X1)[st] + (i // 4) * 4096}'] if i % 4 == 0 else []
            L.append((pre, Ins(f'buffer_load_dwordx4 {vdx[i]}, {sx}, {s_ox} offen offset:{(i % 4) * 1024}{lm1} lds', f'S{st}')))
        return L
    def dma_w(st):
        L = []
        for i in range(10):
            pre = [f's_add_u32 m0, {s_mw}, {(W0, W1)[st] + (i // 4) * 4096}'] if i % 4 == 0 else []
            v, sr, so = (vdq[i - 7], sq, s_oq) if i >= 7 else (vdg[i], sg, s_og)
            L.append((pre, Ins(f'buffer_load_dwordx4 {v}, {sr}, {so} offen offset:{(i % 4) * 1024}{lm1} lds', f'S{st}')))
        return L
    def emit(lst):
        for pre, ins in lst:
            p.add(pre); p.add([ins])
    adv = [f's_add_u32 {s_oq}, {s_oq}, {64 * 6144}', f's_add_u32 {s_og}, {s_og}, {64 * 7168}', f's_add_u32 {s_ox}, {s_ox}, 128']

    jn = [0]
    def jitter(k, wave=True):
        if not JIT: return
        jn[0] += 1
        p.e(f"""
        s_mul_i32 {s_pt[0]}, s2, {4 if wave else 1}
        s_add_u32 {s_pt[0]}, {s_pt[0]}, {s_w if wave else 0}
        s_mul_i32 {s_pt[0]}, {s_pt[0]}, {(2654435761 * (JIT * 16 + k + 1)) % (1 << 31) | 1}
        s_lshr_b32 {s_pt[0]}, {s_pt[0]}, 29
        s_cmp_lg_u32 {s_pt[0]}, 0
        s_cbranch_scc1 {name}_j{jn[0]}
        s_sleep 127
        s_sleep 127
        {name}_j{jn[0]}:
        """)
    p.seg('pro')
    p.e(f"""
    s_cmp_ge_u32 s2, 256
    s_cbranch_scc1 {name}_end
    """)
    if ptrace == 3:
        p.e(f's_memtime {s_pt[2:4]}\ns_waitcnt lgkmcnt(0)\ns_mov_b32 {s_hb}, {s_pt[2]}')
    if PRA == -1:
        p.e(f's_memrealtime {s_pt[2:4]}\ns_waitcnt lgkmcnt(0)\ns_mov_b32 {s_hb}, {s_pt[2]}')
    p.e(f"""
    s_load_dwordx16 {ptr}, s[0:1], 0
    s_load_dwordx4 {pod}, s[0:1], 64
    s_load_dwordx2 {pws}, s[0:1], 80
    v_lshrrev_b32 {vt0}, 6, v0
    v_and_b32 {vl}, 63, v0
    s_lshr_b32 {s_t1}, s2, 3
    v_readfirstlane_b32 {s_w}, {vt0}
    s_and_b32 {s_mb}, {s_t1}, 7
    s_and_b32 {s_t0}, s2, 7
    s_lshr_b32 {s_t1}, {s_t1}, 3
    s_lshl_b32 {s_h}, {s_t0}, 2
    s_add_u32 {s_h}, {s_h}, {s_t1}
    s_lshr_b32 {s_wr}, {s_w}, 1
    s_and_b32 {s_wc}, {s_w}, 1
    """)
    vca = vtmp[24:26]
    for _ in range(JL): jitter(0, False)
    if CP0:
        p.e(f"""
        s_getpc_b64 {smask}
        {name}_pcs:
        s_lshr_b32 {s_t0}, s2, 3
        s_lshl_b32 {s_t0}, {s_t0}, 2
        s_add_u32 {s_t0}, {s_t0}, {s_w}
        s_lshl_b32 {s_t0}, {s_t0}, 7
        v_and_b32 {vt0}, 1, {vl}
        v_lshl_add_u32 {vt0}, {vt0}, 14, {s_t0}
        v_min_u32 {vt0}, {name}_join-{name}_pcs, {vt0}
        v_mov_b32 {vca[1]}, {smask[1]}
        v_add_co_u32 {vca[0]}, vcc, {smask[0]}, {vt0}
        v_addc_co_u32 {vca[1]}, vcc, 0, {vca[1]}, vcc
        """)
        p.add([Ins(f'global_load_dword {vpd}, {vca}, off', 'pf')])
    vxp, vgp = vtmp[0], vtmp[1]
    if XP2: p.e(f'v_mov_b32 {vtmp[3]}, 2.0')
    p.e(f"""
    v_and_b32 {vt0}, 7, {vl}
    v_lshrrev_b32 {vt1}, 3, {vl}
    v_mul_u32_u24 {vt2}, 86, {vt1}
    v_lshrrev_b32 {vt2}, 8, {vt2}
    v_mad_i32_i24 {vt1}, {vt2}, -3, {vt1}
    v_lshl_add_u32 {vt0}, {vt2}, 6, {vt0}
    s_lshl_b32 {s_t0}, {s_mb}, 3
    v_add_u32 {vt0}, {s_t0}, {vt0}
    s_cmp_eq_u32 {s_w}, 3
    s_movk_i32 {s_c0}, 7168
    s_cmov_b32 {s_c0}, 6144
    s_movk_i32 {s_c1}, 108
    s_cmov_b32 {s_c1}, 2048
    v_mul_u32_u24 {vt0}, {s_c0}, {vt0}
    v_mad_u32_u24 {vxp}, {vt1}, {s_c1}, {vt0}
    v_cmp_gt_u32 vcc, 48, {vl}
    s_lshl_b32 {s_t0}, {s_t1}, 17
    v_lshl_add_u32 {vt0}, {vl}, 11, {s_t0}
    v_cndmask_b32 {vxp}, 2.0, {vxp}, vcc
    s_cmp_eq_u32 {s_w}, 0
    s_cselect_b64 vcc, -1, 0
    v_cndmask_b32 {vxp}, {vxp}, {vt0 if not XP2 else vtmp[3]}, vcc
    """)
    if XP2:
        p.e(f"""
        s_lshl_b32 {s_c0}, {s_w}, 15
        s_add_u32 {s_t0}, {s_t0}, {s_c0}
        v_lshrrev_b32 {vt0}, 1, {vl}
        v_lshl_add_u32 {vt0}, {vt0}, 11, {s_t0}
        v_and_b32 {vt1}, 1, {vl}
        v_lshl_add_u32 {vt0}, {vt1}, 7, {vt0}
        v_cmp_gt_u32 vcc, 32, {vl}
        v_cndmask_b32 {vtmp[4]}, 2.0, {vt0}, vcc
        """)
    x_addr = lines(f"""
    v_lshrrev_b32 {vt0}, 3, {vl}
    v_and_b32 {vt1}, 7, {vl}
    v_lshrrev_b32 {vt2}, 4, {vl}
    v_xor_b32 {vt1}, {vt1}, {vt2}
    v_lshlrev_b32 {vt3}, 11, {vt0}
    s_lshl_b32 {s_c0}, {s_w}, 17
    v_add_u32 {vt3}, {s_c0}, {vt3}
    v_lshl_add_u32 {vdx[0]}, {vt1}, 4, {vt3}
    v_xor_b32 {vt1}, 4, {vt1}
    v_lshl_add_u32 {vdx[1]}, {vt1}, 4, {vt3}
    v_add_u32 {vdx[1]}, {16384 - 1024}, {vdx[1]}
    s_lshl_b32 {s_mx}, {s_w}, 13
    s_mov_b32 {s_ox}, 0""") + [f'v_add_u32 {vdx[i]}, {(i - i % 2) * 16384 - (i % 4 - i % 2) * 1024}, {vdx[i % 2]}' for i in range(2, 8)]
    q_addr = lines(f"""
    v_lshrrev_b32 {vt0}, 2, {vl}
    v_and_b32 {vt2}, 2, {vt2}
    v_and_b32 {vt1}, 3, {vl}
    v_xor_b32 {vt1}, {vt1}, {vt2}
    s_lshl_b32 {s_c0}, {s_w}, 4
    v_add_u32 {vt0}, {s_c0}, {vt0}
    v_mul_u32_u24 {vt0}, 6144, {vt0}
    v_lshl_add_u32 {vdq[1]}, {vt1}, 4, {vt0}
    v_add_u32 {vdq[0]}, 1024, {vdq[1]}
    s_mul_i32 {s_mw}, {s_w}, 10240
    s_mov_b32 {s_oq}, 0
    s_mov_b32 {s_og}, 0""")
    if PRE >= 0: p.add(x_addr + q_addr)
    def gu_offsets():
        L = [lines(f"""
        s_mul_i32 {s_t0}, {s_wc}, {32 * 7168}
        s_movk_i32 {s_c0}, 6944
        s_movk_i32 {s_c1}, 28672
        v_mul_u32_u24 {vt3}, 4682, {vl}
        v_lshl_add_u32 {vtmp[2]}, {vl}, 4, {s_t0}""")]
        for j in range(7):
            tj = vt3; q_ = []
            if j:
                q_.append(f'v_add_u32 {vt0}, {64 * j * 4682}, {vt3}'); tj = vt0
            q_ += lines(f"""
            v_bfe_u32 {vt1}, {tj}, 18, 1
            v_bfe_u32 {vt2}, {tj}, 19, 1
            v_lshrrev_b32 {vt0}, 16, {tj}
            v_sub_u32 {vt1}, {vt1}, {vt2}
            v_mad_u32_u24 {vdg[j]}, {vt0}, {s_c0}, {vtmp[2]}
            v_mad_i32_i24 {vdg[j]}, {vt1}, {s_c1}, {vdg[j]}""")
            if j == 3: q_.append(f'v_add_u32 {vtmp[2]}, 4096, {vtmp[2]}')
            L.append(q_)
        return L
    gu = gu_offsets()
    if PRE >= 1:
        for q_ in gu: p.add(q_)
    PD = pfd
    gpf_addr = lines(f"""
        s_cmp_eq_u32 {s_w}, 0
        s_cselect_b32 {s_grp}, 12, 14
        s_lshl_b32 {s_pfs}, {s_grp}, 15
        s_cmp_eq_u32 {s_w}, 3
        s_cselect_b32 {s_grp}, 8, {s_grp}
        s_cselect_b32 {s_pfs}, 0x80, {s_pfs}
        s_cselect_b32 {s_ano}, 11, 7
        s_mul_i32 {s_t1}, {s_grp}, s2
        v_and_b32 {vt1}, 15, {vl}
        v_add_u32 {vt0}, {s_t1}, {vt1}
        v_lshlrev_b32 {vpf}, {s_ano}, {vt0}
        v_lshrrev_b32 {vt0}, 4, {vl}
        v_mul_lo_u32 {vt0}, {vt0}, {s_pfs}
        v_add_u32 {vgp}, {vt0}, {vpf}
        v_cmp_gt_u32 vcc, {s_grp}, {vt1}
        v_cmp_gt_u32 {smask}, {16 * (PD0 - 1)}, {vl}
        s_and_b64 {smask}, {smask}, vcc
        v_cndmask_b32 {vgp}, 2.0, {vgp}, {smask}
        v_cmp_gt_u32 vcc, {s_grp}, {vl}
        s_mul_i32 {s_pfo}, {s_pfs}, {PD0}
        v_cndmask_b32 {vpf}, 2.0, {vpf}, vcc""")
    gpf_issue = lines(f"""
        s_cmp_eq_u32 {s_w}, 0
        s_cselect_b64 {spf[0:2]}, {pqkv}, {pwg}
        s_cmp_eq_u32 {s_w}, 2
        s_cselect_b64 {spf[0:2]}, {pwu}, {spf[0:2]}
        s_cmp_eq_u32 {s_w}, 3
        s_cselect_b64 {spf[0:2]}, {px}, {spf[0:2]}
        s_lshl_b32 {spf[2]}, {s_grp}, 19""") + [Ins(f'buffer_load_dword {vpd}, {vgp}, {spf}, {s_pfs} offen', 'pf')]
    if OWN:
        gpf_addr = lines(f"""
        s_cmp_eq_u32 {s_w}, 3
        s_mov_b32 {s_pfs}, {64 * 7168}
        s_cmov_b32 {s_pfs}, {64 * 6144}
        v_cmp_gt_u32 vcc, 24, {vl}
        s_lshl_b32 {s_t1}, s2, 14
        v_and_b32 {vt1}, 7, {vl}
        v_cndmask_b32 {vpf}, 2.0, {vxp}, vcc
        v_lshl_add_u32 {vt0}, {vt1}, 11, {s_t1}
        v_lshrrev_b32 {vt1}, 3, {vl}
        v_lshl_add_u32 {vgp}, {vt1}, 7, {vt0}
        v_cmp_gt_u32 vcc, 8, {vl}
        v_cmp_gt_u32 {smask}, {8 * (PD0 - 1)}, {vl}
        v_cndmask_b32 {vt0}, 2.0, {vt0}, vcc
        v_cndmask_b32 {vgp}, 2.0, {vgp}, {smask}
        s_cmp_eq_u32 {s_w}, 0
        s_cselect_b64 vcc, -1, 0
        s_cselect_b32 {s_pfs}, 0x80, {s_pfs}
        s_cselect_b64 {spf[0:2]}, {px}, {spf[0:2]}
        s_cselect_b32 {spf[2]}, {S * D * 2}, {spf[2]}
        s_cselect_b32 {s_t0}, 1, 2
        v_cndmask_b32 {vpf}, {vpf}, {vt0}, vcc
        v_cndmask_b32 {vgp}, {vpf}, {vgp}, vcc
        s_mul_i32 {s_t0}, {s_t0}, {s_pfs}
        s_mul_i32 {s_pfo}, {s_pfs}, {PD0}""")
        if OWN == 2:
            gpf_addr = lines(f"""
            s_cmp_eq_u32 {s_w}, 3
            s_mov_b32 {s_pfs}, {64 * 7168}
            s_cmov_b32 {s_pfs}, {64 * 6144}
            s_cmp_eq_u32 {s_w}, 0
            s_cselect_b32 {s_t1}, 64, 24
            s_cselect_b32 {s_pfs}, 0x80, {s_pfs}
            s_cselect_b32 {s_t0}, 1, 2
            v_cmp_gt_u32 vcc, {s_t1}, {vl}
            s_mul_i32 {s_t0}, {s_t0}, {s_pfs}
            s_add_u32 {s_pfo}, {s_t0}, {s_pfs}
            v_cndmask_b32 {vpf}, 2.0, {vxp}, vcc
            v_mov_b32 {vgp}, {vpf}""")
        assert PD0 == 3 and PRE < 2 and not PF0 and not XP2
        gpf_issue = [Ins(f'buffer_load_dword {vpd}, {vgp}, {spf}, {s_t0} offen', 'pf')]
    def pfetch():
        if NOPF & 1: return []
        return [Ins(f'buffer_load_dword {vpd}, {vpf}, {spf}, {s_pfo} offen', 'pf'), f's_add_u32 {s_pfo}, {s_pfo}, {s_pfs}']
    def pfetch_d():
        if NOPF & 2: return []
        return [Ins(f'buffer_load_dword {vpd}, {vt3}, {sp2}, {s_c1} offen', 'pf'), f's_add_u32 {s_c1}, {s_c1}, {1024 * DL * 128}']
    rd_addr = lines(f"""
    v_and_b32 {vt0}, 15, {vl}
    v_lshrrev_b32 {vt1}, 4, {vl}
    v_lshrrev_b32 {vt2}, 1, {vt0}
    v_xor_b32 {vt2}, {vt1}, {vt2}
    s_lshl_b32 {s_t0}, {s_wr}, 14
    v_lshl_add_u32 {vt3}, {vt0}, 7, {s_t0}
    v_lshl_add_u32 {vxr[0]}, {vt2}, 4, {vt3}
    v_xor_b32 {vxr[1]}, 64, {vxr[0]}
    v_and_b32 {vt3}, 3, {vt0}
    v_lshlrev_b32 {vt3}, 3, {vt3}
    v_lshrrev_b32 {vt0}, 2, {vt0}
    v_lshrrev_b32 {vt2}, 1, {vt1}
    v_and_b32 {vt1}, 1, {vt1}
    v_mul_u32_u24 {vqr[0]}, 10240, {vt2}
    v_mul_u32_u24 {vqr[1]}, {512 + 32}, {vt1}
    v_add3_u32 {vqr[0]}, {vqr[0]}, {vqr[1]}, {vt3}
    v_lshl_add_u32 {vqr[0]}, {vt0}, 6, {vqr[0]}
    s_lshl_b32 {s_t0}, {s_wc}, 10
    s_sub_u32 {s_t0}, {W0 + 8192}, {s_t0}
    v_add_u32 {vqr[0]}, {s_t0}, {vqr[0]}
    v_xor_b32 {vqr[1]}, 32, {vqr[0]}
    v_lshl_add_u32 {vt0}, {vt1}, 2, {vt0}
    v_lshl_add_u32 {vt0}, {vt2}, 4, {vt0}
    v_mul_u32_u24 {vt0}, 224, {vt0}
    s_mul_i32 {s_t0}, {s_wc}, 96
    s_add_u32 {s_t0}, {s_t0}, {W0}
    v_add3_u32 {vgr[0]}, {vt0}, {vt3}, {s_t0}
    v_add_u32 {vgr[1]}, 20480, {vgr[0]}""")
    if PRE >= 2 or PF0: p.add(gpf_addr)
    if PRE >= 3: p.add(rd_addr)
    p.e(f"""
    s_lshl_b32 {s_t0}, {s_mb}, 19
    s_lshl_b32 {s_t1}, {s_h}, 6
    s_mul_i32 {s_t2}, {s_h}, 224
    s_mov_b32 {sx[3]}, 0x00020000
    s_mov_b32 {sq[3]}, 0x00020000
    s_mov_b32 {sg[3]}, 0x00020000
    s_mov_b32 {spf[3]}, 0x00020000
    s_sub_u32 {sx[2]}, {S * D * 2}, {s_t0}
    s_sub_u32 {sq[2]}, {D * 3072 * 2}, {s_t1}
    s_sub_u32 {sg[2]}, {D * F * 2}, {s_t2}
    s_waitcnt lgkmcnt(0)
    """)
    pf.stamp(0)
    pf.trace_init(vtr, s_tr)
    if PRA == -1: p.e(f'v_writelane_b32 {vtr}, {s_hb}, 42')
    if ptrace == 3:
        p.e(f'v_writelane_b32 {vtr}, {s_hb}, 0\ns_mov_b32 {s_tr}, 1')
        pf.trace()
    p.e(f"""
    s_add_u32 {sx[0]}, {px[0]}, {s_t0}
    s_addc_u32 {sx[1]}, {px[1]}, 0
    s_add_u32 {sq[0]}, {pqkv[0]}, {s_t1}
    s_addc_u32 {sq[1]}, {pqkv[1]}, 0
    s_cmp_ge_u32 {s_w}, 2
    s_cselect_b64 {sg[0:2]}, {pwu}, {pwg}
    s_add_u32 {sg[0]}, {sg[0]}, {s_t2}
    s_addc_u32 {sg[1]}, {sg[1]}, 0
    s_cmp_eq_u32 {s_w}, 3
    s_cselect_b64 {spf[0:2]}, {sq[0:2]}, {sg[0:2]}
    s_cselect_b32 {spf[2]}, {sq[2]}, {sg[2]}
    s_cmp_eq_u32 {s_w}, 0
    s_cselect_b64 {spf[0:2]}, {sx[0:2]}, {spf[0:2]}
    s_cselect_b32 {spf[2]}, {sx[2]}, {spf[2]}
    """)
    if XP2: p.add([Ins(f'buffer_load_dword {vpd}, {vtmp[4]}, {sx}, 0 offen', 'pf')])
    if xpf: p.add([Ins(f'buffer_load_dword {vpd}, {vxp}, {spf}, 0 offen', 'pf')])
    if PF0: p.add(gpf_issue)
    if ptrace > 0: pf.trace()
    if PRE < 0: p.add(x_addr)
    emit(dma_x(0))
    if ptrace > 0: pf.trace()
    if PRE < 0: p.add(q_addr)
    w0 = dma_w(0)
    p.e(f's_add_u32 m0, {s_mw}, {W0 + 4096}')
    emit(w0[7:])
    if PRE < 1: p.add(gu[0])
    for j in range(7):
        if PRE < 1: p.add(gu[j + 1])
        emit([w0[j]])
    p.add(adv)
    if ptrace > 0: pf.trace()
    emit((dma_w(1) + dma_x(1))[:S1P])
    if PRE < 2 and not PF0 and not NOPF & 4: p.add(gpf_addr)
    if not PF0 and not NOPF & 4: p.add(gpf_issue)
    if PRE < 3: p.add(rd_addr)
    gx = [vtmp[4 * i:4 * i + 4] for i in range(4)]; gw = [vtmp[16:20], vtmp[20:24]]; t = vtmp[24:28]; z = [vt0, vt1]
    flag_setup = [[f's_add_u32 {sfl[0]}, {pws[0]}, {WS_FL}', f's_addc_u32 {sfl[1]}, {pws[1]}, 0']] + lines(f"""
    s_movk_i32 {sfl[2]}, 8192
    s_mov_b32 {sfl[3]}, 0x00020000
    s_mov_b32 {sws[0]}, {pws[0]}
    s_mov_b32 {sws[1]}, {pws[1]}
    s_mov_b32 {sws[2]}, {WS_SIZE}
    s_mov_b32 {sws[3]}, 0x00020000
    s_mov_b32 {sp2[3]}, 0x00020000
    s_lshl_b32 {s_t0}, {s_mb}, 5
    s_add_u32 {s_t0}, {s_t0}, {s_h}
    s_lshl_b32 {s_gs}, {s_t0}, 7
    s_lshl_b32 {s_t0}, {s_t0}, 2
    s_add_u32 {s_t0}, {s_t0}, {s_w}
    s_lshl_b32 {s_t0}, {s_t0}, 2
    v_mov_b32 {vt0}, {s_t0}
    v_cmp_eq_u32 vcc, 0, {vl}
    v_mov_b32 {vt3}, 0
    v_cndmask_b32 {vflag}, 2.0, {vt0}, vcc
    s_lshl_b32 {s_t0}, {s_h}, 3
    s_add_u32 {s_t0}, {s_t0}, {s_mb}
    s_lshl_b32 {s_t0}, {s_t0}, 2
    s_add_u32 {s_t0}, {s_t0}, {s_w}
    s_lshl_b32 {s_t0}, {s_t0}, 2
    s_add_u32 {s_t0}, {s_t0}, 4096
    v_mov_b32 {vt0}, {s_t0}
    buffer_store_dword {vt3}, {vflag}, {sfl}, 0 offen sc1
    v_cndmask_b32 {vflk}, 2.0, {vt0}, vcc
    s_lshl_b32 {s_t1}, {s_w}, 3
    buffer_store_dword {vt3}, {vflk}, {sfl}, 0 offen sc1
    s_add_u32 {s_gs}, {s_gs}, {s_t1}
    s_add_u32 {s_gs}, {s_gs}, {WS_G}
    s_lshl_b32 {s_t0}, {s_h}, 3
    s_lshl_b32 {s_t1}, {s_w}, 1
    s_add_u32 {s_t0}, {s_t0}, {s_t1}
    s_lshl_b32 {s_t2}, {s_t0}, 11
    s_mov_b32 {s_msk}, 0xffff0000
    v_lshlrev_b32 {z[0]}, 5, {vl}""")
    if ptrace > 0: pf.trace()
    p.e('WAITTAG S0')
    if ptrace > 0: pf.trace()
    p.e('s_barrier')
    if ptrace > 0: pf.trace()
    pf.stamp(1)

    def gate_ops():
        L = []
        for r in range(2):
            for j in range(8):
                xr = gx[2 * r + j // 4][j % 4]; wr_ = gw[j // 4][j % 4]
                L += [f'v_lshlrev_b32 {t[0]}, 16, {xr}', f'v_lshlrev_b32 {t[1]}, 16, {wr_}',
                      f'v_and_b32 {t[2]}, {s_msk}, {xr}', f'v_and_b32 {t[3]}, {s_msk}, {wr_}',
                      f'v_mul_f32 {t[0]}, {t[0]}, {t[1]}', f'v_mul_f32 {t[2]}, {t[2]}, {t[3]}',
                      f'v_cvt_pk_bf16_f32 {t[0]}, {t[0]}, {t[2]}', f'v_lshlrev_b32 {t[1]}, 16, {t[0]}',
                      f'v_and_b32 {t[2]}, {s_msk}, {t[0]}']
                if j == 0: L.append(f'v_add_f32 {z[r]}, {t[1]}, {t[2]}')
                else: L += [f'v_add_f32 {t[1]}, {t[1]}, {t[2]}', f'v_add_f32 {z[r]}, {z[r]}, {t[1]}']
        for mode in ('quad_perm:[1,0,3,2]', 'quad_perm:[2,3,0,1]', 'row_half_mirror', 'row_mirror'):
            for r in range(2): L.append(f'v_add_f32_dpp {z[r]}, {z[r]}, {z[r]} {mode} row_mask:0xf bank_mask:0xf')
        for op in ('v_permlane16_swap_b32', 'v_permlane32_swap_b32'):
            for r in range(2): L.append(f'v_mov_b32 {t[r]}, {z[r]}')
            for r in range(2): L.append(f'{op} {t[r]}, {z[r]}')
            for r in range(2): L.append(f'v_add_f32 {z[r]}, {z[r]}, {t[r]}')
        L += f"""v_and_b32 {t[1]}, 1, {vl}
        v_cmp_eq_u32 vcc, 1, {t[1]}
        v_and_b32 {t[3]}, 2, {vl}
        v_cndmask_b32 {t[0]}, {z[0]}, {z[1]}, vcc
        v_cvt_pk_bf16_f32 {t[0]}, {t[0]}, {t[0]}
        v_and_b32 {t[0]}, {s_msk}, {t[0]}
        v_mul_f32 {t[0]}, {hex(f32bits(-math.log2(math.e)))}, {t[0]}
        v_exp_f32 {t[0]}, {t[0]}
        v_cmp_eq_u32 vcc, 2, {t[3]}
        v_add_f32 {t[0]}, 1.0, {t[0]}
        v_rcp_f32 {t[0]}, {t[0]}
        v_lshlrev_b32 {t[3]}, 4, {t[3]}
        v_cvt_pk_bf16_f32 {t[0]}, {t[0]}, {t[0]}
        v_and_b32 {t[0]}, {s_msk}, {t[0]}
        v_sub_f32 {t[2]}, 1.0, {t[0]}
        v_cvt_pk_bf16_f32 {t[2]}, {t[2]}, {t[2]}
        v_and_b32 {t[2]}, {s_msk}, {t[2]}
        v_cndmask_b32 {t[0]}, {t[0]}, {t[2]}, vcc
        v_lshl_add_u32 {t[3]}, {t[1]}, 2, {t[3]}
        v_cmp_gt_u32 vcc, 4, {vl}
        v_cndmask_b32 {t[3]}, 2.0, {t[3]}, vcc
        buffer_store_dword {t[0]}, {t[3]}, {sws}, {s_gs} offen{st_mod}""".split('\n')
        return [x.strip() for x in L]

    def wread(n, st, wc):
        slot = wf[(10 * st + n) % NSLOT]
        nq = 4 if wc == 0 else 2
        L = []
        for ks in range(2):
            if n < nq: base = vqr[n % 2]; off = ks * 20480 + (1024 if (wc == 0 and n < 2) else 0); so = 256
            else: base = vgr[(n - nq) % 2]; off = ks * 10240 + ((n - nq) // 2) * 32; so = 1792
            off += st * (W1 - W0)
            L += [f'ds_read_b64_tr_b16 {slot[4 * ks + 2 * s:4 * ks + 2 * s + 2]}, {base} offset:{off + s * so}' for s in range(2)]
        return L
    def xread(m, ks, st):
        return f'ds_read_b128 {xf(st, m, ks)}, {vxr[ks]} offset:{st * (X1 - X0) + m * 2048}'

    for m in range(2):
        for ks in range(2): p.e(xread(m, ks, 0))
    p.e(f's_cmp_eq_u32 {s_wc}, 1')
    p.e(f's_cbranch_scc1 {name}_c1')

    def stage(st, wc, first=False, last=False, extra=None, fill=None, estep=2, postbar=None, nodma1=False, early=None, dens=2):
        slots = {}
        for j in range(10):
            jj = j + DIST
            if jj < 10: rd = wread(jj, st, wc)
            elif last: continue
            else: rd = wread(jj - 10, st ^ 1, wc)
            for i, x in enumerate(rd): place(slots, 16 * j + ((0, 2, 4, 6) if j < 9 else (0, 11, 13, 15))[i], x)
        bar = 16 * (10 - DIST)
        if not last:
            for i in range(8): place(slots, bar + 8 + (0, 2, 4, 6, 16, 18, 20, 22)[i], xread(i // 2, i % 2, st ^ 1))
            for i in range(8): place(slots, 144 + (2, 3, 4, 5, 7, 8, 9, 10)[i], xread(7 - i // 2, i % 2, st ^ 1))
        pos = []; c = 1.0
        for k in range(18):
            pos.append(int(c)); c += cg if k < 7 else (cq if k < 10 else cx)
        endc = int(c) - (160 - bar)
        pos0 = pos
        if first:
            sh = pos[S1P] - 1
            pos = [(int(F0 + (x - sh) * FS) + 160 - bar) if k >= S1P else -1 for k, x in enumerate(pos)]; endc = int(F0 + (endc + 160 - bar - sh) * FS)
        if not last:
            dl = dma_w(st ^ 1) + dma_x(st ^ 1)
            for k in range(18):
                c = pos[k] - (160 - bar)
                if c < 0: continue
                for x in dl[k][0]: place(slots, max(c - 1, 0), x)
                place(slots, c, dl[k][1])
            for i, x in enumerate(adv): place(slots, endc - 2 + i, x)
            if first: pos = pos0
            dl = dma_w(st) + dma_x(st)
            for k in range(18):
                c = bar + pos[k]
                if c >= 160 or nodma1: continue
                for x in dl[k][0]: place(slots, c - 1, x)
                place(slots, c, dl[k][1])
        if early:
            c = (pos[PFP] - (0 if first else 160 - bar) - 2) if PFP < 18 else endc + 1
            for x in early: place(slots, max(c, 0), x); c += 1
            if PFP >= 18: endc = c + 1
        c = endc + 1
        for x in (extra or []):
            if isinstance(x, list):
                for y in x: place(slots, c, y)
                c += estep; continue
            place(slots, c, x)
            c += 3 if (isinstance(x, Ins) or x.startswith('buffer')) else estep
        assert c < bar
        for i, x in enumerate(postbar or []):
            for y in (x if isinstance(x, list) else [x]):
                if y is not None: place(slots, bar + 3 + 2 * i, y)
        if FOFF:
            for c in sorted(slots):
                if c % 2 == 0 and c + 1 < 160 and len(slots.get(c + 1, [])) + len(slots[c]) <= FOFF:
                    slots[c + 1] = slots[c] + slots.get(c + 1, []); slots[c] = []
        fill = [x if isinstance(x, tuple) else (0, x) for x in (fill or [])]
        for c in range(160):
            n, r = divmod(c, 16); mi, ks = divmod(r, 2)
            m = mi if n % 2 == 0 else 7 - mi
            if c == bar and not last:
                p.e(f'WAITTAG S{st ^ 1} LGKM0')
                p.e('s_barrier')
                if ptrace > 1: pf.trace()
            if MWT and not first and c == 8: p.e('s_waitcnt lgkmcnt(4)')
            if MWT and r == 0 and 0 < n and c != bar and not (first and n < 3) and not last: p.e(f's_waitcnt lgkmcnt({8 if n <= 7 else 12})')
            w = wf[(10 * st + n) % NSLOT][4 * ks:4 * ks + 4]; x = xf(st, m, ks)
            a, b = (x, w) if (wc == 1 and n < 2) else (w, x)
            cin = '0' if (first and ks == 0) else str(acc[n][m])
            p.e(f'v_mfma_f32_16x16x32_bf16 {acc[n][m]}, {a}, {b}, {cin}')
            here = slots.get(c, [])
            p.add(here)
            if c >= 1:
                for _ in range(min(dens, 2 - len(here))):
                    if fill and fill[0][0] <= c:
                        x = fill.pop(0)[1]; p.add(x if isinstance(x, list) else [x])
        return [x[1] for x in fill]

    def toreg(tile, tmp):
        if tile.k == 'v': return tile
        for i in range(4): p.e(f'v_accvgpr_read_b32 {tmp[i]}, {tile[i]}')
        return tmp
    def pack(o, t0, t1):
        p.e(f'v_cvt_pk_bf16_f32 {o[0]}, {t0[0]}, {t0[1]}\nv_cvt_pk_bf16_f32 {o[1]}, {t0[2]}, {t0[3]}')
        p.e(f'v_cvt_pk_bf16_f32 {o[2]}, {t1[0]}, {t1[1]}\nv_cvt_pk_bf16_f32 {o[3]}, {t1[2]}, {t1[3]}')

    def pf_setup():
        L = f"""s_lshl_b32 {s_t0}, s2, 2
        s_add_u32 {s_t0}, {s_t0}, {s_w}
        s_mul_i32 {s_t1}, {s_t0}, {DL * 128}
        v_lshl_add_u32 {vt3}, {vl}, 7, {s_t1}
        v_cmp_gt_u32 vcc, {DL}, {vl}
        s_mov_b32 {sp2[0]}, {pwd[0]}
        s_mov_b32 {sp2[1]}, {pwd[1]}
        s_mov_b32 {sp2[2]}, {F * D * 2}
        v_cndmask_b32 {vt3}, 2.0, {vt3}, vcc
        s_mov_b32 {s_c1}, 0""".split('\n')
        return [x.strip() for x in L]
    def tp_setup():
        a_, b_ = vtmp[23], vtmp[22]
        return lines(f"""
        s_lshl_b32 {s_t0}, s2, 2
        s_add_u32 {s_t0}, {s_t0}, {s_w}
        s_lshr_b32 {s_t1}, {s_t0}, 4
        s_lshl_b32 {s_c1}, {s_t1}, 15
        s_lshl_b32 {s_c0}, {s_t1}, 12
        s_and_b32 {s_t0}, {s_t0}, 15
        s_lshr_b32 {s_t1}, {s_t0}, 1
        s_mul_i32 {s_t1}, {s_t1}, {224 * 4096}
        s_add_u32 {s_c0}, {s_c0}, {s_t1}
        s_and_b32 {s_t1}, {s_t0}, 1
        s_lshl_b32 {s_t1}, {s_t1}, 11
        s_add_u32 {s_c0}, {s_c0}, {s_t1}
        s_add_u32 {s_c0}, {s_c0}, {WS_T}
        s_lshl_b32 {s_t0}, {s_t0}, 7
        s_mov_b32 {sp2[0]}, {pwd[0]}
        s_mov_b32 {sp2[1]}, {pwd[1]}
        s_mov_b32 {sp2[2]}, {F * D * 2}
        v_lshrrev_b32 {a_}, 3, {vl}
        v_and_b32 {b_}, 2, {a_}
        v_lshlrev_b32 {b_}, 1, {b_}
        v_and_b32 {vt3}, 7, {vl}
        v_xor_b32 {b_}, {b_}, {vt3}
        v_lshl_add_u32 {b_}, {b_}, 4, {s_t0}
        v_lshl_add_u32 {vt3}, {a_}, 11, {b_}
        s_lshl_b32 {s_t0}, {s_w}, 12
        s_add_u32 {s_t0}, {s_t0}, {QS}
        v_lshrrev_b32 {a_}, 5, {vl}
        v_lshl_add_u32 {vtmp[20]}, {a_}, 10, {s_t0}
        v_bfe_u32 {a_}, {vl}, 2, 2
        v_lshl_add_u32 {vtmp[20]}, {a_}, 7, {vtmp[20]}
        v_bfe_u32 {a_}, {vl}, 3, 1
        v_lshl_add_u32 {vtmp[20]}, {a_}, 6, {vtmp[20]}
        v_bfe_u32 {a_}, {vl}, 4, 1
        v_lshl_add_u32 {vtmp[20]}, {a_}, 5, {vtmp[20]}
        v_and_b32 {a_}, 3, {vl}
        v_lshl_add_u32 {vtmp[20]}, {a_}, 3, {vtmp[20]}
        v_xor_b32 {vtmp[21]}, 64, {vtmp[20]}
        v_lshlrev_b32 {vtmp[22]}, 4, {vl}
        s_lshl_b32 {s_t0}, s2, 2
        s_add_u32 {s_t0}, {s_t0}, {s_w}
        s_and_b32 {s_t0}, {s_t0}, 15
        s_lshl_b32 {s_t0}, {s_t0}, 7
        v_lshl_add_u32 {a_}, {vl}, 11, {s_t0}
        v_cmp_gt_u32 vcc, 16, {vl}
        v_cndmask_b32 {a_}, 2.0, {a_}, vcc""") + [tp_touch()]
    def tp_touch():
        return Ins(f'buffer_load_dword {vpd}, {vtmp[23]}, {sp2}, {s_c1} offen', 'pf')
    def tp_load():
        return [f's_lshr_b32 {s_t0}, {s_mx}, 1', f's_add_u32 m0, {s_t0}, {QS}', f's_add_u32 {s_t1}, {s_c1}, {8 * 2048 - 1024}',
                Ins(f'buffer_load_dwordx4 {vt3}, {sp2}, {s_c1} offen lds', 'TP'), Ins(f'buffer_load_dwordx4 {vt3}, {sp2}, {s_t1} offen offset:1024 lds', 'TP')]
    def tp_store():
        L = ['WAITTAG TP'] + [f'ds_read_b64_tr_b16 {vtmp[4 * nb + 2 * s_:4 * nb + 2 * s_ + 2]}, {vtmp[20 + nb]} offset:{s_ * 512}' for nb in range(2) for s_ in range(2)]
        L = [L[:2]] + L[2:]
        L += [[f's_cmp_lt_u32 {s_c1}, {224 * 32768}', f's_cselect_b32 {s_t0}, {s_c0}, 2.0'], f's_add_u32 {s_c1}, {s_c1}, {64 * 32768}', f's_add_u32 {s_c0}, {s_c0}, {64 * 4096}', None, None]
        L += [Ins(f'buffer_store_dwordx4 {vtmp[4 * nb:4 * nb + 4]}, {vtmp[22]}, {sws}, {s_t0} offen offset:{nb * 1024}{st_mod}', 'HST') for nb in range(2)]
        if TT: L.insert(7, tp_touch())
        return L
    def pf3_setup():
        L = f"""s_mov_b32 {sp3[0]}, {pgw[0]}
        s_mov_b32 {sp3[1]}, {pgw[1]}
        s_movk_i32 {sp3[2]}, 2048
        s_mov_b32 {sp3[3]}, 0x00020000
        v_lshlrev_b32 {vwo}, 7, {vl}""".split('\n')
        L2 = f"""s_lshl_b32 {s_t0}, s2, 2
        s_add_u32 {s_t0}, {s_t0}, {s_w}
        s_lshl_b32 {s_t1}, {s_t0}, 11
        v_lshl_add_u32 {vwo}, {vl}, 7, {s_t1}
        v_cmp_gt_u32 {smask}, 16, {vl}
        s_mov_b32 {sp3[0]}, {pwo[0]}
        s_mov_b32 {sp3[1]}, {pwo[1]}
        s_mov_b32 {sp3[2]}, {D * D * 2}
        v_cndmask_b32 {vwo}, 2.0, {vwo}, {smask}""".split('\n')
        return [x.strip() for x in L] + [Ins(f'buffer_load_dword {vpd}, {vwo}, {sp3}, 0 offen', 'pf')] + [x.strip() for x in L2]
    def tlb_touch():
        return [f's_cmp_eq_u32 {s_w}, 1', f's_cselect_b32 {sp2[0]}, {pout[0]}, {pws[0]}', f's_cselect_b32 {sp2[1]}, {pout[1]}, {pws[1]}',
                f's_mov_b32 {sp2[2]}, {34 << 20}', f's_cmov_b32 {sp2[2]}, {S * D * 2}', f's_cmp_lt_u32 {s_w}, 2', f's_cselect_b32 {s_t0}, 0, 2.0',
                f'v_lshlrev_b32 {vt3}, 20, {vl}', Ins(f'buffer_load_dword {vpd}, {vt3}, {sp2}, {s_t0} offen sc1', 'pf')]
    def tlb_touch2():
        L = tlb_touch()
        return [L[0:5], L[5:7]] + L[7:]
    pf_wo = [f's_cmp_eq_u32 {s_cnt}, 2', f's_cselect_b32 {s_t0}, 0, 2.0', Ins(f'buffer_load_dword {vpd}, {vwo}, {sp3}, {s_t0} offen', 'pf')]
    gate_sel = [f's_cmp_eq_u32 {s_cnt}, 0', f's_cselect_b32 {s_t0}, {s_t2}, 2.0', f's_cselect_b32 {s_t1}, 0, 2.0',
                f's_cselect_b32 {sp3[0]}, {pgw[0]}, {sp3[0]}', f's_cselect_b32 {sp3[1]}, {pgw[1]}, {sp3[1]}', f's_cselect_b32 {sp3[2]}, 0x800, {sp3[2]}']
    gate_loads = [f'buffer_load_dwordx4 {gw[i]}, {z[0]}, {sp3}, {s_t1} offen offset:{16 * i}' for i in range(2)] + \
                 [f'buffer_load_dwordx4 {gx[i]}, {z[0]}, {sx}, {s_t0} offen offset:{(i // 2) * 2048 + (i % 2) * 16}' for i in range(4)]

    spins = []
    def check(cond_lines, reload_lines, tag):
        lab = f'{name}_{tag}'
        spins.append((lab, cond_lines, reload_lines))
        return cond_lines + [f's_cbranch_vccnz {lab}_spin', f'{lab}_ok:']

    def lines(s): return [x.strip() for x in s.strip().split('\n')]
    def rd(tile, tmp):
        if tile.k == 'v': return tile, []
        return tmp, [f'v_accvgpr_read_b32 {tmp[i]}, {tile[i]}' for i in range(4)]
    def packl(o, t0, t1):
        return [f'v_cvt_pk_bf16_f32 {o[0]}, {t0[0]}, {t0[1]}', f'v_cvt_pk_bf16_f32 {o[1]}, {t0[2]}, {t0[3]}',
                f'v_cvt_pk_bf16_f32 {o[2]}, {t1[0]}, {t1[1]}', f'v_cvt_pk_bf16_f32 {o[3]}, {t1[2]}, {t1[3]}']
    def mul4(d, a_, b_, pk):
        if pk: return [f'v_pk_mul_f32 {d[2*i:2*i+2]}, {a_[2*i:2*i+2]}, {b_ if b_.k == "s" else b_[2*i:2*i+2]}' for i in range(2)]
        return [f'v_mul_f32 {d[i]}, {b_[0] if b_.k == "s" else b_[i]}, {a_[i]}' for i in range(4)]
    def hpiece(n, j, o, pk):
        L = []; tt = []
        for mm in range(2):
            g_, l0 = rd(acc[n][2 * j + mm], vtmp[8 * mm:8 * mm + 4]); u_, l1 = rd(acc[n + 1][2 * j + mm], vtmp[8 * mm + 4:8 * mm + 8])
            L += l0 + l1 + mul4(g_, g_, u_, pk); tt.append(g_)
        return L + packl(o, tt[0], tt[1]) + [f'v_permlane16_swap_b32 {o[0]}, {o[2]}', f'v_permlane16_swap_b32 {o[1]}, {o[3]}']
    hreg = [acc[7][2 * j] for j in range(4)] + [acc[6][2 * j] for j in range(4)] + [acc[8][2 * j] for j in range(4)]

    vq = vdx[0]; vh = vdx[1]; vql = vdx[2]; vqq = vdx[3]
    s_b, s_qs = s_oq, R('s', sx.a, 2)
    def epi_setup(wc):
        L = lines(f"""
        v_and_b32 {vt0}, 15, {vl}
        v_lshrrev_b32 {vt1}, 4, {vl}
        v_lshlrev_b32 {vq}, 9, {vt1}
        v_lshlrev_b32 {vh}, 4, {vl}
        s_lshl_b32 {s_t0}, {s_h}, 6
        s_lshl_b32 {s_t1}, {s_mb}, 3
        s_add_u32 {s_t0}, {s_t0}, {s_t1}
        s_lshl_b32 {s_t1}, {s_wr}, 2
        s_add_u32 {s_t0}, {s_t0}, {s_t1}
        s_lshl_b32 {s_b}, {s_t0}, 12
        s_add_u32 {s_b}, {s_b}, {WS_KV}
        s_add_u32 {s_og}, {s_b}, 4096
        s_add_u32 {s_ox}, {s_b}, 8192
        s_add_u32 {s_c0}, {s_b}, 12288
        s_lshl_b32 {s_t0}, {s_mb}, 1
        s_add_u32 {s_t0}, {s_t0}, {s_wr}
        s_mul_i32 {s_t0}, {s_t0}, 288
        s_mul_i32 {s_t1}, {s_h}, 7
        s_add_u32 {s_t0}, {s_t0}, {s_t1}
        s_lshl_b32 {s_t0}, {s_t0}, 12
        s_add_u32 {s_hb}, {s_t0}, {WS_A + 4 * 4096 * wc}
        s_sub_u32 {s_c1}, {s_hb}, 4096
        s_lshl_b32 {s_t1}, {s_wr}, 14""")
        if wc == 0:
            L += lines(f"""
            v_lshrrev_b32 {vt2}, 3, {vt0}
            v_lshl_add_u32 {vq}, {vt2}, 8, {vq}
            v_and_b32 {vt2}, 7, {vt0}
            v_lshl_add_u32 {vq}, {vt2}, 4, {vq}
            v_add_u32 {vql}, {s_t1}, {vq}
            s_lshl_b32 {s_t1}, {s_wr}, 13
            s_add_u32 {s_t1}, {s_t1}, {QS}
            v_add_u32 {vqq}, {s_t1}, {vq}
            s_mov_b32 {s_qs[0]}, {hex(f32bits(QSCALE))}
            s_mov_b32 {s_qs[1]}, {s_qs[0]}""")
        else:
            L += [f'v_lshl_add_u32 {vq}, {vt0}, 4, {vq}', f'v_add_u32 {vql}, {s_t1}, {vq}']
        return L
    kvb = [s_b, s_og, s_ox, s_c0]
    def epi_early(wc, npk):
        F_ = []
        outs = [vtmp[16 + 4 * i:20 + 4 * i] for i in range(3)]
        if wc == 0:
            for m in range(7, -1, -1):
                o = acc[0][m]
                L = packl(o, acc[0][m], acc[1][m]) + [Ins(f'buffer_store_dwordx4 {o}, {vq}, {sws}, {kvb[m // 2]} offen offset:{(m % 2) * 128}{kv_mod}', 'KVST'),
                                                       f'ds_write_b128 {vql}, {o} offset:{(m // 2) * 4096 + (m % 2) * 128}']
                F_ += [(17 + 2 * (7 - m) + 4, x) for x in L]
            for i, m in enumerate(range(7, -1, -1)):
                o = outs[i % 3]
                t0, l0 = rd(acc[2][m], vtmp[0:4]); t1, l1 = rd(acc[3][m], vtmp[4:8])
                L = l0 + l1 + mul4(t0, t0, s_qs, i >= npk) + mul4(t1, t1, s_qs, i >= npk) + packl(o, t0, t1) + [f'ds_write_b128 {vqq}, {o} offset:{(m // 2) * 2048 + (m % 2) * 128}']
                F_ += [(49 + 2 * (7 - m) + 4, x) for x in L]
        else:
            for nt, js in ((0, range(4)), (1, range(3, -1, -1))):
                for j in js:
                    o = acc[nt][2 * j]
                    L = packl(o, acc[nt][2 * j], acc[nt][2 * j + 1]) + [Ins(f'buffer_store_dwordx4 {o}, {vq}, {sws}, {kvb[j]} offen offset:{2048 + nt * 256}{kv_mod}', 'KVST'),
                                                                         f'ds_write_b128 {vql}, {o} offset:{j * 4096 + 2048 + nt * 256}']
                    F_ += [((3 + 4 * j if nt == 0 else 31 - 4 * j) + 4, x) for x in L]
            for i, j in enumerate(range(3, -1, -1)):
                o = outs[i % 3]
                L = hpiece(2, j, o, i >= npk) + [Ins(f'buffer_store_dwordx4 {o}, {vh}, {sws}, {s_c1} offen offset:{j * 1024}{st_mod}', 'HST')]
                F_ += [(63 - 4 * j + 4, x) for x in L]
        for j in range(3, -1, -1):
            F_ += [(127 - 4 * j + 4, x) for x in hpiece(6, j, hreg[4 + j], PK)]
            F_ += [(127 - 4 * j + 4, x) for x in hpiece(4, j, hreg[j], PK)]
        k = max(i for i, x in enumerate(F_) if isinstance(x[1], Ins) and x[1].tag == 'KVST')
        F_[k + KF:k + KF] = [(0, [f'v_mov_b32 {vt0}, 1', 'WAITTAG KVST', Ins(f'buffer_store_dword {vt0}, {vflk}, {sfl}, 0 offen sc1', 'FL')])]
        return F_
    def epi_late():
        for j in range(3, -1, -1): p.add(hpiece(8, j, hreg[8 + j], True))

    announce_setup = lines(f"""
        s_mov_b32 {sdbg[0]}, {pdbg[0]}
        s_mov_b32 {sdbg[1]}, {pdbg[1]}
        s_movk_i32 {sdbg[2]}, 256
        s_mov_b32 {sdbg[3]}, 0x00020000
        s_and_b32 {s_ano}, s2, 7
        s_lshl_b32 {s_ano}, {s_ano}, 2
        s_and_b32 {s_grp}, {s_mb}, 3
        s_add_u32 {s_grp}, {s_grp}, 3
        v_mov_b32 {vt2}, 1
        v_cmp_eq_u32 {smask}, 0, v0
        v_cndmask_b32 {vt1}, 2.0, 0, {smask}""")
    if PT:
        k = announce_setup.index(f's_add_u32 {s_grp}, {s_grp}, 3')
        announce_setup[k:k + 1] = [[f's_cmp_lt_u32 {s_grp}, 2', f's_cselect_b32 {s_grp}, {s_grp}, 16'], f's_add_u32 {s_grp}, {s_grp}, 1']
    announce1 = [f's_add_u32 {s_t0}, {s_cnt}, 16', [f's_cmp_eq_u32 {s_t0}, {s_grp}', f's_cselect_b32 {s_t0}, {s_ano}, 2.0'],
                 f'buffer_atomic_add {vt2}, {vt1}, {sdbg}, {s_t0} offen offset:{DBG_CNT} sc1']
    announce = [f's_cmp_eq_u32 {s_cnt}, {s_grp}', f's_cselect_b32 {s_t0}, {s_ano}, 2.0',
                f'buffer_atomic_add {vt2}, {vt1}, {sdbg}, {s_t0} offen offset:{DBG_CNT} sc1']
    cnt_addr = [f'v_and_b32 {vpf}, 7, {vl}', f'v_lshlrev_b32 {vpf}, 2, {vpf}']
    cnt_load = f'buffer_load_dword {vcnt}, {vpf}, {sdbg}, 0 offen offset:{DBG_CNT} sc1'

    def code_setup(wc):
        lab = f'{name}_pc{wc}'
        nb_ = 1 + CW
        return [[f's_getpc_b64 {smask}', f'{lab}:'],
                f's_lshr_b32 {s_t0}, s2, 3', f's_lshl_b32 {s_t1}, {s_t0}, {7 + nb_}', f's_add_u32 {s_t1}, {s_t1}, {name}_c{wc}out-{lab}',
                f'v_and_b32 {vtmp[1]}, {(1 << nb_) - 1}, {vl}', f'v_lshl_add_u32 {vtmp[1]}, {vtmp[1]}, 7, {s_t1}',
                f's_lshl_b32 {s_t0}, {s_t0}, 2', f's_add_u32 {s_t0}, {s_t0}, {s_w}', f's_lshl_b32 {s_t0}, {s_t0}, 8',
                f's_add_u32 {s_t0}, {s_t0}, {name}_join-{lab}', f'v_and_b32 {vtmp[0]}, 1, {vl}', f'v_lshl_add_u32 {vtmp[0]}, {vtmp[0]}, 7, {s_t0}',
                f'v_and_b32 {vtmp[2]}, {1 << nb_}, {vl}', f'v_cmp_eq_u32 vcc, 0, {vtmp[2]}', f'v_cndmask_b32 {vcnt}, {vtmp[0]}, {vtmp[1]}, vcc',
                f'v_min_u32 {vcnt}, {name}_end-{lab}, {vcnt}', f'v_mov_b32 {vca[1]}, {smask[1]}',
                [f'v_add_co_u32 {vca[0]}, vcc, {smask[0]}, {vcnt}', f'v_addc_co_u32 {vca[1]}, vcc, 0, {vca[1]}, vcc']]
    def code_pf(wc):
        if not CONCE: return [Ins(f'global_load_dword {vpd}, {vca}, off', 'pf')]
        return [[f's_cmp_lg_u32 {s_cnt}, 1', f's_cbranch_scc1 {name}_nocp{wc}', Ins(f'global_load_dword {vpd}, {vca}, off', 'pfc'), f'{name}_nocp{wc}:']]
    assert P13 or not PT
    for wc in range(2):
        p.seg(f'c{wc}a')
        if wc == 1: p.e(f'{name}_c1:')
        p.add(wread(0, 0, wc))
        for m in range(2, 8):
            for ks in range(2): p.e(xread(m, ks, 0))
        for j in range(1, DIST): p.add(wread(j, 0, wc))
        left = stage(0, wc, first=True, early=[x for _ in range(PD - PD0 + 1) for x in pfetch()], fill=flag_setup + announce_setup + code_setup(wc) + pf3_setup() + ([Ins(f'buffer_load_dword {vpd}, {vwo}, {sp3}, 0 offen', 'pf')] if WOP == 1 else []) + (tlb_touch2() if TLB else []) + (tp_setup() if PT else pf_setup()))
        assert not left
        jitter(1)
        p.e(f's_mov_b32 {s_cnt}, 6')
        if P13:
            p.seg(f'c{wc}l1')
            p.e(f'{name}_c{wc}loop:')
            stage(1, wc, early=pfetch() + (tp_load() if PT else pfetch_d()), extra=announce1 if PT else None)
            p.seg(f'c{wc}l2')
            stage(0, wc, early=pfetch() + ([] if PT else pfetch_d()),
                  extra=([x for x in tp_store() if x is not None] if PT else []) + announce + (pf_wo if WOP == 0 else []) + code_pf(wc), estep=1 if PT else 2)
            p.e(f's_sub_u32 {s_cnt}, {s_cnt}, 1\ns_cmp_lg_u32 {s_cnt}, 0\ns_cbranch_scc1 {name}_c{wc}loop')
            p.seg(f'c{wc}last')
            p.e(f'{name}_c{wc}out:')
            gl = gate_ops()
            if ES: gl = stage(1, wc, extra=gate_sel + gate_loads, estep=1, fill=[(ES, x) for x in gl])
            else: stage(1, wc, extra=([Ins(f'buffer_load_dword {vpd}, {vwo}, {sp3}, 0 offen', 'pf')] if WOP == 2 else []) + gate_sel + gate_loads, estep=1)
        else:
            p.seg(f'c{wc}l1')
            p.e(f'{name}_c{wc}loop:')
            stage(1, wc, early=pfetch() + pfetch_d(), extra=gate_sel + gate_loads, estep=1)
            p.e(f's_cmp_eq_u32 {s_cnt}, 0\ns_cbranch_scc1 {name}_c{wc}out')
            p.seg(f'c{wc}l2')
            stage(0, wc, early=pfetch() + pfetch_d(), extra=announce + ([] if NOPF & 2 else pf_wo) + (code_pf(wc) if CPF else []))
            p.e(f's_sub_u32 {s_cnt}, {s_cnt}, 1\ns_branch {name}_c{wc}loop')
            p.seg(f'c{wc}last')
            p.e(f'{name}_c{wc}out:')
        jitter(2)
        if ES:
            rest = stage(0, wc, fill=gl + [(62, x) for x in cnt_addr + [cnt_load] + epi_setup(wc)], nodma1=True, dens=GD)
            rest = stage(1, wc, last=True, fill=rest + epi_early(wc, 99))
        else:
            rest = stage(0, wc, early=None if PT else pfetch_d(), fill=gate_ops(), nodma1=True, dens=GD)
            rest = stage(1, wc, last=True, fill=rest + cnt_addr + [cnt_load] + epi_setup(wc) + epi_early(wc, 99))
        pf.stamp(2)
        jitter(3)
        if ptrace == -1: pf.trace()
        k = max([i for i, x in enumerate(rest) if isinstance(x, str) and x.startswith('ds_write')] + [-1]) + 1
        for x in rest[:k]: p.add(x if isinstance(x, list) else [x])
        rest = rest[k:]
        if PKR:
            out = []; i = 0
            while i < len(rest):
                x = rest[i]; y = rest[i + 1] if i + 1 < len(rest) else None
                if isinstance(x, str) and isinstance(y, str) and x.startswith('v_mul_f32') and y.startswith('v_mul_f32'):
                    a0, b0, c0 = [int(t.strip()[1:]) for t in x[10:].split(',')]; a1, b1, c1 = [int(t.strip()[1:]) for t in y[10:].split(',')]
                    if a0 % 2 == 0 and b0 % 2 == 0 and (a1, b1, c1) == (a0 + 1, b0 + 1, c0 + 1):
                        out.append(f'v_pk_mul_f32 v[{a0}:{a1}], v[{b0}:{b1}], v[{c0}:{c1}]'); i += 2; continue
                out.append(x); i += 1
            rest = out
        va_, vb_ = vdg[0], vdg[1]
        p.e(f"""
        v_lshlrev_b32 {va_}, 4, {vl}
        s_lshl_b32 {s_t0}, {s_w}, 12
        s_add_u32 {s_t0}, {s_t0}, {QS}
        v_add_u32 {vb_}, {s_t0}, {va_}
        s_waitcnt lgkmcnt(0)
        s_barrier
        """)
        for q in range(2):
            for f in range(2): p.e(f'ds_read_b128 a[{40 + 8 * q + 4 * f}:{43 + 8 * q + 4 * f}], {vb_} offset:{q * 2048 + f * 1024}')
        for i in range(4): p.e(f'ds_read_b128 a[{56 + 4 * i}:{59 + 4 * i}], {va_} offset:{(i // 2) * 4096 + (i % 2) * 1024}')
        pre = [f'v_mfma_f32_32x32x16_bf16 v[{64 + 16 * q}:{79 + 16 * q}], a[{56 + 4 * f}:{59 + 4 * f}], a[{40 + 8 * q + 4 * f}:{43 + 8 * q + 4 * f}], ' + ('0' if f == 0 else f'v[{64 + 16 * q}:{79 + 16 * q}]')
               for q in range(2) for f in range(2)]
        rest = rest + [x for j in range(3, -1, -1) for x in hpiece(8, j, hreg[8 + j], True)]
        for i, x in enumerate(rest):
            p.add(x if isinstance(x, list) else [x])
            if i >= 24 and (i - 24) % 7 == 0 and pre: p.e(pre.pop(0))
        p.add(pre)
        if ptrace == -1: pf.trace()
        if ptrace == -1: pf.trace()
        if wc == 0: p.e(f's_branch {name}_join')
    p.seg('join')
    p.e(f'{name}_join:')
    p.add(check([f'v_cmp_gt_u32 vcc, 32, {vcnt}'], [cnt_load], 'cnt'))

    sa.p = s_base; va.p = v_base; aa.p = 0
    skv = sa(4); sA = sa(4); swd = sa(4); swo = sa(4); sout = sa(4)
    s_okv, s_left, s_p, s_oa, s_ow, s_wb, s_ob, s_ob2, s_thr, s_mt, s_nt, s_oo, s_spin, s_h1, s_h2, s_rt, s_win = [sa() for _ in range(17)]
    scp = sa(4)
    vl16, vkA, vkB, vdma, vo, vidx, vu0, vu1, vu2, vpa = [va() for _ in range(10)]
    vdd = [va() for _ in range(2)]; vdo = [va() for _ in range(2)]; vwr = [va() for _ in range(2)]
    vg = va(2); vog = va(4); vpoll = va(2, 2); vsc = va(2)
    ones = va(4, 4)
    vA = [va() for _ in range(4)]
    assert va.p <= 46 and va.p > vwo.a
    va2 = Alloc('v', va.p, 48)
    va.p = 48
    Sx = [va(16, 4) for _ in range(2)]; P = [va(8, 4) for _ in range(2)]; C = [va(16, 4) for _ in range(2)]
    acc3 = [[va(16, 4) for _ in range(4)] for _ in range(2)]
    O = [aa(16, 4) for _ in range(2)]; L = [aa(4, 4) for _ in range(2)]
    Q = [aa(8, 4) for _ in range(2)]; K = [aa(8, 4) for _ in range(2)]; V = [aa(8, 4) for _ in range(2)]
    Wf = [aa(4, 4) for _ in range(2)]
    Ab = [[aa(4, 4) for _ in range(4)] for _ in range(8)]
    if PT:
        NB = 4; DA = DW = 3
        Wb = [[Ab[4 + i // 2][2 * (i % 2)], Ab[4 + i // 2][2 * (i % 2) + 1]] for i in range(4)]

    p.e(f"""
    v_lshlrev_b32 {vl16}, 4, {vl}
    s_lshl_b32 {s_p}, {s_w}, 12
    """)
    assert Q[0].a == 40 and K[0].a == 56 and Sx[1].a == 64 and P[0].a == 80
    pf.stamp(3)
    jitter(4)
    def kread(kb, loop=False):
        base, o = (vl16, (kb % 16) * 4096) if not loop else ((vkA, kb * 4096) if kb < 8 else (vkB, (kb - 8) * 4096))
        return [f'ds_read_b128 {K[kb % 2][4*f:4*f+4]}, {base} offset:{o + f * 1024}' for f in range(2)]
    def vread(kb, loop=False):
        base, o = (vl16, (kb % 16) * 4096) if not loop else (vkA, kb * 4096)
        return [f'ds_read_b128 {V[kb % 2][4*f:4*f+4]}, {base} offset:{o + 2048 + f * 1024}' for f in range(2)]
    def qk(dst, kb, q, f, cin):
        return f'v_mfma_f32_32x32x16_bf16 {dst}, {K[kb % 2][4*f:4*f+4]}, {Q[q][4*f:4*f+4]}, {cin if f == 0 else dst}'
    def pv(j, f, zero=False):
        q = j % 2; kb = (j // 2) % 2
        return f'v_mfma_f32_32x32x16_bf16 {O[q]}, {V[kb][4*f:4*f+4]}, {P[q][4*f:4*f+4]}, {"0" if zero else O[q]}'
    def rsum(q): return f'v_smfmac_f32_16x16x64_bf16 {L[q]}, {ones}, {P[q]}, {vidx}'
    def cvt(j, i): return f'v_cvt_pk_bf16_f32 {P[j % 2][i]}, {Sx[j % 2][2*i]}, {Sx[j % 2][2*i+1]}'
    def rowmax(dst, src, init):
        lst = [src[i] for i in range(16)]
        if init:
            p.e(f'v_max3_f32 {dst}, {lst[0]}, {lst[1]}, {lst[2]}'); lst = lst[3:]
        while len(lst) >= 2:
            p.e(f'v_max3_f32 {dst}, {dst}, {lst[0]}, {lst[1]}'); lst = lst[2:]
        if lst: p.e(f'v_max_f32 {dst}, {dst}, {lst[0]}')
    def setc(q, m):
        p.e(f'v_mov_b32 {vu2}, {m}\nv_permlane32_swap_b32 {vu2}, {m}\nv_max_f32 {m}, {m}, {vu2}')
        for i in range(16): p.e(f'v_sub_f32 {C[q][i]}, 0, {m}')
    rowmax(vu0, R('v', 64, 16), True); rowmax(vu1, R('v', 80, 16), True)
    setc(0, vu0)
    p.e(qk(Sx[0], 0, 0, 0, C[0])); p.e(qk(Sx[0], 0, 0, 1, C[0]))
    setc(1, vu1)
    p.e(f"""
    v_bfe_u32 {vu0}, {vl}, 2, 1
    v_bfe_u32 {vu1}, {vl}, 1, 1
    v_mov_b32 {vu2}, 0x3f803f80
    v_or_b32 {vidx}, {vu0}, {vu1}
    v_cmp_eq_u32 vcc, 0, {vidx}
    v_xor_b32 {vu0}, 1, {vu0}
    v_or_b32 {vidx}, {vu0}, {vu1}
    v_cndmask_b32 {ones[0]}, 0, {vu2}, vcc
    v_cndmask_b32 {ones[1]}, 0, {vu2}, vcc
    v_cmp_eq_u32 vcc, 0, {vidx}
    v_and_b32 {vu0}, 1, {vl}
    v_mov_b32 {vu1}, 0xeeeeeeee
    v_cndmask_b32 {ones[2]}, 0, {vu2}, vcc
    v_cndmask_b32 {ones[3]}, 0, {vu2}, vcc
    v_cmp_eq_u32 vcc, 0, {vu0}
    v_mov_b32 {vu2}, 0x44444444
    v_add_u32 {vdma}, {s_p}, {vl16}
    v_cndmask_b32 {vidx}, {vu1}, {vu2}, vcc
    """)
    for q in range(2):
        for i in range(2): p.e(f'v_accvgpr_write_b32 {L[q][i]}, 0')
    p.e(f's_lshl_b32 {s_t0}, {s_h}, 18')
    srd(p, skv, pws, off_s=s_t0, off_imm=WS_KV, size=262144)

    def flag(val, tag, wait):
        return [f'v_mov_b32 {vu0}, {val}', f'WAITTAG {wait}', Ins(f'buffer_store_dword {vu0}, {vflag}, {sfl}, 0 offen sc1', tag)]
    def kvdma(m0line, tag, count=True):
        return [m0line] + [Ins(f'buffer_load_dwordx4 {vdma}, {skv}, {s_okv} offen offset:{i * 1024}{lm2} lds', tag) for i in range(4)] + \
               [f's_add_u32 {s_okv}, {s_okv}, 16384', f's_and_b32 {s_okv}, {s_okv}, 0x3ffff'] + \
               ([f's_sub_u32 {s_left}, {s_left}, 1', f's_cselect_b32 {skv[2]}, 0, {skv[2]}'] if count else [])
    NW = 4
    def wload(s):
        if PT: return [Ins(f'buffer_load_dwordx4 {Wb[s % 4][nb]}, {vl16}, {swd}, {s_oa} offen offset:{nb * 1024}{lm2}', f'D{s % NW}') for nb in range(2)]
        return [f's_add_u32 m0, {s_wb}, {(s % NW) * 2048}'] + \
               [Ins(f'buffer_load_dwordx4 {vdd[hh]}, {swd}, {s_ow} offen offset:{hh * 1024}{lm2} lds', f'D{s % NW}') for hh in range(2)] + [f's_add_u32 {s_ow}, {s_ow}, 32768']
    def hload(s):
        return [Ins(f'buffer_load_dwordx4 {Ab[s % NB][r]}, {vA[r]}, {sA}, {s_oa} offen{lm2}', f'A{s % NB}') for r in range(4)] + [f's_add_u32 {s_oa}, {s_oa}, 4096']
    def wrd(base, off, nb):
        if PT: return []
        return [f'ds_read_b64_tr_b16 {Wf[nb][2*s:2*s+2]}, {base[nb]} offset:{off + s * 512}' for s in range(2)]
    def gm(st, nb, tb, zero=False):
        return f'v_mfma_f32_32x32x16_bf16 {acc3[nb][tb]}, {Wb[st % 4][nb] if PT else Wf[nb]}, {Ab[st % NB][tb]}, {"0" if zero else acc3[nb][tb]}'
    def oload(t, m0line, tag):
        return [m0line] + [Ins(f'buffer_load_dwordx4 {vdo[hh]}, {swo}, {s_oo} offen offset:{hh * 1024} lds', tag) for hh in range(2)] + [f's_add_u32 {s_oo}, {s_oo}, 32768']

    zplan = {}
    def period(j, loop=False, item=None, misc=(), pre=(), zero=False):
        s = Sx[j % 2]
        E = [f'v_exp_f32 {s[i]}, {s[i]}' for i in range(16)]
        jn = j + 1
        m1 = qk(Sx[jn % 2], jn // 2, jn % 2, 0, C[jn % 2]); m2 = qk(Sx[jn % 2], jn // 2, jn % 2, 1, None)
        rd = kread((j + 1) // 2 + 1, loop) if j % 2 == 1 else vread(j // 2, loop)
        first = (j == 0 and not loop)
        zo = (j <= 2 and not loop)
        c7 = [] if first else [cvt(j - 1, 7)]
        p0 = [] if first else [pv(j - 1, 0, zo)]; p1 = [] if first else [pv(j - 1, 1)]; rs = [] if first else [rsum((j - 1) % 2)]
        V_ = [E[0]] + c7
        for i in range(7): V_ += [E[2 * i + 1], E[2 * i + 2], cvt(j, i)]
        V_.append(E[15])
        if item is None:
            p.add(V_[:1 + len(c7)]); V_ = V_[1 + len(c7):]
            if AW and j % 2 == 1: p.e('s_waitcnt lgkmcnt(0)')
            z_ = [] if loop else zplan.get(j, [])
            M = [m1] + z_[:1] + [m2] + p0 + z_[1:] + p1 + rs; G = []
        else:
            st, nb = item
            G = [gm(st, nb, tb if nb == 0 else 3 - tb, zero) for tb in range(4)]
            M = [G[0], m1, G[1], m2, G[2]] + p0 + [G[3]] + p1 + rs
        if loop and exp_ & 1: M = [x for x in M if x not in G]
        if loop and exp_ & 8: misc = [x for x in misc if not (isinstance(x, Ins) and x.tag and x.tag.startswith('D'))]
        misc = list(misc)
        for k in range(len(misc)):
            if isinstance(misc[k], str) and ' m0,' in misc[k]:
                q_ = k
                while q_ > 0 and not (isinstance(misc[q_ - 1], Ins) and misc[q_ - 1].text.endswith(' lds')): q_ -= 1
                misc.insert(q_, misc.pop(k))
        items = []
        for x in list(pre) + rd + list(misc):
            if items and isinstance(items[-1][-1], str) and items[-1][-1].split()[0] in ('WAITTAG', 's_cbranch_vccnz', 'v_cmp_gt_u32', 's_getpc_b64', 's_cmp_eq_u32'): items[-1].append(x)
            else: items.append([x])
        isvm = lambda it: any((y.text if isinstance(y, Ins) else y).startswith('buffer') for y in it)
        n = len(M); last = n - 1 if M[-1].startswith('v_smfmac') else n
        cost = lambda x: 8 if x.startswith('v_exp') else 4
        occ = [32 if '32x32' in x else 16 for x in M]
        iss = [8 if 'smfmac' not in x else SMC for x in M]
        ic = [sum((VMC if (y.text if isinstance(y, Ins) else y).startswith('buffer') else 4) for y in it if not (isinstance(y, str) and y.endswith(':'))) for it in items]
        vc = [cost(x) for x in V_]
        tailc = (4 if item is not None else 12 + (4 if j % 2 == 0 else 0))
        if item is None: iss[-1] += 0
        import functools
        @functools.lru_cache(None)
        def best(g, a_, b_, pv_):
            if g == n: return (0, ()) if (a_ == len(items) and b_ == len(V_)) else (10 ** 9, ())
            res = (10 ** 9, ())
            lo = 0
            if g == 0 and item is not None: lo = 1 + len(c7)
            for na in range(0, len(items) - a_ + 1):
                if g == 0 and na < min(len(items), npre): continue
                nv_ = sum(map(isvm, items[a_:a_ + na]))
                ca = sum(ic[a_:a_ + na])
                if g < n - 1 and ca > 64: break
                pen = (VPEN * max(0, nv_ - 1) + (VPEN // 2 if (nv_ and pv_) else 0)) + (0.01 * g * na)
                for nb_ in range(lo, len(V_) - b_ + 1):
                    f_ = iss[g] + ca + sum(vc[b_:b_ + nb_]) + (tailc if g == n - 1 else 0)
                    if f_ > 120 and g < n - 1: break
                    r_ = best(g + 1, a_ + na, b_ + nb_, nv_ > 0)
                    t_ = max(occ[g], f_) + pen + r_[0] + 0.001 * (f_ - occ[g]) ** 2
                    if t_ < res[0]: res = (t_, ((na, nb_),) + r_[1])
            return res
        npre = len([1 for it in items if any(y in pre for y in it if isinstance(y, str))])
        tot_, asg = best(0, 0, 0, False)
        assert tot_ < 10 ** 8
        if dbg == -1: print(j, loop, item, round(tot_), len(items), sum(map(isvm, items)))
        a_ = b_ = 0
        for q_, m_ in enumerate(M):
            p.add([m_])
            na, nb_ = asg[q_]
            for it in items[a_:a_ + na]: p.add(it)
            p.add(V_[b_:b_ + nb_]); a_ += na; b_ += nb_

    setup1 = lines(f"""
        s_lshl_b32 {s_okv}, {s_mb}, 15
        s_add_u32 {s_okv}, {s_okv}, 32768
        s_and_b32 {s_okv}, {s_okv}, 0x3ffff
        s_movk_i32 {s_left}, {13 - (PA // 8 + (0 if KS == 2 else 1))}
        v_and_b32 {vu1}, 31, {vl}
        v_lshlrev_b32 {vpa}, 2, {vu1}
        s_lshl_b32 {s_t2}, {s_h}, 7
        s_add_u32 {s_t2}, {s_t2}, 4096""")
    poll_kv = f'buffer_load_dword {vpoll[0]}, {vpa}, {sfl}, {s_t2} offen sc1'
    setup2 = lines(f"""
        s_and_b32 {s_t0}, s2, 7
        s_lshr_b32 {s_t1}, s2, 3
        s_lshr_b32 {s_mt}, {s_t0}, 1
        s_lshl_b32 {s_mt}, {s_mt}, 2
        s_and_b32 {s_nt}, {s_t0}, 1
        s_lshl_b32 {s_nt}, {s_nt}, 3
        s_and_b32 {s_t0}, {s_t1}, 3
        s_add_u32 {s_mt}, {s_mt}, {s_t0}
        s_lshr_b32 {s_t0}, {s_t1}, 2
        s_add_u32 {s_nt}, {s_nt}, {s_t0}
        s_lshl_b32 {s_t0}, {s_nt}, 7
        s_lshl_b32 {s_t1}, {s_w}, 19
        s_add_u32 {s_t1}, {s_t1}, {s_t0}
        s_add_u32 {swo[0]}, {pwo[0]}, {s_t1}
        s_addc_u32 {swo[1]}, {pwo[1]}, 0
        s_sub_u32 {swo[2]}, {D * D * 2}, {s_t1}
        s_mov_b32 {swo[3]}, 0x00020000
        s_add_u32 {swd[0]}, {pwd[0]}, {s_t0}
        s_addc_u32 {swd[1]}, {pwd[1]}, 0
        s_sub_u32 {swd[2]}, {F * D * 2}, {s_t0}
        s_mov_b32 {swd[3]}, 0x00020000
        s_mul_i32 {s_t0}, {s_mt}, {288 * 4096}
        s_add_u32 {s_t0}, {s_t0}, {WS_A}
        s_add_u32 {sA[0]}, {pws[0]}, {s_t0}
        s_addc_u32 {sA[1]}, {pws[1]}, 0
        s_mov_b32 {sA[2]}, {288 * 4096}
        s_mov_b32 {sA[3]}, 0x00020000
        s_mul_i32 {s_oa}, {s_w}, {56 * 4096}
        s_lshl_b32 {s_ow}, {s_oa}, 3
        s_mov_b32 {s_oo}, 0
        s_mul_i32 {s_wb}, {s_w}, 20480
        s_add_u32 {s_wb}, {s_wb}, {W0}
        v_lshrrev_b32 {vu1}, 3, {vl}
        v_and_b32 {vu2}, 2, {vu1}
        v_lshlrev_b32 {vu2}, 1, {vu2}
        v_and_b32 {vdd[1]}, 7, {vl}
        v_xor_b32 {vu2}, {vu2}, {vdd[1]}
        v_lshlrev_b32 {vu2}, 4, {vu2}
        v_lshl_add_u32 {vdd[0]}, {vu1}, 11, {vu2}
        v_add_u32 {vdd[1]}, {8 * 2048 - 1024}, {vdd[0]}
        v_lshrrev_b32 {vu1}, 5, {vl}
        v_lshl_add_u32 {vdo[0]}, {vu1}, 13, {vdd[0]}
        v_add_u32 {vdo[1]}, {4 * 2048 - 1024}, {vdo[0]}
        v_lshl_add_u32 {vwr[0]}, {vu1}, 10, {s_wb}
        v_bfe_u32 {vu1}, {vl}, 2, 2
        v_lshl_add_u32 {vwr[0]}, {vu1}, 7, {vwr[0]}
        v_bfe_u32 {vu1}, {vl}, 3, 1
        v_lshl_add_u32 {vwr[0]}, {vu1}, 6, {vwr[0]}
        v_bfe_u32 {vu1}, {vl}, 4, 1
        v_lshl_add_u32 {vwr[0]}, {vu1}, 5, {vwr[0]}
        v_and_b32 {vu1}, 3, {vl}
        v_lshl_add_u32 {vwr[0]}, {vu1}, 3, {vwr[0]}
        v_xor_b32 {vwr[1]}, 64, {vwr[0]}
        v_mov_b32 {vkB if PA == 48 else vkA}, {vl16}
        v_add_u32 {vkA if PA == 48 else vkB}, 32768, {vl16}
        s_nop 0
        s_nop 0""")
    setup2 = setup2[:-2]
    setup1 += [f's_add_u32 {s_h1}, {s_hb}, 4096', f's_add_u32 {s_h2}, {s_hb}, 8192']
    if PT:
        setup2 += lines(f"""
        s_lshr_b32 {s_t0}, {s_nt}, 1
        s_mul_i32 {s_t0}, {s_t0}, {224 * 4096}
        s_and_b32 {s_t1}, {s_nt}, 1
        s_lshl_b32 {s_t1}, {s_t1}, 11
        s_add_u32 {s_t0}, {s_t0}, {s_t1}
        s_add_u32 {s_t0}, {s_t0}, {WS_T}
        s_add_u32 {swd[0]}, {pws[0]}, {s_t0}
        s_addc_u32 {swd[1]}, {pws[1]}, 0
        s_mov_b32 {swd[2]}, {224 * 4096 - 2048}""")
    for r in range(4):
        setup2 += [f's_add_u32 {s_t0}, {s_w}, {r + 1}', f's_and_b32 {s_t0}, {s_t0}, 3', f's_lshl_b32 {s_t0}, {s_t0}, 10', f'v_add_u32 {vA[r]}, {s_t0}, {vl16}']
    setup3 = lines(f"""
        v_and_b32 {vu1}, 7, {vl}
        v_bfe_u32 {vu2}, {vl}, 4, 1
        v_lshl_add_u32 {vo}, {vu2}, 3, {vu1}
        v_bfe_u32 {vu2}, {vl}, 3, 1
        v_lshl_add_u32 {vo}, {vu2}, 4, {vo}
        v_lshrrev_b32 {vu2}, 3, {vo}
        v_lshlrev_b32 {vu2}, 7, {vu2}
        v_lshl_add_u32 {vsc[0]}, {vu1}, 2, {vu2}
        v_lshlrev_b32 {vo}, 4, {vo}
        v_lshrrev_b32 {vu2}, 5, {vl}
        v_lshl_add_u32 {vo}, {vu2}, 9, {vo}
        v_bfe_u32 {vu2}, {vl}, 3, 2
        v_lshlrev_b32 {vu2}, 7, {vu2}
        v_lshl_add_u32 {vsc[1]}, {vu1}, 2, {vu2}
        s_lshl_b32 {s_t0}, {s_mb}, 1
        s_add_u32 {s_t0}, {s_t0}, {s_wr}
        s_mul_i32 {s_t0}, {s_t0}, 288
        s_lshl_b32 {s_t1}, {s_h}, 1
        s_add_u32 {s_t0}, {s_t0}, {s_t1}
        s_add_u32 {s_t0}, {s_t0}, 224
        s_lshl_b32 {s_t0}, {s_t0}, 12
        s_lshl_b32 {s_t1}, {s_wc}, 11
        s_add_u32 {s_t0}, {s_t0}, {s_t1}
        s_add_u32 {s_ob}, {s_t0}, {WS_A}
        s_add_u32 {s_ob2}, {s_ob}, 4096
        s_mov_b32 {s_thr}, {hex(f32bits(2.0 ** 40 if not force_slow else 0.5))}
        v_lshlrev_b32 {vpa}, 3, {vl}
        s_lshr_b32 {s_t2}, {s_mt}, 1
        s_lshl_b32 {s_t2}, {s_t2}, 9""")
    poll_h = f'buffer_load_dwordx2 {vpoll}, {vpa}, {sfl}, {s_t2} offen sc1'
    cond2 = [f'v_min_u32 {vu1}, {vpoll[0]}, {vpoll[1]}', f'v_cmp_gt_u32 vcc, 2, {vu1}']
    og_loads = [f's_lshl_b32 {s_t0}, {s_mt}, 11', f's_add_u32 {s_t0}, {s_t0}, {WS_G + 32}']
    for r in range(4):
        og_loads += [f'v_lshrrev_b32 {vu1}, 10, {vA[r]}', f'v_lshl_add_u32 {vu1}, {vu1}, 9, {vsc[1]}', f'buffer_load_dword {vog[r]}, {vu1}, {sws}, {s_t0} offen']
    g_loads = [f's_lshl_b32 {s_t0}, {s_mb}, 2', f's_add_u32 {s_t0}, {s_t0}, {s_w}', f's_lshl_b32 {s_t0}, {s_t0}, 10', f's_add_u32 {s_t0}, {s_t0}, {WS_G}'] + \
              [f'buffer_load_dword {vg[q]}, {vsc[0]}, {sws}, {s_t0} offen offset:{q * 512}' for q in range(2)]
    NE = 16 if PT else 12
    def oslot(t):
        if t >= NE and NBAR: return vwr, (t - NE) * 2048, f's_add_u32 m0, {s_wb}, {(t - NE) * 2048}'
        if t >= NE: return vw2, (t - NE) * 2048, f's_add_u32 m0, {s_p}, {(t - NE) * 2048}'
        k = t if t < 4 else t - 4
        n0 = 0 if PT else NW
        if k < 10 - n0: return vwr, (n0 + k) * 2048, f's_add_u32 m0, {s_wb}, {(n0 + k) * 2048}'
        return vw3, (k - 10 + n0) * 2048, f's_add_u32 m0, {s_p}, {QS + (k - 10 + n0) * 2048}'
    WO = [R('a', aa.p + 8 * t, 8) for t in range(4)] + [R('a', 8 * t, 8) for t in range(11)] + [Sx[0][0:8]]
    assert Wf[0].a == 88 and aa.p + 32 <= 256
    vw3 = [va2(), va2()]
    def woread(t):
        base, off, _ = oslot(t)
        return [f'ds_read_b64_tr_b16 {WO[t][4*nb+2*s_:4*nb+2*s_+2]}, {base[nb]} offset:{off + s_ * 512}' for nb in range(2) for s_ in range(2)]
    vw2 = [C[0][0], C[0][1]]
    setup3 += [f's_add_u32 {s_t0}, {s_p}, {QS}', f's_sub_u32 {s_t0}, {s_t0}, {s_wb}', f'v_add_u32 {vw3[0]}, {s_t0}, {vwr[0]}', f'v_add_u32 {vw3[1]}, {s_t0}, {vwr[1]}']
    early_o = [oload(t, oslot(t)[2], 'WO') for t in range(NE)]
    assert PM % 2 == 0 and DW <= 3 and DA <= 7
    plan = {j: [] for j in range(PA)}; prej = {j: [] for j in range(PA)}
    plan[0] += setup1
    plan[1] += setup2[:21]; plan[2] += setup2[21:38]; plan[3] += setup2[38:55]; plan[4] += setup2[55:]; plan[KP] = (plan[KP] + [poll_kv]) if KP == 0 else ([poll_kv] + plan[KP])
    plan[KC] += check([f'v_cmp_gt_u32 vcc, 1, {vpoll[0]}'], [poll_kv], 'kv')
    d = kvdma(f's_add_u32 m0, {s_p}, 32768', 'KV0', False); plan[KC] += d[:3]; plan[KC + 1] += d[3:]
    d = kvdma(f's_add_u32 m0, {s_p}, 49152', 'KV1', False); plan[KC + 2] += d[:3]; plan[KC + 3] += d[3:]
    for i in range(5 if PA == 48 else 3):
        j = 13 + 8 * i
        prej[j] += [f'WAITTAG KV{i % 2}', 's_barrier']
        d = kvdma(f's_add_u32 m0, {s_p}, {(i % 4) * 16384}', f'KV{i % 2}', False)
        if KS == 2 and j == PA - 3: plan[j] += d[:2]; plan[j + 2] += d[:1] + [d[2]]
        elif KS and j >= PM: plan[j] += d[:3]; plan[j + 2] += d[:1] + d[3:]
        else: plan[j] += d[:5]; plan[j + 1] += d[5:]
    busy = (13, 21, 29, 37, 45)
    j = float(H0)
    for k in range(12):
        while int(j) in busy: j = int(j) + 1.0
        plan[int(j)].append(Ins(f'buffer_store_dwordx4 {hreg[k]}, {vl16}, {sws}, {(s_hb, s_h1, s_h2)[k // 4]} offen offset:{(k % 4) * 1024}{st_mod}', 'HST'))
        jl = int(j); j += HP
    plan[10] += setup3[:10]; plan[11] += setup3[10:20]; plan[12] += setup3[20:]
    def nextfree(j):
        while j in busy: j += 1
        return j
    jf = nextfree(jl + FG); plan[jf] += flag(2, 'FL', 'HST')
    ramp = []
    for i in range(max(DA, DW)):
        if i < DW: ramp += wload(i)
        if i < DA: ramp += hload(i)
    groups = []; curg = []; nv = 0
    for x in ramp:
        if isinstance(x, str) and ' m0,' in x and nv + 2 > RP: groups.append(curg); curg = []; nv = 0
        if isinstance(x, Ins):
            if nv >= RP and not x.text.endswith(' lds'): groups.append(curg); curg = []; nv = 0
            nv += 1
        curg.append(x)
    groups.append(curg)
    jc = PM - 1; k = len(groups)
    while k:
        jc -= 1
        if jc not in busy: k -= 1
    jp = jc - PG
    assert jp > jf, (jp, jf)
    if PT and GP:
        vgl = R('v', 224, 16)
        poll_all = [f'buffer_load_dwordx4 {vgl[4 * i:4 * i + 4]}, {vl16}, {sfl}, 0 offen offset:{i * 1024} sc1' for i in range(4)]
        cond_all = [f'v_min3_u32 {vu1}, {vgl[0]}, {vgl[1]}, {vgl[2]}'] + [f'v_min3_u32 {vu1}, {vu1}, {vgl[i]}, {vgl[i + 1]}' for i in range(3, 15, 2)] + \
                   [f'v_min_u32 {vu1}, {vu1}, {vgl[15]}', f'v_cmp_gt_u32 vcc, 2, {vu1}']
        plan[jp] += poll_all
    else: plan[jp] += [poll_h]
    jj = E0
    for t in range(0, 4, 2):
        jj = nextfree(jj + 1); plan[jj] += early_o[t] + early_o[t + 1]
    jj = nextfree(jj + 3)
    for t in range(4):
        plan[jj] += (['WAITTAG WO'] if t == 0 else []) + woread(t); jj = nextfree(jj + 1)
    for t in range(4, NE):
        plan[jj] += (['s_waitcnt lgkmcnt(0)'] if t == 4 else []) + early_o[t]
        if t % 2 == 1 or jj < jl: jj = nextfree(jj + 1)
    assert jj <= jc + 1, (jj, jc)
    if PT and GP: plan[jc] += check(cond_all, poll_all, 'h')
    else: plan[jc] += check(cond2, [poll_h], 'h') + [f's_lshl_b32 {s_t2}, {s_mb}, 9', poll_h]
    jj = jc
    for g_ in groups:
        plan[jj] += g_; jl2 = jj; jj = nextfree(jj + 1)
    assert jl2 <= PM - 2, (jl2, PM)
    plan[PM - 1] = ['WAITTAG D0 A0'] + wrd(vwr, 0, 0) + plan[PM - 1]
    NZ = PM == PA
    if NZ:
        plan[PM - 3] += og_loads
        plan[PM - 1] += check(cond2, [poll_h], 'g') + g_loads
        plan[jf + 1] += [f'v_accvgpr_write_b32 {Wf[1][i]}, 0' for i in range(4)]
        for k in range(8): zplan.setdefault(jf + 2 + k // 2, []).append(f'v_mfma_f32_32x32x16_bf16 {acc3[k // 4][k % 4]}, {Wf[1]}, {Wf[1]}, 0')
        assert jf + 6 < PM
    else:
        plan[PM + 2] += og_loads
        plan[PM + 4] += ([] if (PT and GP) else check(cond2, [poll_h], 'g')) + g_loads
    if PA == 48: plan[PA - 1] += [f's_xor_b32 {s_p}, {s_p}, 32768']
    vtp = [va2() for _ in range(3)] if TP1 else None
    L0 = (PA - PM) // 2 + (128 - PA) // 2
    nA = (56 - L0 - DA) * 4; nW = (56 - L0 - DW) * 4; nO = (16 - NE) * 4
    if TP1:
        plan[26] += lines(f"""
        s_and_b32 {s_t0}, {s_nt}, 7
        s_mul_i32 {s_t0}, {s_t0}, {nA}
        s_mul_i32 {s_t1}, {s_w}, {56 * 32}
        s_add_u32 {s_t0}, {s_t0}, {s_t1}
        s_add_u32 {s_t0}, {s_t0}, {(L0 + DA) * 32}
        v_add_u32 {vu1}, {s_t0}, {vl}
        v_lshlrev_b32 {vu1}, 7, {vu1}
        v_cmp_lt_u32 {smask}, {vl}, {nA}
        v_cndmask_b32 {vtp[0]}, 2.0, {vu1}, {smask}""")
        plan[27] += lines(f"""
        s_and_b32 {s_t1}, {s_mt}, 3
        s_mul_i32 {s_t0}, {s_t1}, {nO}
        s_add_u32 {s_t0}, {s_t0}, {NE * 16}
        v_add_u32 {vu1}, {s_t0}, {vl}
        v_lshlrev_b32 {vu1}, 11, {vu1}
        v_cmp_lt_u32 {smask}, {vl}, {nO}
        v_cndmask_b32 {vtp[2]}, 2.0, {vu1}, {smask}
        s_mul_i32 {s_t0}, {s_t1}, {nW}
        s_mul_i32 {s_t1}, {s_w}, {56 * 16}
        s_add_u32 {s_t0}, {s_t0}, {s_t1}
        s_add_u32 {s_t0}, {s_t0}, {(L0 + DW) * 16}
        v_add_u32 {vu1}, {s_t0}, {vl}
        v_lshlrev_b32 {vu1}, 11, {vu1}
        v_cmp_lt_u32 {smask}, {vl}, {nW}
        v_cndmask_b32 {vtp[1]}, 2.0, {vu1}, {smask}""")
    vc2 = R('v', 46, 2)
    if CP2:
        assert va2.p <= 46
        plan[26] += [f's_getpc_b64 {smask}', f'{name}_pct:', f's_lshr_b32 {s_t0}, s2, 3', f's_lshl_b32 {s_t0}, {s_t0}, 2', f's_add_u32 {s_t0}, {s_t0}, {s_w}',
                     f's_lshl_b32 {s_t0}, {s_t0}, 7', f's_add_u32 {s_t0}, {s_t0}, {name}_tail-{name}_pct', f's_min_u32 {s_t0}, {s_t0}, {name}_end-{name}_pct',
                     f's_add_u32 {smask[0]}, {smask[0]}, {s_t0}', f's_addc_u32 {smask[1]}, {smask[1]}, 0',
                     f'v_mov_b32 {vc2[0]}, {smask[0]}', f'v_mov_b32 {vc2[1]}, {smask[1]}']
    def mixed(j, st, nb, loop, misc=(), pre=(), zero=False):
        dw = wload(st + DW); da = hload(st + DA)
        if loop and exp_ & 32:
            dw = [Ins(f'buffer_load_dwordx4 a[{224 + 8 * (st % 4) + 4 * hh}:{227 + 8 * (st % 4) + 4 * hh}], {vl16}, {swd}, {s_ow} offen offset:{hh * 1024}', f'D{(st + DW) % NW}') for hh in range(2)] + dw[3:]
            if nb == 0: period(j, loop, (st, 0), misc=dw + da[:1] + list(misc), pre=pre, zero=zero)
            else:
                p.e(f'WAITTAG D{(st + 1) % NW} A{(st + 1) % NB} LGKM0')
                period(j, loop, (st, 1), misc=da[1:] + list(misc), pre=pre, zero=zero)
            return
        if nb == 0:
            period(j, loop, (st, 0), misc=wrd(vwr, (st % NW) * 2048, 1) + dw + da[:AS] + list(misc), pre=pre, zero=zero)
        else:
            p.e(f'WAITTAG D{(st + 1) % NW} A{(st + 1) % NB} LGKM0')
            period(j, loop, (st, 1), misc=wrd(vwr, ((st + 1) % NW) * 2048, 0) + da[AS:] + list(misc), pre=pre, zero=zero)
    p.seg('partA')
    for j in range(PA):
        if ptrace == -1 and j in (0, 1, 5, 7, 9, 13, 15, 21, jf, jf + 1, jc, jc + 1, PM): pf.trace()
        if j in (9, 19, 27, 41): jitter(5 + j)
        if j < PM: period(j, misc=plan[j], pre=prej[j])
        else: mixed(j, (j - PM) // 2, j % 2, False, misc=plan[j], pre=prej[j], zero=(j < PM + 2))
    if ptrace == -1: pf.trace()
    ST0 = (PA - PM) // 2
    pf.stamp(4)
    jitter(6)
    p.e(f's_mov_b32 {s_cnt}, {(128 - PA) // 16}')
    p.seg('loop')
    p.e(f'{name}_loop:')
    for j in range(16):
        misc = []; pre = []
        if j in (5, 13):
            pre = [f'WAITTAG KV{1 if j == 5 else 0}', 's_barrier']
        if KS == 0 and j in (5, 6, 13, 14):
            d = kvdma(f's_xor_b32 m0, {s_p}, 49152' if j < 8 else f's_mov_b32 m0, {s_p}', 'KV1' if j < 8 else 'KV0')
            misc = d[:5] if j in (5, 13) else d[5:]
        if KS == 1 and j in (5, 7, 13, 15):
            d = kvdma(f's_xor_b32 m0, {s_p}, 49152' if j < 8 else f's_mov_b32 m0, {s_p}', 'KV1' if j < 8 else 'KV0')
            misc = d[:3] if j in (5, 13) else d[:1] + d[3:]
        if KS == 2 and j % 2 == 1:
            first_ = 5 <= j < 13
            d = kvdma(f's_xor_b32 m0, {s_p}, 49152' if first_ else (f's_mov_b32 m0, {s_p}' if j >= 13 else f's_xor_b32 m0, {s_p}, 32768'), 'KV1' if first_ else 'KV0')
            k = ((j - 5) // 2) % 4
            misc = d[:1] + [d[1 + k]] + (d[5:] if k == 3 else [])
        if TP1 and j == 2: misc = misc + [f's_cmp_eq_u32 {s_cnt}, 1', f's_cselect_b32 {s_t0}, 0, 2.0']
        if TP1 and j in (4, 6, 8): misc = misc + [Ins(f'buffer_load_dword {vpd}, {vtp[j // 2 - 2]}, {(sA, swd, swo)[j // 2 - 2]}, {s_t0} offen', 'pf')]
        if j == 8 and CP2: misc = misc + [Ins(f'global_load_dword {vpd}, {vc2}, off', 'pf')]
        if j == 15: misc = misc + [f's_xor_b32 {s_p}, {s_p}, 32768', f'v_xor_b32 {vkA}, 0x8000, {vkA}', f'v_xor_b32 {vkB}, 0x8000, {vkB}']
        if EXA:
            lastst = ST0 + 7 + DA
            ex = [(k, r) for k in range(EXA) for r in range(4)]
            if j == EXJ - 1:
                misc = misc + [f's_add_u32 {s_t0}, {s_oa}, {(8 - (j + 1) // 2) * 4096}', f's_cmp_eq_u32 {s_cnt}, 1', f's_cselect_b32 {s_t0}, {s_t0}, 2.0']
            per = -(-len(ex) // (16 - EXJ))
            if j >= EXJ:
                for k, r in ex[(j - EXJ) * per:(j - EXJ + 1) * per]:
                    st_ = lastst + 1 + k
                    assert st_ - NB < ST0 + j // 2, (st_, j)
                    if r == 0 and k: misc = misc + [f's_add_u32 {s_t0}, {s_t0}, 4096']
                    misc = misc + [Ins(f'buffer_load_dwordx4 {Ab[st_ % NB][r]}, {vA[r]}, {sA}, {s_t0} offen{lm2}', f'A{st_ % NB}')]
        if j in (4, 11): jitter(30 + j)
        if ptrace == -3:
            p.e(f's_memtime {s_pt[2:4]}\ns_waitcnt lgkmcnt(0)\nv_writelane_b32 {vtr}, {s_pt[2]}, {j}')
        mixed(j, ST0 + j // 2, j % 2, True, misc=misc, pre=pre)
    p.e(f's_sub_u32 {s_cnt}, {s_cnt}, 1\ns_cmp_lg_u32 {s_cnt}, 0\ns_cbranch_scc1 {name}_loop')

    p.seg('tail')
    p.e(f'{name}_tail:')
    pf.stamp(5)
    jitter(7)
    if ptrace == -2: pf.trace()
    p.add([cvt(15, 7), pv(15, 0), pv(15, 1), rsum(1)])
    def lsum():
        p.e(f"""
        v_accvgpr_read_b32 {vsc[0]}, {L[0][0]}
        v_accvgpr_read_b32 {vu0}, {L[0][1]}
        v_accvgpr_read_b32 {vsc[1]}, {L[1][0]}
        v_accvgpr_read_b32 {vu1}, {L[1][1]}
        v_add_f32 {vsc[0]}, {vsc[0]}, {vu0}
        v_add_f32 {vsc[1]}, {vsc[1]}, {vu1}
        """)
    lsum()
    p.e(f"""
    v_cmp_nle_f32 vcc, {vsc[0]}, {s_thr}
    v_cmp_nle_f32 {smask}, {vsc[1]}, {s_thr}
    s_or_b64 vcc, vcc, {smask}
    s_cbranch_vccnz {name}_slow
    """)
    p.seg('epi')
    p.e(f'{name}_epi:')
    LATE0 = ST0 + (128 - PA) // 2
    vs2 = [P[1][0:2], P[1][2:4]]
    vq_ = []
    o_next = NE
    for st_ in range(LATE0, 56):
        if st_ + DW < 56: vq_.append((st_ + DW - NW + 1, wload(st_ + DW)))
        if st_ + DA + EXA < 56: vq_.append((st_ + DA + EXA - NB + 1, hload(st_ + DA + EXA)))
        if o_next < 16 and not NBAR: vq_.append((0, oload(o_next, oslot(o_next)[2], 'WO'))); o_next += 1
    last_o = []
    if NBAR:
        for t in range(NE, 15): vq_.append((53 + t - NE, oload(t, oslot(t)[2], 'WO')))
        last_o = oload(15, oslot(15)[2], 'WO2'); o_next = 16
    assert o_next == 16
    cur = []
    def onevm(st):
        nonlocal cur
        if not cur and vq_ and vq_[0][0] <= st: cur = list(vq_.pop(0)[1])
        if not cur: return False
        while cur:
            x = cur.pop(0); p.add([x])
            if isinstance(x, Ins): break
        while cur and not any(isinstance(y, Ins) for y in cur): p.add([cur.pop(0)])
        return True
    p.e(f"""
    v_rcp_f32 {vsc[0]}, {vsc[0]}
    v_rcp_f32 {vsc[1]}, {vsc[1]}
    {f's_add_u32 {s_oa}, {s_oa}, {EXA * 4096}' if EXA else ''}
    s_mul_i32 {s_p}, {s_wr}, 49152
    s_lshl_b32 {s_t0}, {s_wc}, 13
    s_add_u32 {s_p}, {s_p}, {s_t0}
    {'' if NBAR else 's_barrier'}
    v_mul_f32 {vs2[0][0]}, {vsc[0]}, {vg[0]}
    v_mul_f32 {vs2[1][0]}, {vsc[1]}, {vg[1]}
    v_mov_b32 {vs2[0][1]}, {vs2[0][0]}
    v_mov_b32 {vs2[1][1]}, {vs2[1][0]}
    """)
    for q in range(2):
        for f in range(2):
            t_ = Sx[q][8 * f:8 * f + 8]
            if EV: onevm(LATE0)
            for i in range(8): p.e(f'v_accvgpr_read_b32 {t_[i]}, {O[q][8*f+i]}')
            if EV > 1: onevm(LATE0)
            for i in range(4): p.e(f'v_pk_mul_f32 {t_[2*i:2*i+2]}, {t_[2*i:2*i+2]}, {vs2[q]}')
            for i in range(4): p.e(f'v_cvt_pk_bf16_f32 {t_[i]}, {t_[2*i]}, {t_[2*i+1]}')
            p.e(f'buffer_store_dwordx4 {t_[0:4]}, {vo}, {sws}, {(s_ob, s_ob2)[f]} offen offset:{q * 1024}{st_mod}', 'OST')
    vout = C[0][4]; vrw = [C[0][5], C[0][6], C[0][7]]; vrr = C[0][8]
    sk = [s_h1, s_h2, s_hb, s_left]
    vA2 = [[vA[r], Sx[1][3 * r], Sx[1][3 * r + 1], Sx[1][3 * r + 2]] for r in range(4)]
    late2 = lines(f"""
        s_sub_u32 {s_t0}, {s_p}, {s_wb}
        v_add_u32 {vw2[0]}, {s_t0}, {vwr[0]}
        v_add_u32 {vw2[1]}, {s_t0}, {vwr[1]}
        s_lshl_b32 {s_t0}, {s_mt}, 18
        s_lshl_b32 {s_t1}, {s_nt}, 7
        s_add_u32 {s_t0}, {s_t0}, {s_t1}
        s_add_u32 {sout[0]}, {pout[0]}, {s_t0}
        s_addc_u32 {sout[1]}, {pout[1]}, 0
        s_sub_u32 {sout[2]}, {S * D * 2}, {s_t0}
        s_mov_b32 {sout[3]}, 0x00020000
        v_and_b32 {vu1}, 31, {vl}
        s_lshl_b32 {s_t0}, {s_w}, 16
        v_lshl_add_u32 {vout}, {vu1}, 11, {s_t0}
        v_lshrrev_b32 {vu1}, 5, {vl}
        v_lshl_add_u32 {vout}, {vu1}, 4, {vout}
        v_bfe_u32 {vu1}, {vl}, 1, 3
        v_and_b32 {vu2}, 1, {vl}
        v_lshlrev_b32 {vu2}, 2, {vu2}
        v_lshl_add_u32 {vpa}, {vu1}, 4, {vu2}
        s_lshr_b32 {s_t2}, {s_mt}, 1
        s_lshl_b32 {s_t2}, {s_t2}, 9
        s_lshl_b32 {s_t0}, {s_w}, 7
        s_add_u32 {s_t2}, {s_t2}, {s_t0}
        s_and_b32 {s_t0}, {s_mt}, 1
        s_lshl_b32 {s_t0}, {s_t0}, 3
        s_add_u32 {s_t2}, {s_t2}, {s_t0}
        s_mul_i32 {s_t0}, {s_w}, 24576
        v_add_u32 {vrr}, {s_t0}, {vl16}
        s_lshl_b32 {s_t1}, {s_w}, 16
        s_add_u32 {s_t1}, {s_t1}, {224 * 4096}""")
    late2[6:8] = [late2[6:8]]
    for r in range(3):
        late2 += [f'v_lshrrev_b32 {vu1}, 10, {vA[r]}', f'v_mul_u32_u24 {vu1}, 24576, {vu1}', f'v_add_u32 {vu1}, {(2 - r) * 8192}, {vu1}', f'v_add_u32 {vrw[r]}, {vu1}, {vl16}']
    for i in range(4):
        late2 += [f's_add_u32 {sk[i]}, {s_t1}, {i * 16384}']
    for r in range(4):
        for i in range(1, 4): late2.append(f'v_add_u32 {vA2[r][i]}, {i * 4096}, {vA[r]}')
    vtw = [C[1][i] for i in range(4)]; vtr_ = C[1][4]; sf = [0, s_ow, s_oo, s_ob]
    fin_setup = lines(f"""
        s_lshl_b32 {s_t0}, {s_w}, 12
        s_add_u32 {s_t0}, {s_t0}, {QS}
        v_and_b32 {vu1}, 31, {vl}
        v_lshl_add_u32 {vtw[0]}, {vu1}, 7, {s_t0}
        v_lshrrev_b32 {vu2}, 5, {vl}
        v_xor_b32 {vu2}, {vu2}, {vl}
        v_and_b32 {vu2}, 7, {vu2}
        v_lshl_add_u32 {vtw[0]}, {vu2}, 4, {vtw[0]}
        v_xor_b32 {vtw[1]}, 32, {vtw[0]}
        v_xor_b32 {vtw[2]}, 64, {vtw[0]}
        v_xor_b32 {vtw[3]}, 0x60, {vtw[0]}
        v_lshrrev_b32 {vu1}, 3, {vl}
        v_xor_b32 {vu2}, {vu1}, {vl}
        v_and_b32 {vu2}, 7, {vu2}
        v_lshl_add_u32 {vtr_}, {vu1}, 7, {s_t0}
        v_lshl_add_u32 {vtr_}, {vu2}, 4, {vtr_}
        v_and_b32 {vu2}, 7, {vl}
        v_lshlrev_b32 {vu2}, 4, {vu2}
        s_lshl_b32 {s_t0}, {s_w}, 16
        v_lshl_add_u32 {vout}, {vu1}, 11, {s_t0}
        v_add_u32 {vout}, {vout}, {vu2}""") + [f's_mov_b32 {sf[i]}, {i * 16384}' for i in range(1, 4)]
    poll_o = f'buffer_load_dword {vpoll[0]}, {vpa}, {sfl}, {s_t2} offen sc1'
    AB = [Ab[i // 4][i % 4] for i in range(32)]
    abfree = [48 + i // 4 for i in range(32)]
    if PT:
        AB = [Ab[6 + i // 4][i % 4] for i in range(8)]; abfree = [0] * 8
        for b in range(4):
            AB += Ab[b] + Wb[b]; abfree += [52 + b] * 6
    def aload(i):
        r, t = divmod(i, 16)
        return f'buffer_load_dwordx4 {AB[i % 32]}, {vA2[r][t % 4]}, {sA}, {sk[t // 4]} offen{lm2}'
    a_next = 0; side = list(late2); checked = False
    for st in range(LATE0, 56):
        if ptrace == -2: pf.trace()
        n0 = wrd(vwr, (st % NW) * 2048, 1)
        n1 = ([f'WAITTAG D{(st + 1) % NW} A{(st + 1) % NB}'] + wrd(vwr, ((st + 1) % NW) * 2048, 0)) if st < 55 else []
        if st == LATE0 + 1: side = [flag(3, 'FL', 'OST')] + side
        if st == LATE0 + 2: side += [x for t in range(4, NE) for x in woread(t)]
        for c in range(8):
            nb, tb = divmod(c, 4)
            p.e(gm(st, nb, tb if nb == 0 else 3 - tb))
            if c == 0: p.add(n0)
            if c == 4: p.add(n1)
            if st == LATE0 + OC - PO and c == 1:
                assert not any(isinstance(y, str) and (str(vpa) + ',' in y or str(s_t2) + ',' in y) for y in side)
                p.e(poll_o)
            if st == LATE0 + OC and c == 1:
                p.add(check([f'v_cmp_gt_u32 vcc, 3, {vpoll[0]}'], [poll_o], 'o')); checked = True
                if TP2:
                    p.e(f's_and_b32 {s_t0}, {s_nt}, 7\ns_lshl_b32 {s_t0}, {s_t0}, 13\ns_add_u32 {s_t0}, {s_t0}, {sk[0]}\nv_lshlrev_b32 {vu1}, 7, {vl}')
                    p.add([Ins(f'buffer_load_dword {vpd}, {vu1}, {sA}, {s_t0} offen', 'pf')])
            if onevm(st): pass
            elif checked and a_next < AL and abfree[a_next] < st and st >= 56 - ALS:
                assert not any(y in late2 for y in side)
                p.e(aload(a_next)); a_next += 1
            for _ in range(3 if st < LATE0 + 2 else 2):
                if side:
                    x = side.pop(0); p.add(x if isinstance(x, list) else [x])
    assert not cur and not vq_ and checked and not side
    if ptrace == -2: pf.trace()
    pf.stamp(6)
    jitter(8)
    def scale(r): return [f'v_mul_f32 {acc3[nb][r][i]}, {acc3[nb][r][i]}, {vog[r]}' for nb in range(2) for i in range(16)]
    p.add(last_o)
    if not NBAR: p.e('WAITTAG WO')
    rds = [x for t in range(NE, 16) for x in woread(t)]
    rds_late = []
    if NBAR: rds_late = [None] * 24 + [['WAITTAG WO', rds[0]]] + rds[1:12] + [['WAITTAG WO2', rds[12]]] + rds[13:]; rds = []
    for k, x in enumerate(scale(0)):
        p.e(x)
        if k % 4 == 1 and rds: p.e(rds.pop(0))
        if k % 8 == 3 and a_next < AL + 4: p.e(aload(a_next)); a_next += 1
    side = []
    for k, x in enumerate(scale(1)):
        side.append(x)
        if rds: side.append(rds.pop(0))
    assert not rds
    if NBAR:
        mix = []
        while side or rds_late:
            if side: mix.append(side.pop(0))
            if rds_late:
                x = rds_late.pop(0)
                if x: mix.append(x)
        side = mix
    def rdpart(sl, dst): return [f'ds_read_b128 {acc3[n_][dst][4*j:4*j+4]}, {vrr} offset:{sl * 8192 + (n_ * 4 + j) * 1024}' for n_ in range(2) for j in range(4)]
    def addpart(src): return [f'v_add_f32 {acc3[n_][0][e]}, {acc3[n_][0][e]}, {acc3[n_][src][e]}' for n_ in range(2) for e in range(16)]
    wr = []; dens = 2
    for i in range(64):
        r, t = divmod(i, 16)
        if ptrace == -2 and i % 8 == 0: pf.trace()
        if i in (17, 30, 44, 52): jitter(60 + i)
        for nb in range(2):
            if nb == 0:
                if i == 16: side += scale(2)
                if i == 16 + 2:
                    p.e('s_waitcnt lgkmcnt(0)\ns_barrier')
                if i == 32:
                    assert not side
                    side += scale(3); dens = 3 if FT else 2
                if i == 33 and FT:
                    side += fin_setup
                if i == 32 + 11:
                    assert not wr and not side
                    p.e('s_waitcnt lgkmcnt(0)\ns_barrier')
                    side += rdpart(2, 0) + rdpart(1, 1) + [None] * 4 + addpart(1); dens = 3
                if i == 48 + 7:
                    assert not wr and not side
                    p.e('s_waitcnt lgkmcnt(0)\ns_barrier')
                    side += rdpart(0, 2) + [None] * 6 + addpart(2)
            p.e(f'v_mfma_f32_32x32x16_bf16 {acc3[nb][r]}, {WO[t][4*nb:4*nb+4]}, {AB[i % 32]}, {acc3[nb][r]}')
            if a_next < 64 and a_next <= i + 30 and (nb == 0 or a_next < i + ALM): p.e(aload(a_next)); a_next += 1
            if wr and t >= 2 and (nb == 1 or r == 3): p.e(wr.pop(0))
            for _ in range(dens):
                if side:
                    x = side.pop(0)
                    if x: p.add(x if isinstance(x, list) else [x])
        if t == 15 and r < 3:
            assert not wr
            wr = [f'ds_write_b128 {vrw[r]}, {acc3[nb][r][4*j:4*j+4]} offset:{(nb * 4 + j) * 1024}' for nb in range(2) for j in range(4)]
    fin = side
    assert a_next == 64
    pf.stamp(7)
    p.add([x for x in fin if x])
    for nb in range(2):
        a_ = acc3[nb][3]
        for jp in range(2):
            for i in range(4 * jp, 4 * jp + 4): p.e(f'v_pk_add_f32 {a_[2*i:2*i+2]}, {a_[2*i:2*i+2]}, {acc3[nb][0][2*i:2*i+2]}')
            o = Sx[0][8 + 4 * jp:12 + 4 * jp] if nb == 0 else P[0][4 * jp:4 * jp + 4]
            for i in range(4): p.e(f'v_cvt_pk_bf16_f32 {o[i]}, {a_[8 * jp + 2 * i]}, {a_[8 * jp + 2 * i + 1]}')
            p.e(f'v_permlane32_swap_b32 {o[0]}, {o[2]}\nv_permlane32_swap_b32 {o[1]}, {o[3]}')
            if FT: p.e(f'ds_write_b128 {vtw[2 * nb + jp]}, {o}')
            else: p.e(f'buffer_store_dwordx4 {o}, {vout}, {sout}, 0 offen offset:{nb * 64 + jp * 32}' + ('', ' sc1', ' nt', ' sc0 sc1')[OUTM])
    if FT:
        p.e('s_waitcnt lgkmcnt(0)')
        for i in range(4): p.e(f'ds_read_b128 {acc3[0][1][4*i:4*i+4]}, {vtr_} offset:{i * 1024}')
        for i in range(4): p.e(f'buffer_store_dwordx4 {acc3[0][1][4*i:4*i+4]}, {vout}, {sout}, {sf[i]} offen' + ('', ' sc1', ' nt', ' sc0 sc1')[OUTM])
    pf.stamp(8)
    pf.flush(s_w, sws, vl, vu0)
    if PRB or PRA:
        p.e(f"""
        v_readlane_b32 {s_t0}, {vtr}, {44 + 2 * PRA}
        v_readlane_b32 {s_t1}, {vtr}, {44 + 2 * PRB}
        v_readlane_b32 {s_t2}, {vtr}, 62
        s_nop 4
        s_sub_u32 {s_t0}, {s_t1}, {s_t0}
        s_min_u32 {s_t0}, {s_t0}, 20000
        s_lshl_b32 {s_t0}, {s_t0}, {PRS}
        s_mov_b32 {s_cnt}, 200000
        {name}_probe:
        s_memrealtime {s_pt[0:2]}
        s_waitcnt lgkmcnt(0)
        s_sub_u32 {s_t1}, {s_pt[0]}, {s_t2}
        s_cmp_ge_u32 {s_t1}, {s_t0}
        s_cbranch_scc1 {name}_probe_done
        s_sub_u32 {s_cnt}, {s_cnt}, 1
        s_cmp_lg_u32 {s_cnt}, 0
        s_cbranch_scc1 {name}_probe
        {name}_probe_done:
        """)
    if dbg > 0:
        p.e(f"""
        v_readlane_b32 {s_t0}, {vtr}, 44
        v_readlane_b32 {s_t1}, {vtr}, 45
        v_and_b32 {vu1}, 1, {vl}
        v_cmp_eq_u32 vcc, 0, {vu1}
        v_mov_b32 {vu1}, {s_t0}
        v_mov_b32 {vu2}, {s_t1}
        v_cndmask_b32 {vu1}, {vu2}, {vu1}, vcc
        v_sub_u32 {vu1}, {vtr}, {vu1}
        v_subrev_u32 {vu2}, 46, {vl}
        v_lshlrev_b32 {vu2}, 2, {vu2}
        v_cmp_gt_u32 vcc, 64, {vu2}
        v_cndmask_b32 {vu2}, 2.0, {vu2}, vcc
        s_mov_b32 {skv[0]}, {pdbg[0]}
        s_mov_b32 {skv[1]}, {pdbg[1]}
        s_movk_i32 {skv[2]}, 64
        s_lshl_b32 {s_t0}, s2, 2
        s_add_u32 {s_t0}, {s_t0}, {s_w}
        s_cmp_eq_u32 {s_t0}, {dbg - 1}
        s_cselect_b32 {s_t0}, 0, 2.0
        buffer_store_dword {vu1}, {vu2}, {skv}, {s_t0} offen
        """)
    p.e('s_endpgm')

    p.seg('slow0')
    p.e(f'{name}_slow:')
    p.e(f"""
    s_waitcnt vmcnt(0) lgkmcnt(0)
    v_mov_b32 {vu0}, 0xff800000
    v_mov_b32 {vu1}, 0xff800000
    s_mov_b32 {s_okv}, 0
    s_mov_b32 {skv[2]}, 262144
    """)
    p.seg('slow1')
    p.e(f'{name}_slow1:')
    for f in range(2): p.e(f'buffer_load_dwordx4 {K[0][4*f:4*f+4]}, {vl16}, {skv}, {s_okv} offen offset:{f * 1024}')
    for q in range(2):
        for f in range(2): p.e(qk(Sx[q], 0, q, f, '0'))
    rowmax(vu0, Sx[0], False); rowmax(vu1, Sx[1], False)
    p.e(f's_add_u32 {s_okv}, {s_okv}, 4096\ns_cmp_lt_u32 {s_okv}, 262144\ns_cbranch_scc1 {name}_slow1')
    p.seg('slow2')
    setc(0, vu0); setc(1, vu1)
    for q in range(2):
        for i in range(16): p.e(f'v_accvgpr_write_b32 {O[q][i]}, 0')
        for i in range(4): p.e(f'v_accvgpr_write_b32 {L[q][i]}, 0')
    p.e(f's_mov_b32 {s_okv}, 0')
    p.seg('slow3')
    p.e(f'{name}_slow3:')
    for f in range(2): p.e(f'buffer_load_dwordx4 {K[0][4*f:4*f+4]}, {vl16}, {skv}, {s_okv} offen offset:{f * 1024}')
    for f in range(2): p.e(f'buffer_load_dwordx4 {V[0][4*f:4*f+4]}, {vl16}, {skv}, {s_okv} offen offset:{2048 + f * 1024}')
    for q in range(2):
        for f in range(2): p.e(qk(Sx[q], 0, q, f, C[q]))
    for q in range(2):
        for i in range(16): p.e(f'v_exp_f32 {Sx[q][i]}, {Sx[q][i]}')
        for i in range(8): p.e(cvt(q, i))
        p.add([pv(q, 0), pv(q, 1), rsum(q)])
    p.e(f's_add_u32 {s_okv}, {s_okv}, 4096\ns_cmp_lt_u32 {s_okv}, 262144\ns_cbranch_scc1 {name}_slow3')
    p.seg('slow4')
    lsum()
    p.e(f's_branch {name}_epi')
    for lab, cond, reload_ in spins:
        p.seg(lab)
        p.e(f'{lab}_spin:\ns_mov_b32 {s_cnt if lab.endswith("cnt") else s_spin}, {SPIN}\n{lab}_again:\ns_sleep 2')
        p.add(reload_)
        p.e('s_waitcnt vmcnt(0)\ns_nop 1')
        p.add(cond)
        r_ = s_cnt if lab.endswith('cnt') else s_spin
        p.e(f's_nop 4\ns_cbranch_vccz {lab}_ok\ns_sub_u32 {r_}, {r_}, 1\ns_cmp_lg_u32 {r_}, 0\ns_cbranch_scc1 {lab}_again\ns_branch {lab}_ok')
    p.seg('end')
    p.e(f'{name}_end:\ns_endpgm')
    mid = ['join', 'partA', 'loop', 'loop', 'tail']
    slow = ['slow0', 'slow1', 'slow1', 'slow2', 'slow3', 'slow3', 'slow4']
    traces = []
    for wc in range(2):
        for x in ([],):
            traces.append(['pro'] + x + [f'c{wc}a', f'c{wc}l1', f'c{wc}l2', f'c{wc}l1', f'c{wc}l2'] + ([] if P13 else [f'c{wc}l1']) + [f'c{wc}last'] + mid + ['epi'])
    traces.append(mid + slow + ['epi'])
    for lab, _, _ in spins: traces.append([lab])
    p.auto_waits(traces)
    nn = p.hazards(traces)
    return kernel_header(name) + p.text(), kernel_desc(name), dict(nops=nn, v=va.p, a=aa.p, s=max(sa.p, s_hi))

if __name__ == '__main__':
    import sys
    NAME = 'gated_mix__softmax_full_mha__glu_gated_bilinear__prompt'
    REF = f'cdna_kernels/{NAME}.s.ref'
    dst = sys.argv[1]
    kw = {a.split('=')[0]: float(a.split('=')[1]) if '.' in a else int(a.split('=')[1]) for a in sys.argv[2:] if '=' in a}
    t, d, info = gen_fused(NAME + '_kernel', prof='prof' in sys.argv, force_slow='slow' in sys.argv, **kw)
    print(info, file=sys.stderr)
    head = [l for l in open(REF).read().split('\n') if l.startswith(';') and '@launch' not in l]
    doc = '''; One persistent launch, 256 workgroups x 4 waves (one wave per SIMD, 512 registers, 160 KiB LDS).
;   phase 1  x[256 rows] @ [wq_h wk_h wv_h | w_gate 112 cols | w_up 112 cols], 16x16x32 MFMA, LDS-DMA double buffer.
;   phase 2  softmax(QK^T)V for the block's 256 queries (32x32x16 MFMA), interleaved with the down projection of a
'''
    out = '\n'.join(head) + f'\n; @launch grid=(256,1,1) block=(256,1,1) lds={F_LDS}\n' + doc + '.amdgcn_target "amdgcn-amd-amdhsa--gfx950"\n' + t + d
    open(dst, 'w').write(out)
```
